```python
import torch

def _softmax(x, axis=-1):
    return torch.softmax(x, dim=axis)
def _gelu(x):
    return torch.nn.functional.gelu(x, approximate="tanh")
def _silu(x):
    return torch.nn.functional.silu(x)
def _sigmoid(x):
    return torch.sigmoid(x)
def _layernorm(x, axis=-1, eps=1e-5):
    m = x.mean(dim=axis, keepdim=True)
    v = x.var(dim=axis, keepdim=True, unbiased=False)
    return (x - m) / torch.sqrt(v + eps)
def _scatter_add(tgt, idx, src, axis=0):
    return tgt.clone().index_add_(axis, idx, src)
def _segment_sum(src, seg, n):
    out = torch.zeros((n,) + src.shape[1:], dtype=src.dtype)
    return out.index_add_(0, seg, src)
def _pad(x, pw):
    flat = tuple(v for pair in reversed(pw) for v in pair)
    return torch.nn.functional.pad(x, flat)

kernel_name = 'standalone__gqa_block_cached__near_ridge'

def setup_inputs():

    _w = (lambda a: (lambda t: t.to(torch.bfloat16) if t.is_floating_point() else t)(torch.as_tensor(a)))
    B, Sq, D = 8, 144, 640
    Hq, Hkv, Sk, Dh = 32, 32, 512, 192
    assert Hq % Hkv == 0, (Hq, Hkv)
    return {
        "x": _w((lambda *s: torch.randn(*s, dtype=torch.bfloat16) * 0.8)(B, Sq, D)),
        "k_cache": _w((lambda *s: torch.randn(*s, dtype=torch.bfloat16) * 0.8)(B, Hkv, Sk, Dh)),
        "v_cache": _w((lambda *s: torch.randn(*s, dtype=torch.bfloat16) * 0.05)(B, Hkv, Sk, Dh)),
        "wq": _w((lambda *s: torch.randn(*s, dtype=torch.bfloat16) * 0.8)(D, Hq * Dh) * (D ** -0.5)),
        "wo": _w((lambda *s: torch.randn(*s, dtype=torch.bfloat16) * 0.05)(Hq * Dh, D) * ((Hq * Dh) ** -0.5)),
    }

def reference(x, k_cache, v_cache, wq, wo):
    B, Sq, D = x.shape
    Hq, Dh = 32, 192
    Hkv = k_cache.shape[1]
    rep = Hq // Hkv
    q = (lambda x, *d: x.permute(*d))((x @ wq).reshape(B, Sq, Hq, Dh), 0, 2, 1, 3)
    k = (lambda x, n, axis: torch.repeat_interleave(x, n, dim=axis))(k_cache, rep, axis=1)
    v = (lambda x, n, axis: torch.repeat_interleave(x, n, dim=axis))(v_cache, rep, axis=1)
    scores = torch.einsum("bhqd,bhkd->bhqk", q, k) * (Dh ** -0.5)
    p = _softmax(scores, axis=-1)
    o = torch.einsum("bhqk,bhkd->bhqd", p, v)
    return (lambda x, *d: x.permute(*d))(o, 0, 2, 1, 3).reshape(B, Sq, Hq * Dh) @ wo
```

```python
import re

REG = re.compile(r'^(-|\|)?([vsa])(\d+)\|?$')
RNG = re.compile(r'^(-)?([vsa])\[(\d+):(\d+)\]$')
TRANS = ('v_exp_f32', 'v_log_f32', 'v_rcp_f32', 'v_rsq_f32', 'v_sqrt_f32', 'v_sin_f32', 'v_cos_f32')

def regs_of(tok):
    tok = tok.strip()
    m = REG.match(tok)
    if m: return [(m.group(2), int(m.group(3)))]
    m = RNG.match(tok)
    if m: return [(m.group(2), i) for i in range(int(m.group(3)), int(m.group(4)) + 1)]
    if tok == 'vcc': return [('s', 'vcc')]
    if tok == 'm0': return [('s', 'm0')]
    if tok == 'exec': return [('s', 'exec')]
    return []

def split_ops(s):
    out, depth, cur = [], 0, ''
    for ch in s:
        if ch in '[(': depth += 1
        if ch in '])': depth -= 1
        if ch == ',' and depth == 0:
            out.append(cur.strip()); cur = ''
        else: cur += ch
    if cur.strip(): out.append(cur.strip())
    return out

class Rec:
    __slots__ = ('kind', 'w', 'r', 'rc', 'weight', 'text', 'passes', 'dpp_src')

class Em:
    def __init__(self):
        self.lines = []
        self.hist = []
        self.lgkm = []
        self.vm = []
        self.opt_start = None
        self.nops = 0
        self.count = 0

    def raw(self, text):
        self.lines.append(text)

    def comment(self, t): self.lines.append('    ; ' + t)

    def label(self, name):
        self.lines.append(name + ':')

    def reset(self):
        self.hist = []; self.lgkm = []; self.vm = []

    def parse(self, text):
        t = text.split(';')[0].strip()
        sp = t.split(None, 1)
        mn = sp[0]
        ops = split_ops(sp[1]) if len(sp) > 1 else []
        mods = ''
        if ops:
            l = ops[-1].split(None, 1)
            if len(l) > 1 and not ops[-1].startswith('hwreg'):
                ops[-1] = l[0]; mods = l[1]
        rec = Rec(); rec.text = text; rec.w = []; rec.r = []; rec.rc = []; rec.weight = 1; rec.passes = 0; rec.dpp_src = []
        R = [regs_of(o) for o in ops]
        if mn.startswith('v_mfma'):
            rec.kind = 'mfma'; rec.w = R[0]; rec.r = R[1] + R[2]; rec.rc = R[3]
            rec.passes = 4 if '16x16x32' in mn else 8
        elif mn.startswith('ds_read'):
            rec.kind = 'ds'; rec.w = R[0]; rec.r = R[1]
        elif mn.startswith('ds_'):
            rec.kind = 'ds'; rec.r = sum(R, [])
        elif mn.startswith('buffer_load'):
            rec.kind = 'vmem'
            if 'lds' in mods.split():
                rec.r = sum(R, []) + [('s', 'm0')]; rec.kind = 'dma'
            else:
                rec.w = R[0]; rec.r = sum(R[1:], [])
        elif mn.startswith('global_load'):
            rec.kind = 'vmem'; rec.w = R[0]; rec.r = sum(R[1:], [])
        elif mn.startswith('buffer_store') or mn.startswith('global_store'):
            rec.kind = 'store'; rec.r = sum(R, [])
            d = R[0] if mn.startswith('buffer') else R[1]
            rec.rc = d if len(d) > 2 else []
        elif mn.startswith('global_atomic') or mn.startswith('buffer_atomic'):
            rec.kind = 'vmem'
            if 'sc0' in mods.split():
                rec.w = R[0]; rec.r = sum(R[1:], [])
                if mn.startswith('buffer'): rec.r = sum(R, [])
            else: rec.r = sum(R, [])
        elif mn in ('buffer_wbl2', 'buffer_inv'):
            rec.kind = 'vmem'
        elif mn.startswith('v_'):
            rec.kind = 'trans' if mn.replace('_e32', '').replace('_e64', '') in TRANS else 'valu'
            rec.w = list(R[0]); rec.r = sum(R[1:], [])
            if mn.startswith('v_permlane') and 'swap' in mn:
                rec.kind = 'perm'; rec.w = R[0] + R[1]; rec.r = R[0] + R[1]
            if mn.startswith('v_readfirstlane') or mn.startswith('v_readlane'):
                rec.kind = 'rdlane'
            if '_co_' in mn: rec.w += R[1]; rec.r = sum(R[2:], [])
            if mn.startswith('v_fmac') or mn.startswith('v_pk_fmac'): rec.r += R[0]
            if mn.startswith('v_cndmask') and len(ops) == 3: rec.r += [('s', 'vcc')]
            if '_dpp' in mn or 'row_' in mods or 'quad_perm' in mods:
                rec.dpp_src = R[1]
        elif mn == 's_nop':
            rec.kind = 'nop'; rec.weight = int(ops[0], 0) + 1
        elif mn.startswith('s_load') or mn.startswith('s_buffer_load') or mn.startswith('s_memtime') or mn.startswith('s_memrealtime'):
            rec.kind = 'smem'; rec.w = R[0]; rec.r = sum(R[1:], [])
        else:
            rec.kind = 'salu'
            if mn.startswith('s_cmp') or mn.startswith('s_cbranch') or mn in ('s_barrier', 's_waitcnt', 's_branch', 's_endpgm', 's_setprio', 's_sleep'):
                rec.r = sum(R, [])
            elif R:
                rec.w = R[0]; rec.r = sum(R[1:], [])
                if 'saveexec' in mn: rec.w = rec.w + [('s', 'exec')]
        return rec

    def need_states(self, c):
        need = 0; dist = 0
        cr = set(c.r); cw = set(c.w); crc = set(c.rc)
        isvalu = c.kind in ('valu', 'trans', 'perm', 'rdlane')
        for p in reversed(self.hist):
            req = 0
            pw = set(p.w)
            pvalu = p.kind in ('valu', 'trans', 'perm', 'rdlane')
            if p.kind == 'mfma':
                big = {4: 8, 8: 12}[p.passes]
                if c.kind == 'mfma':
                    if pw & cr: req = max(req, big)
                    if pw & crc and (pw != crc or p.passes != c.passes): req = max(req, {4: 6, 8: 10}[p.passes])
                    if pw & cw and pw != crc: req = max(req, big)
                else:
                    if pw & (cr | cw | crc): req = max(req, big)
                    if isvalu and set(p.rc) & cw: req = max(req, {4: 3, 8: 7}[p.passes])
            if pvalu:
                vw = {x for x in pw if x[0] in 'va'}
                sw = {x for x in pw if x[0] == 's'}
                if c.kind == 'mfma' and vw & (cr | crc): req = max(req, 2)
                if c.dpp_src and vw & set(c.dpp_src): req = max(req, 2)
                if c.kind == 'perm' and vw & cr: req = max(req, 2)
                if c.kind == 'rdlane' and vw & cr: req = max(req, 1)
                if p.kind == 'trans' and isvalu and c.kind != 'trans' and vw & cr: req = max(req, 1)
                if p.kind == 'trans' and c.kind == 'trans' and vw & cr: req = max(req, 1)
                if sw & cr:
                    if c.kind in ('vmem', 'dma', 'store'): req = max(req, 5)
                    elif isvalu: req = max(req, 4 if c.kind == 'rdlane' else 2)
                    elif c.kind in ('salu', 'smem'): req = max(req, 2)
                if ('s', 'exec') in sw:
                    if c.kind == 'mfma': req = max(req, 4)
                    if c.dpp_src: req = max(req, 5)
                    if c.kind in ('rdlane', 'perm'): req = max(req, 4)
            if p.kind == 'salu' and ('s', 'm0') in pw and ('s', 'm0') in cr and c.kind == 'dma': req = max(req, 1)
            if p.kind == 'store' and p.rc and set(p.rc) & cw: req = max(req, 2)
            if req > dist: need = max(need, req - dist)
            dist += p.weight
            if dist > 24: break
        return need

    def _push(self, rec):
        self.hist.append(rec)
        if len(self.hist) > 200 and self.opt_start is None: self.hist = self.hist[-64:]
        self.lines.append('    ' + rec.text)
        self.count += 1

    def waitcnt(self, vm=None, lgkm=None):
        parts = []
        if vm is not None: parts.append(f'vmcnt({min(vm, 63)})')
        if lgkm is not None: parts.append(f'lgkmcnt({min(lgkm, 15)})')
        self._push(self.parse('s_waitcnt ' + ' '.join(parts)))

    def wait_lgkm0(self, force=False):
        if self.lgkm or force:
            self.waitcnt(lgkm=0); self.lgkm = []

    def vm_need_tag(self, tag):
        idx = max([i for i, e in enumerate(self.vm) if e[0] == tag], default=-1)
        return idx

    def _vm_wait_idx(self, idx):
        n = sum(1 for e in self.vm[idx + 1:] if not e[2])
        self.vm = self.vm[idx + 1:]
        return n

    def wait_vm_tag(self, tag, lgkm0=False):
        idx = self.vm_need_tag(tag)
        vm = self._vm_wait_idx(idx) if idx >= 0 else None
        lg = None
        if lgkm0 and self.lgkm:
            lg = 0; self.lgkm = []
        if vm is not None or lg is not None: self.waitcnt(vm=vm, lgkm=lg)

    def wait_vm0(self):
        self.waitcnt(vm=0); self.vm = []

    def op(self, text, tag=None):
        rec = self.parse(text)
        touched = set(rec.r) | set(rec.w) | set(rec.rc)
        lg = None; vm = None
        for i in range(len(self.lgkm) - 1, -1, -1):
            if self.lgkm[i] & touched:
                lg = len(self.lgkm) - 1 - i
                self.lgkm = self.lgkm[i + 1:]
                break
        for i in range(len(self.vm) - 1, -1, -1):
            if self.vm[i][1] & touched:
                if rec.kind == 'vmem' and not (self.vm[i][1] & set(rec.r)):
                    break
                vm = self._vm_wait_idx(i)
                break
        if lg is not None or vm is not None: self.waitcnt(vm=vm, lgkm=lg)
        n = self.need_states(rec)
        while n > 0:
            k = min(n, 16)
            self._push(self.parse(f's_nop {k - 1}')); self.nops += 1
            n -= k
        self._push(rec)
        if rec.kind == 'ds':
            self.lgkm.append(set(rec.w))
            assert len(self.lgkm) < 64
        if rec.kind in ('vmem', 'dma', 'store'):
            self.vm.append([tag, set(rec.w), self.opt_start is not None])
        if rec.kind == 'smem':
            assert not self.lgkm, "smem mixed with lds"

    def begin_opt(self):
        assert self.opt_start is None
        self.opt_start = len(self.hist)
        self._lg_at_opt = len(self.lgkm)

    def end_opt(self):
        for r in self.hist[self.opt_start:]: r.weight = 0
        self.opt_start = None
        assert len(self.lgkm) == self._lg_at_opt, "LDS ops inside optional block not supported"

    def barrier(self):
        self.op('s_barrier')

    def text(self):
        return '\n'.join(self.lines) + '\n'

def interleave(em, main, fill, lead=0):
    def emit(x):
        if callable(x): x()
        elif isinstance(x, tuple): em.op(x[0], tag=x[1])
        else: em.op(x)
    fill = list(fill)
    for x in fill[:lead]: emit(x)
    fill = fill[lead:]
    n, m = len(main), len(fill)
    done = 0
    for i, x in enumerate(main):
        emit(x)
        upto = (m * (i + 1) + n - 1) // n
        while done < min(upto, m):
            emit(fill[done]); done += 1
    while done < m:
        emit(fill[done]); done += 1
```

```python
import sys, struct, math
from em import Em, interleave

NAME = 'standalone__gqa_block_cached__near_ridge'
def fbits(x): return struct.unpack('<I', struct.pack('<f', x))[0]

class Cfg:
    nt_kv = True
    nt_w = True
    nt_k2 = False
    two_types = True
    nk1 = 2
    pre = True
    code_pre = True
    prio = False
cfg = Cfg()
for a in sys.argv[2:]:
    k, v = a.split('='); setattr(cfg, k, type(getattr(cfg, k))(int(v)))

def vr(b, n=4): return f'v[{b}:{b + n - 1}]' if n > 1 else f'v{b}'
def sr(b, n): return f's[{b}:{b + n - 1}]'
MF = 'v_mfma_f32_16x16x32_bf16'
def mfma(d, a, b, c=None):
    return f'{MF} {vr(d)}, {vr(a)}, {vr(b)}, ' + ('0' if c is None else vr(c))

O_HEAD = 55296
WS_PART = 16 << 20
PART_TILE = 90 * 1024

def srd(em, d, base_lo, base_hi, off_sgpr, size):
    if off_sgpr is None:
        em.op(f's_mov_b32 s{d}, s{base_lo}'); em.op(f's_mov_b32 s{d+1}, s{base_hi}')
    else:
        em.op(f's_add_u32 s{d}, s{base_lo}, {off_sgpr}'); em.op(f's_addc_u32 s{d+1}, s{base_hi}, 0')
    em.op(f's_mov_b32 s{d+2}, {size}')
    em.op(f's_mov_b32 s{d+3}, 0x20000')

SX, SWQ, SK, SV, SO = 16, 20, 24, 28, 32
sW, sW3072, sW1024, sTYPE, sOFF, sT0, sT1, sT2, sC, sB, sH, sJ, sLOC = 36, 37, 38, 39, 40, 41, 42, 43, 44, 45, 46, 47, 48
vLANE, vXO, vWO, vK0, vK1, vVO = 1, 2, 3, 4, 5, 6
vRA = [7, 8]
vRB = [9, 10, 11]
vRC = [12, 13, 14]
vT = 15
vPA, vPB, vPW, vMS = 240, 241, 242, 243
TMP = list(range(244, 256))
STG = 43008
PBASE, VBASE, MAXB, SUMB = 0, 73728, 147456, 149504
LDS1 = 151552
KSP = 16
def KR0(p): return 20 + 8 * p
def KR1(p): return 24 + 8 * p
def KT(p): return KSP if p == 0 else KR1(p - 1)
def kop(kt, ks):
    p = (kt // 2) * 6 + (ks // 2) * 2 + (kt % 2)
    return KR0(p) if ks % 2 == 0 else KT(p)
def sreg(kt, qt):
    if kt < 2: return 116 + 4 * (qt * 2 + kt)
    i = qt * 2 + (kt - 2)
    return 16 + 4 * i if i < 12 else 188 + 4 * (i - 12)
ACC = 116
MC = 212
SUM = 224
QF = 224

def k_loads(em, half):
    nt = ' nt' if cfg.nt_kv else ''
    for c in range(3):
        for k in range(2):
            p = half * 6 + c * 2 + k
            kt = half * 2 + k
            em.op(f's_mov_b32 s{sOFF}, {kt * 6144}')
            em.op(f'buffer_load_dwordx4 {vr(KR0(p))}, v{vK0}, {sr(SK,4)}, s{sOFF} offen offset:{c*128}{nt}', tag=f'K{half}')
            em.op(f'buffer_load_dwordx4 {vr(KR1(p))}, v{vK1}, {sr(SK,4)}, s{sOFF} offen offset:{c*128}{nt}', tag=f'K{half}')

def k_fix_ops(half):
    ops = []
    for pp in range(6):
        p = half * 6 + pp
        for d in range(4):
            r0, r1, t = KR0(p) + d, KR1(p) + d, KT(p) + d
            ops.append(f'v_mov_b32_dpp v{t}, v{r0} row_ror:8 row_mask:0xf bank_mask:0x3')
            ops.append(f'v_mov_b32_dpp v{t}, v{r1} row_ror:8 row_mask:0xf bank_mask:0xc')
            ops.append(f'v_mov_b32_dpp v{r0}, v{r1} quad_perm:[0,1,2,3] row_mask:0xf bank_mask:0xc')
    return ops

def stage_dma_ops(em, s, qh):
    nt = ' nt' if cfg.nt_w else ''
    slot = (s % 3) * STG
    ops = []
    for c in range(3):
        def f(c=c):
            em.op(f's_add_u32 m0, s{sW3072}, {slot + c * 896}')
            em.op(f's_mov_b32 s{sOFF}, {s * 786432}')
            em.op(f'buffer_load_dwordx4 v{vWO}, {sr(SWQ,4)}, s{sOFF} offen offset:{c*128}{nt} lds', tag=f'S{s}')
        ops.append(f)
    for j in range(2):
        def f(j=j):
            em.op(f's_add_u32 m0, s{sW1024}, {slot + j * 8192}')
            em.op(f's_mov_b32 s{sOFF}, {s * 128 + j * 81920}')
            em.op(f'buffer_load_dwordx4 v{vXO}, {sr(SX,4)}, s{sOFF} offen{nt} lds', tag=f'S{s}')
        ops.append(f)
    if qh == 1:
        def f():
            lab = f'L_x{s}'
            em.op(f's_cmp_lt_u32 s{sW}, 6')
            em.op(f's_cbranch_scc0 {lab}')
            em.begin_opt()
            em.op(f's_add_u32 m0, s{sW1024}, {slot + 12288}')
            em.op(f's_mov_b32 s{sOFF}, {s * 128 + 122880}')
            em.op(f'buffer_load_dwordx4 v{vXO}, {sr(SX,4)}, s{sOFF} offen{nt} lds', tag=f'S{s}')
            em.end_opt()
            em.label(lab)
        ops.insert(0, f)
    return ops

def v_dma_ops(em, s):
    nt = ' nt' if cfg.nt_kv else ''
    ops = []
    for c in range(3):
        def f(c=c):
            em.op(f's_add_u32 m0, s{sW3072}, {VBASE + (s % 3) * 24576 + c * 896}')
            em.op(f's_mov_b32 s{sOFF}, {(128 * (s & 3) + 32 * (s >> 2)) * 384}')
            em.op(f'buffer_load_dwordx4 v{vVO}, {sr(SV,4)}, s{sOFF} offen offset:{c*128}{nt} lds', tag=f'V{s}')
        ops.append(f)
    return ops

def k1_prologue(em):
    em.op('s_cmp_ge_u32 s2, 256')
    em.op('s_cbranch_scc1 L_k1_exit')
    em.op('s_load_dwordx8 s[4:11], s[0:1], 0')
    em.op('s_load_dwordx2 s[12:13], s[0:1], 56')
    em.op(f'v_and_b32 v{vLANE}, 63, v0')
    em.op(f'v_lshrrev_b32 v{vT}, 6, v0')
    em.op(f's_and_b32 s{sT0}, s2, 7')
    em.op(f's_lshr_b32 s{sLOC}, s2, 3')
    em.op(f'v_readfirstlane_b32 s{sW}, v{vT}')
    em.op(f's_and_b32 s{sJ}, s{sLOC}, 3')
    em.op(f's_lshr_b32 s{sB}, s{sLOC}, 2')
    em.op(f's_lshl_b32 s{sH}, s{sT0}, 2')
    em.op(f's_add_u32 s{sH}, s{sH}, s{sJ}')
    em.op(f's_and_b32 s{sTYPE}, s{sB}, 1')
    em.op(f's_mul_i32 s{sW3072}, s{sW}, 3072')
    em.op(f's_lshl_b32 s{sW1024}, s{sW}, 10')
    em.op(f's_add_u32 s{sW1024}, s{sW1024}, 24576')
    em.op(f's_mov_b32 s{sC}, {fbits(192 ** -0.5 * math.log2(math.e))}')
    t0, t1, t2, t3, t4 = TMP[:5]
    L = f'v{vLANE}'
    em.op(f'v_lshrrev_b32 v{t0}, 3, {L}')
    em.op(f'v_and_b32 v{t1}, 7, {L}')
    em.op(f'v_lshrrev_b32 v{t2}, 4, {L}')
    if cfg.code_pre:
        em.op('s_getpc_b64 s[50:51]')
        em.label('L_k1_pc')
        em.op('s_add_u32 s50, s50, k1_body_start-L_k1_pc')
        em.op('s_addc_u32 s51, s51, 0')
        em.op(f's_and_b32 s{sT1}, s{sLOC}, 7')
        em.op(f's_lshl_b32 s{sT1}, s{sT1}, 13')
        em.op(f'v_lshlrev_b32 v{t3}, 4, v0')
        em.op(f'v_add_u32 v{t3}, s{sT1}, v{t3}')
        em.op(f'v_min_u32 v{t3}, k1_body_end-k1_body_start-16, v{t3}')
        em.op(f'global_load_dwordx4 {vr(116)}, v{t3}, s[50:51]')
    em.op('s_waitcnt lgkmcnt(0)')
    em.op(f's_mul_i32 s{sT0}, s{sB}, 184320'); srd(em, SX, 4, 5, f's{sT0}', 184320)
    em.op(f's_mul_i32 s{sT0}, s{sH}, 384'); srd(em, SWQ, 10, 11, f's{sT0}', 7864320)
    em.op(f's_sub_u32 s{SWQ+2}, s{SWQ+2}, s{sT0}')
    em.op(f's_lshl_b32 s{sT1}, s{sB}, 5'); em.op(f's_add_u32 s{sT1}, s{sT1}, s{sH}')
    em.op(f's_mul_i32 s{sT0}, s{sT1}, 196608')
    srd(em, SK, 6, 7, f's{sT0}', 196608); srd(em, SV, 8, 9, f's{sT0}', 196608)
    em.op(f's_mul_i32 s{sT0}, s{sT1}, {O_HEAD}'); srd(em, SO, 12, 13, f's{sT0}', O_HEAD)
    em.op(f's_and_b32 s{sT0}, s{sW}, 1')
    em.op(f's_lshl_b32 s{sT1}, s{sT0}, 2')
    em.op(f'v_add_u32 v{t3}, s{sT1}, v{t2}')
    em.op(f'v_xor_b32 v{t3}, v{t3}, v{t1}')
    em.op(f'v_lshlrev_b32 v{t3}, 4, v{t3}')
    em.op(f's_lshl_b32 s{sT2}, s{sW}, 3')
    em.op(f'v_add_u32 v{t4}, s{sT2}, v{t0}')
    em.op(f'v_mul_u32_u24 v{vXO}, 1280, v{t4}')
    em.op(f'v_add_u32 v{vXO}, v{vXO}, v{t3}')
    em.op(f'v_and_b32 v{t3}, 1, v{t2}')
    em.op(f'v_lshlrev_b32 v{t3}, 1, v{t3}')
    em.op(f'v_add_u32 v{t3}, s{sT1}, v{t3}')
    em.op(f'v_xor_b32 v{t3}, v{t3}, v{t1}')
    em.op(f'v_lshlrev_b32 v{t3}, 4, v{t3}')
    em.op(f'v_mul_u32_u24 v{vWO}, 12288, v{t4}')
    em.op(f'v_add_u32 v{vWO}, v{vWO}, v{t3}')
    if cfg.pre:
        nt = ' nt' if cfg.nt_w else ''
        em.op(f's_mul_i32 s{sT0}, s{sB}, {80 * 12288}')
        for c in range(3):
            em.op(f'buffer_load_dwordx4 {vr(120)}, v{vWO}, {sr(SWQ,4)}, s{sT0} offen offset:{c*128}{nt}')
        em.op(f's_cmp_lt_u32 s{sW}, 2')
        em.op(f's_cbranch_scc0 L_pre1')
        em.begin_opt()
        em.op(f's_add_u32 s{sT0}, s{sT0}, {64 * 12288}')
        for c in range(3):
            em.op(f'buffer_load_dwordx4 {vr(120)}, v{vWO}, {sr(SWQ,4)}, s{sT0} offen offset:{c*128}{nt}')
        em.end_opt()
        em.label('L_pre1')
        em.op(f's_mul_i32 s{sT0}, s{sJ}, {36 * 1280}')
        em.op(f'v_lshlrev_b32 v{t3}, 4, v0')
        for i in range(6):
            em.op(f'buffer_load_dwordx4 {vr(120)}, v{t3}, {sr(SX,4)}, s{sT0} offen{nt}')
            if i < 5: em.op(f's_add_u32 s{sT0}, s{sT0}, 8192')
    em.op(f'v_and_b32 v{t3}, 1, v{t0}')
    em.op(f'v_lshlrev_b32 v{t3}, 2, v{t3}')
    em.op(f'v_add_u32 v{t3}, v{t3}, v{t2}')
    em.op(f'v_lshlrev_b32 v{t3}, 4, v{t3}')
    em.op(f's_lshl_b32 s{sT2}, s{sW}, 6')
    em.op(f'v_add_u32 v{t4}, s{sT2}, v{t1}')
    em.op(f'v_mul_u32_u24 v{t4}, 384, v{t4}')
    em.op(f'v_add_u32 v{vK0}, v{t4}, v{t3}')
    em.op(f'v_xor_b32 v{t3}, 64, v{t3}')
    em.op(f'v_add_u32 v{vK1}, v{t4}, v{t3}')
    em.op(f'v_add_u32 v{vK1}, {8 * 384}, v{vK1}')
    if cfg.two_types and cfg.nk1 > 0:
        em.op(f's_cmp_eq_u32 s{sTYPE}, 1')
        em.op('s_cbranch_scc0 L_nok1')
        em.begin_opt()
        k_loads(em, 0)
        if cfg.nk1 > 2: k_loads(em, 1)
        em.end_opt()
        em.label('L_nok1')
    em.op(f's_lshr_b32 s{sT0}, s{sW}, 2'); em.op(f's_lshl_b32 s{sT0}, s{sT0}, 6')
    em.op(f's_and_b32 s{sT1}, s{sW}, 3'); em.op(f's_lshl_b32 s{sT2}, s{sT1}, 3')
    em.op(f's_add_u32 s{sT0}, s{sT0}, s{sT2}')
    em.op(f'v_add_u32 v{t3}, s{sT0}, v{t0}')
    em.op(f'v_mul_u32_u24 v{vVO}, 384, v{t3}')
    em.op(f'v_lshlrev_b32 v{t3}, 1, v{t2}')
    em.op(f'v_xor_b32 v{t3}, v{t3}, v{t1}')
    em.op(f'v_lshlrev_b32 v{t3}, 4, v{t3}')
    em.op(f'v_add_u32 v{vVO}, v{vVO}, v{t3}')
    em.op(f'v_lshlrev_b32 v{t3}, 2, v0')
    em.op(f'v_add_u32 v{t3}, {MAXB}, v{t3}')
    em.op(f'v_mov_b32 v{t4}, 0xff800000')
    em.op(f'ds_write_b32 v{t3}, v{t4}')
    em.op(f'v_mov_b32 v{t4}, 0')
    em.op(f'ds_write_b32 v{t3}, v{t4} offset:{SUMB - MAXB}')
    em.op(f'v_and_b32 v{vMS}, 15, {L}')
    em.op(f'v_lshlrev_b32 v{vMS}, 2, v{vMS}')
    em.op(f'v_add_u32 v{vMS}, {MAXB}, v{vMS}')
    em.wait_lgkm0()
    em.op(f's_cmp_lt_u32 s{sW}, 4')
    em.op('s_cbranch_scc0 L_k1_q1')

def tr_addr(em, dst, dg_s, t, rowmul_g, base, fmode):
    t0, t1, t2, t3 = TMP[:4]
    L = f'v{vLANE}'
    em.op(f's_mul_i32 s{sT0}, s{dg_s}, 3'); em.op(f's_add_u32 s{sT0}, s{sT0}, {t}')
    em.op(f's_lshr_b32 s{sT1}, s{sT0}, 2'); em.op(f's_lshl_b32 s{sT1}, s{sT1}, 10')
    em.op(f's_add_u32 s{sT1}, s{sT1}, {base}')
    em.op(f's_and_b32 s{sT0}, s{sT0}, 3')
    em.op(f'v_lshrrev_b32 v{t0}, 4, {L}')
    em.op(f'v_bfe_u32 v{t1}, {L}, 2, 2')
    em.op(f'v_and_b32 v{t2}, 1, v{t0}')
    em.op(f'v_lshlrev_b32 v{t2}, 1, v{t2}')
    em.op(f'v_lshrrev_b32 v{t3}, 1, v{t1}')
    em.op(f'v_add_u32 v{t3}, v{t3}, v{t2}')
    em.op(f'v_xor_b32 v{t3}, s{sT0}, v{t3}')
    em.op(f'v_lshlrev_b32 v{t3}, 5, v{t3}')
    em.op(f'v_lshlrev_b32 v{dst}, 7, v{t1}')
    em.op(f'v_add_u32 v{dst}, v{dst}, v{t3}')
    if fmode == 'w':
        em.op(f'v_mul_u32_u24 v{t3}, 3072, v{t0}')
    else:
        em.op(f'v_lshlrev_b32 v{t2}, 8, v{t2}')
        em.op(f'v_add_u32 v{dst}, v{dst}, v{t2}')
        em.op(f'v_lshrrev_b32 v{t3}, 1, v{t0}')
        em.op(f'v_mul_u32_u24 v{t3}, 3072, v{t3}')
    em.op(f'v_add_u32 v{dst}, v{dst}, v{t3}')
    em.op(f'v_and_b32 v{t3}, 3, {L}')
    em.op(f'v_lshlrev_b32 v{t3}, 3, v{t3}')
    em.op(f'v_add_u32 v{dst}, v{dst}, v{t3}')
    em.op(f'v_add_u32 v{dst}, s{sT1}, v{dst}')

def k1_body(em, qh):
    nq = 5 if qh == 0 else 4
    q0 = 0 if qh == 0 else 5
    L = f'v{vLANE}'
    t0, t1, t2, t3, t4, t5 = TMP[:6]
    sDG = 49
    em.op(f's_and_b32 s{sDG}, s{sW}, 3')
    for s in range(3):
        for f in stage_dma_ops(em, s, qh): f()
    em.op(f'v_bfe_u32 v{t0}, {L}, 3, 1'); em.op(f'v_lshlrev_b32 v{t0}, 10, v{t0}')
    em.op(f'v_and_b32 v{t1}, 7, {L}'); em.op(f'v_lshlrev_b32 v{t1}, 7, v{t1}')
    em.op(f'v_add_u32 v{t0}, v{t0}, v{t1}')
    em.op(f'v_bfe_u32 v{t1}, {L}, 1, 3'); em.op(f'v_lshrrev_b32 v{t2}, 4, {L}')
    em.op(f'v_xor_b32 v{t1}, v{t1}, v{t2}'); em.op(f'v_lshlrev_b32 v{t5}, 4, v{t1}')
    em.op(f'v_add_u32 v{vRA[0]}, v{t0}, v{t5}')
    em.op(f'v_add_u32 v{vRA[0]}, {24576 + q0 * 2048}, v{vRA[0]}')
    em.op(f'v_xor_b32 v{vRA[1]}, 64, v{vRA[0]}')
    em.op(f'v_mov_b32 v{vT}, v{t5}')
    for t in range(3): tr_addr(em, vRB[t], sDG, t, None, 0, 'w')
    AF = [176, 188]; BF = [200, 220]
    def q_reads(step, st):
        ops = []
        for t in range(3):
            ops.append(f'ds_read_b64_tr_b16 {vr(AF[st] + 4*t, 2)}, v{vRB[t]} offset:{step * 12288}')
            ops.append(f'ds_read_b64_tr_b16 {vr(AF[st] + 4*t + 2, 2)}, v{vRB[t]} offset:{step * 12288 + 512}')
        xs = [f'ds_read_b128 {vr(BF[st] + 4*j)}, v{vRA[step]} offset:{j * 2048}' for j in range(nq)]
        return ops[0:2] + xs[0:1] + ops[2:6] + xs[1:]
    def mf(st, first):
        return [mfma(ACC + 4*(j*3+t), AF[st] + 4*t, BF[st] + 4*j, None if first else ACC + 4*(j*3+t)) for j in range(nq) for t in range(3)]
    em.wait_vm_tag('S0'); em.barrier()
    for o in q_reads(0, 0): em.op(o)
    for s in range(10):
        interleave(em, mf(0, s == 0), q_reads(1, 1) + ['s_nop 0'] * 0)
        if s < 9: em.wait_vm_tag(f'S{s+1}', lgkm0=True)
        else: em.wait_lgkm0()
        em.barrier()
        fill = []
        if s < 9:
            d = STG if (s + 1) % 3 else -2 * STG
            fill += [f'v_add_u32 v{r}, {d & 0xffffffff}, v{r}' for r in vRA + vRB]
            fill += q_reads(0, 0)
        if s + 3 <= 9: fill += stage_dma_ops(em, s + 3, qh)
        if s == 8:
            def f():
                if cfg.two_types and cfg.nk1 > 0:
                    em.op(f's_cmp_eq_u32 s{sTYPE}, 0')
                    em.op(f's_cbranch_scc0 L_k0done{qh}')
                    em.begin_opt(); k_loads(em, 0)
                    if cfg.nk1 > 2: k_loads(em, 1)
                    em.end_opt()
                    em.label(f'L_k0done{qh}')
                    if cfg.nk1 <= 2: k_loads(em, 1)
                else:
                    k_loads(em, 0); k_loads(em, 1)
            fill.append(f)
            for sv in range(3): fill += v_dma_ops(em, sv)
        interleave(em, mf(1, False), fill)
    for t in range(3):
        em.op(f's_mul_i32 s{sT0}, s{sDG}, 3'); em.op(f's_add_u32 s{sT0}, s{sT0}, {t}'); em.op(f's_lshl_b32 s{sT0}, s{sT0}, 1')
        em.op(f'v_lshrrev_b32 v{t0}, 5, {L}')
        em.op(f'v_add_u32 v{t0}, s{sT0}, v{t0}')
        em.op(f'v_lshrrev_b32 v{t1}, 3, v{t0}'); em.op(f'v_lshlrev_b32 v{t1}, 7, v{t1}')
        em.op(f'v_and_b32 v{t0}, 7, v{t0}')
        em.op(f'v_bfe_u32 v{t2}, {L}, 1, 3')
        em.op(f'v_xor_b32 v{t0}, v{t0}, v{t2}'); em.op(f'v_lshlrev_b32 v{t0}, 4, v{t0}')
        em.op(f'v_add_u32 v{t0}, v{t0}, v{t1}')
        em.op(f'v_and_b32 v{t1}, 15, {L}'); em.op(f'v_mul_u32_u24 v{t1}, 384, v{t1}')
        em.op(f'v_add_u32 v{t0}, v{t0}, v{t1}')
        em.op(f'v_bfe_u32 v{t1}, {L}, 4, 1'); em.op(f'v_lshlrev_b32 v{t1}, 3, v{t1}')
        em.op(f'v_add_u32 v{vRC[t]}, v{t0}, v{t1}')
    for j in range(nq):
        for t in range(3):
            a = ACC + 4*(j*3+t)
            em.op(f'v_cvt_pk_bf16_f32 v{a}, v{a}, v{a+1}')
            em.op(f'v_cvt_pk_bf16_f32 v{a+1}, v{a+2}, v{a+3}')
            em.op(f'ds_write_b64 v{vRC[t]}, {vr(a,2)} offset:{(q0 + j) * 6144}')
    em.op(f'v_and_b32 v{t1}, 15, {L}'); em.op(f'v_mul_u32_u24 v{t1}, 384, v{t1}')
    em.op(f'v_add_u32 v{vRA[0]}, v{t1}, v{vT}')
    em.op(f'v_xor_b32 v{t0}, 64, v{vT}')
    em.op(f'v_add_u32 v{vRA[1]}, v{t1}, v{t0}')
    for t in range(3):
        tr_addr(em, vRB[t], sDG, t, None, VBASE, 'v')
    em.op(f'v_lshlrev_b32 v{vPA}, 4, {L}')
    em.op(f's_mul_i32 s{sT0}, s{sW}, 9216')
    em.op(f'v_add_u32 v{vPW}, s{sT0}, v{vPA}')
    em.op(f'v_add_u32 v{vPA}, {q0 * 1024}, v{vPA}')
    em.op(f'v_add_u32 v{vPB}, 36864, v{vPA}')
    em.wait_lgkm0(); em.barrier()
    for t in range(3): em.op(f'v_add_u32 v{vRC[t]}, 49152, v{vRB[t]}')
    def qrd(n):
        qt, ks = divmod(n, 6)
        return f'ds_read_b128 {vr(QF + 4*(n % 4))}, v{vRA[ks & 1]} offset:{qt * 6144 + (ks >> 1) * 128}'
    def maxops(half):
        ops = []
        for qt in range(9):
            a, b = sreg(half*2, qt), sreg(half*2+1, qt); m = MC + qt
            if half == 0:
                ops += [f'v_max3_f32 v{m}, v{a}, v{a+1}, v{a+2}', f'v_max3_f32 v{m}, v{m}, v{a+3}, v{b}',
                        f'v_max3_f32 v{m}, v{m}, v{b+1}, v{b+2}', f'v_max_f32 v{m}, v{m}, v{b+3}']
            else:
                ops += [f'v_max3_f32 v{m}, v{m}, v{a}, v{a+1}', f'v_max3_f32 v{m}, v{m}, v{a+2}, v{a+3}',
                        f'v_max3_f32 v{m}, v{m}, v{b}, v{b+1}', f'v_max3_f32 v{m}, v{m}, v{b+2}, v{b+3}']
        return ops
    for half in range(2):
        for n in range(3): em.op(qrd(n))
        em.wait_vm_tag(f'K{half}')
        for o in k_fix_ops(half): em.op(o)
        fill = maxops(0) if half == 1 else []
        fi = 0
        for n in range(54):
            qt, ks = divmod(n, 6)
            if n + 3 < 54: em.op(qrd(n + 3))
            for k in range(2):
                kt = half * 2 + k
                em.op(mfma(sreg(kt, qt), kop(kt, ks), QF + 4*(n % 4), None if ks == 0 else sreg(kt, qt)))
            if fi < len(fill) and n >= 2:
                em.op(fill[fi]); fi += 1
        while fi < len(fill): em.op(fill[fi]); fi += 1
    for o in maxops(1): em.op(o)
    for qt in range(9): em.op(f'ds_max_f32 v{vMS}, v{MC+qt} offset:{qt*64}')
    em.wait_lgkm0(); em.barrier()
    for qt in range(9): em.op(f'ds_read_b32 v{MC+qt}, v{vMS} offset:{qt*64}')
    for qt in range(9): em.op(f'v_mul_f32 v{MC+qt}, s{sC}, v{MC+qt}')
    def expops(half, qt):
        a, b = sreg(half*2, qt), sreg(half*2+1, qt)
        rs = [a, a+1, a+2, a+3, b, b+1, b+2, b+3]
        ops = [f'v_fma_f32 v{r}, v{r}, s{sC}, -v{MC+qt}' for r in rs]
        ops += [f'v_exp_f32 v{r}, v{r}' for r in rs]
        tA, tB = TMP[0], TMP[1]
        ops += [f'v_add_f32 v{tA}, v{rs[0]}, v{rs[1]}', f'v_add_f32 v{tB}, v{rs[2]}, v{rs[3]}',
                f'v_add_f32 v{tA}, v{tA}, v{rs[4]}', f'v_add_f32 v{tB}, v{tB}, v{rs[5]}',
                f'v_add_f32 v{tA}, v{tA}, v{rs[6]}', f'v_add_f32 v{tB}, v{tB}, v{rs[7]}']
        if half == 0: ops += [f'v_add_f32 v{SUM+qt}, v{tA}, v{tB}']
        else: ops += [f'v_add_f32 v{tA}, v{tA}, v{tB}', f'v_add_f32 v{SUM+qt}, v{SUM+qt}, v{tA}']
        ops += [f'v_cvt_pk_bf16_f32 v{a}, v{a}, v{a+1}', f'v_cvt_pk_bf16_f32 v{a+1}, v{a+2}, v{a+3}',
                f'v_cvt_pk_bf16_f32 v{a+2}, v{b}, v{b+1}', f'v_cvt_pk_bf16_f32 v{a+3}, v{b+2}, v{b+3}']
        return ops
    def pwrite(half, qt): return f'ds_write_b128 v{vPW}, {vr(sreg(half*2, qt))} offset:{qt*1024}'
    for qt in range(9):
        for o in expops(0, qt): em.op(o)
        em.op(pwrite(0, qt))
    em.wait_vm_tag('V0', lgkm0=True); em.barrier()
    AF = [176, 104]; BF = [64, 84]
    def pv_reads(s, step, st):
        ops = []
        slot = s % 3
        base = vRB if slot < 2 else vRC
        off = (slot % 2) * 24576 + step * 12288 if slot < 2 else step * 12288
        for t in range(3):
            ops.append(f'ds_read_b64_tr_b16 {vr(AF[st] + 4*t, 2)}, v{base[t]} offset:{off}')
            ops.append(f'ds_read_b64_tr_b16 {vr(AF[st] + 4*t + 2, 2)}, v{base[t]} offset:{off + 6144}')
        ps = 2 * (s & 3) + step
        pa, po = (vPA, ps * 9216) if ps < 4 else (vPB, (ps - 4) * 9216)
        xs = [f'ds_read_b128 {vr(BF[st] + 4*j)}, v{pa} offset:{po + j * 1024}' for j in range(nq)]
        return ops[0:2] + xs[0:1] + ops[2:6] + xs[1:]
    def mf(st, first):
        return [mfma(ACC + 4*(j*3+t), AF[st] + 4*t, BF[st] + 4*j, None if first else ACC + 4*(j*3+t)) for j in range(nq) for t in range(3)]
    exp_sched = {0: [0, 1], 1: [2, 3], 2: [4, 5], 3: [6, 7], 4: [8]}
    wr_half = 5 if qh == 0 else 7
    def merge(a, b):
        out = []; n = max(len(a), len(b))
        ia = ib = 0
        tot = len(a) + len(b)
        for i in range(tot):
            if ib >= len(b) or (ia < len(a) and ia * len(b) <= ib * len(a)): out.append(a[ia]); ia += 1
            else: out.append(b[ib]); ib += 1
        return out
    for o in pv_reads(0, 0, 0): em.op(o)
    for s in range(8):
        ex = sum([expops(1, qt) for qt in exp_sched.get(2*s, [])], [])
        interleave(em, mf(0, s == 0), pv_reads(s, 1, 1) + ex)
        if s < 7: em.wait_vm_tag(f'V{s+1}', lgkm0=True)
        else: em.wait_lgkm0()
        em.barrier()
        fill = []
        if s < 7: fill += pv_reads(s + 1, 0, 0)
        if s + 3 <= 7: fill += v_dma_ops(em, s + 3)
        fill += sum([expops(1, qt) for qt in exp_sched.get(2*s+1, [])], [])
        if 2*s+1 == wr_half:
            fill += [pwrite(1, qt) for qt in range(9)]
            fill += [f'ds_add_f32 v{vMS}, v{SUM+qt} offset:{SUMB - MAXB + qt*64}' for qt in range(9)]
        if s == 7:
            fill += [f'ds_read_b32 v{MC+j}, v{vMS} offset:{SUMB - MAXB + (q0+j)*64}' for j in range(nq)]
            fill += [f'v_rcp_f32 v{MC+j}, v{MC+j}' for j in range(nq)]
        interleave(em, mf(1, False), fill)
    for t in range(3):
        em.op(f's_mul_i32 s{sT0}, s{sDG}, 3'); em.op(f's_add_u32 s{sT0}, s{sT0}, {t}')
        em.op(f's_lshr_b32 s{sT1}, s{sT0}, 1'); em.op(f's_mul_i32 s{sT1}, s{sT1}, 9216')
        em.op(f's_and_b32 s{sT0}, s{sT0}, 1'); em.op(f's_lshl_b32 s{sT0}, s{sT0}, 3')
        em.op(f's_add_u32 s{sT0}, s{sT0}, s{sT1}')
        em.op(f'v_add_u32 v{vRC[t]}, s{sT0}, v{vPA}')
    for j in range(nq):
        for t in range(3):
            a = ACC + 4*(j*3+t)
            for d in range(4): em.op(f'v_mul_f32 v{a+d}, v{a+d}, v{MC+j}')
            em.op(f'v_cvt_pk_bf16_f32 v{a}, v{a}, v{a+1}')
            em.op(f'v_cvt_pk_bf16_f32 v{a+1}, v{a+2}, v{a+3}')
            em.op(f'ds_write_b64 v{vRC[t]}, {vr(a,2)} offset:{j * 1024}')
    em.op(f'v_lshlrev_b32 v{t0}, 4, v0')
    em.wait_lgkm0(); em.barrier()
    for i in range(7): em.op(f'ds_read_b128 {vr(16 + 4*i)}, v{t0} offset:{i * 8192}')
    for i in range(7):
        em.op(f's_mov_b32 s{sOFF}, {i * 8192}')
        em.op(f'buffer_store_dwordx4 {vr(16 + 4*i)}, v{t0}, {sr(SO,4)}, s{sOFF} offen')
    em.op('s_endpgm')

def kernel_header(name):
    return f'.globl {name}\n.p2align 8\n.type {name},@function\n{name}:\n'
def kernel_desc(name, vgpr, sgpr=96):
    return f'''.amdhsa_kernel {name}
  .amdhsa_next_free_vgpr {vgpr}
  .amdhsa_next_free_sgpr {sgpr}
  .amdhsa_accum_offset {(vgpr + 3) // 4 * 4}
  .amdhsa_group_segment_fixed_size 0
  .amdhsa_kernarg_size 64
  .amdhsa_user_sgpr_count 2
  .amdhsa_user_sgpr_kernarg_segment_ptr 1
  .amdhsa_system_sgpr_workgroup_id_x 1
.end_amdhsa_kernel
'''

def gen_k1():
    em = Em()
    k1_prologue(em)
    import copy
    st = (copy.copy(em.hist), copy.copy(em.lgkm), copy.deepcopy(em.vm))
    em.label('k1_body_start')
    k1_body(em, 0)
    em.label('L_k1_q1')
    em.hist, em.lgkm, em.vm = st
    k1_body(em, 1)
    em.label('k1_body_end')
    em.label('L_k1_exit')
    em.op('s_endpgm')
    return em

def gen_k2():
    em = Em()
    SD, SP = 16, 20
    sW, sM0, sSTR, sOFF, sT0, sT1, sT2, sB, sNQ, sX, sNH = 36, 37, 38, 39, 40, 41, 42, 43, 44, 45, 46
    vL = 1; vOFFS = [2, 3, 4, 5, 6]; vA = [7, 8, 9, 10, 11]; vB = 12
    t0, t1, t2, t3, t4 = 13, 14, 15, 16, 17
    STG2 = 40960
    nt = ' nt' if cfg.nt_k2 else ''
    em.op('s_cmp_ge_u32 s2, 256')
    em.op('s_cbranch_scc1 L_k2_exit')
    em.op('s_load_dwordx2 s[4:5], s[0:1], 32')
    em.op('s_load_dwordx2 s[12:13], s[0:1], 56')
    em.op(f'v_and_b32 v{vL}, 63, v0')
    em.op(f'v_lshrrev_b32 v{t0}, 6, v0')
    em.op(f's_and_b32 s{sX}, s2, 7')
    em.op(f's_lshr_b32 s{sT0}, s2, 3')
    em.op(f'v_readfirstlane_b32 s{sW}, v{t0}')
    em.op(f's_and_b32 s{sNQ}, s{sT0}, 3')
    em.op(f's_lshr_b32 s{sB}, s{sT0}, 2')
    em.op(f's_and_b32 s{sNH}, s{sW}, 1')
    em.op('s_waitcnt lgkmcnt(0)')
    em.op(f's_lshl_b32 s{sT0}, s{sT0}, 3'); em.op(f's_add_u32 s{sT0}, s{sT0}, s{sX}')
    em.op(f's_mul_i32 s{sT0}, s{sT0}, {PART_TILE}'); em.op(f's_add_u32 s{sT0}, s{sT0}, {WS_PART}')
    srd(em, SP, 12, 13, f's{sT0}', PART_TILE)
    em.op(f's_cmp_lt_u32 s{sW}, 4')
    em.op('s_cbranch_scc0 L_k2_orole')
    em.op(f's_mul_i32 s{sT0}, s{sX}, {768 * 1280}'); em.op(f's_mul_i32 s{sT1}, s{sNQ}, 320'); em.op(f's_add_u32 s{sT0}, s{sT0}, s{sT1}')
    srd(em, SD, 4, 5, f's{sT0}', 7864320)
    em.op(f's_sub_u32 s{SD+2}, s{SD+2}, s{sT0}')
    em.op(f's_mov_b32 s{sSTR}, {64 * 1280}')
    em.op(f's_mul_i32 s{sM0}, s{sW}, 5120')
    em.op(f's_lshl_b32 s{sT2}, s{sW}, 4')
    em.op(f's_mov_b32 s{sT1}, 52429')
    for j in range(5):
        em.op(f'v_add_u32 v{t0}, {j * 64}, v{vL}')
        em.op(f'v_mul_lo_u32 v{t1}, v{t0}, s{sT1}')
        em.op(f'v_lshrrev_b32 v{t1}, 20, v{t1}')
        em.op(f'v_mul_u32_u24 v{t2}, 20, v{t1}')
        em.op(f'v_sub_u32 v{t2}, v{t0}, v{t2}')
        em.op(f'v_bfe_u32 v{t3}, v{t1}, 2, 1')
        em.op(f'v_lshlrev_b32 v{t3}, 1, v{t3}')
        em.op(f'v_xor_b32 v{t2}, v{t2}, v{t3}')
        em.op(f'v_lshlrev_b32 v{t2}, 4, v{t2}')
        em.op(f'v_add_u32 v{t1}, s{sT2}, v{t1}')
        em.op(f'v_mul_u32_u24 v{t1}, 1280, v{t1}')
        em.op(f'v_add_u32 v{vOFFS[j]}, v{t1}, v{t2}')
    em.op('s_branch L_k2_join')
    em.label('L_k2_orole')
    em.op(f's_lshl_b32 s{sT0}, s{sB}, 5'); em.op(f's_lshl_b32 s{sT1}, s{sX}, 2'); em.op(f's_add_u32 s{sT0}, s{sT0}, s{sT1}')
    em.op(f's_mul_i32 s{sT0}, s{sT0}, {O_HEAD}')
    srd(em, SD, 12, 13, f's{sT0}', 4 * O_HEAD)
    em.op(f's_mov_b32 s{sSTR}, 18432')
    em.op(f's_mul_i32 s{sM0}, s{sW}, 5120')
    em.op(f's_sub_u32 s{sT2}, s{sM0}, 20480')
    em.op(f'v_lshlrev_b32 v{t0}, 4, v{vL}')
    em.op(f'v_add_u32 v{t0}, s{sT2}, v{t0}')
    for j in range(5): em.op(f'v_add_u32 v{vOFFS[j]}, {j * 1024}, v{t0}')
    em.label('L_k2_join')
    em.reset(); em.op('s_nop 4')
    em.op(f's_mov_b32 s{sOFF}, 0')
    def dma(s):
        ops = []
        for j in range(5):
            def f(j=j):
                em.op(f's_add_u32 m0, s{sM0}, {(s % 3) * STG2 + j * 1024}')
                em.op('s_nop 0')
                em.op(f'buffer_load_dwordx4 v{vOFFS[j]}, {sr(SD,4)}, s{sOFF} offen{nt} lds', tag=f'S{s}')
                if j == 4: em.op(f's_add_u32 s{sOFF}, s{sOFF}, s{sSTR}')
            ops.append(f)
        return ops
    for s in range(3):
        for f in dma(s): f()
    em.op(f'v_lshrrev_b32 v{t0}, 2, v{vL}')
    em.op(f'v_mul_u32_u24 v{t0}, 320, v{t0}')
    em.op(f'v_and_b32 v{t1}, 3, v{vL}'); em.op(f'v_lshlrev_b32 v{t1}, 3, v{t1}')
    em.op(f'v_add_u32 v{t0}, v{t0}, v{t1}')
    em.op(f'v_bfe_u32 v{t1}, v{vL}, 4, 1')
    em.op(f's_mul_i32 s{sT0}, s{sNH}, 5')
    for t in range(5):
        em.op(f's_add_u32 s{sT1}, s{sT0}, {t}')
        em.op(f'v_xor_b32 v{t2}, s{sT1}, v{t1}')
        em.op(f'v_lshlrev_b32 v{t2}, 5, v{t2}')
        em.op(f'v_add_u32 v{vA[t]}, v{t0}, v{t2}')
    sQ0 = 47
    em.op(f's_lshr_b32 s{sT0}, s{sW}, 1')
    em.op(f's_mov_b32 s{sT1}, 0x7350')
    em.op(f's_lshl_b32 s{sT0}, s{sT0}, 2')
    em.op(f's_lshr_b32 s{sQ0}, s{sT1}, s{sT0}')
    em.op(f's_and_b32 s{sQ0}, s{sQ0}, 15')
    em.op(f's_lshl_b32 s{sT0}, s{sQ0}, 10')
    em.op(f's_add_u32 s{sT0}, s{sT0}, 20480')
    em.op(f'v_lshlrev_b32 v{vB}, 4, v{vL}')
    em.op(f'v_add_u32 v{vB}, s{sT0}, v{vB}')
    em.op(f's_cmp_lt_u32 s{sW}, 2')
    em.op('s_cbranch_scc0 L_k2_n2')
    import copy
    st = (copy.copy(em.hist), copy.copy(em.lgkm), copy.deepcopy(em.vm))
    def body(nq):
        ACC2 = 20; AF = [80, 100]; BF = [120, 132]
        def reads(step, st_):
            ops = []
            for t in range(5):
                ops.append(f'ds_read_b64_tr_b16 {vr(AF[st_] + 4*t, 2)}, v{vA[t]} offset:{step * 10240}')
                ops.append(f'ds_read_b64_tr_b16 {vr(AF[st_] + 4*t + 2, 2)}, v{vA[t]} offset:{step * 10240 + 5120}')
            xs = [f'ds_read_b128 {vr(BF[st_] + 4*j)}, v{vB} offset:{step * 9216 + j * 1024}' for j in range(nq)]
            return ops[0:2] + xs + ops[2:]
        def mf(st_, first):
            return [mfma(ACC2 + 4*(t*nq+j), AF[st_] + 4*t, BF[st_] + 4*j, None if first else ACC2 + 4*(t*nq+j)) for t in range(5) for j in range(nq)]
        em.wait_vm_tag('S0'); em.barrier()
        for o in reads(0, 0): em.op(o)
        for s in range(12):
            interleave(em, mf(0, s == 0), reads(1, 1))
            if s < 11:
                em.wait_vm_tag(f'S{s+1}', lgkm0=True)
                em.barrier()
            fill = []
            if s < 11:
                d = STG2 if (s + 1) % 3 else -2 * STG2
                fill += [f'v_add_u32 v{r}, {d & 0xffffffff}, v{r}' for r in vA + [vB]]
                fill += reads(0, 0)
            if s + 3 <= 11: fill += dma(s + 3)
            interleave(em, mf(1, False), fill)
        em.op(f's_mul_i32 s{sT0}, s{sQ0}, 10240'); em.op(f's_mul_i32 s{sT1}, s{sNH}, 5120'); em.op(f's_add_u32 s{sT0}, s{sT0}, s{sT1}')
        em.op(f'v_lshlrev_b32 v{t0}, 4, v{vL}')
        em.op(f'v_add_u32 v{t0}, s{sT0}, v{t0}')
        for j in range(nq):
            for t in range(5):
                em.op(f's_mov_b32 s{sOFF}, {j * 10240 + t * 1024}')
                em.op(f'buffer_store_dwordx4 {vr(ACC2 + 4*(t*nq+j))}, v{t0}, {sr(SP,4)}, s{sOFF} offen')
        em.op('s_endpgm')
    body(3)
    em.label('L_k2_n2')
    em.hist, em.lgkm, em.vm = st
    body(2)
    em.label('L_k2_exit')
    em.op('s_endpgm')
    return em

def gen_k3():
    em = Em()
    em.op('s_cmp_ge_u32 s2, 720')
    em.op('s_cbranch_scc1 L_k3_exit')
    em.op('s_load_dwordx2 s[4:5], s[0:1], 40')
    em.op('s_load_dwordx2 s[12:13], s[0:1], 56')
    em.op('v_and_b32 v1, 63, v0')
    em.op('v_lshrrev_b32 v2, 6, v0')
    em.op('s_lshl_b32 s6, s2, 2')
    em.op('v_readfirstlane_b32 s7, v2')
    em.op('s_add_u32 s6, s6, s7')
    em.op('s_mul_i32 s7, s6, 11651')
    em.op('s_lshr_b32 s7, s7, 20')
    em.op('s_mul_i32 s8, s7, 90')
    em.op('s_sub_u32 s8, s6, s8')
    em.op('s_waitcnt lgkmcnt(0)')
    em.op(f's_mul_i32 s9, s7, {8 * PART_TILE}'); em.op(f's_add_u32 s9, s9, {WS_PART}')
    srd(em, 16, 12, 13, 's9', 8 * PART_TILE)
    srd(em, 20, 4, 5, None, 1474560)
    em.op('v_lshlrev_b32 v3, 4, v1')
    em.op('s_lshl_b32 s10, s8, 10')
    for x in range(8):
        em.op(f'buffer_load_dwordx4 {vr(8 + 4*x)}, v3, s[16:19], s10 offen')
        if x < 7: em.op(f's_add_u32 s10, s10, {PART_TILE}')
    em.op('s_mul_i32 s11, s8, 6554'); em.op('s_lshr_b32 s11, s11, 16')
    em.op('s_mul_i32 s14, s11, 10'); em.op('s_sub_u32 s14, s8, s14')
    em.op('s_lshr_b32 s15, s7, 2'); em.op('s_mul_i32 s15, s15, 144'); em.op('s_lshl_b32 s11, s11, 4'); em.op('s_add_u32 s15, s15, s11')
    em.op('s_mul_i32 s15, s15, 1280')
    em.op('s_and_b32 s11, s7, 3'); em.op('s_mul_i32 s11, s11, 320'); em.op('s_add_u32 s15, s15, s11')
    em.op('s_lshl_b32 s14, s14, 5'); em.op('s_add_u32 s15, s15, s14')
    em.op('v_and_b32 v4, 15, v1'); em.op('v_mul_u32_u24 v4, 1280, v4')
    em.op('v_lshrrev_b32 v5, 4, v1'); em.op('v_lshlrev_b32 v5, 3, v5'); em.op('v_add_u32 v4, v4, v5')
    for x in range(1, 8):
        for d in range(4): em.op(f'v_add_f32 v{8+d}, v{8+d}, v{8+4*x+d}')
    em.op('v_cvt_pk_bf16_f32 v8, v8, v9'); em.op('v_cvt_pk_bf16_f32 v9, v10, v11')
    em.op('buffer_store_dwordx2 v[8:9], v4, s[20:23], s15 offen')
    em.label('L_k3_exit')
    em.op('s_endpgm')
    return em

def main():
    ref = open('cdna_kernels/' + NAME + '.s.ref').read().split('\n')
    head = [l for l in ref[:9]]
    k1, k2, k3 = gen_k1(), gen_k2(), gen_k3()
    out = '\n'.join(head) + '\n'
    out += f'; @launch kernel=attn_kernel grid=(256,1,1) block=(512,1,1) lds={LDS1}\n'
    out += f'; @launch kernel=oproj_kernel grid=(256,1,1) block=(512,1,1) lds={3 * 40960}\n'
    out += f'; @launch kernel=reduce_kernel grid=(720,1,1) block=(256,1,1) lds=0\n'
    out += '.amdgcn_target "amdgcn-amd-amdhsa--gfx950"\n.text\n'
    out += kernel_header('attn_kernel') + k1.text()
    out += kernel_header('oproj_kernel') + k2.text()
    out += kernel_header('reduce_kernel') + k3.text()
    out += '.section .rodata,"a"\n.p2align 6\n' + kernel_desc('attn_kernel', 256) + '.p2align 6\n' + kernel_desc('oproj_kernel', 144) + '.p2align 6\n' + kernel_desc('reduce_kernel', 40, 32)
    open(sys.argv[1], 'w').write(out)
    print('k1 instrs', k1.count, 'nops', k1.nops, '| k2', k2.count, k2.nops, '| k3', k3.count, file=sys.stderr)
main()
```

```python
import sys, struct, math
from em import Em, interleave

NAME = 'standalone__gqa_block_cached__near_ridge'
def fbits(x): return struct.unpack('<I', struct.pack('<f', x))[0]

class Cfg:
    nt_kv = True
    nt_w = True
    nt_k2 = False
    two_types = True
    nk1 = 2
    pre = True
    code_pre = True
    prio = False
    diag = False
    x_nodma = False
    x_nomfma = False
    x_nolds = False
    dma_first = False
cfg = Cfg()
cfg.pvst = (3,7); cfg.qst = (0,8,)
for a in sys.argv[2:]:
    k, v = a.split('='); setattr(cfg, k, type(getattr(cfg, k))(int(v)))

_il = interleave
def interleave(em, main, fill, lead=0):
    if cfg.x_nodma: fill = [f for f in fill if not getattr(f, 'isdma', False)]
    if cfg.x_nolds: fill = [f for f in fill if not (isinstance(f, str) and f.startswith('ds_read'))]
    if cfg.dma_first: fill = [f for f in fill if getattr(f, 'isdma', False)] + [f for f in fill if not getattr(f, 'isdma', False)]
    if cfg.x_nomfma: main = main[:1]
    _il(em, main, fill, lead)
def mark(ops):
    for f in ops: f.isdma = True
    return ops
def vr(b, n=4): return f'v[{b}:{b + n - 1}]' if n > 1 else f'v{b}'
def sr(b, n): return f's[{b}:{b + n - 1}]'
MF = 'v_mfma_f32_16x16x32_bf16'
def mfma(d, a, b, c=None):
    return f'{MF} {vr(d)}, {vr(a)}, {vr(b)}, ' + ('0' if c is None else vr(c))

O_HEAD = 55296
WS_PART = 16 << 20
PART_TILE = 90 * 1024

def srd(em, d, base_lo, base_hi, off_sgpr, size):
    if off_sgpr is None:
        em.op(f's_mov_b32 s{d}, s{base_lo}'); em.op(f's_mov_b32 s{d+1}, s{base_hi}')
    else:
        em.op(f's_add_u32 s{d}, s{base_lo}, {off_sgpr}'); em.op(f's_addc_u32 s{d+1}, s{base_hi}, 0')
    em.op(f's_mov_b32 s{d+2}, {size}')
    em.op(f's_mov_b32 s{d+3}, 0x20000')

DIAG_OFF = 64 << 20
class Stamps:
    def __init__(self, em): self.em = em; self.n = 0; self.names = []
    def stamp(self, name, real=False):
        if not cfg.diag: return
        em = self.em
        em.wait_lgkm0()
        em.op(('s_memrealtime' if real else 's_memtime') + f' s[{60 + 2*self.n}:{61 + 2*self.n}]')
        em.op('s_waitcnt lgkmcnt(0)')
        self.n += 1; self.names.append(name)
        assert self.n <= 20
    def flush(self, ws_lo, kidx, wave_s, tv):
        if not cfg.diag: return
        em = self.em
        self.stamp('end'); self.stamp('rt_end', real=True)
        em.op(f's_lshl_b32 s56, s2, 3'); em.op(f's_add_u32 s56, s56, s{wave_s}'); em.op('s_lshl_b32 s56, s56, 7')
        em.op(f's_add_u32 s56, s56, {DIAG_OFF + (kidx << 20)}')
        em.op(f's_add_u32 s56, s{ws_lo}, s56'); em.op(f's_addc_u32 s57, s{ws_lo+1}, 0')
        em.op(f'v_mov_b32 v{tv}, 0')
        for i in range(self.n):
            em.op(f'v_mov_b32 v{tv+1}, s{60 + 2*i}')
            em.op(f'global_store_dword v{tv}, v{tv+1}, s[56:57] offset:{4*i}')
        print('stamps', kidx, self.names, file=sys.stderr)

SX, SWQ, SK, SV, SO = 16, 20, 24, 28, 32
sW, sW3072, sW1024, sTYPE, sOFF, sT0, sT1, sT2, sC, sB, sH, sJ, sLOC = 36, 37, 38, 39, 40, 41, 42, 43, 44, 45, 46, 47, 48
vLANE, vXO, vWO, vK0, vK1, vVO = 1, 2, 3, 4, 5, 6
vRA = [7, 8]
vRB = [9, 10, 11]
vRC = [12, 13, 14]
vT = 15
vPA, vPB, vPW, vMS = 240, 241, 242, 243
TMP = list(range(244, 256))
STG = 43008
PBASE, VBASE, MAXB, SUMB = 0, 73728, 147456, 149504
LDS1 = SUMB + 12 * 512
KSP = 16
def KR0(p): return 20 + 8 * p
def KR1(p): return 24 + 8 * p
def KT(p): return KSP if p == 0 else KR1(p - 1)
def kop(kt, ks):
    p = (kt // 2) * 6 + (ks // 2) * 2 + (kt % 2)
    return KR0(p) if ks % 2 == 0 else KT(p)
def sreg(kt, qt):
    if kt < 2: return 116 + 4 * (qt * 2 + kt)
    i = qt * 2 + (kt - 2)
    return 16 + 4 * i if i < 12 else 188 + 4 * (i - 12)
ACC = 116
MC = 212
SUM = 224
QF = 224

def k_loads(em, half):
    nt = ' nt' if cfg.nt_kv else ''
    for c in range(3):
        for k in range(2):
            p = half * 6 + c * 2 + k
            kt = half * 2 + k
            em.op(f's_mov_b32 s{sOFF}, {kt * 6144}')
            em.op(f'buffer_load_dwordx4 {vr(KR0(p))}, v{vK0}, {sr(SK,4)}, s{sOFF} offen offset:{c*128}{nt}', tag=f'K{half}')
            em.op(f'buffer_load_dwordx4 {vr(KR1(p))}, v{vK1}, {sr(SK,4)}, s{sOFF} offen offset:{c*128}{nt}', tag=f'K{half}')

def k_fix_ops(half):
    ops = []
    for pp in range(6):
        p = half * 6 + pp
        for d in range(4):
            r0, r1, t = KR0(p) + d, KR1(p) + d, KT(p) + d
            ops.append(f'v_mov_b32_dpp v{t}, v{r0} row_ror:8 row_mask:0xf bank_mask:0x3')
            ops.append(f'v_mov_b32_dpp v{t}, v{r1} row_ror:8 row_mask:0xf bank_mask:0xc')
            ops.append(f'v_mov_b32_dpp v{r0}, v{r1} quad_perm:[0,1,2,3] row_mask:0xf bank_mask:0xc')
    return ops

def stage_dma_ops(em, s, qh):
    nt = ' nt' if cfg.nt_w else ''
    slot = (s % 3) * STG
    ops = []
    for c in range(3):
        def f(c=c):
            em.op(f's_add_u32 m0, s{sW3072}, {slot + c * 896}')
            em.op(f's_mov_b32 s{sOFF}, {s * 786432}')
            em.op(f'buffer_load_dwordx4 v{vWO}, {sr(SWQ,4)}, s{sOFF} offen offset:{c*128}{nt} lds', tag=f'S{s}')
        ops.append(f)
    for j in range(2):
        def f(j=j):
            em.op(f's_add_u32 m0, s{sW1024}, {slot + j * 8192}')
            em.op(f's_mov_b32 s{sOFF}, {s * 128 + j * 81920}')
            em.op(f'buffer_load_dwordx4 v{vXO}, {sr(SX,4)}, s{sOFF} offen{nt} lds', tag=f'S{s}')
        ops.append(f)
    if qh == 1:
        def f():
            lab = f'L_x{s}'
            em.op(f's_cmp_lt_u32 s{sW}, 6')
            em.op(f's_cbranch_scc0 {lab}')
            em.begin_opt()
            em.op(f's_add_u32 m0, s{sW1024}, {slot + 12288}')
            em.op(f's_mov_b32 s{sOFF}, {s * 128 + 122880}')
            em.op(f'buffer_load_dwordx4 v{vXO}, {sr(SX,4)}, s{sOFF} offen{nt} lds', tag=f'S{s}')
            em.end_opt()
            em.label(lab)
        ops.insert(0, f)
    return ops

def v_dma_ops(em, s):
    nt = ' nt' if cfg.nt_kv else ''
    ops = []
    for c in range(3):
        def f(c=c):
            em.op(f's_add_u32 m0, s{sW3072}, {VBASE + (s % 3) * 24576 + c * 896}')
            em.op(f's_mov_b32 s{sOFF}, {(128 * (s & 3) + 32 * (s >> 2)) * 384}')
            em.op(f'buffer_load_dwordx4 v{vVO}, {sr(SV,4)}, s{sOFF} offen offset:{c*128}{nt} lds', tag=f'V{s}')
        ops.append(f)
    return ops

def k1_prologue(em):
    em.op('s_cmp_ge_u32 s2, 256')
    em.op('s_cbranch_scc1 L_k1_exit')
    em.st = Stamps(em); em.st.stamp('rt0', real=True); em.st.stamp('start')
    em.op('s_load_dwordx8 s[4:11], s[0:1], 0')
    em.op('s_load_dwordx2 s[12:13], s[0:1], 56')
    em.op(f'v_and_b32 v{vLANE}, 63, v0')
    em.op(f'v_lshrrev_b32 v{vT}, 6, v0')
    em.op(f's_and_b32 s{sT0}, s2, 7')
    em.op(f's_lshr_b32 s{sLOC}, s2, 3')
    em.op(f'v_readfirstlane_b32 s{sW}, v{vT}')
    em.op(f's_and_b32 s{sJ}, s{sLOC}, 3')
    em.op(f's_lshr_b32 s{sB}, s{sLOC}, 2')
    em.op(f's_lshl_b32 s{sH}, s{sT0}, 2')
    em.op(f's_add_u32 s{sH}, s{sH}, s{sJ}')
    em.op(f's_and_b32 s{sTYPE}, s{sB}, 1')
    em.op(f's_mul_i32 s{sW3072}, s{sW}, 3072')
    em.op(f's_lshl_b32 s{sW1024}, s{sW}, 10')
    em.op(f's_add_u32 s{sW1024}, s{sW1024}, 24576')
    em.op(f's_mov_b32 s{sC}, {fbits(192 ** -0.5 * math.log2(math.e))}')
    t0, t1, t2, t3, t4 = TMP[:5]
    L = f'v{vLANE}'
    em.op(f'v_lshrrev_b32 v{t0}, 3, {L}')
    em.op(f'v_and_b32 v{t1}, 7, {L}')
    em.op(f'v_lshrrev_b32 v{t2}, 4, {L}')
    if cfg.code_pre:
        em.op('s_getpc_b64 s[50:51]')
        em.label('L_k1_pc')
        em.op('s_add_u32 s50, s50, k1_body_start-L_k1_pc')
        em.op('s_addc_u32 s51, s51, 0')
        em.op(f's_and_b32 s{sT1}, s{sLOC}, 7')
        em.op(f's_lshl_b32 s{sT1}, s{sT1}, 13')
        em.op(f'v_lshlrev_b32 v{t3}, 4, v0')
        em.op(f'v_add_u32 v{t3}, s{sT1}, v{t3}')
        em.op(f'v_min_u32 v{t3}, k1_body_end-k1_body_start-16, v{t3}')
        em.op(f'global_load_dwordx4 {vr(116)}, v{t3}, s[50:51]')
    em.op('s_waitcnt lgkmcnt(0)')
    em.st.stamp('ka')
    em.op(f's_mul_i32 s{sT0}, s{sB}, 184320'); srd(em, SX, 4, 5, f's{sT0}', 184320)
    em.op(f's_mul_i32 s{sT0}, s{sH}, 384'); srd(em, SWQ, 10, 11, f's{sT0}', 7864320)
    em.op(f's_sub_u32 s{SWQ+2}, s{SWQ+2}, s{sT0}')
    em.op(f's_lshl_b32 s{sT1}, s{sB}, 5'); em.op(f's_add_u32 s{sT1}, s{sT1}, s{sH}')
    em.op(f's_mul_i32 s{sT0}, s{sT1}, 196608')
    srd(em, SK, 6, 7, f's{sT0}', 196608); srd(em, SV, 8, 9, f's{sT0}', 196608)
    em.op(f's_mul_i32 s{sT0}, s{sT1}, {O_HEAD}'); srd(em, SO, 12, 13, f's{sT0}', O_HEAD)
    em.op(f's_and_b32 s{sT0}, s{sW}, 1')
    em.op(f's_lshl_b32 s{sT1}, s{sT0}, 2')
    em.op(f'v_add_u32 v{t3}, s{sT1}, v{t2}')
    em.op(f'v_xor_b32 v{t3}, v{t3}, v{t1}')
    em.op(f'v_lshlrev_b32 v{t3}, 4, v{t3}')
    em.op(f's_lshl_b32 s{sT2}, s{sW}, 3')
    em.op(f'v_add_u32 v{t4}, s{sT2}, v{t0}')
    em.op(f'v_mul_u32_u24 v{vXO}, 1280, v{t4}')
    em.op(f'v_add_u32 v{vXO}, v{vXO}, v{t3}')
    em.op(f'v_and_b32 v{t3}, 1, v{t2}')
    em.op(f'v_lshlrev_b32 v{t3}, 1, v{t3}')
    em.op(f'v_add_u32 v{t3}, s{sT1}, v{t3}')
    em.op(f'v_xor_b32 v{t3}, v{t3}, v{t1}')
    em.op(f'v_lshlrev_b32 v{t3}, 4, v{t3}')
    em.op(f'v_mul_u32_u24 v{vWO}, 12288, v{t4}')
    em.op(f'v_add_u32 v{vWO}, v{vWO}, v{t3}')
    if cfg.pre:
        nt = ' nt' if cfg.nt_w else ''
        em.op(f's_mul_i32 s{sT0}, s{sB}, {80 * 12288}')
        for c in range(3):
            em.op(f'buffer_load_dwordx4 {vr(120)}, v{vWO}, {sr(SWQ,4)}, s{sT0} offen offset:{c*128}{nt}')
        em.op(f's_cmp_lt_u32 s{sW}, 2')
        em.op(f's_cbranch_scc0 L_pre1')
        em.begin_opt()
        em.op(f's_add_u32 s{sT0}, s{sT0}, {64 * 12288}')
        for c in range(3):
            em.op(f'buffer_load_dwordx4 {vr(120)}, v{vWO}, {sr(SWQ,4)}, s{sT0} offen offset:{c*128}{nt}')
        em.end_opt()
        em.label('L_pre1')
        em.op(f's_mul_i32 s{sT0}, s{sJ}, {36 * 1280}')
        em.op(f'v_lshlrev_b32 v{t3}, 4, v0')
        for i in range(6):
            em.op(f'buffer_load_dwordx4 {vr(120)}, v{t3}, {sr(SX,4)}, s{sT0} offen{nt}')
            if i < 5: em.op(f's_add_u32 s{sT0}, s{sT0}, 8192')
    em.st.stamp('pi')
    em.op(f'v_and_b32 v{t3}, 1, v{t0}')
    em.op(f'v_lshlrev_b32 v{t3}, 2, v{t3}')
    em.op(f'v_add_u32 v{t3}, v{t3}, v{t2}')
    em.op(f'v_lshlrev_b32 v{t3}, 4, v{t3}')
    em.op(f's_lshl_b32 s{sT2}, s{sW}, 6')
    em.op(f'v_add_u32 v{t4}, s{sT2}, v{t1}')
    em.op(f'v_mul_u32_u24 v{t4}, 384, v{t4}')
    em.op(f'v_add_u32 v{vK0}, v{t4}, v{t3}')
    em.op(f'v_xor_b32 v{t3}, 64, v{t3}')
    em.op(f'v_add_u32 v{vK1}, v{t4}, v{t3}')
    em.op(f'v_add_u32 v{vK1}, {8 * 384}, v{vK1}')
    if cfg.two_types and cfg.nk1 > 0:
        em.op(f's_cmp_eq_u32 s{sTYPE}, 1')
        em.op('s_cbranch_scc0 L_nok1')
        em.begin_opt()
        k_loads(em, 0)
        if cfg.nk1 > 2: k_loads(em, 1)
        em.end_opt()
        em.label('L_nok1')
    em.op(f's_lshr_b32 s{sT0}, s{sW}, 2'); em.op(f's_lshl_b32 s{sT0}, s{sT0}, 6')
    em.op(f's_and_b32 s{sT1}, s{sW}, 3'); em.op(f's_lshl_b32 s{sT2}, s{sT1}, 3')
    em.op(f's_add_u32 s{sT0}, s{sT0}, s{sT2}')
    em.op(f'v_add_u32 v{t3}, s{sT0}, v{t0}')
    em.op(f'v_mul_u32_u24 v{vVO}, 384, v{t3}')
    em.op(f'v_lshlrev_b32 v{t3}, 1, v{t2}')
    em.op(f'v_xor_b32 v{t3}, v{t3}, v{t1}')
    em.op(f'v_lshlrev_b32 v{t3}, 4, v{t3}')
    em.op(f'v_add_u32 v{vVO}, v{vVO}, v{t3}')
    em.op(f'v_lshlrev_b32 v{t3}, 2, v0')
    em.op(f'v_add_u32 v{t3}, {MAXB}, v{t3}')
    em.op(f'v_mov_b32 v{t4}, 0xff800000')
    em.op(f'ds_write_b32 v{t3}, v{t4}')
    em.op(f'v_and_b32 v{vMS}, 15, {L}')
    em.op(f'v_lshlrev_b32 v{vMS}, 2, v{vMS}')
    em.op(f'v_add_u32 v{vMS}, {MAXB}, v{vMS}')
    em.wait_lgkm0()
    em.op(f's_cmp_lt_u32 s{sW}, 4')
    em.op('s_cbranch_scc0 L_k1_q1')

def tr_addr(em, dst, dg_s, t, rowmul_g, base, fmode):
    t0, t1, t2, t3 = TMP[:4]
    L = f'v{vLANE}'
    em.op(f's_mul_i32 s{sT0}, s{dg_s}, 3'); em.op(f's_add_u32 s{sT0}, s{sT0}, {t}')
    em.op(f's_lshr_b32 s{sT1}, s{sT0}, 2'); em.op(f's_lshl_b32 s{sT1}, s{sT1}, 10')
    em.op(f's_add_u32 s{sT1}, s{sT1}, {base}')
    em.op(f's_and_b32 s{sT0}, s{sT0}, 3')
    em.op(f'v_lshrrev_b32 v{t0}, 4, {L}')
    em.op(f'v_bfe_u32 v{t1}, {L}, 2, 2')
    em.op(f'v_and_b32 v{t2}, 1, v{t0}')
    em.op(f'v_lshlrev_b32 v{t2}, 1, v{t2}')
    em.op(f'v_lshrrev_b32 v{t3}, 1, v{t1}')
    em.op(f'v_add_u32 v{t3}, v{t3}, v{t2}')
    em.op(f'v_xor_b32 v{t3}, s{sT0}, v{t3}')
    em.op(f'v_lshlrev_b32 v{t3}, 5, v{t3}')
    em.op(f'v_lshlrev_b32 v{dst}, 7, v{t1}')
    em.op(f'v_add_u32 v{dst}, v{dst}, v{t3}')
    if fmode == 'w':
        em.op(f'v_mul_u32_u24 v{t3}, 3072, v{t0}')
    else:
        em.op(f'v_lshlrev_b32 v{t2}, 8, v{t2}')
        em.op(f'v_add_u32 v{dst}, v{dst}, v{t2}')
        em.op(f'v_lshrrev_b32 v{t3}, 1, v{t0}')
        em.op(f'v_mul_u32_u24 v{t3}, 3072, v{t3}')
    em.op(f'v_add_u32 v{dst}, v{dst}, v{t3}')
    em.op(f'v_and_b32 v{t3}, 3, {L}')
    em.op(f'v_lshlrev_b32 v{t3}, 3, v{t3}')
    em.op(f'v_add_u32 v{dst}, v{dst}, v{t3}')
    em.op(f'v_add_u32 v{dst}, s{sT1}, v{dst}')

def k1_body(em, qh):
    nq = 5 if qh == 0 else 4
    q0 = 0 if qh == 0 else 5
    L = f'v{vLANE}'
    t0, t1, t2, t3, t4, t5 = TMP[:6]
    sDG = 49
    em.op(f's_and_b32 s{sDG}, s{sW}, 3')
    for s in range(3):
        for f in stage_dma_ops(em, s, qh): f()
    em.st.stamp('si')
    em.op(f'v_bfe_u32 v{t0}, {L}, 3, 1'); em.op(f'v_lshlrev_b32 v{t0}, 10, v{t0}')
    em.op(f'v_and_b32 v{t1}, 7, {L}'); em.op(f'v_lshlrev_b32 v{t1}, 7, v{t1}')
    em.op(f'v_add_u32 v{t0}, v{t0}, v{t1}')
    em.op(f'v_bfe_u32 v{t1}, {L}, 1, 3'); em.op(f'v_lshrrev_b32 v{t2}, 4, {L}')
    em.op(f'v_xor_b32 v{t1}, v{t1}, v{t2}'); em.op(f'v_lshlrev_b32 v{t5}, 4, v{t1}')
    em.op(f'v_add_u32 v{vRA[0]}, v{t0}, v{t5}')
    em.op(f'v_add_u32 v{vRA[0]}, {24576 + q0 * 2048}, v{vRA[0]}')
    em.op(f'v_xor_b32 v{vRA[1]}, 64, v{vRA[0]}')
    em.op(f'v_mov_b32 v{vT}, v{t5}')
    for t in range(3): tr_addr(em, vRB[t], sDG, t, None, 0, 'w')
    AF = [176, 188]; BF = [200, 220]
    def q_reads(step, st):
        ops = []
        for t in range(3):
            ops.append(f'ds_read_b64_tr_b16 {vr(AF[st] + 4*t, 2)}, v{vRB[t]} offset:{step * 12288}')
            ops.append(f'ds_read_b64_tr_b16 {vr(AF[st] + 4*t + 2, 2)}, v{vRB[t]} offset:{step * 12288 + 512}')
        xs = [f'ds_read_b128 {vr(BF[st] + 4*j)}, v{vRA[step]} offset:{j * 2048}' for j in range(nq)]
        return ops[0:2] + xs[0:1] + ops[2:6] + xs[1:]
    def mf(st, first):
        return [mfma(ACC + 4*(j*3+t), AF[st] + 4*t, BF[st] + 4*j, None if first else ACC + 4*(j*3+t)) for j in range(nq) for t in range(3)]
    em.wait_vm_tag('S0'); em.barrier()
    em.st.stamp('S0')
    for o in q_reads(0, 0): em.op(o)
    for s in range(10):
        interleave(em, mf(0, s == 0), q_reads(1, 1) + ['s_nop 0'] * 0)
        if s < 9: em.wait_vm_tag(f'S{s+1}', lgkm0=True)
        else: em.wait_lgkm0()
        em.barrier()
        if s in cfg.qst: em.st.stamp(f'B{s}')
        fill = []
        if s < 9:
            d = STG if (s + 1) % 3 else -2 * STG
            fill += [f'v_add_u32 v{r}, {d & 0xffffffff}, v{r}' for r in vRA + vRB]
            fill += q_reads(0, 0)
        if s + 3 <= 9: fill += mark(stage_dma_ops(em, s + 3, qh))
        if s == 8:
            def f():
                if cfg.two_types and cfg.nk1 > 0:
                    em.op(f's_cmp_eq_u32 s{sTYPE}, 0')
                    em.op(f's_cbranch_scc0 L_k0done{qh}')
                    em.begin_opt(); k_loads(em, 0)
                    if cfg.nk1 > 2: k_loads(em, 1)
                    em.end_opt()
                    em.label(f'L_k0done{qh}')
                    if cfg.nk1 <= 2: k_loads(em, 1)
                else:
                    k_loads(em, 0); k_loads(em, 1)
            fill.append(f)
            for sv in range(3): fill += v_dma_ops(em, sv)
        interleave(em, mf(1, False), fill)
    for t in range(3):
        em.op(f's_mul_i32 s{sT0}, s{sDG}, 3'); em.op(f's_add_u32 s{sT0}, s{sT0}, {t}'); em.op(f's_lshl_b32 s{sT0}, s{sT0}, 1')
        em.op(f'v_lshrrev_b32 v{t0}, 5, {L}')
        em.op(f'v_add_u32 v{t0}, s{sT0}, v{t0}')
        em.op(f'v_lshrrev_b32 v{t1}, 3, v{t0}'); em.op(f'v_lshlrev_b32 v{t1}, 7, v{t1}')
        em.op(f'v_and_b32 v{t0}, 7, v{t0}')
        em.op(f'v_bfe_u32 v{t2}, {L}, 1, 3')
        em.op(f'v_xor_b32 v{t0}, v{t0}, v{t2}'); em.op(f'v_lshlrev_b32 v{t0}, 4, v{t0}')
        em.op(f'v_add_u32 v{t0}, v{t0}, v{t1}')
        em.op(f'v_and_b32 v{t1}, 15, {L}'); em.op(f'v_mul_u32_u24 v{t1}, 384, v{t1}')
        em.op(f'v_add_u32 v{t0}, v{t0}, v{t1}')
        em.op(f'v_bfe_u32 v{t1}, {L}, 4, 1'); em.op(f'v_lshlrev_b32 v{t1}, 3, v{t1}')
        em.op(f'v_add_u32 v{vRC[t]}, v{t0}, v{t1}')
    for j in range(nq):
        for t in range(3):
            a = ACC + 4*(j*3+t)
            em.op(f'v_cvt_pk_bf16_f32 v{a}, v{a}, v{a+1}')
            em.op(f'v_cvt_pk_bf16_f32 v{a+1}, v{a+2}, v{a+3}')
            em.op(f'ds_write_b64 v{vRC[t]}, {vr(a,2)} offset:{(q0 + j) * 6144}')
    em.op(f'v_and_b32 v{t1}, 15, {L}'); em.op(f'v_mul_u32_u24 v{t1}, 384, v{t1}')
    em.op(f'v_add_u32 v{vRA[0]}, v{t1}, v{vT}')
    em.op(f'v_xor_b32 v{t0}, 64, v{vT}')
    em.op(f'v_add_u32 v{vRA[1]}, v{t1}, v{t0}')
    for t in range(3):
        tr_addr(em, vRB[t], sDG, t, None, VBASE, 'v')
    em.op(f'v_lshlrev_b32 v{vPA}, 4, {L}')
    em.op(f's_mul_i32 s{sT0}, s{sW}, 9216')
    em.op(f'v_add_u32 v{vPW}, s{sT0}, v{vPA}')
    em.op(f'v_add_u32 v{vPA}, {q0 * 1024}, v{vPA}')
    em.op(f'v_add_u32 v{vPB}, 36864, v{vPA}')
    em.wait_lgkm0(); em.barrier()
    em.st.stamp('BQ')
    for t in range(3): em.op(f'v_add_u32 v{vRC[t]}, 49152, v{vRB[t]}')
    def qrd(n):
        qt, ks = divmod(n, 6)
        return f'ds_read_b128 {vr(QF + 4*(n % 4))}, v{vRA[ks & 1]} offset:{qt * 6144 + (ks >> 1) * 128}'
    def maxops(half):
        ops = []
        for qt in range(9):
            a, b = sreg(half*2, qt), sreg(half*2+1, qt); m = MC + qt
            if half == 0:
                ops += [f'v_max3_f32 v{m}, v{a}, v{a+1}, v{a+2}', f'v_max3_f32 v{m}, v{m}, v{a+3}, v{b}',
                        f'v_max3_f32 v{m}, v{m}, v{b+1}, v{b+2}', f'v_max_f32 v{m}, v{m}, v{b+3}']
            else:
                ops += [f'v_max3_f32 v{m}, v{m}, v{a}, v{a+1}', f'v_max3_f32 v{m}, v{m}, v{a+2}, v{a+3}',
                        f'v_max3_f32 v{m}, v{m}, v{b}, v{b+1}', f'v_max3_f32 v{m}, v{m}, v{b+2}, v{b+3}']
        return ops
    for half in range(2):
        for n in range(3): em.op(qrd(n))
        em.wait_vm_tag(f'K{half}')
        em.st.stamp(f'K{half}')
        for o in k_fix_ops(half): em.op(o)
        fill = maxops(0) if half == 1 else []
        fi = 0
        for n in range(54):
            qt, ks = divmod(n, 6)
            if n + 3 < 54: em.op(qrd(n + 3))
            for k in range(2):
                kt = half * 2 + k
                em.op(mfma(sreg(kt, qt), kop(kt, ks), QF + 4*(n % 4), None if ks == 0 else sreg(kt, qt)))
            if fi < len(fill) and n >= 2:
                em.op(fill[fi]); fi += 1
        while fi < len(fill): em.op(fill[fi]); fi += 1
    em.st.stamp('QKend')
    for o in maxops(1): em.op(o)
    for qt in range(9): em.op(f'ds_max_f32 v{vMS}, v{MC+qt} offset:{qt*64}')
    em.wait_lgkm0(); em.barrier()
    em.st.stamp('BM')
    for qt in range(9): em.op(f'ds_read_b32 v{MC+qt}, v{vMS} offset:{qt*64}')
    for qt in range(9): em.op(f'v_mul_f32 v{MC+qt}, s{sC}, v{MC+qt}')
    def expops(half, qt):
        a, b = sreg(half*2, qt), sreg(half*2+1, qt)
        rs = [a, a+1, a+2, a+3, b, b+1, b+2, b+3]
        ops = [f'v_fma_f32 v{r}, v{r}, s{sC}, -v{MC+qt}' for r in rs]
        ops += [f'v_exp_f32 v{r}, v{r}' for r in rs]
        tA, tB = TMP[0], TMP[1]
        ops += [f'v_add_f32 v{tA}, v{rs[0]}, v{rs[1]}', f'v_add_f32 v{tB}, v{rs[2]}, v{rs[3]}',
                f'v_add_f32 v{tA}, v{tA}, v{rs[4]}', f'v_add_f32 v{tB}, v{tB}, v{rs[5]}',
                f'v_add_f32 v{tA}, v{tA}, v{rs[6]}', f'v_add_f32 v{tB}, v{tB}, v{rs[7]}']
        if half == 0: ops += [f'v_add_f32 v{SUM+qt}, v{tA}, v{tB}']
        else: ops += [f'v_add_f32 v{tA}, v{tA}, v{tB}', f'v_add_f32 v{SUM+qt}, v{SUM+qt}, v{tA}']
        ops += [f'v_cvt_pk_bf16_f32 v{a}, v{a}, v{a+1}', f'v_cvt_pk_bf16_f32 v{a+1}, v{a+2}, v{a+3}',
                f'v_cvt_pk_bf16_f32 v{a+2}, v{b}, v{b+1}', f'v_cvt_pk_bf16_f32 v{a+3}, v{b+2}, v{b+3}']
        return ops
    def pwrite(half, qt): return f'ds_write_b128 v{vPW}, {vr(sreg(half*2, qt))} offset:{qt*1024}'
    for qt in range(9):
        for o in expops(0, qt): em.op(o)
        em.op(pwrite(0, qt))
    em.st.stamp('exp0')
    em.wait_vm_tag('V0', lgkm0=True); em.barrier()
    em.st.stamp('PV0')
    AF = [176, 104]; BF = [64, 84]
    def pv_reads(s, step, st):
        ops = []
        slot = s % 3
        base = vRB if slot < 2 else vRC
        off = (slot % 2) * 24576 + step * 12288 if slot < 2 else step * 12288
        for t in range(3):
            ops.append(f'ds_read_b64_tr_b16 {vr(AF[st] + 4*t, 2)}, v{base[t]} offset:{off}')
            ops.append(f'ds_read_b64_tr_b16 {vr(AF[st] + 4*t + 2, 2)}, v{base[t]} offset:{off + 6144}')
        ps = 2 * (s & 3) + step
        pa, po = (vPA, ps * 9216) if ps < 4 else (vPB, (ps - 4) * 9216)
        xs = [f'ds_read_b128 {vr(BF[st] + 4*j)}, v{pa} offset:{po + j * 1024}' for j in range(nq)]
        return ops[0:2] + xs[0:1] + ops[2:6] + xs[1:]
    def mf(st, first):
        return [mfma(ACC + 4*(j*3+t), AF[st] + 4*t, BF[st] + 4*j, None if first else ACC + 4*(j*3+t)) for j in range(nq) for t in range(3)]
    def sum_ops():
        S = SUM; ops = []
        ops += [f'v_mov_b32 v{S+9}, 0', f'v_mov_b32 v{S+10}, 0']
        ta = TMP[2]; tb = TMP[3]
        ops += [f'v_bfe_u32 v{ta}, {L}, 4, 1', f'v_lshlrev_b32 v{ta}, 10, v{ta}', f'v_bfe_u32 v{tb}, {L}, 5, 1', f'v_lshlrev_b32 v{tb}, 9, v{tb}',
                f'v_add_u32 v{ta}, v{ta}, v{tb}', f'v_and_b32 v{tb}, 15, {L}', f'v_lshlrev_b32 v{tb}, 5, v{tb}', f'v_add_u32 v{ta}, v{ta}, v{tb}',
                f's_lshl_b32 s{sT0}, s{sW}, 2', f's_add_u32 s{sT0}, s{sT0}, {SUMB}', f'v_add_u32 v{ta}, s{sT0}, v{ta}']
        for a in (0, 2, 4, 6, 8): ops.append(f'v_permlane32_swap_b32 v{S+a}, v{S+a+1}')
        for a in (0, 2, 4, 6, 8): ops.append(f'v_add_f32 v{S+a}, v{S+a}, v{S+a+1}')
        for a in (0, 4, 8): ops.append(f'v_permlane16_swap_b32 v{S+a}, v{S+a+2}')
        for a in (0, 4, 8): ops.append(f'v_add_f32 v{S+a}, v{S+a}, v{S+a+2}')
        for a in (0, 4, 8): ops.append(f'ds_write_b32 v{ta}, v{S+a} offset:{a * 512}')
        return ops
    def inv_ops():
        ta = TMP[2]; ops = []
        ops += [f'v_and_b32 v{ta}, 15, {L}', f'v_lshlrev_b32 v{ta}, 5, v{ta}', f'v_add_u32 v{ta}, {SUMB + q0 * 512}, v{ta}']
        for j in range(nq):
            ops += [f'ds_read_b128 {vr(16 + 8*j)}, v{ta} offset:{j * 512}', f'ds_read_b128 {vr(20 + 8*j)}, v{ta} offset:{j * 512 + 16}']
        for j in range(nq):
            r = 16 + 8*j
            ops += [f'v_add_f32 v{r}, v{r}, v{r+1}', f'v_add_f32 v{r+2}, v{r+2}, v{r+3}', f'v_add_f32 v{r+4}, v{r+4}, v{r+5}', f'v_add_f32 v{r+6}, v{r+6}, v{r+7}',
                    f'v_add_f32 v{r}, v{r}, v{r+2}', f'v_add_f32 v{r+4}, v{r+4}, v{r+6}', f'v_add_f32 v{r}, v{r}, v{r+4}', f'v_rcp_f32 v{MC+j}, v{r}']
        return ops
    exp_sched = {0: [0, 1], 1: [2, 3], 2: [4, 5], 3: [6, 7], 4: [8]}
    wr_half = 5 if qh == 0 else 7
    def merge(a, b):
        out = []; n = max(len(a), len(b))
        ia = ib = 0
        tot = len(a) + len(b)
        for i in range(tot):
            if ib >= len(b) or (ia < len(a) and ia * len(b) <= ib * len(a)): out.append(a[ia]); ia += 1
            else: out.append(b[ib]); ib += 1
        return out
    for o in pv_reads(0, 0, 0): em.op(o)
    for s in range(8):
        ex = sum([expops(1, qt) for qt in exp_sched.get(2*s, [])], [])
        interleave(em, mf(0, s == 0), pv_reads(s, 1, 1) + ex)
        if s < 7: em.wait_vm_tag(f'V{s+1}', lgkm0=True)
        else: em.wait_lgkm0()
        em.barrier()
        if s in cfg.pvst: em.st.stamp(f'PB{s}')
        fill = []
        if s < 7: fill += pv_reads(s + 1, 0, 0)
        if s + 3 <= 7: fill += mark(v_dma_ops(em, s + 3))
        fill += sum([expops(1, qt) for qt in exp_sched.get(2*s+1, [])], [])
        if 2*s+1 == wr_half:
            fill += [pwrite(1, qt) for qt in range(9)]
            fill += sum_ops()
        if s == 7:
            fill += inv_ops()
        interleave(em, mf(1, False), fill)
    for t in range(3):
        em.op(f's_mul_i32 s{sT0}, s{sDG}, 3'); em.op(f's_add_u32 s{sT0}, s{sT0}, {t}')
        em.op(f's_lshr_b32 s{sT1}, s{sT0}, 1'); em.op(f's_mul_i32 s{sT1}, s{sT1}, 9216')
        em.op(f's_and_b32 s{sT0}, s{sT0}, 1'); em.op(f's_lshl_b32 s{sT0}, s{sT0}, 3')
        em.op(f's_add_u32 s{sT0}, s{sT0}, s{sT1}')
        em.op(f'v_add_u32 v{vRC[t]}, s{sT0}, v{vPA}')
    for j in range(nq):
        for t in range(3):
            a = ACC + 4*(j*3+t)
            for d in range(4): em.op(f'v_mul_f32 v{a+d}, v{a+d}, v{MC+j}')
            em.op(f'v_cvt_pk_bf16_f32 v{a}, v{a}, v{a+1}')
            em.op(f'v_cvt_pk_bf16_f32 v{a+1}, v{a+2}, v{a+3}')
            em.op(f'ds_write_b64 v{vRC[t]}, {vr(a,2)} offset:{j * 1024}')
    em.op(f'v_lshlrev_b32 v{t0}, 4, v0')
    em.wait_lgkm0(); em.barrier()
    for i in range(7): em.op(f'ds_read_b128 {vr(16 + 4*i)}, v{t0} offset:{i * 8192}')
    for i in range(7):
        em.op(f's_mov_b32 s{sOFF}, {i * 8192}')
        em.op(f'buffer_store_dwordx4 {vr(16 + 4*i)}, v{t0}, {sr(SO,4)}, s{sOFF} offen')
    if cfg.diag: em.wait_vm0()
    em.st.flush(12, 0, sW, 244)
    em.op('s_endpgm')

def kernel_header(name):
    return f'.globl {name}\n.p2align 8\n.type {name},@function\n{name}:\n'
def kernel_desc(name, vgpr, sgpr=102):
    return f'''.amdhsa_kernel {name}
  .amdhsa_next_free_vgpr {vgpr}
  .amdhsa_next_free_sgpr {sgpr}
  .amdhsa_accum_offset {(vgpr + 3) // 4 * 4}
  .amdhsa_group_segment_fixed_size 0
  .amdhsa_kernarg_size 64
  .amdhsa_user_sgpr_count 2
  .amdhsa_user_sgpr_kernarg_segment_ptr 1
  .amdhsa_system_sgpr_workgroup_id_x 1
.end_amdhsa_kernel
'''

def gen_k1():
    em = Em()
    k1_prologue(em)
    import copy
    st = (copy.copy(em.hist), copy.copy(em.lgkm), copy.deepcopy(em.vm))
    em.label('k1_body_start')
    k1_body(em, 0)
    em.label('L_k1_q1')
    em.hist, em.lgkm, em.vm = st
    em.st.n = 4; em.st.names = em.st.names[:4]
    k1_body(em, 1)
    em.label('k1_body_end')
    em.label('L_k1_exit')
    em.op('s_endpgm')
    return em

def gen_k2():
    em = Em()
    SD, SP = 16, 20
    sW, sM0, sSTR, sOFF, sT0, sT1, sT2, sB, sNQ, sX, sNH = 36, 37, 38, 39, 40, 41, 42, 43, 44, 45, 46
    vL = 1; vOFFS = [2, 3, 4, 5, 6]; vA = [7, 8, 9, 10, 11]; vB = 12
    t0, t1, t2, t3, t4 = 13, 14, 15, 16, 17
    STG2 = 40960
    nt = ' nt' if cfg.nt_k2 else ''
    em.op('s_cmp_ge_u32 s2, 256')
    em.op('s_cbranch_scc1 L_k2_exit')
    em.st = Stamps(em); em.st.stamp('rt0', real=True); em.st.stamp('start')
    em.op('s_load_dwordx2 s[4:5], s[0:1], 32')
    em.op('s_load_dwordx2 s[12:13], s[0:1], 56')
    em.op(f'v_and_b32 v{vL}, 63, v0')
    em.op(f'v_lshrrev_b32 v{t0}, 6, v0')
    em.op(f's_and_b32 s{sX}, s2, 7')
    em.op(f's_lshr_b32 s{sT0}, s2, 3')
    em.op(f'v_readfirstlane_b32 s{sW}, v{t0}')
    em.op(f's_and_b32 s{sNQ}, s{sT0}, 3')
    em.op(f's_lshr_b32 s{sB}, s{sT0}, 2')
    em.op(f's_and_b32 s{sNH}, s{sW}, 1')
    em.op('s_waitcnt lgkmcnt(0)')
    em.op(f's_lshl_b32 s{sT0}, s{sT0}, 3'); em.op(f's_add_u32 s{sT0}, s{sT0}, s{sX}')
    em.op(f's_mul_i32 s{sT0}, s{sT0}, {PART_TILE}'); em.op(f's_add_u32 s{sT0}, s{sT0}, {WS_PART}')
    srd(em, SP, 12, 13, f's{sT0}', PART_TILE)
    em.op(f's_cmp_lt_u32 s{sW}, 4')
    em.op('s_cbranch_scc0 L_k2_orole')
    em.op(f's_mul_i32 s{sT0}, s{sX}, {768 * 1280}'); em.op(f's_mul_i32 s{sT1}, s{sNQ}, 320'); em.op(f's_add_u32 s{sT0}, s{sT0}, s{sT1}')
    srd(em, SD, 4, 5, f's{sT0}', 7864320)
    em.op(f's_sub_u32 s{SD+2}, s{SD+2}, s{sT0}')
    em.op(f's_mov_b32 s{sSTR}, {64 * 1280}')
    em.op(f's_mul_i32 s{sM0}, s{sW}, 5120')
    em.op(f's_lshl_b32 s{sT2}, s{sW}, 4')
    em.op(f's_mov_b32 s{sT1}, 52429')
    for j in range(5):
        em.op(f'v_add_u32 v{t0}, {j * 64}, v{vL}')
        em.op(f'v_mul_lo_u32 v{t1}, v{t0}, s{sT1}')
        em.op(f'v_lshrrev_b32 v{t1}, 20, v{t1}')
        em.op(f'v_mul_u32_u24 v{t2}, 20, v{t1}')
        em.op(f'v_sub_u32 v{t2}, v{t0}, v{t2}')
        em.op(f'v_bfe_u32 v{t3}, v{t1}, 2, 1')
        em.op(f'v_lshlrev_b32 v{t3}, 1, v{t3}')
        em.op(f'v_xor_b32 v{t2}, v{t2}, v{t3}')
        em.op(f'v_lshlrev_b32 v{t2}, 4, v{t2}')
        em.op(f'v_add_u32 v{t1}, s{sT2}, v{t1}')
        em.op(f'v_mul_u32_u24 v{t1}, 1280, v{t1}')
        em.op(f'v_add_u32 v{vOFFS[j]}, v{t1}, v{t2}')
    em.op('s_branch L_k2_join')
    em.label('L_k2_orole')
    em.op(f's_lshl_b32 s{sT0}, s{sB}, 5'); em.op(f's_lshl_b32 s{sT1}, s{sX}, 2'); em.op(f's_add_u32 s{sT0}, s{sT0}, s{sT1}')
    em.op(f's_mul_i32 s{sT0}, s{sT0}, {O_HEAD}')
    srd(em, SD, 12, 13, f's{sT0}', 4 * O_HEAD)
    em.op(f's_mov_b32 s{sSTR}, 18432')
    em.op(f's_mul_i32 s{sM0}, s{sW}, 5120')
    em.op(f's_sub_u32 s{sT2}, s{sM0}, 20480')
    em.op(f'v_lshlrev_b32 v{t0}, 4, v{vL}')
    em.op(f'v_add_u32 v{t0}, s{sT2}, v{t0}')
    for j in range(5): em.op(f'v_add_u32 v{vOFFS[j]}, {j * 1024}, v{t0}')
    em.label('L_k2_join')
    em.reset(); em.op('s_nop 4')
    em.op(f's_mov_b32 s{sOFF}, 0')
    def dma(s):
        ops = []
        for j in range(5):
            def f(j=j):
                em.op(f's_add_u32 m0, s{sM0}, {(s % 3) * STG2 + j * 1024}')
                em.op('s_nop 0')
                em.op(f'buffer_load_dwordx4 v{vOFFS[j]}, {sr(SD,4)}, s{sOFF} offen{nt} lds', tag=f'S{s}')
                if j == 4: em.op(f's_add_u32 s{sOFF}, s{sOFF}, s{sSTR}')
            ops.append(f)
        return ops
    for s in range(3):
        for f in dma(s): f()
    em.op(f'v_lshrrev_b32 v{t0}, 2, v{vL}')
    em.op(f'v_mul_u32_u24 v{t0}, 320, v{t0}')
    em.op(f'v_and_b32 v{t1}, 3, v{vL}'); em.op(f'v_lshlrev_b32 v{t1}, 3, v{t1}')
    em.op(f'v_add_u32 v{t0}, v{t0}, v{t1}')
    em.op(f'v_bfe_u32 v{t1}, v{vL}, 4, 1')
    em.op(f's_mul_i32 s{sT0}, s{sNH}, 5')
    for t in range(5):
        em.op(f's_add_u32 s{sT1}, s{sT0}, {t}')
        em.op(f'v_xor_b32 v{t2}, s{sT1}, v{t1}')
        em.op(f'v_lshlrev_b32 v{t2}, 5, v{t2}')
        em.op(f'v_add_u32 v{vA[t]}, v{t0}, v{t2}')
    sQ0 = 47
    em.op(f's_lshr_b32 s{sT0}, s{sW}, 1')
    em.op(f's_mov_b32 s{sT1}, 0x7350')
    em.op(f's_lshl_b32 s{sT0}, s{sT0}, 2')
    em.op(f's_lshr_b32 s{sQ0}, s{sT1}, s{sT0}')
    em.op(f's_and_b32 s{sQ0}, s{sQ0}, 15')
    em.op(f's_lshl_b32 s{sT0}, s{sQ0}, 10')
    em.op(f's_add_u32 s{sT0}, s{sT0}, 20480')
    em.op(f'v_lshlrev_b32 v{vB}, 4, v{vL}')
    em.op(f'v_add_u32 v{vB}, s{sT0}, v{vB}')
    em.op(f's_cmp_lt_u32 s{sW}, 2')
    em.op('s_cbranch_scc0 L_k2_n2')
    import copy
    st = (copy.copy(em.hist), copy.copy(em.lgkm), copy.deepcopy(em.vm))
    def body(nq):
        ACC2 = 20; AF = [80, 100]; BF = [120, 132]
        def reads(step, st_):
            ops = []
            for t in range(5):
                ops.append(f'ds_read_b64_tr_b16 {vr(AF[st_] + 4*t, 2)}, v{vA[t]} offset:{step * 10240}')
                ops.append(f'ds_read_b64_tr_b16 {vr(AF[st_] + 4*t + 2, 2)}, v{vA[t]} offset:{step * 10240 + 5120}')
            xs = [f'ds_read_b128 {vr(BF[st_] + 4*j)}, v{vB} offset:{step * 9216 + j * 1024}' for j in range(nq)]
            return ops[0:2] + xs + ops[2:]
        def mf(st_, first):
            return [mfma(ACC2 + 4*(t*nq+j), AF[st_] + 4*t, BF[st_] + 4*j, None if first else ACC2 + 4*(t*nq+j)) for t in range(5) for j in range(nq)]
        em.wait_vm_tag('S0'); em.barrier()
        em.st.stamp('S0')
        for o in reads(0, 0): em.op(o)
        for s in range(12):
            interleave(em, mf(0, s == 0), reads(1, 1))
            if s < 11:
                em.wait_vm_tag(f'S{s+1}', lgkm0=True)
                em.barrier()
                if s in (0, 2, 5, 8, 10): em.st.stamp(f'B{s}')
            fill = []
            if s < 11:
                d = STG2 if (s + 1) % 3 else -2 * STG2
                fill += [f'v_add_u32 v{r}, {d & 0xffffffff}, v{r}' for r in vA + [vB]]
                fill += reads(0, 0)
            if s + 3 <= 11: fill += mark(dma(s + 3))
            interleave(em, mf(1, False), fill)
        em.op(f's_mul_i32 s{sT0}, s{sQ0}, 10240'); em.op(f's_mul_i32 s{sT1}, s{sNH}, 5120'); em.op(f's_add_u32 s{sT0}, s{sT0}, s{sT1}')
        em.op(f'v_lshlrev_b32 v{t0}, 4, v{vL}')
        em.op(f'v_add_u32 v{t0}, s{sT0}, v{t0}')
        for j in range(nq):
            for t in range(5):
                em.op(f's_mov_b32 s{sOFF}, {j * 10240 + t * 1024}')
                em.op(f'buffer_store_dwordx4 {vr(ACC2 + 4*(t*nq+j))}, v{t0}, {sr(SP,4)}, s{sOFF} offen')
        if cfg.diag: em.wait_vm0()
        em.st.flush(12, 1, sW, t1)
        em.op('s_endpgm')
    body(3)
    em.label('L_k2_n2')
    em.hist, em.lgkm, em.vm = st
    em.st.n = 2; em.st.names = em.st.names[:2]
    body(2)
    em.label('L_k2_exit')
    em.op('s_endpgm')
    return em

def gen_k3():
    em = Em()
    em.op('s_cmp_ge_u32 s2, 720')
    em.op('s_cbranch_scc1 L_k3_exit')
    em.op('s_load_dwordx2 s[4:5], s[0:1], 40')
    em.op('s_load_dwordx2 s[12:13], s[0:1], 56')
    em.op('v_and_b32 v1, 63, v0')
    em.op('v_lshrrev_b32 v2, 6, v0')
    em.op('s_lshl_b32 s6, s2, 2')
    em.op('v_readfirstlane_b32 s7, v2')
    em.op('s_add_u32 s6, s6, s7')
    em.op('s_mul_i32 s7, s6, 11651')
    em.op('s_lshr_b32 s7, s7, 20')
    em.op('s_mul_i32 s8, s7, 90')
    em.op('s_sub_u32 s8, s6, s8')
    em.op('s_waitcnt lgkmcnt(0)')
    em.op(f's_mul_i32 s9, s7, {8 * PART_TILE}'); em.op(f's_add_u32 s9, s9, {WS_PART}')
    srd(em, 16, 12, 13, 's9', 8 * PART_TILE)
    srd(em, 20, 4, 5, None, 1474560)
    em.op('v_lshlrev_b32 v3, 4, v1')
    em.op('s_lshl_b32 s10, s8, 10')
    for x in range(8):
        em.op(f'buffer_load_dwordx4 {vr(8 + 4*x)}, v3, s[16:19], s10 offen')
        if x < 7: em.op(f's_add_u32 s10, s10, {PART_TILE}')
    em.op('s_mul_i32 s11, s8, 6554'); em.op('s_lshr_b32 s11, s11, 16')
    em.op('s_mul_i32 s14, s11, 10'); em.op('s_sub_u32 s14, s8, s14')
    em.op('s_lshr_b32 s15, s7, 2'); em.op('s_mul_i32 s15, s15, 144'); em.op('s_lshl_b32 s11, s11, 4'); em.op('s_add_u32 s15, s15, s11')
    em.op('s_mul_i32 s15, s15, 1280')
    em.op('s_and_b32 s11, s7, 3'); em.op('s_mul_i32 s11, s11, 320'); em.op('s_add_u32 s15, s15, s11')
    em.op('s_lshl_b32 s14, s14, 5'); em.op('s_add_u32 s15, s15, s14')
    em.op('v_and_b32 v4, 15, v1'); em.op('v_mul_u32_u24 v4, 1280, v4')
    em.op('v_lshrrev_b32 v5, 4, v1'); em.op('v_lshlrev_b32 v5, 3, v5'); em.op('v_add_u32 v4, v4, v5')
    for x in range(1, 8):
        for d in range(4): em.op(f'v_add_f32 v{8+d}, v{8+d}, v{8+4*x+d}')
    em.op('v_cvt_pk_bf16_f32 v8, v8, v9'); em.op('v_cvt_pk_bf16_f32 v9, v10, v11')
    em.op('buffer_store_dwordx2 v[8:9], v4, s[20:23], s15 offen')
    em.label('L_k3_exit')
    em.op('s_endpgm')
    return em

def main():
    ref = open('cdna_kernels/' + NAME + '.s.ref').read().split('\n')
    head = [l for l in ref[:9]]
    k1, k2, k3 = gen_k1(), gen_k2(), gen_k3()
    out = '\n'.join(head) + '\n'
    out += f'; @launch kernel=attn_kernel grid=(256,1,1) block=(512,1,1) lds={LDS1}\n'
    out += f'; @launch kernel=oproj_kernel grid=(256,1,1) block=(512,1,1) lds={3 * 40960}\n'
    out += f'; @launch kernel=reduce_kernel grid=(720,1,1) block=(256,1,1) lds=0\n'
    out += '.amdgcn_target "amdgcn-amd-amdhsa--gfx950"\n.text\n'
    out += kernel_header('attn_kernel') + k1.text()
    out += kernel_header('oproj_kernel') + k2.text()
    out += kernel_header('reduce_kernel') + k3.text()
    out += '.section .rodata,"a"\n.p2align 6\n' + kernel_desc('attn_kernel', 256) + '.p2align 6\n' + kernel_desc('oproj_kernel', 144) + '.p2align 6\n' + kernel_desc('reduce_kernel', 40, 32)
    open(sys.argv[1], 'w').write(out)
    print('k1 instrs', k1.count, 'nops', k1.nops, '| k2', k2.count, k2.nops, '| k3', k3.count, file=sys.stderr)
main()
```

```python
import re

REG = re.compile(r'^(-|\|)?([vsa])(\d+)\|?$')
RNG = re.compile(r'^(-)?([vsa])\[(\d+):(\d+)\]$')
TRANS = ('v_exp_f32', 'v_log_f32', 'v_rcp_f32', 'v_rsq_f32', 'v_sqrt_f32', 'v_sin_f32', 'v_cos_f32')

def regs_of(tok):
    tok = tok.strip()
    m = REG.match(tok)
    if m: return [(m.group(2), int(m.group(3)))]
    m = RNG.match(tok)
    if m: return [(m.group(2), i) for i in range(int(m.group(3)), int(m.group(4)) + 1)]
    if tok == 'vcc': return [('s', 'vcc')]
    if tok == 'm0': return [('s', 'm0')]
    if tok == 'exec': return [('s', 'exec')]
    return []

def split_ops(s):
    out, depth, cur = [], 0, ''
    for ch in s:
        if ch in '[(': depth += 1
        if ch in '])': depth -= 1
        if ch == ',' and depth == 0:
            out.append(cur.strip()); cur = ''
        else: cur += ch
    if cur.strip(): out.append(cur.strip())
    return out

class Rec:
    __slots__ = ('kind', 'w', 'r', 'rc', 'weight', 'text', 'passes', 'dpp_src')

class Em:
    def __init__(self):
        self.lines = []
        self.hist = []
        self.lgkm = []
        self.vm = []
        self.opt_start = None
        self.nops = 0
        self.count = 0

    def raw(self, text):
        self.lines.append(text)

    def comment(self, t): self.lines.append('    ; ' + t)

    def label(self, name):
        self.lines.append(name + ':')

    def reset(self):
        self.hist = []; self.lgkm = []; self.vm = []

    def parse(self, text):
        t = text.split(';')[0].strip()
        sp = t.split(None, 1)
        mn = sp[0]
        ops = split_ops(sp[1]) if len(sp) > 1 else []
        mods = ''
        if ops:
            l = ops[-1].split(None, 1)
            if len(l) > 1 and not ops[-1].startswith('hwreg'):
                ops[-1] = l[0]; mods = l[1]
        rec = Rec(); rec.text = text; rec.w = []; rec.r = []; rec.rc = []; rec.weight = 1; rec.passes = 0; rec.dpp_src = []
        R = [regs_of(o) for o in ops]
        if mn.startswith('v_mfma'):
            rec.kind = 'mfma'; rec.w = R[0]; rec.r = R[1] + R[2]; rec.rc = R[3]
            rec.passes = 4 if '16x16x32' in mn else 8
        elif mn.startswith('ds_read'):
            rec.kind = 'ds'; rec.w = R[0]; rec.r = R[1]
        elif mn.startswith('ds_'):
            rec.kind = 'ds'; rec.r = sum(R, [])
        elif mn.startswith('buffer_load'):
            rec.kind = 'vmem'
            if 'lds' in mods.split():
                rec.r = sum(R, []) + [('s', 'm0')]; rec.kind = 'dma'
            else:
                rec.w = R[0]; rec.r = sum(R[1:], [])
        elif mn.startswith('global_load_lds'):
            rec.kind = 'dma'; rec.r = sum(R, []) + [('s', 'm0')]
        elif mn.startswith('global_load'):
            rec.kind = 'vmem'; rec.w = R[0]; rec.r = sum(R[1:], [])
        elif mn.startswith('buffer_store') or mn.startswith('global_store'):
            rec.kind = 'store'; rec.r = sum(R, [])
            d = R[0] if mn.startswith('buffer') else R[1]
            rec.rc = d if len(d) > 2 else []
        elif mn.startswith('global_atomic') or mn.startswith('buffer_atomic'):
            rec.kind = 'vmem'
            if 'sc0' in mods.split():
                rec.w = R[0]; rec.r = sum(R[1:], [])
                if mn.startswith('buffer'): rec.r = sum(R, [])
            else: rec.r = sum(R, [])
        elif mn in ('buffer_wbl2', 'buffer_inv'):
            rec.kind = 'vmem'
        elif mn.startswith('v_'):
            rec.kind = 'trans' if mn.replace('_e32', '').replace('_e64', '') in TRANS else 'valu'
            rec.w = list(R[0]); rec.r = sum(R[1:], [])
            if mn.startswith('v_permlane') and 'swap' in mn:
                rec.kind = 'perm'; rec.w = R[0] + R[1]; rec.r = R[0] + R[1]
            if mn.startswith('v_readfirstlane') or mn.startswith('v_readlane'):
                rec.kind = 'rdlane'
            if '_co_' in mn: rec.w += R[1]; rec.r = sum(R[2:], [])
            if mn.startswith('v_fmac') or mn.startswith('v_pk_fmac'): rec.r += R[0]
            if mn.startswith('v_cndmask') and len(ops) == 3: rec.r += [('s', 'vcc')]
            if '_dpp' in mn or 'row_' in mods or 'quad_perm' in mods:
                rec.dpp_src = R[1]
        elif mn == 's_nop':
            rec.kind = 'nop'; rec.weight = int(ops[0], 0) + 1
        elif mn.startswith('s_load') or mn.startswith('s_buffer_load') or mn.startswith('s_memtime') or mn.startswith('s_memrealtime'):
            rec.kind = 'smem'; rec.w = R[0]; rec.r = sum(R[1:], [])
        else:
            rec.kind = 'salu'
            if mn.startswith('s_cmp') or mn.startswith('s_cbranch') or mn in ('s_barrier', 's_waitcnt', 's_branch', 's_endpgm', 's_setprio', 's_sleep'):
                rec.r = sum(R, [])
            elif R:
                rec.w = R[0]; rec.r = sum(R[1:], [])
                if 'saveexec' in mn: rec.w = rec.w + [('s', 'exec')]
        return rec

    def need_states(self, c):
        need = 0; dist = 0
        cr = set(c.r); cw = set(c.w); crc = set(c.rc)
        isvalu = c.kind in ('valu', 'trans', 'perm', 'rdlane')
        for p in reversed(self.hist):
            req = 0
            pw = set(p.w)
            pvalu = p.kind in ('valu', 'trans', 'perm', 'rdlane')
            if p.kind == 'mfma':
                big = {4: 8, 8: 12}[p.passes]
                if c.kind == 'mfma':
                    if pw & cr: req = max(req, big)
                    if pw & crc and (pw != crc or p.passes != c.passes): req = max(req, {4: 6, 8: 10}[p.passes])
                    if pw & cw and pw != crc: req = max(req, big)
                else:
                    if pw & (cr | cw | crc): req = max(req, big)
                    if isvalu and set(p.rc) & cw: req = max(req, {4: 3, 8: 7}[p.passes])
            if pvalu:
                vw = {x for x in pw if x[0] in 'va'}
                sw = {x for x in pw if x[0] == 's'}
                if c.kind == 'mfma' and vw & (cr | crc): req = max(req, 2)
                if c.dpp_src and vw & set(c.dpp_src): req = max(req, 2)
                if c.kind == 'perm' and vw & cr: req = max(req, 2)
                if c.kind == 'rdlane' and vw & cr: req = max(req, 1)
                if p.kind == 'trans' and isvalu and c.kind != 'trans' and vw & cr: req = max(req, 1)
                if p.kind == 'trans' and c.kind == 'trans' and vw & cr: req = max(req, 1)
                if sw & cr:
                    if c.kind in ('vmem', 'dma', 'store'): req = max(req, 5)
                    elif isvalu: req = max(req, 4 if c.kind == 'rdlane' else 2)
                    elif c.kind in ('salu', 'smem'): req = max(req, 2)
                if ('s', 'exec') in sw:
                    if c.kind == 'mfma': req = max(req, 4)
                    if c.dpp_src: req = max(req, 5)
                    if c.kind in ('rdlane', 'perm'): req = max(req, 4)
            if p.kind == 'salu' and ('s', 'm0') in pw and ('s', 'm0') in cr and c.kind == 'dma': req = max(req, 1)
            if p.kind == 'store' and p.rc and set(p.rc) & cw: req = max(req, 2)
            if req > dist: need = max(need, req - dist)
            dist += p.weight
            if dist > 24: break
        return need

    def _push(self, rec):
        self.hist.append(rec)
        if len(self.hist) > 200 and self.opt_start is None: self.hist = self.hist[-64:]
        self.lines.append('    ' + rec.text)
        self.count += 1

    def waitcnt(self, vm=None, lgkm=None):
        parts = []
        if vm is not None: parts.append(f'vmcnt({min(vm, 63)})')
        if lgkm is not None: parts.append(f'lgkmcnt({min(lgkm, 15)})')
        self._push(self.parse('s_waitcnt ' + ' '.join(parts)))

    def wait_lgkm0(self, force=False):
        if self.lgkm or force:
            self.waitcnt(lgkm=0); self.lgkm = []

    def vm_need_tag(self, tag):
        idx = max([i for i, e in enumerate(self.vm) if e[0] == tag], default=-1)
        return idx

    def _vm_wait_idx(self, idx):
        n = sum(1 for e in self.vm[idx + 1:] if not e[2])
        self.vm = self.vm[idx + 1:]
        return n

    def wait_vm_tag(self, tag, lgkm0=False):
        idx = self.vm_need_tag(tag)
        vm = self._vm_wait_idx(idx) if idx >= 0 else None
        lg = None
        if lgkm0 and self.lgkm:
            lg = 0; self.lgkm = []
        if vm is not None or lg is not None: self.waitcnt(vm=vm, lgkm=lg)

    def wait_vm0(self):
        self.waitcnt(vm=0); self.vm = []

    def op(self, text, tag=None):
        rec = self.parse(text)
        touched = set(rec.r) | set(rec.w) | set(rec.rc)
        lg = None; vm = None
        for i in range(len(self.lgkm) - 1, -1, -1):
            if self.lgkm[i] & touched:
                lg = len(self.lgkm) - 1 - i
                self.lgkm = self.lgkm[i + 1:]
                break
        for i in range(len(self.vm) - 1, -1, -1):
            if self.vm[i][1] & touched:
                if rec.kind == 'vmem' and not (self.vm[i][1] & set(rec.r)):
                    break
                vm = self._vm_wait_idx(i)
                break
        if lg is not None or vm is not None: self.waitcnt(vm=vm, lgkm=lg)
        n = self.need_states(rec)
        while n > 0:
            k = min(n, 16)
            self._push(self.parse(f's_nop {k - 1}')); self.nops += 1
            n -= k
        self._push(rec)
        if rec.kind == 'ds':
            self.lgkm.append(set(rec.w))
            assert len(self.lgkm) < 64
        if rec.kind in ('vmem', 'dma', 'store'):
            self.vm.append([tag, set(rec.w), self.opt_start is not None])
        if rec.kind == 'smem':
            assert not self.lgkm, "smem mixed with lds"

    def begin_opt(self):
        assert self.opt_start is None
        self.opt_start = len(self.hist)
        self._lg_at_opt = len(self.lgkm)

    def end_opt(self):
        for r in self.hist[self.opt_start:]: r.weight = 0
        self.opt_start = None
        assert len(self.lgkm) == self._lg_at_opt, "LDS ops inside optional block not supported"

    def barrier(self):
        self.op('s_barrier')

    def save(self):
        import copy
        return (list(self.hist), [set(x) for x in self.lgkm], copy.deepcopy(self.vm))
    def restore(self, st):
        import copy
        self.hist, self.lgkm, self.vm = list(st[0]), [set(x) for x in st[1]], copy.deepcopy(st[2])

    def text(self):
        return '\n'.join(self.lines) + '\n'

def emit(em, x):
    if callable(x): x()
    elif isinstance(x, tuple): em.op(x[0], tag=x[1])
    else: em.op(x)

def interleave(em, main, *streams):
    n = len(main)
    slots = [[] for _ in range(n)]
    for ops, lo, hi in streams:
        m = len(ops)
        if not m: continue
        a = lo * n; b = hi * n
        for k, o in enumerate(ops):
            pos = int(a + (b - a) * k / m)
            slots[min(max(pos, 0), n - 1)].append(o)
    for i, x in enumerate(main):
        emit(em, x)
        for o in slots[i]: emit(em, o)
```

```python
import sys, struct, math
from em import Em, interleave, emit

NAME = 'standalone__gqa_block_cached__near_ridge'
def fbits(x): return struct.unpack('<I', struct.pack('<f', x))[0]

class Cfg:
    nt_kv = False
    nt_w = False
    nt_k2 = False
    two_types = True
    pre = True
    code_pre = True
    diag = False
    pk = True
    rfrac = 60
    prio = 0
    x_noexp = 0
    x_nopw = 0
    efrac = 95
    loopb = -1
    st = 0
    wopre = 1
    sc = 1
    x_nobar = 0
    x_nord = 0
    x_nodma = 0
cfg = Cfg()
cfg.pvst = (3,7); cfg.qst = (0,8,)
if 'pvall=1' in sys.argv: sys.argv.remove('pvall=1'); cfg.pvst = (0,1,2,3,4,5,6,7); cfg.qst = (); cfg.fewst = True
else: cfg.fewst = False
for a in sys.argv[2:]:
    k, v = a.split('='); setattr(cfg, k, type(getattr(cfg, k))(int(v)))
STSETS = {0: 'S0 BQ K1 BM PV0 PB7 BO T0 T1 T2 T10 TP TF', 1: 'ka pi si S0 B0 B8 BQ K0 K1 QKend BM exp0 PV0', 2: 'PV0 PB0 PB1 PB2 PB3 PB4 PB5 PB6 PB7 BO', 3: 'BO T0 poll T1 T2 T3 T5 T10 TP TW TF TL'}
cfg.stset = set(STSETS[cfg.st].split()[:10]) | {'rt0', 'start', 'end', 'rt_end'}
cfg.pvst = range(8); cfg.qst = range(10)

def vr(b, n=4): return f'v[{b}:{b + n - 1}]' if n > 1 else f'v{b}'
def sr(b, n): return f's[{b}:{b + n - 1}]'
MF = 'v_mfma_f32_16x16x32_bf16'
def mfma(d, a, b, c=None):
    return f'{MF} {vr(d)}, {vr(a)}, {vr(b)}, ' + ('0' if c is None else vr(c))

FLAG_OFF = 48 << 20
PART2 = 46080
O_HEAD = 55296
WS_PART = 16 << 20
PART_TILE = 90 * 1024

def srd(em, d, base_lo, base_hi, off_sgpr, size):
    if off_sgpr is None:
        em.op(f's_mov_b32 s{d}, s{base_lo}'); em.op(f's_mov_b32 s{d+1}, s{base_hi}')
    else:
        em.op(f's_add_u32 s{d}, s{base_lo}, {off_sgpr}'); em.op(f's_addc_u32 s{d+1}, s{base_hi}, 0')
    em.op(f's_mov_b32 s{d+2}, {size}')
    em.op(f's_mov_b32 s{d+3}, 0x20000')

DIAG_OFF = 64 << 20
class Stamps:
    def __init__(self, em): self.em = em; self.n = 0; self.names = []
    def stamp(self, name, real=False):
        if not cfg.diag: return
        if name not in cfg.stset: return
        em = self.em
        em.wait_lgkm0()
        em.op(('s_memrealtime' if real else 's_memtime') + f' s[{60 + 2*self.n}:{61 + 2*self.n}]')
        em.op('s_waitcnt lgkmcnt(0)')
        self.n += 1; self.names.append(name)
        assert self.n <= 14, self.names
    def flush(self, ws_lo, kidx, wave_s, tv):
        if not cfg.diag: return
        em = self.em
        self.stamp('end'); self.stamp('rt_end', real=True)
        em.op(f's_lshl_b32 s56, s2, 3'); em.op(f's_add_u32 s56, s56, s{wave_s}'); em.op('s_lshl_b32 s56, s56, 7')
        em.op(f's_add_u32 s56, s56, {DIAG_OFF + (kidx << 20)}')
        em.op(f's_add_u32 s56, s{ws_lo}, s56'); em.op(f's_addc_u32 s57, s{ws_lo+1}, 0')
        em.op(f'v_mov_b32 v{tv}, 0')
        for i in range(self.n):
            em.op(f'v_mov_b32 v{tv+1}, s{60 + 2*i}')
            em.op(f'global_store_dword v{tv}, v{tv+1}, s[56:57] offset:{4*i}')
        print('stamps', kidx, self.names, file=sys.stderr)

SX, SWQ, SK, SV, SO = 16, 20, 24, 28, 32
sW, sW3072, sW1024, sTYPE, sOFF, sT0, sT1, sT2, sC, sB, sH, sJ, sLOC, sX = 36, 37, 38, 39, 40, 41, 42, 43, 44, 52, 46, 47, 48, 53
vLANE, vXO, vWO, vK0, vK1, vVO = 1, 2, 3, 4, 5, 6
vRA = [7, 8]
vRB = [9, 10, 11]
vRC = [12, 13, 14]
vT = 15
vPA, vPB, vPW, vMS = 240, 241, 242, 243
TMP = list(range(244, 256))
STG = 43008
PBASE, VBASE, MAXB, SUMB = 0, 55296, 153600, 155648
NV = 4
LDS1 = SUMB + 12 * 512
KSP = 16
def KR0(p): return 20 + 8 * p
def KR1(p): return 24 + 8 * p
def KT(p): return KSP if p == 0 else KR1(p - 1)
def kop(kt, ks):
    p = (kt // 2) * 6 + (ks // 2) * 2 + (kt % 2)
    return KR0(p) if ks % 2 == 0 else KT(p)
def sreg(kt, qt):
    if kt < 2: return 116 + 4 * (qt * 2 + kt)
    i = qt * 2 + (kt - 2)
    return 16 + 4 * i if i < 12 else 188 + 4 * (i - 12)
ACC = 116
MC = 212
SUM = 221
QF = 224
OACC0 = [116 + 8*i for i in range(9)] + [120, 128, 136, 144, 230, 234]
OACC1 = [116 + 8*i for i in range(9)] + [230, 234, 100]
PAF = [[248, 252, 2], [104, 108, 112]]
NEXP1 = 4


def k_load_ops(em, half):
    nt = ' nt' if cfg.nt_kv else ''
    ops = []
    for c in range(3):
        for k in range(2):
            p = half * 6 + c * 2 + k
            kt = half * 2 + k
            for (dst, va) in ((KR0(p), vK0), (KR1(p), vK1)):
                def f(dst=dst, va=va, kt=kt, c=c):
                    em.op(f's_mov_b32 s{sOFF}, {kt * 6144}')
                    em.op(f'buffer_load_dwordx4 {vr(dst)}, v{va}, {sr(SK,4)}, s{sOFF} offen offset:{c*128}{nt}', tag=f'K{half}')
                ops.append(f)
    return ops

def k_fix_ops(half):
    ops = []
    for pp in range(6):
        p = half * 6 + pp
        for d in range(4):
            r0, r1, t = KR0(p) + d, KR1(p) + d, KT(p) + d
            ops.append(f'v_mov_b32_dpp v{t}, v{r0} row_ror:8 row_mask:0xf bank_mask:0x3')
            ops.append(f'v_mov_b32_dpp v{t}, v{r1} row_ror:8 row_mask:0xf bank_mask:0xc')
            ops.append(f'v_mov_b32_dpp v{r0}, v{r1} quad_perm:[0,1,2,3] row_mask:0xf bank_mask:0xc')
    return ops

_lab = [0]
def stage_dma_ops(em, s, qh):
    nt = ' nt' if cfg.nt_w else ''
    slot = (s % 3) * STG
    ops = []
    for c in range(3):
        def f(c=c):
            em.op(f's_add_u32 m0, s{sW3072}, {slot + c * 896}')
            em.op(f's_mov_b32 s{sOFF}, {s * 786432}')
            em.op(f'buffer_load_dwordx4 v{vWO}, {sr(SWQ,4)}, s{sOFF} offen offset:{c*128}{nt} lds', tag=f'S{s}')
        ops.append(f)
    for j in range(2):
        def f(j=j):
            em.op(f's_add_u32 m0, s{sW1024}, {slot + j * 8192}')
            em.op(f's_mov_b32 s{sOFF}, {s * 128 + j * 81920}')
            em.op(f'buffer_load_dwordx4 v{vXO}, {sr(SX,4)}, s{sOFF} offen{nt} lds', tag=f'S{s}')
        ops.append(f)
    if qh == 1:
        def f():
            _lab[0] += 1
            lab = f'L_x{_lab[0]}'
            em.op(f's_cmp_lt_u32 s{sW}, 6')
            em.op(f's_cbranch_scc0 {lab}')
            em.begin_opt()
            em.op(f's_add_u32 m0, s{sW1024}, {slot + 12288}')
            em.op(f's_mov_b32 s{sOFF}, {s * 128 + 122880}')
            em.op(f'buffer_load_dwordx4 v{vXO}, {sr(SX,4)}, s{sOFF} offen{nt} lds', tag=f'S{s}')
            em.end_opt()
            em.label(lab)
        ops.insert(0, f)
    return ops

def v_dma_ops(em, s):
    nt = ' nt' if cfg.nt_kv else ''
    ops = []
    for c in range(3):
        def f(c=c):
            em.op(f's_add_u32 m0, s{sW3072}, {VBASE + (s % NV) * 24576 + c * 896}')
            em.op(f's_mov_b32 s{sOFF}, {(256 * (s & 1) + 16 * (s >> 1)) * 384}')
            em.op(f'buffer_load_dwordx4 v{vVO}, {sr(SV,4)}, s{sOFF} offen offset:{c*128}{nt} lds', tag=f'V{s}')
        ops.append(f)
    return ops

sDG = 49
sTAG, sSTR, sF1, sF2, sHB, sM0T, sQ0, sNH, sCNT = 88, 89, 90, 92, 94, 98, 99, 100, 101
def k1_prologue(em):
    em.op('s_cmp_ge_u32 s2, 256')
    em.op('s_cbranch_scc1 L_k1_exit')
    em.st = Stamps(em); em.st.stamp('rt0', real=True); em.st.stamp('start')
    em.op('s_load_dwordx8 s[4:11], s[0:1], 0')
    em.op('s_load_dwordx2 s[12:13], s[0:1], 56')
    em.op('s_load_dwordx2 s[14:15], s[0:1], 32')
    em.op('s_load_dwordx2 s[54:55], s[0:1], 40')
    em.op(f'v_and_b32 v{vLANE}, 63, v0')
    em.op(f'v_lshrrev_b32 v{vT}, 6, v0')
    em.op(f's_and_b32 s{sX}, s2, 7')
    em.op(f's_lshr_b32 s{sLOC}, s2, 3')
    em.op(f'v_readfirstlane_b32 s{sW}, v{vT}')
    t0, t1, t2, t3, t4 = TMP[:5]
    L = f'v{vLANE}'
    if cfg.code_pre:
        em.op('s_getpc_b64 s[50:51]')
        em.label('L_k1_pc')
        em.op('s_add_u32 s50, s50, k1_body_start-L_k1_pc')
        em.op('s_addc_u32 s51, s51, 0')
        em.op(f's_and_b32 s{sT1}, s{sLOC}, 15')
        em.op(f's_lshl_b32 s{sT1}, s{sT1}, 13')
        em.op(f'v_lshlrev_b32 v{t3}, 4, v0')
        em.op(f'v_add_u32 v{t4}, s{sT1}, v{t3}')
        em.op(f'v_min_u32 v{t4}, k1_body_end-k1_body_start-16, v{t4}')
        em.op(f'global_load_dwordx4 {vr(116)}, v{t4}, s[50:51]')
    else:
        em.op(f'v_lshlrev_b32 v{t3}, 4, v0')
    em.op(f's_and_b32 s{sJ}, s{sLOC}, 3')
    em.op(f's_lshr_b32 s{sB}, s{sLOC}, 2')
    em.op(f's_lshl_b32 s{sH}, s{sX}, 2')
    em.op(f's_add_u32 s{sH}, s{sH}, s{sJ}')
    nt = ' nt' if cfg.nt_w else ''
    em.op(f's_and_b32 s{sTYPE}, s{sB}, 1')
    if cfg.pre:
        em.op(f's_lshr_b32 s{sT2}, s{sB}, 1'); em.op(f's_lshl_b32 s{sT2}, s{sT2}, 2'); em.op(f's_add_u32 s{sT2}, s{sT2}, s{sJ}')
        em.op(f's_lshl_b32 s{sT0}, s{sW}, 6'); em.op(f's_lshl_b32 s{sT1}, s{sT2}, 2'); em.op(f's_add_u32 s{sT0}, s{sT0}, s{sT1}')
        em.op(f's_mul_i32 s{sT0}, s{sT0}, 12288'); em.op(f's_mul_i32 s{sT1}, s{sX}, 1536'); em.op(f's_add_u32 s{sT0}, s{sT0}, s{sT1}')
        em.op(f'v_lshrrev_b32 v{t0}, 5, {L}'); em.op(f'v_mul_u32_u24 v{t0}, 12288, v{t0}')
        em.op(f'v_and_b32 v{t1}, 31, {L}'); em.op(f'v_lshlrev_b32 v{t1}, 4, v{t1}')
        em.op(f'v_add3_u32 v{t0}, v{t0}, v{t1}, s{sT0}')
        em.op(f's_and_b32 s{sT0}, s{sB}, 6'); em.op(f's_mul_i32 s{sT0}, s{sT0}, 144'); em.op(f's_mul_i32 s{sT1}, s{sJ}, 36'); em.op(f's_add_u32 s{sT0}, s{sT0}, s{sT1}')
        em.op(f's_mul_i32 s{sT0}, s{sT0}, 1280'); em.op(f's_lshl_b32 s{sT1}, s{sW}, 7'); em.op(f's_add_u32 s{sT0}, s{sT0}, s{sT1}')
        em.op(f'v_lshrrev_b32 v{t1}, 3, {L}'); em.op(f'v_mul_u32_u24 v{t1}, 1280, v{t1}')
        em.op(f'v_and_b32 v{t2}, 7, {L}'); em.op(f'v_lshlrev_b32 v{t2}, 4, v{t2}')
        em.op(f'v_add3_u32 v{t1}, v{t1}, v{t2}, s{sT0}')
        em.op(f's_mul_i32 s{sT0}, s{sLOC}, 46080')
        em.op(f'v_add_u32 v{t3}, s{sT0}, v{t3}')
    em.op('s_waitcnt lgkmcnt(0)')
    em.st.stamp('ka')
    em.op(f's_lshl_b32 s{sT0}, s{sB}, 8'); em.op(f's_add_u32 s{sT0}, s{sT0}, {FLAG_OFF}')
    em.op(f's_load_dword s{sTAG}, s[12:13], s{sT0}')
    if cfg.pre:
        em.op(f's_cmp_eq_u32 s{sTYPE}, 1')
        em.op(f's_cbranch_scc0 L_pre1')
        em.begin_opt()
        def stage_pre(a, b, tw, tx):
            ops = []
            for pr in range(2):
                for c in range(3): ops.append([f'global_load_dwordx4 {vr(120)}, v{tw}, s[10:11] offset:{c*512}{nt}'] + ([f'v_add_u32 v{tw}, 24576, v{tw}'] if c == 2 else []))
            for n in range(5): ops.append([f'global_load_dwordx4 {vr(120)}, v{tx}, s[4:5]{nt}', f'v_add_u32 v{tx}, 10240, v{tx}'])
            return ops
        em.op(f'v_mov_b32 v{t2}, v{t0}'); em.op(f'v_mov_b32 v{t4}, v{t1}')
        for g in stage_pre(0, 11, t2, t4):
            for o in g: em.op(o)
        em.op(f's_lshr_b32 s{sT0}, s{sW}, 2'); em.op(f's_add_u32 s{sT0}, s{sT0}, 8'); em.op(f's_sub_u32 s{sT0}, s{sT0}, s{sW}')
        em.op(f's_mul_i32 s{sT1}, s{sT0}, {64 * 12288}')
        em.op(f's_bfe_u32 s{sT2}, s{sW}, 0x10001'); em.op(f's_mul_i32 s{sT2}, s{sT2}, 24576'); em.op(f's_add_u32 s{sT1}, s{sT1}, s{sT2}')
        em.op(f's_and_b32 s{sT2}, s{sW}, 1'); em.op(f's_lshl_b32 s{sT2}, s{sT2}, 9'); em.op(f's_add_u32 s{sT1}, s{sT1}, s{sT2}')
        em.op(f'v_add_u32 v{t0}, s{sT1}, v{t0}')
        em.op(f'global_load_dwordx4 {vr(120)}, v{t0}, s[10:11]{nt}')
        em.op(f'global_load_dwordx4 {vr(120)}, v{t0}, s[10:11] offset:512{nt}')
        em.op(f's_lshl_b32 s{sT1}, s{sT0}, 7'); em.op(f's_and_b32 s{sT2}, s{sW}, 3'); em.op(f's_mul_i32 s{sT2}, s{sT2}, {9 * 1280}'); em.op(f's_add_u32 s{sT1}, s{sT1}, s{sT2}')
        em.op(f'v_add_u32 v{t1}, s{sT1}, v{t1}')
        em.op(f'global_load_dwordx4 {vr(120)}, v{t1}, s[4:5]{nt}')
        em.op(f'global_load_dwordx4 {vr(120)}, v{t1}, s[4:5] offset:1280{nt}')
        for i in range(6):
            if i == 5: em.op(f'v_min_u32 v{t3}, {1474560 - 16}, v{t3}')
            em.op(f'global_load_dwordx4 {vr(120)}, v{t3}, s[4:5]{nt}')
            if i < 5: em.op(f'v_add_u32 v{t3}, 8192, v{t3}')
        em.end_opt()
        em.label('L_pre1')
    em.st.stamp('pi')
    em.op(f's_and_b32 s{sDG}, s{sW}, 3')
    em.op(f's_mul_i32 s{sW3072}, s{sW}, 3072')
    em.op(f's_lshl_b32 s{sW1024}, s{sW}, 10')
    em.op(f's_add_u32 s{sW1024}, s{sW1024}, 24576')
    em.op(f's_mov_b32 s{sC}, {fbits(192 ** -0.5 * math.log2(math.e))}')
    em.op(f'v_lshrrev_b32 v{t0}, 3, {L}')
    em.op(f'v_and_b32 v{t1}, 7, {L}')
    em.op(f'v_lshrrev_b32 v{t2}, 4, {L}')
    em.op(f's_lshl_b32 s{sT1}, s{sB}, 5'); em.op(f's_add_u32 s{sT1}, s{sT1}, s{sH}')
    em.op(f's_mul_i32 s{sT0}, s{sT1}, 196608')
    srd(em, SK, 6, 7, f's{sT0}', 196608); srd(em, SV, 8, 9, f's{sT0}', 196608)
    em.op(f's_mul_i32 s{sT0}, s{sT1}, {O_HEAD}'); srd(em, SO, 12, 13, f's{sT0}', O_HEAD)
    em.op(f'v_and_b32 v{t3}, 1, v{t0}')
    em.op(f'v_lshlrev_b32 v{t3}, 2, v{t3}')
    em.op(f'v_add_u32 v{t3}, v{t3}, v{t2}')
    em.op(f'v_lshlrev_b32 v{t3}, 4, v{t3}')
    em.op(f's_lshl_b32 s{sT2}, s{sW}, 6')
    em.op(f'v_add_u32 v{t4}, s{sT2}, v{t1}')
    em.op(f'v_mul_u32_u24 v{t4}, 384, v{t4}')
    em.op(f'v_add_u32 v{vK0}, v{t4}, v{t3}')
    em.op(f'v_xor_b32 v{t3}, 64, v{t3}')
    em.op(f'v_add_u32 v{vK1}, v{t4}, v{t3}')
    em.op(f'v_add_u32 v{vK1}, {8 * 384}, v{vK1}')
    if cfg.two_types:
        em.op(f's_cmp_eq_u32 s{sTYPE}, 1')
        em.op('s_cbranch_scc0 L_nok1')
        em.begin_opt()
        for f in k_load_ops(em, 0): f()
        em.end_opt()
        em.label('L_nok1')
    em.op(f's_mul_i32 s{sT0}, s{sB}, 184320'); srd(em, SX, 4, 5, f's{sT0}', 184320)
    em.op(f's_mul_i32 s{sT0}, s{sH}, 384'); srd(em, SWQ, 10, 11, f's{sT0}', 7864320)
    em.op(f's_sub_u32 s{SWQ+2}, s{SWQ+2}, s{sT0}')
    em.op(f's_and_b32 s{sT0}, s{sW}, 1')
    em.op(f's_lshl_b32 s{sT1}, s{sT0}, 2')
    em.op(f'v_add_u32 v{t3}, s{sT1}, v{t2}')
    em.op(f'v_xor_b32 v{t3}, v{t3}, v{t1}')
    em.op(f'v_lshlrev_b32 v{t3}, 4, v{t3}')
    em.op(f's_lshl_b32 s{sT2}, s{sW}, 3')
    em.op(f'v_add_u32 v{t4}, s{sT2}, v{t0}')
    em.op(f'v_mul_u32_u24 v{vXO}, 1280, v{t4}')
    em.op(f'v_add_u32 v{vXO}, v{vXO}, v{t3}')
    em.op(f'v_and_b32 v{t3}, 1, v{t2}')
    em.op(f'v_lshlrev_b32 v{t3}, 1, v{t3}')
    em.op(f'v_add_u32 v{t3}, s{sT1}, v{t3}')
    em.op(f'v_xor_b32 v{t3}, v{t3}, v{t1}')
    em.op(f'v_lshlrev_b32 v{t3}, 4, v{t3}')
    em.op(f'v_mul_u32_u24 v{vWO}, 12288, v{t4}')
    em.op(f'v_add_u32 v{vWO}, v{vWO}, v{t3}')
    em.op(f's_lshr_b32 s{sT1}, s{sW}, 1'); em.op(f's_lshl_b32 s{sT1}, s{sT1}, 6')
    em.op(f's_lshl_b32 s{sT0}, s{sT0}, 3'); em.op(f's_add_u32 s{sT0}, s{sT0}, s{sT1}')
    em.op(f'v_add_u32 v{t3}, s{sT0}, v{t0}')
    em.op(f'v_mul_u32_u24 v{vVO}, 384, v{t3}')
    em.op(f'v_lshlrev_b32 v{t3}, 1, v{t2}')
    em.op(f'v_xor_b32 v{t3}, v{t3}, v{t1}')
    em.op(f'v_lshlrev_b32 v{t3}, 4, v{t3}')
    em.op(f'v_add_u32 v{vVO}, v{vVO}, v{t3}')
    em.op('s_waitcnt lgkmcnt(0)')
    em.op(f's_add_u32 s{sTAG}, s{sTAG}, 1')
    em.barrier()
    em.op(f's_lshr_b32 s{sT0}, s{sW}, 2'); em.op(f's_lshl_b32 s{sT0}, s{sT0}, 1'); em.op(f's_or_b32 s{sT0}, s{sT0}, s{sTYPE}')
    for v in (1, 2, 3):
        em.op(f's_cmp_eq_u32 s{sT0}, {v}')
        em.op(f's_cbranch_scc1 L_qp{v}')

def tr_addr(em, dst, t, base, fmode):
    t0, t1, t2, t3 = TMP[:4]
    L = f'v{vLANE}'
    em.op(f's_mul_i32 s{sT0}, s{sDG}, 3'); em.op(f's_add_u32 s{sT0}, s{sT0}, {t}')
    em.op(f's_lshr_b32 s{sT1}, s{sT0}, 2'); em.op(f's_lshl_b32 s{sT1}, s{sT1}, 10')
    em.op(f's_add_u32 s{sT1}, s{sT1}, {base}')
    em.op(f's_and_b32 s{sT0}, s{sT0}, 3')
    em.op(f'v_lshrrev_b32 v{t0}, 4, {L}')
    em.op(f'v_bfe_u32 v{t1}, {L}, 2, 2')
    em.op(f'v_and_b32 v{t2}, 1, v{t0}')
    em.op(f'v_lshlrev_b32 v{t2}, 1, v{t2}')
    em.op(f'v_lshrrev_b32 v{t3}, 1, v{t1}')
    em.op(f'v_add_u32 v{t3}, v{t3}, v{t2}')
    em.op(f'v_xor_b32 v{t3}, s{sT0}, v{t3}')
    em.op(f'v_lshlrev_b32 v{t3}, 5, v{t3}')
    em.op(f'v_lshlrev_b32 v{dst}, 7, v{t1}')
    em.op(f'v_add_u32 v{dst}, v{dst}, v{t3}')
    if fmode == 'w':
        em.op(f'v_mul_u32_u24 v{t3}, 3072, v{t0}')
    else:
        em.op(f'v_lshlrev_b32 v{t2}, 8, v{t2}')
        em.op(f'v_add_u32 v{dst}, v{dst}, v{t2}')
        em.op(f'v_lshrrev_b32 v{t3}, 1, v{t0}')
        em.op(f'v_mul_u32_u24 v{t3}, 3072, v{t3}')
    em.op(f'v_add_u32 v{dst}, v{dst}, v{t3}')
    em.op(f'v_and_b32 v{t3}, 3, {L}')
    em.op(f'v_lshlrev_b32 v{t3}, 3, v{t3}')
    em.op(f'v_add_u32 v{dst}, v{dst}, v{t3}')
    em.op(f'v_add_u32 v{dst}, s{sT1}, v{dst}')

class Cap:
    def __init__(self): self.ops = []
    def op(self, t, tag=None): self.ops.append(t)

def k1_qproj(em, qh, typ):
    nq = 5 if qh == 0 else 4
    q0 = 0 if qh == 0 else 5
    L = f'v{vLANE}'
    t0, t1, t2, t3, t4, t5 = TMP[:6]
    rf = cfg.rfrac / 100
    if cfg.prio and qh == 1: em.op('s_setprio 1')
    for f in stage_dma_ops(em, 0, qh): f()
    em.barrier()
    for f in stage_dma_ops(em, 1, qh): f()
    em.st.stamp('si')
    em.op(f'v_lshlrev_b32 v{t3}, 2, v0')
    em.op(f'v_add_u32 v{t3}, {MAXB}, v{t3}')
    em.op(f'v_mov_b32 v{t4}, 0xff800000')
    em.op(f'ds_write_b32 v{t3}, v{t4}')
    em.op(f'v_and_b32 v{vMS}, 15, {L}')
    em.op(f'v_lshlrev_b32 v{vMS}, 2, v{vMS}')
    em.op(f'v_add_u32 v{vMS}, {MAXB}, v{vMS}')
    em.op(f'v_bfe_u32 v{t0}, {L}, 3, 1'); em.op(f'v_lshlrev_b32 v{t0}, 10, v{t0}')
    em.op(f'v_and_b32 v{t1}, 7, {L}'); em.op(f'v_lshlrev_b32 v{t1}, 7, v{t1}')
    em.op(f'v_add_u32 v{t0}, v{t0}, v{t1}')
    em.op(f'v_bfe_u32 v{t1}, {L}, 1, 3'); em.op(f'v_lshrrev_b32 v{t2}, 4, {L}')
    em.op(f'v_xor_b32 v{t1}, v{t1}, v{t2}'); em.op(f'v_lshlrev_b32 v{vT}, 4, v{t1}')
    em.op(f'v_add_u32 v{vRA[0]}, v{t0}, v{vT}')
    em.op(f'v_add_u32 v{vRA[0]}, {24576 + q0 * 2048}, v{vRA[0]}')
    em.op(f'v_xor_b32 v{vRA[1]}, 64, v{vRA[0]}')
    for t in range(3): tr_addr(em, vRB[t], t, 0, 'w')
    for t in range(3):
        em.op(f's_mul_i32 s{sT0}, s{sDG}, 3'); em.op(f's_add_u32 s{sT0}, s{sT0}, {t}'); em.op(f's_lshl_b32 s{sT0}, s{sT0}, 1')
        em.op(f'v_lshrrev_b32 v{t0}, 5, {L}')
        em.op(f'v_add_u32 v{t0}, s{sT0}, v{t0}')
        em.op(f'v_lshrrev_b32 v{t1}, 3, v{t0}'); em.op(f'v_lshlrev_b32 v{t1}, 7, v{t1}')
        em.op(f'v_and_b32 v{t0}, 7, v{t0}')
        em.op(f'v_bfe_u32 v{t2}, {L}, 1, 3')
        em.op(f'v_xor_b32 v{t0}, v{t0}, v{t2}'); em.op(f'v_lshlrev_b32 v{t0}, 4, v{t0}')
        em.op(f'v_add_u32 v{t0}, v{t0}, v{t1}')
        em.op(f'v_and_b32 v{t1}, 15, {L}'); em.op(f'v_mul_u32_u24 v{t1}, 384, v{t1}')
        em.op(f'v_add_u32 v{t0}, v{t0}, v{t1}')
        em.op(f'v_bfe_u32 v{t1}, {L}, 4, 1'); em.op(f'v_lshlrev_b32 v{t1}, 3, v{t1}')
        em.op(f'v_add_u32 v{vRC[t]}, v{t0}, v{t1}')
    em.op(f'v_lshlrev_b32 v{vPA}, 4, {L}')
    em.op(f's_bfe_u32 s{sT0}, s{sW}, 0x10001'); em.op(f's_mul_i32 s{sT0}, s{sT0}, 9216')
    em.op(f's_and_b32 s{sT1}, s{sW}, 1'); em.op(f's_lshl_b32 s{sT1}, s{sT1}, 3'); em.op(f's_add_u32 s{sT0}, s{sT0}, s{sT1}')
    em.op(f'v_add_u32 v{vPW}, s{sT0}, v{vPA}')
    em.op(f'v_add_u32 v{vPA}, {q0 * 1024}, v{vPA}')
    AF = [176, 188]; BF = [200, 220]
    def q_reads(step, st):
        ops = []
        for t in range(3):
            ops.append(f'ds_read_b64_tr_b16 {vr(AF[st] + 4*t, 2)}, v{vRB[t]} offset:{step * 12288}')
            ops.append(f'ds_read_b64_tr_b16 {vr(AF[st] + 4*t + 2, 2)}, v{vRB[t]} offset:{step * 12288 + 512}')
        xs = [f'ds_read_b128 {vr(BF[st] + 4*j)}, v{vRA[step]} offset:{j * 2048}' for j in range(nq)]
        return ops[0:2] + xs[0:1] + ops[2:6] + xs[1:]
    def mf(st, first):
        return [mfma(ACC + 4*(j*3+t), AF[st] + 4*t, BF[st] + 4*j, None if first else ACC + 4*(j*3+t)) for j in range(nq) for t in range(3)]
    em.wait_vm_tag('S0', lgkm0=True); em.barrier()
    em.st.stamp('S0')
    for o in q_reads(0, 0): em.op(o)
    kl = k_load_ops(em, 1 if typ == 1 else 0)
    fix0 = k_fix_ops(0) if typ == 1 else []
    cap = Cap()
    for t in range(3): tr_addr(cap, TMP[6 + t], t, VBASE, 'v')
    vaddr_ops = cap.ops
    carry = stage_dma_ops(em, 2, qh)
    for s in range(10):
        extra = []
        if 1 <= s <= 6: extra = fix0[(s - 1) * 12: s * 12]
        if s >= 8: extra = kl[{8: 3, 9: 8}[s]: {8: 5, 9: 10}[s]]
        interleave(em, mf(0, s == 0), (q_reads(1, 1), 0, rf), (extra, 0.3, 1), (carry, 0.05, 0.95))
        if s < 9: em.wait_vm_tag(f'S{s+1}', lgkm0=True)
        else: em.wait_lgkm0()
        em.barrier()
        if s in cfg.qst: em.st.stamp(f'B{s}')
        rd = []; dm = []; extra = []
        if s < 9:
            d = STG if (s + 1) % 3 else -2 * STG
            rd += [f'v_add_u32 v{r}, {d & 0xffffffff}, v{r}' for r in vRA + vRB]
            rd += q_reads(0, 0)
        carry = []
        if s + 3 <= 9:
            dm = stage_dma_ops(em, s + 3, qh); dm, carry = dm[:3], dm[3:]
        if s >= 7: dm = kl[{7: 0, 8: 5, 9: 10}[s]: {7: 3, 8: 8, 9: 12}[s]]
        if s == 7: extra = vaddr_ops
        interleave(em, mf(1, False), (dm, 0.05, 0.95), (rd, 0, rf + 0.1), (extra, 0, 1))
    for j in range(nq):
        for t in range(3):
            a = ACC + 4*(j*3+t)
            em.op(f'v_cvt_pk_bf16_f32 v{a}, v{a}, v{a+1}')
            em.op(f'v_cvt_pk_bf16_f32 v{a+1}, v{a+2}, v{a+3}')
            em.op(f'ds_write_b64 v{vRC[t]}, {vr(a,2)} offset:{(q0 + j) * 6144}')
    em.op(f'v_and_b32 v{t1}, 15, {L}'); em.op(f'v_mul_u32_u24 v{t1}, 384, v{t1}')
    em.op(f'v_add_u32 v{vRA[0]}, v{t1}, v{vT}')
    em.op(f'v_xor_b32 v{t0}, 64, v{vT}')
    em.op(f'v_add_u32 v{vRA[1]}, v{t1}, v{t0}')
    for t in range(3): em.op(f'v_mov_b32 v{vRB[t]}, v{TMP[6 + t]}')
    em.wait_lgkm0(); em.barrier()
    for t in range(3): em.op(f'v_add_u32 v{vRC[t]}, 49152, v{vRB[t]}')
    em.st.stamp('BQ')

def maxops(half):
    ops = []
    for qt in range(9):
        a, b = sreg(half*2, qt), sreg(half*2+1, qt); m = MC + qt
        if half == 0:
            ops += [f'v_max3_f32 v{m}, v{a}, v{a+1}, v{a+2}', f'v_max3_f32 v{m}, v{m}, v{a+3}, v{b}',
                    f'v_max3_f32 v{m}, v{m}, v{b+1}, v{b+2}', f'v_max_f32 v{m}, v{m}, v{b+3}']
        else:
            ops += [f'v_max3_f32 v{m}, v{m}, v{a}, v{a+1}', f'v_max3_f32 v{m}, v{m}, v{a+2}, v{a+3}',
                    f'v_max3_f32 v{m}, v{m}, v{b}, v{b+1}', f'v_max3_f32 v{m}, v{m}, v{b+2}, v{b+3}']
    return ops

def k1_qk(em, typ):
    def qrd(n):
        qt, ks = divmod(n, 6)
        return f'ds_read_b128 {vr(QF + 4*(n % 4))}, v{vRA[ks & 1]} offset:{qt * 6144 + (ks >> 1) * 128}'
    vl = sum([v_dma_ops(em, s) for s in range(NV)], [])
    for half in range(2):
        for n in range(3): em.op(qrd(n))
        if typ == 0:
            for o in k_fix_ops(half): em.op(o)
        em.st.stamp(f'K{half}')
        main = []
        for n in range(54):
            qt, ks = divmod(n, 6)
            if n + 3 < 54: main.append(qrd(n + 3))
            for k in range(2):
                kt = half * 2 + k
                main.append(mfma(sreg(kt, qt), kop(kt, ks), QF + 4*(n % 4), None if ks == 0 else sreg(kt, qt)))
        m1 = maxops(1)
        if half == 0:
            if typ == 0: streams = [(k_load_ops(em, 1), 0, 0.9)]
            else: streams = [(vl, 0, 0.6), (k_fix_ops(1), 0.4, 1)]
        else:
            streams = [(maxops(0), 0.02, 0.5)]
            for qt in range(8): streams.append((m1[qt*4:qt*4+4], max(0.5 + 0.05*qt, (qt + 1.5) / 9), max(0.55 + 0.05*qt, (qt + 1.9) / 9)))
            if typ == 0: streams.append((vl, 0, 0.7))
        interleave(em, main, *streams)
    em.st.stamp('QKend')
    for o in maxops(1)[32:]: em.op(o)
    for qt in range(9): em.op(f'ds_max_f32 v{vMS}, v{MC+qt} offset:{qt*64}')
    em.wait_lgkm0(); em.barrier()
    em.st.stamp('BM')

def expops(kt, qt, qh, pk=False):
    a = sreg(kt, qt); m = MC + qt
    tA, tB = TMP[0], TMP[1]
    if pk:
        mb = m & ~1; s = m & 1
        ops = [f'v_pk_fma_f32 {vr(r,2)}, {vr(r,2)}, s[{sC}:{sC+1}], {vr(mb,2)} op_sel:[0,0,{s}] op_sel_hi:[1,0,{s}] neg_lo:[0,0,1] neg_hi:[0,0,1]' for r in (a, a+2)]
    else:
        ops = [f'v_fma_f32 v{r}, v{r}, s{sC}, -v{m}' for r in range(a, a+4)]
    ops += [f'v_exp_f32 v{r}, v{r}' for r in range(a, a+4)]
    if pk:
        ops += [f'v_pk_add_f32 {vr(tA,2)}, {vr(a,2)}, {vr(a+2,2)}']
    else:
        ops += [f'v_add_f32 v{tA}, v{a}, v{a+1}', f'v_add_f32 v{tB}, v{a+2}, v{a+3}']
    ops += [f'v_cvt_pk_bf16_f32 v{a}, v{a}, v{a+1}', f'v_cvt_pk_bf16_f32 v{a+1}, v{a+2}, v{a+3}']
    if kt == 0: ops += [f'v_add_f32 v{SUM+qt}, v{tA}, v{tB}']
    else: ops += [f'v_add_f32 v{tA}, v{tA}, v{tB}', f'v_add_f32 v{SUM+qt}, v{SUM+qt}, v{tA}']
    ops += [f'ds_write_b64 v{vPW}, {vr(a,2)} offset:{((4*kt + 2*qh) % 6) * 9216 + qt*1024}']
    return ops

def k1_sm0(em, qh):
    for qt in range(9): em.op(f'ds_read_b32 v{MC+qt}, v{vMS} offset:{qt*64}')
    for qt in range(9): em.op(f'v_mul_f32 v{MC+qt}, s{sC}, v{MC+qt}')
    for qt in range(9):
        for o in expops(0, qt, qh, cfg.pk): em.op(o)
    for qt in range(NEXP1 if qh == 0 else 0):
        for o in expops(1, qt, qh, cfg.pk): em.op(o)
    em.st.stamp('exp0')
    em.wait_vm_tag('V0', lgkm0=True); em.barrier()
    em.st.stamp('PV0')

def k1_pv(em, qh):
    nq = 5 if qh == 0 else 4
    q0 = 0 if qh == 0 else 5
    L = f'v{vLANE}'
    t0 = TMP[4]
    rf = cfg.rfrac / 100
    BF = [64, 84]
    def pv_reads(s, step, st):
        ops = []
        slot = s % NV
        base = vRB if slot < 2 else vRC
        off = (slot % 2) * 24576 + step * 12288
        for t in range(3):
            ops.append(f'ds_read_b64_tr_b16 {vr(PAF[st][t], 2)}, v{base[t]} offset:{off}')
            ops.append(f'ds_read_b64_tr_b16 {vr(PAF[st][t] + 2, 2)}, v{base[t]} offset:{off + 6144}')
        pa, po = vPA, ((2 * s + step) % 6) * 9216
        xs = [f'ds_read_b128 {vr(BF[st] + 4*j)}, v{pa} offset:{po + j * 1024}' for j in range(nq)]
        return ops[0:2] + xs[0:1] + ops[2:6] + xs[1:]
    OACC = OACC0 if qh == 0 else OACC1
    def mf(st, first):
        return [mfma(OACC[j*3+t], PAF[st][t], BF[st] + 4*j, None if first else OACC[j*3+t]) for j in range(nq) for t in range(3)]
    def sum_ops():
        S = SUM; ops = []
        ops += [f'v_mov_b32 v{MC}, 0', f'v_mov_b32 v{MC+1}, 0']
        ta = TMP[2]; tb = TMP[3]
        ops += [f'v_bfe_u32 v{ta}, {L}, 4, 1', f'v_lshlrev_b32 v{ta}, 10, v{ta}', f'v_bfe_u32 v{tb}, {L}, 5, 1', f'v_lshlrev_b32 v{tb}, 9, v{tb}',
                f'v_add_u32 v{ta}, v{ta}, v{tb}', f'v_and_b32 v{tb}, 15, {L}', f'v_lshlrev_b32 v{tb}, 5, v{tb}', f'v_add_u32 v{ta}, v{ta}, v{tb}',
                f's_lshl_b32 s{sT0}, s{sW}, 2', f's_add_u32 s{sT0}, s{sT0}, {SUMB}', f'v_add_u32 v{ta}, s{sT0}, v{ta}']
        for a in (0, 2, 4, 6): ops.append(f'v_permlane32_swap_b32 v{S+a}, v{S+a+1}')
        ops.append(f'v_permlane32_swap_b32 v{S+8}, v{MC}')
        for a in (0, 2, 4, 6): ops.append(f'v_add_f32 v{S+a}, v{S+a}, v{S+a+1}')
        ops.append(f'v_add_f32 v{S+8}, v{S+8}, v{MC}')
        for a in (0, 4): ops.append(f'v_permlane16_swap_b32 v{S+a}, v{S+a+2}')
        ops.append(f'v_permlane16_swap_b32 v{S+8}, v{MC+1}')
        for a in (0, 4): ops.append(f'v_add_f32 v{S+a}, v{S+a}, v{S+a+2}')
        ops.append(f'v_add_f32 v{S+8}, v{S+8}, v{MC+1}')
        for a in (0, 4, 8): ops.append(f'ds_write_b32 v{ta}, v{S+a} offset:{a * 512}')
        return ops
    def inv_ops():
        ta = TMP[2]; ops = []
        ops += [f'v_and_b32 v{ta}, 15, {L}', f'v_lshlrev_b32 v{ta}, 5, v{ta}', f'v_add_u32 v{ta}, {SUMB + q0 * 512}, v{ta}']
        for j in range(nq):
            ops += [f'ds_read_b128 {vr(16 + 8*j)}, v{ta} offset:{j * 512}', f'ds_read_b128 {vr(20 + 8*j)}, v{ta} offset:{j * 512 + 16}']
        for j in range(nq):
            r = 16 + 8*j
            ops += [f'v_add_f32 v{r}, v{r}, v{r+1}', f'v_add_f32 v{r+2}, v{r+2}, v{r+3}', f'v_add_f32 v{r+4}, v{r+4}, v{r+5}', f'v_add_f32 v{r+6}, v{r+6}, v{r+7}',
                    f'v_add_f32 v{r}, v{r}, v{r+2}', f'v_add_f32 v{r+4}, v{r+4}, v{r+6}', f'v_add_f32 v{r}, v{r}, v{r+4}', f'v_rcp_f32 v{MC+2*j}, v{r}']
        cap = Cap()
        for t in range(3):
            cap.op(f's_mul_i32 s{sT0}, s{sDG}, 3'); cap.op(f's_add_u32 s{sT0}, s{sT0}, {t}')
            cap.op(f's_lshr_b32 s{sT1}, s{sT0}, 2'); cap.op(f's_mul_i32 s{sT1}, s{sT1}, 40960')
            cap.op(f's_bfe_u32 s{sT2}, s{sT0}, 0x10001'); cap.op(f's_mul_i32 s{sT2}, s{sT2}, 9216'); cap.op(f's_add_u32 s{sT1}, s{sT1}, s{sT2}')
            cap.op(f's_and_b32 s{sT0}, s{sT0}, 1'); cap.op(f's_lshl_b32 s{sT0}, s{sT0}, 3')
            cap.op(f's_add_u32 s{sT0}, s{sT0}, s{sT1}'); cap.op(f's_add_u32 s{sT0}, s{sT0}, 20480')
            cap.op(f'v_add_u32 v{vRB[t]}, s{sT0}, v{vPA}')
        return ops + cap.ops
    sched = {0: [(1, 4), (1, 5)], 1: [(1, 6), (1, 7)], 2: [(1, 8)],
             3: [(2, 0), (2, 1)], 4: [(2, 2), (2, 3), (2, 4)], 5: [(2, 5), (2, 6)], 6: [(2, 7), (2, 8)],
             7: [(3, 0), (3, 1)], 8: [(3, 2), (3, 3), (3, 4)], 9: [(3, 5), (3, 6)], 10: [(3, 7), (3, 8)]}
    if qh == 1:
        sched = {1: [(1, 0), (1, 1)], 2: [(1, 2), (1, 3), (1, 4)], 3: [(1, 5), (1, 6)], 4: [(1, 7), (1, 8)],
                 5: [(2, 0), (2, 1)], 6: [(2, 2), (2, 3), (2, 4)], 7: [(2, 5), (2, 6)], 8: [(2, 7), (2, 8)],
                 9: [(3, 0), (3, 1)], 10: [(3, 2), (3, 3), (3, 4)], 11: [(3, 5), (3, 6)], 12: [(3, 7), (3, 8)]}
    def ex(h):
        o = sum([expops(kt, qt, qh) for kt, qt in sched.get(h, [])], [])
        if cfg.x_noexp: o = [x for x in o if x.startswith('ds_')]
        if cfg.x_nopw: o = [x for x in o if not x.startswith('ds_')]
        return o
    def wopre_ops(i):
        ta = TMP[2 + (i & 1)]
        ops = [f's_mul_i32 s{sT0}, s{sX}, 983040', f's_mul_i32 s{sT1}, s{sLOC}, 30720', f's_add_u32 s{sT0}, s{sT0}, s{sT1}', f's_add_u32 s{sT0}, s{sT0}, {i * 8192}',
               f'v_lshlrev_b32 v{ta}, 4, v0', f'v_add_u32 v{ta}, s{sT0}, v{ta}', f'v_min_u32 v{ta}, {7864320 - 16}, v{ta}',
               f'global_load_dwordx4 {vr(16)}, v{ta}, s[14:15]']
        return ops
    for o in pv_reads(0, 0, 0): em.op(o)
    for s in range(8):
        e = ex(2*s)
        if 2*s == 14: e = tail_setup_ops(qh)
        w = wopre_ops(s - 4) if cfg.wopre and 2*s in (8, 10) else []
        interleave(em, mf(0, s == 0), (pv_reads(s, 1, 1), 0, rf), (e, 0, cfg.efrac / 100), (w, 0.5, 0.51))
        if s < 7: em.wait_vm_tag(f'V{s+1}', lgkm0=True)
        else: em.wait_lgkm0()
        em.barrier()
        em.st.stamp(f'PB{s}')
        rd = pv_reads(s + 1, 0, 0) if s < 7 else []
        dm = v_dma_ops(em, s + NV) if s + NV <= 7 else []
        e = ex(2*s+1)
        if 2*s+1 == 13: e = sum_ops()
        if 2*s+1 == 15:
            e = inv_ops()
            if qh == 0: dm = tail_dma(em, 0) + tail_dma(em, 1)
        w = wopre_ops(s - 2) if cfg.wopre and 2*s+1 in (9, 11) else []
        interleave(em, mf(1, False), (dm, 0, 0.5 if s < 7 else 1), (rd, 0, rf + 0.1), (e, 0, 1), (w, 0.5, 0.51))
    late = tail_dma(em, 2) if qh == 0 else []
    main = []
    for j in range(nq):
        for t in range(3):
            a = OACC[j*3+t]
            m = MC + 2*j
            main += [f'v_pk_mul_f32 {vr(a,2)}, {vr(a,2)}, {vr(m,2)} op_sel_hi:[1,0]', f'v_pk_mul_f32 {vr(a+2,2)}, {vr(a+2,2)}, {vr(m,2)} op_sel_hi:[1,0]',
                     f'v_cvt_pk_bf16_f32 v{a}, v{a}, v{a+1}', f'v_cvt_pk_bf16_f32 v{a+1}, v{a+2}, v{a+3}',
                     f'ds_write_b64 v{vRB[t]}, {vr(a,2)} offset:{j * 1024}']
    interleave(em, main, (late, 0, 1))
    em.wait_vm_tag('T0', lgkm0=True); em.barrier()
    em.st.stamp('BO')
    if qh == 0:
        em.op(f's_cmp_lt_u32 s{sW}, 2')
        em.op('s_cbranch_scc0 L_tail1')
        st = em.save(); sn = (em.st.n, list(em.st.names))
        tail(em, 0)
        em.label('L_tail1')
        em.restore(st); em.st.n, em.st.names = sn[0], list(sn[1])
        tail(em, 1)
    else:
        tail(em, 2)

STG2 = 40960
vOFFS = [188, 189, 190, 191, 192]; vA2 = [193, 194, 195, 196, 197]; vB2 = 198
SD, SP, SPR, SOUT = SX, SWQ, SK, SV
def tail_setup_ops(qh):
    c = Cap(); L = f'v{vLANE}'
    t0, t1, t2, t3 = 199, 200, 201, 202
    if qh == 0:
        c.op(f's_mul_i32 s{sT0}, s{sX}, 983040'); c.op(f's_mul_i32 s{sT1}, s{sJ}, 320'); c.op(f's_add_u32 s{sT0}, s{sT0}, s{sT1}')
        srd(c, SD, 14, 15, f's{sT0}', 7864320)
        c.op(f's_sub_u32 s{SD+2}, s{SD+2}, s{sT0}')
        c.op(f's_mov_b32 s{sSTR}, 81920')
        hs = 245760
        c.op(f's_lshl_b32 s{sT2}, s{sW}, 4')
        c.op(f's_mov_b32 s{sT1}, 52429')
        for j in range(5):
            c.op(f'v_add_u32 v{t0}, {j * 64}, {L}')
            c.op(f'v_mul_lo_u32 v{t1}, v{t0}, s{sT1}')
            c.op(f'v_lshrrev_b32 v{t1}, 20, v{t1}')
            c.op(f'v_mul_u32_u24 v{t2}, 20, v{t1}')
            c.op(f'v_sub_u32 v{t2}, v{t0}, v{t2}')
            c.op(f'v_bfe_u32 v{t3}, v{t1}, 2, 1')
            c.op(f'v_lshlrev_b32 v{t3}, 1, v{t3}')
            c.op(f'v_xor_b32 v{t2}, v{t2}, v{t3}')
            c.op(f'v_lshlrev_b32 v{t2}, 4, v{t2}')
            c.op(f'v_add_u32 v{t1}, s{sT2}, v{t1}')
            c.op(f'v_mul_u32_u24 v{t1}, 1280, v{t1}')
            c.op(f'v_add_u32 v{vOFFS[j]}, v{t1}, v{t2}')
    else:
        c.op(f's_lshl_b32 s{sT0}, s{sB}, 5'); c.op(f's_lshl_b32 s{sT1}, s{sX}, 2'); c.op(f's_add_u32 s{sT0}, s{sT0}, s{sT1}')
        c.op(f's_mul_i32 s{sT0}, s{sT0}, {O_HEAD}')
        srd(c, SD, 12, 13, f's{sT0}', 4 * O_HEAD)
        c.op(f's_mov_b32 s{sSTR}, 18432')
        hs = O_HEAD
        c.op(f's_mul_i32 s{sT2}, s{sDG}, 5120')
        c.op(f'v_lshlrev_b32 v{t0}, 4, {L}')
        c.op(f'v_add_u32 v{t0}, s{sT2}, v{t0}')
        for j in range(5): c.op(f'v_add_u32 v{vOFFS[j]}, {j * 1024}, v{t0}')
    c.op(f's_mul_i32 s{sM0T}, s{sW}, 5120')
    for i in range(4):
        c.op(f's_add_u32 s{sT0}, s{sJ}, {i}'); c.op(f's_and_b32 s{sT0}, s{sT0}, 3'); c.op(f's_mul_i32 s{sHB+i}, s{sT0}, {hs}')
    c.op(f's_and_b32 s{sNH}, s{sW}, 1')
    c.op(f'v_lshrrev_b32 v{t0}, 2, {L}')
    c.op(f'v_mul_u32_u24 v{t0}, 320, v{t0}')
    c.op(f'v_and_b32 v{t1}, 3, {L}'); c.op(f'v_lshlrev_b32 v{t1}, 3, v{t1}')
    c.op(f'v_add_u32 v{t0}, v{t0}, v{t1}')
    c.op(f'v_bfe_u32 v{t1}, {L}, 4, 1')
    c.op(f's_mul_i32 s{sT0}, s{sNH}, 5')
    for t in range(5):
        c.op(f's_add_u32 s{sT1}, s{sT0}, {t}')
        c.op(f'v_xor_b32 v{t2}, s{sT1}, v{t1}')
        c.op(f'v_lshlrev_b32 v{t2}, 5, v{t2}')
        c.op(f'v_add_u32 v{vA2[t]}, v{t0}, v{t2}')
    c.op(f's_lshr_b32 s{sT0}, s{sW}, 1')
    c.op(f's_mov_b32 s{sT1}, 0x7350')
    c.op(f's_lshl_b32 s{sT0}, s{sT0}, 2')
    c.op(f's_lshr_b32 s{sQ0}, s{sT1}, s{sT0}')
    c.op(f's_and_b32 s{sQ0}, s{sQ0}, 15')
    c.op(f's_lshl_b32 s{sT0}, s{sQ0}, 10')
    c.op(f's_add_u32 s{sT0}, s{sT0}, 20480')
    c.op(f'v_lshlrev_b32 v{vB2}, 4, {L}')
    c.op(f'v_add_u32 v{vB2}, s{sT0}, v{vB2}')
    c.op(f's_lshl_b32 s{sT0}, s{sB}, 3'); c.op(f's_add_u32 s{sT0}, s{sT0}, s{sX}'); c.op(f's_lshl_b32 s{sT0}, s{sT0}, 7'); c.op(f's_add_u32 s{sT0}, s{sT0}, {FLAG_OFF + 4096}')
    c.op(f's_add_u32 s{sF1}, s12, s{sT0}'); c.op(f's_addc_u32 s{sF1+1}, s13, 0')
    c.op(f's_lshl_b32 s{sT0}, s{sLOC}, 7'); c.op(f's_add_u32 s{sT0}, s{sT0}, {FLAG_OFF + 16384}')
    c.op(f's_add_u32 s{sF2}, s12, s{sT0}'); c.op(f's_addc_u32 s{sF2+1}, s13, 0')
    c.op(f's_mul_i32 s{sT0}, s{sLOC}, {8 * PART2}'); c.op(f's_add_u32 s{sT0}, s{sT0}, {WS_PART}')
    srd(c, SPR, 12, 13, f's{sT0}', 8 * PART2)
    c.op(f's_mul_i32 s{sT1}, s{sX}, {PART2}'); c.op(f's_add_u32 s{sT0}, s{sT0}, s{sT1}')
    srd(c, SP, 12, 13, f's{sT0}', PART2)
    srd(c, SOUT, 54, 55, None, 1474560)
    return c.ops

def tail_dma(em, s, orole=False):
    ops = []
    sc = ' sc1' if (orole and cfg.sc) else ''
    for j in range(5):
        def f(j=j):
            em.op(f's_add_u32 m0, s{sM0T}, {(s % 3) * STG2 + j * 1024}')
            if j == 0:
                if s % 3 == 0: em.op(f's_mov_b32 s{sOFF}, s{sHB + s // 3}')
                else: em.op(f's_add_u32 s{sOFF}, s{sOFF}, s{sSTR}')
            em.op(f'buffer_load_dwordx4 v{vOFFS[j]}, {sr(SD,4)}, s{sOFF} offen{sc} lds', tag=f'T{s}')
        ops.append(f)
    return ops

def flag_store(em, base, idx_s, lab, wave):
    t0, t1 = 199, 200
    em.op(f's_cmp_eq_u32 s{sW}, {wave}')
    em.op(f's_cbranch_scc0 {lab}')
    em.begin_opt()
    em.op(f's_lshl_b32 s{sT0}, s{idx_s}, 2')
    em.op(f'v_mov_b32 v{t0}, s{sT0}')
    em.op(f'v_mov_b32 v{t1}, s{sTAG}')
    em.op('s_mov_b64 exec, 1')
    em.op(f'global_store_dword v{t0}, v{t1}, s[{base}:{base+1}] sc1')
    em.op('s_mov_b64 exec, -1')
    em.end_opt()
    em.label(lab)

def poll(em, base, mask, lab):
    t0, t1 = 201, 202
    em.op(f'v_and_b32 v{t0}, {mask}, v{vLANE}')
    em.op(f'v_lshlrev_b32 v{t0}, 2, v{t0}')
    em.op(f's_mov_b32 s{sCNT}, 0x20000')
    em.wait_vm0()
    em.label(lab)
    em.op(f'global_load_dword v{t1}, v{t0}, s[{base}:{base+1}] sc1')
    em.op(f's_sub_u32 s{sCNT}, s{sCNT}, 1')
    em.op(f's_cbranch_scc1 {lab}_done')
    em.wait_vm0()
    em.op(f'v_cmp_ne_u32 vcc, s{sTAG}, v{t1}')
    em.op('s_nop 4')
    em.op(f's_cbranch_vccz {lab}_done')
    em.op('s_sleep 1')
    em.op(f's_branch {lab}')
    em.label(f'{lab}_done')
    em.wait_vm0()

def tail(em, tv):
    nq = 3 if tv == 0 else 2
    orole = tv == 2
    L = f'v{vLANE}'
    rf = cfg.rfrac / 100
    sc = ' sc1' if cfg.sc else ''
    ACC2 = 16; AF = [76, 96]; BF = [116, 128]; CO = 140
    t0, t1, t2, t3 = 203, 204, 205, 206
    em.op(f'v_lshlrev_b32 v{t0}, 4, v0')
    em.op(f'v_add_u32 v{t1}, 20480, v{t0}')
    em.op(f'v_add_u32 v{t2}, {STG2 + 20480}, v{t0}')
    npc = 3 if tv == 0 else 2
    k = 0; sts = []
    for c in range(3):
        for i in range(npc):
            va, off = (t1, 0) if c == 0 else (t2, (c - 1) * STG2)
            em.op(f'ds_read_b128 {vr(CO + 4*k)}, v{va} offset:{off + i * 8192}')
            sts.append((CO + 4*k, c * 18432 + i * 8192)); k += 1
    def reads(step, st_):
        ops = []
        for t in range(5):
            ops.append(f'ds_read_b64_tr_b16 {vr(AF[st_] + 4*t, 2)}, v{vA2[t]} offset:{step * 10240}')
            ops.append(f'ds_read_b64_tr_b16 {vr(AF[st_] + 4*t + 2, 2)}, v{vA2[t]} offset:{step * 10240 + 5120}')
        xs = [f'ds_read_b128 {vr(BF[st_] + 4*j)}, v{vB2} offset:{step * 9216 + j * 1024}' for j in range(nq)]
        return ops[0:2] + xs + ops[2:]
    def mf(st_, first):
        return [mfma(ACC2 + 4*(t*nq+j), AF[st_] + 4*t, BF[st_] + 4*j, None if first else ACC2 + 4*(t*nq+j)) for t in range(5) for j in range(nq)]
    for r, off in sts:
        em.op(f's_mov_b32 s{sT0}, {off}')
        em.op(f'buffer_store_dwordx4 {vr(r)}, v{t0}, {sr(SO,4)}, s{sT0} offen{sc}', tag='CO')
    for o in reads(0, 0): em.op(o)
    carry = []
    for s in range(12):
        interleave(em, mf(0, s == 0), (reads(1, 1), 0, rf), (carry, 0.05, 0.95))
        carry = []
        if s < 11:
            if s == 0: em.wait_vm0(); em.wait_lgkm0()
            else: em.wait_vm_tag(f'T{s+1}', lgkm0=True)
            em.barrier()
            em.st.stamp(f'T{s}')
        if s == 0 and orole: flag_store(em, sF1, sJ, 'L_f1', 4)
        fill = []; dm = []
        if s < 11:
            d = STG2 if (s + 1) % 3 else -2 * STG2
            fill += [f'v_add_u32 v{r}, {d & 0xffffffff}, v{r}' for r in vA2 + [vB2]]
            fill += reads(0, 0)
        if s + 3 <= 11:
            if not orole or s >= 2:
                dm = tail_dma(em, s + 3, orole); dm, carry = dm[:3], dm[3:]
            elif s == 1:
                poll(em, sF1, 3, 'L_p1')
                em.st.stamp('poll')
                for f in tail_dma(em, 3, True): f()
                dm = tail_dma(em, 4, True)
        interleave(em, mf(1, False), (dm, 0.05, 0.95), (fill, 0, rf + 0.1))
    em.st.stamp('TP')
    em.op(f'v_and_b32 v{t1}, 15, {L}'); em.op(f'v_mul_u32_u24 v{t1}, 336, v{t1}')
    em.op(f'v_lshrrev_b32 v{t2}, 4, {L}'); em.op(f'v_lshlrev_b32 v{t2}, 3, v{t2}')
    em.op(f's_mul_i32 s{sT0}, s{sQ0}, {16 * 336}'); em.op(f's_mul_i32 s{sT1}, s{sNH}, 160'); em.op(f's_add_u32 s{sT0}, s{sT0}, s{sT1}')
    em.op(f'v_add3_u32 v{t1}, v{t1}, v{t2}, s{sT0}')
    em.op(f's_mov_b32 s{sT2}, 52429')
    pre = []
    for i in range(6):
        r = 140 + i
        pre += [f'v_add_u32 v{r}, {512 * i}, v0', f'v_mul_lo_u32 v{t2}, v{r}, s{sT2}', f'v_lshrrev_b32 v{t2}, 20, v{t2}', f'v_add_lshl_u32 v{r}, v{r}, v{t2}, 4']
    for o in pre: em.op(o)
    for t in range(5):
        for j in range(nq):
            a = ACC2 + 4*(t*nq+j)
            em.op(f'v_cvt_pk_bf16_f32 v{a}, v{a}, v{a+1}')
            em.op(f'v_cvt_pk_bf16_f32 v{a+1}, v{a+2}, v{a+3}')
            em.op(f'ds_write_b64 v{t1}, {vr(a,2)} offset:{j * 16 * 336 + t * 32}')
    em.wait_lgkm0(); em.barrier()
    for i in range(6): em.op(f'ds_read_b128 {vr(76 + 4*i)}, v{140 + i}')
    for i in range(6):
        em.op(f's_mov_b32 s{sT0}, {i * 8192}')
        em.op(f'buffer_store_dwordx4 {vr(76 + 4*i)}, v{t0}, {sr(SP,4)}, s{sT0} offen{sc}')
    em.op(f's_mul_i32 s{sT0}, s{sX}, 5760')
    em.op(f'v_add_u32 v{t1}, s{sT0}, v{t0}')
    em.op(f'v_mul_lo_u32 v{t2}, v0, s{sT2}'); em.op(f'v_lshrrev_b32 v{t2}, 20, v{t2}')
    em.op(f'v_mul_u32_u24 v{t2}, 960, v{t2}')
    em.op(f's_mul_i32 s{sT0}, s{sB}, 144'); em.op(f's_mul_i32 s{sT1}, s{sX}, 18'); em.op(f's_add_u32 s{sT0}, s{sT0}, s{sT1}')
    em.op(f's_mul_i32 s{sT0}, s{sT0}, 1280'); em.op(f's_mul_i32 s{sT1}, s{sJ}, 320'); em.op(f's_add_u32 s{sT0}, s{sT0}, s{sT1}')
    em.op(f'v_add3_u32 v{t2}, v{t2}, v{t0}, s{sT0}')
    em.op(f'v_mov_b32 v{t3}, 0x7ffffff0')
    em.op(f'v_cmp_gt_u32 vcc, 360, v0')
    em.op(f'v_cndmask_b32 v{t2}, v{t3}, v{t2}, vcc')
    em.wait_vm0(); em.barrier()
    em.st.stamp('TW')
    if tv == 2:
        flag_store(em, sF2, sX, 'L_f2', 7)
        em.op(f's_cmp_ge_u32 s{sW}, 6')
        em.op(f's_cbranch_scc1 L_fin2')
    poll(em, sF2, 7, f'L_p2_{tv}')
    em.st.stamp('TF')
    for x in range(8):
        em.op(f's_mov_b32 s{sT0}, {x * PART2}')
        em.op(f'buffer_load_dwordx4 {vr(16 + 4*x)}, v{t1}, {sr(SPR,4)}, s{sT0} offen{sc}')
    if tv == 0:
        em.op(f's_or_b32 s{sT0}, s{sH}, s{sW}')
        em.op(f's_cmp_eq_u32 s{sT0}, 0')
        em.op('s_cbranch_scc0 L_nw')
        em.begin_opt()
        em.op(f's_lshl_b32 s{sT0}, s{sB}, 8'); em.op(f's_add_u32 s{sT0}, s{sT0}, {FLAG_OFF}')
        em.op(f'v_mov_b32 v60, s{sT0}'); em.op(f'v_mov_b32 v61, s{sTAG}')
        em.op('s_mov_b64 exec, 1')
        em.op('global_store_dword v60, v61, s[12:13]')
        em.op('s_mov_b64 exec, -1')
        em.end_opt()
        em.label('L_nw')
    A = 64
    for x in range(8):
        for d in range(4):
            r = 16 + 4*x + d
            if x == 0:
                em.op(f'v_lshlrev_b32 v{A+2*d}, 16, v{r}'); em.op(f'v_and_b32 v{A+2*d+1}, 0xffff0000, v{r}')
            else:
                em.op(f'v_lshlrev_b32 v{A+8}, 16, v{r}'); em.op(f'v_and_b32 v{A+9}, 0xffff0000, v{r}')
                em.op(f'v_pk_add_f32 {vr(A+2*d,2)}, {vr(A+2*d,2)}, {vr(A+8,2)}')
    for d in range(4): em.op(f'v_cvt_pk_bf16_f32 v{A+d}, v{A+2*d}, v{A+2*d+1}')
    em.op(f'buffer_store_dwordx4 {vr(A)}, v{t2}, {sr(SOUT,4)}, 0 offen')
    em.st.stamp('TL')
    if tv == 2: em.label('L_fin2')
    if cfg.diag: em.wait_vm0()
    em.st.flush(12, 0, sW, 244)
    em.op('s_endpgm')

def kernel_header(name):
    return f'.globl {name}\n.p2align 8\n.type {name},@function\n{name}:\n'
def kernel_desc(name, vgpr, sgpr=102):
    return f'''.amdhsa_kernel {name}
  .amdhsa_next_free_vgpr {vgpr}
  .amdhsa_next_free_sgpr {sgpr}
  .amdhsa_accum_offset {(vgpr + 3) // 4 * 4}
  .amdhsa_group_segment_fixed_size 0
  .amdhsa_kernarg_size 64
  .amdhsa_user_sgpr_count 2
  .amdhsa_user_sgpr_kernarg_segment_ptr 1
  .amdhsa_system_sgpr_workgroup_id_x 1
.end_amdhsa_kernel
'''

def gen_k1():
    em = Em()
    k1_prologue(em)
    st0 = em.save(); sn0 = (em.st.n, list(em.st.names))
    em.label('k1_body_start')
    stq = {}
    for v in (0, 2, 1, 3):
        qh, typ = v >> 1, v & 1
        if v: em.label(f'L_qp{v}')
        em.restore(st0); em.st.n, em.st.names = sn0[0], list(sn0[1])
        k1_qproj(em, qh, typ)
        stq[v] = em.save(); snq = (em.st.n, list(em.st.names))
        if v in (0, 1): em.op(f's_branch L_qk{typ}')
        else:
            assert [e[0] for e in stq[v][2]] == [e[0] for e in stq[v - 2][2]], (stq[v][2], stq[v-2][2])
            em.label(f'L_qk{typ}')
            em.hist = []
            k1_qk(em, typ)
            stk = em.save(); snk = (em.st.n, list(em.st.names))
            if typ == 0:
                tags0 = [e[0] for e in stk[2]]
                em.op('s_branch L_sm0')
            else:
                assert [e[0] for e in stk[2]] == tags0, (tags0, stk[2])
    em.label('L_sm0')
    em.hist = []
    em.op(f's_cmp_lt_u32 s{sW}, 4')
    em.op('s_cbranch_scc0 L_pv1')
    stp = em.save(); snp = (em.st.n, list(em.st.names))
    k1_sm0(em, 0); k1_pv(em, 0)
    em.label('L_pv1')
    em.restore(stp); em.st.n, em.st.names = snp[0], list(snp[1])
    k1_sm0(em, 1); k1_pv(em, 1)
    em.label('k1_body_end')
    em.label('L_k1_exit')
    em.op('s_endpgm')
    return em

def main():
    ref = open('cdna_kernels/' + NAME + '.s.ref').read().split('\n')
    head = [l for l in ref[:9]]
    k1 = gen_k1()
    KN = NAME + '_kernel'
    out = '\n'.join(head) + '\n'
    out += f'; @launch grid=(256,1,1) block=(512,1,1) lds={LDS1}\n'
    out += '.amdgcn_target "amdgcn-amd-amdhsa--gfx950"\n.text\n'
    out += kernel_header(KN) + k1.text()
    out += '.section .rodata,"a"\n.p2align 6\n' + kernel_desc(KN, 256)
    open(sys.argv[1], 'w').write(out)
    print('k1 instrs', k1.count, 'nops', k1.nops, file=sys.stderr)
main()
```

```python
import sys, struct, math
from em import Em, interleave, emit

NAME = 'standalone__gqa_block_cached__near_ridge'
def fbits(x): return struct.unpack('<I', struct.pack('<f', x))[0]

class Cfg:
    nt_kv = True
    nt_w = False
    nt_k2 = False
    two_types = True
    pre = True
    code_pre = True
    diag = False
    pk = True
    rfrac = 60
    prio = 0
    x_noexp = 0
    x_nopw = 0
    efrac = 95
    loopb = -1
    st = 0
    dbg = 0
    wopre = 1
    sc = 1
    x_nobar = 0
    x_nord = 0
    x_nodma = 0
cfg = Cfg()
cfg.pvst = (3,7); cfg.qst = (0,8,)
if 'pvall=1' in sys.argv: sys.argv.remove('pvall=1'); cfg.pvst = (0,1,2,3,4,5,6,7); cfg.qst = (); cfg.fewst = True
else: cfg.fewst = False
for a in sys.argv[2:]:
    k, v = a.split('='); setattr(cfg, k, type(getattr(cfg, k))(int(v)))
STSETS = {0: 'S0 BQ BM PV0 BO T0 T2 TP TW TF', 1: 'ka pi si S0 B0 B8 BQ K0 K1 QKend BM exp0 PV0', 2: 'PV0 PB0 PB1 PB2 PB3 PB4 PB5 PB6 PB7 BO', 3: 'BO T0 T1 poll T2 T3 T10 TP TW TF', 4: 'K0 K1 QKend BM exp0 PV0 PB3 PB7 BO T0'}
cfg.stlist = ['rt0', 'start'] + STSETS[cfg.st].split()[:10] + ['end', 'rt_end']
cfg.pvst = range(8); cfg.qst = range(10)

def vr(b, n=4): return f'v[{b}:{b + n - 1}]' if n > 1 else f'v{b}'
def sr(b, n): return f's[{b}:{b + n - 1}]'
MF = 'v_mfma_f32_16x16x32_bf16'
def mfma(d, a, b, c=None):
    return f'{MF} {vr(d)}, {vr(a)}, {vr(b)}, ' + ('0' if c is None else vr(c))

FLAG_OFF = 48 << 20
PART2 = 46080
O_HEAD = 55296
WS_PART = 16 << 20
PART_TILE = 90 * 1024

def srd(em, d, base_lo, base_hi, off_sgpr, size):
    if off_sgpr is None:
        em.op(f's_mov_b32 s{d}, s{base_lo}'); em.op(f's_mov_b32 s{d+1}, s{base_hi}')
    else:
        em.op(f's_add_u32 s{d}, s{base_lo}, {off_sgpr}'); em.op(f's_addc_u32 s{d+1}, s{base_hi}, 0')
    em.op(f's_mov_b32 s{d+2}, {size}')
    em.op(f's_mov_b32 s{d+3}, 0x20000')

_lab = [0]
DIAG_OFF = 64 << 20
class Stamps:
    def __init__(self, em):
        self.em = em; self.n = 0; self.names = []
        if cfg.diag:
            for i in range(len(cfg.stlist)): em.op(f's_mov_b32 s{60 + 2*i}, 0')
    def stamp(self, name, real=False):
        if not cfg.diag or name not in cfg.stlist: return
        em = self.em; i = cfg.stlist.index(name)
        em.wait_lgkm0()
        em.op(('s_memrealtime' if real else 's_memtime') + f' s[{60 + 2*i}:{61 + 2*i}]')
        em.op('s_waitcnt lgkmcnt(0)')
    def flush(self, ws_lo, kidx, wave_s, tv):
        if not cfg.diag: return
        em = self.em
        self.stamp('end'); self.stamp('rt_end', real=True)
        if cfg.dbg:
            _lab[0] += 1
            em.op('s_load_dwordx2 s[56:57], s[0:1], 48')
            em.op(f's_and_b32 s58, s2, 0xdf'); em.op(f's_or_b32 s58, s58, s{wave_s}'); em.op('s_cmp_eq_u32 s58, 0')
            em.op('s_waitcnt lgkmcnt(0)')
            em.op(f's_cbranch_scc0 L_dbg{_lab[0]}')
            em.op(f'v_mov_b32 v{tv}, s2')
            for k, i in enumerate([2, 3, 4, 13, 6, 9, 11, 12]):
                em.op(f's_sub_u32 s58, s{60 + 2*i}, s{60 if i == 13 else 62}')
                em.op(f'v_mov_b32 v{tv+1}, s58')
                em.op(f'global_store_dword v{tv}, v{tv+1}, s[56:57] offset:{4*k}')
            em.label(f'L_dbg{_lab[0]}')
            return
        em.op(f's_lshl_b32 s56, s2, 3'); em.op(f's_add_u32 s56, s56, s{wave_s}'); em.op('s_lshl_b32 s56, s56, 7')
        em.op(f's_add_u32 s56, s56, {DIAG_OFF + (kidx << 20)}')
        em.op(f's_add_u32 s56, s{ws_lo}, s56'); em.op(f's_addc_u32 s57, s{ws_lo+1}, 0')
        em.op(f'v_mov_b32 v{tv}, 0')
        for i in range(len(cfg.stlist)):
            em.op(f'v_mov_b32 v{tv+1}, s{60 + 2*i}')
            em.op(f'global_store_dword v{tv}, v{tv+1}, s[56:57] offset:{4*i}')
        print('stamps', kidx, cfg.stlist, file=sys.stderr)

SX, SWQ, SK, SV, SO = 16, 20, 24, 28, 32
sW, sW3072, sW1024, sTYPE, sOFF, sT0, sT1, sT2, sC, sB, sH, sJ, sLOC, sX = 36, 37, 38, 39, 40, 41, 42, 43, 44, 52, 46, 47, 48, 53
vLANE, vXO, vWO, vK0, vK1, vVO = 1, 2, 3, 4, 5, 6
vRA = [7, 8]
vRB = [9, 10, 11]
vRC = [12, 13, 14]
vT = 15
vPA, vPB, vPW, vMS = 240, 241, 242, 243
TMP = list(range(244, 256))
STG = 43008
PBASE, VBASE, MAXB, SUMB = 0, 55296, 153600, 155648
NV = 4
LDS1 = SUMB + 12 * 512
KSP = 16
def KR0(p): return 20 + 8 * p
def KR1(p): return 24 + 8 * p
def KT(p): return KSP if p == 0 else KR1(p - 1)
def kop(kt, ks):
    p = (kt // 2) * 6 + (ks // 2) * 2 + (kt % 2)
    return KR0(p) if ks % 2 == 0 else KT(p)
def sreg(kt, qt):
    if kt < 2: return 116 + 4 * (qt * 2 + kt)
    i = qt * 2 + (kt - 2)
    return 16 + 4 * i if i < 12 else 188 + 4 * (i - 12)
ACC = 116
MC = 212
SUM = 221
QF = 224
OACC0 = [116 + 8*i for i in range(9)] + [120, 128, 136, 144, 230, 234]
OACC1 = [116 + 8*i for i in range(9)] + [230, 234, 100]
PAF = [[248, 252, 2], [104, 108, 112]]
NEXP1 = 4


def k_load_ops(em, half):
    nt = ' nt' if cfg.nt_kv else ''
    ops = []
    for c in range(3):
        for k in range(2):
            p = half * 6 + c * 2 + k
            kt = half * 2 + k
            for (dst, va) in ((KR0(p), vK0), (KR1(p), vK1)):
                def f(dst=dst, va=va, kt=kt, c=c):
                    em.op(f's_mov_b32 s{sOFF}, {kt * 6144}')
                    em.op(f'buffer_load_dwordx4 {vr(dst)}, v{va}, {sr(SK,4)}, s{sOFF} offen offset:{c*128}{nt}', tag=f'K{half}')
                ops.append(f)
    return ops

def k_fix_ops(half):
    ops = []
    for pp in range(6):
        p = half * 6 + pp
        for d in range(4):
            r0, r1, t = KR0(p) + d, KR1(p) + d, KT(p) + d
            ops.append(f'v_mov_b32_dpp v{t}, v{r0} row_ror:8 row_mask:0xf bank_mask:0x3')
            ops.append(f'v_mov_b32_dpp v{t}, v{r1} row_ror:8 row_mask:0xf bank_mask:0xc')
            ops.append(f'v_mov_b32_dpp v{r0}, v{r1} quad_perm:[0,1,2,3] row_mask:0xf bank_mask:0xc')
    return ops

def stage_dma_ops(em, s, qh):
    nt = ' nt' if cfg.nt_w else ''
    slot = (s % 3) * STG
    ops = []
    for c in range(3):
        def f(c=c):
            em.op(f's_add_u32 m0, s{sW3072}, {slot + c * 896}')
            em.op(f's_mov_b32 s{sOFF}, {s * 786432}')
            em.op(f'buffer_load_dwordx4 v{vWO}, {sr(SWQ,4)}, s{sOFF} offen offset:{c*128}{nt} lds', tag=f'S{s}')
        ops.append(f)
    for j in range(2):
        def f(j=j):
            em.op(f's_add_u32 m0, s{sW1024}, {slot + j * 8192}')
            em.op(f's_mov_b32 s{sOFF}, {s * 128 + j * 81920}')
            em.op(f'buffer_load_dwordx4 v{vXO}, {sr(SX,4)}, s{sOFF} offen{nt} lds', tag=f'S{s}')
        ops.append(f)
    if qh == 1:
        def f():
            _lab[0] += 1
            lab = f'L_x{_lab[0]}'
            em.op(f's_cmp_lt_u32 s{sW}, 6')
            em.op(f's_cbranch_scc0 {lab}')
            em.begin_opt()
            em.op(f's_add_u32 m0, s{sW1024}, {slot + 12288}')
            em.op(f's_mov_b32 s{sOFF}, {s * 128 + 122880}')
            em.op(f'buffer_load_dwordx4 v{vXO}, {sr(SX,4)}, s{sOFF} offen{nt} lds', tag=f'S{s}')
            em.end_opt()
            em.label(lab)
        ops.insert(0, f)
    return ops

def v_dma_ops(em, s):
    nt = ' nt' if cfg.nt_kv else ''
    ops = []
    for c in range(3):
        def f(c=c):
            em.op(f's_add_u32 m0, s{sW3072}, {VBASE + (s % NV) * 24576 + c * 896}')
            em.op(f's_mov_b32 s{sOFF}, {(256 * (s & 1) + 16 * (s >> 1)) * 384}')
            em.op(f'buffer_load_dwordx4 v{vVO}, {sr(SV,4)}, s{sOFF} offen offset:{c*128}{nt} lds', tag=f'V{s}')
        ops.append(f)
    return ops

sDG = 49
sTAG, sSTR, sF1, sF2, sHB, sM0T, sQ0, sNH, sCNT = 88, 89, 90, 92, 94, 98, 99, 100, 101
def k1_prologue(em):
    em.op('s_cmp_ge_u32 s2, 256')
    em.op('s_cbranch_scc1 L_k1_exit')
    em.st = Stamps(em); em.st.stamp('rt0', real=True); em.st.stamp('start')
    em.op('s_load_dwordx8 s[4:11], s[0:1], 0')
    em.op('s_load_dwordx2 s[12:13], s[0:1], 56')
    em.op('s_load_dwordx2 s[14:15], s[0:1], 32')
    em.op('s_load_dwordx2 s[54:55], s[0:1], 40')
    em.op(f'v_and_b32 v{vLANE}, 63, v0')
    em.op(f'v_lshrrev_b32 v{vT}, 6, v0')
    em.op(f's_and_b32 s{sX}, s2, 7')
    em.op(f's_lshr_b32 s{sLOC}, s2, 3')
    em.op(f'v_readfirstlane_b32 s{sW}, v{vT}')
    t0, t1, t2, t3, t4 = TMP[:5]
    L = f'v{vLANE}'
    if cfg.code_pre:
        em.op('s_getpc_b64 s[50:51]')
        em.label('L_k1_pc')
        em.op('s_add_u32 s50, s50, k1_body_start-L_k1_pc')
        em.op('s_addc_u32 s51, s51, 0')
        em.op(f's_and_b32 s{sT1}, s{sLOC}, 15')
        em.op(f's_lshl_b32 s{sT1}, s{sT1}, 13')
        em.op(f'v_lshlrev_b32 v{t3}, 4, v0')
        em.op(f'v_add_u32 v{t4}, s{sT1}, v{t3}')
        em.op(f'v_min_u32 v{t4}, k1_body_end-k1_body_start-16, v{t4}')
        em.op(f'global_load_dwordx4 {vr(116)}, v{t4}, s[50:51]')
    else:
        em.op(f'v_lshlrev_b32 v{t3}, 4, v0')
    em.op(f's_and_b32 s{sJ}, s{sLOC}, 3')
    em.op(f's_lshr_b32 s{sB}, s{sLOC}, 2')
    em.op(f's_lshl_b32 s{sH}, s{sX}, 2')
    em.op(f's_add_u32 s{sH}, s{sH}, s{sJ}')
    nt = ' nt' if cfg.nt_w else ''
    em.op(f's_and_b32 s{sTYPE}, s{sB}, 1')
    if cfg.pre:
        em.op(f's_lshr_b32 s{sT2}, s{sB}, 1'); em.op(f's_lshl_b32 s{sT2}, s{sT2}, 2'); em.op(f's_add_u32 s{sT2}, s{sT2}, s{sJ}')
        em.op(f's_lshl_b32 s{sT0}, s{sW}, 6'); em.op(f's_lshl_b32 s{sT1}, s{sT2}, 2'); em.op(f's_add_u32 s{sT0}, s{sT0}, s{sT1}')
        em.op(f's_mul_i32 s{sT0}, s{sT0}, 12288'); em.op(f's_mul_i32 s{sT1}, s{sX}, 1536'); em.op(f's_add_u32 s{sT0}, s{sT0}, s{sT1}')
        em.op(f'v_lshrrev_b32 v{t0}, 5, {L}'); em.op(f'v_mul_u32_u24 v{t0}, 12288, v{t0}')
        em.op(f'v_and_b32 v{t1}, 31, {L}'); em.op(f'v_lshlrev_b32 v{t1}, 4, v{t1}')
        em.op(f'v_add3_u32 v{t0}, v{t0}, v{t1}, s{sT0}')
        em.op(f's_and_b32 s{sT0}, s{sB}, 6'); em.op(f's_mul_i32 s{sT0}, s{sT0}, 144'); em.op(f's_mul_i32 s{sT1}, s{sJ}, 36'); em.op(f's_add_u32 s{sT0}, s{sT0}, s{sT1}')
        em.op(f's_mul_i32 s{sT0}, s{sT0}, 1280'); em.op(f's_lshl_b32 s{sT1}, s{sW}, 7'); em.op(f's_add_u32 s{sT0}, s{sT0}, s{sT1}')
        em.op(f'v_lshrrev_b32 v{t1}, 3, {L}'); em.op(f'v_mul_u32_u24 v{t1}, 1280, v{t1}')
        em.op(f'v_and_b32 v{t2}, 7, {L}'); em.op(f'v_lshlrev_b32 v{t2}, 4, v{t2}')
        em.op(f'v_add3_u32 v{t1}, v{t1}, v{t2}, s{sT0}')
        em.op(f's_mul_i32 s{sT0}, s{sLOC}, 46080')
        em.op(f'v_add_u32 v{t3}, s{sT0}, v{t3}')
    em.op('s_waitcnt lgkmcnt(0)')
    em.st.stamp('ka')
    em.op(f's_lshl_b32 s{sT0}, s{sB}, 8'); em.op(f's_add_u32 s{sT0}, s{sT0}, {FLAG_OFF}')
    em.op(f's_load_dword s{sTAG}, s[12:13], s{sT0}')
    if cfg.pre:
        em.op(f's_cmp_eq_u32 s{sTYPE}, 1')
        em.op(f's_cbranch_scc0 L_pre1')
        em.begin_opt()
        def stage_pre(a, b, tw, tx):
            ops = []
            for pr in range(2):
                for c in range(3): ops.append([f'global_load_dwordx4 {vr(120)}, v{tw}, s[10:11] offset:{c*512}{nt}'] + ([f'v_add_u32 v{tw}, 24576, v{tw}'] if c == 2 else []))
            for n in range(5): ops.append([f'global_load_dwordx4 {vr(120)}, v{tx}, s[4:5]{nt}', f'v_add_u32 v{tx}, 10240, v{tx}'])
            return ops
        em.op(f'v_mov_b32 v{t2}, v{t0}'); em.op(f'v_mov_b32 v{t4}, v{t1}')
        for g in stage_pre(0, 11, t2, t4):
            for o in g: em.op(o)
        em.op(f's_lshr_b32 s{sT0}, s{sW}, 2'); em.op(f's_add_u32 s{sT0}, s{sT0}, 8'); em.op(f's_sub_u32 s{sT0}, s{sT0}, s{sW}')
        em.op(f's_mul_i32 s{sT1}, s{sT0}, {64 * 12288}')
        em.op(f's_bfe_u32 s{sT2}, s{sW}, 0x10001'); em.op(f's_mul_i32 s{sT2}, s{sT2}, 24576'); em.op(f's_add_u32 s{sT1}, s{sT1}, s{sT2}')
        em.op(f's_and_b32 s{sT2}, s{sW}, 1'); em.op(f's_lshl_b32 s{sT2}, s{sT2}, 9'); em.op(f's_add_u32 s{sT1}, s{sT1}, s{sT2}')
        em.op(f'v_add_u32 v{t0}, s{sT1}, v{t0}')
        em.op(f'global_load_dwordx4 {vr(120)}, v{t0}, s[10:11]{nt}')
        em.op(f'global_load_dwordx4 {vr(120)}, v{t0}, s[10:11] offset:512{nt}')
        em.op(f's_lshl_b32 s{sT1}, s{sT0}, 7'); em.op(f's_and_b32 s{sT2}, s{sW}, 3'); em.op(f's_mul_i32 s{sT2}, s{sT2}, {9 * 1280}'); em.op(f's_add_u32 s{sT1}, s{sT1}, s{sT2}')
        em.op(f'v_add_u32 v{t1}, s{sT1}, v{t1}')
        em.op(f'global_load_dwordx4 {vr(120)}, v{t1}, s[4:5]{nt}')
        em.op(f'global_load_dwordx4 {vr(120)}, v{t1}, s[4:5] offset:1280{nt}')
        for i in range(6):
            if i == 5: em.op(f'v_min_u32 v{t3}, {1474560 - 16}, v{t3}')
            em.op(f'global_load_dwordx4 {vr(120)}, v{t3}, s[4:5]{nt}')
            if i < 5: em.op(f'v_add_u32 v{t3}, 8192, v{t3}')
        em.end_opt()
        em.label('L_pre1')
    em.st.stamp('pi')
    em.op(f's_and_b32 s{sDG}, s{sW}, 3')
    em.op(f's_mul_i32 s{sW3072}, s{sW}, 3072')
    em.op(f's_lshl_b32 s{sW1024}, s{sW}, 10')
    em.op(f's_add_u32 s{sW1024}, s{sW1024}, 24576')
    em.op(f's_mov_b32 s{sC}, {fbits(192 ** -0.5 * math.log2(math.e))}')
    em.op(f'v_lshrrev_b32 v{t0}, 3, {L}')
    em.op(f'v_and_b32 v{t1}, 7, {L}')
    em.op(f'v_lshrrev_b32 v{t2}, 4, {L}')
    em.op(f's_lshl_b32 s{sT1}, s{sB}, 5'); em.op(f's_add_u32 s{sT1}, s{sT1}, s{sH}')
    em.op(f's_mul_i32 s{sT0}, s{sT1}, 196608')
    srd(em, SK, 6, 7, f's{sT0}', 196608); srd(em, SV, 8, 9, f's{sT0}', 196608)
    em.op(f's_mul_i32 s{sT0}, s{sT1}, {O_HEAD}'); srd(em, SO, 12, 13, f's{sT0}', O_HEAD)
    em.op(f'v_and_b32 v{t3}, 1, v{t0}')
    em.op(f'v_lshlrev_b32 v{t3}, 2, v{t3}')
    em.op(f'v_add_u32 v{t3}, v{t3}, v{t2}')
    em.op(f'v_lshlrev_b32 v{t3}, 4, v{t3}')
    em.op(f's_lshl_b32 s{sT2}, s{sW}, 6')
    em.op(f'v_add_u32 v{t4}, s{sT2}, v{t1}')
    em.op(f'v_mul_u32_u24 v{t4}, 384, v{t4}')
    em.op(f'v_add_u32 v{vK0}, v{t4}, v{t3}')
    em.op(f'v_xor_b32 v{t3}, 64, v{t3}')
    em.op(f'v_add_u32 v{vK1}, v{t4}, v{t3}')
    em.op(f'v_add_u32 v{vK1}, {8 * 384}, v{vK1}')
    if cfg.two_types:
        em.op(f's_cmp_eq_u32 s{sTYPE}, 1')
        em.op('s_cbranch_scc0 L_nok1')
        em.begin_opt()
        for f in k_load_ops(em, 0): f()
        em.end_opt()
        em.label('L_nok1')
    em.op(f's_mul_i32 s{sT0}, s{sB}, 184320'); srd(em, SX, 4, 5, f's{sT0}', 184320)
    em.op(f's_mul_i32 s{sT0}, s{sH}, 384'); srd(em, SWQ, 10, 11, f's{sT0}', 7864320)
    em.op(f's_sub_u32 s{SWQ+2}, s{SWQ+2}, s{sT0}')
    em.op(f's_and_b32 s{sT0}, s{sW}, 1')
    em.op(f's_lshl_b32 s{sT1}, s{sT0}, 2')
    em.op(f'v_add_u32 v{t3}, s{sT1}, v{t2}')
    em.op(f'v_xor_b32 v{t3}, v{t3}, v{t1}')
    em.op(f'v_lshlrev_b32 v{t3}, 4, v{t3}')
    em.op(f's_lshl_b32 s{sT2}, s{sW}, 3')
    em.op(f'v_add_u32 v{t4}, s{sT2}, v{t0}')
    em.op(f'v_mul_u32_u24 v{vXO}, 1280, v{t4}')
    em.op(f'v_add_u32 v{vXO}, v{vXO}, v{t3}')
    em.op(f'v_and_b32 v{t3}, 1, v{t2}')
    em.op(f'v_lshlrev_b32 v{t3}, 1, v{t3}')
    em.op(f'v_add_u32 v{t3}, s{sT1}, v{t3}')
    em.op(f'v_xor_b32 v{t3}, v{t3}, v{t1}')
    em.op(f'v_lshlrev_b32 v{t3}, 4, v{t3}')
    em.op(f'v_mul_u32_u24 v{vWO}, 12288, v{t4}')
    em.op(f'v_add_u32 v{vWO}, v{vWO}, v{t3}')
    em.op(f's_lshr_b32 s{sT1}, s{sW}, 1'); em.op(f's_lshl_b32 s{sT1}, s{sT1}, 6')
    em.op(f's_lshl_b32 s{sT0}, s{sT0}, 3'); em.op(f's_add_u32 s{sT0}, s{sT0}, s{sT1}')
    em.op(f'v_add_u32 v{t3}, s{sT0}, v{t0}')
    em.op(f'v_mul_u32_u24 v{vVO}, 384, v{t3}')
    em.op(f'v_lshlrev_b32 v{t3}, 1, v{t2}')
    em.op(f'v_xor_b32 v{t3}, v{t3}, v{t1}')
    em.op(f'v_lshlrev_b32 v{t3}, 4, v{t3}')
    em.op(f'v_add_u32 v{vVO}, v{vVO}, v{t3}')
    em.op('s_waitcnt lgkmcnt(0)')
    em.op(f's_add_u32 s{sTAG}, s{sTAG}, 1')
    em.barrier()
    em.op(f's_lshr_b32 s{sT0}, s{sW}, 2'); em.op(f's_lshl_b32 s{sT0}, s{sT0}, 1'); em.op(f's_or_b32 s{sT0}, s{sT0}, s{sTYPE}')
    for v in (1, 2, 3):
        em.op(f's_cmp_eq_u32 s{sT0}, {v}')
        em.op(f's_cbranch_scc1 L_qp{v}')

def tr_addr(em, dst, t, base, fmode):
    t0, t1, t2, t3 = TMP[:4]
    L = f'v{vLANE}'
    em.op(f's_mul_i32 s{sT0}, s{sDG}, 3'); em.op(f's_add_u32 s{sT0}, s{sT0}, {t}')
    em.op(f's_lshr_b32 s{sT1}, s{sT0}, 2'); em.op(f's_lshl_b32 s{sT1}, s{sT1}, 10')
    em.op(f's_add_u32 s{sT1}, s{sT1}, {base}')
    em.op(f's_and_b32 s{sT0}, s{sT0}, 3')
    em.op(f'v_lshrrev_b32 v{t0}, 4, {L}')
    em.op(f'v_bfe_u32 v{t1}, {L}, 2, 2')
    em.op(f'v_and_b32 v{t2}, 1, v{t0}')
    em.op(f'v_lshlrev_b32 v{t2}, 1, v{t2}')
    em.op(f'v_lshrrev_b32 v{t3}, 1, v{t1}')
    em.op(f'v_add_u32 v{t3}, v{t3}, v{t2}')
    em.op(f'v_xor_b32 v{t3}, s{sT0}, v{t3}')
    em.op(f'v_lshlrev_b32 v{t3}, 5, v{t3}')
    em.op(f'v_lshlrev_b32 v{dst}, 7, v{t1}')
    em.op(f'v_add_u32 v{dst}, v{dst}, v{t3}')
    if fmode == 'w':
        em.op(f'v_mul_u32_u24 v{t3}, 3072, v{t0}')
    else:
        em.op(f'v_lshlrev_b32 v{t2}, 8, v{t2}')
        em.op(f'v_add_u32 v{dst}, v{dst}, v{t2}')
        em.op(f'v_lshrrev_b32 v{t3}, 1, v{t0}')
        em.op(f'v_mul_u32_u24 v{t3}, 3072, v{t3}')
    em.op(f'v_add_u32 v{dst}, v{dst}, v{t3}')
    em.op(f'v_and_b32 v{t3}, 3, {L}')
    em.op(f'v_lshlrev_b32 v{t3}, 3, v{t3}')
    em.op(f'v_add_u32 v{dst}, v{dst}, v{t3}')
    em.op(f'v_add_u32 v{dst}, s{sT1}, v{dst}')

class Cap:
    def __init__(self): self.ops = []
    def op(self, t, tag=None): self.ops.append(t)

def k1_qproj(em, qh, typ):
    nq = 5 if qh == 0 else 4
    q0 = 0 if qh == 0 else 5
    L = f'v{vLANE}'
    t0, t1, t2, t3, t4, t5 = TMP[:6]
    rf = cfg.rfrac / 100
    if cfg.prio and qh == 1: em.op('s_setprio 1')
    for f in stage_dma_ops(em, 0, qh): f()
    em.barrier()
    for f in stage_dma_ops(em, 1, qh): f()
    em.st.stamp('si')
    em.op(f'v_lshlrev_b32 v{t3}, 2, v0')
    em.op(f'v_add_u32 v{t3}, {MAXB}, v{t3}')
    em.op(f'v_mov_b32 v{t4}, 0xff800000')
    em.op(f'ds_write_b32 v{t3}, v{t4}')
    em.op(f'v_and_b32 v{vMS}, 15, {L}')
    em.op(f'v_lshlrev_b32 v{vMS}, 2, v{vMS}')
    em.op(f'v_add_u32 v{vMS}, {MAXB}, v{vMS}')
    em.op(f'v_bfe_u32 v{t0}, {L}, 3, 1'); em.op(f'v_lshlrev_b32 v{t0}, 10, v{t0}')
    em.op(f'v_and_b32 v{t1}, 7, {L}'); em.op(f'v_lshlrev_b32 v{t1}, 7, v{t1}')
    em.op(f'v_add_u32 v{t0}, v{t0}, v{t1}')
    em.op(f'v_bfe_u32 v{t1}, {L}, 1, 3'); em.op(f'v_lshrrev_b32 v{t2}, 4, {L}')
    em.op(f'v_xor_b32 v{t1}, v{t1}, v{t2}'); em.op(f'v_lshlrev_b32 v{vT}, 4, v{t1}')
    em.op(f'v_add_u32 v{vRA[0]}, v{t0}, v{vT}')
    em.op(f'v_add_u32 v{vRA[0]}, {24576 + q0 * 2048}, v{vRA[0]}')
    em.op(f'v_xor_b32 v{vRA[1]}, 64, v{vRA[0]}')
    for t in range(3): tr_addr(em, vRB[t], t, 0, 'w')
    for t in range(3):
        em.op(f's_mul_i32 s{sT0}, s{sDG}, 3'); em.op(f's_add_u32 s{sT0}, s{sT0}, {t}'); em.op(f's_lshl_b32 s{sT0}, s{sT0}, 1')
        em.op(f'v_lshrrev_b32 v{t0}, 5, {L}')
        em.op(f'v_add_u32 v{t0}, s{sT0}, v{t0}')
        em.op(f'v_lshrrev_b32 v{t1}, 3, v{t0}'); em.op(f'v_lshlrev_b32 v{t1}, 7, v{t1}')
        em.op(f'v_and_b32 v{t0}, 7, v{t0}')
        em.op(f'v_bfe_u32 v{t2}, {L}, 1, 3')
        em.op(f'v_xor_b32 v{t0}, v{t0}, v{t2}'); em.op(f'v_lshlrev_b32 v{t0}, 4, v{t0}')
        em.op(f'v_add_u32 v{t0}, v{t0}, v{t1}')
        em.op(f'v_and_b32 v{t1}, 15, {L}'); em.op(f'v_mul_u32_u24 v{t1}, 384, v{t1}')
        em.op(f'v_add_u32 v{t0}, v{t0}, v{t1}')
        em.op(f'v_bfe_u32 v{t1}, {L}, 4, 1'); em.op(f'v_lshlrev_b32 v{t1}, 3, v{t1}')
        em.op(f'v_add_u32 v{vRC[t]}, v{t0}, v{t1}')
    em.op(f'v_lshlrev_b32 v{vPA}, 4, {L}')
    em.op(f's_bfe_u32 s{sT0}, s{sW}, 0x10001'); em.op(f's_mul_i32 s{sT0}, s{sT0}, 9216')
    em.op(f's_and_b32 s{sT1}, s{sW}, 1'); em.op(f's_lshl_b32 s{sT1}, s{sT1}, 3'); em.op(f's_add_u32 s{sT0}, s{sT0}, s{sT1}')
    em.op(f'v_add_u32 v{vPW}, s{sT0}, v{vPA}')
    em.op(f'v_add_u32 v{vPA}, {q0 * 1024}, v{vPA}')
    AF = [176, 188]; BF = [200, 220]
    def q_reads(step, st):
        ops = []
        for t in range(3):
            ops.append(f'ds_read_b64_tr_b16 {vr(AF[st] + 4*t, 2)}, v{vRB[t]} offset:{step * 12288}')
            ops.append(f'ds_read_b64_tr_b16 {vr(AF[st] + 4*t + 2, 2)}, v{vRB[t]} offset:{step * 12288 + 512}')
        xs = [f'ds_read_b128 {vr(BF[st] + 4*j)}, v{vRA[step]} offset:{j * 2048}' for j in range(nq)]
        return ops[0:2] + xs[0:1] + ops[2:6] + xs[1:]
    def mf(st, first):
        return [mfma(ACC + 4*(j*3+t), AF[st] + 4*t, BF[st] + 4*j, None if first else ACC + 4*(j*3+t)) for j in range(nq) for t in range(3)]
    em.wait_vm_tag('S0', lgkm0=True); em.barrier()
    em.st.stamp('S0')
    for o in q_reads(0, 0): em.op(o)
    kl = k_load_ops(em, 1 if typ == 1 else 0)
    fix0 = k_fix_ops(0) if typ == 1 else []
    cap = Cap()
    for t in range(3): tr_addr(cap, TMP[6 + t], t, VBASE, 'v')
    vaddr_ops = cap.ops
    carry = stage_dma_ops(em, 2, qh)
    for s in range(10):
        extra = []
        if 1 <= s <= 6: extra = fix0[(s - 1) * 12: s * 12]
        if s >= 8: extra = kl[{8: 3, 9: 8}[s]: {8: 5, 9: 10}[s]]
        interleave(em, mf(0, s == 0), (q_reads(1, 1), 0, rf), (extra, 0.3, 1), (carry, 0.05, 0.95))
        if s < 9: em.wait_vm_tag(f'S{s+1}', lgkm0=True)
        else: em.wait_lgkm0()
        em.barrier()
        if s in cfg.qst: em.st.stamp(f'B{s}')
        rd = []; dm = []; extra = []
        if s < 9:
            d = STG if (s + 1) % 3 else -2 * STG
            rd += [f'v_add_u32 v{r}, {d & 0xffffffff}, v{r}' for r in vRA + vRB]
            rd += q_reads(0, 0)
        carry = []
        if s + 3 <= 9:
            dm = stage_dma_ops(em, s + 3, qh); dm, carry = dm[:3], dm[3:]
        if s >= 7: dm = kl[{7: 0, 8: 5, 9: 10}[s]: {7: 3, 8: 8, 9: 12}[s]]
        if s == 7: extra = vaddr_ops
        interleave(em, mf(1, False), (dm, 0.05, 0.95), (rd, 0, rf + 0.1), (extra, 0, 1))
    for j in range(nq):
        for t in range(3):
            a = ACC + 4*(j*3+t)
            em.op(f'v_cvt_pk_bf16_f32 v{a}, v{a}, v{a+1}')
            em.op(f'v_cvt_pk_bf16_f32 v{a+1}, v{a+2}, v{a+3}')
            em.op(f'ds_write_b64 v{vRC[t]}, {vr(a,2)} offset:{(q0 + j) * 6144}')
    em.op(f'v_and_b32 v{t1}, 15, {L}'); em.op(f'v_mul_u32_u24 v{t1}, 384, v{t1}')
    em.op(f'v_add_u32 v{vRA[0]}, v{t1}, v{vT}')
    em.op(f'v_xor_b32 v{t0}, 64, v{vT}')
    em.op(f'v_add_u32 v{vRA[1]}, v{t1}, v{t0}')
    for t in range(3): em.op(f'v_mov_b32 v{vRB[t]}, v{TMP[6 + t]}')
    em.wait_lgkm0(); em.barrier()
    for t in range(3): em.op(f'v_add_u32 v{vRC[t]}, 49152, v{vRB[t]}')
    em.st.stamp('BQ')

def maxops(half):
    ops = []
    for qt in range(9):
        a, b = sreg(half*2, qt), sreg(half*2+1, qt); m = MC + qt
        if half == 0:
            ops += [f'v_max3_f32 v{m}, v{a}, v{a+1}, v{a+2}', f'v_max3_f32 v{m}, v{m}, v{a+3}, v{b}',
                    f'v_max3_f32 v{m}, v{m}, v{b+1}, v{b+2}', f'v_max_f32 v{m}, v{m}, v{b+3}']
        else:
            ops += [f'v_max3_f32 v{m}, v{m}, v{a}, v{a+1}', f'v_max3_f32 v{m}, v{m}, v{a+2}, v{a+3}',
                    f'v_max3_f32 v{m}, v{m}, v{b}, v{b+1}', f'v_max3_f32 v{m}, v{m}, v{b+2}, v{b+3}']
    return ops

def k1_qk(em, typ):
    def qrd(n):
        qt, ks = divmod(n, 6)
        return f'ds_read_b128 {vr(QF + 4*(n % 4))}, v{vRA[ks & 1]} offset:{qt * 6144 + (ks >> 1) * 128}'
    vl = sum([v_dma_ops(em, s) for s in range(NV)], [])
    for half in range(2):
        for n in range(3): em.op(qrd(n))
        if typ == 0:
            for o in k_fix_ops(half): em.op(o)
        em.st.stamp(f'K{half}')
        main = []
        for n in range(54):
            qt, ks = divmod(n, 6)
            if n + 3 < 54: main.append(qrd(n + 3))
            for k in range(2):
                kt = half * 2 + k
                main.append(mfma(sreg(kt, qt), kop(kt, ks), QF + 4*(n % 4), None if ks == 0 else sreg(kt, qt)))
        m1 = maxops(1)
        if half == 0:
            if typ == 0: streams = [(k_load_ops(em, 1), 0, 0.9)]
            else: streams = [(vl, 0, 0.6), (k_fix_ops(1), 0.4, 1)]
        else:
            streams = [(maxops(0), 0.02, 0.5)]
            for qt in range(8): streams.append((m1[qt*4:qt*4+4], max(0.5 + 0.05*qt, (qt + 1.5) / 9), max(0.55 + 0.05*qt, (qt + 1.9) / 9)))
            if typ == 0: streams.append((vl, 0, 0.7))
        interleave(em, main, *streams)
    em.st.stamp('QKend')
    for o in maxops(1)[32:]: em.op(o)
    for qt in range(9): em.op(f'ds_max_f32 v{vMS}, v{MC+qt} offset:{qt*64}')
    em.wait_lgkm0(); em.barrier()
    em.st.stamp('BM')

def expops(kt, qt, qh, pk=False):
    a = sreg(kt, qt); m = MC + qt
    tA, tB = TMP[0], TMP[1]
    if pk:
        mb = m & ~1; s = m & 1
        ops = [f'v_pk_fma_f32 {vr(r,2)}, {vr(r,2)}, s[{sC}:{sC+1}], {vr(mb,2)} op_sel:[0,0,{s}] op_sel_hi:[1,0,{s}] neg_lo:[0,0,1] neg_hi:[0,0,1]' for r in (a, a+2)]
    else:
        ops = [f'v_fma_f32 v{r}, v{r}, s{sC}, -v{m}' for r in range(a, a+4)]
    ops += [f'v_exp_f32 v{r}, v{r}' for r in range(a, a+4)]
    if pk:
        ops += [f'v_pk_add_f32 {vr(tA,2)}, {vr(a,2)}, {vr(a+2,2)}']
    else:
        ops += [f'v_add_f32 v{tA}, v{a}, v{a+1}', f'v_add_f32 v{tB}, v{a+2}, v{a+3}']
    ops += [f'v_cvt_pk_bf16_f32 v{a}, v{a}, v{a+1}', f'v_cvt_pk_bf16_f32 v{a+1}, v{a+2}, v{a+3}']
    if kt == 0: ops += [f'v_add_f32 v{SUM+qt}, v{tA}, v{tB}']
    else: ops += [f'v_add_f32 v{tA}, v{tA}, v{tB}', f'v_add_f32 v{SUM+qt}, v{SUM+qt}, v{tA}']
    ops += [f'ds_write_b64 v{vPW}, {vr(a,2)} offset:{((4*kt + 2*qh) % 6) * 9216 + qt*1024}']
    return ops

def k1_sm0(em, qh):
    for qt in range(9): em.op(f'ds_read_b32 v{MC+qt}, v{vMS} offset:{qt*64}')
    for qt in range(9): em.op(f'v_mul_f32 v{MC+qt}, s{sC}, v{MC+qt}')
    for qt in range(9):
        for o in expops(0, qt, qh, cfg.pk): em.op(o)
    for qt in range(NEXP1 if qh == 0 else 0):
        for o in expops(1, qt, qh, cfg.pk): em.op(o)
    em.st.stamp('exp0')
    em.wait_vm_tag('V0', lgkm0=True); em.barrier()
    em.st.stamp('PV0')

def k1_pv(em, qh):
    nq = 5 if qh == 0 else 4
    q0 = 0 if qh == 0 else 5
    L = f'v{vLANE}'
    t0 = TMP[4]
    rf = cfg.rfrac / 100
    BF = [64, 84]
    def pv_reads(s, step, st):
        ops = []
        slot = s % NV
        base = vRB if slot < 2 else vRC
        off = (slot % 2) * 24576 + step * 12288
        for t in range(3):
            ops.append(f'ds_read_b64_tr_b16 {vr(PAF[st][t], 2)}, v{base[t]} offset:{off}')
            ops.append(f'ds_read_b64_tr_b16 {vr(PAF[st][t] + 2, 2)}, v{base[t]} offset:{off + 6144}')
        pa, po = vPA, ((2 * s + step) % 6) * 9216
        xs = [f'ds_read_b128 {vr(BF[st] + 4*j)}, v{pa} offset:{po + j * 1024}' for j in range(nq)]
        return ops[0:2] + xs[0:1] + ops[2:6] + xs[1:]
    OACC = OACC0 if qh == 0 else OACC1
    def mf(st, first):
        return [mfma(OACC[j*3+t], PAF[st][t], BF[st] + 4*j, None if first else OACC[j*3+t]) for j in range(nq) for t in range(3)]
    def sum_ops():
        S = SUM; ops = []
        ops += [f'v_mov_b32 v{MC}, 0', f'v_mov_b32 v{MC+1}, 0']
        ta = TMP[2]; tb = TMP[3]
        ops += [f'v_bfe_u32 v{ta}, {L}, 4, 1', f'v_lshlrev_b32 v{ta}, 10, v{ta}', f'v_bfe_u32 v{tb}, {L}, 5, 1', f'v_lshlrev_b32 v{tb}, 9, v{tb}',
                f'v_add_u32 v{ta}, v{ta}, v{tb}', f'v_and_b32 v{tb}, 15, {L}', f'v_lshlrev_b32 v{tb}, 5, v{tb}', f'v_add_u32 v{ta}, v{ta}, v{tb}',
                f's_lshl_b32 s{sT0}, s{sW}, 2', f's_add_u32 s{sT0}, s{sT0}, {SUMB}', f'v_add_u32 v{ta}, s{sT0}, v{ta}']
        for a in (0, 2, 4, 6): ops.append(f'v_permlane32_swap_b32 v{S+a}, v{S+a+1}')
        ops.append(f'v_permlane32_swap_b32 v{S+8}, v{MC}')
        for a in (0, 2, 4, 6): ops.append(f'v_add_f32 v{S+a}, v{S+a}, v{S+a+1}')
        ops.append(f'v_add_f32 v{S+8}, v{S+8}, v{MC}')
        for a in (0, 4): ops.append(f'v_permlane16_swap_b32 v{S+a}, v{S+a+2}')
        ops.append(f'v_permlane16_swap_b32 v{S+8}, v{MC+1}')
        for a in (0, 4): ops.append(f'v_add_f32 v{S+a}, v{S+a}, v{S+a+2}')
        ops.append(f'v_add_f32 v{S+8}, v{S+8}, v{MC+1}')
        for a in (0, 4, 8): ops.append(f'ds_write_b32 v{ta}, v{S+a} offset:{a * 512}')
        return ops
    def inv_ops():
        ta = TMP[2]; ops = []
        ops += [f'v_and_b32 v{ta}, 15, {L}', f'v_lshlrev_b32 v{ta}, 5, v{ta}', f'v_add_u32 v{ta}, {SUMB + q0 * 512}, v{ta}']
        for j in range(nq):
            ops += [f'ds_read_b128 {vr(16 + 8*j)}, v{ta} offset:{j * 512}', f'ds_read_b128 {vr(20 + 8*j)}, v{ta} offset:{j * 512 + 16}']
        for j in range(nq):
            r = 16 + 8*j
            ops += [f'v_add_f32 v{r}, v{r}, v{r+1}', f'v_add_f32 v{r+2}, v{r+2}, v{r+3}', f'v_add_f32 v{r+4}, v{r+4}, v{r+5}', f'v_add_f32 v{r+6}, v{r+6}, v{r+7}',
                    f'v_add_f32 v{r}, v{r}, v{r+2}', f'v_add_f32 v{r+4}, v{r+4}, v{r+6}', f'v_add_f32 v{r}, v{r}, v{r+4}', f'v_rcp_f32 v{MC+2*j}, v{r}']
        cap = Cap()
        for t in range(3):
            cap.op(f's_mul_i32 s{sT0}, s{sDG}, 3'); cap.op(f's_add_u32 s{sT0}, s{sT0}, {t}')
            cap.op(f's_lshr_b32 s{sT1}, s{sT0}, 2'); cap.op(f's_mul_i32 s{sT1}, s{sT1}, 40960')
            cap.op(f's_bfe_u32 s{sT2}, s{sT0}, 0x10001'); cap.op(f's_mul_i32 s{sT2}, s{sT2}, 9216'); cap.op(f's_add_u32 s{sT1}, s{sT1}, s{sT2}')
            cap.op(f's_and_b32 s{sT0}, s{sT0}, 1'); cap.op(f's_lshl_b32 s{sT0}, s{sT0}, 3')
            cap.op(f's_add_u32 s{sT0}, s{sT0}, s{sT1}'); cap.op(f's_add_u32 s{sT0}, s{sT0}, 20480')
            cap.op(f'v_add_u32 v{vRB[t]}, s{sT0}, v{vPA}')
        return ops + cap.ops
    sched = {0: [(1, 4), (1, 5)], 1: [(1, 6), (1, 7)], 2: [(1, 8)],
             3: [(2, 0), (2, 1)], 4: [(2, 2), (2, 3), (2, 4)], 5: [(2, 5), (2, 6)], 6: [(2, 7), (2, 8)],
             7: [(3, 0), (3, 1)], 8: [(3, 2), (3, 3), (3, 4)], 9: [(3, 5), (3, 6)], 10: [(3, 7), (3, 8)]}
    if qh == 1:
        sched = {1: [(1, 0), (1, 1)], 2: [(1, 2), (1, 3), (1, 4)], 3: [(1, 5), (1, 6)], 4: [(1, 7), (1, 8)],
                 5: [(2, 0), (2, 1)], 6: [(2, 2), (2, 3), (2, 4)], 7: [(2, 5), (2, 6)], 8: [(2, 7), (2, 8)],
                 9: [(3, 0), (3, 1)], 10: [(3, 2), (3, 3), (3, 4)], 11: [(3, 5), (3, 6)], 12: [(3, 7), (3, 8)]}
    def ex(h):
        o = sum([expops(kt, qt, qh) for kt, qt in sched.get(h, [])], [])
        if cfg.x_noexp: o = [x for x in o if x.startswith('ds_')]
        if cfg.x_nopw: o = [x for x in o if not x.startswith('ds_')]
        return o
    def wopre_ops(i):
        ta = TMP[2 + (i & 1)]
        ops = [f's_mul_i32 s{sT0}, s{sX}, 983040', f's_mul_i32 s{sT1}, s{sLOC}, 30720', f's_add_u32 s{sT0}, s{sT0}, s{sT1}', f's_add_u32 s{sT0}, s{sT0}, {i * 8192}',
               f'v_lshlrev_b32 v{ta}, 4, v0', f'v_add_u32 v{ta}, s{sT0}, v{ta}', f'v_min_u32 v{ta}, {7864320 - 16}, v{ta}',
               f'global_load_dwordx4 {vr(16)}, v{ta}, s[14:15]']
        return ops
    for o in pv_reads(0, 0, 0): em.op(o)
    for s in range(8):
        e = ex(2*s)
        if 2*s == 14: e = tail_setup_ops(qh)
        w = wopre_ops(s - 4) if cfg.wopre and 2*s in (8, 10) else []
        interleave(em, mf(0, s == 0), (pv_reads(s, 1, 1), 0, rf), (e, 0, cfg.efrac / 100), (w, 0.5, 0.51))
        if s < 7: em.wait_vm_tag(f'V{s+1}', lgkm0=True)
        else: em.wait_lgkm0()
        em.barrier()
        em.st.stamp(f'PB{s}')
        rd = pv_reads(s + 1, 0, 0) if s < 7 else []
        dm = v_dma_ops(em, s + NV) if s + NV <= 7 else []
        e = ex(2*s+1)
        if 2*s+1 == 13: e = sum_ops()
        if 2*s+1 == 15:
            e = inv_ops()
            if qh == 0: dm = tail_dma(em, 0) + tail_dma(em, 1)
        w = wopre_ops(s - 2) if cfg.wopre and 2*s+1 in (9, 11) else []
        interleave(em, mf(1, False), (dm, 0, 0.5 if s < 7 else 1), (rd, 0, rf + 0.1), (e, 0, 1), (w, 0.5, 0.51))
    late = tail_dma(em, 2) if qh == 0 else []
    main = []
    for j in range(nq):
        for t in range(3):
            a = OACC[j*3+t]
            m = MC + 2*j
            main += [f'v_pk_mul_f32 {vr(a,2)}, {vr(a,2)}, {vr(m,2)} op_sel_hi:[1,0]', f'v_pk_mul_f32 {vr(a+2,2)}, {vr(a+2,2)}, {vr(m,2)} op_sel_hi:[1,0]',
                     f'v_cvt_pk_bf16_f32 v{a}, v{a}, v{a+1}', f'v_cvt_pk_bf16_f32 v{a+1}, v{a+2}, v{a+3}',
                     f'ds_write_b64 v{vRB[t]}, {vr(a,2)} offset:{j * 1024}']
    interleave(em, main, (late, 0, 1))
    em.wait_vm_tag('T0', lgkm0=True); em.barrier()
    em.st.stamp('BO')
    if qh == 0:
        em.op(f's_cmp_lt_u32 s{sW}, 2')
        em.op('s_cbranch_scc0 L_tail1')
        st = em.save(); sn = (em.st.n, list(em.st.names))
        tail(em, 0)
        em.label('L_tail1')
        em.restore(st); em.st.n, em.st.names = sn[0], list(sn[1])
        tail(em, 1)
    else:
        tail(em, 2)

STG2 = 40960
vOFFS = [188, 189, 190, 191, 192]; vA2 = [193, 194, 195, 196, 197]; vB2 = 198
SD, SP, SPR, SOUT = SX, SWQ, SK, SV
def tail_setup_ops(qh):
    c = Cap(); L = f'v{vLANE}'
    t0, t1, t2, t3 = 199, 200, 201, 202
    if qh == 0:
        c.op(f's_mul_i32 s{sT0}, s{sX}, 983040'); c.op(f's_mul_i32 s{sT1}, s{sJ}, 320'); c.op(f's_add_u32 s{sT0}, s{sT0}, s{sT1}')
        srd(c, SD, 14, 15, f's{sT0}', 7864320)
        c.op(f's_sub_u32 s{SD+2}, s{SD+2}, s{sT0}')
        c.op(f's_mov_b32 s{sSTR}, 81920')
        hs = 245760
        c.op(f's_lshl_b32 s{sT2}, s{sW}, 4')
        c.op(f's_mov_b32 s{sT1}, 52429')
        for j in range(5):
            c.op(f'v_add_u32 v{t0}, {j * 64}, {L}')
            c.op(f'v_mul_lo_u32 v{t1}, v{t0}, s{sT1}')
            c.op(f'v_lshrrev_b32 v{t1}, 20, v{t1}')
            c.op(f'v_mul_u32_u24 v{t2}, 20, v{t1}')
            c.op(f'v_sub_u32 v{t2}, v{t0}, v{t2}')
            c.op(f'v_bfe_u32 v{t3}, v{t1}, 2, 1')
            c.op(f'v_lshlrev_b32 v{t3}, 1, v{t3}')
            c.op(f'v_xor_b32 v{t2}, v{t2}, v{t3}')
            c.op(f'v_lshlrev_b32 v{t2}, 4, v{t2}')
            c.op(f'v_add_u32 v{t1}, s{sT2}, v{t1}')
            c.op(f'v_mul_u32_u24 v{t1}, 1280, v{t1}')
            c.op(f'v_add_u32 v{vOFFS[j]}, v{t1}, v{t2}')
    else:
        c.op(f's_lshl_b32 s{sT0}, s{sB}, 5'); c.op(f's_lshl_b32 s{sT1}, s{sX}, 2'); c.op(f's_add_u32 s{sT0}, s{sT0}, s{sT1}')
        c.op(f's_mul_i32 s{sT0}, s{sT0}, {O_HEAD}')
        srd(c, SD, 12, 13, f's{sT0}', 4 * O_HEAD)
        c.op(f's_mov_b32 s{sSTR}, 18432')
        hs = O_HEAD
        c.op(f's_mul_i32 s{sT2}, s{sDG}, 5120')
        c.op(f'v_lshlrev_b32 v{t0}, 4, {L}')
        c.op(f'v_add_u32 v{t0}, s{sT2}, v{t0}')
        for j in range(5): c.op(f'v_add_u32 v{vOFFS[j]}, {j * 1024}, v{t0}')
    c.op(f's_mul_i32 s{sM0T}, s{sW}, 5120')
    for i in range(4):
        c.op(f's_add_u32 s{sT0}, s{sJ}, {i}'); c.op(f's_and_b32 s{sT0}, s{sT0}, 3'); c.op(f's_mul_i32 s{sHB+i}, s{sT0}, {hs}')
    c.op(f's_and_b32 s{sNH}, s{sW}, 1')
    c.op(f'v_lshrrev_b32 v{t0}, 2, {L}')
    c.op(f'v_mul_u32_u24 v{t0}, 320, v{t0}')
    c.op(f'v_and_b32 v{t1}, 3, {L}'); c.op(f'v_lshlrev_b32 v{t1}, 3, v{t1}')
    c.op(f'v_add_u32 v{t0}, v{t0}, v{t1}')
    c.op(f'v_bfe_u32 v{t1}, {L}, 4, 1')
    c.op(f's_mul_i32 s{sT0}, s{sNH}, 5')
    for t in range(5):
        c.op(f's_add_u32 s{sT1}, s{sT0}, {t}')
        c.op(f'v_xor_b32 v{t2}, s{sT1}, v{t1}')
        c.op(f'v_lshlrev_b32 v{t2}, 5, v{t2}')
        c.op(f'v_add_u32 v{vA2[t]}, v{t0}, v{t2}')
    c.op(f's_lshr_b32 s{sT0}, s{sW}, 1')
    c.op(f's_mov_b32 s{sT1}, 0x7350')
    c.op(f's_lshl_b32 s{sT0}, s{sT0}, 2')
    c.op(f's_lshr_b32 s{sQ0}, s{sT1}, s{sT0}')
    c.op(f's_and_b32 s{sQ0}, s{sQ0}, 15')
    c.op(f's_lshl_b32 s{sT0}, s{sQ0}, 10')
    c.op(f's_add_u32 s{sT0}, s{sT0}, 20480')
    c.op(f'v_lshlrev_b32 v{vB2}, 4, {L}')
    c.op(f'v_add_u32 v{vB2}, s{sT0}, v{vB2}')
    c.op(f's_lshl_b32 s{sT0}, s{sB}, 3'); c.op(f's_add_u32 s{sT0}, s{sT0}, s{sX}'); c.op(f's_lshl_b32 s{sT0}, s{sT0}, 7'); c.op(f's_add_u32 s{sT0}, s{sT0}, {FLAG_OFF + 4096}')
    c.op(f's_add_u32 s{sF1}, s12, s{sT0}'); c.op(f's_addc_u32 s{sF1+1}, s13, 0')
    c.op(f's_lshl_b32 s{sT0}, s{sLOC}, 7'); c.op(f's_add_u32 s{sT0}, s{sT0}, {FLAG_OFF + 16384}')
    c.op(f's_add_u32 s{sF2}, s12, s{sT0}'); c.op(f's_addc_u32 s{sF2+1}, s13, 0')
    c.op(f's_mul_i32 s{sT0}, s{sLOC}, {8 * PART2}'); c.op(f's_add_u32 s{sT0}, s{sT0}, {WS_PART}')
    srd(c, SPR, 12, 13, f's{sT0}', 8 * PART2)
    c.op(f's_mul_i32 s{sT1}, s{sX}, {PART2}'); c.op(f's_add_u32 s{sT0}, s{sT0}, s{sT1}')
    srd(c, SP, 12, 13, f's{sT0}', PART2)
    srd(c, SOUT, 54, 55, None, 1474560)
    return c.ops

def tail_dma(em, s, orole=False):
    ops = []
    sc = ' sc1' if (orole and cfg.sc) else ''
    for j in range(5):
        def f(j=j):
            em.op(f's_add_u32 m0, s{sM0T}, {(s % 3) * STG2 + j * 1024}')
            if j == 0:
                if s % 3 == 0: em.op(f's_mov_b32 s{sOFF}, s{sHB + s // 3}')
                else: em.op(f's_add_u32 s{sOFF}, s{sOFF}, s{sSTR}')
            em.op(f'buffer_load_dwordx4 v{vOFFS[j]}, {sr(SD,4)}, s{sOFF} offen{sc} lds', tag=f'T{s}')
        ops.append(f)
    return ops

def flag_store(em, base, idx_s, lab, wave):
    t0, t1 = 199, 200
    em.op(f's_cmp_eq_u32 s{sW}, {wave}')
    em.op(f's_cbranch_scc0 {lab}')
    em.begin_opt()
    em.op(f's_lshl_b32 s{sT0}, s{idx_s}, 2')
    em.op(f'v_mov_b32 v{t0}, s{sT0}')
    em.op(f'v_mov_b32 v{t1}, s{sTAG}')
    em.op('s_mov_b64 exec, 1')
    em.op(f'global_store_dword v{t0}, v{t1}, s[{base}:{base+1}] sc1')
    em.op('s_mov_b64 exec, -1')
    em.end_opt()
    em.label(lab)

def poll(em, base, mask, lab):
    t0, t1 = 201, 202
    em.op(f'v_and_b32 v{t0}, {mask}, v{vLANE}')
    em.op(f'v_lshlrev_b32 v{t0}, 2, v{t0}')
    em.op(f's_mov_b32 s{sCNT}, 0x20000')
    em.wait_vm0()
    em.label(lab)
    em.op(f'global_load_dword v{t1}, v{t0}, s[{base}:{base+1}] sc1')
    em.op(f's_sub_u32 s{sCNT}, s{sCNT}, 1')
    em.op(f's_cbranch_scc1 {lab}_done')
    em.wait_vm0()
    em.op(f'v_cmp_ne_u32 vcc, s{sTAG}, v{t1}')
    em.op('s_nop 4')
    em.op(f's_cbranch_vccz {lab}_done')
    em.op('s_sleep 1')
    em.op(f's_branch {lab}')
    em.label(f'{lab}_done')
    em.wait_vm0()

def tail(em, tv):
    nq = 3 if tv == 0 else 2
    orole = tv == 2
    L = f'v{vLANE}'
    rf = cfg.rfrac / 100
    sc = ' sc1' if cfg.sc else ''
    ACC2 = 16; AF = [76, 96]; BF = [116, 128]; CO = 140
    t0, t1, t2, t3 = 203, 204, 205, 206
    em.op(f'v_lshlrev_b32 v{t0}, 4, v0')
    em.op(f'v_add_u32 v{t1}, 20480, v{t0}')
    em.op(f'v_add_u32 v{t2}, {STG2 + 20480}, v{t0}')
    npc = 3 if tv == 0 else 2
    k = 0; sts = []
    for c in range(3):
        for i in range(npc):
            va, off = (t1, 0) if c == 0 else (t2, (c - 1) * STG2)
            em.op(f'ds_read_b128 {vr(CO + 4*k)}, v{va} offset:{off + i * 8192}')
            sts.append((CO + 4*k, c * 18432 + i * 8192)); k += 1
    def reads(step, st_):
        ops = []
        for t in range(5):
            ops.append(f'ds_read_b64_tr_b16 {vr(AF[st_] + 4*t, 2)}, v{vA2[t]} offset:{step * 10240}')
            ops.append(f'ds_read_b64_tr_b16 {vr(AF[st_] + 4*t + 2, 2)}, v{vA2[t]} offset:{step * 10240 + 5120}')
        xs = [f'ds_read_b128 {vr(BF[st_] + 4*j)}, v{vB2} offset:{step * 9216 + j * 1024}' for j in range(nq)]
        return ops[0:2] + xs + ops[2:]
    def mf(st_, first):
        return [mfma(ACC2 + 4*(t*nq+j), AF[st_] + 4*t, BF[st_] + 4*j, None if first else ACC2 + 4*(t*nq+j)) for t in range(5) for j in range(nq)]
    for r, off in sts:
        em.op(f's_mov_b32 s{sT0}, {off}')
        em.op(f'buffer_store_dwordx4 {vr(r)}, v{t0}, {sr(SO,4)}, s{sT0} offen{sc}', tag='CO')
    for o in reads(0, 0): em.op(o)
    carry = []
    for s in range(12):
        interleave(em, mf(0, s == 0), (reads(1, 1), 0, rf), (carry, 0.05, 0.95))
        carry = []
        if s < 11:
            if s == 0: em.wait_vm0(); em.wait_lgkm0()
            else: em.wait_vm_tag(f'T{s+1}', lgkm0=True)
            em.barrier()
            em.st.stamp(f'T{s}')
        if s == 0 and orole: flag_store(em, sF1, sJ, 'L_f1', 4)
        fill = []; dm = []
        if s < 11:
            d = STG2 if (s + 1) % 3 else -2 * STG2
            fill += [f'v_add_u32 v{r}, {d & 0xffffffff}, v{r}' for r in vA2 + [vB2]]
            fill += reads(0, 0)
        if s + 3 <= 11:
            if not orole or s >= 2:
                dm = tail_dma(em, s + 3, orole); dm, carry = dm[:3], dm[3:]
            elif s == 1:
                poll(em, sF1, 3, 'L_p1')
                em.st.stamp('poll')
                for f in tail_dma(em, 3, True): f()
                dm = tail_dma(em, 4, True)
        interleave(em, mf(1, False), (dm, 0.05, 0.95), (fill, 0, rf + 0.1))
    em.st.stamp('TP')
    em.op(f'v_and_b32 v{t1}, 15, {L}'); em.op(f'v_mul_u32_u24 v{t1}, 336, v{t1}')
    em.op(f'v_lshrrev_b32 v{t2}, 4, {L}'); em.op(f'v_lshlrev_b32 v{t2}, 3, v{t2}')
    em.op(f's_mul_i32 s{sT0}, s{sQ0}, {16 * 336}'); em.op(f's_mul_i32 s{sT1}, s{sNH}, 160'); em.op(f's_add_u32 s{sT0}, s{sT0}, s{sT1}')
    em.op(f'v_add3_u32 v{t1}, v{t1}, v{t2}, s{sT0}')
    em.op(f's_mov_b32 s{sT2}, 52429')
    pre = []
    for i in range(6):
        r = 140 + i
        pre += [f'v_add_u32 v{r}, {512 * i}, v0', f'v_mul_lo_u32 v{t2}, v{r}, s{sT2}', f'v_lshrrev_b32 v{t2}, 20, v{t2}', f'v_add_lshl_u32 v{r}, v{r}, v{t2}, 4']
    for o in pre: em.op(o)
    for t in range(5):
        for j in range(nq):
            a = ACC2 + 4*(t*nq+j)
            em.op(f'v_cvt_pk_bf16_f32 v{a}, v{a}, v{a+1}')
            em.op(f'v_cvt_pk_bf16_f32 v{a+1}, v{a+2}, v{a+3}')
            em.op(f'ds_write_b64 v{t1}, {vr(a,2)} offset:{j * 16 * 336 + t * 32}')
    em.wait_lgkm0(); em.barrier()
    for i in range(6): em.op(f'ds_read_b128 {vr(76 + 4*i)}, v{140 + i}')
    for i in range(6):
        em.op(f's_mov_b32 s{sT0}, {i * 8192}')
        em.op(f'buffer_store_dwordx4 {vr(76 + 4*i)}, v{t0}, {sr(SP,4)}, s{sT0} offen{sc}')
    em.op(f's_mul_i32 s{sT0}, s{sX}, 5760')
    em.op(f'v_add_u32 v{t1}, s{sT0}, v{t0}')
    em.op(f'v_mul_lo_u32 v{t2}, v0, s{sT2}'); em.op(f'v_lshrrev_b32 v{t2}, 20, v{t2}')
    em.op(f'v_mul_u32_u24 v{t2}, 960, v{t2}')
    em.op(f's_mul_i32 s{sT0}, s{sB}, 144'); em.op(f's_mul_i32 s{sT1}, s{sX}, 18'); em.op(f's_add_u32 s{sT0}, s{sT0}, s{sT1}')
    em.op(f's_mul_i32 s{sT0}, s{sT0}, 1280'); em.op(f's_mul_i32 s{sT1}, s{sJ}, 320'); em.op(f's_add_u32 s{sT0}, s{sT0}, s{sT1}')
    em.op(f'v_add3_u32 v{t2}, v{t2}, v{t0}, s{sT0}')
    em.op(f'v_mov_b32 v{t3}, 0x7ffffff0')
    em.op(f'v_cmp_gt_u32 vcc, 360, v0')
    em.op(f'v_cndmask_b32 v{t2}, v{t3}, v{t2}, vcc')
    em.wait_vm0(); em.barrier()
    em.st.stamp('TW')
    if tv == 2:
        flag_store(em, sF2, sX, 'L_f2', 7)
        em.op(f's_cmp_ge_u32 s{sW}, 6')
        em.op(f's_cbranch_scc1 L_fin2')
    poll(em, sF2, 7, f'L_p2_{tv}')
    em.st.stamp('TF')
    for x in range(8):
        em.op(f's_mov_b32 s{sT0}, {x * PART2}')
        em.op(f'buffer_load_dwordx4 {vr(16 + 4*x)}, v{t1}, {sr(SPR,4)}, s{sT0} offen{sc}')
    if tv == 0:
        em.op(f's_or_b32 s{sT0}, s{sH}, s{sW}')
        em.op(f's_cmp_eq_u32 s{sT0}, 0')
        em.op('s_cbranch_scc0 L_nw')
        em.begin_opt()
        em.op(f's_lshl_b32 s{sT0}, s{sB}, 8'); em.op(f's_add_u32 s{sT0}, s{sT0}, {FLAG_OFF}')
        em.op(f'v_mov_b32 v60, s{sT0}'); em.op(f'v_mov_b32 v61, s{sTAG}')
        em.op('s_mov_b64 exec, 1')
        em.op('global_store_dword v60, v61, s[12:13]')
        em.op('s_mov_b64 exec, -1')
        em.end_opt()
        em.label('L_nw')
    A = 64
    for x in range(8):
        for d in range(4):
            r = 16 + 4*x + d
            if x == 0:
                em.op(f'v_lshlrev_b32 v{A+2*d}, 16, v{r}'); em.op(f'v_and_b32 v{A+2*d+1}, 0xffff0000, v{r}')
            else:
                em.op(f'v_lshlrev_b32 v{A+8}, 16, v{r}'); em.op(f'v_and_b32 v{A+9}, 0xffff0000, v{r}')
                em.op(f'v_pk_add_f32 {vr(A+2*d,2)}, {vr(A+2*d,2)}, {vr(A+8,2)}')
    for d in range(4): em.op(f'v_cvt_pk_bf16_f32 v{A+d}, v{A+2*d}, v{A+2*d+1}')
    em.op(f'buffer_store_dwordx4 {vr(A)}, v{t2}, {sr(SOUT,4)}, 0 offen')
    em.st.stamp('TL')
    if tv == 2: em.label('L_fin2')
    if cfg.diag: em.wait_vm0()
    em.st.flush(12, 0, sW, 244)
    em.op('s_endpgm')

def kernel_header(name):
    return f'.globl {name}\n.p2align 8\n.type {name},@function\n{name}:\n'
def kernel_desc(name, vgpr, sgpr=102):
    return f'''.amdhsa_kernel {name}
  .amdhsa_next_free_vgpr {vgpr}
  .amdhsa_next_free_sgpr {sgpr}
  .amdhsa_accum_offset {(vgpr + 3) // 4 * 4}
  .amdhsa_group_segment_fixed_size 0
  .amdhsa_kernarg_size 64
  .amdhsa_user_sgpr_count 2
  .amdhsa_user_sgpr_kernarg_segment_ptr 1
  .amdhsa_system_sgpr_workgroup_id_x 1
.end_amdhsa_kernel
'''

def gen_k1():
    em = Em()
    k1_prologue(em)
    st0 = em.save(); sn0 = (em.st.n, list(em.st.names))
    em.label('k1_body_start')
    stq = {}
    for v in (0, 2, 1, 3):
        qh, typ = v >> 1, v & 1
        if v: em.label(f'L_qp{v}')
        em.restore(st0); em.st.n, em.st.names = sn0[0], list(sn0[1])
        k1_qproj(em, qh, typ)
        stq[v] = em.save(); snq = (em.st.n, list(em.st.names))
        if v in (0, 1): em.op(f's_branch L_qk{typ}')
        else:
            assert [e[0] for e in stq[v][2]] == [e[0] for e in stq[v - 2][2]], (stq[v][2], stq[v-2][2])
            em.label(f'L_qk{typ}')
            em.hist = []
            k1_qk(em, typ)
            stk = em.save(); snk = (em.st.n, list(em.st.names))
            if typ == 0:
                tags0 = [e[0] for e in stk[2]]
                em.op('s_branch L_sm0')
            else:
                assert [e[0] for e in stk[2]] == tags0, (tags0, stk[2])
    em.label('L_sm0')
    em.hist = []
    em.op(f's_cmp_lt_u32 s{sW}, 4')
    em.op('s_cbranch_scc0 L_pv1')
    stp = em.save(); snp = (em.st.n, list(em.st.names))
    k1_sm0(em, 0); k1_pv(em, 0)
    em.label('L_pv1')
    em.restore(stp); em.st.n, em.st.names = snp[0], list(snp[1])
    k1_sm0(em, 1); k1_pv(em, 1)
    em.label('k1_body_end')
    em.label('L_k1_exit')
    em.op('s_endpgm')
    return em

def main():
    ref = open('cdna_kernels/' + NAME + '.s.ref').read().split('\n')
    head = [l for l in ref[:9]]
    k1 = gen_k1()
    KN = NAME + '_kernel'
    out = '\n'.join(head) + '\n'
    out += f'; @launch grid=(256,1,1) block=(512,1,1) lds={LDS1}\n'
    out += '.amdgcn_target "amdgcn-amd-amdhsa--gfx950"\n.text\n'
    out += kernel_header(KN) + k1.text()
    out += '.section .rodata,"a"\n.p2align 6\n' + kernel_desc(KN, 256)
    open(sys.argv[1], 'w').write(out)
    print('k1 instrs', k1.count, 'nops', k1.nops, file=sys.stderr)
main()
```

```python
import sys, struct, math
from em import Em, interleave, emit

NAME = 'standalone__gqa_block_cached__near_ridge'
def fbits(x): return struct.unpack('<I', struct.pack('<f', x))[0]

class Cfg:
    nt_kv = True
    nt_w = False
    nt_k2 = False
    two_types = True
    pre = True
    code_pre = True
    diag = False
    pk = True
    rfrac = 60
    prio = 0
    x_noexp = 0
    x_nopw = 0
    efrac = 95
    loopb = -1
    st = 0
    dbg = 0
    x_delay = 0
    wopre = 1
    sc = 1
    x_nobar = 0
    x_nord = 0
    x_nodma = 0
cfg = Cfg()
cfg.pvst = (3,7); cfg.qst = (0,8,)
if 'pvall=1' in sys.argv: sys.argv.remove('pvall=1'); cfg.pvst = (0,1,2,3,4,5,6,7); cfg.qst = (); cfg.fewst = True
else: cfg.fewst = False
for a in sys.argv[2:]:
    k, v = a.split('='); setattr(cfg, k, type(getattr(cfg, k))(int(v)))
STSETS = {0: 'S0 BQ BM PV0 BO T0 T2 TP TW TF', 1: 'ka pi si S0 B0 B8 BQ K0 K1 QKend BM exp0 PV0', 2: 'PV0 PB0 PB1 PB2 PB3 PB4 PB5 PB6 PB7 BO', 3: 'BO T0 T1 poll T2 T3 T10 TP TW TF', 4: 'K0 K1 QKend BM exp0 PV0 PB3 PB7 BO T0'}
cfg.stlist = ['rt0', 'start'] + STSETS[cfg.st].split()[:10] + ['end', 'rt_end']
cfg.pvst = range(8); cfg.qst = range(10)

def vr(b, n=4): return f'v[{b}:{b + n - 1}]' if n > 1 else f'v{b}'
def sr(b, n): return f's[{b}:{b + n - 1}]'
MF = 'v_mfma_f32_16x16x32_bf16'
def mfma(d, a, b, c=None):
    return f'{MF} {vr(d)}, {vr(a)}, {vr(b)}, ' + ('0' if c is None else vr(c))

FLAG_OFF = 48 << 20
PART2 = 46080
O_HEAD = 55296
WS_PART = 16 << 20
PART_TILE = 90 * 1024

def srd(em, d, base_lo, base_hi, off_sgpr, size):
    if off_sgpr is None:
        em.op(f's_mov_b32 s{d}, s{base_lo}'); em.op(f's_mov_b32 s{d+1}, s{base_hi}')
    else:
        em.op(f's_add_u32 s{d}, s{base_lo}, {off_sgpr}'); em.op(f's_addc_u32 s{d+1}, s{base_hi}, 0')
    em.op(f's_mov_b32 s{d+2}, {size}')
    em.op(f's_mov_b32 s{d+3}, 0x20000')

_lab = [0]
DIAG_OFF = 64 << 20
class Stamps:
    def __init__(self, em):
        self.em = em; self.n = 0; self.names = []
        if cfg.diag:
            for i in range(len(cfg.stlist)): em.op(f's_mov_b32 s{60 + 2*i}, 0')
    def stamp(self, name, real=False):
        if not cfg.diag or name not in cfg.stlist: return
        em = self.em; i = cfg.stlist.index(name)
        em.wait_lgkm0()
        em.op(('s_memrealtime' if real else 's_memtime') + f' s[{60 + 2*i}:{61 + 2*i}]')
        em.op('s_waitcnt lgkmcnt(0)')
    def flush(self, ws_lo, kidx, wave_s, tv):
        if not cfg.diag: return
        em = self.em
        self.stamp('end'); self.stamp('rt_end', real=True)
        if cfg.dbg:
            _lab[0] += 1
            em.op('s_load_dwordx2 s[56:57], s[0:1], 48')
            em.op(f's_and_b32 s58, s2, 0xdf'); em.op(f's_or_b32 s58, s58, s{wave_s}'); em.op('s_cmp_eq_u32 s58, 0')
            em.op('s_waitcnt lgkmcnt(0)')
            em.op(f's_cbranch_scc0 L_dbg{_lab[0]}')
            em.op(f'v_mov_b32 v{tv}, s2')
            for k, i in enumerate([2, 3, 4, 13, 6, 9, 11, 12]):
                em.op(f's_sub_u32 s58, s{60 + 2*i}, s{60 if i == 13 else 62}')
                em.op(f'v_mov_b32 v{tv+1}, s58')
                em.op(f'global_store_dword v{tv}, v{tv+1}, s[56:57] offset:{4*k}')
            em.label(f'L_dbg{_lab[0]}')
            return
        em.op(f's_lshl_b32 s56, s2, 3'); em.op(f's_add_u32 s56, s56, s{wave_s}'); em.op('s_lshl_b32 s56, s56, 7')
        em.op(f's_add_u32 s56, s56, {DIAG_OFF + (kidx << 20)}')
        em.op(f's_add_u32 s56, s{ws_lo}, s56'); em.op(f's_addc_u32 s57, s{ws_lo+1}, 0')
        em.op(f'v_mov_b32 v{tv}, 0')
        for i in range(len(cfg.stlist)):
            em.op(f'v_mov_b32 v{tv+1}, s{60 + 2*i}')
            em.op(f'global_store_dword v{tv}, v{tv+1}, s[56:57] offset:{4*i}')
        print('stamps', kidx, cfg.stlist, file=sys.stderr)

SX, SWQ, SK, SV, SO = 16, 20, 24, 28, 32
sW, sW3072, sW1024, sTYPE, sOFF, sT0, sT1, sT2, sC, sB, sH, sJ, sLOC, sX = 36, 37, 38, 39, 40, 41, 42, 43, 44, 52, 46, 47, 48, 53
vLANE, vXO, vWO, vK0, vK1, vVO = 1, 2, 3, 4, 5, 6
vRA = [7, 8]
vRB = [9, 10, 11]
vRC = [12, 13, 14]
vT = 15
vPA, vPB, vPW, vMS = 240, 241, 242, 243
TMP = list(range(244, 256))
STG = 43008
PBASE, VBASE, MAXB, SUMB = 0, 55296, 153600, 155648
NV = 4
LDS1 = SUMB + 12 * 512
KSP = 16
def KR0(p): return 20 + 8 * p
def KR1(p): return 24 + 8 * p
def KT(p): return KSP if p == 0 else KR1(p - 1)
def kop(kt, ks):
    p = (kt // 2) * 6 + (ks // 2) * 2 + (kt % 2)
    return KR0(p) if ks % 2 == 0 else KT(p)
def sreg(kt, qt):
    if kt < 2: return 116 + 4 * (qt * 2 + kt)
    i = qt * 2 + (kt - 2)
    return 16 + 4 * i if i < 12 else 188 + 4 * (i - 12)
ACC = 116
MC = 212
SUM = 221
QF = 224
OACC0 = [116 + 8*i for i in range(9)] + [120, 128, 136, 144, 230, 234]
OACC1 = [116 + 8*i for i in range(9)] + [230, 234, 100]
PAF = [[248, 252, 2], [104, 108, 112]]
NEXP1 = 4


def k_load_ops(em, half):
    nt = ' nt' if cfg.nt_kv else ''
    ops = []
    for c in range(3):
        for k in range(2):
            p = half * 6 + c * 2 + k
            kt = half * 2 + k
            for (dst, va) in ((KR0(p), vK0), (KR1(p), vK1)):
                def f(dst=dst, va=va, kt=kt, c=c):
                    em.op(f's_mov_b32 s{sOFF}, {kt * 6144}')
                    em.op(f'buffer_load_dwordx4 {vr(dst)}, v{va}, {sr(SK,4)}, s{sOFF} offen offset:{c*128}{nt}', tag=f'K{half}')
                ops.append(f)
    return ops

def k_fix_ops(half):
    ops = []
    for pp in range(6):
        p = half * 6 + pp
        for d in range(4):
            r0, r1, t = KR0(p) + d, KR1(p) + d, KT(p) + d
            ops.append(f'v_mov_b32_dpp v{t}, v{r0} row_ror:8 row_mask:0xf bank_mask:0x3')
            ops.append(f'v_mov_b32_dpp v{t}, v{r1} row_ror:8 row_mask:0xf bank_mask:0xc')
            ops.append(f'v_mov_b32_dpp v{r0}, v{r1} quad_perm:[0,1,2,3] row_mask:0xf bank_mask:0xc')
    return ops

def stage_dma_ops(em, s, qh):
    nt = ' nt' if cfg.nt_w else ''
    slot = (s % 3) * STG
    ops = []
    for c in range(3):
        def f(c=c):
            em.op(f's_add_u32 m0, s{sW3072}, {slot + c * 896}')
            em.op(f's_mov_b32 s{sOFF}, {s * 786432}')
            em.op(f'buffer_load_dwordx4 v{vWO}, {sr(SWQ,4)}, s{sOFF} offen offset:{c*128}{nt} lds', tag=f'S{s}')
        ops.append(f)
    for j in range(2):
        def f(j=j):
            em.op(f's_add_u32 m0, s{sW1024}, {slot + j * 8192}')
            em.op(f's_mov_b32 s{sOFF}, {s * 128 + j * 81920}')
            em.op(f'buffer_load_dwordx4 v{vXO}, {sr(SX,4)}, s{sOFF} offen{nt} lds', tag=f'S{s}')
        ops.append(f)
    if qh == 1:
        def f():
            _lab[0] += 1
            lab = f'L_x{_lab[0]}'
            em.op(f's_cmp_lt_u32 s{sW}, 6')
            em.op(f's_cbranch_scc0 {lab}')
            em.begin_opt()
            em.op(f's_add_u32 m0, s{sW1024}, {slot + 12288}')
            em.op(f's_mov_b32 s{sOFF}, {s * 128 + 122880}')
            em.op(f'buffer_load_dwordx4 v{vXO}, {sr(SX,4)}, s{sOFF} offen{nt} lds', tag=f'S{s}')
            em.end_opt()
            em.label(lab)
        ops.insert(0, f)
    return ops

def v_dma_ops(em, s):
    nt = ' nt' if cfg.nt_kv else ''
    ops = []
    for c in range(3):
        def f(c=c):
            em.op(f's_add_u32 m0, s{sW3072}, {VBASE + (s % NV) * 24576 + c * 896}')
            em.op(f's_mov_b32 s{sOFF}, {(256 * (s & 1) + 16 * (s >> 1)) * 384}')
            em.op(f'buffer_load_dwordx4 v{vVO}, {sr(SV,4)}, s{sOFF} offen offset:{c*128}{nt} lds', tag=f'V{s}')
        ops.append(f)
    return ops

sDG = 49
sTAG, sSTR, sF1, sF2, sHB, sM0T, sQ0, sNH, sCNT = 88, 89, 90, 92, 94, 98, 99, 100, 101
def k1_prologue(em):
    em.op('s_cmp_ge_u32 s2, 256')
    em.op('s_cbranch_scc1 L_k1_exit')
    em.st = Stamps(em); em.st.stamp('rt0', real=True); em.st.stamp('start')
    if cfg.x_delay:
        em.op(f's_mov_b32 s58, {cfg.x_delay}')
        em.label('L_delay')
        for i in range(4): em.op(mfma(16 + 4*i, 100, 104, 16 + 4*i))
        em.op('s_sub_u32 s58, s58, 1'); em.op('s_cmp_lg_u32 s58, 0'); em.op('s_cbranch_scc1 L_delay')
        em.op('s_nop 15')
    em.op('s_load_dwordx8 s[4:11], s[0:1], 0')
    em.op('s_load_dwordx2 s[12:13], s[0:1], 56')
    em.op('s_load_dwordx2 s[14:15], s[0:1], 32')
    em.op('s_load_dwordx2 s[54:55], s[0:1], 40')
    em.op(f'v_and_b32 v{vLANE}, 63, v0')
    em.op(f'v_lshrrev_b32 v{vT}, 6, v0')
    em.op(f's_and_b32 s{sX}, s2, 7')
    em.op(f's_lshr_b32 s{sLOC}, s2, 3')
    em.op(f'v_readfirstlane_b32 s{sW}, v{vT}')
    t0, t1, t2, t3, t4 = TMP[:5]
    L = f'v{vLANE}'
    if cfg.code_pre:
        em.op('s_getpc_b64 s[50:51]')
        em.label('L_k1_pc')
        em.op('s_add_u32 s50, s50, k1_body_start-L_k1_pc')
        em.op('s_addc_u32 s51, s51, 0')
        em.op(f's_and_b32 s{sT1}, s{sLOC}, 15')
        em.op(f's_lshl_b32 s{sT1}, s{sT1}, 13')
        em.op(f'v_lshlrev_b32 v{t3}, 4, v0')
        em.op(f'v_add_u32 v{t4}, s{sT1}, v{t3}')
        em.op(f'v_min_u32 v{t4}, k1_body_end-k1_body_start-16, v{t4}')
        em.op(f'global_load_dwordx4 {vr(116)}, v{t4}, s[50:51]')
    else:
        em.op(f'v_lshlrev_b32 v{t3}, 4, v0')
    em.op(f's_and_b32 s{sJ}, s{sLOC}, 3')
    em.op(f's_lshr_b32 s{sB}, s{sLOC}, 2')
    em.op(f's_lshl_b32 s{sH}, s{sX}, 2')
    em.op(f's_add_u32 s{sH}, s{sH}, s{sJ}')
    nt = ' nt' if cfg.nt_w else ''
    em.op(f's_and_b32 s{sTYPE}, s{sB}, 1')
    if cfg.pre:
        em.op(f's_lshr_b32 s{sT2}, s{sB}, 1'); em.op(f's_lshl_b32 s{sT2}, s{sT2}, 2'); em.op(f's_add_u32 s{sT2}, s{sT2}, s{sJ}')
        em.op(f's_lshl_b32 s{sT0}, s{sW}, 6'); em.op(f's_lshl_b32 s{sT1}, s{sT2}, 2'); em.op(f's_add_u32 s{sT0}, s{sT0}, s{sT1}')
        em.op(f's_mul_i32 s{sT0}, s{sT0}, 12288'); em.op(f's_mul_i32 s{sT1}, s{sX}, 1536'); em.op(f's_add_u32 s{sT0}, s{sT0}, s{sT1}')
        em.op(f'v_lshrrev_b32 v{t0}, 5, {L}'); em.op(f'v_mul_u32_u24 v{t0}, 12288, v{t0}')
        em.op(f'v_and_b32 v{t1}, 31, {L}'); em.op(f'v_lshlrev_b32 v{t1}, 4, v{t1}')
        em.op(f'v_add3_u32 v{t0}, v{t0}, v{t1}, s{sT0}')
        em.op(f's_and_b32 s{sT0}, s{sB}, 6'); em.op(f's_mul_i32 s{sT0}, s{sT0}, 144'); em.op(f's_mul_i32 s{sT1}, s{sJ}, 36'); em.op(f's_add_u32 s{sT0}, s{sT0}, s{sT1}')
        em.op(f's_mul_i32 s{sT0}, s{sT0}, 1280'); em.op(f's_lshl_b32 s{sT1}, s{sW}, 7'); em.op(f's_add_u32 s{sT0}, s{sT0}, s{sT1}')
        em.op(f'v_lshrrev_b32 v{t1}, 3, {L}'); em.op(f'v_mul_u32_u24 v{t1}, 1280, v{t1}')
        em.op(f'v_and_b32 v{t2}, 7, {L}'); em.op(f'v_lshlrev_b32 v{t2}, 4, v{t2}')
        em.op(f'v_add3_u32 v{t1}, v{t1}, v{t2}, s{sT0}')
        em.op(f's_mul_i32 s{sT0}, s{sLOC}, 46080')
        em.op(f'v_add_u32 v{t3}, s{sT0}, v{t3}')
    em.op('s_waitcnt lgkmcnt(0)')
    em.st.stamp('ka')
    em.op(f's_lshl_b32 s{sT0}, s{sB}, 8'); em.op(f's_add_u32 s{sT0}, s{sT0}, {FLAG_OFF}')
    em.op(f's_load_dword s{sTAG}, s[12:13], s{sT0}')
    if cfg.pre:
        em.op(f's_cmp_eq_u32 s{sTYPE}, 1')
        em.op(f's_cbranch_scc0 L_pre1')
        em.begin_opt()
        def stage_pre(a, b, tw, tx):
            ops = []
            for pr in range(2):
                for c in range(3): ops.append([f'global_load_dwordx4 {vr(120)}, v{tw}, s[10:11] offset:{c*512}{nt}'] + ([f'v_add_u32 v{tw}, 24576, v{tw}'] if c == 2 else []))
            for n in range(5): ops.append([f'global_load_dwordx4 {vr(120)}, v{tx}, s[4:5]{nt}', f'v_add_u32 v{tx}, 10240, v{tx}'])
            return ops
        em.op(f'v_mov_b32 v{t2}, v{t0}'); em.op(f'v_mov_b32 v{t4}, v{t1}')
        for g in stage_pre(0, 11, t2, t4):
            for o in g: em.op(o)
        em.op(f's_lshr_b32 s{sT0}, s{sW}, 2'); em.op(f's_add_u32 s{sT0}, s{sT0}, 8'); em.op(f's_sub_u32 s{sT0}, s{sT0}, s{sW}')
        em.op(f's_mul_i32 s{sT1}, s{sT0}, {64 * 12288}')
        em.op(f's_bfe_u32 s{sT2}, s{sW}, 0x10001'); em.op(f's_mul_i32 s{sT2}, s{sT2}, 24576'); em.op(f's_add_u32 s{sT1}, s{sT1}, s{sT2}')
        em.op(f's_and_b32 s{sT2}, s{sW}, 1'); em.op(f's_lshl_b32 s{sT2}, s{sT2}, 9'); em.op(f's_add_u32 s{sT1}, s{sT1}, s{sT2}')
        em.op(f'v_add_u32 v{t0}, s{sT1}, v{t0}')
        em.op(f'global_load_dwordx4 {vr(120)}, v{t0}, s[10:11]{nt}')
        em.op(f'global_load_dwordx4 {vr(120)}, v{t0}, s[10:11] offset:512{nt}')
        em.op(f's_lshl_b32 s{sT1}, s{sT0}, 7'); em.op(f's_and_b32 s{sT2}, s{sW}, 3'); em.op(f's_mul_i32 s{sT2}, s{sT2}, {9 * 1280}'); em.op(f's_add_u32 s{sT1}, s{sT1}, s{sT2}')
        em.op(f'v_add_u32 v{t1}, s{sT1}, v{t1}')
        em.op(f'global_load_dwordx4 {vr(120)}, v{t1}, s[4:5]{nt}')
        em.op(f'global_load_dwordx4 {vr(120)}, v{t1}, s[4:5] offset:1280{nt}')
        for i in range(6):
            if i == 5: em.op(f'v_min_u32 v{t3}, {1474560 - 16}, v{t3}')
            em.op(f'global_load_dwordx4 {vr(120)}, v{t3}, s[4:5]{nt}')
            if i < 5: em.op(f'v_add_u32 v{t3}, 8192, v{t3}')
        em.end_opt()
        em.label('L_pre1')
    em.st.stamp('pi')
    em.op(f's_and_b32 s{sDG}, s{sW}, 3')
    em.op(f's_mul_i32 s{sW3072}, s{sW}, 3072')
    em.op(f's_lshl_b32 s{sW1024}, s{sW}, 10')
    em.op(f's_add_u32 s{sW1024}, s{sW1024}, 24576')
    em.op(f's_mov_b32 s{sC}, {fbits(192 ** -0.5 * math.log2(math.e))}')
    em.op(f'v_lshrrev_b32 v{t0}, 3, {L}')
    em.op(f'v_and_b32 v{t1}, 7, {L}')
    em.op(f'v_lshrrev_b32 v{t2}, 4, {L}')
    em.op(f's_lshl_b32 s{sT1}, s{sB}, 5'); em.op(f's_add_u32 s{sT1}, s{sT1}, s{sH}')
    em.op(f's_mul_i32 s{sT0}, s{sT1}, 196608')
    srd(em, SK, 6, 7, f's{sT0}', 196608); srd(em, SV, 8, 9, f's{sT0}', 196608)
    em.op(f's_mul_i32 s{sT0}, s{sT1}, {O_HEAD}'); srd(em, SO, 12, 13, f's{sT0}', O_HEAD)
    em.op(f'v_and_b32 v{t3}, 1, v{t0}')
    em.op(f'v_lshlrev_b32 v{t3}, 2, v{t3}')
    em.op(f'v_add_u32 v{t3}, v{t3}, v{t2}')
    em.op(f'v_lshlrev_b32 v{t3}, 4, v{t3}')
    em.op(f's_lshl_b32 s{sT2}, s{sW}, 6')
    em.op(f'v_add_u32 v{t4}, s{sT2}, v{t1}')
    em.op(f'v_mul_u32_u24 v{t4}, 384, v{t4}')
    em.op(f'v_add_u32 v{vK0}, v{t4}, v{t3}')
    em.op(f'v_xor_b32 v{t3}, 64, v{t3}')
    em.op(f'v_add_u32 v{vK1}, v{t4}, v{t3}')
    em.op(f'v_add_u32 v{vK1}, {8 * 384}, v{vK1}')
    if cfg.two_types:
        em.op(f's_cmp_eq_u32 s{sTYPE}, 1')
        em.op('s_cbranch_scc0 L_nok1')
        em.begin_opt()
        for f in k_load_ops(em, 0): f()
        em.end_opt()
        em.label('L_nok1')
    em.op(f's_mul_i32 s{sT0}, s{sB}, 184320'); srd(em, SX, 4, 5, f's{sT0}', 184320)
    em.op(f's_mul_i32 s{sT0}, s{sH}, 384'); srd(em, SWQ, 10, 11, f's{sT0}', 7864320)
    em.op(f's_sub_u32 s{SWQ+2}, s{SWQ+2}, s{sT0}')
    em.op(f's_and_b32 s{sT0}, s{sW}, 1')
    em.op(f's_lshl_b32 s{sT1}, s{sT0}, 2')
    em.op(f'v_add_u32 v{t3}, s{sT1}, v{t2}')
    em.op(f'v_xor_b32 v{t3}, v{t3}, v{t1}')
    em.op(f'v_lshlrev_b32 v{t3}, 4, v{t3}')
    em.op(f's_lshl_b32 s{sT2}, s{sW}, 3')
    em.op(f'v_add_u32 v{t4}, s{sT2}, v{t0}')
    em.op(f'v_mul_u32_u24 v{vXO}, 1280, v{t4}')
    em.op(f'v_add_u32 v{vXO}, v{vXO}, v{t3}')
    em.op(f'v_and_b32 v{t3}, 1, v{t2}')
    em.op(f'v_lshlrev_b32 v{t3}, 1, v{t3}')
    em.op(f'v_add_u32 v{t3}, s{sT1}, v{t3}')
    em.op(f'v_xor_b32 v{t3}, v{t3}, v{t1}')
    em.op(f'v_lshlrev_b32 v{t3}, 4, v{t3}')
    em.op(f'v_mul_u32_u24 v{vWO}, 12288, v{t4}')
    em.op(f'v_add_u32 v{vWO}, v{vWO}, v{t3}')
    em.op(f's_lshr_b32 s{sT1}, s{sW}, 1'); em.op(f's_lshl_b32 s{sT1}, s{sT1}, 6')
    em.op(f's_lshl_b32 s{sT0}, s{sT0}, 3'); em.op(f's_add_u32 s{sT0}, s{sT0}, s{sT1}')
    em.op(f'v_add_u32 v{t3}, s{sT0}, v{t0}')
    em.op(f'v_mul_u32_u24 v{vVO}, 384, v{t3}')
    em.op(f'v_lshlrev_b32 v{t3}, 1, v{t2}')
    em.op(f'v_xor_b32 v{t3}, v{t3}, v{t1}')
    em.op(f'v_lshlrev_b32 v{t3}, 4, v{t3}')
    em.op(f'v_add_u32 v{vVO}, v{vVO}, v{t3}')
    em.op('s_waitcnt lgkmcnt(0)')
    em.op(f's_add_u32 s{sTAG}, s{sTAG}, 1')
    em.barrier()
    em.op(f's_lshr_b32 s{sT0}, s{sW}, 2'); em.op(f's_lshl_b32 s{sT0}, s{sT0}, 1'); em.op(f's_or_b32 s{sT0}, s{sT0}, s{sTYPE}')
    for v in (1, 2, 3):
        em.op(f's_cmp_eq_u32 s{sT0}, {v}')
        em.op(f's_cbranch_scc1 L_qp{v}')

def tr_addr(em, dst, t, base, fmode):
    t0, t1, t2, t3 = TMP[:4]
    L = f'v{vLANE}'
    em.op(f's_mul_i32 s{sT0}, s{sDG}, 3'); em.op(f's_add_u32 s{sT0}, s{sT0}, {t}')
    em.op(f's_lshr_b32 s{sT1}, s{sT0}, 2'); em.op(f's_lshl_b32 s{sT1}, s{sT1}, 10')
    em.op(f's_add_u32 s{sT1}, s{sT1}, {base}')
    em.op(f's_and_b32 s{sT0}, s{sT0}, 3')
    em.op(f'v_lshrrev_b32 v{t0}, 4, {L}')
    em.op(f'v_bfe_u32 v{t1}, {L}, 2, 2')
    em.op(f'v_and_b32 v{t2}, 1, v{t0}')
    em.op(f'v_lshlrev_b32 v{t2}, 1, v{t2}')
    em.op(f'v_lshrrev_b32 v{t3}, 1, v{t1}')
    em.op(f'v_add_u32 v{t3}, v{t3}, v{t2}')
    em.op(f'v_xor_b32 v{t3}, s{sT0}, v{t3}')
    em.op(f'v_lshlrev_b32 v{t3}, 5, v{t3}')
    em.op(f'v_lshlrev_b32 v{dst}, 7, v{t1}')
    em.op(f'v_add_u32 v{dst}, v{dst}, v{t3}')
    if fmode == 'w':
        em.op(f'v_mul_u32_u24 v{t3}, 3072, v{t0}')
    else:
        em.op(f'v_lshlrev_b32 v{t2}, 8, v{t2}')
        em.op(f'v_add_u32 v{dst}, v{dst}, v{t2}')
        em.op(f'v_lshrrev_b32 v{t3}, 1, v{t0}')
        em.op(f'v_mul_u32_u24 v{t3}, 3072, v{t3}')
    em.op(f'v_add_u32 v{dst}, v{dst}, v{t3}')
    em.op(f'v_and_b32 v{t3}, 3, {L}')
    em.op(f'v_lshlrev_b32 v{t3}, 3, v{t3}')
    em.op(f'v_add_u32 v{dst}, v{dst}, v{t3}')
    em.op(f'v_add_u32 v{dst}, s{sT1}, v{dst}')

class Cap:
    def __init__(self): self.ops = []
    def op(self, t, tag=None): self.ops.append(t)

def k1_qproj(em, qh, typ):
    nq = 5 if qh == 0 else 4
    q0 = 0 if qh == 0 else 5
    L = f'v{vLANE}'
    t0, t1, t2, t3, t4, t5 = TMP[:6]
    rf = cfg.rfrac / 100
    if cfg.prio and qh == 1: em.op('s_setprio 1')
    for f in stage_dma_ops(em, 0, qh): f()
    em.barrier()
    for f in stage_dma_ops(em, 1, qh): f()
    em.st.stamp('si')
    em.op(f'v_lshlrev_b32 v{t3}, 2, v0')
    em.op(f'v_add_u32 v{t3}, {MAXB}, v{t3}')
    em.op(f'v_mov_b32 v{t4}, 0xff800000')
    em.op(f'ds_write_b32 v{t3}, v{t4}')
    em.op(f'v_and_b32 v{vMS}, 15, {L}')
    em.op(f'v_lshlrev_b32 v{vMS}, 2, v{vMS}')
    em.op(f'v_add_u32 v{vMS}, {MAXB}, v{vMS}')
    em.op(f'v_bfe_u32 v{t0}, {L}, 3, 1'); em.op(f'v_lshlrev_b32 v{t0}, 10, v{t0}')
    em.op(f'v_and_b32 v{t1}, 7, {L}'); em.op(f'v_lshlrev_b32 v{t1}, 7, v{t1}')
    em.op(f'v_add_u32 v{t0}, v{t0}, v{t1}')
    em.op(f'v_bfe_u32 v{t1}, {L}, 1, 3'); em.op(f'v_lshrrev_b32 v{t2}, 4, {L}')
    em.op(f'v_xor_b32 v{t1}, v{t1}, v{t2}'); em.op(f'v_lshlrev_b32 v{vT}, 4, v{t1}')
    em.op(f'v_add_u32 v{vRA[0]}, v{t0}, v{vT}')
    em.op(f'v_add_u32 v{vRA[0]}, {24576 + q0 * 2048}, v{vRA[0]}')
    em.op(f'v_xor_b32 v{vRA[1]}, 64, v{vRA[0]}')
    for t in range(3): tr_addr(em, vRB[t], t, 0, 'w')
    for t in range(3):
        em.op(f's_mul_i32 s{sT0}, s{sDG}, 3'); em.op(f's_add_u32 s{sT0}, s{sT0}, {t}'); em.op(f's_lshl_b32 s{sT0}, s{sT0}, 1')
        em.op(f'v_lshrrev_b32 v{t0}, 5, {L}')
        em.op(f'v_add_u32 v{t0}, s{sT0}, v{t0}')
        em.op(f'v_lshrrev_b32 v{t1}, 3, v{t0}'); em.op(f'v_lshlrev_b32 v{t1}, 7, v{t1}')
        em.op(f'v_and_b32 v{t0}, 7, v{t0}')
        em.op(f'v_bfe_u32 v{t2}, {L}, 1, 3')
        em.op(f'v_xor_b32 v{t0}, v{t0}, v{t2}'); em.op(f'v_lshlrev_b32 v{t0}, 4, v{t0}')
        em.op(f'v_add_u32 v{t0}, v{t0}, v{t1}')
        em.op(f'v_and_b32 v{t1}, 15, {L}'); em.op(f'v_mul_u32_u24 v{t1}, 384, v{t1}')
        em.op(f'v_add_u32 v{t0}, v{t0}, v{t1}')
        em.op(f'v_bfe_u32 v{t1}, {L}, 4, 1'); em.op(f'v_lshlrev_b32 v{t1}, 3, v{t1}')
        em.op(f'v_add_u32 v{vRC[t]}, v{t0}, v{t1}')
    em.op(f'v_lshlrev_b32 v{vPA}, 4, {L}')
    em.op(f's_bfe_u32 s{sT0}, s{sW}, 0x10001'); em.op(f's_mul_i32 s{sT0}, s{sT0}, 9216')
    em.op(f's_and_b32 s{sT1}, s{sW}, 1'); em.op(f's_lshl_b32 s{sT1}, s{sT1}, 3'); em.op(f's_add_u32 s{sT0}, s{sT0}, s{sT1}')
    em.op(f'v_add_u32 v{vPW}, s{sT0}, v{vPA}')
    em.op(f'v_add_u32 v{vPA}, {q0 * 1024}, v{vPA}')
    AF = [176, 188]; BF = [200, 220]
    def q_reads(step, st):
        ops = []
        for t in range(3):
            ops.append(f'ds_read_b64_tr_b16 {vr(AF[st] + 4*t, 2)}, v{vRB[t]} offset:{step * 12288}')
            ops.append(f'ds_read_b64_tr_b16 {vr(AF[st] + 4*t + 2, 2)}, v{vRB[t]} offset:{step * 12288 + 512}')
        xs = [f'ds_read_b128 {vr(BF[st] + 4*j)}, v{vRA[step]} offset:{j * 2048}' for j in range(nq)]
        return ops[0:2] + xs[0:1] + ops[2:6] + xs[1:]
    def mf(st, first):
        return [mfma(ACC + 4*(j*3+t), AF[st] + 4*t, BF[st] + 4*j, None if first else ACC + 4*(j*3+t)) for j in range(nq) for t in range(3)]
    em.wait_vm_tag('S0', lgkm0=True); em.barrier()
    em.st.stamp('S0')
    for o in q_reads(0, 0): em.op(o)
    kl = k_load_ops(em, 1 if typ == 1 else 0)
    fix0 = k_fix_ops(0) if typ == 1 else []
    cap = Cap()
    for t in range(3): tr_addr(cap, TMP[6 + t], t, VBASE, 'v')
    vaddr_ops = cap.ops
    carry = stage_dma_ops(em, 2, qh)
    for s in range(10):
        extra = []
        if 1 <= s <= 6: extra = fix0[(s - 1) * 12: s * 12]
        if s >= 8: extra = kl[{8: 3, 9: 8}[s]: {8: 5, 9: 10}[s]]
        interleave(em, mf(0, s == 0), (q_reads(1, 1), 0, rf), (extra, 0.3, 1), (carry, 0.05, 0.95))
        if s < 9: em.wait_vm_tag(f'S{s+1}', lgkm0=True)
        else: em.wait_lgkm0()
        em.barrier()
        if s in cfg.qst: em.st.stamp(f'B{s}')
        rd = []; dm = []; extra = []
        if s < 9:
            d = STG if (s + 1) % 3 else -2 * STG
            rd += [f'v_add_u32 v{r}, {d & 0xffffffff}, v{r}' for r in vRA + vRB]
            rd += q_reads(0, 0)
        carry = []
        if s + 3 <= 9:
            dm = stage_dma_ops(em, s + 3, qh); dm, carry = dm[:3], dm[3:]
        if s >= 7: dm = kl[{7: 0, 8: 5, 9: 10}[s]: {7: 3, 8: 8, 9: 12}[s]]
        if s == 7: extra = vaddr_ops
        interleave(em, mf(1, False), (dm, 0.05, 0.95), (rd, 0, rf + 0.1), (extra, 0, 1))
    for j in range(nq):
        for t in range(3):
            a = ACC + 4*(j*3+t)
            em.op(f'v_cvt_pk_bf16_f32 v{a}, v{a}, v{a+1}')
            em.op(f'v_cvt_pk_bf16_f32 v{a+1}, v{a+2}, v{a+3}')
            em.op(f'ds_write_b64 v{vRC[t]}, {vr(a,2)} offset:{(q0 + j) * 6144}')
    em.op(f'v_and_b32 v{t1}, 15, {L}'); em.op(f'v_mul_u32_u24 v{t1}, 384, v{t1}')
    em.op(f'v_add_u32 v{vRA[0]}, v{t1}, v{vT}')
    em.op(f'v_xor_b32 v{t0}, 64, v{vT}')
    em.op(f'v_add_u32 v{vRA[1]}, v{t1}, v{t0}')
    for t in range(3): em.op(f'v_mov_b32 v{vRB[t]}, v{TMP[6 + t]}')
    em.wait_lgkm0(); em.barrier()
    for t in range(3): em.op(f'v_add_u32 v{vRC[t]}, 49152, v{vRB[t]}')
    em.st.stamp('BQ')

def maxops(half):
    ops = []
    for qt in range(9):
        a, b = sreg(half*2, qt), sreg(half*2+1, qt); m = MC + qt
        if half == 0:
            ops += [f'v_max3_f32 v{m}, v{a}, v{a+1}, v{a+2}', f'v_max3_f32 v{m}, v{m}, v{a+3}, v{b}',
                    f'v_max3_f32 v{m}, v{m}, v{b+1}, v{b+2}', f'v_max_f32 v{m}, v{m}, v{b+3}']
        else:
            ops += [f'v_max3_f32 v{m}, v{m}, v{a}, v{a+1}', f'v_max3_f32 v{m}, v{m}, v{a+2}, v{a+3}',
                    f'v_max3_f32 v{m}, v{m}, v{b}, v{b+1}', f'v_max3_f32 v{m}, v{m}, v{b+2}, v{b+3}']
    return ops

def k1_qk(em, typ):
    def qrd(n):
        qt, ks = divmod(n, 6)
        return f'ds_read_b128 {vr(QF + 4*(n % 4))}, v{vRA[ks & 1]} offset:{qt * 6144 + (ks >> 1) * 128}'
    vl = sum([v_dma_ops(em, s) for s in range(NV)], [])
    for half in range(2):
        for n in range(3): em.op(qrd(n))
        if typ == 0:
            for o in k_fix_ops(half): em.op(o)
        em.st.stamp(f'K{half}')
        main = []
        for n in range(54):
            qt, ks = divmod(n, 6)
            if n + 3 < 54: main.append(qrd(n + 3))
            for k in range(2):
                kt = half * 2 + k
                main.append(mfma(sreg(kt, qt), kop(kt, ks), QF + 4*(n % 4), None if ks == 0 else sreg(kt, qt)))
        m1 = maxops(1)
        if half == 0:
            if typ == 0: streams = [(k_load_ops(em, 1), 0, 0.9)]
            else: streams = [(vl, 0, 0.6), (k_fix_ops(1), 0.4, 1)]
        else:
            streams = [(maxops(0), 0.02, 0.5)]
            for qt in range(8): streams.append((m1[qt*4:qt*4+4], max(0.5 + 0.05*qt, (qt + 1.5) / 9), max(0.55 + 0.05*qt, (qt + 1.9) / 9)))
            if typ == 0: streams.append((vl, 0, 0.7))
        interleave(em, main, *streams)
    em.st.stamp('QKend')
    for o in maxops(1)[32:]: em.op(o)
    for qt in range(9): em.op(f'ds_max_f32 v{vMS}, v{MC+qt} offset:{qt*64}')
    em.wait_lgkm0(); em.barrier()
    em.st.stamp('BM')

def expops(kt, qt, qh, pk=False):
    a = sreg(kt, qt); m = MC + qt
    tA, tB = TMP[0], TMP[1]
    if pk:
        mb = m & ~1; s = m & 1
        ops = [f'v_pk_fma_f32 {vr(r,2)}, {vr(r,2)}, s[{sC}:{sC+1}], {vr(mb,2)} op_sel:[0,0,{s}] op_sel_hi:[1,0,{s}] neg_lo:[0,0,1] neg_hi:[0,0,1]' for r in (a, a+2)]
    else:
        ops = [f'v_fma_f32 v{r}, v{r}, s{sC}, -v{m}' for r in range(a, a+4)]
    ops += [f'v_exp_f32 v{r}, v{r}' for r in range(a, a+4)]
    if pk:
        ops += [f'v_pk_add_f32 {vr(tA,2)}, {vr(a,2)}, {vr(a+2,2)}']
    else:
        ops += [f'v_add_f32 v{tA}, v{a}, v{a+1}', f'v_add_f32 v{tB}, v{a+2}, v{a+3}']
    ops += [f'v_cvt_pk_bf16_f32 v{a}, v{a}, v{a+1}', f'v_cvt_pk_bf16_f32 v{a+1}, v{a+2}, v{a+3}']
    if kt == 0: ops += [f'v_add_f32 v{SUM+qt}, v{tA}, v{tB}']
    else: ops += [f'v_add_f32 v{tA}, v{tA}, v{tB}', f'v_add_f32 v{SUM+qt}, v{SUM+qt}, v{tA}']
    ops += [f'ds_write_b64 v{vPW}, {vr(a,2)} offset:{((4*kt + 2*qh) % 6) * 9216 + qt*1024}']
    return ops

def k1_sm0(em, qh):
    for qt in range(9): em.op(f'ds_read_b32 v{MC+qt}, v{vMS} offset:{qt*64}')
    for qt in range(9): em.op(f'v_mul_f32 v{MC+qt}, s{sC}, v{MC+qt}')
    for qt in range(9):
        for o in expops(0, qt, qh, cfg.pk): em.op(o)
    for qt in range(NEXP1 if qh == 0 else 0):
        for o in expops(1, qt, qh, cfg.pk): em.op(o)
    em.st.stamp('exp0')
    em.wait_vm_tag('V0', lgkm0=True); em.barrier()
    em.st.stamp('PV0')

def k1_pv(em, qh):
    nq = 5 if qh == 0 else 4
    q0 = 0 if qh == 0 else 5
    L = f'v{vLANE}'
    t0 = TMP[4]
    rf = cfg.rfrac / 100
    BF = [64, 84]
    def pv_reads(s, step, st):
        ops = []
        slot = s % NV
        base = vRB if slot < 2 else vRC
        off = (slot % 2) * 24576 + step * 12288
        for t in range(3):
            ops.append(f'ds_read_b64_tr_b16 {vr(PAF[st][t], 2)}, v{base[t]} offset:{off}')
            ops.append(f'ds_read_b64_tr_b16 {vr(PAF[st][t] + 2, 2)}, v{base[t]} offset:{off + 6144}')
        pa, po = vPA, ((2 * s + step) % 6) * 9216
        xs = [f'ds_read_b128 {vr(BF[st] + 4*j)}, v{pa} offset:{po + j * 1024}' for j in range(nq)]
        return ops[0:2] + xs[0:1] + ops[2:6] + xs[1:]
    OACC = OACC0 if qh == 0 else OACC1
    def mf(st, first):
        return [mfma(OACC[j*3+t], PAF[st][t], BF[st] + 4*j, None if first else OACC[j*3+t]) for j in range(nq) for t in range(3)]
    def sum_ops():
        S = SUM; ops = []
        ops += [f'v_mov_b32 v{MC}, 0', f'v_mov_b32 v{MC+1}, 0']
        ta = TMP[2]; tb = TMP[3]
        ops += [f'v_bfe_u32 v{ta}, {L}, 4, 1', f'v_lshlrev_b32 v{ta}, 10, v{ta}', f'v_bfe_u32 v{tb}, {L}, 5, 1', f'v_lshlrev_b32 v{tb}, 9, v{tb}',
                f'v_add_u32 v{ta}, v{ta}, v{tb}', f'v_and_b32 v{tb}, 15, {L}', f'v_lshlrev_b32 v{tb}, 5, v{tb}', f'v_add_u32 v{ta}, v{ta}, v{tb}',
                f's_lshl_b32 s{sT0}, s{sW}, 2', f's_add_u32 s{sT0}, s{sT0}, {SUMB}', f'v_add_u32 v{ta}, s{sT0}, v{ta}']
        for a in (0, 2, 4, 6): ops.append(f'v_permlane32_swap_b32 v{S+a}, v{S+a+1}')
        ops.append(f'v_permlane32_swap_b32 v{S+8}, v{MC}')
        for a in (0, 2, 4, 6): ops.append(f'v_add_f32 v{S+a}, v{S+a}, v{S+a+1}')
        ops.append(f'v_add_f32 v{S+8}, v{S+8}, v{MC}')
        for a in (0, 4): ops.append(f'v_permlane16_swap_b32 v{S+a}, v{S+a+2}')
        ops.append(f'v_permlane16_swap_b32 v{S+8}, v{MC+1}')
        for a in (0, 4): ops.append(f'v_add_f32 v{S+a}, v{S+a}, v{S+a+2}')
        ops.append(f'v_add_f32 v{S+8}, v{S+8}, v{MC+1}')
        for a in (0, 4, 8): ops.append(f'ds_write_b32 v{ta}, v{S+a} offset:{a * 512}')
        return ops
    def inv_ops():
        ta = TMP[2]; ops = []
        ops += [f'v_and_b32 v{ta}, 15, {L}', f'v_lshlrev_b32 v{ta}, 5, v{ta}', f'v_add_u32 v{ta}, {SUMB + q0 * 512}, v{ta}']
        for j in range(nq):
            ops += [f'ds_read_b128 {vr(16 + 8*j)}, v{ta} offset:{j * 512}', f'ds_read_b128 {vr(20 + 8*j)}, v{ta} offset:{j * 512 + 16}']
        for j in range(nq):
            r = 16 + 8*j
            ops += [f'v_add_f32 v{r}, v{r}, v{r+1}', f'v_add_f32 v{r+2}, v{r+2}, v{r+3}', f'v_add_f32 v{r+4}, v{r+4}, v{r+5}', f'v_add_f32 v{r+6}, v{r+6}, v{r+7}',
                    f'v_add_f32 v{r}, v{r}, v{r+2}', f'v_add_f32 v{r+4}, v{r+4}, v{r+6}', f'v_add_f32 v{r}, v{r}, v{r+4}', f'v_rcp_f32 v{MC+2*j}, v{r}']
        cap = Cap()
        for t in range(3):
            cap.op(f's_mul_i32 s{sT0}, s{sDG}, 3'); cap.op(f's_add_u32 s{sT0}, s{sT0}, {t}')
            cap.op(f's_lshr_b32 s{sT1}, s{sT0}, 2'); cap.op(f's_mul_i32 s{sT1}, s{sT1}, 40960')
            cap.op(f's_bfe_u32 s{sT2}, s{sT0}, 0x10001'); cap.op(f's_mul_i32 s{sT2}, s{sT2}, 9216'); cap.op(f's_add_u32 s{sT1}, s{sT1}, s{sT2}')
            cap.op(f's_and_b32 s{sT0}, s{sT0}, 1'); cap.op(f's_lshl_b32 s{sT0}, s{sT0}, 3')
            cap.op(f's_add_u32 s{sT0}, s{sT0}, s{sT1}'); cap.op(f's_add_u32 s{sT0}, s{sT0}, 20480')
            cap.op(f'v_add_u32 v{vRB[t]}, s{sT0}, v{vPA}')
        return ops + cap.ops
    sched = {0: [(1, 4), (1, 5)], 1: [(1, 6), (1, 7)], 2: [(1, 8)],
             3: [(2, 0), (2, 1)], 4: [(2, 2), (2, 3), (2, 4)], 5: [(2, 5), (2, 6)], 6: [(2, 7), (2, 8)],
             7: [(3, 0), (3, 1)], 8: [(3, 2), (3, 3), (3, 4)], 9: [(3, 5), (3, 6)], 10: [(3, 7), (3, 8)]}
    if qh == 1:
        sched = {1: [(1, 0), (1, 1)], 2: [(1, 2), (1, 3), (1, 4)], 3: [(1, 5), (1, 6)], 4: [(1, 7), (1, 8)],
                 5: [(2, 0), (2, 1)], 6: [(2, 2), (2, 3), (2, 4)], 7: [(2, 5), (2, 6)], 8: [(2, 7), (2, 8)],
                 9: [(3, 0), (3, 1)], 10: [(3, 2), (3, 3), (3, 4)], 11: [(3, 5), (3, 6)], 12: [(3, 7), (3, 8)]}
    def ex(h):
        o = sum([expops(kt, qt, qh) for kt, qt in sched.get(h, [])], [])
        if cfg.x_noexp: o = [x for x in o if x.startswith('ds_')]
        if cfg.x_nopw: o = [x for x in o if not x.startswith('ds_')]
        return o
    def wopre_ops(i):
        ta = TMP[2 + (i & 1)]
        ops = [f's_mul_i32 s{sT0}, s{sX}, 983040', f's_mul_i32 s{sT1}, s{sLOC}, 30720', f's_add_u32 s{sT0}, s{sT0}, s{sT1}', f's_add_u32 s{sT0}, s{sT0}, {i * 8192}',
               f'v_lshlrev_b32 v{ta}, 4, v0', f'v_add_u32 v{ta}, s{sT0}, v{ta}', f'v_min_u32 v{ta}, {7864320 - 16}, v{ta}',
               f'global_load_dwordx4 {vr(16)}, v{ta}, s[14:15]']
        return ops
    for o in pv_reads(0, 0, 0): em.op(o)
    for s in range(8):
        e = ex(2*s)
        if 2*s == 14: e = tail_setup_ops(qh)
        w = wopre_ops(s - 4) if cfg.wopre and 2*s in (8, 10) else []
        interleave(em, mf(0, s == 0), (pv_reads(s, 1, 1), 0, rf), (e, 0, cfg.efrac / 100), (w, 0.5, 0.51))
        if s < 7: em.wait_vm_tag(f'V{s+1}', lgkm0=True)
        else: em.wait_lgkm0()
        em.barrier()
        em.st.stamp(f'PB{s}')
        rd = pv_reads(s + 1, 0, 0) if s < 7 else []
        dm = v_dma_ops(em, s + NV) if s + NV <= 7 else []
        e = ex(2*s+1)
        if 2*s+1 == 13: e = sum_ops()
        if 2*s+1 == 15:
            e = inv_ops()
            if qh == 0: dm = tail_dma(em, 0) + tail_dma(em, 1)
        w = wopre_ops(s - 2) if cfg.wopre and 2*s+1 in (9, 11) else []
        interleave(em, mf(1, False), (dm, 0, 0.5 if s < 7 else 1), (rd, 0, rf + 0.1), (e, 0, 1), (w, 0.5, 0.51))
    late = tail_dma(em, 2) if qh == 0 else []
    main = []
    for j in range(nq):
        for t in range(3):
            a = OACC[j*3+t]
            m = MC + 2*j
            main += [f'v_pk_mul_f32 {vr(a,2)}, {vr(a,2)}, {vr(m,2)} op_sel_hi:[1,0]', f'v_pk_mul_f32 {vr(a+2,2)}, {vr(a+2,2)}, {vr(m,2)} op_sel_hi:[1,0]',
                     f'v_cvt_pk_bf16_f32 v{a}, v{a}, v{a+1}', f'v_cvt_pk_bf16_f32 v{a+1}, v{a+2}, v{a+3}',
                     f'ds_write_b64 v{vRB[t]}, {vr(a,2)} offset:{j * 1024}']
    interleave(em, main, (late, 0, 1))
    em.wait_vm_tag('T0', lgkm0=True); em.barrier()
    em.st.stamp('BO')
    if qh == 0:
        em.op(f's_cmp_lt_u32 s{sW}, 2')
        em.op('s_cbranch_scc0 L_tail1')
        st = em.save(); sn = (em.st.n, list(em.st.names))
        tail(em, 0)
        em.label('L_tail1')
        em.restore(st); em.st.n, em.st.names = sn[0], list(sn[1])
        tail(em, 1)
    else:
        tail(em, 2)

STG2 = 40960
vOFFS = [188, 189, 190, 191, 192]; vA2 = [193, 194, 195, 196, 197]; vB2 = 198
SD, SP, SPR, SOUT = SX, SWQ, SK, SV
def tail_setup_ops(qh):
    c = Cap(); L = f'v{vLANE}'
    t0, t1, t2, t3 = 199, 200, 201, 202
    if qh == 0:
        c.op(f's_mul_i32 s{sT0}, s{sX}, 983040'); c.op(f's_mul_i32 s{sT1}, s{sJ}, 320'); c.op(f's_add_u32 s{sT0}, s{sT0}, s{sT1}')
        srd(c, SD, 14, 15, f's{sT0}', 7864320)
        c.op(f's_sub_u32 s{SD+2}, s{SD+2}, s{sT0}')
        c.op(f's_mov_b32 s{sSTR}, 81920')
        hs = 245760
        c.op(f's_lshl_b32 s{sT2}, s{sW}, 4')
        c.op(f's_mov_b32 s{sT1}, 52429')
        for j in range(5):
            c.op(f'v_add_u32 v{t0}, {j * 64}, {L}')
            c.op(f'v_mul_lo_u32 v{t1}, v{t0}, s{sT1}')
            c.op(f'v_lshrrev_b32 v{t1}, 20, v{t1}')
            c.op(f'v_mul_u32_u24 v{t2}, 20, v{t1}')
            c.op(f'v_sub_u32 v{t2}, v{t0}, v{t2}')
            c.op(f'v_bfe_u32 v{t3}, v{t1}, 2, 1')
            c.op(f'v_lshlrev_b32 v{t3}, 1, v{t3}')
            c.op(f'v_xor_b32 v{t2}, v{t2}, v{t3}')
            c.op(f'v_lshlrev_b32 v{t2}, 4, v{t2}')
            c.op(f'v_add_u32 v{t1}, s{sT2}, v{t1}')
            c.op(f'v_mul_u32_u24 v{t1}, 1280, v{t1}')
            c.op(f'v_add_u32 v{vOFFS[j]}, v{t1}, v{t2}')
    else:
        c.op(f's_lshl_b32 s{sT0}, s{sB}, 5'); c.op(f's_lshl_b32 s{sT1}, s{sX}, 2'); c.op(f's_add_u32 s{sT0}, s{sT0}, s{sT1}')
        c.op(f's_mul_i32 s{sT0}, s{sT0}, {O_HEAD}')
        srd(c, SD, 12, 13, f's{sT0}', 4 * O_HEAD)
        c.op(f's_mov_b32 s{sSTR}, 18432')
        hs = O_HEAD
        c.op(f's_mul_i32 s{sT2}, s{sDG}, 5120')
        c.op(f'v_lshlrev_b32 v{t0}, 4, {L}')
        c.op(f'v_add_u32 v{t0}, s{sT2}, v{t0}')
        for j in range(5): c.op(f'v_add_u32 v{vOFFS[j]}, {j * 1024}, v{t0}')
    c.op(f's_mul_i32 s{sM0T}, s{sW}, 5120')
    for i in range(4):
        c.op(f's_add_u32 s{sT0}, s{sJ}, {i}'); c.op(f's_and_b32 s{sT0}, s{sT0}, 3'); c.op(f's_mul_i32 s{sHB+i}, s{sT0}, {hs}')
    c.op(f's_and_b32 s{sNH}, s{sW}, 1')
    c.op(f'v_lshrrev_b32 v{t0}, 2, {L}')
    c.op(f'v_mul_u32_u24 v{t0}, 320, v{t0}')
    c.op(f'v_and_b32 v{t1}, 3, {L}'); c.op(f'v_lshlrev_b32 v{t1}, 3, v{t1}')
    c.op(f'v_add_u32 v{t0}, v{t0}, v{t1}')
    c.op(f'v_bfe_u32 v{t1}, {L}, 4, 1')
    c.op(f's_mul_i32 s{sT0}, s{sNH}, 5')
    for t in range(5):
        c.op(f's_add_u32 s{sT1}, s{sT0}, {t}')
        c.op(f'v_xor_b32 v{t2}, s{sT1}, v{t1}')
        c.op(f'v_lshlrev_b32 v{t2}, 5, v{t2}')
        c.op(f'v_add_u32 v{vA2[t]}, v{t0}, v{t2}')
    c.op(f's_lshr_b32 s{sT0}, s{sW}, 1')
    c.op(f's_mov_b32 s{sT1}, 0x7350')
    c.op(f's_lshl_b32 s{sT0}, s{sT0}, 2')
    c.op(f's_lshr_b32 s{sQ0}, s{sT1}, s{sT0}')
    c.op(f's_and_b32 s{sQ0}, s{sQ0}, 15')
    c.op(f's_lshl_b32 s{sT0}, s{sQ0}, 10')
    c.op(f's_add_u32 s{sT0}, s{sT0}, 20480')
    c.op(f'v_lshlrev_b32 v{vB2}, 4, {L}')
    c.op(f'v_add_u32 v{vB2}, s{sT0}, v{vB2}')
    c.op(f's_lshl_b32 s{sT0}, s{sB}, 3'); c.op(f's_add_u32 s{sT0}, s{sT0}, s{sX}'); c.op(f's_lshl_b32 s{sT0}, s{sT0}, 7'); c.op(f's_add_u32 s{sT0}, s{sT0}, {FLAG_OFF + 4096}')
    c.op(f's_add_u32 s{sF1}, s12, s{sT0}'); c.op(f's_addc_u32 s{sF1+1}, s13, 0')
    c.op(f's_lshl_b32 s{sT0}, s{sLOC}, 7'); c.op(f's_add_u32 s{sT0}, s{sT0}, {FLAG_OFF + 16384}')
    c.op(f's_add_u32 s{sF2}, s12, s{sT0}'); c.op(f's_addc_u32 s{sF2+1}, s13, 0')
    c.op(f's_mul_i32 s{sT0}, s{sLOC}, {8 * PART2}'); c.op(f's_add_u32 s{sT0}, s{sT0}, {WS_PART}')
    srd(c, SPR, 12, 13, f's{sT0}', 8 * PART2)
    c.op(f's_mul_i32 s{sT1}, s{sX}, {PART2}'); c.op(f's_add_u32 s{sT0}, s{sT0}, s{sT1}')
    srd(c, SP, 12, 13, f's{sT0}', PART2)
    srd(c, SOUT, 54, 55, None, 1474560)
    return c.ops

def tail_dma(em, s, orole=False):
    ops = []
    sc = ' sc1' if (orole and cfg.sc) else ''
    for j in range(5):
        def f(j=j):
            em.op(f's_add_u32 m0, s{sM0T}, {(s % 3) * STG2 + j * 1024}')
            if j == 0:
                if s % 3 == 0: em.op(f's_mov_b32 s{sOFF}, s{sHB + s // 3}')
                else: em.op(f's_add_u32 s{sOFF}, s{sOFF}, s{sSTR}')
            em.op(f'buffer_load_dwordx4 v{vOFFS[j]}, {sr(SD,4)}, s{sOFF} offen{sc} lds', tag=f'T{s}')
        ops.append(f)
    return ops

def flag_store(em, base, idx_s, lab, wave):
    t0, t1 = 199, 200
    em.op(f's_cmp_eq_u32 s{sW}, {wave}')
    em.op(f's_cbranch_scc0 {lab}')
    em.begin_opt()
    em.op(f's_lshl_b32 s{sT0}, s{idx_s}, 2')
    em.op(f'v_mov_b32 v{t0}, s{sT0}')
    em.op(f'v_mov_b32 v{t1}, s{sTAG}')
    em.op('s_mov_b64 exec, 1')
    em.op(f'global_store_dword v{t0}, v{t1}, s[{base}:{base+1}] sc1')
    em.op('s_mov_b64 exec, -1')
    em.end_opt()
    em.label(lab)

def poll(em, base, mask, lab):
    t0, t1 = 201, 202
    em.op(f'v_and_b32 v{t0}, {mask}, v{vLANE}')
    em.op(f'v_lshlrev_b32 v{t0}, 2, v{t0}')
    em.op(f's_mov_b32 s{sCNT}, 0x20000')
    em.wait_vm0()
    em.label(lab)
    em.op(f'global_load_dword v{t1}, v{t0}, s[{base}:{base+1}] sc1')
    em.op(f's_sub_u32 s{sCNT}, s{sCNT}, 1')
    em.op(f's_cbranch_scc1 {lab}_done')
    em.wait_vm0()
    em.op(f'v_cmp_ne_u32 vcc, s{sTAG}, v{t1}')
    em.op('s_nop 4')
    em.op(f's_cbranch_vccz {lab}_done')
    em.op('s_sleep 1')
    em.op(f's_branch {lab}')
    em.label(f'{lab}_done')
    em.wait_vm0()

def tail(em, tv):
    nq = 3 if tv == 0 else 2
    orole = tv == 2
    L = f'v{vLANE}'
    rf = cfg.rfrac / 100
    sc = ' sc1' if cfg.sc else ''
    ACC2 = 16; AF = [76, 96]; BF = [116, 128]; CO = 140
    t0, t1, t2, t3 = 203, 204, 205, 206
    em.op(f'v_lshlrev_b32 v{t0}, 4, v0')
    em.op(f'v_add_u32 v{t1}, 20480, v{t0}')
    em.op(f'v_add_u32 v{t2}, {STG2 + 20480}, v{t0}')
    npc = 3 if tv == 0 else 2
    k = 0; sts = []
    for c in range(3):
        for i in range(npc):
            va, off = (t1, 0) if c == 0 else (t2, (c - 1) * STG2)
            em.op(f'ds_read_b128 {vr(CO + 4*k)}, v{va} offset:{off + i * 8192}')
            sts.append((CO + 4*k, c * 18432 + i * 8192)); k += 1
    def reads(step, st_):
        ops = []
        for t in range(5):
            ops.append(f'ds_read_b64_tr_b16 {vr(AF[st_] + 4*t, 2)}, v{vA2[t]} offset:{step * 10240}')
            ops.append(f'ds_read_b64_tr_b16 {vr(AF[st_] + 4*t + 2, 2)}, v{vA2[t]} offset:{step * 10240 + 5120}')
        xs = [f'ds_read_b128 {vr(BF[st_] + 4*j)}, v{vB2} offset:{step * 9216 + j * 1024}' for j in range(nq)]
        return ops[0:2] + xs + ops[2:]
    def mf(st_, first):
        return [mfma(ACC2 + 4*(t*nq+j), AF[st_] + 4*t, BF[st_] + 4*j, None if first else ACC2 + 4*(t*nq+j)) for t in range(5) for j in range(nq)]
    for r, off in sts:
        em.op(f's_mov_b32 s{sT0}, {off}')
        em.op(f'buffer_store_dwordx4 {vr(r)}, v{t0}, {sr(SO,4)}, s{sT0} offen{sc}', tag='CO')
    for o in reads(0, 0): em.op(o)
    carry = []
    for s in range(12):
        interleave(em, mf(0, s == 0), (reads(1, 1), 0, rf), (carry, 0.05, 0.95))
        carry = []
        if s < 11:
            if s == 0: em.wait_vm0(); em.wait_lgkm0()
            else: em.wait_vm_tag(f'T{s+1}', lgkm0=True)
            em.barrier()
            em.st.stamp(f'T{s}')
        if s == 0 and orole: flag_store(em, sF1, sJ, 'L_f1', 4)
        fill = []; dm = []
        if s < 11:
            d = STG2 if (s + 1) % 3 else -2 * STG2
            fill += [f'v_add_u32 v{r}, {d & 0xffffffff}, v{r}' for r in vA2 + [vB2]]
            fill += reads(0, 0)
        if s + 3 <= 11:
            if not orole or s >= 2:
                dm = tail_dma(em, s + 3, orole); dm, carry = dm[:3], dm[3:]
            elif s == 1:
                poll(em, sF1, 3, 'L_p1')
                em.st.stamp('poll')
                for f in tail_dma(em, 3, True): f()
                dm = tail_dma(em, 4, True)
        interleave(em, mf(1, False), (dm, 0.05, 0.95), (fill, 0, rf + 0.1))
    em.st.stamp('TP')
    em.op(f'v_and_b32 v{t1}, 15, {L}'); em.op(f'v_mul_u32_u24 v{t1}, 336, v{t1}')
    em.op(f'v_lshrrev_b32 v{t2}, 4, {L}'); em.op(f'v_lshlrev_b32 v{t2}, 3, v{t2}')
    em.op(f's_mul_i32 s{sT0}, s{sQ0}, {16 * 336}'); em.op(f's_mul_i32 s{sT1}, s{sNH}, 160'); em.op(f's_add_u32 s{sT0}, s{sT0}, s{sT1}')
    em.op(f'v_add3_u32 v{t1}, v{t1}, v{t2}, s{sT0}')
    em.op(f's_mov_b32 s{sT2}, 52429')
    pre = []
    for i in range(6):
        r = 140 + i
        pre += [f'v_add_u32 v{r}, {512 * i}, v0', f'v_mul_lo_u32 v{t2}, v{r}, s{sT2}', f'v_lshrrev_b32 v{t2}, 20, v{t2}', f'v_add_lshl_u32 v{r}, v{r}, v{t2}, 4']
    for o in pre: em.op(o)
    for t in range(5):
        for j in range(nq):
            a = ACC2 + 4*(t*nq+j)
            em.op(f'v_cvt_pk_bf16_f32 v{a}, v{a}, v{a+1}')
            em.op(f'v_cvt_pk_bf16_f32 v{a+1}, v{a+2}, v{a+3}')
            em.op(f'ds_write_b64 v{t1}, {vr(a,2)} offset:{j * 16 * 336 + t * 32}')
    em.wait_lgkm0(); em.barrier()
    for i in range(6): em.op(f'ds_read_b128 {vr(76 + 4*i)}, v{140 + i}')
    for i in range(6):
        em.op(f's_mov_b32 s{sT0}, {i * 8192}')
        em.op(f'buffer_store_dwordx4 {vr(76 + 4*i)}, v{t0}, {sr(SP,4)}, s{sT0} offen{sc}')
    em.op(f's_mul_i32 s{sT0}, s{sX}, 5760')
    em.op(f'v_add_u32 v{t1}, s{sT0}, v{t0}')
    em.op(f'v_mul_lo_u32 v{t2}, v0, s{sT2}'); em.op(f'v_lshrrev_b32 v{t2}, 20, v{t2}')
    em.op(f'v_mul_u32_u24 v{t2}, 960, v{t2}')
    em.op(f's_mul_i32 s{sT0}, s{sB}, 144'); em.op(f's_mul_i32 s{sT1}, s{sX}, 18'); em.op(f's_add_u32 s{sT0}, s{sT0}, s{sT1}')
    em.op(f's_mul_i32 s{sT0}, s{sT0}, 1280'); em.op(f's_mul_i32 s{sT1}, s{sJ}, 320'); em.op(f's_add_u32 s{sT0}, s{sT0}, s{sT1}')
    em.op(f'v_add3_u32 v{t2}, v{t2}, v{t0}, s{sT0}')
    em.op(f'v_mov_b32 v{t3}, 0x7ffffff0')
    em.op(f'v_cmp_gt_u32 vcc, 360, v0')
    em.op(f'v_cndmask_b32 v{t2}, v{t3}, v{t2}, vcc')
    em.wait_vm0(); em.barrier()
    em.st.stamp('TW')
    if tv == 2:
        flag_store(em, sF2, sX, 'L_f2', 7)
        em.op(f's_cmp_ge_u32 s{sW}, 6')
        em.op(f's_cbranch_scc1 L_fin2')
    poll(em, sF2, 7, f'L_p2_{tv}')
    em.st.stamp('TF')
    for x in range(8):
        em.op(f's_mov_b32 s{sT0}, {x * PART2}')
        em.op(f'buffer_load_dwordx4 {vr(16 + 4*x)}, v{t1}, {sr(SPR,4)}, s{sT0} offen{sc}')
    if tv == 0:
        em.op(f's_or_b32 s{sT0}, s{sH}, s{sW}')
        em.op(f's_cmp_eq_u32 s{sT0}, 0')
        em.op('s_cbranch_scc0 L_nw')
        em.begin_opt()
        em.op(f's_lshl_b32 s{sT0}, s{sB}, 8'); em.op(f's_add_u32 s{sT0}, s{sT0}, {FLAG_OFF}')
        em.op(f'v_mov_b32 v60, s{sT0}'); em.op(f'v_mov_b32 v61, s{sTAG}')
        em.op('s_mov_b64 exec, 1')
        em.op('global_store_dword v60, v61, s[12:13]')
        em.op('s_mov_b64 exec, -1')
        em.end_opt()
        em.label('L_nw')
    A = 64
    for x in range(8):
        for d in range(4):
            r = 16 + 4*x + d
            if x == 0:
                em.op(f'v_lshlrev_b32 v{A+2*d}, 16, v{r}'); em.op(f'v_and_b32 v{A+2*d+1}, 0xffff0000, v{r}')
            else:
                em.op(f'v_lshlrev_b32 v{A+8}, 16, v{r}'); em.op(f'v_and_b32 v{A+9}, 0xffff0000, v{r}')
                em.op(f'v_pk_add_f32 {vr(A+2*d,2)}, {vr(A+2*d,2)}, {vr(A+8,2)}')
    for d in range(4): em.op(f'v_cvt_pk_bf16_f32 v{A+d}, v{A+2*d}, v{A+2*d+1}')
    em.op(f'buffer_store_dwordx4 {vr(A)}, v{t2}, {sr(SOUT,4)}, 0 offen')
    em.st.stamp('TL')
    if tv == 2: em.label('L_fin2')
    if cfg.diag: em.wait_vm0()
    em.st.flush(12, 0, sW, 244)
    em.op('s_endpgm')

def kernel_header(name):
    return f'.globl {name}\n.p2align 8\n.type {name},@function\n{name}:\n'
def kernel_desc(name, vgpr, sgpr=102):
    return f'''.amdhsa_kernel {name}
  .amdhsa_next_free_vgpr {vgpr}
  .amdhsa_next_free_sgpr {sgpr}
  .amdhsa_accum_offset {(vgpr + 3) // 4 * 4}
  .amdhsa_group_segment_fixed_size 0
  .amdhsa_kernarg_size 64
  .amdhsa_user_sgpr_count 2
  .amdhsa_user_sgpr_kernarg_segment_ptr 1
  .amdhsa_system_sgpr_workgroup_id_x 1
.end_amdhsa_kernel
'''

def gen_k1():
    em = Em()
    k1_prologue(em)
    st0 = em.save(); sn0 = (em.st.n, list(em.st.names))
    em.label('k1_body_start')
    stq = {}
    for v in (0, 2, 1, 3):
        qh, typ = v >> 1, v & 1
        if v: em.label(f'L_qp{v}')
        em.restore(st0); em.st.n, em.st.names = sn0[0], list(sn0[1])
        k1_qproj(em, qh, typ)
        stq[v] = em.save(); snq = (em.st.n, list(em.st.names))
        if v in (0, 1): em.op(f's_branch L_qk{typ}')
        else:
            assert [e[0] for e in stq[v][2]] == [e[0] for e in stq[v - 2][2]], (stq[v][2], stq[v-2][2])
            em.label(f'L_qk{typ}')
            em.hist = []
            k1_qk(em, typ)
            stk = em.save(); snk = (em.st.n, list(em.st.names))
            if typ == 0:
                tags0 = [e[0] for e in stk[2]]
                em.op('s_branch L_sm0')
            else:
                assert [e[0] for e in stk[2]] == tags0, (tags0, stk[2])
    em.label('L_sm0')
    em.hist = []
    em.op(f's_cmp_lt_u32 s{sW}, 4')
    em.op('s_cbranch_scc0 L_pv1')
    stp = em.save(); snp = (em.st.n, list(em.st.names))
    k1_sm0(em, 0); k1_pv(em, 0)
    em.label('L_pv1')
    em.restore(stp); em.st.n, em.st.names = snp[0], list(snp[1])
    k1_sm0(em, 1); k1_pv(em, 1)
    em.label('k1_body_end')
    em.label('L_k1_exit')
    em.op('s_endpgm')
    return em

def main():
    ref = open('cdna_kernels/' + NAME + '.s.ref').read().split('\n')
    head = [l for l in ref[:9]]
    k1 = gen_k1()
    KN = NAME + '_kernel'
    out = '\n'.join(head) + '\n'
    out += f'; @launch grid=(256,1,1) block=(512,1,1) lds={LDS1}\n'
    out += '.amdgcn_target "amdgcn-amd-amdhsa--gfx950"\n.text\n'
    out += kernel_header(KN) + k1.text()
    out += '.section .rodata,"a"\n.p2align 6\n' + kernel_desc(KN, 256)
    open(sys.argv[1], 'w').write(out)
    print('k1 instrs', k1.count, 'nops', k1.nops, file=sys.stderr)
main()
```

```python
import sys, struct, math
from em import Em, interleave, emit

NAME = 'standalone__gqa_block_cached__near_ridge'
def fbits(x): return struct.unpack('<I', struct.pack('<f', x))[0]

class Cfg:
    nt_kv = True
    nt_w = False
    nt_k2 = False
    two_types = True
    pre = True
    code_pre = True
    diag = False
    pk = True
    rfrac = 60
    prio = 0
    x_noexp = 0
    x_nopw = 0
    efrac = 95
    loopb = -1
    st = 0
    dbg = 0
    n0 = 0
    inpv0 = 0
    inpv1 = 0
    pfa = 5
    kq = 16
    kq0 = 6
    wont = 0
    vrf = 60
    vrole = 1
    vfirst = 0
    vold = 0
    vh0 = 12
    vreg = 0
    nvy = 4
    sc_o = 1
    sc_ol = 1
    rt = 0
    qloop = 0
    x_qnodma = 0
    x_qnord = 0
    dlo = 10
    dhi = 95
    dsplit = 3
    x_delay = 0
    wopre = 1
    sc = 1
    x_nobar = 0
    x_nord = 0
    x_nodma = 0
cfg = Cfg()
cfg.pvst = (3,7); cfg.qst = (0,8,)
if 'pvall=1' in sys.argv: sys.argv.remove('pvall=1'); cfg.pvst = (0,1,2,3,4,5,6,7); cfg.qst = (); cfg.fewst = True
else: cfg.fewst = False
for a in sys.argv[2:]:
    k, v = a.split('='); setattr(cfg, k, type(getattr(cfg, k))(int(v)))
STSETS = {0: 'S0 BQ BM PV0 BO T0 T2 TP TW TF', 1: 'ka pi si S0 B0 B8 BQ K0 K1 QKend BM exp0 PV0', 2: 'PV0 PB0 PB1 PB2 PB3 PB4 PB5 PB6 PB7 BO', 3: 'BO T0 T1 poll T2 T3 T10 TP TW TF', 4: 'K0 K1 QKend BM exp0 PV0 PB3 PB7 BO T0', 5: 'S0 LB0 LBend BQ', 6: 'S0 B0 B1 B2 B3 B5 B7 B8 B9 BQ', 7: 'BO T0 T1 T2 T3 T4 T6 T8 T10 TP'}
cfg.stlist = ['rt0', 'start'] + STSETS[cfg.st].split()[:10] + ['end', 'rt_end']
cfg.pvst = range(8); cfg.qst = range(10)

def vr(b, n=4): return f'v[{b}:{b + n - 1}]' if n > 1 else f'v{b}'
def sr(b, n): return f's[{b}:{b + n - 1}]'
MF = 'v_mfma_f32_16x16x32_bf16'
def mfma(d, a, b, c=None):
    return f'{MF} {vr(d)}, {vr(a)}, {vr(b)}, ' + ('0' if c is None else vr(c))

FLAG_OFF = 48 << 20
PART2 = 46080
O_HEAD = 55296
WS_PART = 16 << 20
PART_TILE = 90 * 1024

def srd(em, d, base_lo, base_hi, off_sgpr, size):
    if off_sgpr is None:
        em.op(f's_mov_b32 s{d}, s{base_lo}'); em.op(f's_mov_b32 s{d+1}, s{base_hi}')
    else:
        em.op(f's_add_u32 s{d}, s{base_lo}, {off_sgpr}'); em.op(f's_addc_u32 s{d+1}, s{base_hi}, 0')
    em.op(f's_mov_b32 s{d+2}, {size}')
    em.op(f's_mov_b32 s{d+3}, 0x20000')

_lab = [0]
DIAG_OFF = 64 << 20
class Stamps:
    def __init__(self, em):
        self.em = em; self.n = 0; self.names = []
        if cfg.diag:
            for i in range(len(cfg.stlist)): em.op(f's_mov_b32 s{60 + 2*i}, 0')
    def stamp(self, name, real=False):
        if not cfg.diag or name not in cfg.stlist: return
        em = self.em; i = cfg.stlist.index(name)
        em.wait_lgkm0()
        em.op(('s_memrealtime' if (real or cfg.rt) else 's_memtime') + f' s[{60 + 2*i}:{61 + 2*i}]')
        em.op('s_waitcnt lgkmcnt(0)')
    def flush(self, ws_lo, kidx, wave_s, tv):
        if not cfg.diag: return
        em = self.em
        self.stamp('end'); self.stamp('rt_end', real=True)
        if cfg.dbg:
            _lab[0] += 1
            em.op('s_load_dwordx2 s[56:57], s[0:1], 48')
            em.op(f's_and_b32 s58, s2, 0xdf'); em.op(f's_or_b32 s58, s58, s{wave_s}'); em.op('s_cmp_eq_u32 s58, 0')
            em.op('s_waitcnt lgkmcnt(0)')
            em.op(f's_cbranch_scc0 L_dbg{_lab[0]}')
            em.op(f'v_mov_b32 v{tv}, s2')
            for k, i in enumerate([2, 3, 4, 13, 6, 9, 11, 12]):
                em.op(f's_sub_u32 s58, s{60 + 2*i}, s{60 if i == 13 else 62}')
                em.op(f'v_mov_b32 v{tv+1}, s58')
                em.op(f'global_store_dword v{tv}, v{tv+1}, s[56:57] offset:{4*k}')
            em.label(f'L_dbg{_lab[0]}')
            return
        em.op(f's_lshl_b32 s56, s2, 3'); em.op(f's_add_u32 s56, s56, s{wave_s}'); em.op('s_lshl_b32 s56, s56, 7')
        em.op(f's_add_u32 s56, s56, {DIAG_OFF + (kidx << 20)}')
        em.op(f's_add_u32 s56, s{ws_lo}, s56'); em.op(f's_addc_u32 s57, s{ws_lo+1}, 0')
        em.op(f'v_mov_b32 v{tv}, 0')
        for i in range(len(cfg.stlist)):
            em.op(f'v_mov_b32 v{tv+1}, s{60 + 2*i}')
            em.op(f'global_store_dword v{tv}, v{tv+1}, s[56:57] offset:{4*i}')
        print('stamps', kidx, cfg.stlist, file=sys.stderr)

SX, SWQ, SK, SV, SO = 16, 20, 24, 28, 32
sW, sW3072, sW1024, sTYPE, sOFF, sT0, sT1, sT2, sC, sB, sH, sJ, sLOC, sX = 36, 37, 38, 39, 40, 41, 42, 43, 44, 52, 46, 47, 48, 53
vLANE, vXO, vWO, vK0, vK1, vVO = 1, 2, 3, 4, 5, 6
vRA = [7, 8]
vRB = [9, 10, 11]
vRC = [12, 13, 14]
vT = 15
vVW, vVW2 = 7, 8
vPA, vPW, vMS = 240, 242, 243
vPW2 = 241
TMP = list(range(244, 256))
STG = 43008
PBASE, VBASE, MAXB, SUMB = 0, 55296, 153600, 155648
NV = 4
LDS1 = SUMB + 12 * 512
KSP = 16
def KR0(p): return 20 + 8 * p
def KR1(p): return 24 + 8 * p
def KT(p): return KSP if p == 0 else KR1(p - 1)
def kop(kt, ks):
    p = (kt // 2) * 6 + (ks // 2) * 2 + (kt % 2)
    return KR0(p) if ks % 2 == 0 else KT(p)
def sreg(kt, qt):
    if kt < 2: return 116 + 4 * (qt * 2 + kt)
    i = qt * 2 + (kt - 2)
    return 16 + 4 * i if i < 12 else 188 + 4 * (i - 12)
ACC = 116
MC = 212
SUM = 221
SUMP = 222
QF = 224
OACC0 = [116 + 4*i for i in range(15)]
OACC1 = [120 + 8*i for i in range(9)] + [112, 2, 248]
PAF0 = [[176, 180, 184], [20, 28, 36]]
PAF1 = [[20, 28, 36], [44, 52, 60]]
PBF0 = [[44, 52, 60, 192, 200], [208, 112, 2, 248, 252]]
PBF1 = [[192, 200, 208, 252], [216, 220, 224, 228]]
INV0 = 230
NEXP1 = 4


def k_load_ops(em, half):
    nt = ' nt' if cfg.nt_kv else ''
    ops = []
    for c in range(3):
        for k in range(2):
            p = half * 6 + c * 2 + k
            kt = half * 2 + k
            for (dst, va) in ((KR0(p), vK0), (KR1(p), vK1)):
                def f(dst=dst, va=va, kt=kt, c=c):
                    em.op(f's_mov_b32 s{sOFF}, {kt * 6144}')
                    em.op(f'buffer_load_dwordx4 {vr(dst)}, v{va}, {sr(SK,4)}, s{sOFF} offen offset:{c*128}{nt}', tag=f'K{half}')
                ops.append(f)
    return ops

def k_fix_ops(half):
    ops = []
    for pp in range(6):
        p = half * 6 + pp
        for d in range(4):
            r0, r1, t = KR0(p) + d, KR1(p) + d, KT(p) + d
            ops.append(f'v_mov_b32_dpp v{t}, v{r0} row_ror:8 row_mask:0xf bank_mask:0x3')
            ops.append(f'v_mov_b32_dpp v{t}, v{r1} row_ror:8 row_mask:0xf bank_mask:0xc')
            ops.append(f'v_mov_b32_dpp v{r0}, v{r1} quad_perm:[0,1,2,3] row_mask:0xf bank_mask:0xc')
    return ops

def stage_dma_ops(em, s, qh):
    nt = ' nt' if cfg.nt_w else ''
    slot = (s % 3) * STG
    ops = []
    for c in range(3):
        def f(c=c):
            em.op(f's_add_u32 m0, s{sW3072}, {slot + c * 896}')
            em.op(f's_mov_b32 s{sOFF}, {s * 786432}')
            em.op(f'buffer_load_dwordx4 v{vWO}, {sr(SWQ,4)}, s{sOFF} offen offset:{c*128}{nt} lds', tag=f'S{s}')
        ops.append(f)
    for j in range(2):
        def f(j=j):
            em.op(f's_add_u32 m0, s{sW1024}, {slot + j * 8192}')
            em.op(f's_mov_b32 s{sOFF}, {s * 128 + j * 81920}')
            em.op(f'buffer_load_dwordx4 v{vXO}, {sr(SX,4)}, s{sOFF} offen{nt} lds', tag=f'S{s}')
        ops.append(f)
    if qh == 1:
        def f():
            _lab[0] += 1
            lab = f'L_x{_lab[0]}'
            em.op(f's_cmp_lt_u32 s{sW}, 6')
            em.op(f's_cbranch_scc0 {lab}')
            em.begin_opt()
            em.op(f's_add_u32 m0, s{sW1024}, {slot + 12288}')
            em.op(f's_mov_b32 s{sOFF}, {s * 128 + 122880}')
            em.op(f'buffer_load_dwordx4 v{vXO}, {sr(SX,4)}, s{sOFF} offen{nt} lds', tag=f'S{s}')
            em.end_opt()
            em.label(lab)
        ops.insert(0, f)
    return ops

def v_dma_ops(em, s):
    nt = ' nt' if cfg.nt_kv else ''
    ops = []
    for c in range(3):
        def f(c=c):
            em.op(f's_add_u32 m0, s{sW3072}, {VBASE + (s % NV) * 24576 + c * 896}')
            em.op(f's_mov_b32 s{sOFF}, {(128 * (s & 3) + 32 * (s >> 2)) * 384}')
            em.op(f'buffer_load_dwordx4 v{vVO}, {sr(SV,4)}, s{sOFF} offen offset:{c*128}{nt} lds', tag=f'V{s}')
        ops.append(f)
    return ops

sDG = 49
sPFS, sPFB = 45, 50
vPF = 241
def pf_ops():
    if not cfg.pre: return []
    nt = ' nt' if cfg.nt_w else ''
    return [f'global_load_dwordx4 {vr(112)}, v{vPF}, s[{sPFB}:{sPFB+1}]{nt}', f'v_add_u32 v{vPF}, s{sPFS}, v{vPF}']
sTAG, sSTR, sF1, sF2, sHB, sM0T, sQ0, sNH, sCNT = 88, 89, 90, 92, 94, 98, 99, 100, 101
VST = 64
def v_reg_ops(em):
    nt = ' nt' if cfg.nt_kv else ''
    ops = []
    for s in range(4, 8):
        for c in range(3):
            def f(s=s, c=c):
                em.op(f's_mov_b32 s{sOFF}, {(128 * (s & 3) + 32 * (s >> 2)) * 384}')
                em.op(f'buffer_load_dwordx4 {vr(VST + 4 * ((s - 4) * 3 + c))}, v{vVO}, {sr(SV,4)}, s{sOFF} offen offset:{c*128}{nt}', tag=f'V{s}')
            ops.append(f)
    return ops
def v_put_ops(s):
    slot = s % NV
    return [f'ds_write_b128 v{vVW if slot < 2 else vVW2}, {vr(VST + 4 * ((s - 4) * 3 + c))} offset:{(slot % 2) * 24576 + c * 1024}' for c in range(3)]

def k1_prologue(em):
    em.op('s_cmp_ge_u32 s2, 256')
    em.op('s_cbranch_scc1 L_k1_exit')
    em.st = Stamps(em); em.st.stamp('rt0', real=True); em.st.stamp('start')
    if cfg.x_delay:
        em.op(f's_mov_b32 s58, {cfg.x_delay}')
        em.label('L_delay')
        for i in range(4): em.op(mfma(16 + 4*i, 100, 104, 16 + 4*i))
        em.op('s_sub_u32 s58, s58, 1'); em.op('s_cmp_lg_u32 s58, 0'); em.op('s_cbranch_scc1 L_delay')
        em.op('s_nop 15')
    em.op('s_load_dwordx8 s[4:11], s[0:1], 0')
    em.op('s_load_dwordx2 s[12:13], s[0:1], 56')
    em.op('s_load_dwordx2 s[14:15], s[0:1], 32')
    em.op('s_load_dwordx2 s[54:55], s[0:1], 40')
    em.op(f'v_and_b32 v{vLANE}, 63, v0')
    em.op(f'v_lshrrev_b32 v{vT}, 6, v0')
    em.op(f's_and_b32 s{sX}, s2, 7')
    em.op(f's_lshr_b32 s{sLOC}, s2, 3')
    em.op(f'v_readfirstlane_b32 s{sW}, v{vT}')
    t0, t1, t2, t3, t4 = TMP[:5]
    L = f'v{vLANE}'
    if cfg.code_pre:
        em.op('s_getpc_b64 s[50:51]')
        em.label('L_k1_pc')
        em.op('s_add_u32 s50, s50, k1_body_start-L_k1_pc')
        em.op('s_addc_u32 s51, s51, 0')
        em.op(f's_and_b32 s{sT1}, s{sLOC}, 15')
        em.op(f's_lshl_b32 s{sT1}, s{sT1}, 13')
        em.op(f'v_lshlrev_b32 v{t3}, 4, v0')
        em.op(f'v_add_u32 v{t4}, s{sT1}, v{t3}')
        em.op(f'v_min_u32 v{t4}, k1_body_end-k1_body_start-16, v{t4}')
        em.op(f'v_mov_b32 v{vT}, v{t4}')
        em.op('s_mov_b64 s[58:59], s[50:51]')
    else:
        em.op(f'v_lshlrev_b32 v{t3}, 4, v0')
    em.op(f's_and_b32 s{sJ}, s{sLOC}, 3')
    em.op(f's_lshr_b32 s{sB}, s{sLOC}, 2')
    em.op(f's_lshl_b32 s{sH}, s{sX}, 2')
    em.op(f's_add_u32 s{sH}, s{sH}, s{sJ}')
    nt = ' nt' if cfg.nt_w else ''
    em.op(f's_and_b32 s{sTYPE}, s{sB}, 1')
    em.op(f's_lshl_b32 s{sT0}, s{sLOC}, 1'); em.op(f's_mul_i32 s{sT0}, s{sT0}, 12288'); em.op(f's_mul_i32 s{sT1}, s{sX}, 1536'); em.op(f's_add_u32 s{sT0}, s{sT0}, s{sT1}')
    em.op(f's_lshl_b32 s{sT1}, s{sW}, 9'); em.op(f's_add_u32 s{sT0}, s{sT0}, s{sT1}')
    em.op(f'v_lshrrev_b32 v{t0}, 5, {L}'); em.op(f'v_mul_u32_u24 v{t0}, 12288, v{t0}')
    em.op(f'v_and_b32 v{t1}, 31, {L}'); em.op(f'v_lshlrev_b32 v{t1}, 4, v{t1}')
    em.op(f'v_add3_u32 v{t0}, v{t0}, v{t1}, s{sT0}')
    em.op(f's_mul_i32 s{sT0}, s{sLOC}, 36'); em.op(f's_lshl_b32 s{sT1}, s{sW}, 3'); em.op(f's_add_u32 s{sT0}, s{sT0}, s{sT1}'); em.op(f's_sub_u32 s{sT0}, s{sT0}, 24')
    em.op(f'v_lshrrev_b32 v{t1}, 3, {L}'); em.op(f'v_add_u32 v{t1}, s{sT0}, v{t1}'); em.op(f'v_min_u32 v{t1}, 1151, v{t1}')
    em.op(f'v_mul_u32_u24 v{t1}, 1280, v{t1}')
    em.op(f'v_and_b32 v{t2}, 7, {L}'); em.op(f'v_lshlrev_b32 v{t2}, 4, v{t2}')
    em.op(f'v_add_u32 v{t1}, v{t1}, v{t2}')
    em.op(f's_cmp_lt_u32 s{sW}, 3')
    em.op(f's_cselect_b64 vcc, -1, 0')
    em.op(f's_movk_i32 s{sPFS}, 128')
    em.op(f's_cselect_b32 s{sPFS}, 786432, s{sPFS}')
    em.op(f'v_cndmask_b32 v{vPF}, v{t1}, v{t0}, vcc')
    em.op('s_waitcnt lgkmcnt(0)')
    em.st.stamp('ka')
    em.op(f's_lshl_b32 s{sT0}, s{sB}, 8'); em.op(f's_add_u32 s{sT0}, s{sT0}, {FLAG_OFF}')
    em.op(f's_load_dword s{sTAG}, s[12:13], s{sT0}')
    em.op(f's_cmp_lt_u32 s{sW}, 3')
    em.op(f's_cselect_b64 s[{sPFB}:{sPFB+1}], s[10:11], s[4:5]')
    for i in range(3):
        for o in pf_ops(): em.op(o)
    em.st.stamp('pi')
    em.op(f's_and_b32 s{sDG}, s{sW}, 3')
    em.op(f's_mul_i32 s{sW3072}, s{sW}, 3072')
    em.op(f's_lshl_b32 s{sW1024}, s{sW}, 10')
    em.op(f's_add_u32 s{sW1024}, s{sW1024}, 24576')
    em.op(f's_mov_b32 s{sC}, {fbits(192 ** -0.5 * math.log2(math.e))}')
    em.op(f'v_lshrrev_b32 v{t0}, 3, {L}')
    em.op(f'v_and_b32 v{t1}, 7, {L}')
    em.op(f'v_lshrrev_b32 v{t2}, 4, {L}')
    em.op(f's_lshl_b32 s{sT1}, s{sB}, 5'); em.op(f's_add_u32 s{sT1}, s{sT1}, s{sH}')
    em.op(f's_mul_i32 s{sT0}, s{sT1}, 196608')
    srd(em, SK, 6, 7, f's{sT0}', 196608); srd(em, SV, 8, 9, f's{sT0}', 196608)
    em.op(f's_mul_i32 s{sT0}, s{sT1}, {O_HEAD}'); srd(em, SO, 12, 13, f's{sT0}', O_HEAD)
    em.op(f'v_and_b32 v{t3}, 1, v{t0}')
    em.op(f'v_lshlrev_b32 v{t3}, 2, v{t3}')
    em.op(f'v_add_u32 v{t3}, v{t3}, v{t2}')
    em.op(f'v_lshlrev_b32 v{t3}, 4, v{t3}')
    em.op(f's_lshl_b32 s{sT2}, s{sW}, 6')
    em.op(f'v_add_u32 v{t4}, s{sT2}, v{t1}')
    em.op(f'v_mul_u32_u24 v{t4}, 384, v{t4}')
    em.op(f'v_add_u32 v{vK0}, v{t4}, v{t3}')
    em.op(f'v_xor_b32 v{t3}, 64, v{t3}')
    em.op(f'v_add_u32 v{vK1}, v{t4}, v{t3}')
    em.op(f'v_add_u32 v{vK1}, {8 * 384}, v{vK1}')
    if cfg.n0:
        em.op(f's_cmp_eq_u32 s{sTYPE}, 1')
        em.op('s_cbranch_scc0 L_nok1')
        em.begin_opt()
        for i in range(7):
            for o in pf_ops(): em.op(o)
        for f in (k_load_ops(em, 0) + k_load_ops(em, 1))[:2 * cfg.n0]: f()
        em.end_opt()
        em.label('L_nok1')
    em.op(f's_mul_i32 s{sT0}, s{sB}, 184320'); srd(em, SX, 4, 5, f's{sT0}', 184320)
    em.op(f's_mul_i32 s{sT0}, s{sH}, 384'); srd(em, SWQ, 10, 11, f's{sT0}', 7864320)
    em.op(f's_sub_u32 s{SWQ+2}, s{SWQ+2}, s{sT0}')
    em.op(f's_and_b32 s{sT0}, s{sW}, 1')
    em.op(f's_lshl_b32 s{sT1}, s{sT0}, 2')
    em.op(f'v_add_u32 v{t3}, s{sT1}, v{t2}')
    em.op(f'v_xor_b32 v{t3}, v{t3}, v{t1}')
    em.op(f'v_lshlrev_b32 v{t3}, 4, v{t3}')
    em.op(f's_lshl_b32 s{sT2}, s{sW}, 3')
    em.op(f'v_add_u32 v{t4}, s{sT2}, v{t0}')
    em.op(f'v_mul_u32_u24 v{vXO}, 1280, v{t4}')
    em.op(f'v_add_u32 v{vXO}, v{vXO}, v{t3}')
    em.op(f'v_and_b32 v{t3}, 1, v{t2}')
    em.op(f'v_lshlrev_b32 v{t3}, 1, v{t3}')
    em.op(f'v_add_u32 v{t3}, s{sT1}, v{t3}')
    em.op(f'v_xor_b32 v{t3}, v{t3}, v{t1}')
    em.op(f'v_lshlrev_b32 v{t3}, 4, v{t3}')
    em.op(f'v_mul_u32_u24 v{vWO}, 12288, v{t4}')
    em.op(f'v_add_u32 v{vWO}, v{vWO}, v{t3}')
    em.op(f's_lshr_b32 s{sT1}, s{sW}, 2'); em.op(f's_lshl_b32 s{sT1}, s{sT1}, 6')
    em.op(f's_lshl_b32 s{sT0}, s{sDG}, 3'); em.op(f's_add_u32 s{sT0}, s{sT0}, s{sT1}')
    em.op(f'v_add_u32 v{t3}, s{sT0}, v{t0}')
    em.op(f'v_mul_u32_u24 v{vVO}, 384, v{t3}')
    em.op(f'v_lshlrev_b32 v{t3}, 1, v{t2}')
    em.op(f'v_xor_b32 v{t3}, v{t3}, v{t1}')
    em.op(f'v_lshlrev_b32 v{t3}, 4, v{t3}')
    em.op(f'v_add_u32 v{vVO}, v{vVO}, v{t3}')
    em.op('s_waitcnt lgkmcnt(0)')
    em.op(f's_add_u32 s{sTAG}, s{sTAG}, 1')
    em.barrier()
    em.op(f's_cmp_lt_u32 s{sW}, 4')
    em.op('s_cbranch_scc0 L_qp1')

def tr_addr(em, dst, t, base, fmode):
    t0, t1, t2, t3 = TMP[:4]
    L = f'v{vLANE}'
    em.op(f's_mul_i32 s{sT0}, s{sDG}, 3'); em.op(f's_add_u32 s{sT0}, s{sT0}, {t}')
    em.op(f's_lshr_b32 s{sT1}, s{sT0}, 2'); em.op(f's_lshl_b32 s{sT1}, s{sT1}, 10')
    em.op(f's_add_u32 s{sT1}, s{sT1}, {base}')
    em.op(f's_and_b32 s{sT0}, s{sT0}, 3')
    em.op(f'v_lshrrev_b32 v{t0}, 4, {L}')
    em.op(f'v_bfe_u32 v{t1}, {L}, 2, 2')
    em.op(f'v_and_b32 v{t2}, 1, v{t0}')
    em.op(f'v_lshlrev_b32 v{t2}, 1, v{t2}')
    em.op(f'v_lshrrev_b32 v{t3}, 1, v{t1}')
    em.op(f'v_add_u32 v{t3}, v{t3}, v{t2}')
    em.op(f'v_xor_b32 v{t3}, s{sT0}, v{t3}')
    em.op(f'v_lshlrev_b32 v{t3}, 5, v{t3}')
    em.op(f'v_lshlrev_b32 v{dst}, 7, v{t1}')
    em.op(f'v_add_u32 v{dst}, v{dst}, v{t3}')
    if fmode == 'w':
        em.op(f'v_mul_u32_u24 v{t3}, 3072, v{t0}')
    else:
        em.op(f'v_lshlrev_b32 v{t2}, 8, v{t2}')
        em.op(f'v_add_u32 v{dst}, v{dst}, v{t2}')
        em.op(f'v_lshrrev_b32 v{t3}, 1, v{t0}')
        em.op(f'v_mul_u32_u24 v{t3}, 3072, v{t3}')
    em.op(f'v_add_u32 v{dst}, v{dst}, v{t3}')
    em.op(f'v_and_b32 v{t3}, 3, {L}')
    em.op(f'v_lshlrev_b32 v{t3}, 3, v{t3}')
    em.op(f'v_add_u32 v{dst}, v{dst}, v{t3}')
    em.op(f'v_add_u32 v{dst}, s{sT1}, v{dst}')

class Cap:
    def __init__(self): self.ops = []
    def op(self, t, tag=None): self.ops.append(t)

def k1_qproj(em, qh, typ):
    nq = 5 if qh == 0 else 4
    q0 = 0 if qh == 0 else 5
    L = f'v{vLANE}'
    t0, t1, t2, t3, t4, t5 = TMP[:6]
    rf = cfg.rfrac / 100
    if cfg.prio and qh == 1: em.op('s_setprio 1')
    for f in stage_dma_ops(em, 0, qh): f()
    em.barrier()
    for f in stage_dma_ops(em, 1, qh): f()
    em.op(f'v_mov_b32 v{TMP[11]}, v{vT}')
    em.st.stamp('si')
    em.op(f'v_lshlrev_b32 v{t3}, 2, v0')
    em.op(f'v_add_u32 v{t3}, {MAXB}, v{t3}')
    em.op(f'v_mov_b32 v{t4}, 0xff800000')
    em.op(f'ds_write_b32 v{t3}, v{t4}')
    em.op(f'v_and_b32 v{vMS}, 15, {L}')
    em.op(f'v_lshlrev_b32 v{vMS}, 2, v{vMS}')
    em.op(f'v_add_u32 v{vMS}, {MAXB}, v{vMS}')
    em.op(f'v_bfe_u32 v{t0}, {L}, 3, 1'); em.op(f'v_lshlrev_b32 v{t0}, 10, v{t0}')
    em.op(f'v_and_b32 v{t1}, 7, {L}'); em.op(f'v_lshlrev_b32 v{t1}, 7, v{t1}')
    em.op(f'v_add_u32 v{t0}, v{t0}, v{t1}')
    em.op(f'v_bfe_u32 v{t1}, {L}, 1, 3'); em.op(f'v_lshrrev_b32 v{t2}, 4, {L}')
    em.op(f'v_xor_b32 v{t1}, v{t1}, v{t2}'); em.op(f'v_lshlrev_b32 v{vT}, 4, v{t1}')
    em.op(f'v_add_u32 v{vRA[0]}, v{t0}, v{vT}')
    em.op(f'v_add_u32 v{vRA[0]}, {24576 + q0 * 2048}, v{vRA[0]}')
    em.op(f'v_xor_b32 v{vRA[1]}, 64, v{vRA[0]}')
    for t in range(3): tr_addr(em, vRB[t], t, 0, 'w')
    for t in range(3):
        em.op(f's_mul_i32 s{sT0}, s{sDG}, 3'); em.op(f's_add_u32 s{sT0}, s{sT0}, {t}'); em.op(f's_lshl_b32 s{sT0}, s{sT0}, 1')
        em.op(f'v_lshrrev_b32 v{t0}, 5, {L}')
        em.op(f'v_add_u32 v{t0}, s{sT0}, v{t0}')
        em.op(f'v_lshrrev_b32 v{t1}, 3, v{t0}'); em.op(f'v_lshlrev_b32 v{t1}, 7, v{t1}')
        em.op(f'v_and_b32 v{t0}, 7, v{t0}')
        em.op(f'v_bfe_u32 v{t2}, {L}, 1, 3')
        em.op(f'v_xor_b32 v{t0}, v{t0}, v{t2}'); em.op(f'v_lshlrev_b32 v{t0}, 4, v{t0}')
        em.op(f'v_add_u32 v{t0}, v{t0}, v{t1}')
        em.op(f'v_and_b32 v{t1}, 15, {L}'); em.op(f'v_mul_u32_u24 v{t1}, 384, v{t1}')
        em.op(f'v_add_u32 v{t0}, v{t0}, v{t1}')
        em.op(f'v_bfe_u32 v{t1}, {L}, 4, 1'); em.op(f'v_lshlrev_b32 v{t1}, 3, v{t1}')
        em.op(f'v_add_u32 v{vRC[t]}, v{t0}, v{t1}')
    em.op(f'v_lshlrev_b32 v{vPA}, 4, {L}')
    em.op(f's_lshl_b32 s{sT0}, s{sW}, 2'); em.op(f's_lshr_b32 s{sT1}, 0x10543210, s{sT0}'); em.op(f's_and_b32 s{sT1}, s{sT1}, 15'); em.op(f's_mul_i32 s{sT1}, s{sT1}, 9216')
    em.op(f'v_add_u32 v{vPW}, s{sT1}, v{vPA}')
    em.op(f'v_add_u32 v{vPA}, {q0 * 1024}, v{vPA}')
    AF = [176, 188]; BF = [200, 220]
    def q_reads(step, st):
        ops = []
        for t in range(3):
            ops.append(f'ds_read_b64_tr_b16 {vr(AF[st] + 4*t, 2)}, v{vRB[t]} offset:{step * 12288}')
            ops.append(f'ds_read_b64_tr_b16 {vr(AF[st] + 4*t + 2, 2)}, v{vRB[t]} offset:{step * 12288 + 512}')
        xs = [f'ds_read_b128 {vr(BF[st] + 4*j)}, v{vRA[step]} offset:{j * 2048}' for j in range(nq)]
        return ops[0:2] + xs[0:1] + ops[2:6] + xs[1:]
    def mf(st, first):
        return [mfma(ACC + 4*(j*3+t), AF[st] + 4*t, BF[st] + 4*j, None if first else ACC + 4*(j*3+t)) for j in range(nq) for t in range(3)]
    em.wait_vm_tag('S0', lgkm0=True); em.barrier()
    em.st.stamp('S0')
    for o in q_reads(0, 0): em.op(o)
    npre = cfg.n0 if typ == 1 else 0
    kl = (k_load_ops(em, 0) + k_load_ops(em, 1))[2 * npre: min(24, 2 * npre + cfg.kq)]
    nst = 10 - cfg.kq0
    def klat(s):
        if s < cfg.kq0: return []
        k = s - cfg.kq0
        return kl[len(kl) * k // nst: len(kl) * (k + 1) // nst]
    fixat = {}
    for p in range(6):
        last = 2 * p + 2 - 2 * npre
        st = 1 + p if last <= 0 else next((s + 3 for s in range(10) if s >= cfg.kq0 and len(kl) * (s - cfg.kq0 + 1) // nst >= last), 99)
        fixat.setdefault(st, []).append(p)
    em.nfixed = sum(len(v) for k, v in fixat.items() if k <= 9)
    F0 = k_fix_ops(0)
    cap = Cap()
    for t in range(3): tr_addr(cap, TMP[6 + t], t, VBASE, 'v')
    vaddr_ops = cap.ops
    inloop_pf = not (typ == 1 and cfg.n0)
    carry = stage_dma_ops(em, 2, qh) + (sum([pf_ops() for i in range(cfg.pfa - 3)], []) if inloop_pf else [])
    if cfg.code_pre: carry.append(f'global_load_dwordx4 {vr(112)}, v{TMP[11]}, s[58:59]')
    for s in range(10):
        extra = []
        for p in fixat.get(s, []): extra += F0[12 * p: 12 * p + 12]
        interleave(em, mf(0, s == 0), ([] if cfg.x_qnord and 3 < s <= 6 else q_reads(1, 1), 0, rf), (extra, 0.3, 1), (carry, 0.05, cfg.dhi / 100))
        if s < 9: em.wait_vm_tag(f'S{s+1}', lgkm0=True)
        else: em.wait_lgkm0()
        em.barrier()
        if s in cfg.qst: em.st.stamp(f'B{s}')
        if cfg.qloop and s == 6:
            em.op('s_sub_u32 s87, s87, 1'); em.op('s_cmp_lg_u32 s87, 0'); em.op(f's_cbranch_scc1 L_ql{qh}{typ}')
            em.st.stamp('LBend')
        if cfg.qloop and s == 3:
            em.st.stamp('LB0')
            em.op('s_mov_b32 s87, 16'); em.label(f'L_ql{qh}{typ}')
        rd = []; dm = []; extra = []
        if s < 9:
            d = STG if (s + 1) % 3 else -2 * STG
            rd += [f'v_add_u32 v{r}, {d & 0xffffffff}, v{r}' for r in vRA + vRB]
            if not (cfg.x_qnord and 3 <= s < 6): rd += q_reads(0, 0)
        carry = []
        if s + 3 <= 9:
            dm = stage_dma_ops(em, s + 3, qh); dm, carry = dm[:cfg.dsplit], dm[cfg.dsplit:]
            if cfg.x_qnodma and 3 <= s < 6: dm = []; carry = []
        if s == 7: extra = vaddr_ops
        first = (pf_ops() if inloop_pf and s + cfg.pfa <= 9 and not (cfg.qloop and s >= 3) else []) + klat(s)
        interleave(em, mf(1, False), (dm, cfg.dlo / 100, cfg.dhi / 100), (rd, 0, rf + 0.1), (extra, 0, 1), (first, 0, 0.04 if dm else 0.9))
    for j in range(nq):
        for t in range(3):
            a = ACC + 4*(j*3+t)
            em.op(f'v_cvt_pk_bf16_f32 v{a}, v{a}, v{a+1}')
            em.op(f'v_cvt_pk_bf16_f32 v{a+1}, v{a+2}, v{a+3}')
            em.op(f'ds_write_b64 v{vRC[t]}, {vr(a,2)} offset:{(q0 + j) * 6144}')
    em.op(f'v_and_b32 v{t1}, 15, {L}'); em.op(f'v_mul_u32_u24 v{t1}, 384, v{t1}')
    em.op(f'v_add_u32 v{vRA[0]}, v{t1}, v{vT}')
    em.op(f'v_xor_b32 v{t0}, 64, v{vT}')
    em.op(f'v_add_u32 v{vRA[1]}, v{t1}, v{t0}')
    for t in range(3): em.op(f'v_mov_b32 v{vRB[t]}, v{TMP[6 + t]}')
    em.wait_lgkm0(); em.barrier()
    for t in range(3): em.op(f'v_add_u32 v{vRC[t]}, 49152, v{vRB[t]}')
    em.op(f's_lshl_b32 s{sT0}, s{sW}, 2'); em.op(f's_lshr_b32 s{sT1}, 0x32105432, s{sT0}'); em.op(f's_and_b32 s{sT1}, s{sT1}, 15'); em.op(f's_mul_i32 s{sT1}, s{sT1}, 9216')
    em.op(f'v_lshlrev_b32 v{vPW2}, 4, {L}')
    em.op(f'v_add_u32 v{vPW2}, s{sT1}, v{vPW2}')
    em.st.stamp('BQ')

def maxops(half):
    ops = []
    for qt in range(9):
        a, b = sreg(half*2, qt), sreg(half*2+1, qt); m = MC + qt
        if half == 0:
            ops += [f'v_max3_f32 v{m}, v{a}, v{a+1}, v{a+2}', f'v_max3_f32 v{m}, v{m}, v{a+3}, v{b}',
                    f'v_max3_f32 v{m}, v{m}, v{b+1}, v{b+2}', f'v_max_f32 v{m}, v{m}, v{b+3}']
        else:
            ops += [f'v_max3_f32 v{m}, v{m}, v{a}, v{a+1}', f'v_max3_f32 v{m}, v{m}, v{a+2}, v{a+3}',
                    f'v_max3_f32 v{m}, v{m}, v{b}, v{b+1}', f'v_max3_f32 v{m}, v{m}, v{b+2}, v{b+3}']
    return ops

def v_dma_all(em, s, qh=1):
    nt = ' nt' if cfg.nt_kv else ''
    ops = []
    for blk in range(2):
        for c in range(3):
            def f(c=c, blk=blk):
                em.op(f's_add_u32 m0, s{sW3072}, {VBASE + (s % NV) * 24576 + c * 896 + (blk - qh) * 12288}')
                em.op(f's_mov_b32 s{sOFF}, {(128 * (s & 3) + 32 * (s >> 2)) * 384 + blk * 24576}')
                em.op(f'buffer_load_dwordx4 v{TMP[4] if qh else vVO}, {sr(SV,4)}, s{sOFF} offen offset:{c*128}{nt} lds', tag=f'V{s}')
            ops.append(f)
    return ops

def k1_qk(em, qh):
    def qrd(n):
        qt, ks = divmod(n, 6)
        return f'ds_read_b128 {vr(QF + 4*(n % 4))}, v{vRA[ks & 1]} offset:{qt * 6144 + (ks >> 1) * 128}'
    rest = (k_load_ops(em, 0) + k_load_ops(em, 1))[cfg.kq:]
    vl = []
    if cfg.vrole:
        if qh == 1:
            em.op(f'v_subrev_u32 v{TMP[4]}, 24576, v{vVO}')
            for f in rest: f()
            rest = []
            vl = sum([v_dma_all(em, s) for s in range(cfg.nvy)], [])
            for f in vl[:cfg.vfirst]: f()
            vl = vl[cfg.vfirst:]
    else:
        vl = sum([v_dma_ops(em, s) for s in range(NV)], [])
    for half in range(2):
        for n in range(3): em.op(qrd(n))
        if half == 0:
            for o in k_fix_ops(0)[12 * em.nfixed:]: em.op(o)
        elif not (cfg.vrole and qh == 1):
            for o in k_fix_ops(1): em.op(o)
        em.st.stamp(f'K{half}')
        main = []
        for n in range(54):
            qt, ks = divmod(n, 6)
            if n + 3 < 54: main.append(qrd(n + 3))
            for k in range(2):
                kt = half * 2 + k
                main.append(mfma(sreg(kt, qt), kop(kt, ks), QF + 4*(n % 4), None if ks == 0 else sreg(kt, qt)))
        m1 = maxops(1)
        if half == 0:
            if cfg.vrole: streams = [(rest, 0, 0.3)] if qh == 0 else [(vl[:cfg.vh0], 0, 1), (k_fix_ops(1), 0.5, 1)]
            else: streams = [(rest, 0, 0.9)]
        else:
            streams = [(maxops(0), 0.02, 0.5)]
            for qt in range(8): streams.append((m1[qt*4:qt*4+4], max(0.5 + 0.05*qt, (qt + 1.5) / 9), max(0.55 + 0.05*qt, (qt + 1.9) / 9)))
            streams.append((vl[cfg.vh0:] if cfg.vrole else vl, 0, 0.7))
        interleave(em, main, *streams)
    em.st.stamp('QKend')
    for o in maxops(1)[32:]: em.op(o)
    for qt in range(9): em.op(f'ds_max_f32 v{vMS}, v{MC+qt} offset:{qt*64}')
    em.op(f'v_lshlrev_b32 v{vVW}, 4, v{vLANE}')
    em.op(f'v_add_u32 v{vVW}, s{sW3072}, v{vVW}')
    em.op(f'v_add_u32 v{vVW}, {VBASE}, v{vVW}')
    em.op(f'v_add_u32 v{vVW2}, 49152, v{vVW}')
    if qh == 0 and cfg.vrole:
        for s in range(cfg.nvy, NV):
            for f in v_dma_all(em, s, 0): f()
    if qh == 0 and cfg.vold and cfg.vreg:
        for f in v_reg_ops(em): f()
    em.wait_lgkm0(); em.barrier()
    em.st.stamp('BM')

def expops(r, qt, pk):
    a, b = sreg(2*r, qt), sreg(2*r+1, qt); m = MC + qt
    tA, tB = TMP[0], TMP[2]
    sp = SUMP + 2*qt
    rs = [a, a+1, a+2, a+3, b, b+1, b+2, b+3]
    if pk:
        mb = m & ~1; s = m & 1
        ops = [f'v_pk_fma_f32 {vr(x,2)}, {vr(x,2)}, s[{sC}:{sC+1}], {vr(mb,2)} op_sel:[0,0,{s}] op_sel_hi:[1,0,{s}] neg_lo:[0,0,1] neg_hi:[0,0,1]' for x in rs[::2]]
    else:
        ops = [f'v_fma_f32 v{x}, v{x}, s{sC}, -v{m}' for x in rs]
    ops += [f'v_exp_f32 v{x}, v{x}' for x in rs]
    if pk:
        ops += [f'v_pk_add_f32 {vr(tA,2)}, {vr(a,2)}, {vr(a+2,2)}', f'v_pk_add_f32 {vr(tB,2)}, {vr(b,2)}, {vr(b+2,2)}']
        if r == 0: tailo = [f'v_pk_add_f32 {vr(sp,2)}, {vr(tA,2)}, {vr(tB,2)}']
        else: tailo = [f'v_pk_add_f32 {vr(tA,2)}, {vr(tA,2)}, {vr(tB,2)}', f'v_pk_add_f32 {vr(sp,2)}, {vr(sp,2)}, {vr(tA,2)}']
    else:
        assert r == 1
        ops += [f'v_add_f32 v{sp + (i & 1)}, v{sp + (i & 1)}, v{x}' for i, x in enumerate(rs)]
        tailo = []
    ops += [f'v_cvt_pk_bf16_f32 v{a}, v{a}, v{a+1}', f'v_cvt_pk_bf16_f32 v{a+1}, v{a+2}, v{a+3}',
            f'v_cvt_pk_bf16_f32 v{a+2}, v{b}, v{b+1}', f'v_cvt_pk_bf16_f32 v{a+3}, v{b+2}, v{b+3}']
    return ops + tailo

def pwrite(r, qt, qh):
    return f'ds_write_b128 v{vPW if r == 0 else vPW2}, {vr(sreg(2*r, qt))} offset:{qt*1024}'

def sum_ops():
    L = f'v{vLANE}'
    S = SUM; ops = []
    ops += [f'v_add_f32 v{SUM+qt}, v{SUMP+2*qt}, v{SUMP+2*qt+1}' for qt in range(9)]
    ops += [f'v_mov_b32 v{MC}, 0', f'v_mov_b32 v{MC+1}, 0']
    ta = TMP[2]; tb = TMP[3]
    ops += [f'v_bfe_u32 v{ta}, {L}, 4, 1', f'v_lshlrev_b32 v{ta}, 10, v{ta}', f'v_bfe_u32 v{tb}, {L}, 5, 1', f'v_lshlrev_b32 v{tb}, 9, v{tb}',
            f'v_add_u32 v{ta}, v{ta}, v{tb}', f'v_and_b32 v{tb}, 15, {L}', f'v_lshlrev_b32 v{tb}, 5, v{tb}', f'v_add_u32 v{ta}, v{ta}, v{tb}',
            f's_lshl_b32 s{sT0}, s{sW}, 2', f's_add_u32 s{sT0}, s{sT0}, {SUMB}', f'v_add_u32 v{ta}, s{sT0}, v{ta}']
    for a in (0, 2, 4, 6): ops.append(f'v_permlane32_swap_b32 v{S+a}, v{S+a+1}')
    ops.append(f'v_permlane32_swap_b32 v{S+8}, v{MC}')
    for a in (0, 2, 4, 6): ops.append(f'v_add_f32 v{S+a}, v{S+a}, v{S+a+1}')
    ops.append(f'v_add_f32 v{S+8}, v{S+8}, v{MC}')
    for a in (0, 4): ops.append(f'v_permlane16_swap_b32 v{S+a}, v{S+a+2}')
    ops.append(f'v_permlane16_swap_b32 v{S+8}, v{MC+1}')
    for a in (0, 4): ops.append(f'v_add_f32 v{S+a}, v{S+a}, v{S+a+2}')
    ops.append(f'v_add_f32 v{S+8}, v{S+8}, v{MC+1}')
    for a in (0, 4, 8): ops.append(f'ds_write_b32 v{ta}, v{S+a} offset:{a * 512}')
    return ops

def k1_sm0(em, qh):
    for qt in range(9): em.op(f'ds_read_b32 v{MC+qt}, v{vMS} offset:{qt*64}')
    for qt in range(9): em.op(f'v_mul_f32 v{MC+qt}, s{sC}, v{MC+qt}')
    main = []
    for qt in range(9):
        main += expops(0, qt, True)
        if qh == 0: main.append(pwrite(0, qt, qh))
    for qt in range(9): main += expops(1, qt, True)
    main += sum_ops()
    interleave(em, main, (v_reg_ops(em) if cfg.vreg and (qh == 1 or not cfg.vold) else [], 0, cfg.vrf / 100))
    em.st.stamp('exp0')
    em.wait_vm_tag('V0', lgkm0=True); em.barrier()
    em.st.stamp('PV0')

def k1_pv(em, qh):
    nq = 5 if qh == 0 else 4
    q0 = 0 if qh == 0 else 5
    L = f'v{vLANE}'
    t0 = TMP[4]
    rf = cfg.rfrac / 100
    PBF = PBF0 if qh == 0 else PBF1
    INV = INV0 + 2 * qh
    PAF = PAF0 if qh == 0 else PAF1
    def pv_reads(s, step, st):
        ops = []
        slot = s % NV
        base = vRB if slot < 2 else vRC
        off = (slot % 2) * 24576 + step * 12288
        for t in range(3):
            ops.append(f'ds_read_b64_tr_b16 {vr(PAF[st][t], 2)}, v{base[t]} offset:{off}')
            ops.append(f'ds_read_b64_tr_b16 {vr(PAF[st][t] + 2, 2)}, v{base[t]} offset:{off + 6144}')
        pa, po = vPA, ((2 * s + step) % 6) * 9216
        xs = [f'ds_read_b128 {vr(PBF[st][j])}, v{pa} offset:{po + j * 1024}' for j in range(nq)]
        return ops[0:2] + xs[0:1] + ops[2:6] + xs[1:]
    OACC = OACC0 if qh == 0 else OACC1
    def mf(st, first):
        return [mfma(OACC[j*3+t], PAF[st][t], PBF[st][j], None if first else OACC[j*3+t]) for j in range(nq) for t in range(3)]
    def inv_ops():
        ta = TMP[2]; ops = []
        ops += [f'v_and_b32 v{ta}, 15, {L}', f'v_lshlrev_b32 v{ta}, 5, v{ta}', f'v_add_u32 v{ta}, {SUMB + q0 * 512}, v{ta}']
        for j in range(nq):
            ops += [f'ds_read_b128 {vr(64 + 8*j)}, v{ta} offset:{j * 512}', f'ds_read_b128 {vr(68 + 8*j)}, v{ta} offset:{j * 512 + 16}']
        for j in range(nq):
            r = 64 + 8*j
            ops += [f'v_add_f32 v{r}, v{r}, v{r+1}', f'v_add_f32 v{r+2}, v{r+2}, v{r+3}', f'v_add_f32 v{r+4}, v{r+4}, v{r+5}', f'v_add_f32 v{r+6}, v{r+6}, v{r+7}',
                    f'v_add_f32 v{r}, v{r}, v{r+2}', f'v_add_f32 v{r+4}, v{r+4}, v{r+6}', f'v_add_f32 v{r}, v{r}, v{r+4}', f'v_rcp_f32 v{INV+2*j}, v{r}']
        cap = Cap()
        for t in range(3):
            cap.op(f's_mul_i32 s{sT0}, s{sDG}, 3'); cap.op(f's_add_u32 s{sT0}, s{sT0}, {t}')
            cap.op(f's_lshr_b32 s{sT1}, s{sT0}, 2'); cap.op(f's_mul_i32 s{sT1}, s{sT1}, 40960')
            cap.op(f's_bfe_u32 s{sT2}, s{sT0}, 0x10001'); cap.op(f's_mul_i32 s{sT2}, s{sT2}, 9216'); cap.op(f's_add_u32 s{sT1}, s{sT1}, s{sT2}')
            cap.op(f's_and_b32 s{sT0}, s{sT0}, 1'); cap.op(f's_lshl_b32 s{sT0}, s{sT0}, 3')
            cap.op(f's_add_u32 s{sT0}, s{sT0}, s{sT1}'); cap.op(f's_add_u32 s{sT0}, s{sT0}, 20480')
            cap.op(f'v_add_u32 v{vRB[t]}, s{sT0}, v{vPA}')
        return ops + cap.ops
    def ex(h):
        o = []
        if qh == 0 and h in (5, 6): o += [pwrite(1, qt, qh) for qt in (range(5) if h == 5 else range(5, 9))]
        if qh == 1 and h in (1, 2): o += [pwrite(0, qt, qh) for qt in (range(5) if h == 1 else range(5, 9))]
        if qh == 1 and h in (9, 10): o += [pwrite(1, qt, qh) for qt in (range(5) if h == 9 else range(5, 9))]
        return o
    TS = tail_setup_ops(qh)
    def wopre_ops(i):
        ta = TMP[2 + (i & 1)]
        ops = [f's_mul_i32 s{sT0}, s{sX}, 983040', f's_mul_i32 s{sT1}, s{sLOC}, 30720', f's_add_u32 s{sT0}, s{sT0}, s{sT1}', f's_add_u32 s{sT0}, s{sT0}, {i * 8192}',
               f'v_lshlrev_b32 v{ta}, 4, v0', f'v_add_u32 v{ta}, s{sT0}, v{ta}', f'v_min_u32 v{ta}, {7864320 - 16}, v{ta}',
               f'global_load_dwordx4 {vr(212)}, v{ta}, s[14:15]' + (' nt' if cfg.wont else '')]
        return ops
    for o in pv_reads(0, 0, 0): em.op(o)
    for s in range(8):
        e = ex(2*s)
        if 2*s == 12: e = TS[:len(TS)//3]
        if 2*s == 14: e = TS[2*len(TS)//3:]
        w = wopre_ops(s - 3) if cfg.wopre and 2*s in (6, 8, 10) else []
        interleave(em, mf(0, s == 0), (pv_reads(s, 1, 1), 0, rf), (e, 0, cfg.efrac / 100), (w, 0.5, 0.51))
        if s < (3 if cfg.vreg else 7): em.wait_vm_tag(f'V{s+1}', lgkm0=True)
        else: em.wait_lgkm0()
        em.barrier()
        em.st.stamp(f'PB{s}')
        rd = pv_reads(s + 1, 0, 0) if s < 7 else []
        dm = (v_put_ops(s + NV) if cfg.vreg else v_dma_ops(em, s + NV)) if s + NV <= 7 else []
        e = ex(2*s+1)
        if 2*s+1 == 11: e = inv_ops()
        if 2*s+1 == 13: e = TS[len(TS)//3: 2*len(TS)//3]
        if 2*s+1 == 15:
            if qh == 0: dm = tail_dma(em, 0) + tail_dma(em, 1)
        w = wopre_ops(3) if cfg.wopre and 2*s+1 == 9 else []
        interleave(em, mf(1, False), (dm, 0.3 if s < 7 and cfg.vreg else 0, (0.9 if cfg.vreg else 0.4) if s < 7 else 1), (rd, 0, rf + 0.1), (e, 0, 1), (w, 0.5, 0.51))
    late = tail_dma(em, 2) if qh == 0 else []
    main = []
    for j in range(nq):
        for t in range(3):
            a = OACC[j*3+t]
            m = INV + 2*j
            main += [f'v_pk_mul_f32 {vr(a,2)}, {vr(a,2)}, {vr(m,2)} op_sel_hi:[1,0]', f'v_pk_mul_f32 {vr(a+2,2)}, {vr(a+2,2)}, {vr(m,2)} op_sel_hi:[1,0]',
                     f'v_cvt_pk_bf16_f32 v{a}, v{a}, v{a+1}', f'v_cvt_pk_bf16_f32 v{a+1}, v{a+2}, v{a+3}',
                     f'ds_write_b64 v{vRB[t]}, {vr(a,2)} offset:{j * 1024}']
    interleave(em, main, (late, 0, 1))
    em.wait_vm_tag('T0', lgkm0=True); em.barrier()
    em.st.stamp('BO')
    if qh == 0:
        em.op(f's_cmp_lt_u32 s{sW}, 2')
        em.op('s_cbranch_scc0 L_tail1')
        st = em.save(); sn = (em.st.n, list(em.st.names))
        tail(em, 0)
        em.label('L_tail1')
        em.restore(st); em.st.n, em.st.names = sn[0], list(sn[1])
        tail(em, 1)
    else:
        tail(em, 2)

STG2 = 40960
vOFFS = [64, 65, 66, 67, 68]; vA2 = [69, 70, 71, 72, 73]; vB2 = 74
SD, SP, SPR, SOUT = SX, SWQ, SK, SV
def tail_setup_ops(qh):
    c = Cap(); L = f'v{vLANE}'
    t0, t1, t2, t3 = 96, 97, 98, 99
    if qh == 0:
        c.op(f's_mul_i32 s{sT0}, s{sX}, 983040'); c.op(f's_mul_i32 s{sT1}, s{sJ}, 320'); c.op(f's_add_u32 s{sT0}, s{sT0}, s{sT1}')
        srd(c, SD, 14, 15, f's{sT0}', 7864320)
        c.op(f's_sub_u32 s{SD+2}, s{SD+2}, s{sT0}')
        c.op(f's_mov_b32 s{sSTR}, 81920')
        hs = 245760
        c.op(f's_lshl_b32 s{sT2}, s{sW}, 4')
        c.op(f's_mov_b32 s{sT1}, 52429')
        for j in range(5):
            c.op(f'v_add_u32 v{t0}, {j * 64}, {L}')
            c.op(f'v_mul_lo_u32 v{t1}, v{t0}, s{sT1}')
            c.op(f'v_lshrrev_b32 v{t1}, 20, v{t1}')
            c.op(f'v_mul_u32_u24 v{t2}, 20, v{t1}')
            c.op(f'v_sub_u32 v{t2}, v{t0}, v{t2}')
            c.op(f'v_bfe_u32 v{t3}, v{t1}, 2, 1')
            c.op(f'v_lshlrev_b32 v{t3}, 1, v{t3}')
            c.op(f'v_xor_b32 v{t2}, v{t2}, v{t3}')
            c.op(f'v_lshlrev_b32 v{t2}, 4, v{t2}')
            c.op(f'v_add_u32 v{t1}, s{sT2}, v{t1}')
            c.op(f'v_mul_u32_u24 v{t1}, 1280, v{t1}')
            c.op(f'v_add_u32 v{vOFFS[j]}, v{t1}, v{t2}')
    else:
        c.op(f's_lshl_b32 s{sT0}, s{sB}, 5'); c.op(f's_lshl_b32 s{sT1}, s{sX}, 2'); c.op(f's_add_u32 s{sT0}, s{sT0}, s{sT1}')
        c.op(f's_mul_i32 s{sT0}, s{sT0}, {O_HEAD}')
        srd(c, SD, 12, 13, f's{sT0}', 4 * O_HEAD)
        c.op(f's_mov_b32 s{sSTR}, 18432')
        hs = O_HEAD
        c.op(f's_mul_i32 s{sT2}, s{sDG}, 5120')
        c.op(f'v_lshlrev_b32 v{t0}, 4, {L}')
        c.op(f'v_add_u32 v{t0}, s{sT2}, v{t0}')
        for j in range(5): c.op(f'v_add_u32 v{vOFFS[j]}, {j * 1024}, v{t0}')
    c.op(f's_mul_i32 s{sM0T}, s{sW}, 5120')
    for i in range(4):
        c.op(f's_add_u32 s{sT0}, s{sJ}, {i}'); c.op(f's_and_b32 s{sT0}, s{sT0}, 3'); c.op(f's_mul_i32 s{sHB+i}, s{sT0}, {hs}')
    c.op(f's_and_b32 s{sNH}, s{sW}, 1')
    c.op(f'v_lshrrev_b32 v{t0}, 2, {L}')
    c.op(f'v_mul_u32_u24 v{t0}, 320, v{t0}')
    c.op(f'v_and_b32 v{t1}, 3, {L}'); c.op(f'v_lshlrev_b32 v{t1}, 3, v{t1}')
    c.op(f'v_add_u32 v{t0}, v{t0}, v{t1}')
    c.op(f'v_bfe_u32 v{t1}, {L}, 4, 1')
    c.op(f's_mul_i32 s{sT0}, s{sNH}, 5')
    for t in range(5):
        c.op(f's_add_u32 s{sT1}, s{sT0}, {t}')
        c.op(f'v_xor_b32 v{t2}, s{sT1}, v{t1}')
        c.op(f'v_lshlrev_b32 v{t2}, 5, v{t2}')
        c.op(f'v_add_u32 v{vA2[t]}, v{t0}, v{t2}')
    c.op(f's_lshr_b32 s{sT0}, s{sW}, 1')
    c.op(f's_mov_b32 s{sT1}, 0x7350')
    c.op(f's_lshl_b32 s{sT0}, s{sT0}, 2')
    c.op(f's_lshr_b32 s{sQ0}, s{sT1}, s{sT0}')
    c.op(f's_and_b32 s{sQ0}, s{sQ0}, 15')
    c.op(f's_lshl_b32 s{sT0}, s{sQ0}, 10')
    c.op(f's_add_u32 s{sT0}, s{sT0}, 20480')
    c.op(f'v_lshlrev_b32 v{vB2}, 4, {L}')
    c.op(f'v_add_u32 v{vB2}, s{sT0}, v{vB2}')
    c.op(f's_lshl_b32 s{sT0}, s{sB}, 3'); c.op(f's_add_u32 s{sT0}, s{sT0}, s{sX}'); c.op(f's_lshl_b32 s{sT0}, s{sT0}, 7'); c.op(f's_add_u32 s{sT0}, s{sT0}, {FLAG_OFF + 4096}')
    c.op(f's_add_u32 s{sF1}, s12, s{sT0}'); c.op(f's_addc_u32 s{sF1+1}, s13, 0')
    c.op(f's_lshl_b32 s{sT0}, s{sLOC}, 7'); c.op(f's_add_u32 s{sT0}, s{sT0}, {FLAG_OFF + 16384}')
    c.op(f's_add_u32 s{sF2}, s12, s{sT0}'); c.op(f's_addc_u32 s{sF2+1}, s13, 0')
    c.op(f's_mul_i32 s{sT0}, s{sLOC}, {8 * PART2}'); c.op(f's_add_u32 s{sT0}, s{sT0}, {WS_PART}')
    srd(c, SPR, 12, 13, f's{sT0}', 8 * PART2)
    c.op(f's_mul_i32 s{sT1}, s{sX}, {PART2}'); c.op(f's_add_u32 s{sT0}, s{sT0}, s{sT1}')
    srd(c, SP, 12, 13, f's{sT0}', PART2)
    srd(c, SOUT, 54, 55, None, 1474560)
    return c.ops

def tail_dma(em, s, orole=False):
    ops = []
    sc = ' sc1' if (orole and cfg.sc_ol) else ''
    for j in range(5):
        def f(j=j):
            em.op(f's_add_u32 m0, s{sM0T}, {(s % 3) * STG2 + j * 1024}')
            if j == 0:
                if s % 3 == 0: em.op(f's_mov_b32 s{sOFF}, s{sHB + s // 3}')
                else: em.op(f's_add_u32 s{sOFF}, s{sOFF}, s{sSTR}')
            em.op(f'buffer_load_dwordx4 v{vOFFS[j]}, {sr(SD,4)}, s{sOFF} offen{sc} lds', tag=f'T{s}')
        ops.append(f)
    return ops

def flag_store(em, base, idx_s, lab, wave):
    t0, t1 = 50, 51
    em.op(f's_cmp_eq_u32 s{sW}, {wave}')
    em.op(f's_cbranch_scc0 {lab}')
    em.begin_opt()
    em.op(f's_lshl_b32 s{sT0}, s{idx_s}, 2')
    em.op(f'v_mov_b32 v{t0}, s{sT0}')
    em.op(f'v_mov_b32 v{t1}, s{sTAG}')
    em.op('s_mov_b64 exec, 1')
    em.op(f'global_store_dword v{t0}, v{t1}, s[{base}:{base+1}] sc1')
    em.op('s_mov_b64 exec, -1')
    em.end_opt()
    em.label(lab)

def poll(em, base, mask, lab):
    t0, t1 = 52, 53
    em.op(f'v_and_b32 v{t0}, {mask}, v{vLANE}')
    em.op(f'v_lshlrev_b32 v{t0}, 2, v{t0}')
    em.op(f's_mov_b32 s{sCNT}, 0x20000')
    em.wait_vm0()
    em.label(lab)
    em.op(f'global_load_dword v{t1}, v{t0}, s[{base}:{base+1}] sc1')
    em.op(f's_sub_u32 s{sCNT}, s{sCNT}, 1')
    em.op(f's_cbranch_scc1 {lab}_done')
    em.wait_vm0()
    em.op(f'v_cmp_ne_u32 vcc, s{sTAG}, v{t1}')
    em.op('s_nop 4')
    em.op(f's_cbranch_vccz {lab}_done')
    em.op('s_sleep 1')
    em.op(f's_branch {lab}')
    em.label(f'{lab}_done')
    em.wait_vm0()

def tail(em, tv):
    nq = 3 if tv == 0 else 2
    orole = tv == 2
    L = f'v{vLANE}'
    rf = cfg.rfrac / 100
    sc = ' sc1' if cfg.sc else ''
    ACC2 = 116; AF = [76, 96]; BF = [16, 28]; CO = 176
    t0, t1, t2, t3 = 40, 41, 42, 43
    em.op(f'v_lshlrev_b32 v{t0}, 4, v0')
    em.op(f'v_add_u32 v{t1}, 20480, v{t0}')
    em.op(f'v_add_u32 v{t2}, {STG2 + 20480}, v{t0}')
    npc = 3 if tv == 0 else 2
    k = 0; sts = []
    for c in range(3):
        for i in range(npc):
            va, off = (t1, 0) if c == 0 else (t2, (c - 1) * STG2)
            em.op(f'ds_read_b128 {vr(CO + 4*k)}, v{va} offset:{off + i * 8192}')
            sts.append((CO + 4*k, c * 18432 + i * 8192)); k += 1
    def reads(step, st_):
        ops = []
        for t in range(5):
            ops.append(f'ds_read_b64_tr_b16 {vr(AF[st_] + 4*t, 2)}, v{vA2[t]} offset:{step * 10240}')
            ops.append(f'ds_read_b64_tr_b16 {vr(AF[st_] + 4*t + 2, 2)}, v{vA2[t]} offset:{step * 10240 + 5120}')
        xs = [f'ds_read_b128 {vr(BF[st_] + 4*j)}, v{vB2} offset:{step * 9216 + j * 1024}' for j in range(nq)]
        return ops[0:2] + xs + ops[2:]
    def mf(st_, first):
        return [mfma(ACC2 + 4*(t*nq+j), AF[st_] + 4*t, BF[st_] + 4*j, None if first else ACC2 + 4*(t*nq+j)) for t in range(5) for j in range(nq)]
    for r, off in sts:
        em.op(f's_mov_b32 s{sT0}, {off}')
        em.op(f'buffer_store_dwordx4 {vr(r)}, v{t0}, {sr(SO,4)}, s{sT0} offen' + ['', ' sc1', ' nt', ' sc0'][cfg.sc_o], tag='CO')
    for o in reads(0, 0): em.op(o)
    carry = []
    for s in range(12):
        interleave(em, mf(0, s == 0), (reads(1, 1), 0, rf), (carry, 0.05, 0.95))
        carry = []
        if s < 11:
            if s == 0: em.wait_vm0(); em.wait_lgkm0()
            else: em.wait_vm_tag(f'T{s+1}', lgkm0=True)
            em.barrier()
            em.st.stamp(f'T{s}')
        if s == 0 and orole: flag_store(em, sF1, sJ, 'L_f1', 4)
        fill = []; dm = []
        if s < 11:
            d = STG2 if (s + 1) % 3 else -2 * STG2
            fill += [f'v_add_u32 v{r}, {d & 0xffffffff}, v{r}' for r in vA2 + [vB2]]
            fill += reads(0, 0)
        if s + 3 <= 11:
            if not orole or s >= 2:
                dm = tail_dma(em, s + 3, orole); dm, carry = dm[:3], dm[3:]
            elif s == 1:
                poll(em, sF1, 3, 'L_p1')
                em.st.stamp('poll')
                for f in tail_dma(em, 3, True): f()
                dm = tail_dma(em, 4, True)
        interleave(em, mf(1, False), (dm, 0.05, 0.95), (fill, 0, rf + 0.1))
    em.st.stamp('TP')
    em.op(f'v_and_b32 v{t1}, 15, {L}'); em.op(f'v_mul_u32_u24 v{t1}, 336, v{t1}')
    em.op(f'v_lshrrev_b32 v{t2}, 4, {L}'); em.op(f'v_lshlrev_b32 v{t2}, 3, v{t2}')
    em.op(f's_mul_i32 s{sT0}, s{sQ0}, {16 * 336}'); em.op(f's_mul_i32 s{sT1}, s{sNH}, 160'); em.op(f's_add_u32 s{sT0}, s{sT0}, s{sT1}')
    em.op(f'v_add3_u32 v{t1}, v{t1}, v{t2}, s{sT0}')
    em.op(f's_mov_b32 s{sT2}, 52429')
    pre = []
    for i in range(6):
        r = 176 + i
        pre += [f'v_add_u32 v{r}, {512 * i}, v0', f'v_mul_lo_u32 v{t2}, v{r}, s{sT2}', f'v_lshrrev_b32 v{t2}, 20, v{t2}', f'v_add_lshl_u32 v{r}, v{r}, v{t2}, 4']
    for o in pre: em.op(o)
    for t in range(5):
        for j in range(nq):
            a = ACC2 + 4*(t*nq+j)
            em.op(f'v_cvt_pk_bf16_f32 v{a}, v{a}, v{a+1}')
            em.op(f'v_cvt_pk_bf16_f32 v{a+1}, v{a+2}, v{a+3}')
            em.op(f'ds_write_b64 v{t1}, {vr(a,2)} offset:{j * 16 * 336 + t * 32}')
    em.wait_lgkm0(); em.barrier()
    for i in range(6): em.op(f'ds_read_b128 {vr(76 + 4*i)}, v{176 + i}')
    for i in range(6):
        em.op(f's_mov_b32 s{sT0}, {i * 8192}')
        em.op(f'buffer_store_dwordx4 {vr(76 + 4*i)}, v{t0}, {sr(SP,4)}, s{sT0} offen{sc}')
    em.op(f's_mul_i32 s{sT0}, s{sX}, 5760')
    em.op(f'v_add_u32 v{t1}, s{sT0}, v{t0}')
    em.op(f'v_mul_lo_u32 v{t2}, v0, s{sT2}'); em.op(f'v_lshrrev_b32 v{t2}, 20, v{t2}')
    em.op(f'v_mul_u32_u24 v{t2}, 960, v{t2}')
    em.op(f's_mul_i32 s{sT0}, s{sB}, 144'); em.op(f's_mul_i32 s{sT1}, s{sX}, 18'); em.op(f's_add_u32 s{sT0}, s{sT0}, s{sT1}')
    em.op(f's_mul_i32 s{sT0}, s{sT0}, 1280'); em.op(f's_mul_i32 s{sT1}, s{sJ}, 320'); em.op(f's_add_u32 s{sT0}, s{sT0}, s{sT1}')
    em.op(f'v_add3_u32 v{t2}, v{t2}, v{t0}, s{sT0}')
    em.op(f'v_mov_b32 v{t3}, 0x7ffffff0')
    em.op(f'v_cmp_gt_u32 vcc, 360, v0')
    em.op(f'v_cndmask_b32 v{t2}, v{t3}, v{t2}, vcc')
    em.wait_vm0(); em.barrier()
    em.st.stamp('TW')
    if tv == 2:
        flag_store(em, sF2, sX, 'L_f2', 7)
        em.op(f's_cmp_ge_u32 s{sW}, 6')
        em.op(f's_cbranch_scc1 L_fin2')
    poll(em, sF2, 7, f'L_p2_{tv}')
    em.st.stamp('TF')
    for x in range(8):
        em.op(f's_mov_b32 s{sT0}, {x * PART2}')
        em.op(f'buffer_load_dwordx4 {vr(76 + 4*x)}, v{t1}, {sr(SPR,4)}, s{sT0} offen{sc}')
    if tv == 0:
        em.op(f's_or_b32 s{sT0}, s{sH}, s{sW}')
        em.op(f's_cmp_eq_u32 s{sT0}, 0')
        em.op('s_cbranch_scc0 L_nw')
        em.begin_opt()
        em.op(f's_lshl_b32 s{sT0}, s{sB}, 8'); em.op(f's_add_u32 s{sT0}, s{sT0}, {FLAG_OFF}')
        em.op(f'v_mov_b32 v60, s{sT0}'); em.op(f'v_mov_b32 v61, s{sTAG}')
        em.op('s_mov_b64 exec, 1')
        em.op('global_store_dword v60, v61, s[12:13]')
        em.op('s_mov_b64 exec, -1')
        em.end_opt()
        em.label('L_nw')
    A = 108
    for x in range(8):
        for d in range(4):
            r = 76 + 4*x + d
            if x == 0:
                em.op(f'v_lshlrev_b32 v{A+2*d}, 16, v{r}'); em.op(f'v_and_b32 v{A+2*d+1}, 0xffff0000, v{r}')
            else:
                em.op(f'v_lshlrev_b32 v{A+8}, 16, v{r}'); em.op(f'v_and_b32 v{A+9}, 0xffff0000, v{r}')
                em.op(f'v_pk_add_f32 {vr(A+2*d,2)}, {vr(A+2*d,2)}, {vr(A+8,2)}')
    for d in range(4): em.op(f'v_cvt_pk_bf16_f32 v{A+d}, v{A+2*d}, v{A+2*d+1}')
    em.op(f'buffer_store_dwordx4 {vr(A)}, v{t2}, {sr(SOUT,4)}, 0 offen')
    em.st.stamp('TL')
    if tv == 2: em.label('L_fin2')
    if cfg.diag: em.wait_vm0()
    em.st.flush(12, 0, sW, 244)
    em.op('s_endpgm')

def kernel_header(name):
    return f'.globl {name}\n.p2align 8\n.type {name},@function\n{name}:\n'
def kernel_desc(name, vgpr, sgpr=102):
    return f'''.amdhsa_kernel {name}
  .amdhsa_next_free_vgpr {vgpr}
  .amdhsa_next_free_sgpr {sgpr}
  .amdhsa_accum_offset {(vgpr + 3) // 4 * 4}
  .amdhsa_group_segment_fixed_size 0
  .amdhsa_kernarg_size 64
  .amdhsa_user_sgpr_count 2
  .amdhsa_user_sgpr_kernarg_segment_ptr 1
  .amdhsa_system_sgpr_workgroup_id_x 1
.end_amdhsa_kernel
'''

def gen_k1():
    em = Em()
    k1_prologue(em)
    st0 = em.save()
    em.label('k1_body_start')
    for qh in range(2):
        if qh: em.label('L_qp1')
        em.restore(st0)
        k1_qproj(em, qh, 0)
        k1_qk(em, qh)
        k1_sm0(em, qh)
        k1_pv(em, qh)
    em.label('k1_body_end')
    em.label('L_k1_exit')
    em.op('s_endpgm')
    return em

def main():
    ref = open('cdna_kernels/' + NAME + '.s.ref').read().split('\n')
    head = [l for l in ref[:9]]
    k1 = gen_k1()
    KN = NAME + '_kernel'
    out = '\n'.join(head) + '\n'
    out += f'; @launch grid=(256,1,1) block=(512,1,1) lds={LDS1}\n'
    out += '.amdgcn_target "amdgcn-amd-amdhsa--gfx950"\n.text\n'
    out += kernel_header(KN) + k1.text()
    out += '.section .rodata,"a"\n.p2align 6\n' + kernel_desc(KN, 256)
    open(sys.argv[1], 'w').write(out)
    print('k1 instrs', k1.count, 'nops', k1.nops, file=sys.stderr)
main()
```

```python
import sys, struct, math
from em import Em, interleave, emit

NAME = 'standalone__gqa_block_cached__near_ridge'
def fbits(x): return struct.unpack('<I', struct.pack('<f', x))[0]

class Cfg:
    nt_kv = True
    nt_w = False
    nt_k2 = False
    two_types = True
    pre = True
    code_pre = True
    diag = False
    pk = True
    rfrac = 60
    prio = 0
    x_noexp = 0
    x_nopw = 0
    efrac = 95
    loopb = -1
    st = 0
    dbg = 0
    n0 = 0
    inpv0 = 0
    inpv1 = 0
    pfa = 5
    kq = 16
    kq0 = 6
    wont = 0
    vrf = 60
    x_ren = 0
    vrole = 1
    vfirst = 0
    vold = 0
    vh0 = 12
    vreg = 0
    nvy = 4
    sc_o = 1
    sc_ol = 1
    rt = 0
    qloop = 0
    x_qnodma = 0
    x_qnord = 0
    dlo = 10
    dhi = 95
    dsplit = 3
    x_delay = 0
    wopre = 1
    sc = 1
    x_nobar = 0
    x_nord = 0
    x_nodma = 0
cfg = Cfg()
cfg.pvst = (3,7); cfg.qst = (0,8,)
if 'pvall=1' in sys.argv: sys.argv.remove('pvall=1'); cfg.pvst = (0,1,2,3,4,5,6,7); cfg.qst = (); cfg.fewst = True
else: cfg.fewst = False
for a in sys.argv[2:]:
    k, v = a.split('='); setattr(cfg, k, type(getattr(cfg, k))(int(v)))
STSETS = {0: 'S0 BQ BM PV0 BO T0 T2 TP TW TF', 1: 'ka pi si S0 B0 B8 BQ K0 K1 QKend BM exp0 PV0', 2: 'PV0 PB0 PB1 PB2 PB3 PB4 PB5 PB6 PB7 BO', 3: 'BO T0 T1 poll T2 T3 T10 TP TW TF', 4: 'K0 K1 QKend BM exp0 PV0 PB3 PB7 BO T0', 5: 'S0 LB0 LBend BQ', 6: 'S0 B0 B1 B2 B3 B5 B7 B8 B9 BQ', 7: 'BO T0 T1 T2 T3 T4 T6 T8 T10 TP'}
cfg.stlist = ['rt0', 'start'] + STSETS[cfg.st].split()[:10] + ['end', 'rt_end']
cfg.pvst = range(8); cfg.qst = range(10)

def vr(b, n=4): return f'v[{b}:{b + n - 1}]' if n > 1 else f'v{b}'
def sr(b, n): return f's[{b}:{b + n - 1}]'
MF = 'v_mfma_f32_16x16x32_bf16'
def mfma(d, a, b, c=None):
    return f'{MF} {vr(d)}, {vr(a)}, {vr(b)}, ' + ('0' if c is None else vr(c))

FLAG_OFF = 48 << 20
PART2 = 46080
O_HEAD = 55296
WS_PART = 16 << 20
PART_TILE = 90 * 1024

def srd(em, d, base_lo, base_hi, off_sgpr, size):
    if off_sgpr is None:
        em.op(f's_mov_b32 s{d}, s{base_lo}'); em.op(f's_mov_b32 s{d+1}, s{base_hi}')
    else:
        em.op(f's_add_u32 s{d}, s{base_lo}, {off_sgpr}'); em.op(f's_addc_u32 s{d+1}, s{base_hi}, 0')
    em.op(f's_mov_b32 s{d+2}, {size}')
    em.op(f's_mov_b32 s{d+3}, 0x20000')

_lab = [0]
DIAG_OFF = 64 << 20
class Stamps:
    def __init__(self, em):
        self.em = em; self.n = 0; self.names = []
        if cfg.diag:
            for i in range(len(cfg.stlist)): em.op(f's_mov_b32 s{60 + 2*i}, 0')
    def stamp(self, name, real=False):
        if not cfg.diag or name not in cfg.stlist: return
        em = self.em; i = cfg.stlist.index(name)
        em.wait_lgkm0()
        em.op(('s_memrealtime' if (real or cfg.rt) else 's_memtime') + f' s[{60 + 2*i}:{61 + 2*i}]')
        em.op('s_waitcnt lgkmcnt(0)')
    def flush(self, ws_lo, kidx, wave_s, tv):
        if not cfg.diag: return
        em = self.em
        self.stamp('end'); self.stamp('rt_end', real=True)
        if cfg.dbg:
            _lab[0] += 1
            em.op('s_load_dwordx2 s[56:57], s[0:1], 48')
            em.op(f's_and_b32 s58, s2, 0xdf'); em.op(f's_or_b32 s58, s58, s{wave_s}'); em.op('s_cmp_eq_u32 s58, 0')
            em.op('s_waitcnt lgkmcnt(0)')
            em.op(f's_cbranch_scc0 L_dbg{_lab[0]}')
            em.op(f'v_mov_b32 v{tv}, s2')
            for k, i in enumerate([2, 3, 4, 13, 6, 9, 11, 12]):
                em.op(f's_sub_u32 s58, s{60 + 2*i}, s{60 if i == 13 else 62}')
                em.op(f'v_mov_b32 v{tv+1}, s58')
                em.op(f'global_store_dword v{tv}, v{tv+1}, s[56:57] offset:{4*k}')
            em.label(f'L_dbg{_lab[0]}')
            return
        em.op(f's_lshl_b32 s56, s2, 3'); em.op(f's_add_u32 s56, s56, s{wave_s}'); em.op('s_lshl_b32 s56, s56, 7')
        em.op(f's_add_u32 s56, s56, {DIAG_OFF + (kidx << 20)}')
        em.op(f's_add_u32 s56, s{ws_lo}, s56'); em.op(f's_addc_u32 s57, s{ws_lo+1}, 0')
        em.op(f'v_mov_b32 v{tv}, 0')
        for i in range(len(cfg.stlist)):
            em.op(f'v_mov_b32 v{tv+1}, s{60 + 2*i}')
            em.op(f'global_store_dword v{tv}, v{tv+1}, s[56:57] offset:{4*i}')
        print('stamps', kidx, cfg.stlist, file=sys.stderr)

SX, SWQ, SK, SV, SO = 16, 20, 24, 28, 32
sW, sW3072, sW1024, sTYPE, sOFF, sT0, sT1, sT2, sC, sB, sH, sJ, sLOC, sX = 36, 37, 38, 39, 40, 41, 42, 43, 44, 52, 46, 47, 48, 53
vLANE, vXO, vWO, vK0, vK1, vVO = 1, 2, 3, 4, 5, 6
vRA = [7, 8]
vRB = [9, 10, 11]
vRC = [12, 13, 14]
vT = 15
vVW, vVW2 = 7, 8
vPA, vPW, vMS = 240, 242, 243
vPW2 = 241
TMP = list(range(244, 256))
STG = 43008
PBASE, VBASE, MAXB, SUMB = 0, 55296, 153600, 155648
NV = 4
LDS1 = SUMB + 12 * 512
KSP = 16
def KR0(p): return 20 + 8 * p
def KR1(p): return 24 + 8 * p
def KT(p): return KSP if p == 0 else KR1(p - 1)
def kop(kt, ks):
    p = (kt // 2) * 6 + (ks // 2) * 2 + (kt % 2)
    return KR0(p) if ks % 2 == 0 else KT(p)
def sreg(kt, qt):
    if kt < 2: return 116 + 4 * (qt * 2 + kt)
    i = qt * 2 + (kt - 2)
    return 16 + 4 * i if i < 12 else 188 + 4 * (i - 12)
ACC = 116
MC = 212
SUM = 221
SUMP = 222
QF = 224
OACC0 = [116 + 4*i for i in range(15)]
OACC1 = [120 + 8*i for i in range(9)] + [112, 2, 248]
PAF0 = [[176, 180, 184], [20, 28, 36]]
PAF1 = [[20, 28, 36], [44, 52, 60]]
PBF0 = [[44, 52, 60, 192, 200], [208, 112, 2, 248, 252]]
PBF1 = [[192, 200, 208, 252], [216, 220, 224, 228]]
INV0 = 230
NEXP1 = 4


def k_load_ops(em, half):
    nt = ' nt' if cfg.nt_kv else ''
    ops = []
    for c in range(3):
        for k in range(2):
            p = half * 6 + c * 2 + k
            kt = half * 2 + k
            for (dst, va) in ((KR0(p), vK0), (KR1(p), vK1)):
                def f(dst=dst, va=va, kt=kt, c=c):
                    em.op(f's_mov_b32 s{sOFF}, {kt * 6144}')
                    em.op(f'buffer_load_dwordx4 {vr(dst)}, v{va}, {sr(SK,4)}, s{sOFF} offen offset:{c*128}{nt}', tag=f'K{half}')
                ops.append(f)
    return ops

def k_fix_ops(half):
    ops = []
    for pp in range(6):
        p = half * 6 + pp
        for d in range(4):
            r0, r1, t = KR0(p) + d, KR1(p) + d, KT(p) + d
            ops.append(f'v_mov_b32_dpp v{t}, v{r0} row_ror:8 row_mask:0xf bank_mask:0x3')
            ops.append(f'v_mov_b32_dpp v{t}, v{r1} row_ror:8 row_mask:0xf bank_mask:0xc')
            ops.append(f'v_mov_b32_dpp v{r0}, v{r1} quad_perm:[0,1,2,3] row_mask:0xf bank_mask:0xc')
    return ops

def stage_dma_ops(em, s, qh):
    nt = ' nt' if cfg.nt_w else ''
    slot = (s % 3) * STG
    ops = []
    for c in range(3):
        def f(c=c):
            em.op(f's_add_u32 m0, s{sW3072}, {slot + c * 896}')
            em.op(f's_mov_b32 s{sOFF}, {s * 786432}')
            em.op(f'buffer_load_dwordx4 v{vWO}, {sr(SWQ,4)}, s{sOFF} offen offset:{c*128}{nt} lds', tag=f'S{s}')
        ops.append(f)
    for j in range(2):
        def f(j=j):
            em.op(f's_add_u32 m0, s{sW1024}, {slot + j * 8192}')
            em.op(f's_mov_b32 s{sOFF}, {s * 128 + j * 81920}')
            em.op(f'buffer_load_dwordx4 v{vXO}, {sr(SX,4)}, s{sOFF} offen{nt} lds', tag=f'S{s}')
        ops.append(f)
    if qh == 1:
        def f():
            _lab[0] += 1
            lab = f'L_x{_lab[0]}'
            em.op(f's_cmp_lt_u32 s{sW}, 6')
            em.op(f's_cbranch_scc0 {lab}')
            em.begin_opt()
            em.op(f's_add_u32 m0, s{sW1024}, {slot + 12288}')
            em.op(f's_mov_b32 s{sOFF}, {s * 128 + 122880}')
            em.op(f'buffer_load_dwordx4 v{vXO}, {sr(SX,4)}, s{sOFF} offen{nt} lds', tag=f'S{s}')
            em.end_opt()
            em.label(lab)
        ops.insert(0, f)
    return ops

def v_dma_ops(em, s):
    nt = ' nt' if cfg.nt_kv else ''
    ops = []
    for c in range(3):
        def f(c=c):
            em.op(f's_add_u32 m0, s{sW3072}, {VBASE + (s % NV) * 24576 + c * 896}')
            em.op(f's_mov_b32 s{sOFF}, {(128 * (s & 3) + 32 * (s >> 2)) * 384}')
            em.op(f'buffer_load_dwordx4 v{vVO}, {sr(SV,4)}, s{sOFF} offen offset:{c*128}{nt} lds', tag=f'V{s}')
        ops.append(f)
    return ops

sDG = 49
sPFS, sPFB = 45, 50
vPF = 241
def pf_ops():
    if not cfg.pre: return []
    nt = ' nt' if cfg.nt_w else ''
    return [f'global_load_dwordx4 {vr(112)}, v{vPF}, s[{sPFB}:{sPFB+1}]{nt}', f'v_add_u32 v{vPF}, s{sPFS}, v{vPF}']
sTAG, sSTR, sF1, sF2, sHB, sM0T, sQ0, sNH, sCNT = 88, 89, 90, 92, 94, 98, 99, 100, 101
VST = 64
def v_reg_ops(em):
    nt = ' nt' if cfg.nt_kv else ''
    ops = []
    for s in range(4, 8):
        for c in range(3):
            def f(s=s, c=c):
                em.op(f's_mov_b32 s{sOFF}, {(128 * (s & 3) + 32 * (s >> 2)) * 384}')
                em.op(f'buffer_load_dwordx4 {vr(VST + 4 * ((s - 4) * 3 + c))}, v{vVO}, {sr(SV,4)}, s{sOFF} offen offset:{c*128}{nt}', tag=f'V{s}')
            ops.append(f)
    return ops
def v_put_ops(s):
    slot = s % NV
    return [f'ds_write_b128 v{vVW if slot < 2 else vVW2}, {vr(VST + 4 * ((s - 4) * 3 + c))} offset:{(slot % 2) * 24576 + c * 1024}' for c in range(3)]

def k1_prologue(em):
    em.op('s_cmp_ge_u32 s2, 256')
    em.op('s_cbranch_scc1 L_k1_exit')
    em.st = Stamps(em); em.st.stamp('rt0', real=True); em.st.stamp('start')
    if cfg.x_delay:
        em.op(f's_mov_b32 s58, {cfg.x_delay}')
        em.label('L_delay')
        for i in range(4): em.op(mfma(16 + 4*i, 100, 104, 16 + 4*i))
        em.op('s_sub_u32 s58, s58, 1'); em.op('s_cmp_lg_u32 s58, 0'); em.op('s_cbranch_scc1 L_delay')
        em.op('s_nop 15')
    em.op('s_load_dwordx8 s[4:11], s[0:1], 0')
    em.op('s_load_dwordx2 s[12:13], s[0:1], 56')
    em.op('s_load_dwordx2 s[14:15], s[0:1], 32')
    em.op('s_load_dwordx2 s[54:55], s[0:1], 40')
    em.op(f'v_and_b32 v{vLANE}, 63, v0')
    em.op(f'v_lshrrev_b32 v{vT}, 6, v0')
    em.op(f's_and_b32 s{sX}, s2, 7')
    em.op(f's_lshr_b32 s{sLOC}, s2, 3')
    em.op(f'v_readfirstlane_b32 s{sW}, v{vT}')
    t0, t1, t2, t3, t4 = TMP[:5]
    L = f'v{vLANE}'
    if cfg.code_pre:
        em.op('s_getpc_b64 s[50:51]')
        em.label('L_k1_pc')
        em.op('s_add_u32 s50, s50, k1_body_start-L_k1_pc')
        em.op('s_addc_u32 s51, s51, 0')
        em.op(f's_and_b32 s{sT1}, s{sLOC}, 15')
        em.op(f's_lshl_b32 s{sT1}, s{sT1}, 13')
        em.op(f'v_lshlrev_b32 v{t3}, 4, v0')
        em.op(f'v_add_u32 v{t4}, s{sT1}, v{t3}')
        em.op(f'v_min_u32 v{t4}, k1_body_end-k1_body_start-16, v{t4}')
        em.op(f'v_mov_b32 v{vT}, v{t4}')
        em.op('s_mov_b64 s[58:59], s[50:51]')
    else:
        em.op(f'v_lshlrev_b32 v{t3}, 4, v0')
    em.op(f's_and_b32 s{sJ}, s{sLOC}, 3')
    em.op(f's_lshr_b32 s{sB}, s{sLOC}, 2')
    em.op(f's_lshl_b32 s{sH}, s{sX}, 2')
    em.op(f's_add_u32 s{sH}, s{sH}, s{sJ}')
    nt = ' nt' if cfg.nt_w else ''
    em.op(f's_and_b32 s{sTYPE}, s{sB}, 1')
    em.op(f's_lshl_b32 s{sT0}, s{sLOC}, 1'); em.op(f's_mul_i32 s{sT0}, s{sT0}, 12288'); em.op(f's_mul_i32 s{sT1}, s{sX}, 1536'); em.op(f's_add_u32 s{sT0}, s{sT0}, s{sT1}')
    em.op(f's_lshl_b32 s{sT1}, s{sW}, 9'); em.op(f's_add_u32 s{sT0}, s{sT0}, s{sT1}')
    em.op(f'v_lshrrev_b32 v{t0}, 5, {L}'); em.op(f'v_mul_u32_u24 v{t0}, 12288, v{t0}')
    em.op(f'v_and_b32 v{t1}, 31, {L}'); em.op(f'v_lshlrev_b32 v{t1}, 4, v{t1}')
    em.op(f'v_add3_u32 v{t0}, v{t0}, v{t1}, s{sT0}')
    em.op(f's_mul_i32 s{sT0}, s{sLOC}, 36'); em.op(f's_lshl_b32 s{sT1}, s{sW}, 3'); em.op(f's_add_u32 s{sT0}, s{sT0}, s{sT1}'); em.op(f's_sub_u32 s{sT0}, s{sT0}, 24')
    em.op(f'v_lshrrev_b32 v{t1}, 3, {L}'); em.op(f'v_add_u32 v{t1}, s{sT0}, v{t1}'); em.op(f'v_min_u32 v{t1}, 1151, v{t1}')
    em.op(f'v_mul_u32_u24 v{t1}, 1280, v{t1}')
    em.op(f'v_and_b32 v{t2}, 7, {L}'); em.op(f'v_lshlrev_b32 v{t2}, 4, v{t2}')
    em.op(f'v_add_u32 v{t1}, v{t1}, v{t2}')
    em.op(f's_cmp_lt_u32 s{sW}, 3')
    em.op(f's_cselect_b64 vcc, -1, 0')
    em.op(f's_movk_i32 s{sPFS}, 128')
    em.op(f's_cselect_b32 s{sPFS}, 786432, s{sPFS}')
    em.op(f'v_cndmask_b32 v{vPF}, v{t1}, v{t0}, vcc')
    em.op('s_waitcnt lgkmcnt(0)')
    em.st.stamp('ka')
    if cfg.x_ren:
        em.op('s_load_dwordx2 s[86:87], s[0:1], 48')
        em.op('s_getreg_b32 s85, hwreg(HW_REG_XCC_ID)')
        em.op('s_and_b32 s85, s85, 15')
        em.op('s_lshl_b32 s85, 1, s85')
        em.op(f's_lshl_b32 s84, s{sX}, 2')
        em.op('v_mov_b32 v116, s84'); em.op('v_mov_b32 v117, s85')
        em.op('s_waitcnt lgkmcnt(0)')
        em.op('global_atomic_or v116, v117, s[86:87] sc1')
    em.op(f's_lshl_b32 s{sT0}, s{sB}, 8'); em.op(f's_add_u32 s{sT0}, s{sT0}, {FLAG_OFF}')
    em.op(f's_load_dword s{sTAG}, s[12:13], s{sT0}')
    em.op(f's_cmp_lt_u32 s{sW}, 3')
    em.op(f's_cselect_b64 s[{sPFB}:{sPFB+1}], s[10:11], s[4:5]')
    for i in range(3):
        for o in pf_ops(): em.op(o)
    em.st.stamp('pi')
    em.op(f's_and_b32 s{sDG}, s{sW}, 3')
    em.op(f's_mul_i32 s{sW3072}, s{sW}, 3072')
    em.op(f's_lshl_b32 s{sW1024}, s{sW}, 10')
    em.op(f's_add_u32 s{sW1024}, s{sW1024}, 24576')
    em.op(f's_mov_b32 s{sC}, {fbits(192 ** -0.5 * math.log2(math.e))}')
    em.op(f'v_lshrrev_b32 v{t0}, 3, {L}')
    em.op(f'v_and_b32 v{t1}, 7, {L}')
    em.op(f'v_lshrrev_b32 v{t2}, 4, {L}')
    em.op(f's_lshl_b32 s{sT1}, s{sB}, 5'); em.op(f's_add_u32 s{sT1}, s{sT1}, s{sH}')
    em.op(f's_mul_i32 s{sT0}, s{sT1}, 196608')
    srd(em, SK, 6, 7, f's{sT0}', 196608); srd(em, SV, 8, 9, f's{sT0}', 196608)
    em.op(f's_mul_i32 s{sT0}, s{sT1}, {O_HEAD}'); srd(em, SO, 12, 13, f's{sT0}', O_HEAD)
    em.op(f'v_and_b32 v{t3}, 1, v{t0}')
    em.op(f'v_lshlrev_b32 v{t3}, 2, v{t3}')
    em.op(f'v_add_u32 v{t3}, v{t3}, v{t2}')
    em.op(f'v_lshlrev_b32 v{t3}, 4, v{t3}')
    em.op(f's_lshl_b32 s{sT2}, s{sW}, 6')
    em.op(f'v_add_u32 v{t4}, s{sT2}, v{t1}')
    em.op(f'v_mul_u32_u24 v{t4}, 384, v{t4}')
    em.op(f'v_add_u32 v{vK0}, v{t4}, v{t3}')
    em.op(f'v_xor_b32 v{t3}, 64, v{t3}')
    em.op(f'v_add_u32 v{vK1}, v{t4}, v{t3}')
    em.op(f'v_add_u32 v{vK1}, {8 * 384}, v{vK1}')
    if cfg.n0:
        em.op(f's_cmp_eq_u32 s{sTYPE}, 1')
        em.op('s_cbranch_scc0 L_nok1')
        em.begin_opt()
        for i in range(7):
            for o in pf_ops(): em.op(o)
        for f in (k_load_ops(em, 0) + k_load_ops(em, 1))[:2 * cfg.n0]: f()
        em.end_opt()
        em.label('L_nok1')
    em.op(f's_mul_i32 s{sT0}, s{sB}, 184320'); srd(em, SX, 4, 5, f's{sT0}', 184320)
    em.op(f's_mul_i32 s{sT0}, s{sH}, 384'); srd(em, SWQ, 10, 11, f's{sT0}', 7864320)
    em.op(f's_sub_u32 s{SWQ+2}, s{SWQ+2}, s{sT0}')
    em.op(f's_and_b32 s{sT0}, s{sW}, 1')
    em.op(f's_lshl_b32 s{sT1}, s{sT0}, 2')
    em.op(f'v_add_u32 v{t3}, s{sT1}, v{t2}')
    em.op(f'v_xor_b32 v{t3}, v{t3}, v{t1}')
    em.op(f'v_lshlrev_b32 v{t3}, 4, v{t3}')
    em.op(f's_lshl_b32 s{sT2}, s{sW}, 3')
    em.op(f'v_add_u32 v{t4}, s{sT2}, v{t0}')
    em.op(f'v_mul_u32_u24 v{vXO}, 1280, v{t4}')
    em.op(f'v_add_u32 v{vXO}, v{vXO}, v{t3}')
    em.op(f'v_and_b32 v{t3}, 1, v{t2}')
    em.op(f'v_lshlrev_b32 v{t3}, 1, v{t3}')
    em.op(f'v_add_u32 v{t3}, s{sT1}, v{t3}')
    em.op(f'v_xor_b32 v{t3}, v{t3}, v{t1}')
    em.op(f'v_lshlrev_b32 v{t3}, 4, v{t3}')
    em.op(f'v_mul_u32_u24 v{vWO}, 12288, v{t4}')
    em.op(f'v_add_u32 v{vWO}, v{vWO}, v{t3}')
    em.op(f's_lshr_b32 s{sT1}, s{sW}, 2'); em.op(f's_lshl_b32 s{sT1}, s{sT1}, 6')
    em.op(f's_lshl_b32 s{sT0}, s{sDG}, 3'); em.op(f's_add_u32 s{sT0}, s{sT0}, s{sT1}')
    em.op(f'v_add_u32 v{t3}, s{sT0}, v{t0}')
    em.op(f'v_mul_u32_u24 v{vVO}, 384, v{t3}')
    em.op(f'v_lshlrev_b32 v{t3}, 1, v{t2}')
    em.op(f'v_xor_b32 v{t3}, v{t3}, v{t1}')
    em.op(f'v_lshlrev_b32 v{t3}, 4, v{t3}')
    em.op(f'v_add_u32 v{vVO}, v{vVO}, v{t3}')
    em.op('s_waitcnt lgkmcnt(0)')
    em.op(f's_add_u32 s{sTAG}, s{sTAG}, 1')
    em.barrier()
    em.op(f's_cmp_lt_u32 s{sW}, 4')
    em.op('s_cbranch_scc0 L_qp1')

def tr_addr(em, dst, t, base, fmode):
    t0, t1, t2, t3 = TMP[:4]
    L = f'v{vLANE}'
    em.op(f's_mul_i32 s{sT0}, s{sDG}, 3'); em.op(f's_add_u32 s{sT0}, s{sT0}, {t}')
    em.op(f's_lshr_b32 s{sT1}, s{sT0}, 2'); em.op(f's_lshl_b32 s{sT1}, s{sT1}, 10')
    em.op(f's_add_u32 s{sT1}, s{sT1}, {base}')
    em.op(f's_and_b32 s{sT0}, s{sT0}, 3')
    em.op(f'v_lshrrev_b32 v{t0}, 4, {L}')
    em.op(f'v_bfe_u32 v{t1}, {L}, 2, 2')
    em.op(f'v_and_b32 v{t2}, 1, v{t0}')
    em.op(f'v_lshlrev_b32 v{t2}, 1, v{t2}')
    em.op(f'v_lshrrev_b32 v{t3}, 1, v{t1}')
    em.op(f'v_add_u32 v{t3}, v{t3}, v{t2}')
    em.op(f'v_xor_b32 v{t3}, s{sT0}, v{t3}')
    em.op(f'v_lshlrev_b32 v{t3}, 5, v{t3}')
    em.op(f'v_lshlrev_b32 v{dst}, 7, v{t1}')
    em.op(f'v_add_u32 v{dst}, v{dst}, v{t3}')
    if fmode == 'w':
        em.op(f'v_mul_u32_u24 v{t3}, 3072, v{t0}')
    else:
        em.op(f'v_lshlrev_b32 v{t2}, 8, v{t2}')
        em.op(f'v_add_u32 v{dst}, v{dst}, v{t2}')
        em.op(f'v_lshrrev_b32 v{t3}, 1, v{t0}')
        em.op(f'v_mul_u32_u24 v{t3}, 3072, v{t3}')
    em.op(f'v_add_u32 v{dst}, v{dst}, v{t3}')
    em.op(f'v_and_b32 v{t3}, 3, {L}')
    em.op(f'v_lshlrev_b32 v{t3}, 3, v{t3}')
    em.op(f'v_add_u32 v{dst}, v{dst}, v{t3}')
    em.op(f'v_add_u32 v{dst}, s{sT1}, v{dst}')

class Cap:
    def __init__(self): self.ops = []
    def op(self, t, tag=None): self.ops.append(t)

def k1_qproj(em, qh, typ):
    nq = 5 if qh == 0 else 4
    q0 = 0 if qh == 0 else 5
    L = f'v{vLANE}'
    t0, t1, t2, t3, t4, t5 = TMP[:6]
    rf = cfg.rfrac / 100
    if cfg.prio and qh == 1: em.op('s_setprio 1')
    for f in stage_dma_ops(em, 0, qh): f()
    em.barrier()
    for f in stage_dma_ops(em, 1, qh): f()
    em.op(f'v_mov_b32 v{TMP[11]}, v{vT}')
    em.st.stamp('si')
    em.op(f'v_lshlrev_b32 v{t3}, 2, v0')
    em.op(f'v_add_u32 v{t3}, {MAXB}, v{t3}')
    em.op(f'v_mov_b32 v{t4}, 0xff800000')
    em.op(f'ds_write_b32 v{t3}, v{t4}')
    em.op(f'v_and_b32 v{vMS}, 15, {L}')
    em.op(f'v_lshlrev_b32 v{vMS}, 2, v{vMS}')
    em.op(f'v_add_u32 v{vMS}, {MAXB}, v{vMS}')
    em.op(f'v_bfe_u32 v{t0}, {L}, 3, 1'); em.op(f'v_lshlrev_b32 v{t0}, 10, v{t0}')
    em.op(f'v_and_b32 v{t1}, 7, {L}'); em.op(f'v_lshlrev_b32 v{t1}, 7, v{t1}')
    em.op(f'v_add_u32 v{t0}, v{t0}, v{t1}')
    em.op(f'v_bfe_u32 v{t1}, {L}, 1, 3'); em.op(f'v_lshrrev_b32 v{t2}, 4, {L}')
    em.op(f'v_xor_b32 v{t1}, v{t1}, v{t2}'); em.op(f'v_lshlrev_b32 v{vT}, 4, v{t1}')
    em.op(f'v_add_u32 v{vRA[0]}, v{t0}, v{vT}')
    em.op(f'v_add_u32 v{vRA[0]}, {24576 + q0 * 2048}, v{vRA[0]}')
    em.op(f'v_xor_b32 v{vRA[1]}, 64, v{vRA[0]}')
    for t in range(3): tr_addr(em, vRB[t], t, 0, 'w')
    for t in range(3):
        em.op(f's_mul_i32 s{sT0}, s{sDG}, 3'); em.op(f's_add_u32 s{sT0}, s{sT0}, {t}'); em.op(f's_lshl_b32 s{sT0}, s{sT0}, 1')
        em.op(f'v_lshrrev_b32 v{t0}, 5, {L}')
        em.op(f'v_add_u32 v{t0}, s{sT0}, v{t0}')
        em.op(f'v_lshrrev_b32 v{t1}, 3, v{t0}'); em.op(f'v_lshlrev_b32 v{t1}, 7, v{t1}')
        em.op(f'v_and_b32 v{t0}, 7, v{t0}')
        em.op(f'v_bfe_u32 v{t2}, {L}, 1, 3')
        em.op(f'v_xor_b32 v{t0}, v{t0}, v{t2}'); em.op(f'v_lshlrev_b32 v{t0}, 4, v{t0}')
        em.op(f'v_add_u32 v{t0}, v{t0}, v{t1}')
        em.op(f'v_and_b32 v{t1}, 15, {L}'); em.op(f'v_mul_u32_u24 v{t1}, 384, v{t1}')
        em.op(f'v_add_u32 v{t0}, v{t0}, v{t1}')
        em.op(f'v_bfe_u32 v{t1}, {L}, 4, 1'); em.op(f'v_lshlrev_b32 v{t1}, 3, v{t1}')
        em.op(f'v_add_u32 v{vRC[t]}, v{t0}, v{t1}')
    em.op(f'v_lshlrev_b32 v{vPA}, 4, {L}')
    em.op(f's_lshl_b32 s{sT0}, s{sW}, 2'); em.op(f's_lshr_b32 s{sT1}, 0x10543210, s{sT0}'); em.op(f's_and_b32 s{sT1}, s{sT1}, 15'); em.op(f's_mul_i32 s{sT1}, s{sT1}, 9216')
    em.op(f'v_add_u32 v{vPW}, s{sT1}, v{vPA}')
    em.op(f'v_add_u32 v{vPA}, {q0 * 1024}, v{vPA}')
    AF = [176, 188]; BF = [200, 220]
    def q_reads(step, st):
        ops = []
        for t in range(3):
            ops.append(f'ds_read_b64_tr_b16 {vr(AF[st] + 4*t, 2)}, v{vRB[t]} offset:{step * 12288}')
            ops.append(f'ds_read_b64_tr_b16 {vr(AF[st] + 4*t + 2, 2)}, v{vRB[t]} offset:{step * 12288 + 512}')
        xs = [f'ds_read_b128 {vr(BF[st] + 4*j)}, v{vRA[step]} offset:{j * 2048}' for j in range(nq)]
        return ops[0:2] + xs[0:1] + ops[2:6] + xs[1:]
    def mf(st, first):
        return [mfma(ACC + 4*(j*3+t), AF[st] + 4*t, BF[st] + 4*j, None if first else ACC + 4*(j*3+t)) for j in range(nq) for t in range(3)]
    em.wait_vm_tag('S0', lgkm0=True); em.barrier()
    em.st.stamp('S0')
    for o in q_reads(0, 0): em.op(o)
    npre = cfg.n0 if typ == 1 else 0
    kl = (k_load_ops(em, 0) + k_load_ops(em, 1))[2 * npre: min(24, 2 * npre + cfg.kq)]
    nst = 10 - cfg.kq0
    def klat(s):
        if s < cfg.kq0: return []
        k = s - cfg.kq0
        return kl[len(kl) * k // nst: len(kl) * (k + 1) // nst]
    fixat = {}
    for p in range(6):
        last = 2 * p + 2 - 2 * npre
        st = 1 + p if last <= 0 else next((s + 3 for s in range(10) if s >= cfg.kq0 and len(kl) * (s - cfg.kq0 + 1) // nst >= last), 99)
        fixat.setdefault(st, []).append(p)
    em.nfixed = sum(len(v) for k, v in fixat.items() if k <= 9)
    F0 = k_fix_ops(0)
    cap = Cap()
    for t in range(3): tr_addr(cap, TMP[6 + t], t, VBASE, 'v')
    vaddr_ops = cap.ops
    inloop_pf = not (typ == 1 and cfg.n0)
    carry = stage_dma_ops(em, 2, qh) + (sum([pf_ops() for i in range(cfg.pfa - 3)], []) if inloop_pf else [])
    if cfg.code_pre: carry.append(f'global_load_dwordx4 {vr(112)}, v{TMP[11]}, s[58:59]')
    for s in range(10):
        extra = []
        for p in fixat.get(s, []): extra += F0[12 * p: 12 * p + 12]
        interleave(em, mf(0, s == 0), ([] if cfg.x_qnord and 3 < s <= 6 else q_reads(1, 1), 0, rf), (extra, 0.3, 1), (carry, 0.05, cfg.dhi / 100))
        if s < 9: em.wait_vm_tag(f'S{s+1}', lgkm0=True)
        else: em.wait_lgkm0()
        em.barrier()
        if s in cfg.qst: em.st.stamp(f'B{s}')
        if cfg.qloop and s == 6:
            em.op('s_sub_u32 s87, s87, 1'); em.op('s_cmp_lg_u32 s87, 0'); em.op(f's_cbranch_scc1 L_ql{qh}{typ}')
            em.st.stamp('LBend')
        if cfg.qloop and s == 3:
            em.st.stamp('LB0')
            em.op('s_mov_b32 s87, 16'); em.label(f'L_ql{qh}{typ}')
        rd = []; dm = []; extra = []
        if s < 9:
            d = STG if (s + 1) % 3 else -2 * STG
            rd += [f'v_add_u32 v{r}, {d & 0xffffffff}, v{r}' for r in vRA + vRB]
            if not (cfg.x_qnord and 3 <= s < 6): rd += q_reads(0, 0)
        carry = []
        if s + 3 <= 9:
            dm = stage_dma_ops(em, s + 3, qh); dm, carry = dm[:cfg.dsplit], dm[cfg.dsplit:]
            if cfg.x_qnodma and 3 <= s < 6: dm = []; carry = []
        if s == 7: extra = vaddr_ops
        first = (pf_ops() if inloop_pf and s + cfg.pfa <= 9 and not (cfg.qloop and s >= 3) else []) + klat(s)
        interleave(em, mf(1, False), (dm, cfg.dlo / 100, cfg.dhi / 100), (rd, 0, rf + 0.1), (extra, 0, 1), (first, 0, 0.04 if dm else 0.9))
    for j in range(nq):
        for t in range(3):
            a = ACC + 4*(j*3+t)
            em.op(f'v_cvt_pk_bf16_f32 v{a}, v{a}, v{a+1}')
            em.op(f'v_cvt_pk_bf16_f32 v{a+1}, v{a+2}, v{a+3}')
            em.op(f'ds_write_b64 v{vRC[t]}, {vr(a,2)} offset:{(q0 + j) * 6144}')
    em.op(f'v_and_b32 v{t1}, 15, {L}'); em.op(f'v_mul_u32_u24 v{t1}, 384, v{t1}')
    em.op(f'v_add_u32 v{vRA[0]}, v{t1}, v{vT}')
    em.op(f'v_xor_b32 v{t0}, 64, v{vT}')
    em.op(f'v_add_u32 v{vRA[1]}, v{t1}, v{t0}')
    for t in range(3): em.op(f'v_mov_b32 v{vRB[t]}, v{TMP[6 + t]}')
    em.wait_lgkm0(); em.barrier()
    for t in range(3): em.op(f'v_add_u32 v{vRC[t]}, 49152, v{vRB[t]}')
    em.op(f's_lshl_b32 s{sT0}, s{sW}, 2'); em.op(f's_lshr_b32 s{sT1}, 0x32105432, s{sT0}'); em.op(f's_and_b32 s{sT1}, s{sT1}, 15'); em.op(f's_mul_i32 s{sT1}, s{sT1}, 9216')
    em.op(f'v_lshlrev_b32 v{vPW2}, 4, {L}')
    em.op(f'v_add_u32 v{vPW2}, s{sT1}, v{vPW2}')
    em.st.stamp('BQ')

def maxops(half):
    ops = []
    for qt in range(9):
        a, b = sreg(half*2, qt), sreg(half*2+1, qt); m = MC + qt
        if half == 0:
            ops += [f'v_max3_f32 v{m}, v{a}, v{a+1}, v{a+2}', f'v_max3_f32 v{m}, v{m}, v{a+3}, v{b}',
                    f'v_max3_f32 v{m}, v{m}, v{b+1}, v{b+2}', f'v_max_f32 v{m}, v{m}, v{b+3}']
        else:
            ops += [f'v_max3_f32 v{m}, v{m}, v{a}, v{a+1}', f'v_max3_f32 v{m}, v{m}, v{a+2}, v{a+3}',
                    f'v_max3_f32 v{m}, v{m}, v{b}, v{b+1}', f'v_max3_f32 v{m}, v{m}, v{b+2}, v{b+3}']
    return ops

def v_dma_all(em, s, qh=1):
    nt = ' nt' if cfg.nt_kv else ''
    ops = []
    for blk in range(2):
        for c in range(3):
            def f(c=c, blk=blk):
                em.op(f's_add_u32 m0, s{sW3072}, {VBASE + (s % NV) * 24576 + c * 896 + (blk - qh) * 12288}')
                em.op(f's_mov_b32 s{sOFF}, {(128 * (s & 3) + 32 * (s >> 2)) * 384 + blk * 24576}')
                em.op(f'buffer_load_dwordx4 v{TMP[4] if qh else vVO}, {sr(SV,4)}, s{sOFF} offen offset:{c*128}{nt} lds', tag=f'V{s}')
            ops.append(f)
    return ops

def k1_qk(em, qh):
    def qrd(n):
        qt, ks = divmod(n, 6)
        return f'ds_read_b128 {vr(QF + 4*(n % 4))}, v{vRA[ks & 1]} offset:{qt * 6144 + (ks >> 1) * 128}'
    rest = (k_load_ops(em, 0) + k_load_ops(em, 1))[cfg.kq:]
    vl = []
    if cfg.vrole:
        if qh == 1:
            em.op(f'v_subrev_u32 v{TMP[4]}, 24576, v{vVO}')
            for f in rest: f()
            rest = []
            vl = sum([v_dma_all(em, s) for s in range(cfg.nvy)], [])
            for f in vl[:cfg.vfirst]: f()
            vl = vl[cfg.vfirst:]
    else:
        vl = sum([v_dma_ops(em, s) for s in range(NV)], [])
    for half in range(2):
        for n in range(3): em.op(qrd(n))
        if half == 0:
            for o in k_fix_ops(0)[12 * em.nfixed:]: em.op(o)
        elif not (cfg.vrole and qh == 1):
            for o in k_fix_ops(1): em.op(o)
        em.st.stamp(f'K{half}')
        main = []
        for n in range(54):
            qt, ks = divmod(n, 6)
            if n + 3 < 54: main.append(qrd(n + 3))
            for k in range(2):
                kt = half * 2 + k
                main.append(mfma(sreg(kt, qt), kop(kt, ks), QF + 4*(n % 4), None if ks == 0 else sreg(kt, qt)))
        m1 = maxops(1)
        if half == 0:
            if cfg.vrole: streams = [(rest, 0, 0.3)] if qh == 0 else [(vl[:cfg.vh0], 0, 1), (k_fix_ops(1), 0.5, 1)]
            else: streams = [(rest, 0, 0.9)]
        else:
            streams = [(maxops(0), 0.02, 0.5)]
            for qt in range(8): streams.append((m1[qt*4:qt*4+4], max(0.5 + 0.05*qt, (qt + 1.5) / 9), max(0.55 + 0.05*qt, (qt + 1.9) / 9)))
            streams.append((vl[cfg.vh0:] if cfg.vrole else vl, 0, 0.7))
        interleave(em, main, *streams)
    em.st.stamp('QKend')
    for o in maxops(1)[32:]: em.op(o)
    for qt in range(9): em.op(f'ds_max_f32 v{vMS}, v{MC+qt} offset:{qt*64}')
    em.op(f'v_lshlrev_b32 v{vVW}, 4, v{vLANE}')
    em.op(f'v_add_u32 v{vVW}, s{sW3072}, v{vVW}')
    em.op(f'v_add_u32 v{vVW}, {VBASE}, v{vVW}')
    em.op(f'v_add_u32 v{vVW2}, 49152, v{vVW}')
    if qh == 0 and cfg.vrole:
        for s in range(cfg.nvy, NV):
            for f in v_dma_all(em, s, 0): f()
    if qh == 0 and cfg.vold and cfg.vreg:
        for f in v_reg_ops(em): f()
    em.wait_lgkm0(); em.barrier()
    em.st.stamp('BM')

def expops(r, qt, pk):
    a, b = sreg(2*r, qt), sreg(2*r+1, qt); m = MC + qt
    tA, tB = TMP[0], TMP[2]
    sp = SUMP + 2*qt
    rs = [a, a+1, a+2, a+3, b, b+1, b+2, b+3]
    if pk:
        mb = m & ~1; s = m & 1
        ops = [f'v_pk_fma_f32 {vr(x,2)}, {vr(x,2)}, s[{sC}:{sC+1}], {vr(mb,2)} op_sel:[0,0,{s}] op_sel_hi:[1,0,{s}] neg_lo:[0,0,1] neg_hi:[0,0,1]' for x in rs[::2]]
    else:
        ops = [f'v_fma_f32 v{x}, v{x}, s{sC}, -v{m}' for x in rs]
    ops += [f'v_exp_f32 v{x}, v{x}' for x in rs]
    if pk:
        ops += [f'v_pk_add_f32 {vr(tA,2)}, {vr(a,2)}, {vr(a+2,2)}', f'v_pk_add_f32 {vr(tB,2)}, {vr(b,2)}, {vr(b+2,2)}']
        if r == 0: tailo = [f'v_pk_add_f32 {vr(sp,2)}, {vr(tA,2)}, {vr(tB,2)}']
        else: tailo = [f'v_pk_add_f32 {vr(tA,2)}, {vr(tA,2)}, {vr(tB,2)}', f'v_pk_add_f32 {vr(sp,2)}, {vr(sp,2)}, {vr(tA,2)}']
    else:
        assert r == 1
        ops += [f'v_add_f32 v{sp + (i & 1)}, v{sp + (i & 1)}, v{x}' for i, x in enumerate(rs)]
        tailo = []
    ops += [f'v_cvt_pk_bf16_f32 v{a}, v{a}, v{a+1}', f'v_cvt_pk_bf16_f32 v{a+1}, v{a+2}, v{a+3}',
            f'v_cvt_pk_bf16_f32 v{a+2}, v{b}, v{b+1}', f'v_cvt_pk_bf16_f32 v{a+3}, v{b+2}, v{b+3}']
    return ops + tailo

def pwrite(r, qt, qh):
    return f'ds_write_b128 v{vPW if r == 0 else vPW2}, {vr(sreg(2*r, qt))} offset:{qt*1024}'

def sum_ops():
    L = f'v{vLANE}'
    S = SUM; ops = []
    ops += [f'v_add_f32 v{SUM+qt}, v{SUMP+2*qt}, v{SUMP+2*qt+1}' for qt in range(9)]
    ops += [f'v_mov_b32 v{MC}, 0', f'v_mov_b32 v{MC+1}, 0']
    ta = TMP[2]; tb = TMP[3]
    ops += [f'v_bfe_u32 v{ta}, {L}, 4, 1', f'v_lshlrev_b32 v{ta}, 10, v{ta}', f'v_bfe_u32 v{tb}, {L}, 5, 1', f'v_lshlrev_b32 v{tb}, 9, v{tb}',
            f'v_add_u32 v{ta}, v{ta}, v{tb}', f'v_and_b32 v{tb}, 15, {L}', f'v_lshlrev_b32 v{tb}, 5, v{tb}', f'v_add_u32 v{ta}, v{ta}, v{tb}',
            f's_lshl_b32 s{sT0}, s{sW}, 2', f's_add_u32 s{sT0}, s{sT0}, {SUMB}', f'v_add_u32 v{ta}, s{sT0}, v{ta}']
    for a in (0, 2, 4, 6): ops.append(f'v_permlane32_swap_b32 v{S+a}, v{S+a+1}')
    ops.append(f'v_permlane32_swap_b32 v{S+8}, v{MC}')
    for a in (0, 2, 4, 6): ops.append(f'v_add_f32 v{S+a}, v{S+a}, v{S+a+1}')
    ops.append(f'v_add_f32 v{S+8}, v{S+8}, v{MC}')
    for a in (0, 4): ops.append(f'v_permlane16_swap_b32 v{S+a}, v{S+a+2}')
    ops.append(f'v_permlane16_swap_b32 v{S+8}, v{MC+1}')
    for a in (0, 4): ops.append(f'v_add_f32 v{S+a}, v{S+a}, v{S+a+2}')
    ops.append(f'v_add_f32 v{S+8}, v{S+8}, v{MC+1}')
    for a in (0, 4, 8): ops.append(f'ds_write_b32 v{ta}, v{S+a} offset:{a * 512}')
    return ops

def k1_sm0(em, qh):
    for qt in range(9): em.op(f'ds_read_b32 v{MC+qt}, v{vMS} offset:{qt*64}')
    for qt in range(9): em.op(f'v_mul_f32 v{MC+qt}, s{sC}, v{MC+qt}')
    main = []
    for qt in range(9):
        main += expops(0, qt, True)
        if qh == 0: main.append(pwrite(0, qt, qh))
    for qt in range(9): main += expops(1, qt, True)
    main += sum_ops()
    interleave(em, main, (v_reg_ops(em) if cfg.vreg and (qh == 1 or not cfg.vold) else [], 0, cfg.vrf / 100))
    em.st.stamp('exp0')
    em.wait_vm_tag('V0', lgkm0=True); em.barrier()
    em.st.stamp('PV0')

def k1_pv(em, qh):
    nq = 5 if qh == 0 else 4
    q0 = 0 if qh == 0 else 5
    L = f'v{vLANE}'
    t0 = TMP[4]
    rf = cfg.rfrac / 100
    PBF = PBF0 if qh == 0 else PBF1
    INV = INV0 + 2 * qh
    PAF = PAF0 if qh == 0 else PAF1
    def pv_reads(s, step, st):
        ops = []
        slot = s % NV
        base = vRB if slot < 2 else vRC
        off = (slot % 2) * 24576 + step * 12288
        for t in range(3):
            ops.append(f'ds_read_b64_tr_b16 {vr(PAF[st][t], 2)}, v{base[t]} offset:{off}')
            ops.append(f'ds_read_b64_tr_b16 {vr(PAF[st][t] + 2, 2)}, v{base[t]} offset:{off + 6144}')
        pa, po = vPA, ((2 * s + step) % 6) * 9216
        xs = [f'ds_read_b128 {vr(PBF[st][j])}, v{pa} offset:{po + j * 1024}' for j in range(nq)]
        return ops[0:2] + xs[0:1] + ops[2:6] + xs[1:]
    OACC = OACC0 if qh == 0 else OACC1
    def mf(st, first):
        return [mfma(OACC[j*3+t], PAF[st][t], PBF[st][j], None if first else OACC[j*3+t]) for j in range(nq) for t in range(3)]
    def inv_ops():
        ta = TMP[2]; ops = []
        ops += [f'v_and_b32 v{ta}, 15, {L}', f'v_lshlrev_b32 v{ta}, 5, v{ta}', f'v_add_u32 v{ta}, {SUMB + q0 * 512}, v{ta}']
        for j in range(nq):
            ops += [f'ds_read_b128 {vr(64 + 8*j)}, v{ta} offset:{j * 512}', f'ds_read_b128 {vr(68 + 8*j)}, v{ta} offset:{j * 512 + 16}']
        for j in range(nq):
            r = 64 + 8*j
            ops += [f'v_add_f32 v{r}, v{r}, v{r+1}', f'v_add_f32 v{r+2}, v{r+2}, v{r+3}', f'v_add_f32 v{r+4}, v{r+4}, v{r+5}', f'v_add_f32 v{r+6}, v{r+6}, v{r+7}',
                    f'v_add_f32 v{r}, v{r}, v{r+2}', f'v_add_f32 v{r+4}, v{r+4}, v{r+6}', f'v_add_f32 v{r}, v{r}, v{r+4}', f'v_rcp_f32 v{INV+2*j}, v{r}']
        cap = Cap()
        for t in range(3):
            cap.op(f's_mul_i32 s{sT0}, s{sDG}, 3'); cap.op(f's_add_u32 s{sT0}, s{sT0}, {t}')
            cap.op(f's_lshr_b32 s{sT1}, s{sT0}, 2'); cap.op(f's_mul_i32 s{sT1}, s{sT1}, 40960')
            cap.op(f's_bfe_u32 s{sT2}, s{sT0}, 0x10001'); cap.op(f's_mul_i32 s{sT2}, s{sT2}, 9216'); cap.op(f's_add_u32 s{sT1}, s{sT1}, s{sT2}')
            cap.op(f's_and_b32 s{sT0}, s{sT0}, 1'); cap.op(f's_lshl_b32 s{sT0}, s{sT0}, 3')
            cap.op(f's_add_u32 s{sT0}, s{sT0}, s{sT1}'); cap.op(f's_add_u32 s{sT0}, s{sT0}, 20480')
            cap.op(f'v_add_u32 v{vRB[t]}, s{sT0}, v{vPA}')
        return ops + cap.ops
    def ex(h):
        o = []
        if qh == 0 and h in (5, 6): o += [pwrite(1, qt, qh) for qt in (range(5) if h == 5 else range(5, 9))]
        if qh == 1 and h in (1, 2): o += [pwrite(0, qt, qh) for qt in (range(5) if h == 1 else range(5, 9))]
        if qh == 1 and h in (9, 10): o += [pwrite(1, qt, qh) for qt in (range(5) if h == 9 else range(5, 9))]
        return o
    TS = tail_setup_ops(qh)
    def wopre_ops(i):
        ta = TMP[2 + (i & 1)]
        ops = [f's_mul_i32 s{sT0}, s{sX}, 983040', f's_mul_i32 s{sT1}, s{sLOC}, 30720', f's_add_u32 s{sT0}, s{sT0}, s{sT1}', f's_add_u32 s{sT0}, s{sT0}, {i * 8192}',
               f'v_lshlrev_b32 v{ta}, 4, v0', f'v_add_u32 v{ta}, s{sT0}, v{ta}', f'v_min_u32 v{ta}, {7864320 - 16}, v{ta}',
               f'global_load_dwordx4 {vr(212)}, v{ta}, s[14:15]' + (' nt' if cfg.wont else '')]
        return ops
    for o in pv_reads(0, 0, 0): em.op(o)
    for s in range(8):
        e = ex(2*s)
        if 2*s == 12: e = TS[:len(TS)//3]
        if 2*s == 14: e = TS[2*len(TS)//3:]
        w = wopre_ops(s - 3) if cfg.wopre and 2*s in (6, 8, 10) else []
        interleave(em, mf(0, s == 0), (pv_reads(s, 1, 1), 0, rf), (e, 0, cfg.efrac / 100), (w, 0.5, 0.51))
        if s < (3 if cfg.vreg else 7): em.wait_vm_tag(f'V{s+1}', lgkm0=True)
        else: em.wait_lgkm0()
        em.barrier()
        em.st.stamp(f'PB{s}')
        rd = pv_reads(s + 1, 0, 0) if s < 7 else []
        dm = (v_put_ops(s + NV) if cfg.vreg else v_dma_ops(em, s + NV)) if s + NV <= 7 else []
        e = ex(2*s+1)
        if 2*s+1 == 11: e = inv_ops()
        if 2*s+1 == 13: e = TS[len(TS)//3: 2*len(TS)//3]
        if 2*s+1 == 15:
            if qh == 0: dm = tail_dma(em, 0) + tail_dma(em, 1)
        w = wopre_ops(3) if cfg.wopre and 2*s+1 == 9 else []
        interleave(em, mf(1, False), (dm, 0.3 if s < 7 and cfg.vreg else 0, (0.9 if cfg.vreg else 0.4) if s < 7 else 1), (rd, 0, rf + 0.1), (e, 0, 1), (w, 0.5, 0.51))
    late = tail_dma(em, 2) if qh == 0 else []
    main = []
    for j in range(nq):
        for t in range(3):
            a = OACC[j*3+t]
            m = INV + 2*j
            main += [f'v_pk_mul_f32 {vr(a,2)}, {vr(a,2)}, {vr(m,2)} op_sel_hi:[1,0]', f'v_pk_mul_f32 {vr(a+2,2)}, {vr(a+2,2)}, {vr(m,2)} op_sel_hi:[1,0]',
                     f'v_cvt_pk_bf16_f32 v{a}, v{a}, v{a+1}', f'v_cvt_pk_bf16_f32 v{a+1}, v{a+2}, v{a+3}',
                     f'ds_write_b64 v{vRB[t]}, {vr(a,2)} offset:{j * 1024}']
    interleave(em, main, (late, 0, 1))
    em.wait_vm_tag('T0', lgkm0=True); em.barrier()
    em.st.stamp('BO')
    if qh == 0:
        em.op(f's_cmp_lt_u32 s{sW}, 2')
        em.op('s_cbranch_scc0 L_tail1')
        st = em.save(); sn = (em.st.n, list(em.st.names))
        tail(em, 0)
        em.label('L_tail1')
        em.restore(st); em.st.n, em.st.names = sn[0], list(sn[1])
        tail(em, 1)
    else:
        tail(em, 2)

STG2 = 40960
vOFFS = [64, 65, 66, 67, 68]; vA2 = [69, 70, 71, 72, 73]; vB2 = 74
SD, SP, SPR, SOUT = SX, SWQ, SK, SV
def tail_setup_ops(qh):
    c = Cap(); L = f'v{vLANE}'
    t0, t1, t2, t3 = 96, 97, 98, 99
    if qh == 0:
        c.op(f's_mul_i32 s{sT0}, s{sX}, 983040'); c.op(f's_mul_i32 s{sT1}, s{sJ}, 320'); c.op(f's_add_u32 s{sT0}, s{sT0}, s{sT1}')
        srd(c, SD, 14, 15, f's{sT0}', 7864320)
        c.op(f's_sub_u32 s{SD+2}, s{SD+2}, s{sT0}')
        c.op(f's_mov_b32 s{sSTR}, 81920')
        hs = 245760
        c.op(f's_lshl_b32 s{sT2}, s{sW}, 4')
        c.op(f's_mov_b32 s{sT1}, 52429')
        for j in range(5):
            c.op(f'v_add_u32 v{t0}, {j * 64}, {L}')
            c.op(f'v_mul_lo_u32 v{t1}, v{t0}, s{sT1}')
            c.op(f'v_lshrrev_b32 v{t1}, 20, v{t1}')
            c.op(f'v_mul_u32_u24 v{t2}, 20, v{t1}')
            c.op(f'v_sub_u32 v{t2}, v{t0}, v{t2}')
            c.op(f'v_bfe_u32 v{t3}, v{t1}, 2, 1')
            c.op(f'v_lshlrev_b32 v{t3}, 1, v{t3}')
            c.op(f'v_xor_b32 v{t2}, v{t2}, v{t3}')
            c.op(f'v_lshlrev_b32 v{t2}, 4, v{t2}')
            c.op(f'v_add_u32 v{t1}, s{sT2}, v{t1}')
            c.op(f'v_mul_u32_u24 v{t1}, 1280, v{t1}')
            c.op(f'v_add_u32 v{vOFFS[j]}, v{t1}, v{t2}')
    else:
        c.op(f's_lshl_b32 s{sT0}, s{sB}, 5'); c.op(f's_lshl_b32 s{sT1}, s{sX}, 2'); c.op(f's_add_u32 s{sT0}, s{sT0}, s{sT1}')
        c.op(f's_mul_i32 s{sT0}, s{sT0}, {O_HEAD}')
        srd(c, SD, 12, 13, f's{sT0}', 4 * O_HEAD)
        c.op(f's_mov_b32 s{sSTR}, 18432')
        hs = O_HEAD
        c.op(f's_mul_i32 s{sT2}, s{sDG}, 5120')
        c.op(f'v_lshlrev_b32 v{t0}, 4, {L}')
        c.op(f'v_add_u32 v{t0}, s{sT2}, v{t0}')
        for j in range(5): c.op(f'v_add_u32 v{vOFFS[j]}, {j * 1024}, v{t0}')
    c.op(f's_mul_i32 s{sM0T}, s{sW}, 5120')
    for i in range(4):
        c.op(f's_add_u32 s{sT0}, s{sJ}, {i}'); c.op(f's_and_b32 s{sT0}, s{sT0}, 3'); c.op(f's_mul_i32 s{sHB+i}, s{sT0}, {hs}')
    c.op(f's_and_b32 s{sNH}, s{sW}, 1')
    c.op(f'v_lshrrev_b32 v{t0}, 2, {L}')
    c.op(f'v_mul_u32_u24 v{t0}, 320, v{t0}')
    c.op(f'v_and_b32 v{t1}, 3, {L}'); c.op(f'v_lshlrev_b32 v{t1}, 3, v{t1}')
    c.op(f'v_add_u32 v{t0}, v{t0}, v{t1}')
    c.op(f'v_bfe_u32 v{t1}, {L}, 4, 1')
    c.op(f's_mul_i32 s{sT0}, s{sNH}, 5')
    for t in range(5):
        c.op(f's_add_u32 s{sT1}, s{sT0}, {t}')
        c.op(f'v_xor_b32 v{t2}, s{sT1}, v{t1}')
        c.op(f'v_lshlrev_b32 v{t2}, 5, v{t2}')
        c.op(f'v_add_u32 v{vA2[t]}, v{t0}, v{t2}')
    c.op(f's_lshr_b32 s{sT0}, s{sW}, 1')
    c.op(f's_mov_b32 s{sT1}, 0x7350')
    c.op(f's_lshl_b32 s{sT0}, s{sT0}, 2')
    c.op(f's_lshr_b32 s{sQ0}, s{sT1}, s{sT0}')
    c.op(f's_and_b32 s{sQ0}, s{sQ0}, 15')
    c.op(f's_lshl_b32 s{sT0}, s{sQ0}, 10')
    c.op(f's_add_u32 s{sT0}, s{sT0}, 20480')
    c.op(f'v_lshlrev_b32 v{vB2}, 4, {L}')
    c.op(f'v_add_u32 v{vB2}, s{sT0}, v{vB2}')
    c.op(f's_lshl_b32 s{sT0}, s{sB}, 3'); c.op(f's_add_u32 s{sT0}, s{sT0}, s{sX}'); c.op(f's_lshl_b32 s{sT0}, s{sT0}, 7'); c.op(f's_add_u32 s{sT0}, s{sT0}, {FLAG_OFF + 4096}')
    c.op(f's_add_u32 s{sF1}, s12, s{sT0}'); c.op(f's_addc_u32 s{sF1+1}, s13, 0')
    c.op(f's_lshl_b32 s{sT0}, s{sLOC}, 7'); c.op(f's_add_u32 s{sT0}, s{sT0}, {FLAG_OFF + 16384}')
    c.op(f's_add_u32 s{sF2}, s12, s{sT0}'); c.op(f's_addc_u32 s{sF2+1}, s13, 0')
    c.op(f's_mul_i32 s{sT0}, s{sLOC}, {8 * PART2}'); c.op(f's_add_u32 s{sT0}, s{sT0}, {WS_PART}')
    srd(c, SPR, 12, 13, f's{sT0}', 8 * PART2)
    c.op(f's_mul_i32 s{sT1}, s{sX}, {PART2}'); c.op(f's_add_u32 s{sT0}, s{sT0}, s{sT1}')
    srd(c, SP, 12, 13, f's{sT0}', PART2)
    srd(c, SOUT, 54, 55, None, 1474560)
    return c.ops

def tail_dma(em, s, orole=False):
    ops = []
    sc = ' sc1' if (orole and cfg.sc_ol) else ''
    for j in range(5):
        def f(j=j):
            em.op(f's_add_u32 m0, s{sM0T}, {(s % 3) * STG2 + j * 1024}')
            if j == 0:
                if s % 3 == 0: em.op(f's_mov_b32 s{sOFF}, s{sHB + s // 3}')
                else: em.op(f's_add_u32 s{sOFF}, s{sOFF}, s{sSTR}')
            em.op(f'buffer_load_dwordx4 v{vOFFS[j]}, {sr(SD,4)}, s{sOFF} offen{sc} lds', tag=f'T{s}')
        ops.append(f)
    return ops

def flag_store(em, base, idx_s, lab, wave):
    t0, t1 = 50, 51
    em.op(f's_cmp_eq_u32 s{sW}, {wave}')
    em.op(f's_cbranch_scc0 {lab}')
    em.begin_opt()
    em.op(f's_lshl_b32 s{sT0}, s{idx_s}, 2')
    em.op(f'v_mov_b32 v{t0}, s{sT0}')
    em.op(f'v_mov_b32 v{t1}, s{sTAG}')
    em.op('s_mov_b64 exec, 1')
    em.op(f'global_store_dword v{t0}, v{t1}, s[{base}:{base+1}] sc1')
    em.op('s_mov_b64 exec, -1')
    em.end_opt()
    em.label(lab)

def poll(em, base, mask, lab):
    t0, t1 = 52, 53
    em.op(f'v_and_b32 v{t0}, {mask}, v{vLANE}')
    em.op(f'v_lshlrev_b32 v{t0}, 2, v{t0}')
    em.op(f's_mov_b32 s{sCNT}, 0x20000')
    em.wait_vm0()
    em.label(lab)
    em.op(f'global_load_dword v{t1}, v{t0}, s[{base}:{base+1}] sc1')
    em.op(f's_sub_u32 s{sCNT}, s{sCNT}, 1')
    em.op(f's_cbranch_scc1 {lab}_done')
    em.wait_vm0()
    em.op(f'v_cmp_ne_u32 vcc, s{sTAG}, v{t1}')
    em.op('s_nop 4')
    em.op(f's_cbranch_vccz {lab}_done')
    em.op('s_sleep 1')
    em.op(f's_branch {lab}')
    em.label(f'{lab}_done')
    em.wait_vm0()

def tail(em, tv):
    nq = 3 if tv == 0 else 2
    orole = tv == 2
    L = f'v{vLANE}'
    rf = cfg.rfrac / 100
    sc = ' sc1' if cfg.sc else ''
    ACC2 = 116; AF = [76, 96]; BF = [16, 28]; CO = 176
    t0, t1, t2, t3 = 40, 41, 42, 43
    em.op(f'v_lshlrev_b32 v{t0}, 4, v0')
    em.op(f'v_add_u32 v{t1}, 20480, v{t0}')
    em.op(f'v_add_u32 v{t2}, {STG2 + 20480}, v{t0}')
    npc = 3 if tv == 0 else 2
    k = 0; sts = []
    for c in range(3):
        for i in range(npc):
            va, off = (t1, 0) if c == 0 else (t2, (c - 1) * STG2)
            em.op(f'ds_read_b128 {vr(CO + 4*k)}, v{va} offset:{off + i * 8192}')
            sts.append((CO + 4*k, c * 18432 + i * 8192)); k += 1
    def reads(step, st_):
        ops = []
        for t in range(5):
            ops.append(f'ds_read_b64_tr_b16 {vr(AF[st_] + 4*t, 2)}, v{vA2[t]} offset:{step * 10240}')
            ops.append(f'ds_read_b64_tr_b16 {vr(AF[st_] + 4*t + 2, 2)}, v{vA2[t]} offset:{step * 10240 + 5120}')
        xs = [f'ds_read_b128 {vr(BF[st_] + 4*j)}, v{vB2} offset:{step * 9216 + j * 1024}' for j in range(nq)]
        return ops[0:2] + xs + ops[2:]
    def mf(st_, first):
        return [mfma(ACC2 + 4*(t*nq+j), AF[st_] + 4*t, BF[st_] + 4*j, None if first else ACC2 + 4*(t*nq+j)) for t in range(5) for j in range(nq)]
    for r, off in sts:
        em.op(f's_mov_b32 s{sT0}, {off}')
        em.op(f'buffer_store_dwordx4 {vr(r)}, v{t0}, {sr(SO,4)}, s{sT0} offen' + ['', ' sc1', ' nt', ' sc0'][cfg.sc_o], tag='CO')
    for o in reads(0, 0): em.op(o)
    carry = []
    for s in range(12):
        interleave(em, mf(0, s == 0), (reads(1, 1), 0, rf), (carry, 0.05, 0.95))
        carry = []
        if s < 11:
            if s == 0: em.wait_vm0(); em.wait_lgkm0()
            else: em.wait_vm_tag(f'T{s+1}', lgkm0=True)
            em.barrier()
            em.st.stamp(f'T{s}')
        if s == 0 and orole: flag_store(em, sF1, sJ, 'L_f1', 4)
        fill = []; dm = []
        if s < 11:
            d = STG2 if (s + 1) % 3 else -2 * STG2
            fill += [f'v_add_u32 v{r}, {d & 0xffffffff}, v{r}' for r in vA2 + [vB2]]
            fill += reads(0, 0)
        if s + 3 <= 11:
            if not orole or s >= 2:
                dm = tail_dma(em, s + 3, orole); dm, carry = dm[:3], dm[3:]
            elif s == 1:
                poll(em, sF1, 3, 'L_p1')
                em.st.stamp('poll')
                for f in tail_dma(em, 3, True): f()
                dm = tail_dma(em, 4, True)
        interleave(em, mf(1, False), (dm, 0.05, 0.95), (fill, 0, rf + 0.1))
    em.st.stamp('TP')
    em.op(f'v_and_b32 v{t1}, 15, {L}'); em.op(f'v_mul_u32_u24 v{t1}, 336, v{t1}')
    em.op(f'v_lshrrev_b32 v{t2}, 4, {L}'); em.op(f'v_lshlrev_b32 v{t2}, 3, v{t2}')
    em.op(f's_mul_i32 s{sT0}, s{sQ0}, {16 * 336}'); em.op(f's_mul_i32 s{sT1}, s{sNH}, 160'); em.op(f's_add_u32 s{sT0}, s{sT0}, s{sT1}')
    em.op(f'v_add3_u32 v{t1}, v{t1}, v{t2}, s{sT0}')
    em.op(f's_mov_b32 s{sT2}, 52429')
    pre = []
    for i in range(6):
        r = 176 + i
        pre += [f'v_add_u32 v{r}, {512 * i}, v0', f'v_mul_lo_u32 v{t2}, v{r}, s{sT2}', f'v_lshrrev_b32 v{t2}, 20, v{t2}', f'v_add_lshl_u32 v{r}, v{r}, v{t2}, 4']
    for o in pre: em.op(o)
    for t in range(5):
        for j in range(nq):
            a = ACC2 + 4*(t*nq+j)
            em.op(f'v_cvt_pk_bf16_f32 v{a}, v{a}, v{a+1}')
            em.op(f'v_cvt_pk_bf16_f32 v{a+1}, v{a+2}, v{a+3}')
            em.op(f'ds_write_b64 v{t1}, {vr(a,2)} offset:{j * 16 * 336 + t * 32}')
    em.wait_lgkm0(); em.barrier()
    for i in range(6): em.op(f'ds_read_b128 {vr(76 + 4*i)}, v{176 + i}')
    for i in range(6):
        em.op(f's_mov_b32 s{sT0}, {i * 8192}')
        em.op(f'buffer_store_dwordx4 {vr(76 + 4*i)}, v{t0}, {sr(SP,4)}, s{sT0} offen{sc}')
    em.op(f's_mul_i32 s{sT0}, s{sX}, 5760')
    em.op(f'v_add_u32 v{t1}, s{sT0}, v{t0}')
    em.op(f'v_mul_lo_u32 v{t2}, v0, s{sT2}'); em.op(f'v_lshrrev_b32 v{t2}, 20, v{t2}')
    em.op(f'v_mul_u32_u24 v{t2}, 960, v{t2}')
    em.op(f's_mul_i32 s{sT0}, s{sB}, 144'); em.op(f's_mul_i32 s{sT1}, s{sX}, 18'); em.op(f's_add_u32 s{sT0}, s{sT0}, s{sT1}')
    em.op(f's_mul_i32 s{sT0}, s{sT0}, 1280'); em.op(f's_mul_i32 s{sT1}, s{sJ}, 320'); em.op(f's_add_u32 s{sT0}, s{sT0}, s{sT1}')
    em.op(f'v_add3_u32 v{t2}, v{t2}, v{t0}, s{sT0}')
    em.op(f'v_mov_b32 v{t3}, 0x7ffffff0')
    em.op(f'v_cmp_gt_u32 vcc, 360, v0')
    em.op(f'v_cndmask_b32 v{t2}, v{t3}, v{t2}, vcc')
    em.wait_vm0(); em.barrier()
    em.st.stamp('TW')
    if tv == 2:
        flag_store(em, sF2, sX, 'L_f2', 7)
        em.op(f's_cmp_ge_u32 s{sW}, 6')
        em.op(f's_cbranch_scc1 L_fin2')
    poll(em, sF2, 7, f'L_p2_{tv}')
    em.st.stamp('TF')
    for x in range(8):
        em.op(f's_mov_b32 s{sT0}, {x * PART2}')
        em.op(f'buffer_load_dwordx4 {vr(76 + 4*x)}, v{t1}, {sr(SPR,4)}, s{sT0} offen{sc}')
    if tv == 0:
        em.op(f's_or_b32 s{sT0}, s{sH}, s{sW}')
        em.op(f's_cmp_eq_u32 s{sT0}, 0')
        em.op('s_cbranch_scc0 L_nw')
        em.begin_opt()
        em.op(f's_lshl_b32 s{sT0}, s{sB}, 8'); em.op(f's_add_u32 s{sT0}, s{sT0}, {FLAG_OFF}')
        em.op(f'v_mov_b32 v60, s{sT0}'); em.op(f'v_mov_b32 v61, s{sTAG}')
        em.op('s_mov_b64 exec, 1')
        em.op('global_store_dword v60, v61, s[12:13]')
        em.op('s_mov_b64 exec, -1')
        em.end_opt()
        em.label('L_nw')
    A = 108
    for x in range(8):
        for d in range(4):
            r = 76 + 4*x + d
            if x == 0:
                em.op(f'v_lshlrev_b32 v{A+2*d}, 16, v{r}'); em.op(f'v_and_b32 v{A+2*d+1}, 0xffff0000, v{r}')
            else:
                em.op(f'v_lshlrev_b32 v{A+8}, 16, v{r}'); em.op(f'v_and_b32 v{A+9}, 0xffff0000, v{r}')
                em.op(f'v_pk_add_f32 {vr(A+2*d,2)}, {vr(A+2*d,2)}, {vr(A+8,2)}')
    for d in range(4): em.op(f'v_cvt_pk_bf16_f32 v{A+d}, v{A+2*d}, v{A+2*d+1}')
    em.op(f'buffer_store_dwordx4 {vr(A)}, v{t2}, {sr(SOUT,4)}, 0 offen')
    em.st.stamp('TL')
    if cfg.x_ren:
        em.op('v_mov_b32 v116, s84')
        em.op('global_load_dword v117, v116, s[86:87] sc1')
        em.op('v_readfirstlane_b32 s85, v117')
        em.op('s_bcnt1_i32_b32 s85, s85')
        em.op('s_cmp_gt_u32 s85, 1')
        em.op(f's_cbranch_scc0 L_ren{tv}')
        em.op('s_mov_b32 s85, 600')
        em.label(f'L_rend{tv}')
        em.op('s_sleep 1'); em.op('s_sub_u32 s85, s85, 1'); em.op('s_cmp_lg_u32 s85, 0'); em.op(f's_cbranch_scc1 L_rend{tv}')
        em.label(f'L_ren{tv}')
    if tv == 2: em.label('L_fin2')
    if cfg.diag: em.wait_vm0()
    em.st.flush(12, 0, sW, 244)
    em.op('s_endpgm')

def kernel_header(name):
    return f'.globl {name}\n.p2align 8\n.type {name},@function\n{name}:\n'
def kernel_desc(name, vgpr, sgpr=102):
    return f'''.amdhsa_kernel {name}
  .amdhsa_next_free_vgpr {vgpr}
  .amdhsa_next_free_sgpr {sgpr}
  .amdhsa_accum_offset {(vgpr + 3) // 4 * 4}
  .amdhsa_group_segment_fixed_size 0
  .amdhsa_kernarg_size 64
  .amdhsa_user_sgpr_count 2
  .amdhsa_user_sgpr_kernarg_segment_ptr 1
  .amdhsa_system_sgpr_workgroup_id_x 1
.end_amdhsa_kernel
'''

def gen_k1():
    em = Em()
    k1_prologue(em)
    st0 = em.save()
    em.label('k1_body_start')
    for qh in range(2):
        if qh: em.label('L_qp1')
        em.restore(st0)
        k1_qproj(em, qh, 0)
        k1_qk(em, qh)
        k1_sm0(em, qh)
        k1_pv(em, qh)
    em.label('k1_body_end')
    em.label('L_k1_exit')
    em.op('s_endpgm')
    return em

def main():
    ref = open('cdna_kernels/' + NAME + '.s.ref').read().split('\n')
    head = [l for l in ref[:9]]
    k1 = gen_k1()
    KN = NAME + '_kernel'
    out = '\n'.join(head) + '\n'
    out += f'; @launch grid=(256,1,1) block=(512,1,1) lds={LDS1}\n'
    out += '.amdgcn_target "amdgcn-amd-amdhsa--gfx950"\n.text\n'
    out += kernel_header(KN) + k1.text()
    out += '.section .rodata,"a"\n.p2align 6\n' + kernel_desc(KN, 256)
    open(sys.argv[1], 'w').write(out)
    print('k1 instrs', k1.count, 'nops', k1.nops, file=sys.stderr)
main()
```

```python
import sys, struct, math
from em import Em, interleave, emit

NAME = 'standalone__gqa_block_cached__near_ridge'
def fbits(x): return struct.unpack('<I', struct.pack('<f', x))[0]

class Cfg:
    nt_kv = True
    nt_w = False
    nt_k2 = False
    two_types = True
    pre = True
    code_pre = True
    diag = False
    pk = True
    rfrac = 60
    prio = 0
    x_noexp = 0
    x_nopw = 0
    efrac = 95
    loopb = -1
    st = 0
    dbg = 0
    n0 = 8
    inpv0 = 0
    inpv1 = 0
    pfa = 5
    kq = 16
    kq0 = 6
    wont = 0
    vrf = 60
    x_ren = 0
    vrole = 1
    vfirst = 0
    vold = 0
    vh0 = 12
    kqb = 8
    kqb0 = 7
    vb = 0
    vreg = 0
    nvy = 4
    sc_o = 1
    sc_ol = 1
    rt = 0
    qloop = 0
    x_qnodma = 0
    x_qnord = 0
    dlo = 10
    dhi = 95
    dsplit = 3
    x_delay = 0
    wopre = 1
    sc = 1
    x_nobar = 0
    x_nord = 0
    x_nodma = 0
cfg = Cfg()
cfg.pvst = (3,7); cfg.qst = (0,8,)
if 'pvall=1' in sys.argv: sys.argv.remove('pvall=1'); cfg.pvst = (0,1,2,3,4,5,6,7); cfg.qst = (); cfg.fewst = True
else: cfg.fewst = False
for a in sys.argv[2:]:
    k, v = a.split('='); setattr(cfg, k, type(getattr(cfg, k))(int(v)))
STSETS = {0: 'S0 BQ BM PV0 BO T0 T2 TP TW TF', 1: 'ka pi si S0 B0 B8 BQ K0 K1 QKend BM exp0 PV0', 2: 'PV0 PB0 PB1 PB2 PB3 PB4 PB5 PB6 PB7 BO', 3: 'BO T0 T1 poll T2 T3 T10 TP TW TF', 4: 'K0 K1 QKend BM exp0 PV0 PB3 PB7 BO T0', 5: 'S0 LB0 LBend BQ', 6: 'S0 B0 B1 B2 B3 B5 B7 B8 B9 BQ', 7: 'BO T0 T1 T2 T3 T4 T6 T8 T10 TP'}
cfg.stlist = ['rt0', 'start'] + STSETS[cfg.st].split()[:10] + ['end', 'rt_end']
cfg.pvst = range(8); cfg.qst = range(10)

def vr(b, n=4): return f'v[{b}:{b + n - 1}]' if n > 1 else f'v{b}'
def sr(b, n): return f's[{b}:{b + n - 1}]'
MF = 'v_mfma_f32_16x16x32_bf16'
def mfma(d, a, b, c=None):
    return f'{MF} {vr(d)}, {vr(a)}, {vr(b)}, ' + ('0' if c is None else vr(c))

FLAG_OFF = 48 << 20
PART2 = 46080
O_HEAD = 55296
WS_PART = 16 << 20
PART_TILE = 90 * 1024

def srd(em, d, base_lo, base_hi, off_sgpr, size):
    if off_sgpr is None:
        em.op(f's_mov_b32 s{d}, s{base_lo}'); em.op(f's_mov_b32 s{d+1}, s{base_hi}')
    else:
        em.op(f's_add_u32 s{d}, s{base_lo}, {off_sgpr}'); em.op(f's_addc_u32 s{d+1}, s{base_hi}, 0')
    em.op(f's_mov_b32 s{d+2}, {size}')
    em.op(f's_mov_b32 s{d+3}, 0x20000')

_lab = [0]
DIAG_OFF = 64 << 20
class Stamps:
    def __init__(self, em):
        self.em = em; self.n = 0; self.names = []
        if cfg.diag:
            for i in range(len(cfg.stlist)): em.op(f's_mov_b32 s{60 + 2*i}, 0')
    def stamp(self, name, real=False):
        if not cfg.diag or name not in cfg.stlist: return
        em = self.em; i = cfg.stlist.index(name)
        em.wait_lgkm0()
        em.op(('s_memrealtime' if (real or cfg.rt) else 's_memtime') + f' s[{60 + 2*i}:{61 + 2*i}]')
        em.op('s_waitcnt lgkmcnt(0)')
    def flush(self, ws_lo, kidx, wave_s, tv):
        if not cfg.diag: return
        em = self.em
        self.stamp('end'); self.stamp('rt_end', real=True)
        if cfg.dbg:
            _lab[0] += 1
            em.op('s_load_dwordx2 s[56:57], s[0:1], 48')
            em.op(f's_and_b32 s58, s2, 0xdf'); em.op(f's_or_b32 s58, s58, s{wave_s}'); em.op('s_cmp_eq_u32 s58, 0')
            em.op('s_waitcnt lgkmcnt(0)')
            em.op(f's_cbranch_scc0 L_dbg{_lab[0]}')
            em.op(f'v_mov_b32 v{tv}, s2')
            for k, i in enumerate([2, 3, 4, 13, 6, 9, 11, 12]):
                em.op(f's_sub_u32 s58, s{60 + 2*i}, s{60 if i == 13 else 62}')
                em.op(f'v_mov_b32 v{tv+1}, s58')
                em.op(f'global_store_dword v{tv}, v{tv+1}, s[56:57] offset:{4*k}')
            em.label(f'L_dbg{_lab[0]}')
            return
        em.op(f's_lshl_b32 s56, s2, 3'); em.op(f's_add_u32 s56, s56, s{wave_s}'); em.op('s_lshl_b32 s56, s56, 7')
        em.op(f's_add_u32 s56, s56, {DIAG_OFF + (kidx << 20)}')
        em.op(f's_add_u32 s56, s{ws_lo}, s56'); em.op(f's_addc_u32 s57, s{ws_lo+1}, 0')
        em.op(f'v_mov_b32 v{tv}, 0')
        for i in range(len(cfg.stlist)):
            em.op(f'v_mov_b32 v{tv+1}, s{60 + 2*i}')
            em.op(f'global_store_dword v{tv}, v{tv+1}, s[56:57] offset:{4*i}')
        print('stamps', kidx, cfg.stlist, file=sys.stderr)

SX, SWQ, SK, SV, SO = 16, 20, 24, 28, 32
sW, sW3072, sW1024, sTYPE, sOFF, sT0, sT1, sT2, sC, sB, sH, sJ, sLOC, sX = 36, 37, 38, 39, 40, 41, 42, 43, 44, 52, 46, 47, 48, 53
vLANE, vXO, vWO, vK0, vK1, vVO = 1, 2, 3, 4, 5, 6
vRA = [7, 8]
vRB = [9, 10, 11]
vRC = [12, 13, 14]
vT = 15
vVW, vVW2 = 7, 8
vPA, vPW, vMS = 240, 242, 243
vPW2 = 241
TMP = list(range(244, 256))
STG = 43008
PBASE, VBASE, MAXB, SUMB = 0, 55296, 153600, 155648
NV = 4
LDS1 = SUMB + 12 * 512
KSP = 16
def KR0(p): return 20 + 8 * p
def KR1(p): return 24 + 8 * p
def KT(p): return KSP if p == 0 else KR1(p - 1)
def kop(kt, ks):
    p = (kt // 2) * 6 + (ks // 2) * 2 + (kt % 2)
    return KR0(p) if ks % 2 == 0 else KT(p)
def sreg(kt, qt):
    if kt < 2: return 116 + 4 * (qt * 2 + kt)
    i = qt * 2 + (kt - 2)
    return 16 + 4 * i if i < 12 else 188 + 4 * (i - 12)
ACC = 116
MC = 212
SUM = 221
SUMP = 222
QF = 224
OACC0 = [116 + 4*i for i in range(15)]
OACC1 = [120 + 8*i for i in range(9)] + [112, 2, 248]
PAF0 = [[176, 180, 184], [20, 28, 36]]
PAF1 = [[20, 28, 36], [44, 52, 60]]
PBF0 = [[44, 52, 60, 192, 200], [208, 112, 2, 248, 252]]
PBF1 = [[192, 200, 208, 252], [216, 220, 224, 228]]
INV0 = 230
NEXP1 = 4


def k_load_ops(em, half):
    nt = ' nt' if cfg.nt_kv else ''
    ops = []
    for c in range(3):
        for k in range(2):
            p = half * 6 + c * 2 + k
            kt = half * 2 + k
            for (dst, va) in ((KR0(p), vK0), (KR1(p), vK1)):
                def f(dst=dst, va=va, kt=kt, c=c):
                    em.op(f's_mov_b32 s{sOFF}, {kt * 6144}')
                    em.op(f'buffer_load_dwordx4 {vr(dst)}, v{va}, {sr(SK,4)}, s{sOFF} offen offset:{c*128}{nt}', tag=f'K{half}')
                ops.append(f)
    return ops

def k_fix_ops(half):
    ops = []
    for pp in range(6):
        p = half * 6 + pp
        for d in range(4):
            r0, r1, t = KR0(p) + d, KR1(p) + d, KT(p) + d
            ops.append(f'v_mov_b32_dpp v{t}, v{r0} row_ror:8 row_mask:0xf bank_mask:0x3')
            ops.append(f'v_mov_b32_dpp v{t}, v{r1} row_ror:8 row_mask:0xf bank_mask:0xc')
            ops.append(f'v_mov_b32_dpp v{r0}, v{r1} quad_perm:[0,1,2,3] row_mask:0xf bank_mask:0xc')
    return ops

def stage_dma_ops(em, s, qh):
    nt = ' nt' if cfg.nt_w else ''
    slot = (s % 3) * STG
    ops = []
    for c in range(3):
        def f(c=c):
            em.op(f's_add_u32 m0, s{sW3072}, {slot + c * 896}')
            em.op(f's_mov_b32 s{sOFF}, {s * 786432}')
            em.op(f'buffer_load_dwordx4 v{vWO}, {sr(SWQ,4)}, s{sOFF} offen offset:{c*128}{nt} lds', tag=f'S{s}')
        ops.append(f)
    for j in range(2):
        def f(j=j):
            em.op(f's_add_u32 m0, s{sW1024}, {slot + j * 8192}')
            em.op(f's_mov_b32 s{sOFF}, {s * 128 + j * 81920}')
            em.op(f'buffer_load_dwordx4 v{vXO}, {sr(SX,4)}, s{sOFF} offen{nt} lds', tag=f'S{s}')
        ops.append(f)
    if qh == 1:
        def f():
            _lab[0] += 1
            lab = f'L_x{_lab[0]}'
            em.op(f's_cmp_lt_u32 s{sW}, 6')
            em.op(f's_cbranch_scc0 {lab}')
            em.begin_opt()
            em.op(f's_add_u32 m0, s{sW1024}, {slot + 12288}')
            em.op(f's_mov_b32 s{sOFF}, {s * 128 + 122880}')
            em.op(f'buffer_load_dwordx4 v{vXO}, {sr(SX,4)}, s{sOFF} offen{nt} lds', tag=f'S{s}')
            em.end_opt()
            em.label(lab)
        ops.insert(0, f)
    return ops

def v_dma_ops(em, s):
    nt = ' nt' if cfg.nt_kv else ''
    ops = []
    for c in range(3):
        def f(c=c):
            em.op(f's_add_u32 m0, s{sW3072}, {VBASE + (s % NV) * 24576 + c * 896}')
            em.op(f's_mov_b32 s{sOFF}, {(128 * (s & 3) + 32 * (s >> 2)) * 384}')
            em.op(f'buffer_load_dwordx4 v{vVO}, {sr(SV,4)}, s{sOFF} offen offset:{c*128}{nt} lds', tag=f'V{s}')
        ops.append(f)
    return ops

sDG = 49
sPFS, sPFB = 45, 50
vPF = 241
def pf_ops():
    if not cfg.pre: return []
    nt = ' nt' if cfg.nt_w else ''
    return [f'global_load_dwordx4 {vr(112)}, v{vPF}, s[{sPFB}:{sPFB+1}]{nt}', f'v_add_u32 v{vPF}, s{sPFS}, v{vPF}']
sTAG, sSTR, sF1, sF2, sHB, sM0T, sQ0, sNH, sCNT = 88, 89, 90, 92, 94, 98, 99, 100, 101
VST = 64
def v_reg_ops(em):
    nt = ' nt' if cfg.nt_kv else ''
    ops = []
    for s in range(4, 8):
        for c in range(3):
            def f(s=s, c=c):
                em.op(f's_mov_b32 s{sOFF}, {(128 * (s & 3) + 32 * (s >> 2)) * 384}')
                em.op(f'buffer_load_dwordx4 {vr(VST + 4 * ((s - 4) * 3 + c))}, v{vVO}, {sr(SV,4)}, s{sOFF} offen offset:{c*128}{nt}', tag=f'V{s}')
            ops.append(f)
    return ops
def v_put_ops(s):
    slot = s % NV
    return [f'ds_write_b128 v{vVW if slot < 2 else vVW2}, {vr(VST + 4 * ((s - 4) * 3 + c))} offset:{(slot % 2) * 24576 + c * 1024}' for c in range(3)]

def k1_prologue(em):
    em.op('s_cmp_ge_u32 s2, 256')
    em.op('s_cbranch_scc1 L_k1_exit')
    em.st = Stamps(em); em.st.stamp('rt0', real=True); em.st.stamp('start')
    if cfg.x_delay:
        em.op(f's_mov_b32 s58, {cfg.x_delay}')
        em.label('L_delay')
        for i in range(4): em.op(mfma(16 + 4*i, 100, 104, 16 + 4*i))
        em.op('s_sub_u32 s58, s58, 1'); em.op('s_cmp_lg_u32 s58, 0'); em.op('s_cbranch_scc1 L_delay')
        em.op('s_nop 15')
    em.op('s_load_dwordx8 s[4:11], s[0:1], 0')
    em.op('s_load_dwordx2 s[12:13], s[0:1], 56')
    em.op('s_load_dwordx2 s[14:15], s[0:1], 32')
    em.op('s_load_dwordx2 s[54:55], s[0:1], 40')
    em.op(f'v_and_b32 v{vLANE}, 63, v0')
    em.op(f'v_lshrrev_b32 v{vT}, 6, v0')
    em.op(f's_and_b32 s{sX}, s2, 7')
    em.op(f's_lshr_b32 s{sLOC}, s2, 3')
    em.op(f'v_readfirstlane_b32 s{sW}, v{vT}')
    t0, t1, t2, t3, t4 = TMP[:5]
    L = f'v{vLANE}'
    if cfg.code_pre:
        em.op('s_getpc_b64 s[50:51]')
        em.label('L_k1_pc')
        em.op('s_add_u32 s50, s50, k1_body_start-L_k1_pc')
        em.op('s_addc_u32 s51, s51, 0')
        em.op(f's_and_b32 s{sT1}, s{sLOC}, 15')
        em.op(f's_lshl_b32 s{sT1}, s{sT1}, 13')
        em.op(f'v_lshlrev_b32 v{t3}, 4, v0')
        em.op(f'v_add_u32 v{t4}, s{sT1}, v{t3}')
        em.op(f'v_min_u32 v{t4}, k1_body_end-k1_body_start-16, v{t4}')
        em.op(f'v_mov_b32 v{vT}, v{t4}')
        em.op('s_mov_b64 s[58:59], s[50:51]')
    else:
        em.op(f'v_lshlrev_b32 v{t3}, 4, v0')
    em.op(f's_and_b32 s{sJ}, s{sLOC}, 3')
    em.op(f's_lshr_b32 s{sB}, s{sLOC}, 2')
    em.op(f's_lshl_b32 s{sH}, s{sX}, 2')
    em.op(f's_add_u32 s{sH}, s{sH}, s{sJ}')
    nt = ' nt' if cfg.nt_w else ''
    em.op(f's_and_b32 s{sTYPE}, s{sB}, 1')
    em.op(f's_lshl_b32 s{sT0}, s{sLOC}, 1'); em.op(f's_mul_i32 s{sT0}, s{sT0}, 12288'); em.op(f's_mul_i32 s{sT1}, s{sX}, 1536'); em.op(f's_add_u32 s{sT0}, s{sT0}, s{sT1}')
    em.op(f's_lshl_b32 s{sT1}, s{sW}, 9'); em.op(f's_add_u32 s{sT0}, s{sT0}, s{sT1}')
    em.op(f'v_lshrrev_b32 v{t0}, 5, {L}'); em.op(f'v_mul_u32_u24 v{t0}, 12288, v{t0}')
    em.op(f'v_and_b32 v{t1}, 31, {L}'); em.op(f'v_lshlrev_b32 v{t1}, 4, v{t1}')
    em.op(f'v_add3_u32 v{t0}, v{t0}, v{t1}, s{sT0}')
    em.op(f's_mul_i32 s{sT0}, s{sLOC}, 36'); em.op(f's_lshl_b32 s{sT1}, s{sW}, 3'); em.op(f's_add_u32 s{sT0}, s{sT0}, s{sT1}'); em.op(f's_sub_u32 s{sT0}, s{sT0}, 24')
    em.op(f'v_lshrrev_b32 v{t1}, 3, {L}'); em.op(f'v_add_u32 v{t1}, s{sT0}, v{t1}'); em.op(f'v_min_u32 v{t1}, 1151, v{t1}')
    em.op(f'v_mul_u32_u24 v{t1}, 1280, v{t1}')
    em.op(f'v_and_b32 v{t2}, 7, {L}'); em.op(f'v_lshlrev_b32 v{t2}, 4, v{t2}')
    em.op(f'v_add_u32 v{t1}, v{t1}, v{t2}')
    em.op(f's_cmp_lt_u32 s{sW}, 3')
    em.op(f's_cselect_b64 vcc, -1, 0')
    em.op(f's_movk_i32 s{sPFS}, 128')
    em.op(f's_cselect_b32 s{sPFS}, 786432, s{sPFS}')
    em.op(f'v_cndmask_b32 v{vPF}, v{t1}, v{t0}, vcc')
    em.op('s_waitcnt lgkmcnt(0)')
    em.st.stamp('ka')
    if cfg.x_ren:
        em.op('s_load_dwordx2 s[86:87], s[0:1], 48')
        em.op('s_getreg_b32 s85, hwreg(HW_REG_XCC_ID)')
        em.op('s_and_b32 s85, s85, 15')
        em.op('s_lshl_b32 s85, 1, s85')
        em.op(f's_lshl_b32 s84, s{sX}, 2')
        em.op('v_mov_b32 v116, s84'); em.op('v_mov_b32 v117, s85')
        em.op('s_waitcnt lgkmcnt(0)')
        em.op('v_cmp_eq_u32 vcc, 0, v0')
        em.op('s_and_saveexec_b64 s[82:83], vcc')
        em.op('s_cbranch_execz L_ren_a')
        em.begin_opt()
        em.op('global_atomic_or v116, v117, s[86:87] sc1')
        em.end_opt()
        em.label('L_ren_a')
        em.op('s_mov_b64 exec, s[82:83]')
    em.op(f's_lshl_b32 s{sT0}, s{sB}, 8'); em.op(f's_add_u32 s{sT0}, s{sT0}, {FLAG_OFF}')
    em.op(f's_load_dword s{sTAG}, s[12:13], s{sT0}')
    em.op(f's_cmp_lt_u32 s{sW}, 3')
    em.op(f's_cselect_b64 s[{sPFB}:{sPFB+1}], s[10:11], s[4:5]')
    for i in range(3):
        for o in pf_ops(): em.op(o)
    em.st.stamp('pi')
    em.op(f's_and_b32 s{sDG}, s{sW}, 3')
    em.op(f's_mul_i32 s{sW3072}, s{sW}, 3072')
    em.op(f's_lshl_b32 s{sW1024}, s{sW}, 10')
    em.op(f's_add_u32 s{sW1024}, s{sW1024}, 24576')
    em.op(f's_mov_b32 s{sC}, {fbits(192 ** -0.5 * math.log2(math.e))}')
    em.op(f'v_lshrrev_b32 v{t0}, 3, {L}')
    em.op(f'v_and_b32 v{t1}, 7, {L}')
    em.op(f'v_lshrrev_b32 v{t2}, 4, {L}')
    em.op(f's_lshl_b32 s{sT1}, s{sB}, 5'); em.op(f's_add_u32 s{sT1}, s{sT1}, s{sH}')
    em.op(f's_mul_i32 s{sT0}, s{sT1}, 196608')
    srd(em, SK, 6, 7, f's{sT0}', 196608); srd(em, SV, 8, 9, f's{sT0}', 196608)
    em.op(f's_mul_i32 s{sT0}, s{sT1}, {O_HEAD}'); srd(em, SO, 12, 13, f's{sT0}', O_HEAD)
    em.op(f'v_and_b32 v{t3}, 1, v{t0}')
    em.op(f'v_lshlrev_b32 v{t3}, 2, v{t3}')
    em.op(f'v_add_u32 v{t3}, v{t3}, v{t2}')
    em.op(f'v_lshlrev_b32 v{t3}, 4, v{t3}')
    em.op(f's_lshl_b32 s{sT2}, s{sW}, 6')
    em.op(f'v_add_u32 v{t4}, s{sT2}, v{t1}')
    em.op(f'v_mul_u32_u24 v{t4}, 384, v{t4}')
    em.op(f'v_add_u32 v{vK0}, v{t4}, v{t3}')
    em.op(f'v_xor_b32 v{t3}, 64, v{t3}')
    em.op(f'v_add_u32 v{vK1}, v{t4}, v{t3}')
    em.op(f'v_add_u32 v{vK1}, {8 * 384}, v{vK1}')
    if cfg.n0:
        em.op(f's_cmp_eq_u32 s{sTYPE}, 1')
        em.op('s_cbranch_scc0 L_nok1')
        em.begin_opt()
        for i in range(7):
            for o in pf_ops(): em.op(o)
        for f in (k_load_ops(em, 0) + k_load_ops(em, 1))[:2 * cfg.n0]: f()
        em.end_opt()
        em.label('L_nok1')
    em.op(f's_mul_i32 s{sT0}, s{sB}, 184320'); srd(em, SX, 4, 5, f's{sT0}', 184320)
    em.op(f's_mul_i32 s{sT0}, s{sH}, 384'); srd(em, SWQ, 10, 11, f's{sT0}', 7864320)
    em.op(f's_sub_u32 s{SWQ+2}, s{SWQ+2}, s{sT0}')
    em.op(f's_and_b32 s{sT0}, s{sW}, 1')
    em.op(f's_lshl_b32 s{sT1}, s{sT0}, 2')
    em.op(f'v_add_u32 v{t3}, s{sT1}, v{t2}')
    em.op(f'v_xor_b32 v{t3}, v{t3}, v{t1}')
    em.op(f'v_lshlrev_b32 v{t3}, 4, v{t3}')
    em.op(f's_lshl_b32 s{sT2}, s{sW}, 3')
    em.op(f'v_add_u32 v{t4}, s{sT2}, v{t0}')
    em.op(f'v_mul_u32_u24 v{vXO}, 1280, v{t4}')
    em.op(f'v_add_u32 v{vXO}, v{vXO}, v{t3}')
    em.op(f'v_and_b32 v{t3}, 1, v{t2}')
    em.op(f'v_lshlrev_b32 v{t3}, 1, v{t3}')
    em.op(f'v_add_u32 v{t3}, s{sT1}, v{t3}')
    em.op(f'v_xor_b32 v{t3}, v{t3}, v{t1}')
    em.op(f'v_lshlrev_b32 v{t3}, 4, v{t3}')
    em.op(f'v_mul_u32_u24 v{vWO}, 12288, v{t4}')
    em.op(f'v_add_u32 v{vWO}, v{vWO}, v{t3}')
    em.op(f's_lshr_b32 s{sT1}, s{sW}, 2'); em.op(f's_lshl_b32 s{sT1}, s{sT1}, 6')
    em.op(f's_lshl_b32 s{sT0}, s{sDG}, 3'); em.op(f's_add_u32 s{sT0}, s{sT0}, s{sT1}')
    em.op(f'v_add_u32 v{t3}, s{sT0}, v{t0}')
    em.op(f'v_mul_u32_u24 v{vVO}, 384, v{t3}')
    em.op(f'v_lshlrev_b32 v{t3}, 1, v{t2}')
    em.op(f'v_xor_b32 v{t3}, v{t3}, v{t1}')
    em.op(f'v_lshlrev_b32 v{t3}, 4, v{t3}')
    em.op(f'v_add_u32 v{vVO}, v{vVO}, v{t3}')
    em.op('s_waitcnt lgkmcnt(0)')
    em.op(f's_add_u32 s{sTAG}, s{sTAG}, 1')
    em.barrier()
    if cfg.n0:
        em.op(f's_lshr_b32 s{sT0}, s{sW}, 2'); em.op(f's_lshl_b32 s{sT0}, s{sT0}, 1'); em.op(f's_or_b32 s{sT0}, s{sT0}, s{sTYPE}')
        for v in (0, 2, 3):
            em.op(f's_cmp_eq_u32 s{sT0}, {v}')
            em.op(f's_cbranch_scc1 L_qp{v >> 1}{v & 1}')
    else:
        em.op(f's_cmp_lt_u32 s{sW}, 4')
        em.op('s_cbranch_scc0 L_qp10')

def tr_addr(em, dst, t, base, fmode):
    t0, t1, t2, t3 = TMP[:4]
    L = f'v{vLANE}'
    em.op(f's_mul_i32 s{sT0}, s{sDG}, 3'); em.op(f's_add_u32 s{sT0}, s{sT0}, {t}')
    em.op(f's_lshr_b32 s{sT1}, s{sT0}, 2'); em.op(f's_lshl_b32 s{sT1}, s{sT1}, 10')
    em.op(f's_add_u32 s{sT1}, s{sT1}, {base}')
    em.op(f's_and_b32 s{sT0}, s{sT0}, 3')
    em.op(f'v_lshrrev_b32 v{t0}, 4, {L}')
    em.op(f'v_bfe_u32 v{t1}, {L}, 2, 2')
    em.op(f'v_and_b32 v{t2}, 1, v{t0}')
    em.op(f'v_lshlrev_b32 v{t2}, 1, v{t2}')
    em.op(f'v_lshrrev_b32 v{t3}, 1, v{t1}')
    em.op(f'v_add_u32 v{t3}, v{t3}, v{t2}')
    em.op(f'v_xor_b32 v{t3}, s{sT0}, v{t3}')
    em.op(f'v_lshlrev_b32 v{t3}, 5, v{t3}')
    em.op(f'v_lshlrev_b32 v{dst}, 7, v{t1}')
    em.op(f'v_add_u32 v{dst}, v{dst}, v{t3}')
    if fmode == 'w':
        em.op(f'v_mul_u32_u24 v{t3}, 3072, v{t0}')
    else:
        em.op(f'v_lshlrev_b32 v{t2}, 8, v{t2}')
        em.op(f'v_add_u32 v{dst}, v{dst}, v{t2}')
        em.op(f'v_lshrrev_b32 v{t3}, 1, v{t0}')
        em.op(f'v_mul_u32_u24 v{t3}, 3072, v{t3}')
    em.op(f'v_add_u32 v{dst}, v{dst}, v{t3}')
    em.op(f'v_and_b32 v{t3}, 3, {L}')
    em.op(f'v_lshlrev_b32 v{t3}, 3, v{t3}')
    em.op(f'v_add_u32 v{dst}, v{dst}, v{t3}')
    em.op(f'v_add_u32 v{dst}, s{sT1}, v{dst}')

class Cap:
    def __init__(self): self.ops = []
    def op(self, t, tag=None): self.ops.append(t)

def k1_qproj(em, qh, typ):
    nq = 5 if qh == 0 else 4
    q0 = 0 if qh == 0 else 5
    L = f'v{vLANE}'
    t0, t1, t2, t3, t4, t5 = TMP[:6]
    rf = cfg.rfrac / 100
    if cfg.prio and qh == 1: em.op('s_setprio 1')
    for f in stage_dma_ops(em, 0, qh): f()
    em.barrier()
    for f in stage_dma_ops(em, 1, qh): f()
    em.op(f'v_mov_b32 v{TMP[11]}, v{vT}')
    em.st.stamp('si')
    em.op(f'v_lshlrev_b32 v{t3}, 2, v0')
    em.op(f'v_add_u32 v{t3}, {MAXB}, v{t3}')
    em.op(f'v_mov_b32 v{t4}, 0xff800000')
    em.op(f'ds_write_b32 v{t3}, v{t4}')
    em.op(f'v_and_b32 v{vMS}, 15, {L}')
    em.op(f'v_lshlrev_b32 v{vMS}, 2, v{vMS}')
    em.op(f'v_add_u32 v{vMS}, {MAXB}, v{vMS}')
    em.op(f'v_bfe_u32 v{t0}, {L}, 3, 1'); em.op(f'v_lshlrev_b32 v{t0}, 10, v{t0}')
    em.op(f'v_and_b32 v{t1}, 7, {L}'); em.op(f'v_lshlrev_b32 v{t1}, 7, v{t1}')
    em.op(f'v_add_u32 v{t0}, v{t0}, v{t1}')
    em.op(f'v_bfe_u32 v{t1}, {L}, 1, 3'); em.op(f'v_lshrrev_b32 v{t2}, 4, {L}')
    em.op(f'v_xor_b32 v{t1}, v{t1}, v{t2}'); em.op(f'v_lshlrev_b32 v{vT}, 4, v{t1}')
    em.op(f'v_add_u32 v{vRA[0]}, v{t0}, v{vT}')
    em.op(f'v_add_u32 v{vRA[0]}, {24576 + q0 * 2048}, v{vRA[0]}')
    em.op(f'v_xor_b32 v{vRA[1]}, 64, v{vRA[0]}')
    for t in range(3): tr_addr(em, vRB[t], t, 0, 'w')
    for t in range(3):
        em.op(f's_mul_i32 s{sT0}, s{sDG}, 3'); em.op(f's_add_u32 s{sT0}, s{sT0}, {t}'); em.op(f's_lshl_b32 s{sT0}, s{sT0}, 1')
        em.op(f'v_lshrrev_b32 v{t0}, 5, {L}')
        em.op(f'v_add_u32 v{t0}, s{sT0}, v{t0}')
        em.op(f'v_lshrrev_b32 v{t1}, 3, v{t0}'); em.op(f'v_lshlrev_b32 v{t1}, 7, v{t1}')
        em.op(f'v_and_b32 v{t0}, 7, v{t0}')
        em.op(f'v_bfe_u32 v{t2}, {L}, 1, 3')
        em.op(f'v_xor_b32 v{t0}, v{t0}, v{t2}'); em.op(f'v_lshlrev_b32 v{t0}, 4, v{t0}')
        em.op(f'v_add_u32 v{t0}, v{t0}, v{t1}')
        em.op(f'v_and_b32 v{t1}, 15, {L}'); em.op(f'v_mul_u32_u24 v{t1}, 384, v{t1}')
        em.op(f'v_add_u32 v{t0}, v{t0}, v{t1}')
        em.op(f'v_bfe_u32 v{t1}, {L}, 4, 1'); em.op(f'v_lshlrev_b32 v{t1}, 3, v{t1}')
        em.op(f'v_add_u32 v{vRC[t]}, v{t0}, v{t1}')
    em.op(f'v_lshlrev_b32 v{vPA}, 4, {L}')
    em.op(f's_lshl_b32 s{sT0}, s{sW}, 2'); em.op(f's_lshr_b32 s{sT1}, 0x10543210, s{sT0}'); em.op(f's_and_b32 s{sT1}, s{sT1}, 15'); em.op(f's_mul_i32 s{sT1}, s{sT1}, 9216')
    em.op(f'v_add_u32 v{vPW}, s{sT1}, v{vPA}')
    em.op(f'v_add_u32 v{vPA}, {q0 * 1024}, v{vPA}')
    AF = [176, 188]; BF = [200, 220]
    def q_reads(step, st):
        ops = []
        for t in range(3):
            ops.append(f'ds_read_b64_tr_b16 {vr(AF[st] + 4*t, 2)}, v{vRB[t]} offset:{step * 12288}')
            ops.append(f'ds_read_b64_tr_b16 {vr(AF[st] + 4*t + 2, 2)}, v{vRB[t]} offset:{step * 12288 + 512}')
        xs = [f'ds_read_b128 {vr(BF[st] + 4*j)}, v{vRA[step]} offset:{j * 2048}' for j in range(nq)]
        return ops[0:2] + xs[0:1] + ops[2:6] + xs[1:]
    def mf(st, first):
        return [mfma(ACC + 4*(j*3+t), AF[st] + 4*t, BF[st] + 4*j, None if first else ACC + 4*(j*3+t)) for j in range(nq) for t in range(3)]
    em.wait_vm_tag('S0', lgkm0=True); em.barrier()
    em.st.stamp('S0')
    for o in q_reads(0, 0): em.op(o)
    npre = cfg.n0 if typ == 1 else 0
    kq, kq0 = (cfg.kqb, cfg.kqb0) if npre else (cfg.kq, cfg.kq0)
    em.kdone = min(24, 2 * npre + kq)
    kl = (k_load_ops(em, 0) + k_load_ops(em, 1))[2 * npre: em.kdone]
    nst = 10 - kq0
    def klat(s):
        if s < kq0: return []
        k = s - kq0
        return kl[len(kl) * k // nst: len(kl) * (k + 1) // nst]
    fixat = {}
    for p in range(12):
        last = 2 * p + 2 - 2 * npre
        st = 1 + p * 2 // 3 if last <= 0 else next((s + 3 for s in range(10) if s >= kq0 and len(kl) * (s - kq0 + 1) // nst >= last), 99)
        fixat.setdefault(st, []).append(p)
    em.nfixed = sum(len(v) for k, v in fixat.items() if k <= 9)
    F0 = k_fix_ops(0) + k_fix_ops(1)
    cap = Cap()
    for t in range(3): tr_addr(cap, TMP[6 + t], t, VBASE, 'v')
    vaddr_ops = cap.ops
    inloop_pf = not (typ == 1 and cfg.n0)
    carry = stage_dma_ops(em, 2, qh) + (sum([pf_ops() for i in range(cfg.pfa - 3)], []) if inloop_pf else [])
    if cfg.code_pre: carry.append(f'global_load_dwordx4 {vr(244)}, v{TMP[11]}, s[58:59]')
    for s in range(10):
        extra = []
        for p in fixat.get(s, []): extra += F0[12 * p: 12 * p + 12]
        interleave(em, mf(0, s == 0), ([] if cfg.x_qnord and 3 < s <= 6 else q_reads(1, 1), 0, rf), (extra, 0.3, 1), (carry, 0.05, cfg.dhi / 100))
        if s < 9: em.wait_vm_tag(f'S{s+1}', lgkm0=True)
        else: em.wait_lgkm0()
        em.barrier()
        if s in cfg.qst: em.st.stamp(f'B{s}')
        if cfg.qloop and s == 6:
            em.op('s_sub_u32 s87, s87, 1'); em.op('s_cmp_lg_u32 s87, 0'); em.op(f's_cbranch_scc1 L_ql{qh}{typ}')
            em.st.stamp('LBend')
        if cfg.qloop and s == 3:
            em.st.stamp('LB0')
            em.op('s_mov_b32 s87, 16'); em.label(f'L_ql{qh}{typ}')
        rd = []; dm = []; extra = []
        if s < 9:
            d = STG if (s + 1) % 3 else -2 * STG
            rd += [f'v_add_u32 v{r}, {d & 0xffffffff}, v{r}' for r in vRA + vRB]
            if not (cfg.x_qnord and 3 <= s < 6): rd += q_reads(0, 0)
        carry = []
        if s + 3 <= 9:
            dm = stage_dma_ops(em, s + 3, qh); dm, carry = dm[:cfg.dsplit], dm[cfg.dsplit:]
            if cfg.x_qnodma and 3 <= s < 6: dm = []; carry = []
        if s == 7: extra = vaddr_ops
        first = (pf_ops() if inloop_pf and s + cfg.pfa <= 9 and not (cfg.qloop and s >= 3) else []) + klat(s)
        interleave(em, mf(1, False), (dm, cfg.dlo / 100, cfg.dhi / 100), (rd, 0, rf + 0.1), (extra, 0, 1), (first, 0, 0.04 if dm else 0.9))
    for j in range(nq):
        for t in range(3):
            a = ACC + 4*(j*3+t)
            em.op(f'v_cvt_pk_bf16_f32 v{a}, v{a}, v{a+1}')
            em.op(f'v_cvt_pk_bf16_f32 v{a+1}, v{a+2}, v{a+3}')
            em.op(f'ds_write_b64 v{vRC[t]}, {vr(a,2)} offset:{(q0 + j) * 6144}')
    em.op(f'v_and_b32 v{t1}, 15, {L}'); em.op(f'v_mul_u32_u24 v{t1}, 384, v{t1}')
    em.op(f'v_add_u32 v{vRA[0]}, v{t1}, v{vT}')
    em.op(f'v_xor_b32 v{t0}, 64, v{vT}')
    em.op(f'v_add_u32 v{vRA[1]}, v{t1}, v{t0}')
    for t in range(3): em.op(f'v_mov_b32 v{vRB[t]}, v{TMP[6 + t]}')
    em.wait_lgkm0(); em.barrier()
    for t in range(3): em.op(f'v_add_u32 v{vRC[t]}, 49152, v{vRB[t]}')
    em.op(f's_lshl_b32 s{sT0}, s{sW}, 2'); em.op(f's_lshr_b32 s{sT1}, 0x32105432, s{sT0}'); em.op(f's_and_b32 s{sT1}, s{sT1}, 15'); em.op(f's_mul_i32 s{sT1}, s{sT1}, 9216')
    em.op(f'v_lshlrev_b32 v{vPW2}, 4, {L}')
    em.op(f'v_add_u32 v{vPW2}, s{sT1}, v{vPW2}')
    em.st.stamp('BQ')

def maxops(half):
    ops = []
    for qt in range(9):
        a, b = sreg(half*2, qt), sreg(half*2+1, qt); m = MC + qt
        if half == 0:
            ops += [f'v_max3_f32 v{m}, v{a}, v{a+1}, v{a+2}', f'v_max3_f32 v{m}, v{m}, v{a+3}, v{b}',
                    f'v_max3_f32 v{m}, v{m}, v{b+1}, v{b+2}', f'v_max_f32 v{m}, v{m}, v{b+3}']
        else:
            ops += [f'v_max3_f32 v{m}, v{m}, v{a}, v{a+1}', f'v_max3_f32 v{m}, v{m}, v{a+2}, v{a+3}',
                    f'v_max3_f32 v{m}, v{m}, v{b}, v{b+1}', f'v_max3_f32 v{m}, v{m}, v{b+2}, v{b+3}']
    return ops

def v_dma_all(em, s, qh=1):
    nt = ' nt' if cfg.nt_kv else ''
    ops = []
    for blk in range(2):
        for c in range(3):
            def f(c=c, blk=blk):
                em.op(f's_add_u32 m0, s{sW3072}, {VBASE + (s % NV) * 24576 + c * 896 + (blk - qh) * 12288}')
                em.op(f's_mov_b32 s{sOFF}, {(128 * (s & 3) + 32 * (s >> 2)) * 384 + blk * 24576}')
                em.op(f'buffer_load_dwordx4 v{TMP[4] if qh else vVO}, {sr(SV,4)}, s{sOFF} offen offset:{c*128}{nt} lds', tag=f'V{s}')
            ops.append(f)
    return ops

def k1_qk(em, qh):
    def qrd(n):
        qt, ks = divmod(n, 6)
        return f'ds_read_b128 {vr(QF + 4*(n % 4))}, v{vRA[ks & 1]} offset:{qt * 6144 + (ks >> 1) * 128}'
    rest = (k_load_ops(em, 0) + k_load_ops(em, 1))[em.kdone:]
    FX = k_fix_ops(0) + k_fix_ops(1)
    fx0 = FX[12 * em.nfixed: 72]; fx1 = FX[max(72, 12 * em.nfixed):]
    early = qh == 1 or em.kdone == 24
    vl = []
    if cfg.vrole:
        if qh == 1:
            em.op(f'v_subrev_u32 v{TMP[4]}, 24576, v{vVO}')
            for f in rest: f()
            rest = []
            vl = sum([v_dma_all(em, s) for s in range(cfg.nvy)], [])
            for f in vl[:cfg.vfirst]: f()
            vl = vl[cfg.vfirst:]
    else:
        vl = sum([v_dma_ops(em, s) for s in range(NV)], [])
    for half in range(2):
        for n in range(3): em.op(qrd(n))
        if half == 0:
            for o in fx0: em.op(o)
        elif not early:
            for o in fx1: em.op(o)
        em.st.stamp(f'K{half}')
        main = []
        for n in range(54):
            qt, ks = divmod(n, 6)
            if n + 3 < 54: main.append(qrd(n + 3))
            for k in range(2):
                kt = half * 2 + k
                main.append(mfma(sreg(kt, qt), kop(kt, ks), QF + 4*(n % 4), None if ks == 0 else sreg(kt, qt)))
        m1 = maxops(1)
        if half == 0:
            if cfg.vrole:
                streams = [(rest, 0, 0.3)] if qh == 0 else [(vl[:cfg.vh0], 0, 1)]
                if early: streams.append((fx1, 0.5, 1))
            else: streams = [(rest, 0, 0.9)]
        else:
            streams = [(maxops(0), 0.02, 0.5)]
            for qt in range(8): streams.append((m1[qt*4:qt*4+4], max(0.5 + 0.05*qt, (qt + 1.5) / 9), max(0.55 + 0.05*qt, (qt + 1.9) / 9)))
            streams.append((vl[cfg.vh0:] if cfg.vrole else vl, 0, 0.7))
        interleave(em, main, *streams)
    em.st.stamp('QKend')
    for o in maxops(1)[32:]: em.op(o)
    for qt in range(9): em.op(f'ds_max_f32 v{vMS}, v{MC+qt} offset:{qt*64}')
    em.op(f'v_lshlrev_b32 v{vVW}, 4, v{vLANE}')
    em.op(f'v_add_u32 v{vVW}, s{sW3072}, v{vVW}')
    em.op(f'v_add_u32 v{vVW}, {VBASE}, v{vVW}')
    em.op(f'v_add_u32 v{vVW2}, 49152, v{vVW}')
    if qh == 0 and cfg.vrole:
        for s in range(cfg.nvy, NV):
            for f in v_dma_all(em, s, 0): f()
    if qh == 0 and cfg.vold and cfg.vreg:
        for f in v_reg_ops(em): f()
    em.wait_lgkm0(); em.barrier()
    em.st.stamp('BM')

def expops(r, qt, pk):
    a, b = sreg(2*r, qt), sreg(2*r+1, qt); m = MC + qt
    tA, tB = TMP[0], TMP[2]
    sp = SUMP + 2*qt
    rs = [a, a+1, a+2, a+3, b, b+1, b+2, b+3]
    if pk:
        mb = m & ~1; s = m & 1
        ops = [f'v_pk_fma_f32 {vr(x,2)}, {vr(x,2)}, s[{sC}:{sC+1}], {vr(mb,2)} op_sel:[0,0,{s}] op_sel_hi:[1,0,{s}] neg_lo:[0,0,1] neg_hi:[0,0,1]' for x in rs[::2]]
    else:
        ops = [f'v_fma_f32 v{x}, v{x}, s{sC}, -v{m}' for x in rs]
    ops += [f'v_exp_f32 v{x}, v{x}' for x in rs]
    if pk:
        ops += [f'v_pk_add_f32 {vr(tA,2)}, {vr(a,2)}, {vr(a+2,2)}', f'v_pk_add_f32 {vr(tB,2)}, {vr(b,2)}, {vr(b+2,2)}']
        if r == 0: tailo = [f'v_pk_add_f32 {vr(sp,2)}, {vr(tA,2)}, {vr(tB,2)}']
        else: tailo = [f'v_pk_add_f32 {vr(tA,2)}, {vr(tA,2)}, {vr(tB,2)}', f'v_pk_add_f32 {vr(sp,2)}, {vr(sp,2)}, {vr(tA,2)}']
    else:
        assert r == 1
        ops += [f'v_add_f32 v{sp + (i & 1)}, v{sp + (i & 1)}, v{x}' for i, x in enumerate(rs)]
        tailo = []
    ops += [f'v_cvt_pk_bf16_f32 v{a}, v{a}, v{a+1}', f'v_cvt_pk_bf16_f32 v{a+1}, v{a+2}, v{a+3}',
            f'v_cvt_pk_bf16_f32 v{a+2}, v{b}, v{b+1}', f'v_cvt_pk_bf16_f32 v{a+3}, v{b+2}, v{b+3}']
    return ops + tailo

def pwrite(r, qt, qh):
    return f'ds_write_b128 v{vPW if r == 0 else vPW2}, {vr(sreg(2*r, qt))} offset:{qt*1024}'

def sum_ops():
    L = f'v{vLANE}'
    S = SUM; ops = []
    ops += [f'v_add_f32 v{SUM+qt}, v{SUMP+2*qt}, v{SUMP+2*qt+1}' for qt in range(9)]
    ops += [f'v_mov_b32 v{MC}, 0', f'v_mov_b32 v{MC+1}, 0']
    ta = TMP[2]; tb = TMP[3]
    ops += [f'v_bfe_u32 v{ta}, {L}, 4, 1', f'v_lshlrev_b32 v{ta}, 10, v{ta}', f'v_bfe_u32 v{tb}, {L}, 5, 1', f'v_lshlrev_b32 v{tb}, 9, v{tb}',
            f'v_add_u32 v{ta}, v{ta}, v{tb}', f'v_and_b32 v{tb}, 15, {L}', f'v_lshlrev_b32 v{tb}, 5, v{tb}', f'v_add_u32 v{ta}, v{ta}, v{tb}',
            f's_lshl_b32 s{sT0}, s{sW}, 2', f's_add_u32 s{sT0}, s{sT0}, {SUMB}', f'v_add_u32 v{ta}, s{sT0}, v{ta}']
    for a in (0, 2, 4, 6): ops.append(f'v_permlane32_swap_b32 v{S+a}, v{S+a+1}')
    ops.append(f'v_permlane32_swap_b32 v{S+8}, v{MC}')
    for a in (0, 2, 4, 6): ops.append(f'v_add_f32 v{S+a}, v{S+a}, v{S+a+1}')
    ops.append(f'v_add_f32 v{S+8}, v{S+8}, v{MC}')
    for a in (0, 4): ops.append(f'v_permlane16_swap_b32 v{S+a}, v{S+a+2}')
    ops.append(f'v_permlane16_swap_b32 v{S+8}, v{MC+1}')
    for a in (0, 4): ops.append(f'v_add_f32 v{S+a}, v{S+a}, v{S+a+2}')
    ops.append(f'v_add_f32 v{S+8}, v{S+8}, v{MC+1}')
    for a in (0, 4, 8): ops.append(f'ds_write_b32 v{ta}, v{S+a} offset:{a * 512}')
    return ops

def k1_sm0(em, qh):
    for qt in range(9): em.op(f'ds_read_b32 v{MC+qt}, v{vMS} offset:{qt*64}')
    for qt in range(9): em.op(f'v_mul_f32 v{MC+qt}, s{sC}, v{MC+qt}')
    main = []
    for qt in range(9):
        main += expops(0, qt, True)
        if qh == 0: main.append(pwrite(0, qt, qh))
    for qt in range(9): main += expops(1, qt, True)
    main += sum_ops()
    interleave(em, main, (v_reg_ops(em) if cfg.vreg and (qh == 1 or not cfg.vold) else [], 0, cfg.vrf / 100))
    em.st.stamp('exp0')
    em.wait_vm_tag('V0', lgkm0=True); em.barrier()
    em.st.stamp('PV0')

def k1_pv(em, qh):
    nq = 5 if qh == 0 else 4
    q0 = 0 if qh == 0 else 5
    L = f'v{vLANE}'
    t0 = TMP[4]
    rf = cfg.rfrac / 100
    PBF = PBF0 if qh == 0 else PBF1
    INV = INV0 + 2 * qh
    PAF = PAF0 if qh == 0 else PAF1
    def pv_reads(s, step, st):
        ops = []
        slot = s % NV
        base = vRB if slot < 2 else vRC
        off = (slot % 2) * 24576 + step * 12288
        for t in range(3):
            ops.append(f'ds_read_b64_tr_b16 {vr(PAF[st][t], 2)}, v{base[t]} offset:{off}')
            ops.append(f'ds_read_b64_tr_b16 {vr(PAF[st][t] + 2, 2)}, v{base[t]} offset:{off + 6144}')
        pa, po = vPA, ((2 * s + step) % 6) * 9216
        xs = [f'ds_read_b128 {vr(PBF[st][j])}, v{pa} offset:{po + j * 1024}' for j in range(nq)]
        return ops[0:2] + xs[0:1] + ops[2:6] + xs[1:]
    OACC = OACC0 if qh == 0 else OACC1
    def mf(st, first):
        return [mfma(OACC[j*3+t], PAF[st][t], PBF[st][j], None if first else OACC[j*3+t]) for j in range(nq) for t in range(3)]
    def inv_ops():
        ta = TMP[2]; ops = []
        ops += [f'v_and_b32 v{ta}, 15, {L}', f'v_lshlrev_b32 v{ta}, 5, v{ta}', f'v_add_u32 v{ta}, {SUMB + q0 * 512}, v{ta}']
        for j in range(nq):
            ops += [f'ds_read_b128 {vr(64 + 8*j)}, v{ta} offset:{j * 512}', f'ds_read_b128 {vr(68 + 8*j)}, v{ta} offset:{j * 512 + 16}']
        for j in range(nq):
            r = 64 + 8*j
            ops += [f'v_add_f32 v{r}, v{r}, v{r+1}', f'v_add_f32 v{r+2}, v{r+2}, v{r+3}', f'v_add_f32 v{r+4}, v{r+4}, v{r+5}', f'v_add_f32 v{r+6}, v{r+6}, v{r+7}',
                    f'v_add_f32 v{r}, v{r}, v{r+2}', f'v_add_f32 v{r+4}, v{r+4}, v{r+6}', f'v_add_f32 v{r}, v{r}, v{r+4}', f'v_rcp_f32 v{INV+2*j}, v{r}']
        cap = Cap()
        for t in range(3):
            cap.op(f's_mul_i32 s{sT0}, s{sDG}, 3'); cap.op(f's_add_u32 s{sT0}, s{sT0}, {t}')
            cap.op(f's_lshr_b32 s{sT1}, s{sT0}, 2'); cap.op(f's_mul_i32 s{sT1}, s{sT1}, 40960')
            cap.op(f's_bfe_u32 s{sT2}, s{sT0}, 0x10001'); cap.op(f's_mul_i32 s{sT2}, s{sT2}, 9216'); cap.op(f's_add_u32 s{sT1}, s{sT1}, s{sT2}')
            cap.op(f's_and_b32 s{sT0}, s{sT0}, 1'); cap.op(f's_lshl_b32 s{sT0}, s{sT0}, 3')
            cap.op(f's_add_u32 s{sT0}, s{sT0}, s{sT1}'); cap.op(f's_add_u32 s{sT0}, s{sT0}, 20480')
            cap.op(f'v_add_u32 v{vRB[t]}, s{sT0}, v{vPA}')
        return ops + cap.ops
    def ex(h):
        o = []
        if qh == 0 and h in (5, 6): o += [pwrite(1, qt, qh) for qt in (range(5) if h == 5 else range(5, 9))]
        if qh == 1 and h in (1, 2): o += [pwrite(0, qt, qh) for qt in (range(5) if h == 1 else range(5, 9))]
        if qh == 1 and h in (9, 10): o += [pwrite(1, qt, qh) for qt in (range(5) if h == 9 else range(5, 9))]
        return o
    TS = tail_setup_ops(qh)
    def wopre_ops(i):
        ta = TMP[2 + (i & 1)]
        ops = [f's_mul_i32 s{sT0}, s{sX}, 983040', f's_mul_i32 s{sT1}, s{sLOC}, 30720', f's_add_u32 s{sT0}, s{sT0}, s{sT1}', f's_add_u32 s{sT0}, s{sT0}, {i * 8192}',
               f'v_lshlrev_b32 v{ta}, 4, v0', f'v_add_u32 v{ta}, s{sT0}, v{ta}', f'v_min_u32 v{ta}, {7864320 - 16}, v{ta}',
               f'global_load_dwordx4 {vr(212)}, v{ta}, s[14:15]' + (' nt' if cfg.wont else '')]
        return ops
    for o in pv_reads(0, 0, 0): em.op(o)
    for s in range(8):
        e = ex(2*s)
        if 2*s == 12: e = TS[:len(TS)//3]
        if 2*s == 14: e = TS[2*len(TS)//3:]
        w = wopre_ops(s - 3) if cfg.wopre and 2*s in (6, 8, 10) else []
        interleave(em, mf(0, s == 0), (pv_reads(s, 1, 1), 0, rf), (e, 0, cfg.efrac / 100), (w, 0.5, 0.51))
        if s < (3 if cfg.vreg else 7): em.wait_vm_tag(f'V{s+1}', lgkm0=True)
        else: em.wait_lgkm0()
        em.barrier()
        em.st.stamp(f'PB{s}')
        rd = pv_reads(s + 1, 0, 0) if s < 7 else []
        dm = (v_put_ops(s + NV) if cfg.vreg else v_dma_ops(em, s + NV)) if s + NV <= 7 else []
        e = ex(2*s+1)
        if 2*s+1 == 11: e = inv_ops()
        if 2*s+1 == 13: e = TS[len(TS)//3: 2*len(TS)//3]
        if 2*s+1 == 15:
            if qh == 0: dm = tail_dma(em, 0) + tail_dma(em, 1)
        w = wopre_ops(3) if cfg.wopre and 2*s+1 == 9 else []
        interleave(em, mf(1, False), (dm, 0.3 if s < 7 and cfg.vreg else 0, (0.9 if cfg.vreg else 0.4) if s < 7 else 1), (rd, 0, rf + 0.1), (e, 0, 1), (w, 0.5, 0.51))
    late = tail_dma(em, 2) if qh == 0 else []
    main = []
    for j in range(nq):
        for t in range(3):
            a = OACC[j*3+t]
            m = INV + 2*j
            main += [f'v_pk_mul_f32 {vr(a,2)}, {vr(a,2)}, {vr(m,2)} op_sel_hi:[1,0]', f'v_pk_mul_f32 {vr(a+2,2)}, {vr(a+2,2)}, {vr(m,2)} op_sel_hi:[1,0]',
                     f'v_cvt_pk_bf16_f32 v{a}, v{a}, v{a+1}', f'v_cvt_pk_bf16_f32 v{a+1}, v{a+2}, v{a+3}',
                     f'ds_write_b64 v{vRB[t]}, {vr(a,2)} offset:{j * 1024}']
    interleave(em, main, (late, 0, 1))
    em.wait_vm_tag('T0', lgkm0=True); em.barrier()
    em.st.stamp('BO')
    if qh == 0:
        em.op(f's_cmp_lt_u32 s{sW}, 2')
        em.op('s_cbranch_scc0 L_tail1')
        st = em.save(); sn = (em.st.n, list(em.st.names))
        tail(em, 0)
        em.label('L_tail1')
        em.restore(st); em.st.n, em.st.names = sn[0], list(sn[1])
        tail(em, 1)
    else:
        tail(em, 2)

STG2 = 40960
vOFFS = [64, 65, 66, 67, 68]; vA2 = [69, 70, 71, 72, 73]; vB2 = 74
SD, SP, SPR, SOUT = SX, SWQ, SK, SV
def tail_setup_ops(qh):
    c = Cap(); L = f'v{vLANE}'
    t0, t1, t2, t3 = 96, 97, 98, 99
    if qh == 0:
        c.op(f's_mul_i32 s{sT0}, s{sX}, 983040'); c.op(f's_mul_i32 s{sT1}, s{sJ}, 320'); c.op(f's_add_u32 s{sT0}, s{sT0}, s{sT1}')
        srd(c, SD, 14, 15, f's{sT0}', 7864320)
        c.op(f's_sub_u32 s{SD+2}, s{SD+2}, s{sT0}')
        c.op(f's_mov_b32 s{sSTR}, 81920')
        hs = 245760
        c.op(f's_lshl_b32 s{sT2}, s{sW}, 4')
        c.op(f's_mov_b32 s{sT1}, 52429')
        for j in range(5):
            c.op(f'v_add_u32 v{t0}, {j * 64}, {L}')
            c.op(f'v_mul_lo_u32 v{t1}, v{t0}, s{sT1}')
            c.op(f'v_lshrrev_b32 v{t1}, 20, v{t1}')
            c.op(f'v_mul_u32_u24 v{t2}, 20, v{t1}')
            c.op(f'v_sub_u32 v{t2}, v{t0}, v{t2}')
            c.op(f'v_bfe_u32 v{t3}, v{t1}, 2, 1')
            c.op(f'v_lshlrev_b32 v{t3}, 1, v{t3}')
            c.op(f'v_xor_b32 v{t2}, v{t2}, v{t3}')
            c.op(f'v_lshlrev_b32 v{t2}, 4, v{t2}')
            c.op(f'v_add_u32 v{t1}, s{sT2}, v{t1}')
            c.op(f'v_mul_u32_u24 v{t1}, 1280, v{t1}')
            c.op(f'v_add_u32 v{vOFFS[j]}, v{t1}, v{t2}')
    else:
        c.op(f's_lshl_b32 s{sT0}, s{sB}, 5'); c.op(f's_lshl_b32 s{sT1}, s{sX}, 2'); c.op(f's_add_u32 s{sT0}, s{sT0}, s{sT1}')
        c.op(f's_mul_i32 s{sT0}, s{sT0}, {O_HEAD}')
        srd(c, SD, 12, 13, f's{sT0}', 4 * O_HEAD)
        c.op(f's_mov_b32 s{sSTR}, 18432')
        hs = O_HEAD
        c.op(f's_mul_i32 s{sT2}, s{sDG}, 5120')
        c.op(f'v_lshlrev_b32 v{t0}, 4, {L}')
        c.op(f'v_add_u32 v{t0}, s{sT2}, v{t0}')
        for j in range(5): c.op(f'v_add_u32 v{vOFFS[j]}, {j * 1024}, v{t0}')
    c.op(f's_mul_i32 s{sM0T}, s{sW}, 5120')
    for i in range(4):
        c.op(f's_add_u32 s{sT0}, s{sJ}, {i}'); c.op(f's_and_b32 s{sT0}, s{sT0}, 3'); c.op(f's_mul_i32 s{sHB+i}, s{sT0}, {hs}')
    c.op(f's_and_b32 s{sNH}, s{sW}, 1')
    c.op(f'v_lshrrev_b32 v{t0}, 2, {L}')
    c.op(f'v_mul_u32_u24 v{t0}, 320, v{t0}')
    c.op(f'v_and_b32 v{t1}, 3, {L}'); c.op(f'v_lshlrev_b32 v{t1}, 3, v{t1}')
    c.op(f'v_add_u32 v{t0}, v{t0}, v{t1}')
    c.op(f'v_bfe_u32 v{t1}, {L}, 4, 1')
    c.op(f's_mul_i32 s{sT0}, s{sNH}, 5')
    for t in range(5):
        c.op(f's_add_u32 s{sT1}, s{sT0}, {t}')
        c.op(f'v_xor_b32 v{t2}, s{sT1}, v{t1}')
        c.op(f'v_lshlrev_b32 v{t2}, 5, v{t2}')
        c.op(f'v_add_u32 v{vA2[t]}, v{t0}, v{t2}')
    c.op(f's_lshr_b32 s{sT0}, s{sW}, 1')
    c.op(f's_mov_b32 s{sT1}, 0x7350')
    c.op(f's_lshl_b32 s{sT0}, s{sT0}, 2')
    c.op(f's_lshr_b32 s{sQ0}, s{sT1}, s{sT0}')
    c.op(f's_and_b32 s{sQ0}, s{sQ0}, 15')
    c.op(f's_lshl_b32 s{sT0}, s{sQ0}, 10')
    c.op(f's_add_u32 s{sT0}, s{sT0}, 20480')
    c.op(f'v_lshlrev_b32 v{vB2}, 4, {L}')
    c.op(f'v_add_u32 v{vB2}, s{sT0}, v{vB2}')
    c.op(f's_lshl_b32 s{sT0}, s{sB}, 3'); c.op(f's_add_u32 s{sT0}, s{sT0}, s{sX}'); c.op(f's_lshl_b32 s{sT0}, s{sT0}, 7'); c.op(f's_add_u32 s{sT0}, s{sT0}, {FLAG_OFF + 4096}')
    c.op(f's_add_u32 s{sF1}, s12, s{sT0}'); c.op(f's_addc_u32 s{sF1+1}, s13, 0')
    c.op(f's_lshl_b32 s{sT0}, s{sLOC}, 7'); c.op(f's_add_u32 s{sT0}, s{sT0}, {FLAG_OFF + 16384}')
    c.op(f's_add_u32 s{sF2}, s12, s{sT0}'); c.op(f's_addc_u32 s{sF2+1}, s13, 0')
    c.op(f's_mul_i32 s{sT0}, s{sLOC}, {8 * PART2}'); c.op(f's_add_u32 s{sT0}, s{sT0}, {WS_PART}')
    srd(c, SPR, 12, 13, f's{sT0}', 8 * PART2)
    c.op(f's_mul_i32 s{sT1}, s{sX}, {PART2}'); c.op(f's_add_u32 s{sT0}, s{sT0}, s{sT1}')
    srd(c, SP, 12, 13, f's{sT0}', PART2)
    srd(c, SOUT, 54, 55, None, 1474560)
    return c.ops

def tail_dma(em, s, orole=False):
    ops = []
    sc = ' sc1' if (orole and cfg.sc_ol) else ''
    for j in range(5):
        def f(j=j):
            em.op(f's_add_u32 m0, s{sM0T}, {(s % 3) * STG2 + j * 1024}')
            if j == 0:
                if s % 3 == 0: em.op(f's_mov_b32 s{sOFF}, s{sHB + s // 3}')
                else: em.op(f's_add_u32 s{sOFF}, s{sOFF}, s{sSTR}')
            em.op(f'buffer_load_dwordx4 v{vOFFS[j]}, {sr(SD,4)}, s{sOFF} offen{sc} lds', tag=f'T{s}')
        ops.append(f)
    return ops

def flag_store(em, base, idx_s, lab, wave):
    t0, t1 = 50, 51
    em.op(f's_cmp_eq_u32 s{sW}, {wave}')
    em.op(f's_cbranch_scc0 {lab}')
    em.begin_opt()
    em.op(f's_lshl_b32 s{sT0}, s{idx_s}, 2')
    em.op(f'v_mov_b32 v{t0}, s{sT0}')
    em.op(f'v_mov_b32 v{t1}, s{sTAG}')
    em.op('s_mov_b64 exec, 1')
    em.op(f'global_store_dword v{t0}, v{t1}, s[{base}:{base+1}] sc1')
    em.op('s_mov_b64 exec, -1')
    em.end_opt()
    em.label(lab)

def poll(em, base, mask, lab):
    t0, t1 = 52, 53
    em.op(f'v_and_b32 v{t0}, {mask}, v{vLANE}')
    em.op(f'v_lshlrev_b32 v{t0}, 2, v{t0}')
    em.op(f's_mov_b32 s{sCNT}, 0x20000')
    em.wait_vm0()
    em.label(lab)
    em.op(f'global_load_dword v{t1}, v{t0}, s[{base}:{base+1}] sc1')
    em.op(f's_sub_u32 s{sCNT}, s{sCNT}, 1')
    em.op(f's_cbranch_scc1 {lab}_done')
    em.wait_vm0()
    em.op(f'v_cmp_ne_u32 vcc, s{sTAG}, v{t1}')
    em.op('s_nop 4')
    em.op(f's_cbranch_vccz {lab}_done')
    em.op('s_sleep 1')
    em.op(f's_branch {lab}')
    em.label(f'{lab}_done')
    em.wait_vm0()

def tail(em, tv):
    nq = 3 if tv == 0 else 2
    orole = tv == 2
    L = f'v{vLANE}'
    rf = cfg.rfrac / 100
    sc = ' sc1' if cfg.sc else ''
    ACC2 = 116; AF = [76, 96]; BF = [16, 28]; CO = 176
    t0, t1, t2, t3 = 40, 41, 42, 43
    em.op(f'v_lshlrev_b32 v{t0}, 4, v0')
    em.op(f'v_add_u32 v{t1}, 20480, v{t0}')
    em.op(f'v_add_u32 v{t2}, {STG2 + 20480}, v{t0}')
    npc = 3 if tv == 0 else 2
    k = 0; sts = []
    for c in range(3):
        for i in range(npc):
            va, off = (t1, 0) if c == 0 else (t2, (c - 1) * STG2)
            em.op(f'ds_read_b128 {vr(CO + 4*k)}, v{va} offset:{off + i * 8192}')
            sts.append((CO + 4*k, c * 18432 + i * 8192)); k += 1
    def reads(step, st_):
        ops = []
        for t in range(5):
            ops.append(f'ds_read_b64_tr_b16 {vr(AF[st_] + 4*t, 2)}, v{vA2[t]} offset:{step * 10240}')
            ops.append(f'ds_read_b64_tr_b16 {vr(AF[st_] + 4*t + 2, 2)}, v{vA2[t]} offset:{step * 10240 + 5120}')
        xs = [f'ds_read_b128 {vr(BF[st_] + 4*j)}, v{vB2} offset:{step * 9216 + j * 1024}' for j in range(nq)]
        return ops[0:2] + xs + ops[2:]
    def mf(st_, first):
        return [mfma(ACC2 + 4*(t*nq+j), AF[st_] + 4*t, BF[st_] + 4*j, None if first else ACC2 + 4*(t*nq+j)) for t in range(5) for j in range(nq)]
    for r, off in sts:
        em.op(f's_mov_b32 s{sT0}, {off}')
        em.op(f'buffer_store_dwordx4 {vr(r)}, v{t0}, {sr(SO,4)}, s{sT0} offen' + ['', ' sc1', ' nt', ' sc0'][cfg.sc_o], tag='CO')
    for o in reads(0, 0): em.op(o)
    carry = []
    for s in range(12):
        interleave(em, mf(0, s == 0), (reads(1, 1), 0, rf), (carry, 0.05, 0.95))
        carry = []
        if s < 11:
            if s == 0: em.wait_vm0(); em.wait_lgkm0()
            else: em.wait_vm_tag(f'T{s+1}', lgkm0=True)
            em.barrier()
            em.st.stamp(f'T{s}')
        if s == 0 and orole: flag_store(em, sF1, sJ, 'L_f1', 4)
        fill = []; dm = []
        if s < 11:
            d = STG2 if (s + 1) % 3 else -2 * STG2
            fill += [f'v_add_u32 v{r}, {d & 0xffffffff}, v{r}' for r in vA2 + [vB2]]
            fill += reads(0, 0)
        if s + 3 <= 11:
            if not orole or s >= 2:
                dm = tail_dma(em, s + 3, orole); dm, carry = dm[:3], dm[3:]
            elif s == 1:
                poll(em, sF1, 3, 'L_p1')
                em.st.stamp('poll')
                for f in tail_dma(em, 3, True): f()
                dm = tail_dma(em, 4, True)
        interleave(em, mf(1, False), (dm, 0.05, 0.95), (fill, 0, rf + 0.1))
    em.st.stamp('TP')
    em.op(f'v_and_b32 v{t1}, 15, {L}'); em.op(f'v_mul_u32_u24 v{t1}, 336, v{t1}')
    em.op(f'v_lshrrev_b32 v{t2}, 4, {L}'); em.op(f'v_lshlrev_b32 v{t2}, 3, v{t2}')
    em.op(f's_mul_i32 s{sT0}, s{sQ0}, {16 * 336}'); em.op(f's_mul_i32 s{sT1}, s{sNH}, 160'); em.op(f's_add_u32 s{sT0}, s{sT0}, s{sT1}')
    em.op(f'v_add3_u32 v{t1}, v{t1}, v{t2}, s{sT0}')
    em.op(f's_mov_b32 s{sT2}, 52429')
    pre = []
    for i in range(6):
        r = 176 + i
        pre += [f'v_add_u32 v{r}, {512 * i}, v0', f'v_mul_lo_u32 v{t2}, v{r}, s{sT2}', f'v_lshrrev_b32 v{t2}, 20, v{t2}', f'v_add_lshl_u32 v{r}, v{r}, v{t2}, 4']
    for o in pre: em.op(o)
    for t in range(5):
        for j in range(nq):
            a = ACC2 + 4*(t*nq+j)
            em.op(f'v_cvt_pk_bf16_f32 v{a}, v{a}, v{a+1}')
            em.op(f'v_cvt_pk_bf16_f32 v{a+1}, v{a+2}, v{a+3}')
            em.op(f'ds_write_b64 v{t1}, {vr(a,2)} offset:{j * 16 * 336 + t * 32}')
    em.wait_lgkm0(); em.barrier()
    for i in range(6): em.op(f'ds_read_b128 {vr(76 + 4*i)}, v{176 + i}')
    for i in range(6):
        em.op(f's_mov_b32 s{sT0}, {i * 8192}')
        em.op(f'buffer_store_dwordx4 {vr(76 + 4*i)}, v{t0}, {sr(SP,4)}, s{sT0} offen{sc}')
    em.op(f's_mul_i32 s{sT0}, s{sX}, 5760')
    em.op(f'v_add_u32 v{t1}, s{sT0}, v{t0}')
    em.op(f'v_mul_lo_u32 v{t2}, v0, s{sT2}'); em.op(f'v_lshrrev_b32 v{t2}, 20, v{t2}')
    em.op(f'v_mul_u32_u24 v{t2}, 960, v{t2}')
    em.op(f's_mul_i32 s{sT0}, s{sB}, 144'); em.op(f's_mul_i32 s{sT1}, s{sX}, 18'); em.op(f's_add_u32 s{sT0}, s{sT0}, s{sT1}')
    em.op(f's_mul_i32 s{sT0}, s{sT0}, 1280'); em.op(f's_mul_i32 s{sT1}, s{sJ}, 320'); em.op(f's_add_u32 s{sT0}, s{sT0}, s{sT1}')
    em.op(f'v_add3_u32 v{t2}, v{t2}, v{t0}, s{sT0}')
    em.op(f'v_mov_b32 v{t3}, 0x7ffffff0')
    em.op(f'v_cmp_gt_u32 vcc, 360, v0')
    em.op(f'v_cndmask_b32 v{t2}, v{t3}, v{t2}, vcc')
    em.wait_vm0(); em.barrier()
    em.st.stamp('TW')
    if tv == 2:
        flag_store(em, sF2, sX, 'L_f2', 7)
        em.op(f's_cmp_ge_u32 s{sW}, 6')
        em.op(f's_cbranch_scc1 L_fin2')
    poll(em, sF2, 7, f'L_p2_{tv}')
    em.st.stamp('TF')
    for x in range(8):
        em.op(f's_mov_b32 s{sT0}, {x * PART2}')
        em.op(f'buffer_load_dwordx4 {vr(76 + 4*x)}, v{t1}, {sr(SPR,4)}, s{sT0} offen{sc}')
    if tv == 0:
        em.op(f's_or_b32 s{sT0}, s{sH}, s{sW}')
        em.op(f's_cmp_eq_u32 s{sT0}, 0')
        em.op('s_cbranch_scc0 L_nw')
        em.begin_opt()
        em.op(f's_lshl_b32 s{sT0}, s{sB}, 8'); em.op(f's_add_u32 s{sT0}, s{sT0}, {FLAG_OFF}')
        em.op(f'v_mov_b32 v60, s{sT0}'); em.op(f'v_mov_b32 v61, s{sTAG}')
        em.op('s_mov_b64 exec, 1')
        em.op('global_store_dword v60, v61, s[12:13]')
        em.op('s_mov_b64 exec, -1')
        em.end_opt()
        em.label('L_nw')
    A = 108
    for x in range(8):
        for d in range(4):
            r = 76 + 4*x + d
            if x == 0:
                em.op(f'v_lshlrev_b32 v{A+2*d}, 16, v{r}'); em.op(f'v_and_b32 v{A+2*d+1}, 0xffff0000, v{r}')
            else:
                em.op(f'v_lshlrev_b32 v{A+8}, 16, v{r}'); em.op(f'v_and_b32 v{A+9}, 0xffff0000, v{r}')
                em.op(f'v_pk_add_f32 {vr(A+2*d,2)}, {vr(A+2*d,2)}, {vr(A+8,2)}')
    for d in range(4): em.op(f'v_cvt_pk_bf16_f32 v{A+d}, v{A+2*d}, v{A+2*d+1}')
    em.op(f'buffer_store_dwordx4 {vr(A)}, v{t2}, {sr(SOUT,4)}, 0 offen')
    em.st.stamp('TL')
    if cfg.x_ren:
        em.op('v_mov_b32 v116, s84')
        em.op('global_load_dword v117, v116, s[86:87] sc1')
        em.op('v_readfirstlane_b32 s85, v117')
        em.op('s_bcnt1_i32_b32 s85, s85')
        em.op('s_cmp_gt_u32 s85, 1')
        em.op(f's_cbranch_scc0 L_ren{tv}')
        em.op('s_mov_b32 s85, 600')
        em.label(f'L_rend{tv}')
        em.op('s_sleep 1'); em.op('s_sub_u32 s85, s85, 1'); em.op('s_cmp_lg_u32 s85, 0'); em.op(f's_cbranch_scc1 L_rend{tv}')
        em.label(f'L_ren{tv}')
    if tv == 2: em.label('L_fin2')
    if cfg.diag: em.wait_vm0()
    em.st.flush(12, 0, sW, 244)
    em.op('s_endpgm')

def kernel_header(name):
    return f'.globl {name}\n.p2align 8\n.type {name},@function\n{name}:\n'
def kernel_desc(name, vgpr, sgpr=102):
    return f'''.amdhsa_kernel {name}
  .amdhsa_next_free_vgpr {vgpr}
  .amdhsa_next_free_sgpr {sgpr}
  .amdhsa_accum_offset {(vgpr + 3) // 4 * 4}
  .amdhsa_group_segment_fixed_size 0
  .amdhsa_kernarg_size 64
  .amdhsa_user_sgpr_count 2
  .amdhsa_user_sgpr_kernarg_segment_ptr 1
  .amdhsa_system_sgpr_workgroup_id_x 1
.end_amdhsa_kernel
'''

def gen_k1():
    em = Em()
    k1_prologue(em)
    st0 = em.save()
    em.label('k1_body_start')
    for qh in range(2):
        sts = []
        for typ in ((1, 0) if cfg.n0 else (0,)):
            if qh or typ == 0 and cfg.n0: em.label(f'L_qp{qh}{typ}')
            em.restore(st0)
            k1_qproj(em, qh, typ)
            k1_qk(em, qh)
            sts.append(em.save())
            if typ == 1: em.op(f's_branch L_sm{qh}')
        if len(sts) == 2:
            t = [[e[0] for e in s[2]] for s in sts]
            lo, hi = sorted(range(2), key=lambda i: len(t[i]))
            assert t[hi][len(t[hi]) - len(t[lo]):] == t[lo], t
            em.restore(sts[hi]); em.hist = []
            em.label(f'L_sm{qh}')
        k1_sm0(em, qh)
        k1_pv(em, qh)
    em.label('k1_body_end')
    em.label('L_k1_exit')
    em.op('s_endpgm')
    return em

def main():
    ref = open('cdna_kernels/' + NAME + '.s.ref').read().split('\n')
    head = [l for l in ref[:9]]
    k1 = gen_k1()
    KN = NAME + '_kernel'
    out = '\n'.join(head) + '\n'
    out += f'; @launch grid=(256,1,1) block=(512,1,1) lds={LDS1}\n'
    out += '.amdgcn_target "amdgcn-amd-amdhsa--gfx950"\n.text\n'
    out += kernel_header(KN) + k1.text()
    out += '.section .rodata,"a"\n.p2align 6\n' + kernel_desc(KN, 256)
    open(sys.argv[1], 'w').write(out)
    print('k1 instrs', k1.count, 'nops', k1.nops, file=sys.stderr)
main()
```

```python
import sys, struct, math
from em import Em, interleave, emit

NAME = 'standalone__gqa_block_cached__near_ridge'
def fbits(x): return struct.unpack('<I', struct.pack('<f', x))[0]

class Cfg:
    nt_kv = True
    nt_w = False
    nt_k2 = False
    two_types = True
    pre = True
    code_pre = True
    diag = False
    pk = True
    rfrac = 60
    prio = 0
    x_noexp = 0
    x_nopw = 0
    efrac = 95
    loopb = -1
    st = 0
    dbg = 0
    n0 = 1
    inpv0 = 0
    inpv1 = 0
    pfa = 5
    kq = 12
    kq0 = 7
    wont = 0
    vrf = 60
    x_ren = 0
    vrole = 1
    vfirst = 0
    vold = 0
    vh0 = 12
    nt_k = 1
    nt_v = 1
    eager = 3
    eagerv = 0
    qwi = 1
    g2lo = 0
    g2hi = 30
    valo = 0
    vahi = 60
    pf1 = 10
    v0e = 0
    kqb = 0
    kqb0 = 7
    vb = 0
    vreg = 0
    nvy = 4
    sc_o = 1
    sc_ol = 1
    rt = 0
    qloop = 0
    x_qnodma = 0
    x_qnord = 0
    dlo = 10
    dhi = 95
    dsplit = 3
    x_delay = 0
    wopre = 1
    sc = 1
    x_nobar = 0
    x_nord = 0
    x_nodma = 0
cfg = Cfg()
cfg.pvst = (3,7); cfg.qst = (0,8,)
if 'pvall=1' in sys.argv: sys.argv.remove('pvall=1'); cfg.pvst = (0,1,2,3,4,5,6,7); cfg.qst = (); cfg.fewst = True
else: cfg.fewst = False
for a in sys.argv[2:]:
    k, v = a.split('='); setattr(cfg, k, type(getattr(cfg, k))(int(v)))
STSETS = {0: 'S0 BQ BM PV0 BO T0 T2 TP TW TF', 1: 'ka pi si S0 B0 B8 BQ K0 K1 QKend BM exp0 PV0', 2: 'PV0 PB0 PB1 PB2 PB3 PB4 PB5 PB6 PB7 BO', 3: 'BO T0 T1 poll T2 T3 T10 TP TW TF', 4: 'K0 K1 QKend BM exp0 PV0 PB3 PB7 BO T0', 8: '', 5: 'S0 LB0 LBend BQ', 6: 'S0 B0 B1 B2 B3 B5 B7 B8 B9 BQ', 7: 'BO T0 T1 T2 T3 T4 T6 T8 T10 TP'}
cfg.stlist = ['rt0', 'start'] + STSETS[cfg.st].split()[:10] + ['end', 'rt_end']
cfg.pvst = range(8); cfg.qst = range(10)

def vr(b, n=4): return f'v[{b}:{b + n - 1}]' if n > 1 else f'v{b}'
def sr(b, n): return f's[{b}:{b + n - 1}]'
MF = 'v_mfma_f32_16x16x32_bf16'
def mfma(d, a, b, c=None):
    return f'{MF} {vr(d)}, {vr(a)}, {vr(b)}, ' + ('0' if c is None else vr(c))

FLAG_OFF = 48 << 20
PART2 = 46080
O_HEAD = 55296
WS_PART = 16 << 20
PART_TILE = 90 * 1024

def srd(em, d, base_lo, base_hi, off_sgpr, size):
    if off_sgpr is None:
        em.op(f's_mov_b32 s{d}, s{base_lo}'); em.op(f's_mov_b32 s{d+1}, s{base_hi}')
    else:
        em.op(f's_add_u32 s{d}, s{base_lo}, {off_sgpr}'); em.op(f's_addc_u32 s{d+1}, s{base_hi}, 0')
    em.op(f's_mov_b32 s{d+2}, {size}')
    em.op(f's_mov_b32 s{d+3}, 0x20000')

_lab = [0]
DIAG_OFF = 64 << 20
class Stamps:
    def __init__(self, em):
        self.em = em; self.n = 0; self.names = []
        if cfg.diag:
            for i in range(len(cfg.stlist)): em.op(f's_mov_b32 s{60 + 2*i}, 0')
    def stamp(self, name, real=False):
        if not cfg.diag or name not in cfg.stlist: return
        em = self.em; i = cfg.stlist.index(name)
        em.wait_lgkm0()
        em.op(('s_memrealtime' if (real or cfg.rt) else 's_memtime') + f' s[{60 + 2*i}:{61 + 2*i}]')
        em.op('s_waitcnt lgkmcnt(0)')
    def flush(self, ws_lo, kidx, wave_s, tv):
        if not cfg.diag: return
        em = self.em
        self.stamp('end'); self.stamp('rt_end', real=True)
        if cfg.dbg:
            _lab[0] += 1
            em.op('s_load_dwordx2 s[56:57], s[0:1], 48')
            em.op(f's_and_b32 s58, s2, 0xdf'); em.op(f's_or_b32 s58, s58, s{wave_s}'); em.op('s_cmp_eq_u32 s58, 0')
            em.op('s_waitcnt lgkmcnt(0)')
            em.op(f's_cbranch_scc0 L_dbg{_lab[0]}')
            em.op(f'v_mov_b32 v{tv}, s2')
            for k, i in enumerate([2, 3, 4, 13, 6, 9, 11, 12]):
                em.op(f's_sub_u32 s58, s{60 + 2*i}, s{60 if i == 13 else 62}')
                em.op(f'v_mov_b32 v{tv+1}, s58')
                em.op(f'global_store_dword v{tv}, v{tv+1}, s[56:57] offset:{4*k}')
            em.label(f'L_dbg{_lab[0]}')
            return
        em.op(f's_lshl_b32 s56, s2, 3'); em.op(f's_add_u32 s56, s56, s{wave_s}'); em.op('s_lshl_b32 s56, s56, 7')
        em.op(f's_add_u32 s56, s56, {DIAG_OFF + (kidx << 20)}')
        em.op(f's_add_u32 s56, s{ws_lo}, s56'); em.op(f's_addc_u32 s57, s{ws_lo+1}, 0')
        em.op(f'v_mov_b32 v{tv}, 0')
        for i in range(len(cfg.stlist)):
            em.op(f'v_mov_b32 v{tv+1}, s{60 + 2*i}')
            em.op(f'global_store_dword v{tv}, v{tv+1}, s[56:57] offset:{4*i}')
        print('stamps', kidx, cfg.stlist, file=sys.stderr)

SX, SWQ, SK, SV, SO = 16, 20, 24, 28, 32
sW, sW3072, sW1024, sTYPE, sOFF, sT0, sT1, sT2, sC, sB, sH, sJ, sLOC, sX = 36, 37, 38, 39, 40, 41, 42, 43, 44, 52, 46, 47, 48, 53
vLANE, vXO, vWO, vK0, vK1, vVO = 1, 2, 3, 4, 5, 6
vRA = [7, 8]
vRB = [9, 10, 11]
vRC = [12, 13, 14]
vT = 15
vOW = [104, 105, 106]
vVW, vVW2 = 7, 8
vPA, vPW, vMS = 240, 242, 243
vPW2 = 241
TMP = list(range(244, 256))
STG = 43008
PBASE, VBASE, MAXB, SUMB = 0, 55296, 153600, 155648
NV = 4
def vslot(s): return [3, 1, 2, 0][s % 4]
LDS1 = SUMB + 12 * 512
def kop(kt, ks): return 16 + 4 * (kt * 6 + ks)
def sreg(kt, qt):
    if kt < 2: return 116 + 4 * (qt * 2 + kt)
    i = qt * 2 + (kt - 2)
    return 16 + 4 * i if i < 12 else 188 + 4 * (i - 12)
ACC = 116
MC = 212
SUM = 221
SUMP = 222
QF = 224
OACC0 = [116 + 4*i for i in range(15)]
OACC1 = [120 + 8*i for i in range(9)] + [112, 2, 248]
PAF0 = [[176, 180, 184], [20, 28, 36]]
PAF1 = [[20, 28, 36], [44, 52, 60]]
PBF0 = [[44, 52, 60, 192, 200], [208, 112, 2, 248, 252]]
PBF1 = [[192, 200, 208, 252], [216, 220, 224, 228]]
INV0 = 230
NEXP1 = 4


sKB = 57
vKR = [250, 251]
vVO3 = 252
def k_dma_ops(em, half):
    nt = ' nt' if cfg.nt_kv and cfg.nt_k else ''
    ops = []
    for c in range(3):
        for k in range(2):
            for p in range(2):
                def f(c=c, k=k, p=p):
                    em.op(f's_add_u32 m0, s{sKB}, {(k * 3 + c) * 2048 + p * 1024 - c * 128}')
                    em.op(f's_mov_b32 s{sOFF}, {(half * 2 + k) * 6144}')
                    em.op(f'buffer_load_dwordx4 v{vK1 if p else vK0}, {sr(SK,4)}, s{sOFF} offen offset:{c*128}{nt} lds', tag=f'K{half}_{c * 2 + k}')
                ops.append(f)
    return ops
def k_rd_ops(half, u):
    c, k = divmod(u, 2)
    return [f'ds_read_b128 {vr(kop(half * 2 + k, 2 * c + e))}, v{vKR[e]} offset:{(k * 3 + c) * 2048}' for e in range(2)]
def k_fetch(em, half, nxt):
    for u in range(6):
        em.wait_vm_tag(f'K{half}_{u}')
        for o in k_rd_ops(half, u): em.op(o)
        if nxt and u:
            em.waitcnt(lgkm=2); em.lgkm = em.lgkm[-2:]
            for f in nxt[2 * u - 2: 2 * u]: f()
    if nxt:
        em.wait_lgkm0()
        for f in nxt[10:12]: f()
def va_ops(em):
    nt = ' nt' if cfg.nt_kv and cfg.nt_v else ''
    ops = []
    for rg in range(4):
        for c in range(3):
            def f(c=c, rg=rg):
                em.op(f's_add_u32 m0, s{sKB}, {rg * 3072 + c * 896}')
                em.op(f's_mov_b32 s{sOFF}, {rg * 3072}')
                em.op(f'buffer_load_dwordx4 v{vVO3}, {sr(SV,4)}, s{sOFF} offen offset:{c*128}{nt} lds', tag='VA')
            ops.append(f)
    return ops

def stage_dma_ops(em, s, qh):
    nt = ' nt' if cfg.nt_w else ''
    slot = (s % 3) * 18432
    ops = []
    for c in range(3):
        def f(c=c):
            em.op(f's_add_u32 m0, s{sW3072}, {VBASE + (s % 3) * 24576 + c * 896}')
            if c == 0: em.op(f's_mov_b32 s{sOFF2}, {s * 786432}')
            em.op(f'buffer_load_dwordx4 v{vWO}, {sr(SWQ,4)}, s{sOFF2} offen offset:{c*128}{nt} lds', tag=f'S{s}')
        ops.append(f)
    for j in range(2):
        def f(j=j):
            em.op(f's_add_u32 m0, s{sW1024}, {slot + j * 8192}')
            em.op(f's_mov_b32 s{sOFF}, {s * 128 + j * 81920}')
            em.op(f'buffer_load_dwordx4 v{vXO}, {sr(SX,4)}, s{sOFF} offen{nt} lds', tag=f'S{s}')
        ops.append(f)
    if qh == 1:
        def f():
            _lab[0] += 1
            lab = f'L_x{_lab[0]}'
            em.op(f's_cmp_lt_u32 s{sW}, 6')
            em.op(f's_cbranch_scc0 {lab}')
            em.begin_opt()
            em.op(f's_add_u32 m0, s{sW1024}, {slot + 12288}')
            em.op(f's_mov_b32 s{sOFF}, {s * 128 + 122880}')
            em.op(f'buffer_load_dwordx4 v{vXO}, {sr(SX,4)}, s{sOFF} offen{nt} lds', tag=f'S{s}')
            em.end_opt()
            em.label(lab)
        ops.insert(0, f)
    return ops

def v_dma_ops(em, s):
    nt = ' nt' if cfg.nt_kv and cfg.nt_v else ''
    ops = []
    for c in range(3):
        def f(c=c):
            em.op(f's_add_u32 m0, s{sW3072}, {VBASE + vslot(s) * 24576 + c * 896}')
            em.op(f's_mov_b32 s{sOFF}, {(128 * (s & 3) + 32 * (s >> 2)) * 384}')
            em.op(f'buffer_load_dwordx4 v{vVO}, {sr(SV,4)}, s{sOFF} offen offset:{c*128}{nt} lds', tag=f'V{s}')
        ops.append(f)
    return ops

sDG = 49
sPFS, sPFB = 45, 50
sOFF2 = 3
vPF = 241
def pf_ops():
    if not cfg.pre: return []
    nt = ' nt' if cfg.nt_w else ''
    return [f'global_load_dwordx4 {vr(112)}, v{vPF}, s[{sPFB}:{sPFB+1}]{nt}', f'v_add_u32 v{vPF}, s{sPFS}, v{vPF}']
sTAG, sSTR, sF1, sF2, sHB, sM0T, sQ0, sNH, sCNT = 88, 89, 90, 92, 94, 98, 99, 100, 101
VST = 64
def v_reg_ops(em):
    nt = ' nt' if cfg.nt_kv and cfg.nt_v else ''
    ops = []
    for s in range(4, 8):
        for c in range(3):
            def f(s=s, c=c):
                em.op(f's_mov_b32 s{sOFF}, {(128 * (s & 3) + 32 * (s >> 2)) * 384}')
                em.op(f'buffer_load_dwordx4 {vr(VST + 4 * ((s - 4) * 3 + c))}, v{vVO}, {sr(SV,4)}, s{sOFF} offen offset:{c*128}{nt}', tag=f'V{s}')
            ops.append(f)
    return ops
def v_put_ops(s):
    slot = vslot(s)
    return [f'ds_write_b128 v{vVW if slot < 2 else vVW2}, {vr(VST + 4 * ((s - 4) * 3 + c))} offset:{(slot % 2) * 24576 + c * 1024}' for c in range(3)]

vPF2 = 254
VTMP = [248, 249, 253]
def pf2_ops():
    nt = ' nt' if cfg.nt_w else ''
    return [f'global_load_dwordx4 {vr(112)}, v{vPF2}, s[{sPFB}:{sPFB+1}]{nt}', f'v_add_u32 v{vPF2}, s{sPFS}, v{vPF2}']

def k1_prologue(em):
    em.op('s_cmp_ge_u32 s2, 256')
    em.op('s_cbranch_scc1 L_k1_exit')
    em.st = Stamps(em); em.st.stamp('rt0', real=True); em.st.stamp('start')
    em.op('s_load_dwordx8 s[4:11], s[0:1], 0')
    em.op('s_load_dwordx2 s[12:13], s[0:1], 56')
    em.op('s_load_dwordx2 s[14:15], s[0:1], 32')
    em.op('s_load_dwordx2 s[54:55], s[0:1], 40')
    em.op(f'v_and_b32 v{vLANE}, 63, v0')
    em.op(f'v_lshrrev_b32 v{vT}, 6, v0')
    em.op(f's_and_b32 s{sX}, s2, 7')
    em.op(f's_lshr_b32 s{sLOC}, s2, 3')
    em.op(f'v_readfirstlane_b32 s{sW}, v{vT}')
    t0, t1, t2, t3, t4, t5 = TMP[:6]
    L = f'v{vLANE}'
    em.op(f's_and_b32 s{sJ}, s{sLOC}, 3')
    em.op(f's_lshr_b32 s{sB}, s{sLOC}, 2')
    em.op(f's_lshl_b32 s{sH}, s{sX}, 2')
    em.op(f's_add_u32 s{sH}, s{sH}, s{sJ}')
    em.op(f's_and_b32 s{sTYPE}, s{sB}, 1')
    em.op(f's_lshl_b32 s{sT0}, s{sLOC}, 1'); em.op(f's_mul_i32 s{sT0}, s{sT0}, 12288'); em.op(f's_mul_i32 s{sT1}, s{sX}, 1536'); em.op(f's_add_u32 s{sT0}, s{sT0}, s{sT1}')
    em.op(f's_lshl_b32 s{sT1}, s{sW}, 9'); em.op(f's_add_u32 s{sT0}, s{sT0}, s{sT1}')
    em.op(f'v_lshrrev_b32 v{t3}, 5, {L}'); em.op(f'v_mul_u32_u24 v{t3}, 12288, v{t3}')
    em.op(f'v_and_b32 v{t4}, 31, {L}'); em.op(f'v_lshlrev_b32 v{t4}, 4, v{t4}')
    em.op(f'v_add3_u32 v{t5}, v{t3}, v{t4}, s{sT0}')
    em.op(f'v_lshrrev_b32 v{t0}, 3, {L}')
    em.op(f'v_and_b32 v{t1}, 7, {L}')
    em.op(f'v_lshrrev_b32 v{t2}, 4, {L}')
    em.op(f's_mul_i32 s{sT0}, s{sLOC}, 36'); em.op(f's_lshl_b32 s{sT2}, s{sW}, 3'); em.op(f's_add_u32 s{sT0}, s{sT0}, s{sT2}'); em.op(f's_sub_u32 s{sT0}, s{sT0}, 24')
    em.op(f'v_add_u32 v{t3}, s{sT0}, v{t0}')
    em.op(f's_cmp_lt_u32 s{sW}, 3')
    em.op(f's_cselect_b64 vcc, -1, 0')
    em.op(f's_movk_i32 s{sPFS}, 128')
    em.op(f's_cselect_b32 s{sPFS}, 786432, s{sPFS}')
    for dst, dr, dw in ((vPF, 0, 0), (vPF2, 144, 98304)):
        if dst == vPF2 and cfg.pf1 >= 10: continue
        em.op(f'v_add_u32 v{t4}, {dr}, v{t3}'); em.op(f'v_min_u32 v{t4}, 1151, v{t4}')
        em.op(f'v_mul_u32_u24 v{t4}, 1280, v{t4}')
        em.op(f'v_lshl_add_u32 v{t4}, v{t1}, 4, v{t4}')
        em.op(f'v_add_u32 v{dst}, {dw}, v{t5}')
        em.op(f'v_cndmask_b32 v{dst}, v{t4}, v{dst}, vcc')
    if cfg.pf1 < 10:
        em.op(f's_mul_i32 s{sT0}, s{sPFS}, {cfg.pf1}'); em.op(f'v_add_u32 v{vPF2}, s{sT0}, v{vPF2}')
    em.op(f's_and_b32 s{sDG}, s{sW}, 3')
    em.op(f's_mul_i32 s{sW3072}, s{sW}, 3072')
    em.op(f's_lshl_b32 s{sW1024}, s{sW}, 10')
    em.op(f's_and_b32 s{sT0}, s{sW}, 1')
    em.op(f's_lshl_b32 s{sT1}, s{sT0}, 2')
    em.op(f'v_add_u32 v{t3}, s{sT1}, v{t2}')
    em.op(f'v_xor_b32 v{t3}, v{t3}, v{t1}')
    em.op(f'v_add_u32 v{t4}, s{sT2}, v{t0}')
    em.op(f'v_mul_u32_u24 v{vXO}, 1280, v{t4}')
    em.op(f'v_lshl_add_u32 v{vXO}, v{t3}, 4, v{vXO}')
    em.op(f'v_and_b32 v{t3}, 1, v{t2}')
    em.op(f'v_lshl_add_u32 v{t3}, v{t3}, 1, s{sT1}')
    em.op(f'v_xor_b32 v{t3}, v{t3}, v{t1}')
    em.op(f'v_mul_u32_u24 v{vWO}, 12288, v{t4}')
    em.op(f'v_lshl_add_u32 v{vWO}, v{t3}, 4, v{vWO}')
    em.op(f's_lshl_b32 s{sT2}, s{sW}, 6')
    em.op(f'v_add_u32 v{t4}, s{sT2}, v{t0}')
    em.op(f'v_mul_u32_u24 v{t4}, 384, v{t4}')
    em.op(f'v_xor_b32 v{t3}, v{t2}, v{t1}')
    em.op(f'v_lshl_add_u32 v{vK0}, v{t3}, 4, v{t4}')
    em.op(f'v_xor_b32 v{vK1}, 64, v{vK0}')
    em.op(f'v_add_u32 v{vK1}, {8 * 384}, v{vK1}')
    em.op(f'v_lshlrev_b32 v{t3}, 1, v{t2}')
    em.op(f'v_xor_b32 v{t3}, v{t3}, v{t1}')
    em.op(f'v_lshl_add_u32 v{vVO3}, v{t3}, 4, v{t4}')
    em.op(f's_and_b32 s{sT1}, s{sW}, 6'); em.op(f's_lshr_b32 s{sKB}, 0x27, s{sT1}'); em.op(f's_and_b32 s{sKB}, s{sKB}, 3')
    em.op(f's_lshl_b32 s{sKB}, s{sKB}, 1'); em.op(f's_add_u32 s{sKB}, s{sKB}, s{sT0}'); em.op(f's_mul_i32 s{sKB}, s{sKB}, 12288'); em.op(f's_add_u32 s{sKB}, s{sKB}, {VBASE}')
    em.op(f'v_bfe_u32 v{t3}, {L}, 3, 1'); em.op(f'v_lshlrev_b32 v{t3}, 10, v{t3}')
    em.op(f'v_lshl_add_u32 v{t3}, v{t1}, 7, v{t3}')
    em.op(f'v_bfe_u32 v{t4}, {L}, 1, 3')
    em.op(f'v_xor_b32 v{t4}, v{t4}, v{t2}'); em.op(f'v_lshlrev_b32 v{vT}, 4, v{t4}')
    em.op(f'v_add_u32 v{vRA[0]}, v{t3}, v{vT}')
    em.op(f'v_add_u32 v{vKR[0]}, s{sKB}, v{vRA[0]}')
    em.op(f'v_xor_b32 v{vKR[1]}, 64, v{vKR[0]}')
    em.op(f's_lshr_b32 s{sT1}, s{sW}, 2'); em.op(f's_lshl_b32 s{sT1}, s{sT1}, 6')
    em.op(f's_lshl_b32 s{sT0}, s{sDG}, 3'); em.op(f's_add_u32 s{sT0}, s{sT0}, s{sT1}')
    em.op(f'v_add_u32 v{t3}, s{sT0}, v{t0}')
    em.op(f'v_mul_u32_u24 v{vVO}, 384, v{t3}')
    em.op(f'v_lshlrev_b32 v{t3}, 1, v{t2}')
    em.op(f'v_xor_b32 v{t3}, v{t3}, v{t1}')
    em.op(f'v_lshl_add_u32 v{vVO}, v{t3}, 4, v{vVO}')
    em.op(f's_mul_i32 s{SX+3}, s{sB}, 184320')
    em.op(f's_mul_i32 s{SWQ+3}, s{sH}, 384')
    em.op(f's_lshl_b32 s{sT1}, s{sB}, 5'); em.op(f's_add_u32 s{sT1}, s{sT1}, s{sH}')
    em.op(f's_mul_i32 s{sT2}, s{sT1}, 196608')
    em.op(f's_mul_i32 s{SO+3}, s{sT1}, {O_HEAD}')
    em.op(f's_lshl_b32 s{sT0}, s{sB}, 8'); em.op(f's_add_u32 s{sT0}, s{sT0}, {FLAG_OFF}')
    em.op(f's_mov_b32 s{SX+2}, 184320'); em.op(f's_sub_u32 s{SWQ+2}, 7864320, s{SWQ+3}')
    em.op(f's_cmp_lt_u32 s{sW}, 3')
    em.op('s_waitcnt lgkmcnt(0)')
    em.st.stamp('ka')
    if cfg.diag: em.op(f's_cmp_lt_u32 s{sW}, 3')
    em.op(f's_cselect_b64 s[{sPFB}:{sPFB+1}], s[10:11], s[4:5]')
    for i in range(3):
        for o in pf_ops(): em.op(o)
    em.op(f's_load_dword s{sTAG}, s[12:13], s{sT0}')
    em.op(f's_add_u32 s{SWQ}, s10, s{SWQ+3}'); em.op(f's_addc_u32 s{SWQ+1}, s11, 0'); em.op(f's_mov_b32 s{SWQ+3}, 0x20000')
    em.op(f's_add_u32 s{SX}, s4, s{SX+3}'); em.op(f's_addc_u32 s{SX+1}, s5, 0'); em.op(f's_mov_b32 s{SX+3}, 0x20000')
    srd(em, SK, 6, 7, f's{sT2}', 196608); srd(em, SV, 8, 9, f's{sT2}', 196608)
    if cfg.n0:
        em.op(f's_cmp_eq_u32 s{sTYPE}, 1')
        em.op('s_cbranch_scc0 L_nok1')
        em.begin_opt()
        for i in range(cfg.pf1 - 3):
            for o in pf_ops(): em.op(o)
        em.end_opt()
        em.label('L_nok1')
    if cfg.n0:
        em.op(f's_lshr_b32 s{sT0}, s{sW}, 2'); em.op(f's_lshl_b32 s{sT0}, s{sT0}, 1'); em.op(f's_or_b32 s{sT0}, s{sT0}, s{sTYPE}')
        for v in (0, 2, 3):
            em.op(f's_cmp_eq_u32 s{sT0}, {v}')
            em.op(f's_cbranch_scc1 L_qp{v >> 1}{v & 1}')
    else:
        em.op(f's_cmp_lt_u32 s{sW}, 4')
        em.op('s_cbranch_scc0 L_qp10')

def tr_addr(em, dst, t, base, fmode):
    t0, t1, t2, t3 = TMP[:4]
    L = f'v{vLANE}'
    em.op(f's_mul_i32 s{sT0}, s{sDG}, 3'); em.op(f's_add_u32 s{sT0}, s{sT0}, {t}')
    em.op(f's_lshr_b32 s{sT1}, s{sT0}, 2'); em.op(f's_lshl_b32 s{sT1}, s{sT1}, 10')
    em.op(f's_add_u32 s{sT1}, s{sT1}, {base}')
    em.op(f's_and_b32 s{sT0}, s{sT0}, 3')
    em.op(f'v_lshrrev_b32 v{t0}, 4, {L}')
    em.op(f'v_bfe_u32 v{t1}, {L}, 2, 2')
    em.op(f'v_and_b32 v{t2}, 1, v{t0}')
    em.op(f'v_lshlrev_b32 v{t2}, 1, v{t2}')
    em.op(f'v_lshrrev_b32 v{t3}, 1, v{t1}')
    em.op(f'v_add_u32 v{t3}, v{t3}, v{t2}')
    em.op(f'v_xor_b32 v{t3}, s{sT0}, v{t3}')
    em.op(f'v_lshlrev_b32 v{t3}, 5, v{t3}')
    em.op(f'v_lshlrev_b32 v{dst}, 7, v{t1}')
    em.op(f'v_add_u32 v{dst}, v{dst}, v{t3}')
    if fmode == 'w':
        em.op(f'v_mul_u32_u24 v{t3}, 3072, v{t0}')
    else:
        em.op(f'v_lshlrev_b32 v{t2}, 8, v{t2}')
        em.op(f'v_add_u32 v{dst}, v{dst}, v{t2}')
        em.op(f'v_lshrrev_b32 v{t3}, 1, v{t0}')
        em.op(f'v_mul_u32_u24 v{t3}, 3072, v{t3}')
    em.op(f'v_add_u32 v{dst}, v{dst}, v{t3}')
    em.op(f'v_and_b32 v{t3}, 3, {L}')
    em.op(f'v_lshlrev_b32 v{t3}, 3, v{t3}')
    em.op(f'v_add_u32 v{dst}, v{dst}, v{t3}')
    em.op(f'v_add_u32 v{dst}, s{sT1}, v{dst}')

class Cap:
    def __init__(self): self.ops = []
    def op(self, t, tag=None): self.ops.append(t)

def k1_qproj(em, qh, typ):
    nq = 5 if qh == 0 else 4
    q0 = 0 if qh == 0 else 5
    L = f'v{vLANE}'
    t0, t1, t2, t3, t4, t5 = TMP[:6]
    rf = cfg.rfrac / 100
    if cfg.prio and qh == 1: em.op('s_setprio 1')
    npre = cfg.n0 if typ == 1 else 0
    if npre:
        for f in k_dma_ops(em, 0): f()
        em.wait_lgkm0(force=True)
        k_fetch(em, 0, k_dma_ops(em, 1) if npre == 2 else None)
        if npre == 2: k_fetch(em, 1, None)
        em.wait_lgkm0()
    em.barrier()
    for f in stage_dma_ops(em, 0, qh): f()
    em.barrier()
    for f in stage_dma_ops(em, 1, qh): f()
    em.op(f's_add_u32 s{SO}, s12, s{SO+3}'); em.op(f's_addc_u32 s{SO+1}, s13, 0'); em.op(f's_mov_b32 s{SO+2}, {O_HEAD}'); em.op(f's_mov_b32 s{SO+3}, 0x20000')
    em.op(f's_mov_b32 s{sC}, {fbits(192 ** -0.5 * math.log2(math.e))}')
    if cfg.code_pre:
        em.op('s_getpc_b64 s[58:59]')
        em.label(f'L_pc{qh}{typ}')
        em.op(f's_add_u32 s58, s58, k1_body_start-L_pc{qh}{typ}')
        em.op('s_addc_u32 s59, s59, -1')
        em.op(f's_and_b32 s{sT1}, s{sLOC}, 15')
        em.op(f's_lshl_b32 s{sT1}, s{sT1}, 13')
        em.op(f'v_lshlrev_b32 v{TMP[11]}, 4, v0')
        em.op(f'v_add_u32 v{TMP[11]}, s{sT1}, v{TMP[11]}')
        em.op(f'v_min_u32 v{TMP[11]}, k1_body_end-k1_body_start-16, v{TMP[11]}')
    em.st.stamp('si')
    em.op(f'v_lshlrev_b32 v{t3}, 2, v0')
    em.op(f'v_add_u32 v{t3}, {MAXB}, v{t3}')
    em.op(f'v_mov_b32 v{t4}, 0xff800000')
    em.op(f'ds_write_b32 v{t3}, v{t4}')
    em.op(f'v_and_b32 v{vMS}, 15, {L}')
    em.op(f'v_lshlrev_b32 v{vMS}, 2, v{vMS}')
    em.op(f'v_add_u32 v{vMS}, {MAXB}, v{vMS}')
    em.op(f'v_add_u32 v{vRA[0]}, {q0 * 2048}, v{vRA[0]}')
    em.op(f'v_xor_b32 v{vRA[1]}, 64, v{vRA[0]}')
    for t in range(3): tr_addr(em, vRB[t], t, VBASE, 'w')
    for t in range(3):
        em.op(f's_mul_i32 s{sT0}, s{sDG}, 3'); em.op(f's_add_u32 s{sT0}, s{sT0}, {t}'); em.op(f's_lshl_b32 s{sT0}, s{sT0}, 1')
        em.op(f'v_lshrrev_b32 v{t0}, 5, {L}')
        em.op(f'v_add_u32 v{t0}, s{sT0}, v{t0}')
        em.op(f'v_lshrrev_b32 v{t1}, 3, v{t0}'); em.op(f'v_lshlrev_b32 v{t1}, 7, v{t1}')
        em.op(f'v_and_b32 v{t0}, 7, v{t0}')
        em.op(f'v_bfe_u32 v{t2}, {L}, 1, 3')
        em.op(f'v_xor_b32 v{t0}, v{t0}, v{t2}'); em.op(f'v_lshlrev_b32 v{t0}, 4, v{t0}')
        em.op(f'v_add_u32 v{t0}, v{t0}, v{t1}')
        em.op(f'v_and_b32 v{t1}, 15, {L}'); em.op(f'v_mul_u32_u24 v{t1}, 384, v{t1}')
        em.op(f'v_add_u32 v{t0}, v{t0}, v{t1}')
        em.op(f'v_bfe_u32 v{t1}, {L}, 4, 1'); em.op(f'v_lshlrev_b32 v{t1}, 3, v{t1}')
        em.op(f'v_add_u32 v{vRC[t]}, v{t0}, v{t1}')
    em.op(f'v_lshlrev_b32 v{vPA}, 4, {L}')
    em.op(f's_lshl_b32 s{sT0}, s{sW}, 2'); em.op(f's_lshr_b32 s{sT1}, 0x10543210, s{sT0}'); em.op(f's_and_b32 s{sT1}, s{sT1}, 15'); em.op(f's_mul_i32 s{sT1}, s{sT1}, 9216')
    em.op(f'v_add_u32 v{vPW}, s{sT1}, v{vPA}')
    em.op(f'v_add_u32 v{vPA}, {q0 * 1024}, v{vPA}')
    AF = [176, 188]; BF = [200, 220]
    def q_reads(s, step, st):
        ops = []
        for t in range(3):
            ops.append(f'ds_read_b64_tr_b16 {vr(AF[st] + 4*t, 2)}, v{vRB[t]} offset:{(s % 3) * 24576 + step * 12288}')
            ops.append(f'ds_read_b64_tr_b16 {vr(AF[st] + 4*t + 2, 2)}, v{vRB[t]} offset:{(s % 3) * 24576 + step * 12288 + 512}')
        xs = [f'ds_read_b128 {vr(BF[st] + 4*j)}, v{vRA[step]} offset:{(s % 3) * 18432 + j * 2048}' for j in range(nq)]
        return ops[0:2] + xs[0:1] + ops[2:6] + xs[1:]
    def mf(st, first):
        return [mfma(ACC + 4*(j*3+t), AF[st] + 4*t, BF[st] + 4*j, None if first else ACC + 4*(j*3+t)) for j in range(nq) for t in range(3)]
    em.wait_vm_tag('S0', lgkm0=True); em.barrier()
    em.st.stamp('S0')
    em.op(f's_add_u32 s{sTAG}, s{sTAG}, 1')
    for o in q_reads(0, 0, 0): em.op(o)
    em.npre = npre
    nxt = [k_dma_ops(em, 0), k_dma_ops(em, 1), va_ops(em)][npre]
    plan = {15: nxt[0:4], 16: nxt[4:7], 17: nxt[7:10], 18: nxt[10:12]} if qh == 0 else {19: nxt[0:6]}
    late = [] if qh == 0 else nxt[6:12]
    cap = Cap()
    for t in range(3): tr_addr(cap, VTMP[t], t, VBASE, 'v')
    vaddr_ops = cap.ops
    inloop_pf = not (typ == 1 and cfg.n0)
    carry = stage_dma_ops(em, 2, qh) + (sum([pf_ops() for i in range(cfg.pfa - 3)], []) if inloop_pf else [])
    if cfg.code_pre: carry.append(f'global_load_dwordx4 {vr(244)}, v{TMP[11]}, s[58:59]')
    for s in range(10):
        extra = []
        extra = plan.get(2 * s, [])
        interleave(em, mf(0, s == 0), ([] if cfg.x_qnord and 3 < s <= 6 else q_reads(s, 1, 1), 0, rf), (extra, 0.1, 1), (carry, 0.05, cfg.dhi / 100))
        if s < 9: em.wait_vm_tag(f'S{s+1}', lgkm0=True)
        else: em.wait_lgkm0()
        em.barrier()
        if s in cfg.qst: em.st.stamp(f'B{s}')
        if cfg.qloop and s == 6:
            em.op('s_sub_u32 s87, s87, 1'); em.op('s_cmp_lg_u32 s87, 0'); em.op(f's_cbranch_scc1 L_ql{qh}{typ}')
            em.st.stamp('LBend')
        if cfg.qloop and s == 3:
            em.st.stamp('LB0')
            em.op('s_mov_b32 s87, 16'); em.label(f'L_ql{qh}{typ}')
        rd = []; dm = []; extra = []
        if s < 9:
            if not (cfg.x_qnord and 3 <= s < 6): rd += q_reads(s + 1, 0, 0)
        carry = []
        if s + 3 <= 9:
            dm = stage_dma_ops(em, s + 3, qh); dm, carry = dm[:cfg.dsplit], dm[cfg.dsplit:]
            if cfg.x_qnodma and 3 <= s < 6: dm = []; carry = []
        if s == 7: extra = vaddr_ops
        first = (pf_ops() + (pf2_ops() if s + cfg.pfa >= cfg.pf1 and cfg.n0 else []) if inloop_pf and s + cfg.pfa <= 9 and not (cfg.qloop and s >= 3) else []) + plan.get(2 * s + 1, [])
        qw = []
        if s == 9:
            for j in range(nq):
                for t in range(3):
                    a = ACC + 4*(j*3+t)
                    qw.append([f'v_cvt_pk_bf16_f32 v{a}, v{a}, v{a+1}', f'v_cvt_pk_bf16_f32 v{a+1}, v{a+2}, v{a+3}', f'ds_write_b64 v{vRC[t]}, {vr(a,2)} offset:{(q0 + j) * 6144}'])
        n = 3 * nq; lag = 3 if cfg.qwi else n
        ins = [(qw[k], (k + lag + 0.5) / n, (k + lag + 0.5) / n) for k in range(n - lag)] if qw else []
        interleave(em, mf(1, False), (dm, cfg.dlo / 100, cfg.dhi / 100), (rd, 0, rf), (extra, 0, 1), (first, 0, 0.04 if dm else 0.9), *ins)
    for g in qw[max(0, n - lag):]:
        for o in g: em.op(o)
    for f in late: f()
    em.op(f'v_and_b32 v{t1}, 15, {L}'); em.op(f'v_mul_u32_u24 v{t1}, 384, v{t1}')
    em.op(f'v_add_u32 v{vRA[0]}, v{t1}, v{vT}')
    em.op(f'v_xor_b32 v{t0}, 64, v{vT}')
    em.op(f'v_add_u32 v{vRA[1]}, v{t1}, v{t0}')
    for t in range(3): em.op(f'v_mov_b32 v{vRB[t]}, v{VTMP[t]}')
    em.wait_lgkm0(); em.barrier()
    for t in range(3): em.op(f'v_add_u32 v{vRC[t]}, 49152, v{vRB[t]}')
    em.op(f's_lshl_b32 s{sT0}, s{sW}, 2'); em.op(f's_lshr_b32 s{sT1}, 0x32105432, s{sT0}'); em.op(f's_and_b32 s{sT1}, s{sT1}, 15'); em.op(f's_mul_i32 s{sT1}, s{sT1}, 9216')
    em.op(f'v_lshlrev_b32 v{vPW2}, 4, {L}')
    em.op(f'v_add_u32 v{vPW2}, s{sT1}, v{vPW2}')
    em.st.stamp('BQ')

def maxops(half):
    ops = []
    for qt in range(9):
        a, b = sreg(half*2, qt), sreg(half*2+1, qt); m = MC + qt
        if half == 0:
            ops += [f'v_max3_f32 v{m}, v{a}, v{a+1}, v{a+2}', f'v_max3_f32 v{m}, v{m}, v{a+3}, v{b}',
                    f'v_max3_f32 v{m}, v{m}, v{b+1}, v{b+2}', f'v_max_f32 v{m}, v{m}, v{b+3}']
        else:
            ops += [f'v_max3_f32 v{m}, v{m}, v{a}, v{a+1}', f'v_max3_f32 v{m}, v{m}, v{a+2}, v{a+3}',
                    f'v_max3_f32 v{m}, v{m}, v{b}, v{b+1}', f'v_max3_f32 v{m}, v{m}, v{b+2}, v{b+3}']
    return ops

def k1_qk(em, qh):
    def qrd(n):
        qt, ks = divmod(n, 6)
        return f'ds_read_b128 {vr(QF + 4*(n % 4))}, v{vRA[ks & 1]} offset:{qt * 6144 + (ks >> 1) * 128}'
    npre = em.npre
    for half in range(2):
        fill = []
        if half >= npre:
            fill = k_dma_ops(em, 1) if half == 0 else va_ops(em)
            if half == 0 and cfg.eager >> qh & 1:
                k_fetch(em, half, fill); fill = []
            else:
                k_fetch(em, half, None)
                em.wait_lgkm0()
                if half == 1 and cfg.eagerv >> qh & 1:
                    for f in fill: f()
                    fill = []
        for n in range(3): em.op(qrd(n))
        em.st.stamp(f'K{half}')
        main = []
        for n in range(54):
            qt, ks = divmod(n, 6)
            if n + 3 < 54: main.append(qrd(n + 3))
            for k in range(2):
                kt = half * 2 + k
                main.append(mfma(sreg(kt, qt), kop(kt, ks), QF + 4*(n % 4), None if ks == 0 else sreg(kt, qt)))
        m1 = maxops(1)
        if half == 0:
            streams = [(fill, cfg.g2lo / 100, cfg.g2hi / 100)]
        else:
            streams = [(maxops(0), 0.02, 0.5)]
            for qt in range(8): streams.append((m1[qt*4:qt*4+4], max(0.5 + 0.05*qt, (qt + 1.5) / 9), max(0.55 + 0.05*qt, (qt + 1.9) / 9)))
            streams.append((fill, cfg.valo / 100, cfg.vahi / 100))
        interleave(em, main, *streams)
    em.st.stamp('QKend')
    for o in maxops(1)[32:]: em.op(o)
    for qt in range(9): em.op(f'ds_max_f32 v{vMS}, v{MC+qt} offset:{qt*64}')
    em.op(f'v_lshlrev_b32 v{vVW}, 4, v{vLANE}')
    em.op(f'v_add_u32 v{vVW}, s{sW3072}, v{vVW}')
    em.op(f'v_add_u32 v{vVW}, {VBASE}, v{vVW}')
    em.op(f'v_add_u32 v{vVW2}, 49152, v{vVW}')
    em.wait_lgkm0(); em.barrier()
    em.st.stamp('BM')

def expops(r, qt, pk):
    a, b = sreg(2*r, qt), sreg(2*r+1, qt); m = MC + qt
    tA, tB = TMP[0], TMP[2]
    sp = SUMP + 2*qt
    rs = [a, a+1, a+2, a+3, b, b+1, b+2, b+3]
    if pk:
        mb = m & ~1; s = m & 1
        ops = [f'v_pk_fma_f32 {vr(x,2)}, {vr(x,2)}, s[{sC}:{sC+1}], {vr(mb,2)} op_sel:[0,0,{s}] op_sel_hi:[1,0,{s}] neg_lo:[0,0,1] neg_hi:[0,0,1]' for x in rs[::2]]
    else:
        ops = [f'v_fma_f32 v{x}, v{x}, s{sC}, -v{m}' for x in rs]
    ops += [f'v_exp_f32 v{x}, v{x}' for x in rs]
    if pk:
        ops += [f'v_pk_add_f32 {vr(tA,2)}, {vr(a,2)}, {vr(a+2,2)}', f'v_pk_add_f32 {vr(tB,2)}, {vr(b,2)}, {vr(b+2,2)}']
        if r == 0: tailo = [f'v_pk_add_f32 {vr(sp,2)}, {vr(tA,2)}, {vr(tB,2)}']
        else: tailo = [f'v_pk_add_f32 {vr(tA,2)}, {vr(tA,2)}, {vr(tB,2)}', f'v_pk_add_f32 {vr(sp,2)}, {vr(sp,2)}, {vr(tA,2)}']
    else:
        assert r == 1
        ops += [f'v_add_f32 v{sp + (i & 1)}, v{sp + (i & 1)}, v{x}' for i, x in enumerate(rs)]
        tailo = []
    ops += [f'v_cvt_pk_bf16_f32 v{a}, v{a}, v{a+1}', f'v_cvt_pk_bf16_f32 v{a+1}, v{a+2}, v{a+3}',
            f'v_cvt_pk_bf16_f32 v{a+2}, v{b}, v{b+1}', f'v_cvt_pk_bf16_f32 v{a+3}, v{b+2}, v{b+3}']
    return ops + tailo

def pwrite(r, qt, qh):
    return f'ds_write_b128 v{vPW if r == 0 else vPW2}, {vr(sreg(2*r, qt))} offset:{qt*1024}'

def sum_ops():
    L = f'v{vLANE}'
    S = SUM; ops = []
    ops += [f'v_add_f32 v{SUM+qt}, v{SUMP+2*qt}, v{SUMP+2*qt+1}' for qt in range(9)]
    ops += [f'v_mov_b32 v{MC}, 0', f'v_mov_b32 v{MC+1}, 0']
    ta = TMP[2]; tb = TMP[3]
    ops += [f'v_bfe_u32 v{ta}, {L}, 4, 1', f'v_lshlrev_b32 v{ta}, 10, v{ta}', f'v_bfe_u32 v{tb}, {L}, 5, 1', f'v_lshlrev_b32 v{tb}, 9, v{tb}',
            f'v_add_u32 v{ta}, v{ta}, v{tb}', f'v_and_b32 v{tb}, 15, {L}', f'v_lshlrev_b32 v{tb}, 5, v{tb}', f'v_add_u32 v{ta}, v{ta}, v{tb}',
            f's_lshl_b32 s{sT0}, s{sW}, 2', f's_add_u32 s{sT0}, s{sT0}, {SUMB}', f'v_add_u32 v{ta}, s{sT0}, v{ta}']
    for a in (0, 2, 4, 6): ops.append(f'v_permlane32_swap_b32 v{S+a}, v{S+a+1}')
    ops.append(f'v_permlane32_swap_b32 v{S+8}, v{MC}')
    for a in (0, 2, 4, 6): ops.append(f'v_add_f32 v{S+a}, v{S+a}, v{S+a+1}')
    ops.append(f'v_add_f32 v{S+8}, v{S+8}, v{MC}')
    for a in (0, 4): ops.append(f'v_permlane16_swap_b32 v{S+a}, v{S+a+2}')
    ops.append(f'v_permlane16_swap_b32 v{S+8}, v{MC+1}')
    for a in (0, 4): ops.append(f'v_add_f32 v{S+a}, v{S+a}, v{S+a+2}')
    ops.append(f'v_add_f32 v{S+8}, v{S+8}, v{MC+1}')
    for a in (0, 4, 8): ops.append(f'ds_write_b32 v{ta}, v{S+a} offset:{a * 512}')
    return ops

def k1_sm0(em, qh):
    for qt in range(9): em.op(f'ds_read_b32 v{MC+qt}, v{vMS} offset:{qt*64}')
    for qt in range(9): em.op(f'v_mul_f32 v{MC+qt}, s{sC}, v{MC+qt}')
    main = []
    for qt in range(9):
        main += expops(0, qt, True)
        if qh == 0: main.append(pwrite(0, qt, qh))
    for qt in range(9): main += expops(1, qt, True)
    main += sum_ops()
    interleave(em, main, (v_reg_ops(em) if cfg.vreg else [], 0, cfg.vrf / 100))
    em.st.stamp('exp0')
    if qh == 0: em.wait_vm_tag('VA', lgkm0=True)
    else: em.wait_lgkm0()
    em.barrier()
    em.st.stamp('PV0')

def k1_pv(em, qh):
    nq = 5 if qh == 0 else 4
    q0 = 0 if qh == 0 else 5
    L = f'v{vLANE}'
    t0 = TMP[4]
    rf = cfg.rfrac / 100
    PBF = PBF0 if qh == 0 else PBF1
    INV = INV0 + 2 * qh
    PAF = PAF0 if qh == 0 else PAF1
    def pv_reads(s, step, st):
        ops = []
        slot = vslot(s)
        base = vRB if slot < 2 else vRC
        off = (slot % 2) * 24576 + step * 12288
        for t in range(3):
            ops.append(f'ds_read_b64_tr_b16 {vr(PAF[st][t], 2)}, v{base[t]} offset:{off}')
            ops.append(f'ds_read_b64_tr_b16 {vr(PAF[st][t] + 2, 2)}, v{base[t]} offset:{off + 6144}')
        pa, po = vPA, ((2 * s + step) % 6) * 9216
        xs = [f'ds_read_b128 {vr(PBF[st][j])}, v{pa} offset:{po + j * 1024}' for j in range(nq)]
        return ops[0:2] + xs[0:1] + ops[2:6] + xs[1:]
    OACC = OACC0 if qh == 0 else OACC1
    def mf(st, first):
        return [mfma(OACC[j*3+t], PAF[st][t], PBF[st][j], None if first else OACC[j*3+t]) for j in range(nq) for t in range(3)]
    def inv_ops():
        ta = TMP[2]; ops = []
        ops += [f'v_and_b32 v{ta}, 15, {L}', f'v_lshlrev_b32 v{ta}, 5, v{ta}', f'v_add_u32 v{ta}, {SUMB + q0 * 512}, v{ta}']
        for j in range(nq):
            ops += [f'ds_read_b128 {vr(64 + 8*j)}, v{ta} offset:{j * 512}', f'ds_read_b128 {vr(68 + 8*j)}, v{ta} offset:{j * 512 + 16}']
        for j in range(nq):
            r = 64 + 8*j
            ops += [f'v_add_f32 v{r}, v{r}, v{r+1}', f'v_add_f32 v{r+2}, v{r+2}, v{r+3}', f'v_add_f32 v{r+4}, v{r+4}, v{r+5}', f'v_add_f32 v{r+6}, v{r+6}, v{r+7}',
                    f'v_add_f32 v{r}, v{r}, v{r+2}', f'v_add_f32 v{r+4}, v{r+4}, v{r+6}', f'v_add_f32 v{r}, v{r}, v{r+4}', f'v_rcp_f32 v{INV+2*j}, v{r}']
        cap = Cap()
        for t in range(3):
            cap.op(f's_mul_i32 s{sT0}, s{sDG}, 3'); cap.op(f's_add_u32 s{sT0}, s{sT0}, {t}')
            cap.op(f's_lshr_b32 s{sT1}, s{sT0}, 2'); cap.op(f's_mul_i32 s{sT1}, s{sT1}, 20480')
            cap.op(f's_bfe_u32 s{sT2}, s{sT0}, 0x10001'); cap.op(f's_mul_i32 s{sT2}, s{sT2}, 9216'); cap.op(f's_add_u32 s{sT1}, s{sT1}, s{sT2}')
            cap.op(f's_and_b32 s{sT0}, s{sT0}, 1'); cap.op(f's_lshl_b32 s{sT0}, s{sT0}, 3')
            cap.op(f's_add_u32 s{sT0}, s{sT0}, s{sT1}'); cap.op(f's_add_u32 s{sT0}, s{sT0}, 61440')
            cap.op(f'v_add_u32 v{vOW[t]}, s{sT0}, v{vPA}')
        return ops + cap.ops
    def ex(h):
        o = []
        if qh == 0 and h in (5, 6): o += [pwrite(1, qt, qh) for qt in (range(5) if h == 5 else range(5, 9))]
        if qh == 1 and h in (1, 2): o += [pwrite(0, qt, qh) for qt in (range(5) if h == 1 else range(5, 9))]
        if qh == 1 and h in (9, 10): o += [pwrite(1, qt, qh) for qt in (range(5) if h == 9 else range(5, 9))]
        return o
    TS = tail_setup_ops(qh)
    def wopre_ops(i):
        ta = TMP[2 + (i & 1)]
        ops = [f's_mul_i32 s{sT0}, s{sX}, 983040', f's_mul_i32 s{sT1}, s{sLOC}, 30720', f's_add_u32 s{sT0}, s{sT0}, s{sT1}', f's_add_u32 s{sT0}, s{sT0}, {i * 8192}',
               f'v_lshlrev_b32 v{ta}, 4, v0', f'v_add_u32 v{ta}, s{sT0}, v{ta}', f'v_min_u32 v{ta}, {7864320 - 16}, v{ta}',
               f'global_load_dwordx4 {vr(212)}, v{ta}, s[14:15]' + (' nt' if cfg.wont else '')]
        return ops
    for o in pv_reads(0, 0, 0): em.op(o)
    for s in range(8):
        e = ex(2*s)
        if 2*s == 12: e = TS[:len(TS)//3]
        if 2*s == 14: e = TS[2*len(TS)//3:]
        w = wopre_ops(s - 3) if cfg.wopre and 2*s in (6, 8, 10) else []
        interleave(em, mf(0, s == 0), (pv_reads(s, 1, 1), 0, rf), (e, 0, cfg.efrac / 100), (w, 0.5, 0.51))
        if s == 1: em.wait_vm_tag('VA', lgkm0=True)
        elif s < (3 if cfg.vreg else 7): em.wait_vm_tag(f'V{s+1}', lgkm0=True)
        else: em.wait_lgkm0()
        em.barrier()
        em.st.stamp(f'PB{s}')
        rd = pv_reads(s + 1, 0, 0) if s < 7 else []
        dm = (v_put_ops(s + NV) if cfg.vreg else v_dma_ops(em, s + NV)) if s + NV <= 7 else []
        e = ex(2*s+1)
        if 2*s+1 == 11: e = inv_ops()
        if 2*s+1 == 13: e = TS[len(TS)//3: 2*len(TS)//3]
        if 2*s+1 == 15:
            if qh == 0: dm = tail_dma(em, 0) + tail_dma(em, 1)
        w = wopre_ops(3) if cfg.wopre and 2*s+1 == 9 else []
        ins = []
        n = 3 * nq; lag = 4 if cfg.qwi else n
        if s == 7:
            for k in range(n - lag):
                a = OACC[k]; m = INV + 2 * (k // 3)
                g = [f'v_mul_f32 v{a+d}, v{a+d}, v{m}' for d in range(4)] + [f'v_cvt_pk_bf16_f32 v{a}, v{a}, v{a+1}', f'v_cvt_pk_bf16_f32 v{a+1}, v{a+2}, v{a+3}',
                     f'ds_write_b64 v{vOW[k % 3]}, {vr(a,2)} offset:{(k // 3) * 1024}']
                ins.append((g, (k + lag + 0.5) / n, (k + lag + 0.5) / n))
        interleave(em, mf(1, False), (dm, 0.3 if s < 7 and cfg.vreg else 0, (0.9 if cfg.vreg else 0.4) if s < 7 else 1), (rd, 0, rf + 0.1), (e, 0, 1), (w, 0.5, 0.51), *ins)
    late = tail_dma(em, 2) if qh == 0 else []
    main = []
    for j in range(nq):
        for t in range(3):
            if j * 3 + t < n - lag: continue
            a = OACC[j*3+t]
            m = INV + 2*j
            main += [f'v_pk_mul_f32 {vr(a,2)}, {vr(a,2)}, {vr(m,2)} op_sel_hi:[1,0]', f'v_pk_mul_f32 {vr(a+2,2)}, {vr(a+2,2)}, {vr(m,2)} op_sel_hi:[1,0]',
                     f'v_cvt_pk_bf16_f32 v{a}, v{a}, v{a+1}', f'v_cvt_pk_bf16_f32 v{a+1}, v{a+2}, v{a+3}',
                     f'ds_write_b64 v{vOW[t]}, {vr(a,2)} offset:{j * 1024}']
    interleave(em, main, (late, 0, 1))
    em.wait_vm_tag('T0', lgkm0=True); em.barrier()
    em.st.stamp('BO')
    if qh == 0:
        em.op(f's_cmp_lt_u32 s{sW}, 2')
        em.op('s_cbranch_scc0 L_tail1')
        st = em.save(); sn = (em.st.n, list(em.st.names))
        tail(em, 0)
        em.label('L_tail1')
        em.restore(st); em.st.n, em.st.names = sn[0], list(sn[1])
        tail(em, 1)
    else:
        tail(em, 2)

STG2 = 40960
vOFFS = [64, 65, 66, 67, 68]; vA2 = [69, 70, 71, 72, 73]; vB2 = 74
SD, SP, SPR, SOUT = SX, SWQ, SK, SV
def tail_setup_ops(qh):
    c = Cap(); L = f'v{vLANE}'
    t0, t1, t2, t3 = 96, 97, 98, 99
    if qh == 0:
        c.op(f's_mul_i32 s{sT0}, s{sX}, 983040'); c.op(f's_mul_i32 s{sT1}, s{sJ}, 320'); c.op(f's_add_u32 s{sT0}, s{sT0}, s{sT1}')
        srd(c, SD, 14, 15, f's{sT0}', 7864320)
        c.op(f's_sub_u32 s{SD+2}, s{SD+2}, s{sT0}')
        c.op(f's_mov_b32 s{sSTR}, 81920')
        hs = 245760
        c.op(f's_lshl_b32 s{sT2}, s{sW}, 4')
        c.op(f's_mov_b32 s{sT1}, 52429')
        for j in range(5):
            c.op(f'v_add_u32 v{t0}, {j * 64}, {L}')
            c.op(f'v_mul_lo_u32 v{t1}, v{t0}, s{sT1}')
            c.op(f'v_lshrrev_b32 v{t1}, 20, v{t1}')
            c.op(f'v_mul_u32_u24 v{t2}, 20, v{t1}')
            c.op(f'v_sub_u32 v{t2}, v{t0}, v{t2}')
            c.op(f'v_bfe_u32 v{t3}, v{t1}, 2, 1')
            c.op(f'v_lshlrev_b32 v{t3}, 1, v{t3}')
            c.op(f'v_xor_b32 v{t2}, v{t2}, v{t3}')
            c.op(f'v_lshlrev_b32 v{t2}, 4, v{t2}')
            c.op(f'v_add_u32 v{t1}, s{sT2}, v{t1}')
            c.op(f'v_mul_u32_u24 v{t1}, 1280, v{t1}')
            c.op(f'v_add_u32 v{vOFFS[j]}, v{t1}, v{t2}')
    else:
        c.op(f's_lshl_b32 s{sT0}, s{sB}, 5'); c.op(f's_lshl_b32 s{sT1}, s{sX}, 2'); c.op(f's_add_u32 s{sT0}, s{sT0}, s{sT1}')
        c.op(f's_mul_i32 s{sT0}, s{sT0}, {O_HEAD}')
        srd(c, SD, 12, 13, f's{sT0}', 4 * O_HEAD)
        c.op(f's_mov_b32 s{sSTR}, 18432')
        hs = O_HEAD
        c.op(f's_mul_i32 s{sT2}, s{sDG}, 5120')
        c.op(f'v_lshlrev_b32 v{t0}, 4, {L}')
        c.op(f'v_add_u32 v{t0}, s{sT2}, v{t0}')
        for j in range(5): c.op(f'v_add_u32 v{vOFFS[j]}, {j * 1024}, v{t0}')
    c.op(f's_mul_i32 s{sM0T}, s{sDG}, 5120')
    if qh: c.op(f's_add_u32 s{sM0T}, s{sM0T}, 61440')
    for i in range(4):
        c.op(f's_add_u32 s{sT0}, s{sJ}, {i}'); c.op(f's_and_b32 s{sT0}, s{sT0}, 3'); c.op(f's_mul_i32 s{sHB+i}, s{sT0}, {hs}')
    c.op(f's_and_b32 s{sNH}, s{sW}, 1')
    c.op(f'v_lshrrev_b32 v{t0}, 2, {L}')
    c.op(f'v_mul_u32_u24 v{t0}, 320, v{t0}')
    c.op(f'v_and_b32 v{t1}, 3, {L}'); c.op(f'v_lshlrev_b32 v{t1}, 3, v{t1}')
    c.op(f'v_add_u32 v{t0}, v{t0}, v{t1}')
    c.op(f'v_bfe_u32 v{t1}, {L}, 4, 1')
    c.op(f's_mul_i32 s{sT0}, s{sNH}, 5')
    for t in range(5):
        c.op(f's_add_u32 s{sT1}, s{sT0}, {t}')
        c.op(f'v_xor_b32 v{t2}, s{sT1}, v{t1}')
        c.op(f'v_lshlrev_b32 v{t2}, 5, v{t2}')
        c.op(f'v_add_u32 v{vA2[t]}, v{t0}, v{t2}')
    c.op(f's_lshr_b32 s{sT0}, s{sW}, 1')
    c.op(f's_mov_b32 s{sT1}, 0x7350')
    c.op(f's_lshl_b32 s{sT0}, s{sT0}, 2')
    c.op(f's_lshr_b32 s{sQ0}, s{sT1}, s{sT0}')
    c.op(f's_and_b32 s{sQ0}, s{sQ0}, 15')
    c.op(f's_lshl_b32 s{sT0}, s{sQ0}, 10')
    c.op(f's_add_u32 s{sT0}, s{sT0}, 61440')
    c.op(f'v_lshlrev_b32 v{vB2}, 4, {L}')
    c.op(f'v_add_u32 v{vB2}, s{sT0}, v{vB2}')
    c.op(f's_lshl_b32 s{sT0}, s{sB}, 3'); c.op(f's_add_u32 s{sT0}, s{sT0}, s{sX}'); c.op(f's_lshl_b32 s{sT0}, s{sT0}, 7'); c.op(f's_add_u32 s{sT0}, s{sT0}, {FLAG_OFF + 4096}')
    c.op(f's_add_u32 s{sF1}, s12, s{sT0}'); c.op(f's_addc_u32 s{sF1+1}, s13, 0')
    c.op(f's_lshl_b32 s{sT0}, s{sLOC}, 7'); c.op(f's_add_u32 s{sT0}, s{sT0}, {FLAG_OFF + 16384}')
    c.op(f's_add_u32 s{sF2}, s12, s{sT0}'); c.op(f's_addc_u32 s{sF2+1}, s13, 0')
    c.op(f's_mul_i32 s{sT0}, s{sLOC}, {8 * PART2}'); c.op(f's_add_u32 s{sT0}, s{sT0}, {WS_PART}')
    srd(c, SPR, 12, 13, f's{sT0}', 8 * PART2)
    c.op(f's_mul_i32 s{sT1}, s{sX}, {PART2}'); c.op(f's_add_u32 s{sT0}, s{sT0}, s{sT1}')
    srd(c, SP, 12, 13, f's{sT0}', PART2)
    srd(c, SOUT, 54, 55, None, 1474560)
    return c.ops

def tail_dma(em, s, orole=False):
    ops = []
    sc = ' sc1' if (orole and cfg.sc_ol) else ''
    for j in range(5):
        def f(j=j):
            em.op(f's_add_u32 m0, s{sM0T}, {(s % 3) * 20480 + j * 1024}')
            if j == 0:
                if s % 3 == 0: em.op(f's_mov_b32 s{sOFF}, s{sHB + s // 3}')
                else: em.op(f's_add_u32 s{sOFF}, s{sOFF}, s{sSTR}')
            em.op(f'buffer_load_dwordx4 v{vOFFS[j]}, {sr(SD,4)}, s{sOFF} offen{sc} lds', tag=f'T{s}')
        ops.append(f)
    return ops

def flag_store(em, base, idx_s, lab, wave):
    t0, t1 = 50, 51
    em.op(f's_cmp_eq_u32 s{sW}, {wave}')
    em.op(f's_cbranch_scc0 {lab}')
    em.begin_opt()
    em.op(f's_lshl_b32 s{sT0}, s{idx_s}, 2')
    em.op(f'v_mov_b32 v{t0}, s{sT0}')
    em.op(f'v_mov_b32 v{t1}, s{sTAG}')
    em.op('s_mov_b64 exec, 1')
    em.op(f'global_store_dword v{t0}, v{t1}, s[{base}:{base+1}] sc1')
    em.op('s_mov_b64 exec, -1')
    em.end_opt()
    em.label(lab)

def poll(em, base, mask, lab):
    t0, t1 = 52, 53
    em.op(f'v_and_b32 v{t0}, {mask}, v{vLANE}')
    em.op(f'v_lshlrev_b32 v{t0}, 2, v{t0}')
    em.op(f's_mov_b32 s{sCNT}, 0x20000')
    em.wait_vm0()
    em.label(lab)
    em.op(f'global_load_dword v{t1}, v{t0}, s[{base}:{base+1}] sc1')
    em.op(f's_sub_u32 s{sCNT}, s{sCNT}, 1')
    em.op(f's_cbranch_scc1 {lab}_done')
    em.wait_vm0()
    em.op(f'v_cmp_ne_u32 vcc, s{sTAG}, v{t1}')
    em.op('s_nop 4')
    em.op(f's_cbranch_vccz {lab}_done')
    em.op('s_sleep 1')
    em.op(f's_branch {lab}')
    em.label(f'{lab}_done')
    em.wait_vm0()

def tail(em, tv):
    nq = 3 if tv == 0 else 2
    orole = tv == 2
    L = f'v{vLANE}'
    rf = cfg.rfrac / 100
    sc = ' sc1' if cfg.sc else ''
    ACC2 = 116; AF = [76, 96]; BF = [16, 28]; CO = 176
    t0, t1, t2, t3 = 40, 41, 42, 43
    em.op(f'v_lshlrev_b32 v{t0}, 4, v0')
    em.op(f'v_add_u32 v{t1}, 61440, v{t0}')
    npc = 3 if tv == 0 else 2
    k = 0; sts = []
    for c in range(3):
        for i in range(npc):
            va, off = t1, c * 20480
            em.op(f'ds_read_b128 {vr(CO + 4*k)}, v{va} offset:{off + i * 8192}')
            sts.append((CO + 4*k, c * 18432 + i * 8192)); k += 1
    def reads(s, step, st_):
        ops = []
        for t in range(5):
            ops.append(f'ds_read_b64_tr_b16 {vr(AF[st_] + 4*t, 2)}, v{vA2[t]} offset:{(s % 3) * 20480 + step * 10240}')
            ops.append(f'ds_read_b64_tr_b16 {vr(AF[st_] + 4*t + 2, 2)}, v{vA2[t]} offset:{(s % 3) * 20480 + step * 10240 + 5120}')
        xs = [f'ds_read_b128 {vr(BF[st_] + 4*j)}, v{vB2} offset:{(s % 3) * 20480 + step * 9216 + j * 1024}' for j in range(nq)]
        return ops[0:2] + xs + ops[2:]
    def mf(st_, first):
        return [mfma(ACC2 + 4*(t*nq+j), AF[st_] + 4*t, BF[st_] + 4*j, None if first else ACC2 + 4*(t*nq+j)) for t in range(5) for j in range(nq)]
    for r, off in sts:
        em.op(f's_mov_b32 s{sT0}, {off}')
        em.op(f'buffer_store_dwordx4 {vr(r)}, v{t0}, {sr(SO,4)}, s{sT0} offen' + ['', ' sc1', ' nt', ' sc0'][cfg.sc_o], tag='CO')
    for o in reads(0, 0, 0): em.op(o)
    carry = []
    for s in range(12):
        interleave(em, mf(0, s == 0), (reads(s, 1, 1), 0, rf), (carry, 0.05, 0.95))
        carry = []
        if s < 11:
            if s == 0: em.wait_vm0(); em.wait_lgkm0()
            else: em.wait_vm_tag(f'T{s+1}', lgkm0=True)
            em.barrier()
            em.st.stamp(f'T{s}')
        else:
            em.wait_lgkm0(); em.barrier()
        if s == 0 and orole: flag_store(em, sF1, sJ, 'L_f1', 4)
        fill = []; dm = []
        if s < 11:
            fill += reads(s + 1, 0, 0)
        if s + 3 <= 11:
            if not orole or s >= 2:
                dm = tail_dma(em, s + 3, orole); dm, carry = dm[:3], dm[3:]
            elif s == 1:
                poll(em, sF1, 3, 'L_p1')
                em.st.stamp('poll')
                for f in tail_dma(em, 3, True): f()
                dm = tail_dma(em, 4, True)
        interleave(em, mf(1, False), (dm, 0.05, 0.95), (fill, 0, rf))
    em.st.stamp('TP')
    em.op(f'v_and_b32 v{t1}, 15, {L}'); em.op(f'v_mul_u32_u24 v{t1}, 336, v{t1}')
    em.op(f'v_lshrrev_b32 v{t2}, 4, {L}'); em.op(f'v_lshlrev_b32 v{t2}, 3, v{t2}')
    em.op(f's_mul_i32 s{sT0}, s{sQ0}, {16 * 336}'); em.op(f's_mul_i32 s{sT1}, s{sNH}, 160'); em.op(f's_add_u32 s{sT0}, s{sT0}, s{sT1}')
    em.op(f'v_add3_u32 v{t1}, v{t1}, v{t2}, s{sT0}')
    em.op(f's_mov_b32 s{sT2}, 52429')
    pre = []
    for i in range(6):
        r = 176 + i
        pre += [f'v_add_u32 v{r}, {512 * i}, v0', f'v_mul_lo_u32 v{t2}, v{r}, s{sT2}', f'v_lshrrev_b32 v{t2}, 20, v{t2}', f'v_add_lshl_u32 v{r}, v{r}, v{t2}, 4']
    for o in pre: em.op(o)
    for t in range(5):
        for j in range(nq):
            a = ACC2 + 4*(t*nq+j)
            em.op(f'v_cvt_pk_bf16_f32 v{a}, v{a}, v{a+1}')
            em.op(f'v_cvt_pk_bf16_f32 v{a+1}, v{a+2}, v{a+3}')
            em.op(f'ds_write_b64 v{t1}, {vr(a,2)} offset:{j * 16 * 336 + t * 32}')
    em.wait_lgkm0(); em.barrier()
    for i in range(6): em.op(f'ds_read_b128 {vr(76 + 4*i)}, v{176 + i}')
    for i in range(6):
        em.op(f's_mov_b32 s{sT0}, {i * 8192}')
        em.op(f'buffer_store_dwordx4 {vr(76 + 4*i)}, v{t0}, {sr(SP,4)}, s{sT0} offen{sc}')
    em.op(f's_mul_i32 s{sT0}, s{sX}, 5760')
    em.op(f'v_add_u32 v{t1}, s{sT0}, v{t0}')
    em.op(f'v_mul_lo_u32 v{t2}, v0, s{sT2}'); em.op(f'v_lshrrev_b32 v{t2}, 20, v{t2}')
    em.op(f'v_mul_u32_u24 v{t2}, 960, v{t2}')
    em.op(f's_mul_i32 s{sT0}, s{sB}, 144'); em.op(f's_mul_i32 s{sT1}, s{sX}, 18'); em.op(f's_add_u32 s{sT0}, s{sT0}, s{sT1}')
    em.op(f's_mul_i32 s{sT0}, s{sT0}, 1280'); em.op(f's_mul_i32 s{sT1}, s{sJ}, 320'); em.op(f's_add_u32 s{sT0}, s{sT0}, s{sT1}')
    em.op(f'v_add3_u32 v{t2}, v{t2}, v{t0}, s{sT0}')
    em.op(f'v_mov_b32 v{t3}, 0x7ffffff0')
    em.op(f'v_cmp_gt_u32 vcc, 360, v0')
    em.op(f'v_cndmask_b32 v{t2}, v{t3}, v{t2}, vcc')
    em.wait_vm0(); em.barrier()
    em.st.stamp('TW')
    if tv == 2:
        flag_store(em, sF2, sX, 'L_f2', 7)
        em.op(f's_cmp_ge_u32 s{sW}, 6')
        em.op(f's_cbranch_scc1 L_fin2')
    poll(em, sF2, 7, f'L_p2_{tv}')
    em.st.stamp('TF')
    for x in range(8):
        em.op(f's_mov_b32 s{sT0}, {x * PART2}')
        em.op(f'buffer_load_dwordx4 {vr(76 + 4*x)}, v{t1}, {sr(SPR,4)}, s{sT0} offen{sc}')
    if tv == 0:
        em.op(f's_or_b32 s{sT0}, s{sH}, s{sW}')
        em.op(f's_cmp_eq_u32 s{sT0}, 0')
        em.op('s_cbranch_scc0 L_nw')
        em.begin_opt()
        em.op(f's_lshl_b32 s{sT0}, s{sB}, 8'); em.op(f's_add_u32 s{sT0}, s{sT0}, {FLAG_OFF}')
        em.op(f'v_mov_b32 v60, s{sT0}'); em.op(f'v_mov_b32 v61, s{sTAG}')
        em.op('s_mov_b64 exec, 1')
        em.op('global_store_dword v60, v61, s[12:13]')
        em.op('s_mov_b64 exec, -1')
        em.end_opt()
        em.label('L_nw')
    A = 108
    for x in range(8):
        for d in range(4):
            r = 76 + 4*x + d
            if x == 0:
                em.op(f'v_lshlrev_b32 v{A+2*d}, 16, v{r}'); em.op(f'v_and_b32 v{A+2*d+1}, 0xffff0000, v{r}')
            else:
                em.op(f'v_lshlrev_b32 v{A+8}, 16, v{r}'); em.op(f'v_and_b32 v{A+9}, 0xffff0000, v{r}')
                em.op(f'v_pk_add_f32 {vr(A+2*d,2)}, {vr(A+2*d,2)}, {vr(A+8,2)}')
    for d in range(4): em.op(f'v_cvt_pk_bf16_f32 v{A+d}, v{A+2*d}, v{A+2*d+1}')
    em.op(f'buffer_store_dwordx4 {vr(A)}, v{t2}, {sr(SOUT,4)}, 0 offen')
    em.st.stamp('TL')
    if cfg.x_ren:
        em.op('v_mov_b32 v116, s84')
        em.op('global_load_dword v117, v116, s[86:87] sc1')
        em.op('v_readfirstlane_b32 s85, v117')
        em.op('s_bcnt1_i32_b32 s85, s85')
        em.op('s_cmp_gt_u32 s85, 1')
        em.op(f's_cbranch_scc0 L_ren{tv}')
        em.op('s_mov_b32 s85, 600')
        em.label(f'L_rend{tv}')
        em.op('s_sleep 1'); em.op('s_sub_u32 s85, s85, 1'); em.op('s_cmp_lg_u32 s85, 0'); em.op(f's_cbranch_scc1 L_rend{tv}')
        em.label(f'L_ren{tv}')
    if tv == 2: em.label('L_fin2')
    if cfg.diag: em.wait_vm0()
    em.st.flush(12, 0, sW, 244)
    em.op('s_endpgm')

def kernel_header(name):
    return f'.globl {name}\n.p2align 8\n.type {name},@function\n{name}:\n'
def kernel_desc(name, vgpr, sgpr=102):
    return f'''.amdhsa_kernel {name}
  .amdhsa_next_free_vgpr {vgpr}
  .amdhsa_next_free_sgpr {sgpr}
  .amdhsa_accum_offset {(vgpr + 3) // 4 * 4}
  .amdhsa_group_segment_fixed_size 0
  .amdhsa_kernarg_size 64
  .amdhsa_user_sgpr_count 2
  .amdhsa_user_sgpr_kernarg_segment_ptr 1
  .amdhsa_system_sgpr_workgroup_id_x 1
.end_amdhsa_kernel
'''

def gen_k1():
    em = Em()
    k1_prologue(em)
    st0 = em.save()
    em.label('k1_body_start')
    for qh in range(2):
        sts = []
        for typ in ((1, 0) if cfg.n0 else (0,)):
            if qh or typ == 0 and cfg.n0: em.label(f'L_qp{qh}{typ}')
            em.restore(st0)
            em.typ = typ
            k1_qproj(em, qh, typ)
            k1_qk(em, qh)
            sts.append(em.save())
            if typ == 1: em.op(f's_branch L_sm{qh}')
        if len(sts) == 2:
            t = [[e[0] for e in s[2]] for s in sts]
            lo, hi = sorted(range(2), key=lambda i: len(t[i]))
            assert t[hi][len(t[hi]) - len(t[lo]):] == t[lo], t
            em.restore(sts[hi]); em.hist = []
            em.label(f'L_sm{qh}')
        k1_sm0(em, qh)
        k1_pv(em, qh)
    em.label('k1_body_end')
    em.label('L_k1_exit')
    em.op('s_endpgm')
    return em

def main():
    ref = open('cdna_kernels/' + NAME + '.s.ref').read().split('\n')
    head = [l for l in ref[:9]]
    k1 = gen_k1()
    KN = NAME + '_kernel'
    out = '\n'.join(head) + '\n'
    out += f'; @launch grid=(256,1,1) block=(512,1,1) lds={LDS1}\n'
    out += '.amdgcn_target "amdgcn-amd-amdhsa--gfx950"\n.text\n'
    out += kernel_header(KN) + k1.text()
    out += '.section .rodata,"a"\n.p2align 6\n' + kernel_desc(KN, 256)
    open(sys.argv[1], 'w').write(out)
    print('k1 instrs', k1.count, 'nops', k1.nops, file=sys.stderr)
main()
```

```python
import sys, struct, math
from em import Em, interleave, emit

NAME = 'standalone__gqa_block_cached__near_ridge'
def fbits(x): return struct.unpack('<I', struct.pack('<f', x))[0]

class Cfg:
    nt_kv = True
    nt_w = False
    nt_k2 = False
    two_types = True
    pre = True
    code_pre = True
    diag = False
    pk = True
    rfrac = 60
    prio = 0
    x_noexp = 0
    x_nopw = 0
    efrac = 95
    loopb = -1
    st = 0
    dbg = 0
    n0 = 2
    inpv0 = 0
    inpv1 = 0
    pfa = 5
    kq = 12
    kq0 = 7
    wont = 0
    vrf = 60
    x_ren = 0
    vrole = 1
    vfirst = 0
    vold = 0
    vh0 = 12
    wsoff = 0
    cearly = 0
    nt_k = 1
    nt_v = 1
    eager = 3
    eagerv = 0
    qwi = 1
    g2lo = 0
    g2hi = 30
    valo = 0
    vahi = 60
    pf1 = 10
    v0e = 0
    kqb = 0
    kqb0 = 7
    vb = 0
    vreg = 0
    nvy = 4
    sc_o = 1
    sc_ol = 1
    rt = 0
    qloop = 0
    x_qnodma = 0
    x_qnord = 0
    dlo = 10
    dhi = 95
    dsplit = 3
    x_delay = 0
    wopre = 1
    sc = 1
    x_nobar = 0
    x_nord = 0
    x_nodma = 0
cfg = Cfg()
cfg.pvst = (3,7); cfg.qst = (0,8,)
if 'pvall=1' in sys.argv: sys.argv.remove('pvall=1'); cfg.pvst = (0,1,2,3,4,5,6,7); cfg.qst = (); cfg.fewst = True
else: cfg.fewst = False
for a in sys.argv[2:]:
    k, v = a.split('='); setattr(cfg, k, type(getattr(cfg, k))(int(v)))
STSETS = {0: 'S0 BQ BM PV0 BO T0 T2 TP TW TF', 1: 'ka pi si S0 B0 B8 BQ K0 K1 QKend BM exp0 PV0', 2: 'PV0 PB0 PB1 PB2 PB3 PB4 PB5 PB6 PB7 BO', 3: 'BO T0 T1 poll T2 T3 T10 TP TW TF', 4: 'K0 K1 QKend BM exp0 PV0 PB3 PB7 BO T0', 8: '', 5: 'S0 LB0 LBend BQ', 6: 'S0 B0 B1 B2 B3 B5 B7 B8 B9 BQ', 7: 'BO T0 T1 T2 T3 T4 T6 T8 T10 TP'}
cfg.stlist = ['rt0', 'start'] + STSETS[cfg.st].split()[:10] + ['end', 'rt_end']
cfg.pvst = range(8); cfg.qst = range(10)

def vr(b, n=4): return f'v[{b}:{b + n - 1}]' if n > 1 else f'v{b}'
def sr(b, n): return f's[{b}:{b + n - 1}]'
MF = 'v_mfma_f32_16x16x32_bf16'
def mfma(d, a, b, c=None):
    return f'{MF} {vr(d)}, {vr(a)}, {vr(b)}, ' + ('0' if c is None else vr(c))

FLAG_OFF = 28 << 20
PART2 = 46080
O_HEAD = 55296
WS_PART = 16 << 20
PART_TILE = 90 * 1024

def srd(em, d, base_lo, base_hi, off_sgpr, size):
    if off_sgpr is None:
        em.op(f's_mov_b32 s{d}, s{base_lo}'); em.op(f's_mov_b32 s{d+1}, s{base_hi}')
    else:
        em.op(f's_add_u32 s{d}, s{base_lo}, {off_sgpr}'); em.op(f's_addc_u32 s{d+1}, s{base_hi}, 0')
    em.op(f's_mov_b32 s{d+2}, {size}')
    em.op(f's_mov_b32 s{d+3}, 0x20000')

_lab = [0]
DIAG_OFF = 64 << 20
class Stamps:
    def __init__(self, em):
        self.em = em; self.n = 0; self.names = []
        if cfg.diag:
            for i in range(len(cfg.stlist)): em.op(f's_mov_b32 s{60 + 2*i}, 0')
    def stamp(self, name, real=False):
        if not cfg.diag or name not in cfg.stlist: return
        em = self.em; i = cfg.stlist.index(name)
        em.wait_lgkm0()
        em.op(('s_memrealtime' if (real or cfg.rt) else 's_memtime') + f' s[{60 + 2*i}:{61 + 2*i}]')
        em.op('s_waitcnt lgkmcnt(0)')
    def flush(self, ws_lo, kidx, wave_s, tv):
        if not cfg.diag: return
        em = self.em
        self.stamp('end'); self.stamp('rt_end', real=True)
        if cfg.dbg:
            _lab[0] += 1
            em.op('s_load_dwordx2 s[56:57], s[0:1], 48')
            em.op(f's_and_b32 s58, s2, 0xdf'); em.op(f's_or_b32 s58, s58, s{wave_s}'); em.op('s_cmp_eq_u32 s58, 0')
            em.op('s_waitcnt lgkmcnt(0)')
            em.op(f's_cbranch_scc0 L_dbg{_lab[0]}')
            em.op(f'v_mov_b32 v{tv}, s2')
            for k, i in enumerate([2, 3, 4, 13, 6, 9, 11, 12]):
                em.op(f's_sub_u32 s58, s{60 + 2*i}, s{60 if i == 13 else 62}')
                em.op(f'v_mov_b32 v{tv+1}, s58')
                em.op(f'global_store_dword v{tv}, v{tv+1}, s[56:57] offset:{4*k}')
            em.label(f'L_dbg{_lab[0]}')
            return
        em.op(f's_lshl_b32 s56, s2, 3'); em.op(f's_add_u32 s56, s56, s{wave_s}'); em.op('s_lshl_b32 s56, s56, 7')
        em.op(f's_add_u32 s56, s56, {DIAG_OFF + (kidx << 20)}')
        em.op(f's_add_u32 s56, s{ws_lo}, s56'); em.op(f's_addc_u32 s57, s{ws_lo+1}, 0')
        em.op(f'v_mov_b32 v{tv}, 0')
        for i in range(len(cfg.stlist)):
            em.op(f'v_mov_b32 v{tv+1}, s{60 + 2*i}')
            em.op(f'global_store_dword v{tv}, v{tv+1}, s[56:57] offset:{4*i}')
        print('stamps', kidx, cfg.stlist, file=sys.stderr)

SX, SWQ, SK, SV, SO = 16, 20, 24, 28, 32
sW, sW3072, sW1024, sTYPE, sOFF, sT0, sT1, sT2, sC, sB, sH, sJ, sLOC, sX = 36, 37, 38, 39, 40, 41, 42, 43, 44, 52, 46, 47, 48, 53
vLANE, vXO, vWO, vK0, vK1, vVO = 1, 2, 3, 4, 5, 6
vRA = [7, 8]
vRB = [9, 10, 11]
vRC = [12, 13, 14]
vT = 15
vOW = [104, 105, 106]
vVW, vVW2 = 7, 8
vPA, vPW, vMS = 240, 242, 243
vPW2 = 241
TMP = list(range(244, 256))
STG = 43008
PBASE, VBASE, MAXB, SUMB = 0, 55296, 153600, 155648
NV = 4
def vslot(s): return [3, 1, 2, 0][s % 4]
LDS1 = SUMB + 12 * 512
def kop(kt, ks): return 16 + 4 * (kt * 6 + ks)
def sreg(kt, qt):
    if kt < 2: return 116 + 4 * (qt * 2 + kt)
    i = qt * 2 + (kt - 2)
    return 16 + 4 * i if i < 12 else 188 + 4 * (i - 12)
ACC = 116
MC = 212
SUM = 221
SUMP = 222
QF = 224
OACC0 = [116 + 4*i for i in range(15)]
OACC1 = [120 + 8*i for i in range(9)] + [112, 2, 248]
PAF0 = [[176, 180, 184], [20, 28, 36]]
PAF1 = [[20, 28, 36], [44, 52, 60]]
PBF0 = [[44, 52, 60, 192, 200], [208, 112, 2, 248, 252]]
PBF1 = [[192, 200, 208, 252], [216, 220, 224, 228]]
INV0 = 230
NEXP1 = 4


sKB = 57
vKR = [250, 251]
vVO3 = 252
def k_dma_ops(em, half):
    nt = ' nt' if cfg.nt_kv and cfg.nt_k else ''
    ops = []
    for c in range(3):
        for k in range(2):
            for p in range(2):
                def f(c=c, k=k, p=p):
                    em.op(f's_add_u32 m0, s{sKB}, {(k * 3 + c) * 2048 + p * 1024 - c * 128}')
                    em.op(f's_mov_b32 s{sOFF}, {(half * 2 + k) * 6144}')
                    em.op(f'buffer_load_dwordx4 v{vK1 if p else vK0}, {sr(SK,4)}, s{sOFF} offen offset:{c*128}{nt} lds', tag=f'K{half}_{c * 2 + k}')
                ops.append(f)
    return ops
def k_rd_ops(half, u):
    c, k = divmod(u, 2)
    return [f'ds_read_b128 {vr(kop(half * 2 + k, 2 * c + e))}, v{vKR[e]} offset:{(k * 3 + c) * 2048}' for e in range(2)]
def k_fetch(em, half, nxt):
    for u in range(6):
        em.wait_vm_tag(f'K{half}_{u}')
        for o in k_rd_ops(half, u): em.op(o)
        if nxt and u:
            em.waitcnt(lgkm=2); em.lgkm = em.lgkm[-2:]
            for f in nxt[2 * u - 2: 2 * u]: f()
    if nxt:
        em.wait_lgkm0()
        for f in nxt[10:12]: f()
def va_ops(em):
    nt = ' nt' if cfg.nt_kv and cfg.nt_v else ''
    ops = []
    for rg in range(4):
        for c in range(3):
            def f(c=c, rg=rg):
                em.op(f's_add_u32 m0, s{sKB}, {rg * 3072 + c * 896}')
                em.op(f's_mov_b32 s{sOFF}, {rg * 3072}')
                em.op(f'buffer_load_dwordx4 v{vVO3}, {sr(SV,4)}, s{sOFF} offen offset:{c*128}{nt} lds', tag='VA')
            ops.append(f)
    return ops

def stage_dma_ops(em, s, qh):
    nt = ' nt' if cfg.nt_w else ''
    slot = (s % 3) * 18432
    ops = []
    for c in range(3):
        def f(c=c):
            em.op(f's_add_u32 m0, s{sW3072}, {VBASE + (s % 3) * 24576 + c * 896}')
            if c == 0: em.op(f's_mov_b32 s{sOFF2}, {s * 786432}')
            em.op(f'buffer_load_dwordx4 v{vWO}, {sr(SWQ,4)}, s{sOFF2} offen offset:{c*128}{nt} lds', tag=f'S{s}')
        ops.append(f)
    for j in range(2):
        def f(j=j):
            em.op(f's_add_u32 m0, s{sW1024}, {slot + j * 8192}')
            em.op(f's_mov_b32 s{sOFF}, {s * 128 + j * 81920}')
            em.op(f'buffer_load_dwordx4 v{vXO}, {sr(SX,4)}, s{sOFF} offen{nt} lds', tag=f'S{s}')
        ops.append(f)
    if qh == 1:
        def f():
            _lab[0] += 1
            lab = f'L_x{_lab[0]}'
            em.op(f's_cmp_lt_u32 s{sW}, 6')
            em.op(f's_cbranch_scc0 {lab}')
            em.begin_opt()
            em.op(f's_add_u32 m0, s{sW1024}, {slot + 12288}')
            em.op(f's_mov_b32 s{sOFF}, {s * 128 + 122880}')
            em.op(f'buffer_load_dwordx4 v{vXO}, {sr(SX,4)}, s{sOFF} offen{nt} lds', tag=f'S{s}')
            em.end_opt()
            em.label(lab)
        ops.insert(0, f)
    return ops

def v_dma_ops(em, s):
    nt = ' nt' if cfg.nt_kv and cfg.nt_v else ''
    ops = []
    for c in range(3):
        def f(c=c):
            em.op(f's_add_u32 m0, s{sW3072}, {VBASE + vslot(s) * 24576 + c * 896}')
            em.op(f's_mov_b32 s{sOFF}, {(128 * (s & 3) + 32 * (s >> 2)) * 384}')
            em.op(f'buffer_load_dwordx4 v{vVO}, {sr(SV,4)}, s{sOFF} offen offset:{c*128}{nt} lds', tag=f'V{s}')
        ops.append(f)
    return ops

sDG = 49
sPFS, sPFB = 45, 50
sOFF2 = 3
vPF = 241
def pf_ops():
    if not cfg.pre: return []
    nt = ' nt' if cfg.nt_w else ''
    return [f'global_load_dwordx4 {vr(112)}, v{vPF}, s[{sPFB}:{sPFB+1}]{nt}', f'v_add_u32 v{vPF}, s{sPFS}, v{vPF}']
sTAG, sSTR, sF1, sF2, sHB, sM0T, sQ0, sNH, sCNT = 88, 89, 90, 92, 94, 98, 99, 100, 101
VST = 64
def v_reg_ops(em):
    nt = ' nt' if cfg.nt_kv and cfg.nt_v else ''
    ops = []
    for s in range(4, 8):
        for c in range(3):
            def f(s=s, c=c):
                em.op(f's_mov_b32 s{sOFF}, {(128 * (s & 3) + 32 * (s >> 2)) * 384}')
                em.op(f'buffer_load_dwordx4 {vr(VST + 4 * ((s - 4) * 3 + c))}, v{vVO}, {sr(SV,4)}, s{sOFF} offen offset:{c*128}{nt}', tag=f'V{s}')
            ops.append(f)
    return ops
def v_put_ops(s):
    slot = vslot(s)
    return [f'ds_write_b128 v{vVW if slot < 2 else vVW2}, {vr(VST + 4 * ((s - 4) * 3 + c))} offset:{(slot % 2) * 24576 + c * 1024}' for c in range(3)]

vPF2 = 254
VTMP = [248, 249, 253]
def pf2_ops():
    nt = ' nt' if cfg.nt_w else ''
    return [f'global_load_dwordx4 {vr(112)}, v{vPF2}, s[{sPFB}:{sPFB+1}]{nt}', f'v_add_u32 v{vPF2}, s{sPFS}, v{vPF2}']

def k1_prologue(em):
    em.op('s_cmp_ge_u32 s2, 256')
    em.op('s_cbranch_scc1 L_k1_exit')
    em.st = Stamps(em); em.st.stamp('rt0', real=True); em.st.stamp('start')
    em.op('s_load_dwordx8 s[4:11], s[0:1], 0')
    em.op('s_load_dwordx2 s[12:13], s[0:1], 56')
    em.op('s_load_dwordx2 s[14:15], s[0:1], 32')
    em.op('s_load_dwordx2 s[54:55], s[0:1], 40')
    em.op(f'v_and_b32 v{vLANE}, 63, v0')
    em.op(f'v_lshrrev_b32 v{vT}, 6, v0')
    em.op(f's_and_b32 s{sX}, s2, 7')
    em.op(f's_lshr_b32 s{sLOC}, s2, 3')
    em.op(f'v_readfirstlane_b32 s{sW}, v{vT}')
    t0, t1, t2, t3, t4, t5 = TMP[:6]
    L = f'v{vLANE}'
    em.op(f's_and_b32 s{sJ}, s{sLOC}, 3')
    em.op(f's_lshr_b32 s{sB}, s{sLOC}, 2')
    em.op(f's_lshl_b32 s{sH}, s{sX}, 2')
    em.op(f's_add_u32 s{sH}, s{sH}, s{sJ}')
    em.op(f's_and_b32 s{sTYPE}, s{sB}, 1')
    em.op(f's_lshl_b32 s{sT0}, s{sLOC}, 1'); em.op(f's_mul_i32 s{sT0}, s{sT0}, 12288'); em.op(f's_mul_i32 s{sT1}, s{sX}, 1536'); em.op(f's_add_u32 s{sT0}, s{sT0}, s{sT1}')
    em.op(f's_lshl_b32 s{sT1}, s{sW}, 9'); em.op(f's_add_u32 s{sT0}, s{sT0}, s{sT1}')
    em.op(f'v_lshrrev_b32 v{t3}, 5, {L}'); em.op(f'v_mul_u32_u24 v{t3}, 12288, v{t3}')
    em.op(f'v_and_b32 v{t4}, 31, {L}'); em.op(f'v_lshlrev_b32 v{t4}, 4, v{t4}')
    em.op(f'v_add3_u32 v{t5}, v{t3}, v{t4}, s{sT0}')
    em.op(f'v_lshrrev_b32 v{t0}, 3, {L}')
    em.op(f'v_and_b32 v{t1}, 7, {L}')
    em.op(f'v_lshrrev_b32 v{t2}, 4, {L}')
    em.op(f's_mul_i32 s{sT0}, s{sLOC}, 36'); em.op(f's_lshl_b32 s{sT2}, s{sW}, 3'); em.op(f's_add_u32 s{sT0}, s{sT0}, s{sT2}'); em.op(f's_sub_u32 s{sT0}, s{sT0}, 24')
    em.op(f'v_add_u32 v{t3}, s{sT0}, v{t0}')
    em.op(f's_cmp_lt_u32 s{sW}, 3')
    em.op(f's_cselect_b64 vcc, -1, 0')
    em.op(f's_movk_i32 s{sPFS}, 128')
    em.op(f's_cselect_b32 s{sPFS}, 786432, s{sPFS}')
    for dst, dr, dw in ((vPF, 0, 0), (vPF2, 144, 98304)):
        if dst == vPF2 and cfg.pf1 >= 10: continue
        em.op(f'v_add_u32 v{t4}, {dr}, v{t3}'); em.op(f'v_min_u32 v{t4}, 1151, v{t4}')
        em.op(f'v_mul_u32_u24 v{t4}, 1280, v{t4}')
        em.op(f'v_lshl_add_u32 v{t4}, v{t1}, 4, v{t4}')
        em.op(f'v_add_u32 v{dst}, {dw}, v{t5}')
        em.op(f'v_cndmask_b32 v{dst}, v{t4}, v{dst}, vcc')
    if cfg.pf1 < 10:
        em.op(f's_mul_i32 s{sT0}, s{sPFS}, {cfg.pf1}'); em.op(f'v_add_u32 v{vPF2}, s{sT0}, v{vPF2}')
    em.op(f's_and_b32 s{sDG}, s{sW}, 3')
    em.op(f's_mul_i32 s{sW3072}, s{sW}, 3072')
    em.op(f's_lshl_b32 s{sW1024}, s{sW}, 10')
    em.op(f's_and_b32 s{sT0}, s{sW}, 1')
    em.op(f's_lshl_b32 s{sT1}, s{sT0}, 2')
    em.op(f'v_add_u32 v{t3}, s{sT1}, v{t2}')
    em.op(f'v_xor_b32 v{t3}, v{t3}, v{t1}')
    em.op(f'v_add_u32 v{t4}, s{sT2}, v{t0}')
    em.op(f'v_mul_u32_u24 v{vXO}, 1280, v{t4}')
    em.op(f'v_lshl_add_u32 v{vXO}, v{t3}, 4, v{vXO}')
    em.op(f'v_and_b32 v{t3}, 1, v{t2}')
    em.op(f'v_lshl_add_u32 v{t3}, v{t3}, 1, s{sT1}')
    em.op(f'v_xor_b32 v{t3}, v{t3}, v{t1}')
    em.op(f'v_mul_u32_u24 v{vWO}, 12288, v{t4}')
    em.op(f'v_lshl_add_u32 v{vWO}, v{t3}, 4, v{vWO}')
    em.op(f's_lshl_b32 s{sT2}, s{sW}, 6')
    em.op(f'v_add_u32 v{t4}, s{sT2}, v{t0}')
    em.op(f'v_mul_u32_u24 v{t4}, 384, v{t4}')
    em.op(f'v_xor_b32 v{t3}, v{t2}, v{t1}')
    em.op(f'v_lshl_add_u32 v{vK0}, v{t3}, 4, v{t4}')
    em.op(f'v_xor_b32 v{vK1}, 64, v{vK0}')
    em.op(f'v_add_u32 v{vK1}, {8 * 384}, v{vK1}')
    em.op(f'v_lshlrev_b32 v{t3}, 1, v{t2}')
    em.op(f'v_xor_b32 v{t3}, v{t3}, v{t1}')
    em.op(f'v_lshl_add_u32 v{vVO3}, v{t3}, 4, v{t4}')
    em.op(f's_and_b32 s{sT1}, s{sW}, 6'); em.op(f's_lshr_b32 s{sKB}, 0x27, s{sT1}'); em.op(f's_and_b32 s{sKB}, s{sKB}, 3')
    em.op(f's_lshl_b32 s{sKB}, s{sKB}, 1'); em.op(f's_add_u32 s{sKB}, s{sKB}, s{sT0}'); em.op(f's_mul_i32 s{sKB}, s{sKB}, 12288'); em.op(f's_add_u32 s{sKB}, s{sKB}, {VBASE}')
    em.op(f'v_bfe_u32 v{t3}, {L}, 3, 1'); em.op(f'v_lshlrev_b32 v{t3}, 10, v{t3}')
    em.op(f'v_lshl_add_u32 v{t3}, v{t1}, 7, v{t3}')
    em.op(f'v_bfe_u32 v{t4}, {L}, 1, 3')
    em.op(f'v_xor_b32 v{t4}, v{t4}, v{t2}'); em.op(f'v_lshlrev_b32 v{vT}, 4, v{t4}')
    em.op(f'v_add_u32 v{vRA[0]}, v{t3}, v{vT}')
    em.op(f'v_add_u32 v{vKR[0]}, s{sKB}, v{vRA[0]}')
    em.op(f'v_xor_b32 v{vKR[1]}, 64, v{vKR[0]}')
    em.op(f's_lshr_b32 s{sT1}, s{sW}, 2'); em.op(f's_lshl_b32 s{sT1}, s{sT1}, 6')
    em.op(f's_lshl_b32 s{sT0}, s{sDG}, 3'); em.op(f's_add_u32 s{sT0}, s{sT0}, s{sT1}')
    em.op(f'v_add_u32 v{t3}, s{sT0}, v{t0}')
    em.op(f'v_mul_u32_u24 v{vVO}, 384, v{t3}')
    em.op(f'v_lshlrev_b32 v{t3}, 1, v{t2}')
    em.op(f'v_xor_b32 v{t3}, v{t3}, v{t1}')
    em.op(f'v_lshl_add_u32 v{vVO}, v{t3}, 4, v{vVO}')
    em.op(f's_mul_i32 s{SX+3}, s{sB}, 184320')
    em.op(f's_mul_i32 s{SWQ+3}, s{sH}, 384')
    em.op(f's_lshl_b32 s{sT1}, s{sB}, 5'); em.op(f's_add_u32 s{sT1}, s{sT1}, s{sH}')
    em.op(f's_mul_i32 s{sT2}, s{sT1}, 196608')
    em.op(f's_mul_i32 s{SO+3}, s{sT1}, {O_HEAD}')
    em.op(f's_lshl_b32 s{sT0}, s{sB}, 8'); em.op(f's_add_u32 s{sT0}, s{sT0}, {FLAG_OFF}')
    em.op(f's_mov_b32 s{SX+2}, 184320'); em.op(f's_sub_u32 s{SWQ+2}, 7864320, s{SWQ+3}')
    em.op(f's_cmp_lt_u32 s{sW}, 3')
    em.op('s_waitcnt lgkmcnt(0)')
    em.st.stamp('ka')
    if cfg.diag: em.op(f's_cmp_lt_u32 s{sW}, 3')
    em.op(f's_cselect_b64 s[{sPFB}:{sPFB+1}], s[10:11], s[4:5]')
    for i in range(3):
        for o in pf_ops(): em.op(o)
    if cfg.cearly:
        em.op('s_getpc_b64 s[58:59]')
        em.label('L_pce')
        em.op('s_add_u32 s58, s58, k1_body_start-L_pce')
        em.op('s_addc_u32 s59, s59, 0')
        em.op(f's_and_b32 s{sT1}, s{sLOC}, 15')
        em.op(f's_lshl_b32 s{sT1}, s{sT1}, 13')
        em.op(f'v_lshlrev_b32 v{TMP[11]}, 4, v0')
        em.op(f'v_add_u32 v{TMP[11]}, s{sT1}, v{TMP[11]}')
        em.op(f'v_min_u32 v{TMP[11]}, k1_body_end-k1_body_start-16, v{TMP[11]}')
        em.op(f'global_load_dwordx4 {vr(112)}, v{TMP[11]}, s[58:59]')
    if cfg.wsoff:
        em.op(f's_add_u32 s12, s12, {cfg.wsoff << 20}'); em.op('s_addc_u32 s13, s13, 0')
    em.op(f's_load_dword s{sTAG}, s[12:13], s{sT0}')
    em.op(f's_add_u32 s{SWQ}, s10, s{SWQ+3}'); em.op(f's_addc_u32 s{SWQ+1}, s11, 0'); em.op(f's_mov_b32 s{SWQ+3}, 0x20000')
    em.op(f's_add_u32 s{SX}, s4, s{SX+3}'); em.op(f's_addc_u32 s{SX+1}, s5, 0'); em.op(f's_mov_b32 s{SX+3}, 0x20000')
    srd(em, SK, 6, 7, f's{sT2}', 196608); srd(em, SV, 8, 9, f's{sT2}', 196608)
    if cfg.n0:
        em.op(f's_cmp_eq_u32 s{sTYPE}, 1')
        em.op('s_cbranch_scc0 L_nok1')
        em.begin_opt()
        for i in range(cfg.pf1 - 3):
            for o in pf_ops(): em.op(o)
        em.end_opt()
        em.label('L_nok1')
    if cfg.n0:
        em.op(f's_lshr_b32 s{sT0}, s{sW}, 2'); em.op(f's_lshl_b32 s{sT0}, s{sT0}, 1'); em.op(f's_or_b32 s{sT0}, s{sT0}, s{sTYPE}')
        for v in (0, 2, 3):
            em.op(f's_cmp_eq_u32 s{sT0}, {v}')
            em.op(f's_cbranch_scc1 L_qp{v >> 1}{v & 1}')
    else:
        em.op(f's_cmp_lt_u32 s{sW}, 4')
        em.op('s_cbranch_scc0 L_qp10')

def tr_addr(em, dst, t, base, fmode):
    t0, t1, t2, t3 = TMP[:4]
    L = f'v{vLANE}'
    em.op(f's_mul_i32 s{sT0}, s{sDG}, 3'); em.op(f's_add_u32 s{sT0}, s{sT0}, {t}')
    em.op(f's_lshr_b32 s{sT1}, s{sT0}, 2'); em.op(f's_lshl_b32 s{sT1}, s{sT1}, 10')
    em.op(f's_add_u32 s{sT1}, s{sT1}, {base}')
    em.op(f's_and_b32 s{sT0}, s{sT0}, 3')
    em.op(f'v_lshrrev_b32 v{t0}, 4, {L}')
    em.op(f'v_bfe_u32 v{t1}, {L}, 2, 2')
    em.op(f'v_and_b32 v{t2}, 1, v{t0}')
    em.op(f'v_lshlrev_b32 v{t2}, 1, v{t2}')
    em.op(f'v_lshrrev_b32 v{t3}, 1, v{t1}')
    em.op(f'v_add_u32 v{t3}, v{t3}, v{t2}')
    em.op(f'v_xor_b32 v{t3}, s{sT0}, v{t3}')
    em.op(f'v_lshlrev_b32 v{t3}, 5, v{t3}')
    em.op(f'v_lshlrev_b32 v{dst}, 7, v{t1}')
    em.op(f'v_add_u32 v{dst}, v{dst}, v{t3}')
    if fmode == 'w':
        em.op(f'v_mul_u32_u24 v{t3}, 3072, v{t0}')
    else:
        em.op(f'v_lshlrev_b32 v{t2}, 8, v{t2}')
        em.op(f'v_add_u32 v{dst}, v{dst}, v{t2}')
        em.op(f'v_lshrrev_b32 v{t3}, 1, v{t0}')
        em.op(f'v_mul_u32_u24 v{t3}, 3072, v{t3}')
    em.op(f'v_add_u32 v{dst}, v{dst}, v{t3}')
    em.op(f'v_and_b32 v{t3}, 3, {L}')
    em.op(f'v_lshlrev_b32 v{t3}, 3, v{t3}')
    em.op(f'v_add_u32 v{dst}, v{dst}, v{t3}')
    em.op(f'v_add_u32 v{dst}, s{sT1}, v{dst}')

class Cap:
    def __init__(self): self.ops = []
    def op(self, t, tag=None): self.ops.append(t)

def k1_qproj(em, qh, typ):
    nq = 5 if qh == 0 else 4
    q0 = 0 if qh == 0 else 5
    L = f'v{vLANE}'
    t0, t1, t2, t3, t4, t5 = TMP[:6]
    rf = cfg.rfrac / 100
    if cfg.prio and qh == 1: em.op('s_setprio 1')
    npre = cfg.n0 if typ == 1 else 0
    if npre:
        for f in k_dma_ops(em, 0): f()
        em.wait_lgkm0(force=True)
        k_fetch(em, 0, k_dma_ops(em, 1) if npre == 2 else None)
        if npre == 2: k_fetch(em, 1, None)
        em.wait_lgkm0()
    em.barrier()
    for f in stage_dma_ops(em, 0, qh): f()
    em.barrier()
    for f in stage_dma_ops(em, 1, qh): f()
    em.op(f's_add_u32 s{SO}, s12, s{SO+3}'); em.op(f's_addc_u32 s{SO+1}, s13, 0'); em.op(f's_mov_b32 s{SO+2}, {O_HEAD}'); em.op(f's_mov_b32 s{SO+3}, 0x20000')
    em.op(f's_mov_b32 s{sC}, {fbits(192 ** -0.5 * math.log2(math.e))}')
    if cfg.code_pre and not cfg.cearly:
        em.op('s_getpc_b64 s[58:59]')
        em.label(f'L_pc{qh}{typ}')
        em.op(f's_add_u32 s58, s58, k1_body_start-L_pc{qh}{typ}')
        em.op('s_addc_u32 s59, s59, -1')
        em.op(f's_and_b32 s{sT1}, s{sLOC}, 15')
        em.op(f's_lshl_b32 s{sT1}, s{sT1}, 13')
        em.op(f'v_lshlrev_b32 v{TMP[11]}, 4, v0')
        em.op(f'v_add_u32 v{TMP[11]}, s{sT1}, v{TMP[11]}')
        em.op(f'v_min_u32 v{TMP[11]}, k1_body_end-k1_body_start-16, v{TMP[11]}')
    em.st.stamp('si')
    em.op(f'v_lshlrev_b32 v{t3}, 2, v0')
    em.op(f'v_add_u32 v{t3}, {MAXB}, v{t3}')
    em.op(f'v_mov_b32 v{t4}, 0xff800000')
    em.op(f'ds_write_b32 v{t3}, v{t4}')
    em.op(f'v_and_b32 v{vMS}, 15, {L}')
    em.op(f'v_lshlrev_b32 v{vMS}, 2, v{vMS}')
    em.op(f'v_add_u32 v{vMS}, {MAXB}, v{vMS}')
    em.op(f'v_add_u32 v{vRA[0]}, {q0 * 2048}, v{vRA[0]}')
    em.op(f'v_xor_b32 v{vRA[1]}, 64, v{vRA[0]}')
    for t in range(3): tr_addr(em, vRB[t], t, VBASE, 'w')
    for t in range(3):
        em.op(f's_mul_i32 s{sT0}, s{sDG}, 3'); em.op(f's_add_u32 s{sT0}, s{sT0}, {t}'); em.op(f's_lshl_b32 s{sT0}, s{sT0}, 1')
        em.op(f'v_lshrrev_b32 v{t0}, 5, {L}')
        em.op(f'v_add_u32 v{t0}, s{sT0}, v{t0}')
        em.op(f'v_lshrrev_b32 v{t1}, 3, v{t0}'); em.op(f'v_lshlrev_b32 v{t1}, 7, v{t1}')
        em.op(f'v_and_b32 v{t0}, 7, v{t0}')
        em.op(f'v_bfe_u32 v{t2}, {L}, 1, 3')
        em.op(f'v_xor_b32 v{t0}, v{t0}, v{t2}'); em.op(f'v_lshlrev_b32 v{t0}, 4, v{t0}')
        em.op(f'v_add_u32 v{t0}, v{t0}, v{t1}')
        em.op(f'v_and_b32 v{t1}, 15, {L}'); em.op(f'v_mul_u32_u24 v{t1}, 384, v{t1}')
        em.op(f'v_add_u32 v{t0}, v{t0}, v{t1}')
        em.op(f'v_bfe_u32 v{t1}, {L}, 4, 1'); em.op(f'v_lshlrev_b32 v{t1}, 3, v{t1}')
        em.op(f'v_add_u32 v{vRC[t]}, v{t0}, v{t1}')
    em.op(f'v_lshlrev_b32 v{vPA}, 4, {L}')
    em.op(f's_lshl_b32 s{sT0}, s{sW}, 2'); em.op(f's_lshr_b32 s{sT1}, 0x10543210, s{sT0}'); em.op(f's_and_b32 s{sT1}, s{sT1}, 15'); em.op(f's_mul_i32 s{sT1}, s{sT1}, 9216')
    em.op(f'v_add_u32 v{vPW}, s{sT1}, v{vPA}')
    em.op(f'v_add_u32 v{vPA}, {q0 * 1024}, v{vPA}')
    AF = [176, 188]; BF = [200, 220]
    def q_reads(s, step, st):
        ops = []
        for t in range(3):
            ops.append(f'ds_read_b64_tr_b16 {vr(AF[st] + 4*t, 2)}, v{vRB[t]} offset:{(s % 3) * 24576 + step * 12288}')
            ops.append(f'ds_read_b64_tr_b16 {vr(AF[st] + 4*t + 2, 2)}, v{vRB[t]} offset:{(s % 3) * 24576 + step * 12288 + 512}')
        xs = [f'ds_read_b128 {vr(BF[st] + 4*j)}, v{vRA[step]} offset:{(s % 3) * 18432 + j * 2048}' for j in range(nq)]
        return ops[0:2] + xs[0:1] + ops[2:6] + xs[1:]
    def mf(st, first):
        return [mfma(ACC + 4*(j*3+t), AF[st] + 4*t, BF[st] + 4*j, None if first else ACC + 4*(j*3+t)) for j in range(nq) for t in range(3)]
    em.wait_vm_tag('S0', lgkm0=True); em.barrier()
    em.st.stamp('S0')
    em.op(f's_add_u32 s{sTAG}, s{sTAG}, 1')
    for o in q_reads(0, 0, 0): em.op(o)
    em.npre = npre
    nxt = [k_dma_ops(em, 0), k_dma_ops(em, 1), va_ops(em)][npre]
    plan = {15: nxt[0:4], 16: nxt[4:7], 17: nxt[7:10], 18: nxt[10:12]} if qh == 0 else {19: nxt[0:6]}
    late = [] if qh == 0 else nxt[6:12]
    cap = Cap()
    for t in range(3): tr_addr(cap, VTMP[t], t, VBASE, 'v')
    vaddr_ops = cap.ops
    inloop_pf = not (typ == 1 and cfg.n0)
    carry = stage_dma_ops(em, 2, qh) + (sum([pf_ops() for i in range(cfg.pfa - 3)], []) if inloop_pf else [])
    if cfg.code_pre and not cfg.cearly: carry.append(f'global_load_dwordx4 {vr(244)}, v{TMP[11]}, s[58:59]')
    for s in range(10):
        extra = []
        extra = plan.get(2 * s, [])
        interleave(em, mf(0, s == 0), ([] if cfg.x_qnord and 3 < s <= 6 else q_reads(s, 1, 1), 0, rf), (extra, 0.1, 1), (carry, 0.05, cfg.dhi / 100))
        if s < 9: em.wait_vm_tag(f'S{s+1}', lgkm0=True)
        else: em.wait_lgkm0()
        em.barrier()
        if s in cfg.qst: em.st.stamp(f'B{s}')
        if cfg.qloop and s == 6:
            em.op('s_sub_u32 s87, s87, 1'); em.op('s_cmp_lg_u32 s87, 0'); em.op(f's_cbranch_scc1 L_ql{qh}{typ}')
            em.st.stamp('LBend')
        if cfg.qloop and s == 3:
            em.st.stamp('LB0')
            em.op('s_mov_b32 s87, 16'); em.label(f'L_ql{qh}{typ}')
        rd = []; dm = []; extra = []
        if s < 9:
            if not (cfg.x_qnord and 3 <= s < 6): rd += q_reads(s + 1, 0, 0)
        carry = []
        if s + 3 <= 9:
            dm = stage_dma_ops(em, s + 3, qh); dm, carry = dm[:cfg.dsplit], dm[cfg.dsplit:]
            if cfg.x_qnodma and 3 <= s < 6: dm = []; carry = []
        if s == 7: extra = vaddr_ops
        first = (pf_ops() + (pf2_ops() if s + cfg.pfa >= cfg.pf1 and cfg.n0 else []) if inloop_pf and s + cfg.pfa <= 9 and not (cfg.qloop and s >= 3) else []) + plan.get(2 * s + 1, [])
        qw = []
        if s == 9:
            for j in range(nq):
                for t in range(3):
                    a = ACC + 4*(j*3+t)
                    qw.append([f'v_cvt_pk_bf16_f32 v{a}, v{a}, v{a+1}', f'v_cvt_pk_bf16_f32 v{a+1}, v{a+2}, v{a+3}', f'ds_write_b64 v{vRC[t]}, {vr(a,2)} offset:{(q0 + j) * 6144}'])
        n = 3 * nq; lag = 3 if cfg.qwi else n
        ins = [(qw[k], (k + lag + 0.5) / n, (k + lag + 0.5) / n) for k in range(n - lag)] if qw else []
        interleave(em, mf(1, False), (dm, cfg.dlo / 100, cfg.dhi / 100), (rd, 0, rf), (extra, 0, 1), (first, 0, 0.04 if dm else 0.9), *ins)
    for g in qw[max(0, n - lag):]:
        for o in g: em.op(o)
    for f in late: f()
    em.op(f'v_and_b32 v{t1}, 15, {L}'); em.op(f'v_mul_u32_u24 v{t1}, 384, v{t1}')
    em.op(f'v_add_u32 v{vRA[0]}, v{t1}, v{vT}')
    em.op(f'v_xor_b32 v{t0}, 64, v{vT}')
    em.op(f'v_add_u32 v{vRA[1]}, v{t1}, v{t0}')
    for t in range(3): em.op(f'v_mov_b32 v{vRB[t]}, v{VTMP[t]}')
    em.wait_lgkm0(); em.barrier()
    for t in range(3): em.op(f'v_add_u32 v{vRC[t]}, 49152, v{vRB[t]}')
    em.op(f's_lshl_b32 s{sT0}, s{sW}, 2'); em.op(f's_lshr_b32 s{sT1}, 0x32105432, s{sT0}'); em.op(f's_and_b32 s{sT1}, s{sT1}, 15'); em.op(f's_mul_i32 s{sT1}, s{sT1}, 9216')
    em.op(f'v_lshlrev_b32 v{vPW2}, 4, {L}')
    em.op(f'v_add_u32 v{vPW2}, s{sT1}, v{vPW2}')
    em.st.stamp('BQ')

def maxops(half):
    ops = []
    for qt in range(9):
        a, b = sreg(half*2, qt), sreg(half*2+1, qt); m = MC + qt
        if half == 0:
            ops += [f'v_max3_f32 v{m}, v{a}, v{a+1}, v{a+2}', f'v_max3_f32 v{m}, v{m}, v{a+3}, v{b}',
                    f'v_max3_f32 v{m}, v{m}, v{b+1}, v{b+2}', f'v_max_f32 v{m}, v{m}, v{b+3}']
        else:
            ops += [f'v_max3_f32 v{m}, v{m}, v{a}, v{a+1}', f'v_max3_f32 v{m}, v{m}, v{a+2}, v{a+3}',
                    f'v_max3_f32 v{m}, v{m}, v{b}, v{b+1}', f'v_max3_f32 v{m}, v{m}, v{b+2}, v{b+3}']
    return ops

def k1_qk(em, qh):
    def qrd(n):
        qt, ks = divmod(n, 6)
        return f'ds_read_b128 {vr(QF + 4*(n % 4))}, v{vRA[ks & 1]} offset:{qt * 6144 + (ks >> 1) * 128}'
    npre = em.npre
    for half in range(2):
        fill = []
        if half >= npre:
            fill = k_dma_ops(em, 1) if half == 0 else va_ops(em)
            if half == 0 and cfg.eager >> qh & 1:
                k_fetch(em, half, fill); fill = []
            else:
                k_fetch(em, half, None)
                em.wait_lgkm0()
                if half == 1 and cfg.eagerv >> qh & 1:
                    for f in fill: f()
                    fill = []
        for n in range(3): em.op(qrd(n))
        em.st.stamp(f'K{half}')
        main = []
        for n in range(54):
            qt, ks = divmod(n, 6)
            if n + 3 < 54: main.append(qrd(n + 3))
            for k in range(2):
                kt = half * 2 + k
                main.append(mfma(sreg(kt, qt), kop(kt, ks), QF + 4*(n % 4), None if ks == 0 else sreg(kt, qt)))
        m1 = maxops(1)
        if half == 0:
            streams = [(fill, cfg.g2lo / 100, cfg.g2hi / 100)]
        else:
            streams = [(maxops(0), 0.02, 0.5)]
            for qt in range(8): streams.append((m1[qt*4:qt*4+4], max(0.5 + 0.05*qt, (qt + 1.5) / 9), max(0.55 + 0.05*qt, (qt + 1.9) / 9)))
            streams.append((fill, cfg.valo / 100, cfg.vahi / 100))
        interleave(em, main, *streams)
    em.st.stamp('QKend')
    for o in maxops(1)[32:]: em.op(o)
    for qt in range(9): em.op(f'ds_max_f32 v{vMS}, v{MC+qt} offset:{qt*64}')
    em.op(f'v_lshlrev_b32 v{vVW}, 4, v{vLANE}')
    em.op(f'v_add_u32 v{vVW}, s{sW3072}, v{vVW}')
    em.op(f'v_add_u32 v{vVW}, {VBASE}, v{vVW}')
    em.op(f'v_add_u32 v{vVW2}, 49152, v{vVW}')
    em.wait_lgkm0(); em.barrier()
    em.st.stamp('BM')

def expops(r, qt, pk):
    a, b = sreg(2*r, qt), sreg(2*r+1, qt); m = MC + qt
    tA, tB = TMP[0], TMP[2]
    sp = SUMP + 2*qt
    rs = [a, a+1, a+2, a+3, b, b+1, b+2, b+3]
    if pk:
        mb = m & ~1; s = m & 1
        ops = [f'v_pk_fma_f32 {vr(x,2)}, {vr(x,2)}, s[{sC}:{sC+1}], {vr(mb,2)} op_sel:[0,0,{s}] op_sel_hi:[1,0,{s}] neg_lo:[0,0,1] neg_hi:[0,0,1]' for x in rs[::2]]
    else:
        ops = [f'v_fma_f32 v{x}, v{x}, s{sC}, -v{m}' for x in rs]
    ops += [f'v_exp_f32 v{x}, v{x}' for x in rs]
    if pk:
        ops += [f'v_pk_add_f32 {vr(tA,2)}, {vr(a,2)}, {vr(a+2,2)}', f'v_pk_add_f32 {vr(tB,2)}, {vr(b,2)}, {vr(b+2,2)}']
        if r == 0: tailo = [f'v_pk_add_f32 {vr(sp,2)}, {vr(tA,2)}, {vr(tB,2)}']
        else: tailo = [f'v_pk_add_f32 {vr(tA,2)}, {vr(tA,2)}, {vr(tB,2)}', f'v_pk_add_f32 {vr(sp,2)}, {vr(sp,2)}, {vr(tA,2)}']
    else:
        assert r == 1
        ops += [f'v_add_f32 v{sp + (i & 1)}, v{sp + (i & 1)}, v{x}' for i, x in enumerate(rs)]
        tailo = []
    ops += [f'v_cvt_pk_bf16_f32 v{a}, v{a}, v{a+1}', f'v_cvt_pk_bf16_f32 v{a+1}, v{a+2}, v{a+3}',
            f'v_cvt_pk_bf16_f32 v{a+2}, v{b}, v{b+1}', f'v_cvt_pk_bf16_f32 v{a+3}, v{b+2}, v{b+3}']
    return ops + tailo

def pwrite(r, qt, qh):
    return f'ds_write_b128 v{vPW if r == 0 else vPW2}, {vr(sreg(2*r, qt))} offset:{qt*1024}'

def sum_ops():
    L = f'v{vLANE}'
    S = SUM; ops = []
    ops += [f'v_add_f32 v{SUM+qt}, v{SUMP+2*qt}, v{SUMP+2*qt+1}' for qt in range(9)]
    ops += [f'v_mov_b32 v{MC}, 0', f'v_mov_b32 v{MC+1}, 0']
    ta = TMP[2]; tb = TMP[3]
    ops += [f'v_bfe_u32 v{ta}, {L}, 4, 1', f'v_lshlrev_b32 v{ta}, 10, v{ta}', f'v_bfe_u32 v{tb}, {L}, 5, 1', f'v_lshlrev_b32 v{tb}, 9, v{tb}',
            f'v_add_u32 v{ta}, v{ta}, v{tb}', f'v_and_b32 v{tb}, 15, {L}', f'v_lshlrev_b32 v{tb}, 5, v{tb}', f'v_add_u32 v{ta}, v{ta}, v{tb}',
            f's_lshl_b32 s{sT0}, s{sW}, 2', f's_add_u32 s{sT0}, s{sT0}, {SUMB}', f'v_add_u32 v{ta}, s{sT0}, v{ta}']
    for a in (0, 2, 4, 6): ops.append(f'v_permlane32_swap_b32 v{S+a}, v{S+a+1}')
    ops.append(f'v_permlane32_swap_b32 v{S+8}, v{MC}')
    for a in (0, 2, 4, 6): ops.append(f'v_add_f32 v{S+a}, v{S+a}, v{S+a+1}')
    ops.append(f'v_add_f32 v{S+8}, v{S+8}, v{MC}')
    for a in (0, 4): ops.append(f'v_permlane16_swap_b32 v{S+a}, v{S+a+2}')
    ops.append(f'v_permlane16_swap_b32 v{S+8}, v{MC+1}')
    for a in (0, 4): ops.append(f'v_add_f32 v{S+a}, v{S+a}, v{S+a+2}')
    ops.append(f'v_add_f32 v{S+8}, v{S+8}, v{MC+1}')
    for a in (0, 4, 8): ops.append(f'ds_write_b32 v{ta}, v{S+a} offset:{a * 512}')
    return ops

def k1_sm0(em, qh):
    for qt in range(9): em.op(f'ds_read_b32 v{MC+qt}, v{vMS} offset:{qt*64}')
    for qt in range(9): em.op(f'v_mul_f32 v{MC+qt}, s{sC}, v{MC+qt}')
    main = []
    for qt in range(9):
        main += expops(0, qt, True)
        if qh == 0: main.append(pwrite(0, qt, qh))
    for qt in range(9): main += expops(1, qt, True)
    main += sum_ops()
    interleave(em, main, (v_reg_ops(em) if cfg.vreg else [], 0, cfg.vrf / 100))
    em.st.stamp('exp0')
    if qh == 0: em.wait_vm_tag('VA', lgkm0=True)
    else: em.wait_lgkm0()
    em.barrier()
    em.st.stamp('PV0')

def k1_pv(em, qh):
    nq = 5 if qh == 0 else 4
    q0 = 0 if qh == 0 else 5
    L = f'v{vLANE}'
    t0 = TMP[4]
    rf = cfg.rfrac / 100
    PBF = PBF0 if qh == 0 else PBF1
    INV = INV0 + 2 * qh
    PAF = PAF0 if qh == 0 else PAF1
    def pv_reads(s, step, st):
        ops = []
        slot = vslot(s)
        base = vRB if slot < 2 else vRC
        off = (slot % 2) * 24576 + step * 12288
        for t in range(3):
            ops.append(f'ds_read_b64_tr_b16 {vr(PAF[st][t], 2)}, v{base[t]} offset:{off}')
            ops.append(f'ds_read_b64_tr_b16 {vr(PAF[st][t] + 2, 2)}, v{base[t]} offset:{off + 6144}')
        pa, po = vPA, ((2 * s + step) % 6) * 9216
        xs = [f'ds_read_b128 {vr(PBF[st][j])}, v{pa} offset:{po + j * 1024}' for j in range(nq)]
        return ops[0:2] + xs[0:1] + ops[2:6] + xs[1:]
    OACC = OACC0 if qh == 0 else OACC1
    def mf(st, first):
        return [mfma(OACC[j*3+t], PAF[st][t], PBF[st][j], None if first else OACC[j*3+t]) for j in range(nq) for t in range(3)]
    def inv_ops():
        ta = TMP[2]; ops = []
        ops += [f'v_and_b32 v{ta}, 15, {L}', f'v_lshlrev_b32 v{ta}, 5, v{ta}', f'v_add_u32 v{ta}, {SUMB + q0 * 512}, v{ta}']
        for j in range(nq):
            ops += [f'ds_read_b128 {vr(64 + 8*j)}, v{ta} offset:{j * 512}', f'ds_read_b128 {vr(68 + 8*j)}, v{ta} offset:{j * 512 + 16}']
        for j in range(nq):
            r = 64 + 8*j
            ops += [f'v_add_f32 v{r}, v{r}, v{r+1}', f'v_add_f32 v{r+2}, v{r+2}, v{r+3}', f'v_add_f32 v{r+4}, v{r+4}, v{r+5}', f'v_add_f32 v{r+6}, v{r+6}, v{r+7}',
                    f'v_add_f32 v{r}, v{r}, v{r+2}', f'v_add_f32 v{r+4}, v{r+4}, v{r+6}', f'v_add_f32 v{r}, v{r}, v{r+4}', f'v_rcp_f32 v{INV+2*j}, v{r}']
        cap = Cap()
        for t in range(3):
            cap.op(f's_mul_i32 s{sT0}, s{sDG}, 3'); cap.op(f's_add_u32 s{sT0}, s{sT0}, {t}')
            cap.op(f's_lshr_b32 s{sT1}, s{sT0}, 2'); cap.op(f's_mul_i32 s{sT1}, s{sT1}, 20480')
            cap.op(f's_bfe_u32 s{sT2}, s{sT0}, 0x10001'); cap.op(f's_mul_i32 s{sT2}, s{sT2}, 9216'); cap.op(f's_add_u32 s{sT1}, s{sT1}, s{sT2}')
            cap.op(f's_and_b32 s{sT0}, s{sT0}, 1'); cap.op(f's_lshl_b32 s{sT0}, s{sT0}, 3')
            cap.op(f's_add_u32 s{sT0}, s{sT0}, s{sT1}'); cap.op(f's_add_u32 s{sT0}, s{sT0}, 61440')
            cap.op(f'v_add_u32 v{vOW[t]}, s{sT0}, v{vPA}')
        return ops + cap.ops
    def ex(h):
        o = []
        if qh == 0 and h in (5, 6): o += [pwrite(1, qt, qh) for qt in (range(5) if h == 5 else range(5, 9))]
        if qh == 1 and h in (1, 2): o += [pwrite(0, qt, qh) for qt in (range(5) if h == 1 else range(5, 9))]
        if qh == 1 and h in (9, 10): o += [pwrite(1, qt, qh) for qt in (range(5) if h == 9 else range(5, 9))]
        return o
    TS = tail_setup_ops(qh)
    def wopre_ops(i):
        ta = TMP[2 + (i & 1)]
        ops = [f's_mul_i32 s{sT0}, s{sX}, 983040', f's_mul_i32 s{sT1}, s{sLOC}, 30720', f's_add_u32 s{sT0}, s{sT0}, s{sT1}', f's_add_u32 s{sT0}, s{sT0}, {i * 8192}',
               f'v_lshlrev_b32 v{ta}, 4, v0', f'v_add_u32 v{ta}, s{sT0}, v{ta}', f'v_min_u32 v{ta}, {7864320 - 16}, v{ta}',
               f'global_load_dwordx4 {vr(212)}, v{ta}, s[14:15]' + (' nt' if cfg.wont else '')]
        return ops
    for o in pv_reads(0, 0, 0): em.op(o)
    for s in range(8):
        e = ex(2*s)
        if 2*s == 12: e = TS[:len(TS)//3]
        if 2*s == 14: e = TS[2*len(TS)//3:]
        w = wopre_ops(s - 3) if cfg.wopre and 2*s in (6, 8, 10) else []
        interleave(em, mf(0, s == 0), (pv_reads(s, 1, 1), 0, rf), (e, 0, cfg.efrac / 100), (w, 0.5, 0.51))
        if s == 1: em.wait_vm_tag('VA', lgkm0=True)
        elif s < (3 if cfg.vreg else 7): em.wait_vm_tag(f'V{s+1}', lgkm0=True)
        else: em.wait_lgkm0()
        em.barrier()
        em.st.stamp(f'PB{s}')
        rd = pv_reads(s + 1, 0, 0) if s < 7 else []
        dm = (v_put_ops(s + NV) if cfg.vreg else v_dma_ops(em, s + NV)) if s + NV <= 7 else []
        e = ex(2*s+1)
        if 2*s+1 == 11: e = inv_ops()
        if 2*s+1 == 13: e = TS[len(TS)//3: 2*len(TS)//3]
        if 2*s+1 == 15:
            if qh == 0: dm = tail_dma(em, 0) + tail_dma(em, 1)
        w = wopre_ops(3) if cfg.wopre and 2*s+1 == 9 else []
        ins = []
        n = 3 * nq; lag = 4 if cfg.qwi else n
        if s == 7:
            for k in range(n - lag):
                a = OACC[k]; m = INV + 2 * (k // 3)
                g = [f'v_mul_f32 v{a+d}, v{a+d}, v{m}' for d in range(4)] + [f'v_cvt_pk_bf16_f32 v{a}, v{a}, v{a+1}', f'v_cvt_pk_bf16_f32 v{a+1}, v{a+2}, v{a+3}',
                     f'ds_write_b64 v{vOW[k % 3]}, {vr(a,2)} offset:{(k // 3) * 1024}']
                ins.append((g, (k + lag + 0.5) / n, (k + lag + 0.5) / n))
        interleave(em, mf(1, False), (dm, 0.3 if s < 7 and cfg.vreg else 0, (0.9 if cfg.vreg else 0.4) if s < 7 else 1), (rd, 0, rf + 0.1), (e, 0, 1), (w, 0.5, 0.51), *ins)
    late = tail_dma(em, 2) if qh == 0 else []
    main = []
    for j in range(nq):
        for t in range(3):
            if j * 3 + t < n - lag: continue
            a = OACC[j*3+t]
            m = INV + 2*j
            main += [f'v_pk_mul_f32 {vr(a,2)}, {vr(a,2)}, {vr(m,2)} op_sel_hi:[1,0]', f'v_pk_mul_f32 {vr(a+2,2)}, {vr(a+2,2)}, {vr(m,2)} op_sel_hi:[1,0]',
                     f'v_cvt_pk_bf16_f32 v{a}, v{a}, v{a+1}', f'v_cvt_pk_bf16_f32 v{a+1}, v{a+2}, v{a+3}',
                     f'ds_write_b64 v{vOW[t]}, {vr(a,2)} offset:{j * 1024}']
    interleave(em, main, (late, 0, 1))
    em.wait_vm_tag('T0', lgkm0=True); em.barrier()
    em.st.stamp('BO')
    if qh == 0:
        em.op(f's_cmp_lt_u32 s{sW}, 2')
        em.op('s_cbranch_scc0 L_tail1')
        st = em.save(); sn = (em.st.n, list(em.st.names))
        tail(em, 0)
        em.label('L_tail1')
        em.restore(st); em.st.n, em.st.names = sn[0], list(sn[1])
        tail(em, 1)
    else:
        tail(em, 2)

STG2 = 40960
vOFFS = [64, 65, 66, 67, 68]; vA2 = [69, 70, 71, 72, 73]; vB2 = 74
SD, SP, SPR, SOUT = SX, SWQ, SK, SV
def tail_setup_ops(qh):
    c = Cap(); L = f'v{vLANE}'
    t0, t1, t2, t3 = 96, 97, 98, 99
    if qh == 0:
        c.op(f's_mul_i32 s{sT0}, s{sX}, 983040'); c.op(f's_mul_i32 s{sT1}, s{sJ}, 320'); c.op(f's_add_u32 s{sT0}, s{sT0}, s{sT1}')
        srd(c, SD, 14, 15, f's{sT0}', 7864320)
        c.op(f's_sub_u32 s{SD+2}, s{SD+2}, s{sT0}')
        c.op(f's_mov_b32 s{sSTR}, 81920')
        hs = 245760
        c.op(f's_lshl_b32 s{sT2}, s{sW}, 4')
        c.op(f's_mov_b32 s{sT1}, 52429')
        for j in range(5):
            c.op(f'v_add_u32 v{t0}, {j * 64}, {L}')
            c.op(f'v_mul_lo_u32 v{t1}, v{t0}, s{sT1}')
            c.op(f'v_lshrrev_b32 v{t1}, 20, v{t1}')
            c.op(f'v_mul_u32_u24 v{t2}, 20, v{t1}')
            c.op(f'v_sub_u32 v{t2}, v{t0}, v{t2}')
            c.op(f'v_bfe_u32 v{t3}, v{t1}, 2, 1')
            c.op(f'v_lshlrev_b32 v{t3}, 1, v{t3}')
            c.op(f'v_xor_b32 v{t2}, v{t2}, v{t3}')
            c.op(f'v_lshlrev_b32 v{t2}, 4, v{t2}')
            c.op(f'v_add_u32 v{t1}, s{sT2}, v{t1}')
            c.op(f'v_mul_u32_u24 v{t1}, 1280, v{t1}')
            c.op(f'v_add_u32 v{vOFFS[j]}, v{t1}, v{t2}')
    else:
        c.op(f's_lshl_b32 s{sT0}, s{sB}, 5'); c.op(f's_lshl_b32 s{sT1}, s{sX}, 2'); c.op(f's_add_u32 s{sT0}, s{sT0}, s{sT1}')
        c.op(f's_mul_i32 s{sT0}, s{sT0}, {O_HEAD}')
        srd(c, SD, 12, 13, f's{sT0}', 4 * O_HEAD)
        c.op(f's_mov_b32 s{sSTR}, 18432')
        hs = O_HEAD
        c.op(f's_mul_i32 s{sT2}, s{sDG}, 5120')
        c.op(f'v_lshlrev_b32 v{t0}, 4, {L}')
        c.op(f'v_add_u32 v{t0}, s{sT2}, v{t0}')
        for j in range(5): c.op(f'v_add_u32 v{vOFFS[j]}, {j * 1024}, v{t0}')
    c.op(f's_mul_i32 s{sM0T}, s{sDG}, 5120')
    if qh: c.op(f's_add_u32 s{sM0T}, s{sM0T}, 61440')
    for i in range(4):
        c.op(f's_add_u32 s{sT0}, s{sJ}, {i}'); c.op(f's_and_b32 s{sT0}, s{sT0}, 3'); c.op(f's_mul_i32 s{sHB+i}, s{sT0}, {hs}')
    c.op(f's_and_b32 s{sNH}, s{sW}, 1')
    c.op(f'v_lshrrev_b32 v{t0}, 2, {L}')
    c.op(f'v_mul_u32_u24 v{t0}, 320, v{t0}')
    c.op(f'v_and_b32 v{t1}, 3, {L}'); c.op(f'v_lshlrev_b32 v{t1}, 3, v{t1}')
    c.op(f'v_add_u32 v{t0}, v{t0}, v{t1}')
    c.op(f'v_bfe_u32 v{t1}, {L}, 4, 1')
    c.op(f's_mul_i32 s{sT0}, s{sNH}, 5')
    for t in range(5):
        c.op(f's_add_u32 s{sT1}, s{sT0}, {t}')
        c.op(f'v_xor_b32 v{t2}, s{sT1}, v{t1}')
        c.op(f'v_lshlrev_b32 v{t2}, 5, v{t2}')
        c.op(f'v_add_u32 v{vA2[t]}, v{t0}, v{t2}')
    c.op(f's_lshr_b32 s{sT0}, s{sW}, 1')
    c.op(f's_mov_b32 s{sT1}, 0x7350')
    c.op(f's_lshl_b32 s{sT0}, s{sT0}, 2')
    c.op(f's_lshr_b32 s{sQ0}, s{sT1}, s{sT0}')
    c.op(f's_and_b32 s{sQ0}, s{sQ0}, 15')
    c.op(f's_lshl_b32 s{sT0}, s{sQ0}, 10')
    c.op(f's_add_u32 s{sT0}, s{sT0}, 61440')
    c.op(f'v_lshlrev_b32 v{vB2}, 4, {L}')
    c.op(f'v_add_u32 v{vB2}, s{sT0}, v{vB2}')
    c.op(f's_lshl_b32 s{sT0}, s{sB}, 3'); c.op(f's_add_u32 s{sT0}, s{sT0}, s{sX}'); c.op(f's_lshl_b32 s{sT0}, s{sT0}, 7'); c.op(f's_add_u32 s{sT0}, s{sT0}, {FLAG_OFF + 4096}')
    c.op(f's_add_u32 s{sF1}, s12, s{sT0}'); c.op(f's_addc_u32 s{sF1+1}, s13, 0')
    c.op(f's_lshl_b32 s{sT0}, s{sLOC}, 7'); c.op(f's_add_u32 s{sT0}, s{sT0}, {FLAG_OFF + 16384}')
    c.op(f's_add_u32 s{sF2}, s12, s{sT0}'); c.op(f's_addc_u32 s{sF2+1}, s13, 0')
    c.op(f's_mul_i32 s{sT0}, s{sLOC}, {8 * PART2}'); c.op(f's_add_u32 s{sT0}, s{sT0}, {WS_PART}')
    srd(c, SPR, 12, 13, f's{sT0}', 8 * PART2)
    c.op(f's_mul_i32 s{sT1}, s{sX}, {PART2}'); c.op(f's_add_u32 s{sT0}, s{sT0}, s{sT1}')
    srd(c, SP, 12, 13, f's{sT0}', PART2)
    srd(c, SOUT, 54, 55, None, 1474560)
    return c.ops

def tail_dma(em, s, orole=False):
    ops = []
    sc = ' sc1' if (orole and cfg.sc_ol) else ''
    for j in range(5):
        def f(j=j):
            em.op(f's_add_u32 m0, s{sM0T}, {(s % 3) * 20480 + j * 1024}')
            if j == 0:
                if s % 3 == 0: em.op(f's_mov_b32 s{sOFF}, s{sHB + s // 3}')
                else: em.op(f's_add_u32 s{sOFF}, s{sOFF}, s{sSTR}')
            em.op(f'buffer_load_dwordx4 v{vOFFS[j]}, {sr(SD,4)}, s{sOFF} offen{sc} lds', tag=f'T{s}')
        ops.append(f)
    return ops

def flag_store(em, base, idx_s, lab, wave):
    t0, t1 = 50, 51
    em.op(f's_cmp_eq_u32 s{sW}, {wave}')
    em.op(f's_cbranch_scc0 {lab}')
    em.begin_opt()
    em.op(f's_lshl_b32 s{sT0}, s{idx_s}, 2')
    em.op(f'v_mov_b32 v{t0}, s{sT0}')
    em.op(f'v_mov_b32 v{t1}, s{sTAG}')
    em.op('s_mov_b64 exec, 1')
    em.op(f'global_store_dword v{t0}, v{t1}, s[{base}:{base+1}] sc1')
    em.op('s_mov_b64 exec, -1')
    em.end_opt()
    em.label(lab)

def poll(em, base, mask, lab):
    t0, t1 = 52, 53
    em.op(f'v_and_b32 v{t0}, {mask}, v{vLANE}')
    em.op(f'v_lshlrev_b32 v{t0}, 2, v{t0}')
    em.op(f's_mov_b32 s{sCNT}, 0x20000')
    em.wait_vm0()
    em.label(lab)
    em.op(f'global_load_dword v{t1}, v{t0}, s[{base}:{base+1}] sc1')
    em.op(f's_sub_u32 s{sCNT}, s{sCNT}, 1')
    em.op(f's_cbranch_scc1 {lab}_done')
    em.wait_vm0()
    em.op(f'v_cmp_ne_u32 vcc, s{sTAG}, v{t1}')
    em.op('s_nop 4')
    em.op(f's_cbranch_vccz {lab}_done')
    em.op('s_sleep 1')
    em.op(f's_branch {lab}')
    em.label(f'{lab}_done')
    em.wait_vm0()

def tail(em, tv):
    nq = 3 if tv == 0 else 2
    orole = tv == 2
    L = f'v{vLANE}'
    rf = cfg.rfrac / 100
    sc = ' sc1' if cfg.sc else ''
    ACC2 = 116; AF = [76, 96]; BF = [16, 28]; CO = 176
    t0, t1, t2, t3 = 40, 41, 42, 43
    em.op(f'v_lshlrev_b32 v{t0}, 4, v0')
    em.op(f'v_add_u32 v{t1}, 61440, v{t0}')
    npc = 3 if tv == 0 else 2
    k = 0; sts = []
    for c in range(3):
        for i in range(npc):
            va, off = t1, c * 20480
            em.op(f'ds_read_b128 {vr(CO + 4*k)}, v{va} offset:{off + i * 8192}')
            sts.append((CO + 4*k, c * 18432 + i * 8192)); k += 1
    def reads(s, step, st_):
        ops = []
        for t in range(5):
            ops.append(f'ds_read_b64_tr_b16 {vr(AF[st_] + 4*t, 2)}, v{vA2[t]} offset:{(s % 3) * 20480 + step * 10240}')
            ops.append(f'ds_read_b64_tr_b16 {vr(AF[st_] + 4*t + 2, 2)}, v{vA2[t]} offset:{(s % 3) * 20480 + step * 10240 + 5120}')
        xs = [f'ds_read_b128 {vr(BF[st_] + 4*j)}, v{vB2} offset:{(s % 3) * 20480 + step * 9216 + j * 1024}' for j in range(nq)]
        return ops[0:2] + xs + ops[2:]
    def mf(st_, first):
        return [mfma(ACC2 + 4*(t*nq+j), AF[st_] + 4*t, BF[st_] + 4*j, None if first else ACC2 + 4*(t*nq+j)) for t in range(5) for j in range(nq)]
    for r, off in sts:
        em.op(f's_mov_b32 s{sT0}, {off}')
        em.op(f'buffer_store_dwordx4 {vr(r)}, v{t0}, {sr(SO,4)}, s{sT0} offen' + ['', ' sc1', ' nt', ' sc0'][cfg.sc_o], tag='CO')
    for o in reads(0, 0, 0): em.op(o)
    carry = []
    for s in range(12):
        interleave(em, mf(0, s == 0), (reads(s, 1, 1), 0, rf), (carry, 0.05, 0.95))
        carry = []
        if s < 11:
            if s == 0: em.wait_vm0(); em.wait_lgkm0()
            else: em.wait_vm_tag(f'T{s+1}', lgkm0=True)
            em.barrier()
            em.st.stamp(f'T{s}')
        else:
            em.wait_lgkm0(); em.barrier()
        if s == 0 and orole: flag_store(em, sF1, sJ, 'L_f1', 4)
        fill = []; dm = []
        if s < 11:
            fill += reads(s + 1, 0, 0)
        if s + 3 <= 11:
            if not orole or s >= 2:
                dm = tail_dma(em, s + 3, orole); dm, carry = dm[:3], dm[3:]
            elif s == 1:
                poll(em, sF1, 3, 'L_p1')
                em.st.stamp('poll')
                for f in tail_dma(em, 3, True): f()
                dm = tail_dma(em, 4, True)
        interleave(em, mf(1, False), (dm, 0.05, 0.95), (fill, 0, rf))
    em.st.stamp('TP')
    em.op(f'v_and_b32 v{t1}, 15, {L}'); em.op(f'v_mul_u32_u24 v{t1}, 336, v{t1}')
    em.op(f'v_lshrrev_b32 v{t2}, 4, {L}'); em.op(f'v_lshlrev_b32 v{t2}, 3, v{t2}')
    em.op(f's_mul_i32 s{sT0}, s{sQ0}, {16 * 336}'); em.op(f's_mul_i32 s{sT1}, s{sNH}, 160'); em.op(f's_add_u32 s{sT0}, s{sT0}, s{sT1}')
    em.op(f'v_add3_u32 v{t1}, v{t1}, v{t2}, s{sT0}')
    em.op(f's_mov_b32 s{sT2}, 52429')
    pre = []
    for i in range(6):
        r = 176 + i
        pre += [f'v_add_u32 v{r}, {512 * i}, v0', f'v_mul_lo_u32 v{t2}, v{r}, s{sT2}', f'v_lshrrev_b32 v{t2}, 20, v{t2}', f'v_add_lshl_u32 v{r}, v{r}, v{t2}, 4']
    for o in pre: em.op(o)
    for t in range(5):
        for j in range(nq):
            a = ACC2 + 4*(t*nq+j)
            em.op(f'v_cvt_pk_bf16_f32 v{a}, v{a}, v{a+1}')
            em.op(f'v_cvt_pk_bf16_f32 v{a+1}, v{a+2}, v{a+3}')
            em.op(f'ds_write_b64 v{t1}, {vr(a,2)} offset:{j * 16 * 336 + t * 32}')
    em.wait_lgkm0(); em.barrier()
    for i in range(6): em.op(f'ds_read_b128 {vr(76 + 4*i)}, v{176 + i}')
    for i in range(6):
        em.op(f's_mov_b32 s{sT0}, {i * 8192}')
        em.op(f'buffer_store_dwordx4 {vr(76 + 4*i)}, v{t0}, {sr(SP,4)}, s{sT0} offen{sc}')
    em.op(f's_mul_i32 s{sT0}, s{sX}, 5760')
    em.op(f'v_add_u32 v{t1}, s{sT0}, v{t0}')
    em.op(f'v_mul_lo_u32 v{t2}, v0, s{sT2}'); em.op(f'v_lshrrev_b32 v{t2}, 20, v{t2}')
    em.op(f'v_mul_u32_u24 v{t2}, 960, v{t2}')
    em.op(f's_mul_i32 s{sT0}, s{sB}, 144'); em.op(f's_mul_i32 s{sT1}, s{sX}, 18'); em.op(f's_add_u32 s{sT0}, s{sT0}, s{sT1}')
    em.op(f's_mul_i32 s{sT0}, s{sT0}, 1280'); em.op(f's_mul_i32 s{sT1}, s{sJ}, 320'); em.op(f's_add_u32 s{sT0}, s{sT0}, s{sT1}')
    em.op(f'v_add3_u32 v{t2}, v{t2}, v{t0}, s{sT0}')
    em.op(f'v_mov_b32 v{t3}, 0x7ffffff0')
    em.op(f'v_cmp_gt_u32 vcc, 360, v0')
    em.op(f'v_cndmask_b32 v{t2}, v{t3}, v{t2}, vcc')
    em.wait_vm0(); em.barrier()
    em.st.stamp('TW')
    if tv == 2:
        flag_store(em, sF2, sX, 'L_f2', 7)
        em.op(f's_cmp_ge_u32 s{sW}, 6')
        em.op(f's_cbranch_scc1 L_fin2')
    poll(em, sF2, 7, f'L_p2_{tv}')
    em.st.stamp('TF')
    for x in range(8):
        em.op(f's_mov_b32 s{sT0}, {x * PART2}')
        em.op(f'buffer_load_dwordx4 {vr(76 + 4*x)}, v{t1}, {sr(SPR,4)}, s{sT0} offen{sc}')
    if tv == 0:
        em.op(f's_or_b32 s{sT0}, s{sH}, s{sW}')
        em.op(f's_cmp_eq_u32 s{sT0}, 0')
        em.op('s_cbranch_scc0 L_nw')
        em.begin_opt()
        em.op(f's_lshl_b32 s{sT0}, s{sB}, 8'); em.op(f's_add_u32 s{sT0}, s{sT0}, {FLAG_OFF}')
        em.op(f'v_mov_b32 v60, s{sT0}'); em.op(f'v_mov_b32 v61, s{sTAG}')
        em.op('s_mov_b64 exec, 1')
        em.op('global_store_dword v60, v61, s[12:13]')
        em.op('s_mov_b64 exec, -1')
        em.end_opt()
        em.label('L_nw')
    A = 108
    for x in range(8):
        for d in range(4):
            r = 76 + 4*x + d
            if x == 0:
                em.op(f'v_lshlrev_b32 v{A+2*d}, 16, v{r}'); em.op(f'v_and_b32 v{A+2*d+1}, 0xffff0000, v{r}')
            else:
                em.op(f'v_lshlrev_b32 v{A+8}, 16, v{r}'); em.op(f'v_and_b32 v{A+9}, 0xffff0000, v{r}')
                em.op(f'v_pk_add_f32 {vr(A+2*d,2)}, {vr(A+2*d,2)}, {vr(A+8,2)}')
    for d in range(4): em.op(f'v_cvt_pk_bf16_f32 v{A+d}, v{A+2*d}, v{A+2*d+1}')
    em.op(f'buffer_store_dwordx4 {vr(A)}, v{t2}, {sr(SOUT,4)}, 0 offen')
    em.st.stamp('TL')
    if cfg.x_ren:
        em.op('v_mov_b32 v116, s84')
        em.op('global_load_dword v117, v116, s[86:87] sc1')
        em.op('v_readfirstlane_b32 s85, v117')
        em.op('s_bcnt1_i32_b32 s85, s85')
        em.op('s_cmp_gt_u32 s85, 1')
        em.op(f's_cbranch_scc0 L_ren{tv}')
        em.op('s_mov_b32 s85, 600')
        em.label(f'L_rend{tv}')
        em.op('s_sleep 1'); em.op('s_sub_u32 s85, s85, 1'); em.op('s_cmp_lg_u32 s85, 0'); em.op(f's_cbranch_scc1 L_rend{tv}')
        em.label(f'L_ren{tv}')
    if tv == 2: em.label('L_fin2')
    if cfg.diag: em.wait_vm0()
    em.st.flush(12, 0, sW, 244)
    em.op('s_endpgm')

def kernel_header(name):
    return f'.globl {name}\n.p2align 8\n.type {name},@function\n{name}:\n'
def kernel_desc(name, vgpr, sgpr=102):
    return f'''.amdhsa_kernel {name}
  .amdhsa_next_free_vgpr {vgpr}
  .amdhsa_next_free_sgpr {sgpr}
  .amdhsa_accum_offset {(vgpr + 3) // 4 * 4}
  .amdhsa_group_segment_fixed_size 0
  .amdhsa_kernarg_size 64
  .amdhsa_user_sgpr_count 2
  .amdhsa_user_sgpr_kernarg_segment_ptr 1
  .amdhsa_system_sgpr_workgroup_id_x 1
.end_amdhsa_kernel
'''

def gen_k1():
    em = Em()
    k1_prologue(em)
    st0 = em.save()
    em.label('k1_body_start')
    for qh in range(2):
        sts = []
        for typ in ((1, 0) if cfg.n0 else (0,)):
            if qh or typ == 0 and cfg.n0: em.label(f'L_qp{qh}{typ}')
            em.restore(st0)
            em.typ = typ
            k1_qproj(em, qh, typ)
            k1_qk(em, qh)
            sts.append(em.save())
            if typ == 1: em.op(f's_branch L_sm{qh}')
        if len(sts) == 2:
            t = [[e[0] for e in s[2]] for s in sts]
            lo, hi = sorted(range(2), key=lambda i: len(t[i]))
            assert t[hi][len(t[hi]) - len(t[lo]):] == t[lo], t
            em.restore(sts[hi]); em.hist = []
            em.label(f'L_sm{qh}')
        k1_sm0(em, qh)
        k1_pv(em, qh)
    em.label('k1_body_end')
    em.label('L_k1_exit')
    em.op('s_endpgm')
    return em

def main():
    ref = open('cdna_kernels/' + NAME + '.s.ref').read().split('\n')
    head = [l for l in ref[:9]]
    k1 = gen_k1()
    KN = NAME + '_kernel'
    out = '\n'.join(head) + '\n'
    out += f'; @launch grid=(256,1,1) block=(512,1,1) lds={LDS1}\n'
    out += '.amdgcn_target "amdgcn-amd-amdhsa--gfx950"\n.text\n'
    out += kernel_header(KN) + k1.text()
    out += '.section .rodata,"a"\n.p2align 6\n' + kernel_desc(KN, 256)
    open(sys.argv[1], 'w').write(out)
    print('k1 instrs', k1.count, 'nops', k1.nops, file=sys.stderr)
main()
```

```python
import sys, struct, math
from em import Em, interleave, emit

NAME = 'standalone__gqa_block_cached__near_ridge'
def fbits(x): return struct.unpack('<I', struct.pack('<f', x))[0]

class Cfg:
    nt_kv = True
    nt_w = False
    nt_k2 = False
    two_types = True
    pre = True
    code_pre = True
    diag = False
    pk = True
    rfrac = 60
    prio = 0
    x_noexp = 0
    x_nopw = 0
    efrac = 95
    loopb = -1
    st = 0
    dbg = 0
    n0 = 2
    inpv0 = 0
    inpv1 = 0
    pfa = 5
    kq = 12
    kq0 = 7
    wont = 0
    vrf = 60
    x_ren = 0
    vrole = 1
    vfirst = 0
    vold = 0
    vh0 = 12
    wsoff = 0
    cearly = 1
    pfall = 0
    nt_k = 1
    nt_v = 1
    eager = 3
    eagerv = 0
    qwi = 1
    g2lo = 0
    g2hi = 30
    valo = 0
    vahi = 60
    pf1 = 10
    v0e = 0
    kqb = 0
    kqb0 = 7
    vb = 0
    vreg = 0
    nvy = 4
    sc_o = 1
    sc_ol = 1
    rt = 0
    qloop = 0
    x_qnodma = 0
    x_qnord = 0
    dlo = 10
    dhi = 95
    dsplit = 3
    x_delay = 0
    wopre = 1
    sc = 1
    x_nobar = 0
    x_nord = 0
    x_nodma = 0
cfg = Cfg()
cfg.pvst = (3,7); cfg.qst = (0,8,)
if 'pvall=1' in sys.argv: sys.argv.remove('pvall=1'); cfg.pvst = (0,1,2,3,4,5,6,7); cfg.qst = (); cfg.fewst = True
else: cfg.fewst = False
for a in sys.argv[2:]:
    k, v = a.split('='); setattr(cfg, k, type(getattr(cfg, k))(int(v)))
STSETS = {0: 'S0 BQ BM PV0 BO T0 T2 TP TW TF', 1: 'ka pi si S0 B0 B8 BQ K0 K1 QKend BM exp0 PV0', 2: 'PV0 PB0 PB1 PB2 PB3 PB4 PB5 PB6 PB7 BO', 3: 'BO T0 T1 poll T2 T3 T10 TP TW TF', 4: 'K0 K1 QKend BM exp0 PV0 PB3 PB7 BO T0', 8: '', 5: 'S0 LB0 LBend BQ', 6: 'S0 B0 B1 B2 B3 B5 B7 B8 B9 BQ', 7: 'BO T0 T1 T2 T3 T4 T6 T8 T10 TP'}
cfg.stlist = ['rt0', 'start'] + STSETS[cfg.st].split()[:10] + ['end', 'rt_end']
cfg.pvst = range(8); cfg.qst = range(10)

def vr(b, n=4): return f'v[{b}:{b + n - 1}]' if n > 1 else f'v{b}'
def sr(b, n): return f's[{b}:{b + n - 1}]'
MF = 'v_mfma_f32_16x16x32_bf16'
def mfma(d, a, b, c=None):
    return f'{MF} {vr(d)}, {vr(a)}, {vr(b)}, ' + ('0' if c is None else vr(c))

FLAG_OFF = 28 << 20
PART2 = 46080
O_HEAD = 55296
WS_PART = 16 << 20
PART_TILE = 90 * 1024

def srd(em, d, base_lo, base_hi, off_sgpr, size):
    if off_sgpr is None:
        em.op(f's_mov_b32 s{d}, s{base_lo}'); em.op(f's_mov_b32 s{d+1}, s{base_hi}')
    else:
        em.op(f's_add_u32 s{d}, s{base_lo}, {off_sgpr}'); em.op(f's_addc_u32 s{d+1}, s{base_hi}, 0')
    em.op(f's_mov_b32 s{d+2}, {size}')
    em.op(f's_mov_b32 s{d+3}, 0x20000')

_lab = [0]
DIAG_OFF = 64 << 20
class Stamps:
    def __init__(self, em):
        self.em = em; self.n = 0; self.names = []
        if cfg.diag:
            for i in range(len(cfg.stlist)): em.op(f's_mov_b32 s{60 + 2*i}, 0')
    def stamp(self, name, real=False):
        if not cfg.diag or name not in cfg.stlist: return
        em = self.em; i = cfg.stlist.index(name)
        em.wait_lgkm0()
        em.op(('s_memrealtime' if (real or cfg.rt) else 's_memtime') + f' s[{60 + 2*i}:{61 + 2*i}]')
        em.op('s_waitcnt lgkmcnt(0)')
    def flush(self, ws_lo, kidx, wave_s, tv):
        if not cfg.diag: return
        em = self.em
        self.stamp('end'); self.stamp('rt_end', real=True)
        if cfg.dbg:
            _lab[0] += 1
            em.op('s_load_dwordx2 s[56:57], s[0:1], 48')
            em.op(f's_and_b32 s58, s2, 0xdf'); em.op(f's_or_b32 s58, s58, s{wave_s}'); em.op('s_cmp_eq_u32 s58, 0')
            em.op('s_waitcnt lgkmcnt(0)')
            em.op(f's_cbranch_scc0 L_dbg{_lab[0]}')
            em.op(f'v_mov_b32 v{tv}, s2')
            for k, i in enumerate([2, 3, 4, 13, 6, 9, 11, 12]):
                em.op(f's_sub_u32 s58, s{60 + 2*i}, s{60 if i == 13 else 62}')
                em.op(f'v_mov_b32 v{tv+1}, s58')
                em.op(f'global_store_dword v{tv}, v{tv+1}, s[56:57] offset:{4*k}')
            em.label(f'L_dbg{_lab[0]}')
            return
        em.op(f's_lshl_b32 s56, s2, 3'); em.op(f's_add_u32 s56, s56, s{wave_s}'); em.op('s_lshl_b32 s56, s56, 7')
        em.op(f's_add_u32 s56, s56, {DIAG_OFF + (kidx << 20)}')
        em.op(f's_add_u32 s56, s{ws_lo}, s56'); em.op(f's_addc_u32 s57, s{ws_lo+1}, 0')
        em.op(f'v_mov_b32 v{tv}, 0')
        for i in range(len(cfg.stlist)):
            em.op(f'v_mov_b32 v{tv+1}, s{60 + 2*i}')
            em.op(f'global_store_dword v{tv}, v{tv+1}, s[56:57] offset:{4*i}')
        print('stamps', kidx, cfg.stlist, file=sys.stderr)

SX, SWQ, SK, SV, SO = 16, 20, 24, 28, 32
sW, sW3072, sW1024, sTYPE, sOFF, sT0, sT1, sT2, sC, sB, sH, sJ, sLOC, sX = 36, 37, 38, 39, 40, 41, 42, 43, 44, 52, 46, 47, 48, 53
vLANE, vXO, vWO, vK0, vK1, vVO = 1, 2, 3, 4, 5, 6
vRA = [7, 8]
vRB = [9, 10, 11]
vRC = [12, 13, 14]
vT = 15
vOW = [104, 105, 106]
vVW, vVW2 = 7, 8
vPA, vPW, vMS = 240, 242, 243
vPW2 = 241
TMP = list(range(244, 256))
STG = 43008
PBASE, VBASE, MAXB, SUMB = 0, 55296, 153600, 155648
NV = 4
def vslot(s): return [3, 1, 2, 0][s % 4]
LDS1 = SUMB + 12 * 512
def kop(kt, ks): return 16 + 4 * (kt * 6 + ks)
def sreg(kt, qt):
    if kt < 2: return 116 + 4 * (qt * 2 + kt)
    i = qt * 2 + (kt - 2)
    return 16 + 4 * i if i < 12 else 188 + 4 * (i - 12)
ACC = 116
MC = 212
SUM = 221
SUMP = 222
QF = 224
OACC0 = [116 + 4*i for i in range(15)]
OACC1 = [120 + 8*i for i in range(9)] + [112, 2, 248]
PAF0 = [[176, 180, 184], [20, 28, 36]]
PAF1 = [[20, 28, 36], [44, 52, 60]]
PBF0 = [[44, 52, 60, 192, 200], [208, 112, 2, 248, 252]]
PBF1 = [[192, 200, 208, 252], [216, 220, 224, 228]]
INV0 = 230
NEXP1 = 4


sKB = 57
vKR = [250, 251]
vVO3 = 252
def k_dma_ops(em, half):
    nt = ' nt' if cfg.nt_kv and cfg.nt_k else ''
    ops = []
    for c in range(3):
        for k in range(2):
            for p in range(2):
                def f(c=c, k=k, p=p):
                    em.op(f's_add_u32 m0, s{sKB}, {(k * 3 + c) * 2048 + p * 1024 - c * 128}')
                    em.op(f's_mov_b32 s{sOFF}, {(half * 2 + k) * 6144}')
                    em.op(f'buffer_load_dwordx4 v{vK1 if p else vK0}, {sr(SK,4)}, s{sOFF} offen offset:{c*128}{nt} lds', tag=f'K{half}_{c * 2 + k}')
                ops.append(f)
    return ops
def k_rd_ops(half, u):
    c, k = divmod(u, 2)
    return [f'ds_read_b128 {vr(kop(half * 2 + k, 2 * c + e))}, v{vKR[e]} offset:{(k * 3 + c) * 2048}' for e in range(2)]
def k_fetch(em, half, nxt):
    for u in range(6):
        em.wait_vm_tag(f'K{half}_{u}')
        for o in k_rd_ops(half, u): em.op(o)
        if nxt and u:
            em.waitcnt(lgkm=2); em.lgkm = em.lgkm[-2:]
            for f in nxt[2 * u - 2: 2 * u]: f()
    if nxt:
        em.wait_lgkm0()
        for f in nxt[10:12]: f()
def va_ops(em):
    nt = ' nt' if cfg.nt_kv and cfg.nt_v else ''
    ops = []
    for rg in range(4):
        for c in range(3):
            def f(c=c, rg=rg):
                em.op(f's_add_u32 m0, s{sKB}, {rg * 3072 + c * 896}')
                em.op(f's_mov_b32 s{sOFF}, {rg * 3072}')
                em.op(f'buffer_load_dwordx4 v{vVO3}, {sr(SV,4)}, s{sOFF} offen offset:{c*128}{nt} lds', tag='VA')
            ops.append(f)
    return ops

def stage_dma_ops(em, s, qh):
    nt = ' nt' if cfg.nt_w else ''
    slot = (s % 3) * 18432
    ops = []
    for c in range(3):
        def f(c=c):
            em.op(f's_add_u32 m0, s{sW3072}, {VBASE + (s % 3) * 24576 + c * 896}')
            if c == 0: em.op(f's_mov_b32 s{sOFF2}, {s * 786432}')
            em.op(f'buffer_load_dwordx4 v{vWO}, {sr(SWQ,4)}, s{sOFF2} offen offset:{c*128}{nt} lds', tag=f'S{s}')
        ops.append(f)
    for j in range(2):
        def f(j=j):
            em.op(f's_add_u32 m0, s{sW1024}, {slot + j * 8192}')
            em.op(f's_mov_b32 s{sOFF}, {s * 128 + j * 81920}')
            em.op(f'buffer_load_dwordx4 v{vXO}, {sr(SX,4)}, s{sOFF} offen{nt} lds', tag=f'S{s}')
        ops.append(f)
    if qh == 1:
        def f():
            _lab[0] += 1
            lab = f'L_x{_lab[0]}'
            em.op(f's_cmp_lt_u32 s{sW}, 6')
            em.op(f's_cbranch_scc0 {lab}')
            em.begin_opt()
            em.op(f's_add_u32 m0, s{sW1024}, {slot + 12288}')
            em.op(f's_mov_b32 s{sOFF}, {s * 128 + 122880}')
            em.op(f'buffer_load_dwordx4 v{vXO}, {sr(SX,4)}, s{sOFF} offen{nt} lds', tag=f'S{s}')
            em.end_opt()
            em.label(lab)
        ops.insert(0, f)
    return ops

def v_dma_ops(em, s):
    nt = ' nt' if cfg.nt_kv and cfg.nt_v else ''
    ops = []
    for c in range(3):
        def f(c=c):
            em.op(f's_add_u32 m0, s{sW3072}, {VBASE + vslot(s) * 24576 + c * 896}')
            em.op(f's_mov_b32 s{sOFF}, {(128 * (s & 3) + 32 * (s >> 2)) * 384}')
            em.op(f'buffer_load_dwordx4 v{vVO}, {sr(SV,4)}, s{sOFF} offen offset:{c*128}{nt} lds', tag=f'V{s}')
        ops.append(f)
    return ops

sDG = 49
sPFS, sPFB = 45, 50
sOFF2 = 3
vPF = 241
def pf_ops():
    if not cfg.pre: return []
    nt = ' nt' if cfg.nt_w else ''
    return [f'global_load_dwordx4 {vr(112)}, v{vPF}, s[{sPFB}:{sPFB+1}]{nt}', f'v_add_u32 v{vPF}, s{sPFS}, v{vPF}']
sTAG, sSTR, sF1, sF2, sHB, sM0T, sQ0, sNH, sCNT = 88, 89, 90, 92, 94, 98, 99, 100, 101
VST = 64
def v_reg_ops(em):
    nt = ' nt' if cfg.nt_kv and cfg.nt_v else ''
    ops = []
    for s in range(4, 8):
        for c in range(3):
            def f(s=s, c=c):
                em.op(f's_mov_b32 s{sOFF}, {(128 * (s & 3) + 32 * (s >> 2)) * 384}')
                em.op(f'buffer_load_dwordx4 {vr(VST + 4 * ((s - 4) * 3 + c))}, v{vVO}, {sr(SV,4)}, s{sOFF} offen offset:{c*128}{nt}', tag=f'V{s}')
            ops.append(f)
    return ops
def v_put_ops(s):
    slot = vslot(s)
    return [f'ds_write_b128 v{vVW if slot < 2 else vVW2}, {vr(VST + 4 * ((s - 4) * 3 + c))} offset:{(slot % 2) * 24576 + c * 1024}' for c in range(3)]

vPF2 = 254
VTMP = [248, 249, 253]
def pf2_ops():
    nt = ' nt' if cfg.nt_w else ''
    return [f'global_load_dwordx4 {vr(112)}, v{vPF2}, s[{sPFB}:{sPFB+1}]{nt}', f'v_add_u32 v{vPF2}, s{sPFS}, v{vPF2}']

def k1_prologue(em):
    em.op('s_cmp_ge_u32 s2, 256')
    em.op('s_cbranch_scc1 L_k1_exit')
    em.st = Stamps(em); em.st.stamp('rt0', real=True); em.st.stamp('start')
    em.op('s_load_dwordx8 s[4:11], s[0:1], 0')
    em.op('s_load_dwordx2 s[12:13], s[0:1], 56')
    em.op('s_load_dwordx2 s[14:15], s[0:1], 32')
    em.op('s_load_dwordx2 s[54:55], s[0:1], 40')
    em.op(f'v_and_b32 v{vLANE}, 63, v0')
    em.op(f'v_lshrrev_b32 v{vT}, 6, v0')
    em.op(f's_and_b32 s{sX}, s2, 7')
    em.op(f's_lshr_b32 s{sLOC}, s2, 3')
    em.op(f'v_readfirstlane_b32 s{sW}, v{vT}')
    t0, t1, t2, t3, t4, t5 = TMP[:6]
    L = f'v{vLANE}'
    em.op(f's_and_b32 s{sJ}, s{sLOC}, 3')
    em.op(f's_lshr_b32 s{sB}, s{sLOC}, 2')
    em.op(f's_lshl_b32 s{sH}, s{sX}, 2')
    em.op(f's_add_u32 s{sH}, s{sH}, s{sJ}')
    em.op(f's_and_b32 s{sTYPE}, s{sB}, 1')
    em.op(f's_lshl_b32 s{sT0}, s{sLOC}, 1'); em.op(f's_mul_i32 s{sT0}, s{sT0}, 12288'); em.op(f's_mul_i32 s{sT1}, s{sX}, 1536'); em.op(f's_add_u32 s{sT0}, s{sT0}, s{sT1}')
    em.op(f's_lshl_b32 s{sT1}, s{sW}, 9'); em.op(f's_add_u32 s{sT0}, s{sT0}, s{sT1}')
    em.op(f'v_lshrrev_b32 v{t3}, 5, {L}'); em.op(f'v_mul_u32_u24 v{t3}, 12288, v{t3}')
    em.op(f'v_and_b32 v{t4}, 31, {L}'); em.op(f'v_lshlrev_b32 v{t4}, 4, v{t4}')
    em.op(f'v_add3_u32 v{t5}, v{t3}, v{t4}, s{sT0}')
    em.op(f'v_lshrrev_b32 v{t0}, 3, {L}')
    em.op(f'v_and_b32 v{t1}, 7, {L}')
    em.op(f'v_lshrrev_b32 v{t2}, 4, {L}')
    em.op(f's_mul_i32 s{sT0}, s{sLOC}, 36'); em.op(f's_lshl_b32 s{sT2}, s{sW}, 3'); em.op(f's_add_u32 s{sT0}, s{sT0}, s{sT2}'); em.op(f's_sub_u32 s{sT0}, s{sT0}, 24')
    em.op(f'v_add_u32 v{t3}, s{sT0}, v{t0}')
    em.op(f's_cmp_lt_u32 s{sW}, 3')
    em.op(f's_cselect_b64 vcc, -1, 0')
    em.op(f's_movk_i32 s{sPFS}, 128')
    em.op(f's_cselect_b32 s{sPFS}, 786432, s{sPFS}')
    for dst, dr, dw in ((vPF, 0, 0), (vPF2, 144, 98304) if not cfg.pfall else (vPF2, -144 & 0xffffffff, -98304 & 0xffffffff)):
        if dst == vPF2 and cfg.pf1 >= 10 and not cfg.pfall: continue
        em.op(f'v_add_u32 v{t4}, {dr}, v{t3}'); em.op(f'v_min_u32 v{t4}, 1151, v{t4}')
        em.op(f'v_mul_u32_u24 v{t4}, 1280, v{t4}')
        em.op(f'v_lshl_add_u32 v{t4}, v{t1}, 4, v{t4}')
        em.op(f'v_add_u32 v{dst}, {dw}, v{t5}')
        em.op(f'v_cndmask_b32 v{dst}, v{t4}, v{dst}, vcc')
    if cfg.pf1 < 10:
        em.op(f's_mul_i32 s{sT0}, s{sPFS}, {cfg.pf1}'); em.op(f'v_add_u32 v{vPF2}, s{sT0}, v{vPF2}')
    em.op(f's_and_b32 s{sDG}, s{sW}, 3')
    em.op(f's_mul_i32 s{sW3072}, s{sW}, 3072')
    em.op(f's_lshl_b32 s{sW1024}, s{sW}, 10')
    em.op(f's_and_b32 s{sT0}, s{sW}, 1')
    em.op(f's_lshl_b32 s{sT1}, s{sT0}, 2')
    em.op(f'v_add_u32 v{t3}, s{sT1}, v{t2}')
    em.op(f'v_xor_b32 v{t3}, v{t3}, v{t1}')
    em.op(f'v_add_u32 v{t4}, s{sT2}, v{t0}')
    em.op(f'v_mul_u32_u24 v{vXO}, 1280, v{t4}')
    em.op(f'v_lshl_add_u32 v{vXO}, v{t3}, 4, v{vXO}')
    em.op(f'v_and_b32 v{t3}, 1, v{t2}')
    em.op(f'v_lshl_add_u32 v{t3}, v{t3}, 1, s{sT1}')
    em.op(f'v_xor_b32 v{t3}, v{t3}, v{t1}')
    em.op(f'v_mul_u32_u24 v{vWO}, 12288, v{t4}')
    em.op(f'v_lshl_add_u32 v{vWO}, v{t3}, 4, v{vWO}')
    em.op(f's_lshl_b32 s{sT2}, s{sW}, 6')
    em.op(f'v_add_u32 v{t4}, s{sT2}, v{t0}')
    em.op(f'v_mul_u32_u24 v{t4}, 384, v{t4}')
    em.op(f'v_xor_b32 v{t3}, v{t2}, v{t1}')
    em.op(f'v_lshl_add_u32 v{vK0}, v{t3}, 4, v{t4}')
    em.op(f'v_xor_b32 v{vK1}, 64, v{vK0}')
    em.op(f'v_add_u32 v{vK1}, {8 * 384}, v{vK1}')
    em.op(f'v_lshlrev_b32 v{t3}, 1, v{t2}')
    em.op(f'v_xor_b32 v{t3}, v{t3}, v{t1}')
    em.op(f'v_lshl_add_u32 v{vVO3}, v{t3}, 4, v{t4}')
    em.op(f's_and_b32 s{sT1}, s{sW}, 6'); em.op(f's_lshr_b32 s{sKB}, 0x27, s{sT1}'); em.op(f's_and_b32 s{sKB}, s{sKB}, 3')
    em.op(f's_lshl_b32 s{sKB}, s{sKB}, 1'); em.op(f's_add_u32 s{sKB}, s{sKB}, s{sT0}'); em.op(f's_mul_i32 s{sKB}, s{sKB}, 12288'); em.op(f's_add_u32 s{sKB}, s{sKB}, {VBASE}')
    em.op(f'v_bfe_u32 v{t3}, {L}, 3, 1'); em.op(f'v_lshlrev_b32 v{t3}, 10, v{t3}')
    em.op(f'v_lshl_add_u32 v{t3}, v{t1}, 7, v{t3}')
    em.op(f'v_bfe_u32 v{t4}, {L}, 1, 3')
    em.op(f'v_xor_b32 v{t4}, v{t4}, v{t2}'); em.op(f'v_lshlrev_b32 v{vT}, 4, v{t4}')
    em.op(f'v_add_u32 v{vRA[0]}, v{t3}, v{vT}')
    em.op(f'v_add_u32 v{vKR[0]}, s{sKB}, v{vRA[0]}')
    em.op(f'v_xor_b32 v{vKR[1]}, 64, v{vKR[0]}')
    em.op(f's_lshr_b32 s{sT1}, s{sW}, 2'); em.op(f's_lshl_b32 s{sT1}, s{sT1}, 6')
    em.op(f's_lshl_b32 s{sT0}, s{sDG}, 3'); em.op(f's_add_u32 s{sT0}, s{sT0}, s{sT1}')
    em.op(f'v_add_u32 v{t3}, s{sT0}, v{t0}')
    em.op(f'v_mul_u32_u24 v{vVO}, 384, v{t3}')
    em.op(f'v_lshlrev_b32 v{t3}, 1, v{t2}')
    em.op(f'v_xor_b32 v{t3}, v{t3}, v{t1}')
    em.op(f'v_lshl_add_u32 v{vVO}, v{t3}, 4, v{vVO}')
    em.op(f's_mul_i32 s{SX+3}, s{sB}, 184320')
    em.op(f's_mul_i32 s{SWQ+3}, s{sH}, 384')
    em.op(f's_lshl_b32 s{sT1}, s{sB}, 5'); em.op(f's_add_u32 s{sT1}, s{sT1}, s{sH}')
    em.op(f's_mul_i32 s{sT2}, s{sT1}, 196608')
    em.op(f's_mul_i32 s{SO+3}, s{sT1}, {O_HEAD}')
    em.op(f's_lshl_b32 s{sT0}, s{sB}, 8'); em.op(f's_add_u32 s{sT0}, s{sT0}, {FLAG_OFF}')
    em.op(f's_mov_b32 s{SX+2}, 184320'); em.op(f's_sub_u32 s{SWQ+2}, 7864320, s{SWQ+3}')
    em.op(f's_cmp_lt_u32 s{sW}, 3')
    em.op('s_waitcnt lgkmcnt(0)')
    em.st.stamp('ka')
    if cfg.diag: em.op(f's_cmp_lt_u32 s{sW}, 3')
    em.op(f's_cselect_b64 s[{sPFB}:{sPFB+1}], s[10:11], s[4:5]')
    for i in range(0 if cfg.pfall else 3):
        for o in pf_ops(): em.op(o)
    if cfg.cearly:
        em.op('s_getpc_b64 s[58:59]')
        em.label('L_pce')
        em.op('s_add_u32 s58, s58, k1_body_start-L_pce')
        em.op('s_addc_u32 s59, s59, 0')
        em.op(f's_and_b32 s{sT1}, s{sLOC}, 15')
        em.op(f's_lshl_b32 s{sT1}, s{sT1}, 13')
        em.op(f'v_lshlrev_b32 v{TMP[11]}, 4, v0')
        em.op(f'v_add_u32 v{TMP[11]}, s{sT1}, v{TMP[11]}')
        em.op(f'v_min_u32 v{TMP[11]}, k1_body_end-k1_body_start-16, v{TMP[11]}')
        em.op(f'global_load_dwordx4 {vr(112)}, v{TMP[11]}, s[58:59]')
    if cfg.wsoff:
        em.op(f's_add_u32 s12, s12, {cfg.wsoff << 20}'); em.op('s_addc_u32 s13, s13, 0')
    em.op(f's_load_dword s{sTAG}, s[12:13], s{sT0}')
    em.op(f's_add_u32 s{SWQ}, s10, s{SWQ+3}'); em.op(f's_addc_u32 s{SWQ+1}, s11, 0'); em.op(f's_mov_b32 s{SWQ+3}, 0x20000')
    em.op(f's_add_u32 s{SX}, s4, s{SX+3}'); em.op(f's_addc_u32 s{SX+1}, s5, 0'); em.op(f's_mov_b32 s{SX+3}, 0x20000')
    srd(em, SK, 6, 7, f's{sT2}', 196608); srd(em, SV, 8, 9, f's{sT2}', 196608)
    if cfg.n0:
        em.op(f's_cmp_eq_u32 s{sTYPE}, 1')
        em.op('s_cbranch_scc0 L_nok1')
        em.begin_opt()
        for i in range(10 if cfg.pfall else cfg.pf1 - 3):
            if cfg.pfall:
                for o in pf2_ops(): em.op(o)
            if cfg.pfall != 2:
                for o in pf_ops(): em.op(o)
        if cfg.pfall == 2:
            for i in range(10):
                for o in pf_ops(): em.op(o)
        em.end_opt()
        em.label('L_nok1')
    if cfg.n0:
        em.op(f's_lshr_b32 s{sT0}, s{sW}, 2'); em.op(f's_lshl_b32 s{sT0}, s{sT0}, 1'); em.op(f's_or_b32 s{sT0}, s{sT0}, s{sTYPE}')
        for v in (0, 2, 3):
            em.op(f's_cmp_eq_u32 s{sT0}, {v}')
            em.op(f's_cbranch_scc1 L_qp{v >> 1}{v & 1}')
    else:
        em.op(f's_cmp_lt_u32 s{sW}, 4')
        em.op('s_cbranch_scc0 L_qp10')

def tr_addr(em, dst, t, base, fmode):
    t0, t1, t2, t3 = TMP[:4]
    L = f'v{vLANE}'
    em.op(f's_mul_i32 s{sT0}, s{sDG}, 3'); em.op(f's_add_u32 s{sT0}, s{sT0}, {t}')
    em.op(f's_lshr_b32 s{sT1}, s{sT0}, 2'); em.op(f's_lshl_b32 s{sT1}, s{sT1}, 10')
    em.op(f's_add_u32 s{sT1}, s{sT1}, {base}')
    em.op(f's_and_b32 s{sT0}, s{sT0}, 3')
    em.op(f'v_lshrrev_b32 v{t0}, 4, {L}')
    em.op(f'v_bfe_u32 v{t1}, {L}, 2, 2')
    em.op(f'v_and_b32 v{t2}, 1, v{t0}')
    em.op(f'v_lshlrev_b32 v{t2}, 1, v{t2}')
    em.op(f'v_lshrrev_b32 v{t3}, 1, v{t1}')
    em.op(f'v_add_u32 v{t3}, v{t3}, v{t2}')
    em.op(f'v_xor_b32 v{t3}, s{sT0}, v{t3}')
    em.op(f'v_lshlrev_b32 v{t3}, 5, v{t3}')
    em.op(f'v_lshlrev_b32 v{dst}, 7, v{t1}')
    em.op(f'v_add_u32 v{dst}, v{dst}, v{t3}')
    if fmode == 'w':
        em.op(f'v_mul_u32_u24 v{t3}, 3072, v{t0}')
    else:
        em.op(f'v_lshlrev_b32 v{t2}, 8, v{t2}')
        em.op(f'v_add_u32 v{dst}, v{dst}, v{t2}')
        em.op(f'v_lshrrev_b32 v{t3}, 1, v{t0}')
        em.op(f'v_mul_u32_u24 v{t3}, 3072, v{t3}')
    em.op(f'v_add_u32 v{dst}, v{dst}, v{t3}')
    em.op(f'v_and_b32 v{t3}, 3, {L}')
    em.op(f'v_lshlrev_b32 v{t3}, 3, v{t3}')
    em.op(f'v_add_u32 v{dst}, v{dst}, v{t3}')
    em.op(f'v_add_u32 v{dst}, s{sT1}, v{dst}')

class Cap:
    def __init__(self): self.ops = []
    def op(self, t, tag=None): self.ops.append(t)

def k1_qproj(em, qh, typ):
    nq = 5 if qh == 0 else 4
    q0 = 0 if qh == 0 else 5
    L = f'v{vLANE}'
    t0, t1, t2, t3, t4, t5 = TMP[:6]
    rf = cfg.rfrac / 100
    if cfg.prio and qh == 1: em.op('s_setprio 1')
    npre = cfg.n0 if typ == 1 else 0
    if npre:
        for f in k_dma_ops(em, 0): f()
        em.wait_lgkm0(force=True)
        k_fetch(em, 0, k_dma_ops(em, 1) if npre == 2 else None)
        if npre == 2: k_fetch(em, 1, None)
        em.wait_lgkm0()
    em.barrier()
    for f in stage_dma_ops(em, 0, qh): f()
    em.barrier()
    for f in stage_dma_ops(em, 1, qh): f()
    em.op(f's_add_u32 s{SO}, s12, s{SO+3}'); em.op(f's_addc_u32 s{SO+1}, s13, 0'); em.op(f's_mov_b32 s{SO+2}, {O_HEAD}'); em.op(f's_mov_b32 s{SO+3}, 0x20000')
    em.op(f's_mov_b32 s{sC}, {fbits(192 ** -0.5 * math.log2(math.e))}')
    if cfg.code_pre and not cfg.cearly:
        em.op('s_getpc_b64 s[58:59]')
        em.label(f'L_pc{qh}{typ}')
        em.op(f's_add_u32 s58, s58, k1_body_start-L_pc{qh}{typ}')
        em.op('s_addc_u32 s59, s59, -1')
        em.op(f's_and_b32 s{sT1}, s{sLOC}, 15')
        em.op(f's_lshl_b32 s{sT1}, s{sT1}, 13')
        em.op(f'v_lshlrev_b32 v{TMP[11]}, 4, v0')
        em.op(f'v_add_u32 v{TMP[11]}, s{sT1}, v{TMP[11]}')
        em.op(f'v_min_u32 v{TMP[11]}, k1_body_end-k1_body_start-16, v{TMP[11]}')
    em.st.stamp('si')
    em.op(f'v_lshlrev_b32 v{t3}, 2, v0')
    em.op(f'v_add_u32 v{t3}, {MAXB}, v{t3}')
    em.op(f'v_mov_b32 v{t4}, 0xff800000')
    em.op(f'ds_write_b32 v{t3}, v{t4}')
    em.op(f'v_and_b32 v{vMS}, 15, {L}')
    em.op(f'v_lshlrev_b32 v{vMS}, 2, v{vMS}')
    em.op(f'v_add_u32 v{vMS}, {MAXB}, v{vMS}')
    em.op(f'v_add_u32 v{vRA[0]}, {q0 * 2048}, v{vRA[0]}')
    em.op(f'v_xor_b32 v{vRA[1]}, 64, v{vRA[0]}')
    for t in range(3): tr_addr(em, vRB[t], t, VBASE, 'w')
    for t in range(3):
        em.op(f's_mul_i32 s{sT0}, s{sDG}, 3'); em.op(f's_add_u32 s{sT0}, s{sT0}, {t}'); em.op(f's_lshl_b32 s{sT0}, s{sT0}, 1')
        em.op(f'v_lshrrev_b32 v{t0}, 5, {L}')
        em.op(f'v_add_u32 v{t0}, s{sT0}, v{t0}')
        em.op(f'v_lshrrev_b32 v{t1}, 3, v{t0}'); em.op(f'v_lshlrev_b32 v{t1}, 7, v{t1}')
        em.op(f'v_and_b32 v{t0}, 7, v{t0}')
        em.op(f'v_bfe_u32 v{t2}, {L}, 1, 3')
        em.op(f'v_xor_b32 v{t0}, v{t0}, v{t2}'); em.op(f'v_lshlrev_b32 v{t0}, 4, v{t0}')
        em.op(f'v_add_u32 v{t0}, v{t0}, v{t1}')
        em.op(f'v_and_b32 v{t1}, 15, {L}'); em.op(f'v_mul_u32_u24 v{t1}, 384, v{t1}')
        em.op(f'v_add_u32 v{t0}, v{t0}, v{t1}')
        em.op(f'v_bfe_u32 v{t1}, {L}, 4, 1'); em.op(f'v_lshlrev_b32 v{t1}, 3, v{t1}')
        em.op(f'v_add_u32 v{vRC[t]}, v{t0}, v{t1}')
    em.op(f'v_lshlrev_b32 v{vPA}, 4, {L}')
    em.op(f's_lshl_b32 s{sT0}, s{sW}, 2'); em.op(f's_lshr_b32 s{sT1}, 0x10543210, s{sT0}'); em.op(f's_and_b32 s{sT1}, s{sT1}, 15'); em.op(f's_mul_i32 s{sT1}, s{sT1}, 9216')
    em.op(f'v_add_u32 v{vPW}, s{sT1}, v{vPA}')
    em.op(f'v_add_u32 v{vPA}, {q0 * 1024}, v{vPA}')
    AF = [176, 188]; BF = [200, 220]
    def q_reads(s, step, st):
        ops = []
        for t in range(3):
            ops.append(f'ds_read_b64_tr_b16 {vr(AF[st] + 4*t, 2)}, v{vRB[t]} offset:{(s % 3) * 24576 + step * 12288}')
            ops.append(f'ds_read_b64_tr_b16 {vr(AF[st] + 4*t + 2, 2)}, v{vRB[t]} offset:{(s % 3) * 24576 + step * 12288 + 512}')
        xs = [f'ds_read_b128 {vr(BF[st] + 4*j)}, v{vRA[step]} offset:{(s % 3) * 18432 + j * 2048}' for j in range(nq)]
        return ops[0:2] + xs[0:1] + ops[2:6] + xs[1:]
    def mf(st, first):
        return [mfma(ACC + 4*(j*3+t), AF[st] + 4*t, BF[st] + 4*j, None if first else ACC + 4*(j*3+t)) for j in range(nq) for t in range(3)]
    em.wait_vm_tag('S0', lgkm0=True); em.barrier()
    em.st.stamp('S0')
    em.op(f's_add_u32 s{sTAG}, s{sTAG}, 1')
    for o in q_reads(0, 0, 0): em.op(o)
    em.npre = npre
    nxt = [k_dma_ops(em, 0), k_dma_ops(em, 1), va_ops(em)][npre]
    plan = {15: nxt[0:4], 16: nxt[4:7], 17: nxt[7:10], 18: nxt[10:12]} if qh == 0 else {19: nxt[0:6]}
    late = [] if qh == 0 else nxt[6:12]
    cap = Cap()
    for t in range(3): tr_addr(cap, VTMP[t], t, VBASE, 'v')
    vaddr_ops = cap.ops
    inloop_pf = not (typ == 1 and cfg.n0) and not cfg.pfall
    carry = stage_dma_ops(em, 2, qh) + (sum([pf_ops() for i in range(cfg.pfa - 3)], []) if inloop_pf else [])
    if cfg.code_pre and not cfg.cearly: carry.append(f'global_load_dwordx4 {vr(244)}, v{TMP[11]}, s[58:59]')
    for s in range(10):
        extra = []
        extra = plan.get(2 * s, [])
        interleave(em, mf(0, s == 0), ([] if cfg.x_qnord and 3 < s <= 6 else q_reads(s, 1, 1), 0, rf), (extra, 0.1, 1), (carry, 0.05, cfg.dhi / 100))
        if s < 9: em.wait_vm_tag(f'S{s+1}', lgkm0=True)
        else: em.wait_lgkm0()
        em.barrier()
        if s in cfg.qst: em.st.stamp(f'B{s}')
        if cfg.qloop and s == 6:
            em.op('s_sub_u32 s87, s87, 1'); em.op('s_cmp_lg_u32 s87, 0'); em.op(f's_cbranch_scc1 L_ql{qh}{typ}')
            em.st.stamp('LBend')
        if cfg.qloop and s == 3:
            em.st.stamp('LB0')
            em.op('s_mov_b32 s87, 16'); em.label(f'L_ql{qh}{typ}')
        rd = []; dm = []; extra = []
        if s < 9:
            if not (cfg.x_qnord and 3 <= s < 6): rd += q_reads(s + 1, 0, 0)
        carry = []
        if s + 3 <= 9:
            dm = stage_dma_ops(em, s + 3, qh); dm, carry = dm[:cfg.dsplit], dm[cfg.dsplit:]
            if cfg.x_qnodma and 3 <= s < 6: dm = []; carry = []
        if s == 7: extra = vaddr_ops
        first = (pf_ops() + (pf2_ops() if s + cfg.pfa >= cfg.pf1 and cfg.n0 else []) if inloop_pf and s + cfg.pfa <= 9 and not (cfg.qloop and s >= 3) else []) + plan.get(2 * s + 1, [])
        qw = []
        if s == 9:
            for j in range(nq):
                for t in range(3):
                    a = ACC + 4*(j*3+t)
                    qw.append([f'v_cvt_pk_bf16_f32 v{a}, v{a}, v{a+1}', f'v_cvt_pk_bf16_f32 v{a+1}, v{a+2}, v{a+3}', f'ds_write_b64 v{vRC[t]}, {vr(a,2)} offset:{(q0 + j) * 6144}'])
        n = 3 * nq; lag = 3 if cfg.qwi else n
        ins = [(qw[k], (k + lag + 0.5) / n, (k + lag + 0.5) / n) for k in range(n - lag)] if qw else []
        interleave(em, mf(1, False), (dm, cfg.dlo / 100, cfg.dhi / 100), (rd, 0, rf), (extra, 0, 1), (first, 0, 0.04 if dm else 0.9), *ins)
    for g in qw[max(0, n - lag):]:
        for o in g: em.op(o)
    for f in late: f()
    em.op(f'v_and_b32 v{t1}, 15, {L}'); em.op(f'v_mul_u32_u24 v{t1}, 384, v{t1}')
    em.op(f'v_add_u32 v{vRA[0]}, v{t1}, v{vT}')
    em.op(f'v_xor_b32 v{t0}, 64, v{vT}')
    em.op(f'v_add_u32 v{vRA[1]}, v{t1}, v{t0}')
    for t in range(3): em.op(f'v_mov_b32 v{vRB[t]}, v{VTMP[t]}')
    em.wait_lgkm0(); em.barrier()
    for t in range(3): em.op(f'v_add_u32 v{vRC[t]}, 49152, v{vRB[t]}')
    em.op(f's_lshl_b32 s{sT0}, s{sW}, 2'); em.op(f's_lshr_b32 s{sT1}, 0x32105432, s{sT0}'); em.op(f's_and_b32 s{sT1}, s{sT1}, 15'); em.op(f's_mul_i32 s{sT1}, s{sT1}, 9216')
    em.op(f'v_lshlrev_b32 v{vPW2}, 4, {L}')
    em.op(f'v_add_u32 v{vPW2}, s{sT1}, v{vPW2}')
    em.st.stamp('BQ')

def maxops(half):
    ops = []
    for qt in range(9):
        a, b = sreg(half*2, qt), sreg(half*2+1, qt); m = MC + qt
        if half == 0:
            ops += [f'v_max3_f32 v{m}, v{a}, v{a+1}, v{a+2}', f'v_max3_f32 v{m}, v{m}, v{a+3}, v{b}',
                    f'v_max3_f32 v{m}, v{m}, v{b+1}, v{b+2}', f'v_max_f32 v{m}, v{m}, v{b+3}']
        else:
            ops += [f'v_max3_f32 v{m}, v{m}, v{a}, v{a+1}', f'v_max3_f32 v{m}, v{m}, v{a+2}, v{a+3}',
                    f'v_max3_f32 v{m}, v{m}, v{b}, v{b+1}', f'v_max3_f32 v{m}, v{m}, v{b+2}, v{b+3}']
    return ops

def k1_qk(em, qh):
    def qrd(n):
        qt, ks = divmod(n, 6)
        return f'ds_read_b128 {vr(QF + 4*(n % 4))}, v{vRA[ks & 1]} offset:{qt * 6144 + (ks >> 1) * 128}'
    npre = em.npre
    for half in range(2):
        fill = []
        if half >= npre:
            fill = k_dma_ops(em, 1) if half == 0 else va_ops(em)
            if half == 0 and cfg.eager >> qh & 1:
                k_fetch(em, half, fill); fill = []
            else:
                k_fetch(em, half, None)
                em.wait_lgkm0()
                if half == 1 and cfg.eagerv >> qh & 1:
                    for f in fill: f()
                    fill = []
        for n in range(3): em.op(qrd(n))
        em.st.stamp(f'K{half}')
        main = []
        for n in range(54):
            qt, ks = divmod(n, 6)
            if n + 3 < 54: main.append(qrd(n + 3))
            for k in range(2):
                kt = half * 2 + k
                main.append(mfma(sreg(kt, qt), kop(kt, ks), QF + 4*(n % 4), None if ks == 0 else sreg(kt, qt)))
        m1 = maxops(1)
        if half == 0:
            streams = [(fill, cfg.g2lo / 100, cfg.g2hi / 100)]
        else:
            streams = [(maxops(0), 0.02, 0.5)]
            for qt in range(8): streams.append((m1[qt*4:qt*4+4], max(0.5 + 0.05*qt, (qt + 1.5) / 9), max(0.55 + 0.05*qt, (qt + 1.9) / 9)))
            streams.append((fill, cfg.valo / 100, cfg.vahi / 100))
        interleave(em, main, *streams)
    em.st.stamp('QKend')
    for o in maxops(1)[32:]: em.op(o)
    for qt in range(9): em.op(f'ds_max_f32 v{vMS}, v{MC+qt} offset:{qt*64}')
    em.op(f'v_lshlrev_b32 v{vVW}, 4, v{vLANE}')
    em.op(f'v_add_u32 v{vVW}, s{sW3072}, v{vVW}')
    em.op(f'v_add_u32 v{vVW}, {VBASE}, v{vVW}')
    em.op(f'v_add_u32 v{vVW2}, 49152, v{vVW}')
    em.wait_lgkm0(); em.barrier()
    em.st.stamp('BM')

def expops(r, qt, pk):
    a, b = sreg(2*r, qt), sreg(2*r+1, qt); m = MC + qt
    tA, tB = TMP[0], TMP[2]
    sp = SUMP + 2*qt
    rs = [a, a+1, a+2, a+3, b, b+1, b+2, b+3]
    if pk:
        mb = m & ~1; s = m & 1
        ops = [f'v_pk_fma_f32 {vr(x,2)}, {vr(x,2)}, s[{sC}:{sC+1}], {vr(mb,2)} op_sel:[0,0,{s}] op_sel_hi:[1,0,{s}] neg_lo:[0,0,1] neg_hi:[0,0,1]' for x in rs[::2]]
    else:
        ops = [f'v_fma_f32 v{x}, v{x}, s{sC}, -v{m}' for x in rs]
    ops += [f'v_exp_f32 v{x}, v{x}' for x in rs]
    if pk:
        ops += [f'v_pk_add_f32 {vr(tA,2)}, {vr(a,2)}, {vr(a+2,2)}', f'v_pk_add_f32 {vr(tB,2)}, {vr(b,2)}, {vr(b+2,2)}']
        if r == 0: tailo = [f'v_pk_add_f32 {vr(sp,2)}, {vr(tA,2)}, {vr(tB,2)}']
        else: tailo = [f'v_pk_add_f32 {vr(tA,2)}, {vr(tA,2)}, {vr(tB,2)}', f'v_pk_add_f32 {vr(sp,2)}, {vr(sp,2)}, {vr(tA,2)}']
    else:
        assert r == 1
        ops += [f'v_add_f32 v{sp + (i & 1)}, v{sp + (i & 1)}, v{x}' for i, x in enumerate(rs)]
        tailo = []
    ops += [f'v_cvt_pk_bf16_f32 v{a}, v{a}, v{a+1}', f'v_cvt_pk_bf16_f32 v{a+1}, v{a+2}, v{a+3}',
            f'v_cvt_pk_bf16_f32 v{a+2}, v{b}, v{b+1}', f'v_cvt_pk_bf16_f32 v{a+3}, v{b+2}, v{b+3}']
    return ops + tailo

def pwrite(r, qt, qh):
    return f'ds_write_b128 v{vPW if r == 0 else vPW2}, {vr(sreg(2*r, qt))} offset:{qt*1024}'

def sum_ops():
    L = f'v{vLANE}'
    S = SUM; ops = []
    ops += [f'v_add_f32 v{SUM+qt}, v{SUMP+2*qt}, v{SUMP+2*qt+1}' for qt in range(9)]
    ops += [f'v_mov_b32 v{MC}, 0', f'v_mov_b32 v{MC+1}, 0']
    ta = TMP[2]; tb = TMP[3]
    ops += [f'v_bfe_u32 v{ta}, {L}, 4, 1', f'v_lshlrev_b32 v{ta}, 10, v{ta}', f'v_bfe_u32 v{tb}, {L}, 5, 1', f'v_lshlrev_b32 v{tb}, 9, v{tb}',
            f'v_add_u32 v{ta}, v{ta}, v{tb}', f'v_and_b32 v{tb}, 15, {L}', f'v_lshlrev_b32 v{tb}, 5, v{tb}', f'v_add_u32 v{ta}, v{ta}, v{tb}',
            f's_lshl_b32 s{sT0}, s{sW}, 2', f's_add_u32 s{sT0}, s{sT0}, {SUMB}', f'v_add_u32 v{ta}, s{sT0}, v{ta}']
    for a in (0, 2, 4, 6): ops.append(f'v_permlane32_swap_b32 v{S+a}, v{S+a+1}')
    ops.append(f'v_permlane32_swap_b32 v{S+8}, v{MC}')
    for a in (0, 2, 4, 6): ops.append(f'v_add_f32 v{S+a}, v{S+a}, v{S+a+1}')
    ops.append(f'v_add_f32 v{S+8}, v{S+8}, v{MC}')
    for a in (0, 4): ops.append(f'v_permlane16_swap_b32 v{S+a}, v{S+a+2}')
    ops.append(f'v_permlane16_swap_b32 v{S+8}, v{MC+1}')
    for a in (0, 4): ops.append(f'v_add_f32 v{S+a}, v{S+a}, v{S+a+2}')
    ops.append(f'v_add_f32 v{S+8}, v{S+8}, v{MC+1}')
    for a in (0, 4, 8): ops.append(f'ds_write_b32 v{ta}, v{S+a} offset:{a * 512}')
    return ops

def k1_sm0(em, qh):
    for qt in range(9): em.op(f'ds_read_b32 v{MC+qt}, v{vMS} offset:{qt*64}')
    for qt in range(9): em.op(f'v_mul_f32 v{MC+qt}, s{sC}, v{MC+qt}')
    main = []
    for qt in range(9):
        main += expops(0, qt, True)
        if qh == 0: main.append(pwrite(0, qt, qh))
    for qt in range(9): main += expops(1, qt, True)
    main += sum_ops()
    interleave(em, main, (v_reg_ops(em) if cfg.vreg else [], 0, cfg.vrf / 100))
    em.st.stamp('exp0')
    if qh == 0: em.wait_vm_tag('VA', lgkm0=True)
    else: em.wait_lgkm0()
    em.barrier()
    em.st.stamp('PV0')

def k1_pv(em, qh):
    nq = 5 if qh == 0 else 4
    q0 = 0 if qh == 0 else 5
    L = f'v{vLANE}'
    t0 = TMP[4]
    rf = cfg.rfrac / 100
    PBF = PBF0 if qh == 0 else PBF1
    INV = INV0 + 2 * qh
    PAF = PAF0 if qh == 0 else PAF1
    def pv_reads(s, step, st):
        ops = []
        slot = vslot(s)
        base = vRB if slot < 2 else vRC
        off = (slot % 2) * 24576 + step * 12288
        for t in range(3):
            ops.append(f'ds_read_b64_tr_b16 {vr(PAF[st][t], 2)}, v{base[t]} offset:{off}')
            ops.append(f'ds_read_b64_tr_b16 {vr(PAF[st][t] + 2, 2)}, v{base[t]} offset:{off + 6144}')
        pa, po = vPA, ((2 * s + step) % 6) * 9216
        xs = [f'ds_read_b128 {vr(PBF[st][j])}, v{pa} offset:{po + j * 1024}' for j in range(nq)]
        return ops[0:2] + xs[0:1] + ops[2:6] + xs[1:]
    OACC = OACC0 if qh == 0 else OACC1
    def mf(st, first):
        return [mfma(OACC[j*3+t], PAF[st][t], PBF[st][j], None if first else OACC[j*3+t]) for j in range(nq) for t in range(3)]
    def inv_ops():
        ta = TMP[2]; ops = []
        ops += [f'v_and_b32 v{ta}, 15, {L}', f'v_lshlrev_b32 v{ta}, 5, v{ta}', f'v_add_u32 v{ta}, {SUMB + q0 * 512}, v{ta}']
        for j in range(nq):
            ops += [f'ds_read_b128 {vr(64 + 8*j)}, v{ta} offset:{j * 512}', f'ds_read_b128 {vr(68 + 8*j)}, v{ta} offset:{j * 512 + 16}']
        for j in range(nq):
            r = 64 + 8*j
            ops += [f'v_add_f32 v{r}, v{r}, v{r+1}', f'v_add_f32 v{r+2}, v{r+2}, v{r+3}', f'v_add_f32 v{r+4}, v{r+4}, v{r+5}', f'v_add_f32 v{r+6}, v{r+6}, v{r+7}',
                    f'v_add_f32 v{r}, v{r}, v{r+2}', f'v_add_f32 v{r+4}, v{r+4}, v{r+6}', f'v_add_f32 v{r}, v{r}, v{r+4}', f'v_rcp_f32 v{INV+2*j}, v{r}']
        cap = Cap()
        for t in range(3):
            cap.op(f's_mul_i32 s{sT0}, s{sDG}, 3'); cap.op(f's_add_u32 s{sT0}, s{sT0}, {t}')
            cap.op(f's_lshr_b32 s{sT1}, s{sT0}, 2'); cap.op(f's_mul_i32 s{sT1}, s{sT1}, 20480')
            cap.op(f's_bfe_u32 s{sT2}, s{sT0}, 0x10001'); cap.op(f's_mul_i32 s{sT2}, s{sT2}, 9216'); cap.op(f's_add_u32 s{sT1}, s{sT1}, s{sT2}')
            cap.op(f's_and_b32 s{sT0}, s{sT0}, 1'); cap.op(f's_lshl_b32 s{sT0}, s{sT0}, 3')
            cap.op(f's_add_u32 s{sT0}, s{sT0}, s{sT1}'); cap.op(f's_add_u32 s{sT0}, s{sT0}, 61440')
            cap.op(f'v_add_u32 v{vOW[t]}, s{sT0}, v{vPA}')
        return ops + cap.ops
    def ex(h):
        o = []
        if qh == 0 and h in (5, 6): o += [pwrite(1, qt, qh) for qt in (range(5) if h == 5 else range(5, 9))]
        if qh == 1 and h in (1, 2): o += [pwrite(0, qt, qh) for qt in (range(5) if h == 1 else range(5, 9))]
        if qh == 1 and h in (9, 10): o += [pwrite(1, qt, qh) for qt in (range(5) if h == 9 else range(5, 9))]
        return o
    TS = tail_setup_ops(qh)
    def wopre_ops(i):
        ta = TMP[2 + (i & 1)]
        ops = [f's_mul_i32 s{sT0}, s{sX}, 983040', f's_mul_i32 s{sT1}, s{sLOC}, 30720', f's_add_u32 s{sT0}, s{sT0}, s{sT1}', f's_add_u32 s{sT0}, s{sT0}, {i * 8192}',
               f'v_lshlrev_b32 v{ta}, 4, v0', f'v_add_u32 v{ta}, s{sT0}, v{ta}', f'v_min_u32 v{ta}, {7864320 - 16}, v{ta}',
               f'global_load_dwordx4 {vr(212)}, v{ta}, s[14:15]' + (' nt' if cfg.wont else '')]
        return ops
    for o in pv_reads(0, 0, 0): em.op(o)
    for s in range(8):
        e = ex(2*s)
        if 2*s == 12: e = TS[:len(TS)//3]
        if 2*s == 14: e = TS[2*len(TS)//3:]
        w = wopre_ops(s - 3) if cfg.wopre and 2*s in (6, 8, 10) else []
        interleave(em, mf(0, s == 0), (pv_reads(s, 1, 1), 0, rf), (e, 0, cfg.efrac / 100), (w, 0.5, 0.51))
        if s == 1: em.wait_vm_tag('VA', lgkm0=True)
        elif s < (3 if cfg.vreg else 7): em.wait_vm_tag(f'V{s+1}', lgkm0=True)
        else: em.wait_lgkm0()
        em.barrier()
        em.st.stamp(f'PB{s}')
        rd = pv_reads(s + 1, 0, 0) if s < 7 else []
        dm = (v_put_ops(s + NV) if cfg.vreg else v_dma_ops(em, s + NV)) if s + NV <= 7 else []
        e = ex(2*s+1)
        if 2*s+1 == 11: e = inv_ops()
        if 2*s+1 == 13: e = TS[len(TS)//3: 2*len(TS)//3]
        if 2*s+1 == 15:
            if qh == 0: dm = tail_dma(em, 0) + tail_dma(em, 1)
        w = wopre_ops(3) if cfg.wopre and 2*s+1 == 9 else []
        ins = []
        n = 3 * nq; lag = 4 if cfg.qwi else n
        if s == 7:
            for k in range(n - lag):
                a = OACC[k]; m = INV + 2 * (k // 3)
                g = [f'v_mul_f32 v{a+d}, v{a+d}, v{m}' for d in range(4)] + [f'v_cvt_pk_bf16_f32 v{a}, v{a}, v{a+1}', f'v_cvt_pk_bf16_f32 v{a+1}, v{a+2}, v{a+3}',
                     f'ds_write_b64 v{vOW[k % 3]}, {vr(a,2)} offset:{(k // 3) * 1024}']
                ins.append((g, (k + lag + 0.5) / n, (k + lag + 0.5) / n))
        interleave(em, mf(1, False), (dm, 0.3 if s < 7 and cfg.vreg else 0, (0.9 if cfg.vreg else 0.4) if s < 7 else 1), (rd, 0, rf + 0.1), (e, 0, 1), (w, 0.5, 0.51), *ins)
    late = tail_dma(em, 2) if qh == 0 else []
    main = []
    for j in range(nq):
        for t in range(3):
            if j * 3 + t < n - lag: continue
            a = OACC[j*3+t]
            m = INV + 2*j
            main += [f'v_pk_mul_f32 {vr(a,2)}, {vr(a,2)}, {vr(m,2)} op_sel_hi:[1,0]', f'v_pk_mul_f32 {vr(a+2,2)}, {vr(a+2,2)}, {vr(m,2)} op_sel_hi:[1,0]',
                     f'v_cvt_pk_bf16_f32 v{a}, v{a}, v{a+1}', f'v_cvt_pk_bf16_f32 v{a+1}, v{a+2}, v{a+3}',
                     f'ds_write_b64 v{vOW[t]}, {vr(a,2)} offset:{j * 1024}']
    interleave(em, main, (late, 0, 1))
    em.wait_vm_tag('T0', lgkm0=True); em.barrier()
    em.st.stamp('BO')
    if qh == 0:
        em.op(f's_cmp_lt_u32 s{sW}, 2')
        em.op('s_cbranch_scc0 L_tail1')
        st = em.save(); sn = (em.st.n, list(em.st.names))
        tail(em, 0)
        em.label('L_tail1')
        em.restore(st); em.st.n, em.st.names = sn[0], list(sn[1])
        tail(em, 1)
    else:
        tail(em, 2)

STG2 = 40960
vOFFS = [64, 65, 66, 67, 68]; vA2 = [69, 70, 71, 72, 73]; vB2 = 74
SD, SP, SPR, SOUT = SX, SWQ, SK, SV
def tail_setup_ops(qh):
    c = Cap(); L = f'v{vLANE}'
    t0, t1, t2, t3 = 96, 97, 98, 99
    if qh == 0:
        c.op(f's_mul_i32 s{sT0}, s{sX}, 983040'); c.op(f's_mul_i32 s{sT1}, s{sJ}, 320'); c.op(f's_add_u32 s{sT0}, s{sT0}, s{sT1}')
        srd(c, SD, 14, 15, f's{sT0}', 7864320)
        c.op(f's_sub_u32 s{SD+2}, s{SD+2}, s{sT0}')
        c.op(f's_mov_b32 s{sSTR}, 81920')
        hs = 245760
        c.op(f's_lshl_b32 s{sT2}, s{sW}, 4')
        c.op(f's_mov_b32 s{sT1}, 52429')
        for j in range(5):
            c.op(f'v_add_u32 v{t0}, {j * 64}, {L}')
            c.op(f'v_mul_lo_u32 v{t1}, v{t0}, s{sT1}')
            c.op(f'v_lshrrev_b32 v{t1}, 20, v{t1}')
            c.op(f'v_mul_u32_u24 v{t2}, 20, v{t1}')
            c.op(f'v_sub_u32 v{t2}, v{t0}, v{t2}')
            c.op(f'v_bfe_u32 v{t3}, v{t1}, 2, 1')
            c.op(f'v_lshlrev_b32 v{t3}, 1, v{t3}')
            c.op(f'v_xor_b32 v{t2}, v{t2}, v{t3}')
            c.op(f'v_lshlrev_b32 v{t2}, 4, v{t2}')
            c.op(f'v_add_u32 v{t1}, s{sT2}, v{t1}')
            c.op(f'v_mul_u32_u24 v{t1}, 1280, v{t1}')
            c.op(f'v_add_u32 v{vOFFS[j]}, v{t1}, v{t2}')
    else:
        c.op(f's_lshl_b32 s{sT0}, s{sB}, 5'); c.op(f's_lshl_b32 s{sT1}, s{sX}, 2'); c.op(f's_add_u32 s{sT0}, s{sT0}, s{sT1}')
        c.op(f's_mul_i32 s{sT0}, s{sT0}, {O_HEAD}')
        srd(c, SD, 12, 13, f's{sT0}', 4 * O_HEAD)
        c.op(f's_mov_b32 s{sSTR}, 18432')
        hs = O_HEAD
        c.op(f's_mul_i32 s{sT2}, s{sDG}, 5120')
        c.op(f'v_lshlrev_b32 v{t0}, 4, {L}')
        c.op(f'v_add_u32 v{t0}, s{sT2}, v{t0}')
        for j in range(5): c.op(f'v_add_u32 v{vOFFS[j]}, {j * 1024}, v{t0}')
    c.op(f's_mul_i32 s{sM0T}, s{sDG}, 5120')
    if qh: c.op(f's_add_u32 s{sM0T}, s{sM0T}, 61440')
    for i in range(4):
        c.op(f's_add_u32 s{sT0}, s{sJ}, {i}'); c.op(f's_and_b32 s{sT0}, s{sT0}, 3'); c.op(f's_mul_i32 s{sHB+i}, s{sT0}, {hs}')
    c.op(f's_and_b32 s{sNH}, s{sW}, 1')
    c.op(f'v_lshrrev_b32 v{t0}, 2, {L}')
    c.op(f'v_mul_u32_u24 v{t0}, 320, v{t0}')
    c.op(f'v_and_b32 v{t1}, 3, {L}'); c.op(f'v_lshlrev_b32 v{t1}, 3, v{t1}')
    c.op(f'v_add_u32 v{t0}, v{t0}, v{t1}')
    c.op(f'v_bfe_u32 v{t1}, {L}, 4, 1')
    c.op(f's_mul_i32 s{sT0}, s{sNH}, 5')
    for t in range(5):
        c.op(f's_add_u32 s{sT1}, s{sT0}, {t}')
        c.op(f'v_xor_b32 v{t2}, s{sT1}, v{t1}')
        c.op(f'v_lshlrev_b32 v{t2}, 5, v{t2}')
        c.op(f'v_add_u32 v{vA2[t]}, v{t0}, v{t2}')
    c.op(f's_lshr_b32 s{sT0}, s{sW}, 1')
    c.op(f's_mov_b32 s{sT1}, 0x7350')
    c.op(f's_lshl_b32 s{sT0}, s{sT0}, 2')
    c.op(f's_lshr_b32 s{sQ0}, s{sT1}, s{sT0}')
    c.op(f's_and_b32 s{sQ0}, s{sQ0}, 15')
    c.op(f's_lshl_b32 s{sT0}, s{sQ0}, 10')
    c.op(f's_add_u32 s{sT0}, s{sT0}, 61440')
    c.op(f'v_lshlrev_b32 v{vB2}, 4, {L}')
    c.op(f'v_add_u32 v{vB2}, s{sT0}, v{vB2}')
    c.op(f's_lshl_b32 s{sT0}, s{sB}, 3'); c.op(f's_add_u32 s{sT0}, s{sT0}, s{sX}'); c.op(f's_lshl_b32 s{sT0}, s{sT0}, 7'); c.op(f's_add_u32 s{sT0}, s{sT0}, {FLAG_OFF + 4096}')
    c.op(f's_add_u32 s{sF1}, s12, s{sT0}'); c.op(f's_addc_u32 s{sF1+1}, s13, 0')
    c.op(f's_lshl_b32 s{sT0}, s{sLOC}, 7'); c.op(f's_add_u32 s{sT0}, s{sT0}, {FLAG_OFF + 16384}')
    c.op(f's_add_u32 s{sF2}, s12, s{sT0}'); c.op(f's_addc_u32 s{sF2+1}, s13, 0')
    c.op(f's_mul_i32 s{sT0}, s{sLOC}, {8 * PART2}'); c.op(f's_add_u32 s{sT0}, s{sT0}, {WS_PART}')
    srd(c, SPR, 12, 13, f's{sT0}', 8 * PART2)
    c.op(f's_mul_i32 s{sT1}, s{sX}, {PART2}'); c.op(f's_add_u32 s{sT0}, s{sT0}, s{sT1}')
    srd(c, SP, 12, 13, f's{sT0}', PART2)
    srd(c, SOUT, 54, 55, None, 1474560)
    return c.ops

def tail_dma(em, s, orole=False):
    ops = []
    sc = ' sc1' if (orole and cfg.sc_ol) else ''
    for j in range(5):
        def f(j=j):
            em.op(f's_add_u32 m0, s{sM0T}, {(s % 3) * 20480 + j * 1024}')
            if j == 0:
                if s % 3 == 0: em.op(f's_mov_b32 s{sOFF}, s{sHB + s // 3}')
                else: em.op(f's_add_u32 s{sOFF}, s{sOFF}, s{sSTR}')
            em.op(f'buffer_load_dwordx4 v{vOFFS[j]}, {sr(SD,4)}, s{sOFF} offen{sc} lds', tag=f'T{s}')
        ops.append(f)
    return ops

def flag_store(em, base, idx_s, lab, wave):
    t0, t1 = 50, 51
    em.op(f's_cmp_eq_u32 s{sW}, {wave}')
    em.op(f's_cbranch_scc0 {lab}')
    em.begin_opt()
    em.op(f's_lshl_b32 s{sT0}, s{idx_s}, 2')
    em.op(f'v_mov_b32 v{t0}, s{sT0}')
    em.op(f'v_mov_b32 v{t1}, s{sTAG}')
    em.op('s_mov_b64 exec, 1')
    em.op(f'global_store_dword v{t0}, v{t1}, s[{base}:{base+1}] sc1')
    em.op('s_mov_b64 exec, -1')
    em.end_opt()
    em.label(lab)

def poll(em, base, mask, lab):
    t0, t1 = 52, 53
    em.op(f'v_and_b32 v{t0}, {mask}, v{vLANE}')
    em.op(f'v_lshlrev_b32 v{t0}, 2, v{t0}')
    em.op(f's_mov_b32 s{sCNT}, 0x20000')
    em.wait_vm0()
    em.label(lab)
    em.op(f'global_load_dword v{t1}, v{t0}, s[{base}:{base+1}] sc1')
    em.op(f's_sub_u32 s{sCNT}, s{sCNT}, 1')
    em.op(f's_cbranch_scc1 {lab}_done')
    em.wait_vm0()
    em.op(f'v_cmp_ne_u32 vcc, s{sTAG}, v{t1}')
    em.op('s_nop 4')
    em.op(f's_cbranch_vccz {lab}_done')
    em.op('s_sleep 1')
    em.op(f's_branch {lab}')
    em.label(f'{lab}_done')
    em.wait_vm0()

def tail(em, tv):
    nq = 3 if tv == 0 else 2
    orole = tv == 2
    L = f'v{vLANE}'
    rf = cfg.rfrac / 100
    sc = ' sc1' if cfg.sc else ''
    ACC2 = 116; AF = [76, 96]; BF = [16, 28]; CO = 176
    t0, t1, t2, t3 = 40, 41, 42, 43
    em.op(f'v_lshlrev_b32 v{t0}, 4, v0')
    em.op(f'v_add_u32 v{t1}, 61440, v{t0}')
    npc = 3 if tv == 0 else 2
    k = 0; sts = []
    for c in range(3):
        for i in range(npc):
            va, off = t1, c * 20480
            em.op(f'ds_read_b128 {vr(CO + 4*k)}, v{va} offset:{off + i * 8192}')
            sts.append((CO + 4*k, c * 18432 + i * 8192)); k += 1
    def reads(s, step, st_):
        ops = []
        for t in range(5):
            ops.append(f'ds_read_b64_tr_b16 {vr(AF[st_] + 4*t, 2)}, v{vA2[t]} offset:{(s % 3) * 20480 + step * 10240}')
            ops.append(f'ds_read_b64_tr_b16 {vr(AF[st_] + 4*t + 2, 2)}, v{vA2[t]} offset:{(s % 3) * 20480 + step * 10240 + 5120}')
        xs = [f'ds_read_b128 {vr(BF[st_] + 4*j)}, v{vB2} offset:{(s % 3) * 20480 + step * 9216 + j * 1024}' for j in range(nq)]
        return ops[0:2] + xs + ops[2:]
    def mf(st_, first):
        return [mfma(ACC2 + 4*(t*nq+j), AF[st_] + 4*t, BF[st_] + 4*j, None if first else ACC2 + 4*(t*nq+j)) for t in range(5) for j in range(nq)]
    for r, off in sts:
        em.op(f's_mov_b32 s{sT0}, {off}')
        em.op(f'buffer_store_dwordx4 {vr(r)}, v{t0}, {sr(SO,4)}, s{sT0} offen' + ['', ' sc1', ' nt', ' sc0'][cfg.sc_o], tag='CO')
    for o in reads(0, 0, 0): em.op(o)
    carry = []
    for s in range(12):
        interleave(em, mf(0, s == 0), (reads(s, 1, 1), 0, rf), (carry, 0.05, 0.95))
        carry = []
        if s < 11:
            if s == 0: em.wait_vm0(); em.wait_lgkm0()
            else: em.wait_vm_tag(f'T{s+1}', lgkm0=True)
            em.barrier()
            em.st.stamp(f'T{s}')
        else:
            em.wait_lgkm0(); em.barrier()
        if s == 0 and orole: flag_store(em, sF1, sJ, 'L_f1', 4)
        fill = []; dm = []
        if s < 11:
            fill += reads(s + 1, 0, 0)
        if s + 3 <= 11:
            if not orole or s >= 2:
                dm = tail_dma(em, s + 3, orole); dm, carry = dm[:3], dm[3:]
            elif s == 1:
                poll(em, sF1, 3, 'L_p1')
                em.st.stamp('poll')
                for f in tail_dma(em, 3, True): f()
                dm = tail_dma(em, 4, True)
        interleave(em, mf(1, False), (dm, 0.05, 0.95), (fill, 0, rf))
    em.st.stamp('TP')
    em.op(f'v_and_b32 v{t1}, 15, {L}'); em.op(f'v_mul_u32_u24 v{t1}, 336, v{t1}')
    em.op(f'v_lshrrev_b32 v{t2}, 4, {L}'); em.op(f'v_lshlrev_b32 v{t2}, 3, v{t2}')
    em.op(f's_mul_i32 s{sT0}, s{sQ0}, {16 * 336}'); em.op(f's_mul_i32 s{sT1}, s{sNH}, 160'); em.op(f's_add_u32 s{sT0}, s{sT0}, s{sT1}')
    em.op(f'v_add3_u32 v{t1}, v{t1}, v{t2}, s{sT0}')
    em.op(f's_mov_b32 s{sT2}, 52429')
    pre = []
    for i in range(6):
        r = 176 + i
        pre += [f'v_add_u32 v{r}, {512 * i}, v0', f'v_mul_lo_u32 v{t2}, v{r}, s{sT2}', f'v_lshrrev_b32 v{t2}, 20, v{t2}', f'v_add_lshl_u32 v{r}, v{r}, v{t2}, 4']
    for o in pre: em.op(o)
    for t in range(5):
        for j in range(nq):
            a = ACC2 + 4*(t*nq+j)
            em.op(f'v_cvt_pk_bf16_f32 v{a}, v{a}, v{a+1}')
            em.op(f'v_cvt_pk_bf16_f32 v{a+1}, v{a+2}, v{a+3}')
            em.op(f'ds_write_b64 v{t1}, {vr(a,2)} offset:{j * 16 * 336 + t * 32}')
    em.wait_lgkm0(); em.barrier()
    for i in range(6): em.op(f'ds_read_b128 {vr(76 + 4*i)}, v{176 + i}')
    for i in range(6):
        em.op(f's_mov_b32 s{sT0}, {i * 8192}')
        em.op(f'buffer_store_dwordx4 {vr(76 + 4*i)}, v{t0}, {sr(SP,4)}, s{sT0} offen{sc}')
    em.op(f's_mul_i32 s{sT0}, s{sX}, 5760')
    em.op(f'v_add_u32 v{t1}, s{sT0}, v{t0}')
    em.op(f'v_mul_lo_u32 v{t2}, v0, s{sT2}'); em.op(f'v_lshrrev_b32 v{t2}, 20, v{t2}')
    em.op(f'v_mul_u32_u24 v{t2}, 960, v{t2}')
    em.op(f's_mul_i32 s{sT0}, s{sB}, 144'); em.op(f's_mul_i32 s{sT1}, s{sX}, 18'); em.op(f's_add_u32 s{sT0}, s{sT0}, s{sT1}')
    em.op(f's_mul_i32 s{sT0}, s{sT0}, 1280'); em.op(f's_mul_i32 s{sT1}, s{sJ}, 320'); em.op(f's_add_u32 s{sT0}, s{sT0}, s{sT1}')
    em.op(f'v_add3_u32 v{t2}, v{t2}, v{t0}, s{sT0}')
    em.op(f'v_mov_b32 v{t3}, 0x7ffffff0')
    em.op(f'v_cmp_gt_u32 vcc, 360, v0')
    em.op(f'v_cndmask_b32 v{t2}, v{t3}, v{t2}, vcc')
    em.wait_vm0(); em.barrier()
    em.st.stamp('TW')
    if tv == 2:
        flag_store(em, sF2, sX, 'L_f2', 7)
        em.op(f's_cmp_ge_u32 s{sW}, 6')
        em.op(f's_cbranch_scc1 L_fin2')
    poll(em, sF2, 7, f'L_p2_{tv}')
    em.st.stamp('TF')
    for x in range(8):
        em.op(f's_mov_b32 s{sT0}, {x * PART2}')
        em.op(f'buffer_load_dwordx4 {vr(76 + 4*x)}, v{t1}, {sr(SPR,4)}, s{sT0} offen{sc}')
    if tv == 0:
        em.op(f's_or_b32 s{sT0}, s{sH}, s{sW}')
        em.op(f's_cmp_eq_u32 s{sT0}, 0')
        em.op('s_cbranch_scc0 L_nw')
        em.begin_opt()
        em.op(f's_lshl_b32 s{sT0}, s{sB}, 8'); em.op(f's_add_u32 s{sT0}, s{sT0}, {FLAG_OFF}')
        em.op(f'v_mov_b32 v60, s{sT0}'); em.op(f'v_mov_b32 v61, s{sTAG}')
        em.op('s_mov_b64 exec, 1')
        em.op('global_store_dword v60, v61, s[12:13]')
        em.op('s_mov_b64 exec, -1')
        em.end_opt()
        em.label('L_nw')
    A = 108
    for x in range(8):
        for d in range(4):
            r = 76 + 4*x + d
            if x == 0:
                em.op(f'v_lshlrev_b32 v{A+2*d}, 16, v{r}'); em.op(f'v_and_b32 v{A+2*d+1}, 0xffff0000, v{r}')
            else:
                em.op(f'v_lshlrev_b32 v{A+8}, 16, v{r}'); em.op(f'v_and_b32 v{A+9}, 0xffff0000, v{r}')
                em.op(f'v_pk_add_f32 {vr(A+2*d,2)}, {vr(A+2*d,2)}, {vr(A+8,2)}')
    for d in range(4): em.op(f'v_cvt_pk_bf16_f32 v{A+d}, v{A+2*d}, v{A+2*d+1}')
    em.op(f'buffer_store_dwordx4 {vr(A)}, v{t2}, {sr(SOUT,4)}, 0 offen')
    em.st.stamp('TL')
    if cfg.x_ren:
        em.op('v_mov_b32 v116, s84')
        em.op('global_load_dword v117, v116, s[86:87] sc1')
        em.op('v_readfirstlane_b32 s85, v117')
        em.op('s_bcnt1_i32_b32 s85, s85')
        em.op('s_cmp_gt_u32 s85, 1')
        em.op(f's_cbranch_scc0 L_ren{tv}')
        em.op('s_mov_b32 s85, 600')
        em.label(f'L_rend{tv}')
        em.op('s_sleep 1'); em.op('s_sub_u32 s85, s85, 1'); em.op('s_cmp_lg_u32 s85, 0'); em.op(f's_cbranch_scc1 L_rend{tv}')
        em.label(f'L_ren{tv}')
    if tv == 2: em.label('L_fin2')
    if cfg.diag: em.wait_vm0()
    em.st.flush(12, 0, sW, 244)
    em.op('s_endpgm')

def kernel_header(name):
    return f'.globl {name}\n.p2align 8\n.type {name},@function\n{name}:\n'
def kernel_desc(name, vgpr, sgpr=102):
    return f'''.amdhsa_kernel {name}
  .amdhsa_next_free_vgpr {vgpr}
  .amdhsa_next_free_sgpr {sgpr}
  .amdhsa_accum_offset {(vgpr + 3) // 4 * 4}
  .amdhsa_group_segment_fixed_size 0
  .amdhsa_kernarg_size 64
  .amdhsa_user_sgpr_count 2
  .amdhsa_user_sgpr_kernarg_segment_ptr 1
  .amdhsa_system_sgpr_workgroup_id_x 1
.end_amdhsa_kernel
'''

def gen_k1():
    em = Em()
    k1_prologue(em)
    st0 = em.save()
    em.label('k1_body_start')
    for qh in range(2):
        sts = []
        for typ in ((1, 0) if cfg.n0 else (0,)):
            if qh or typ == 0 and cfg.n0: em.label(f'L_qp{qh}{typ}')
            em.restore(st0)
            em.typ = typ
            k1_qproj(em, qh, typ)
            k1_qk(em, qh)
            sts.append(em.save())
            if typ == 1: em.op(f's_branch L_sm{qh}')
        if len(sts) == 2:
            t = [[e[0] for e in s[2]] for s in sts]
            lo, hi = sorted(range(2), key=lambda i: len(t[i]))
            assert t[hi][len(t[hi]) - len(t[lo]):] == t[lo], t
            em.restore(sts[hi]); em.hist = []
            em.label(f'L_sm{qh}')
        k1_sm0(em, qh)
        k1_pv(em, qh)
    em.label('k1_body_end')
    em.label('L_k1_exit')
    em.op('s_endpgm')
    return em

def main():
    ref = open('cdna_kernels/' + NAME + '.s.ref').read().split('\n')
    head = [l for l in ref[:9]]
    k1 = gen_k1()
    KN = NAME + '_kernel'
    out = '\n'.join(head) + '\n'
    out += f'; @launch grid=(256,1,1) block=(512,1,1) lds={LDS1}\n'
    out += '.amdgcn_target "amdgcn-amd-amdhsa--gfx950"\n.text\n'
    out += kernel_header(KN) + k1.text()
    out += '.section .rodata,"a"\n.p2align 6\n' + kernel_desc(KN, 256)
    open(sys.argv[1], 'w').write(out)
    print('k1 instrs', k1.count, 'nops', k1.nops, file=sys.stderr)
main()
```

```python
import sys, struct, math
from em import Em, interleave, emit

NAME = 'standalone__gqa_block_cached__near_ridge'
def fbits(x): return struct.unpack('<I', struct.pack('<f', x))[0]

class Cfg:
    nt_kv = True
    nt_w = False
    nt_k2 = False
    two_types = True
    pre = True
    code_pre = True
    diag = False
    pk = True
    rfrac = 60
    prio = 0
    x_noexp = 0
    x_nopw = 0
    efrac = 95
    loopb = -1
    st = 0
    dbg = 0
    n0 = 1
    inpv0 = 0
    inpv1 = 0
    pfa = 5
    kq = 12
    kq0 = 7
    wont = 0
    vrf = 60
    x_ren = 0
    vrole = 1
    vfirst = 0
    vold = 0
    vh0 = 12
    wsoff = 0
    cearly = 1
    pfown = 10
    pfall = 1
    nt_k = 1
    nt_v = 1
    eager = 3
    eagerv = 0
    qwi = 1
    g2lo = 0
    g2hi = 30
    valo = 0
    vahi = 60
    pf1 = 10
    v0e = 0
    kqb = 0
    kqb0 = 7
    vb = 0
    vreg = 0
    nvy = 4
    sc_o = 1
    sc_ol = 1
    rt = 0
    qloop = 0
    x_qnodma = 0
    x_qnord = 0
    dlo = 10
    dhi = 95
    dsplit = 3
    x_delay = 0
    wopre = 1
    sc = 1
    x_nobar = 0
    x_nord = 0
    x_nodma = 0
cfg = Cfg()
cfg.pvst = (3,7); cfg.qst = (0,8,)
if 'pvall=1' in sys.argv: sys.argv.remove('pvall=1'); cfg.pvst = (0,1,2,3,4,5,6,7); cfg.qst = (); cfg.fewst = True
else: cfg.fewst = False
for a in sys.argv[2:]:
    k, v = a.split('='); setattr(cfg, k, type(getattr(cfg, k))(int(v)))
STSETS = {0: 'S0 BQ BM PV0 BO T0 T2 TP TW TF', 1: 'ka pi si S0 B0 B8 BQ K0 K1 QKend BM exp0 PV0', 2: 'PV0 PB0 PB1 PB2 PB3 PB4 PB5 PB6 PB7 BO', 3: 'BO T0 T1 poll T2 T3 T10 TP TW TF', 4: 'K0 K1 QKend BM exp0 PV0 PB3 PB7 BO T0', 8: '', 5: 'S0 LB0 LBend BQ', 6: 'S0 B0 B1 B2 B3 B5 B7 B8 B9 BQ', 7: 'BO T0 T1 T2 T3 T4 T6 T8 T10 TP'}
cfg.stlist = ['rt0', 'start'] + STSETS[cfg.st].split()[:10] + ['end', 'rt_end']
cfg.pvst = range(8); cfg.qst = range(10)
cfg.types = bool(cfg.n0)

def vr(b, n=4): return f'v[{b}:{b + n - 1}]' if n > 1 else f'v{b}'
def sr(b, n): return f's[{b}:{b + n - 1}]'
MF = 'v_mfma_f32_16x16x32_bf16'
def mfma(d, a, b, c=None):
    return f'{MF} {vr(d)}, {vr(a)}, {vr(b)}, ' + ('0' if c is None else vr(c))

FLAG_OFF = 28 << 20
PART2 = 46080
O_HEAD = 55296
WS_PART = 16 << 20
PART_TILE = 90 * 1024

def srd(em, d, base_lo, base_hi, off_sgpr, size):
    if off_sgpr is None:
        em.op(f's_mov_b32 s{d}, s{base_lo}'); em.op(f's_mov_b32 s{d+1}, s{base_hi}')
    else:
        em.op(f's_add_u32 s{d}, s{base_lo}, {off_sgpr}'); em.op(f's_addc_u32 s{d+1}, s{base_hi}, 0')
    em.op(f's_mov_b32 s{d+2}, {size}')
    em.op(f's_mov_b32 s{d+3}, 0x20000')

_lab = [0]
DIAG_OFF = 64 << 20
class Stamps:
    def __init__(self, em):
        self.em = em; self.n = 0; self.names = []
        if cfg.diag:
            for i in range(len(cfg.stlist)): em.op(f's_mov_b32 s{60 + 2*i}, 0')
    def stamp(self, name, real=False):
        if not cfg.diag or name not in cfg.stlist: return
        em = self.em; i = cfg.stlist.index(name)
        em.wait_lgkm0()
        em.op(('s_memrealtime' if (real or cfg.rt) else 's_memtime') + f' s[{60 + 2*i}:{61 + 2*i}]')
        em.op('s_waitcnt lgkmcnt(0)')
    def flush(self, ws_lo, kidx, wave_s, tv):
        if not cfg.diag: return
        em = self.em
        self.stamp('end'); self.stamp('rt_end', real=True)
        if cfg.dbg:
            _lab[0] += 1
            em.op('s_load_dwordx2 s[56:57], s[0:1], 48')
            em.op(f's_and_b32 s58, s2, 0xdf'); em.op(f's_or_b32 s58, s58, s{wave_s}'); em.op('s_cmp_eq_u32 s58, 0')
            em.op('s_waitcnt lgkmcnt(0)')
            em.op(f's_cbranch_scc0 L_dbg{_lab[0]}')
            em.op(f'v_mov_b32 v{tv}, s2')
            for k, i in enumerate([2, 3, 4, 13, 6, 9, 11, 12]):
                em.op(f's_sub_u32 s58, s{60 + 2*i}, s{60 if i == 13 else 62}')
                em.op(f'v_mov_b32 v{tv+1}, s58')
                em.op(f'global_store_dword v{tv}, v{tv+1}, s[56:57] offset:{4*k}')
            em.label(f'L_dbg{_lab[0]}')
            return
        em.op(f's_lshl_b32 s56, s2, 3'); em.op(f's_add_u32 s56, s56, s{wave_s}'); em.op('s_lshl_b32 s56, s56, 7')
        em.op(f's_add_u32 s56, s56, {DIAG_OFF + (kidx << 20)}')
        em.op(f's_add_u32 s56, s{ws_lo}, s56'); em.op(f's_addc_u32 s57, s{ws_lo+1}, 0')
        em.op(f'v_mov_b32 v{tv}, 0')
        for i in range(len(cfg.stlist)):
            em.op(f'v_mov_b32 v{tv+1}, s{60 + 2*i}')
            em.op(f'global_store_dword v{tv}, v{tv+1}, s[56:57] offset:{4*i}')
        print('stamps', kidx, cfg.stlist, file=sys.stderr)

SX, SWQ, SK, SV, SO = 16, 20, 24, 28, 32
sW, sW3072, sW1024, sTYPE, sOFF, sT0, sT1, sT2, sC, sB, sH, sJ, sLOC, sX = 36, 37, 38, 39, 40, 41, 42, 43, 44, 52, 46, 47, 48, 53
vLANE, vXO, vWO, vK0, vK1, vVO = 1, 2, 3, 4, 5, 6
vRA = [7, 8]
vRB = [9, 10, 11]
vRC = [12, 13, 14]
vT = 15
vOW = [104, 105, 106]
vVW, vVW2 = 7, 8
vPA, vPW, vMS = 240, 242, 243
vPW2 = 241
TMP = list(range(244, 256))
STG = 43008
PBASE, VBASE, MAXB, SUMB = 0, 55296, 153600, 155648
NV = 4
def vslot(s): return [3, 1, 2, 0][s % 4]
LDS1 = SUMB + 12 * 512
def kop(kt, ks): return 16 + 4 * (kt * 6 + ks)
def sreg(kt, qt):
    if kt < 2: return 116 + 4 * (qt * 2 + kt)
    i = qt * 2 + (kt - 2)
    return 16 + 4 * i if i < 12 else 188 + 4 * (i - 12)
ACC = 116
MC = 212
SUM = 221
SUMP = 222
QF = 224
OACC0 = [116 + 4*i for i in range(15)]
OACC1 = [120 + 8*i for i in range(9)] + [112, 2, 248]
PAF0 = [[176, 180, 184], [20, 28, 36]]
PAF1 = [[20, 28, 36], [44, 52, 60]]
PBF0 = [[44, 52, 60, 192, 200], [208, 112, 2, 248, 252]]
PBF1 = [[192, 200, 208, 252], [216, 220, 224, 228]]
INV0 = 230
NEXP1 = 4


sKB = 57
vKR = [250, 251]
vVO3 = 252
def k_dma_ops(em, half):
    nt = ' nt' if cfg.nt_kv and cfg.nt_k else ''
    ops = []
    for c in range(3):
        for k in range(2):
            for p in range(2):
                def f(c=c, k=k, p=p):
                    em.op(f's_add_u32 m0, s{sKB}, {(k * 3 + c) * 2048 + p * 1024 - c * 128}')
                    em.op(f's_mov_b32 s{sOFF}, {(half * 2 + k) * 6144}')
                    em.op(f'buffer_load_dwordx4 v{vK1 if p else vK0}, {sr(SK,4)}, s{sOFF} offen offset:{c*128}{nt} lds', tag=f'K{half}_{c * 2 + k}')
                ops.append(f)
    return ops
def k_rd_ops(half, u):
    c, k = divmod(u, 2)
    return [f'ds_read_b128 {vr(kop(half * 2 + k, 2 * c + e))}, v{vKR[e]} offset:{(k * 3 + c) * 2048}' for e in range(2)]
def k_fetch(em, half, nxt):
    for u in range(6):
        em.wait_vm_tag(f'K{half}_{u}')
        for o in k_rd_ops(half, u): em.op(o)
        if nxt and u:
            em.waitcnt(lgkm=2); em.lgkm = em.lgkm[-2:]
            for f in nxt[2 * u - 2: 2 * u]: f()
    if nxt:
        em.wait_lgkm0()
        for f in nxt[10:12]: f()
def va_ops(em):
    nt = ' nt' if cfg.nt_kv and cfg.nt_v else ''
    ops = []
    for rg in range(4):
        for c in range(3):
            def f(c=c, rg=rg):
                em.op(f's_add_u32 m0, s{sKB}, {rg * 3072 + c * 896}')
                em.op(f's_mov_b32 s{sOFF}, {rg * 3072}')
                em.op(f'buffer_load_dwordx4 v{vVO3}, {sr(SV,4)}, s{sOFF} offen offset:{c*128}{nt} lds', tag='VA')
            ops.append(f)
    return ops

def stage_dma_ops(em, s, qh):
    nt = ' nt' if cfg.nt_w else ''
    slot = (s % 3) * 18432
    ops = []
    for c in range(3):
        def f(c=c):
            em.op(f's_add_u32 m0, s{sW3072}, {VBASE + (s % 3) * 24576 + c * 896}')
            if c == 0: em.op(f's_mov_b32 s{sOFF2}, {s * 786432}')
            em.op(f'buffer_load_dwordx4 v{vWO}, {sr(SWQ,4)}, s{sOFF2} offen offset:{c*128}{nt} lds', tag=f'S{s}')
        ops.append(f)
    for j in range(2):
        def f(j=j):
            em.op(f's_add_u32 m0, s{sW1024}, {slot + j * 8192}')
            em.op(f's_mov_b32 s{sOFF}, {s * 128 + j * 81920}')
            em.op(f'buffer_load_dwordx4 v{vXO}, {sr(SX,4)}, s{sOFF} offen{nt} lds', tag=f'S{s}')
        ops.append(f)
    if qh == 1:
        def f():
            _lab[0] += 1
            lab = f'L_x{_lab[0]}'
            em.op(f's_cmp_lt_u32 s{sW}, 6')
            em.op(f's_cbranch_scc0 {lab}')
            em.begin_opt()
            em.op(f's_add_u32 m0, s{sW1024}, {slot + 12288}')
            em.op(f's_mov_b32 s{sOFF}, {s * 128 + 122880}')
            em.op(f'buffer_load_dwordx4 v{vXO}, {sr(SX,4)}, s{sOFF} offen{nt} lds', tag=f'S{s}')
            em.end_opt()
            em.label(lab)
        ops.insert(0, f)
    return ops

def v_dma_ops(em, s):
    nt = ' nt' if cfg.nt_kv and cfg.nt_v else ''
    ops = []
    for c in range(3):
        def f(c=c):
            em.op(f's_add_u32 m0, s{sW3072}, {VBASE + vslot(s) * 24576 + c * 896}')
            em.op(f's_mov_b32 s{sOFF}, {(128 * (s & 3) + 32 * (s >> 2)) * 384}')
            em.op(f'buffer_load_dwordx4 v{vVO}, {sr(SV,4)}, s{sOFF} offen offset:{c*128}{nt} lds', tag=f'V{s}')
        ops.append(f)
    return ops

sDG = 49
sPFS, sPFB = 45, 50
sOFF2 = 3
vPF = 241
def pf_ops():
    if not cfg.pre: return []
    nt = ' nt' if cfg.nt_w else ''
    return [f'global_load_dwordx4 {vr(112)}, v{vPF}, s[{sPFB}:{sPFB+1}]{nt}', f'v_add_u32 v{vPF}, s{sPFS}, v{vPF}']
sTAG, sSTR, sF1, sF2, sHB, sM0T, sQ0, sNH, sCNT = 88, 89, 90, 92, 94, 98, 99, 100, 101
VST = 64
def v_reg_ops(em):
    nt = ' nt' if cfg.nt_kv and cfg.nt_v else ''
    ops = []
    for s in range(4, 8):
        for c in range(3):
            def f(s=s, c=c):
                em.op(f's_mov_b32 s{sOFF}, {(128 * (s & 3) + 32 * (s >> 2)) * 384}')
                em.op(f'buffer_load_dwordx4 {vr(VST + 4 * ((s - 4) * 3 + c))}, v{vVO}, {sr(SV,4)}, s{sOFF} offen offset:{c*128}{nt}', tag=f'V{s}')
            ops.append(f)
    return ops
def v_put_ops(s):
    slot = vslot(s)
    return [f'ds_write_b128 v{vVW if slot < 2 else vVW2}, {vr(VST + 4 * ((s - 4) * 3 + c))} offset:{(slot % 2) * 24576 + c * 1024}' for c in range(3)]

vPF2 = 254
VTMP = [248, 249, 253]
def pf2_ops():
    nt = ' nt' if cfg.nt_w else ''
    return [f'global_load_dwordx4 {vr(112)}, v{vPF2}, s[{sPFB}:{sPFB+1}]{nt}', f'v_add_u32 v{vPF2}, s{sPFS}, v{vPF2}']

def k1_prologue(em):
    em.op('s_cmp_ge_u32 s2, 256')
    em.op('s_cbranch_scc1 L_k1_exit')
    em.st = Stamps(em); em.st.stamp('rt0', real=True); em.st.stamp('start')
    em.op('s_load_dwordx8 s[4:11], s[0:1], 0')
    em.op('s_load_dwordx2 s[12:13], s[0:1], 56')
    em.op('s_load_dwordx2 s[14:15], s[0:1], 32')
    em.op('s_load_dwordx2 s[54:55], s[0:1], 40')
    em.op(f'v_and_b32 v{vLANE}, 63, v0')
    em.op(f'v_lshrrev_b32 v{vT}, 6, v0')
    em.op(f's_and_b32 s{sX}, s2, 7')
    em.op(f's_lshr_b32 s{sLOC}, s2, 3')
    em.op(f'v_readfirstlane_b32 s{sW}, v{vT}')
    t0, t1, t2, t3, t4, t5 = TMP[:6]
    L = f'v{vLANE}'
    em.op(f's_and_b32 s{sJ}, s{sLOC}, 3')
    em.op(f's_lshr_b32 s{sB}, s{sLOC}, 2')
    em.op(f's_lshl_b32 s{sH}, s{sX}, 2')
    em.op(f's_add_u32 s{sH}, s{sH}, s{sJ}')
    em.op(f's_and_b32 s{sTYPE}, s{sB}, 1')
    em.op(f's_lshl_b32 s{sT0}, s{sLOC}, 1'); em.op(f's_mul_i32 s{sT0}, s{sT0}, 12288'); em.op(f's_mul_i32 s{sT1}, s{sX}, 1536'); em.op(f's_add_u32 s{sT0}, s{sT0}, s{sT1}')
    em.op(f's_lshl_b32 s{sT1}, s{sW}, 9'); em.op(f's_add_u32 s{sT0}, s{sT0}, s{sT1}')
    em.op(f'v_lshrrev_b32 v{t3}, 5, {L}'); em.op(f'v_mul_u32_u24 v{t3}, 12288, v{t3}')
    em.op(f'v_and_b32 v{t4}, 31, {L}'); em.op(f'v_lshlrev_b32 v{t4}, 4, v{t4}')
    em.op(f'v_add3_u32 v{t5}, v{t3}, v{t4}, s{sT0}')
    em.op(f'v_lshrrev_b32 v{t0}, 3, {L}')
    em.op(f'v_and_b32 v{t1}, 7, {L}')
    em.op(f'v_lshrrev_b32 v{t2}, 4, {L}')
    em.op(f's_mul_i32 s{sT0}, s{sLOC}, 36'); em.op(f's_lshl_b32 s{sT2}, s{sW}, 3'); em.op(f's_add_u32 s{sT0}, s{sT0}, s{sT2}'); em.op(f's_sub_u32 s{sT0}, s{sT0}, 24')
    em.op(f'v_add_u32 v{t3}, s{sT0}, v{t0}')
    em.op(f's_cmp_lt_u32 s{sW}, 3')
    em.op(f's_cselect_b64 vcc, -1, 0')
    em.op(f's_movk_i32 s{sPFS}, 128')
    em.op(f's_cselect_b32 s{sPFS}, 786432, s{sPFS}')
    for dst, dr, dw in ((vPF, 0, 0), (vPF2, 144, 98304) if not cfg.pfall else (vPF2, -144 & 0xffffffff, -98304 & 0xffffffff)):
        if dst == vPF2 and cfg.pf1 >= 10 and not cfg.pfall: continue
        em.op(f'v_add_u32 v{t4}, {dr}, v{t3}'); em.op(f'v_min_u32 v{t4}, 1151, v{t4}')
        em.op(f'v_mul_u32_u24 v{t4}, 1280, v{t4}')
        em.op(f'v_lshl_add_u32 v{t4}, v{t1}, 4, v{t4}')
        em.op(f'v_add_u32 v{dst}, {dw}, v{t5}')
        em.op(f'v_cndmask_b32 v{dst}, v{t4}, v{dst}, vcc')
    if cfg.pf1 < 10:
        em.op(f's_mul_i32 s{sT0}, s{sPFS}, {cfg.pf1}'); em.op(f'v_add_u32 v{vPF2}, s{sT0}, v{vPF2}')
    em.op(f's_and_b32 s{sDG}, s{sW}, 3')
    em.op(f's_mul_i32 s{sW3072}, s{sW}, 3072')
    em.op(f's_lshl_b32 s{sW1024}, s{sW}, 10')
    em.op(f's_and_b32 s{sT0}, s{sW}, 1')
    em.op(f's_lshl_b32 s{sT1}, s{sT0}, 2')
    em.op(f'v_add_u32 v{t3}, s{sT1}, v{t2}')
    em.op(f'v_xor_b32 v{t3}, v{t3}, v{t1}')
    em.op(f'v_add_u32 v{t4}, s{sT2}, v{t0}')
    em.op(f'v_mul_u32_u24 v{vXO}, 1280, v{t4}')
    em.op(f'v_lshl_add_u32 v{vXO}, v{t3}, 4, v{vXO}')
    em.op(f'v_and_b32 v{t3}, 1, v{t2}')
    em.op(f'v_lshl_add_u32 v{t3}, v{t3}, 1, s{sT1}')
    em.op(f'v_xor_b32 v{t3}, v{t3}, v{t1}')
    em.op(f'v_mul_u32_u24 v{vWO}, 12288, v{t4}')
    em.op(f'v_lshl_add_u32 v{vWO}, v{t3}, 4, v{vWO}')
    em.op(f's_lshl_b32 s{sT2}, s{sW}, 6')
    em.op(f'v_add_u32 v{t4}, s{sT2}, v{t0}')
    em.op(f'v_mul_u32_u24 v{t4}, 384, v{t4}')
    em.op(f'v_xor_b32 v{t3}, v{t2}, v{t1}')
    em.op(f'v_lshl_add_u32 v{vK0}, v{t3}, 4, v{t4}')
    em.op(f'v_xor_b32 v{vK1}, 64, v{vK0}')
    em.op(f'v_add_u32 v{vK1}, {8 * 384}, v{vK1}')
    em.op(f'v_lshlrev_b32 v{t3}, 1, v{t2}')
    em.op(f'v_xor_b32 v{t3}, v{t3}, v{t1}')
    em.op(f'v_lshl_add_u32 v{vVO3}, v{t3}, 4, v{t4}')
    em.op(f's_and_b32 s{sT1}, s{sW}, 6'); em.op(f's_lshr_b32 s{sKB}, 0x27, s{sT1}'); em.op(f's_and_b32 s{sKB}, s{sKB}, 3')
    em.op(f's_lshl_b32 s{sKB}, s{sKB}, 1'); em.op(f's_add_u32 s{sKB}, s{sKB}, s{sT0}'); em.op(f's_mul_i32 s{sKB}, s{sKB}, 12288'); em.op(f's_add_u32 s{sKB}, s{sKB}, {VBASE}')
    em.op(f'v_bfe_u32 v{t3}, {L}, 3, 1'); em.op(f'v_lshlrev_b32 v{t3}, 10, v{t3}')
    em.op(f'v_lshl_add_u32 v{t3}, v{t1}, 7, v{t3}')
    em.op(f'v_bfe_u32 v{t4}, {L}, 1, 3')
    em.op(f'v_xor_b32 v{t4}, v{t4}, v{t2}'); em.op(f'v_lshlrev_b32 v{vT}, 4, v{t4}')
    em.op(f'v_add_u32 v{vRA[0]}, v{t3}, v{vT}')
    em.op(f'v_add_u32 v{vKR[0]}, s{sKB}, v{vRA[0]}')
    em.op(f'v_xor_b32 v{vKR[1]}, 64, v{vKR[0]}')
    em.op(f's_lshr_b32 s{sT1}, s{sW}, 2'); em.op(f's_lshl_b32 s{sT1}, s{sT1}, 6')
    em.op(f's_lshl_b32 s{sT0}, s{sDG}, 3'); em.op(f's_add_u32 s{sT0}, s{sT0}, s{sT1}')
    em.op(f'v_add_u32 v{t3}, s{sT0}, v{t0}')
    em.op(f'v_mul_u32_u24 v{vVO}, 384, v{t3}')
    em.op(f'v_lshlrev_b32 v{t3}, 1, v{t2}')
    em.op(f'v_xor_b32 v{t3}, v{t3}, v{t1}')
    em.op(f'v_lshl_add_u32 v{vVO}, v{t3}, 4, v{vVO}')
    em.op(f's_mul_i32 s{SX+3}, s{sB}, 184320')
    em.op(f's_mul_i32 s{SWQ+3}, s{sH}, 384')
    em.op(f's_lshl_b32 s{sT1}, s{sB}, 5'); em.op(f's_add_u32 s{sT1}, s{sT1}, s{sH}')
    em.op(f's_mul_i32 s{sT2}, s{sT1}, 196608')
    em.op(f's_mul_i32 s{SO+3}, s{sT1}, {O_HEAD}')
    em.op(f's_lshl_b32 s{sT0}, s{sB}, 8'); em.op(f's_add_u32 s{sT0}, s{sT0}, {FLAG_OFF}')
    em.op(f's_mov_b32 s{SX+2}, 184320'); em.op(f's_sub_u32 s{SWQ+2}, 7864320, s{SWQ+3}')
    em.op(f's_cmp_lt_u32 s{sW}, 3')
    em.op('s_waitcnt lgkmcnt(0)')
    em.st.stamp('ka')
    if cfg.diag: em.op(f's_cmp_lt_u32 s{sW}, 3')
    em.op(f's_cselect_b64 s[{sPFB}:{sPFB+1}], s[10:11], s[4:5]')
    for i in range(0 if cfg.pfall else 3):
        for o in pf_ops(): em.op(o)
    if cfg.cearly:
        em.op('s_getpc_b64 s[58:59]')
        em.label('L_pce')
        em.op('s_add_u32 s58, s58, k1_body_start-L_pce')
        em.op('s_addc_u32 s59, s59, 0')
        em.op(f's_and_b32 s{sT1}, s{sLOC}, 15')
        em.op(f's_lshl_b32 s{sT1}, s{sT1}, 13')
        em.op(f'v_lshlrev_b32 v{TMP[11]}, 4, v0')
        em.op(f'v_add_u32 v{TMP[11]}, s{sT1}, v{TMP[11]}')
        em.op(f'v_min_u32 v{TMP[11]}, k1_body_end-k1_body_start-16, v{TMP[11]}')
        em.op(f'global_load_dwordx4 {vr(112)}, v{TMP[11]}, s[58:59]')
    if cfg.wsoff:
        em.op(f's_add_u32 s12, s12, {cfg.wsoff << 20}'); em.op('s_addc_u32 s13, s13, 0')
    em.op(f's_load_dword s{sTAG}, s[12:13], s{sT0}')
    em.op(f's_add_u32 s{SWQ}, s10, s{SWQ+3}'); em.op(f's_addc_u32 s{SWQ+1}, s11, 0'); em.op(f's_mov_b32 s{SWQ+3}, 0x20000')
    em.op(f's_add_u32 s{SX}, s4, s{SX+3}'); em.op(f's_addc_u32 s{SX+1}, s5, 0'); em.op(f's_mov_b32 s{SX+3}, 0x20000')
    srd(em, SK, 6, 7, f's{sT2}', 196608); srd(em, SV, 8, 9, f's{sT2}', 196608)
    if cfg.n0 or cfg.pfall:
        em.op(f's_cmp_eq_u32 s{sTYPE}, 1')
        em.op('s_cbranch_scc0 L_nok1')
        em.begin_opt()
        for i in range(10 if cfg.pfall else cfg.pf1 - 3):
            if cfg.pfall:
                for o in pf2_ops(): em.op(o)
            if cfg.pfall != 2:
                for o in pf_ops(): em.op(o)
        if cfg.pfall == 2:
            for i in range(cfg.pfown):
                for o in pf_ops(): em.op(o)
        em.end_opt()
        em.label('L_nok1')
    if cfg.n0:
        em.op(f's_lshr_b32 s{sT0}, s{sW}, 2'); em.op(f's_lshl_b32 s{sT0}, s{sT0}, 1'); em.op(f's_or_b32 s{sT0}, s{sT0}, s{sTYPE}')
        for v in (0, 2, 3):
            em.op(f's_cmp_eq_u32 s{sT0}, {v}')
            em.op(f's_cbranch_scc1 L_qp{v >> 1}{v & 1}')
    else:
        em.op(f's_cmp_lt_u32 s{sW}, 4')
        em.op('s_cbranch_scc0 L_qp10')

def tr_addr(em, dst, t, base, fmode):
    t0, t1, t2, t3 = TMP[:4]
    L = f'v{vLANE}'
    em.op(f's_mul_i32 s{sT0}, s{sDG}, 3'); em.op(f's_add_u32 s{sT0}, s{sT0}, {t}')
    em.op(f's_lshr_b32 s{sT1}, s{sT0}, 2'); em.op(f's_lshl_b32 s{sT1}, s{sT1}, 10')
    em.op(f's_add_u32 s{sT1}, s{sT1}, {base}')
    em.op(f's_and_b32 s{sT0}, s{sT0}, 3')
    em.op(f'v_lshrrev_b32 v{t0}, 4, {L}')
    em.op(f'v_bfe_u32 v{t1}, {L}, 2, 2')
    em.op(f'v_and_b32 v{t2}, 1, v{t0}')
    em.op(f'v_lshlrev_b32 v{t2}, 1, v{t2}')
    em.op(f'v_lshrrev_b32 v{t3}, 1, v{t1}')
    em.op(f'v_add_u32 v{t3}, v{t3}, v{t2}')
    em.op(f'v_xor_b32 v{t3}, s{sT0}, v{t3}')
    em.op(f'v_lshlrev_b32 v{t3}, 5, v{t3}')
    em.op(f'v_lshlrev_b32 v{dst}, 7, v{t1}')
    em.op(f'v_add_u32 v{dst}, v{dst}, v{t3}')
    if fmode == 'w':
        em.op(f'v_mul_u32_u24 v{t3}, 3072, v{t0}')
    else:
        em.op(f'v_lshlrev_b32 v{t2}, 8, v{t2}')
        em.op(f'v_add_u32 v{dst}, v{dst}, v{t2}')
        em.op(f'v_lshrrev_b32 v{t3}, 1, v{t0}')
        em.op(f'v_mul_u32_u24 v{t3}, 3072, v{t3}')
    em.op(f'v_add_u32 v{dst}, v{dst}, v{t3}')
    em.op(f'v_and_b32 v{t3}, 3, {L}')
    em.op(f'v_lshlrev_b32 v{t3}, 3, v{t3}')
    em.op(f'v_add_u32 v{dst}, v{dst}, v{t3}')
    em.op(f'v_add_u32 v{dst}, s{sT1}, v{dst}')

class Cap:
    def __init__(self): self.ops = []
    def op(self, t, tag=None): self.ops.append(t)

def k1_qproj(em, qh, typ):
    nq = 5 if qh == 0 else 4
    q0 = 0 if qh == 0 else 5
    L = f'v{vLANE}'
    t0, t1, t2, t3, t4, t5 = TMP[:6]
    rf = cfg.rfrac / 100
    if cfg.prio and qh == 1: em.op('s_setprio 1')
    npre = cfg.n0 if typ == 1 else 0
    if npre:
        for f in k_dma_ops(em, 0): f()
        em.wait_lgkm0(force=True)
        k_fetch(em, 0, k_dma_ops(em, 1) if npre == 2 else None)
        if npre == 2: k_fetch(em, 1, None)
        em.wait_lgkm0()
    em.barrier()
    for f in stage_dma_ops(em, 0, qh): f()
    em.barrier()
    for f in stage_dma_ops(em, 1, qh): f()
    em.op(f's_add_u32 s{SO}, s12, s{SO+3}'); em.op(f's_addc_u32 s{SO+1}, s13, 0'); em.op(f's_mov_b32 s{SO+2}, {O_HEAD}'); em.op(f's_mov_b32 s{SO+3}, 0x20000')
    em.op(f's_mov_b32 s{sC}, {fbits(192 ** -0.5 * math.log2(math.e))}')
    if cfg.code_pre and not cfg.cearly:
        em.op('s_getpc_b64 s[58:59]')
        em.label(f'L_pc{qh}{typ}')
        em.op(f's_add_u32 s58, s58, k1_body_start-L_pc{qh}{typ}')
        em.op('s_addc_u32 s59, s59, -1')
        em.op(f's_and_b32 s{sT1}, s{sLOC}, 15')
        em.op(f's_lshl_b32 s{sT1}, s{sT1}, 13')
        em.op(f'v_lshlrev_b32 v{TMP[11]}, 4, v0')
        em.op(f'v_add_u32 v{TMP[11]}, s{sT1}, v{TMP[11]}')
        em.op(f'v_min_u32 v{TMP[11]}, k1_body_end-k1_body_start-16, v{TMP[11]}')
    em.st.stamp('si')
    em.op(f'v_lshlrev_b32 v{t3}, 2, v0')
    em.op(f'v_add_u32 v{t3}, {MAXB}, v{t3}')
    em.op(f'v_mov_b32 v{t4}, 0xff800000')
    em.op(f'ds_write_b32 v{t3}, v{t4}')
    em.op(f'v_and_b32 v{vMS}, 15, {L}')
    em.op(f'v_lshlrev_b32 v{vMS}, 2, v{vMS}')
    em.op(f'v_add_u32 v{vMS}, {MAXB}, v{vMS}')
    em.op(f'v_add_u32 v{vRA[0]}, {q0 * 2048}, v{vRA[0]}')
    em.op(f'v_xor_b32 v{vRA[1]}, 64, v{vRA[0]}')
    for t in range(3): tr_addr(em, vRB[t], t, VBASE, 'w')
    for t in range(3):
        em.op(f's_mul_i32 s{sT0}, s{sDG}, 3'); em.op(f's_add_u32 s{sT0}, s{sT0}, {t}'); em.op(f's_lshl_b32 s{sT0}, s{sT0}, 1')
        em.op(f'v_lshrrev_b32 v{t0}, 5, {L}')
        em.op(f'v_add_u32 v{t0}, s{sT0}, v{t0}')
        em.op(f'v_lshrrev_b32 v{t1}, 3, v{t0}'); em.op(f'v_lshlrev_b32 v{t1}, 7, v{t1}')
        em.op(f'v_and_b32 v{t0}, 7, v{t0}')
        em.op(f'v_bfe_u32 v{t2}, {L}, 1, 3')
        em.op(f'v_xor_b32 v{t0}, v{t0}, v{t2}'); em.op(f'v_lshlrev_b32 v{t0}, 4, v{t0}')
        em.op(f'v_add_u32 v{t0}, v{t0}, v{t1}')
        em.op(f'v_and_b32 v{t1}, 15, {L}'); em.op(f'v_mul_u32_u24 v{t1}, 384, v{t1}')
        em.op(f'v_add_u32 v{t0}, v{t0}, v{t1}')
        em.op(f'v_bfe_u32 v{t1}, {L}, 4, 1'); em.op(f'v_lshlrev_b32 v{t1}, 3, v{t1}')
        em.op(f'v_add_u32 v{vRC[t]}, v{t0}, v{t1}')
    em.op(f'v_lshlrev_b32 v{vPA}, 4, {L}')
    em.op(f's_lshl_b32 s{sT0}, s{sW}, 2'); em.op(f's_lshr_b32 s{sT1}, 0x10543210, s{sT0}'); em.op(f's_and_b32 s{sT1}, s{sT1}, 15'); em.op(f's_mul_i32 s{sT1}, s{sT1}, 9216')
    em.op(f'v_add_u32 v{vPW}, s{sT1}, v{vPA}')
    em.op(f'v_add_u32 v{vPA}, {q0 * 1024}, v{vPA}')
    AF = [176, 188]; BF = [200, 220]
    def q_reads(s, step, st):
        ops = []
        for t in range(3):
            ops.append(f'ds_read_b64_tr_b16 {vr(AF[st] + 4*t, 2)}, v{vRB[t]} offset:{(s % 3) * 24576 + step * 12288}')
            ops.append(f'ds_read_b64_tr_b16 {vr(AF[st] + 4*t + 2, 2)}, v{vRB[t]} offset:{(s % 3) * 24576 + step * 12288 + 512}')
        xs = [f'ds_read_b128 {vr(BF[st] + 4*j)}, v{vRA[step]} offset:{(s % 3) * 18432 + j * 2048}' for j in range(nq)]
        return ops[0:2] + xs[0:1] + ops[2:6] + xs[1:]
    def mf(st, first):
        return [mfma(ACC + 4*(j*3+t), AF[st] + 4*t, BF[st] + 4*j, None if first else ACC + 4*(j*3+t)) for j in range(nq) for t in range(3)]
    em.wait_vm_tag('S0', lgkm0=True); em.barrier()
    em.st.stamp('S0')
    em.op(f's_add_u32 s{sTAG}, s{sTAG}, 1')
    for o in q_reads(0, 0, 0): em.op(o)
    em.npre = npre
    nxt = [k_dma_ops(em, 0), k_dma_ops(em, 1), va_ops(em)][npre]
    plan = {15: nxt[0:4], 16: nxt[4:7], 17: nxt[7:10], 18: nxt[10:12]} if qh == 0 else {19: nxt[0:6]}
    late = [] if qh == 0 else nxt[6:12]
    cap = Cap()
    for t in range(3): tr_addr(cap, VTMP[t], t, VBASE, 'v')
    vaddr_ops = cap.ops
    inloop_pf = not (typ == 1 and cfg.n0) and not cfg.pfall
    carry = stage_dma_ops(em, 2, qh) + (sum([pf_ops() for i in range(cfg.pfa - 3)], []) if inloop_pf else [])
    if cfg.code_pre and not cfg.cearly: carry.append(f'global_load_dwordx4 {vr(244)}, v{TMP[11]}, s[58:59]')
    for s in range(10):
        extra = []
        extra = plan.get(2 * s, [])
        interleave(em, mf(0, s == 0), ([] if cfg.x_qnord and 3 < s <= 6 else q_reads(s, 1, 1), 0, rf), (extra, 0.1, 1), (carry, 0.05, cfg.dhi / 100))
        if s < 9: em.wait_vm_tag(f'S{s+1}', lgkm0=True)
        else: em.wait_lgkm0()
        em.barrier()
        if s in cfg.qst: em.st.stamp(f'B{s}')
        if cfg.qloop and s == 6:
            em.op('s_sub_u32 s87, s87, 1'); em.op('s_cmp_lg_u32 s87, 0'); em.op(f's_cbranch_scc1 L_ql{qh}{typ}')
            em.st.stamp('LBend')
        if cfg.qloop and s == 3:
            em.st.stamp('LB0')
            em.op('s_mov_b32 s87, 16'); em.label(f'L_ql{qh}{typ}')
        rd = []; dm = []; extra = []
        if s < 9:
            if not (cfg.x_qnord and 3 <= s < 6): rd += q_reads(s + 1, 0, 0)
        carry = []
        if s + 3 <= 9:
            dm = stage_dma_ops(em, s + 3, qh); dm, carry = dm[:cfg.dsplit], dm[cfg.dsplit:]
            if cfg.x_qnodma and 3 <= s < 6: dm = []; carry = []
        if s == 7: extra = vaddr_ops
        first = (pf_ops() + (pf2_ops() if s + cfg.pfa >= cfg.pf1 and cfg.n0 else []) if inloop_pf and s + cfg.pfa <= 9 and not (cfg.qloop and s >= 3) else []) + plan.get(2 * s + 1, [])
        qw = []
        if s == 9:
            for j in range(nq):
                for t in range(3):
                    a = ACC + 4*(j*3+t)
                    qw.append([f'v_cvt_pk_bf16_f32 v{a}, v{a}, v{a+1}', f'v_cvt_pk_bf16_f32 v{a+1}, v{a+2}, v{a+3}', f'ds_write_b64 v{vRC[t]}, {vr(a,2)} offset:{(q0 + j) * 6144}'])
        n = 3 * nq; lag = 3 if cfg.qwi else n
        ins = [(qw[k], (k + lag + 0.5) / n, (k + lag + 0.5) / n) for k in range(n - lag)] if qw else []
        interleave(em, mf(1, False), (dm, cfg.dlo / 100, cfg.dhi / 100), (rd, 0, rf), (extra, 0, 1), (first, 0, 0.04 if dm else 0.9), *ins)
    for g in qw[max(0, n - lag):]:
        for o in g: em.op(o)
    for f in late: f()
    em.op(f'v_and_b32 v{t1}, 15, {L}'); em.op(f'v_mul_u32_u24 v{t1}, 384, v{t1}')
    em.op(f'v_add_u32 v{vRA[0]}, v{t1}, v{vT}')
    em.op(f'v_xor_b32 v{t0}, 64, v{vT}')
    em.op(f'v_add_u32 v{vRA[1]}, v{t1}, v{t0}')
    for t in range(3): em.op(f'v_mov_b32 v{vRB[t]}, v{VTMP[t]}')
    em.wait_lgkm0(); em.barrier()
    for t in range(3): em.op(f'v_add_u32 v{vRC[t]}, 49152, v{vRB[t]}')
    em.op(f's_lshl_b32 s{sT0}, s{sW}, 2'); em.op(f's_lshr_b32 s{sT1}, 0x32105432, s{sT0}'); em.op(f's_and_b32 s{sT1}, s{sT1}, 15'); em.op(f's_mul_i32 s{sT1}, s{sT1}, 9216')
    em.op(f'v_lshlrev_b32 v{vPW2}, 4, {L}')
    em.op(f'v_add_u32 v{vPW2}, s{sT1}, v{vPW2}')
    em.st.stamp('BQ')

def maxops(half):
    ops = []
    for qt in range(9):
        a, b = sreg(half*2, qt), sreg(half*2+1, qt); m = MC + qt
        if half == 0:
            ops += [f'v_max3_f32 v{m}, v{a}, v{a+1}, v{a+2}', f'v_max3_f32 v{m}, v{m}, v{a+3}, v{b}',
                    f'v_max3_f32 v{m}, v{m}, v{b+1}, v{b+2}', f'v_max_f32 v{m}, v{m}, v{b+3}']
        else:
            ops += [f'v_max3_f32 v{m}, v{m}, v{a}, v{a+1}', f'v_max3_f32 v{m}, v{m}, v{a+2}, v{a+3}',
                    f'v_max3_f32 v{m}, v{m}, v{b}, v{b+1}', f'v_max3_f32 v{m}, v{m}, v{b+2}, v{b+3}']
    return ops

def k1_qk(em, qh):
    def qrd(n):
        qt, ks = divmod(n, 6)
        return f'ds_read_b128 {vr(QF + 4*(n % 4))}, v{vRA[ks & 1]} offset:{qt * 6144 + (ks >> 1) * 128}'
    npre = em.npre
    for half in range(2):
        fill = []
        if half >= npre:
            fill = k_dma_ops(em, 1) if half == 0 else va_ops(em)
            if half == 0 and cfg.eager >> qh & 1:
                k_fetch(em, half, fill); fill = []
            else:
                k_fetch(em, half, None)
                em.wait_lgkm0()
                if half == 1 and cfg.eagerv >> qh & 1:
                    for f in fill: f()
                    fill = []
        for n in range(3): em.op(qrd(n))
        em.st.stamp(f'K{half}')
        main = []
        for n in range(54):
            qt, ks = divmod(n, 6)
            if n + 3 < 54: main.append(qrd(n + 3))
            for k in range(2):
                kt = half * 2 + k
                main.append(mfma(sreg(kt, qt), kop(kt, ks), QF + 4*(n % 4), None if ks == 0 else sreg(kt, qt)))
        m1 = maxops(1)
        if half == 0:
            streams = [(fill, cfg.g2lo / 100, cfg.g2hi / 100)]
        else:
            streams = [(maxops(0), 0.02, 0.5)]
            for qt in range(8): streams.append((m1[qt*4:qt*4+4], max(0.5 + 0.05*qt, (qt + 1.5) / 9), max(0.55 + 0.05*qt, (qt + 1.9) / 9)))
            streams.append((fill, cfg.valo / 100, cfg.vahi / 100))
        interleave(em, main, *streams)
    em.st.stamp('QKend')
    for o in maxops(1)[32:]: em.op(o)
    for qt in range(9): em.op(f'ds_max_f32 v{vMS}, v{MC+qt} offset:{qt*64}')
    em.op(f'v_lshlrev_b32 v{vVW}, 4, v{vLANE}')
    em.op(f'v_add_u32 v{vVW}, s{sW3072}, v{vVW}')
    em.op(f'v_add_u32 v{vVW}, {VBASE}, v{vVW}')
    em.op(f'v_add_u32 v{vVW2}, 49152, v{vVW}')
    em.wait_lgkm0(); em.barrier()
    em.st.stamp('BM')

def expops(r, qt, pk):
    a, b = sreg(2*r, qt), sreg(2*r+1, qt); m = MC + qt
    tA, tB = TMP[0], TMP[2]
    sp = SUMP + 2*qt
    rs = [a, a+1, a+2, a+3, b, b+1, b+2, b+3]
    if pk:
        mb = m & ~1; s = m & 1
        ops = [f'v_pk_fma_f32 {vr(x,2)}, {vr(x,2)}, s[{sC}:{sC+1}], {vr(mb,2)} op_sel:[0,0,{s}] op_sel_hi:[1,0,{s}] neg_lo:[0,0,1] neg_hi:[0,0,1]' for x in rs[::2]]
    else:
        ops = [f'v_fma_f32 v{x}, v{x}, s{sC}, -v{m}' for x in rs]
    ops += [f'v_exp_f32 v{x}, v{x}' for x in rs]
    if pk:
        ops += [f'v_pk_add_f32 {vr(tA,2)}, {vr(a,2)}, {vr(a+2,2)}', f'v_pk_add_f32 {vr(tB,2)}, {vr(b,2)}, {vr(b+2,2)}']
        if r == 0: tailo = [f'v_pk_add_f32 {vr(sp,2)}, {vr(tA,2)}, {vr(tB,2)}']
        else: tailo = [f'v_pk_add_f32 {vr(tA,2)}, {vr(tA,2)}, {vr(tB,2)}', f'v_pk_add_f32 {vr(sp,2)}, {vr(sp,2)}, {vr(tA,2)}']
    else:
        assert r == 1
        ops += [f'v_add_f32 v{sp + (i & 1)}, v{sp + (i & 1)}, v{x}' for i, x in enumerate(rs)]
        tailo = []
    ops += [f'v_cvt_pk_bf16_f32 v{a}, v{a}, v{a+1}', f'v_cvt_pk_bf16_f32 v{a+1}, v{a+2}, v{a+3}',
            f'v_cvt_pk_bf16_f32 v{a+2}, v{b}, v{b+1}', f'v_cvt_pk_bf16_f32 v{a+3}, v{b+2}, v{b+3}']
    return ops + tailo

def pwrite(r, qt, qh):
    return f'ds_write_b128 v{vPW if r == 0 else vPW2}, {vr(sreg(2*r, qt))} offset:{qt*1024}'

def sum_ops():
    L = f'v{vLANE}'
    S = SUM; ops = []
    ops += [f'v_add_f32 v{SUM+qt}, v{SUMP+2*qt}, v{SUMP+2*qt+1}' for qt in range(9)]
    ops += [f'v_mov_b32 v{MC}, 0', f'v_mov_b32 v{MC+1}, 0']
    ta = TMP[2]; tb = TMP[3]
    ops += [f'v_bfe_u32 v{ta}, {L}, 4, 1', f'v_lshlrev_b32 v{ta}, 10, v{ta}', f'v_bfe_u32 v{tb}, {L}, 5, 1', f'v_lshlrev_b32 v{tb}, 9, v{tb}',
            f'v_add_u32 v{ta}, v{ta}, v{tb}', f'v_and_b32 v{tb}, 15, {L}', f'v_lshlrev_b32 v{tb}, 5, v{tb}', f'v_add_u32 v{ta}, v{ta}, v{tb}',
            f's_lshl_b32 s{sT0}, s{sW}, 2', f's_add_u32 s{sT0}, s{sT0}, {SUMB}', f'v_add_u32 v{ta}, s{sT0}, v{ta}']
    for a in (0, 2, 4, 6): ops.append(f'v_permlane32_swap_b32 v{S+a}, v{S+a+1}')
    ops.append(f'v_permlane32_swap_b32 v{S+8}, v{MC}')
    for a in (0, 2, 4, 6): ops.append(f'v_add_f32 v{S+a}, v{S+a}, v{S+a+1}')
    ops.append(f'v_add_f32 v{S+8}, v{S+8}, v{MC}')
    for a in (0, 4): ops.append(f'v_permlane16_swap_b32 v{S+a}, v{S+a+2}')
    ops.append(f'v_permlane16_swap_b32 v{S+8}, v{MC+1}')
    for a in (0, 4): ops.append(f'v_add_f32 v{S+a}, v{S+a}, v{S+a+2}')
    ops.append(f'v_add_f32 v{S+8}, v{S+8}, v{MC+1}')
    for a in (0, 4, 8): ops.append(f'ds_write_b32 v{ta}, v{S+a} offset:{a * 512}')
    return ops

def k1_sm0(em, qh):
    for qt in range(9): em.op(f'ds_read_b32 v{MC+qt}, v{vMS} offset:{qt*64}')
    for qt in range(9): em.op(f'v_mul_f32 v{MC+qt}, s{sC}, v{MC+qt}')
    main = []
    for qt in range(9):
        main += expops(0, qt, True)
        if qh == 0: main.append(pwrite(0, qt, qh))
    for qt in range(9): main += expops(1, qt, True)
    main += sum_ops()
    interleave(em, main, (v_reg_ops(em) if cfg.vreg else [], 0, cfg.vrf / 100))
    em.st.stamp('exp0')
    if qh == 0: em.wait_vm_tag('VA', lgkm0=True)
    else: em.wait_lgkm0()
    em.barrier()
    em.st.stamp('PV0')

def k1_pv(em, qh):
    nq = 5 if qh == 0 else 4
    q0 = 0 if qh == 0 else 5
    L = f'v{vLANE}'
    t0 = TMP[4]
    rf = cfg.rfrac / 100
    PBF = PBF0 if qh == 0 else PBF1
    INV = INV0 + 2 * qh
    PAF = PAF0 if qh == 0 else PAF1
    def pv_reads(s, step, st):
        ops = []
        slot = vslot(s)
        base = vRB if slot < 2 else vRC
        off = (slot % 2) * 24576 + step * 12288
        for t in range(3):
            ops.append(f'ds_read_b64_tr_b16 {vr(PAF[st][t], 2)}, v{base[t]} offset:{off}')
            ops.append(f'ds_read_b64_tr_b16 {vr(PAF[st][t] + 2, 2)}, v{base[t]} offset:{off + 6144}')
        pa, po = vPA, ((2 * s + step) % 6) * 9216
        xs = [f'ds_read_b128 {vr(PBF[st][j])}, v{pa} offset:{po + j * 1024}' for j in range(nq)]
        return ops[0:2] + xs[0:1] + ops[2:6] + xs[1:]
    OACC = OACC0 if qh == 0 else OACC1
    def mf(st, first):
        return [mfma(OACC[j*3+t], PAF[st][t], PBF[st][j], None if first else OACC[j*3+t]) for j in range(nq) for t in range(3)]
    def inv_ops():
        ta = TMP[2]; ops = []
        ops += [f'v_and_b32 v{ta}, 15, {L}', f'v_lshlrev_b32 v{ta}, 5, v{ta}', f'v_add_u32 v{ta}, {SUMB + q0 * 512}, v{ta}']
        for j in range(nq):
            ops += [f'ds_read_b128 {vr(64 + 8*j)}, v{ta} offset:{j * 512}', f'ds_read_b128 {vr(68 + 8*j)}, v{ta} offset:{j * 512 + 16}']
        for j in range(nq):
            r = 64 + 8*j
            ops += [f'v_add_f32 v{r}, v{r}, v{r+1}', f'v_add_f32 v{r+2}, v{r+2}, v{r+3}', f'v_add_f32 v{r+4}, v{r+4}, v{r+5}', f'v_add_f32 v{r+6}, v{r+6}, v{r+7}',
                    f'v_add_f32 v{r}, v{r}, v{r+2}', f'v_add_f32 v{r+4}, v{r+4}, v{r+6}', f'v_add_f32 v{r}, v{r}, v{r+4}', f'v_rcp_f32 v{INV+2*j}, v{r}']
        cap = Cap()
        for t in range(3):
            cap.op(f's_mul_i32 s{sT0}, s{sDG}, 3'); cap.op(f's_add_u32 s{sT0}, s{sT0}, {t}')
            cap.op(f's_lshr_b32 s{sT1}, s{sT0}, 2'); cap.op(f's_mul_i32 s{sT1}, s{sT1}, 20480')
            cap.op(f's_bfe_u32 s{sT2}, s{sT0}, 0x10001'); cap.op(f's_mul_i32 s{sT2}, s{sT2}, 9216'); cap.op(f's_add_u32 s{sT1}, s{sT1}, s{sT2}')
            cap.op(f's_and_b32 s{sT0}, s{sT0}, 1'); cap.op(f's_lshl_b32 s{sT0}, s{sT0}, 3')
            cap.op(f's_add_u32 s{sT0}, s{sT0}, s{sT1}'); cap.op(f's_add_u32 s{sT0}, s{sT0}, 61440')
            cap.op(f'v_add_u32 v{vOW[t]}, s{sT0}, v{vPA}')
        return ops + cap.ops
    def ex(h):
        o = []
        if qh == 0 and h in (5, 6): o += [pwrite(1, qt, qh) for qt in (range(5) if h == 5 else range(5, 9))]
        if qh == 1 and h in (1, 2): o += [pwrite(0, qt, qh) for qt in (range(5) if h == 1 else range(5, 9))]
        if qh == 1 and h in (9, 10): o += [pwrite(1, qt, qh) for qt in (range(5) if h == 9 else range(5, 9))]
        return o
    TS = tail_setup_ops(qh)
    def wopre_ops(i):
        ta = TMP[2 + (i & 1)]
        ops = [f's_mul_i32 s{sT0}, s{sX}, 983040', f's_mul_i32 s{sT1}, s{sLOC}, 30720', f's_add_u32 s{sT0}, s{sT0}, s{sT1}', f's_add_u32 s{sT0}, s{sT0}, {i * 8192}',
               f'v_lshlrev_b32 v{ta}, 4, v0', f'v_add_u32 v{ta}, s{sT0}, v{ta}', f'v_min_u32 v{ta}, {7864320 - 16}, v{ta}',
               f'global_load_dwordx4 {vr(212)}, v{ta}, s[14:15]' + (' nt' if cfg.wont else '')]
        return ops
    for o in pv_reads(0, 0, 0): em.op(o)
    for s in range(8):
        e = ex(2*s)
        if 2*s == 12: e = TS[:len(TS)//3]
        if 2*s == 14: e = TS[2*len(TS)//3:]
        w = wopre_ops(s - 3) if cfg.wopre and 2*s in (6, 8, 10) else []
        interleave(em, mf(0, s == 0), (pv_reads(s, 1, 1), 0, rf), (e, 0, cfg.efrac / 100), (w, 0.5, 0.51))
        if s == 1: em.wait_vm_tag('VA', lgkm0=True)
        elif s < (3 if cfg.vreg else 7): em.wait_vm_tag(f'V{s+1}', lgkm0=True)
        else: em.wait_lgkm0()
        em.barrier()
        em.st.stamp(f'PB{s}')
        rd = pv_reads(s + 1, 0, 0) if s < 7 else []
        dm = (v_put_ops(s + NV) if cfg.vreg else v_dma_ops(em, s + NV)) if s + NV <= 7 else []
        e = ex(2*s+1)
        if 2*s+1 == 11: e = inv_ops()
        if 2*s+1 == 13: e = TS[len(TS)//3: 2*len(TS)//3]
        if 2*s+1 == 15:
            if qh == 0: dm = tail_dma(em, 0) + tail_dma(em, 1)
        w = wopre_ops(3) if cfg.wopre and 2*s+1 == 9 else []
        ins = []
        n = 3 * nq; lag = 4 if cfg.qwi else n
        if s == 7:
            for k in range(n - lag):
                a = OACC[k]; m = INV + 2 * (k // 3)
                g = [f'v_mul_f32 v{a+d}, v{a+d}, v{m}' for d in range(4)] + [f'v_cvt_pk_bf16_f32 v{a}, v{a}, v{a+1}', f'v_cvt_pk_bf16_f32 v{a+1}, v{a+2}, v{a+3}',
                     f'ds_write_b64 v{vOW[k % 3]}, {vr(a,2)} offset:{(k // 3) * 1024}']
                ins.append((g, (k + lag + 0.5) / n, (k + lag + 0.5) / n))
        interleave(em, mf(1, False), (dm, 0.3 if s < 7 and cfg.vreg else 0, (0.9 if cfg.vreg else 0.4) if s < 7 else 1), (rd, 0, rf + 0.1), (e, 0, 1), (w, 0.5, 0.51), *ins)
    late = tail_dma(em, 2) if qh == 0 else []
    main = []
    for j in range(nq):
        for t in range(3):
            if j * 3 + t < n - lag: continue
            a = OACC[j*3+t]
            m = INV + 2*j
            main += [f'v_pk_mul_f32 {vr(a,2)}, {vr(a,2)}, {vr(m,2)} op_sel_hi:[1,0]', f'v_pk_mul_f32 {vr(a+2,2)}, {vr(a+2,2)}, {vr(m,2)} op_sel_hi:[1,0]',
                     f'v_cvt_pk_bf16_f32 v{a}, v{a}, v{a+1}', f'v_cvt_pk_bf16_f32 v{a+1}, v{a+2}, v{a+3}',
                     f'ds_write_b64 v{vOW[t]}, {vr(a,2)} offset:{j * 1024}']
    interleave(em, main, (late, 0, 1))
    em.wait_vm_tag('T0', lgkm0=True); em.barrier()
    em.st.stamp('BO')
    if qh == 0:
        em.op(f's_cmp_lt_u32 s{sW}, 2')
        em.op('s_cbranch_scc0 L_tail1')
        st = em.save(); sn = (em.st.n, list(em.st.names))
        tail(em, 0)
        em.label('L_tail1')
        em.restore(st); em.st.n, em.st.names = sn[0], list(sn[1])
        tail(em, 1)
    else:
        tail(em, 2)

STG2 = 40960
vOFFS = [64, 65, 66, 67, 68]; vA2 = [69, 70, 71, 72, 73]; vB2 = 74
SD, SP, SPR, SOUT = SX, SWQ, SK, SV
def tail_setup_ops(qh):
    c = Cap(); L = f'v{vLANE}'
    t0, t1, t2, t3 = 96, 97, 98, 99
    if qh == 0:
        c.op(f's_mul_i32 s{sT0}, s{sX}, 983040'); c.op(f's_mul_i32 s{sT1}, s{sJ}, 320'); c.op(f's_add_u32 s{sT0}, s{sT0}, s{sT1}')
        srd(c, SD, 14, 15, f's{sT0}', 7864320)
        c.op(f's_sub_u32 s{SD+2}, s{SD+2}, s{sT0}')
        c.op(f's_mov_b32 s{sSTR}, 81920')
        hs = 245760
        c.op(f's_lshl_b32 s{sT2}, s{sW}, 4')
        c.op(f's_mov_b32 s{sT1}, 52429')
        for j in range(5):
            c.op(f'v_add_u32 v{t0}, {j * 64}, {L}')
            c.op(f'v_mul_lo_u32 v{t1}, v{t0}, s{sT1}')
            c.op(f'v_lshrrev_b32 v{t1}, 20, v{t1}')
            c.op(f'v_mul_u32_u24 v{t2}, 20, v{t1}')
            c.op(f'v_sub_u32 v{t2}, v{t0}, v{t2}')
            c.op(f'v_bfe_u32 v{t3}, v{t1}, 2, 1')
            c.op(f'v_lshlrev_b32 v{t3}, 1, v{t3}')
            c.op(f'v_xor_b32 v{t2}, v{t2}, v{t3}')
            c.op(f'v_lshlrev_b32 v{t2}, 4, v{t2}')
            c.op(f'v_add_u32 v{t1}, s{sT2}, v{t1}')
            c.op(f'v_mul_u32_u24 v{t1}, 1280, v{t1}')
            c.op(f'v_add_u32 v{vOFFS[j]}, v{t1}, v{t2}')
    else:
        c.op(f's_lshl_b32 s{sT0}, s{sB}, 5'); c.op(f's_lshl_b32 s{sT1}, s{sX}, 2'); c.op(f's_add_u32 s{sT0}, s{sT0}, s{sT1}')
        c.op(f's_mul_i32 s{sT0}, s{sT0}, {O_HEAD}')
        srd(c, SD, 12, 13, f's{sT0}', 4 * O_HEAD)
        c.op(f's_mov_b32 s{sSTR}, 18432')
        hs = O_HEAD
        c.op(f's_mul_i32 s{sT2}, s{sDG}, 5120')
        c.op(f'v_lshlrev_b32 v{t0}, 4, {L}')
        c.op(f'v_add_u32 v{t0}, s{sT2}, v{t0}')
        for j in range(5): c.op(f'v_add_u32 v{vOFFS[j]}, {j * 1024}, v{t0}')
    c.op(f's_mul_i32 s{sM0T}, s{sDG}, 5120')
    if qh: c.op(f's_add_u32 s{sM0T}, s{sM0T}, 61440')
    for i in range(4):
        c.op(f's_add_u32 s{sT0}, s{sJ}, {i}'); c.op(f's_and_b32 s{sT0}, s{sT0}, 3'); c.op(f's_mul_i32 s{sHB+i}, s{sT0}, {hs}')
    c.op(f's_and_b32 s{sNH}, s{sW}, 1')
    c.op(f'v_lshrrev_b32 v{t0}, 2, {L}')
    c.op(f'v_mul_u32_u24 v{t0}, 320, v{t0}')
    c.op(f'v_and_b32 v{t1}, 3, {L}'); c.op(f'v_lshlrev_b32 v{t1}, 3, v{t1}')
    c.op(f'v_add_u32 v{t0}, v{t0}, v{t1}')
    c.op(f'v_bfe_u32 v{t1}, {L}, 4, 1')
    c.op(f's_mul_i32 s{sT0}, s{sNH}, 5')
    for t in range(5):
        c.op(f's_add_u32 s{sT1}, s{sT0}, {t}')
        c.op(f'v_xor_b32 v{t2}, s{sT1}, v{t1}')
        c.op(f'v_lshlrev_b32 v{t2}, 5, v{t2}')
        c.op(f'v_add_u32 v{vA2[t]}, v{t0}, v{t2}')
    c.op(f's_lshr_b32 s{sT0}, s{sW}, 1')
    c.op(f's_mov_b32 s{sT1}, 0x7350')
    c.op(f's_lshl_b32 s{sT0}, s{sT0}, 2')
    c.op(f's_lshr_b32 s{sQ0}, s{sT1}, s{sT0}')
    c.op(f's_and_b32 s{sQ0}, s{sQ0}, 15')
    c.op(f's_lshl_b32 s{sT0}, s{sQ0}, 10')
    c.op(f's_add_u32 s{sT0}, s{sT0}, 61440')
    c.op(f'v_lshlrev_b32 v{vB2}, 4, {L}')
    c.op(f'v_add_u32 v{vB2}, s{sT0}, v{vB2}')
    c.op(f's_lshl_b32 s{sT0}, s{sB}, 3'); c.op(f's_add_u32 s{sT0}, s{sT0}, s{sX}'); c.op(f's_lshl_b32 s{sT0}, s{sT0}, 7'); c.op(f's_add_u32 s{sT0}, s{sT0}, {FLAG_OFF + 4096}')
    c.op(f's_add_u32 s{sF1}, s12, s{sT0}'); c.op(f's_addc_u32 s{sF1+1}, s13, 0')
    c.op(f's_lshl_b32 s{sT0}, s{sLOC}, 7'); c.op(f's_add_u32 s{sT0}, s{sT0}, {FLAG_OFF + 16384}')
    c.op(f's_add_u32 s{sF2}, s12, s{sT0}'); c.op(f's_addc_u32 s{sF2+1}, s13, 0')
    c.op(f's_mul_i32 s{sT0}, s{sLOC}, {8 * PART2}'); c.op(f's_add_u32 s{sT0}, s{sT0}, {WS_PART}')
    srd(c, SPR, 12, 13, f's{sT0}', 8 * PART2)
    c.op(f's_mul_i32 s{sT1}, s{sX}, {PART2}'); c.op(f's_add_u32 s{sT0}, s{sT0}, s{sT1}')
    srd(c, SP, 12, 13, f's{sT0}', PART2)
    srd(c, SOUT, 54, 55, None, 1474560)
    return c.ops

def tail_dma(em, s, orole=False):
    ops = []
    sc = ' sc1' if (orole and cfg.sc_ol) else ''
    for j in range(5):
        def f(j=j):
            em.op(f's_add_u32 m0, s{sM0T}, {(s % 3) * 20480 + j * 1024}')
            if j == 0:
                if s % 3 == 0: em.op(f's_mov_b32 s{sOFF}, s{sHB + s // 3}')
                else: em.op(f's_add_u32 s{sOFF}, s{sOFF}, s{sSTR}')
            em.op(f'buffer_load_dwordx4 v{vOFFS[j]}, {sr(SD,4)}, s{sOFF} offen{sc} lds', tag=f'T{s}')
        ops.append(f)
    return ops

def flag_store(em, base, idx_s, lab, wave):
    t0, t1 = 50, 51
    em.op(f's_cmp_eq_u32 s{sW}, {wave}')
    em.op(f's_cbranch_scc0 {lab}')
    em.begin_opt()
    em.op(f's_lshl_b32 s{sT0}, s{idx_s}, 2')
    em.op(f'v_mov_b32 v{t0}, s{sT0}')
    em.op(f'v_mov_b32 v{t1}, s{sTAG}')
    em.op('s_mov_b64 exec, 1')
    em.op(f'global_store_dword v{t0}, v{t1}, s[{base}:{base+1}] sc1')
    em.op('s_mov_b64 exec, -1')
    em.end_opt()
    em.label(lab)

def poll(em, base, mask, lab):
    t0, t1 = 52, 53
    em.op(f'v_and_b32 v{t0}, {mask}, v{vLANE}')
    em.op(f'v_lshlrev_b32 v{t0}, 2, v{t0}')
    em.op(f's_mov_b32 s{sCNT}, 0x20000')
    em.wait_vm0()
    em.label(lab)
    em.op(f'global_load_dword v{t1}, v{t0}, s[{base}:{base+1}] sc1')
    em.op(f's_sub_u32 s{sCNT}, s{sCNT}, 1')
    em.op(f's_cbranch_scc1 {lab}_done')
    em.wait_vm0()
    em.op(f'v_cmp_ne_u32 vcc, s{sTAG}, v{t1}')
    em.op('s_nop 4')
    em.op(f's_cbranch_vccz {lab}_done')
    em.op('s_sleep 1')
    em.op(f's_branch {lab}')
    em.label(f'{lab}_done')
    em.wait_vm0()

def tail(em, tv):
    nq = 3 if tv == 0 else 2
    orole = tv == 2
    L = f'v{vLANE}'
    rf = cfg.rfrac / 100
    sc = ' sc1' if cfg.sc else ''
    ACC2 = 116; AF = [76, 96]; BF = [16, 28]; CO = 176
    t0, t1, t2, t3 = 40, 41, 42, 43
    em.op(f'v_lshlrev_b32 v{t0}, 4, v0')
    em.op(f'v_add_u32 v{t1}, 61440, v{t0}')
    npc = 3 if tv == 0 else 2
    k = 0; sts = []
    for c in range(3):
        for i in range(npc):
            va, off = t1, c * 20480
            em.op(f'ds_read_b128 {vr(CO + 4*k)}, v{va} offset:{off + i * 8192}')
            sts.append((CO + 4*k, c * 18432 + i * 8192)); k += 1
    def reads(s, step, st_):
        ops = []
        for t in range(5):
            ops.append(f'ds_read_b64_tr_b16 {vr(AF[st_] + 4*t, 2)}, v{vA2[t]} offset:{(s % 3) * 20480 + step * 10240}')
            ops.append(f'ds_read_b64_tr_b16 {vr(AF[st_] + 4*t + 2, 2)}, v{vA2[t]} offset:{(s % 3) * 20480 + step * 10240 + 5120}')
        xs = [f'ds_read_b128 {vr(BF[st_] + 4*j)}, v{vB2} offset:{(s % 3) * 20480 + step * 9216 + j * 1024}' for j in range(nq)]
        return ops[0:2] + xs + ops[2:]
    def mf(st_, first):
        return [mfma(ACC2 + 4*(t*nq+j), AF[st_] + 4*t, BF[st_] + 4*j, None if first else ACC2 + 4*(t*nq+j)) for t in range(5) for j in range(nq)]
    for r, off in sts:
        em.op(f's_mov_b32 s{sT0}, {off}')
        em.op(f'buffer_store_dwordx4 {vr(r)}, v{t0}, {sr(SO,4)}, s{sT0} offen' + ['', ' sc1', ' nt', ' sc0'][cfg.sc_o], tag='CO')
    for o in reads(0, 0, 0): em.op(o)
    carry = []
    for s in range(12):
        interleave(em, mf(0, s == 0), (reads(s, 1, 1), 0, rf), (carry, 0.05, 0.95))
        carry = []
        if s < 11:
            if s == 0: em.wait_vm0(); em.wait_lgkm0()
            else: em.wait_vm_tag(f'T{s+1}', lgkm0=True)
            em.barrier()
            em.st.stamp(f'T{s}')
        else:
            em.wait_lgkm0(); em.barrier()
        if s == 0 and orole: flag_store(em, sF1, sJ, 'L_f1', 4)
        fill = []; dm = []
        if s < 11:
            fill += reads(s + 1, 0, 0)
        if s + 3 <= 11:
            if not orole or s >= 2:
                dm = tail_dma(em, s + 3, orole); dm, carry = dm[:3], dm[3:]
            elif s == 1:
                poll(em, sF1, 3, 'L_p1')
                em.st.stamp('poll')
                for f in tail_dma(em, 3, True): f()
                dm = tail_dma(em, 4, True)
        interleave(em, mf(1, False), (dm, 0.05, 0.95), (fill, 0, rf))
    em.st.stamp('TP')
    em.op(f'v_and_b32 v{t1}, 15, {L}'); em.op(f'v_mul_u32_u24 v{t1}, 336, v{t1}')
    em.op(f'v_lshrrev_b32 v{t2}, 4, {L}'); em.op(f'v_lshlrev_b32 v{t2}, 3, v{t2}')
    em.op(f's_mul_i32 s{sT0}, s{sQ0}, {16 * 336}'); em.op(f's_mul_i32 s{sT1}, s{sNH}, 160'); em.op(f's_add_u32 s{sT0}, s{sT0}, s{sT1}')
    em.op(f'v_add3_u32 v{t1}, v{t1}, v{t2}, s{sT0}')
    em.op(f's_mov_b32 s{sT2}, 52429')
    pre = []
    for i in range(6):
        r = 176 + i
        pre += [f'v_add_u32 v{r}, {512 * i}, v0', f'v_mul_lo_u32 v{t2}, v{r}, s{sT2}', f'v_lshrrev_b32 v{t2}, 20, v{t2}', f'v_add_lshl_u32 v{r}, v{r}, v{t2}, 4']
    for o in pre: em.op(o)
    for t in range(5):
        for j in range(nq):
            a = ACC2 + 4*(t*nq+j)
            em.op(f'v_cvt_pk_bf16_f32 v{a}, v{a}, v{a+1}')
            em.op(f'v_cvt_pk_bf16_f32 v{a+1}, v{a+2}, v{a+3}')
            em.op(f'ds_write_b64 v{t1}, {vr(a,2)} offset:{j * 16 * 336 + t * 32}')
    em.wait_lgkm0(); em.barrier()
    for i in range(6): em.op(f'ds_read_b128 {vr(76 + 4*i)}, v{176 + i}')
    for i in range(6):
        em.op(f's_mov_b32 s{sT0}, {i * 8192}')
        em.op(f'buffer_store_dwordx4 {vr(76 + 4*i)}, v{t0}, {sr(SP,4)}, s{sT0} offen{sc}')
    em.op(f's_mul_i32 s{sT0}, s{sX}, 5760')
    em.op(f'v_add_u32 v{t1}, s{sT0}, v{t0}')
    em.op(f'v_mul_lo_u32 v{t2}, v0, s{sT2}'); em.op(f'v_lshrrev_b32 v{t2}, 20, v{t2}')
    em.op(f'v_mul_u32_u24 v{t2}, 960, v{t2}')
    em.op(f's_mul_i32 s{sT0}, s{sB}, 144'); em.op(f's_mul_i32 s{sT1}, s{sX}, 18'); em.op(f's_add_u32 s{sT0}, s{sT0}, s{sT1}')
    em.op(f's_mul_i32 s{sT0}, s{sT0}, 1280'); em.op(f's_mul_i32 s{sT1}, s{sJ}, 320'); em.op(f's_add_u32 s{sT0}, s{sT0}, s{sT1}')
    em.op(f'v_add3_u32 v{t2}, v{t2}, v{t0}, s{sT0}')
    em.op(f'v_mov_b32 v{t3}, 0x7ffffff0')
    em.op(f'v_cmp_gt_u32 vcc, 360, v0')
    em.op(f'v_cndmask_b32 v{t2}, v{t3}, v{t2}, vcc')
    em.wait_vm0(); em.barrier()
    em.st.stamp('TW')
    if tv == 2:
        flag_store(em, sF2, sX, 'L_f2', 7)
        em.op(f's_cmp_ge_u32 s{sW}, 6')
        em.op(f's_cbranch_scc1 L_fin2')
    poll(em, sF2, 7, f'L_p2_{tv}')
    em.st.stamp('TF')
    for x in range(8):
        em.op(f's_mov_b32 s{sT0}, {x * PART2}')
        em.op(f'buffer_load_dwordx4 {vr(76 + 4*x)}, v{t1}, {sr(SPR,4)}, s{sT0} offen{sc}')
    if tv == 0:
        em.op(f's_or_b32 s{sT0}, s{sH}, s{sW}')
        em.op(f's_cmp_eq_u32 s{sT0}, 0')
        em.op('s_cbranch_scc0 L_nw')
        em.begin_opt()
        em.op(f's_lshl_b32 s{sT0}, s{sB}, 8'); em.op(f's_add_u32 s{sT0}, s{sT0}, {FLAG_OFF}')
        em.op(f'v_mov_b32 v60, s{sT0}'); em.op(f'v_mov_b32 v61, s{sTAG}')
        em.op('s_mov_b64 exec, 1')
        em.op('global_store_dword v60, v61, s[12:13]')
        em.op('s_mov_b64 exec, -1')
        em.end_opt()
        em.label('L_nw')
    A = 108
    for x in range(8):
        for d in range(4):
            r = 76 + 4*x + d
            if x == 0:
                em.op(f'v_lshlrev_b32 v{A+2*d}, 16, v{r}'); em.op(f'v_and_b32 v{A+2*d+1}, 0xffff0000, v{r}')
            else:
                em.op(f'v_lshlrev_b32 v{A+8}, 16, v{r}'); em.op(f'v_and_b32 v{A+9}, 0xffff0000, v{r}')
                em.op(f'v_pk_add_f32 {vr(A+2*d,2)}, {vr(A+2*d,2)}, {vr(A+8,2)}')
    for d in range(4): em.op(f'v_cvt_pk_bf16_f32 v{A+d}, v{A+2*d}, v{A+2*d+1}')
    em.op(f'buffer_store_dwordx4 {vr(A)}, v{t2}, {sr(SOUT,4)}, 0 offen')
    em.st.stamp('TL')
    if cfg.x_ren:
        em.op('v_mov_b32 v116, s84')
        em.op('global_load_dword v117, v116, s[86:87] sc1')
        em.op('v_readfirstlane_b32 s85, v117')
        em.op('s_bcnt1_i32_b32 s85, s85')
        em.op('s_cmp_gt_u32 s85, 1')
        em.op(f's_cbranch_scc0 L_ren{tv}')
        em.op('s_mov_b32 s85, 600')
        em.label(f'L_rend{tv}')
        em.op('s_sleep 1'); em.op('s_sub_u32 s85, s85, 1'); em.op('s_cmp_lg_u32 s85, 0'); em.op(f's_cbranch_scc1 L_rend{tv}')
        em.label(f'L_ren{tv}')
    if tv == 2: em.label('L_fin2')
    if cfg.diag: em.wait_vm0()
    em.st.flush(12, 0, sW, 244)
    em.op('s_endpgm')

def kernel_header(name):
    return f'.globl {name}\n.p2align 8\n.type {name},@function\n{name}:\n'
def kernel_desc(name, vgpr, sgpr=102):
    return f'''.amdhsa_kernel {name}
  .amdhsa_next_free_vgpr {vgpr}
  .amdhsa_next_free_sgpr {sgpr}
  .amdhsa_accum_offset {(vgpr + 3) // 4 * 4}
  .amdhsa_group_segment_fixed_size 0
  .amdhsa_kernarg_size 64
  .amdhsa_user_sgpr_count 2
  .amdhsa_user_sgpr_kernarg_segment_ptr 1
  .amdhsa_system_sgpr_workgroup_id_x 1
.end_amdhsa_kernel
'''

def gen_k1():
    em = Em()
    k1_prologue(em)
    st0 = em.save()
    em.label('k1_body_start')
    for qh in range(2):
        sts = []
        for typ in ((1, 0) if cfg.n0 else (0,)):
            if qh or typ == 0 and cfg.n0: em.label(f'L_qp{qh}{typ}')
            em.restore(st0)
            em.typ = typ
            k1_qproj(em, qh, typ)
            k1_qk(em, qh)
            sts.append(em.save())
            if typ == 1: em.op(f's_branch L_sm{qh}')
        if len(sts) == 2:
            t = [[e[0] for e in s[2]] for s in sts]
            lo, hi = sorted(range(2), key=lambda i: len(t[i]))
            assert t[hi][len(t[hi]) - len(t[lo]):] == t[lo], t
            em.restore(sts[hi]); em.hist = []
            em.label(f'L_sm{qh}')
        k1_sm0(em, qh)
        k1_pv(em, qh)
    em.label('k1_body_end')
    em.label('L_k1_exit')
    em.op('s_endpgm')
    return em

def main():
    ref = open('cdna_kernels/' + NAME + '.s.ref').read().split('\n')
    head = [l for l in ref[:9]]
    k1 = gen_k1()
    KN = NAME + '_kernel'
    out = '\n'.join(head) + '\n'
    out += f'; @launch grid=(256,1,1) block=(512,1,1) lds={LDS1}\n'
    out += '.amdgcn_target "amdgcn-amd-amdhsa--gfx950"\n.text\n'
    out += kernel_header(KN) + k1.text()
    out += '.section .rodata,"a"\n.p2align 6\n' + kernel_desc(KN, 256)
    open(sys.argv[1], 'w').write(out)
    print('k1 instrs', k1.count, 'nops', k1.nops, file=sys.stderr)
main()
```

```python
import sys, struct, math
from em import Em, interleave, emit

NAME = 'standalone__gqa_block_cached__near_ridge'
def fbits(x): return struct.unpack('<I', struct.pack('<f', x))[0]

class Cfg:
    nt_kv = True
    nt_w = False
    nt_k2 = False
    two_types = True
    pre = True
    code_pre = True
    diag = False
    pk = True
    rfrac = 60
    prio = 0
    x_noexp = 0
    x_nopw = 0
    efrac = 95
    loopb = -1
    st = 0
    dbg = 0
    n0 = 1
    inpv0 = 0
    inpv1 = 0
    pfa = 5
    kq = 12
    kq0 = 7
    wont = 0
    vrf = 60
    x_ren = 0
    vrole = 1
    vfirst = 0
    vold = 0
    vh0 = 12
    wsoff = 0
    cearly = 1
    direct = 1
    chunk = 1
    onew = 1
    qlate = 0
    drole = 0
    in0 = 0
    in1 = 0
    epoll = 1
    pfx = 10
    opair = 1
    tsq = 1
    g2e = 0
    wo0 = 1
    pfnt = 0
    pfown = 10
    pfall = 1
    nt_k = 1
    nt_v = 1
    eager = 3
    eagerv = 0
    qwi = 1
    g2lo = 0
    g2hi = 30
    valo = 0
    vahi = 60
    pf1 = 10
    v0e = 0
    kqb = 0
    kqb0 = 7
    vb = 0
    vreg = 0
    nvy = 4
    sc_o = 1
    sc_ol = 1
    rt = 0
    qloop = 0
    x_qnodma = 0
    x_qnord = 0
    dlo = 10
    dhi = 95
    dsplit = 3
    x_delay = 0
    wopre = 1
    sc = 1
    x_nobar = 0
    x_nord = 0
    x_nodma = 0
cfg = Cfg()
cfg.pvst = (3,7); cfg.qst = (0,8,)
if 'pvall=1' in sys.argv: sys.argv.remove('pvall=1'); cfg.pvst = (0,1,2,3,4,5,6,7); cfg.qst = (); cfg.fewst = True
else: cfg.fewst = False
for a in sys.argv[2:]:
    k, v = a.split('='); setattr(cfg, k, type(getattr(cfg, k))(int(v)))
STSETS = {0: 'S0 BQ PV0 BO T2 TW', 1: 'ka pi si S0 B0 B8 BQ K0 K1 QKend BM exp0 PV0', 2: 'PV0 PB0 PB1 PB2 PB3 PB4 PB5 PB6', 9: 'BM exp0 PV0 PB3 PB6 PB7 BO T0', 3: 'BO T0 T1 T2 TW TF', 4: 'K0 K1 QKend BM exp0 PV0 PB3 PB7 BO T0', 8: '', 5: 'S0 LB0 LBend BQ', 6: 'S0 B0 B1 B2 B3 B5 B7 B8 B9 BQ', 7: 'BO T0 T1 T2 T3 T4 T6 T8 T10 TP'}
cfg.stlist = ['rt0', 'start'] + STSETS[cfg.st].split()[:6] + ['end', 'rt_end']
cfg.pvst = range(8); cfg.qst = range(10)
cfg.types = bool(cfg.n0)

def vr(b, n=4): return f'v[{b}:{b + n - 1}]' if n > 1 else f'v{b}'
def sr(b, n): return f's[{b}:{b + n - 1}]'
MF = 'v_mfma_f32_16x16x32_bf16'
def mfma(d, a, b, c=None):
    return f'{MF} {vr(d)}, {vr(a)}, {vr(b)}, ' + ('0' if c is None else vr(c))

FLAG_OFF = 28 << 20
PART2 = 47104
O_HEAD = 55296
WS_PART = 16 << 20
PART_TILE = 90 * 1024

def srd(em, d, base_lo, base_hi, off_sgpr, size):
    if off_sgpr is None:
        em.op(f's_mov_b32 s{d}, s{base_lo}'); em.op(f's_mov_b32 s{d+1}, s{base_hi}')
    else:
        em.op(f's_add_u32 s{d}, s{base_lo}, {off_sgpr}'); em.op(f's_addc_u32 s{d+1}, s{base_hi}, 0')
    em.op(f's_mov_b32 s{d+2}, {size}')
    em.op(f's_mov_b32 s{d+3}, 0x20000')

_lab = [0]
DIAG_OFF = 64 << 20
class Stamps:
    def __init__(self, em):
        self.em = em; self.n = 0; self.names = []
        if cfg.diag:
            for i in range(len(cfg.stlist)): em.op(f's_mov_b32 s{60 + 2*i}, 0')
    def stamp(self, name, real=False):
        if not cfg.diag or name not in cfg.stlist: return
        em = self.em; i = cfg.stlist.index(name)
        em.wait_lgkm0()
        em.op(('s_memrealtime' if (real or cfg.rt) else 's_memtime') + f' s[{60 + 2*i}:{61 + 2*i}]')
        em.op('s_waitcnt lgkmcnt(0)')
    def flush(self, ws_lo, kidx, wave_s, tv):
        if not cfg.diag: return
        em = self.em
        self.stamp('end'); self.stamp('rt_end', real=True)
        if cfg.dbg:
            _lab[0] += 1
            em.op('s_load_dwordx2 s[56:57], s[0:1], 48')
            em.op(f's_and_b32 s58, s2, 0xdf'); em.op(f's_or_b32 s58, s58, s{wave_s}'); em.op('s_cmp_eq_u32 s58, 0')
            em.op('s_waitcnt lgkmcnt(0)')
            em.op(f's_cbranch_scc0 L_dbg{_lab[0]}')
            em.op(f'v_mov_b32 v{tv}, s2')
            for k, i in enumerate([2, 3, 4, 13, 6, 9, 11, 12]):
                em.op(f's_sub_u32 s58, s{60 + 2*i}, s{60 if i == 13 else 62}')
                em.op(f'v_mov_b32 v{tv+1}, s58')
                em.op(f'global_store_dword v{tv}, v{tv+1}, s[56:57] offset:{4*k}')
            em.label(f'L_dbg{_lab[0]}')
            return
        em.op(f's_lshl_b32 s56, s2, 3'); em.op(f's_add_u32 s56, s56, s{wave_s}'); em.op('s_lshl_b32 s56, s56, 7')
        em.op(f's_add_u32 s56, s56, {DIAG_OFF + (kidx << 20)}')
        em.op(f's_add_u32 s56, s{ws_lo}, s56'); em.op(f's_addc_u32 s57, s{ws_lo+1}, 0')
        em.op(f'v_mov_b32 v{tv}, 0')
        for i in range(len(cfg.stlist)):
            em.op(f'v_mov_b32 v{tv+1}, s{60 + 2*i}')
            em.op(f'global_store_dword v{tv}, v{tv+1}, s[56:57] offset:{4*i}')
        print('stamps', kidx, cfg.stlist, file=sys.stderr)

SX, SWQ, SK, SV, SO = 16, 20, 24, 28, 32
sW, sW3072, sW1024, sTYPE, sOFF, sT0, sT1, sT2, sC, sB, sH, sJ, sLOC, sX = 36, 37, 38, 39, 40, 41, 42, 43, 44, 52, 46, 47, 48, 53
vLANE, vXO, vWO, vK0, vK1, vVO = 1, 2, 3, 4, 5, 6
vRA = [7, 8]
vRB = [9, 10, 11]
vRC = [12, 13, 14]
vT = 15
vOW = [8, 254, 255]
vVW, vVW2 = 7, 8
vPA, vPW, vMS = 240, 242, 243
vPW2 = 241
TMP = list(range(244, 256))
STG = 43008
PBASE, VBASE, MAXB, SUMB = 0, 55296, 153600, 155648
NV = 4
def vslot(s): return [3, 1, 2, 0][s % 4]
LDS1 = SUMB + 12 * 512
def kop(kt, ks): return 16 + 4 * (kt * 6 + ks)
def sreg(kt, qt):
    if kt < 2: return 116 + 4 * (qt * 2 + kt)
    i = qt * 2 + (kt - 2)
    return 16 + 4 * i if i < 12 else 188 + 4 * (i - 12)
ACC = 116
MC = 212
SUM = 221
SUMP = 222
QF = 224
OACC0 = [116 + 4*i for i in range(15)]
OACC1 = [120 + 8*i for i in range(9)] + [100, 80, 208]
PAF0 = [[176, 180, 184], [104, 108, 112]]
PAF1 = [[200, 192, 60], [104, 108, 112]]
PBF0 = [[64, 68, 72, 76, 80], [84, 88, 92, 96, 100]]
PBF1 = [[64, 68, 72, 76], [84, 88, 92, 96]]
INV0 = 212
NEXP1 = 4


sKB = 57
vKR = [250, 251]
vVO3 = 252
def k_dma_ops(em, half):
    nt = ' nt' if cfg.nt_kv and cfg.nt_k else ''
    ops = []
    for c in range(3):
        for k in range(2):
            for p in range(2):
                def f(c=c, k=k, p=p):
                    em.op(f's_add_u32 m0, s{sKB}, {(k * 3 + c) * 2048 + p * 1024 - c * 128}')
                    em.op(f's_mov_b32 s{sOFF}, {(half * 2 + k) * 6144}')
                    em.op(f'buffer_load_dwordx4 v{vK1 if p else vK0}, {sr(SK,4)}, s{sOFF} offen offset:{c*128}{nt} lds', tag=f'K{half}_{c * 2 + k}')
                ops.append(f)
    return ops
def k_rd_ops(half, u):
    c, k = divmod(u, 2)
    return [f'ds_read_b128 {vr(kop(half * 2 + k, 2 * c + e))}, v{vKR[e]} offset:{(k * 3 + c) * 2048}' for e in range(2)]
def k_fetch(em, half, nxt):
    for u in range(6):
        em.wait_vm_tag(f'K{half}_{u}')
        for o in k_rd_ops(half, u): em.op(o)
        if nxt and u:
            em.waitcnt(lgkm=2); em.lgkm = em.lgkm[-2:]
            for f in nxt[2 * u - 2: 2 * u]: f()
    if nxt:
        em.wait_lgkm0()
        for f in nxt[10:12]: f()
def va_ops(em):
    nt = ' nt' if cfg.nt_kv and cfg.nt_v else ''
    ops = []
    for rg in range(4):
        for c in range(3):
            def f(c=c, rg=rg):
                em.op(f's_add_u32 m0, s{sKB}, {rg * 3072 + c * 896}')
                em.op(f's_mov_b32 s{sOFF}, {rg * 3072}')
                em.op(f'buffer_load_dwordx4 v{vVO3}, {sr(SV,4)}, s{sOFF} offen offset:{c*128}{nt} lds', tag='VA')
            ops.append(f)
    return ops

def stage_dma_ops(em, s, qh):
    nt = ' nt' if cfg.nt_w else ''
    slot = (s % 3) * 18432
    ops = []
    for c in range(3):
        def f(c=c):
            em.op(f's_add_u32 m0, s{sW3072}, {VBASE + (s % 3) * 24576 + c * 896}')
            if c == 0: em.op(f's_mov_b32 s{sOFF2}, {s * 786432}')
            em.op(f'buffer_load_dwordx4 v{vWO}, {sr(SWQ,4)}, s{sOFF2} offen offset:{c*128}{nt} lds', tag=f'S{s}')
        ops.append(f)
    for j in range(2):
        def f(j=j):
            em.op(f's_add_u32 m0, s{sW1024}, {slot + j * 8192}')
            em.op(f's_mov_b32 s{sOFF}, {s * 128 + j * 81920}')
            em.op(f'buffer_load_dwordx4 v{vXO}, {sr(SX,4)}, s{sOFF} offen{nt} lds', tag=f'S{s}')
        ops.append(f)
    if qh == 1:
        def f():
            _lab[0] += 1
            lab = f'L_x{_lab[0]}'
            em.op(f's_cmp_lt_u32 s{sW}, 6')
            em.op(f's_cbranch_scc0 {lab}')
            em.begin_opt()
            em.op(f's_add_u32 m0, s{sW1024}, {slot + 12288}')
            em.op(f's_mov_b32 s{sOFF}, {s * 128 + 122880}')
            em.op(f'buffer_load_dwordx4 v{vXO}, {sr(SX,4)}, s{sOFF} offen{nt} lds', tag=f'S{s}')
            em.end_opt()
            em.label(lab)
        ops.insert(0, f)
    return ops

def v_dma_ops(em, s):
    nt = ' nt' if cfg.nt_kv and cfg.nt_v else ''
    ops = []
    for c in range(3):
        def f(c=c):
            em.op(f's_add_u32 m0, s{sW3072}, {VBASE + vslot(s) * 24576 + c * 896}')
            em.op(f's_mov_b32 s{sOFF}, {(128 * (s & 3) + 32 * (s >> 2)) * 384}')
            em.op(f'buffer_load_dwordx4 v{vVO}, {sr(SV,4)}, s{sOFF} offen offset:{c*128}{nt} lds', tag=f'V{s}')
        ops.append(f)
    return ops

sDG = 49
sPFS, sPFB = 45, 50
sOFF2 = 3
vPF = 241
def pf_ops():
    if not cfg.pre: return []
    nt = ' nt' if cfg.nt_w else ''
    return [f'global_load_dwordx4 {vr(112)}, v{vPF}, s[{sPFB}:{sPFB+1}]{nt}', f'v_add_u32 v{vPF}, s{sPFS}, v{vPF}']
sTAG, sSTR, sF1, sF2, sHB, sM0T, sQ0, sNH, sCNT = 88, 89, 90, 92, 94, 98, 99, 100, 101
VST = 64
def v_reg_ops(em):
    nt = ' nt' if cfg.nt_kv and cfg.nt_v else ''
    ops = []
    for s in range(4, 8):
        for c in range(3):
            def f(s=s, c=c):
                em.op(f's_mov_b32 s{sOFF}, {(128 * (s & 3) + 32 * (s >> 2)) * 384}')
                em.op(f'buffer_load_dwordx4 {vr(VST + 4 * ((s - 4) * 3 + c))}, v{vVO}, {sr(SV,4)}, s{sOFF} offen offset:{c*128}{nt}', tag=f'V{s}')
            ops.append(f)
    return ops
def v_put_ops(s):
    slot = vslot(s)
    return [f'ds_write_b128 v{vVW if slot < 2 else vVW2}, {vr(VST + 4 * ((s - 4) * 3 + c))} offset:{(slot % 2) * 24576 + c * 1024}' for c in range(3)]

vPF2 = 254
VTMP = [248, 249, 253]
def pf2_ops():
    nt = ' nt' if cfg.nt_w else ''
    return [f'global_load_dwordx4 {vr(112)}, v{vPF2}, s[{sPFB}:{sPFB+1}]{nt}', f'v_add_u32 v{vPF2}, s{sPFS}, v{vPF2}']

def k1_prologue(em):
    em.op('s_cmp_ge_u32 s2, 256')
    em.op('s_cbranch_scc1 L_k1_exit')
    em.st = Stamps(em); em.st.stamp('rt0', real=True); em.st.stamp('start')
    em.op('s_load_dwordx8 s[4:11], s[0:1], 0')
    em.op('s_load_dwordx2 s[12:13], s[0:1], 56')
    em.op('s_load_dwordx2 s[14:15], s[0:1], 32')
    em.op('s_load_dwordx2 s[54:55], s[0:1], 40')
    em.op(f'v_and_b32 v{vLANE}, 63, v0')
    em.op(f'v_lshrrev_b32 v{vT}, 6, v0')
    em.op(f's_and_b32 s{sX}, s2, 7')
    em.op(f's_lshr_b32 s{sLOC}, s2, 3')
    em.op(f'v_readfirstlane_b32 s{sW}, v{vT}')
    t0, t1, t2, t3, t4, t5 = TMP[:6]
    L = f'v{vLANE}'
    em.op(f's_and_b32 s{sJ}, s{sLOC}, 3')
    em.op(f's_lshr_b32 s{sB}, s{sLOC}, 2')
    em.op(f's_lshl_b32 s{sH}, s{sX}, 2')
    em.op(f's_add_u32 s{sH}, s{sH}, s{sJ}')
    em.op(f's_and_b32 s{sTYPE}, s{sB}, 1')
    em.op(f's_lshl_b32 s{sT0}, s{sLOC}, 1'); em.op(f's_mul_i32 s{sT0}, s{sT0}, 12288'); em.op(f's_mul_i32 s{sT1}, s{sX}, 1536'); em.op(f's_add_u32 s{sT0}, s{sT0}, s{sT1}')
    em.op(f's_lshl_b32 s{sT1}, s{sW}, 9'); em.op(f's_add_u32 s{sT0}, s{sT0}, s{sT1}')
    em.op(f'v_lshrrev_b32 v{t3}, 5, {L}'); em.op(f'v_mul_u32_u24 v{t3}, 12288, v{t3}')
    em.op(f'v_and_b32 v{t4}, 31, {L}'); em.op(f'v_lshlrev_b32 v{t4}, 4, v{t4}')
    em.op(f'v_add3_u32 v{t5}, v{t3}, v{t4}, s{sT0}')
    em.op(f'v_lshrrev_b32 v{t0}, 3, {L}')
    em.op(f'v_and_b32 v{t1}, 7, {L}')
    em.op(f'v_lshrrev_b32 v{t2}, 4, {L}')
    em.op(f's_mul_i32 s{sT0}, s{sLOC}, 36'); em.op(f's_lshl_b32 s{sT2}, s{sW}, 3'); em.op(f's_add_u32 s{sT0}, s{sT0}, s{sT2}'); em.op(f's_sub_u32 s{sT0}, s{sT0}, 24')
    em.op(f'v_add_u32 v{t3}, s{sT0}, v{t0}')
    em.op(f's_cmp_lt_u32 s{sW}, 3')
    em.op(f's_cselect_b64 vcc, -1, 0')
    em.op(f's_movk_i32 s{sPFS}, 128')
    em.op(f's_cselect_b32 s{sPFS}, 786432, s{sPFS}')
    for dst, dr, dw in ((vPF, 0, 0), (vPF2, 144, 98304) if not cfg.pfall else (vPF2, -144 & 0xffffffff, -98304 & 0xffffffff)):
        if dst == vPF2 and cfg.pf1 >= 10 and not cfg.pfall: continue
        em.op(f'v_add_u32 v{t4}, {dr}, v{t3}'); em.op(f'v_min_u32 v{t4}, 1151, v{t4}')
        em.op(f'v_mul_u32_u24 v{t4}, 1280, v{t4}')
        em.op(f'v_lshl_add_u32 v{t4}, v{t1}, 4, v{t4}')
        em.op(f'v_add_u32 v{dst}, {dw}, v{t5}')
        em.op(f'v_cndmask_b32 v{dst}, v{t4}, v{dst}, vcc')
    if cfg.pf1 < 10:
        em.op(f's_mul_i32 s{sT0}, s{sPFS}, {cfg.pf1}'); em.op(f'v_add_u32 v{vPF2}, s{sT0}, v{vPF2}')
    em.op(f's_and_b32 s{sDG}, s{sW}, 3')
    em.op(f's_mul_i32 s{sW3072}, s{sW}, 3072')
    em.op(f's_lshl_b32 s{sW1024}, s{sW}, 10')
    em.op(f's_and_b32 s{sT0}, s{sW}, 1')
    em.op(f's_lshl_b32 s{sT1}, s{sT0}, 2')
    em.op(f'v_add_u32 v{t3}, s{sT1}, v{t2}')
    em.op(f'v_xor_b32 v{t3}, v{t3}, v{t1}')
    em.op(f'v_add_u32 v{t4}, s{sT2}, v{t0}')
    em.op(f'v_mul_u32_u24 v{vXO}, 1280, v{t4}')
    em.op(f'v_lshl_add_u32 v{vXO}, v{t3}, 4, v{vXO}')
    em.op(f'v_and_b32 v{t3}, 1, v{t2}')
    em.op(f'v_lshl_add_u32 v{t3}, v{t3}, 1, s{sT1}')
    em.op(f'v_xor_b32 v{t3}, v{t3}, v{t1}')
    em.op(f'v_mul_u32_u24 v{vWO}, 12288, v{t4}')
    em.op(f'v_lshl_add_u32 v{vWO}, v{t3}, 4, v{vWO}')
    em.op(f's_lshl_b32 s{sT2}, s{sW}, 6')
    em.op(f'v_add_u32 v{t4}, s{sT2}, v{t0}')
    em.op(f'v_mul_u32_u24 v{t4}, 384, v{t4}')
    em.op(f'v_xor_b32 v{t3}, v{t2}, v{t1}')
    em.op(f'v_lshl_add_u32 v{vK0}, v{t3}, 4, v{t4}')
    em.op(f'v_xor_b32 v{vK1}, 64, v{vK0}')
    em.op(f'v_add_u32 v{vK1}, {8 * 384}, v{vK1}')
    em.op(f'v_lshlrev_b32 v{t3}, 1, v{t2}')
    em.op(f'v_xor_b32 v{t3}, v{t3}, v{t1}')
    em.op(f'v_lshl_add_u32 v{vVO3}, v{t3}, 4, v{t4}')
    em.op(f's_and_b32 s{sT1}, s{sW}, 6'); em.op(f's_lshr_b32 s{sKB}, 0x27, s{sT1}'); em.op(f's_and_b32 s{sKB}, s{sKB}, 3')
    em.op(f's_lshl_b32 s{sKB}, s{sKB}, 1'); em.op(f's_add_u32 s{sKB}, s{sKB}, s{sT0}'); em.op(f's_mul_i32 s{sKB}, s{sKB}, 12288'); em.op(f's_add_u32 s{sKB}, s{sKB}, {VBASE}')
    em.op(f'v_bfe_u32 v{t3}, {L}, 3, 1'); em.op(f'v_lshlrev_b32 v{t3}, 10, v{t3}')
    em.op(f'v_lshl_add_u32 v{t3}, v{t1}, 7, v{t3}')
    em.op(f'v_bfe_u32 v{t4}, {L}, 1, 3')
    em.op(f'v_xor_b32 v{t4}, v{t4}, v{t2}'); em.op(f'v_lshlrev_b32 v{vT}, 4, v{t4}')
    em.op(f'v_add_u32 v{vRA[0]}, v{t3}, v{vT}')
    em.op(f'v_add_u32 v{vKR[0]}, s{sKB}, v{vRA[0]}')
    em.op(f'v_xor_b32 v{vKR[1]}, 64, v{vKR[0]}')
    em.op(f's_lshr_b32 s{sT1}, s{sW}, 2'); em.op(f's_lshl_b32 s{sT1}, s{sT1}, 6')
    em.op(f's_lshl_b32 s{sT0}, s{sDG}, 3'); em.op(f's_add_u32 s{sT0}, s{sT0}, s{sT1}')
    em.op(f'v_add_u32 v{t3}, s{sT0}, v{t0}')
    em.op(f'v_mul_u32_u24 v{vVO}, 384, v{t3}')
    em.op(f'v_lshlrev_b32 v{t3}, 1, v{t2}')
    em.op(f'v_xor_b32 v{t3}, v{t3}, v{t1}')
    em.op(f'v_lshl_add_u32 v{vVO}, v{t3}, 4, v{vVO}')
    em.op(f's_mul_i32 s{SX+3}, s{sB}, 184320')
    em.op(f's_mul_i32 s{SWQ+3}, s{sH}, 384')
    em.op(f's_lshl_b32 s{sT1}, s{sB}, 5'); em.op(f's_add_u32 s{sT1}, s{sT1}, s{sH}')
    em.op(f's_mul_i32 s{sT2}, s{sT1}, 196608')
    em.op(f's_mul_i32 s{SO+3}, s{sT1}, {O_HEAD}')
    em.op(f's_lshl_b32 s{sT0}, s{sB}, 8'); em.op(f's_add_u32 s{sT0}, s{sT0}, {FLAG_OFF}')
    em.op(f's_mov_b32 s{SX+2}, 184320'); em.op(f's_sub_u32 s{SWQ+2}, 7864320, s{SWQ+3}')
    em.op(f's_cmp_lt_u32 s{sW}, 3')
    em.op('s_waitcnt lgkmcnt(0)')
    em.st.stamp('ka')
    if cfg.diag: em.op(f's_cmp_lt_u32 s{sW}, 3')
    em.op(f's_cselect_b64 s[{sPFB}:{sPFB+1}], s[10:11], s[4:5]')
    for i in range(0 if cfg.pfall else 3):
        for o in pf_ops(): em.op(o)
    if cfg.cearly:
        em.op('s_getpc_b64 s[58:59]')
        em.label('L_pce')
        em.op('s_add_u32 s58, s58, k1_body_start-L_pce')
        em.op('s_addc_u32 s59, s59, 0')
        em.op(f's_and_b32 s{sT1}, s{sLOC}, 15')
        em.op(f's_lshl_b32 s{sT1}, s{sT1}, 13')
        em.op(f'v_lshlrev_b32 v{TMP[11]}, 4, v0')
        em.op(f'v_add_u32 v{TMP[11]}, s{sT1}, v{TMP[11]}')
        em.op(f'v_min_u32 v{TMP[11]}, k1_body_end-k1_body_start-16, v{TMP[11]}')
        em.op(f'global_load_dwordx4 {vr(112)}, v{TMP[11]}, s[58:59]')
    if cfg.wsoff:
        em.op(f's_add_u32 s12, s12, {cfg.wsoff << 20}'); em.op('s_addc_u32 s13, s13, 0')
    em.op(f's_load_dword s{sTAG}, s[12:13], s{sT0}')
    em.op(f's_add_u32 s{SWQ}, s10, s{SWQ+3}'); em.op(f's_addc_u32 s{SWQ+1}, s11, 0'); em.op(f's_mov_b32 s{SWQ+3}, 0x20000')
    em.op(f's_add_u32 s{SX}, s4, s{SX+3}'); em.op(f's_addc_u32 s{SX+1}, s5, 0'); em.op(f's_mov_b32 s{SX+3}, 0x20000')
    srd(em, SK, 6, 7, f's{sT2}', 196608); srd(em, SV, 8, 9, f's{sT2}', 196608)
    if cfg.n0 or cfg.pfall:
        em.op(f's_cmp_eq_u32 s{sTYPE}, 1')
        em.op('s_cbranch_scc0 L_nok1')
        em.begin_opt()
        em.op(f's_cmp_lt_u32 s{sW}, 3')
        em.op('s_cbranch_scc0 L_pfx')
        for i in range(10):
            for o in pf2_ops() + pf_ops(): em.op(o)
        em.op('s_branch L_nok1')
        em.label('L_pfx')
        for i in range(10):
            for o in pf2_ops(): em.op(o)
        for i in range(cfg.pfx):
            for o in pf_ops(): em.op(o)
        em.end_opt()
        em.label('L_nok1')
    if cfg.n0:
        em.op(f's_lshr_b32 s{sT0}, s{sW}, 2'); em.op(f's_lshl_b32 s{sT0}, s{sT0}, 1'); em.op(f's_or_b32 s{sT0}, s{sT0}, s{sTYPE}')
        for v in (0, 2, 3):
            em.op(f's_cmp_eq_u32 s{sT0}, {v}')
            em.op(f's_cbranch_scc1 L_qp{v >> 1}{v & 1}')
    else:
        em.op(f's_cmp_lt_u32 s{sW}, 4')
        em.op('s_cbranch_scc0 L_qp10')

def tile_m(em, t):
    tab = [[0, 4, 6, 10], [1, 5, 7, 11], [2, 3, 8, 9]][t]
    em.op(f's_lshl_b32 s{sT0}, s{sDG}, 2')
    em.op(f's_lshr_b32 s{sT0}, {sum(v << (4 * i) for i, v in enumerate(tab))}, s{sT0}')
    em.op(f's_and_b32 s{sT0}, s{sT0}, 15')

def tr_addr(em, dst, t, base, fmode):
    t0, t1, t2, t3 = TMP[:4]
    L = f'v{vLANE}'
    if fmode == 'v' and cfg.opair: tile_m(em, t)
    else:
        em.op(f's_mul_i32 s{sT0}, s{sDG}, 3'); em.op(f's_add_u32 s{sT0}, s{sT0}, {t}')
    em.op(f's_lshr_b32 s{sT1}, s{sT0}, 2'); em.op(f's_lshl_b32 s{sT1}, s{sT1}, 10')
    em.op(f's_add_u32 s{sT1}, s{sT1}, {base}')
    em.op(f's_and_b32 s{sT0}, s{sT0}, 3')
    em.op(f'v_lshrrev_b32 v{t0}, 4, {L}')
    em.op(f'v_bfe_u32 v{t1}, {L}, 2, 2')
    em.op(f'v_and_b32 v{t2}, 1, v{t0}')
    em.op(f'v_lshlrev_b32 v{t2}, 1, v{t2}')
    em.op(f'v_lshrrev_b32 v{t3}, 1, v{t1}')
    em.op(f'v_add_u32 v{t3}, v{t3}, v{t2}')
    em.op(f'v_xor_b32 v{t3}, s{sT0}, v{t3}')
    em.op(f'v_lshlrev_b32 v{t3}, 5, v{t3}')
    em.op(f'v_lshlrev_b32 v{dst}, 7, v{t1}')
    em.op(f'v_add_u32 v{dst}, v{dst}, v{t3}')
    if fmode == 'w':
        em.op(f'v_mul_u32_u24 v{t3}, 3072, v{t0}')
    else:
        em.op(f'v_lshlrev_b32 v{t2}, 8, v{t2}')
        em.op(f'v_add_u32 v{dst}, v{dst}, v{t2}')
        em.op(f'v_lshrrev_b32 v{t3}, 1, v{t0}')
        em.op(f'v_mul_u32_u24 v{t3}, 3072, v{t3}')
    em.op(f'v_add_u32 v{dst}, v{dst}, v{t3}')
    em.op(f'v_and_b32 v{t3}, 3, {L}')
    em.op(f'v_lshlrev_b32 v{t3}, 3, v{t3}')
    em.op(f'v_add_u32 v{dst}, v{dst}, v{t3}')
    em.op(f'v_add_u32 v{dst}, s{sT1}, v{dst}')

class Cap:
    def __init__(self): self.ops = []
    def op(self, t, tag=None): self.ops.append(t)

def k1_qproj(em, qh, typ):
    nq = 5 if qh == 0 else 4
    q0 = 0 if qh == 0 else 5
    L = f'v{vLANE}'
    t0, t1, t2, t3, t4, t5 = TMP[:6]
    rf = cfg.rfrac / 100
    if cfg.prio == qh + 1: em.op('s_setprio 1')
    npre = cfg.n0 if typ == 1 else 0
    if npre:
        for f in k_dma_ops(em, 0): f()
        em.wait_lgkm0(force=True)
        k_fetch(em, 0, k_dma_ops(em, 1) if npre == 2 else None)
        if npre == 2: k_fetch(em, 1, None)
        em.wait_lgkm0()
    em.barrier()
    for f in stage_dma_ops(em, 0, qh): f()
    em.barrier()
    for f in stage_dma_ops(em, 1, qh): f()
    em.op(f's_add_u32 s{SO}, s12, s{SO+3}'); em.op(f's_addc_u32 s{SO+1}, s13, 0'); em.op(f's_mov_b32 s{SO+2}, {O_HEAD}'); em.op(f's_mov_b32 s{SO+3}, 0x20000')
    em.op(f's_mov_b32 s{sC}, {fbits(192 ** -0.5 * math.log2(math.e))}')
    if cfg.code_pre and not cfg.cearly:
        em.op('s_getpc_b64 s[58:59]')
        em.label(f'L_pc{qh}{typ}')
        em.op(f's_add_u32 s58, s58, k1_body_start-L_pc{qh}{typ}')
        em.op('s_addc_u32 s59, s59, -1')
        em.op(f's_and_b32 s{sT1}, s{sLOC}, 15')
        em.op(f's_lshl_b32 s{sT1}, s{sT1}, 13')
        em.op(f'v_lshlrev_b32 v{TMP[11]}, 4, v0')
        em.op(f'v_add_u32 v{TMP[11]}, s{sT1}, v{TMP[11]}')
        em.op(f'v_min_u32 v{TMP[11]}, k1_body_end-k1_body_start-16, v{TMP[11]}')
    em.st.stamp('si')
    em.op(f'v_lshlrev_b32 v{t3}, 2, v0')
    em.op(f'v_add_u32 v{t3}, {MAXB}, v{t3}')
    em.op(f'v_mov_b32 v{t4}, 0xff800000')
    em.op(f'ds_write_b32 v{t3}, v{t4}')
    em.op(f'v_and_b32 v{vMS}, 15, {L}')
    em.op(f'v_lshlrev_b32 v{vMS}, 2, v{vMS}')
    em.op(f'v_add_u32 v{vMS}, {MAXB}, v{vMS}')
    em.op(f'v_add_u32 v{vRA[0]}, {q0 * 2048}, v{vRA[0]}')
    em.op(f'v_xor_b32 v{vRA[1]}, 64, v{vRA[0]}')
    for t in range(3): tr_addr(em, vRB[t], t, VBASE, 'w')
    for t in range(3):
        em.op(f's_mul_i32 s{sT0}, s{sDG}, 3'); em.op(f's_add_u32 s{sT0}, s{sT0}, {t}'); em.op(f's_lshl_b32 s{sT0}, s{sT0}, 1')
        em.op(f'v_lshrrev_b32 v{t0}, 5, {L}')
        em.op(f'v_add_u32 v{t0}, s{sT0}, v{t0}')
        em.op(f'v_lshrrev_b32 v{t1}, 3, v{t0}'); em.op(f'v_lshlrev_b32 v{t1}, 7, v{t1}')
        em.op(f'v_and_b32 v{t0}, 7, v{t0}')
        em.op(f'v_bfe_u32 v{t2}, {L}, 1, 3')
        em.op(f'v_xor_b32 v{t0}, v{t0}, v{t2}'); em.op(f'v_lshlrev_b32 v{t0}, 4, v{t0}')
        em.op(f'v_add_u32 v{t0}, v{t0}, v{t1}')
        em.op(f'v_and_b32 v{t1}, 15, {L}'); em.op(f'v_mul_u32_u24 v{t1}, 384, v{t1}')
        em.op(f'v_add_u32 v{t0}, v{t0}, v{t1}')
        em.op(f'v_bfe_u32 v{t1}, {L}, 4, 1'); em.op(f'v_lshlrev_b32 v{t1}, 3, v{t1}')
        em.op(f'v_add_u32 v{vRC[t]}, v{t0}, v{t1}')
    em.op(f'v_lshlrev_b32 v{vPA}, 4, {L}')
    em.op(f's_lshl_b32 s{sT0}, s{sW}, 2'); em.op(f's_lshr_b32 s{sT1}, 0x10543210, s{sT0}'); em.op(f's_and_b32 s{sT1}, s{sT1}, 15'); em.op(f's_mul_i32 s{sT1}, s{sT1}, 9216')
    em.op(f'v_add_u32 v{vPW}, s{sT1}, v{vPA}')
    em.op(f'v_add_u32 v{vPA}, {q0 * 1024}, v{vPA}')
    AF = [176, 188]; BF = [200, 220]
    def q_reads(s, step, st):
        ops = []
        for t in range(3):
            ops.append(f'ds_read_b64_tr_b16 {vr(AF[st] + 4*t, 2)}, v{vRB[t]} offset:{(s % 3) * 24576 + step * 12288}')
            ops.append(f'ds_read_b64_tr_b16 {vr(AF[st] + 4*t + 2, 2)}, v{vRB[t]} offset:{(s % 3) * 24576 + step * 12288 + 512}')
        xs = [f'ds_read_b128 {vr(BF[st] + 4*j)}, v{vRA[step]} offset:{(s % 3) * 18432 + j * 2048}' for j in range(nq)]
        return ops[0:2] + xs[0:1] + ops[2:6] + xs[1:]
    def mf(st, first):
        return [mfma(ACC + 4*(j*3+t), AF[st] + 4*t, BF[st] + 4*j, None if first else ACC + 4*(j*3+t)) for j in range(nq) for t in range(3)]
    em.wait_vm_tag('S0', lgkm0=True); em.barrier()
    em.st.stamp('S0')
    em.op(f's_add_u32 s{sTAG}, s{sTAG}, 1')
    for o in q_reads(0, 0, 0): em.op(o)
    em.npre = npre
    nxt = [k_dma_ops(em, 0), k_dma_ops(em, 1), va_ops(em)][npre]
    plan = {15: nxt[0:4], 16: nxt[4:7], 17: nxt[7:10], 18: nxt[10:12]} if qh == 0 else {19: nxt[0:6]}
    late = [] if qh == 0 else nxt[6:12]
    post = []
    if qh == 1 and cfg.qlate: plan = {}; late = []; post = nxt
    cap = Cap()
    for t in range(3): tr_addr(cap, VTMP[t], t, VBASE, 'v')
    vaddr_ops = cap.ops
    inloop_pf = not (typ == 1 and cfg.n0) and not cfg.pfall
    carry = stage_dma_ops(em, 2, qh) + (sum([pf_ops() for i in range(cfg.pfa - 3)], []) if inloop_pf else [])
    if cfg.code_pre and not cfg.cearly: carry.append(f'global_load_dwordx4 {vr(244)}, v{TMP[11]}, s[58:59]')
    for s in range(10):
        extra = []
        extra = plan.get(2 * s, [])
        if cfg.onew and s > 0: em.wait_lgkm0()
        interleave(em, mf(0, s == 0), ([] if cfg.x_qnord and 3 < s <= 6 else q_reads(s, 1, 1), 0, rf), (extra, 0.1, 1), (carry, 0.05, cfg.dhi / 100))
        if s < 9: em.wait_vm_tag(f'S{s+1}', lgkm0=True)
        else: em.wait_lgkm0()
        em.barrier()
        if s in cfg.qst: em.st.stamp(f'B{s}')
        if cfg.qloop and s == 6:
            em.op('s_sub_u32 s87, s87, 1'); em.op('s_cmp_lg_u32 s87, 0'); em.op(f's_cbranch_scc1 L_ql{qh}{typ}')
            em.st.stamp('LBend')
        if cfg.qloop and s == 3:
            em.st.stamp('LB0')
            em.op('s_mov_b32 s87, 16'); em.label(f'L_ql{qh}{typ}')
        rd = []; dm = []; extra = []
        if s < 9:
            if not (cfg.x_qnord and 3 <= s < 6): rd += q_reads(s + 1, 0, 0)
        carry = []
        if s + 3 <= 9:
            dm = stage_dma_ops(em, s + 3, qh); ds_ = cfg.dsplit if not cfg.drole else (6 if qh == cfg.drole - 1 else 0)
            dm, carry = dm[:ds_], dm[ds_:]
            if cfg.x_qnodma and 3 <= s < 6: dm = []; carry = []
        if s == 7: extra = vaddr_ops
        first = (pf_ops() + (pf2_ops() if s + cfg.pfa >= cfg.pf1 and cfg.n0 else []) if inloop_pf and s + cfg.pfa <= 9 and not (cfg.qloop and s >= 3) else []) + plan.get(2 * s + 1, [])
        qw = []
        if s == 9:
            for j in range(nq):
                for t in range(3):
                    a = ACC + 4*(j*3+t)
                    qw.append([f'v_cvt_pk_bf16_f32 v{a}, v{a}, v{a+1}', f'v_cvt_pk_bf16_f32 v{a+1}, v{a+2}, v{a+3}', f'ds_write_b64 v{vRC[t]}, {vr(a,2)} offset:{(q0 + j) * 6144}'])
        n = 3 * nq; lag = 3 if cfg.qwi else n
        ins = [(qw[k], (k + lag + 0.5) / n, (k + lag + 0.5) / n) for k in range(n - lag)] if qw else []
        interleave(em, mf(1, False), (dm, cfg.dlo / 100, cfg.dhi / 100), (rd, 0, rf), (extra, 0, 1), (first, 0, 0.04 if dm else 0.9), *ins)
    for g in qw[max(0, n - lag):]:
        for o in g: em.op(o)
    for f in late: f()
    em.op(f'v_and_b32 v{t1}, 15, {L}'); em.op(f'v_mul_u32_u24 v{t1}, 384, v{t1}')
    em.op(f'v_add_u32 v{vRA[0]}, v{t1}, v{vT}')
    em.op(f'v_xor_b32 v{t0}, 64, v{vT}')
    em.op(f'v_add_u32 v{vRA[1]}, v{t1}, v{t0}')
    for t in range(3): em.op(f'v_mov_b32 v{vRB[t]}, v{VTMP[t]}')
    em.wait_lgkm0(); em.barrier()
    for f in post: f()
    for t in range(3): em.op(f'v_add_u32 v{vRC[t]}, 49152, v{vRB[t]}')
    em.op(f's_lshl_b32 s{sT0}, s{sW}, 2'); em.op(f's_lshr_b32 s{sT1}, 0x32105432, s{sT0}'); em.op(f's_and_b32 s{sT1}, s{sT1}, 15'); em.op(f's_mul_i32 s{sT1}, s{sT1}, 9216')
    em.op(f'v_lshlrev_b32 v{vPW2}, 4, {L}')
    em.op(f'v_add_u32 v{vPW2}, s{sT1}, v{vPW2}')
    em.st.stamp('BQ')

def maxops(half):
    ops = []
    for qt in range(9):
        a, b = sreg(half*2, qt), sreg(half*2+1, qt); m = MC + qt
        if half == 0:
            ops += [f'v_max3_f32 v{m}, v{a}, v{a+1}, v{a+2}', f'v_max3_f32 v{m}, v{m}, v{a+3}, v{b}',
                    f'v_max3_f32 v{m}, v{m}, v{b+1}, v{b+2}', f'v_max_f32 v{m}, v{m}, v{b+3}']
        else:
            ops += [f'v_max3_f32 v{m}, v{m}, v{a}, v{a+1}', f'v_max3_f32 v{m}, v{m}, v{a+2}, v{a+3}',
                    f'v_max3_f32 v{m}, v{m}, v{b}, v{b+1}', f'v_max3_f32 v{m}, v{m}, v{b+2}, v{b+3}']
    return ops

def k1_qk(em, qh):
    def qrd(n):
        qt, ks = divmod(n, 6)
        return f'ds_read_b128 {vr(QF + 4*(n % 4))}, v{vRA[ks & 1]} offset:{qt * 6144 + (ks >> 1) * 128}'
    npre = em.npre
    pend = []
    if npre == 1 and cfg.g2e:
        k_fetch(em, 1, None); em.wait_lgkm0()
        pend = va_ops(em)
        if qh == 1:
            for f in pend: f()
            pend = []
        npre = 2
    for half in range(2):
        fill = pend; pend = []
        if half >= npre:
            fill = k_dma_ops(em, 1) if half == 0 else va_ops(em)
            if half == 0 and cfg.eager >> qh & 1:
                k_fetch(em, half, fill); fill = []
            else:
                k_fetch(em, half, None)
                em.wait_lgkm0()
                if half == 1 and cfg.eagerv >> qh & 1:
                    for f in fill: f()
                    fill = []
        for n in range(3): em.op(qrd(n))
        em.st.stamp(f'K{half}')
        main = []
        for n in range(54):
            qt, ks = divmod(n, 6)
            if n + 3 < 54: main.append(qrd(n + 3))
            for k in range(2):
                kt = half * 2 + k
                main.append(mfma(sreg(kt, qt), kop(kt, ks), QF + 4*(n % 4), None if ks == 0 else sreg(kt, qt)))
        m1 = maxops(1)
        if half == 0:
            streams = [(fill, cfg.g2lo / 100, cfg.g2hi / 100)]
        else:
            streams = [(maxops(0), 0.02, 0.5)]
            for qt in range(8): streams.append((m1[qt*4:qt*4+4], max(0.5 + 0.05*qt, (qt + 1.5) / 9), max(0.55 + 0.05*qt, (qt + 1.9) / 9)))
            streams.append((fill, cfg.valo / 100, cfg.vahi / 100))
        interleave(em, main, *streams)
    em.st.stamp('QKend')
    for o in maxops(1)[32:]: em.op(o)
    for qt in range(9): em.op(f'ds_max_f32 v{vMS}, v{MC+qt} offset:{qt*64}')
    if qh == 0 and cfg.tsq:
        for o in tail_setup_ops(0): emit(em, o)
    em.wait_lgkm0(); em.barrier()
    em.st.stamp('BM')

def expops(r, qt, pk):
    a, b = sreg(2*r, qt), sreg(2*r+1, qt); m = MC + qt
    tA, tB = TMP[0], TMP[2]
    sp = SUMP + 2*qt
    rs = [a, a+1, a+2, a+3, b, b+1, b+2, b+3]
    if pk:
        mb = m & ~1; s = m & 1
        ops = [f'v_pk_fma_f32 {vr(x,2)}, {vr(x,2)}, s[{sC}:{sC+1}], {vr(mb,2)} op_sel:[0,0,{s}] op_sel_hi:[1,0,{s}] neg_lo:[0,0,1] neg_hi:[0,0,1]' for x in rs[::2]]
    else:
        ops = [f'v_fma_f32 v{x}, v{x}, s{sC}, -v{m}' for x in rs]
    ops += [f'v_exp_f32 v{x}, v{x}' for x in rs]
    if pk:
        ops += [f'v_pk_add_f32 {vr(tA,2)}, {vr(a,2)}, {vr(a+2,2)}', f'v_pk_add_f32 {vr(tB,2)}, {vr(b,2)}, {vr(b+2,2)}']
        if r == 0: tailo = [f'v_pk_add_f32 {vr(sp,2)}, {vr(tA,2)}, {vr(tB,2)}']
        else: tailo = [f'v_pk_add_f32 {vr(tA,2)}, {vr(tA,2)}, {vr(tB,2)}', f'v_pk_add_f32 {vr(sp,2)}, {vr(sp,2)}, {vr(tA,2)}']
    else:
        assert r == 1
        ops += [f'v_add_f32 v{sp + (i & 1)}, v{sp + (i & 1)}, v{x}' for i, x in enumerate(rs)]
        tailo = []
    ops += [f'v_cvt_pk_bf16_f32 v{a}, v{a}, v{a+1}', f'v_cvt_pk_bf16_f32 v{a+1}, v{a+2}, v{a+3}',
            f'v_cvt_pk_bf16_f32 v{a+2}, v{b}, v{b+1}', f'v_cvt_pk_bf16_f32 v{a+3}, v{b+2}, v{b+3}']
    return ops + tailo

def pwrite(r, qt, qh):
    return f'ds_write_b128 v{vPW if r == 0 else vPW2}, {vr(sreg(2*r, qt))} offset:{qt*1024}'

def sum_ops():
    L = f'v{vLANE}'
    S = SUM; ops = []
    ops += [f'v_add_f32 v{SUM+qt}, v{SUMP+2*qt}, v{SUMP+2*qt+1}' for qt in range(9)]
    ops += [f'v_mov_b32 v{MC}, 0', f'v_mov_b32 v{MC+1}, 0']
    ta = TMP[2]; tb = TMP[3]
    ops += [f'v_bfe_u32 v{ta}, {L}, 4, 1', f'v_lshlrev_b32 v{ta}, 10, v{ta}', f'v_bfe_u32 v{tb}, {L}, 5, 1', f'v_lshlrev_b32 v{tb}, 9, v{tb}',
            f'v_add_u32 v{ta}, v{ta}, v{tb}', f'v_and_b32 v{tb}, 15, {L}', f'v_lshlrev_b32 v{tb}, 5, v{tb}', f'v_add_u32 v{ta}, v{ta}, v{tb}',
            f's_lshl_b32 s{sT0}, s{sW}, 2', f's_add_u32 s{sT0}, s{sT0}, {SUMB}', f'v_add_u32 v{ta}, s{sT0}, v{ta}']
    for a in (0, 2, 4, 6): ops.append(f'v_permlane32_swap_b32 v{S+a}, v{S+a+1}')
    ops.append(f'v_permlane32_swap_b32 v{S+8}, v{MC}')
    for a in (0, 2, 4, 6): ops.append(f'v_add_f32 v{S+a}, v{S+a}, v{S+a+1}')
    ops.append(f'v_add_f32 v{S+8}, v{S+8}, v{MC}')
    for a in (0, 4): ops.append(f'v_permlane16_swap_b32 v{S+a}, v{S+a+2}')
    ops.append(f'v_permlane16_swap_b32 v{S+8}, v{MC+1}')
    for a in (0, 4): ops.append(f'v_add_f32 v{S+a}, v{S+a}, v{S+a+2}')
    ops.append(f'v_add_f32 v{S+8}, v{S+8}, v{MC+1}')
    for a in (0, 4, 8): ops.append(f'ds_write_b32 v{ta}, v{S+a} offset:{a * 512}')
    return ops

def k1_sm0(em, qh):
    n_in = cfg.in0 if qh == 0 else cfg.in1
    for qt in range(9): em.op(f'ds_read_b32 v{MC+qt}, v{vMS} offset:{qt*64}')
    for qt in range(9): em.op(f'v_mul_f32 v{MC+qt}, s{sC}, v{MC+qt}')
    main = []
    for qt in range(9):
        main += expops(0, qt, True)
        if qh == 0: main.append(pwrite(0, qt, qh))
    for qt in range(n_in, 9): main += expops(1, qt, True)
    for o in main: em.op(o)
    em.st.stamp('exp0')
    if qh == 0: em.wait_vm_tag('VA', lgkm0=True)
    else: em.wait_lgkm0()
    em.barrier()
    em.st.stamp('PV0')

def k1_pv(em, qh):
    nq = 5 if qh == 0 else 4
    q0 = 0 if qh == 0 else 5
    L = f'v{vLANE}'
    rf = cfg.rfrac / 100
    PBF = PBF0 if qh == 0 else PBF1
    INV = INV0
    PAF = PAF0 if qh == 0 else PAF1
    def pv_reads(s, step, st):
        ops = []
        slot = vslot(s)
        base = vRB if slot < 2 else vRC
        off = (slot % 2) * 24576 + step * 12288
        for t in range(3):
            ops.append(f'ds_read_b64_tr_b16 {vr(PAF[st][t], 2)}, v{base[t]} offset:{off}')
            ops.append(f'ds_read_b64_tr_b16 {vr(PAF[st][t] + 2, 2)}, v{base[t]} offset:{off + 6144}')
        pa, po = vPA, ((2 * s + step) % 6) * 9216
        xs = [f'ds_read_b128 {vr(PBF[st][j])}, v{pa} offset:{po + j * 1024}' for j in range(nq)]
        return ops[0:2] + xs[0:1] + ops[2:6] + xs[1:]
    OACC = OACC0 if qh == 0 else OACC1
    def mf(st, first):
        return [mfma(OACC[j*3+t], PAF[st][t], PBF[st][j], None if first else OACC[j*3+t]) for j in range(nq) for t in range(3)]
    def inv_ops():
        ta = TMP[2]; ops = []
        ops += [f'v_and_b32 v{ta}, 15, {L}', f'v_lshlrev_b32 v{ta}, 5, v{ta}', f'v_add_u32 v{ta}, {SUMB + q0 * 512}, v{ta}']
        for j in range(nq):
            ops += [f'ds_read_b128 {vr(16 + 8*j)}, v{ta} offset:{j * 512}', f'ds_read_b128 {vr(20 + 8*j)}, v{ta} offset:{j * 512 + 16}']
        for j in range(nq):
            r = 16 + 8*j
            ops += [f'v_add_f32 v{r}, v{r}, v{r+1}', f'v_add_f32 v{r+2}, v{r+2}, v{r+3}', f'v_add_f32 v{r+4}, v{r+4}, v{r+5}', f'v_add_f32 v{r+6}, v{r+6}, v{r+7}',
                    f'v_add_f32 v{r}, v{r}, v{r+2}', f'v_add_f32 v{r+4}, v{r+4}, v{r+6}', f'v_add_f32 v{r}, v{r}, v{r+4}', f'v_rcp_f32 v{INV+2*j}, v{r}']
        return ops
    n_in = cfg.in0 if qh == 0 else cfg.in1
    assert n_in <= 3
    hs = [0, 3, 4] if qh == 0 else [7, 8, 4]
    INVO = inv_ops()
    TS = [] if (qh == 0 and cfg.tsq) else tail_setup_ops(qh)
    def ex(h):
        o = []
        if h in hs[:n_in] or (n_in == 2 and qh == 0 and False): o += expops(1, hs.index(h), False)
        if qh == 0 and h in (5, 6): o += [pwrite(1, qt, qh) for qt in (range(4, 9) if h == 5 else range(4))]
        if qh == 1 and h in (1, 2): o += [pwrite(0, qt, qh) for qt in (range(5) if h == 1 else range(5, 9))]
        if qh == 1 and h in (9, 10): o += [pwrite(1, qt, qh) for qt in (range(4, 9) if h == 9 else range(4))]
        if h == (7 if qh == 0 else 11): o += sum_ops()
        if h == 13: o += INVO[:len(INVO) // 2]
        if h == 14: o += INVO[len(INVO) // 2:]
        if TS and h == 3 and qh == 1: o += TS
        if TS and h in (11, 12) and qh == 0: o += TS[:len(TS)//2] if h == 11 else TS[len(TS)//2:]
        return o
    def wopre_ops(i):
        ta = TMP[2 + (i & 1)]
        ops = [f's_mul_i32 s{sT3}, s{sX}, 983040', f's_mul_i32 s{sT4}, s{sLOC}, 30720', f's_add_u32 s{sT3}, s{sT3}, s{sT4}', f's_add_u32 s{sT3}, s{sT3}, {i * 8192}',
               f'v_lshlrev_b32 v{ta}, 4, v0', f'v_add_u32 v{ta}, s{sT3}, v{ta}', f'v_min_u32 v{ta}, {7864320 - 16}, v{ta}',
               f'global_load_dwordx4 {vr(52)}, v{ta}, s[14:15]']
        if cfg.wo0:
            def f():
                _lab[0] += 1
                em.op(f's_cmp_eq_u32 s{sTYPE}, 0')
                em.op(f's_cbranch_scc0 L_wp{_lab[0]}')
                em.begin_opt()
                for o in ops[:-2] + [ops[-1], f'v_add_u32 v{ta}, 122880, v{ta}'] + ops[-2:]: em.op(o)
                em.end_opt()
                em.label(f'L_wp{_lab[0]}')
            return [f]
        return ops
    wsl = {8: 0, 9: 1, 10: 2, 12: 3}
    def epi(pk):
        out = []
        def mul(a, m):
            if pk: return [f'v_pk_mul_f32 {vr(a,2)}, {vr(a,2)}, {vr(m,2)} op_sel_hi:[1,0]', f'v_pk_mul_f32 {vr(a+2,2)}, {vr(a+2,2)}, {vr(m,2)} op_sel_hi:[1,0]']
            return [f'v_mul_f32 v{a+d}, v{a+d}, v{m}' for d in range(4)]
        for j in range(nq):
            m = INV + 2 * j
            a, b, c = OACC[j*3], OACC[j*3+1], OACC[j*3+2]
            if cfg.opair:
                out.append((j*3+1, mul(a, m) + mul(b, m) + [f'v_cvt_pk_bf16_f32 v{a}, v{a}, v{a+1}', f'v_cvt_pk_bf16_f32 v{a+1}, v{a+2}, v{a+3}',
                            f'v_cvt_pk_bf16_f32 v{a+2}, v{b}, v{b+1}', f'v_cvt_pk_bf16_f32 v{a+3}, v{b+2}, v{b+3}', f'ds_write_b128 v{vOW[0]}, {vr(a)} offset:{j * 1024}']
                            + ([f's_mov_b32 s{sT0}, {j * 1024}', (f'buffer_store_dwordx4 {vr(a)}, v{vOW[1]}, {sr(SO,4)}, s{sT0} offen sc1', 'CO0')] if cfg.direct else [])))
            for t in ((2,) if cfg.opair else (0, 1, 2)):
                x = OACC[j*3+t]
                out.append((j*3+t, mul(x, m) + [f'v_cvt_pk_bf16_f32 v{x}, v{x}, v{x+1}', f'v_cvt_pk_bf16_f32 v{x+1}, v{x+2}, v{x+3}', f'ds_write_b64 v{vOW[t]}, {vr(x,2)} offset:{j * 1024}']))
        return out
    for o in pv_reads(0, 0, 0): em.op(o)
    n = 3 * nq; lag = 4 if cfg.qwi else n
    for s in range(8):
        w = wopre_ops(wsl[2*s]) if cfg.wopre and 2*s in wsl else []
        if cfg.onew and s > 0: em.wait_lgkm0()
        interleave(em, mf(0, s == 0), (pv_reads(s, 1, 1), 0, rf), (ex(2*s), 0, cfg.efrac / 100), (w, 0.4, 0.41))
        if s == 1: em.wait_vm_tag('VA', lgkm0=True)
        elif s < 7: em.wait_vm_tag(f'V{s+1}', lgkm0=True)
        else: em.wait_lgkm0()
        em.barrier()
        em.st.stamp(f'PB{s}')
        rd = pv_reads(s + 1, 0, 0) if s < 7 else []
        dm = v_dma_ops(em, s + NV) if s + NV <= 7 else []
        if s == 7 and qh == 0: dm = tail_dma(em, 0) + tail_dma(em, 1)
        w = wopre_ops(wsl[2*s+1]) if cfg.wopre and 2*s+1 in wsl else []
        ins = []
        if s == 7:
            ins = [(g, (p + lag + 0.5) / n, (p + lag + 0.5) / n) for p, g in epi(False) if p + lag < n]
        interleave(em, mf(1, False), (dm, 0, 0.4 if s < 7 else 1), (rd, 0, rf + 0.1), (ex(2*s+1), 0, 1), (w, 0.4, 0.41), *ins)
    late = tail_dma(em, 2) if qh == 0 else []
    main = sum([g for p, g in epi(True) if p + lag >= n], [])
    interleave(em, main, (late, 0, 1))
    em.wait_vm_tag('T0', lgkm0=True); em.barrier()
    em.st.stamp('BO')
    em.op(f's_bitcmp1_b32 s{sW}, 1')
    em.op(f's_cbranch_scc1 L_tail{2 * qh + 1}')
    st = em.save()
    tail(em, 2 * qh)
    em.label(f'L_tail{2 * qh + 1}')
    em.restore(st)
    tail(em, 2 * qh + 1)

vOFFS = [2, 3, 4, 5, 7]; vA2 = [248, 249, 250]; vB2 = 251
SD, SP, SPR, SOUT = SX, SWQ, SK, 84
sT3, sT4 = 56, 59
sCH = 36 + 1
sCH = 81
sN0 = sNH
def tail_setup_ops(qh):
    c = Cap(); L = f'v{vLANE}'
    t0, t1, t2, t3 = 252, 253, 244, 245
    if qh == 0:
        c.op(f's_mul_i32 s{sT0}, s{sX}, 983040'); c.op(f's_mul_i32 s{sT1}, s{sJ}, 320'); c.op(f's_add_u32 s{sT0}, s{sT0}, s{sT1}')
        srd(c, SD, 14, 15, f's{sT0}', 7864320)
        c.op(f's_sub_u32 s{SD+2}, s{SD+2}, s{sT0}')
        c.op(f's_mov_b32 s{sSTR}, 81920')
        hs = 245760
        c.op(f's_lshl_b32 s{sT2}, s{sW}, 4')
        c.op(f's_mov_b32 s{sT1}, 52429')
        for j in range(5):
            c.op(f'v_add_u32 v{t0}, {j * 64}, {L}')
            c.op(f'v_mul_lo_u32 v{t1}, v{t0}, s{sT1}')
            c.op(f'v_lshrrev_b32 v{t1}, 20, v{t1}')
            c.op(f'v_mul_u32_u24 v{t2}, 20, v{t1}')
            c.op(f'v_sub_u32 v{t2}, v{t0}, v{t2}')
            c.op(f'v_bfe_u32 v{t3}, v{t1}, 2, 1')
            c.op(f'v_lshlrev_b32 v{t3}, 1, v{t3}')
            c.op(f'v_xor_b32 v{t2}, v{t2}, v{t3}')
            c.op(f'v_add_u32 v{t1}, s{sT2}, v{t1}')
            c.op(f'v_mul_u32_u24 v{t1}, 1280, v{t1}')
            c.op(f'v_lshl_add_u32 v{vOFFS[j]}, v{t2}, 4, v{t1}')
        c.op(f's_and_b32 s{sN0}, s{sW}, 1'); c.op(f's_mul_i32 s{sN0}, s{sN0}, 3')
        c.op(f's_bfe_u32 s{sQ0}, s{sW}, 0x10001'); c.op(f's_mul_i32 s{sQ0}, s{sQ0}, 5')
    else:
        c.op(f's_lshl_b32 s{sT0}, s{sB}, 5'); c.op(f's_lshl_b32 s{sT1}, s{sX}, 2'); c.op(f's_add_u32 s{sT0}, s{sT0}, s{sT1}')
        c.op(f's_mul_i32 s{sT0}, s{sT0}, {O_HEAD}')
        srd(c, SD, 12, 13, f's{sT0}', 4 * O_HEAD)
        c.op(f's_mov_b32 s{sSTR}, 18432')
        hs = O_HEAD
        c.op(f's_mul_i32 s{sT2}, s{sDG}, 5120')
        c.op(f'v_lshlrev_b32 v{t0}, 4, {L}')
        c.op(f'v_add_u32 v{t0}, s{sT2}, v{t0}')
        for j in range(5): c.op(f'v_add_u32 v{vOFFS[j]}, {j * 1024}, v{t0}')
        c.op(f's_and_b32 s{sN0}, s{sW}, 1'); c.op(f's_lshl_b32 s{sN0}, s{sN0}, 1'); c.op(f's_add_u32 s{sN0}, s{sN0}, 6')
        c.op(f's_bfe_u32 s{sQ0}, s{sW}, 0x10001'); c.op(f's_xor_b32 s{sQ0}, s{sQ0}, 1'); c.op(f's_mul_i32 s{sQ0}, s{sQ0}, 5')
    if cfg.direct:
        if qh == 0:
            c.op(f's_lshr_b32 s{sT0}, s{sW}, 1'); c.op(f's_mul_i32 s{sT0}, s{sT0}, 40960')
            c.op(f's_mov_b32 s{sCH}, s{sT0}'); c.op(f's_add_u32 s{sCH+1}, s{sT0}, {96 * 1280}')
            c.op(f's_lshl_b32 s{sT0}, s{sT0}, 1'); c.op(f's_add_u32 s{sCH+2}, s{sT0}, {32 * 1280}')
        else:
            for i in range(3): c.op(f's_mov_b32 s{sCH+i}, {i * 18432}')
    c.op(f's_mul_i32 s{sM0T}, s{sDG}, 5120')
    if qh: c.op(f's_add_u32 s{sM0T}, s{sM0T}, 61440')
    for i in range(4):
        c.op(f's_add_u32 s{sT0}, s{sJ}, {i}'); c.op(f's_and_b32 s{sT0}, s{sT0}, 3'); c.op(f's_mul_i32 s{sHB+i}, s{sT0}, {hs}')
    c.op(f'v_lshrrev_b32 v{t0}, 2, {L}')
    c.op(f'v_mul_u32_u24 v{t0}, 320, v{t0}')
    c.op(f'v_and_b32 v{t1}, 3, {L}')
    c.op(f'v_lshl_add_u32 v{t0}, v{t1}, 3, v{t0}')
    c.op(f'v_bfe_u32 v{t1}, {L}, 4, 1')
    for t in range(3 if qh == 0 else 2):
        c.op(f's_add_u32 s{sT1}, s{sN0}, {t}')
        c.op(f'v_xor_b32 v{t2}, s{sT1}, v{t1}')
        c.op(f'v_lshl_add_u32 v{vA2[t]}, v{t2}, 5, v{t0}')
    c.op(f's_lshl_b32 s{sT0}, s{sQ0}, 10')
    c.op(f's_add_u32 s{sT0}, s{sT0}, 61440')
    c.op(f'v_lshl_add_u32 v{vB2}, {L}, 4, s{sT0}')
    for t in range(3):
        if cfg.opair:
            if t == 1: continue
            tile_m(c, t)
        else:
            c.op(f's_mul_i32 s{sT0}, s{sDG}, 3'); c.op(f's_add_u32 s{sT0}, s{sT0}, {t}')
        if cfg.direct:
            c.op(f's_lshl_b32 s{sT1}, s{sT0}, 1'); c.op(f's_and_b32 s{sT1}, s{sT1}, 0x1c'); c.op(f's_lshr_b32 s{sT1}, 0x352140, s{sT1}'); c.op(f's_and_b32 s{sT1}, s{sT1}, 15')
            if t == 0:
                c.op(f's_mul_i32 s{sT2}, s{sT1}, 9216')
                c.op(f'v_add_u32 v{vOW[1]}, s{sT2}, v{vPA}')
            c.op(f's_and_b32 s{sT0}, s{sT0}, 1'); c.op(f's_lshl_b32 s{sT1}, s{sT1}, 1'); c.op(f's_add_u32 s{sT0}, s{sT0}, s{sT1}')
        c.op(f's_lshr_b32 s{sT1}, s{sT0}, 2'); c.op(f's_mul_i32 s{sT1}, s{sT1}, 20480')
        c.op(f's_bfe_u32 s{sT2}, s{sT0}, 0x10001'); c.op(f's_mul_i32 s{sT2}, s{sT2}, 9216'); c.op(f's_add_u32 s{sT1}, s{sT1}, s{sT2}')
        c.op(f's_and_b32 s{sT0}, s{sT0}, 1'); c.op(f's_lshl_b32 s{sT0}, s{sT0}, 3')
        c.op(f's_add_u32 s{sT0}, s{sT0}, s{sT1}'); c.op(f's_add_u32 s{sT0}, s{sT0}, 61440')
        c.op(f'v_add_u32 v{vOW[t]}, s{sT0}, v{vPA}')
    c.op(f's_lshl_b32 s{sT0}, s{sB}, 3'); c.op(f's_add_u32 s{sT0}, s{sT0}, s{sX}'); c.op(f's_lshl_b32 s{sT0}, s{sT0}, 7'); c.op(f's_add_u32 s{sT0}, s{sT0}, {FLAG_OFF + 4096}')
    c.op(f's_add_u32 s{sF1}, s12, s{sT0}'); c.op(f's_addc_u32 s{sF1+1}, s13, 0')
    c.op(f's_lshl_b32 s{sT0}, s{sLOC}, 7'); c.op(f's_add_u32 s{sT0}, s{sT0}, {FLAG_OFF + 16384}')
    c.op(f's_add_u32 s{sF2}, s12, s{sT0}'); c.op(f's_addc_u32 s{sF2+1}, s13, 0')
    c.op(f's_mul_i32 s{sT0}, s{sLOC}, {8 * PART2}'); c.op(f's_add_u32 s{sT0}, s{sT0}, {WS_PART}')
    srd(c, SPR, 12, 13, f's{sT0}', 8 * PART2)
    c.op(f's_mul_i32 s{sT1}, s{sX}, {PART2}'); c.op(f's_add_u32 s{sT0}, s{sT0}, s{sT1}')
    srd(c, SP, 12, 13, f's{sT0}', PART2)
    srd(c, SOUT, 54, 55, None, 1474560)
    out = []; i = 0; ops = c.ops
    while i < len(ops):
        if i + 1 < len(ops) and ops[i + 1].startswith('s_addc'):
            a, b = ops[i], ops[i + 1]
            out.append(lambda a=a, b=b: (EM[0].op(a), EM[0].op(b))); i += 2
        else:
            out.append(ops[i]); i += 1
    return out
EM = [None]

def tail_dma(em, s, orole=False):
    ops = []
    sc = ' sc1' if (orole and cfg.sc_ol) else ''
    for j in range(5):
        def f(j=j):
            em.op(f's_add_u32 m0, s{sM0T}, {(s % 3) * 20480 + j * 1024}')
            if j == 0:
                if cfg.direct:
                    peer, ch = (0, s) if s < 3 else (1 + (s - 3) % 3, (s - 3) // 3)
                    em.op(f's_add_u32 s{sOFF}, s{sCH + ch}, s{sHB + peer}')
                elif cfg.chunk and s >= 3:
                    ch = (s - 3) // 3
                    if ch == 0: em.op(f's_mov_b32 s{sOFF}, s{sHB + 1 + (s - 3) % 3}')
                    else:
                        em.op(f's_lshl_b32 s{sOFF}, s{sSTR}, {ch - 1}')
                        em.op(f's_add_u32 s{sOFF}, s{sOFF}, s{sHB + 1 + (s - 3) % 3}')
                elif s % 3 == 0: em.op(f's_mov_b32 s{sOFF}, s{sHB + s // 3}')
                else: em.op(f's_add_u32 s{sOFF}, s{sOFF}, s{sSTR}')
            em.op(f'buffer_load_dwordx4 v{vOFFS[j]}, {sr(SD,4)}, s{sOFF} offen{sc} lds', tag=f'T{s}')
        ops.append(f)
    return ops

def flag_store(em, base, idx_s, lab, wave, off=0):
    t0, t1 = 60, 61
    em.op(f's_cmp_eq_u32 s{sW}, {wave}')
    em.op(f's_cbranch_scc0 {lab}')
    em.begin_opt()
    em.op(f's_lshl_b32 s{sT0}, s{idx_s}, 2')
    em.op(f'v_mov_b32 v{t0}, s{sT0}')
    em.op(f'v_mov_b32 v{t1}, s{sTAG}')
    em.op('s_mov_b64 exec, 1')
    em.op(f'global_store_dword v{t0}, v{t1}, s[{base}:{base+1}] offset:{off} sc1')
    em.op('s_mov_b64 exec, -1')
    em.end_opt()
    em.label(lab)

vPL0, vPL1 = 62, 63
def poll(em, base, mask, lab, off=0, keep=False):
    em.op(f'v_and_b32 v{vPL0}, {mask}, v{vLANE}')
    em.op(f'v_lshlrev_b32 v{vPL0}, 2, v{vPL0}')
    em.op(f's_mov_b32 s{sCNT}, 0x20000')
    if not keep: em.wait_vm0()
    em.label(lab)
    em.op(f'global_load_dword v{vPL1}, v{vPL0}, s[{base}:{base+1}] offset:{off} sc1')
    em.op(f's_sub_u32 s{sCNT}, s{sCNT}, 1')
    em.op(f's_cbranch_scc1 {lab}_done')
    em.wait_vm0()
    em.op(f'v_cmp_ne_u32 vcc, s{sTAG}, v{vPL1}')
    em.op('s_nop 4')
    em.op(f's_cbranch_vccz {lab}_done')
    em.op('s_sleep 1')
    em.op(f's_branch {lab}')
    em.label(f'{lab}_done')
    em.wait_vm0()

def tail(em, tv):
    nt, nq = [(3, 5), (3, 4), (2, 4), (2, 5)][tv]
    orole = tv >= 2
    L = f'v{vLANE}'
    rf = cfg.rfrac / 100
    sc = ' sc1' if cfg.sc else ''
    ACC2 = 116; AF = [76, 88]; BF = [16, 36]; CO = 176
    t0, t1, t2, t3 = 56, 57, 58, 59
    sDONE = sT3
    em.op(f'v_lshlrev_b32 v{t0}, 4, v0')
    em.op(f'v_add_u32 v{t1}, 61440, v{t0}')
    npc = 3 if tv == 0 else 2
    k = 0; sts = []
    for c in ((2,) if cfg.direct else range(3)):
        for i in range(npc):
            em.op(f'ds_read_b128 {vr(CO + 4*k)}, v{t1} offset:{c * 20480 + i * 8192}')
            sts.append((CO + 4*k, c * 18432 + i * 8192)); k += 1
    def reads(s, step, st_):
        ops = []
        for t in range(nt):
            ops.append(f'ds_read_b64_tr_b16 {vr(AF[st_] + 4*t, 2)}, v{vA2[t]} offset:{(s % 3) * 20480 + step * 10240}')
            ops.append(f'ds_read_b64_tr_b16 {vr(AF[st_] + 4*t + 2, 2)}, v{vA2[t]} offset:{(s % 3) * 20480 + step * 10240 + 5120}')
        xs = [f'ds_read_b128 {vr(BF[st_] + 4*j)}, v{vB2} offset:{(s % 3) * 20480 + step * 9216 + j * 1024}' for j in range(nq)]
        return ops[0:2] + xs[0:1] + ops[2:] + xs[1:]
    def acc(t, j): return ACC2 + 4 * (j * nt + t)
    def mf(st_, first):
        return [mfma(acc(t, j), AF[st_] + 4*t, BF[st_] + 4*j, None if first else acc(t, j)) for j in range(nq) for t in range(nt)]
    for r, off in sts:
        em.op(f's_mov_b32 s{sT0}, {off}')
        em.op(f'buffer_store_dwordx4 {vr(r)}, v{t0}, {sr(SO,4)}, s{sT0} offen' + ['', ' sc1', ' nt', ' sc0'][cfg.sc_o], tag='CO0' if off < 18432 else 'CO1')
    for o in reads(0, 0, 0): em.op(o)
    em.op(f'v_lshlrev_b32 v{t1}, 4, {L}')
    em.op(f's_and_b32 s{sT1}, s{sW}, 1')
    em.op(f's_add_u32 s{sT2}, s{sT1}, {2 if orole else 0}'); em.op(f's_mul_i32 s{sT2}, s{sT2}, 9'); em.op(f's_add_u32 s{sT2}, s{sT2}, s{sQ0}'); em.op(f's_lshl_b32 s{sT2}, s{sT2}, 10')
    em.op(f'v_add_u32 v{t2}, s{sT2}, v{t1}')
    em.op(f's_mul_i32 s{sT1}, s{sT1}, 5120'); em.op(f's_add_u32 s{sT1}, s{sT1}, {(36 + (3 if tv == 1 else 0)) * 1024}')
    em.op(f'v_add_u32 v{t3}, s{sT1}, v{t1}')
    def pack(a, b):
        o = [f'v_cvt_pk_bf16_f32 v{a}, v{a}, v{a+1}', f'v_cvt_pk_bf16_f32 v{a+1}, v{a+2}, v{a+3}']
        if b is not None: o += [f'v_cvt_pk_bf16_f32 v{a+2}, v{b}, v{b+1}', f'v_cvt_pk_bf16_f32 v{a+3}, v{b+2}, v{b+3}']
        return o
    def st(a, va, off):
        def f():
            em.op(f's_mov_b32 s{sT0}, {off}')
            em.op(f'buffer_store_dwordx4 {vr(a)}, v{va}, {sr(SP,4)}, s{sT0} offen{sc}')
        return f
    carry = []
    for s in range(12):
        if s == 1 and orole and cfg.epoll:
            em.op(f'global_load_dword v{vPL1}, v{vPL0}, s[{sF1}:{sF1+1}] sc1')
        if cfg.onew and s > 0: em.wait_lgkm0()
        interleave(em, mf(0, s == 0), (reads(s, 1, 1), 0, rf), (carry, 0.05, 0.95))
        if s == 1 and orole and cfg.epoll:
            em.op(f'v_cmp_ne_u32 vcc, s{sTAG}, v{vPL1}')
            em.op('s_nop 4')
            em.op(f's_cbranch_vccnz L_np{tv}')
            em.begin_opt()
            for f in tail_dma(em, 3, True): f()
            em.op(f's_mov_b32 s{sDONE}, 1')
            em.end_opt()
            em.label(f'L_np{tv}')
        carry = []
        if s < 11:
            if s == 0 and cfg.chunk: em.wait_vm_tag('CO0', lgkm0=True)
            elif s == 0: em.wait_vm0(); em.wait_lgkm0()
            elif s == cfg.chunk and cfg.chunk:
                em.wait_vm_tag('CO1'); em.wait_vm_tag(f'T{s+1}', lgkm0=True)
            else: em.wait_vm_tag(f'T{s+1}', lgkm0=True)
            em.barrier()
            em.st.stamp(f'T{s}')
        if s == 0 and tv == 2: flag_store(em, sF1, sJ, 'L_f1', 4)
        if cfg.chunk and s == cfg.chunk and tv == 3: flag_store(em, sF1, sJ, 'L_f1b', 6, 16)
        if cfg.chunk and s == (5 if cfg.direct else 2) and orole: em.op(f'global_load_dword v{vPL1}, v{vPL0}, s[{sF1}:{sF1+1}] offset:16 sc1')
        if cfg.chunk and s == (6 if cfg.direct else 3) and orole:
            em.op(f'v_cmp_ne_u32 vcc, s{sTAG}, v{vPL1}')
            em.op('s_nop 4')
            em.op(f's_cbranch_vccz L_p1c_{tv}')
            keep = em.save()[2]
            em.begin_opt()
            poll(em, sF1, 3, f'L_p1b_{tv}', 16, keep=True)
            em.end_opt()
            em.vm = keep
            em.label(f'L_p1c_{tv}')
        fill = []; dm = []
        if s < 11: fill += reads(s + 1, 0, 0)
        if s == 0 and orole and cfg.epoll:
            em.op(f's_mov_b32 s{sDONE}, 0')
            em.op(f'v_and_b32 v{vPL0}, 3, {L}'); em.op(f'v_lshlrev_b32 v{vPL0}, 2, v{vPL0}')
        if s + 3 <= 11:
            if not orole or s >= 2:
                dm = tail_dma(em, s + 3, orole); dm, carry = dm[:3], dm[3:]
            elif s == 1:
                if cfg.epoll:
                    em.op(f's_cmp_eq_u32 s{sDONE}, 1')
                    em.op(f's_cbranch_scc1 L_ep{tv}')
                    vm_before = em.save()[2]
                    em.begin_opt()
                poll(em, sF1, 3, f'L_p1_{tv}')
                for f in tail_dma(em, 3, True): f()
                if cfg.epoll:
                    em.end_opt()
                    em.label(f'L_ep{tv}')
                dm = tail_dma(em, 4, True)
        ins = []
        n = nt * nq
        if s == 11:
            groups = []
            for j in range(nq):
                groups.append((j * nt + 1, pack(acc(0, j), acc(1, j)) + [st(acc(0, j), t2, j * 1024)]))
                if nt == 3 and (j % 2 == 1 or j == nq - 1):
                    j0 = j - (j % 2)
                    groups.append((j * nt + 2, pack(acc(2, j0), acc(2, j) if j != j0 else None) + [st(acc(2, j0), t3, (j0 // 2) * 1024)]))
            lag = 4
            ins = [(g, (p + lag + 0.5) / n, (p + lag + 0.5) / n) for p, g in groups if p + lag < n]
            restg = [g for p, g in groups if p + lag >= n]
        interleave(em, mf(1, False), (dm, 0.05, 0.95), (fill, 0, rf), *ins)
    for g in restg:
        for o in g: emit(em, o)
    em.st.stamp('TP')
    sU, sDL = sT3, sT4
    if tv < 3:
        em.op(f's_lshl_b32 s{sU}, s{sW}, 3'); em.op(f's_add_u32 s{sU}, s{sU}, s{sX}')
        em.op(f's_lshl_b32 s{sT0}, s{sU}, 10')
        em.op(f'v_add_u32 v{t2}, s{sT0}, v{t1}')
        em.op(f's_mul_i32 s{sT0}, s{sU}, 57'); em.op(f's_lshr_b32 s{sT0}, s{sT0}, 9')
        em.op(f's_mul_i32 s{sT1}, s{sT0}, 9'); em.op(f's_sub_u32 s{sT1}, s{sU}, s{sT1}')
        em.op(f's_lshl_b32 s{sT0}, s{sT0}, 2'); em.op(f's_lshr_b32 s{sT0}, 0x8630, s{sT0}'); em.op(f's_and_b32 s{sT0}, s{sT0}, 15')
        em.op(f's_mov_b32 s{sDL}, 32')
        em.op(f's_cmp_lt_u32 s{sU}, 36')
        em.op(f's_cbranch_scc1 L_dec{tv}')
        em.begin_opt()
        em.op(f's_cmp_ge_u32 s{sU}, 41')
        em.op(f's_cselect_b32 s{sT0}, 5, 2')
        em.op(f's_cselect_b32 s{sT1}, 41, 36')
        em.op(f's_sub_u32 s{sT1}, s{sU}, s{sT1}')
        em.op(f's_cmp_eq_u32 s{sT1}, 2')
        em.op(f's_mov_b32 s{sDL}, 20480')
        em.op(f's_cselect_b32 s{sDL}, 0x40000000, s{sDL}')
        em.op(f's_lshl_b32 s{sT1}, s{sT1}, 2'); em.op(f's_lshr_b32 s{sT1}, 0x75420, s{sT1}'); em.op(f's_and_b32 s{sT1}, s{sT1}, 15')
        em.end_opt()
        em.label(f'L_dec{tv}')
        em.op(f's_lshl_b32 s{sT1}, s{sT1}, 4'); em.op(f's_mul_i32 s{sT2}, s{sB}, 144'); em.op(f's_add_u32 s{sT1}, s{sT1}, s{sT2}'); em.op(f's_mul_i32 s{sT1}, s{sT1}, 1280')
        em.op(f's_lshl_b32 s{sT0}, s{sT0}, 5'); em.op(f's_add_u32 s{sT1}, s{sT1}, s{sT0}')
        em.op(f's_mul_i32 s{sT0}, s{sJ}, 320'); em.op(f's_add_u32 s{sT1}, s{sT1}, s{sT0}')
        em.op(f'v_and_b32 v{t3}, 15, {L}'); em.op(f'v_mul_u32_u24 v{t3}, 1280, v{t3}')
        em.op(f'v_lshrrev_b32 v{t0}, 4, {L}'); em.op(f'v_lshl_add_u32 v{t3}, v{t0}, 3, v{t3}')
        em.op(f'v_add_u32 v{t3}, s{sT1}, v{t3}')
    em.wait_vm0(); em.barrier()
    em.st.stamp('TW')
    if tv == 3:
        flag_store(em, sF2, sX, 'L_f2', 7)
    else:
        if tv == 2:
            em.op(f's_cmp_ge_u32 s{sU}, 46')
            em.op(f's_cbranch_scc1 L_fin2')
        poll(em, sF2, 7, f'L_p2_{tv}')
        em.st.stamp('TF')
        for x in range(8):
            em.op(f's_mov_b32 s{sT0}, {x * PART2}')
            em.op(f'buffer_load_dwordx4 {vr(76 + 4*x)}, v{t2}, {sr(SPR,4)}, s{sT0} offen{sc}')
        if tv == 0:
            em.op(f's_or_b32 s{sT0}, s{sH}, s{sW}')
            em.op(f's_cmp_eq_u32 s{sT0}, 0')
            em.op('s_cbranch_scc0 L_nw')
            em.begin_opt()
            em.op(f's_lshl_b32 s{sT0}, s{sB}, 8'); em.op(f's_add_u32 s{sT0}, s{sT0}, {FLAG_OFF}')
            em.op(f'v_mov_b32 v60, s{sT0}'); em.op(f'v_mov_b32 v61, s{sTAG}')
            em.op('s_mov_b64 exec, 1')
            em.op('global_store_dword v60, v61, s[12:13]')
            em.op('s_mov_b64 exec, -1')
            em.end_opt()
            em.label('L_nw')
        A = 108
        for x in range(8):
            for d in range(4):
                r = 76 + 4*x + d
                if x == 0:
                    em.op(f'v_lshlrev_b32 v{A+2*d}, 16, v{r}'); em.op(f'v_and_b32 v{A+2*d+1}, 0xffff0000, v{r}')
                else:
                    tp = A + 8 + 2 * (d & 1)
                    em.op(f'v_lshlrev_b32 v{tp}, 16, v{r}'); em.op(f'v_and_b32 v{tp+1}, 0xffff0000, v{r}')
                    em.op(f'v_pk_add_f32 {vr(A+2*d,2)}, {vr(A+2*d,2)}, {vr(tp,2)}')
        for d in range(4): em.op(f'v_cvt_pk_bf16_f32 v{A+d}, v{A+2*d}, v{A+2*d+1}')
        em.op(f'buffer_store_dwordx2 {vr(A,2)}, v{t3}, {sr(SOUT,4)}, 0 offen')
        em.op(f'buffer_store_dwordx2 {vr(A+2,2)}, v{t3}, {sr(SOUT,4)}, s{sDL} offen')
        if tv == 2: em.label('L_fin2')
    if cfg.diag: em.wait_vm0()
    em.st.flush(12, 0, sW, 244)
    em.op('s_endpgm')

def kernel_header(name):
    return f'.globl {name}\n.p2align 8\n.type {name},@function\n{name}:\n'
def kernel_desc(name, vgpr, sgpr=102):
    return f'''.amdhsa_kernel {name}
  .amdhsa_next_free_vgpr {vgpr}
  .amdhsa_next_free_sgpr {sgpr}
  .amdhsa_accum_offset {(vgpr + 3) // 4 * 4}
  .amdhsa_group_segment_fixed_size 0
  .amdhsa_kernarg_size 64
  .amdhsa_user_sgpr_count 2
  .amdhsa_user_sgpr_kernarg_segment_ptr 1
  .amdhsa_system_sgpr_workgroup_id_x 1
.end_amdhsa_kernel
'''

def gen_k1():
    em = Em(); EM[0] = em
    k1_prologue(em)
    st0 = em.save()
    em.label('k1_body_start')
    for qh in range(2):
        sts = []
        for typ in ((1, 0) if cfg.n0 else (0,)):
            if qh or typ == 0 and cfg.n0: em.label(f'L_qp{qh}{typ}')
            em.restore(st0)
            em.typ = typ
            k1_qproj(em, qh, typ)
            k1_qk(em, qh)
            sts.append(em.save())
            if typ == 1: em.op(f's_branch L_sm{qh}')
        if len(sts) == 2:
            t = [[e[0] for e in s[2]] for s in sts]
            lo, hi = sorted(range(2), key=lambda i: len(t[i]))
            assert t[hi][len(t[hi]) - len(t[lo]):] == t[lo], t
            em.restore(sts[hi]); em.hist = []
            em.label(f'L_sm{qh}')
        k1_sm0(em, qh)
        k1_pv(em, qh)
    em.label('k1_body_end')
    em.label('L_k1_exit')
    em.op('s_endpgm')
    return em

def main():
    ref = open('cdna_kernels/' + NAME + '.s.ref').read().split('\n')
    head = [l for l in ref[:9]]
    k1 = gen_k1()
    KN = NAME + '_kernel'
    out = '\n'.join(head) + '\n'
    out += f'; @launch grid=(256,1,1) block=(512,1,1) lds={LDS1}\n'
    out += '.amdgcn_target "amdgcn-amd-amdhsa--gfx950"\n.text\n'
    out += kernel_header(KN) + k1.text()
    out += '.section .rodata,"a"\n.p2align 6\n' + kernel_desc(KN, 256)
    open(sys.argv[1], 'w').write(out)
    print('k1 instrs', k1.count, 'nops', k1.nops, file=sys.stderr)
main()
```

```python
import sys, struct, math
from em import Em, interleave, emit

NAME = 'standalone__gqa_block_cached__near_ridge'
def fbits(x): return struct.unpack('<I', struct.pack('<f', x))[0]

class Cfg:
    nt_kv = True
    nt_w = False
    nt_k2 = False
    two_types = True
    pre = True
    code_pre = True
    diag = False
    pk = True
    rfrac = 60
    prio = 0
    x_noexp = 0
    x_nopw = 0
    efrac = 95
    loopb = -1
    st = 0
    dbg = 0
    n0 = 1
    inpv0 = 0
    inpv1 = 0
    pfa = 5
    kq = 12
    kq0 = 7
    wont = 0
    vrf = 60
    x_ren = 0
    vrole = 1
    vfirst = 0
    vold = 0
    vh0 = 12
    wsoff = 0
    cearly = 1
    osc = 0
    direct = 1
    chunk = 1
    onew = 1
    qlate = 0
    drole = 0
    in0 = 0
    in1 = 0
    epoll = 1
    pfx = 5
    opair = 1
    tsq = 1
    g2e = 0
    wo0 = 1
    pfnt = 0
    pfown = 10
    pfall = 1
    nt_k = 1
    nt_v = 1
    eager = 3
    eagerv = 0
    qwi = 1
    g2lo = 0
    g2hi = 30
    valo = 0
    vahi = 60
    pf1 = 10
    v0e = 0
    kqb = 0
    kqb0 = 7
    vb = 0
    vreg = 0
    nvy = 4
    sc_o = 1
    sc_ol = 1
    rt = 0
    qloop = 0
    x_qnodma = 0
    x_qnord = 0
    dlo = 10
    dhi = 95
    dsplit = 3
    x_delay = 0
    wopre = 1
    sc = 1
    x_nobar = 0
    x_nord = 0
    x_nodma = 0
cfg = Cfg()
cfg.pvst = (3,7); cfg.qst = (0,8,)
if 'pvall=1' in sys.argv: sys.argv.remove('pvall=1'); cfg.pvst = (0,1,2,3,4,5,6,7); cfg.qst = (); cfg.fewst = True
else: cfg.fewst = False
for a in sys.argv[2:]:
    k, v = a.split('='); setattr(cfg, k, type(getattr(cfg, k))(int(v)))
STSETS = {0: 'S0 BQ PV0 BO T2 TW', 1: 'ka pi si S0 B0 B8 BQ K0 K1 QKend BM exp0 PV0', 2: 'PV0 PB0 PB1 PB2 PB3 PB4 PB5 PB6', 9: 'BM exp0 PV0 PB3 PB6 PB7 BO T0', 3: 'BO T0 T1 T2 TW TF', 4: 'K0 K1 QKend BM exp0 PV0 PB3 PB7 BO T0', 8: '', 5: 'S0 LB0 LBend BQ', 6: 'S0 B0 B1 B2 B3 B5 B7 B8 B9 BQ', 7: 'BO T0 T1 T2 T3 T4 T6 T8 T10 TP'}
cfg.stlist = ['rt0', 'start'] + STSETS[cfg.st].split()[:6] + ['end', 'rt_end']
cfg.pvst = range(8); cfg.qst = range(10)
cfg.types = bool(cfg.n0)

def vr(b, n=4): return f'v[{b}:{b + n - 1}]' if n > 1 else f'v{b}'
def sr(b, n): return f's[{b}:{b + n - 1}]'
MF = 'v_mfma_f32_16x16x32_bf16'
def mfma(d, a, b, c=None):
    return f'{MF} {vr(d)}, {vr(a)}, {vr(b)}, ' + ('0' if c is None else vr(c))

FLAG_OFF = 28 << 20
PART2 = 47104
O_HEAD = 55296
WS_PART = 16 << 20
PART_TILE = 90 * 1024

def srd(em, d, base_lo, base_hi, off_sgpr, size):
    if off_sgpr is None:
        em.op(f's_mov_b32 s{d}, s{base_lo}'); em.op(f's_mov_b32 s{d+1}, s{base_hi}')
    else:
        em.op(f's_add_u32 s{d}, s{base_lo}, {off_sgpr}'); em.op(f's_addc_u32 s{d+1}, s{base_hi}, 0')
    em.op(f's_mov_b32 s{d+2}, {size}')
    em.op(f's_mov_b32 s{d+3}, 0x20000')

_lab = [0]
DIAG_OFF = 64 << 20
class Stamps:
    def __init__(self, em):
        self.em = em; self.n = 0; self.names = []
        if cfg.diag:
            for i in range(len(cfg.stlist)): em.op(f's_mov_b32 s{60 + 2*i}, 0')
    def stamp(self, name, real=False):
        if not cfg.diag or name not in cfg.stlist: return
        em = self.em; i = cfg.stlist.index(name)
        em.wait_lgkm0()
        em.op(('s_memrealtime' if (real or cfg.rt) else 's_memtime') + f' s[{60 + 2*i}:{61 + 2*i}]')
        em.op('s_waitcnt lgkmcnt(0)')
    def flush(self, ws_lo, kidx, wave_s, tv):
        if not cfg.diag: return
        em = self.em
        self.stamp('end'); self.stamp('rt_end', real=True)
        if cfg.dbg:
            _lab[0] += 1
            em.op('s_load_dwordx2 s[56:57], s[0:1], 48')
            em.op(f's_and_b32 s58, s2, 0xdf'); em.op(f's_or_b32 s58, s58, s{wave_s}'); em.op('s_cmp_eq_u32 s58, 0')
            em.op('s_waitcnt lgkmcnt(0)')
            em.op(f's_cbranch_scc0 L_dbg{_lab[0]}')
            em.op(f'v_mov_b32 v{tv}, s2')
            for k, i in enumerate([2, 3, 4, 13, 6, 9, 11, 12]):
                em.op(f's_sub_u32 s58, s{60 + 2*i}, s{60 if i == 13 else 62}')
                em.op(f'v_mov_b32 v{tv+1}, s58')
                em.op(f'global_store_dword v{tv}, v{tv+1}, s[56:57] offset:{4*k}')
            em.label(f'L_dbg{_lab[0]}')
            return
        em.op(f's_lshl_b32 s56, s2, 3'); em.op(f's_add_u32 s56, s56, s{wave_s}'); em.op('s_lshl_b32 s56, s56, 7')
        em.op(f's_add_u32 s56, s56, {DIAG_OFF + (kidx << 20)}')
        em.op(f's_add_u32 s56, s{ws_lo}, s56'); em.op(f's_addc_u32 s57, s{ws_lo+1}, 0')
        em.op(f'v_mov_b32 v{tv}, 0')
        for i in range(len(cfg.stlist)):
            em.op(f'v_mov_b32 v{tv+1}, s{60 + 2*i}')
            em.op(f'global_store_dword v{tv}, v{tv+1}, s[56:57] offset:{4*i}')
        print('stamps', kidx, cfg.stlist, file=sys.stderr)

SX, SWQ, SK, SV, SO = 16, 20, 24, 28, 32
sW, sW3072, sW1024, sTYPE, sOFF, sT0, sT1, sT2, sC, sB, sH, sJ, sLOC, sX = 36, 37, 38, 39, 40, 41, 42, 43, 44, 52, 46, 47, 48, 53
vLANE, vXO, vWO, vK0, vK1, vVO = 1, 2, 3, 4, 5, 6
vRA = [7, 8]
vRB = [9, 10, 11]
vRC = [12, 13, 14]
vT = 15
vOW = [8, 254, 255]
vVW, vVW2 = 7, 8
vPA, vPW, vMS = 240, 242, 243
vPW2 = 241
TMP = list(range(244, 256))
STG = 43008
PBASE, VBASE, MAXB, SUMB = 0, 55296, 153600, 155648
NV = 4
def vslot(s): return [3, 1, 2, 0][s % 4]
LDS1 = SUMB + 12 * 512
def kop(kt, ks): return 16 + 4 * (kt * 6 + ks)
def sreg(kt, qt):
    if kt < 2: return 116 + 4 * (qt * 2 + kt)
    i = qt * 2 + (kt - 2)
    return 16 + 4 * i if i < 12 else 188 + 4 * (i - 12)
ACC = 116
MC = 212
SUM = 221
SUMP = 222
QF = 224
OACC0 = [116 + 4*i for i in range(15)]
OACC1 = [120 + 8*i for i in range(9)] + [100, 80, 208]
PAF0 = [[176, 180, 184], [104, 108, 112]]
PAF1 = [[200, 192, 60], [104, 108, 112]]
PBF0 = [[64, 68, 72, 76, 80], [84, 88, 92, 96, 100]]
PBF1 = [[64, 68, 72, 76], [84, 88, 92, 96]]
INV0 = 212
NEXP1 = 4


sKB = 57
vKR = [250, 251]
vVO3 = 252
def k_dma_ops(em, half):
    nt = ' nt' if cfg.nt_kv and cfg.nt_k else ''
    ops = []
    for c in range(3):
        for k in range(2):
            for p in range(2):
                def f(c=c, k=k, p=p):
                    em.op(f's_add_u32 m0, s{sKB}, {(k * 3 + c) * 2048 + p * 1024 - c * 128}')
                    em.op(f's_mov_b32 s{sOFF}, {(half * 2 + k) * 6144}')
                    em.op(f'buffer_load_dwordx4 v{vK1 if p else vK0}, {sr(SK,4)}, s{sOFF} offen offset:{c*128}{nt} lds', tag=f'K{half}_{c * 2 + k}')
                ops.append(f)
    return ops
def k_rd_ops(half, u):
    c, k = divmod(u, 2)
    return [f'ds_read_b128 {vr(kop(half * 2 + k, 2 * c + e))}, v{vKR[e]} offset:{(k * 3 + c) * 2048}' for e in range(2)]
def k_fetch(em, half, nxt):
    for u in range(6):
        em.wait_vm_tag(f'K{half}_{u}')
        for o in k_rd_ops(half, u): em.op(o)
        if nxt and u:
            em.waitcnt(lgkm=2); em.lgkm = em.lgkm[-2:]
            for f in nxt[2 * u - 2: 2 * u]: f()
    if nxt:
        em.wait_lgkm0()
        for f in nxt[10:12]: f()
def va_ops(em):
    nt = ' nt' if cfg.nt_kv and cfg.nt_v else ''
    ops = []
    for rg in range(4):
        for c in range(3):
            def f(c=c, rg=rg):
                em.op(f's_add_u32 m0, s{sKB}, {rg * 3072 + c * 896}')
                em.op(f's_mov_b32 s{sOFF}, {rg * 3072}')
                em.op(f'buffer_load_dwordx4 v{vVO3}, {sr(SV,4)}, s{sOFF} offen offset:{c*128}{nt} lds', tag='VA')
            ops.append(f)
    return ops

def stage_dma_ops(em, s, qh):
    nt = ' nt' if cfg.nt_w else ''
    slot = (s % 3) * 18432
    ops = []
    for c in range(3):
        def f(c=c):
            em.op(f's_add_u32 m0, s{sW3072}, {VBASE + (s % 3) * 24576 + c * 896}')
            if c == 0: em.op(f's_mov_b32 s{sOFF2}, {s * 786432}')
            em.op(f'buffer_load_dwordx4 v{vWO}, {sr(SWQ,4)}, s{sOFF2} offen offset:{c*128}{nt} lds', tag=f'S{s}')
        ops.append(f)
    for j in range(2):
        def f(j=j):
            em.op(f's_add_u32 m0, s{sW1024}, {slot + j * 8192}')
            em.op(f's_mov_b32 s{sOFF}, {s * 128 + j * 81920}')
            em.op(f'buffer_load_dwordx4 v{vXO}, {sr(SX,4)}, s{sOFF} offen{nt} lds', tag=f'S{s}')
        ops.append(f)
    if qh == 1:
        def f():
            _lab[0] += 1
            lab = f'L_x{_lab[0]}'
            em.op(f's_cmp_lt_u32 s{sW}, 6')
            em.op(f's_cbranch_scc0 {lab}')
            em.begin_opt()
            em.op(f's_add_u32 m0, s{sW1024}, {slot + 12288}')
            em.op(f's_mov_b32 s{sOFF}, {s * 128 + 122880}')
            em.op(f'buffer_load_dwordx4 v{vXO}, {sr(SX,4)}, s{sOFF} offen{nt} lds', tag=f'S{s}')
            em.end_opt()
            em.label(lab)
        ops.insert(0, f)
    return ops

def v_dma_ops(em, s):
    nt = ' nt' if cfg.nt_kv and cfg.nt_v else ''
    ops = []
    for c in range(3):
        def f(c=c):
            em.op(f's_add_u32 m0, s{sW3072}, {VBASE + vslot(s) * 24576 + c * 896}')
            em.op(f's_mov_b32 s{sOFF}, {(128 * (s & 3) + 32 * (s >> 2)) * 384}')
            em.op(f'buffer_load_dwordx4 v{vVO}, {sr(SV,4)}, s{sOFF} offen offset:{c*128}{nt} lds', tag=f'V{s}')
        ops.append(f)
    return ops

sDG = 49
sPFS, sPFB = 45, 50
sOFF2 = 3
vPF = 241
def pf_ops():
    if not cfg.pre: return []
    nt = ' nt' if cfg.nt_w else ''
    return [f'global_load_dwordx4 {vr(112)}, v{vPF}, s[{sPFB}:{sPFB+1}]{nt}', f'v_add_u32 v{vPF}, s{sPFS}, v{vPF}']
sTAG, sSTR, sF1, sF2, sHB, sM0T, sQ0, sNH, sCNT = 88, 89, 90, 92, 94, 98, 99, 100, 101
VST = 64
def v_reg_ops(em):
    nt = ' nt' if cfg.nt_kv and cfg.nt_v else ''
    ops = []
    for s in range(4, 8):
        for c in range(3):
            def f(s=s, c=c):
                em.op(f's_mov_b32 s{sOFF}, {(128 * (s & 3) + 32 * (s >> 2)) * 384}')
                em.op(f'buffer_load_dwordx4 {vr(VST + 4 * ((s - 4) * 3 + c))}, v{vVO}, {sr(SV,4)}, s{sOFF} offen offset:{c*128}{nt}', tag=f'V{s}')
            ops.append(f)
    return ops
def v_put_ops(s):
    slot = vslot(s)
    return [f'ds_write_b128 v{vVW if slot < 2 else vVW2}, {vr(VST + 4 * ((s - 4) * 3 + c))} offset:{(slot % 2) * 24576 + c * 1024}' for c in range(3)]

vPF2 = 254
VTMP = [248, 249, 253]
def pf2_ops():
    nt = ' nt' if cfg.nt_w else ''
    return [f'global_load_dwordx4 {vr(112)}, v{vPF2}, s[{sPFB}:{sPFB+1}]{nt}', f'v_add_u32 v{vPF2}, s{sPFS}, v{vPF2}']

def k1_prologue(em):
    em.op('s_cmp_ge_u32 s2, 256')
    em.op('s_cbranch_scc1 L_k1_exit')
    em.st = Stamps(em); em.st.stamp('rt0', real=True); em.st.stamp('start')
    em.op('s_load_dwordx8 s[4:11], s[0:1], 0')
    em.op('s_load_dwordx2 s[12:13], s[0:1], 56')
    em.op('s_load_dwordx2 s[14:15], s[0:1], 32')
    em.op('s_load_dwordx2 s[54:55], s[0:1], 40')
    em.op(f'v_and_b32 v{vLANE}, 63, v0')
    em.op(f'v_lshrrev_b32 v{vT}, 6, v0')
    em.op(f's_and_b32 s{sX}, s2, 7')
    em.op(f's_lshr_b32 s{sLOC}, s2, 3')
    em.op(f'v_readfirstlane_b32 s{sW}, v{vT}')
    t0, t1, t2, t3, t4, t5 = TMP[:6]
    L = f'v{vLANE}'
    em.op(f's_and_b32 s{sJ}, s{sLOC}, 3')
    em.op(f's_lshr_b32 s{sB}, s{sLOC}, 2')
    em.op(f's_lshl_b32 s{sH}, s{sX}, 2')
    em.op(f's_add_u32 s{sH}, s{sH}, s{sJ}')
    em.op(f's_and_b32 s{sTYPE}, s{sB}, 1')
    em.op(f's_lshl_b32 s{sT0}, s{sLOC}, 1'); em.op(f's_mul_i32 s{sT0}, s{sT0}, 12288'); em.op(f's_mul_i32 s{sT1}, s{sX}, 1536'); em.op(f's_add_u32 s{sT0}, s{sT0}, s{sT1}')
    em.op(f's_lshl_b32 s{sT1}, s{sW}, 9'); em.op(f's_add_u32 s{sT0}, s{sT0}, s{sT1}')
    em.op(f'v_lshrrev_b32 v{t3}, 5, {L}'); em.op(f'v_mul_u32_u24 v{t3}, 12288, v{t3}')
    em.op(f'v_and_b32 v{t4}, 31, {L}'); em.op(f'v_lshlrev_b32 v{t4}, 4, v{t4}')
    em.op(f'v_add3_u32 v{t5}, v{t3}, v{t4}, s{sT0}')
    em.op(f'v_lshrrev_b32 v{t0}, 3, {L}')
    em.op(f'v_and_b32 v{t1}, 7, {L}')
    em.op(f'v_lshrrev_b32 v{t2}, 4, {L}')
    em.op(f's_mul_i32 s{sT0}, s{sLOC}, 36'); em.op(f's_lshl_b32 s{sT2}, s{sW}, 3'); em.op(f's_add_u32 s{sT0}, s{sT0}, s{sT2}'); em.op(f's_sub_u32 s{sT0}, s{sT0}, 24')
    em.op(f'v_add_u32 v{t3}, s{sT0}, v{t0}')
    em.op(f's_cmp_lt_u32 s{sW}, 3')
    em.op(f's_cselect_b64 vcc, -1, 0')
    em.op(f's_movk_i32 s{sPFS}, 128')
    em.op(f's_cselect_b32 s{sPFS}, 786432, s{sPFS}')
    for dst, dr, dw in ((vPF, 0, 0), (vPF2, 144, 98304) if not cfg.pfall else (vPF2, -144 & 0xffffffff, -98304 & 0xffffffff)):
        if dst == vPF2 and cfg.pf1 >= 10 and not cfg.pfall: continue
        em.op(f'v_add_u32 v{t4}, {dr}, v{t3}'); em.op(f'v_min_u32 v{t4}, 1151, v{t4}')
        em.op(f'v_mul_u32_u24 v{t4}, 1280, v{t4}')
        em.op(f'v_lshl_add_u32 v{t4}, v{t1}, 4, v{t4}')
        em.op(f'v_add_u32 v{dst}, {dw}, v{t5}')
        em.op(f'v_cndmask_b32 v{dst}, v{t4}, v{dst}, vcc')
    if cfg.pf1 < 10:
        em.op(f's_mul_i32 s{sT0}, s{sPFS}, {cfg.pf1}'); em.op(f'v_add_u32 v{vPF2}, s{sT0}, v{vPF2}')
    em.op(f's_and_b32 s{sDG}, s{sW}, 3')
    em.op(f's_mul_i32 s{sW3072}, s{sW}, 3072')
    em.op(f's_lshl_b32 s{sW1024}, s{sW}, 10')
    em.op(f's_and_b32 s{sT0}, s{sW}, 1')
    em.op(f's_lshl_b32 s{sT1}, s{sT0}, 2')
    em.op(f'v_add_u32 v{t3}, s{sT1}, v{t2}')
    em.op(f'v_xor_b32 v{t3}, v{t3}, v{t1}')
    em.op(f'v_add_u32 v{t4}, s{sT2}, v{t0}')
    em.op(f'v_mul_u32_u24 v{vXO}, 1280, v{t4}')
    em.op(f'v_lshl_add_u32 v{vXO}, v{t3}, 4, v{vXO}')
    em.op(f'v_and_b32 v{t3}, 1, v{t2}')
    em.op(f'v_lshl_add_u32 v{t3}, v{t3}, 1, s{sT1}')
    em.op(f'v_xor_b32 v{t3}, v{t3}, v{t1}')
    em.op(f'v_mul_u32_u24 v{vWO}, 12288, v{t4}')
    em.op(f'v_lshl_add_u32 v{vWO}, v{t3}, 4, v{vWO}')
    em.op(f's_lshl_b32 s{sT2}, s{sW}, 6')
    em.op(f'v_add_u32 v{t4}, s{sT2}, v{t0}')
    em.op(f'v_mul_u32_u24 v{t4}, 384, v{t4}')
    em.op(f'v_xor_b32 v{t3}, v{t2}, v{t1}')
    em.op(f'v_lshl_add_u32 v{vK0}, v{t3}, 4, v{t4}')
    em.op(f'v_xor_b32 v{vK1}, 64, v{vK0}')
    em.op(f'v_add_u32 v{vK1}, {8 * 384}, v{vK1}')
    em.op(f'v_lshlrev_b32 v{t3}, 1, v{t2}')
    em.op(f'v_xor_b32 v{t3}, v{t3}, v{t1}')
    em.op(f'v_lshl_add_u32 v{vVO3}, v{t3}, 4, v{t4}')
    em.op(f's_and_b32 s{sT1}, s{sW}, 6'); em.op(f's_lshr_b32 s{sKB}, 0x27, s{sT1}'); em.op(f's_and_b32 s{sKB}, s{sKB}, 3')
    em.op(f's_lshl_b32 s{sKB}, s{sKB}, 1'); em.op(f's_add_u32 s{sKB}, s{sKB}, s{sT0}'); em.op(f's_mul_i32 s{sKB}, s{sKB}, 12288'); em.op(f's_add_u32 s{sKB}, s{sKB}, {VBASE}')
    em.op(f'v_bfe_u32 v{t3}, {L}, 3, 1'); em.op(f'v_lshlrev_b32 v{t3}, 10, v{t3}')
    em.op(f'v_lshl_add_u32 v{t3}, v{t1}, 7, v{t3}')
    em.op(f'v_bfe_u32 v{t4}, {L}, 1, 3')
    em.op(f'v_xor_b32 v{t4}, v{t4}, v{t2}'); em.op(f'v_lshlrev_b32 v{vT}, 4, v{t4}')
    em.op(f'v_add_u32 v{vRA[0]}, v{t3}, v{vT}')
    em.op(f'v_add_u32 v{vKR[0]}, s{sKB}, v{vRA[0]}')
    em.op(f'v_xor_b32 v{vKR[1]}, 64, v{vKR[0]}')
    em.op(f's_lshr_b32 s{sT1}, s{sW}, 2'); em.op(f's_lshl_b32 s{sT1}, s{sT1}, 6')
    em.op(f's_lshl_b32 s{sT0}, s{sDG}, 3'); em.op(f's_add_u32 s{sT0}, s{sT0}, s{sT1}')
    em.op(f'v_add_u32 v{t3}, s{sT0}, v{t0}')
    em.op(f'v_mul_u32_u24 v{vVO}, 384, v{t3}')
    em.op(f'v_lshlrev_b32 v{t3}, 1, v{t2}')
    em.op(f'v_xor_b32 v{t3}, v{t3}, v{t1}')
    em.op(f'v_lshl_add_u32 v{vVO}, v{t3}, 4, v{vVO}')
    em.op(f's_mul_i32 s{SX+3}, s{sB}, 184320')
    em.op(f's_mul_i32 s{SWQ+3}, s{sH}, 384')
    em.op(f's_lshl_b32 s{sT1}, s{sB}, 5'); em.op(f's_add_u32 s{sT1}, s{sT1}, s{sH}')
    em.op(f's_mul_i32 s{sT2}, s{sT1}, 196608')
    em.op(f's_mul_i32 s{SO+3}, s{sT1}, {O_HEAD}')
    em.op(f's_lshl_b32 s{sT0}, s{sB}, 8'); em.op(f's_add_u32 s{sT0}, s{sT0}, {FLAG_OFF}')
    em.op(f's_mov_b32 s{SX+2}, 184320'); em.op(f's_sub_u32 s{SWQ+2}, 7864320, s{SWQ+3}')
    em.op(f's_cmp_lt_u32 s{sW}, 3')
    em.op('s_waitcnt lgkmcnt(0)')
    em.st.stamp('ka')
    if cfg.diag: em.op(f's_cmp_lt_u32 s{sW}, 3')
    em.op(f's_cselect_b64 s[{sPFB}:{sPFB+1}], s[10:11], s[4:5]')
    for i in range(0 if cfg.pfall else 3):
        for o in pf_ops(): em.op(o)
    if cfg.cearly:
        em.op('s_getpc_b64 s[58:59]')
        em.label('L_pce')
        em.op('s_add_u32 s58, s58, k1_body_start-L_pce')
        em.op('s_addc_u32 s59, s59, 0')
        em.op(f's_and_b32 s{sT1}, s{sLOC}, 15')
        em.op(f's_lshl_b32 s{sT1}, s{sT1}, 13')
        em.op(f'v_lshlrev_b32 v{TMP[11]}, 4, v0')
        em.op(f'v_add_u32 v{TMP[11]}, s{sT1}, v{TMP[11]}')
        em.op(f'v_min_u32 v{TMP[11]}, k1_body_end-k1_body_start-16, v{TMP[11]}')
        em.op(f'global_load_dwordx4 {vr(112)}, v{TMP[11]}, s[58:59]')
    if cfg.wsoff:
        em.op(f's_add_u32 s12, s12, {cfg.wsoff << 20}'); em.op('s_addc_u32 s13, s13, 0')
    em.op(f's_load_dword s{sTAG}, s[12:13], s{sT0}')
    em.op(f's_add_u32 s{SWQ}, s10, s{SWQ+3}'); em.op(f's_addc_u32 s{SWQ+1}, s11, 0'); em.op(f's_mov_b32 s{SWQ+3}, 0x20000')
    em.op(f's_add_u32 s{SX}, s4, s{SX+3}'); em.op(f's_addc_u32 s{SX+1}, s5, 0'); em.op(f's_mov_b32 s{SX+3}, 0x20000')
    srd(em, SK, 6, 7, f's{sT2}', 196608); srd(em, SV, 8, 9, f's{sT2}', 196608)
    if cfg.n0 or cfg.pfall:
        em.op(f's_cmp_eq_u32 s{sTYPE}, 1')
        em.op('s_cbranch_scc0 L_nok1')
        em.begin_opt()
        em.op(f's_cmp_lt_u32 s{sW}, 3')
        em.op('s_cbranch_scc0 L_pfx')
        for i in range(10):
            for o in pf2_ops() + pf_ops(): em.op(o)
        em.op('s_branch L_nok1')
        em.label('L_pfx')
        for i in range(10):
            for o in pf2_ops(): em.op(o)
        for i in range(cfg.pfx):
            for o in pf_ops(): em.op(o)
        em.end_opt()
        em.label('L_nok1')
    if cfg.n0:
        em.op(f's_lshr_b32 s{sT0}, s{sW}, 2'); em.op(f's_lshl_b32 s{sT0}, s{sT0}, 1'); em.op(f's_or_b32 s{sT0}, s{sT0}, s{sTYPE}')
        for v in (0, 2, 3):
            em.op(f's_cmp_eq_u32 s{sT0}, {v}')
            em.op(f's_cbranch_scc1 L_qp{v >> 1}{v & 1}')
    else:
        em.op(f's_cmp_lt_u32 s{sW}, 4')
        em.op('s_cbranch_scc0 L_qp10')

def tile_m(em, t):
    tab = [[0, 4, 6, 10], [1, 5, 7, 11], [2, 3, 8, 9]][t]
    em.op(f's_lshl_b32 s{sT0}, s{sDG}, 2')
    em.op(f's_lshr_b32 s{sT0}, {sum(v << (4 * i) for i, v in enumerate(tab))}, s{sT0}')
    em.op(f's_and_b32 s{sT0}, s{sT0}, 15')

def tr_addr(em, dst, t, base, fmode):
    t0, t1, t2, t3 = TMP[:4]
    L = f'v{vLANE}'
    if fmode == 'v' and cfg.opair: tile_m(em, t)
    else:
        em.op(f's_mul_i32 s{sT0}, s{sDG}, 3'); em.op(f's_add_u32 s{sT0}, s{sT0}, {t}')
    em.op(f's_lshr_b32 s{sT1}, s{sT0}, 2'); em.op(f's_lshl_b32 s{sT1}, s{sT1}, 10')
    em.op(f's_add_u32 s{sT1}, s{sT1}, {base}')
    em.op(f's_and_b32 s{sT0}, s{sT0}, 3')
    em.op(f'v_lshrrev_b32 v{t0}, 4, {L}')
    em.op(f'v_bfe_u32 v{t1}, {L}, 2, 2')
    em.op(f'v_and_b32 v{t2}, 1, v{t0}')
    em.op(f'v_lshlrev_b32 v{t2}, 1, v{t2}')
    em.op(f'v_lshrrev_b32 v{t3}, 1, v{t1}')
    em.op(f'v_add_u32 v{t3}, v{t3}, v{t2}')
    em.op(f'v_xor_b32 v{t3}, s{sT0}, v{t3}')
    em.op(f'v_lshlrev_b32 v{t3}, 5, v{t3}')
    em.op(f'v_lshlrev_b32 v{dst}, 7, v{t1}')
    em.op(f'v_add_u32 v{dst}, v{dst}, v{t3}')
    if fmode == 'w':
        em.op(f'v_mul_u32_u24 v{t3}, 3072, v{t0}')
    else:
        em.op(f'v_lshlrev_b32 v{t2}, 8, v{t2}')
        em.op(f'v_add_u32 v{dst}, v{dst}, v{t2}')
        em.op(f'v_lshrrev_b32 v{t3}, 1, v{t0}')
        em.op(f'v_mul_u32_u24 v{t3}, 3072, v{t3}')
    em.op(f'v_add_u32 v{dst}, v{dst}, v{t3}')
    em.op(f'v_and_b32 v{t3}, 3, {L}')
    em.op(f'v_lshlrev_b32 v{t3}, 3, v{t3}')
    em.op(f'v_add_u32 v{dst}, v{dst}, v{t3}')
    em.op(f'v_add_u32 v{dst}, s{sT1}, v{dst}')

class Cap:
    def __init__(self): self.ops = []
    def op(self, t, tag=None): self.ops.append(t)

def k1_qproj(em, qh, typ):
    nq = 5 if qh == 0 else 4
    q0 = 0 if qh == 0 else 5
    L = f'v{vLANE}'
    t0, t1, t2, t3, t4, t5 = TMP[:6]
    rf = cfg.rfrac / 100
    if cfg.prio == qh + 1: em.op('s_setprio 1')
    npre = cfg.n0 if typ == 1 else 0
    if npre:
        for f in k_dma_ops(em, 0): f()
        em.wait_lgkm0(force=True)
        k_fetch(em, 0, k_dma_ops(em, 1) if npre == 2 else None)
        if npre == 2: k_fetch(em, 1, None)
        em.wait_lgkm0()
    em.barrier()
    for f in stage_dma_ops(em, 0, qh): f()
    em.barrier()
    for f in stage_dma_ops(em, 1, qh): f()
    em.op(f's_add_u32 s{SO}, s12, s{SO+3}'); em.op(f's_addc_u32 s{SO+1}, s13, 0'); em.op(f's_mov_b32 s{SO+2}, {O_HEAD}'); em.op(f's_mov_b32 s{SO+3}, 0x20000')
    em.op(f's_mov_b32 s{sC}, {fbits(192 ** -0.5 * math.log2(math.e))}')
    if cfg.code_pre and not cfg.cearly:
        em.op('s_getpc_b64 s[58:59]')
        em.label(f'L_pc{qh}{typ}')
        em.op(f's_add_u32 s58, s58, k1_body_start-L_pc{qh}{typ}')
        em.op('s_addc_u32 s59, s59, -1')
        em.op(f's_and_b32 s{sT1}, s{sLOC}, 15')
        em.op(f's_lshl_b32 s{sT1}, s{sT1}, 13')
        em.op(f'v_lshlrev_b32 v{TMP[11]}, 4, v0')
        em.op(f'v_add_u32 v{TMP[11]}, s{sT1}, v{TMP[11]}')
        em.op(f'v_min_u32 v{TMP[11]}, k1_body_end-k1_body_start-16, v{TMP[11]}')
    em.st.stamp('si')
    em.op(f'v_lshlrev_b32 v{t3}, 2, v0')
    em.op(f'v_add_u32 v{t3}, {MAXB}, v{t3}')
    em.op(f'v_mov_b32 v{t4}, 0xff800000')
    em.op(f'ds_write_b32 v{t3}, v{t4}')
    em.op(f'v_and_b32 v{vMS}, 15, {L}')
    em.op(f'v_lshlrev_b32 v{vMS}, 2, v{vMS}')
    em.op(f'v_add_u32 v{vMS}, {MAXB}, v{vMS}')
    em.op(f'v_add_u32 v{vRA[0]}, {q0 * 2048}, v{vRA[0]}')
    em.op(f'v_xor_b32 v{vRA[1]}, 64, v{vRA[0]}')
    for t in range(3): tr_addr(em, vRB[t], t, VBASE, 'w')
    for t in range(3):
        em.op(f's_mul_i32 s{sT0}, s{sDG}, 3'); em.op(f's_add_u32 s{sT0}, s{sT0}, {t}'); em.op(f's_lshl_b32 s{sT0}, s{sT0}, 1')
        em.op(f'v_lshrrev_b32 v{t0}, 5, {L}')
        em.op(f'v_add_u32 v{t0}, s{sT0}, v{t0}')
        em.op(f'v_lshrrev_b32 v{t1}, 3, v{t0}'); em.op(f'v_lshlrev_b32 v{t1}, 7, v{t1}')
        em.op(f'v_and_b32 v{t0}, 7, v{t0}')
        em.op(f'v_bfe_u32 v{t2}, {L}, 1, 3')
        em.op(f'v_xor_b32 v{t0}, v{t0}, v{t2}'); em.op(f'v_lshlrev_b32 v{t0}, 4, v{t0}')
        em.op(f'v_add_u32 v{t0}, v{t0}, v{t1}')
        em.op(f'v_and_b32 v{t1}, 15, {L}'); em.op(f'v_mul_u32_u24 v{t1}, 384, v{t1}')
        em.op(f'v_add_u32 v{t0}, v{t0}, v{t1}')
        em.op(f'v_bfe_u32 v{t1}, {L}, 4, 1'); em.op(f'v_lshlrev_b32 v{t1}, 3, v{t1}')
        em.op(f'v_add_u32 v{vRC[t]}, v{t0}, v{t1}')
    em.op(f'v_lshlrev_b32 v{vPA}, 4, {L}')
    em.op(f's_lshl_b32 s{sT0}, s{sW}, 2'); em.op(f's_lshr_b32 s{sT1}, 0x10543210, s{sT0}'); em.op(f's_and_b32 s{sT1}, s{sT1}, 15'); em.op(f's_mul_i32 s{sT1}, s{sT1}, 9216')
    em.op(f'v_add_u32 v{vPW}, s{sT1}, v{vPA}')
    em.op(f'v_add_u32 v{vPA}, {q0 * 1024}, v{vPA}')
    AF = [176, 188]; BF = [200, 220]
    def q_reads(s, step, st):
        ops = []
        for t in range(3):
            ops.append(f'ds_read_b64_tr_b16 {vr(AF[st] + 4*t, 2)}, v{vRB[t]} offset:{(s % 3) * 24576 + step * 12288}')
            ops.append(f'ds_read_b64_tr_b16 {vr(AF[st] + 4*t + 2, 2)}, v{vRB[t]} offset:{(s % 3) * 24576 + step * 12288 + 512}')
        xs = [f'ds_read_b128 {vr(BF[st] + 4*j)}, v{vRA[step]} offset:{(s % 3) * 18432 + j * 2048}' for j in range(nq)]
        return ops[0:2] + xs[0:1] + ops[2:6] + xs[1:]
    def mf(st, first):
        return [mfma(ACC + 4*(j*3+t), AF[st] + 4*t, BF[st] + 4*j, None if first else ACC + 4*(j*3+t)) for j in range(nq) for t in range(3)]
    em.wait_vm_tag('S0', lgkm0=True); em.barrier()
    em.st.stamp('S0')
    em.op(f's_add_u32 s{sTAG}, s{sTAG}, 1')
    for o in q_reads(0, 0, 0): em.op(o)
    em.npre = npre
    nxt = [k_dma_ops(em, 0), k_dma_ops(em, 1), va_ops(em)][npre]
    plan = {15: nxt[0:4], 16: nxt[4:7], 17: nxt[7:10], 18: nxt[10:12]} if qh == 0 else {19: nxt[0:6]}
    late = [] if qh == 0 else nxt[6:12]
    post = []
    if qh == 1 and cfg.qlate: plan = {}; late = []; post = nxt
    cap = Cap()
    for t in range(3): tr_addr(cap, VTMP[t], t, VBASE, 'v')
    vaddr_ops = cap.ops
    inloop_pf = not (typ == 1 and cfg.n0) and not cfg.pfall
    carry = stage_dma_ops(em, 2, qh) + (sum([pf_ops() for i in range(cfg.pfa - 3)], []) if inloop_pf else [])
    if cfg.code_pre and not cfg.cearly: carry.append(f'global_load_dwordx4 {vr(244)}, v{TMP[11]}, s[58:59]')
    for s in range(10):
        extra = []
        extra = plan.get(2 * s, [])
        if cfg.onew and s > 0: em.wait_lgkm0()
        interleave(em, mf(0, s == 0), ([] if cfg.x_qnord and 3 < s <= 6 else q_reads(s, 1, 1), 0, rf), (extra, 0.1, 1), (carry, 0.05, cfg.dhi / 100))
        if s < 9: em.wait_vm_tag(f'S{s+1}', lgkm0=True)
        else: em.wait_lgkm0()
        em.barrier()
        if s in cfg.qst: em.st.stamp(f'B{s}')
        if cfg.qloop and s == 6:
            em.op('s_sub_u32 s87, s87, 1'); em.op('s_cmp_lg_u32 s87, 0'); em.op(f's_cbranch_scc1 L_ql{qh}{typ}')
            em.st.stamp('LBend')
        if cfg.qloop and s == 3:
            em.st.stamp('LB0')
            em.op('s_mov_b32 s87, 16'); em.label(f'L_ql{qh}{typ}')
        rd = []; dm = []; extra = []
        if s < 9:
            if not (cfg.x_qnord and 3 <= s < 6): rd += q_reads(s + 1, 0, 0)
        carry = []
        if s + 3 <= 9:
            dm = stage_dma_ops(em, s + 3, qh); ds_ = cfg.dsplit if not cfg.drole else (6 if qh == cfg.drole - 1 else 0)
            dm, carry = dm[:ds_], dm[ds_:]
            if cfg.x_qnodma and 3 <= s < 6: dm = []; carry = []
        if s == 7: extra = vaddr_ops
        first = (pf_ops() + (pf2_ops() if s + cfg.pfa >= cfg.pf1 and cfg.n0 else []) if inloop_pf and s + cfg.pfa <= 9 and not (cfg.qloop and s >= 3) else []) + plan.get(2 * s + 1, [])
        qw = []
        if s == 9:
            for j in range(nq):
                for t in range(3):
                    a = ACC + 4*(j*3+t)
                    qw.append([f'v_cvt_pk_bf16_f32 v{a}, v{a}, v{a+1}', f'v_cvt_pk_bf16_f32 v{a+1}, v{a+2}, v{a+3}', f'ds_write_b64 v{vRC[t]}, {vr(a,2)} offset:{(q0 + j) * 6144}'])
        n = 3 * nq; lag = 3 if cfg.qwi else n
        ins = [(qw[k], (k + lag + 0.5) / n, (k + lag + 0.5) / n) for k in range(n - lag)] if qw else []
        interleave(em, mf(1, False), (dm, cfg.dlo / 100, cfg.dhi / 100), (rd, 0, rf), (extra, 0, 1), (first, 0, 0.04 if dm else 0.9), *ins)
    for g in qw[max(0, n - lag):]:
        for o in g: em.op(o)
    for f in late: f()
    em.op(f'v_and_b32 v{t1}, 15, {L}'); em.op(f'v_mul_u32_u24 v{t1}, 384, v{t1}')
    em.op(f'v_add_u32 v{vRA[0]}, v{t1}, v{vT}')
    em.op(f'v_xor_b32 v{t0}, 64, v{vT}')
    em.op(f'v_add_u32 v{vRA[1]}, v{t1}, v{t0}')
    for t in range(3): em.op(f'v_mov_b32 v{vRB[t]}, v{VTMP[t]}')
    em.wait_lgkm0(); em.barrier()
    for f in post: f()
    for t in range(3): em.op(f'v_add_u32 v{vRC[t]}, 49152, v{vRB[t]}')
    em.op(f's_lshl_b32 s{sT0}, s{sW}, 2'); em.op(f's_lshr_b32 s{sT1}, 0x32105432, s{sT0}'); em.op(f's_and_b32 s{sT1}, s{sT1}, 15'); em.op(f's_mul_i32 s{sT1}, s{sT1}, 9216')
    em.op(f'v_lshlrev_b32 v{vPW2}, 4, {L}')
    em.op(f'v_add_u32 v{vPW2}, s{sT1}, v{vPW2}')
    em.st.stamp('BQ')

def maxops(half):
    ops = []
    for qt in range(9):
        a, b = sreg(half*2, qt), sreg(half*2+1, qt); m = MC + qt
        if half == 0:
            ops += [f'v_max3_f32 v{m}, v{a}, v{a+1}, v{a+2}', f'v_max3_f32 v{m}, v{m}, v{a+3}, v{b}',
                    f'v_max3_f32 v{m}, v{m}, v{b+1}, v{b+2}', f'v_max_f32 v{m}, v{m}, v{b+3}']
        else:
            ops += [f'v_max3_f32 v{m}, v{m}, v{a}, v{a+1}', f'v_max3_f32 v{m}, v{m}, v{a+2}, v{a+3}',
                    f'v_max3_f32 v{m}, v{m}, v{b}, v{b+1}', f'v_max3_f32 v{m}, v{m}, v{b+2}, v{b+3}']
    return ops

def k1_qk(em, qh):
    def qrd(n):
        qt, ks = divmod(n, 6)
        return f'ds_read_b128 {vr(QF + 4*(n % 4))}, v{vRA[ks & 1]} offset:{qt * 6144 + (ks >> 1) * 128}'
    npre = em.npre
    pend = []
    if npre == 1 and cfg.g2e:
        k_fetch(em, 1, None); em.wait_lgkm0()
        pend = va_ops(em)
        if qh == 1:
            for f in pend: f()
            pend = []
        npre = 2
    for half in range(2):
        fill = pend; pend = []
        if half >= npre:
            fill = k_dma_ops(em, 1) if half == 0 else va_ops(em)
            if half == 0 and cfg.eager >> qh & 1:
                k_fetch(em, half, fill); fill = []
            else:
                k_fetch(em, half, None)
                em.wait_lgkm0()
                if half == 1 and cfg.eagerv >> qh & 1:
                    for f in fill: f()
                    fill = []
        for n in range(3): em.op(qrd(n))
        em.st.stamp(f'K{half}')
        main = []
        for n in range(54):
            qt, ks = divmod(n, 6)
            if n + 3 < 54: main.append(qrd(n + 3))
            for k in range(2):
                kt = half * 2 + k
                main.append(mfma(sreg(kt, qt), kop(kt, ks), QF + 4*(n % 4), None if ks == 0 else sreg(kt, qt)))
        m1 = maxops(1)
        if half == 0:
            streams = [(fill, cfg.g2lo / 100, cfg.g2hi / 100)]
        else:
            streams = [(maxops(0), 0.02, 0.5)]
            for qt in range(8): streams.append((m1[qt*4:qt*4+4], max(0.5 + 0.05*qt, (qt + 1.5) / 9), max(0.55 + 0.05*qt, (qt + 1.9) / 9)))
            streams.append((fill, cfg.valo / 100, cfg.vahi / 100))
        interleave(em, main, *streams)
    em.st.stamp('QKend')
    for o in maxops(1)[32:]: em.op(o)
    for qt in range(9): em.op(f'ds_max_f32 v{vMS}, v{MC+qt} offset:{qt*64}')
    if qh == 0 and cfg.tsq:
        for o in tail_setup_ops(0): emit(em, o)
    em.wait_lgkm0(); em.barrier()
    em.st.stamp('BM')

def expops(r, qt, pk):
    a, b = sreg(2*r, qt), sreg(2*r+1, qt); m = MC + qt
    tA, tB = TMP[0], TMP[2]
    sp = SUMP + 2*qt
    rs = [a, a+1, a+2, a+3, b, b+1, b+2, b+3]
    if pk:
        mb = m & ~1; s = m & 1
        ops = [f'v_pk_fma_f32 {vr(x,2)}, {vr(x,2)}, s[{sC}:{sC+1}], {vr(mb,2)} op_sel:[0,0,{s}] op_sel_hi:[1,0,{s}] neg_lo:[0,0,1] neg_hi:[0,0,1]' for x in rs[::2]]
    else:
        ops = [f'v_fma_f32 v{x}, v{x}, s{sC}, -v{m}' for x in rs]
    ops += [f'v_exp_f32 v{x}, v{x}' for x in rs]
    if pk:
        ops += [f'v_pk_add_f32 {vr(tA,2)}, {vr(a,2)}, {vr(a+2,2)}', f'v_pk_add_f32 {vr(tB,2)}, {vr(b,2)}, {vr(b+2,2)}']
        if r == 0: tailo = [f'v_pk_add_f32 {vr(sp,2)}, {vr(tA,2)}, {vr(tB,2)}']
        else: tailo = [f'v_pk_add_f32 {vr(tA,2)}, {vr(tA,2)}, {vr(tB,2)}', f'v_pk_add_f32 {vr(sp,2)}, {vr(sp,2)}, {vr(tA,2)}']
    else:
        assert r == 1
        ops += [f'v_add_f32 v{sp + (i & 1)}, v{sp + (i & 1)}, v{x}' for i, x in enumerate(rs)]
        tailo = []
    ops += [f'v_cvt_pk_bf16_f32 v{a}, v{a}, v{a+1}', f'v_cvt_pk_bf16_f32 v{a+1}, v{a+2}, v{a+3}',
            f'v_cvt_pk_bf16_f32 v{a+2}, v{b}, v{b+1}', f'v_cvt_pk_bf16_f32 v{a+3}, v{b+2}, v{b+3}']
    return ops + tailo

def pwrite(r, qt, qh):
    return f'ds_write_b128 v{vPW if r == 0 else vPW2}, {vr(sreg(2*r, qt))} offset:{qt*1024}'

def sum_ops():
    L = f'v{vLANE}'
    S = SUM; ops = []
    ops += [f'v_add_f32 v{SUM+qt}, v{SUMP+2*qt}, v{SUMP+2*qt+1}' for qt in range(9)]
    ops += [f'v_mov_b32 v{MC}, 0', f'v_mov_b32 v{MC+1}, 0']
    ta = TMP[2]; tb = TMP[3]
    ops += [f'v_bfe_u32 v{ta}, {L}, 4, 1', f'v_lshlrev_b32 v{ta}, 10, v{ta}', f'v_bfe_u32 v{tb}, {L}, 5, 1', f'v_lshlrev_b32 v{tb}, 9, v{tb}',
            f'v_add_u32 v{ta}, v{ta}, v{tb}', f'v_and_b32 v{tb}, 15, {L}', f'v_lshlrev_b32 v{tb}, 5, v{tb}', f'v_add_u32 v{ta}, v{ta}, v{tb}',
            f's_lshl_b32 s{sT0}, s{sW}, 2', f's_add_u32 s{sT0}, s{sT0}, {SUMB}', f'v_add_u32 v{ta}, s{sT0}, v{ta}']
    for a in (0, 2, 4, 6): ops.append(f'v_permlane32_swap_b32 v{S+a}, v{S+a+1}')
    ops.append(f'v_permlane32_swap_b32 v{S+8}, v{MC}')
    for a in (0, 2, 4, 6): ops.append(f'v_add_f32 v{S+a}, v{S+a}, v{S+a+1}')
    ops.append(f'v_add_f32 v{S+8}, v{S+8}, v{MC}')
    for a in (0, 4): ops.append(f'v_permlane16_swap_b32 v{S+a}, v{S+a+2}')
    ops.append(f'v_permlane16_swap_b32 v{S+8}, v{MC+1}')
    for a in (0, 4): ops.append(f'v_add_f32 v{S+a}, v{S+a}, v{S+a+2}')
    ops.append(f'v_add_f32 v{S+8}, v{S+8}, v{MC+1}')
    for a in (0, 4, 8): ops.append(f'ds_write_b32 v{ta}, v{S+a} offset:{a * 512}')
    return ops

def k1_sm0(em, qh):
    n_in = cfg.in0 if qh == 0 else cfg.in1
    for qt in range(9): em.op(f'ds_read_b32 v{MC+qt}, v{vMS} offset:{qt*64}')
    for qt in range(9): em.op(f'v_mul_f32 v{MC+qt}, s{sC}, v{MC+qt}')
    main = []
    for qt in range(9):
        main += expops(0, qt, True)
        if qh == 0: main.append(pwrite(0, qt, qh))
    for qt in range(n_in, 9): main += expops(1, qt, True)
    for o in main: em.op(o)
    em.st.stamp('exp0')
    if qh == 0: em.wait_vm_tag('VA', lgkm0=True)
    else: em.wait_lgkm0()
    em.barrier()
    em.st.stamp('PV0')

def k1_pv(em, qh):
    nq = 5 if qh == 0 else 4
    q0 = 0 if qh == 0 else 5
    L = f'v{vLANE}'
    rf = cfg.rfrac / 100
    PBF = PBF0 if qh == 0 else PBF1
    INV = INV0
    PAF = PAF0 if qh == 0 else PAF1
    def pv_reads(s, step, st):
        ops = []
        slot = vslot(s)
        base = vRB if slot < 2 else vRC
        off = (slot % 2) * 24576 + step * 12288
        for t in range(3):
            ops.append(f'ds_read_b64_tr_b16 {vr(PAF[st][t], 2)}, v{base[t]} offset:{off}')
            ops.append(f'ds_read_b64_tr_b16 {vr(PAF[st][t] + 2, 2)}, v{base[t]} offset:{off + 6144}')
        pa, po = vPA, ((2 * s + step) % 6) * 9216
        xs = [f'ds_read_b128 {vr(PBF[st][j])}, v{pa} offset:{po + j * 1024}' for j in range(nq)]
        return ops[0:2] + xs[0:1] + ops[2:6] + xs[1:]
    OACC = OACC0 if qh == 0 else OACC1
    def mf(st, first):
        return [mfma(OACC[j*3+t], PAF[st][t], PBF[st][j], None if first else OACC[j*3+t]) for j in range(nq) for t in range(3)]
    def inv_ops():
        ta = TMP[2]; ops = []
        ops += [f'v_and_b32 v{ta}, 15, {L}', f'v_lshlrev_b32 v{ta}, 5, v{ta}', f'v_add_u32 v{ta}, {SUMB + q0 * 512}, v{ta}']
        for j in range(nq):
            ops += [f'ds_read_b128 {vr(16 + 8*j)}, v{ta} offset:{j * 512}', f'ds_read_b128 {vr(20 + 8*j)}, v{ta} offset:{j * 512 + 16}']
        for j in range(nq):
            r = 16 + 8*j
            ops += [f'v_add_f32 v{r}, v{r}, v{r+1}', f'v_add_f32 v{r+2}, v{r+2}, v{r+3}', f'v_add_f32 v{r+4}, v{r+4}, v{r+5}', f'v_add_f32 v{r+6}, v{r+6}, v{r+7}',
                    f'v_add_f32 v{r}, v{r}, v{r+2}', f'v_add_f32 v{r+4}, v{r+4}, v{r+6}', f'v_add_f32 v{r}, v{r}, v{r+4}', f'v_rcp_f32 v{INV+2*j}, v{r}']
        return ops
    n_in = cfg.in0 if qh == 0 else cfg.in1
    assert n_in <= 3
    hs = [0, 3, 4] if qh == 0 else [7, 8, 4]
    INVO = inv_ops()
    TS = [] if (qh == 0 and cfg.tsq) else tail_setup_ops(qh)
    def ex(h):
        o = []
        if h in hs[:n_in] or (n_in == 2 and qh == 0 and False): o += expops(1, hs.index(h), False)
        if qh == 0 and h in (5, 6): o += [pwrite(1, qt, qh) for qt in (range(4, 9) if h == 5 else range(4))]
        if qh == 1 and h in (1, 2): o += [pwrite(0, qt, qh) for qt in (range(5) if h == 1 else range(5, 9))]
        if qh == 1 and h in (9, 10): o += [pwrite(1, qt, qh) for qt in (range(4, 9) if h == 9 else range(4))]
        if h == (7 if qh == 0 else 11): o += sum_ops()
        if h == 13: o += INVO[:len(INVO) // 2]
        if h == 14: o += INVO[len(INVO) // 2:]
        if TS and h == 3 and qh == 1: o += TS
        if TS and h in (11, 12) and qh == 0: o += TS[:len(TS)//2] if h == 11 else TS[len(TS)//2:]
        return o
    def wopre_ops(i):
        ta = TMP[2 + (i & 1)]
        ops = [f's_mul_i32 s{sT3}, s{sX}, 983040', f's_mul_i32 s{sT4}, s{sLOC}, 30720', f's_add_u32 s{sT3}, s{sT3}, s{sT4}', f's_add_u32 s{sT3}, s{sT3}, {i * 8192}',
               f'v_lshlrev_b32 v{ta}, 4, v0', f'v_add_u32 v{ta}, s{sT3}, v{ta}', f'v_min_u32 v{ta}, {7864320 - 16}, v{ta}',
               f'global_load_dwordx4 {vr(52)}, v{ta}, s[14:15]']
        if cfg.wo0:
            def f():
                _lab[0] += 1
                em.op(f's_cmp_eq_u32 s{sTYPE}, 0')
                em.op(f's_cbranch_scc0 L_wp{_lab[0]}')
                em.begin_opt()
                for o in ops[:-2] + [ops[-1], f'v_add_u32 v{ta}, 122880, v{ta}'] + ops[-2:]: em.op(o)
                em.end_opt()
                em.label(f'L_wp{_lab[0]}')
            return [f]
        return ops
    wsl = {8: 0, 9: 1, 10: 2, 12: 3}
    def epi(pk):
        out = []
        def mul(a, m):
            if pk: return [f'v_pk_mul_f32 {vr(a,2)}, {vr(a,2)}, {vr(m,2)} op_sel_hi:[1,0]', f'v_pk_mul_f32 {vr(a+2,2)}, {vr(a+2,2)}, {vr(m,2)} op_sel_hi:[1,0]']
            return [f'v_mul_f32 v{a+d}, v{a+d}, v{m}' for d in range(4)]
        for j in range(nq):
            m = INV + 2 * j
            a, b, c = OACC[j*3], OACC[j*3+1], OACC[j*3+2]
            if cfg.opair:
                out.append((j*3+1, mul(a, m) + mul(b, m) + [f'v_cvt_pk_bf16_f32 v{a}, v{a}, v{a+1}', f'v_cvt_pk_bf16_f32 v{a+1}, v{a+2}, v{a+3}',
                            f'v_cvt_pk_bf16_f32 v{a+2}, v{b}, v{b+1}', f'v_cvt_pk_bf16_f32 v{a+3}, v{b+2}, v{b+3}', f'ds_write_b128 v{vOW[0]}, {vr(a)} offset:{j * 1024}']
                            + ([f's_mov_b32 s{sT0}, {j * 1024}', (f'buffer_store_dwordx4 {vr(a)}, v{vOW[1]}, {sr(SO,4)}, s{sT0} offen sc1', 'CO0')] if cfg.direct else [])))
            for t in ((2,) if cfg.opair else (0, 1, 2)):
                x = OACC[j*3+t]
                out.append((j*3+t, mul(x, m) + [f'v_cvt_pk_bf16_f32 v{x}, v{x}, v{x+1}', f'v_cvt_pk_bf16_f32 v{x+1}, v{x+2}, v{x+3}', f'ds_write_b64 v{vOW[t]}, {vr(x,2)} offset:{j * 1024}']))
        return out
    for o in pv_reads(0, 0, 0): em.op(o)
    n = 3 * nq; lag = 4 if cfg.qwi else n
    for s in range(8):
        w = wopre_ops(wsl[2*s]) if cfg.wopre and 2*s in wsl else []
        if cfg.onew and s > 0: em.wait_lgkm0()
        interleave(em, mf(0, s == 0), (pv_reads(s, 1, 1), 0, rf), (ex(2*s), 0, cfg.efrac / 100), (w, 0.4, 0.41))
        if s == 1: em.wait_vm_tag('VA', lgkm0=True)
        elif s < 7: em.wait_vm_tag(f'V{s+1}', lgkm0=True)
        else: em.wait_lgkm0()
        em.barrier()
        em.st.stamp(f'PB{s}')
        rd = pv_reads(s + 1, 0, 0) if s < 7 else []
        dm = v_dma_ops(em, s + NV) if s + NV <= 7 else []
        if s == 7 and qh == 0: dm = tail_dma(em, 0) + tail_dma(em, 1)
        w = wopre_ops(wsl[2*s+1]) if cfg.wopre and 2*s+1 in wsl else []
        ins = []
        if s == 7:
            ins = [(g, (p + lag + 0.5) / n, (p + lag + 0.5) / n) for p, g in epi(False) if p + lag < n]
        interleave(em, mf(1, False), (dm, 0, 0.4 if s < 7 else 1), (rd, 0, rf + 0.1), (ex(2*s+1), 0, 1), (w, 0.4, 0.41), *ins)
    late = tail_dma(em, 2) if qh == 0 else []
    main = sum([g for p, g in epi(True) if p + lag >= n], [])
    interleave(em, main, (late, 0, 1))
    em.wait_vm_tag('T0', lgkm0=True); em.barrier()
    em.st.stamp('BO')
    em.op(f's_bitcmp1_b32 s{sW}, 1')
    em.op(f's_cbranch_scc1 L_tail{2 * qh + 1}')
    st = em.save()
    tail(em, 2 * qh)
    em.label(f'L_tail{2 * qh + 1}')
    em.restore(st)
    tail(em, 2 * qh + 1)

vOFFS = [2, 3, 4, 5, 7]; vA2 = [248, 249, 250]; vB2 = 251
SD, SP, SPR, SOUT = SX, SWQ, SK, 84
sT3, sT4 = 56, 59
sCH = 36 + 1
sCH = 81
sN0 = sNH
def tail_setup_ops(qh):
    c = Cap(); L = f'v{vLANE}'
    t0, t1, t2, t3 = 252, 253, 244, 245
    if qh == 0:
        c.op(f's_mul_i32 s{sT0}, s{sX}, 983040'); c.op(f's_mul_i32 s{sT1}, s{sJ}, 320'); c.op(f's_add_u32 s{sT0}, s{sT0}, s{sT1}')
        srd(c, SD, 14, 15, f's{sT0}', 7864320)
        c.op(f's_sub_u32 s{SD+2}, s{SD+2}, s{sT0}')
        c.op(f's_mov_b32 s{sSTR}, 81920')
        hs = 245760
        c.op(f's_lshl_b32 s{sT2}, s{sW}, 4')
        c.op(f's_mov_b32 s{sT1}, 52429')
        for j in range(5):
            c.op(f'v_add_u32 v{t0}, {j * 64}, {L}')
            c.op(f'v_mul_lo_u32 v{t1}, v{t0}, s{sT1}')
            c.op(f'v_lshrrev_b32 v{t1}, 20, v{t1}')
            c.op(f'v_mul_u32_u24 v{t2}, 20, v{t1}')
            c.op(f'v_sub_u32 v{t2}, v{t0}, v{t2}')
            c.op(f'v_bfe_u32 v{t3}, v{t1}, 2, 1')
            c.op(f'v_lshlrev_b32 v{t3}, 1, v{t3}')
            c.op(f'v_xor_b32 v{t2}, v{t2}, v{t3}')
            c.op(f'v_add_u32 v{t1}, s{sT2}, v{t1}')
            c.op(f'v_mul_u32_u24 v{t1}, 1280, v{t1}')
            c.op(f'v_lshl_add_u32 v{vOFFS[j]}, v{t2}, 4, v{t1}')
        c.op(f's_and_b32 s{sN0}, s{sW}, 1'); c.op(f's_mul_i32 s{sN0}, s{sN0}, 3')
        c.op(f's_bfe_u32 s{sQ0}, s{sW}, 0x10001'); c.op(f's_mul_i32 s{sQ0}, s{sQ0}, 5')
    else:
        c.op(f's_lshl_b32 s{sT0}, s{sB}, 5'); c.op(f's_lshl_b32 s{sT1}, s{sX}, 2'); c.op(f's_add_u32 s{sT0}, s{sT0}, s{sT1}')
        c.op(f's_mul_i32 s{sT0}, s{sT0}, {O_HEAD}')
        srd(c, SD, 12, 13, f's{sT0}', 4 * O_HEAD)
        c.op(f's_mov_b32 s{sSTR}, 18432')
        hs = O_HEAD
        c.op(f's_mul_i32 s{sT2}, s{sDG}, 5120')
        c.op(f'v_lshlrev_b32 v{t0}, 4, {L}')
        c.op(f'v_add_u32 v{t0}, s{sT2}, v{t0}')
        for j in range(5): c.op(f'v_add_u32 v{vOFFS[j]}, {j * 1024}, v{t0}')
        c.op(f's_and_b32 s{sN0}, s{sW}, 1'); c.op(f's_lshl_b32 s{sN0}, s{sN0}, 1'); c.op(f's_add_u32 s{sN0}, s{sN0}, 6')
        c.op(f's_bfe_u32 s{sQ0}, s{sW}, 0x10001'); c.op(f's_xor_b32 s{sQ0}, s{sQ0}, 1'); c.op(f's_mul_i32 s{sQ0}, s{sQ0}, 5')
    if cfg.direct:
        if qh == 0:
            c.op(f's_lshr_b32 s{sT0}, s{sW}, 1'); c.op(f's_mul_i32 s{sT0}, s{sT0}, 40960')
            c.op(f's_mov_b32 s{sCH}, s{sT0}'); c.op(f's_add_u32 s{sCH+1}, s{sT0}, {96 * 1280}')
            c.op(f's_lshl_b32 s{sT0}, s{sT0}, 1'); c.op(f's_add_u32 s{sCH+2}, s{sT0}, {32 * 1280}')
        else:
            for i in range(3): c.op(f's_mov_b32 s{sCH+i}, {i * 18432}')
    c.op(f's_mul_i32 s{sM0T}, s{sDG}, 5120')
    if qh: c.op(f's_add_u32 s{sM0T}, s{sM0T}, 61440')
    for i in range(4):
        c.op(f's_add_u32 s{sT0}, s{sJ}, {i}'); c.op(f's_and_b32 s{sT0}, s{sT0}, 3'); c.op(f's_mul_i32 s{sHB+i}, s{sT0}, {hs}')
    c.op(f'v_lshrrev_b32 v{t0}, 2, {L}')
    c.op(f'v_mul_u32_u24 v{t0}, 320, v{t0}')
    c.op(f'v_and_b32 v{t1}, 3, {L}')
    c.op(f'v_lshl_add_u32 v{t0}, v{t1}, 3, v{t0}')
    c.op(f'v_bfe_u32 v{t1}, {L}, 4, 1')
    for t in range(3 if qh == 0 else 2):
        c.op(f's_add_u32 s{sT1}, s{sN0}, {t}')
        c.op(f'v_xor_b32 v{t2}, s{sT1}, v{t1}')
        c.op(f'v_lshl_add_u32 v{vA2[t]}, v{t2}, 5, v{t0}')
    c.op(f's_lshl_b32 s{sT0}, s{sQ0}, 10')
    c.op(f's_add_u32 s{sT0}, s{sT0}, 61440')
    c.op(f'v_lshl_add_u32 v{vB2}, {L}, 4, s{sT0}')
    for t in range(3):
        if cfg.opair:
            if t == 1: continue
            tile_m(c, t)
        else:
            c.op(f's_mul_i32 s{sT0}, s{sDG}, 3'); c.op(f's_add_u32 s{sT0}, s{sT0}, {t}')
        if cfg.direct:
            c.op(f's_lshl_b32 s{sT1}, s{sT0}, 1'); c.op(f's_and_b32 s{sT1}, s{sT1}, 0x1c'); c.op(f's_lshr_b32 s{sT1}, 0x352140, s{sT1}'); c.op(f's_and_b32 s{sT1}, s{sT1}, 15')
            if t == 0:
                c.op(f's_mul_i32 s{sT2}, s{sT1}, 9216')
                c.op(f'v_add_u32 v{vOW[1]}, s{sT2}, v{vPA}')
            c.op(f's_and_b32 s{sT0}, s{sT0}, 1'); c.op(f's_lshl_b32 s{sT1}, s{sT1}, 1'); c.op(f's_add_u32 s{sT0}, s{sT0}, s{sT1}')
        c.op(f's_lshr_b32 s{sT1}, s{sT0}, 2'); c.op(f's_mul_i32 s{sT1}, s{sT1}, 20480')
        c.op(f's_bfe_u32 s{sT2}, s{sT0}, 0x10001'); c.op(f's_mul_i32 s{sT2}, s{sT2}, 9216'); c.op(f's_add_u32 s{sT1}, s{sT1}, s{sT2}')
        c.op(f's_and_b32 s{sT0}, s{sT0}, 1'); c.op(f's_lshl_b32 s{sT0}, s{sT0}, 3')
        c.op(f's_add_u32 s{sT0}, s{sT0}, s{sT1}'); c.op(f's_add_u32 s{sT0}, s{sT0}, 61440')
        c.op(f'v_add_u32 v{vOW[t]}, s{sT0}, v{vPA}')
    c.op(f's_lshl_b32 s{sT0}, s{sB}, 3'); c.op(f's_add_u32 s{sT0}, s{sT0}, s{sX}'); c.op(f's_lshl_b32 s{sT0}, s{sT0}, 7'); c.op(f's_add_u32 s{sT0}, s{sT0}, {FLAG_OFF + 4096}')
    c.op(f's_add_u32 s{sF1}, s12, s{sT0}'); c.op(f's_addc_u32 s{sF1+1}, s13, 0')
    c.op(f's_lshl_b32 s{sT0}, s{sLOC}, 7'); c.op(f's_add_u32 s{sT0}, s{sT0}, {FLAG_OFF + 16384}')
    c.op(f's_add_u32 s{sF2}, s12, s{sT0}'); c.op(f's_addc_u32 s{sF2+1}, s13, 0')
    c.op(f's_mul_i32 s{sT0}, s{sLOC}, {8 * PART2}'); c.op(f's_add_u32 s{sT0}, s{sT0}, {WS_PART}')
    srd(c, SPR, 12, 13, f's{sT0}', 8 * PART2)
    c.op(f's_mul_i32 s{sT1}, s{sX}, {PART2}'); c.op(f's_add_u32 s{sT0}, s{sT0}, s{sT1}')
    srd(c, SP, 12, 13, f's{sT0}', PART2)
    srd(c, SOUT, 54, 55, None, 1474560)
    out = []; i = 0; ops = c.ops
    while i < len(ops):
        if i + 1 < len(ops) and ops[i + 1].startswith('s_addc'):
            a, b = ops[i], ops[i + 1]
            out.append(lambda a=a, b=b: (EM[0].op(a), EM[0].op(b))); i += 2
        else:
            out.append(ops[i]); i += 1
    return out
EM = [None]

def tail_dma(em, s, orole=False):
    ops = []
    sc = ' sc1' if (orole and cfg.sc_ol) else ''
    for j in range(5):
        def f(j=j):
            em.op(f's_add_u32 m0, s{sM0T}, {(s % 3) * 20480 + j * 1024}')
            if j == 0:
                if cfg.direct:
                    peer, ch = (0, s) if s < 3 else (1 + (s - 3) % 3, (s - 3) // 3)
                    em.op(f's_add_u32 s{sOFF}, s{sCH + ch}, s{sHB + peer}')
                elif cfg.chunk and s >= 3:
                    ch = (s - 3) // 3
                    if ch == 0: em.op(f's_mov_b32 s{sOFF}, s{sHB + 1 + (s - 3) % 3}')
                    else:
                        em.op(f's_lshl_b32 s{sOFF}, s{sSTR}, {ch - 1}')
                        em.op(f's_add_u32 s{sOFF}, s{sOFF}, s{sHB + 1 + (s - 3) % 3}')
                elif s % 3 == 0: em.op(f's_mov_b32 s{sOFF}, s{sHB + s // 3}')
                else: em.op(f's_add_u32 s{sOFF}, s{sOFF}, s{sSTR}')
            em.op(f'buffer_load_dwordx4 v{vOFFS[j]}, {sr(SD,4)}, s{sOFF} offen{sc} lds', tag=f'T{s}')
        ops.append(f)
    return ops

def flag_store(em, base, idx_s, lab, wave, off=0):
    t0, t1 = 60, 61
    em.op(f's_cmp_eq_u32 s{sW}, {wave}')
    em.op(f's_cbranch_scc0 {lab}')
    em.begin_opt()
    em.op(f's_lshl_b32 s{sT0}, s{idx_s}, 2')
    em.op(f'v_mov_b32 v{t0}, s{sT0}')
    em.op(f'v_mov_b32 v{t1}, s{sTAG}')
    em.op('s_mov_b64 exec, 1')
    em.op(f'global_store_dword v{t0}, v{t1}, s[{base}:{base+1}] offset:{off} sc1')
    em.op('s_mov_b64 exec, -1')
    em.end_opt()
    em.label(lab)

vPL0, vPL1 = 62, 63
def poll(em, base, mask, lab, off=0, keep=False):
    em.op(f'v_and_b32 v{vPL0}, {mask}, v{vLANE}')
    em.op(f'v_lshlrev_b32 v{vPL0}, 2, v{vPL0}')
    em.op(f's_mov_b32 s{sCNT}, 0x20000')
    if not keep: em.wait_vm0()
    em.label(lab)
    em.op(f'global_load_dword v{vPL1}, v{vPL0}, s[{base}:{base+1}] offset:{off} sc1')
    em.op(f's_sub_u32 s{sCNT}, s{sCNT}, 1')
    em.op(f's_cbranch_scc1 {lab}_done')
    em.wait_vm0()
    em.op(f'v_cmp_ne_u32 vcc, s{sTAG}, v{vPL1}')
    em.op('s_nop 4')
    em.op(f's_cbranch_vccz {lab}_done')
    em.op('s_sleep 1')
    em.op(f's_branch {lab}')
    em.label(f'{lab}_done')
    em.wait_vm0()

def tail(em, tv):
    nt, nq = [(3, 5), (3, 4), (2, 4), (2, 5)][tv]
    orole = tv >= 2
    L = f'v{vLANE}'
    rf = cfg.rfrac / 100
    sc = ' sc1' if cfg.sc else ''
    ACC2 = 116; AF = [76, 88]; BF = [16, 36]; CO = 176
    t0, t1, t2, t3 = 56, 57, 58, 59
    sDONE = sT3
    em.op(f'v_lshlrev_b32 v{t0}, 4, v0')
    em.op(f'v_add_u32 v{t1}, 61440, v{t0}')
    npc = 3 if tv == 0 else 2
    k = 0; sts = []
    for c in ((2,) if cfg.direct else range(3)):
        for i in range(npc):
            em.op(f'ds_read_b128 {vr(CO + 4*k)}, v{t1} offset:{c * 20480 + i * 8192}')
            sts.append((CO + 4*k, c * 18432 + i * 8192)); k += 1
    def reads(s, step, st_):
        ops = []
        for t in range(nt):
            ops.append(f'ds_read_b64_tr_b16 {vr(AF[st_] + 4*t, 2)}, v{vA2[t]} offset:{(s % 3) * 20480 + step * 10240}')
            ops.append(f'ds_read_b64_tr_b16 {vr(AF[st_] + 4*t + 2, 2)}, v{vA2[t]} offset:{(s % 3) * 20480 + step * 10240 + 5120}')
        xs = [f'ds_read_b128 {vr(BF[st_] + 4*j)}, v{vB2} offset:{(s % 3) * 20480 + step * 9216 + j * 1024}' for j in range(nq)]
        return ops[0:2] + xs[0:1] + ops[2:] + xs[1:]
    def acc(t, j): return ACC2 + 4 * (j * nt + t)
    def mf(st_, first):
        return [mfma(acc(t, j), AF[st_] + 4*t, BF[st_] + 4*j, None if first else acc(t, j)) for j in range(nq) for t in range(nt)]
    for r, off in sts:
        em.op(f's_mov_b32 s{sT0}, {off}')
        em.op(f'buffer_store_dwordx4 {vr(r)}, v{t0}, {sr(SO,4)}, s{sT0} offen' + ['', ' sc1', ' nt', ' sc0'][cfg.sc_o], tag='CO0' if off < 18432 else 'CO1')
    for o in reads(0, 0, 0): em.op(o)
    em.op(f'v_lshlrev_b32 v{t1}, 4, {L}')
    em.op(f's_and_b32 s{sT1}, s{sW}, 1')
    em.op(f's_add_u32 s{sT2}, s{sT1}, {2 if orole else 0}'); em.op(f's_mul_i32 s{sT2}, s{sT2}, 9'); em.op(f's_add_u32 s{sT2}, s{sT2}, s{sQ0}'); em.op(f's_lshl_b32 s{sT2}, s{sT2}, 10')
    em.op(f'v_add_u32 v{t2}, s{sT2}, v{t1}')
    em.op(f's_mul_i32 s{sT1}, s{sT1}, 5120'); em.op(f's_add_u32 s{sT1}, s{sT1}, {(36 + (3 if tv == 1 else 0)) * 1024}')
    em.op(f'v_add_u32 v{t3}, s{sT1}, v{t1}')
    def pack(a, b):
        o = [f'v_cvt_pk_bf16_f32 v{a}, v{a}, v{a+1}', f'v_cvt_pk_bf16_f32 v{a+1}, v{a+2}, v{a+3}']
        if b is not None: o += [f'v_cvt_pk_bf16_f32 v{a+2}, v{b}, v{b+1}', f'v_cvt_pk_bf16_f32 v{a+3}, v{b+2}, v{b+3}']
        return o
    def st(a, va, off):
        def f():
            em.op(f's_mov_b32 s{sT0}, {off}')
            em.op(f'buffer_store_dwordx4 {vr(a)}, v{va}, {sr(SP,4)}, s{sT0} offen{sc}')
        return f
    carry = []
    for s in range(12):
        if s == 1 and orole and cfg.epoll:
            em.op(f'global_load_dword v{vPL1}, v{vPL0}, s[{sF1}:{sF1+1}] sc1')
        if cfg.onew and s > 0: em.wait_lgkm0()
        interleave(em, mf(0, s == 0), (reads(s, 1, 1), 0, rf), (carry, 0.05, 0.95))
        if s == 1 and orole and cfg.epoll:
            em.op(f'v_cmp_ne_u32 vcc, s{sTAG}, v{vPL1}')
            em.op('s_nop 4')
            em.op(f's_cbranch_vccnz L_np{tv}')
            em.begin_opt()
            for f in tail_dma(em, 3, True): f()
            em.op(f's_mov_b32 s{sDONE}, 1')
            em.end_opt()
            em.label(f'L_np{tv}')
        carry = []
        if s < 11:
            if s == 0 and cfg.chunk: em.wait_vm_tag('CO0', lgkm0=True)
            elif s == 0: em.wait_vm0(); em.wait_lgkm0()
            elif s == cfg.chunk and cfg.chunk:
                em.wait_vm_tag('CO1'); em.wait_vm_tag(f'T{s+1}', lgkm0=True)
            else: em.wait_vm_tag(f'T{s+1}', lgkm0=True)
            em.barrier()
            em.st.stamp(f'T{s}')
        if s == 0 and tv == 2: flag_store(em, sF1, sJ, 'L_f1', 4)
        if cfg.chunk and s == cfg.chunk and tv == 3: flag_store(em, sF1, sJ, 'L_f1b', 6, 16)
        if cfg.chunk and s == (5 if cfg.direct else 2) and orole: em.op(f'global_load_dword v{vPL1}, v{vPL0}, s[{sF1}:{sF1+1}] offset:16 sc1')
        if cfg.chunk and s == (6 if cfg.direct else 3) and orole:
            em.op(f'v_cmp_ne_u32 vcc, s{sTAG}, v{vPL1}')
            em.op('s_nop 4')
            em.op(f's_cbranch_vccz L_p1c_{tv}')
            keep = em.save()[2]
            em.begin_opt()
            poll(em, sF1, 3, f'L_p1b_{tv}', 16, keep=True)
            em.end_opt()
            em.vm = keep
            em.label(f'L_p1c_{tv}')
        fill = []; dm = []
        if s < 11: fill += reads(s + 1, 0, 0)
        if s == 0 and orole and cfg.epoll:
            em.op(f's_mov_b32 s{sDONE}, 0')
            em.op(f'v_and_b32 v{vPL0}, 3, {L}'); em.op(f'v_lshlrev_b32 v{vPL0}, 2, v{vPL0}')
        if s + 3 <= 11:
            if not orole or s >= 2:
                dm = tail_dma(em, s + 3, orole); dm, carry = dm[:3], dm[3:]
            elif s == 1:
                if cfg.epoll:
                    em.op(f's_cmp_eq_u32 s{sDONE}, 1')
                    em.op(f's_cbranch_scc1 L_ep{tv}')
                    vm_before = em.save()[2]
                    em.begin_opt()
                poll(em, sF1, 3, f'L_p1_{tv}')
                for f in tail_dma(em, 3, True): f()
                if cfg.epoll:
                    em.end_opt()
                    em.label(f'L_ep{tv}')
                dm = tail_dma(em, 4, True)
        ins = []
        n = nt * nq
        if s == 11:
            groups = []
            for j in range(nq):
                groups.append((j * nt + 1, pack(acc(0, j), acc(1, j)) + [st(acc(0, j), t2, j * 1024)]))
                if nt == 3 and (j % 2 == 1 or j == nq - 1):
                    j0 = j - (j % 2)
                    groups.append((j * nt + 2, pack(acc(2, j0), acc(2, j) if j != j0 else None) + [st(acc(2, j0), t3, (j0 // 2) * 1024)]))
            lag = 4
            ins = [(g, (p + lag + 0.5) / n, (p + lag + 0.5) / n) for p, g in groups if p + lag < n]
            restg = [g for p, g in groups if p + lag >= n]
        interleave(em, mf(1, False), (dm, 0.05, 0.95), (fill, 0, rf), *ins)
    for g in restg:
        for o in g: emit(em, o)
    em.st.stamp('TP')
    sU, sDL = sT3, sT4
    if tv < 3:
        em.op(f's_lshl_b32 s{sU}, s{sW}, 3'); em.op(f's_add_u32 s{sU}, s{sU}, s{sX}')
        em.op(f's_lshl_b32 s{sT0}, s{sU}, 10')
        em.op(f'v_add_u32 v{t2}, s{sT0}, v{t1}')
        em.op(f's_mul_i32 s{sT0}, s{sU}, 57'); em.op(f's_lshr_b32 s{sT0}, s{sT0}, 9')
        em.op(f's_mul_i32 s{sT1}, s{sT0}, 9'); em.op(f's_sub_u32 s{sT1}, s{sU}, s{sT1}')
        em.op(f's_lshl_b32 s{sT0}, s{sT0}, 2'); em.op(f's_lshr_b32 s{sT0}, 0x8630, s{sT0}'); em.op(f's_and_b32 s{sT0}, s{sT0}, 15')
        em.op(f's_mov_b32 s{sDL}, 32')
        em.op(f's_cmp_lt_u32 s{sU}, 36')
        em.op(f's_cbranch_scc1 L_dec{tv}')
        em.begin_opt()
        em.op(f's_cmp_ge_u32 s{sU}, 41')
        em.op(f's_cselect_b32 s{sT0}, 5, 2')
        em.op(f's_cselect_b32 s{sT1}, 41, 36')
        em.op(f's_sub_u32 s{sT1}, s{sU}, s{sT1}')
        em.op(f's_cmp_eq_u32 s{sT1}, 2')
        em.op(f's_mov_b32 s{sDL}, 20480')
        em.op(f's_cselect_b32 s{sDL}, 0x40000000, s{sDL}')
        em.op(f's_lshl_b32 s{sT1}, s{sT1}, 2'); em.op(f's_lshr_b32 s{sT1}, 0x75420, s{sT1}'); em.op(f's_and_b32 s{sT1}, s{sT1}, 15')
        em.end_opt()
        em.label(f'L_dec{tv}')
        em.op(f's_lshl_b32 s{sT1}, s{sT1}, 4'); em.op(f's_mul_i32 s{sT2}, s{sB}, 144'); em.op(f's_add_u32 s{sT1}, s{sT1}, s{sT2}'); em.op(f's_mul_i32 s{sT1}, s{sT1}, 1280')
        em.op(f's_lshl_b32 s{sT0}, s{sT0}, 5'); em.op(f's_add_u32 s{sT1}, s{sT1}, s{sT0}')
        em.op(f's_mul_i32 s{sT0}, s{sJ}, 320'); em.op(f's_add_u32 s{sT1}, s{sT1}, s{sT0}')
        em.op(f'v_and_b32 v{t3}, 15, {L}'); em.op(f'v_mul_u32_u24 v{t3}, 1280, v{t3}')
        em.op(f'v_lshrrev_b32 v{t0}, 4, {L}'); em.op(f'v_lshl_add_u32 v{t3}, v{t0}, 3, v{t3}')
        em.op(f'v_add_u32 v{t3}, s{sT1}, v{t3}')
    em.wait_vm0(); em.barrier()
    em.st.stamp('TW')
    if tv == 3:
        flag_store(em, sF2, sX, 'L_f2', 7)
    else:
        if tv == 2:
            em.op(f's_cmp_ge_u32 s{sU}, 46')
            em.op(f's_cbranch_scc1 L_fin2')
        poll(em, sF2, 7, f'L_p2_{tv}')
        em.st.stamp('TF')
        for x in range(8):
            em.op(f's_mov_b32 s{sT0}, {x * PART2}')
            em.op(f'buffer_load_dwordx4 {vr(76 + 4*x)}, v{t2}, {sr(SPR,4)}, s{sT0} offen{sc}')
        if tv == 0:
            em.op(f's_or_b32 s{sT0}, s{sH}, s{sW}')
            em.op(f's_cmp_eq_u32 s{sT0}, 0')
            em.op('s_cbranch_scc0 L_nw')
            em.begin_opt()
            em.op(f's_lshl_b32 s{sT0}, s{sB}, 8'); em.op(f's_add_u32 s{sT0}, s{sT0}, {FLAG_OFF}')
            em.op(f'v_mov_b32 v60, s{sT0}'); em.op(f'v_mov_b32 v61, s{sTAG}')
            em.op('s_mov_b64 exec, 1')
            em.op('global_store_dword v60, v61, s[12:13]' + (' sc1' if cfg.osc in (1, 3) else ''))
            em.op('s_mov_b64 exec, -1')
            em.end_opt()
            em.label('L_nw')
        A = 108
        for x in range(8):
            for d in range(4):
                r = 76 + 4*x + d
                if x == 0:
                    em.op(f'v_lshlrev_b32 v{A+2*d}, 16, v{r}'); em.op(f'v_and_b32 v{A+2*d+1}, 0xffff0000, v{r}')
                else:
                    tp = A + 8 + 2 * (d & 1)
                    em.op(f'v_lshlrev_b32 v{tp}, 16, v{r}'); em.op(f'v_and_b32 v{tp+1}, 0xffff0000, v{r}')
                    em.op(f'v_pk_add_f32 {vr(A+2*d,2)}, {vr(A+2*d,2)}, {vr(tp,2)}')
        for d in range(4): em.op(f'v_cvt_pk_bf16_f32 v{A+d}, v{A+2*d}, v{A+2*d+1}')
        em.op(f'buffer_store_dwordx2 {vr(A,2)}, v{t3}, {sr(SOUT,4)}, 0 offen' + ['', ' sc1', ' nt', ' sc0 sc1'][cfg.osc])
        em.op(f'buffer_store_dwordx2 {vr(A+2,2)}, v{t3}, {sr(SOUT,4)}, s{sDL} offen' + ['', ' sc1', ' nt', ' sc0 sc1'][cfg.osc])
        if tv == 2: em.label('L_fin2')
    if cfg.diag: em.wait_vm0()
    em.st.flush(12, 0, sW, 244)
    em.op('s_endpgm')

def kernel_header(name):
    return f'.globl {name}\n.p2align 8\n.type {name},@function\n{name}:\n'
def kernel_desc(name, vgpr, sgpr=102):
    return f'''.amdhsa_kernel {name}
  .amdhsa_next_free_vgpr {vgpr}
  .amdhsa_next_free_sgpr {sgpr}
  .amdhsa_accum_offset {(vgpr + 3) // 4 * 4}
  .amdhsa_group_segment_fixed_size 0
  .amdhsa_kernarg_size 64
  .amdhsa_user_sgpr_count 2
  .amdhsa_user_sgpr_kernarg_segment_ptr 1
  .amdhsa_system_sgpr_workgroup_id_x 1
.end_amdhsa_kernel
'''

def gen_k1():
    em = Em(); EM[0] = em
    k1_prologue(em)
    st0 = em.save()
    em.label('k1_body_start')
    for qh in range(2):
        sts = []
        for typ in ((1, 0) if cfg.n0 else (0,)):
            if qh or typ == 0 and cfg.n0: em.label(f'L_qp{qh}{typ}')
            em.restore(st0)
            em.typ = typ
            k1_qproj(em, qh, typ)
            k1_qk(em, qh)
            sts.append(em.save())
            if typ == 1: em.op(f's_branch L_sm{qh}')
        if len(sts) == 2:
            t = [[e[0] for e in s[2]] for s in sts]
            lo, hi = sorted(range(2), key=lambda i: len(t[i]))
            assert t[hi][len(t[hi]) - len(t[lo]):] == t[lo], t
            em.restore(sts[hi]); em.hist = []
            em.label(f'L_sm{qh}')
        k1_sm0(em, qh)
        k1_pv(em, qh)
    em.label('k1_body_end')
    em.label('L_k1_exit')
    em.op('s_endpgm')
    return em

def main():
    ref = open('cdna_kernels/' + NAME + '.s.ref').read().split('\n')
    head = [l for l in ref[:9]]
    k1 = gen_k1()
    KN = NAME + '_kernel'
    out = '\n'.join(head) + '\n'
    out += f'; @launch grid=(256,1,1) block=(512,1,1) lds={LDS1}\n'
    out += '.amdgcn_target "amdgcn-amd-amdhsa--gfx950"\n.text\n'
    out += kernel_header(KN) + k1.text()
    out += '.section .rodata,"a"\n.p2align 6\n' + kernel_desc(KN, 256)
    open(sys.argv[1], 'w').write(out)
    print('k1 instrs', k1.count, 'nops', k1.nops, file=sys.stderr)
main()
```

```python
import sys, struct, math
from em import Em, interleave, emit

NAME = 'standalone__gqa_block_cached__near_ridge'
def fbits(x): return struct.unpack('<I', struct.pack('<f', x))[0]

class Cfg:
    nt_kv = True
    nt_w = False
    nt_k2 = False
    two_types = True
    pre = True
    code_pre = True
    diag = False
    pk = True
    rfrac = 60
    prio = 0
    x_noexp = 0
    x_nopw = 0
    efrac = 95
    loopb = -1
    st = 0
    dbg = 0
    n0 = 1
    inpv0 = 0
    inpv1 = 0
    pfa = 5
    kq = 12
    kq0 = 7
    wont = 0
    vrf = 60
    x_ren = 0
    vrole = 1
    vfirst = 0
    vold = 0
    vh0 = 12
    wsoff = 0
    cearly = 1
    osc = 0
    spin = 0
    spst = -1
    spty = -1
    direct = 1
    chunk = 1
    onew = 1
    qlate = 0
    drole = 0
    in0 = 0
    in1 = 0
    epoll = 1
    pfx = 5
    opair = 1
    tsq = 1
    g2e = 0
    wo0 = 1
    pfnt = 0
    pfown = 10
    pfall = 1
    nt_k = 1
    nt_v = 1
    eager = 3
    eagerv = 0
    qwi = 1
    g2lo = 0
    g2hi = 30
    valo = 0
    vahi = 60
    pf1 = 10
    v0e = 0
    kqb = 0
    kqb0 = 7
    vb = 0
    vreg = 0
    nvy = 4
    sc_o = 1
    sc_ol = 1
    rt = 0
    qloop = 0
    x_qnodma = 0
    x_qnord = 0
    dlo = 10
    dhi = 95
    dsplit = 3
    x_delay = 0
    wopre = 1
    sc = 1
    x_nobar = 0
    x_nord = 0
    x_nodma = 0
cfg = Cfg()
cfg.pvst = (3,7); cfg.qst = (0,8,)
if 'pvall=1' in sys.argv: sys.argv.remove('pvall=1'); cfg.pvst = (0,1,2,3,4,5,6,7); cfg.qst = (); cfg.fewst = True
else: cfg.fewst = False
for a in sys.argv[2:]:
    k, v = a.split('='); setattr(cfg, k, type(getattr(cfg, k))(int(v)))
STSETS = {0: 'S0 BQ PV0 BO T2 TW', 1: 'ka pi si S0 B0 B8 BQ K0 K1 QKend BM exp0 PV0', 2: 'PV0 PB0 PB1 PB2 PB3 PB4 PB5 PB6', 9: 'BM exp0 PV0 PB3 PB6 PB7 BO T0', 3: 'BO T0 T1 T2 TW TF', 4: 'K0 K1 QKend BM exp0 PV0 PB3 PB7 BO T0', 8: '', 5: 'S0 LB0 LBend BQ', 6: 'S0 B0 B1 B2 B3 B5 B7 B8 B9 BQ', 7: 'BO T0 T1 T2 T3 T4 T6 T8 T10 TP'}
cfg.stlist = ['rt0', 'start'] + STSETS[cfg.st].split()[:6] + ['end', 'rt_end']
cfg.pvst = range(8); cfg.qst = range(10)
cfg.types = bool(cfg.n0)

def vr(b, n=4): return f'v[{b}:{b + n - 1}]' if n > 1 else f'v{b}'
def sr(b, n): return f's[{b}:{b + n - 1}]'
MF = 'v_mfma_f32_16x16x32_bf16'
def mfma(d, a, b, c=None):
    return f'{MF} {vr(d)}, {vr(a)}, {vr(b)}, ' + ('0' if c is None else vr(c))

FLAG_OFF = 28 << 20
PART2 = 47104
O_HEAD = 55296
WS_PART = 16 << 20
PART_TILE = 90 * 1024

def srd(em, d, base_lo, base_hi, off_sgpr, size):
    if off_sgpr is None:
        em.op(f's_mov_b32 s{d}, s{base_lo}'); em.op(f's_mov_b32 s{d+1}, s{base_hi}')
    else:
        em.op(f's_add_u32 s{d}, s{base_lo}, {off_sgpr}'); em.op(f's_addc_u32 s{d+1}, s{base_hi}, 0')
    em.op(f's_mov_b32 s{d+2}, {size}')
    em.op(f's_mov_b32 s{d+3}, 0x20000')

_lab = [0]
DIAG_OFF = 64 << 20
class Stamps:
    def __init__(self, em):
        self.em = em; self.n = 0; self.names = []
        if cfg.diag:
            for i in range(len(cfg.stlist)): em.op(f's_mov_b32 s{60 + 2*i}, 0')
    def stamp(self, name, real=False):
        if cfg.spin:
            L = ['S0', 'BQ', 'BM', 'PV0', 'BO', 'T2', 'TW', 'TF']
            if name == 'rt0' or (cfg.spst >= 0 and name == L[cfg.spst]):
                r = 76 if name == 'rt0' else 78
                self.em.wait_lgkm0()
                self.em.op(f's_memrealtime s[{r}:{r+1}]'); self.em.op('s_waitcnt lgkmcnt(0)')
                if name == 'rt0': self.em.op('s_mov_b32 s78, s76')
            return
        if not cfg.diag or name not in cfg.stlist: return
        em = self.em; i = cfg.stlist.index(name)
        em.wait_lgkm0()
        em.op(('s_memrealtime' if (real or cfg.rt) else 's_memtime') + f' s[{60 + 2*i}:{61 + 2*i}]')
        em.op('s_waitcnt lgkmcnt(0)')
    def flush(self, ws_lo, kidx, wave_s, tv):
        if cfg.spin:
            em = self.em; _lab[0] += 1
            if cfg.spty >= 0:
                em.op(f's_cmp_eq_u32 s39, {cfg.spty}'); em.op('s_cselect_b32 s78, s78, s76')
            em.op('s_sub_u32 s78, s78, s76'); em.op(f's_add_u32 s78, s78, {cfg.spin}')
            em.label(f'L_sp{_lab[0]}')
            em.op('s_sleep 2')
            em.op('s_memrealtime s[74:75]'); em.op('s_waitcnt lgkmcnt(0)')
            em.op('s_sub_u32 s74, s74, s76'); em.op('s_cmp_lt_u32 s74, s78'); em.op(f's_cbranch_scc1 L_sp{_lab[0]}')
            return
        if not cfg.diag: return
        em = self.em
        self.stamp('end'); self.stamp('rt_end', real=True)
        if cfg.dbg:
            _lab[0] += 1
            em.op('s_load_dwordx2 s[56:57], s[0:1], 48')
            em.op(f's_and_b32 s58, s2, 0xdf'); em.op(f's_or_b32 s58, s58, s{wave_s}'); em.op('s_cmp_eq_u32 s58, 0')
            em.op('s_waitcnt lgkmcnt(0)')
            em.op(f's_cbranch_scc0 L_dbg{_lab[0]}')
            em.op(f'v_mov_b32 v{tv}, s2')
            for k, i in enumerate([2, 3, 4, 13, 6, 9, 11, 12]):
                em.op(f's_sub_u32 s58, s{60 + 2*i}, s{60 if i == 13 else 62}')
                em.op(f'v_mov_b32 v{tv+1}, s58')
                em.op(f'global_store_dword v{tv}, v{tv+1}, s[56:57] offset:{4*k}')
            em.label(f'L_dbg{_lab[0]}')
            return
        em.op(f's_lshl_b32 s56, s2, 3'); em.op(f's_add_u32 s56, s56, s{wave_s}'); em.op('s_lshl_b32 s56, s56, 7')
        em.op(f's_add_u32 s56, s56, {DIAG_OFF + (kidx << 20)}')
        em.op(f's_add_u32 s56, s{ws_lo}, s56'); em.op(f's_addc_u32 s57, s{ws_lo+1}, 0')
        em.op(f'v_mov_b32 v{tv}, 0')
        for i in range(len(cfg.stlist)):
            em.op(f'v_mov_b32 v{tv+1}, s{60 + 2*i}')
            em.op(f'global_store_dword v{tv}, v{tv+1}, s[56:57] offset:{4*i}')
        print('stamps', kidx, cfg.stlist, file=sys.stderr)

SX, SWQ, SK, SV, SO = 16, 20, 24, 28, 32
sW, sW3072, sW1024, sTYPE, sOFF, sT0, sT1, sT2, sC, sB, sH, sJ, sLOC, sX = 36, 37, 38, 39, 40, 41, 42, 43, 44, 52, 46, 47, 48, 53
vLANE, vXO, vWO, vK0, vK1, vVO = 1, 2, 3, 4, 5, 6
vRA = [7, 8]
vRB = [9, 10, 11]
vRC = [12, 13, 14]
vT = 15
vOW = [8, 254, 255]
vVW, vVW2 = 7, 8
vPA, vPW, vMS = 240, 242, 243
vPW2 = 241
TMP = list(range(244, 256))
STG = 43008
PBASE, VBASE, MAXB, SUMB = 0, 55296, 153600, 155648
NV = 4
def vslot(s): return [3, 1, 2, 0][s % 4]
LDS1 = SUMB + 12 * 512
def kop(kt, ks): return 16 + 4 * (kt * 6 + ks)
def sreg(kt, qt):
    if kt < 2: return 116 + 4 * (qt * 2 + kt)
    i = qt * 2 + (kt - 2)
    return 16 + 4 * i if i < 12 else 188 + 4 * (i - 12)
ACC = 116
MC = 212
SUM = 221
SUMP = 222
QF = 224
OACC0 = [116 + 4*i for i in range(15)]
OACC1 = [120 + 8*i for i in range(9)] + [100, 80, 208]
PAF0 = [[176, 180, 184], [104, 108, 112]]
PAF1 = [[200, 192, 60], [104, 108, 112]]
PBF0 = [[64, 68, 72, 76, 80], [84, 88, 92, 96, 100]]
PBF1 = [[64, 68, 72, 76], [84, 88, 92, 96]]
INV0 = 212
NEXP1 = 4


sKB = 57
vKR = [250, 251]
vVO3 = 252
def k_dma_ops(em, half):
    nt = ' nt' if cfg.nt_kv and cfg.nt_k else ''
    ops = []
    for c in range(3):
        for k in range(2):
            for p in range(2):
                def f(c=c, k=k, p=p):
                    em.op(f's_add_u32 m0, s{sKB}, {(k * 3 + c) * 2048 + p * 1024 - c * 128}')
                    em.op(f's_mov_b32 s{sOFF}, {(half * 2 + k) * 6144}')
                    em.op(f'buffer_load_dwordx4 v{vK1 if p else vK0}, {sr(SK,4)}, s{sOFF} offen offset:{c*128}{nt} lds', tag=f'K{half}_{c * 2 + k}')
                ops.append(f)
    return ops
def k_rd_ops(half, u):
    c, k = divmod(u, 2)
    return [f'ds_read_b128 {vr(kop(half * 2 + k, 2 * c + e))}, v{vKR[e]} offset:{(k * 3 + c) * 2048}' for e in range(2)]
def k_fetch(em, half, nxt):
    for u in range(6):
        em.wait_vm_tag(f'K{half}_{u}')
        for o in k_rd_ops(half, u): em.op(o)
        if nxt and u:
            em.waitcnt(lgkm=2); em.lgkm = em.lgkm[-2:]
            for f in nxt[2 * u - 2: 2 * u]: f()
    if nxt:
        em.wait_lgkm0()
        for f in nxt[10:12]: f()
def va_ops(em):
    nt = ' nt' if cfg.nt_kv and cfg.nt_v else ''
    ops = []
    for rg in range(4):
        for c in range(3):
            def f(c=c, rg=rg):
                em.op(f's_add_u32 m0, s{sKB}, {rg * 3072 + c * 896}')
                em.op(f's_mov_b32 s{sOFF}, {rg * 3072}')
                em.op(f'buffer_load_dwordx4 v{vVO3}, {sr(SV,4)}, s{sOFF} offen offset:{c*128}{nt} lds', tag='VA')
            ops.append(f)
    return ops

def stage_dma_ops(em, s, qh):
    nt = ' nt' if cfg.nt_w else ''
    slot = (s % 3) * 18432
    ops = []
    for c in range(3):
        def f(c=c):
            em.op(f's_add_u32 m0, s{sW3072}, {VBASE + (s % 3) * 24576 + c * 896}')
            if c == 0: em.op(f's_mov_b32 s{sOFF2}, {s * 786432}')
            em.op(f'buffer_load_dwordx4 v{vWO}, {sr(SWQ,4)}, s{sOFF2} offen offset:{c*128}{nt} lds', tag=f'S{s}')
        ops.append(f)
    for j in range(2):
        def f(j=j):
            em.op(f's_add_u32 m0, s{sW1024}, {slot + j * 8192}')
            em.op(f's_mov_b32 s{sOFF}, {s * 128 + j * 81920}')
            em.op(f'buffer_load_dwordx4 v{vXO}, {sr(SX,4)}, s{sOFF} offen{nt} lds', tag=f'S{s}')
        ops.append(f)
    if qh == 1:
        def f():
            _lab[0] += 1
            lab = f'L_x{_lab[0]}'
            em.op(f's_cmp_lt_u32 s{sW}, 6')
            em.op(f's_cbranch_scc0 {lab}')
            em.begin_opt()
            em.op(f's_add_u32 m0, s{sW1024}, {slot + 12288}')
            em.op(f's_mov_b32 s{sOFF}, {s * 128 + 122880}')
            em.op(f'buffer_load_dwordx4 v{vXO}, {sr(SX,4)}, s{sOFF} offen{nt} lds', tag=f'S{s}')
            em.end_opt()
            em.label(lab)
        ops.insert(0, f)
    return ops

def v_dma_ops(em, s):
    nt = ' nt' if cfg.nt_kv and cfg.nt_v else ''
    ops = []
    for c in range(3):
        def f(c=c):
            em.op(f's_add_u32 m0, s{sW3072}, {VBASE + vslot(s) * 24576 + c * 896}')
            em.op(f's_mov_b32 s{sOFF}, {(128 * (s & 3) + 32 * (s >> 2)) * 384}')
            em.op(f'buffer_load_dwordx4 v{vVO}, {sr(SV,4)}, s{sOFF} offen offset:{c*128}{nt} lds', tag=f'V{s}')
        ops.append(f)
    return ops

sDG = 49
sPFS, sPFB = 45, 50
sOFF2 = 3
vPF = 241
def pf_ops():
    if not cfg.pre: return []
    nt = ' nt' if cfg.nt_w else ''
    return [f'global_load_dwordx4 {vr(112)}, v{vPF}, s[{sPFB}:{sPFB+1}]{nt}', f'v_add_u32 v{vPF}, s{sPFS}, v{vPF}']
sTAG, sSTR, sF1, sF2, sHB, sM0T, sQ0, sNH, sCNT = 88, 89, 90, 92, 94, 98, 99, 100, 101
VST = 64
def v_reg_ops(em):
    nt = ' nt' if cfg.nt_kv and cfg.nt_v else ''
    ops = []
    for s in range(4, 8):
        for c in range(3):
            def f(s=s, c=c):
                em.op(f's_mov_b32 s{sOFF}, {(128 * (s & 3) + 32 * (s >> 2)) * 384}')
                em.op(f'buffer_load_dwordx4 {vr(VST + 4 * ((s - 4) * 3 + c))}, v{vVO}, {sr(SV,4)}, s{sOFF} offen offset:{c*128}{nt}', tag=f'V{s}')
            ops.append(f)
    return ops
def v_put_ops(s):
    slot = vslot(s)
    return [f'ds_write_b128 v{vVW if slot < 2 else vVW2}, {vr(VST + 4 * ((s - 4) * 3 + c))} offset:{(slot % 2) * 24576 + c * 1024}' for c in range(3)]

vPF2 = 254
VTMP = [248, 249, 253]
def pf2_ops():
    nt = ' nt' if cfg.nt_w else ''
    return [f'global_load_dwordx4 {vr(112)}, v{vPF2}, s[{sPFB}:{sPFB+1}]{nt}', f'v_add_u32 v{vPF2}, s{sPFS}, v{vPF2}']

def k1_prologue(em):
    em.op('s_cmp_ge_u32 s2, 256')
    em.op('s_cbranch_scc1 L_k1_exit')
    em.st = Stamps(em); em.st.stamp('rt0', real=True); em.st.stamp('start')
    em.op('s_load_dwordx8 s[4:11], s[0:1], 0')
    em.op('s_load_dwordx2 s[12:13], s[0:1], 56')
    em.op('s_load_dwordx2 s[14:15], s[0:1], 32')
    em.op('s_load_dwordx2 s[54:55], s[0:1], 40')
    em.op(f'v_and_b32 v{vLANE}, 63, v0')
    em.op(f'v_lshrrev_b32 v{vT}, 6, v0')
    em.op(f's_and_b32 s{sX}, s2, 7')
    em.op(f's_lshr_b32 s{sLOC}, s2, 3')
    em.op(f'v_readfirstlane_b32 s{sW}, v{vT}')
    t0, t1, t2, t3, t4, t5 = TMP[:6]
    L = f'v{vLANE}'
    em.op(f's_and_b32 s{sJ}, s{sLOC}, 3')
    em.op(f's_lshr_b32 s{sB}, s{sLOC}, 2')
    em.op(f's_lshl_b32 s{sH}, s{sX}, 2')
    em.op(f's_add_u32 s{sH}, s{sH}, s{sJ}')
    em.op(f's_and_b32 s{sTYPE}, s{sB}, 1')
    em.op(f's_lshl_b32 s{sT0}, s{sLOC}, 1'); em.op(f's_mul_i32 s{sT0}, s{sT0}, 12288'); em.op(f's_mul_i32 s{sT1}, s{sX}, 1536'); em.op(f's_add_u32 s{sT0}, s{sT0}, s{sT1}')
    em.op(f's_lshl_b32 s{sT1}, s{sW}, 9'); em.op(f's_add_u32 s{sT0}, s{sT0}, s{sT1}')
    em.op(f'v_lshrrev_b32 v{t3}, 5, {L}'); em.op(f'v_mul_u32_u24 v{t3}, 12288, v{t3}')
    em.op(f'v_and_b32 v{t4}, 31, {L}'); em.op(f'v_lshlrev_b32 v{t4}, 4, v{t4}')
    em.op(f'v_add3_u32 v{t5}, v{t3}, v{t4}, s{sT0}')
    em.op(f'v_lshrrev_b32 v{t0}, 3, {L}')
    em.op(f'v_and_b32 v{t1}, 7, {L}')
    em.op(f'v_lshrrev_b32 v{t2}, 4, {L}')
    em.op(f's_mul_i32 s{sT0}, s{sLOC}, 36'); em.op(f's_lshl_b32 s{sT2}, s{sW}, 3'); em.op(f's_add_u32 s{sT0}, s{sT0}, s{sT2}'); em.op(f's_sub_u32 s{sT0}, s{sT0}, 24')
    em.op(f'v_add_u32 v{t3}, s{sT0}, v{t0}')
    em.op(f's_cmp_lt_u32 s{sW}, 3')
    em.op(f's_cselect_b64 vcc, -1, 0')
    em.op(f's_movk_i32 s{sPFS}, 128')
    em.op(f's_cselect_b32 s{sPFS}, 786432, s{sPFS}')
    for dst, dr, dw in ((vPF, 0, 0), (vPF2, 144, 98304) if not cfg.pfall else (vPF2, -144 & 0xffffffff, -98304 & 0xffffffff)):
        if dst == vPF2 and cfg.pf1 >= 10 and not cfg.pfall: continue
        em.op(f'v_add_u32 v{t4}, {dr}, v{t3}'); em.op(f'v_min_u32 v{t4}, 1151, v{t4}')
        em.op(f'v_mul_u32_u24 v{t4}, 1280, v{t4}')
        em.op(f'v_lshl_add_u32 v{t4}, v{t1}, 4, v{t4}')
        em.op(f'v_add_u32 v{dst}, {dw}, v{t5}')
        em.op(f'v_cndmask_b32 v{dst}, v{t4}, v{dst}, vcc')
    if cfg.pf1 < 10:
        em.op(f's_mul_i32 s{sT0}, s{sPFS}, {cfg.pf1}'); em.op(f'v_add_u32 v{vPF2}, s{sT0}, v{vPF2}')
    em.op(f's_and_b32 s{sDG}, s{sW}, 3')
    em.op(f's_mul_i32 s{sW3072}, s{sW}, 3072')
    em.op(f's_lshl_b32 s{sW1024}, s{sW}, 10')
    em.op(f's_and_b32 s{sT0}, s{sW}, 1')
    em.op(f's_lshl_b32 s{sT1}, s{sT0}, 2')
    em.op(f'v_add_u32 v{t3}, s{sT1}, v{t2}')
    em.op(f'v_xor_b32 v{t3}, v{t3}, v{t1}')
    em.op(f'v_add_u32 v{t4}, s{sT2}, v{t0}')
    em.op(f'v_mul_u32_u24 v{vXO}, 1280, v{t4}')
    em.op(f'v_lshl_add_u32 v{vXO}, v{t3}, 4, v{vXO}')
    em.op(f'v_and_b32 v{t3}, 1, v{t2}')
    em.op(f'v_lshl_add_u32 v{t3}, v{t3}, 1, s{sT1}')
    em.op(f'v_xor_b32 v{t3}, v{t3}, v{t1}')
    em.op(f'v_mul_u32_u24 v{vWO}, 12288, v{t4}')
    em.op(f'v_lshl_add_u32 v{vWO}, v{t3}, 4, v{vWO}')
    em.op(f's_lshl_b32 s{sT2}, s{sW}, 6')
    em.op(f'v_add_u32 v{t4}, s{sT2}, v{t0}')
    em.op(f'v_mul_u32_u24 v{t4}, 384, v{t4}')
    em.op(f'v_xor_b32 v{t3}, v{t2}, v{t1}')
    em.op(f'v_lshl_add_u32 v{vK0}, v{t3}, 4, v{t4}')
    em.op(f'v_xor_b32 v{vK1}, 64, v{vK0}')
    em.op(f'v_add_u32 v{vK1}, {8 * 384}, v{vK1}')
    em.op(f'v_lshlrev_b32 v{t3}, 1, v{t2}')
    em.op(f'v_xor_b32 v{t3}, v{t3}, v{t1}')
    em.op(f'v_lshl_add_u32 v{vVO3}, v{t3}, 4, v{t4}')
    em.op(f's_and_b32 s{sT1}, s{sW}, 6'); em.op(f's_lshr_b32 s{sKB}, 0x27, s{sT1}'); em.op(f's_and_b32 s{sKB}, s{sKB}, 3')
    em.op(f's_lshl_b32 s{sKB}, s{sKB}, 1'); em.op(f's_add_u32 s{sKB}, s{sKB}, s{sT0}'); em.op(f's_mul_i32 s{sKB}, s{sKB}, 12288'); em.op(f's_add_u32 s{sKB}, s{sKB}, {VBASE}')
    em.op(f'v_bfe_u32 v{t3}, {L}, 3, 1'); em.op(f'v_lshlrev_b32 v{t3}, 10, v{t3}')
    em.op(f'v_lshl_add_u32 v{t3}, v{t1}, 7, v{t3}')
    em.op(f'v_bfe_u32 v{t4}, {L}, 1, 3')
    em.op(f'v_xor_b32 v{t4}, v{t4}, v{t2}'); em.op(f'v_lshlrev_b32 v{vT}, 4, v{t4}')
    em.op(f'v_add_u32 v{vRA[0]}, v{t3}, v{vT}')
    em.op(f'v_add_u32 v{vKR[0]}, s{sKB}, v{vRA[0]}')
    em.op(f'v_xor_b32 v{vKR[1]}, 64, v{vKR[0]}')
    em.op(f's_lshr_b32 s{sT1}, s{sW}, 2'); em.op(f's_lshl_b32 s{sT1}, s{sT1}, 6')
    em.op(f's_lshl_b32 s{sT0}, s{sDG}, 3'); em.op(f's_add_u32 s{sT0}, s{sT0}, s{sT1}')
    em.op(f'v_add_u32 v{t3}, s{sT0}, v{t0}')
    em.op(f'v_mul_u32_u24 v{vVO}, 384, v{t3}')
    em.op(f'v_lshlrev_b32 v{t3}, 1, v{t2}')
    em.op(f'v_xor_b32 v{t3}, v{t3}, v{t1}')
    em.op(f'v_lshl_add_u32 v{vVO}, v{t3}, 4, v{vVO}')
    em.op(f's_mul_i32 s{SX+3}, s{sB}, 184320')
    em.op(f's_mul_i32 s{SWQ+3}, s{sH}, 384')
    em.op(f's_lshl_b32 s{sT1}, s{sB}, 5'); em.op(f's_add_u32 s{sT1}, s{sT1}, s{sH}')
    em.op(f's_mul_i32 s{sT2}, s{sT1}, 196608')
    em.op(f's_mul_i32 s{SO+3}, s{sT1}, {O_HEAD}')
    em.op(f's_lshl_b32 s{sT0}, s{sB}, 8'); em.op(f's_add_u32 s{sT0}, s{sT0}, {FLAG_OFF}')
    em.op(f's_mov_b32 s{SX+2}, 184320'); em.op(f's_sub_u32 s{SWQ+2}, 7864320, s{SWQ+3}')
    em.op(f's_cmp_lt_u32 s{sW}, 3')
    em.op('s_waitcnt lgkmcnt(0)')
    em.st.stamp('ka')
    if cfg.diag: em.op(f's_cmp_lt_u32 s{sW}, 3')
    em.op(f's_cselect_b64 s[{sPFB}:{sPFB+1}], s[10:11], s[4:5]')
    for i in range(0 if cfg.pfall else 3):
        for o in pf_ops(): em.op(o)
    if cfg.cearly:
        em.op('s_getpc_b64 s[58:59]')
        em.label('L_pce')
        em.op('s_add_u32 s58, s58, k1_body_start-L_pce')
        em.op('s_addc_u32 s59, s59, 0')
        em.op(f's_and_b32 s{sT1}, s{sLOC}, 15')
        em.op(f's_lshl_b32 s{sT1}, s{sT1}, 13')
        em.op(f'v_lshlrev_b32 v{TMP[11]}, 4, v0')
        em.op(f'v_add_u32 v{TMP[11]}, s{sT1}, v{TMP[11]}')
        em.op(f'v_min_u32 v{TMP[11]}, k1_body_end-k1_body_start-16, v{TMP[11]}')
        em.op(f'global_load_dwordx4 {vr(112)}, v{TMP[11]}, s[58:59]')
    if cfg.wsoff:
        em.op(f's_add_u32 s12, s12, {cfg.wsoff << 20}'); em.op('s_addc_u32 s13, s13, 0')
    em.op(f's_load_dword s{sTAG}, s[12:13], s{sT0}')
    em.op(f's_add_u32 s{SWQ}, s10, s{SWQ+3}'); em.op(f's_addc_u32 s{SWQ+1}, s11, 0'); em.op(f's_mov_b32 s{SWQ+3}, 0x20000')
    em.op(f's_add_u32 s{SX}, s4, s{SX+3}'); em.op(f's_addc_u32 s{SX+1}, s5, 0'); em.op(f's_mov_b32 s{SX+3}, 0x20000')
    srd(em, SK, 6, 7, f's{sT2}', 196608); srd(em, SV, 8, 9, f's{sT2}', 196608)
    if cfg.n0 or cfg.pfall:
        em.op(f's_cmp_eq_u32 s{sTYPE}, 1')
        em.op('s_cbranch_scc0 L_nok1')
        em.begin_opt()
        em.op(f's_cmp_lt_u32 s{sW}, 3')
        em.op('s_cbranch_scc0 L_pfx')
        for i in range(10):
            for o in pf2_ops() + pf_ops(): em.op(o)
        em.op('s_branch L_nok1')
        em.label('L_pfx')
        for i in range(10):
            for o in pf2_ops(): em.op(o)
        for i in range(cfg.pfx):
            for o in pf_ops(): em.op(o)
        em.end_opt()
        em.label('L_nok1')
    if cfg.n0:
        em.op(f's_lshr_b32 s{sT0}, s{sW}, 2'); em.op(f's_lshl_b32 s{sT0}, s{sT0}, 1'); em.op(f's_or_b32 s{sT0}, s{sT0}, s{sTYPE}')
        for v in (0, 2, 3):
            em.op(f's_cmp_eq_u32 s{sT0}, {v}')
            em.op(f's_cbranch_scc1 L_qp{v >> 1}{v & 1}')
    else:
        em.op(f's_cmp_lt_u32 s{sW}, 4')
        em.op('s_cbranch_scc0 L_qp10')

def tile_m(em, t):
    tab = [[0, 4, 6, 10], [1, 5, 7, 11], [2, 3, 8, 9]][t]
    em.op(f's_lshl_b32 s{sT0}, s{sDG}, 2')
    em.op(f's_lshr_b32 s{sT0}, {sum(v << (4 * i) for i, v in enumerate(tab))}, s{sT0}')
    em.op(f's_and_b32 s{sT0}, s{sT0}, 15')

def tr_addr(em, dst, t, base, fmode):
    t0, t1, t2, t3 = TMP[:4]
    L = f'v{vLANE}'
    if fmode == 'v' and cfg.opair: tile_m(em, t)
    else:
        em.op(f's_mul_i32 s{sT0}, s{sDG}, 3'); em.op(f's_add_u32 s{sT0}, s{sT0}, {t}')
    em.op(f's_lshr_b32 s{sT1}, s{sT0}, 2'); em.op(f's_lshl_b32 s{sT1}, s{sT1}, 10')
    em.op(f's_add_u32 s{sT1}, s{sT1}, {base}')
    em.op(f's_and_b32 s{sT0}, s{sT0}, 3')
    em.op(f'v_lshrrev_b32 v{t0}, 4, {L}')
    em.op(f'v_bfe_u32 v{t1}, {L}, 2, 2')
    em.op(f'v_and_b32 v{t2}, 1, v{t0}')
    em.op(f'v_lshlrev_b32 v{t2}, 1, v{t2}')
    em.op(f'v_lshrrev_b32 v{t3}, 1, v{t1}')
    em.op(f'v_add_u32 v{t3}, v{t3}, v{t2}')
    em.op(f'v_xor_b32 v{t3}, s{sT0}, v{t3}')
    em.op(f'v_lshlrev_b32 v{t3}, 5, v{t3}')
    em.op(f'v_lshlrev_b32 v{dst}, 7, v{t1}')
    em.op(f'v_add_u32 v{dst}, v{dst}, v{t3}')
    if fmode == 'w':
        em.op(f'v_mul_u32_u24 v{t3}, 3072, v{t0}')
    else:
        em.op(f'v_lshlrev_b32 v{t2}, 8, v{t2}')
        em.op(f'v_add_u32 v{dst}, v{dst}, v{t2}')
        em.op(f'v_lshrrev_b32 v{t3}, 1, v{t0}')
        em.op(f'v_mul_u32_u24 v{t3}, 3072, v{t3}')
    em.op(f'v_add_u32 v{dst}, v{dst}, v{t3}')
    em.op(f'v_and_b32 v{t3}, 3, {L}')
    em.op(f'v_lshlrev_b32 v{t3}, 3, v{t3}')
    em.op(f'v_add_u32 v{dst}, v{dst}, v{t3}')
    em.op(f'v_add_u32 v{dst}, s{sT1}, v{dst}')

class Cap:
    def __init__(self): self.ops = []
    def op(self, t, tag=None): self.ops.append(t)

def k1_qproj(em, qh, typ):
    nq = 5 if qh == 0 else 4
    q0 = 0 if qh == 0 else 5
    L = f'v{vLANE}'
    t0, t1, t2, t3, t4, t5 = TMP[:6]
    rf = cfg.rfrac / 100
    if cfg.prio == qh + 1: em.op('s_setprio 1')
    npre = cfg.n0 if typ == 1 else 0
    if npre:
        for f in k_dma_ops(em, 0): f()
        em.wait_lgkm0(force=True)
        k_fetch(em, 0, k_dma_ops(em, 1) if npre == 2 else None)
        if npre == 2: k_fetch(em, 1, None)
        em.wait_lgkm0()
    em.barrier()
    for f in stage_dma_ops(em, 0, qh): f()
    em.barrier()
    for f in stage_dma_ops(em, 1, qh): f()
    em.op(f's_add_u32 s{SO}, s12, s{SO+3}'); em.op(f's_addc_u32 s{SO+1}, s13, 0'); em.op(f's_mov_b32 s{SO+2}, {O_HEAD}'); em.op(f's_mov_b32 s{SO+3}, 0x20000')
    em.op(f's_mov_b32 s{sC}, {fbits(192 ** -0.5 * math.log2(math.e))}')
    if cfg.code_pre and not cfg.cearly:
        em.op('s_getpc_b64 s[58:59]')
        em.label(f'L_pc{qh}{typ}')
        em.op(f's_add_u32 s58, s58, k1_body_start-L_pc{qh}{typ}')
        em.op('s_addc_u32 s59, s59, -1')
        em.op(f's_and_b32 s{sT1}, s{sLOC}, 15')
        em.op(f's_lshl_b32 s{sT1}, s{sT1}, 13')
        em.op(f'v_lshlrev_b32 v{TMP[11]}, 4, v0')
        em.op(f'v_add_u32 v{TMP[11]}, s{sT1}, v{TMP[11]}')
        em.op(f'v_min_u32 v{TMP[11]}, k1_body_end-k1_body_start-16, v{TMP[11]}')
    em.st.stamp('si')
    em.op(f'v_lshlrev_b32 v{t3}, 2, v0')
    em.op(f'v_add_u32 v{t3}, {MAXB}, v{t3}')
    em.op(f'v_mov_b32 v{t4}, 0xff800000')
    em.op(f'ds_write_b32 v{t3}, v{t4}')
    em.op(f'v_and_b32 v{vMS}, 15, {L}')
    em.op(f'v_lshlrev_b32 v{vMS}, 2, v{vMS}')
    em.op(f'v_add_u32 v{vMS}, {MAXB}, v{vMS}')
    em.op(f'v_add_u32 v{vRA[0]}, {q0 * 2048}, v{vRA[0]}')
    em.op(f'v_xor_b32 v{vRA[1]}, 64, v{vRA[0]}')
    for t in range(3): tr_addr(em, vRB[t], t, VBASE, 'w')
    for t in range(3):
        em.op(f's_mul_i32 s{sT0}, s{sDG}, 3'); em.op(f's_add_u32 s{sT0}, s{sT0}, {t}'); em.op(f's_lshl_b32 s{sT0}, s{sT0}, 1')
        em.op(f'v_lshrrev_b32 v{t0}, 5, {L}')
        em.op(f'v_add_u32 v{t0}, s{sT0}, v{t0}')
        em.op(f'v_lshrrev_b32 v{t1}, 3, v{t0}'); em.op(f'v_lshlrev_b32 v{t1}, 7, v{t1}')
        em.op(f'v_and_b32 v{t0}, 7, v{t0}')
        em.op(f'v_bfe_u32 v{t2}, {L}, 1, 3')
        em.op(f'v_xor_b32 v{t0}, v{t0}, v{t2}'); em.op(f'v_lshlrev_b32 v{t0}, 4, v{t0}')
        em.op(f'v_add_u32 v{t0}, v{t0}, v{t1}')
        em.op(f'v_and_b32 v{t1}, 15, {L}'); em.op(f'v_mul_u32_u24 v{t1}, 384, v{t1}')
        em.op(f'v_add_u32 v{t0}, v{t0}, v{t1}')
        em.op(f'v_bfe_u32 v{t1}, {L}, 4, 1'); em.op(f'v_lshlrev_b32 v{t1}, 3, v{t1}')
        em.op(f'v_add_u32 v{vRC[t]}, v{t0}, v{t1}')
    em.op(f'v_lshlrev_b32 v{vPA}, 4, {L}')
    em.op(f's_lshl_b32 s{sT0}, s{sW}, 2'); em.op(f's_lshr_b32 s{sT1}, 0x10543210, s{sT0}'); em.op(f's_and_b32 s{sT1}, s{sT1}, 15'); em.op(f's_mul_i32 s{sT1}, s{sT1}, 9216')
    em.op(f'v_add_u32 v{vPW}, s{sT1}, v{vPA}')
    em.op(f'v_add_u32 v{vPA}, {q0 * 1024}, v{vPA}')
    AF = [176, 188]; BF = [200, 220]
    def q_reads(s, step, st):
        ops = []
        for t in range(3):
            ops.append(f'ds_read_b64_tr_b16 {vr(AF[st] + 4*t, 2)}, v{vRB[t]} offset:{(s % 3) * 24576 + step * 12288}')
            ops.append(f'ds_read_b64_tr_b16 {vr(AF[st] + 4*t + 2, 2)}, v{vRB[t]} offset:{(s % 3) * 24576 + step * 12288 + 512}')
        xs = [f'ds_read_b128 {vr(BF[st] + 4*j)}, v{vRA[step]} offset:{(s % 3) * 18432 + j * 2048}' for j in range(nq)]
        return ops[0:2] + xs[0:1] + ops[2:6] + xs[1:]
    def mf(st, first):
        return [mfma(ACC + 4*(j*3+t), AF[st] + 4*t, BF[st] + 4*j, None if first else ACC + 4*(j*3+t)) for j in range(nq) for t in range(3)]
    em.wait_vm_tag('S0', lgkm0=True); em.barrier()
    em.st.stamp('S0')
    em.op(f's_add_u32 s{sTAG}, s{sTAG}, 1')
    for o in q_reads(0, 0, 0): em.op(o)
    em.npre = npre
    nxt = [k_dma_ops(em, 0), k_dma_ops(em, 1), va_ops(em)][npre]
    plan = {15: nxt[0:4], 16: nxt[4:7], 17: nxt[7:10], 18: nxt[10:12]} if qh == 0 else {19: nxt[0:6]}
    late = [] if qh == 0 else nxt[6:12]
    post = []
    if qh == 1 and cfg.qlate: plan = {}; late = []; post = nxt
    cap = Cap()
    for t in range(3): tr_addr(cap, VTMP[t], t, VBASE, 'v')
    vaddr_ops = cap.ops
    inloop_pf = not (typ == 1 and cfg.n0) and not cfg.pfall
    carry = stage_dma_ops(em, 2, qh) + (sum([pf_ops() for i in range(cfg.pfa - 3)], []) if inloop_pf else [])
    if cfg.code_pre and not cfg.cearly: carry.append(f'global_load_dwordx4 {vr(244)}, v{TMP[11]}, s[58:59]')
    for s in range(10):
        extra = []
        extra = plan.get(2 * s, [])
        if cfg.onew and s > 0: em.wait_lgkm0()
        interleave(em, mf(0, s == 0), ([] if cfg.x_qnord and 3 < s <= 6 else q_reads(s, 1, 1), 0, rf), (extra, 0.1, 1), (carry, 0.05, cfg.dhi / 100))
        if s < 9: em.wait_vm_tag(f'S{s+1}', lgkm0=True)
        else: em.wait_lgkm0()
        em.barrier()
        if s in cfg.qst: em.st.stamp(f'B{s}')
        if cfg.qloop and s == 6:
            em.op('s_sub_u32 s87, s87, 1'); em.op('s_cmp_lg_u32 s87, 0'); em.op(f's_cbranch_scc1 L_ql{qh}{typ}')
            em.st.stamp('LBend')
        if cfg.qloop and s == 3:
            em.st.stamp('LB0')
            em.op('s_mov_b32 s87, 16'); em.label(f'L_ql{qh}{typ}')
        rd = []; dm = []; extra = []
        if s < 9:
            if not (cfg.x_qnord and 3 <= s < 6): rd += q_reads(s + 1, 0, 0)
        carry = []
        if s + 3 <= 9:
            dm = stage_dma_ops(em, s + 3, qh); ds_ = cfg.dsplit if not cfg.drole else (6 if qh == cfg.drole - 1 else 0)
            dm, carry = dm[:ds_], dm[ds_:]
            if cfg.x_qnodma and 3 <= s < 6: dm = []; carry = []
        if s == 7: extra = vaddr_ops
        first = (pf_ops() + (pf2_ops() if s + cfg.pfa >= cfg.pf1 and cfg.n0 else []) if inloop_pf and s + cfg.pfa <= 9 and not (cfg.qloop and s >= 3) else []) + plan.get(2 * s + 1, [])
        qw = []
        if s == 9:
            for j in range(nq):
                for t in range(3):
                    a = ACC + 4*(j*3+t)
                    qw.append([f'v_cvt_pk_bf16_f32 v{a}, v{a}, v{a+1}', f'v_cvt_pk_bf16_f32 v{a+1}, v{a+2}, v{a+3}', f'ds_write_b64 v{vRC[t]}, {vr(a,2)} offset:{(q0 + j) * 6144}'])
        n = 3 * nq; lag = 3 if cfg.qwi else n
        ins = [(qw[k], (k + lag + 0.5) / n, (k + lag + 0.5) / n) for k in range(n - lag)] if qw else []
        interleave(em, mf(1, False), (dm, cfg.dlo / 100, cfg.dhi / 100), (rd, 0, rf), (extra, 0, 1), (first, 0, 0.04 if dm else 0.9), *ins)
    for g in qw[max(0, n - lag):]:
        for o in g: em.op(o)
    for f in late: f()
    em.op(f'v_and_b32 v{t1}, 15, {L}'); em.op(f'v_mul_u32_u24 v{t1}, 384, v{t1}')
    em.op(f'v_add_u32 v{vRA[0]}, v{t1}, v{vT}')
    em.op(f'v_xor_b32 v{t0}, 64, v{vT}')
    em.op(f'v_add_u32 v{vRA[1]}, v{t1}, v{t0}')
    for t in range(3): em.op(f'v_mov_b32 v{vRB[t]}, v{VTMP[t]}')
    em.wait_lgkm0(); em.barrier()
    for f in post: f()
    for t in range(3): em.op(f'v_add_u32 v{vRC[t]}, 49152, v{vRB[t]}')
    em.op(f's_lshl_b32 s{sT0}, s{sW}, 2'); em.op(f's_lshr_b32 s{sT1}, 0x32105432, s{sT0}'); em.op(f's_and_b32 s{sT1}, s{sT1}, 15'); em.op(f's_mul_i32 s{sT1}, s{sT1}, 9216')
    em.op(f'v_lshlrev_b32 v{vPW2}, 4, {L}')
    em.op(f'v_add_u32 v{vPW2}, s{sT1}, v{vPW2}')
    em.st.stamp('BQ')

def maxops(half):
    ops = []
    for qt in range(9):
        a, b = sreg(half*2, qt), sreg(half*2+1, qt); m = MC + qt
        if half == 0:
            ops += [f'v_max3_f32 v{m}, v{a}, v{a+1}, v{a+2}', f'v_max3_f32 v{m}, v{m}, v{a+3}, v{b}',
                    f'v_max3_f32 v{m}, v{m}, v{b+1}, v{b+2}', f'v_max_f32 v{m}, v{m}, v{b+3}']
        else:
            ops += [f'v_max3_f32 v{m}, v{m}, v{a}, v{a+1}', f'v_max3_f32 v{m}, v{m}, v{a+2}, v{a+3}',
                    f'v_max3_f32 v{m}, v{m}, v{b}, v{b+1}', f'v_max3_f32 v{m}, v{m}, v{b+2}, v{b+3}']
    return ops

def k1_qk(em, qh):
    def qrd(n):
        qt, ks = divmod(n, 6)
        return f'ds_read_b128 {vr(QF + 4*(n % 4))}, v{vRA[ks & 1]} offset:{qt * 6144 + (ks >> 1) * 128}'
    npre = em.npre
    pend = []
    if npre == 1 and cfg.g2e:
        k_fetch(em, 1, None); em.wait_lgkm0()
        pend = va_ops(em)
        if qh == 1:
            for f in pend: f()
            pend = []
        npre = 2
    for half in range(2):
        fill = pend; pend = []
        if half >= npre:
            fill = k_dma_ops(em, 1) if half == 0 else va_ops(em)
            if half == 0 and cfg.eager >> qh & 1:
                k_fetch(em, half, fill); fill = []
            else:
                k_fetch(em, half, None)
                em.wait_lgkm0()
                if half == 1 and cfg.eagerv >> qh & 1:
                    for f in fill: f()
                    fill = []
        for n in range(3): em.op(qrd(n))
        em.st.stamp(f'K{half}')
        main = []
        for n in range(54):
            qt, ks = divmod(n, 6)
            if n + 3 < 54: main.append(qrd(n + 3))
            for k in range(2):
                kt = half * 2 + k
                main.append(mfma(sreg(kt, qt), kop(kt, ks), QF + 4*(n % 4), None if ks == 0 else sreg(kt, qt)))
        m1 = maxops(1)
        if half == 0:
            streams = [(fill, cfg.g2lo / 100, cfg.g2hi / 100)]
        else:
            streams = [(maxops(0), 0.02, 0.5)]
            for qt in range(8): streams.append((m1[qt*4:qt*4+4], max(0.5 + 0.05*qt, (qt + 1.5) / 9), max(0.55 + 0.05*qt, (qt + 1.9) / 9)))
            streams.append((fill, cfg.valo / 100, cfg.vahi / 100))
        interleave(em, main, *streams)
    em.st.stamp('QKend')
    for o in maxops(1)[32:]: em.op(o)
    for qt in range(9): em.op(f'ds_max_f32 v{vMS}, v{MC+qt} offset:{qt*64}')
    if qh == 0 and cfg.tsq:
        for o in tail_setup_ops(0): emit(em, o)
    em.wait_lgkm0(); em.barrier()
    em.st.stamp('BM')

def expops(r, qt, pk):
    a, b = sreg(2*r, qt), sreg(2*r+1, qt); m = MC + qt
    tA, tB = TMP[0], TMP[2]
    sp = SUMP + 2*qt
    rs = [a, a+1, a+2, a+3, b, b+1, b+2, b+3]
    if pk:
        mb = m & ~1; s = m & 1
        ops = [f'v_pk_fma_f32 {vr(x,2)}, {vr(x,2)}, s[{sC}:{sC+1}], {vr(mb,2)} op_sel:[0,0,{s}] op_sel_hi:[1,0,{s}] neg_lo:[0,0,1] neg_hi:[0,0,1]' for x in rs[::2]]
    else:
        ops = [f'v_fma_f32 v{x}, v{x}, s{sC}, -v{m}' for x in rs]
    ops += [f'v_exp_f32 v{x}, v{x}' for x in rs]
    if pk:
        ops += [f'v_pk_add_f32 {vr(tA,2)}, {vr(a,2)}, {vr(a+2,2)}', f'v_pk_add_f32 {vr(tB,2)}, {vr(b,2)}, {vr(b+2,2)}']
        if r == 0: tailo = [f'v_pk_add_f32 {vr(sp,2)}, {vr(tA,2)}, {vr(tB,2)}']
        else: tailo = [f'v_pk_add_f32 {vr(tA,2)}, {vr(tA,2)}, {vr(tB,2)}', f'v_pk_add_f32 {vr(sp,2)}, {vr(sp,2)}, {vr(tA,2)}']
    else:
        assert r == 1
        ops += [f'v_add_f32 v{sp + (i & 1)}, v{sp + (i & 1)}, v{x}' for i, x in enumerate(rs)]
        tailo = []
    ops += [f'v_cvt_pk_bf16_f32 v{a}, v{a}, v{a+1}', f'v_cvt_pk_bf16_f32 v{a+1}, v{a+2}, v{a+3}',
            f'v_cvt_pk_bf16_f32 v{a+2}, v{b}, v{b+1}', f'v_cvt_pk_bf16_f32 v{a+3}, v{b+2}, v{b+3}']
    return ops + tailo

def pwrite(r, qt, qh):
    return f'ds_write_b128 v{vPW if r == 0 else vPW2}, {vr(sreg(2*r, qt))} offset:{qt*1024}'

def sum_ops():
    L = f'v{vLANE}'
    S = SUM; ops = []
    ops += [f'v_add_f32 v{SUM+qt}, v{SUMP+2*qt}, v{SUMP+2*qt+1}' for qt in range(9)]
    ops += [f'v_mov_b32 v{MC}, 0', f'v_mov_b32 v{MC+1}, 0']
    ta = TMP[2]; tb = TMP[3]
    ops += [f'v_bfe_u32 v{ta}, {L}, 4, 1', f'v_lshlrev_b32 v{ta}, 10, v{ta}', f'v_bfe_u32 v{tb}, {L}, 5, 1', f'v_lshlrev_b32 v{tb}, 9, v{tb}',
            f'v_add_u32 v{ta}, v{ta}, v{tb}', f'v_and_b32 v{tb}, 15, {L}', f'v_lshlrev_b32 v{tb}, 5, v{tb}', f'v_add_u32 v{ta}, v{ta}, v{tb}',
            f's_lshl_b32 s{sT0}, s{sW}, 2', f's_add_u32 s{sT0}, s{sT0}, {SUMB}', f'v_add_u32 v{ta}, s{sT0}, v{ta}']
    for a in (0, 2, 4, 6): ops.append(f'v_permlane32_swap_b32 v{S+a}, v{S+a+1}')
    ops.append(f'v_permlane32_swap_b32 v{S+8}, v{MC}')
    for a in (0, 2, 4, 6): ops.append(f'v_add_f32 v{S+a}, v{S+a}, v{S+a+1}')
    ops.append(f'v_add_f32 v{S+8}, v{S+8}, v{MC}')
    for a in (0, 4): ops.append(f'v_permlane16_swap_b32 v{S+a}, v{S+a+2}')
    ops.append(f'v_permlane16_swap_b32 v{S+8}, v{MC+1}')
    for a in (0, 4): ops.append(f'v_add_f32 v{S+a}, v{S+a}, v{S+a+2}')
    ops.append(f'v_add_f32 v{S+8}, v{S+8}, v{MC+1}')
    for a in (0, 4, 8): ops.append(f'ds_write_b32 v{ta}, v{S+a} offset:{a * 512}')
    return ops

def k1_sm0(em, qh):
    n_in = cfg.in0 if qh == 0 else cfg.in1
    for qt in range(9): em.op(f'ds_read_b32 v{MC+qt}, v{vMS} offset:{qt*64}')
    for qt in range(9): em.op(f'v_mul_f32 v{MC+qt}, s{sC}, v{MC+qt}')
    main = []
    for qt in range(9):
        main += expops(0, qt, True)
        if qh == 0: main.append(pwrite(0, qt, qh))
    for qt in range(n_in, 9): main += expops(1, qt, True)
    for o in main: em.op(o)
    em.st.stamp('exp0')
    if qh == 0: em.wait_vm_tag('VA', lgkm0=True)
    else: em.wait_lgkm0()
    em.barrier()
    em.st.stamp('PV0')

def k1_pv(em, qh):
    nq = 5 if qh == 0 else 4
    q0 = 0 if qh == 0 else 5
    L = f'v{vLANE}'
    rf = cfg.rfrac / 100
    PBF = PBF0 if qh == 0 else PBF1
    INV = INV0
    PAF = PAF0 if qh == 0 else PAF1
    def pv_reads(s, step, st):
        ops = []
        slot = vslot(s)
        base = vRB if slot < 2 else vRC
        off = (slot % 2) * 24576 + step * 12288
        for t in range(3):
            ops.append(f'ds_read_b64_tr_b16 {vr(PAF[st][t], 2)}, v{base[t]} offset:{off}')
            ops.append(f'ds_read_b64_tr_b16 {vr(PAF[st][t] + 2, 2)}, v{base[t]} offset:{off + 6144}')
        pa, po = vPA, ((2 * s + step) % 6) * 9216
        xs = [f'ds_read_b128 {vr(PBF[st][j])}, v{pa} offset:{po + j * 1024}' for j in range(nq)]
        return ops[0:2] + xs[0:1] + ops[2:6] + xs[1:]
    OACC = OACC0 if qh == 0 else OACC1
    def mf(st, first):
        return [mfma(OACC[j*3+t], PAF[st][t], PBF[st][j], None if first else OACC[j*3+t]) for j in range(nq) for t in range(3)]
    def inv_ops():
        ta = TMP[2]; ops = []
        ops += [f'v_and_b32 v{ta}, 15, {L}', f'v_lshlrev_b32 v{ta}, 5, v{ta}', f'v_add_u32 v{ta}, {SUMB + q0 * 512}, v{ta}']
        for j in range(nq):
            ops += [f'ds_read_b128 {vr(16 + 8*j)}, v{ta} offset:{j * 512}', f'ds_read_b128 {vr(20 + 8*j)}, v{ta} offset:{j * 512 + 16}']
        for j in range(nq):
            r = 16 + 8*j
            ops += [f'v_add_f32 v{r}, v{r}, v{r+1}', f'v_add_f32 v{r+2}, v{r+2}, v{r+3}', f'v_add_f32 v{r+4}, v{r+4}, v{r+5}', f'v_add_f32 v{r+6}, v{r+6}, v{r+7}',
                    f'v_add_f32 v{r}, v{r}, v{r+2}', f'v_add_f32 v{r+4}, v{r+4}, v{r+6}', f'v_add_f32 v{r}, v{r}, v{r+4}', f'v_rcp_f32 v{INV+2*j}, v{r}']
        return ops
    n_in = cfg.in0 if qh == 0 else cfg.in1
    assert n_in <= 3
    hs = [0, 3, 4] if qh == 0 else [7, 8, 4]
    INVO = inv_ops()
    TS = [] if (qh == 0 and cfg.tsq) else tail_setup_ops(qh)
    def ex(h):
        o = []
        if h in hs[:n_in] or (n_in == 2 and qh == 0 and False): o += expops(1, hs.index(h), False)
        if qh == 0 and h in (5, 6): o += [pwrite(1, qt, qh) for qt in (range(4, 9) if h == 5 else range(4))]
        if qh == 1 and h in (1, 2): o += [pwrite(0, qt, qh) for qt in (range(5) if h == 1 else range(5, 9))]
        if qh == 1 and h in (9, 10): o += [pwrite(1, qt, qh) for qt in (range(4, 9) if h == 9 else range(4))]
        if h == (7 if qh == 0 else 11): o += sum_ops()
        if h == 13: o += INVO[:len(INVO) // 2]
        if h == 14: o += INVO[len(INVO) // 2:]
        if TS and h == 3 and qh == 1: o += TS
        if TS and h in (11, 12) and qh == 0: o += TS[:len(TS)//2] if h == 11 else TS[len(TS)//2:]
        return o
    def wopre_ops(i):
        ta = TMP[2 + (i & 1)]
        ops = [f's_mul_i32 s{sT3}, s{sX}, 983040', f's_mul_i32 s{sT4}, s{sLOC}, 30720', f's_add_u32 s{sT3}, s{sT3}, s{sT4}', f's_add_u32 s{sT3}, s{sT3}, {i * 8192}',
               f'v_lshlrev_b32 v{ta}, 4, v0', f'v_add_u32 v{ta}, s{sT3}, v{ta}', f'v_min_u32 v{ta}, {7864320 - 16}, v{ta}',
               f'global_load_dwordx4 {vr(52)}, v{ta}, s[14:15]']
        if cfg.wo0:
            def f():
                _lab[0] += 1
                em.op(f's_cmp_eq_u32 s{sTYPE}, 0')
                em.op(f's_cbranch_scc0 L_wp{_lab[0]}')
                em.begin_opt()
                for o in ops[:-2] + [ops[-1], f'v_add_u32 v{ta}, 122880, v{ta}'] + ops[-2:]: em.op(o)
                em.end_opt()
                em.label(f'L_wp{_lab[0]}')
            return [f]
        return ops
    wsl = {8: 0, 9: 1, 10: 2, 12: 3}
    def epi(pk):
        out = []
        def mul(a, m):
            if pk: return [f'v_pk_mul_f32 {vr(a,2)}, {vr(a,2)}, {vr(m,2)} op_sel_hi:[1,0]', f'v_pk_mul_f32 {vr(a+2,2)}, {vr(a+2,2)}, {vr(m,2)} op_sel_hi:[1,0]']
            return [f'v_mul_f32 v{a+d}, v{a+d}, v{m}' for d in range(4)]
        for j in range(nq):
            m = INV + 2 * j
            a, b, c = OACC[j*3], OACC[j*3+1], OACC[j*3+2]
            if cfg.opair:
                out.append((j*3+1, mul(a, m) + mul(b, m) + [f'v_cvt_pk_bf16_f32 v{a}, v{a}, v{a+1}', f'v_cvt_pk_bf16_f32 v{a+1}, v{a+2}, v{a+3}',
                            f'v_cvt_pk_bf16_f32 v{a+2}, v{b}, v{b+1}', f'v_cvt_pk_bf16_f32 v{a+3}, v{b+2}, v{b+3}', f'ds_write_b128 v{vOW[0]}, {vr(a)} offset:{j * 1024}']
                            + ([f's_mov_b32 s{sT0}, {j * 1024}', (f'buffer_store_dwordx4 {vr(a)}, v{vOW[1]}, {sr(SO,4)}, s{sT0} offen sc1', 'CO0')] if cfg.direct else [])))
            for t in ((2,) if cfg.opair else (0, 1, 2)):
                x = OACC[j*3+t]
                out.append((j*3+t, mul(x, m) + [f'v_cvt_pk_bf16_f32 v{x}, v{x}, v{x+1}', f'v_cvt_pk_bf16_f32 v{x+1}, v{x+2}, v{x+3}', f'ds_write_b64 v{vOW[t]}, {vr(x,2)} offset:{j * 1024}']))
        return out
    for o in pv_reads(0, 0, 0): em.op(o)
    n = 3 * nq; lag = 4 if cfg.qwi else n
    for s in range(8):
        w = wopre_ops(wsl[2*s]) if cfg.wopre and 2*s in wsl else []
        if cfg.onew and s > 0: em.wait_lgkm0()
        interleave(em, mf(0, s == 0), (pv_reads(s, 1, 1), 0, rf), (ex(2*s), 0, cfg.efrac / 100), (w, 0.4, 0.41))
        if s == 1: em.wait_vm_tag('VA', lgkm0=True)
        elif s < 7: em.wait_vm_tag(f'V{s+1}', lgkm0=True)
        else: em.wait_lgkm0()
        em.barrier()
        em.st.stamp(f'PB{s}')
        rd = pv_reads(s + 1, 0, 0) if s < 7 else []
        dm = v_dma_ops(em, s + NV) if s + NV <= 7 else []
        if s == 7 and qh == 0: dm = tail_dma(em, 0) + tail_dma(em, 1)
        w = wopre_ops(wsl[2*s+1]) if cfg.wopre and 2*s+1 in wsl else []
        ins = []
        if s == 7:
            ins = [(g, (p + lag + 0.5) / n, (p + lag + 0.5) / n) for p, g in epi(False) if p + lag < n]
        interleave(em, mf(1, False), (dm, 0, 0.4 if s < 7 else 1), (rd, 0, rf + 0.1), (ex(2*s+1), 0, 1), (w, 0.4, 0.41), *ins)
    late = tail_dma(em, 2) if qh == 0 else []
    main = sum([g for p, g in epi(True) if p + lag >= n], [])
    interleave(em, main, (late, 0, 1))
    em.wait_vm_tag('T0', lgkm0=True); em.barrier()
    em.st.stamp('BO')
    em.op(f's_bitcmp1_b32 s{sW}, 1')
    em.op(f's_cbranch_scc1 L_tail{2 * qh + 1}')
    st = em.save()
    tail(em, 2 * qh)
    em.label(f'L_tail{2 * qh + 1}')
    em.restore(st)
    tail(em, 2 * qh + 1)

vOFFS = [2, 3, 4, 5, 7]; vA2 = [248, 249, 250]; vB2 = 251
SD, SP, SPR, SOUT = SX, SWQ, SK, 84
sT3, sT4 = 56, 59
sCH = 36 + 1
sCH = 81
sN0 = sNH
def tail_setup_ops(qh):
    c = Cap(); L = f'v{vLANE}'
    t0, t1, t2, t3 = 252, 253, 244, 245
    if qh == 0:
        c.op(f's_mul_i32 s{sT0}, s{sX}, 983040'); c.op(f's_mul_i32 s{sT1}, s{sJ}, 320'); c.op(f's_add_u32 s{sT0}, s{sT0}, s{sT1}')
        srd(c, SD, 14, 15, f's{sT0}', 7864320)
        c.op(f's_sub_u32 s{SD+2}, s{SD+2}, s{sT0}')
        c.op(f's_mov_b32 s{sSTR}, 81920')
        hs = 245760
        c.op(f's_lshl_b32 s{sT2}, s{sW}, 4')
        c.op(f's_mov_b32 s{sT1}, 52429')
        for j in range(5):
            c.op(f'v_add_u32 v{t0}, {j * 64}, {L}')
            c.op(f'v_mul_lo_u32 v{t1}, v{t0}, s{sT1}')
            c.op(f'v_lshrrev_b32 v{t1}, 20, v{t1}')
            c.op(f'v_mul_u32_u24 v{t2}, 20, v{t1}')
            c.op(f'v_sub_u32 v{t2}, v{t0}, v{t2}')
            c.op(f'v_bfe_u32 v{t3}, v{t1}, 2, 1')
            c.op(f'v_lshlrev_b32 v{t3}, 1, v{t3}')
            c.op(f'v_xor_b32 v{t2}, v{t2}, v{t3}')
            c.op(f'v_add_u32 v{t1}, s{sT2}, v{t1}')
            c.op(f'v_mul_u32_u24 v{t1}, 1280, v{t1}')
            c.op(f'v_lshl_add_u32 v{vOFFS[j]}, v{t2}, 4, v{t1}')
        c.op(f's_and_b32 s{sN0}, s{sW}, 1'); c.op(f's_mul_i32 s{sN0}, s{sN0}, 3')
        c.op(f's_bfe_u32 s{sQ0}, s{sW}, 0x10001'); c.op(f's_mul_i32 s{sQ0}, s{sQ0}, 5')
    else:
        c.op(f's_lshl_b32 s{sT0}, s{sB}, 5'); c.op(f's_lshl_b32 s{sT1}, s{sX}, 2'); c.op(f's_add_u32 s{sT0}, s{sT0}, s{sT1}')
        c.op(f's_mul_i32 s{sT0}, s{sT0}, {O_HEAD}')
        srd(c, SD, 12, 13, f's{sT0}', 4 * O_HEAD)
        c.op(f's_mov_b32 s{sSTR}, 18432')
        hs = O_HEAD
        c.op(f's_mul_i32 s{sT2}, s{sDG}, 5120')
        c.op(f'v_lshlrev_b32 v{t0}, 4, {L}')
        c.op(f'v_add_u32 v{t0}, s{sT2}, v{t0}')
        for j in range(5): c.op(f'v_add_u32 v{vOFFS[j]}, {j * 1024}, v{t0}')
        c.op(f's_and_b32 s{sN0}, s{sW}, 1'); c.op(f's_lshl_b32 s{sN0}, s{sN0}, 1'); c.op(f's_add_u32 s{sN0}, s{sN0}, 6')
        c.op(f's_bfe_u32 s{sQ0}, s{sW}, 0x10001'); c.op(f's_xor_b32 s{sQ0}, s{sQ0}, 1'); c.op(f's_mul_i32 s{sQ0}, s{sQ0}, 5')
    if cfg.direct:
        if qh == 0:
            c.op(f's_lshr_b32 s{sT0}, s{sW}, 1'); c.op(f's_mul_i32 s{sT0}, s{sT0}, 40960')
            c.op(f's_mov_b32 s{sCH}, s{sT0}'); c.op(f's_add_u32 s{sCH+1}, s{sT0}, {96 * 1280}')
            c.op(f's_lshl_b32 s{sT0}, s{sT0}, 1'); c.op(f's_add_u32 s{sCH+2}, s{sT0}, {32 * 1280}')
        else:
            for i in range(3): c.op(f's_mov_b32 s{sCH+i}, {i * 18432}')
    c.op(f's_mul_i32 s{sM0T}, s{sDG}, 5120')
    if qh: c.op(f's_add_u32 s{sM0T}, s{sM0T}, 61440')
    for i in range(4):
        c.op(f's_add_u32 s{sT0}, s{sJ}, {i}'); c.op(f's_and_b32 s{sT0}, s{sT0}, 3'); c.op(f's_mul_i32 s{sHB+i}, s{sT0}, {hs}')
    c.op(f'v_lshrrev_b32 v{t0}, 2, {L}')
    c.op(f'v_mul_u32_u24 v{t0}, 320, v{t0}')
    c.op(f'v_and_b32 v{t1}, 3, {L}')
    c.op(f'v_lshl_add_u32 v{t0}, v{t1}, 3, v{t0}')
    c.op(f'v_bfe_u32 v{t1}, {L}, 4, 1')
    for t in range(3 if qh == 0 else 2):
        c.op(f's_add_u32 s{sT1}, s{sN0}, {t}')
        c.op(f'v_xor_b32 v{t2}, s{sT1}, v{t1}')
        c.op(f'v_lshl_add_u32 v{vA2[t]}, v{t2}, 5, v{t0}')
    c.op(f's_lshl_b32 s{sT0}, s{sQ0}, 10')
    c.op(f's_add_u32 s{sT0}, s{sT0}, 61440')
    c.op(f'v_lshl_add_u32 v{vB2}, {L}, 4, s{sT0}')
    for t in range(3):
        if cfg.opair:
            if t == 1: continue
            tile_m(c, t)
        else:
            c.op(f's_mul_i32 s{sT0}, s{sDG}, 3'); c.op(f's_add_u32 s{sT0}, s{sT0}, {t}')
        if cfg.direct:
            c.op(f's_lshl_b32 s{sT1}, s{sT0}, 1'); c.op(f's_and_b32 s{sT1}, s{sT1}, 0x1c'); c.op(f's_lshr_b32 s{sT1}, 0x352140, s{sT1}'); c.op(f's_and_b32 s{sT1}, s{sT1}, 15')
            if t == 0:
                c.op(f's_mul_i32 s{sT2}, s{sT1}, 9216')
                c.op(f'v_add_u32 v{vOW[1]}, s{sT2}, v{vPA}')
            c.op(f's_and_b32 s{sT0}, s{sT0}, 1'); c.op(f's_lshl_b32 s{sT1}, s{sT1}, 1'); c.op(f's_add_u32 s{sT0}, s{sT0}, s{sT1}')
        c.op(f's_lshr_b32 s{sT1}, s{sT0}, 2'); c.op(f's_mul_i32 s{sT1}, s{sT1}, 20480')
        c.op(f's_bfe_u32 s{sT2}, s{sT0}, 0x10001'); c.op(f's_mul_i32 s{sT2}, s{sT2}, 9216'); c.op(f's_add_u32 s{sT1}, s{sT1}, s{sT2}')
        c.op(f's_and_b32 s{sT0}, s{sT0}, 1'); c.op(f's_lshl_b32 s{sT0}, s{sT0}, 3')
        c.op(f's_add_u32 s{sT0}, s{sT0}, s{sT1}'); c.op(f's_add_u32 s{sT0}, s{sT0}, 61440')
        c.op(f'v_add_u32 v{vOW[t]}, s{sT0}, v{vPA}')
    c.op(f's_lshl_b32 s{sT0}, s{sB}, 3'); c.op(f's_add_u32 s{sT0}, s{sT0}, s{sX}'); c.op(f's_lshl_b32 s{sT0}, s{sT0}, 7'); c.op(f's_add_u32 s{sT0}, s{sT0}, {FLAG_OFF + 4096}')
    c.op(f's_add_u32 s{sF1}, s12, s{sT0}'); c.op(f's_addc_u32 s{sF1+1}, s13, 0')
    c.op(f's_lshl_b32 s{sT0}, s{sLOC}, 7'); c.op(f's_add_u32 s{sT0}, s{sT0}, {FLAG_OFF + 16384}')
    c.op(f's_add_u32 s{sF2}, s12, s{sT0}'); c.op(f's_addc_u32 s{sF2+1}, s13, 0')
    c.op(f's_mul_i32 s{sT0}, s{sLOC}, {8 * PART2}'); c.op(f's_add_u32 s{sT0}, s{sT0}, {WS_PART}')
    srd(c, SPR, 12, 13, f's{sT0}', 8 * PART2)
    c.op(f's_mul_i32 s{sT1}, s{sX}, {PART2}'); c.op(f's_add_u32 s{sT0}, s{sT0}, s{sT1}')
    srd(c, SP, 12, 13, f's{sT0}', PART2)
    srd(c, SOUT, 54, 55, None, 1474560)
    out = []; i = 0; ops = c.ops
    while i < len(ops):
        if i + 1 < len(ops) and ops[i + 1].startswith('s_addc'):
            a, b = ops[i], ops[i + 1]
            out.append(lambda a=a, b=b: (EM[0].op(a), EM[0].op(b))); i += 2
        else:
            out.append(ops[i]); i += 1
    return out
EM = [None]

def tail_dma(em, s, orole=False):
    ops = []
    sc = ' sc1' if (orole and cfg.sc_ol) else ''
    for j in range(5):
        def f(j=j):
            em.op(f's_add_u32 m0, s{sM0T}, {(s % 3) * 20480 + j * 1024}')
            if j == 0:
                if cfg.direct:
                    peer, ch = (0, s) if s < 3 else (1 + (s - 3) % 3, (s - 3) // 3)
                    em.op(f's_add_u32 s{sOFF}, s{sCH + ch}, s{sHB + peer}')
                elif cfg.chunk and s >= 3:
                    ch = (s - 3) // 3
                    if ch == 0: em.op(f's_mov_b32 s{sOFF}, s{sHB + 1 + (s - 3) % 3}')
                    else:
                        em.op(f's_lshl_b32 s{sOFF}, s{sSTR}, {ch - 1}')
                        em.op(f's_add_u32 s{sOFF}, s{sOFF}, s{sHB + 1 + (s - 3) % 3}')
                elif s % 3 == 0: em.op(f's_mov_b32 s{sOFF}, s{sHB + s // 3}')
                else: em.op(f's_add_u32 s{sOFF}, s{sOFF}, s{sSTR}')
            em.op(f'buffer_load_dwordx4 v{vOFFS[j]}, {sr(SD,4)}, s{sOFF} offen{sc} lds', tag=f'T{s}')
        ops.append(f)
    return ops

def flag_store(em, base, idx_s, lab, wave, off=0):
    t0, t1 = 60, 61
    em.op(f's_cmp_eq_u32 s{sW}, {wave}')
    em.op(f's_cbranch_scc0 {lab}')
    em.begin_opt()
    em.op(f's_lshl_b32 s{sT0}, s{idx_s}, 2')
    em.op(f'v_mov_b32 v{t0}, s{sT0}')
    em.op(f'v_mov_b32 v{t1}, s{sTAG}')
    em.op('s_mov_b64 exec, 1')
    em.op(f'global_store_dword v{t0}, v{t1}, s[{base}:{base+1}] offset:{off} sc1')
    em.op('s_mov_b64 exec, -1')
    em.end_opt()
    em.label(lab)

vPL0, vPL1 = 62, 63
def poll(em, base, mask, lab, off=0, keep=False):
    em.op(f'v_and_b32 v{vPL0}, {mask}, v{vLANE}')
    em.op(f'v_lshlrev_b32 v{vPL0}, 2, v{vPL0}')
    em.op(f's_mov_b32 s{sCNT}, 0x20000')
    if not keep: em.wait_vm0()
    em.label(lab)
    em.op(f'global_load_dword v{vPL1}, v{vPL0}, s[{base}:{base+1}] offset:{off} sc1')
    em.op(f's_sub_u32 s{sCNT}, s{sCNT}, 1')
    em.op(f's_cbranch_scc1 {lab}_done')
    em.wait_vm0()
    em.op(f'v_cmp_ne_u32 vcc, s{sTAG}, v{vPL1}')
    em.op('s_nop 4')
    em.op(f's_cbranch_vccz {lab}_done')
    em.op('s_sleep 1')
    em.op(f's_branch {lab}')
    em.label(f'{lab}_done')
    em.wait_vm0()

def tail(em, tv):
    nt, nq = [(3, 5), (3, 4), (2, 4), (2, 5)][tv]
    orole = tv >= 2
    L = f'v{vLANE}'
    rf = cfg.rfrac / 100
    sc = ' sc1' if cfg.sc else ''
    ACC2 = 116; AF = [76, 88]; BF = [16, 36]; CO = 176
    t0, t1, t2, t3 = 56, 57, 58, 59
    sDONE = sT3
    em.op(f'v_lshlrev_b32 v{t0}, 4, v0')
    em.op(f'v_add_u32 v{t1}, 61440, v{t0}')
    npc = 3 if tv == 0 else 2
    k = 0; sts = []
    for c in ((2,) if cfg.direct else range(3)):
        for i in range(npc):
            em.op(f'ds_read_b128 {vr(CO + 4*k)}, v{t1} offset:{c * 20480 + i * 8192}')
            sts.append((CO + 4*k, c * 18432 + i * 8192)); k += 1
    def reads(s, step, st_):
        ops = []
        for t in range(nt):
            ops.append(f'ds_read_b64_tr_b16 {vr(AF[st_] + 4*t, 2)}, v{vA2[t]} offset:{(s % 3) * 20480 + step * 10240}')
            ops.append(f'ds_read_b64_tr_b16 {vr(AF[st_] + 4*t + 2, 2)}, v{vA2[t]} offset:{(s % 3) * 20480 + step * 10240 + 5120}')
        xs = [f'ds_read_b128 {vr(BF[st_] + 4*j)}, v{vB2} offset:{(s % 3) * 20480 + step * 9216 + j * 1024}' for j in range(nq)]
        return ops[0:2] + xs[0:1] + ops[2:] + xs[1:]
    def acc(t, j): return ACC2 + 4 * (j * nt + t)
    def mf(st_, first):
        return [mfma(acc(t, j), AF[st_] + 4*t, BF[st_] + 4*j, None if first else acc(t, j)) for j in range(nq) for t in range(nt)]
    for r, off in sts:
        em.op(f's_mov_b32 s{sT0}, {off}')
        em.op(f'buffer_store_dwordx4 {vr(r)}, v{t0}, {sr(SO,4)}, s{sT0} offen' + ['', ' sc1', ' nt', ' sc0'][cfg.sc_o], tag='CO0' if off < 18432 else 'CO1')
    for o in reads(0, 0, 0): em.op(o)
    em.op(f'v_lshlrev_b32 v{t1}, 4, {L}')
    em.op(f's_and_b32 s{sT1}, s{sW}, 1')
    em.op(f's_add_u32 s{sT2}, s{sT1}, {2 if orole else 0}'); em.op(f's_mul_i32 s{sT2}, s{sT2}, 9'); em.op(f's_add_u32 s{sT2}, s{sT2}, s{sQ0}'); em.op(f's_lshl_b32 s{sT2}, s{sT2}, 10')
    em.op(f'v_add_u32 v{t2}, s{sT2}, v{t1}')
    em.op(f's_mul_i32 s{sT1}, s{sT1}, 5120'); em.op(f's_add_u32 s{sT1}, s{sT1}, {(36 + (3 if tv == 1 else 0)) * 1024}')
    em.op(f'v_add_u32 v{t3}, s{sT1}, v{t1}')
    def pack(a, b):
        o = [f'v_cvt_pk_bf16_f32 v{a}, v{a}, v{a+1}', f'v_cvt_pk_bf16_f32 v{a+1}, v{a+2}, v{a+3}']
        if b is not None: o += [f'v_cvt_pk_bf16_f32 v{a+2}, v{b}, v{b+1}', f'v_cvt_pk_bf16_f32 v{a+3}, v{b+2}, v{b+3}']
        return o
    def st(a, va, off):
        def f():
            em.op(f's_mov_b32 s{sT0}, {off}')
            em.op(f'buffer_store_dwordx4 {vr(a)}, v{va}, {sr(SP,4)}, s{sT0} offen{sc}')
        return f
    carry = []
    for s in range(12):
        if s == 1 and orole and cfg.epoll:
            em.op(f'global_load_dword v{vPL1}, v{vPL0}, s[{sF1}:{sF1+1}] sc1')
        if cfg.onew and s > 0: em.wait_lgkm0()
        interleave(em, mf(0, s == 0), (reads(s, 1, 1), 0, rf), (carry, 0.05, 0.95))
        if s == 1 and orole and cfg.epoll:
            em.op(f'v_cmp_ne_u32 vcc, s{sTAG}, v{vPL1}')
            em.op('s_nop 4')
            em.op(f's_cbranch_vccnz L_np{tv}')
            em.begin_opt()
            for f in tail_dma(em, 3, True): f()
            em.op(f's_mov_b32 s{sDONE}, 1')
            em.end_opt()
            em.label(f'L_np{tv}')
        carry = []
        if s < 11:
            if s == 0 and cfg.chunk: em.wait_vm_tag('CO0', lgkm0=True)
            elif s == 0: em.wait_vm0(); em.wait_lgkm0()
            elif s == cfg.chunk and cfg.chunk:
                em.wait_vm_tag('CO1'); em.wait_vm_tag(f'T{s+1}', lgkm0=True)
            else: em.wait_vm_tag(f'T{s+1}', lgkm0=True)
            em.barrier()
            em.st.stamp(f'T{s}')
        if s == 0 and tv == 2: flag_store(em, sF1, sJ, 'L_f1', 4)
        if cfg.chunk and s == cfg.chunk and tv == 3: flag_store(em, sF1, sJ, 'L_f1b', 6, 16)
        if cfg.chunk and s == (5 if cfg.direct else 2) and orole: em.op(f'global_load_dword v{vPL1}, v{vPL0}, s[{sF1}:{sF1+1}] offset:16 sc1')
        if cfg.chunk and s == (6 if cfg.direct else 3) and orole:
            em.op(f'v_cmp_ne_u32 vcc, s{sTAG}, v{vPL1}')
            em.op('s_nop 4')
            em.op(f's_cbranch_vccz L_p1c_{tv}')
            keep = em.save()[2]
            em.begin_opt()
            poll(em, sF1, 3, f'L_p1b_{tv}', 16, keep=True)
            em.end_opt()
            em.vm = keep
            em.label(f'L_p1c_{tv}')
        fill = []; dm = []
        if s < 11: fill += reads(s + 1, 0, 0)
        if s == 0 and orole and cfg.epoll:
            em.op(f's_mov_b32 s{sDONE}, 0')
            em.op(f'v_and_b32 v{vPL0}, 3, {L}'); em.op(f'v_lshlrev_b32 v{vPL0}, 2, v{vPL0}')
        if s + 3 <= 11:
            if not orole or s >= 2:
                dm = tail_dma(em, s + 3, orole); dm, carry = dm[:3], dm[3:]
            elif s == 1:
                if cfg.epoll:
                    em.op(f's_cmp_eq_u32 s{sDONE}, 1')
                    em.op(f's_cbranch_scc1 L_ep{tv}')
                    vm_before = em.save()[2]
                    em.begin_opt()
                poll(em, sF1, 3, f'L_p1_{tv}')
                for f in tail_dma(em, 3, True): f()
                if cfg.epoll:
                    em.end_opt()
                    em.label(f'L_ep{tv}')
                dm = tail_dma(em, 4, True)
        ins = []
        n = nt * nq
        if s == 11:
            groups = []
            for j in range(nq):
                groups.append((j * nt + 1, pack(acc(0, j), acc(1, j)) + [st(acc(0, j), t2, j * 1024)]))
                if nt == 3 and (j % 2 == 1 or j == nq - 1):
                    j0 = j - (j % 2)
                    groups.append((j * nt + 2, pack(acc(2, j0), acc(2, j) if j != j0 else None) + [st(acc(2, j0), t3, (j0 // 2) * 1024)]))
            lag = 4
            ins = [(g, (p + lag + 0.5) / n, (p + lag + 0.5) / n) for p, g in groups if p + lag < n]
            restg = [g for p, g in groups if p + lag >= n]
        interleave(em, mf(1, False), (dm, 0.05, 0.95), (fill, 0, rf), *ins)
    for g in restg:
        for o in g: emit(em, o)
    em.st.stamp('TP')
    sU, sDL = sT3, sT4
    if tv < 3:
        em.op(f's_lshl_b32 s{sU}, s{sW}, 3'); em.op(f's_add_u32 s{sU}, s{sU}, s{sX}')
        em.op(f's_lshl_b32 s{sT0}, s{sU}, 10')
        em.op(f'v_add_u32 v{t2}, s{sT0}, v{t1}')
        em.op(f's_mul_i32 s{sT0}, s{sU}, 57'); em.op(f's_lshr_b32 s{sT0}, s{sT0}, 9')
        em.op(f's_mul_i32 s{sT1}, s{sT0}, 9'); em.op(f's_sub_u32 s{sT1}, s{sU}, s{sT1}')
        em.op(f's_lshl_b32 s{sT0}, s{sT0}, 2'); em.op(f's_lshr_b32 s{sT0}, 0x8630, s{sT0}'); em.op(f's_and_b32 s{sT0}, s{sT0}, 15')
        em.op(f's_mov_b32 s{sDL}, 32')
        em.op(f's_cmp_lt_u32 s{sU}, 36')
        em.op(f's_cbranch_scc1 L_dec{tv}')
        em.begin_opt()
        em.op(f's_cmp_ge_u32 s{sU}, 41')
        em.op(f's_cselect_b32 s{sT0}, 5, 2')
        em.op(f's_cselect_b32 s{sT1}, 41, 36')
        em.op(f's_sub_u32 s{sT1}, s{sU}, s{sT1}')
        em.op(f's_cmp_eq_u32 s{sT1}, 2')
        em.op(f's_mov_b32 s{sDL}, 20480')
        em.op(f's_cselect_b32 s{sDL}, 0x40000000, s{sDL}')
        em.op(f's_lshl_b32 s{sT1}, s{sT1}, 2'); em.op(f's_lshr_b32 s{sT1}, 0x75420, s{sT1}'); em.op(f's_and_b32 s{sT1}, s{sT1}, 15')
        em.end_opt()
        em.label(f'L_dec{tv}')
        em.op(f's_lshl_b32 s{sT1}, s{sT1}, 4'); em.op(f's_mul_i32 s{sT2}, s{sB}, 144'); em.op(f's_add_u32 s{sT1}, s{sT1}, s{sT2}'); em.op(f's_mul_i32 s{sT1}, s{sT1}, 1280')
        em.op(f's_lshl_b32 s{sT0}, s{sT0}, 5'); em.op(f's_add_u32 s{sT1}, s{sT1}, s{sT0}')
        em.op(f's_mul_i32 s{sT0}, s{sJ}, 320'); em.op(f's_add_u32 s{sT1}, s{sT1}, s{sT0}')
        em.op(f'v_and_b32 v{t3}, 15, {L}'); em.op(f'v_mul_u32_u24 v{t3}, 1280, v{t3}')
        em.op(f'v_lshrrev_b32 v{t0}, 4, {L}'); em.op(f'v_lshl_add_u32 v{t3}, v{t0}, 3, v{t3}')
        em.op(f'v_add_u32 v{t3}, s{sT1}, v{t3}')
    em.wait_vm0(); em.barrier()
    em.st.stamp('TW')
    if tv == 3:
        flag_store(em, sF2, sX, 'L_f2', 7)
    else:
        if tv == 2:
            em.op(f's_cmp_ge_u32 s{sU}, 46')
            em.op(f's_cbranch_scc1 L_fin2')
        poll(em, sF2, 7, f'L_p2_{tv}')
        em.st.stamp('TF')
        for x in range(8):
            em.op(f's_mov_b32 s{sT0}, {x * PART2}')
            em.op(f'buffer_load_dwordx4 {vr(76 + 4*x)}, v{t2}, {sr(SPR,4)}, s{sT0} offen{sc}')
        if tv == 0:
            em.op(f's_or_b32 s{sT0}, s{sH}, s{sW}')
            em.op(f's_cmp_eq_u32 s{sT0}, 0')
            em.op('s_cbranch_scc0 L_nw')
            em.begin_opt()
            em.op(f's_lshl_b32 s{sT0}, s{sB}, 8'); em.op(f's_add_u32 s{sT0}, s{sT0}, {FLAG_OFF}')
            em.op(f'v_mov_b32 v60, s{sT0}'); em.op(f'v_mov_b32 v61, s{sTAG}')
            em.op('s_mov_b64 exec, 1')
            em.op('global_store_dword v60, v61, s[12:13]' + (' sc1' if cfg.osc in (1, 3) else ''))
            em.op('s_mov_b64 exec, -1')
            em.end_opt()
            em.label('L_nw')
        A = 108
        for x in range(8):
            for d in range(4):
                r = 76 + 4*x + d
                if x == 0:
                    em.op(f'v_lshlrev_b32 v{A+2*d}, 16, v{r}'); em.op(f'v_and_b32 v{A+2*d+1}, 0xffff0000, v{r}')
                else:
                    tp = A + 8 + 2 * (d & 1)
                    em.op(f'v_lshlrev_b32 v{tp}, 16, v{r}'); em.op(f'v_and_b32 v{tp+1}, 0xffff0000, v{r}')
                    em.op(f'v_pk_add_f32 {vr(A+2*d,2)}, {vr(A+2*d,2)}, {vr(tp,2)}')
        for d in range(4): em.op(f'v_cvt_pk_bf16_f32 v{A+d}, v{A+2*d}, v{A+2*d+1}')
        em.op(f'buffer_store_dwordx2 {vr(A,2)}, v{t3}, {sr(SOUT,4)}, 0 offen' + ['', ' sc1', ' nt', ' sc0 sc1'][cfg.osc])
        em.op(f'buffer_store_dwordx2 {vr(A+2,2)}, v{t3}, {sr(SOUT,4)}, s{sDL} offen' + ['', ' sc1', ' nt', ' sc0 sc1'][cfg.osc])
        if tv == 2: em.label('L_fin2')
    if cfg.diag: em.wait_vm0()
    em.st.flush(12, 0, sW, 244)
    em.op('s_endpgm')

def kernel_header(name):
    return f'.globl {name}\n.p2align 8\n.type {name},@function\n{name}:\n'
def kernel_desc(name, vgpr, sgpr=102):
    return f'''.amdhsa_kernel {name}
  .amdhsa_next_free_vgpr {vgpr}
  .amdhsa_next_free_sgpr {sgpr}
  .amdhsa_accum_offset {(vgpr + 3) // 4 * 4}
  .amdhsa_group_segment_fixed_size 0
  .amdhsa_kernarg_size 64
  .amdhsa_user_sgpr_count 2
  .amdhsa_user_sgpr_kernarg_segment_ptr 1
  .amdhsa_system_sgpr_workgroup_id_x 1
.end_amdhsa_kernel
'''

def gen_k1():
    em = Em(); EM[0] = em
    k1_prologue(em)
    st0 = em.save()
    em.label('k1_body_start')
    for qh in range(2):
        sts = []
        for typ in ((1, 0) if cfg.n0 else (0,)):
            if qh or typ == 0 and cfg.n0: em.label(f'L_qp{qh}{typ}')
            em.restore(st0)
            em.typ = typ
            k1_qproj(em, qh, typ)
            k1_qk(em, qh)
            sts.append(em.save())
            if typ == 1: em.op(f's_branch L_sm{qh}')
        if len(sts) == 2:
            t = [[e[0] for e in s[2]] for s in sts]
            lo, hi = sorted(range(2), key=lambda i: len(t[i]))
            assert t[hi][len(t[hi]) - len(t[lo]):] == t[lo], t
            em.restore(sts[hi]); em.hist = []
            em.label(f'L_sm{qh}')
        k1_sm0(em, qh)
        k1_pv(em, qh)
    em.label('k1_body_end')
    em.label('L_k1_exit')
    em.op('s_endpgm')
    return em

def main():
    ref = open('cdna_kernels/' + NAME + '.s.ref').read().split('\n')
    head = [l for l in ref[:9]]
    k1 = gen_k1()
    KN = NAME + '_kernel'
    out = '\n'.join(head) + '\n'
    out += f'; @launch grid=(256,1,1) block=(512,1,1) lds={LDS1}\n'
    out += '.amdgcn_target "amdgcn-amd-amdhsa--gfx950"\n.text\n'
    out += kernel_header(KN) + k1.text()
    out += '.section .rodata,"a"\n.p2align 6\n' + kernel_desc(KN, 256)
    open(sys.argv[1], 'w').write(out)
    print('k1 instrs', k1.count, 'nops', k1.nops, file=sys.stderr)
main()
```

```python
import sys, struct, math
from em import Em, interleave, emit

NAME = 'standalone__gqa_block_cached__near_ridge'
def fbits(x): return struct.unpack('<I', struct.pack('<f', x))[0]

class Cfg:
    nt_kv = True
    nt_w = False
    nt_k2 = False
    two_types = True
    pre = True
    code_pre = True
    diag = False
    pk = True
    rfrac = 60
    prio = 0
    x_noexp = 0
    x_nopw = 0
    efrac = 95
    loopb = -1
    st = 0
    dbg = 0
    n0 = 1
    inpv0 = 0
    inpv1 = 0
    pfa = 5
    kq = 12
    kq0 = 7
    wont = 0
    vrf = 60
    x_ren = 0
    vrole = 1
    vfirst = 0
    vold = 0
    vh0 = 12
    wsoff = 0
    cearly = 1
    osc = 0
    pfxp = 10
    pfw = 10
    vpf = 0
    vpq = 0
    vpq_in = 4
    vpnt = 1
    spin = 0
    spst = -1
    spty = -1
    direct = 1
    chunk = 1
    onew = 1
    qlate = 0
    drole = 0
    in0 = 0
    in1 = 0
    epoll = 1
    pfx = 10
    opair = 1
    tsq = 1
    g2e = 0
    wo0 = 1
    pfnt = 0
    pfown = 10
    pfall = 1
    nt_k = 1
    nt_v = 1
    eager = 3
    eagerv = 0
    qwi = 1
    g2lo = 0
    g2hi = 30
    valo = 0
    vahi = 60
    pf1 = 10
    v0e = 0
    kqb = 0
    kqb0 = 7
    vb = 0
    vreg = 0
    nvy = 4
    sc_o = 1
    sc_ol = 1
    rt = 0
    qloop = 0
    x_qnodma = 0
    x_qnord = 0
    dlo = 10
    dhi = 95
    dsplit = 3
    x_delay = 0
    wopre = 1
    sc = 1
    x_nobar = 0
    x_nord = 0
    x_nodma = 0
cfg = Cfg()
cfg.pvst = (3,7); cfg.qst = (0,8,)
if 'pvall=1' in sys.argv: sys.argv.remove('pvall=1'); cfg.pvst = (0,1,2,3,4,5,6,7); cfg.qst = (); cfg.fewst = True
else: cfg.fewst = False
for a in sys.argv[2:]:
    k, v = a.split('='); setattr(cfg, k, type(getattr(cfg, k))(int(v)))
STSETS = {0: 'S0 BQ PV0 BO T2 TW', 1: 'ka pi si S0 B0 B8 BQ K0 K1 QKend BM exp0 PV0', 2: 'PV0 PB0 PB1 PB2 PB3 PB4 PB5 PB6', 9: 'BM exp0 PV0 PB3 PB6 PB7 BO T0', 3: 'BO T0 T1 T2 TW TF', 4: 'K0 K1 QKend BM exp0 PV0 PB3 PB7 BO T0', 8: '', 5: 'S0 LB0 LBend BQ', 6: 'S0 B0 B1 B2 B3 B5 B7 B8 B9 BQ', 7: 'BO T0 T1 T2 T3 T4 T6 T8 T10 TP'}
cfg.stlist = ['rt0', 'start'] + STSETS[cfg.st].split()[:6] + ['end', 'rt_end']
cfg.pvst = range(8); cfg.qst = range(10)
cfg.types = bool(cfg.n0)

def vr(b, n=4): return f'v[{b}:{b + n - 1}]' if n > 1 else f'v{b}'
def sr(b, n): return f's[{b}:{b + n - 1}]'
MF = 'v_mfma_f32_16x16x32_bf16'
def mfma(d, a, b, c=None):
    return f'{MF} {vr(d)}, {vr(a)}, {vr(b)}, ' + ('0' if c is None else vr(c))

FLAG_OFF = 28 << 20
PART2 = 47104
O_HEAD = 55296
WS_PART = 16 << 20
PART_TILE = 90 * 1024

def srd(em, d, base_lo, base_hi, off_sgpr, size):
    if off_sgpr is None:
        em.op(f's_mov_b32 s{d}, s{base_lo}'); em.op(f's_mov_b32 s{d+1}, s{base_hi}')
    else:
        em.op(f's_add_u32 s{d}, s{base_lo}, {off_sgpr}'); em.op(f's_addc_u32 s{d+1}, s{base_hi}, 0')
    em.op(f's_mov_b32 s{d+2}, {size}')
    em.op(f's_mov_b32 s{d+3}, 0x20000')

_lab = [0]
DIAG_OFF = 64 << 20
class Stamps:
    def __init__(self, em):
        self.em = em; self.n = 0; self.names = []
        if cfg.diag:
            for i in range(len(cfg.stlist)): em.op(f's_mov_b32 s{60 + 2*i}, 0')
    def stamp(self, name, real=False):
        if cfg.spin:
            L = ['S0', 'BQ', 'BM', 'PV0', 'BO', 'T2', 'TW', 'TF']
            if name == 'rt0' or (cfg.spst >= 0 and name == L[cfg.spst]):
                r = 76 if name == 'rt0' else 78
                self.em.wait_lgkm0()
                self.em.op(f's_memrealtime s[{r}:{r+1}]'); self.em.op('s_waitcnt lgkmcnt(0)')
                if name == 'rt0': self.em.op('s_mov_b32 s78, s76')
            return
        if not cfg.diag or name not in cfg.stlist: return
        em = self.em; i = cfg.stlist.index(name)
        em.wait_lgkm0()
        em.op(('s_memrealtime' if (real or cfg.rt) else 's_memtime') + f' s[{60 + 2*i}:{61 + 2*i}]')
        em.op('s_waitcnt lgkmcnt(0)')
    def flush(self, ws_lo, kidx, wave_s, tv):
        if cfg.spin:
            em = self.em; _lab[0] += 1
            if cfg.spty >= 0:
                em.op(f's_cmp_eq_u32 s39, {cfg.spty}'); em.op('s_cselect_b32 s78, s78, s76')
            em.op('s_sub_u32 s78, s78, s76'); em.op(f's_add_u32 s78, s78, {cfg.spin}')
            em.label(f'L_sp{_lab[0]}')
            em.op('s_sleep 2')
            em.op('s_memrealtime s[74:75]'); em.op('s_waitcnt lgkmcnt(0)')
            em.op('s_sub_u32 s74, s74, s76'); em.op('s_cmp_lt_u32 s74, s78'); em.op(f's_cbranch_scc1 L_sp{_lab[0]}')
            return
        if not cfg.diag: return
        em = self.em
        self.stamp('end'); self.stamp('rt_end', real=True)
        if cfg.dbg:
            _lab[0] += 1
            em.op('s_load_dwordx2 s[56:57], s[0:1], 48')
            em.op(f's_and_b32 s58, s2, 0xdf'); em.op(f's_or_b32 s58, s58, s{wave_s}'); em.op('s_cmp_eq_u32 s58, 0')
            em.op('s_waitcnt lgkmcnt(0)')
            em.op(f's_cbranch_scc0 L_dbg{_lab[0]}')
            em.op(f'v_mov_b32 v{tv}, s2')
            for k, i in enumerate([2, 3, 4, 13, 6, 9, 11, 12]):
                em.op(f's_sub_u32 s58, s{60 + 2*i}, s{60 if i == 13 else 62}')
                em.op(f'v_mov_b32 v{tv+1}, s58')
                em.op(f'global_store_dword v{tv}, v{tv+1}, s[56:57] offset:{4*k}')
            em.label(f'L_dbg{_lab[0]}')
            return
        em.op(f's_lshl_b32 s56, s2, 3'); em.op(f's_add_u32 s56, s56, s{wave_s}'); em.op('s_lshl_b32 s56, s56, 7')
        em.op(f's_add_u32 s56, s56, {DIAG_OFF + (kidx << 20)}')
        em.op(f's_add_u32 s56, s{ws_lo}, s56'); em.op(f's_addc_u32 s57, s{ws_lo+1}, 0')
        em.op(f'v_mov_b32 v{tv}, 0')
        for i in range(len(cfg.stlist)):
            em.op(f'v_mov_b32 v{tv+1}, s{60 + 2*i}')
            em.op(f'global_store_dword v{tv}, v{tv+1}, s[56:57] offset:{4*i}')
        print('stamps', kidx, cfg.stlist, file=sys.stderr)

SX, SWQ, SK, SV, SO = 16, 20, 24, 28, 32
sW, sW3072, sW1024, sTYPE, sOFF, sT0, sT1, sT2, sC, sB, sH, sJ, sLOC, sX = 36, 37, 38, 39, 40, 41, 42, 43, 44, 52, 46, 47, 48, 53
vLANE, vXO, vWO, vK0, vK1, vVO = 1, 2, 3, 4, 5, 6
vRA = [7, 8]
vRB = [9, 10, 11]
vRC = [12, 13, 14]
vT = 15
vOW = [8, 254, 255]
vVW, vVW2 = 7, 8
vPA, vPW, vMS = 240, 242, 243
vPW2 = 241
TMP = list(range(244, 256))
STG = 43008
PBASE, VBASE, MAXB, SUMB = 0, 55296, 153600, 155648
NV = 4
def vslot(s): return [3, 1, 2, 0][s % 4]
LDS1 = SUMB + 12 * 512
def kop(kt, ks): return 16 + 4 * (kt * 6 + ks)
def sreg(kt, qt):
    if kt < 2: return 116 + 4 * (qt * 2 + kt)
    i = qt * 2 + (kt - 2)
    return 16 + 4 * i if i < 12 else 188 + 4 * (i - 12)
ACC = 116
MC = 212
SUM = 221
SUMP = 222
QF = 224
OACC0 = [116 + 4*i for i in range(15)]
OACC1 = [120 + 8*i for i in range(9)] + [100, 80, 208]
PAF0 = [[176, 180, 184], [104, 108, 112]]
PAF1 = [[200, 192, 60], [104, 108, 112]]
PBF0 = [[64, 68, 72, 76, 80], [84, 88, 92, 96, 100]]
PBF1 = [[64, 68, 72, 76], [84, 88, 92, 96]]
INV0 = 212
NEXP1 = 4


sKB = 57
vKR = [250, 251]
vVO3 = 252
def k_dma_ops(em, half):
    nt = ' nt' if cfg.nt_kv and cfg.nt_k else ''
    ops = []
    for c in range(3):
        for k in range(2):
            for p in range(2):
                def f(c=c, k=k, p=p):
                    em.op(f's_add_u32 m0, s{sKB}, {(k * 3 + c) * 2048 + p * 1024 - c * 128}')
                    em.op(f's_mov_b32 s{sOFF}, {(half * 2 + k) * 6144}')
                    em.op(f'buffer_load_dwordx4 v{vK1 if p else vK0}, {sr(SK,4)}, s{sOFF} offen offset:{c*128}{nt} lds', tag=f'K{half}_{c * 2 + k}')
                ops.append(f)
    return ops
def k_rd_ops(half, u):
    c, k = divmod(u, 2)
    return [f'ds_read_b128 {vr(kop(half * 2 + k, 2 * c + e))}, v{vKR[e]} offset:{(k * 3 + c) * 2048}' for e in range(2)]
def k_fetch(em, half, nxt):
    for u in range(6):
        em.wait_vm_tag(f'K{half}_{u}')
        for o in k_rd_ops(half, u): em.op(o)
        if nxt and u:
            em.waitcnt(lgkm=2); em.lgkm = em.lgkm[-2:]
            for f in nxt[2 * u - 2: 2 * u]: f()
    if nxt:
        em.wait_lgkm0()
        for f in nxt[10:12]: f()
def va_ops(em):
    nt = ' nt' if cfg.nt_kv and cfg.nt_v else ''
    ops = []
    for rg in range(4):
        for c in range(3):
            def f(c=c, rg=rg):
                em.op(f's_add_u32 m0, s{sKB}, {rg * 3072 + c * 896}')
                em.op(f's_mov_b32 s{sOFF}, {rg * 3072}')
                em.op(f'buffer_load_dwordx4 v{vVO3}, {sr(SV,4)}, s{sOFF} offen offset:{c*128}{nt} lds', tag='VA')
            ops.append(f)
    return ops

def stage_dma_ops(em, s, qh):
    nt = ' nt' if cfg.nt_w else ''
    slot = (s % 3) * 18432
    ops = []
    for c in range(3):
        def f(c=c):
            em.op(f's_add_u32 m0, s{sW3072}, {VBASE + (s % 3) * 24576 + c * 896}')
            if c == 0: em.op(f's_mov_b32 s{sOFF2}, {s * 786432}')
            em.op(f'buffer_load_dwordx4 v{vWO}, {sr(SWQ,4)}, s{sOFF2} offen offset:{c*128}{nt} lds', tag=f'S{s}')
        ops.append(f)
    for j in range(2):
        def f(j=j):
            em.op(f's_add_u32 m0, s{sW1024}, {slot + j * 8192}')
            em.op(f's_mov_b32 s{sOFF}, {s * 128 + j * 81920}')
            em.op(f'buffer_load_dwordx4 v{vXO}, {sr(SX,4)}, s{sOFF} offen{nt} lds', tag=f'S{s}')
        ops.append(f)
    if qh == 1:
        def f():
            _lab[0] += 1
            lab = f'L_x{_lab[0]}'
            em.op(f's_cmp_lt_u32 s{sW}, 6')
            em.op(f's_cbranch_scc0 {lab}')
            em.begin_opt()
            em.op(f's_add_u32 m0, s{sW1024}, {slot + 12288}')
            em.op(f's_mov_b32 s{sOFF}, {s * 128 + 122880}')
            em.op(f'buffer_load_dwordx4 v{vXO}, {sr(SX,4)}, s{sOFF} offen{nt} lds', tag=f'S{s}')
            em.end_opt()
            em.label(lab)
        ops.insert(0, f)
    return ops

def v_dma_ops(em, s):
    nt = ' nt' if cfg.nt_kv and cfg.nt_v else ''
    ops = []
    for c in range(3):
        def f(c=c):
            em.op(f's_add_u32 m0, s{sW3072}, {VBASE + vslot(s) * 24576 + c * 896}')
            em.op(f's_mov_b32 s{sOFF}, {(128 * (s & 3) + 32 * (s >> 2)) * 384}')
            em.op(f'buffer_load_dwordx4 v{vVO}, {sr(SV,4)}, s{sOFF} offen offset:{c*128}{nt} lds', tag=f'V{s}')
        ops.append(f)
    return ops

sDG = 49
sPFS, sPFB = 45, 50
sOFF2 = 3
vPF = 241
def pf_ops():
    if not cfg.pre: return []
    nt = ' nt' if cfg.nt_w else ''
    return [f'global_load_dwordx4 {vr(112)}, v{vPF}, s[{sPFB}:{sPFB+1}]{nt}', f'v_add_u32 v{vPF}, s{sPFS}, v{vPF}']
sTAG, sSTR, sF1, sF2, sHB, sM0T, sQ0, sNH, sCNT = 88, 89, 90, 92, 94, 98, 99, 100, 101
VST = 64
def v_reg_ops(em):
    nt = ' nt' if cfg.nt_kv and cfg.nt_v else ''
    ops = []
    for s in range(4, 8):
        for c in range(3):
            def f(s=s, c=c):
                em.op(f's_mov_b32 s{sOFF}, {(128 * (s & 3) + 32 * (s >> 2)) * 384}')
                em.op(f'buffer_load_dwordx4 {vr(VST + 4 * ((s - 4) * 3 + c))}, v{vVO}, {sr(SV,4)}, s{sOFF} offen offset:{c*128}{nt}', tag=f'V{s}')
            ops.append(f)
    return ops
def v_put_ops(s):
    slot = vslot(s)
    return [f'ds_write_b128 v{vVW if slot < 2 else vVW2}, {vr(VST + 4 * ((s - 4) * 3 + c))} offset:{(slot % 2) * 24576 + c * 1024}' for c in range(3)]

vPF2 = 254
VTMP = [248, 249, 253]
def pf2_ops():
    nt = ' nt' if cfg.nt_w else ''
    return [f'global_load_dwordx4 {vr(112)}, v{vPF2}, s[{sPFB}:{sPFB+1}]{nt}', f'v_add_u32 v{vPF2}, s{sPFS}, v{vPF2}']

def v_pf_ops(em, blk_delta=0):
    nt = ' nt' if cfg.vpnt else ''
    ops = []
    for s in range(4, 8):
        for c in range(3):
            def f(s=s, c=c):
                em.op(f's_mov_b32 s{sOFF}, {(128 * (s & 3) + 32 * (s >> 2)) * 384 + blk_delta}')
                em.op(f's_mov_b32 m0, {MAXB + 640}')
                em.op(f'buffer_load_dwordx4 v{vVO}, {sr(SV,4)}, s{sOFF} offen offset:{c*128}{nt} lds', tag='VP')
            ops.append(f)
    return ops

def k1_prologue(em):
    em.op('s_cmp_ge_u32 s2, 256')
    em.op('s_cbranch_scc1 L_k1_exit')
    em.st = Stamps(em); em.st.stamp('rt0', real=True); em.st.stamp('start')
    em.op('s_load_dwordx8 s[4:11], s[0:1], 0')
    em.op('s_load_dwordx2 s[12:13], s[0:1], 56')
    em.op('s_load_dwordx2 s[14:15], s[0:1], 32')
    em.op('s_load_dwordx2 s[54:55], s[0:1], 40')
    em.op(f'v_and_b32 v{vLANE}, 63, v0')
    em.op(f'v_lshrrev_b32 v{vT}, 6, v0')
    em.op(f's_and_b32 s{sX}, s2, 7')
    em.op(f's_lshr_b32 s{sLOC}, s2, 3')
    em.op(f'v_readfirstlane_b32 s{sW}, v{vT}')
    t0, t1, t2, t3, t4, t5 = TMP[:6]
    L = f'v{vLANE}'
    em.op(f's_and_b32 s{sJ}, s{sLOC}, 3')
    em.op(f's_lshr_b32 s{sB}, s{sLOC}, 2')
    em.op(f's_lshl_b32 s{sH}, s{sX}, 2')
    em.op(f's_add_u32 s{sH}, s{sH}, s{sJ}')
    em.op(f's_and_b32 s{sTYPE}, s{sB}, 1')
    em.op(f's_lshl_b32 s{sT0}, s{sLOC}, 1'); em.op(f's_mul_i32 s{sT0}, s{sT0}, 12288'); em.op(f's_mul_i32 s{sT1}, s{sX}, 1536'); em.op(f's_add_u32 s{sT0}, s{sT0}, s{sT1}')
    em.op(f's_lshl_b32 s{sT1}, s{sW}, 9'); em.op(f's_add_u32 s{sT0}, s{sT0}, s{sT1}')
    em.op(f'v_lshrrev_b32 v{t3}, 5, {L}'); em.op(f'v_mul_u32_u24 v{t3}, 12288, v{t3}')
    em.op(f'v_and_b32 v{t4}, 31, {L}'); em.op(f'v_lshlrev_b32 v{t4}, 4, v{t4}')
    em.op(f'v_add3_u32 v{t5}, v{t3}, v{t4}, s{sT0}')
    em.op(f'v_lshrrev_b32 v{t0}, 3, {L}')
    em.op(f'v_and_b32 v{t1}, 7, {L}')
    em.op(f'v_lshrrev_b32 v{t2}, 4, {L}')
    em.op(f's_mul_i32 s{sT0}, s{sLOC}, 36'); em.op(f's_lshl_b32 s{sT2}, s{sW}, 3'); em.op(f's_add_u32 s{sT0}, s{sT0}, s{sT2}'); em.op(f's_sub_u32 s{sT0}, s{sT0}, 24')
    em.op(f'v_add_u32 v{t3}, s{sT0}, v{t0}')
    em.op(f's_cmp_lt_u32 s{sW}, 3')
    em.op(f's_cselect_b64 vcc, -1, 0')
    em.op(f's_movk_i32 s{sPFS}, 128')
    em.op(f's_cselect_b32 s{sPFS}, 786432, s{sPFS}')
    for dst, dr, dw in ((vPF, 0, 0), (vPF2, 144, 98304) if not cfg.pfall else (vPF2, -144 & 0xffffffff, -98304 & 0xffffffff)):
        if dst == vPF2 and cfg.pf1 >= 10 and not cfg.pfall: continue
        em.op(f'v_add_u32 v{t4}, {dr}, v{t3}'); em.op(f'v_min_u32 v{t4}, 1151, v{t4}')
        em.op(f'v_mul_u32_u24 v{t4}, 1280, v{t4}')
        em.op(f'v_lshl_add_u32 v{t4}, v{t1}, 4, v{t4}')
        em.op(f'v_add_u32 v{dst}, {dw}, v{t5}')
        em.op(f'v_cndmask_b32 v{dst}, v{t4}, v{dst}, vcc')
    if cfg.pf1 < 10:
        em.op(f's_mul_i32 s{sT0}, s{sPFS}, {cfg.pf1}'); em.op(f'v_add_u32 v{vPF2}, s{sT0}, v{vPF2}')
    em.op(f's_and_b32 s{sDG}, s{sW}, 3')
    em.op(f's_mul_i32 s{sW3072}, s{sW}, 3072')
    em.op(f's_lshl_b32 s{sW1024}, s{sW}, 10')
    em.op(f's_and_b32 s{sT0}, s{sW}, 1')
    em.op(f's_lshl_b32 s{sT1}, s{sT0}, 2')
    em.op(f'v_add_u32 v{t3}, s{sT1}, v{t2}')
    em.op(f'v_xor_b32 v{t3}, v{t3}, v{t1}')
    em.op(f'v_add_u32 v{t4}, s{sT2}, v{t0}')
    em.op(f'v_mul_u32_u24 v{vXO}, 1280, v{t4}')
    em.op(f'v_lshl_add_u32 v{vXO}, v{t3}, 4, v{vXO}')
    em.op(f'v_and_b32 v{t3}, 1, v{t2}')
    em.op(f'v_lshl_add_u32 v{t3}, v{t3}, 1, s{sT1}')
    em.op(f'v_xor_b32 v{t3}, v{t3}, v{t1}')
    em.op(f'v_mul_u32_u24 v{vWO}, 12288, v{t4}')
    em.op(f'v_lshl_add_u32 v{vWO}, v{t3}, 4, v{vWO}')
    em.op(f's_lshl_b32 s{sT2}, s{sW}, 6')
    em.op(f'v_add_u32 v{t4}, s{sT2}, v{t0}')
    em.op(f'v_mul_u32_u24 v{t4}, 384, v{t4}')
    em.op(f'v_xor_b32 v{t3}, v{t2}, v{t1}')
    em.op(f'v_lshl_add_u32 v{vK0}, v{t3}, 4, v{t4}')
    em.op(f'v_xor_b32 v{vK1}, 64, v{vK0}')
    em.op(f'v_add_u32 v{vK1}, {8 * 384}, v{vK1}')
    em.op(f'v_lshlrev_b32 v{t3}, 1, v{t2}')
    em.op(f'v_xor_b32 v{t3}, v{t3}, v{t1}')
    em.op(f'v_lshl_add_u32 v{vVO3}, v{t3}, 4, v{t4}')
    em.op(f's_and_b32 s{sT1}, s{sW}, 6'); em.op(f's_lshr_b32 s{sKB}, 0x27, s{sT1}'); em.op(f's_and_b32 s{sKB}, s{sKB}, 3')
    em.op(f's_lshl_b32 s{sKB}, s{sKB}, 1'); em.op(f's_add_u32 s{sKB}, s{sKB}, s{sT0}'); em.op(f's_mul_i32 s{sKB}, s{sKB}, 12288'); em.op(f's_add_u32 s{sKB}, s{sKB}, {VBASE}')
    em.op(f'v_bfe_u32 v{t3}, {L}, 3, 1'); em.op(f'v_lshlrev_b32 v{t3}, 10, v{t3}')
    em.op(f'v_lshl_add_u32 v{t3}, v{t1}, 7, v{t3}')
    em.op(f'v_bfe_u32 v{t4}, {L}, 1, 3')
    em.op(f'v_xor_b32 v{t4}, v{t4}, v{t2}'); em.op(f'v_lshlrev_b32 v{vT}, 4, v{t4}')
    em.op(f'v_add_u32 v{vRA[0]}, v{t3}, v{vT}')
    em.op(f'v_add_u32 v{vKR[0]}, s{sKB}, v{vRA[0]}')
    em.op(f'v_xor_b32 v{vKR[1]}, 64, v{vKR[0]}')
    em.op(f's_lshr_b32 s{sT1}, s{sW}, 2'); em.op(f's_lshl_b32 s{sT1}, s{sT1}, 6')
    em.op(f's_lshl_b32 s{sT0}, s{sDG}, 3'); em.op(f's_add_u32 s{sT0}, s{sT0}, s{sT1}')
    em.op(f'v_add_u32 v{t3}, s{sT0}, v{t0}')
    em.op(f'v_mul_u32_u24 v{vVO}, 384, v{t3}')
    em.op(f'v_lshlrev_b32 v{t3}, 1, v{t2}')
    em.op(f'v_xor_b32 v{t3}, v{t3}, v{t1}')
    em.op(f'v_lshl_add_u32 v{vVO}, v{t3}, 4, v{vVO}')
    em.op(f's_mul_i32 s{SX+3}, s{sB}, 184320')
    em.op(f's_mul_i32 s{SWQ+3}, s{sH}, 384')
    em.op(f's_lshl_b32 s{sT1}, s{sB}, 5'); em.op(f's_add_u32 s{sT1}, s{sT1}, s{sH}')
    em.op(f's_mul_i32 s{sT2}, s{sT1}, 196608')
    em.op(f's_mul_i32 s{SO+3}, s{sT1}, {O_HEAD}')
    em.op(f's_lshl_b32 s{sT0}, s{sB}, 8'); em.op(f's_add_u32 s{sT0}, s{sT0}, {FLAG_OFF}')
    em.op(f's_mov_b32 s{SX+2}, 184320'); em.op(f's_sub_u32 s{SWQ+2}, 7864320, s{SWQ+3}')
    em.op(f's_cmp_lt_u32 s{sW}, 3')
    em.op('s_waitcnt lgkmcnt(0)')
    em.st.stamp('ka')
    if cfg.diag: em.op(f's_cmp_lt_u32 s{sW}, 3')
    em.op(f's_cselect_b64 s[{sPFB}:{sPFB+1}], s[10:11], s[4:5]')
    for i in range(0 if cfg.pfall else 3):
        for o in pf_ops(): em.op(o)
    if cfg.cearly:
        em.op('s_getpc_b64 s[58:59]')
        em.label('L_pce')
        em.op('s_add_u32 s58, s58, k1_body_start-L_pce')
        em.op('s_addc_u32 s59, s59, 0')
        em.op(f's_and_b32 s{sT1}, s{sLOC}, 15')
        em.op(f's_lshl_b32 s{sT1}, s{sT1}, 13')
        em.op(f'v_lshlrev_b32 v{TMP[11]}, 4, v0')
        em.op(f'v_add_u32 v{TMP[11]}, s{sT1}, v{TMP[11]}')
        em.op(f'v_min_u32 v{TMP[11]}, k1_body_end-k1_body_start-16, v{TMP[11]}')
        em.op(f'global_load_dwordx4 {vr(112)}, v{TMP[11]}, s[58:59]')
    if cfg.wsoff:
        em.op(f's_add_u32 s12, s12, {cfg.wsoff << 20}'); em.op('s_addc_u32 s13, s13, 0')
    em.op(f's_load_dword s{sTAG}, s[12:13], s{sT0}')
    em.op(f's_add_u32 s{SWQ}, s10, s{SWQ+3}'); em.op(f's_addc_u32 s{SWQ+1}, s11, 0'); em.op(f's_mov_b32 s{SWQ+3}, 0x20000')
    em.op(f's_add_u32 s{SX}, s4, s{SX+3}'); em.op(f's_addc_u32 s{SX+1}, s5, 0'); em.op(f's_mov_b32 s{SX+3}, 0x20000')
    srd(em, SK, 6, 7, f's{sT2}', 196608); srd(em, SV, 8, 9, f's{sT2}', 196608)
    if cfg.n0 or cfg.pfall:
        em.op(f's_cmp_eq_u32 s{sTYPE}, 1')
        em.op('s_cbranch_scc0 L_nok1')
        em.begin_opt()
        em.op(f's_cmp_lt_u32 s{sW}, 3')
        em.op('s_cbranch_scc0 L_pfx')
        for i in range(cfg.pfw):
            for o in pf2_ops() + pf_ops(): em.op(o)
        em.op('s_branch L_nok1')
        em.label('L_pfx')
        for i in range(cfg.pfxp):
            for o in pf2_ops(): em.op(o)
        for i in range(cfg.pfx):
            for o in pf_ops(): em.op(o)
        em.end_opt()
        em.label('L_nok1')
    if cfg.n0:
        em.op(f's_lshr_b32 s{sT0}, s{sW}, 2'); em.op(f's_lshl_b32 s{sT0}, s{sT0}, 1'); em.op(f's_or_b32 s{sT0}, s{sT0}, s{sTYPE}')
        for v in (0, 2, 3):
            em.op(f's_cmp_eq_u32 s{sT0}, {v}')
            em.op(f's_cbranch_scc1 L_qp{v >> 1}{v & 1}')
    else:
        em.op(f's_cmp_lt_u32 s{sW}, 4')
        em.op('s_cbranch_scc0 L_qp10')

def tile_m(em, t):
    tab = [[0, 4, 6, 10], [1, 5, 7, 11], [2, 3, 8, 9]][t]
    em.op(f's_lshl_b32 s{sT0}, s{sDG}, 2')
    em.op(f's_lshr_b32 s{sT0}, {sum(v << (4 * i) for i, v in enumerate(tab))}, s{sT0}')
    em.op(f's_and_b32 s{sT0}, s{sT0}, 15')

def tr_addr(em, dst, t, base, fmode):
    t0, t1, t2, t3 = TMP[:4]
    L = f'v{vLANE}'
    if fmode == 'v' and cfg.opair: tile_m(em, t)
    else:
        em.op(f's_mul_i32 s{sT0}, s{sDG}, 3'); em.op(f's_add_u32 s{sT0}, s{sT0}, {t}')
    em.op(f's_lshr_b32 s{sT1}, s{sT0}, 2'); em.op(f's_lshl_b32 s{sT1}, s{sT1}, 10')
    em.op(f's_add_u32 s{sT1}, s{sT1}, {base}')
    em.op(f's_and_b32 s{sT0}, s{sT0}, 3')
    em.op(f'v_lshrrev_b32 v{t0}, 4, {L}')
    em.op(f'v_bfe_u32 v{t1}, {L}, 2, 2')
    em.op(f'v_and_b32 v{t2}, 1, v{t0}')
    em.op(f'v_lshlrev_b32 v{t2}, 1, v{t2}')
    em.op(f'v_lshrrev_b32 v{t3}, 1, v{t1}')
    em.op(f'v_add_u32 v{t3}, v{t3}, v{t2}')
    em.op(f'v_xor_b32 v{t3}, s{sT0}, v{t3}')
    em.op(f'v_lshlrev_b32 v{t3}, 5, v{t3}')
    em.op(f'v_lshlrev_b32 v{dst}, 7, v{t1}')
    em.op(f'v_add_u32 v{dst}, v{dst}, v{t3}')
    if fmode == 'w':
        em.op(f'v_mul_u32_u24 v{t3}, 3072, v{t0}')
    else:
        em.op(f'v_lshlrev_b32 v{t2}, 8, v{t2}')
        em.op(f'v_add_u32 v{dst}, v{dst}, v{t2}')
        em.op(f'v_lshrrev_b32 v{t3}, 1, v{t0}')
        em.op(f'v_mul_u32_u24 v{t3}, 3072, v{t3}')
    em.op(f'v_add_u32 v{dst}, v{dst}, v{t3}')
    em.op(f'v_and_b32 v{t3}, 3, {L}')
    em.op(f'v_lshlrev_b32 v{t3}, 3, v{t3}')
    em.op(f'v_add_u32 v{dst}, v{dst}, v{t3}')
    em.op(f'v_add_u32 v{dst}, s{sT1}, v{dst}')

class Cap:
    def __init__(self): self.ops = []
    def op(self, t, tag=None): self.ops.append(t)

def k1_qproj(em, qh, typ):
    nq = 5 if qh == 0 else 4
    q0 = 0 if qh == 0 else 5
    L = f'v{vLANE}'
    t0, t1, t2, t3, t4, t5 = TMP[:6]
    rf = cfg.rfrac / 100
    if cfg.prio == qh + 1: em.op('s_setprio 1')
    npre = cfg.n0 if typ == 1 else 0
    if npre:
        for f in k_dma_ops(em, 0): f()
        em.wait_lgkm0(force=True)
        k_fetch(em, 0, k_dma_ops(em, 1) if npre == 2 else None)
        if npre == 2: k_fetch(em, 1, None)
        em.wait_lgkm0()
    em.barrier()
    for f in stage_dma_ops(em, 0, qh): f()
    em.barrier()
    for f in stage_dma_ops(em, 1, qh): f()
    em.op(f's_add_u32 s{SO}, s12, s{SO+3}'); em.op(f's_addc_u32 s{SO+1}, s13, 0'); em.op(f's_mov_b32 s{SO+2}, {O_HEAD}'); em.op(f's_mov_b32 s{SO+3}, 0x20000')
    em.op(f's_mov_b32 s{sC}, {fbits(192 ** -0.5 * math.log2(math.e))}')
    if cfg.code_pre and not cfg.cearly:
        em.op('s_getpc_b64 s[58:59]')
        em.label(f'L_pc{qh}{typ}')
        em.op(f's_add_u32 s58, s58, k1_body_start-L_pc{qh}{typ}')
        em.op('s_addc_u32 s59, s59, -1')
        em.op(f's_and_b32 s{sT1}, s{sLOC}, 15')
        em.op(f's_lshl_b32 s{sT1}, s{sT1}, 13')
        em.op(f'v_lshlrev_b32 v{TMP[11]}, 4, v0')
        em.op(f'v_add_u32 v{TMP[11]}, s{sT1}, v{TMP[11]}')
        em.op(f'v_min_u32 v{TMP[11]}, k1_body_end-k1_body_start-16, v{TMP[11]}')
    em.st.stamp('si')
    em.op(f'v_lshlrev_b32 v{t3}, 2, v0')
    em.op(f'v_add_u32 v{t3}, {MAXB}, v{t3}')
    em.op(f'v_mov_b32 v{t4}, 0xff800000')
    em.op(f'ds_write_b32 v{t3}, v{t4}')
    em.op(f'v_and_b32 v{vMS}, 15, {L}')
    em.op(f'v_lshlrev_b32 v{vMS}, 2, v{vMS}')
    em.op(f'v_add_u32 v{vMS}, {MAXB}, v{vMS}')
    em.op(f'v_add_u32 v{vRA[0]}, {q0 * 2048}, v{vRA[0]}')
    em.op(f'v_xor_b32 v{vRA[1]}, 64, v{vRA[0]}')
    for t in range(3): tr_addr(em, vRB[t], t, VBASE, 'w')
    for t in range(3):
        em.op(f's_mul_i32 s{sT0}, s{sDG}, 3'); em.op(f's_add_u32 s{sT0}, s{sT0}, {t}'); em.op(f's_lshl_b32 s{sT0}, s{sT0}, 1')
        em.op(f'v_lshrrev_b32 v{t0}, 5, {L}')
        em.op(f'v_add_u32 v{t0}, s{sT0}, v{t0}')
        em.op(f'v_lshrrev_b32 v{t1}, 3, v{t0}'); em.op(f'v_lshlrev_b32 v{t1}, 7, v{t1}')
        em.op(f'v_and_b32 v{t0}, 7, v{t0}')
        em.op(f'v_bfe_u32 v{t2}, {L}, 1, 3')
        em.op(f'v_xor_b32 v{t0}, v{t0}, v{t2}'); em.op(f'v_lshlrev_b32 v{t0}, 4, v{t0}')
        em.op(f'v_add_u32 v{t0}, v{t0}, v{t1}')
        em.op(f'v_and_b32 v{t1}, 15, {L}'); em.op(f'v_mul_u32_u24 v{t1}, 384, v{t1}')
        em.op(f'v_add_u32 v{t0}, v{t0}, v{t1}')
        em.op(f'v_bfe_u32 v{t1}, {L}, 4, 1'); em.op(f'v_lshlrev_b32 v{t1}, 3, v{t1}')
        em.op(f'v_add_u32 v{vRC[t]}, v{t0}, v{t1}')
    em.op(f'v_lshlrev_b32 v{vPA}, 4, {L}')
    em.op(f's_lshl_b32 s{sT0}, s{sW}, 2'); em.op(f's_lshr_b32 s{sT1}, 0x10543210, s{sT0}'); em.op(f's_and_b32 s{sT1}, s{sT1}, 15'); em.op(f's_mul_i32 s{sT1}, s{sT1}, 9216')
    em.op(f'v_add_u32 v{vPW}, s{sT1}, v{vPA}')
    em.op(f'v_add_u32 v{vPA}, {q0 * 1024}, v{vPA}')
    AF = [176, 188]; BF = [200, 220]
    def q_reads(s, step, st):
        ops = []
        for t in range(3):
            ops.append(f'ds_read_b64_tr_b16 {vr(AF[st] + 4*t, 2)}, v{vRB[t]} offset:{(s % 3) * 24576 + step * 12288}')
            ops.append(f'ds_read_b64_tr_b16 {vr(AF[st] + 4*t + 2, 2)}, v{vRB[t]} offset:{(s % 3) * 24576 + step * 12288 + 512}')
        xs = [f'ds_read_b128 {vr(BF[st] + 4*j)}, v{vRA[step]} offset:{(s % 3) * 18432 + j * 2048}' for j in range(nq)]
        return ops[0:2] + xs[0:1] + ops[2:6] + xs[1:]
    def mf(st, first):
        return [mfma(ACC + 4*(j*3+t), AF[st] + 4*t, BF[st] + 4*j, None if first else ACC + 4*(j*3+t)) for j in range(nq) for t in range(3)]
    em.wait_vm_tag('S0', lgkm0=True); em.barrier()
    em.st.stamp('S0')
    em.op(f's_add_u32 s{sTAG}, s{sTAG}, 1')
    for o in q_reads(0, 0, 0): em.op(o)
    em.npre = npre
    nxt = [k_dma_ops(em, 0), k_dma_ops(em, 1), va_ops(em)][npre]
    plan = {15: nxt[0:4], 16: nxt[4:7], 17: nxt[7:10], 18: nxt[10:12]} if qh == 0 else {19: nxt[0:6]}
    late = [] if qh == 0 else nxt[6:12]
    post = []
    if qh == 1 and cfg.qlate: plan = {}; late = []; post = nxt
    cap = Cap()
    for t in range(3): tr_addr(cap, VTMP[t], t, VBASE, 'v')
    vaddr_ops = cap.ops
    inloop_pf = not (typ == 1 and cfg.n0) and not cfg.pfall
    carry = stage_dma_ops(em, 2, qh) + (sum([pf_ops() for i in range(cfg.pfa - 3)], []) if inloop_pf else [])
    if cfg.code_pre and not cfg.cearly: carry.append(f'global_load_dwordx4 {vr(244)}, v{TMP[11]}, s[58:59]')
    for s in range(10):
        extra = []
        extra = plan.get(2 * s, [])
        if cfg.onew and s > 0: em.wait_lgkm0()
        interleave(em, mf(0, s == 0), ([] if cfg.x_qnord and 3 < s <= 6 else q_reads(s, 1, 1), 0, rf), (extra, 0.1, 1), (carry, 0.05, cfg.dhi / 100))
        if s < 9: em.wait_vm_tag(f'S{s+1}', lgkm0=True)
        else: em.wait_lgkm0()
        em.barrier()
        if s in cfg.qst: em.st.stamp(f'B{s}')
        if cfg.qloop and s == 6:
            em.op('s_sub_u32 s87, s87, 1'); em.op('s_cmp_lg_u32 s87, 0'); em.op(f's_cbranch_scc1 L_ql{qh}{typ}')
            em.st.stamp('LBend')
        if cfg.qloop and s == 3:
            em.st.stamp('LB0')
            em.op('s_mov_b32 s87, 16'); em.label(f'L_ql{qh}{typ}')
        rd = []; dm = []; extra = []
        if s < 9:
            if not (cfg.x_qnord and 3 <= s < 6): rd += q_reads(s + 1, 0, 0)
        carry = []
        if s + 3 <= 9:
            dm = stage_dma_ops(em, s + 3, qh); ds_ = cfg.dsplit if not cfg.drole else (6 if qh == cfg.drole - 1 else 0)
            dm, carry = dm[:ds_], dm[ds_:]
            if cfg.x_qnodma and 3 <= s < 6: dm = []; carry = []
        if s == 7: extra = vaddr_ops
        first = (pf_ops() + (pf2_ops() if s + cfg.pfa >= cfg.pf1 and cfg.n0 else []) if inloop_pf and s + cfg.pfa <= 9 and not (cfg.qloop and s >= 3) else []) + plan.get(2 * s + 1, [])
        qw = []
        if s == 9:
            for j in range(nq):
                for t in range(3):
                    a = ACC + 4*(j*3+t)
                    qw.append([f'v_cvt_pk_bf16_f32 v{a}, v{a}, v{a+1}', f'v_cvt_pk_bf16_f32 v{a+1}, v{a+2}, v{a+3}', f'ds_write_b64 v{vRC[t]}, {vr(a,2)} offset:{(q0 + j) * 6144}'])
        n = 3 * nq; lag = 3 if cfg.qwi else n
        ins = [(qw[k], (k + lag + 0.5) / n, (k + lag + 0.5) / n) for k in range(n - lag)] if qw else []
        interleave(em, mf(1, False), (dm, cfg.dlo / 100, cfg.dhi / 100), (rd, 0, rf), (extra, 0, 1), (first, 0, 0.04 if dm else 0.9), *ins)
    for g in qw[max(0, n - lag):]:
        for o in g: em.op(o)
    for f in late: f()
    em.op(f'v_and_b32 v{t1}, 15, {L}'); em.op(f'v_mul_u32_u24 v{t1}, 384, v{t1}')
    em.op(f'v_add_u32 v{vRA[0]}, v{t1}, v{vT}')
    em.op(f'v_xor_b32 v{t0}, 64, v{vT}')
    em.op(f'v_add_u32 v{vRA[1]}, v{t1}, v{t0}')
    for t in range(3): em.op(f'v_mov_b32 v{vRB[t]}, v{VTMP[t]}')
    em.wait_lgkm0(); em.barrier()
    for f in post: f()
    for t in range(3): em.op(f'v_add_u32 v{vRC[t]}, 49152, v{vRB[t]}')
    em.op(f's_lshl_b32 s{sT0}, s{sW}, 2'); em.op(f's_lshr_b32 s{sT1}, 0x32105432, s{sT0}'); em.op(f's_and_b32 s{sT1}, s{sT1}, 15'); em.op(f's_mul_i32 s{sT1}, s{sT1}, 9216')
    em.op(f'v_lshlrev_b32 v{vPW2}, 4, {L}')
    em.op(f'v_add_u32 v{vPW2}, s{sT1}, v{vPW2}')
    em.st.stamp('BQ')

def maxops(half):
    ops = []
    for qt in range(9):
        a, b = sreg(half*2, qt), sreg(half*2+1, qt); m = MC + qt
        if half == 0:
            ops += [f'v_max3_f32 v{m}, v{a}, v{a+1}, v{a+2}', f'v_max3_f32 v{m}, v{m}, v{a+3}, v{b}',
                    f'v_max3_f32 v{m}, v{m}, v{b+1}, v{b+2}', f'v_max_f32 v{m}, v{m}, v{b+3}']
        else:
            ops += [f'v_max3_f32 v{m}, v{m}, v{a}, v{a+1}', f'v_max3_f32 v{m}, v{m}, v{a+2}, v{a+3}',
                    f'v_max3_f32 v{m}, v{m}, v{b}, v{b+1}', f'v_max3_f32 v{m}, v{m}, v{b+2}, v{b+3}']
    return ops

def k1_qk(em, qh):
    def qrd(n):
        qt, ks = divmod(n, 6)
        return f'ds_read_b128 {vr(QF + 4*(n % 4))}, v{vRA[ks & 1]} offset:{qt * 6144 + (ks >> 1) * 128}'
    npre = em.npre
    pend = []
    if npre == 1 and cfg.g2e:
        k_fetch(em, 1, None); em.wait_lgkm0()
        pend = va_ops(em)
        if qh == 1:
            for f in pend: f()
            pend = []
        npre = 2
    for half in range(2):
        fill = pend; pend = []
        if half >= npre:
            fill = k_dma_ops(em, 1) if half == 0 else va_ops(em)
            if half == 0 and cfg.eager >> qh & 1:
                k_fetch(em, half, fill); fill = []
            else:
                k_fetch(em, half, None)
                em.wait_lgkm0()
                if half == 1 and cfg.eagerv >> qh & 1:
                    for f in fill: f()
                    fill = []
        for n in range(3): em.op(qrd(n))
        em.st.stamp(f'K{half}')
        main = []
        for n in range(54):
            qt, ks = divmod(n, 6)
            if n + 3 < 54: main.append(qrd(n + 3))
            for k in range(2):
                kt = half * 2 + k
                main.append(mfma(sreg(kt, qt), kop(kt, ks), QF + 4*(n % 4), None if ks == 0 else sreg(kt, qt)))
        m1 = maxops(1)
        if half == 0:
            streams = [(fill, cfg.g2lo / 100, cfg.g2hi / 100)]
        else:
            streams = [(maxops(0), 0.02, 0.5)]
            for qt in range(8): streams.append((m1[qt*4:qt*4+4], max(0.5 + 0.05*qt, (qt + 1.5) / 9), max(0.55 + 0.05*qt, (qt + 1.9) / 9)))
            streams.append((fill, cfg.valo / 100, cfg.vahi / 100))
        interleave(em, main, *streams)
    em.st.stamp('QKend')
    for o in maxops(1)[32:]: em.op(o)
    for qt in range(9): em.op(f'ds_max_f32 v{vMS}, v{MC+qt} offset:{qt*64}')
    if qh == 0 and cfg.tsq:
        for o in tail_setup_ops(0): emit(em, o)
    if qh == 0 and cfg.vpq:
        a, b = v_pf_ops(em), v_pf_ops(em, 24576)
        both = [x for p in zip(a, b) for x in p][:2 * cfg.vpq]
        for i, f in enumerate(both):
            f()
            if i >= cfg.vpq_in: em.waitcnt(vm=cfg.vpq_in)
    em.wait_lgkm0(); em.barrier()
    em.st.stamp('BM')

def expops(r, qt, pk):
    a, b = sreg(2*r, qt), sreg(2*r+1, qt); m = MC + qt
    tA, tB = TMP[0], TMP[2]
    sp = SUMP + 2*qt
    rs = [a, a+1, a+2, a+3, b, b+1, b+2, b+3]
    if pk:
        mb = m & ~1; s = m & 1
        ops = [f'v_pk_fma_f32 {vr(x,2)}, {vr(x,2)}, s[{sC}:{sC+1}], {vr(mb,2)} op_sel:[0,0,{s}] op_sel_hi:[1,0,{s}] neg_lo:[0,0,1] neg_hi:[0,0,1]' for x in rs[::2]]
    else:
        ops = [f'v_fma_f32 v{x}, v{x}, s{sC}, -v{m}' for x in rs]
    ops += [f'v_exp_f32 v{x}, v{x}' for x in rs]
    if pk:
        ops += [f'v_pk_add_f32 {vr(tA,2)}, {vr(a,2)}, {vr(a+2,2)}', f'v_pk_add_f32 {vr(tB,2)}, {vr(b,2)}, {vr(b+2,2)}']
        if r == 0: tailo = [f'v_pk_add_f32 {vr(sp,2)}, {vr(tA,2)}, {vr(tB,2)}']
        else: tailo = [f'v_pk_add_f32 {vr(tA,2)}, {vr(tA,2)}, {vr(tB,2)}', f'v_pk_add_f32 {vr(sp,2)}, {vr(sp,2)}, {vr(tA,2)}']
    else:
        assert r == 1
        ops += [f'v_add_f32 v{sp + (i & 1)}, v{sp + (i & 1)}, v{x}' for i, x in enumerate(rs)]
        tailo = []
    ops += [f'v_cvt_pk_bf16_f32 v{a}, v{a}, v{a+1}', f'v_cvt_pk_bf16_f32 v{a+1}, v{a+2}, v{a+3}',
            f'v_cvt_pk_bf16_f32 v{a+2}, v{b}, v{b+1}', f'v_cvt_pk_bf16_f32 v{a+3}, v{b+2}, v{b+3}']
    return ops + tailo

def pwrite(r, qt, qh):
    return f'ds_write_b128 v{vPW if r == 0 else vPW2}, {vr(sreg(2*r, qt))} offset:{qt*1024}'

def sum_ops():
    L = f'v{vLANE}'
    S = SUM; ops = []
    ops += [f'v_add_f32 v{SUM+qt}, v{SUMP+2*qt}, v{SUMP+2*qt+1}' for qt in range(9)]
    ops += [f'v_mov_b32 v{MC}, 0', f'v_mov_b32 v{MC+1}, 0']
    ta = TMP[2]; tb = TMP[3]
    ops += [f'v_bfe_u32 v{ta}, {L}, 4, 1', f'v_lshlrev_b32 v{ta}, 10, v{ta}', f'v_bfe_u32 v{tb}, {L}, 5, 1', f'v_lshlrev_b32 v{tb}, 9, v{tb}',
            f'v_add_u32 v{ta}, v{ta}, v{tb}', f'v_and_b32 v{tb}, 15, {L}', f'v_lshlrev_b32 v{tb}, 5, v{tb}', f'v_add_u32 v{ta}, v{ta}, v{tb}',
            f's_lshl_b32 s{sT0}, s{sW}, 2', f's_add_u32 s{sT0}, s{sT0}, {SUMB}', f'v_add_u32 v{ta}, s{sT0}, v{ta}']
    for a in (0, 2, 4, 6): ops.append(f'v_permlane32_swap_b32 v{S+a}, v{S+a+1}')
    ops.append(f'v_permlane32_swap_b32 v{S+8}, v{MC}')
    for a in (0, 2, 4, 6): ops.append(f'v_add_f32 v{S+a}, v{S+a}, v{S+a+1}')
    ops.append(f'v_add_f32 v{S+8}, v{S+8}, v{MC}')
    for a in (0, 4): ops.append(f'v_permlane16_swap_b32 v{S+a}, v{S+a+2}')
    ops.append(f'v_permlane16_swap_b32 v{S+8}, v{MC+1}')
    for a in (0, 4): ops.append(f'v_add_f32 v{S+a}, v{S+a}, v{S+a+2}')
    ops.append(f'v_add_f32 v{S+8}, v{S+8}, v{MC+1}')
    for a in (0, 4, 8): ops.append(f'ds_write_b32 v{ta}, v{S+a} offset:{a * 512}')
    return ops

def k1_sm0(em, qh):
    n_in = cfg.in0 if qh == 0 else cfg.in1
    for qt in range(9): em.op(f'ds_read_b32 v{MC+qt}, v{vMS} offset:{qt*64}')
    for qt in range(9): em.op(f'v_mul_f32 v{MC+qt}, s{sC}, v{MC+qt}')
    main = []
    for qt in range(9):
        main += expops(0, qt, True)
        if qh == 0: main.append(pwrite(0, qt, qh))
    for qt in range(n_in, 9): main += expops(1, qt, True)
    interleave(em, main, (v_pf_ops(em)[cfg.vpq:cfg.vpq + cfg.vpf], 0.05, cfg.vrf / 100))
    em.st.stamp('exp0')
    if qh == 0: em.wait_vm_tag('VA', lgkm0=True)
    else: em.wait_lgkm0()
    em.barrier()
    em.st.stamp('PV0')

def k1_pv(em, qh):
    nq = 5 if qh == 0 else 4
    q0 = 0 if qh == 0 else 5
    L = f'v{vLANE}'
    rf = cfg.rfrac / 100
    PBF = PBF0 if qh == 0 else PBF1
    INV = INV0
    PAF = PAF0 if qh == 0 else PAF1
    def pv_reads(s, step, st):
        ops = []
        slot = vslot(s)
        base = vRB if slot < 2 else vRC
        off = (slot % 2) * 24576 + step * 12288
        for t in range(3):
            ops.append(f'ds_read_b64_tr_b16 {vr(PAF[st][t], 2)}, v{base[t]} offset:{off}')
            ops.append(f'ds_read_b64_tr_b16 {vr(PAF[st][t] + 2, 2)}, v{base[t]} offset:{off + 6144}')
        pa, po = vPA, ((2 * s + step) % 6) * 9216
        xs = [f'ds_read_b128 {vr(PBF[st][j])}, v{pa} offset:{po + j * 1024}' for j in range(nq)]
        return ops[0:2] + xs[0:1] + ops[2:6] + xs[1:]
    OACC = OACC0 if qh == 0 else OACC1
    def mf(st, first):
        return [mfma(OACC[j*3+t], PAF[st][t], PBF[st][j], None if first else OACC[j*3+t]) for j in range(nq) for t in range(3)]
    def inv_ops():
        ta = TMP[2]; ops = []
        ops += [f'v_and_b32 v{ta}, 15, {L}', f'v_lshlrev_b32 v{ta}, 5, v{ta}', f'v_add_u32 v{ta}, {SUMB + q0 * 512}, v{ta}']
        for j in range(nq):
            ops += [f'ds_read_b128 {vr(16 + 8*j)}, v{ta} offset:{j * 512}', f'ds_read_b128 {vr(20 + 8*j)}, v{ta} offset:{j * 512 + 16}']
        for j in range(nq):
            r = 16 + 8*j
            ops += [f'v_add_f32 v{r}, v{r}, v{r+1}', f'v_add_f32 v{r+2}, v{r+2}, v{r+3}', f'v_add_f32 v{r+4}, v{r+4}, v{r+5}', f'v_add_f32 v{r+6}, v{r+6}, v{r+7}',
                    f'v_add_f32 v{r}, v{r}, v{r+2}', f'v_add_f32 v{r+4}, v{r+4}, v{r+6}', f'v_add_f32 v{r}, v{r}, v{r+4}', f'v_rcp_f32 v{INV+2*j}, v{r}']
        return ops
    n_in = cfg.in0 if qh == 0 else cfg.in1
    assert n_in <= 3
    hs = [0, 3, 4] if qh == 0 else [7, 8, 4]
    INVO = inv_ops()
    TS = [] if (qh == 0 and cfg.tsq) else tail_setup_ops(qh)
    def ex(h):
        o = []
        if h in hs[:n_in] or (n_in == 2 and qh == 0 and False): o += expops(1, hs.index(h), False)
        if qh == 0 and h in (5, 6): o += [pwrite(1, qt, qh) for qt in (range(4, 9) if h == 5 else range(4))]
        if qh == 1 and h in (1, 2): o += [pwrite(0, qt, qh) for qt in (range(5) if h == 1 else range(5, 9))]
        if qh == 1 and h in (9, 10): o += [pwrite(1, qt, qh) for qt in (range(4, 9) if h == 9 else range(4))]
        if h == (7 if qh == 0 else 11): o += sum_ops()
        if h == 13: o += INVO[:len(INVO) // 2]
        if h == 14: o += INVO[len(INVO) // 2:]
        if TS and h == 3 and qh == 1: o += TS
        if TS and h in (11, 12) and qh == 0: o += TS[:len(TS)//2] if h == 11 else TS[len(TS)//2:]
        return o
    def wopre_ops(i):
        ta = TMP[2 + (i & 1)]
        ops = [f's_mul_i32 s{sT3}, s{sX}, 983040', f's_mul_i32 s{sT4}, s{sLOC}, 30720', f's_add_u32 s{sT3}, s{sT3}, s{sT4}', f's_add_u32 s{sT3}, s{sT3}, {i * 8192}',
               f'v_lshlrev_b32 v{ta}, 4, v0', f'v_add_u32 v{ta}, s{sT3}, v{ta}', f'v_min_u32 v{ta}, {7864320 - 16}, v{ta}',
               f'global_load_dwordx4 {vr(52)}, v{ta}, s[14:15]']
        if cfg.wo0:
            def f():
                _lab[0] += 1
                em.op(f's_cmp_eq_u32 s{sTYPE}, 0')
                em.op(f's_cbranch_scc0 L_wp{_lab[0]}')
                em.begin_opt()
                for o in ops[:-2] + [ops[-1], f'v_add_u32 v{ta}, 122880, v{ta}'] + ops[-2:]: em.op(o)
                em.end_opt()
                em.label(f'L_wp{_lab[0]}')
            return [f]
        return ops
    wsl = {8: 0, 9: 1, 10: 2, 12: 3}
    def epi(pk):
        out = []
        def mul(a, m):
            if pk: return [f'v_pk_mul_f32 {vr(a,2)}, {vr(a,2)}, {vr(m,2)} op_sel_hi:[1,0]', f'v_pk_mul_f32 {vr(a+2,2)}, {vr(a+2,2)}, {vr(m,2)} op_sel_hi:[1,0]']
            return [f'v_mul_f32 v{a+d}, v{a+d}, v{m}' for d in range(4)]
        for j in range(nq):
            m = INV + 2 * j
            a, b, c = OACC[j*3], OACC[j*3+1], OACC[j*3+2]
            if cfg.opair:
                out.append((j*3+1, mul(a, m) + mul(b, m) + [f'v_cvt_pk_bf16_f32 v{a}, v{a}, v{a+1}', f'v_cvt_pk_bf16_f32 v{a+1}, v{a+2}, v{a+3}',
                            f'v_cvt_pk_bf16_f32 v{a+2}, v{b}, v{b+1}', f'v_cvt_pk_bf16_f32 v{a+3}, v{b+2}, v{b+3}', f'ds_write_b128 v{vOW[0]}, {vr(a)} offset:{j * 1024}']
                            + ([f's_mov_b32 s{sT0}, {j * 1024}', (f'buffer_store_dwordx4 {vr(a)}, v{vOW[1]}, {sr(SO,4)}, s{sT0} offen sc1', 'CO0')] if cfg.direct else [])))
            for t in ((2,) if cfg.opair else (0, 1, 2)):
                x = OACC[j*3+t]
                out.append((j*3+t, mul(x, m) + [f'v_cvt_pk_bf16_f32 v{x}, v{x}, v{x+1}', f'v_cvt_pk_bf16_f32 v{x+1}, v{x+2}, v{x+3}', f'ds_write_b64 v{vOW[t]}, {vr(x,2)} offset:{j * 1024}']))
        return out
    for o in pv_reads(0, 0, 0): em.op(o)
    n = 3 * nq; lag = 4 if cfg.qwi else n
    for s in range(8):
        w = wopre_ops(wsl[2*s]) if cfg.wopre and 2*s in wsl else []
        if cfg.onew and s > 0: em.wait_lgkm0()
        interleave(em, mf(0, s == 0), (pv_reads(s, 1, 1), 0, rf), (ex(2*s), 0, cfg.efrac / 100), (w, 0.4, 0.41))
        if s == 1: em.wait_vm_tag('VA', lgkm0=True)
        elif s < 7: em.wait_vm_tag(f'V{s+1}', lgkm0=True)
        else: em.wait_lgkm0()
        em.barrier()
        em.st.stamp(f'PB{s}')
        rd = pv_reads(s + 1, 0, 0) if s < 7 else []
        dm = v_dma_ops(em, s + NV) if s + NV <= 7 else []
        if s == 7 and qh == 0: dm = tail_dma(em, 0) + tail_dma(em, 1)
        w = wopre_ops(wsl[2*s+1]) if cfg.wopre and 2*s+1 in wsl else []
        ins = []
        if s == 7:
            ins = [(g, (p + lag + 0.5) / n, (p + lag + 0.5) / n) for p, g in epi(False) if p + lag < n]
        interleave(em, mf(1, False), (dm, 0, 0.4 if s < 7 else 1), (rd, 0, rf + 0.1), (ex(2*s+1), 0, 1), (w, 0.4, 0.41), *ins)
    late = tail_dma(em, 2) if qh == 0 else []
    main = sum([g for p, g in epi(True) if p + lag >= n], [])
    interleave(em, main, (late, 0, 1))
    em.wait_vm_tag('T0', lgkm0=True); em.barrier()
    em.st.stamp('BO')
    em.op(f's_bitcmp1_b32 s{sW}, 1')
    em.op(f's_cbranch_scc1 L_tail{2 * qh + 1}')
    st = em.save()
    tail(em, 2 * qh)
    em.label(f'L_tail{2 * qh + 1}')
    em.restore(st)
    tail(em, 2 * qh + 1)

vOFFS = [2, 3, 4, 5, 7]; vA2 = [248, 249, 250]; vB2 = 251
SD, SP, SPR, SOUT = SX, SWQ, SK, 84
sT3, sT4 = 56, 59
sCH = 36 + 1
sCH = 81
sN0 = sNH
def tail_setup_ops(qh):
    c = Cap(); L = f'v{vLANE}'
    t0, t1, t2, t3 = 252, 253, 244, 245
    if qh == 0:
        c.op(f's_mul_i32 s{sT0}, s{sX}, 983040'); c.op(f's_mul_i32 s{sT1}, s{sJ}, 320'); c.op(f's_add_u32 s{sT0}, s{sT0}, s{sT1}')
        srd(c, SD, 14, 15, f's{sT0}', 7864320)
        c.op(f's_sub_u32 s{SD+2}, s{SD+2}, s{sT0}')
        c.op(f's_mov_b32 s{sSTR}, 81920')
        hs = 245760
        c.op(f's_lshl_b32 s{sT2}, s{sW}, 4')
        c.op(f's_mov_b32 s{sT1}, 52429')
        for j in range(5):
            c.op(f'v_add_u32 v{t0}, {j * 64}, {L}')
            c.op(f'v_mul_lo_u32 v{t1}, v{t0}, s{sT1}')
            c.op(f'v_lshrrev_b32 v{t1}, 20, v{t1}')
            c.op(f'v_mul_u32_u24 v{t2}, 20, v{t1}')
            c.op(f'v_sub_u32 v{t2}, v{t0}, v{t2}')
            c.op(f'v_bfe_u32 v{t3}, v{t1}, 2, 1')
            c.op(f'v_lshlrev_b32 v{t3}, 1, v{t3}')
            c.op(f'v_xor_b32 v{t2}, v{t2}, v{t3}')
            c.op(f'v_add_u32 v{t1}, s{sT2}, v{t1}')
            c.op(f'v_mul_u32_u24 v{t1}, 1280, v{t1}')
            c.op(f'v_lshl_add_u32 v{vOFFS[j]}, v{t2}, 4, v{t1}')
        c.op(f's_and_b32 s{sN0}, s{sW}, 1'); c.op(f's_mul_i32 s{sN0}, s{sN0}, 3')
        c.op(f's_bfe_u32 s{sQ0}, s{sW}, 0x10001'); c.op(f's_mul_i32 s{sQ0}, s{sQ0}, 5')
    else:
        c.op(f's_lshl_b32 s{sT0}, s{sB}, 5'); c.op(f's_lshl_b32 s{sT1}, s{sX}, 2'); c.op(f's_add_u32 s{sT0}, s{sT0}, s{sT1}')
        c.op(f's_mul_i32 s{sT0}, s{sT0}, {O_HEAD}')
        srd(c, SD, 12, 13, f's{sT0}', 4 * O_HEAD)
        c.op(f's_mov_b32 s{sSTR}, 18432')
        hs = O_HEAD
        c.op(f's_mul_i32 s{sT2}, s{sDG}, 5120')
        c.op(f'v_lshlrev_b32 v{t0}, 4, {L}')
        c.op(f'v_add_u32 v{t0}, s{sT2}, v{t0}')
        for j in range(5): c.op(f'v_add_u32 v{vOFFS[j]}, {j * 1024}, v{t0}')
        c.op(f's_and_b32 s{sN0}, s{sW}, 1'); c.op(f's_lshl_b32 s{sN0}, s{sN0}, 1'); c.op(f's_add_u32 s{sN0}, s{sN0}, 6')
        c.op(f's_bfe_u32 s{sQ0}, s{sW}, 0x10001'); c.op(f's_xor_b32 s{sQ0}, s{sQ0}, 1'); c.op(f's_mul_i32 s{sQ0}, s{sQ0}, 5')
    if cfg.direct:
        if qh == 0:
            c.op(f's_lshr_b32 s{sT0}, s{sW}, 1'); c.op(f's_mul_i32 s{sT0}, s{sT0}, 40960')
            c.op(f's_mov_b32 s{sCH}, s{sT0}'); c.op(f's_add_u32 s{sCH+1}, s{sT0}, {96 * 1280}')
            c.op(f's_lshl_b32 s{sT0}, s{sT0}, 1'); c.op(f's_add_u32 s{sCH+2}, s{sT0}, {32 * 1280}')
        else:
            for i in range(3): c.op(f's_mov_b32 s{sCH+i}, {i * 18432}')
    c.op(f's_mul_i32 s{sM0T}, s{sDG}, 5120')
    if qh: c.op(f's_add_u32 s{sM0T}, s{sM0T}, 61440')
    for i in range(4):
        c.op(f's_add_u32 s{sT0}, s{sJ}, {i}'); c.op(f's_and_b32 s{sT0}, s{sT0}, 3'); c.op(f's_mul_i32 s{sHB+i}, s{sT0}, {hs}')
    c.op(f'v_lshrrev_b32 v{t0}, 2, {L}')
    c.op(f'v_mul_u32_u24 v{t0}, 320, v{t0}')
    c.op(f'v_and_b32 v{t1}, 3, {L}')
    c.op(f'v_lshl_add_u32 v{t0}, v{t1}, 3, v{t0}')
    c.op(f'v_bfe_u32 v{t1}, {L}, 4, 1')
    for t in range(3 if qh == 0 else 2):
        c.op(f's_add_u32 s{sT1}, s{sN0}, {t}')
        c.op(f'v_xor_b32 v{t2}, s{sT1}, v{t1}')
        c.op(f'v_lshl_add_u32 v{vA2[t]}, v{t2}, 5, v{t0}')
    c.op(f's_lshl_b32 s{sT0}, s{sQ0}, 10')
    c.op(f's_add_u32 s{sT0}, s{sT0}, 61440')
    c.op(f'v_lshl_add_u32 v{vB2}, {L}, 4, s{sT0}')
    for t in range(3):
        if cfg.opair:
            if t == 1: continue
            tile_m(c, t)
        else:
            c.op(f's_mul_i32 s{sT0}, s{sDG}, 3'); c.op(f's_add_u32 s{sT0}, s{sT0}, {t}')
        if cfg.direct:
            c.op(f's_lshl_b32 s{sT1}, s{sT0}, 1'); c.op(f's_and_b32 s{sT1}, s{sT1}, 0x1c'); c.op(f's_lshr_b32 s{sT1}, 0x352140, s{sT1}'); c.op(f's_and_b32 s{sT1}, s{sT1}, 15')
            if t == 0:
                c.op(f's_mul_i32 s{sT2}, s{sT1}, 9216')
                c.op(f'v_add_u32 v{vOW[1]}, s{sT2}, v{vPA}')
            c.op(f's_and_b32 s{sT0}, s{sT0}, 1'); c.op(f's_lshl_b32 s{sT1}, s{sT1}, 1'); c.op(f's_add_u32 s{sT0}, s{sT0}, s{sT1}')
        c.op(f's_lshr_b32 s{sT1}, s{sT0}, 2'); c.op(f's_mul_i32 s{sT1}, s{sT1}, 20480')
        c.op(f's_bfe_u32 s{sT2}, s{sT0}, 0x10001'); c.op(f's_mul_i32 s{sT2}, s{sT2}, 9216'); c.op(f's_add_u32 s{sT1}, s{sT1}, s{sT2}')
        c.op(f's_and_b32 s{sT0}, s{sT0}, 1'); c.op(f's_lshl_b32 s{sT0}, s{sT0}, 3')
        c.op(f's_add_u32 s{sT0}, s{sT0}, s{sT1}'); c.op(f's_add_u32 s{sT0}, s{sT0}, 61440')
        c.op(f'v_add_u32 v{vOW[t]}, s{sT0}, v{vPA}')
    c.op(f's_lshl_b32 s{sT0}, s{sB}, 3'); c.op(f's_add_u32 s{sT0}, s{sT0}, s{sX}'); c.op(f's_lshl_b32 s{sT0}, s{sT0}, 7'); c.op(f's_add_u32 s{sT0}, s{sT0}, {FLAG_OFF + 4096}')
    c.op(f's_add_u32 s{sF1}, s12, s{sT0}'); c.op(f's_addc_u32 s{sF1+1}, s13, 0')
    c.op(f's_lshl_b32 s{sT0}, s{sLOC}, 7'); c.op(f's_add_u32 s{sT0}, s{sT0}, {FLAG_OFF + 16384}')
    c.op(f's_add_u32 s{sF2}, s12, s{sT0}'); c.op(f's_addc_u32 s{sF2+1}, s13, 0')
    c.op(f's_mul_i32 s{sT0}, s{sLOC}, {8 * PART2}'); c.op(f's_add_u32 s{sT0}, s{sT0}, {WS_PART}')
    srd(c, SPR, 12, 13, f's{sT0}', 8 * PART2)
    c.op(f's_mul_i32 s{sT1}, s{sX}, {PART2}'); c.op(f's_add_u32 s{sT0}, s{sT0}, s{sT1}')
    srd(c, SP, 12, 13, f's{sT0}', PART2)
    srd(c, SOUT, 54, 55, None, 1474560)
    out = []; i = 0; ops = c.ops
    while i < len(ops):
        if i + 1 < len(ops) and ops[i + 1].startswith('s_addc'):
            a, b = ops[i], ops[i + 1]
            out.append(lambda a=a, b=b: (EM[0].op(a), EM[0].op(b))); i += 2
        else:
            out.append(ops[i]); i += 1
    return out
EM = [None]

def tail_dma(em, s, orole=False):
    ops = []
    sc = ' sc1' if (orole and cfg.sc_ol) else ''
    for j in range(5):
        def f(j=j):
            em.op(f's_add_u32 m0, s{sM0T}, {(s % 3) * 20480 + j * 1024}')
            if j == 0:
                if cfg.direct:
                    peer, ch = (0, s) if s < 3 else (1 + (s - 3) % 3, (s - 3) // 3)
                    em.op(f's_add_u32 s{sOFF}, s{sCH + ch}, s{sHB + peer}')
                elif cfg.chunk and s >= 3:
                    ch = (s - 3) // 3
                    if ch == 0: em.op(f's_mov_b32 s{sOFF}, s{sHB + 1 + (s - 3) % 3}')
                    else:
                        em.op(f's_lshl_b32 s{sOFF}, s{sSTR}, {ch - 1}')
                        em.op(f's_add_u32 s{sOFF}, s{sOFF}, s{sHB + 1 + (s - 3) % 3}')
                elif s % 3 == 0: em.op(f's_mov_b32 s{sOFF}, s{sHB + s // 3}')
                else: em.op(f's_add_u32 s{sOFF}, s{sOFF}, s{sSTR}')
            em.op(f'buffer_load_dwordx4 v{vOFFS[j]}, {sr(SD,4)}, s{sOFF} offen{sc} lds', tag=f'T{s}')
        ops.append(f)
    return ops

def flag_store(em, base, idx_s, lab, wave, off=0):
    t0, t1 = 60, 61
    em.op(f's_cmp_eq_u32 s{sW}, {wave}')
    em.op(f's_cbranch_scc0 {lab}')
    em.begin_opt()
    em.op(f's_lshl_b32 s{sT0}, s{idx_s}, 2')
    em.op(f'v_mov_b32 v{t0}, s{sT0}')
    em.op(f'v_mov_b32 v{t1}, s{sTAG}')
    em.op('s_mov_b64 exec, 1')
    em.op(f'global_store_dword v{t0}, v{t1}, s[{base}:{base+1}] offset:{off} sc1')
    em.op('s_mov_b64 exec, -1')
    em.end_opt()
    em.label(lab)

vPL0, vPL1 = 62, 63
def poll(em, base, mask, lab, off=0, keep=False):
    em.op(f'v_and_b32 v{vPL0}, {mask}, v{vLANE}')
    em.op(f'v_lshlrev_b32 v{vPL0}, 2, v{vPL0}')
    em.op(f's_mov_b32 s{sCNT}, 0x20000')
    if not keep: em.wait_vm0()
    em.label(lab)
    em.op(f'global_load_dword v{vPL1}, v{vPL0}, s[{base}:{base+1}] offset:{off} sc1')
    em.op(f's_sub_u32 s{sCNT}, s{sCNT}, 1')
    em.op(f's_cbranch_scc1 {lab}_done')
    em.wait_vm0()
    em.op(f'v_cmp_ne_u32 vcc, s{sTAG}, v{vPL1}')
    em.op('s_nop 4')
    em.op(f's_cbranch_vccz {lab}_done')
    em.op('s_sleep 1')
    em.op(f's_branch {lab}')
    em.label(f'{lab}_done')
    em.wait_vm0()

def tail(em, tv):
    nt, nq = [(3, 5), (3, 4), (2, 4), (2, 5)][tv]
    orole = tv >= 2
    L = f'v{vLANE}'
    rf = cfg.rfrac / 100
    sc = ' sc1' if cfg.sc else ''
    ACC2 = 116; AF = [76, 88]; BF = [16, 36]; CO = 176
    t0, t1, t2, t3 = 56, 57, 58, 59
    sDONE = sT3
    em.op(f'v_lshlrev_b32 v{t0}, 4, v0')
    em.op(f'v_add_u32 v{t1}, 61440, v{t0}')
    npc = 3 if tv == 0 else 2
    k = 0; sts = []
    for c in ((2,) if cfg.direct else range(3)):
        for i in range(npc):
            em.op(f'ds_read_b128 {vr(CO + 4*k)}, v{t1} offset:{c * 20480 + i * 8192}')
            sts.append((CO + 4*k, c * 18432 + i * 8192)); k += 1
    def reads(s, step, st_):
        ops = []
        for t in range(nt):
            ops.append(f'ds_read_b64_tr_b16 {vr(AF[st_] + 4*t, 2)}, v{vA2[t]} offset:{(s % 3) * 20480 + step * 10240}')
            ops.append(f'ds_read_b64_tr_b16 {vr(AF[st_] + 4*t + 2, 2)}, v{vA2[t]} offset:{(s % 3) * 20480 + step * 10240 + 5120}')
        xs = [f'ds_read_b128 {vr(BF[st_] + 4*j)}, v{vB2} offset:{(s % 3) * 20480 + step * 9216 + j * 1024}' for j in range(nq)]
        return ops[0:2] + xs[0:1] + ops[2:] + xs[1:]
    def acc(t, j): return ACC2 + 4 * (j * nt + t)
    def mf(st_, first):
        return [mfma(acc(t, j), AF[st_] + 4*t, BF[st_] + 4*j, None if first else acc(t, j)) for j in range(nq) for t in range(nt)]
    for r, off in sts:
        em.op(f's_mov_b32 s{sT0}, {off}')
        em.op(f'buffer_store_dwordx4 {vr(r)}, v{t0}, {sr(SO,4)}, s{sT0} offen' + ['', ' sc1', ' nt', ' sc0'][cfg.sc_o], tag='CO0' if off < 18432 else 'CO1')
    for o in reads(0, 0, 0): em.op(o)
    em.op(f'v_lshlrev_b32 v{t1}, 4, {L}')
    em.op(f's_and_b32 s{sT1}, s{sW}, 1')
    em.op(f's_add_u32 s{sT2}, s{sT1}, {2 if orole else 0}'); em.op(f's_mul_i32 s{sT2}, s{sT2}, 9'); em.op(f's_add_u32 s{sT2}, s{sT2}, s{sQ0}'); em.op(f's_lshl_b32 s{sT2}, s{sT2}, 10')
    em.op(f'v_add_u32 v{t2}, s{sT2}, v{t1}')
    em.op(f's_mul_i32 s{sT1}, s{sT1}, 5120'); em.op(f's_add_u32 s{sT1}, s{sT1}, {(36 + (3 if tv == 1 else 0)) * 1024}')
    em.op(f'v_add_u32 v{t3}, s{sT1}, v{t1}')
    def pack(a, b):
        o = [f'v_cvt_pk_bf16_f32 v{a}, v{a}, v{a+1}', f'v_cvt_pk_bf16_f32 v{a+1}, v{a+2}, v{a+3}']
        if b is not None: o += [f'v_cvt_pk_bf16_f32 v{a+2}, v{b}, v{b+1}', f'v_cvt_pk_bf16_f32 v{a+3}, v{b+2}, v{b+3}']
        return o
    def st(a, va, off):
        def f():
            em.op(f's_mov_b32 s{sT0}, {off}')
            em.op(f'buffer_store_dwordx4 {vr(a)}, v{va}, {sr(SP,4)}, s{sT0} offen{sc}')
        return f
    carry = []
    for s in range(12):
        if s == 1 and orole and cfg.epoll:
            em.op(f'global_load_dword v{vPL1}, v{vPL0}, s[{sF1}:{sF1+1}] sc1')
        if cfg.onew and s > 0: em.wait_lgkm0()
        interleave(em, mf(0, s == 0), (reads(s, 1, 1), 0, rf), (carry, 0.05, 0.95))
        if s == 1 and orole and cfg.epoll:
            em.op(f'v_cmp_ne_u32 vcc, s{sTAG}, v{vPL1}')
            em.op('s_nop 4')
            em.op(f's_cbranch_vccnz L_np{tv}')
            em.begin_opt()
            for f in tail_dma(em, 3, True): f()
            em.op(f's_mov_b32 s{sDONE}, 1')
            em.end_opt()
            em.label(f'L_np{tv}')
        carry = []
        if s < 11:
            if s == 0 and cfg.chunk: em.wait_vm_tag('CO0', lgkm0=True)
            elif s == 0: em.wait_vm0(); em.wait_lgkm0()
            elif s == cfg.chunk and cfg.chunk:
                em.wait_vm_tag('CO1'); em.wait_vm_tag(f'T{s+1}', lgkm0=True)
            else: em.wait_vm_tag(f'T{s+1}', lgkm0=True)
            em.barrier()
            em.st.stamp(f'T{s}')
        if s == 0 and tv == 2: flag_store(em, sF1, sJ, 'L_f1', 4)
        if cfg.chunk and s == cfg.chunk and tv == 3: flag_store(em, sF1, sJ, 'L_f1b', 6, 16)
        if cfg.chunk and s == (5 if cfg.direct else 2) and orole: em.op(f'global_load_dword v{vPL1}, v{vPL0}, s[{sF1}:{sF1+1}] offset:16 sc1')
        if cfg.chunk and s == (6 if cfg.direct else 3) and orole:
            em.op(f'v_cmp_ne_u32 vcc, s{sTAG}, v{vPL1}')
            em.op('s_nop 4')
            em.op(f's_cbranch_vccz L_p1c_{tv}')
            keep = em.save()[2]
            em.begin_opt()
            poll(em, sF1, 3, f'L_p1b_{tv}', 16, keep=True)
            em.end_opt()
            em.vm = keep
            em.label(f'L_p1c_{tv}')
        fill = []; dm = []
        if s < 11: fill += reads(s + 1, 0, 0)
        if s == 0 and orole and cfg.epoll:
            em.op(f's_mov_b32 s{sDONE}, 0')
            em.op(f'v_and_b32 v{vPL0}, 3, {L}'); em.op(f'v_lshlrev_b32 v{vPL0}, 2, v{vPL0}')
        if s + 3 <= 11:
            if not orole or s >= 2:
                dm = tail_dma(em, s + 3, orole); dm, carry = dm[:3], dm[3:]
            elif s == 1:
                if cfg.epoll:
                    em.op(f's_cmp_eq_u32 s{sDONE}, 1')
                    em.op(f's_cbranch_scc1 L_ep{tv}')
                    vm_before = em.save()[2]
                    em.begin_opt()
                poll(em, sF1, 3, f'L_p1_{tv}')
                for f in tail_dma(em, 3, True): f()
                if cfg.epoll:
                    em.end_opt()
                    em.label(f'L_ep{tv}')
                dm = tail_dma(em, 4, True)
        ins = []
        n = nt * nq
        if s == 11:
            groups = []
            for j in range(nq):
                groups.append((j * nt + 1, pack(acc(0, j), acc(1, j)) + [st(acc(0, j), t2, j * 1024)]))
                if nt == 3 and (j % 2 == 1 or j == nq - 1):
                    j0 = j - (j % 2)
                    groups.append((j * nt + 2, pack(acc(2, j0), acc(2, j) if j != j0 else None) + [st(acc(2, j0), t3, (j0 // 2) * 1024)]))
            lag = 4
            ins = [(g, (p + lag + 0.5) / n, (p + lag + 0.5) / n) for p, g in groups if p + lag < n]
            restg = [g for p, g in groups if p + lag >= n]
        interleave(em, mf(1, False), (dm, 0.05, 0.95), (fill, 0, rf), *ins)
    for g in restg:
        for o in g: emit(em, o)
    em.st.stamp('TP')
    sU, sDL = sT3, sT4
    if tv < 3:
        em.op(f's_lshl_b32 s{sU}, s{sW}, 3'); em.op(f's_add_u32 s{sU}, s{sU}, s{sX}')
        em.op(f's_lshl_b32 s{sT0}, s{sU}, 10')
        em.op(f'v_add_u32 v{t2}, s{sT0}, v{t1}')
        em.op(f's_mul_i32 s{sT0}, s{sU}, 57'); em.op(f's_lshr_b32 s{sT0}, s{sT0}, 9')
        em.op(f's_mul_i32 s{sT1}, s{sT0}, 9'); em.op(f's_sub_u32 s{sT1}, s{sU}, s{sT1}')
        em.op(f's_lshl_b32 s{sT0}, s{sT0}, 2'); em.op(f's_lshr_b32 s{sT0}, 0x8630, s{sT0}'); em.op(f's_and_b32 s{sT0}, s{sT0}, 15')
        em.op(f's_mov_b32 s{sDL}, 32')
        em.op(f's_cmp_lt_u32 s{sU}, 36')
        em.op(f's_cbranch_scc1 L_dec{tv}')
        em.begin_opt()
        em.op(f's_cmp_ge_u32 s{sU}, 41')
        em.op(f's_cselect_b32 s{sT0}, 5, 2')
        em.op(f's_cselect_b32 s{sT1}, 41, 36')
        em.op(f's_sub_u32 s{sT1}, s{sU}, s{sT1}')
        em.op(f's_cmp_eq_u32 s{sT1}, 2')
        em.op(f's_mov_b32 s{sDL}, 20480')
        em.op(f's_cselect_b32 s{sDL}, 0x40000000, s{sDL}')
        em.op(f's_lshl_b32 s{sT1}, s{sT1}, 2'); em.op(f's_lshr_b32 s{sT1}, 0x75420, s{sT1}'); em.op(f's_and_b32 s{sT1}, s{sT1}, 15')
        em.end_opt()
        em.label(f'L_dec{tv}')
        em.op(f's_lshl_b32 s{sT1}, s{sT1}, 4'); em.op(f's_mul_i32 s{sT2}, s{sB}, 144'); em.op(f's_add_u32 s{sT1}, s{sT1}, s{sT2}'); em.op(f's_mul_i32 s{sT1}, s{sT1}, 1280')
        em.op(f's_lshl_b32 s{sT0}, s{sT0}, 5'); em.op(f's_add_u32 s{sT1}, s{sT1}, s{sT0}')
        em.op(f's_mul_i32 s{sT0}, s{sJ}, 320'); em.op(f's_add_u32 s{sT1}, s{sT1}, s{sT0}')
        em.op(f'v_and_b32 v{t3}, 15, {L}'); em.op(f'v_mul_u32_u24 v{t3}, 1280, v{t3}')
        em.op(f'v_lshrrev_b32 v{t0}, 4, {L}'); em.op(f'v_lshl_add_u32 v{t3}, v{t0}, 3, v{t3}')
        em.op(f'v_add_u32 v{t3}, s{sT1}, v{t3}')
    em.wait_vm0(); em.barrier()
    em.st.stamp('TW')
    if tv == 3:
        flag_store(em, sF2, sX, 'L_f2', 7)
    else:
        if tv == 2:
            em.op(f's_cmp_ge_u32 s{sU}, 46')
            em.op(f's_cbranch_scc1 L_fin2')
        poll(em, sF2, 7, f'L_p2_{tv}')
        em.st.stamp('TF')
        for x in range(8):
            em.op(f's_mov_b32 s{sT0}, {x * PART2}')
            em.op(f'buffer_load_dwordx4 {vr(76 + 4*x)}, v{t2}, {sr(SPR,4)}, s{sT0} offen{sc}')
        if tv == 0:
            em.op(f's_or_b32 s{sT0}, s{sH}, s{sW}')
            em.op(f's_cmp_eq_u32 s{sT0}, 0')
            em.op('s_cbranch_scc0 L_nw')
            em.begin_opt()
            em.op(f's_lshl_b32 s{sT0}, s{sB}, 8'); em.op(f's_add_u32 s{sT0}, s{sT0}, {FLAG_OFF}')
            em.op(f'v_mov_b32 v60, s{sT0}'); em.op(f'v_mov_b32 v61, s{sTAG}')
            em.op('s_mov_b64 exec, 1')
            em.op('global_store_dword v60, v61, s[12:13]' + (' sc1' if cfg.osc in (1, 3) else ''))
            em.op('s_mov_b64 exec, -1')
            em.end_opt()
            em.label('L_nw')
        A = 108
        for x in range(8):
            for d in range(4):
                r = 76 + 4*x + d
                if x == 0:
                    em.op(f'v_lshlrev_b32 v{A+2*d}, 16, v{r}'); em.op(f'v_and_b32 v{A+2*d+1}, 0xffff0000, v{r}')
                else:
                    tp = A + 8 + 2 * (d & 1)
                    em.op(f'v_lshlrev_b32 v{tp}, 16, v{r}'); em.op(f'v_and_b32 v{tp+1}, 0xffff0000, v{r}')
                    em.op(f'v_pk_add_f32 {vr(A+2*d,2)}, {vr(A+2*d,2)}, {vr(tp,2)}')
        for d in range(4): em.op(f'v_cvt_pk_bf16_f32 v{A+d}, v{A+2*d}, v{A+2*d+1}')
        em.op(f'buffer_store_dwordx2 {vr(A,2)}, v{t3}, {sr(SOUT,4)}, 0 offen' + ['', ' sc1', ' nt', ' sc0 sc1'][cfg.osc])
        em.op(f'buffer_store_dwordx2 {vr(A+2,2)}, v{t3}, {sr(SOUT,4)}, s{sDL} offen' + ['', ' sc1', ' nt', ' sc0 sc1'][cfg.osc])
        if tv == 2: em.label('L_fin2')
    if cfg.diag: em.wait_vm0()
    em.st.flush(12, 0, sW, 244)
    em.op('s_endpgm')

def kernel_header(name):
    return f'.globl {name}\n.p2align 8\n.type {name},@function\n{name}:\n'
def kernel_desc(name, vgpr, sgpr=102):
    return f'''.amdhsa_kernel {name}
  .amdhsa_next_free_vgpr {vgpr}
  .amdhsa_next_free_sgpr {sgpr}
  .amdhsa_accum_offset {(vgpr + 3) // 4 * 4}
  .amdhsa_group_segment_fixed_size 0
  .amdhsa_kernarg_size 64
  .amdhsa_user_sgpr_count 2
  .amdhsa_user_sgpr_kernarg_segment_ptr 1
  .amdhsa_system_sgpr_workgroup_id_x 1
.end_amdhsa_kernel
'''

def gen_k1():
    em = Em(); EM[0] = em
    k1_prologue(em)
    st0 = em.save()
    em.label('k1_body_start')
    for qh in range(2):
        sts = []
        for typ in ((1, 0) if cfg.n0 else (0,)):
            if qh or typ == 0 and cfg.n0: em.label(f'L_qp{qh}{typ}')
            em.restore(st0)
            em.typ = typ
            k1_qproj(em, qh, typ)
            k1_qk(em, qh)
            sts.append(em.save())
            if typ == 1: em.op(f's_branch L_sm{qh}')
        if len(sts) == 2:
            t = [[e[0] for e in s[2]] for s in sts]
            lo, hi = sorted(range(2), key=lambda i: len(t[i]))
            assert t[hi][len(t[hi]) - len(t[lo]):] == t[lo], t
            em.restore(sts[hi]); em.hist = []
            em.label(f'L_sm{qh}')
        k1_sm0(em, qh)
        k1_pv(em, qh)
    em.label('k1_body_end')
    em.label('L_k1_exit')
    em.op('s_endpgm')
    return em

def main():
    ref = open('cdna_kernels/' + NAME + '.s.ref').read().split('\n')
    head = [l for l in ref[:9]]
    k1 = gen_k1()
    KN = NAME + '_kernel'
    out = '\n'.join(head) + '\n'
    out += f'; @launch grid=(256,1,1) block=(512,1,1) lds={LDS1}\n'
    out += '.amdgcn_target "amdgcn-amd-amdhsa--gfx950"\n.text\n'
    out += kernel_header(KN) + k1.text()
    out += '.section .rodata,"a"\n.p2align 6\n' + kernel_desc(KN, 256)
    open(sys.argv[1], 'w').write(out)
    print('k1 instrs', k1.count, 'nops', k1.nops, file=sys.stderr)
main()
```

```python
import sys, struct, math
from em import Em, interleave, emit

NAME = 'standalone__gqa_block_cached__near_ridge'
def fbits(x): return struct.unpack('<I', struct.pack('<f', x))[0]

class Cfg:
    nt_kv = True
    nt_w = False
    nt_k2 = False
    two_types = True
    pre = True
    code_pre = True
    diag = False
    pk = True
    rfrac = 60
    prio = 0
    x_noexp = 0
    x_nopw = 0
    efrac = 95
    loopb = -1
    st = 0
    dbg = 0
    n0 = 1
    inpv0 = 0
    inpv1 = 0
    pfa = 5
    kq = 12
    kq0 = 7
    wont = 0
    vrf = 60
    x_ren = 0
    vrole = 1
    vfirst = 0
    vold = 0
    vh0 = 12
    wsoff = 0
    cearly = 1
    osc = 0
    pfs = 0
    nopad = 1
    pfxp = 10
    pfw = 10
    vpf = 0
    vpq = 0
    vpq_in = 4
    vpnt = 1
    spin = 0
    spst = -1
    spty = -1
    direct = 1
    chunk = 1
    onew = 1
    qlate = 0
    drole = 0
    in0 = 0
    in1 = 0
    epoll = 1
    pfx = 5
    opair = 1
    tsq = 1
    g2e = 0
    wo0 = 1
    pfnt = 0
    pfown = 10
    pfall = 1
    nt_k = 1
    nt_v = 1
    eager = 3
    eagerv = 0
    qwi = 1
    g2lo = 0
    g2hi = 30
    valo = 0
    vahi = 60
    pf1 = 10
    v0e = 0
    kqb = 0
    kqb0 = 7
    vb = 0
    vreg = 0
    nvy = 4
    sc_o = 1
    sc_ol = 1
    rt = 0
    qloop = 0
    x_qnodma = 0
    x_qnord = 0
    dlo = 10
    dhi = 95
    dsplit = 3
    x_delay = 0
    wopre = 1
    sc = 1
    x_nobar = 0
    x_nord = 0
    x_nodma = 0
cfg = Cfg()
cfg.pvst = (3,7); cfg.qst = (0,8,)
if 'pvall=1' in sys.argv: sys.argv.remove('pvall=1'); cfg.pvst = (0,1,2,3,4,5,6,7); cfg.qst = (); cfg.fewst = True
else: cfg.fewst = False
for a in sys.argv[2:]:
    k, v = a.split('='); setattr(cfg, k, type(getattr(cfg, k))(int(v)))
STSETS = {0: 'S0 BQ PV0 BO T2 TW', 1: 'ka pi si S0 B0 B8 BQ K0 K1 QKend BM exp0 PV0', 2: 'PV0 PB0 PB1 PB2 PB3 PB4 PB5 PB6', 9: 'BM exp0 PV0 PB3 PB6 PB7 BO T0', 3: 'BO T0 T1 T2 TW TF', 4: 'K0 K1 QKend BM exp0 PV0 PB3 PB7 BO T0', 8: '', 5: 'S0 LB0 LBend BQ', 6: 'S0 B0 B1 B2 B3 B5 B7 B8 B9 BQ', 7: 'BO T0 T1 T2 T3 T4 T6 T8 T10 TP'}
cfg.stlist = ['rt0', 'start'] + STSETS[cfg.st].split()[:6] + ['end', 'rt_end']
cfg.pvst = range(8); cfg.qst = range(10)
cfg.types = bool(cfg.n0)

def vr(b, n=4): return f'v[{b}:{b + n - 1}]' if n > 1 else f'v{b}'
def sr(b, n): return f's[{b}:{b + n - 1}]'
MF = 'v_mfma_f32_16x16x32_bf16'
def mfma(d, a, b, c=None):
    return f'{MF} {vr(d)}, {vr(a)}, {vr(b)}, ' + ('0' if c is None else vr(c))

FLAG_OFF = 28 << 20
PART2 = 47104
O_HEAD = 55296
WS_PART = 16 << 20
PART_TILE = 90 * 1024

def srd(em, d, base_lo, base_hi, off_sgpr, size):
    if off_sgpr is None:
        em.op(f's_mov_b32 s{d}, s{base_lo}'); em.op(f's_mov_b32 s{d+1}, s{base_hi}')
    else:
        em.op(f's_add_u32 s{d}, s{base_lo}, {off_sgpr}'); em.op(f's_addc_u32 s{d+1}, s{base_hi}, 0')
    em.op(f's_mov_b32 s{d+2}, {size}')
    em.op(f's_mov_b32 s{d+3}, 0x20000')

_lab = [0]
DIAG_OFF = 64 << 20
class Stamps:
    def __init__(self, em):
        self.em = em; self.n = 0; self.names = []
        if cfg.diag:
            for i in range(len(cfg.stlist)): em.op(f's_mov_b32 s{60 + 2*i}, 0')
    def stamp(self, name, real=False):
        if cfg.spin:
            L = ['S0', 'BQ', 'BM', 'PV0', 'BO', 'T2', 'TW', 'TF']
            if name == 'rt0' or (cfg.spst >= 0 and name == L[cfg.spst]):
                r = 76 if name == 'rt0' else 78
                self.em.wait_lgkm0()
                self.em.op(f's_memrealtime s[{r}:{r+1}]'); self.em.op('s_waitcnt lgkmcnt(0)')
                if name == 'rt0': self.em.op('s_mov_b32 s78, s76')
            return
        if not cfg.diag or name not in cfg.stlist: return
        em = self.em; i = cfg.stlist.index(name)
        em.wait_lgkm0()
        em.op(('s_memrealtime' if (real or cfg.rt) else 's_memtime') + f' s[{60 + 2*i}:{61 + 2*i}]')
        em.op('s_waitcnt lgkmcnt(0)')
    def flush(self, ws_lo, kidx, wave_s, tv):
        if cfg.spin:
            em = self.em; _lab[0] += 1
            if cfg.spty >= 0:
                em.op(f's_cmp_eq_u32 s39, {cfg.spty}'); em.op('s_cselect_b32 s78, s78, s76')
            em.op('s_sub_u32 s78, s78, s76'); em.op(f's_add_u32 s78, s78, {cfg.spin}')
            em.label(f'L_sp{_lab[0]}')
            em.op('s_sleep 2')
            em.op('s_memrealtime s[74:75]'); em.op('s_waitcnt lgkmcnt(0)')
            em.op('s_sub_u32 s74, s74, s76'); em.op('s_cmp_lt_u32 s74, s78'); em.op(f's_cbranch_scc1 L_sp{_lab[0]}')
            return
        if not cfg.diag: return
        em = self.em
        self.stamp('end'); self.stamp('rt_end', real=True)
        if cfg.dbg:
            _lab[0] += 1
            em.op('s_load_dwordx2 s[56:57], s[0:1], 48')
            em.op(f's_and_b32 s58, s2, 0xdf'); em.op(f's_or_b32 s58, s58, s{wave_s}'); em.op('s_cmp_eq_u32 s58, 0')
            em.op('s_waitcnt lgkmcnt(0)')
            em.op(f's_cbranch_scc0 L_dbg{_lab[0]}')
            em.op(f'v_mov_b32 v{tv}, s2')
            for k, i in enumerate([2, 3, 4, 13, 6, 9, 11, 12]):
                em.op(f's_sub_u32 s58, s{60 + 2*i}, s{60 if i == 13 else 62}')
                em.op(f'v_mov_b32 v{tv+1}, s58')
                em.op(f'global_store_dword v{tv}, v{tv+1}, s[56:57] offset:{4*k}')
            em.label(f'L_dbg{_lab[0]}')
            return
        em.op(f's_lshl_b32 s56, s2, 3'); em.op(f's_add_u32 s56, s56, s{wave_s}'); em.op('s_lshl_b32 s56, s56, 7')
        em.op(f's_add_u32 s56, s56, {DIAG_OFF + (kidx << 20)}')
        em.op(f's_add_u32 s56, s{ws_lo}, s56'); em.op(f's_addc_u32 s57, s{ws_lo+1}, 0')
        em.op(f'v_mov_b32 v{tv}, 0')
        for i in range(len(cfg.stlist)):
            em.op(f'v_mov_b32 v{tv+1}, s{60 + 2*i}')
            em.op(f'global_store_dword v{tv}, v{tv+1}, s[56:57] offset:{4*i}')
        print('stamps', kidx, cfg.stlist, file=sys.stderr)

SX, SWQ, SK, SV, SO = 16, 20, 24, 28, 32
sW, sW3072, sW1024, sTYPE, sOFF, sT0, sT1, sT2, sC, sB, sH, sJ, sLOC, sX = 36, 37, 38, 39, 40, 41, 42, 43, 44, 52, 46, 47, 48, 53
vLANE, vXO, vWO, vK0, vK1, vVO = 1, 2, 3, 4, 5, 6
vRA = [7, 8]
vRB = [9, 10, 11]
vRC = [12, 13, 14]
vT = 15
vOW = [8, 254, 255]
vVW, vVW2 = 7, 8
vPA, vPW, vMS = 240, 242, 243
vPW2 = 241
TMP = list(range(244, 256))
STG = 43008
PBASE, VBASE, MAXB, SUMB = 0, 55296, 153600, 155648
NV = 4
def vslot(s): return [3, 1, 2, 0][s % 4]
LDS1 = SUMB + 12 * 512
def kop(kt, ks): return 16 + 4 * (kt * 6 + ks)
def sreg(kt, qt):
    if kt < 2: return 116 + 4 * (qt * 2 + kt)
    i = qt * 2 + (kt - 2)
    return 16 + 4 * i if i < 12 else 188 + 4 * (i - 12)
ACC = 116
MC = 212
SUM = 221
SUMP = 222
QF = 224
OACC0 = [116 + 4*i for i in range(15)]
OACC1 = [120 + 8*i for i in range(9)] + [100, 80, 208]
PAF0 = [[176, 180, 184], [104, 108, 112]]
PAF1 = [[200, 192, 60], [104, 108, 112]]
PBF0 = [[64, 68, 72, 76, 80], [84, 88, 92, 96, 100]]
PBF1 = [[64, 68, 72, 76], [84, 88, 92, 96]]
INV0 = 212
NEXP1 = 4


sKB = 57
vKR = [250, 251]
vVO3 = 252
def k_dma_ops(em, half):
    nt = ' nt' if cfg.nt_kv and cfg.nt_k else ''
    ops = []
    for c in range(3):
        for k in range(2):
            for p in range(2):
                def f(c=c, k=k, p=p):
                    em.op(f's_add_u32 m0, s{sKB}, {(k * 3 + c) * 2048 + p * 1024 - c * 128}')
                    em.op(f's_mov_b32 s{sOFF}, {(half * 2 + k) * 6144}')
                    em.op(f'buffer_load_dwordx4 v{vK1 if p else vK0}, {sr(SK,4)}, s{sOFF} offen offset:{c*128}{nt} lds', tag=f'K{half}_{c * 2 + k}')
                ops.append(f)
    return ops
def k_rd_ops(half, u):
    c, k = divmod(u, 2)
    return [f'ds_read_b128 {vr(kop(half * 2 + k, 2 * c + e))}, v{vKR[e]} offset:{(k * 3 + c) * 2048}' for e in range(2)]
def k_fetch(em, half, nxt):
    for u in range(6):
        em.wait_vm_tag(f'K{half}_{u}')
        for o in k_rd_ops(half, u): em.op(o)
        if nxt and u:
            em.waitcnt(lgkm=2); em.lgkm = em.lgkm[-2:]
            for f in nxt[2 * u - 2: 2 * u]: f()
    if nxt:
        em.wait_lgkm0()
        for f in nxt[10:12]: f()
def va_ops(em):
    nt = ' nt' if cfg.nt_kv and cfg.nt_v else ''
    ops = []
    for rg in range(4):
        for c in range(3):
            def f(c=c, rg=rg):
                em.op(f's_add_u32 m0, s{sKB}, {rg * 3072 + c * 896}')
                em.op(f's_mov_b32 s{sOFF}, {rg * 3072}')
                em.op(f'buffer_load_dwordx4 v{vVO3}, {sr(SV,4)}, s{sOFF} offen offset:{c*128}{nt} lds', tag='VA')
            ops.append(f)
    return ops

def stage_dma_ops(em, s, qh):
    nt = ' nt' if cfg.nt_w else ''
    slot = (s % 3) * 18432
    ops = []
    for c in range(3):
        def f(c=c):
            em.op(f's_add_u32 m0, s{sW3072}, {VBASE + (s % 3) * 24576 + c * 896}')
            if c == 0: em.op(f's_mov_b32 s{sOFF2}, {s * 786432}')
            em.op(f'buffer_load_dwordx4 v{vWO}, {sr(SWQ,4)}, s{sOFF2} offen offset:{c*128}{nt} lds', tag=f'S{s}')
        ops.append(f)
    for j in range(2):
        def f(j=j):
            em.op(f's_add_u32 m0, s{sW1024}, {slot + j * 8192}')
            em.op(f's_mov_b32 s{sOFF}, {s * 128 + j * 81920}')
            em.op(f'buffer_load_dwordx4 v{vXO}, {sr(SX,4)}, s{sOFF} offen{nt} lds', tag=f'S{s}')
        ops.append(f)
    if qh == 1:
        def f():
            _lab[0] += 1
            lab = f'L_x{_lab[0]}'
            em.op(f's_cmp_lt_u32 s{sW}, 6')
            em.op(f's_cbranch_scc0 {lab}')
            em.begin_opt()
            em.op(f's_add_u32 m0, s{sW1024}, {slot + 12288}')
            em.op(f's_mov_b32 s{sOFF}, {s * 128 + 122880}')
            em.op(f'buffer_load_dwordx4 v{vXO}, {sr(SX,4)}, s{sOFF} offen{nt} lds', tag=f'S{s}')
            em.end_opt()
            em.label(lab)
        ops.insert(0, f)
    return ops

def v_dma_ops(em, s):
    nt = ' nt' if cfg.nt_kv and cfg.nt_v else ''
    ops = []
    for c in range(3):
        def f(c=c):
            em.op(f's_add_u32 m0, s{sW3072}, {VBASE + vslot(s) * 24576 + c * 896}')
            em.op(f's_mov_b32 s{sOFF}, {(128 * (s & 3) + 32 * (s >> 2)) * 384}')
            em.op(f'buffer_load_dwordx4 v{vVO}, {sr(SV,4)}, s{sOFF} offen offset:{c*128}{nt} lds', tag=f'V{s}')
        ops.append(f)
    return ops

sDG = 49
sPFS, sPFB = 45, 50
sOFF2 = 3
vPF = 241
def pf_ops():
    if not cfg.pre: return []
    nt = ' nt' if cfg.nt_w else ''
    return [f'global_load_dwordx4 {vr(112)}, v{vPF}, s[{sPFB}:{sPFB+1}]{nt}', f'v_add_u32 v{vPF}, s{sPFS}, v{vPF}']
sTAG, sSTR, sF1, sF2, sHB, sM0T, sQ0, sNH, sCNT = 88, 89, 90, 92, 94, 98, 99, 100, 101
VST = 64
def v_reg_ops(em):
    nt = ' nt' if cfg.nt_kv and cfg.nt_v else ''
    ops = []
    for s in range(4, 8):
        for c in range(3):
            def f(s=s, c=c):
                em.op(f's_mov_b32 s{sOFF}, {(128 * (s & 3) + 32 * (s >> 2)) * 384}')
                em.op(f'buffer_load_dwordx4 {vr(VST + 4 * ((s - 4) * 3 + c))}, v{vVO}, {sr(SV,4)}, s{sOFF} offen offset:{c*128}{nt}', tag=f'V{s}')
            ops.append(f)
    return ops
def v_put_ops(s):
    slot = vslot(s)
    return [f'ds_write_b128 v{vVW if slot < 2 else vVW2}, {vr(VST + 4 * ((s - 4) * 3 + c))} offset:{(slot % 2) * 24576 + c * 1024}' for c in range(3)]

vPF2 = 254
VTMP = [248, 249, 253]
def pf2_ops():
    nt = ' nt' if cfg.nt_w else ''
    return [f'global_load_dwordx4 {vr(112)}, v{vPF2}, s[{sPFB}:{sPFB+1}]{nt}', f'v_add_u32 v{vPF2}, s{sPFS}, v{vPF2}']

def v_pf_ops(em, blk_delta=0):
    nt = ' nt' if cfg.vpnt else ''
    ops = []
    for s in range(4, 8):
        for c in range(3):
            def f(s=s, c=c):
                em.op(f's_mov_b32 s{sOFF}, {(128 * (s & 3) + 32 * (s >> 2)) * 384 + blk_delta}')
                em.op(f's_mov_b32 m0, {MAXB + 640}')
                em.op(f'buffer_load_dwordx4 v{vVO}, {sr(SV,4)}, s{sOFF} offen offset:{c*128}{nt} lds', tag='VP')
            ops.append(f)
    return ops

def k1_prologue(em):
    em.op('s_cmp_ge_u32 s2, 256')
    em.op('s_cbranch_scc1 L_k1_exit')
    em.st = Stamps(em); em.st.stamp('rt0', real=True); em.st.stamp('start')
    em.op('s_load_dwordx8 s[4:11], s[0:1], 0')
    em.op('s_load_dwordx2 s[12:13], s[0:1], 56')
    em.op('s_load_dwordx2 s[14:15], s[0:1], 32')
    em.op('s_load_dwordx2 s[54:55], s[0:1], 40')
    em.op(f'v_and_b32 v{vLANE}, 63, v0')
    em.op(f'v_lshrrev_b32 v{vT}, 6, v0')
    em.op(f's_and_b32 s{sX}, s2, 7')
    em.op(f's_lshr_b32 s{sLOC}, s2, 3')
    em.op(f'v_readfirstlane_b32 s{sW}, v{vT}')
    t0, t1, t2, t3, t4, t5 = TMP[:6]
    L = f'v{vLANE}'
    em.op(f's_and_b32 s{sJ}, s{sLOC}, 3')
    em.op(f's_lshr_b32 s{sB}, s{sLOC}, 2')
    em.op(f's_lshl_b32 s{sH}, s{sX}, 2')
    em.op(f's_add_u32 s{sH}, s{sH}, s{sJ}')
    em.op(f's_and_b32 s{sTYPE}, s{sB}, 1')
    em.op(f's_lshl_b32 s{sT0}, s{sLOC}, 1'); em.op(f's_mul_i32 s{sT0}, s{sT0}, 12288'); em.op(f's_mul_i32 s{sT1}, s{sX}, 1536'); em.op(f's_add_u32 s{sT0}, s{sT0}, s{sT1}')
    em.op(f's_lshl_b32 s{sT1}, s{sW}, 9'); em.op(f's_add_u32 s{sT0}, s{sT0}, s{sT1}')
    em.op(f'v_lshrrev_b32 v{t3}, 5, {L}'); em.op(f'v_mul_u32_u24 v{t3}, 12288, v{t3}')
    em.op(f'v_and_b32 v{t4}, 31, {L}'); em.op(f'v_lshlrev_b32 v{t4}, 4, v{t4}')
    em.op(f'v_add3_u32 v{t5}, v{t3}, v{t4}, s{sT0}')
    em.op(f'v_lshrrev_b32 v{t0}, 3, {L}')
    em.op(f'v_and_b32 v{t1}, 7, {L}')
    em.op(f'v_lshrrev_b32 v{t2}, 4, {L}')
    em.op(f's_mul_i32 s{sT0}, s{sLOC}, 36'); em.op(f's_lshl_b32 s{sT2}, s{sW}, 3'); em.op(f's_add_u32 s{sT0}, s{sT0}, s{sT2}'); em.op(f's_sub_u32 s{sT0}, s{sT0}, 24')
    em.op(f'v_add_u32 v{t3}, s{sT0}, v{t0}')
    em.op(f's_cmp_lt_u32 s{sW}, 3')
    em.op(f's_cselect_b64 vcc, -1, 0')
    em.op(f's_movk_i32 s{sPFS}, 128')
    em.op(f's_cselect_b32 s{sPFS}, 786432, s{sPFS}')
    for dst, dr, dw in ((vPF, 0, 0), (vPF2, 144, 98304) if not cfg.pfall else (vPF2, -144 & 0xffffffff, -98304 & 0xffffffff)):
        if dst == vPF2 and cfg.pf1 >= 10 and not cfg.pfall: continue
        em.op(f'v_add_u32 v{t4}, {dr}, v{t3}'); em.op(f'v_min_u32 v{t4}, 1151, v{t4}')
        em.op(f'v_mul_u32_u24 v{t4}, 1280, v{t4}')
        em.op(f'v_lshl_add_u32 v{t4}, v{t1}, 4, v{t4}')
        em.op(f'v_add_u32 v{dst}, {dw}, v{t5}')
        em.op(f'v_cndmask_b32 v{dst}, v{t4}, v{dst}, vcc')
    if cfg.pf1 < 10:
        em.op(f's_mul_i32 s{sT0}, s{sPFS}, {cfg.pf1}'); em.op(f'v_add_u32 v{vPF2}, s{sT0}, v{vPF2}')
    em.op(f's_and_b32 s{sDG}, s{sW}, 3')
    em.op(f's_mul_i32 s{sW3072}, s{sW}, 3072')
    em.op(f's_lshl_b32 s{sW1024}, s{sW}, 10')
    em.op(f's_and_b32 s{sT0}, s{sW}, 1')
    em.op(f's_lshl_b32 s{sT1}, s{sT0}, 2')
    em.op(f'v_add_u32 v{t3}, s{sT1}, v{t2}')
    em.op(f'v_xor_b32 v{t3}, v{t3}, v{t1}')
    em.op(f'v_add_u32 v{t4}, s{sT2}, v{t0}')
    em.op(f'v_mul_u32_u24 v{vXO}, 1280, v{t4}')
    em.op(f'v_lshl_add_u32 v{vXO}, v{t3}, 4, v{vXO}')
    em.op(f'v_and_b32 v{t3}, 1, v{t2}')
    em.op(f'v_lshl_add_u32 v{t3}, v{t3}, 1, s{sT1}')
    em.op(f'v_xor_b32 v{t3}, v{t3}, v{t1}')
    em.op(f'v_mul_u32_u24 v{vWO}, 12288, v{t4}')
    em.op(f'v_lshl_add_u32 v{vWO}, v{t3}, 4, v{vWO}')
    em.op(f's_lshl_b32 s{sT2}, s{sW}, 6')
    em.op(f'v_add_u32 v{t4}, s{sT2}, v{t0}')
    em.op(f'v_mul_u32_u24 v{t4}, 384, v{t4}')
    em.op(f'v_xor_b32 v{t3}, v{t2}, v{t1}')
    em.op(f'v_lshl_add_u32 v{vK0}, v{t3}, 4, v{t4}')
    em.op(f'v_xor_b32 v{vK1}, 64, v{vK0}')
    em.op(f'v_add_u32 v{vK1}, {8 * 384}, v{vK1}')
    em.op(f'v_lshlrev_b32 v{t3}, 1, v{t2}')
    em.op(f'v_xor_b32 v{t3}, v{t3}, v{t1}')
    em.op(f'v_lshl_add_u32 v{vVO3}, v{t3}, 4, v{t4}')
    em.op(f's_and_b32 s{sT1}, s{sW}, 6'); em.op(f's_lshr_b32 s{sKB}, 0x27, s{sT1}'); em.op(f's_and_b32 s{sKB}, s{sKB}, 3')
    em.op(f's_lshl_b32 s{sKB}, s{sKB}, 1'); em.op(f's_add_u32 s{sKB}, s{sKB}, s{sT0}'); em.op(f's_mul_i32 s{sKB}, s{sKB}, 12288'); em.op(f's_add_u32 s{sKB}, s{sKB}, {VBASE}')
    em.op(f'v_bfe_u32 v{t3}, {L}, 3, 1'); em.op(f'v_lshlrev_b32 v{t3}, 10, v{t3}')
    em.op(f'v_lshl_add_u32 v{t3}, v{t1}, 7, v{t3}')
    em.op(f'v_bfe_u32 v{t4}, {L}, 1, 3')
    em.op(f'v_xor_b32 v{t4}, v{t4}, v{t2}'); em.op(f'v_lshlrev_b32 v{vT}, 4, v{t4}')
    em.op(f'v_add_u32 v{vRA[0]}, v{t3}, v{vT}')
    em.op(f'v_add_u32 v{vKR[0]}, s{sKB}, v{vRA[0]}')
    em.op(f'v_xor_b32 v{vKR[1]}, 64, v{vKR[0]}')
    em.op(f's_lshr_b32 s{sT1}, s{sW}, 2'); em.op(f's_lshl_b32 s{sT1}, s{sT1}, 6')
    em.op(f's_lshl_b32 s{sT0}, s{sDG}, 3'); em.op(f's_add_u32 s{sT0}, s{sT0}, s{sT1}')
    em.op(f'v_add_u32 v{t3}, s{sT0}, v{t0}')
    em.op(f'v_mul_u32_u24 v{vVO}, 384, v{t3}')
    em.op(f'v_lshlrev_b32 v{t3}, 1, v{t2}')
    em.op(f'v_xor_b32 v{t3}, v{t3}, v{t1}')
    em.op(f'v_lshl_add_u32 v{vVO}, v{t3}, 4, v{vVO}')
    em.op(f's_mul_i32 s{SX+3}, s{sB}, 184320')
    em.op(f's_mul_i32 s{SWQ+3}, s{sH}, 384')
    em.op(f's_lshl_b32 s{sT1}, s{sB}, 5'); em.op(f's_add_u32 s{sT1}, s{sT1}, s{sH}')
    em.op(f's_mul_i32 s{sT2}, s{sT1}, 196608')
    em.op(f's_mul_i32 s{SO+3}, s{sT1}, {O_HEAD}')
    em.op(f's_lshl_b32 s{sT0}, s{sB}, 8'); em.op(f's_add_u32 s{sT0}, s{sT0}, {FLAG_OFF}')
    em.op(f's_mov_b32 s{SX+2}, 184320'); em.op(f's_sub_u32 s{SWQ+2}, 7864320, s{SWQ+3}')
    em.op(f's_cmp_lt_u32 s{sW}, 3')
    em.op('s_waitcnt lgkmcnt(0)')
    em.st.stamp('ka')
    if cfg.diag: em.op(f's_cmp_lt_u32 s{sW}, 3')
    em.op(f's_cselect_b64 s[{sPFB}:{sPFB+1}], s[10:11], s[4:5]')
    for i in range(0 if cfg.pfall else 3):
        for o in pf_ops(): em.op(o)
    if cfg.cearly:
        em.op('s_getpc_b64 s[58:59]')
        em.label('L_pce')
        em.op('s_add_u32 s58, s58, k1_body_start-L_pce')
        em.op('s_addc_u32 s59, s59, 0')
        em.op(f's_and_b32 s{sT1}, s{sLOC}, 15')
        em.op(f's_lshl_b32 s{sT1}, s{sT1}, 13')
        em.op(f'v_lshlrev_b32 v{TMP[11]}, 4, v0')
        em.op(f'v_add_u32 v{TMP[11]}, s{sT1}, v{TMP[11]}')
        em.op(f'v_min_u32 v{TMP[11]}, k1_body_end-k1_body_start-16, v{TMP[11]}')
        em.op(f'global_load_dwordx4 {vr(112)}, v{TMP[11]}, s[58:59]')
    if cfg.wsoff:
        em.op(f's_add_u32 s12, s12, {cfg.wsoff << 20}'); em.op('s_addc_u32 s13, s13, 0')
    em.op(f's_load_dword s{sTAG}, s[12:13], s{sT0}')
    em.op(f's_add_u32 s{SWQ}, s10, s{SWQ+3}'); em.op(f's_addc_u32 s{SWQ+1}, s11, 0'); em.op(f's_mov_b32 s{SWQ+3}, 0x20000')
    em.op(f's_add_u32 s{SX}, s4, s{SX+3}'); em.op(f's_addc_u32 s{SX+1}, s5, 0'); em.op(f's_mov_b32 s{SX+3}, 0x20000')
    srd(em, SK, 6, 7, f's{sT2}', 196608); srd(em, SV, 8, 9, f's{sT2}', 196608)
    if cfg.n0 or cfg.pfall:
        em.op(f's_cmp_eq_u32 s{sTYPE}, 1')
        em.op('s_cbranch_scc0 L_nok1')
        em.begin_opt()
        em.op(f's_cmp_lt_u32 s{sW}, 3')
        em.op('s_cbranch_scc0 L_pfx')
        if cfg.pfs:
            em.op(f'v_add_u32 v{vPF}, {cfg.pfs * 786432}, v{vPF}'); em.op(f'v_add_u32 v{vPF2}, {cfg.pfs * 786432}, v{vPF2}')
        for i in range(cfg.pfw - cfg.pfs):
            for o in pf2_ops() + pf_ops(): em.op(o)
        em.op('s_branch L_nok1')
        em.label('L_pfx')
        if cfg.pfs: em.op(f'v_add_u32 v{vPF2}, {cfg.pfs * 128}, v{vPF2}')
        for i in range(cfg.pfxp - cfg.pfs):
            for o in pf2_ops(): em.op(o)
        for i in range(cfg.pfx):
            for o in pf_ops(): em.op(o)
        em.end_opt()
        em.label('L_nok1')
    if cfg.n0:
        em.op(f's_lshr_b32 s{sT0}, s{sW}, 2'); em.op(f's_lshl_b32 s{sT0}, s{sT0}, 1'); em.op(f's_or_b32 s{sT0}, s{sT0}, s{sTYPE}')
        for v in (0, 2, 3):
            em.op(f's_cmp_eq_u32 s{sT0}, {v}')
            em.op(f's_cbranch_scc1 L_qp{v >> 1}{v & 1}')
    else:
        em.op(f's_cmp_lt_u32 s{sW}, 4')
        em.op('s_cbranch_scc0 L_qp10')

def tile_m(em, t):
    tab = [[0, 4, 6, 10], [1, 5, 7, 11], [2, 3, 8, 9]][t]
    em.op(f's_lshl_b32 s{sT0}, s{sDG}, 2')
    em.op(f's_lshr_b32 s{sT0}, {sum(v << (4 * i) for i, v in enumerate(tab))}, s{sT0}')
    em.op(f's_and_b32 s{sT0}, s{sT0}, 15')

def tr_addr(em, dst, t, base, fmode):
    t0, t1, t2, t3 = TMP[:4]
    L = f'v{vLANE}'
    if fmode == 'v' and cfg.opair: tile_m(em, t)
    else:
        em.op(f's_mul_i32 s{sT0}, s{sDG}, 3'); em.op(f's_add_u32 s{sT0}, s{sT0}, {t}')
    em.op(f's_lshr_b32 s{sT1}, s{sT0}, 2'); em.op(f's_lshl_b32 s{sT1}, s{sT1}, 10')
    em.op(f's_add_u32 s{sT1}, s{sT1}, {base}')
    em.op(f's_and_b32 s{sT0}, s{sT0}, 3')
    em.op(f'v_lshrrev_b32 v{t0}, 4, {L}')
    em.op(f'v_bfe_u32 v{t1}, {L}, 2, 2')
    em.op(f'v_and_b32 v{t2}, 1, v{t0}')
    em.op(f'v_lshlrev_b32 v{t2}, 1, v{t2}')
    em.op(f'v_lshrrev_b32 v{t3}, 1, v{t1}')
    em.op(f'v_add_u32 v{t3}, v{t3}, v{t2}')
    em.op(f'v_xor_b32 v{t3}, s{sT0}, v{t3}')
    em.op(f'v_lshlrev_b32 v{t3}, 5, v{t3}')
    em.op(f'v_lshlrev_b32 v{dst}, 7, v{t1}')
    em.op(f'v_add_u32 v{dst}, v{dst}, v{t3}')
    if fmode == 'w':
        em.op(f'v_mul_u32_u24 v{t3}, 3072, v{t0}')
    else:
        em.op(f'v_lshlrev_b32 v{t2}, 8, v{t2}')
        em.op(f'v_add_u32 v{dst}, v{dst}, v{t2}')
        em.op(f'v_lshrrev_b32 v{t3}, 1, v{t0}')
        em.op(f'v_mul_u32_u24 v{t3}, 3072, v{t3}')
    em.op(f'v_add_u32 v{dst}, v{dst}, v{t3}')
    em.op(f'v_and_b32 v{t3}, 3, {L}')
    em.op(f'v_lshlrev_b32 v{t3}, 3, v{t3}')
    em.op(f'v_add_u32 v{dst}, v{dst}, v{t3}')
    em.op(f'v_add_u32 v{dst}, s{sT1}, v{dst}')

class Cap:
    def __init__(self): self.ops = []
    def op(self, t, tag=None): self.ops.append(t)

def k1_qproj(em, qh, typ):
    nq = 5 if qh == 0 else 4
    q0 = 0 if qh == 0 else 5
    L = f'v{vLANE}'
    t0, t1, t2, t3, t4, t5 = TMP[:6]
    rf = cfg.rfrac / 100
    if cfg.prio == qh + 1: em.op('s_setprio 1')
    npre = cfg.n0 if typ == 1 else 0
    if npre:
        for f in k_dma_ops(em, 0): f()
        em.wait_lgkm0(force=True)
        k_fetch(em, 0, k_dma_ops(em, 1) if npre == 2 else None)
        if npre == 2: k_fetch(em, 1, None)
        em.wait_lgkm0()
    em.barrier()
    for f in stage_dma_ops(em, 0, qh): f()
    em.barrier()
    for f in stage_dma_ops(em, 1, qh): f()
    em.op(f's_add_u32 s{SO}, s12, s{SO+3}'); em.op(f's_addc_u32 s{SO+1}, s13, 0'); em.op(f's_mov_b32 s{SO+2}, {O_HEAD}'); em.op(f's_mov_b32 s{SO+3}, 0x20000')
    em.op(f's_mov_b32 s{sC}, {fbits(192 ** -0.5 * math.log2(math.e))}')
    if cfg.code_pre and not cfg.cearly:
        em.op('s_getpc_b64 s[58:59]')
        em.label(f'L_pc{qh}{typ}')
        em.op(f's_add_u32 s58, s58, k1_body_start-L_pc{qh}{typ}')
        em.op('s_addc_u32 s59, s59, -1')
        em.op(f's_and_b32 s{sT1}, s{sLOC}, 15')
        em.op(f's_lshl_b32 s{sT1}, s{sT1}, 13')
        em.op(f'v_lshlrev_b32 v{TMP[11]}, 4, v0')
        em.op(f'v_add_u32 v{TMP[11]}, s{sT1}, v{TMP[11]}')
        em.op(f'v_min_u32 v{TMP[11]}, k1_body_end-k1_body_start-16, v{TMP[11]}')
    em.st.stamp('si')
    em.op(f'v_lshlrev_b32 v{t3}, 2, v0')
    em.op(f'v_add_u32 v{t3}, {MAXB}, v{t3}')
    em.op(f'v_mov_b32 v{t4}, 0xff800000')
    em.op(f'ds_write_b32 v{t3}, v{t4}')
    em.op(f'v_and_b32 v{vMS}, 15, {L}')
    em.op(f'v_lshlrev_b32 v{vMS}, 2, v{vMS}')
    em.op(f'v_add_u32 v{vMS}, {MAXB}, v{vMS}')
    em.op(f'v_add_u32 v{vRA[0]}, {q0 * 2048}, v{vRA[0]}')
    em.op(f'v_xor_b32 v{vRA[1]}, 64, v{vRA[0]}')
    for t in range(3): tr_addr(em, vRB[t], t, VBASE, 'w')
    for t in range(3):
        em.op(f's_mul_i32 s{sT0}, s{sDG}, 3'); em.op(f's_add_u32 s{sT0}, s{sT0}, {t}'); em.op(f's_lshl_b32 s{sT0}, s{sT0}, 1')
        em.op(f'v_lshrrev_b32 v{t0}, 5, {L}')
        em.op(f'v_add_u32 v{t0}, s{sT0}, v{t0}')
        em.op(f'v_lshrrev_b32 v{t1}, 3, v{t0}'); em.op(f'v_lshlrev_b32 v{t1}, 7, v{t1}')
        em.op(f'v_and_b32 v{t0}, 7, v{t0}')
        em.op(f'v_bfe_u32 v{t2}, {L}, 1, 3')
        em.op(f'v_xor_b32 v{t0}, v{t0}, v{t2}'); em.op(f'v_lshlrev_b32 v{t0}, 4, v{t0}')
        em.op(f'v_add_u32 v{t0}, v{t0}, v{t1}')
        em.op(f'v_and_b32 v{t1}, 15, {L}'); em.op(f'v_mul_u32_u24 v{t1}, 384, v{t1}')
        em.op(f'v_add_u32 v{t0}, v{t0}, v{t1}')
        em.op(f'v_bfe_u32 v{t1}, {L}, 4, 1'); em.op(f'v_lshlrev_b32 v{t1}, 3, v{t1}')
        em.op(f'v_add_u32 v{vRC[t]}, v{t0}, v{t1}')
    em.op(f'v_lshlrev_b32 v{vPA}, 4, {L}')
    em.op(f's_lshl_b32 s{sT0}, s{sW}, 2'); em.op(f's_lshr_b32 s{sT1}, 0x10543210, s{sT0}'); em.op(f's_and_b32 s{sT1}, s{sT1}, 15'); em.op(f's_mul_i32 s{sT1}, s{sT1}, 9216')
    em.op(f'v_add_u32 v{vPW}, s{sT1}, v{vPA}')
    em.op(f'v_add_u32 v{vPA}, {q0 * 1024}, v{vPA}')
    AF = [176, 188]; BF = [200, 220]
    def q_reads(s, step, st):
        ops = []
        for t in range(3):
            ops.append(f'ds_read_b64_tr_b16 {vr(AF[st] + 4*t, 2)}, v{vRB[t]} offset:{(s % 3) * 24576 + step * 12288}')
            ops.append(f'ds_read_b64_tr_b16 {vr(AF[st] + 4*t + 2, 2)}, v{vRB[t]} offset:{(s % 3) * 24576 + step * 12288 + 512}')
        xs = [f'ds_read_b128 {vr(BF[st] + 4*j)}, v{vRA[step]} offset:{(s % 3) * 18432 + j * 2048}' for j in range(nq)]
        return ops[0:2] + xs[0:1] + ops[2:6] + xs[1:]
    def mf(st, first):
        return [mfma(ACC + 4*(j*3+t), AF[st] + 4*t, BF[st] + 4*j, None if first else ACC + 4*(j*3+t)) for j in range(nq) for t in range(3)]
    em.wait_vm_tag('S0', lgkm0=True); em.barrier()
    em.st.stamp('S0')
    em.op(f's_add_u32 s{sTAG}, s{sTAG}, 1')
    for o in q_reads(0, 0, 0): em.op(o)
    em.npre = npre
    nxt = [k_dma_ops(em, 0), k_dma_ops(em, 1), va_ops(em)][npre]
    plan = {15: nxt[0:4], 16: nxt[4:7], 17: nxt[7:10], 18: nxt[10:12]} if qh == 0 else {19: nxt[0:6]}
    late = [] if qh == 0 else nxt[6:12]
    post = []
    if qh == 1 and cfg.qlate: plan = {}; late = []; post = nxt
    cap = Cap()
    for t in range(3): tr_addr(cap, VTMP[t], t, VBASE, 'v')
    vaddr_ops = cap.ops
    inloop_pf = not (typ == 1 and cfg.n0) and not cfg.pfall
    carry = stage_dma_ops(em, 2, qh) + (sum([pf_ops() for i in range(cfg.pfa - 3)], []) if inloop_pf else [])
    if cfg.code_pre and not cfg.cearly: carry.append(f'global_load_dwordx4 {vr(244)}, v{TMP[11]}, s[58:59]')
    for s in range(10):
        extra = []
        extra = plan.get(2 * s, [])
        if cfg.onew and s > 0: em.wait_lgkm0()
        interleave(em, mf(0, s == 0), ([] if cfg.x_qnord and 3 < s <= 6 else q_reads(s, 1, 1), 0, rf), (extra, 0.1, 1), (carry, 0.05, cfg.dhi / 100))
        if s < 9: em.wait_vm_tag(f'S{s+1}', lgkm0=True)
        else: em.wait_lgkm0()
        em.barrier()
        if s in cfg.qst: em.st.stamp(f'B{s}')
        if cfg.qloop and s == 6:
            em.op('s_sub_u32 s87, s87, 1'); em.op('s_cmp_lg_u32 s87, 0'); em.op(f's_cbranch_scc1 L_ql{qh}{typ}')
            em.st.stamp('LBend')
        if cfg.qloop and s == 3:
            em.st.stamp('LB0')
            em.op('s_mov_b32 s87, 16'); em.label(f'L_ql{qh}{typ}')
        rd = []; dm = []; extra = []
        if s < 9:
            if not (cfg.x_qnord and 3 <= s < 6): rd += q_reads(s + 1, 0, 0)
        carry = []
        if s + 3 <= 9:
            dm = stage_dma_ops(em, s + 3, qh); ds_ = cfg.dsplit if not cfg.drole else (6 if qh == cfg.drole - 1 else 0)
            dm, carry = dm[:ds_], dm[ds_:]
            if cfg.x_qnodma and 3 <= s < 6: dm = []; carry = []
        if s == 7: extra = vaddr_ops
        first = (pf_ops() + (pf2_ops() if s + cfg.pfa >= cfg.pf1 and cfg.n0 else []) if inloop_pf and s + cfg.pfa <= 9 and not (cfg.qloop and s >= 3) else []) + plan.get(2 * s + 1, [])
        qw = []
        if s == 9:
            for j in range(nq):
                for t in range(3):
                    a = ACC + 4*(j*3+t)
                    qw.append([f'v_cvt_pk_bf16_f32 v{a}, v{a}, v{a+1}', f'v_cvt_pk_bf16_f32 v{a+1}, v{a+2}, v{a+3}', f'ds_write_b64 v{vRC[t]}, {vr(a,2)} offset:{(q0 + j) * 6144}'])
        n = 3 * nq; lag = 3 if cfg.qwi else n
        ins = [(qw[k], (k + lag + 0.5) / n, (k + lag + 0.5) / n) for k in range(n - lag)] if qw else []
        interleave(em, mf(1, False), (dm, cfg.dlo / 100, cfg.dhi / 100), (rd, 0, rf), (extra, 0, 1), (first, 0, 0.04 if dm else 0.9), *ins)
    for g in qw[max(0, n - lag):]:
        for o in g: em.op(o)
    for f in late: f()
    em.op(f'v_and_b32 v{t1}, 15, {L}'); em.op(f'v_mul_u32_u24 v{t1}, 384, v{t1}')
    em.op(f'v_add_u32 v{vRA[0]}, v{t1}, v{vT}')
    em.op(f'v_xor_b32 v{t0}, 64, v{vT}')
    em.op(f'v_add_u32 v{vRA[1]}, v{t1}, v{t0}')
    for t in range(3): em.op(f'v_mov_b32 v{vRB[t]}, v{VTMP[t]}')
    em.wait_lgkm0(); em.barrier()
    for f in post: f()
    for t in range(3): em.op(f'v_add_u32 v{vRC[t]}, 49152, v{vRB[t]}')
    em.op(f's_lshl_b32 s{sT0}, s{sW}, 2'); em.op(f's_lshr_b32 s{sT1}, 0x32105432, s{sT0}'); em.op(f's_and_b32 s{sT1}, s{sT1}, 15'); em.op(f's_mul_i32 s{sT1}, s{sT1}, 9216')
    em.op(f'v_lshlrev_b32 v{vPW2}, 4, {L}')
    em.op(f'v_add_u32 v{vPW2}, s{sT1}, v{vPW2}')
    em.st.stamp('BQ')

def maxops(half):
    ops = []
    for qt in range(9):
        a, b = sreg(half*2, qt), sreg(half*2+1, qt); m = MC + qt
        if half == 0:
            ops += [f'v_max3_f32 v{m}, v{a}, v{a+1}, v{a+2}', f'v_max3_f32 v{m}, v{m}, v{a+3}, v{b}',
                    f'v_max3_f32 v{m}, v{m}, v{b+1}, v{b+2}', f'v_max_f32 v{m}, v{m}, v{b+3}']
        else:
            ops += [f'v_max3_f32 v{m}, v{m}, v{a}, v{a+1}', f'v_max3_f32 v{m}, v{m}, v{a+2}, v{a+3}',
                    f'v_max3_f32 v{m}, v{m}, v{b}, v{b+1}', f'v_max3_f32 v{m}, v{m}, v{b+2}, v{b+3}']
    return ops

def k1_qk(em, qh):
    def qrd(n):
        qt, ks = divmod(n, 6)
        return f'ds_read_b128 {vr(QF + 4*(n % 4))}, v{vRA[ks & 1]} offset:{qt * 6144 + (ks >> 1) * 128}'
    npre = em.npre
    pend = []
    if npre == 1 and cfg.g2e:
        k_fetch(em, 1, None); em.wait_lgkm0()
        pend = va_ops(em)
        if qh == 1:
            for f in pend: f()
            pend = []
        npre = 2
    for half in range(2):
        fill = pend; pend = []
        if half >= npre:
            fill = k_dma_ops(em, 1) if half == 0 else va_ops(em)
            if half == 0 and cfg.eager >> qh & 1:
                k_fetch(em, half, fill); fill = []
            else:
                k_fetch(em, half, None)
                em.wait_lgkm0()
                if half == 1 and cfg.eagerv >> qh & 1:
                    for f in fill: f()
                    fill = []
        for n in range(3): em.op(qrd(n))
        em.st.stamp(f'K{half}')
        main = []
        for n in range(54):
            qt, ks = divmod(n, 6)
            if n + 3 < 54: main.append(qrd(n + 3))
            for k in range(2):
                kt = half * 2 + k
                main.append(mfma(sreg(kt, qt), kop(kt, ks), QF + 4*(n % 4), None if ks == 0 else sreg(kt, qt)))
        m1 = maxops(1)
        if half == 0:
            streams = [(fill, cfg.g2lo / 100, cfg.g2hi / 100)]
        else:
            streams = [(maxops(0), 0.02, 0.5)]
            for qt in range(8): streams.append((m1[qt*4:qt*4+4], max(0.5 + 0.05*qt, (qt + 1.5) / 9), max(0.55 + 0.05*qt, (qt + 1.9) / 9)))
            streams.append((fill, cfg.valo / 100, cfg.vahi / 100))
        interleave(em, main, *streams)
    em.st.stamp('QKend')
    for o in maxops(1)[32:]: em.op(o)
    for qt in range(9): em.op(f'ds_max_f32 v{vMS}, v{MC+qt} offset:{qt*64}')
    if qh == 0 and cfg.tsq:
        for o in tail_setup_ops(0): emit(em, o)
    if qh == 0 and cfg.vpq:
        a, b = v_pf_ops(em), v_pf_ops(em, 24576)
        both = [x for p in zip(a, b) for x in p][:2 * cfg.vpq]
        for i, f in enumerate(both):
            f()
            if i >= cfg.vpq_in: em.waitcnt(vm=cfg.vpq_in)
    em.wait_lgkm0(); em.barrier()
    em.st.stamp('BM')

def expops(r, qt, pk):
    a, b = sreg(2*r, qt), sreg(2*r+1, qt); m = MC + qt
    tA, tB = TMP[0], TMP[2]
    sp = SUMP + 2*qt
    rs = [a, a+1, a+2, a+3, b, b+1, b+2, b+3]
    if pk:
        mb = m & ~1; s = m & 1
        ops = [f'v_pk_fma_f32 {vr(x,2)}, {vr(x,2)}, s[{sC}:{sC+1}], {vr(mb,2)} op_sel:[0,0,{s}] op_sel_hi:[1,0,{s}] neg_lo:[0,0,1] neg_hi:[0,0,1]' for x in rs[::2]]
    else:
        ops = [f'v_fma_f32 v{x}, v{x}, s{sC}, -v{m}' for x in rs]
    ops += [f'v_exp_f32 v{x}, v{x}' for x in rs]
    if pk:
        ops += [f'v_pk_add_f32 {vr(tA,2)}, {vr(a,2)}, {vr(a+2,2)}', f'v_pk_add_f32 {vr(tB,2)}, {vr(b,2)}, {vr(b+2,2)}']
        if r == 0: tailo = [f'v_pk_add_f32 {vr(sp,2)}, {vr(tA,2)}, {vr(tB,2)}']
        else: tailo = [f'v_pk_add_f32 {vr(tA,2)}, {vr(tA,2)}, {vr(tB,2)}', f'v_pk_add_f32 {vr(sp,2)}, {vr(sp,2)}, {vr(tA,2)}']
    else:
        assert r == 1
        ops += [f'v_add_f32 v{sp + (i & 1)}, v{sp + (i & 1)}, v{x}' for i, x in enumerate(rs)]
        tailo = []
    ops += [f'v_cvt_pk_bf16_f32 v{a}, v{a}, v{a+1}', f'v_cvt_pk_bf16_f32 v{a+1}, v{a+2}, v{a+3}',
            f'v_cvt_pk_bf16_f32 v{a+2}, v{b}, v{b+1}', f'v_cvt_pk_bf16_f32 v{a+3}, v{b+2}, v{b+3}']
    return ops + tailo

def pwrite(r, qt, qh):
    return f'ds_write_b128 v{vPW if r == 0 else vPW2}, {vr(sreg(2*r, qt))} offset:{qt*1024}'

def sum_ops():
    L = f'v{vLANE}'
    S = SUM; ops = []
    ops += [f'v_add_f32 v{SUM+qt}, v{SUMP+2*qt}, v{SUMP+2*qt+1}' for qt in range(9)]
    ops += [f'v_mov_b32 v{MC}, 0', f'v_mov_b32 v{MC+1}, 0']
    ta = TMP[2]; tb = TMP[3]
    ops += [f'v_bfe_u32 v{ta}, {L}, 4, 1', f'v_lshlrev_b32 v{ta}, 10, v{ta}', f'v_bfe_u32 v{tb}, {L}, 5, 1', f'v_lshlrev_b32 v{tb}, 9, v{tb}',
            f'v_add_u32 v{ta}, v{ta}, v{tb}', f'v_and_b32 v{tb}, 15, {L}', f'v_lshlrev_b32 v{tb}, 5, v{tb}', f'v_add_u32 v{ta}, v{ta}, v{tb}',
            f's_lshl_b32 s{sT0}, s{sW}, 2', f's_add_u32 s{sT0}, s{sT0}, {SUMB}', f'v_add_u32 v{ta}, s{sT0}, v{ta}']
    for a in (0, 2, 4, 6): ops.append(f'v_permlane32_swap_b32 v{S+a}, v{S+a+1}')
    ops.append(f'v_permlane32_swap_b32 v{S+8}, v{MC}')
    for a in (0, 2, 4, 6): ops.append(f'v_add_f32 v{S+a}, v{S+a}, v{S+a+1}')
    ops.append(f'v_add_f32 v{S+8}, v{S+8}, v{MC}')
    for a in (0, 4): ops.append(f'v_permlane16_swap_b32 v{S+a}, v{S+a+2}')
    ops.append(f'v_permlane16_swap_b32 v{S+8}, v{MC+1}')
    for a in (0, 4): ops.append(f'v_add_f32 v{S+a}, v{S+a}, v{S+a+2}')
    ops.append(f'v_add_f32 v{S+8}, v{S+8}, v{MC+1}')
    for a in (0, 4, 8): ops.append(f'ds_write_b32 v{ta}, v{S+a} offset:{a * 512}')
    return ops

def k1_sm0(em, qh):
    n_in = cfg.in0 if qh == 0 else cfg.in1
    for qt in range(9): em.op(f'ds_read_b32 v{MC+qt}, v{vMS} offset:{qt*64}')
    for qt in range(9): em.op(f'v_mul_f32 v{MC+qt}, s{sC}, v{MC+qt}')
    main = []
    for qt in range(9):
        main += expops(0, qt, True)
        if qh == 0: main.append(pwrite(0, qt, qh))
    for qt in range(n_in, 9): main += expops(1, qt, True)
    interleave(em, main, (v_pf_ops(em)[cfg.vpq:cfg.vpq + cfg.vpf], 0.05, cfg.vrf / 100))
    em.st.stamp('exp0')
    if qh == 0: em.wait_vm_tag('VA', lgkm0=True)
    else: em.wait_lgkm0()
    em.barrier()
    em.st.stamp('PV0')

def k1_pv(em, qh):
    nq = 5 if qh == 0 else 4
    q0 = 0 if qh == 0 else 5
    L = f'v{vLANE}'
    rf = cfg.rfrac / 100
    PBF = PBF0 if qh == 0 else PBF1
    INV = INV0
    PAF = PAF0 if qh == 0 else PAF1
    def pv_reads(s, step, st):
        ops = []
        slot = vslot(s)
        base = vRB if slot < 2 else vRC
        off = (slot % 2) * 24576 + step * 12288
        for t in range(3):
            ops.append(f'ds_read_b64_tr_b16 {vr(PAF[st][t], 2)}, v{base[t]} offset:{off}')
            ops.append(f'ds_read_b64_tr_b16 {vr(PAF[st][t] + 2, 2)}, v{base[t]} offset:{off + 6144}')
        pa, po = vPA, ((2 * s + step) % 6) * 9216
        xs = [f'ds_read_b128 {vr(PBF[st][j])}, v{pa} offset:{po + j * 1024}' for j in range(nq)]
        return ops[0:2] + xs[0:1] + ops[2:6] + xs[1:]
    OACC = OACC0 if qh == 0 else OACC1
    def mf(st, first):
        return [mfma(OACC[j*3+t], PAF[st][t], PBF[st][j], None if first else OACC[j*3+t]) for j in range(nq) for t in range(3)]
    def inv_ops():
        ta = TMP[2]; ops = []
        ops += [f'v_and_b32 v{ta}, 15, {L}', f'v_lshlrev_b32 v{ta}, 5, v{ta}', f'v_add_u32 v{ta}, {SUMB + q0 * 512}, v{ta}']
        for j in range(nq):
            ops += [f'ds_read_b128 {vr(16 + 8*j)}, v{ta} offset:{j * 512}', f'ds_read_b128 {vr(20 + 8*j)}, v{ta} offset:{j * 512 + 16}']
        for j in range(nq):
            r = 16 + 8*j
            ops += [f'v_add_f32 v{r}, v{r}, v{r+1}', f'v_add_f32 v{r+2}, v{r+2}, v{r+3}', f'v_add_f32 v{r+4}, v{r+4}, v{r+5}', f'v_add_f32 v{r+6}, v{r+6}, v{r+7}',
                    f'v_add_f32 v{r}, v{r}, v{r+2}', f'v_add_f32 v{r+4}, v{r+4}, v{r+6}', f'v_add_f32 v{r}, v{r}, v{r+4}', f'v_rcp_f32 v{INV+2*j}, v{r}']
        return ops
    n_in = cfg.in0 if qh == 0 else cfg.in1
    assert n_in <= 3
    hs = [0, 3, 4] if qh == 0 else [7, 8, 4]
    INVO = inv_ops()
    TS = [] if (qh == 0 and cfg.tsq) else tail_setup_ops(qh)
    def ex(h):
        o = []
        if h in hs[:n_in] or (n_in == 2 and qh == 0 and False): o += expops(1, hs.index(h), False)
        if qh == 0 and h in (5, 6): o += [pwrite(1, qt, qh) for qt in (range(4, 9) if h == 5 else range(4))]
        if qh == 1 and h in (1, 2): o += [pwrite(0, qt, qh) for qt in (range(5) if h == 1 else range(5, 9))]
        if qh == 1 and h in (9, 10): o += [pwrite(1, qt, qh) for qt in (range(4, 9) if h == 9 else range(4))]
        if h == (7 if qh == 0 else 11): o += sum_ops()
        if h == 13: o += INVO[:len(INVO) // 2]
        if h == 14: o += INVO[len(INVO) // 2:]
        if TS and h == 3 and qh == 1: o += TS
        if TS and h in (11, 12) and qh == 0: o += TS[:len(TS)//2] if h == 11 else TS[len(TS)//2:]
        return o
    def wopre_ops(i):
        ta = TMP[2 + (i & 1)]
        ops = [f's_mul_i32 s{sT3}, s{sX}, 983040', f's_mul_i32 s{sT4}, s{sLOC}, 30720', f's_add_u32 s{sT3}, s{sT3}, s{sT4}', f's_add_u32 s{sT3}, s{sT3}, {i * 8192}',
               f'v_lshlrev_b32 v{ta}, 4, v0', f'v_add_u32 v{ta}, s{sT3}, v{ta}', f'v_min_u32 v{ta}, {7864320 - 16}, v{ta}',
               f'global_load_dwordx4 {vr(52)}, v{ta}, s[14:15]']
        if cfg.wo0:
            def f():
                _lab[0] += 1
                em.op(f's_cmp_eq_u32 s{sTYPE}, 0')
                em.op(f's_cbranch_scc0 L_wp{_lab[0]}')
                em.begin_opt()
                for o in ops[:-2] + [ops[-1], f'v_add_u32 v{ta}, 122880, v{ta}'] + ops[-2:]: em.op(o)
                em.end_opt()
                em.label(f'L_wp{_lab[0]}')
            return [f]
        return ops
    wsl = {8: 0, 9: 1, 10: 2, 12: 3}
    def epi(pk):
        out = []
        def mul(a, m):
            if pk: return [f'v_pk_mul_f32 {vr(a,2)}, {vr(a,2)}, {vr(m,2)} op_sel_hi:[1,0]', f'v_pk_mul_f32 {vr(a+2,2)}, {vr(a+2,2)}, {vr(m,2)} op_sel_hi:[1,0]']
            return [f'v_mul_f32 v{a+d}, v{a+d}, v{m}' for d in range(4)]
        for j in range(nq):
            m = INV + 2 * j
            a, b, c = OACC[j*3], OACC[j*3+1], OACC[j*3+2]
            if cfg.opair:
                out.append((j*3+1, mul(a, m) + mul(b, m) + [f'v_cvt_pk_bf16_f32 v{a}, v{a}, v{a+1}', f'v_cvt_pk_bf16_f32 v{a+1}, v{a+2}, v{a+3}',
                            f'v_cvt_pk_bf16_f32 v{a+2}, v{b}, v{b+1}', f'v_cvt_pk_bf16_f32 v{a+3}, v{b+2}, v{b+3}', f'ds_write_b128 v{vOW[0]}, {vr(a)} offset:{j * 1024}']
                            + ([f's_mov_b32 s{sT0}, {j * 1024}', (f'buffer_store_dwordx4 {vr(a)}, v{vOW[1]}, {sr(SO,4)}, s{sT0} offen sc1', 'CO0')] if cfg.direct else [])))
            for t in ((2,) if cfg.opair else (0, 1, 2)):
                x = OACC[j*3+t]
                out.append((j*3+t, mul(x, m) + [f'v_cvt_pk_bf16_f32 v{x}, v{x}, v{x+1}', f'v_cvt_pk_bf16_f32 v{x+1}, v{x+2}, v{x+3}', f'ds_write_b64 v{vOW[t]}, {vr(x,2)} offset:{j * 1024}']))
        return out
    for o in pv_reads(0, 0, 0): em.op(o)
    n = 3 * nq; lag = 4 if cfg.qwi else n
    for s in range(8):
        w = wopre_ops(wsl[2*s]) if cfg.wopre and 2*s in wsl else []
        if cfg.onew and s > 0: em.wait_lgkm0()
        interleave(em, mf(0, s == 0), (pv_reads(s, 1, 1), 0, rf), (ex(2*s), 0, cfg.efrac / 100), (w, 0.4, 0.41))
        if s == 1: em.wait_vm_tag('VA', lgkm0=True)
        elif s < 7: em.wait_vm_tag(f'V{s+1}', lgkm0=True)
        else: em.wait_lgkm0()
        em.barrier()
        em.st.stamp(f'PB{s}')
        rd = pv_reads(s + 1, 0, 0) if s < 7 else []
        dm = v_dma_ops(em, s + NV) if s + NV <= 7 else []
        if s == 7 and qh == 0: dm = tail_dma(em, 0) + tail_dma(em, 1)
        w = wopre_ops(wsl[2*s+1]) if cfg.wopre and 2*s+1 in wsl else []
        ins = []
        if s == 7:
            ins = [(g, (p + lag + 0.5) / n, (p + lag + 0.5) / n) for p, g in epi(False) if p + lag < n]
        interleave(em, mf(1, False), (dm, 0, 0.4 if s < 7 else 1), (rd, 0, rf + 0.1), (ex(2*s+1), 0, 1), (w, 0.4, 0.41), *ins)
    late = tail_dma(em, 2) if qh == 0 else []
    main = sum([g for p, g in epi(True) if p + lag >= n], [])
    interleave(em, main, (late, 0, 1))
    em.wait_vm_tag('T0', lgkm0=True); em.barrier()
    em.st.stamp('BO')
    em.op(f's_bitcmp1_b32 s{sW}, 1')
    em.op(f's_cbranch_scc1 L_tail{2 * qh + 1}')
    st = em.save()
    tail(em, 2 * qh)
    em.label(f'L_tail{2 * qh + 1}')
    em.restore(st)
    tail(em, 2 * qh + 1)

vOFFS = [2, 3, 4, 5, 7]; vA2 = [248, 249, 250]; vB2 = 251
SD, SP, SPR, SOUT = SX, SWQ, SK, 84
sT3, sT4 = 56, 59
sCH = 36 + 1
sCH = 81
sN0 = sNH
def tail_setup_ops(qh):
    c = Cap(); L = f'v{vLANE}'
    t0, t1, t2, t3 = 252, 253, 244, 245
    if qh == 0:
        c.op(f's_mul_i32 s{sT0}, s{sX}, 983040'); c.op(f's_mul_i32 s{sT1}, s{sJ}, 320'); c.op(f's_add_u32 s{sT0}, s{sT0}, s{sT1}')
        srd(c, SD, 14, 15, f's{sT0}', 7864320)
        c.op(f's_sub_u32 s{SD+2}, s{SD+2}, s{sT0}')
        c.op(f's_mov_b32 s{sSTR}, 81920')
        hs = 245760
        c.op(f's_lshl_b32 s{sT2}, s{sW}, 4')
        c.op(f's_mov_b32 s{sT1}, 52429')
        for j in range(5):
            c.op(f'v_add_u32 v{t0}, {j * 64}, {L}')
            c.op(f'v_mul_lo_u32 v{t1}, v{t0}, s{sT1}')
            c.op(f'v_lshrrev_b32 v{t1}, 20, v{t1}')
            c.op(f'v_mul_u32_u24 v{t2}, 20, v{t1}')
            c.op(f'v_sub_u32 v{t2}, v{t0}, v{t2}')
            c.op(f'v_bfe_u32 v{t3}, v{t1}, 2, 1')
            c.op(f'v_lshlrev_b32 v{t3}, 1, v{t3}')
            c.op(f'v_xor_b32 v{t2}, v{t2}, v{t3}')
            c.op(f'v_add_u32 v{t1}, s{sT2}, v{t1}')
            c.op(f'v_mul_u32_u24 v{t1}, 1280, v{t1}')
            c.op(f'v_lshl_add_u32 v{vOFFS[j]}, v{t2}, 4, v{t1}')
        c.op(f's_and_b32 s{sN0}, s{sW}, 1'); c.op(f's_mul_i32 s{sN0}, s{sN0}, 3')
        c.op(f's_bfe_u32 s{sQ0}, s{sW}, 0x10001'); c.op(f's_mul_i32 s{sQ0}, s{sQ0}, 5')
    else:
        c.op(f's_lshl_b32 s{sT0}, s{sB}, 5'); c.op(f's_lshl_b32 s{sT1}, s{sX}, 2'); c.op(f's_add_u32 s{sT0}, s{sT0}, s{sT1}')
        c.op(f's_mul_i32 s{sT0}, s{sT0}, {O_HEAD}')
        srd(c, SD, 12, 13, f's{sT0}', 4 * O_HEAD)
        c.op(f's_mov_b32 s{sSTR}, 18432')
        hs = O_HEAD
        c.op(f's_mul_i32 s{sT2}, s{sDG}, 5120')
        if cfg.nopad:
            c.op(f's_cmp_eq_u32 s{sDG}, 3'); c.op(f's_cselect_b32 s{sT2}, 14336, s{sT2}')
        c.op(f'v_lshlrev_b32 v{t0}, 4, {L}')
        c.op(f'v_add_u32 v{t0}, s{sT2}, v{t0}')
        for j in range(5): c.op(f'v_add_u32 v{vOFFS[j]}, {j * 1024}, v{t0}')
        c.op(f's_and_b32 s{sN0}, s{sW}, 1'); c.op(f's_lshl_b32 s{sN0}, s{sN0}, 1'); c.op(f's_add_u32 s{sN0}, s{sN0}, 6')
        c.op(f's_bfe_u32 s{sQ0}, s{sW}, 0x10001'); c.op(f's_xor_b32 s{sQ0}, s{sQ0}, 1'); c.op(f's_mul_i32 s{sQ0}, s{sQ0}, 5')
    if cfg.direct:
        if qh == 0:
            c.op(f's_lshr_b32 s{sT0}, s{sW}, 1'); c.op(f's_mul_i32 s{sT0}, s{sT0}, 40960')
            c.op(f's_mov_b32 s{sCH}, s{sT0}'); c.op(f's_add_u32 s{sCH+1}, s{sT0}, {96 * 1280}')
            c.op(f's_lshl_b32 s{sT0}, s{sT0}, 1'); c.op(f's_add_u32 s{sCH+2}, s{sT0}, {32 * 1280}')
        else:
            for i in range(3): c.op(f's_mov_b32 s{sCH+i}, {i * 18432}')
    c.op(f's_mul_i32 s{sM0T}, s{sDG}, 5120')
    if qh: c.op(f's_add_u32 s{sM0T}, s{sT2 if cfg.nopad else sM0T}, 61440')
    for i in range(4):
        c.op(f's_add_u32 s{sT0}, s{sJ}, {i}'); c.op(f's_and_b32 s{sT0}, s{sT0}, 3'); c.op(f's_mul_i32 s{sHB+i}, s{sT0}, {hs}')
    c.op(f'v_lshrrev_b32 v{t0}, 2, {L}')
    c.op(f'v_mul_u32_u24 v{t0}, 320, v{t0}')
    c.op(f'v_and_b32 v{t1}, 3, {L}')
    c.op(f'v_lshl_add_u32 v{t0}, v{t1}, 3, v{t0}')
    c.op(f'v_bfe_u32 v{t1}, {L}, 4, 1')
    for t in range(3 if qh == 0 else 2):
        c.op(f's_add_u32 s{sT1}, s{sN0}, {t}')
        c.op(f'v_xor_b32 v{t2}, s{sT1}, v{t1}')
        c.op(f'v_lshl_add_u32 v{vA2[t]}, v{t2}, 5, v{t0}')
    c.op(f's_lshl_b32 s{sT0}, s{sQ0}, 10')
    c.op(f's_add_u32 s{sT0}, s{sT0}, 61440')
    c.op(f'v_lshl_add_u32 v{vB2}, {L}, 4, s{sT0}')
    for t in range(3):
        if cfg.opair:
            if t == 1: continue
            tile_m(c, t)
        else:
            c.op(f's_mul_i32 s{sT0}, s{sDG}, 3'); c.op(f's_add_u32 s{sT0}, s{sT0}, {t}')
        if cfg.direct:
            c.op(f's_lshl_b32 s{sT1}, s{sT0}, 1'); c.op(f's_and_b32 s{sT1}, s{sT1}, 0x1c'); c.op(f's_lshr_b32 s{sT1}, 0x352140, s{sT1}'); c.op(f's_and_b32 s{sT1}, s{sT1}, 15')
            if t == 0:
                c.op(f's_mul_i32 s{sT2}, s{sT1}, 9216')
                c.op(f'v_add_u32 v{vOW[1]}, s{sT2}, v{vPA}')
            c.op(f's_and_b32 s{sT0}, s{sT0}, 1'); c.op(f's_lshl_b32 s{sT1}, s{sT1}, 1'); c.op(f's_add_u32 s{sT0}, s{sT0}, s{sT1}')
        c.op(f's_lshr_b32 s{sT1}, s{sT0}, 2'); c.op(f's_mul_i32 s{sT1}, s{sT1}, 20480')
        c.op(f's_bfe_u32 s{sT2}, s{sT0}, 0x10001'); c.op(f's_mul_i32 s{sT2}, s{sT2}, 9216'); c.op(f's_add_u32 s{sT1}, s{sT1}, s{sT2}')
        c.op(f's_and_b32 s{sT0}, s{sT0}, 1'); c.op(f's_lshl_b32 s{sT0}, s{sT0}, 3')
        c.op(f's_add_u32 s{sT0}, s{sT0}, s{sT1}'); c.op(f's_add_u32 s{sT0}, s{sT0}, 61440')
        c.op(f'v_add_u32 v{vOW[t]}, s{sT0}, v{vPA}')
    c.op(f's_lshl_b32 s{sT0}, s{sB}, 3'); c.op(f's_add_u32 s{sT0}, s{sT0}, s{sX}'); c.op(f's_lshl_b32 s{sT0}, s{sT0}, 7'); c.op(f's_add_u32 s{sT0}, s{sT0}, {FLAG_OFF + 4096}')
    c.op(f's_add_u32 s{sF1}, s12, s{sT0}'); c.op(f's_addc_u32 s{sF1+1}, s13, 0')
    c.op(f's_lshl_b32 s{sT0}, s{sLOC}, 7'); c.op(f's_add_u32 s{sT0}, s{sT0}, {FLAG_OFF + 16384}')
    c.op(f's_add_u32 s{sF2}, s12, s{sT0}'); c.op(f's_addc_u32 s{sF2+1}, s13, 0')
    c.op(f's_mul_i32 s{sT0}, s{sLOC}, {8 * PART2}'); c.op(f's_add_u32 s{sT0}, s{sT0}, {WS_PART}')
    srd(c, SPR, 12, 13, f's{sT0}', 8 * PART2)
    c.op(f's_mul_i32 s{sT1}, s{sX}, {PART2}'); c.op(f's_add_u32 s{sT0}, s{sT0}, s{sT1}')
    srd(c, SP, 12, 13, f's{sT0}', PART2)
    srd(c, SOUT, 54, 55, None, 1474560)
    out = []; i = 0; ops = c.ops
    while i < len(ops):
        if i + 1 < len(ops) and (ops[i + 1].startswith('s_addc') or ops[i + 1].startswith('s_cselect')):
            a, b = ops[i], ops[i + 1]
            out.append(lambda a=a, b=b: (EM[0].op(a), EM[0].op(b))); i += 2
        else:
            out.append(ops[i]); i += 1
    return out
EM = [None]

def tail_dma(em, s, orole=False):
    ops = []
    sc = ' sc1' if (orole and cfg.sc_ol) else ''
    for j in range(4 if (cfg.nopad and orole and em.tv == 3) else 5):
        def f(j=j):
            em.op(f's_add_u32 m0, s{sM0T}, {(s % 3) * 20480 + j * 1024}')
            if j == 0:
                if cfg.direct:
                    peer, ch = (0, s) if s < 3 else (1 + (s - 3) % 3, (s - 3) // 3)
                    em.op(f's_add_u32 s{sOFF}, s{sCH + ch}, s{sHB + peer}')
                elif cfg.chunk and s >= 3:
                    ch = (s - 3) // 3
                    if ch == 0: em.op(f's_mov_b32 s{sOFF}, s{sHB + 1 + (s - 3) % 3}')
                    else:
                        em.op(f's_lshl_b32 s{sOFF}, s{sSTR}, {ch - 1}')
                        em.op(f's_add_u32 s{sOFF}, s{sOFF}, s{sHB + 1 + (s - 3) % 3}')
                elif s % 3 == 0: em.op(f's_mov_b32 s{sOFF}, s{sHB + s // 3}')
                else: em.op(f's_add_u32 s{sOFF}, s{sOFF}, s{sSTR}')
            em.op(f'buffer_load_dwordx4 v{vOFFS[j]}, {sr(SD,4)}, s{sOFF} offen{sc} lds', tag=f'T{s}')
        ops.append(f)
    return ops

def flag_store(em, base, idx_s, lab, wave, off=0):
    t0, t1 = 60, 61
    em.op(f's_cmp_eq_u32 s{sW}, {wave}')
    em.op(f's_cbranch_scc0 {lab}')
    em.begin_opt()
    em.op(f's_lshl_b32 s{sT0}, s{idx_s}, 2')
    em.op(f'v_mov_b32 v{t0}, s{sT0}')
    em.op(f'v_mov_b32 v{t1}, s{sTAG}')
    em.op('s_mov_b64 exec, 1')
    em.op(f'global_store_dword v{t0}, v{t1}, s[{base}:{base+1}] offset:{off} sc1')
    em.op('s_mov_b64 exec, -1')
    em.end_opt()
    em.label(lab)

vPL0, vPL1 = 62, 63
def poll(em, base, mask, lab, off=0, keep=False):
    em.op(f'v_and_b32 v{vPL0}, {mask}, v{vLANE}')
    em.op(f'v_lshlrev_b32 v{vPL0}, 2, v{vPL0}')
    em.op(f's_mov_b32 s{sCNT}, 0x20000')
    if not keep: em.wait_vm0()
    em.label(lab)
    em.op(f'global_load_dword v{vPL1}, v{vPL0}, s[{base}:{base+1}] offset:{off} sc1')
    em.op(f's_sub_u32 s{sCNT}, s{sCNT}, 1')
    em.op(f's_cbranch_scc1 {lab}_done')
    em.wait_vm0()
    em.op(f'v_cmp_ne_u32 vcc, s{sTAG}, v{vPL1}')
    em.op('s_nop 4')
    em.op(f's_cbranch_vccz {lab}_done')
    em.op('s_sleep 1')
    em.op(f's_branch {lab}')
    em.label(f'{lab}_done')
    em.wait_vm0()

def tail(em, tv):
    nt, nq = [(3, 5), (3, 4), (2, 4), (2, 5)][tv]
    orole = tv >= 2
    em.tv = tv
    L = f'v{vLANE}'
    rf = cfg.rfrac / 100
    sc = ' sc1' if cfg.sc else ''
    ACC2 = 116; AF = [76, 88]; BF = [16, 36]; CO = 176
    t0, t1, t2, t3 = 56, 57, 58, 59
    sDONE = sT3
    em.op(f'v_lshlrev_b32 v{t0}, 4, v0')
    em.op(f'v_add_u32 v{t1}, 61440, v{t0}')
    npc = 3 if tv == 0 else 2
    k = 0; sts = []
    for c in ((2,) if cfg.direct else range(3)):
        for i in range(npc):
            em.op(f'ds_read_b128 {vr(CO + 4*k)}, v{t1} offset:{c * 20480 + i * 8192}')
            sts.append((CO + 4*k, c * 18432 + i * 8192)); k += 1
    def reads(s, step, st_):
        ops = []
        for t in range(nt):
            ops.append(f'ds_read_b64_tr_b16 {vr(AF[st_] + 4*t, 2)}, v{vA2[t]} offset:{(s % 3) * 20480 + step * 10240}')
            ops.append(f'ds_read_b64_tr_b16 {vr(AF[st_] + 4*t + 2, 2)}, v{vA2[t]} offset:{(s % 3) * 20480 + step * 10240 + 5120}')
        xs = [f'ds_read_b128 {vr(BF[st_] + 4*j)}, v{vB2} offset:{(s % 3) * 20480 + step * 9216 + j * 1024}' for j in range(nq)]
        return ops[0:2] + xs[0:1] + ops[2:] + xs[1:]
    def acc(t, j): return ACC2 + 4 * (j * nt + t)
    def mf(st_, first):
        return [mfma(acc(t, j), AF[st_] + 4*t, BF[st_] + 4*j, None if first else acc(t, j)) for j in range(nq) for t in range(nt)]
    for r, off in sts:
        em.op(f's_mov_b32 s{sT0}, {off}')
        em.op(f'buffer_store_dwordx4 {vr(r)}, v{t0}, {sr(SO,4)}, s{sT0} offen' + ['', ' sc1', ' nt', ' sc0'][cfg.sc_o], tag='CO0' if off < 18432 else 'CO1')
    for o in reads(0, 0, 0): em.op(o)
    em.op(f'v_lshlrev_b32 v{t1}, 4, {L}')
    em.op(f's_and_b32 s{sT1}, s{sW}, 1')
    em.op(f's_add_u32 s{sT2}, s{sT1}, {2 if orole else 0}'); em.op(f's_mul_i32 s{sT2}, s{sT2}, 9'); em.op(f's_add_u32 s{sT2}, s{sT2}, s{sQ0}'); em.op(f's_lshl_b32 s{sT2}, s{sT2}, 10')
    em.op(f'v_add_u32 v{t2}, s{sT2}, v{t1}')
    em.op(f's_mul_i32 s{sT1}, s{sT1}, 5120'); em.op(f's_add_u32 s{sT1}, s{sT1}, {(36 + (3 if tv == 1 else 0)) * 1024}')
    em.op(f'v_add_u32 v{t3}, s{sT1}, v{t1}')
    def pack(a, b):
        o = [f'v_cvt_pk_bf16_f32 v{a}, v{a}, v{a+1}', f'v_cvt_pk_bf16_f32 v{a+1}, v{a+2}, v{a+3}']
        if b is not None: o += [f'v_cvt_pk_bf16_f32 v{a+2}, v{b}, v{b+1}', f'v_cvt_pk_bf16_f32 v{a+3}, v{b+2}, v{b+3}']
        return o
    def st(a, va, off):
        def f():
            em.op(f's_mov_b32 s{sT0}, {off}')
            em.op(f'buffer_store_dwordx4 {vr(a)}, v{va}, {sr(SP,4)}, s{sT0} offen{sc}')
        return f
    carry = []
    for s in range(12):
        if s == 1 and orole and cfg.epoll:
            em.op(f'global_load_dword v{vPL1}, v{vPL0}, s[{sF1}:{sF1+1}] sc1')
        if cfg.onew and s > 0: em.wait_lgkm0()
        interleave(em, mf(0, s == 0), (reads(s, 1, 1), 0, rf), (carry, 0.05, 0.95))
        if s == 1 and orole and cfg.epoll:
            em.op(f'v_cmp_ne_u32 vcc, s{sTAG}, v{vPL1}')
            em.op('s_nop 4')
            em.op(f's_cbranch_vccnz L_np{tv}')
            em.begin_opt()
            for f in tail_dma(em, 3, True): f()
            em.op(f's_mov_b32 s{sDONE}, 1')
            em.end_opt()
            em.label(f'L_np{tv}')
        carry = []
        if s < 11:
            if s == 0 and cfg.chunk: em.wait_vm_tag('CO0', lgkm0=True)
            elif s == 0: em.wait_vm0(); em.wait_lgkm0()
            elif s == cfg.chunk and cfg.chunk:
                em.wait_vm_tag('CO1'); em.wait_vm_tag(f'T{s+1}', lgkm0=True)
            else: em.wait_vm_tag(f'T{s+1}', lgkm0=True)
            em.barrier()
            em.st.stamp(f'T{s}')
        if s == 0 and tv == 2: flag_store(em, sF1, sJ, 'L_f1', 4)
        if cfg.chunk and s == cfg.chunk and tv == 3: flag_store(em, sF1, sJ, 'L_f1b', 6, 16)
        if cfg.chunk and s == (5 if cfg.direct else 2) and orole: em.op(f'global_load_dword v{vPL1}, v{vPL0}, s[{sF1}:{sF1+1}] offset:16 sc1')
        if cfg.chunk and s == (6 if cfg.direct else 3) and orole:
            em.op(f'v_cmp_ne_u32 vcc, s{sTAG}, v{vPL1}')
            em.op('s_nop 4')
            em.op(f's_cbranch_vccz L_p1c_{tv}')
            keep = em.save()[2]
            em.begin_opt()
            poll(em, sF1, 3, f'L_p1b_{tv}', 16, keep=True)
            em.end_opt()
            em.vm = keep
            em.label(f'L_p1c_{tv}')
        fill = []; dm = []
        if s < 11: fill += reads(s + 1, 0, 0)
        if s == 0 and orole and cfg.epoll:
            em.op(f's_mov_b32 s{sDONE}, 0')
            em.op(f'v_and_b32 v{vPL0}, 3, {L}'); em.op(f'v_lshlrev_b32 v{vPL0}, 2, v{vPL0}')
        if s + 3 <= 11:
            if not orole or s >= 2:
                dm = tail_dma(em, s + 3, orole); dm, carry = dm[:3], dm[3:]
            elif s == 1:
                if cfg.epoll:
                    em.op(f's_cmp_eq_u32 s{sDONE}, 1')
                    em.op(f's_cbranch_scc1 L_ep{tv}')
                    vm_before = em.save()[2]
                    em.begin_opt()
                poll(em, sF1, 3, f'L_p1_{tv}')
                for f in tail_dma(em, 3, True): f()
                if cfg.epoll:
                    em.end_opt()
                    em.label(f'L_ep{tv}')
                dm = tail_dma(em, 4, True)
        ins = []
        n = nt * nq
        if s == 11:
            groups = []
            for j in range(nq):
                groups.append((j * nt + 1, pack(acc(0, j), acc(1, j)) + [st(acc(0, j), t2, j * 1024)]))
                if nt == 3 and (j % 2 == 1 or j == nq - 1):
                    j0 = j - (j % 2)
                    groups.append((j * nt + 2, pack(acc(2, j0), acc(2, j) if j != j0 else None) + [st(acc(2, j0), t3, (j0 // 2) * 1024)]))
            lag = 4
            ins = [(g, (p + lag + 0.5) / n, (p + lag + 0.5) / n) for p, g in groups if p + lag < n]
            restg = [g for p, g in groups if p + lag >= n]
        interleave(em, mf(1, False), (dm, 0.05, 0.95), (fill, 0, rf), *ins)
    for g in restg:
        for o in g: emit(em, o)
    em.st.stamp('TP')
    sU, sDL = sT3, sT4
    if tv < 3:
        em.op(f's_lshl_b32 s{sU}, s{sW}, 3'); em.op(f's_add_u32 s{sU}, s{sU}, s{sX}')
        em.op(f's_lshl_b32 s{sT0}, s{sU}, 10')
        em.op(f'v_add_u32 v{t2}, s{sT0}, v{t1}')
        em.op(f's_mul_i32 s{sT0}, s{sU}, 57'); em.op(f's_lshr_b32 s{sT0}, s{sT0}, 9')
        em.op(f's_mul_i32 s{sT1}, s{sT0}, 9'); em.op(f's_sub_u32 s{sT1}, s{sU}, s{sT1}')
        em.op(f's_lshl_b32 s{sT0}, s{sT0}, 2'); em.op(f's_lshr_b32 s{sT0}, 0x8630, s{sT0}'); em.op(f's_and_b32 s{sT0}, s{sT0}, 15')
        em.op(f's_mov_b32 s{sDL}, 32')
        em.op(f's_cmp_lt_u32 s{sU}, 36')
        em.op(f's_cbranch_scc1 L_dec{tv}')
        em.begin_opt()
        em.op(f's_cmp_ge_u32 s{sU}, 41')
        em.op(f's_cselect_b32 s{sT0}, 5, 2')
        em.op(f's_cselect_b32 s{sT1}, 41, 36')
        em.op(f's_sub_u32 s{sT1}, s{sU}, s{sT1}')
        em.op(f's_cmp_eq_u32 s{sT1}, 2')
        em.op(f's_mov_b32 s{sDL}, 20480')
        em.op(f's_cselect_b32 s{sDL}, 0x40000000, s{sDL}')
        em.op(f's_lshl_b32 s{sT1}, s{sT1}, 2'); em.op(f's_lshr_b32 s{sT1}, 0x75420, s{sT1}'); em.op(f's_and_b32 s{sT1}, s{sT1}, 15')
        em.end_opt()
        em.label(f'L_dec{tv}')
        em.op(f's_lshl_b32 s{sT1}, s{sT1}, 4'); em.op(f's_mul_i32 s{sT2}, s{sB}, 144'); em.op(f's_add_u32 s{sT1}, s{sT1}, s{sT2}'); em.op(f's_mul_i32 s{sT1}, s{sT1}, 1280')
        em.op(f's_lshl_b32 s{sT0}, s{sT0}, 5'); em.op(f's_add_u32 s{sT1}, s{sT1}, s{sT0}')
        em.op(f's_mul_i32 s{sT0}, s{sJ}, 320'); em.op(f's_add_u32 s{sT1}, s{sT1}, s{sT0}')
        em.op(f'v_and_b32 v{t3}, 15, {L}'); em.op(f'v_mul_u32_u24 v{t3}, 1280, v{t3}')
        em.op(f'v_lshrrev_b32 v{t0}, 4, {L}'); em.op(f'v_lshl_add_u32 v{t3}, v{t0}, 3, v{t3}')
        em.op(f'v_add_u32 v{t3}, s{sT1}, v{t3}')
    em.wait_vm0(); em.barrier()
    em.st.stamp('TW')
    if tv == 3:
        flag_store(em, sF2, sX, 'L_f2', 7)
    else:
        if tv == 2:
            em.op(f's_cmp_ge_u32 s{sU}, 46')
            em.op(f's_cbranch_scc1 L_fin2')
        poll(em, sF2, 7, f'L_p2_{tv}')
        em.st.stamp('TF')
        for x in range(8):
            em.op(f's_mov_b32 s{sT0}, {x * PART2}')
            em.op(f'buffer_load_dwordx4 {vr(76 + 4*x)}, v{t2}, {sr(SPR,4)}, s{sT0} offen{sc}')
        if tv == 0:
            em.op(f's_or_b32 s{sT0}, s{sH}, s{sW}')
            em.op(f's_cmp_eq_u32 s{sT0}, 0')
            em.op('s_cbranch_scc0 L_nw')
            em.begin_opt()
            em.op(f's_lshl_b32 s{sT0}, s{sB}, 8'); em.op(f's_add_u32 s{sT0}, s{sT0}, {FLAG_OFF}')
            em.op(f'v_mov_b32 v60, s{sT0}'); em.op(f'v_mov_b32 v61, s{sTAG}')
            em.op('s_mov_b64 exec, 1')
            em.op('global_store_dword v60, v61, s[12:13]' + (' sc1' if cfg.osc in (1, 3) else ''))
            em.op('s_mov_b64 exec, -1')
            em.end_opt()
            em.label('L_nw')
        A = 108
        for x in range(8):
            for d in range(4):
                r = 76 + 4*x + d
                if x == 0:
                    em.op(f'v_lshlrev_b32 v{A+2*d}, 16, v{r}'); em.op(f'v_and_b32 v{A+2*d+1}, 0xffff0000, v{r}')
                else:
                    tp = A + 8 + 2 * (d & 1)
                    em.op(f'v_lshlrev_b32 v{tp}, 16, v{r}'); em.op(f'v_and_b32 v{tp+1}, 0xffff0000, v{r}')
                    em.op(f'v_pk_add_f32 {vr(A+2*d,2)}, {vr(A+2*d,2)}, {vr(tp,2)}')
        for d in range(4): em.op(f'v_cvt_pk_bf16_f32 v{A+d}, v{A+2*d}, v{A+2*d+1}')
        em.op(f'buffer_store_dwordx2 {vr(A,2)}, v{t3}, {sr(SOUT,4)}, 0 offen' + ['', ' sc1', ' nt', ' sc0 sc1'][cfg.osc])
        em.op(f'buffer_store_dwordx2 {vr(A+2,2)}, v{t3}, {sr(SOUT,4)}, s{sDL} offen' + ['', ' sc1', ' nt', ' sc0 sc1'][cfg.osc])
        if tv == 2: em.label('L_fin2')
    if cfg.diag: em.wait_vm0()
    em.st.flush(12, 0, sW, 244)
    em.op('s_endpgm')

def kernel_header(name):
    return f'.globl {name}\n.p2align 8\n.type {name},@function\n{name}:\n'
def kernel_desc(name, vgpr, sgpr=102):
    return f'''.amdhsa_kernel {name}
  .amdhsa_next_free_vgpr {vgpr}
  .amdhsa_next_free_sgpr {sgpr}
  .amdhsa_accum_offset {(vgpr + 3) // 4 * 4}
  .amdhsa_group_segment_fixed_size 0
  .amdhsa_kernarg_size 64
  .amdhsa_user_sgpr_count 2
  .amdhsa_user_sgpr_kernarg_segment_ptr 1
  .amdhsa_system_sgpr_workgroup_id_x 1
.end_amdhsa_kernel
'''

def gen_k1():
    em = Em(); EM[0] = em
    k1_prologue(em)
    st0 = em.save()
    em.label('k1_body_start')
    for qh in range(2):
        sts = []
        for typ in ((1, 0) if cfg.n0 else (0,)):
            if qh or typ == 0 and cfg.n0: em.label(f'L_qp{qh}{typ}')
            em.restore(st0)
            em.typ = typ
            k1_qproj(em, qh, typ)
            k1_qk(em, qh)
            sts.append(em.save())
            if typ == 1: em.op(f's_branch L_sm{qh}')
        if len(sts) == 2:
            t = [[e[0] for e in s[2]] for s in sts]
            lo, hi = sorted(range(2), key=lambda i: len(t[i]))
            assert t[hi][len(t[hi]) - len(t[lo]):] == t[lo], t
            em.restore(sts[hi]); em.hist = []
            em.label(f'L_sm{qh}')
        k1_sm0(em, qh)
        k1_pv(em, qh)
    em.label('k1_body_end')
    em.label('L_k1_exit')
    em.op('s_endpgm')
    return em

def main():
    ref = open('cdna_kernels/' + NAME + '.s.ref').read().split('\n')
    head = [l for l in ref[:9]]
    k1 = gen_k1()
    KN = NAME + '_kernel'
    out = '\n'.join(head) + '\n'
    out += f'; @launch grid=(256,1,1) block=(512,1,1) lds={LDS1}\n'
    out += '.amdgcn_target "amdgcn-amd-amdhsa--gfx950"\n.text\n'
    out += kernel_header(KN) + k1.text()
    out += '.section .rodata,"a"\n.p2align 6\n' + kernel_desc(KN, 256)
    open(sys.argv[1], 'w').write(out)
    print('k1 instrs', k1.count, 'nops', k1.nops, file=sys.stderr)
main()
```

```python
import sys, struct, math
from em import Em, interleave, emit

NAME = 'standalone__gqa_block_cached__near_ridge'
def fbits(x): return struct.unpack('<I', struct.pack('<f', x))[0]

class Cfg:
    nt_kv = True
    nt_w = False
    nt_k2 = False
    two_types = True
    pre = True
    code_pre = True
    diag = False
    pk = True
    rfrac = 60
    prio = 0
    x_noexp = 0
    x_nopw = 0
    efrac = 95
    loopb = -1
    st = 0
    dbg = 0
    n0 = 1
    inpv0 = 0
    inpv1 = 0
    pfa = 5
    kq = 12
    kq0 = 7
    wont = 0
    vrf = 60
    x_ren = 0
    vrole = 1
    vfirst = 0
    vold = 0
    vh0 = 12
    wsoff = 0
    cearly = 1
    osc = 0
    nu = 6
    pfs = 0
    nopad = 1
    pfxp = 10
    pfw = 10
    vpf = 0
    vpq = 0
    vpq_in = 4
    vpnt = 1
    spin = 0
    spst = -1
    spty = -1
    direct = 1
    chunk = 1
    onew = 1
    qlate = 0
    drole = 0
    in0 = 0
    in1 = 0
    epoll = 1
    pfx = 5
    opair = 1
    tsq = 1
    g2e = 0
    wo0 = 1
    pfnt = 0
    pfown = 10
    pfall = 1
    nt_k = 1
    nt_v = 1
    eager = 3
    eagerv = 0
    qwi = 1
    g2lo = 0
    g2hi = 30
    valo = 0
    vahi = 60
    pf1 = 10
    v0e = 0
    kqb = 0
    kqb0 = 7
    vb = 0
    vreg = 0
    nvy = 4
    sc_o = 1
    sc_ol = 1
    rt = 0
    qloop = 0
    x_qnodma = 0
    x_qnord = 0
    dlo = 10
    dhi = 95
    dsplit = 3
    x_delay = 0
    wopre = 1
    sc = 1
    x_nobar = 0
    x_nord = 0
    x_nodma = 0
cfg = Cfg()
cfg.pvst = (3,7); cfg.qst = (0,8,)
if 'pvall=1' in sys.argv: sys.argv.remove('pvall=1'); cfg.pvst = (0,1,2,3,4,5,6,7); cfg.qst = (); cfg.fewst = True
else: cfg.fewst = False
for a in sys.argv[2:]:
    k, v = a.split('='); setattr(cfg, k, type(getattr(cfg, k))(int(v)))
STSETS = {0: 'S0 BQ PV0 BO T2 TW', 1: 'ka pi si S0 B0 B8 BQ K0 K1 QKend BM exp0 PV0', 2: 'PV0 PB0 PB1 PB2 PB3 PB4 PB5 PB6', 9: 'BM exp0 PV0 PB3 PB6 PB7 BO T0', 3: 'BO T0 T1 T2 TW TF', 4: 'K0 K1 QKend BM exp0 PV0 PB3 PB7 BO T0', 8: '', 5: 'S0 LB0 LBend BQ', 6: 'S0 B0 B1 B2 B3 B5 B7 B8 B9 BQ', 7: 'BO T0 T1 T2 T3 T4 T6 T8 T10 TP'}
cfg.stlist = ['rt0', 'start'] + STSETS[cfg.st].split()[:6] + ['end', 'rt_end']
cfg.pvst = range(8); cfg.qst = range(10)
cfg.types = bool(cfg.n0)

def vr(b, n=4): return f'v[{b}:{b + n - 1}]' if n > 1 else f'v{b}'
def sr(b, n): return f's[{b}:{b + n - 1}]'
MF = 'v_mfma_f32_16x16x32_bf16'
def mfma(d, a, b, c=None):
    return f'{MF} {vr(d)}, {vr(a)}, {vr(b)}, ' + ('0' if c is None else vr(c))

FLAG_OFF = 28 << 20
PART2 = 47104
O_HEAD = 55296
WS_PART = 16 << 20
PART_TILE = 90 * 1024

def srd(em, d, base_lo, base_hi, off_sgpr, size):
    if off_sgpr is None:
        em.op(f's_mov_b32 s{d}, s{base_lo}'); em.op(f's_mov_b32 s{d+1}, s{base_hi}')
    else:
        em.op(f's_add_u32 s{d}, s{base_lo}, {off_sgpr}'); em.op(f's_addc_u32 s{d+1}, s{base_hi}, 0')
    em.op(f's_mov_b32 s{d+2}, {size}')
    em.op(f's_mov_b32 s{d+3}, 0x20000')

_lab = [0]
DIAG_OFF = 64 << 20
class Stamps:
    def __init__(self, em):
        self.em = em; self.n = 0; self.names = []
        if cfg.diag:
            for i in range(len(cfg.stlist)): em.op(f's_mov_b32 s{60 + 2*i}, 0')
    def stamp(self, name, real=False):
        if cfg.spin:
            L = ['S0', 'BQ', 'BM', 'PV0', 'BO', 'T2', 'TW', 'TF']
            if name == 'rt0' or (cfg.spst >= 0 and name == L[cfg.spst]):
                r = 76 if name == 'rt0' else 78
                self.em.wait_lgkm0()
                self.em.op(f's_memrealtime s[{r}:{r+1}]'); self.em.op('s_waitcnt lgkmcnt(0)')
                if name == 'rt0': self.em.op('s_mov_b32 s78, s76')
            return
        if not cfg.diag or name not in cfg.stlist: return
        em = self.em; i = cfg.stlist.index(name)
        em.wait_lgkm0()
        em.op(('s_memrealtime' if (real or cfg.rt) else 's_memtime') + f' s[{60 + 2*i}:{61 + 2*i}]')
        em.op('s_waitcnt lgkmcnt(0)')
    def flush(self, ws_lo, kidx, wave_s, tv):
        if cfg.spin:
            em = self.em; _lab[0] += 1
            if cfg.spty >= 0:
                em.op(f's_cmp_eq_u32 s39, {cfg.spty}'); em.op('s_cselect_b32 s78, s78, s76')
            em.op('s_sub_u32 s78, s78, s76'); em.op(f's_add_u32 s78, s78, {cfg.spin}')
            em.label(f'L_sp{_lab[0]}')
            em.op('s_sleep 2')
            em.op('s_memrealtime s[74:75]'); em.op('s_waitcnt lgkmcnt(0)')
            em.op('s_sub_u32 s74, s74, s76'); em.op('s_cmp_lt_u32 s74, s78'); em.op(f's_cbranch_scc1 L_sp{_lab[0]}')
            return
        if not cfg.diag: return
        em = self.em
        self.stamp('end'); self.stamp('rt_end', real=True)
        if cfg.dbg:
            _lab[0] += 1
            em.op('s_load_dwordx2 s[56:57], s[0:1], 48')
            em.op(f's_and_b32 s58, s2, 0xdf'); em.op(f's_or_b32 s58, s58, s{wave_s}'); em.op('s_cmp_eq_u32 s58, 0')
            em.op('s_waitcnt lgkmcnt(0)')
            em.op(f's_cbranch_scc0 L_dbg{_lab[0]}')
            em.op(f'v_mov_b32 v{tv}, s2')
            for k, i in enumerate([2, 3, 4, 13, 6, 9, 11, 12]):
                em.op(f's_sub_u32 s58, s{60 + 2*i}, s{60 if i == 13 else 62}')
                em.op(f'v_mov_b32 v{tv+1}, s58')
                em.op(f'global_store_dword v{tv}, v{tv+1}, s[56:57] offset:{4*k}')
            em.label(f'L_dbg{_lab[0]}')
            return
        em.op(f's_lshl_b32 s56, s2, 3'); em.op(f's_add_u32 s56, s56, s{wave_s}'); em.op('s_lshl_b32 s56, s56, 7')
        em.op(f's_add_u32 s56, s56, {DIAG_OFF + (kidx << 20)}')
        em.op(f's_add_u32 s56, s{ws_lo}, s56'); em.op(f's_addc_u32 s57, s{ws_lo+1}, 0')
        em.op(f'v_mov_b32 v{tv}, 0')
        for i in range(len(cfg.stlist)):
            em.op(f'v_mov_b32 v{tv+1}, s{60 + 2*i}')
            em.op(f'global_store_dword v{tv}, v{tv+1}, s[56:57] offset:{4*i}')
        print('stamps', kidx, cfg.stlist, file=sys.stderr)

SX, SWQ, SK, SV, SO = 16, 20, 24, 28, 32
sW, sW3072, sW1024, sTYPE, sOFF, sT0, sT1, sT2, sC, sB, sH, sJ, sLOC, sX = 36, 37, 38, 39, 40, 41, 42, 43, 44, 52, 46, 47, 48, 53
vLANE, vXO, vWO, vK0, vK1, vVO = 1, 2, 3, 4, 5, 6
vRA = [7, 8]
vRB = [9, 10, 11]
vRC = [12, 13, 14]
vT = 15
vOW = [8, 254, 255]
vVW, vVW2 = 7, 8
vPA, vPW, vMS = 240, 242, 243
vPW2 = 241
TMP = list(range(244, 256))
STG = 43008
PBASE, VBASE, MAXB, SUMB = 0, 55296, 153600, 155648
NV = 4
def vslot(s): return [3, 1, 2, 0][s % 4]
LDS1 = SUMB + 12 * 512
def kop(kt, ks): return 16 + 4 * (kt * 6 + ks)
def sreg(kt, qt):
    if kt < 2: return 116 + 4 * (qt * 2 + kt)
    i = qt * 2 + (kt - 2)
    return 16 + 4 * i if i < 12 else 188 + 4 * (i - 12)
ACC = 116
MC = 212
SUM = 221
SUMP = 222
QF = 224
OACC0 = [116 + 4*i for i in range(15)]
OACC1 = [120 + 8*i for i in range(9)] + [100, 80, 208]
PAF0 = [[176, 180, 184], [104, 108, 112]]
PAF1 = [[200, 192, 60], [104, 108, 112]]
PBF0 = [[64, 68, 72, 76, 80], [84, 88, 92, 96, 100]]
PBF1 = [[64, 68, 72, 76], [84, 88, 92, 96]]
INV0 = 212
NEXP1 = 4


sKB = 57
vKR = [250, 251]
vVO3 = 252
def k_dma_ops(em, half):
    nt = ' nt' if cfg.nt_kv and cfg.nt_k else ''
    ops = []
    for c in range(3):
        for k in range(2):
            for p in range(2):
                def f(c=c, k=k, p=p):
                    em.op(f's_add_u32 m0, s{sKB}, {(k * 3 + c) * 2048 + p * 1024 - c * 128}')
                    em.op(f's_mov_b32 s{sOFF}, {(half * 2 + k) * 6144}')
                    em.op(f'buffer_load_dwordx4 v{vK1 if p else vK0}, {sr(SK,4)}, s{sOFF} offen offset:{c*128}{nt} lds', tag=f'K{half}_{c * 2 + k}')
                ops.append(f)
    return ops
def k_rd_ops(half, u):
    c, k = divmod(u, 2)
    return [f'ds_read_b128 {vr(kop(half * 2 + k, 2 * c + e))}, v{vKR[e]} offset:{(k * 3 + c) * 2048}' for e in range(2)]
def k_fetch(em, half, nxt, u0=0, u1=6):
    for u in range(u0, u1):
        em.wait_vm_tag(f'K{half}_{u}')
        for o in k_rd_ops(half, u): em.op(o)
        if nxt and u > u0:
            em.waitcnt(lgkm=2); em.lgkm = em.lgkm[-2:]
            for f in nxt[2 * u - 2: 2 * u]: f()
    if nxt:
        em.wait_lgkm0()
        for f in nxt[2 * u1 - 2: 2 * u1]: f()
def va_ops(em):
    nt = ' nt' if cfg.nt_kv and cfg.nt_v else ''
    ops = []
    for rg in range(4):
        for c in range(3):
            def f(c=c, rg=rg):
                em.op(f's_add_u32 m0, s{sKB}, {rg * 3072 + c * 896}')
                em.op(f's_mov_b32 s{sOFF}, {rg * 3072}')
                em.op(f'buffer_load_dwordx4 v{vVO3}, {sr(SV,4)}, s{sOFF} offen offset:{c*128}{nt} lds', tag='VA')
            ops.append(f)
    return ops

def stage_dma_ops(em, s, qh):
    nt = ' nt' if cfg.nt_w else ''
    slot = (s % 3) * 18432
    ops = []
    for c in range(3):
        def f(c=c):
            em.op(f's_add_u32 m0, s{sW3072}, {VBASE + (s % 3) * 24576 + c * 896}')
            if c == 0: em.op(f's_mov_b32 s{sOFF2}, {s * 786432}')
            em.op(f'buffer_load_dwordx4 v{vWO}, {sr(SWQ,4)}, s{sOFF2} offen offset:{c*128}{nt} lds', tag=f'S{s}')
        ops.append(f)
    for j in range(2):
        def f(j=j):
            em.op(f's_add_u32 m0, s{sW1024}, {slot + j * 8192}')
            em.op(f's_mov_b32 s{sOFF}, {s * 128 + j * 81920}')
            em.op(f'buffer_load_dwordx4 v{vXO}, {sr(SX,4)}, s{sOFF} offen{nt} lds', tag=f'S{s}')
        ops.append(f)
    if qh == 1:
        def f():
            _lab[0] += 1
            lab = f'L_x{_lab[0]}'
            em.op(f's_cmp_lt_u32 s{sW}, 6')
            em.op(f's_cbranch_scc0 {lab}')
            em.begin_opt()
            em.op(f's_add_u32 m0, s{sW1024}, {slot + 12288}')
            em.op(f's_mov_b32 s{sOFF}, {s * 128 + 122880}')
            em.op(f'buffer_load_dwordx4 v{vXO}, {sr(SX,4)}, s{sOFF} offen{nt} lds', tag=f'S{s}')
            em.end_opt()
            em.label(lab)
        ops.insert(0, f)
    return ops

def v_dma_ops(em, s):
    nt = ' nt' if cfg.nt_kv and cfg.nt_v else ''
    ops = []
    for c in range(3):
        def f(c=c):
            em.op(f's_add_u32 m0, s{sW3072}, {VBASE + vslot(s) * 24576 + c * 896}')
            em.op(f's_mov_b32 s{sOFF}, {(128 * (s & 3) + 32 * (s >> 2)) * 384}')
            em.op(f'buffer_load_dwordx4 v{vVO}, {sr(SV,4)}, s{sOFF} offen offset:{c*128}{nt} lds', tag=f'V{s}')
        ops.append(f)
    return ops

sDG = 49
sPFS, sPFB = 45, 50
sOFF2 = 3
vPF = 241
def pf_ops():
    if not cfg.pre: return []
    nt = ' nt' if cfg.nt_w else ''
    return [f'global_load_dwordx4 {vr(112)}, v{vPF}, s[{sPFB}:{sPFB+1}]{nt}', f'v_add_u32 v{vPF}, s{sPFS}, v{vPF}']
sTAG, sSTR, sF1, sF2, sHB, sM0T, sQ0, sNH, sCNT = 88, 89, 90, 92, 94, 98, 99, 100, 101
VST = 64
def v_reg_ops(em):
    nt = ' nt' if cfg.nt_kv and cfg.nt_v else ''
    ops = []
    for s in range(4, 8):
        for c in range(3):
            def f(s=s, c=c):
                em.op(f's_mov_b32 s{sOFF}, {(128 * (s & 3) + 32 * (s >> 2)) * 384}')
                em.op(f'buffer_load_dwordx4 {vr(VST + 4 * ((s - 4) * 3 + c))}, v{vVO}, {sr(SV,4)}, s{sOFF} offen offset:{c*128}{nt}', tag=f'V{s}')
            ops.append(f)
    return ops
def v_put_ops(s):
    slot = vslot(s)
    return [f'ds_write_b128 v{vVW if slot < 2 else vVW2}, {vr(VST + 4 * ((s - 4) * 3 + c))} offset:{(slot % 2) * 24576 + c * 1024}' for c in range(3)]

vPF2 = 254
VTMP = [248, 249, 253]
def pf2_ops():
    nt = ' nt' if cfg.nt_w else ''
    return [f'global_load_dwordx4 {vr(112)}, v{vPF2}, s[{sPFB}:{sPFB+1}]{nt}', f'v_add_u32 v{vPF2}, s{sPFS}, v{vPF2}']

def v_pf_ops(em, blk_delta=0):
    nt = ' nt' if cfg.vpnt else ''
    ops = []
    for s in range(4, 8):
        for c in range(3):
            def f(s=s, c=c):
                em.op(f's_mov_b32 s{sOFF}, {(128 * (s & 3) + 32 * (s >> 2)) * 384 + blk_delta}')
                em.op(f's_mov_b32 m0, {MAXB + 640}')
                em.op(f'buffer_load_dwordx4 v{vVO}, {sr(SV,4)}, s{sOFF} offen offset:{c*128}{nt} lds', tag='VP')
            ops.append(f)
    return ops

def k1_prologue(em):
    em.op('s_cmp_ge_u32 s2, 256')
    em.op('s_cbranch_scc1 L_k1_exit')
    em.st = Stamps(em); em.st.stamp('rt0', real=True); em.st.stamp('start')
    em.op('s_load_dwordx8 s[4:11], s[0:1], 0')
    em.op('s_load_dwordx2 s[12:13], s[0:1], 56')
    em.op('s_load_dwordx2 s[14:15], s[0:1], 32')
    em.op('s_load_dwordx2 s[54:55], s[0:1], 40')
    em.op(f'v_and_b32 v{vLANE}, 63, v0')
    em.op(f'v_lshrrev_b32 v{vT}, 6, v0')
    em.op(f's_and_b32 s{sX}, s2, 7')
    em.op(f's_lshr_b32 s{sLOC}, s2, 3')
    em.op(f'v_readfirstlane_b32 s{sW}, v{vT}')
    t0, t1, t2, t3, t4, t5 = TMP[:6]
    L = f'v{vLANE}'
    em.op(f's_and_b32 s{sJ}, s{sLOC}, 3')
    em.op(f's_lshr_b32 s{sB}, s{sLOC}, 2')
    em.op(f's_lshl_b32 s{sH}, s{sX}, 2')
    em.op(f's_add_u32 s{sH}, s{sH}, s{sJ}')
    em.op(f's_and_b32 s{sTYPE}, s{sB}, 1')
    em.op(f's_lshl_b32 s{sT0}, s{sLOC}, 1'); em.op(f's_mul_i32 s{sT0}, s{sT0}, 12288'); em.op(f's_mul_i32 s{sT1}, s{sX}, 1536'); em.op(f's_add_u32 s{sT0}, s{sT0}, s{sT1}')
    em.op(f's_lshl_b32 s{sT1}, s{sW}, 9'); em.op(f's_add_u32 s{sT0}, s{sT0}, s{sT1}')
    em.op(f'v_lshrrev_b32 v{t3}, 5, {L}'); em.op(f'v_mul_u32_u24 v{t3}, 12288, v{t3}')
    em.op(f'v_and_b32 v{t4}, 31, {L}'); em.op(f'v_lshlrev_b32 v{t4}, 4, v{t4}')
    em.op(f'v_add3_u32 v{t5}, v{t3}, v{t4}, s{sT0}')
    em.op(f'v_lshrrev_b32 v{t0}, 3, {L}')
    em.op(f'v_and_b32 v{t1}, 7, {L}')
    em.op(f'v_lshrrev_b32 v{t2}, 4, {L}')
    em.op(f's_mul_i32 s{sT0}, s{sLOC}, 36'); em.op(f's_lshl_b32 s{sT2}, s{sW}, 3'); em.op(f's_add_u32 s{sT0}, s{sT0}, s{sT2}'); em.op(f's_sub_u32 s{sT0}, s{sT0}, 24')
    em.op(f'v_add_u32 v{t3}, s{sT0}, v{t0}')
    em.op(f's_cmp_lt_u32 s{sW}, 3')
    em.op(f's_cselect_b64 vcc, -1, 0')
    em.op(f's_movk_i32 s{sPFS}, 128')
    em.op(f's_cselect_b32 s{sPFS}, 786432, s{sPFS}')
    for dst, dr, dw in ((vPF, 0, 0), (vPF2, 144, 98304) if not cfg.pfall else (vPF2, -144 & 0xffffffff, -98304 & 0xffffffff)):
        if dst == vPF2 and cfg.pf1 >= 10 and not cfg.pfall: continue
        em.op(f'v_add_u32 v{t4}, {dr}, v{t3}'); em.op(f'v_min_u32 v{t4}, 1151, v{t4}')
        em.op(f'v_mul_u32_u24 v{t4}, 1280, v{t4}')
        em.op(f'v_lshl_add_u32 v{t4}, v{t1}, 4, v{t4}')
        em.op(f'v_add_u32 v{dst}, {dw}, v{t5}')
        em.op(f'v_cndmask_b32 v{dst}, v{t4}, v{dst}, vcc')
    if cfg.pf1 < 10:
        em.op(f's_mul_i32 s{sT0}, s{sPFS}, {cfg.pf1}'); em.op(f'v_add_u32 v{vPF2}, s{sT0}, v{vPF2}')
    em.op(f's_and_b32 s{sDG}, s{sW}, 3')
    em.op(f's_mul_i32 s{sW3072}, s{sW}, 3072')
    em.op(f's_lshl_b32 s{sW1024}, s{sW}, 10')
    em.op(f's_and_b32 s{sT0}, s{sW}, 1')
    em.op(f's_lshl_b32 s{sT1}, s{sT0}, 2')
    em.op(f'v_add_u32 v{t3}, s{sT1}, v{t2}')
    em.op(f'v_xor_b32 v{t3}, v{t3}, v{t1}')
    em.op(f'v_add_u32 v{t4}, s{sT2}, v{t0}')
    em.op(f'v_mul_u32_u24 v{vXO}, 1280, v{t4}')
    em.op(f'v_lshl_add_u32 v{vXO}, v{t3}, 4, v{vXO}')
    em.op(f'v_and_b32 v{t3}, 1, v{t2}')
    em.op(f'v_lshl_add_u32 v{t3}, v{t3}, 1, s{sT1}')
    em.op(f'v_xor_b32 v{t3}, v{t3}, v{t1}')
    em.op(f'v_mul_u32_u24 v{vWO}, 12288, v{t4}')
    em.op(f'v_lshl_add_u32 v{vWO}, v{t3}, 4, v{vWO}')
    em.op(f's_lshl_b32 s{sT2}, s{sW}, 6')
    em.op(f'v_add_u32 v{t4}, s{sT2}, v{t0}')
    em.op(f'v_mul_u32_u24 v{t4}, 384, v{t4}')
    em.op(f'v_xor_b32 v{t3}, v{t2}, v{t1}')
    em.op(f'v_lshl_add_u32 v{vK0}, v{t3}, 4, v{t4}')
    em.op(f'v_xor_b32 v{vK1}, 64, v{vK0}')
    em.op(f'v_add_u32 v{vK1}, {8 * 384}, v{vK1}')
    em.op(f'v_lshlrev_b32 v{t3}, 1, v{t2}')
    em.op(f'v_xor_b32 v{t3}, v{t3}, v{t1}')
    em.op(f'v_lshl_add_u32 v{vVO3}, v{t3}, 4, v{t4}')
    em.op(f's_and_b32 s{sT1}, s{sW}, 6'); em.op(f's_lshr_b32 s{sKB}, 0x27, s{sT1}'); em.op(f's_and_b32 s{sKB}, s{sKB}, 3')
    em.op(f's_lshl_b32 s{sKB}, s{sKB}, 1'); em.op(f's_add_u32 s{sKB}, s{sKB}, s{sT0}'); em.op(f's_mul_i32 s{sKB}, s{sKB}, 12288'); em.op(f's_add_u32 s{sKB}, s{sKB}, {VBASE}')
    em.op(f'v_bfe_u32 v{t3}, {L}, 3, 1'); em.op(f'v_lshlrev_b32 v{t3}, 10, v{t3}')
    em.op(f'v_lshl_add_u32 v{t3}, v{t1}, 7, v{t3}')
    em.op(f'v_bfe_u32 v{t4}, {L}, 1, 3')
    em.op(f'v_xor_b32 v{t4}, v{t4}, v{t2}'); em.op(f'v_lshlrev_b32 v{vT}, 4, v{t4}')
    em.op(f'v_add_u32 v{vRA[0]}, v{t3}, v{vT}')
    em.op(f'v_add_u32 v{vKR[0]}, s{sKB}, v{vRA[0]}')
    em.op(f'v_xor_b32 v{vKR[1]}, 64, v{vKR[0]}')
    em.op(f's_lshr_b32 s{sT1}, s{sW}, 2'); em.op(f's_lshl_b32 s{sT1}, s{sT1}, 6')
    em.op(f's_lshl_b32 s{sT0}, s{sDG}, 3'); em.op(f's_add_u32 s{sT0}, s{sT0}, s{sT1}')
    em.op(f'v_add_u32 v{t3}, s{sT0}, v{t0}')
    em.op(f'v_mul_u32_u24 v{vVO}, 384, v{t3}')
    em.op(f'v_lshlrev_b32 v{t3}, 1, v{t2}')
    em.op(f'v_xor_b32 v{t3}, v{t3}, v{t1}')
    em.op(f'v_lshl_add_u32 v{vVO}, v{t3}, 4, v{vVO}')
    em.op(f's_mul_i32 s{SX+3}, s{sB}, 184320')
    em.op(f's_mul_i32 s{SWQ+3}, s{sH}, 384')
    em.op(f's_lshl_b32 s{sT1}, s{sB}, 5'); em.op(f's_add_u32 s{sT1}, s{sT1}, s{sH}')
    em.op(f's_mul_i32 s{sT2}, s{sT1}, 196608')
    em.op(f's_mul_i32 s{SO+3}, s{sT1}, {O_HEAD}')
    em.op(f's_lshl_b32 s{sT0}, s{sB}, 8'); em.op(f's_add_u32 s{sT0}, s{sT0}, {FLAG_OFF}')
    em.op(f's_mov_b32 s{SX+2}, 184320'); em.op(f's_sub_u32 s{SWQ+2}, 7864320, s{SWQ+3}')
    em.op(f's_cmp_lt_u32 s{sW}, 3')
    em.op('s_waitcnt lgkmcnt(0)')
    em.st.stamp('ka')
    if cfg.diag: em.op(f's_cmp_lt_u32 s{sW}, 3')
    em.op(f's_cselect_b64 s[{sPFB}:{sPFB+1}], s[10:11], s[4:5]')
    for i in range(0 if cfg.pfall else 3):
        for o in pf_ops(): em.op(o)
    if cfg.cearly:
        em.op('s_getpc_b64 s[58:59]')
        em.label('L_pce')
        em.op('s_add_u32 s58, s58, k1_body_start-L_pce')
        em.op('s_addc_u32 s59, s59, 0')
        em.op(f's_and_b32 s{sT1}, s{sLOC}, 15')
        em.op(f's_lshl_b32 s{sT1}, s{sT1}, 13')
        em.op(f'v_lshlrev_b32 v{TMP[11]}, 4, v0')
        em.op(f'v_add_u32 v{TMP[11]}, s{sT1}, v{TMP[11]}')
        em.op(f'v_min_u32 v{TMP[11]}, k1_body_end-k1_body_start-16, v{TMP[11]}')
        em.op(f'global_load_dwordx4 {vr(112)}, v{TMP[11]}, s[58:59]')
    if cfg.wsoff:
        em.op(f's_add_u32 s12, s12, {cfg.wsoff << 20}'); em.op('s_addc_u32 s13, s13, 0')
    em.op(f's_load_dword s{sTAG}, s[12:13], s{sT0}')
    em.op(f's_add_u32 s{SWQ}, s10, s{SWQ+3}'); em.op(f's_addc_u32 s{SWQ+1}, s11, 0'); em.op(f's_mov_b32 s{SWQ+3}, 0x20000')
    em.op(f's_add_u32 s{SX}, s4, s{SX+3}'); em.op(f's_addc_u32 s{SX+1}, s5, 0'); em.op(f's_mov_b32 s{SX+3}, 0x20000')
    srd(em, SK, 6, 7, f's{sT2}', 196608); srd(em, SV, 8, 9, f's{sT2}', 196608)
    if cfg.n0 or cfg.pfall:
        em.op(f's_cmp_eq_u32 s{sTYPE}, 1')
        em.op('s_cbranch_scc0 L_nok1')
        em.begin_opt()
        em.op(f's_cmp_lt_u32 s{sW}, 3')
        em.op('s_cbranch_scc0 L_pfx')
        if cfg.pfs:
            em.op(f'v_add_u32 v{vPF}, {cfg.pfs * 786432}, v{vPF}'); em.op(f'v_add_u32 v{vPF2}, {cfg.pfs * 786432}, v{vPF2}')
        for i in range(cfg.pfw - cfg.pfs):
            for o in pf2_ops() + pf_ops(): em.op(o)
        em.op('s_branch L_nok1')
        em.label('L_pfx')
        if cfg.pfs: em.op(f'v_add_u32 v{vPF2}, {cfg.pfs * 128}, v{vPF2}')
        for i in range(cfg.pfxp - cfg.pfs):
            for o in pf2_ops(): em.op(o)
        for i in range(cfg.pfx):
            for o in pf_ops(): em.op(o)
        em.end_opt()
        em.label('L_nok1')
    if cfg.n0:
        em.op(f's_lshr_b32 s{sT0}, s{sW}, 2'); em.op(f's_lshl_b32 s{sT0}, s{sT0}, 1'); em.op(f's_or_b32 s{sT0}, s{sT0}, s{sTYPE}')
        for v in (0, 2, 3):
            em.op(f's_cmp_eq_u32 s{sT0}, {v}')
            em.op(f's_cbranch_scc1 L_qp{v >> 1}{v & 1}')
    else:
        em.op(f's_cmp_lt_u32 s{sW}, 4')
        em.op('s_cbranch_scc0 L_qp10')

def tile_m(em, t):
    tab = [[0, 4, 6, 10], [1, 5, 7, 11], [2, 3, 8, 9]][t]
    em.op(f's_lshl_b32 s{sT0}, s{sDG}, 2')
    em.op(f's_lshr_b32 s{sT0}, {sum(v << (4 * i) for i, v in enumerate(tab))}, s{sT0}')
    em.op(f's_and_b32 s{sT0}, s{sT0}, 15')

def tr_addr(em, dst, t, base, fmode):
    t0, t1, t2, t3 = TMP[:4]
    L = f'v{vLANE}'
    if fmode == 'v' and cfg.opair: tile_m(em, t)
    else:
        em.op(f's_mul_i32 s{sT0}, s{sDG}, 3'); em.op(f's_add_u32 s{sT0}, s{sT0}, {t}')
    em.op(f's_lshr_b32 s{sT1}, s{sT0}, 2'); em.op(f's_lshl_b32 s{sT1}, s{sT1}, 10')
    em.op(f's_add_u32 s{sT1}, s{sT1}, {base}')
    em.op(f's_and_b32 s{sT0}, s{sT0}, 3')
    em.op(f'v_lshrrev_b32 v{t0}, 4, {L}')
    em.op(f'v_bfe_u32 v{t1}, {L}, 2, 2')
    em.op(f'v_and_b32 v{t2}, 1, v{t0}')
    em.op(f'v_lshlrev_b32 v{t2}, 1, v{t2}')
    em.op(f'v_lshrrev_b32 v{t3}, 1, v{t1}')
    em.op(f'v_add_u32 v{t3}, v{t3}, v{t2}')
    em.op(f'v_xor_b32 v{t3}, s{sT0}, v{t3}')
    em.op(f'v_lshlrev_b32 v{t3}, 5, v{t3}')
    em.op(f'v_lshlrev_b32 v{dst}, 7, v{t1}')
    em.op(f'v_add_u32 v{dst}, v{dst}, v{t3}')
    if fmode == 'w':
        em.op(f'v_mul_u32_u24 v{t3}, 3072, v{t0}')
    else:
        em.op(f'v_lshlrev_b32 v{t2}, 8, v{t2}')
        em.op(f'v_add_u32 v{dst}, v{dst}, v{t2}')
        em.op(f'v_lshrrev_b32 v{t3}, 1, v{t0}')
        em.op(f'v_mul_u32_u24 v{t3}, 3072, v{t3}')
    em.op(f'v_add_u32 v{dst}, v{dst}, v{t3}')
    em.op(f'v_and_b32 v{t3}, 3, {L}')
    em.op(f'v_lshlrev_b32 v{t3}, 3, v{t3}')
    em.op(f'v_add_u32 v{dst}, v{dst}, v{t3}')
    em.op(f'v_add_u32 v{dst}, s{sT1}, v{dst}')

class Cap:
    def __init__(self): self.ops = []
    def op(self, t, tag=None): self.ops.append(t)

def k1_qproj(em, qh, typ):
    nq = 5 if qh == 0 else 4
    q0 = 0 if qh == 0 else 5
    L = f'v{vLANE}'
    t0, t1, t2, t3, t4, t5 = TMP[:6]
    rf = cfg.rfrac / 100
    if cfg.prio == qh + 1: em.op('s_setprio 1')
    npre = cfg.n0 if typ == 1 else 0
    if npre:
        nu = cfg.nu if npre == 1 else 6
        for f in k_dma_ops(em, 0)[:2 * nu]: f()
        em.wait_lgkm0(force=True)
        k_fetch(em, 0, k_dma_ops(em, 1) if npre == 2 else None, 0, nu)
        if npre == 2: k_fetch(em, 1, None)
        em.wait_lgkm0()
    em.barrier()
    for f in stage_dma_ops(em, 0, qh): f()
    em.barrier()
    for f in stage_dma_ops(em, 1, qh): f()
    em.op(f's_add_u32 s{SO}, s12, s{SO+3}'); em.op(f's_addc_u32 s{SO+1}, s13, 0'); em.op(f's_mov_b32 s{SO+2}, {O_HEAD}'); em.op(f's_mov_b32 s{SO+3}, 0x20000')
    em.op(f's_mov_b32 s{sC}, {fbits(192 ** -0.5 * math.log2(math.e))}')
    if cfg.code_pre and not cfg.cearly:
        em.op('s_getpc_b64 s[58:59]')
        em.label(f'L_pc{qh}{typ}')
        em.op(f's_add_u32 s58, s58, k1_body_start-L_pc{qh}{typ}')
        em.op('s_addc_u32 s59, s59, -1')
        em.op(f's_and_b32 s{sT1}, s{sLOC}, 15')
        em.op(f's_lshl_b32 s{sT1}, s{sT1}, 13')
        em.op(f'v_lshlrev_b32 v{TMP[11]}, 4, v0')
        em.op(f'v_add_u32 v{TMP[11]}, s{sT1}, v{TMP[11]}')
        em.op(f'v_min_u32 v{TMP[11]}, k1_body_end-k1_body_start-16, v{TMP[11]}')
    em.st.stamp('si')
    em.op(f'v_lshlrev_b32 v{t3}, 2, v0')
    em.op(f'v_add_u32 v{t3}, {MAXB}, v{t3}')
    em.op(f'v_mov_b32 v{t4}, 0xff800000')
    em.op(f'ds_write_b32 v{t3}, v{t4}')
    em.op(f'v_and_b32 v{vMS}, 15, {L}')
    em.op(f'v_lshlrev_b32 v{vMS}, 2, v{vMS}')
    em.op(f'v_add_u32 v{vMS}, {MAXB}, v{vMS}')
    em.op(f'v_add_u32 v{vRA[0]}, {q0 * 2048}, v{vRA[0]}')
    em.op(f'v_xor_b32 v{vRA[1]}, 64, v{vRA[0]}')
    for t in range(3): tr_addr(em, vRB[t], t, VBASE, 'w')
    for t in range(3):
        em.op(f's_mul_i32 s{sT0}, s{sDG}, 3'); em.op(f's_add_u32 s{sT0}, s{sT0}, {t}'); em.op(f's_lshl_b32 s{sT0}, s{sT0}, 1')
        em.op(f'v_lshrrev_b32 v{t0}, 5, {L}')
        em.op(f'v_add_u32 v{t0}, s{sT0}, v{t0}')
        em.op(f'v_lshrrev_b32 v{t1}, 3, v{t0}'); em.op(f'v_lshlrev_b32 v{t1}, 7, v{t1}')
        em.op(f'v_and_b32 v{t0}, 7, v{t0}')
        em.op(f'v_bfe_u32 v{t2}, {L}, 1, 3')
        em.op(f'v_xor_b32 v{t0}, v{t0}, v{t2}'); em.op(f'v_lshlrev_b32 v{t0}, 4, v{t0}')
        em.op(f'v_add_u32 v{t0}, v{t0}, v{t1}')
        em.op(f'v_and_b32 v{t1}, 15, {L}'); em.op(f'v_mul_u32_u24 v{t1}, 384, v{t1}')
        em.op(f'v_add_u32 v{t0}, v{t0}, v{t1}')
        em.op(f'v_bfe_u32 v{t1}, {L}, 4, 1'); em.op(f'v_lshlrev_b32 v{t1}, 3, v{t1}')
        em.op(f'v_add_u32 v{vRC[t]}, v{t0}, v{t1}')
    em.op(f'v_lshlrev_b32 v{vPA}, 4, {L}')
    em.op(f's_lshl_b32 s{sT0}, s{sW}, 2'); em.op(f's_lshr_b32 s{sT1}, 0x10543210, s{sT0}'); em.op(f's_and_b32 s{sT1}, s{sT1}, 15'); em.op(f's_mul_i32 s{sT1}, s{sT1}, 9216')
    em.op(f'v_add_u32 v{vPW}, s{sT1}, v{vPA}')
    em.op(f'v_add_u32 v{vPA}, {q0 * 1024}, v{vPA}')
    AF = [176, 188]; BF = [200, 220]
    def q_reads(s, step, st):
        ops = []
        for t in range(3):
            ops.append(f'ds_read_b64_tr_b16 {vr(AF[st] + 4*t, 2)}, v{vRB[t]} offset:{(s % 3) * 24576 + step * 12288}')
            ops.append(f'ds_read_b64_tr_b16 {vr(AF[st] + 4*t + 2, 2)}, v{vRB[t]} offset:{(s % 3) * 24576 + step * 12288 + 512}')
        xs = [f'ds_read_b128 {vr(BF[st] + 4*j)}, v{vRA[step]} offset:{(s % 3) * 18432 + j * 2048}' for j in range(nq)]
        return ops[0:2] + xs[0:1] + ops[2:6] + xs[1:]
    def mf(st, first):
        return [mfma(ACC + 4*(j*3+t), AF[st] + 4*t, BF[st] + 4*j, None if first else ACC + 4*(j*3+t)) for j in range(nq) for t in range(3)]
    em.wait_vm_tag('S0', lgkm0=True); em.barrier()
    em.st.stamp('S0')
    em.op(f's_add_u32 s{sTAG}, s{sTAG}, 1')
    for o in q_reads(0, 0, 0): em.op(o)
    em.npre = npre
    nxt = [k_dma_ops(em, 0), k_dma_ops(em, 1), va_ops(em)][npre]
    em.part = npre == 1 and cfg.nu < 6
    if em.part: nxt = k_dma_ops(em, 0)[2 * cfg.nu:] + k_dma_ops(em, 1)[:2 * cfg.nu]
    plan = {15: nxt[0:4], 16: nxt[4:7], 17: nxt[7:10], 18: nxt[10:12]} if qh == 0 else {19: nxt[0:6]}
    late = [] if qh == 0 else nxt[6:12]
    post = []
    if qh == 1 and cfg.qlate: plan = {}; late = []; post = nxt
    cap = Cap()
    for t in range(3): tr_addr(cap, VTMP[t], t, VBASE, 'v')
    vaddr_ops = cap.ops
    inloop_pf = not (typ == 1 and cfg.n0) and not cfg.pfall
    carry = stage_dma_ops(em, 2, qh) + (sum([pf_ops() for i in range(cfg.pfa - 3)], []) if inloop_pf else [])
    if cfg.code_pre and not cfg.cearly: carry.append(f'global_load_dwordx4 {vr(244)}, v{TMP[11]}, s[58:59]')
    for s in range(10):
        extra = []
        extra = plan.get(2 * s, [])
        if cfg.onew and s > 0: em.wait_lgkm0()
        interleave(em, mf(0, s == 0), ([] if cfg.x_qnord and 3 < s <= 6 else q_reads(s, 1, 1), 0, rf), (extra, 0.1, 1), (carry, 0.05, cfg.dhi / 100))
        if s < 9: em.wait_vm_tag(f'S{s+1}', lgkm0=True)
        else: em.wait_lgkm0()
        em.barrier()
        if s in cfg.qst: em.st.stamp(f'B{s}')
        if cfg.qloop and s == 6:
            em.op('s_sub_u32 s87, s87, 1'); em.op('s_cmp_lg_u32 s87, 0'); em.op(f's_cbranch_scc1 L_ql{qh}{typ}')
            em.st.stamp('LBend')
        if cfg.qloop and s == 3:
            em.st.stamp('LB0')
            em.op('s_mov_b32 s87, 16'); em.label(f'L_ql{qh}{typ}')
        rd = []; dm = []; extra = []
        if s < 9:
            if not (cfg.x_qnord and 3 <= s < 6): rd += q_reads(s + 1, 0, 0)
        carry = []
        if s + 3 <= 9:
            dm = stage_dma_ops(em, s + 3, qh); ds_ = cfg.dsplit if not cfg.drole else (6 if qh == cfg.drole - 1 else 0)
            dm, carry = dm[:ds_], dm[ds_:]
            if cfg.x_qnodma and 3 <= s < 6: dm = []; carry = []
        if s == 7: extra = vaddr_ops
        first = (pf_ops() + (pf2_ops() if s + cfg.pfa >= cfg.pf1 and cfg.n0 else []) if inloop_pf and s + cfg.pfa <= 9 and not (cfg.qloop and s >= 3) else []) + plan.get(2 * s + 1, [])
        qw = []
        if s == 9:
            for j in range(nq):
                for t in range(3):
                    a = ACC + 4*(j*3+t)
                    qw.append([f'v_cvt_pk_bf16_f32 v{a}, v{a}, v{a+1}', f'v_cvt_pk_bf16_f32 v{a+1}, v{a+2}, v{a+3}', f'ds_write_b64 v{vRC[t]}, {vr(a,2)} offset:{(q0 + j) * 6144}'])
        n = 3 * nq; lag = 3 if cfg.qwi else n
        ins = [(qw[k], (k + lag + 0.5) / n, (k + lag + 0.5) / n) for k in range(n - lag)] if qw else []
        interleave(em, mf(1, False), (dm, cfg.dlo / 100, cfg.dhi / 100), (rd, 0, rf), (extra, 0, 1), (first, 0, 0.04 if dm else 0.9), *ins)
    for g in qw[max(0, n - lag):]:
        for o in g: em.op(o)
    for f in late: f()
    em.op(f'v_and_b32 v{t1}, 15, {L}'); em.op(f'v_mul_u32_u24 v{t1}, 384, v{t1}')
    em.op(f'v_add_u32 v{vRA[0]}, v{t1}, v{vT}')
    em.op(f'v_xor_b32 v{t0}, 64, v{vT}')
    em.op(f'v_add_u32 v{vRA[1]}, v{t1}, v{t0}')
    for t in range(3): em.op(f'v_mov_b32 v{vRB[t]}, v{VTMP[t]}')
    em.wait_lgkm0(); em.barrier()
    for f in post: f()
    for t in range(3): em.op(f'v_add_u32 v{vRC[t]}, 49152, v{vRB[t]}')
    em.op(f's_lshl_b32 s{sT0}, s{sW}, 2'); em.op(f's_lshr_b32 s{sT1}, 0x32105432, s{sT0}'); em.op(f's_and_b32 s{sT1}, s{sT1}, 15'); em.op(f's_mul_i32 s{sT1}, s{sT1}, 9216')
    em.op(f'v_lshlrev_b32 v{vPW2}, 4, {L}')
    em.op(f'v_add_u32 v{vPW2}, s{sT1}, v{vPW2}')
    em.st.stamp('BQ')

def maxops(half):
    ops = []
    for qt in range(9):
        a, b = sreg(half*2, qt), sreg(half*2+1, qt); m = MC + qt
        if half == 0:
            ops += [f'v_max3_f32 v{m}, v{a}, v{a+1}, v{a+2}', f'v_max3_f32 v{m}, v{m}, v{a+3}, v{b}',
                    f'v_max3_f32 v{m}, v{m}, v{b+1}, v{b+2}', f'v_max_f32 v{m}, v{m}, v{b+3}']
        else:
            ops += [f'v_max3_f32 v{m}, v{m}, v{a}, v{a+1}', f'v_max3_f32 v{m}, v{m}, v{a+2}, v{a+3}',
                    f'v_max3_f32 v{m}, v{m}, v{b}, v{b+1}', f'v_max3_f32 v{m}, v{m}, v{b+2}, v{b+3}']
    return ops

def k1_qk(em, qh):
    def qrd(n):
        qt, ks = divmod(n, 6)
        return f'ds_read_b128 {vr(QF + 4*(n % 4))}, v{vRA[ks & 1]} offset:{qt * 6144 + (ks >> 1) * 128}'
    npre = em.npre
    pend = []
    if em.part: k_fetch(em, 0, k_dma_ops(em, 1), cfg.nu, 6)
    if npre == 1 and cfg.g2e:
        k_fetch(em, 1, None); em.wait_lgkm0()
        pend = va_ops(em)
        if qh == 1:
            for f in pend: f()
            pend = []
        npre = 2
    for half in range(2):
        fill = pend; pend = []
        if half >= npre:
            fill = k_dma_ops(em, 1) if half == 0 else va_ops(em)
            if half == 0 and cfg.eager >> qh & 1:
                k_fetch(em, half, fill); fill = []
            else:
                k_fetch(em, half, None)
                em.wait_lgkm0()
                if half == 1 and cfg.eagerv >> qh & 1:
                    for f in fill: f()
                    fill = []
        for n in range(3): em.op(qrd(n))
        em.st.stamp(f'K{half}')
        main = []
        for n in range(54):
            qt, ks = divmod(n, 6)
            if n + 3 < 54: main.append(qrd(n + 3))
            for k in range(2):
                kt = half * 2 + k
                main.append(mfma(sreg(kt, qt), kop(kt, ks), QF + 4*(n % 4), None if ks == 0 else sreg(kt, qt)))
        m1 = maxops(1)
        if half == 0:
            streams = [(fill, cfg.g2lo / 100, cfg.g2hi / 100)]
        else:
            streams = [(maxops(0), 0.02, 0.5)]
            for qt in range(8): streams.append((m1[qt*4:qt*4+4], max(0.5 + 0.05*qt, (qt + 1.5) / 9), max(0.55 + 0.05*qt, (qt + 1.9) / 9)))
            streams.append((fill, cfg.valo / 100, cfg.vahi / 100))
        interleave(em, main, *streams)
    em.st.stamp('QKend')
    for o in maxops(1)[32:]: em.op(o)
    for qt in range(9): em.op(f'ds_max_f32 v{vMS}, v{MC+qt} offset:{qt*64}')
    if qh == 0 and cfg.tsq:
        for o in tail_setup_ops(0): emit(em, o)
    if qh == 0 and cfg.vpq:
        a, b = v_pf_ops(em), v_pf_ops(em, 24576)
        both = [x for p in zip(a, b) for x in p][:2 * cfg.vpq]
        for i, f in enumerate(both):
            f()
            if i >= cfg.vpq_in: em.waitcnt(vm=cfg.vpq_in)
    em.wait_lgkm0(); em.barrier()
    em.st.stamp('BM')

def expops(r, qt, pk):
    a, b = sreg(2*r, qt), sreg(2*r+1, qt); m = MC + qt
    tA, tB = TMP[0], TMP[2]
    sp = SUMP + 2*qt
    rs = [a, a+1, a+2, a+3, b, b+1, b+2, b+3]
    if pk:
        mb = m & ~1; s = m & 1
        ops = [f'v_pk_fma_f32 {vr(x,2)}, {vr(x,2)}, s[{sC}:{sC+1}], {vr(mb,2)} op_sel:[0,0,{s}] op_sel_hi:[1,0,{s}] neg_lo:[0,0,1] neg_hi:[0,0,1]' for x in rs[::2]]
    else:
        ops = [f'v_fma_f32 v{x}, v{x}, s{sC}, -v{m}' for x in rs]
    ops += [f'v_exp_f32 v{x}, v{x}' for x in rs]
    if pk:
        ops += [f'v_pk_add_f32 {vr(tA,2)}, {vr(a,2)}, {vr(a+2,2)}', f'v_pk_add_f32 {vr(tB,2)}, {vr(b,2)}, {vr(b+2,2)}']
        if r == 0: tailo = [f'v_pk_add_f32 {vr(sp,2)}, {vr(tA,2)}, {vr(tB,2)}']
        else: tailo = [f'v_pk_add_f32 {vr(tA,2)}, {vr(tA,2)}, {vr(tB,2)}', f'v_pk_add_f32 {vr(sp,2)}, {vr(sp,2)}, {vr(tA,2)}']
    else:
        assert r == 1
        ops += [f'v_add_f32 v{sp + (i & 1)}, v{sp + (i & 1)}, v{x}' for i, x in enumerate(rs)]
        tailo = []
    ops += [f'v_cvt_pk_bf16_f32 v{a}, v{a}, v{a+1}', f'v_cvt_pk_bf16_f32 v{a+1}, v{a+2}, v{a+3}',
            f'v_cvt_pk_bf16_f32 v{a+2}, v{b}, v{b+1}', f'v_cvt_pk_bf16_f32 v{a+3}, v{b+2}, v{b+3}']
    return ops + tailo

def pwrite(r, qt, qh):
    return f'ds_write_b128 v{vPW if r == 0 else vPW2}, {vr(sreg(2*r, qt))} offset:{qt*1024}'

def sum_ops():
    L = f'v{vLANE}'
    S = SUM; ops = []
    ops += [f'v_add_f32 v{SUM+qt}, v{SUMP+2*qt}, v{SUMP+2*qt+1}' for qt in range(9)]
    ops += [f'v_mov_b32 v{MC}, 0', f'v_mov_b32 v{MC+1}, 0']
    ta = TMP[2]; tb = TMP[3]
    ops += [f'v_bfe_u32 v{ta}, {L}, 4, 1', f'v_lshlrev_b32 v{ta}, 10, v{ta}', f'v_bfe_u32 v{tb}, {L}, 5, 1', f'v_lshlrev_b32 v{tb}, 9, v{tb}',
            f'v_add_u32 v{ta}, v{ta}, v{tb}', f'v_and_b32 v{tb}, 15, {L}', f'v_lshlrev_b32 v{tb}, 5, v{tb}', f'v_add_u32 v{ta}, v{ta}, v{tb}',
            f's_lshl_b32 s{sT0}, s{sW}, 2', f's_add_u32 s{sT0}, s{sT0}, {SUMB}', f'v_add_u32 v{ta}, s{sT0}, v{ta}']
    for a in (0, 2, 4, 6): ops.append(f'v_permlane32_swap_b32 v{S+a}, v{S+a+1}')
    ops.append(f'v_permlane32_swap_b32 v{S+8}, v{MC}')
    for a in (0, 2, 4, 6): ops.append(f'v_add_f32 v{S+a}, v{S+a}, v{S+a+1}')
    ops.append(f'v_add_f32 v{S+8}, v{S+8}, v{MC}')
    for a in (0, 4): ops.append(f'v_permlane16_swap_b32 v{S+a}, v{S+a+2}')
    ops.append(f'v_permlane16_swap_b32 v{S+8}, v{MC+1}')
    for a in (0, 4): ops.append(f'v_add_f32 v{S+a}, v{S+a}, v{S+a+2}')
    ops.append(f'v_add_f32 v{S+8}, v{S+8}, v{MC+1}')
    for a in (0, 4, 8): ops.append(f'ds_write_b32 v{ta}, v{S+a} offset:{a * 512}')
    return ops

def k1_sm0(em, qh):
    n_in = cfg.in0 if qh == 0 else cfg.in1
    for qt in range(9): em.op(f'ds_read_b32 v{MC+qt}, v{vMS} offset:{qt*64}')
    for qt in range(9): em.op(f'v_mul_f32 v{MC+qt}, s{sC}, v{MC+qt}')
    main = []
    for qt in range(9):
        main += expops(0, qt, True)
        if qh == 0: main.append(pwrite(0, qt, qh))
    for qt in range(n_in, 9): main += expops(1, qt, True)
    interleave(em, main, (v_pf_ops(em)[cfg.vpq:cfg.vpq + cfg.vpf], 0.05, cfg.vrf / 100))
    em.st.stamp('exp0')
    if qh == 0: em.wait_vm_tag('VA', lgkm0=True)
    else: em.wait_lgkm0()
    em.barrier()
    em.st.stamp('PV0')

def k1_pv(em, qh):
    nq = 5 if qh == 0 else 4
    q0 = 0 if qh == 0 else 5
    L = f'v{vLANE}'
    rf = cfg.rfrac / 100
    PBF = PBF0 if qh == 0 else PBF1
    INV = INV0
    PAF = PAF0 if qh == 0 else PAF1
    def pv_reads(s, step, st):
        ops = []
        slot = vslot(s)
        base = vRB if slot < 2 else vRC
        off = (slot % 2) * 24576 + step * 12288
        for t in range(3):
            ops.append(f'ds_read_b64_tr_b16 {vr(PAF[st][t], 2)}, v{base[t]} offset:{off}')
            ops.append(f'ds_read_b64_tr_b16 {vr(PAF[st][t] + 2, 2)}, v{base[t]} offset:{off + 6144}')
        pa, po = vPA, ((2 * s + step) % 6) * 9216
        xs = [f'ds_read_b128 {vr(PBF[st][j])}, v{pa} offset:{po + j * 1024}' for j in range(nq)]
        return ops[0:2] + xs[0:1] + ops[2:6] + xs[1:]
    OACC = OACC0 if qh == 0 else OACC1
    def mf(st, first):
        return [mfma(OACC[j*3+t], PAF[st][t], PBF[st][j], None if first else OACC[j*3+t]) for j in range(nq) for t in range(3)]
    def inv_ops():
        ta = TMP[2]; ops = []
        ops += [f'v_and_b32 v{ta}, 15, {L}', f'v_lshlrev_b32 v{ta}, 5, v{ta}', f'v_add_u32 v{ta}, {SUMB + q0 * 512}, v{ta}']
        for j in range(nq):
            ops += [f'ds_read_b128 {vr(16 + 8*j)}, v{ta} offset:{j * 512}', f'ds_read_b128 {vr(20 + 8*j)}, v{ta} offset:{j * 512 + 16}']
        for j in range(nq):
            r = 16 + 8*j
            ops += [f'v_add_f32 v{r}, v{r}, v{r+1}', f'v_add_f32 v{r+2}, v{r+2}, v{r+3}', f'v_add_f32 v{r+4}, v{r+4}, v{r+5}', f'v_add_f32 v{r+6}, v{r+6}, v{r+7}',
                    f'v_add_f32 v{r}, v{r}, v{r+2}', f'v_add_f32 v{r+4}, v{r+4}, v{r+6}', f'v_add_f32 v{r}, v{r}, v{r+4}', f'v_rcp_f32 v{INV+2*j}, v{r}']
        return ops
    n_in = cfg.in0 if qh == 0 else cfg.in1
    assert n_in <= 3
    hs = [0, 3, 4] if qh == 0 else [7, 8, 4]
    INVO = inv_ops()
    TS = [] if (qh == 0 and cfg.tsq) else tail_setup_ops(qh)
    def ex(h):
        o = []
        if h in hs[:n_in] or (n_in == 2 and qh == 0 and False): o += expops(1, hs.index(h), False)
        if qh == 0 and h in (5, 6): o += [pwrite(1, qt, qh) for qt in (range(4, 9) if h == 5 else range(4))]
        if qh == 1 and h in (1, 2): o += [pwrite(0, qt, qh) for qt in (range(5) if h == 1 else range(5, 9))]
        if qh == 1 and h in (9, 10): o += [pwrite(1, qt, qh) for qt in (range(4, 9) if h == 9 else range(4))]
        if h == (7 if qh == 0 else 11): o += sum_ops()
        if h == 13: o += INVO[:len(INVO) // 2]
        if h == 14: o += INVO[len(INVO) // 2:]
        if TS and h == 3 and qh == 1: o += TS
        if TS and h in (11, 12) and qh == 0: o += TS[:len(TS)//2] if h == 11 else TS[len(TS)//2:]
        return o
    def wopre_ops(i):
        ta = TMP[2 + (i & 1)]
        ops = [f's_mul_i32 s{sT3}, s{sX}, 983040', f's_mul_i32 s{sT4}, s{sLOC}, 30720', f's_add_u32 s{sT3}, s{sT3}, s{sT4}', f's_add_u32 s{sT3}, s{sT3}, {i * 8192}',
               f'v_lshlrev_b32 v{ta}, 4, v0', f'v_add_u32 v{ta}, s{sT3}, v{ta}', f'v_min_u32 v{ta}, {7864320 - 16}, v{ta}',
               f'global_load_dwordx4 {vr(52)}, v{ta}, s[14:15]']
        if cfg.wo0:
            def f():
                _lab[0] += 1
                em.op(f's_cmp_eq_u32 s{sTYPE}, 0')
                em.op(f's_cbranch_scc0 L_wp{_lab[0]}')
                em.begin_opt()
                for o in ops[:-2] + [ops[-1], f'v_add_u32 v{ta}, 122880, v{ta}'] + ops[-2:]: em.op(o)
                em.end_opt()
                em.label(f'L_wp{_lab[0]}')
            return [f]
        return ops
    wsl = {8: 0, 9: 1, 10: 2, 12: 3}
    def epi(pk):
        out = []
        def mul(a, m):
            if pk: return [f'v_pk_mul_f32 {vr(a,2)}, {vr(a,2)}, {vr(m,2)} op_sel_hi:[1,0]', f'v_pk_mul_f32 {vr(a+2,2)}, {vr(a+2,2)}, {vr(m,2)} op_sel_hi:[1,0]']
            return [f'v_mul_f32 v{a+d}, v{a+d}, v{m}' for d in range(4)]
        for j in range(nq):
            m = INV + 2 * j
            a, b, c = OACC[j*3], OACC[j*3+1], OACC[j*3+2]
            if cfg.opair:
                out.append((j*3+1, mul(a, m) + mul(b, m) + [f'v_cvt_pk_bf16_f32 v{a}, v{a}, v{a+1}', f'v_cvt_pk_bf16_f32 v{a+1}, v{a+2}, v{a+3}',
                            f'v_cvt_pk_bf16_f32 v{a+2}, v{b}, v{b+1}', f'v_cvt_pk_bf16_f32 v{a+3}, v{b+2}, v{b+3}', f'ds_write_b128 v{vOW[0]}, {vr(a)} offset:{j * 1024}']
                            + ([f's_mov_b32 s{sT0}, {j * 1024}', (f'buffer_store_dwordx4 {vr(a)}, v{vOW[1]}, {sr(SO,4)}, s{sT0} offen sc1', 'CO0')] if cfg.direct else [])))
            for t in ((2,) if cfg.opair else (0, 1, 2)):
                x = OACC[j*3+t]
                out.append((j*3+t, mul(x, m) + [f'v_cvt_pk_bf16_f32 v{x}, v{x}, v{x+1}', f'v_cvt_pk_bf16_f32 v{x+1}, v{x+2}, v{x+3}', f'ds_write_b64 v{vOW[t]}, {vr(x,2)} offset:{j * 1024}']))
        return out
    for o in pv_reads(0, 0, 0): em.op(o)
    n = 3 * nq; lag = 4 if cfg.qwi else n
    for s in range(8):
        w = wopre_ops(wsl[2*s]) if cfg.wopre and 2*s in wsl else []
        if cfg.onew and s > 0: em.wait_lgkm0()
        interleave(em, mf(0, s == 0), (pv_reads(s, 1, 1), 0, rf), (ex(2*s), 0, cfg.efrac / 100), (w, 0.4, 0.41))
        if s == 1: em.wait_vm_tag('VA', lgkm0=True)
        elif s < 7: em.wait_vm_tag(f'V{s+1}', lgkm0=True)
        else: em.wait_lgkm0()
        em.barrier()
        em.st.stamp(f'PB{s}')
        rd = pv_reads(s + 1, 0, 0) if s < 7 else []
        dm = v_dma_ops(em, s + NV) if s + NV <= 7 else []
        if s == 7 and qh == 0: dm = tail_dma(em, 0) + tail_dma(em, 1)
        w = wopre_ops(wsl[2*s+1]) if cfg.wopre and 2*s+1 in wsl else []
        ins = []
        if s == 7:
            ins = [(g, (p + lag + 0.5) / n, (p + lag + 0.5) / n) for p, g in epi(False) if p + lag < n]
        interleave(em, mf(1, False), (dm, 0, 0.4 if s < 7 else 1), (rd, 0, rf + 0.1), (ex(2*s+1), 0, 1), (w, 0.4, 0.41), *ins)
    late = tail_dma(em, 2) if qh == 0 else []
    main = sum([g for p, g in epi(True) if p + lag >= n], [])
    interleave(em, main, (late, 0, 1))
    em.wait_vm_tag('T0', lgkm0=True); em.barrier()
    em.st.stamp('BO')
    em.op(f's_bitcmp1_b32 s{sW}, 1')
    em.op(f's_cbranch_scc1 L_tail{2 * qh + 1}')
    st = em.save()
    tail(em, 2 * qh)
    em.label(f'L_tail{2 * qh + 1}')
    em.restore(st)
    tail(em, 2 * qh + 1)

vOFFS = [2, 3, 4, 5, 7]; vA2 = [248, 249, 250]; vB2 = 251
SD, SP, SPR, SOUT = SX, SWQ, SK, 84
sT3, sT4 = 56, 59
sCH = 36 + 1
sCH = 81
sN0 = sNH
def tail_setup_ops(qh):
    c = Cap(); L = f'v{vLANE}'
    t0, t1, t2, t3 = 252, 253, 244, 245
    if qh == 0:
        c.op(f's_mul_i32 s{sT0}, s{sX}, 983040'); c.op(f's_mul_i32 s{sT1}, s{sJ}, 320'); c.op(f's_add_u32 s{sT0}, s{sT0}, s{sT1}')
        srd(c, SD, 14, 15, f's{sT0}', 7864320)
        c.op(f's_sub_u32 s{SD+2}, s{SD+2}, s{sT0}')
        c.op(f's_mov_b32 s{sSTR}, 81920')
        hs = 245760
        c.op(f's_lshl_b32 s{sT2}, s{sW}, 4')
        c.op(f's_mov_b32 s{sT1}, 52429')
        for j in range(5):
            c.op(f'v_add_u32 v{t0}, {j * 64}, {L}')
            c.op(f'v_mul_lo_u32 v{t1}, v{t0}, s{sT1}')
            c.op(f'v_lshrrev_b32 v{t1}, 20, v{t1}')
            c.op(f'v_mul_u32_u24 v{t2}, 20, v{t1}')
            c.op(f'v_sub_u32 v{t2}, v{t0}, v{t2}')
            c.op(f'v_bfe_u32 v{t3}, v{t1}, 2, 1')
            c.op(f'v_lshlrev_b32 v{t3}, 1, v{t3}')
            c.op(f'v_xor_b32 v{t2}, v{t2}, v{t3}')
            c.op(f'v_add_u32 v{t1}, s{sT2}, v{t1}')
            c.op(f'v_mul_u32_u24 v{t1}, 1280, v{t1}')
            c.op(f'v_lshl_add_u32 v{vOFFS[j]}, v{t2}, 4, v{t1}')
        c.op(f's_and_b32 s{sN0}, s{sW}, 1'); c.op(f's_mul_i32 s{sN0}, s{sN0}, 3')
        c.op(f's_bfe_u32 s{sQ0}, s{sW}, 0x10001'); c.op(f's_mul_i32 s{sQ0}, s{sQ0}, 5')
    else:
        c.op(f's_lshl_b32 s{sT0}, s{sB}, 5'); c.op(f's_lshl_b32 s{sT1}, s{sX}, 2'); c.op(f's_add_u32 s{sT0}, s{sT0}, s{sT1}')
        c.op(f's_mul_i32 s{sT0}, s{sT0}, {O_HEAD}')
        srd(c, SD, 12, 13, f's{sT0}', 4 * O_HEAD)
        c.op(f's_mov_b32 s{sSTR}, 18432')
        hs = O_HEAD
        c.op(f's_mul_i32 s{sT2}, s{sDG}, 5120')
        if cfg.nopad:
            c.op(f's_cmp_eq_u32 s{sDG}, 3'); c.op(f's_cselect_b32 s{sT2}, 14336, s{sT2}')
        c.op(f'v_lshlrev_b32 v{t0}, 4, {L}')
        c.op(f'v_add_u32 v{t0}, s{sT2}, v{t0}')
        for j in range(5): c.op(f'v_add_u32 v{vOFFS[j]}, {j * 1024}, v{t0}')
        c.op(f's_and_b32 s{sN0}, s{sW}, 1'); c.op(f's_lshl_b32 s{sN0}, s{sN0}, 1'); c.op(f's_add_u32 s{sN0}, s{sN0}, 6')
        c.op(f's_bfe_u32 s{sQ0}, s{sW}, 0x10001'); c.op(f's_xor_b32 s{sQ0}, s{sQ0}, 1'); c.op(f's_mul_i32 s{sQ0}, s{sQ0}, 5')
    if cfg.direct:
        if qh == 0:
            c.op(f's_lshr_b32 s{sT0}, s{sW}, 1'); c.op(f's_mul_i32 s{sT0}, s{sT0}, 40960')
            c.op(f's_mov_b32 s{sCH}, s{sT0}'); c.op(f's_add_u32 s{sCH+1}, s{sT0}, {96 * 1280}')
            c.op(f's_lshl_b32 s{sT0}, s{sT0}, 1'); c.op(f's_add_u32 s{sCH+2}, s{sT0}, {32 * 1280}')
        else:
            for i in range(3): c.op(f's_mov_b32 s{sCH+i}, {i * 18432}')
    c.op(f's_mul_i32 s{sM0T}, s{sDG}, 5120')
    if qh: c.op(f's_add_u32 s{sM0T}, s{sT2 if cfg.nopad else sM0T}, 61440')
    for i in range(4):
        c.op(f's_add_u32 s{sT0}, s{sJ}, {i}'); c.op(f's_and_b32 s{sT0}, s{sT0}, 3'); c.op(f's_mul_i32 s{sHB+i}, s{sT0}, {hs}')
    c.op(f'v_lshrrev_b32 v{t0}, 2, {L}')
    c.op(f'v_mul_u32_u24 v{t0}, 320, v{t0}')
    c.op(f'v_and_b32 v{t1}, 3, {L}')
    c.op(f'v_lshl_add_u32 v{t0}, v{t1}, 3, v{t0}')
    c.op(f'v_bfe_u32 v{t1}, {L}, 4, 1')
    for t in range(3 if qh == 0 else 2):
        c.op(f's_add_u32 s{sT1}, s{sN0}, {t}')
        c.op(f'v_xor_b32 v{t2}, s{sT1}, v{t1}')
        c.op(f'v_lshl_add_u32 v{vA2[t]}, v{t2}, 5, v{t0}')
    c.op(f's_lshl_b32 s{sT0}, s{sQ0}, 10')
    c.op(f's_add_u32 s{sT0}, s{sT0}, 61440')
    c.op(f'v_lshl_add_u32 v{vB2}, {L}, 4, s{sT0}')
    for t in range(3):
        if cfg.opair:
            if t == 1: continue
            tile_m(c, t)
        else:
            c.op(f's_mul_i32 s{sT0}, s{sDG}, 3'); c.op(f's_add_u32 s{sT0}, s{sT0}, {t}')
        if cfg.direct:
            c.op(f's_lshl_b32 s{sT1}, s{sT0}, 1'); c.op(f's_and_b32 s{sT1}, s{sT1}, 0x1c'); c.op(f's_lshr_b32 s{sT1}, 0x352140, s{sT1}'); c.op(f's_and_b32 s{sT1}, s{sT1}, 15')
            if t == 0:
                c.op(f's_mul_i32 s{sT2}, s{sT1}, 9216')
                c.op(f'v_add_u32 v{vOW[1]}, s{sT2}, v{vPA}')
            c.op(f's_and_b32 s{sT0}, s{sT0}, 1'); c.op(f's_lshl_b32 s{sT1}, s{sT1}, 1'); c.op(f's_add_u32 s{sT0}, s{sT0}, s{sT1}')
        c.op(f's_lshr_b32 s{sT1}, s{sT0}, 2'); c.op(f's_mul_i32 s{sT1}, s{sT1}, 20480')
        c.op(f's_bfe_u32 s{sT2}, s{sT0}, 0x10001'); c.op(f's_mul_i32 s{sT2}, s{sT2}, 9216'); c.op(f's_add_u32 s{sT1}, s{sT1}, s{sT2}')
        c.op(f's_and_b32 s{sT0}, s{sT0}, 1'); c.op(f's_lshl_b32 s{sT0}, s{sT0}, 3')
        c.op(f's_add_u32 s{sT0}, s{sT0}, s{sT1}'); c.op(f's_add_u32 s{sT0}, s{sT0}, 61440')
        c.op(f'v_add_u32 v{vOW[t]}, s{sT0}, v{vPA}')
    c.op(f's_lshl_b32 s{sT0}, s{sB}, 3'); c.op(f's_add_u32 s{sT0}, s{sT0}, s{sX}'); c.op(f's_lshl_b32 s{sT0}, s{sT0}, 7'); c.op(f's_add_u32 s{sT0}, s{sT0}, {FLAG_OFF + 4096}')
    c.op(f's_add_u32 s{sF1}, s12, s{sT0}'); c.op(f's_addc_u32 s{sF1+1}, s13, 0')
    c.op(f's_lshl_b32 s{sT0}, s{sLOC}, 7'); c.op(f's_add_u32 s{sT0}, s{sT0}, {FLAG_OFF + 16384}')
    c.op(f's_add_u32 s{sF2}, s12, s{sT0}'); c.op(f's_addc_u32 s{sF2+1}, s13, 0')
    c.op(f's_mul_i32 s{sT0}, s{sLOC}, {8 * PART2}'); c.op(f's_add_u32 s{sT0}, s{sT0}, {WS_PART}')
    srd(c, SPR, 12, 13, f's{sT0}', 8 * PART2)
    c.op(f's_mul_i32 s{sT1}, s{sX}, {PART2}'); c.op(f's_add_u32 s{sT0}, s{sT0}, s{sT1}')
    srd(c, SP, 12, 13, f's{sT0}', PART2)
    srd(c, SOUT, 54, 55, None, 1474560)
    out = []; i = 0; ops = c.ops
    while i < len(ops):
        if i + 1 < len(ops) and (ops[i + 1].startswith('s_addc') or ops[i + 1].startswith('s_cselect')):
            a, b = ops[i], ops[i + 1]
            out.append(lambda a=a, b=b: (EM[0].op(a), EM[0].op(b))); i += 2
        else:
            out.append(ops[i]); i += 1
    return out
EM = [None]

def tail_dma(em, s, orole=False):
    ops = []
    sc = ' sc1' if (orole and cfg.sc_ol) else ''
    for j in range(4 if (cfg.nopad and orole and em.tv == 3) else 5):
        def f(j=j):
            em.op(f's_add_u32 m0, s{sM0T}, {(s % 3) * 20480 + j * 1024}')
            if j == 0:
                if cfg.direct:
                    peer, ch = (0, s) if s < 3 else (1 + (s - 3) % 3, (s - 3) // 3)
                    em.op(f's_add_u32 s{sOFF}, s{sCH + ch}, s{sHB + peer}')
                elif cfg.chunk and s >= 3:
                    ch = (s - 3) // 3
                    if ch == 0: em.op(f's_mov_b32 s{sOFF}, s{sHB + 1 + (s - 3) % 3}')
                    else:
                        em.op(f's_lshl_b32 s{sOFF}, s{sSTR}, {ch - 1}')
                        em.op(f's_add_u32 s{sOFF}, s{sOFF}, s{sHB + 1 + (s - 3) % 3}')
                elif s % 3 == 0: em.op(f's_mov_b32 s{sOFF}, s{sHB + s // 3}')
                else: em.op(f's_add_u32 s{sOFF}, s{sOFF}, s{sSTR}')
            em.op(f'buffer_load_dwordx4 v{vOFFS[j]}, {sr(SD,4)}, s{sOFF} offen{sc} lds', tag=f'T{s}')
        ops.append(f)
    return ops

def flag_store(em, base, idx_s, lab, wave, off=0):
    t0, t1 = 60, 61
    em.op(f's_cmp_eq_u32 s{sW}, {wave}')
    em.op(f's_cbranch_scc0 {lab}')
    em.begin_opt()
    em.op(f's_lshl_b32 s{sT0}, s{idx_s}, 2')
    em.op(f'v_mov_b32 v{t0}, s{sT0}')
    em.op(f'v_mov_b32 v{t1}, s{sTAG}')
    em.op('s_mov_b64 exec, 1')
    em.op(f'global_store_dword v{t0}, v{t1}, s[{base}:{base+1}] offset:{off} sc1')
    em.op('s_mov_b64 exec, -1')
    em.end_opt()
    em.label(lab)

vPL0, vPL1 = 62, 63
def poll(em, base, mask, lab, off=0, keep=False):
    em.op(f'v_and_b32 v{vPL0}, {mask}, v{vLANE}')
    em.op(f'v_lshlrev_b32 v{vPL0}, 2, v{vPL0}')
    em.op(f's_mov_b32 s{sCNT}, 0x20000')
    if not keep: em.wait_vm0()
    em.label(lab)
    em.op(f'global_load_dword v{vPL1}, v{vPL0}, s[{base}:{base+1}] offset:{off} sc1')
    em.op(f's_sub_u32 s{sCNT}, s{sCNT}, 1')
    em.op(f's_cbranch_scc1 {lab}_done')
    em.wait_vm0()
    em.op(f'v_cmp_ne_u32 vcc, s{sTAG}, v{vPL1}')
    em.op('s_nop 4')
    em.op(f's_cbranch_vccz {lab}_done')
    em.op('s_sleep 1')
    em.op(f's_branch {lab}')
    em.label(f'{lab}_done')
    em.wait_vm0()

def tail(em, tv):
    nt, nq = [(3, 5), (3, 4), (2, 4), (2, 5)][tv]
    orole = tv >= 2
    em.tv = tv
    L = f'v{vLANE}'
    rf = cfg.rfrac / 100
    sc = ' sc1' if cfg.sc else ''
    ACC2 = 116; AF = [76, 88]; BF = [16, 36]; CO = 176
    t0, t1, t2, t3 = 56, 57, 58, 59
    sDONE = sT3
    em.op(f'v_lshlrev_b32 v{t0}, 4, v0')
    em.op(f'v_add_u32 v{t1}, 61440, v{t0}')
    npc = 3 if tv == 0 else 2
    k = 0; sts = []
    for c in ((2,) if cfg.direct else range(3)):
        for i in range(npc):
            em.op(f'ds_read_b128 {vr(CO + 4*k)}, v{t1} offset:{c * 20480 + i * 8192}')
            sts.append((CO + 4*k, c * 18432 + i * 8192)); k += 1
    def reads(s, step, st_):
        ops = []
        for t in range(nt):
            ops.append(f'ds_read_b64_tr_b16 {vr(AF[st_] + 4*t, 2)}, v{vA2[t]} offset:{(s % 3) * 20480 + step * 10240}')
            ops.append(f'ds_read_b64_tr_b16 {vr(AF[st_] + 4*t + 2, 2)}, v{vA2[t]} offset:{(s % 3) * 20480 + step * 10240 + 5120}')
        xs = [f'ds_read_b128 {vr(BF[st_] + 4*j)}, v{vB2} offset:{(s % 3) * 20480 + step * 9216 + j * 1024}' for j in range(nq)]
        return ops[0:2] + xs[0:1] + ops[2:] + xs[1:]
    def acc(t, j): return ACC2 + 4 * (j * nt + t)
    def mf(st_, first):
        return [mfma(acc(t, j), AF[st_] + 4*t, BF[st_] + 4*j, None if first else acc(t, j)) for j in range(nq) for t in range(nt)]
    for r, off in sts:
        em.op(f's_mov_b32 s{sT0}, {off}')
        em.op(f'buffer_store_dwordx4 {vr(r)}, v{t0}, {sr(SO,4)}, s{sT0} offen' + ['', ' sc1', ' nt', ' sc0'][cfg.sc_o], tag='CO0' if off < 18432 else 'CO1')
    for o in reads(0, 0, 0): em.op(o)
    em.op(f'v_lshlrev_b32 v{t1}, 4, {L}')
    em.op(f's_and_b32 s{sT1}, s{sW}, 1')
    em.op(f's_add_u32 s{sT2}, s{sT1}, {2 if orole else 0}'); em.op(f's_mul_i32 s{sT2}, s{sT2}, 9'); em.op(f's_add_u32 s{sT2}, s{sT2}, s{sQ0}'); em.op(f's_lshl_b32 s{sT2}, s{sT2}, 10')
    em.op(f'v_add_u32 v{t2}, s{sT2}, v{t1}')
    em.op(f's_mul_i32 s{sT1}, s{sT1}, 5120'); em.op(f's_add_u32 s{sT1}, s{sT1}, {(36 + (3 if tv == 1 else 0)) * 1024}')
    em.op(f'v_add_u32 v{t3}, s{sT1}, v{t1}')
    def pack(a, b):
        o = [f'v_cvt_pk_bf16_f32 v{a}, v{a}, v{a+1}', f'v_cvt_pk_bf16_f32 v{a+1}, v{a+2}, v{a+3}']
        if b is not None: o += [f'v_cvt_pk_bf16_f32 v{a+2}, v{b}, v{b+1}', f'v_cvt_pk_bf16_f32 v{a+3}, v{b+2}, v{b+3}']
        return o
    def st(a, va, off):
        def f():
            em.op(f's_mov_b32 s{sT0}, {off}')
            em.op(f'buffer_store_dwordx4 {vr(a)}, v{va}, {sr(SP,4)}, s{sT0} offen{sc}')
        return f
    carry = []
    for s in range(12):
        if s == 1 and orole and cfg.epoll:
            em.op(f'global_load_dword v{vPL1}, v{vPL0}, s[{sF1}:{sF1+1}] sc1')
        if cfg.onew and s > 0: em.wait_lgkm0()
        interleave(em, mf(0, s == 0), (reads(s, 1, 1), 0, rf), (carry, 0.05, 0.95))
        if s == 1 and orole and cfg.epoll:
            em.op(f'v_cmp_ne_u32 vcc, s{sTAG}, v{vPL1}')
            em.op('s_nop 4')
            em.op(f's_cbranch_vccnz L_np{tv}')
            em.begin_opt()
            for f in tail_dma(em, 3, True): f()
            em.op(f's_mov_b32 s{sDONE}, 1')
            em.end_opt()
            em.label(f'L_np{tv}')
        carry = []
        if s < 11:
            if s == 0 and cfg.chunk: em.wait_vm_tag('CO0', lgkm0=True)
            elif s == 0: em.wait_vm0(); em.wait_lgkm0()
            elif s == cfg.chunk and cfg.chunk:
                em.wait_vm_tag('CO1'); em.wait_vm_tag(f'T{s+1}', lgkm0=True)
            else: em.wait_vm_tag(f'T{s+1}', lgkm0=True)
            em.barrier()
            em.st.stamp(f'T{s}')
        if s == 0 and tv == 2: flag_store(em, sF1, sJ, 'L_f1', 4)
        if cfg.chunk and s == cfg.chunk and tv == 3: flag_store(em, sF1, sJ, 'L_f1b', 6, 16)
        if cfg.chunk and s == (5 if cfg.direct else 2) and orole: em.op(f'global_load_dword v{vPL1}, v{vPL0}, s[{sF1}:{sF1+1}] offset:16 sc1')
        if cfg.chunk and s == (6 if cfg.direct else 3) and orole:
            em.op(f'v_cmp_ne_u32 vcc, s{sTAG}, v{vPL1}')
            em.op('s_nop 4')
            em.op(f's_cbranch_vccz L_p1c_{tv}')
            keep = em.save()[2]
            em.begin_opt()
            poll(em, sF1, 3, f'L_p1b_{tv}', 16, keep=True)
            em.end_opt()
            em.vm = keep
            em.label(f'L_p1c_{tv}')
        fill = []; dm = []
        if s < 11: fill += reads(s + 1, 0, 0)
        if s == 0 and orole and cfg.epoll:
            em.op(f's_mov_b32 s{sDONE}, 0')
            em.op(f'v_and_b32 v{vPL0}, 3, {L}'); em.op(f'v_lshlrev_b32 v{vPL0}, 2, v{vPL0}')
        if s + 3 <= 11:
            if not orole or s >= 2:
                dm = tail_dma(em, s + 3, orole); dm, carry = dm[:3], dm[3:]
            elif s == 1:
                if cfg.epoll:
                    em.op(f's_cmp_eq_u32 s{sDONE}, 1')
                    em.op(f's_cbranch_scc1 L_ep{tv}')
                    vm_before = em.save()[2]
                    em.begin_opt()
                poll(em, sF1, 3, f'L_p1_{tv}')
                for f in tail_dma(em, 3, True): f()
                if cfg.epoll:
                    em.end_opt()
                    em.label(f'L_ep{tv}')
                dm = tail_dma(em, 4, True)
        ins = []
        n = nt * nq
        if s == 11:
            groups = []
            for j in range(nq):
                groups.append((j * nt + 1, pack(acc(0, j), acc(1, j)) + [st(acc(0, j), t2, j * 1024)]))
                if nt == 3 and (j % 2 == 1 or j == nq - 1):
                    j0 = j - (j % 2)
                    groups.append((j * nt + 2, pack(acc(2, j0), acc(2, j) if j != j0 else None) + [st(acc(2, j0), t3, (j0 // 2) * 1024)]))
            lag = 4
            ins = [(g, (p + lag + 0.5) / n, (p + lag + 0.5) / n) for p, g in groups if p + lag < n]
            restg = [g for p, g in groups if p + lag >= n]
        interleave(em, mf(1, False), (dm, 0.05, 0.95), (fill, 0, rf), *ins)
    for g in restg:
        for o in g: emit(em, o)
    em.st.stamp('TP')
    sU, sDL = sT3, sT4
    if tv < 3:
        em.op(f's_lshl_b32 s{sU}, s{sW}, 3'); em.op(f's_add_u32 s{sU}, s{sU}, s{sX}')
        em.op(f's_lshl_b32 s{sT0}, s{sU}, 10')
        em.op(f'v_add_u32 v{t2}, s{sT0}, v{t1}')
        em.op(f's_mul_i32 s{sT0}, s{sU}, 57'); em.op(f's_lshr_b32 s{sT0}, s{sT0}, 9')
        em.op(f's_mul_i32 s{sT1}, s{sT0}, 9'); em.op(f's_sub_u32 s{sT1}, s{sU}, s{sT1}')
        em.op(f's_lshl_b32 s{sT0}, s{sT0}, 2'); em.op(f's_lshr_b32 s{sT0}, 0x8630, s{sT0}'); em.op(f's_and_b32 s{sT0}, s{sT0}, 15')
        em.op(f's_mov_b32 s{sDL}, 32')
        em.op(f's_cmp_lt_u32 s{sU}, 36')
        em.op(f's_cbranch_scc1 L_dec{tv}')
        em.begin_opt()
        em.op(f's_cmp_ge_u32 s{sU}, 41')
        em.op(f's_cselect_b32 s{sT0}, 5, 2')
        em.op(f's_cselect_b32 s{sT1}, 41, 36')
        em.op(f's_sub_u32 s{sT1}, s{sU}, s{sT1}')
        em.op(f's_cmp_eq_u32 s{sT1}, 2')
        em.op(f's_mov_b32 s{sDL}, 20480')
        em.op(f's_cselect_b32 s{sDL}, 0x40000000, s{sDL}')
        em.op(f's_lshl_b32 s{sT1}, s{sT1}, 2'); em.op(f's_lshr_b32 s{sT1}, 0x75420, s{sT1}'); em.op(f's_and_b32 s{sT1}, s{sT1}, 15')
        em.end_opt()
        em.label(f'L_dec{tv}')
        em.op(f's_lshl_b32 s{sT1}, s{sT1}, 4'); em.op(f's_mul_i32 s{sT2}, s{sB}, 144'); em.op(f's_add_u32 s{sT1}, s{sT1}, s{sT2}'); em.op(f's_mul_i32 s{sT1}, s{sT1}, 1280')
        em.op(f's_lshl_b32 s{sT0}, s{sT0}, 5'); em.op(f's_add_u32 s{sT1}, s{sT1}, s{sT0}')
        em.op(f's_mul_i32 s{sT0}, s{sJ}, 320'); em.op(f's_add_u32 s{sT1}, s{sT1}, s{sT0}')
        em.op(f'v_and_b32 v{t3}, 15, {L}'); em.op(f'v_mul_u32_u24 v{t3}, 1280, v{t3}')
        em.op(f'v_lshrrev_b32 v{t0}, 4, {L}'); em.op(f'v_lshl_add_u32 v{t3}, v{t0}, 3, v{t3}')
        em.op(f'v_add_u32 v{t3}, s{sT1}, v{t3}')
    em.wait_vm0(); em.barrier()
    em.st.stamp('TW')
    if tv == 3:
        flag_store(em, sF2, sX, 'L_f2', 7)
    else:
        if tv == 2:
            em.op(f's_cmp_ge_u32 s{sU}, 46')
            em.op(f's_cbranch_scc1 L_fin2')
        poll(em, sF2, 7, f'L_p2_{tv}')
        em.st.stamp('TF')
        for x in range(8):
            em.op(f's_mov_b32 s{sT0}, {x * PART2}')
            em.op(f'buffer_load_dwordx4 {vr(76 + 4*x)}, v{t2}, {sr(SPR,4)}, s{sT0} offen{sc}')
        if tv == 0:
            em.op(f's_or_b32 s{sT0}, s{sH}, s{sW}')
            em.op(f's_cmp_eq_u32 s{sT0}, 0')
            em.op('s_cbranch_scc0 L_nw')
            em.begin_opt()
            em.op(f's_lshl_b32 s{sT0}, s{sB}, 8'); em.op(f's_add_u32 s{sT0}, s{sT0}, {FLAG_OFF}')
            em.op(f'v_mov_b32 v60, s{sT0}'); em.op(f'v_mov_b32 v61, s{sTAG}')
            em.op('s_mov_b64 exec, 1')
            em.op('global_store_dword v60, v61, s[12:13]' + (' sc1' if cfg.osc in (1, 3) else ''))
            em.op('s_mov_b64 exec, -1')
            em.end_opt()
            em.label('L_nw')
        A = 108
        for x in range(8):
            for d in range(4):
                r = 76 + 4*x + d
                if x == 0:
                    em.op(f'v_lshlrev_b32 v{A+2*d}, 16, v{r}'); em.op(f'v_and_b32 v{A+2*d+1}, 0xffff0000, v{r}')
                else:
                    tp = A + 8 + 2 * (d & 1)
                    em.op(f'v_lshlrev_b32 v{tp}, 16, v{r}'); em.op(f'v_and_b32 v{tp+1}, 0xffff0000, v{r}')
                    em.op(f'v_pk_add_f32 {vr(A+2*d,2)}, {vr(A+2*d,2)}, {vr(tp,2)}')
        for d in range(4): em.op(f'v_cvt_pk_bf16_f32 v{A+d}, v{A+2*d}, v{A+2*d+1}')
        em.op(f'buffer_store_dwordx2 {vr(A,2)}, v{t3}, {sr(SOUT,4)}, 0 offen' + ['', ' sc1', ' nt', ' sc0 sc1'][cfg.osc])
        em.op(f'buffer_store_dwordx2 {vr(A+2,2)}, v{t3}, {sr(SOUT,4)}, s{sDL} offen' + ['', ' sc1', ' nt', ' sc0 sc1'][cfg.osc])
        if tv == 2: em.label('L_fin2')
    if cfg.diag: em.wait_vm0()
    em.st.flush(12, 0, sW, 244)
    em.op('s_endpgm')

def kernel_header(name):
    return f'.globl {name}\n.p2align 8\n.type {name},@function\n{name}:\n'
def kernel_desc(name, vgpr, sgpr=102):
    return f'''.amdhsa_kernel {name}
  .amdhsa_next_free_vgpr {vgpr}
  .amdhsa_next_free_sgpr {sgpr}
  .amdhsa_accum_offset {(vgpr + 3) // 4 * 4}
  .amdhsa_group_segment_fixed_size 0
  .amdhsa_kernarg_size 64
  .amdhsa_user_sgpr_count 2
  .amdhsa_user_sgpr_kernarg_segment_ptr 1
  .amdhsa_system_sgpr_workgroup_id_x 1
.end_amdhsa_kernel
'''

def gen_k1():
    em = Em(); EM[0] = em
    k1_prologue(em)
    st0 = em.save()
    em.label('k1_body_start')
    for qh in range(2):
        sts = []
        for typ in ((1, 0) if cfg.n0 else (0,)):
            if qh or typ == 0 and cfg.n0: em.label(f'L_qp{qh}{typ}')
            em.restore(st0)
            em.typ = typ
            k1_qproj(em, qh, typ)
            k1_qk(em, qh)
            sts.append(em.save())
            if typ == 1: em.op(f's_branch L_sm{qh}')
        if len(sts) == 2:
            t = [[e[0] for e in s[2]] for s in sts]
            lo, hi = sorted(range(2), key=lambda i: len(t[i]))
            assert t[hi][len(t[hi]) - len(t[lo]):] == t[lo], t
            em.restore(sts[hi]); em.hist = []
            em.label(f'L_sm{qh}')
        k1_sm0(em, qh)
        k1_pv(em, qh)
    em.label('k1_body_end')
    em.label('L_k1_exit')
    em.op('s_endpgm')
    return em

def main():
    ref = open('cdna_kernels/' + NAME + '.s.ref').read().split('\n')
    head = [l for l in ref[:9]]
    k1 = gen_k1()
    KN = NAME + '_kernel'
    out = '\n'.join(head) + '\n'
    out += f'; @launch grid=(256,1,1) block=(512,1,1) lds={LDS1}\n'
    out += '.amdgcn_target "amdgcn-amd-amdhsa--gfx950"\n.text\n'
    out += kernel_header(KN) + k1.text()
    out += '.section .rodata,"a"\n.p2align 6\n' + kernel_desc(KN, 256)
    open(sys.argv[1], 'w').write(out)
    print('k1 instrs', k1.count, 'nops', k1.nops, file=sys.stderr)
main()
```

```python
import sys, struct, math
from em import Em, interleave, emit

NAME = 'standalone__gqa_block_cached__near_ridge'
def fbits(x): return struct.unpack('<I', struct.pack('<f', x))[0]

class Cfg:
    nt_kv = True
    nt_w = False
    nt_k2 = False
    two_types = True
    pre = True
    code_pre = True
    diag = False
    pk = True
    rfrac = 60
    prio = 0
    x_noexp = 0
    x_nopw = 0
    efrac = 95
    loopb = -1
    st = 0
    dbg = 0
    n0 = 1
    inpv0 = 0
    inpv1 = 0
    pfa = 5
    kq = 12
    kq0 = 7
    wont = 0
    vrf = 60
    x_ren = 0
    vrole = 1
    vfirst = 0
    vold = 0
    vh0 = 12
    wsoff = 0
    cearly = 1
    osc = 0
    pf0x = 0
    nu = 6
    pfs = 0
    nopad = 1
    pfxp = 10
    pfw = 10
    vpf = 0
    vpq = 0
    vpq_in = 4
    vpnt = 1
    spin = 0
    spst = -1
    spty = -1
    direct = 1
    chunk = 1
    onew = 1
    qlate = 0
    drole = 0
    in0 = 0
    in1 = 0
    epoll = 1
    pfx = 5
    opair = 1
    tsq = 1
    g2e = 0
    wo0 = 1
    pfnt = 0
    pfown = 10
    pfall = 1
    nt_k = 1
    nt_v = 1
    eager = 3
    eagerv = 0
    qwi = 1
    g2lo = 0
    g2hi = 30
    valo = 0
    vahi = 60
    pf1 = 10
    v0e = 0
    kqb = 0
    kqb0 = 7
    vb = 0
    vreg = 0
    nvy = 4
    sc_o = 1
    sc_ol = 1
    rt = 0
    qloop = 0
    x_qnodma = 0
    x_qnord = 0
    dlo = 10
    dhi = 95
    dsplit = 3
    x_delay = 0
    wopre = 1
    sc = 1
    x_nobar = 0
    x_nord = 0
    x_nodma = 0
cfg = Cfg()
cfg.pvst = (3,7); cfg.qst = (0,8,)
if 'pvall=1' in sys.argv: sys.argv.remove('pvall=1'); cfg.pvst = (0,1,2,3,4,5,6,7); cfg.qst = (); cfg.fewst = True
else: cfg.fewst = False
for a in sys.argv[2:]:
    k, v = a.split('='); setattr(cfg, k, type(getattr(cfg, k))(int(v)))
STSETS = {0: 'S0 BQ PV0 BO T2 TW', 1: 'ka pi si S0 B0 B8 BQ K0 K1 QKend BM exp0 PV0', 2: 'PV0 PB0 PB1 PB2 PB3 PB4 PB5 PB6', 9: 'BM exp0 PV0 PB3 PB6 PB7 BO T0', 3: 'BO T0 T1 T2 TW TF', 4: 'K0 K1 QKend BM exp0 PV0 PB3 PB7 BO T0', 8: '', 5: 'S0 LB0 LBend BQ', 6: 'S0 B0 B1 B2 B3 B5 B7 B8 B9 BQ', 7: 'BO T0 T1 T2 T3 T4 T6 T8 T10 TP'}
cfg.stlist = ['rt0', 'start'] + STSETS[cfg.st].split()[:6] + ['end', 'rt_end']
cfg.pvst = range(8); cfg.qst = range(10)
cfg.types = bool(cfg.n0)

def vr(b, n=4): return f'v[{b}:{b + n - 1}]' if n > 1 else f'v{b}'
def sr(b, n): return f's[{b}:{b + n - 1}]'
MF = 'v_mfma_f32_16x16x32_bf16'
def mfma(d, a, b, c=None):
    return f'{MF} {vr(d)}, {vr(a)}, {vr(b)}, ' + ('0' if c is None else vr(c))

FLAG_OFF = 28 << 20
PART2 = 47104
O_HEAD = 55296
WS_PART = 16 << 20
PART_TILE = 90 * 1024

def srd(em, d, base_lo, base_hi, off_sgpr, size):
    if off_sgpr is None:
        em.op(f's_mov_b32 s{d}, s{base_lo}'); em.op(f's_mov_b32 s{d+1}, s{base_hi}')
    else:
        em.op(f's_add_u32 s{d}, s{base_lo}, {off_sgpr}'); em.op(f's_addc_u32 s{d+1}, s{base_hi}, 0')
    em.op(f's_mov_b32 s{d+2}, {size}')
    em.op(f's_mov_b32 s{d+3}, 0x20000')

_lab = [0]
DIAG_OFF = 64 << 20
class Stamps:
    def __init__(self, em):
        self.em = em; self.n = 0; self.names = []
        if cfg.diag:
            for i in range(len(cfg.stlist)): em.op(f's_mov_b32 s{60 + 2*i}, 0')
    def stamp(self, name, real=False):
        if cfg.spin:
            L = ['S0', 'BQ', 'BM', 'PV0', 'BO', 'T2', 'TW', 'TF']
            if name == 'rt0' or (cfg.spst >= 0 and name == L[cfg.spst]):
                r = 76 if name == 'rt0' else 78
                self.em.wait_lgkm0()
                self.em.op(f's_memrealtime s[{r}:{r+1}]'); self.em.op('s_waitcnt lgkmcnt(0)')
                if name == 'rt0': self.em.op('s_mov_b32 s78, s76')
            return
        if not cfg.diag or name not in cfg.stlist: return
        em = self.em; i = cfg.stlist.index(name)
        em.wait_lgkm0()
        em.op(('s_memrealtime' if (real or cfg.rt) else 's_memtime') + f' s[{60 + 2*i}:{61 + 2*i}]')
        em.op('s_waitcnt lgkmcnt(0)')
    def flush(self, ws_lo, kidx, wave_s, tv):
        if cfg.spin:
            em = self.em; _lab[0] += 1
            if cfg.spty >= 0:
                em.op(f's_cmp_eq_u32 s39, {cfg.spty}'); em.op('s_cselect_b32 s78, s78, s76')
            em.op('s_sub_u32 s78, s78, s76'); em.op(f's_add_u32 s78, s78, {cfg.spin}')
            em.label(f'L_sp{_lab[0]}')
            em.op('s_sleep 2')
            em.op('s_memrealtime s[74:75]'); em.op('s_waitcnt lgkmcnt(0)')
            em.op('s_sub_u32 s74, s74, s76'); em.op('s_cmp_lt_u32 s74, s78'); em.op(f's_cbranch_scc1 L_sp{_lab[0]}')
            return
        if not cfg.diag: return
        em = self.em
        self.stamp('end'); self.stamp('rt_end', real=True)
        if cfg.dbg:
            _lab[0] += 1
            em.op('s_load_dwordx2 s[56:57], s[0:1], 48')
            em.op(f's_and_b32 s58, s2, 0xdf'); em.op(f's_or_b32 s58, s58, s{wave_s}'); em.op('s_cmp_eq_u32 s58, 0')
            em.op('s_waitcnt lgkmcnt(0)')
            em.op(f's_cbranch_scc0 L_dbg{_lab[0]}')
            em.op(f'v_mov_b32 v{tv}, s2')
            for k, i in enumerate([2, 3, 4, 13, 6, 9, 11, 12]):
                em.op(f's_sub_u32 s58, s{60 + 2*i}, s{60 if i == 13 else 62}')
                em.op(f'v_mov_b32 v{tv+1}, s58')
                em.op(f'global_store_dword v{tv}, v{tv+1}, s[56:57] offset:{4*k}')
            em.label(f'L_dbg{_lab[0]}')
            return
        em.op(f's_lshl_b32 s56, s2, 3'); em.op(f's_add_u32 s56, s56, s{wave_s}'); em.op('s_lshl_b32 s56, s56, 7')
        em.op(f's_add_u32 s56, s56, {DIAG_OFF + (kidx << 20)}')
        em.op(f's_add_u32 s56, s{ws_lo}, s56'); em.op(f's_addc_u32 s57, s{ws_lo+1}, 0')
        em.op(f'v_mov_b32 v{tv}, 0')
        for i in range(len(cfg.stlist)):
            em.op(f'v_mov_b32 v{tv+1}, s{60 + 2*i}')
            em.op(f'global_store_dword v{tv}, v{tv+1}, s[56:57] offset:{4*i}')
        print('stamps', kidx, cfg.stlist, file=sys.stderr)

SX, SWQ, SK, SV, SO = 16, 20, 24, 28, 32
sW, sW3072, sW1024, sTYPE, sOFF, sT0, sT1, sT2, sC, sB, sH, sJ, sLOC, sX = 36, 37, 38, 39, 40, 41, 42, 43, 44, 52, 46, 47, 48, 53
vLANE, vXO, vWO, vK0, vK1, vVO = 1, 2, 3, 4, 5, 6
vRA = [7, 8]
vRB = [9, 10, 11]
vRC = [12, 13, 14]
vT = 15
vOW = [8, 254, 255]
vVW, vVW2 = 7, 8
vPA, vPW, vMS = 240, 242, 243
vPW2 = 241
TMP = list(range(244, 256))
STG = 43008
PBASE, VBASE, MAXB, SUMB = 0, 55296, 153600, 155648
NV = 4
def vslot(s): return [3, 1, 2, 0][s % 4]
LDS1 = SUMB + 12 * 512
def kop(kt, ks): return 16 + 4 * (kt * 6 + ks)
def sreg(kt, qt):
    if kt < 2: return 116 + 4 * (qt * 2 + kt)
    i = qt * 2 + (kt - 2)
    return 16 + 4 * i if i < 12 else 188 + 4 * (i - 12)
ACC = 116
MC = 212
SUM = 221
SUMP = 222
QF = 224
OACC0 = [116 + 4*i for i in range(15)]
OACC1 = [120 + 8*i for i in range(9)] + [100, 80, 208]
PAF0 = [[176, 180, 184], [104, 108, 112]]
PAF1 = [[200, 192, 60], [104, 108, 112]]
PBF0 = [[64, 68, 72, 76, 80], [84, 88, 92, 96, 100]]
PBF1 = [[64, 68, 72, 76], [84, 88, 92, 96]]
INV0 = 212
NEXP1 = 4


sKB = 57
vKR = [250, 251]
vVO3 = 252
def k_dma_ops(em, half):
    nt = ' nt' if cfg.nt_kv and cfg.nt_k else ''
    ops = []
    for c in range(3):
        for k in range(2):
            for p in range(2):
                def f(c=c, k=k, p=p):
                    em.op(f's_add_u32 m0, s{sKB}, {(k * 3 + c) * 2048 + p * 1024 - c * 128}')
                    em.op(f's_mov_b32 s{sOFF}, {(half * 2 + k) * 6144}')
                    em.op(f'buffer_load_dwordx4 v{vK1 if p else vK0}, {sr(SK,4)}, s{sOFF} offen offset:{c*128}{nt} lds', tag=f'K{half}_{c * 2 + k}')
                ops.append(f)
    return ops
def k_rd_ops(half, u):
    c, k = divmod(u, 2)
    return [f'ds_read_b128 {vr(kop(half * 2 + k, 2 * c + e))}, v{vKR[e]} offset:{(k * 3 + c) * 2048}' for e in range(2)]
def k_fetch(em, half, nxt, u0=0, u1=6):
    for u in range(u0, u1):
        em.wait_vm_tag(f'K{half}_{u}')
        for o in k_rd_ops(half, u): em.op(o)
        if nxt and u > u0:
            em.waitcnt(lgkm=2); em.lgkm = em.lgkm[-2:]
            for f in nxt[2 * u - 2: 2 * u]: f()
    if nxt:
        em.wait_lgkm0()
        for f in nxt[2 * u1 - 2: 2 * u1]: f()
def va_ops(em):
    nt = ' nt' if cfg.nt_kv and cfg.nt_v else ''
    ops = []
    for rg in range(4):
        for c in range(3):
            def f(c=c, rg=rg):
                em.op(f's_add_u32 m0, s{sKB}, {rg * 3072 + c * 896}')
                em.op(f's_mov_b32 s{sOFF}, {rg * 3072}')
                em.op(f'buffer_load_dwordx4 v{vVO3}, {sr(SV,4)}, s{sOFF} offen offset:{c*128}{nt} lds', tag='VA')
            ops.append(f)
    return ops

def stage_dma_ops(em, s, qh):
    nt = ' nt' if cfg.nt_w else ''
    slot = (s % 3) * 18432
    ops = []
    for c in range(3):
        def f(c=c):
            em.op(f's_add_u32 m0, s{sW3072}, {VBASE + (s % 3) * 24576 + c * 896}')
            if c == 0: em.op(f's_mov_b32 s{sOFF2}, {s * 786432}')
            em.op(f'buffer_load_dwordx4 v{vWO}, {sr(SWQ,4)}, s{sOFF2} offen offset:{c*128}{nt} lds', tag=f'S{s}')
        ops.append(f)
    for j in range(2):
        def f(j=j):
            em.op(f's_add_u32 m0, s{sW1024}, {slot + j * 8192}')
            em.op(f's_mov_b32 s{sOFF}, {s * 128 + j * 81920}')
            em.op(f'buffer_load_dwordx4 v{vXO}, {sr(SX,4)}, s{sOFF} offen{nt} lds', tag=f'S{s}')
        ops.append(f)
    if qh == 1:
        def f():
            _lab[0] += 1
            lab = f'L_x{_lab[0]}'
            em.op(f's_cmp_lt_u32 s{sW}, 6')
            em.op(f's_cbranch_scc0 {lab}')
            em.begin_opt()
            em.op(f's_add_u32 m0, s{sW1024}, {slot + 12288}')
            em.op(f's_mov_b32 s{sOFF}, {s * 128 + 122880}')
            em.op(f'buffer_load_dwordx4 v{vXO}, {sr(SX,4)}, s{sOFF} offen{nt} lds', tag=f'S{s}')
            em.end_opt()
            em.label(lab)
        ops.insert(0, f)
    return ops

def v_dma_ops(em, s):
    nt = ' nt' if cfg.nt_kv and cfg.nt_v else ''
    ops = []
    for c in range(3):
        def f(c=c):
            em.op(f's_add_u32 m0, s{sW3072}, {VBASE + vslot(s) * 24576 + c * 896}')
            em.op(f's_mov_b32 s{sOFF}, {(128 * (s & 3) + 32 * (s >> 2)) * 384}')
            em.op(f'buffer_load_dwordx4 v{vVO}, {sr(SV,4)}, s{sOFF} offen offset:{c*128}{nt} lds', tag=f'V{s}')
        ops.append(f)
    return ops

sDG = 49
sPFS, sPFB = 45, 50
sOFF2 = 3
vPF = 241
def pf_ops():
    if not cfg.pre: return []
    nt = ' nt' if cfg.nt_w else ''
    return [f'global_load_dwordx4 {vr(112)}, v{vPF}, s[{sPFB}:{sPFB+1}]{nt}', f'v_add_u32 v{vPF}, s{sPFS}, v{vPF}']
sTAG, sSTR, sF1, sF2, sHB, sM0T, sQ0, sNH, sCNT = 88, 89, 90, 92, 94, 98, 99, 100, 101
VST = 64
def v_reg_ops(em):
    nt = ' nt' if cfg.nt_kv and cfg.nt_v else ''
    ops = []
    for s in range(4, 8):
        for c in range(3):
            def f(s=s, c=c):
                em.op(f's_mov_b32 s{sOFF}, {(128 * (s & 3) + 32 * (s >> 2)) * 384}')
                em.op(f'buffer_load_dwordx4 {vr(VST + 4 * ((s - 4) * 3 + c))}, v{vVO}, {sr(SV,4)}, s{sOFF} offen offset:{c*128}{nt}', tag=f'V{s}')
            ops.append(f)
    return ops
def v_put_ops(s):
    slot = vslot(s)
    return [f'ds_write_b128 v{vVW if slot < 2 else vVW2}, {vr(VST + 4 * ((s - 4) * 3 + c))} offset:{(slot % 2) * 24576 + c * 1024}' for c in range(3)]

vPF2 = 254
VTMP = [248, 249, 253]
def pf2_ops():
    nt = ' nt' if cfg.nt_w else ''
    return [f'global_load_dwordx4 {vr(112)}, v{vPF2}, s[{sPFB}:{sPFB+1}]{nt}', f'v_add_u32 v{vPF2}, s{sPFS}, v{vPF2}']

def v_pf_ops(em, blk_delta=0):
    nt = ' nt' if cfg.vpnt else ''
    ops = []
    for s in range(4, 8):
        for c in range(3):
            def f(s=s, c=c):
                em.op(f's_mov_b32 s{sOFF}, {(128 * (s & 3) + 32 * (s >> 2)) * 384 + blk_delta}')
                em.op(f's_mov_b32 m0, {MAXB + 640}')
                em.op(f'buffer_load_dwordx4 v{vVO}, {sr(SV,4)}, s{sOFF} offen offset:{c*128}{nt} lds', tag='VP')
            ops.append(f)
    return ops

def k1_prologue(em):
    em.op('s_cmp_ge_u32 s2, 256')
    em.op('s_cbranch_scc1 L_k1_exit')
    em.st = Stamps(em); em.st.stamp('rt0', real=True); em.st.stamp('start')
    em.op('s_load_dwordx8 s[4:11], s[0:1], 0')
    em.op('s_load_dwordx2 s[12:13], s[0:1], 56')
    em.op('s_load_dwordx2 s[14:15], s[0:1], 32')
    em.op('s_load_dwordx2 s[54:55], s[0:1], 40')
    em.op(f'v_and_b32 v{vLANE}, 63, v0')
    em.op(f'v_lshrrev_b32 v{vT}, 6, v0')
    em.op(f's_and_b32 s{sX}, s2, 7')
    em.op(f's_lshr_b32 s{sLOC}, s2, 3')
    em.op(f'v_readfirstlane_b32 s{sW}, v{vT}')
    t0, t1, t2, t3, t4, t5 = TMP[:6]
    L = f'v{vLANE}'
    em.op(f's_and_b32 s{sJ}, s{sLOC}, 3')
    em.op(f's_lshr_b32 s{sB}, s{sLOC}, 2')
    em.op(f's_lshl_b32 s{sH}, s{sX}, 2')
    em.op(f's_add_u32 s{sH}, s{sH}, s{sJ}')
    em.op(f's_and_b32 s{sTYPE}, s{sB}, 1')
    em.op(f's_lshl_b32 s{sT0}, s{sLOC}, 1'); em.op(f's_mul_i32 s{sT0}, s{sT0}, 12288'); em.op(f's_mul_i32 s{sT1}, s{sX}, 1536'); em.op(f's_add_u32 s{sT0}, s{sT0}, s{sT1}')
    em.op(f's_lshl_b32 s{sT1}, s{sW}, 9'); em.op(f's_add_u32 s{sT0}, s{sT0}, s{sT1}')
    em.op(f'v_lshrrev_b32 v{t3}, 5, {L}'); em.op(f'v_mul_u32_u24 v{t3}, 12288, v{t3}')
    em.op(f'v_and_b32 v{t4}, 31, {L}'); em.op(f'v_lshlrev_b32 v{t4}, 4, v{t4}')
    em.op(f'v_add3_u32 v{t5}, v{t3}, v{t4}, s{sT0}')
    em.op(f'v_lshrrev_b32 v{t0}, 3, {L}')
    em.op(f'v_and_b32 v{t1}, 7, {L}')
    em.op(f'v_lshrrev_b32 v{t2}, 4, {L}')
    em.op(f's_mul_i32 s{sT0}, s{sLOC}, 36'); em.op(f's_lshl_b32 s{sT2}, s{sW}, 3'); em.op(f's_add_u32 s{sT0}, s{sT0}, s{sT2}'); em.op(f's_sub_u32 s{sT0}, s{sT0}, 24')
    em.op(f'v_add_u32 v{t3}, s{sT0}, v{t0}')
    em.op(f's_cmp_lt_u32 s{sW}, 3')
    em.op(f's_cselect_b64 vcc, -1, 0')
    em.op(f's_movk_i32 s{sPFS}, 128')
    em.op(f's_cselect_b32 s{sPFS}, 786432, s{sPFS}')
    for dst, dr, dw in ((vPF, 0, 0), (vPF2, 144, 98304) if not cfg.pfall else (vPF2, -144 & 0xffffffff, -98304 & 0xffffffff)):
        if dst == vPF2 and cfg.pf1 >= 10 and not cfg.pfall: continue
        if dst == vPF2 and cfg.pf0x:
            em.op(f's_mul_i32 s{sT1}, s{sTYPE}, {-288 & 0xffffffff}'); em.op(f's_add_u32 s{sT1}, s{sT1}, 144')
            em.op(f'v_add_u32 v{t4}, s{sT1}, v{t3}'); em.op(f'v_min_u32 v{t4}, 1151, v{t4}')
            em.op(f'v_mul_u32_u24 v{t4}, 1280, v{t4}')
            em.op(f'v_lshl_add_u32 v{t4}, v{t1}, 4, v{t4}')
            em.op(f's_mul_i32 s{sT1}, s{sTYPE}, {-196608 & 0xffffffff}'); em.op(f's_add_u32 s{sT1}, s{sT1}, 98304')
            em.op(f'v_add_u32 v{dst}, s{sT1}, v{t5}')
            em.op(f'v_cndmask_b32 v{dst}, v{t4}, v{dst}, vcc')
            em.op(f's_xor_b32 s{sT1}, s{sTYPE}, 1'); em.op(f's_mul_i32 s{sT1}, s{sT1}, {cfg.pfx}'); em.op(f's_mul_i32 s{sT1}, s{sT1}, s{sPFS}')
            em.op(f'v_add_u32 v{dst}, s{sT1}, v{dst}')
            continue
        em.op(f'v_add_u32 v{t4}, {dr}, v{t3}'); em.op(f'v_min_u32 v{t4}, 1151, v{t4}')
        em.op(f'v_mul_u32_u24 v{t4}, 1280, v{t4}')
        em.op(f'v_lshl_add_u32 v{t4}, v{t1}, 4, v{t4}')
        em.op(f'v_add_u32 v{dst}, {dw}, v{t5}')
        em.op(f'v_cndmask_b32 v{dst}, v{t4}, v{dst}, vcc')
    if cfg.pf1 < 10:
        em.op(f's_mul_i32 s{sT0}, s{sPFS}, {cfg.pf1}'); em.op(f'v_add_u32 v{vPF2}, s{sT0}, v{vPF2}')
    em.op(f's_and_b32 s{sDG}, s{sW}, 3')
    em.op(f's_mul_i32 s{sW3072}, s{sW}, 3072')
    em.op(f's_lshl_b32 s{sW1024}, s{sW}, 10')
    em.op(f's_and_b32 s{sT0}, s{sW}, 1')
    em.op(f's_lshl_b32 s{sT1}, s{sT0}, 2')
    em.op(f'v_add_u32 v{t3}, s{sT1}, v{t2}')
    em.op(f'v_xor_b32 v{t3}, v{t3}, v{t1}')
    em.op(f'v_add_u32 v{t4}, s{sT2}, v{t0}')
    em.op(f'v_mul_u32_u24 v{vXO}, 1280, v{t4}')
    em.op(f'v_lshl_add_u32 v{vXO}, v{t3}, 4, v{vXO}')
    em.op(f'v_and_b32 v{t3}, 1, v{t2}')
    em.op(f'v_lshl_add_u32 v{t3}, v{t3}, 1, s{sT1}')
    em.op(f'v_xor_b32 v{t3}, v{t3}, v{t1}')
    em.op(f'v_mul_u32_u24 v{vWO}, 12288, v{t4}')
    em.op(f'v_lshl_add_u32 v{vWO}, v{t3}, 4, v{vWO}')
    em.op(f's_lshl_b32 s{sT2}, s{sW}, 6')
    em.op(f'v_add_u32 v{t4}, s{sT2}, v{t0}')
    em.op(f'v_mul_u32_u24 v{t4}, 384, v{t4}')
    em.op(f'v_xor_b32 v{t3}, v{t2}, v{t1}')
    em.op(f'v_lshl_add_u32 v{vK0}, v{t3}, 4, v{t4}')
    em.op(f'v_xor_b32 v{vK1}, 64, v{vK0}')
    em.op(f'v_add_u32 v{vK1}, {8 * 384}, v{vK1}')
    em.op(f'v_lshlrev_b32 v{t3}, 1, v{t2}')
    em.op(f'v_xor_b32 v{t3}, v{t3}, v{t1}')
    em.op(f'v_lshl_add_u32 v{vVO3}, v{t3}, 4, v{t4}')
    em.op(f's_and_b32 s{sT1}, s{sW}, 6'); em.op(f's_lshr_b32 s{sKB}, 0x27, s{sT1}'); em.op(f's_and_b32 s{sKB}, s{sKB}, 3')
    em.op(f's_lshl_b32 s{sKB}, s{sKB}, 1'); em.op(f's_add_u32 s{sKB}, s{sKB}, s{sT0}'); em.op(f's_mul_i32 s{sKB}, s{sKB}, 12288'); em.op(f's_add_u32 s{sKB}, s{sKB}, {VBASE}')
    em.op(f'v_bfe_u32 v{t3}, {L}, 3, 1'); em.op(f'v_lshlrev_b32 v{t3}, 10, v{t3}')
    em.op(f'v_lshl_add_u32 v{t3}, v{t1}, 7, v{t3}')
    em.op(f'v_bfe_u32 v{t4}, {L}, 1, 3')
    em.op(f'v_xor_b32 v{t4}, v{t4}, v{t2}'); em.op(f'v_lshlrev_b32 v{vT}, 4, v{t4}')
    em.op(f'v_add_u32 v{vRA[0]}, v{t3}, v{vT}')
    em.op(f'v_add_u32 v{vKR[0]}, s{sKB}, v{vRA[0]}')
    em.op(f'v_xor_b32 v{vKR[1]}, 64, v{vKR[0]}')
    em.op(f's_lshr_b32 s{sT1}, s{sW}, 2'); em.op(f's_lshl_b32 s{sT1}, s{sT1}, 6')
    em.op(f's_lshl_b32 s{sT0}, s{sDG}, 3'); em.op(f's_add_u32 s{sT0}, s{sT0}, s{sT1}')
    em.op(f'v_add_u32 v{t3}, s{sT0}, v{t0}')
    em.op(f'v_mul_u32_u24 v{vVO}, 384, v{t3}')
    em.op(f'v_lshlrev_b32 v{t3}, 1, v{t2}')
    em.op(f'v_xor_b32 v{t3}, v{t3}, v{t1}')
    em.op(f'v_lshl_add_u32 v{vVO}, v{t3}, 4, v{vVO}')
    em.op(f's_mul_i32 s{SX+3}, s{sB}, 184320')
    em.op(f's_mul_i32 s{SWQ+3}, s{sH}, 384')
    em.op(f's_lshl_b32 s{sT1}, s{sB}, 5'); em.op(f's_add_u32 s{sT1}, s{sT1}, s{sH}')
    em.op(f's_mul_i32 s{sT2}, s{sT1}, 196608')
    em.op(f's_mul_i32 s{SO+3}, s{sT1}, {O_HEAD}')
    em.op(f's_lshl_b32 s{sT0}, s{sB}, 8'); em.op(f's_add_u32 s{sT0}, s{sT0}, {FLAG_OFF}')
    em.op(f's_mov_b32 s{SX+2}, 184320'); em.op(f's_sub_u32 s{SWQ+2}, 7864320, s{SWQ+3}')
    em.op(f's_cmp_lt_u32 s{sW}, 3')
    em.op('s_waitcnt lgkmcnt(0)')
    em.st.stamp('ka')
    if cfg.diag: em.op(f's_cmp_lt_u32 s{sW}, 3')
    em.op(f's_cselect_b64 s[{sPFB}:{sPFB+1}], s[10:11], s[4:5]')
    for i in range(0 if cfg.pfall else 3):
        for o in pf_ops(): em.op(o)
    if cfg.cearly:
        em.op('s_getpc_b64 s[58:59]')
        em.label('L_pce')
        em.op('s_add_u32 s58, s58, k1_body_start-L_pce')
        em.op('s_addc_u32 s59, s59, 0')
        em.op(f's_and_b32 s{sT1}, s{sLOC}, 15')
        em.op(f's_lshl_b32 s{sT1}, s{sT1}, 13')
        em.op(f'v_lshlrev_b32 v{TMP[11]}, 4, v0')
        em.op(f'v_add_u32 v{TMP[11]}, s{sT1}, v{TMP[11]}')
        em.op(f'v_min_u32 v{TMP[11]}, k1_body_end-k1_body_start-16, v{TMP[11]}')
        em.op(f'global_load_dwordx4 {vr(112)}, v{TMP[11]}, s[58:59]')
    if cfg.wsoff:
        em.op(f's_add_u32 s12, s12, {cfg.wsoff << 20}'); em.op('s_addc_u32 s13, s13, 0')
    em.op(f's_load_dword s{sTAG}, s[12:13], s{sT0}')
    em.op(f's_add_u32 s{SWQ}, s10, s{SWQ+3}'); em.op(f's_addc_u32 s{SWQ+1}, s11, 0'); em.op(f's_mov_b32 s{SWQ+3}, 0x20000')
    em.op(f's_add_u32 s{SX}, s4, s{SX+3}'); em.op(f's_addc_u32 s{SX+1}, s5, 0'); em.op(f's_mov_b32 s{SX+3}, 0x20000')
    srd(em, SK, 6, 7, f's{sT2}', 196608); srd(em, SV, 8, 9, f's{sT2}', 196608)
    if cfg.n0 or cfg.pfall:
        em.op(f's_cmp_eq_u32 s{sTYPE}, 1')
        em.op('s_cbranch_scc0 L_nok1')
        em.begin_opt()
        em.op(f's_cmp_lt_u32 s{sW}, 3')
        em.op('s_cbranch_scc0 L_pfx')
        if cfg.pfs:
            em.op(f'v_add_u32 v{vPF}, {cfg.pfs * 786432}, v{vPF}'); em.op(f'v_add_u32 v{vPF2}, {cfg.pfs * 786432}, v{vPF2}')
        for i in range(cfg.pfw - cfg.pfs):
            for o in pf2_ops() + pf_ops(): em.op(o)
        em.op('s_branch L_nok1')
        em.label('L_pfx')
        if cfg.pfs: em.op(f'v_add_u32 v{vPF2}, {cfg.pfs * 128}, v{vPF2}')
        for i in range(cfg.pfxp - cfg.pfs):
            for o in pf2_ops(): em.op(o)
        for i in range(cfg.pfx):
            for o in pf_ops(): em.op(o)
        em.end_opt()
        em.label('L_nok1')
    if cfg.n0:
        em.op(f's_lshr_b32 s{sT0}, s{sW}, 2'); em.op(f's_lshl_b32 s{sT0}, s{sT0}, 1'); em.op(f's_or_b32 s{sT0}, s{sT0}, s{sTYPE}')
        for v in (0, 2, 3):
            em.op(f's_cmp_eq_u32 s{sT0}, {v}')
            em.op(f's_cbranch_scc1 L_qp{v >> 1}{v & 1}')
    else:
        em.op(f's_cmp_lt_u32 s{sW}, 4')
        em.op('s_cbranch_scc0 L_qp10')

def tile_m(em, t):
    tab = [[0, 4, 6, 10], [1, 5, 7, 11], [2, 3, 8, 9]][t]
    em.op(f's_lshl_b32 s{sT0}, s{sDG}, 2')
    em.op(f's_lshr_b32 s{sT0}, {sum(v << (4 * i) for i, v in enumerate(tab))}, s{sT0}')
    em.op(f's_and_b32 s{sT0}, s{sT0}, 15')

def tr_addr(em, dst, t, base, fmode):
    t0, t1, t2, t3 = TMP[:4]
    L = f'v{vLANE}'
    if fmode == 'v' and cfg.opair: tile_m(em, t)
    else:
        em.op(f's_mul_i32 s{sT0}, s{sDG}, 3'); em.op(f's_add_u32 s{sT0}, s{sT0}, {t}')
    em.op(f's_lshr_b32 s{sT1}, s{sT0}, 2'); em.op(f's_lshl_b32 s{sT1}, s{sT1}, 10')
    em.op(f's_add_u32 s{sT1}, s{sT1}, {base}')
    em.op(f's_and_b32 s{sT0}, s{sT0}, 3')
    em.op(f'v_lshrrev_b32 v{t0}, 4, {L}')
    em.op(f'v_bfe_u32 v{t1}, {L}, 2, 2')
    em.op(f'v_and_b32 v{t2}, 1, v{t0}')
    em.op(f'v_lshlrev_b32 v{t2}, 1, v{t2}')
    em.op(f'v_lshrrev_b32 v{t3}, 1, v{t1}')
    em.op(f'v_add_u32 v{t3}, v{t3}, v{t2}')
    em.op(f'v_xor_b32 v{t3}, s{sT0}, v{t3}')
    em.op(f'v_lshlrev_b32 v{t3}, 5, v{t3}')
    em.op(f'v_lshlrev_b32 v{dst}, 7, v{t1}')
    em.op(f'v_add_u32 v{dst}, v{dst}, v{t3}')
    if fmode == 'w':
        em.op(f'v_mul_u32_u24 v{t3}, 3072, v{t0}')
    else:
        em.op(f'v_lshlrev_b32 v{t2}, 8, v{t2}')
        em.op(f'v_add_u32 v{dst}, v{dst}, v{t2}')
        em.op(f'v_lshrrev_b32 v{t3}, 1, v{t0}')
        em.op(f'v_mul_u32_u24 v{t3}, 3072, v{t3}')
    em.op(f'v_add_u32 v{dst}, v{dst}, v{t3}')
    em.op(f'v_and_b32 v{t3}, 3, {L}')
    em.op(f'v_lshlrev_b32 v{t3}, 3, v{t3}')
    em.op(f'v_add_u32 v{dst}, v{dst}, v{t3}')
    em.op(f'v_add_u32 v{dst}, s{sT1}, v{dst}')

class Cap:
    def __init__(self): self.ops = []
    def op(self, t, tag=None): self.ops.append(t)

def k1_qproj(em, qh, typ):
    nq = 5 if qh == 0 else 4
    q0 = 0 if qh == 0 else 5
    L = f'v{vLANE}'
    t0, t1, t2, t3, t4, t5 = TMP[:6]
    rf = cfg.rfrac / 100
    if cfg.prio == qh + 1: em.op('s_setprio 1')
    npre = cfg.n0 if typ == 1 else 0
    if npre:
        nu = cfg.nu if npre == 1 else 6
        for f in k_dma_ops(em, 0)[:2 * nu]: f()
        em.wait_lgkm0(force=True)
        k_fetch(em, 0, k_dma_ops(em, 1) if npre == 2 else None, 0, nu)
        if npre == 2: k_fetch(em, 1, None)
        em.wait_lgkm0()
    em.barrier()
    for f in stage_dma_ops(em, 0, qh): f()
    em.barrier()
    for f in stage_dma_ops(em, 1, qh): f()
    em.op(f's_add_u32 s{SO}, s12, s{SO+3}'); em.op(f's_addc_u32 s{SO+1}, s13, 0'); em.op(f's_mov_b32 s{SO+2}, {O_HEAD}'); em.op(f's_mov_b32 s{SO+3}, 0x20000')
    em.op(f's_mov_b32 s{sC}, {fbits(192 ** -0.5 * math.log2(math.e))}')
    if cfg.code_pre and not cfg.cearly:
        em.op('s_getpc_b64 s[58:59]')
        em.label(f'L_pc{qh}{typ}')
        em.op(f's_add_u32 s58, s58, k1_body_start-L_pc{qh}{typ}')
        em.op('s_addc_u32 s59, s59, -1')
        em.op(f's_and_b32 s{sT1}, s{sLOC}, 15')
        em.op(f's_lshl_b32 s{sT1}, s{sT1}, 13')
        em.op(f'v_lshlrev_b32 v{TMP[11]}, 4, v0')
        em.op(f'v_add_u32 v{TMP[11]}, s{sT1}, v{TMP[11]}')
        em.op(f'v_min_u32 v{TMP[11]}, k1_body_end-k1_body_start-16, v{TMP[11]}')
    em.st.stamp('si')
    em.op(f'v_lshlrev_b32 v{t3}, 2, v0')
    em.op(f'v_add_u32 v{t3}, {MAXB}, v{t3}')
    em.op(f'v_mov_b32 v{t4}, 0xff800000')
    em.op(f'ds_write_b32 v{t3}, v{t4}')
    em.op(f'v_and_b32 v{vMS}, 15, {L}')
    em.op(f'v_lshlrev_b32 v{vMS}, 2, v{vMS}')
    em.op(f'v_add_u32 v{vMS}, {MAXB}, v{vMS}')
    em.op(f'v_add_u32 v{vRA[0]}, {q0 * 2048}, v{vRA[0]}')
    em.op(f'v_xor_b32 v{vRA[1]}, 64, v{vRA[0]}')
    for t in range(3): tr_addr(em, vRB[t], t, VBASE, 'w')
    for t in range(3):
        em.op(f's_mul_i32 s{sT0}, s{sDG}, 3'); em.op(f's_add_u32 s{sT0}, s{sT0}, {t}'); em.op(f's_lshl_b32 s{sT0}, s{sT0}, 1')
        em.op(f'v_lshrrev_b32 v{t0}, 5, {L}')
        em.op(f'v_add_u32 v{t0}, s{sT0}, v{t0}')
        em.op(f'v_lshrrev_b32 v{t1}, 3, v{t0}'); em.op(f'v_lshlrev_b32 v{t1}, 7, v{t1}')
        em.op(f'v_and_b32 v{t0}, 7, v{t0}')
        em.op(f'v_bfe_u32 v{t2}, {L}, 1, 3')
        em.op(f'v_xor_b32 v{t0}, v{t0}, v{t2}'); em.op(f'v_lshlrev_b32 v{t0}, 4, v{t0}')
        em.op(f'v_add_u32 v{t0}, v{t0}, v{t1}')
        em.op(f'v_and_b32 v{t1}, 15, {L}'); em.op(f'v_mul_u32_u24 v{t1}, 384, v{t1}')
        em.op(f'v_add_u32 v{t0}, v{t0}, v{t1}')
        em.op(f'v_bfe_u32 v{t1}, {L}, 4, 1'); em.op(f'v_lshlrev_b32 v{t1}, 3, v{t1}')
        em.op(f'v_add_u32 v{vRC[t]}, v{t0}, v{t1}')
    em.op(f'v_lshlrev_b32 v{vPA}, 4, {L}')
    em.op(f's_lshl_b32 s{sT0}, s{sW}, 2'); em.op(f's_lshr_b32 s{sT1}, 0x10543210, s{sT0}'); em.op(f's_and_b32 s{sT1}, s{sT1}, 15'); em.op(f's_mul_i32 s{sT1}, s{sT1}, 9216')
    em.op(f'v_add_u32 v{vPW}, s{sT1}, v{vPA}')
    em.op(f'v_add_u32 v{vPA}, {q0 * 1024}, v{vPA}')
    AF = [176, 188]; BF = [200, 220]
    def q_reads(s, step, st):
        ops = []
        for t in range(3):
            ops.append(f'ds_read_b64_tr_b16 {vr(AF[st] + 4*t, 2)}, v{vRB[t]} offset:{(s % 3) * 24576 + step * 12288}')
            ops.append(f'ds_read_b64_tr_b16 {vr(AF[st] + 4*t + 2, 2)}, v{vRB[t]} offset:{(s % 3) * 24576 + step * 12288 + 512}')
        xs = [f'ds_read_b128 {vr(BF[st] + 4*j)}, v{vRA[step]} offset:{(s % 3) * 18432 + j * 2048}' for j in range(nq)]
        return ops[0:2] + xs[0:1] + ops[2:6] + xs[1:]
    def mf(st, first):
        return [mfma(ACC + 4*(j*3+t), AF[st] + 4*t, BF[st] + 4*j, None if first else ACC + 4*(j*3+t)) for j in range(nq) for t in range(3)]
    em.wait_vm_tag('S0', lgkm0=True); em.barrier()
    em.st.stamp('S0')
    em.op(f's_add_u32 s{sTAG}, s{sTAG}, 1')
    for o in q_reads(0, 0, 0): em.op(o)
    em.npre = npre
    nxt = [k_dma_ops(em, 0), k_dma_ops(em, 1), va_ops(em)][npre]
    em.part = npre == 1 and cfg.nu < 6
    if em.part: nxt = k_dma_ops(em, 0)[2 * cfg.nu:] + k_dma_ops(em, 1)[:2 * cfg.nu]
    plan = {15: nxt[0:4], 16: nxt[4:7], 17: nxt[7:10], 18: nxt[10:12]} if qh == 0 else {19: nxt[0:6]}
    late = [] if qh == 0 else nxt[6:12]
    post = []
    if qh == 1 and cfg.qlate: plan = {}; late = []; post = nxt
    cap = Cap()
    for t in range(3): tr_addr(cap, VTMP[t], t, VBASE, 'v')
    vaddr_ops = cap.ops
    inloop_pf = not (typ == 1 and cfg.n0) and not cfg.pfall
    carry = stage_dma_ops(em, 2, qh) + (sum([pf_ops() for i in range(cfg.pfa - 3)], []) if inloop_pf else [])
    if cfg.code_pre and not cfg.cearly: carry.append(f'global_load_dwordx4 {vr(244)}, v{TMP[11]}, s[58:59]')
    for s in range(10):
        extra = []
        extra = plan.get(2 * s, [])
        if cfg.onew and s > 0: em.wait_lgkm0()
        interleave(em, mf(0, s == 0), ([] if cfg.x_qnord and 3 < s <= 6 else q_reads(s, 1, 1), 0, rf), (extra, 0.1, 1), (carry, 0.05, cfg.dhi / 100))
        if s < 9: em.wait_vm_tag(f'S{s+1}', lgkm0=True)
        else: em.wait_lgkm0()
        em.barrier()
        if s in cfg.qst: em.st.stamp(f'B{s}')
        if cfg.qloop and s == 6:
            em.op('s_sub_u32 s87, s87, 1'); em.op('s_cmp_lg_u32 s87, 0'); em.op(f's_cbranch_scc1 L_ql{qh}{typ}')
            em.st.stamp('LBend')
        if cfg.qloop and s == 3:
            em.st.stamp('LB0')
            em.op('s_mov_b32 s87, 16'); em.label(f'L_ql{qh}{typ}')
        rd = []; dm = []; extra = []
        if s < 9:
            if not (cfg.x_qnord and 3 <= s < 6): rd += q_reads(s + 1, 0, 0)
        carry = []
        if s + 3 <= 9:
            dm = stage_dma_ops(em, s + 3, qh); ds_ = cfg.dsplit if not cfg.drole else (6 if qh == cfg.drole - 1 else 0)
            dm, carry = dm[:ds_], dm[ds_:]
            if cfg.x_qnodma and 3 <= s < 6: dm = []; carry = []
        if s == 7: extra = vaddr_ops
        first = (pf_ops() + (pf2_ops() if s + cfg.pfa >= cfg.pf1 and cfg.n0 else []) if inloop_pf and s + cfg.pfa <= 9 and not (cfg.qloop and s >= 3) else []) + (sum([pf2_ops() for i in range(10 - cfg.pfx)], []) if cfg.pf0x == s + 1 and typ == 0 else []) + plan.get(2 * s + 1, [])
        qw = []
        if s == 9:
            for j in range(nq):
                for t in range(3):
                    a = ACC + 4*(j*3+t)
                    qw.append([f'v_cvt_pk_bf16_f32 v{a}, v{a}, v{a+1}', f'v_cvt_pk_bf16_f32 v{a+1}, v{a+2}, v{a+3}', f'ds_write_b64 v{vRC[t]}, {vr(a,2)} offset:{(q0 + j) * 6144}'])
        n = 3 * nq; lag = 3 if cfg.qwi else n
        ins = [(qw[k], (k + lag + 0.5) / n, (k + lag + 0.5) / n) for k in range(n - lag)] if qw else []
        interleave(em, mf(1, False), (dm, cfg.dlo / 100, cfg.dhi / 100), (rd, 0, rf), (extra, 0, 1), (first, 0, 0.04 if dm else 0.9), *ins)
    for g in qw[max(0, n - lag):]:
        for o in g: em.op(o)
    for f in late: f()
    em.op(f'v_and_b32 v{t1}, 15, {L}'); em.op(f'v_mul_u32_u24 v{t1}, 384, v{t1}')
    em.op(f'v_add_u32 v{vRA[0]}, v{t1}, v{vT}')
    em.op(f'v_xor_b32 v{t0}, 64, v{vT}')
    em.op(f'v_add_u32 v{vRA[1]}, v{t1}, v{t0}')
    for t in range(3): em.op(f'v_mov_b32 v{vRB[t]}, v{VTMP[t]}')
    em.wait_lgkm0(); em.barrier()
    for f in post: f()
    for t in range(3): em.op(f'v_add_u32 v{vRC[t]}, 49152, v{vRB[t]}')
    em.op(f's_lshl_b32 s{sT0}, s{sW}, 2'); em.op(f's_lshr_b32 s{sT1}, 0x32105432, s{sT0}'); em.op(f's_and_b32 s{sT1}, s{sT1}, 15'); em.op(f's_mul_i32 s{sT1}, s{sT1}, 9216')
    em.op(f'v_lshlrev_b32 v{vPW2}, 4, {L}')
    em.op(f'v_add_u32 v{vPW2}, s{sT1}, v{vPW2}')
    em.st.stamp('BQ')

def maxops(half):
    ops = []
    for qt in range(9):
        a, b = sreg(half*2, qt), sreg(half*2+1, qt); m = MC + qt
        if half == 0:
            ops += [f'v_max3_f32 v{m}, v{a}, v{a+1}, v{a+2}', f'v_max3_f32 v{m}, v{m}, v{a+3}, v{b}',
                    f'v_max3_f32 v{m}, v{m}, v{b+1}, v{b+2}', f'v_max_f32 v{m}, v{m}, v{b+3}']
        else:
            ops += [f'v_max3_f32 v{m}, v{m}, v{a}, v{a+1}', f'v_max3_f32 v{m}, v{m}, v{a+2}, v{a+3}',
                    f'v_max3_f32 v{m}, v{m}, v{b}, v{b+1}', f'v_max3_f32 v{m}, v{m}, v{b+2}, v{b+3}']
    return ops

def k1_qk(em, qh):
    def qrd(n):
        qt, ks = divmod(n, 6)
        return f'ds_read_b128 {vr(QF + 4*(n % 4))}, v{vRA[ks & 1]} offset:{qt * 6144 + (ks >> 1) * 128}'
    npre = em.npre
    pend = []
    if em.part: k_fetch(em, 0, k_dma_ops(em, 1), cfg.nu, 6)
    if npre == 1 and cfg.g2e:
        k_fetch(em, 1, None); em.wait_lgkm0()
        pend = va_ops(em)
        if qh == 1:
            for f in pend: f()
            pend = []
        npre = 2
    for half in range(2):
        fill = pend; pend = []
        if half >= npre:
            fill = k_dma_ops(em, 1) if half == 0 else va_ops(em)
            if half == 0 and cfg.eager >> qh & 1:
                k_fetch(em, half, fill); fill = []
            else:
                k_fetch(em, half, None)
                em.wait_lgkm0()
                if half == 1 and cfg.eagerv >> qh & 1:
                    for f in fill: f()
                    fill = []
        for n in range(3): em.op(qrd(n))
        em.st.stamp(f'K{half}')
        main = []
        for n in range(54):
            qt, ks = divmod(n, 6)
            if n + 3 < 54: main.append(qrd(n + 3))
            for k in range(2):
                kt = half * 2 + k
                main.append(mfma(sreg(kt, qt), kop(kt, ks), QF + 4*(n % 4), None if ks == 0 else sreg(kt, qt)))
        m1 = maxops(1)
        if half == 0:
            streams = [(fill, cfg.g2lo / 100, cfg.g2hi / 100)]
        else:
            streams = [(maxops(0), 0.02, 0.5)]
            for qt in range(8): streams.append((m1[qt*4:qt*4+4], max(0.5 + 0.05*qt, (qt + 1.5) / 9), max(0.55 + 0.05*qt, (qt + 1.9) / 9)))
            streams.append((fill, cfg.valo / 100, cfg.vahi / 100))
        interleave(em, main, *streams)
    em.st.stamp('QKend')
    for o in maxops(1)[32:]: em.op(o)
    for qt in range(9): em.op(f'ds_max_f32 v{vMS}, v{MC+qt} offset:{qt*64}')
    if qh == 0 and cfg.tsq:
        for o in tail_setup_ops(0): emit(em, o)
    if qh == 0 and cfg.vpq:
        a, b = v_pf_ops(em), v_pf_ops(em, 24576)
        both = [x for p in zip(a, b) for x in p][:2 * cfg.vpq]
        for i, f in enumerate(both):
            f()
            if i >= cfg.vpq_in: em.waitcnt(vm=cfg.vpq_in)
    em.wait_lgkm0(); em.barrier()
    em.st.stamp('BM')

def expops(r, qt, pk):
    a, b = sreg(2*r, qt), sreg(2*r+1, qt); m = MC + qt
    tA, tB = TMP[0], TMP[2]
    sp = SUMP + 2*qt
    rs = [a, a+1, a+2, a+3, b, b+1, b+2, b+3]
    if pk:
        mb = m & ~1; s = m & 1
        ops = [f'v_pk_fma_f32 {vr(x,2)}, {vr(x,2)}, s[{sC}:{sC+1}], {vr(mb,2)} op_sel:[0,0,{s}] op_sel_hi:[1,0,{s}] neg_lo:[0,0,1] neg_hi:[0,0,1]' for x in rs[::2]]
    else:
        ops = [f'v_fma_f32 v{x}, v{x}, s{sC}, -v{m}' for x in rs]
    ops += [f'v_exp_f32 v{x}, v{x}' for x in rs]
    if pk:
        ops += [f'v_pk_add_f32 {vr(tA,2)}, {vr(a,2)}, {vr(a+2,2)}', f'v_pk_add_f32 {vr(tB,2)}, {vr(b,2)}, {vr(b+2,2)}']
        if r == 0: tailo = [f'v_pk_add_f32 {vr(sp,2)}, {vr(tA,2)}, {vr(tB,2)}']
        else: tailo = [f'v_pk_add_f32 {vr(tA,2)}, {vr(tA,2)}, {vr(tB,2)}', f'v_pk_add_f32 {vr(sp,2)}, {vr(sp,2)}, {vr(tA,2)}']
    else:
        assert r == 1
        ops += [f'v_add_f32 v{sp + (i & 1)}, v{sp + (i & 1)}, v{x}' for i, x in enumerate(rs)]
        tailo = []
    ops += [f'v_cvt_pk_bf16_f32 v{a}, v{a}, v{a+1}', f'v_cvt_pk_bf16_f32 v{a+1}, v{a+2}, v{a+3}',
            f'v_cvt_pk_bf16_f32 v{a+2}, v{b}, v{b+1}', f'v_cvt_pk_bf16_f32 v{a+3}, v{b+2}, v{b+3}']
    return ops + tailo

def pwrite(r, qt, qh):
    return f'ds_write_b128 v{vPW if r == 0 else vPW2}, {vr(sreg(2*r, qt))} offset:{qt*1024}'

def sum_ops():
    L = f'v{vLANE}'
    S = SUM; ops = []
    ops += [f'v_add_f32 v{SUM+qt}, v{SUMP+2*qt}, v{SUMP+2*qt+1}' for qt in range(9)]
    ops += [f'v_mov_b32 v{MC}, 0', f'v_mov_b32 v{MC+1}, 0']
    ta = TMP[2]; tb = TMP[3]
    ops += [f'v_bfe_u32 v{ta}, {L}, 4, 1', f'v_lshlrev_b32 v{ta}, 10, v{ta}', f'v_bfe_u32 v{tb}, {L}, 5, 1', f'v_lshlrev_b32 v{tb}, 9, v{tb}',
            f'v_add_u32 v{ta}, v{ta}, v{tb}', f'v_and_b32 v{tb}, 15, {L}', f'v_lshlrev_b32 v{tb}, 5, v{tb}', f'v_add_u32 v{ta}, v{ta}, v{tb}',
            f's_lshl_b32 s{sT0}, s{sW}, 2', f's_add_u32 s{sT0}, s{sT0}, {SUMB}', f'v_add_u32 v{ta}, s{sT0}, v{ta}']
    for a in (0, 2, 4, 6): ops.append(f'v_permlane32_swap_b32 v{S+a}, v{S+a+1}')
    ops.append(f'v_permlane32_swap_b32 v{S+8}, v{MC}')
    for a in (0, 2, 4, 6): ops.append(f'v_add_f32 v{S+a}, v{S+a}, v{S+a+1}')
    ops.append(f'v_add_f32 v{S+8}, v{S+8}, v{MC}')
    for a in (0, 4): ops.append(f'v_permlane16_swap_b32 v{S+a}, v{S+a+2}')
    ops.append(f'v_permlane16_swap_b32 v{S+8}, v{MC+1}')
    for a in (0, 4): ops.append(f'v_add_f32 v{S+a}, v{S+a}, v{S+a+2}')
    ops.append(f'v_add_f32 v{S+8}, v{S+8}, v{MC+1}')
    for a in (0, 4, 8): ops.append(f'ds_write_b32 v{ta}, v{S+a} offset:{a * 512}')
    return ops

def k1_sm0(em, qh):
    n_in = cfg.in0 if qh == 0 else cfg.in1
    for qt in range(9): em.op(f'ds_read_b32 v{MC+qt}, v{vMS} offset:{qt*64}')
    for qt in range(9): em.op(f'v_mul_f32 v{MC+qt}, s{sC}, v{MC+qt}')
    main = []
    for qt in range(9):
        main += expops(0, qt, True)
        if qh == 0: main.append(pwrite(0, qt, qh))
    for qt in range(n_in, 9): main += expops(1, qt, True)
    interleave(em, main, (v_pf_ops(em)[cfg.vpq:cfg.vpq + cfg.vpf], 0.05, cfg.vrf / 100))
    em.st.stamp('exp0')
    if qh == 0: em.wait_vm_tag('VA', lgkm0=True)
    else: em.wait_lgkm0()
    em.barrier()
    em.st.stamp('PV0')

def k1_pv(em, qh):
    nq = 5 if qh == 0 else 4
    q0 = 0 if qh == 0 else 5
    L = f'v{vLANE}'
    rf = cfg.rfrac / 100
    PBF = PBF0 if qh == 0 else PBF1
    INV = INV0
    PAF = PAF0 if qh == 0 else PAF1
    def pv_reads(s, step, st):
        ops = []
        slot = vslot(s)
        base = vRB if slot < 2 else vRC
        off = (slot % 2) * 24576 + step * 12288
        for t in range(3):
            ops.append(f'ds_read_b64_tr_b16 {vr(PAF[st][t], 2)}, v{base[t]} offset:{off}')
            ops.append(f'ds_read_b64_tr_b16 {vr(PAF[st][t] + 2, 2)}, v{base[t]} offset:{off + 6144}')
        pa, po = vPA, ((2 * s + step) % 6) * 9216
        xs = [f'ds_read_b128 {vr(PBF[st][j])}, v{pa} offset:{po + j * 1024}' for j in range(nq)]
        return ops[0:2] + xs[0:1] + ops[2:6] + xs[1:]
    OACC = OACC0 if qh == 0 else OACC1
    def mf(st, first):
        return [mfma(OACC[j*3+t], PAF[st][t], PBF[st][j], None if first else OACC[j*3+t]) for j in range(nq) for t in range(3)]
    def inv_ops():
        ta = TMP[2]; ops = []
        ops += [f'v_and_b32 v{ta}, 15, {L}', f'v_lshlrev_b32 v{ta}, 5, v{ta}', f'v_add_u32 v{ta}, {SUMB + q0 * 512}, v{ta}']
        for j in range(nq):
            ops += [f'ds_read_b128 {vr(16 + 8*j)}, v{ta} offset:{j * 512}', f'ds_read_b128 {vr(20 + 8*j)}, v{ta} offset:{j * 512 + 16}']
        for j in range(nq):
            r = 16 + 8*j
            ops += [f'v_add_f32 v{r}, v{r}, v{r+1}', f'v_add_f32 v{r+2}, v{r+2}, v{r+3}', f'v_add_f32 v{r+4}, v{r+4}, v{r+5}', f'v_add_f32 v{r+6}, v{r+6}, v{r+7}',
                    f'v_add_f32 v{r}, v{r}, v{r+2}', f'v_add_f32 v{r+4}, v{r+4}, v{r+6}', f'v_add_f32 v{r}, v{r}, v{r+4}', f'v_rcp_f32 v{INV+2*j}, v{r}']
        return ops
    n_in = cfg.in0 if qh == 0 else cfg.in1
    assert n_in <= 3
    hs = [0, 3, 4] if qh == 0 else [7, 8, 4]
    INVO = inv_ops()
    TS = [] if (qh == 0 and cfg.tsq) else tail_setup_ops(qh)
    def ex(h):
        o = []
        if h in hs[:n_in] or (n_in == 2 and qh == 0 and False): o += expops(1, hs.index(h), False)
        if qh == 0 and h in (5, 6): o += [pwrite(1, qt, qh) for qt in (range(4, 9) if h == 5 else range(4))]
        if qh == 1 and h in (1, 2): o += [pwrite(0, qt, qh) for qt in (range(5) if h == 1 else range(5, 9))]
        if qh == 1 and h in (9, 10): o += [pwrite(1, qt, qh) for qt in (range(4, 9) if h == 9 else range(4))]
        if h == (7 if qh == 0 else 11): o += sum_ops()
        if h == 13: o += INVO[:len(INVO) // 2]
        if h == 14: o += INVO[len(INVO) // 2:]
        if TS and h == 3 and qh == 1: o += TS
        if TS and h in (11, 12) and qh == 0: o += TS[:len(TS)//2] if h == 11 else TS[len(TS)//2:]
        return o
    def wopre_ops(i):
        ta = TMP[2 + (i & 1)]
        ops = [f's_mul_i32 s{sT3}, s{sX}, 983040', f's_mul_i32 s{sT4}, s{sLOC}, 30720', f's_add_u32 s{sT3}, s{sT3}, s{sT4}', f's_add_u32 s{sT3}, s{sT3}, {i * 8192}',
               f'v_lshlrev_b32 v{ta}, 4, v0', f'v_add_u32 v{ta}, s{sT3}, v{ta}', f'v_min_u32 v{ta}, {7864320 - 16}, v{ta}',
               f'global_load_dwordx4 {vr(52)}, v{ta}, s[14:15]']
        if cfg.wo0:
            def f():
                _lab[0] += 1
                em.op(f's_cmp_eq_u32 s{sTYPE}, 0')
                em.op(f's_cbranch_scc0 L_wp{_lab[0]}')
                em.begin_opt()
                for o in ops[:-2] + [ops[-1], f'v_add_u32 v{ta}, 122880, v{ta}'] + ops[-2:]: em.op(o)
                em.end_opt()
                em.label(f'L_wp{_lab[0]}')
            return [f]
        return ops
    wsl = {8: 0, 9: 1, 10: 2, 12: 3}
    def epi(pk):
        out = []
        def mul(a, m):
            if pk: return [f'v_pk_mul_f32 {vr(a,2)}, {vr(a,2)}, {vr(m,2)} op_sel_hi:[1,0]', f'v_pk_mul_f32 {vr(a+2,2)}, {vr(a+2,2)}, {vr(m,2)} op_sel_hi:[1,0]']
            return [f'v_mul_f32 v{a+d}, v{a+d}, v{m}' for d in range(4)]
        for j in range(nq):
            m = INV + 2 * j
            a, b, c = OACC[j*3], OACC[j*3+1], OACC[j*3+2]
            if cfg.opair:
                out.append((j*3+1, mul(a, m) + mul(b, m) + [f'v_cvt_pk_bf16_f32 v{a}, v{a}, v{a+1}', f'v_cvt_pk_bf16_f32 v{a+1}, v{a+2}, v{a+3}',
                            f'v_cvt_pk_bf16_f32 v{a+2}, v{b}, v{b+1}', f'v_cvt_pk_bf16_f32 v{a+3}, v{b+2}, v{b+3}', f'ds_write_b128 v{vOW[0]}, {vr(a)} offset:{j * 1024}']
                            + ([f's_mov_b32 s{sT0}, {j * 1024}', (f'buffer_store_dwordx4 {vr(a)}, v{vOW[1]}, {sr(SO,4)}, s{sT0} offen sc1', 'CO0')] if cfg.direct else [])))
            for t in ((2,) if cfg.opair else (0, 1, 2)):
                x = OACC[j*3+t]
                out.append((j*3+t, mul(x, m) + [f'v_cvt_pk_bf16_f32 v{x}, v{x}, v{x+1}', f'v_cvt_pk_bf16_f32 v{x+1}, v{x+2}, v{x+3}', f'ds_write_b64 v{vOW[t]}, {vr(x,2)} offset:{j * 1024}']))
        return out
    for o in pv_reads(0, 0, 0): em.op(o)
    n = 3 * nq; lag = 4 if cfg.qwi else n
    for s in range(8):
        w = wopre_ops(wsl[2*s]) if cfg.wopre and 2*s in wsl else []
        if cfg.onew and s > 0: em.wait_lgkm0()
        interleave(em, mf(0, s == 0), (pv_reads(s, 1, 1), 0, rf), (ex(2*s), 0, cfg.efrac / 100), (w, 0.4, 0.41))
        if s == 1: em.wait_vm_tag('VA', lgkm0=True)
        elif s < 7: em.wait_vm_tag(f'V{s+1}', lgkm0=True)
        else: em.wait_lgkm0()
        em.barrier()
        em.st.stamp(f'PB{s}')
        rd = pv_reads(s + 1, 0, 0) if s < 7 else []
        dm = v_dma_ops(em, s + NV) if s + NV <= 7 else []
        if s == 7 and qh == 0: dm = tail_dma(em, 0) + tail_dma(em, 1)
        w = wopre_ops(wsl[2*s+1]) if cfg.wopre and 2*s+1 in wsl else []
        ins = []
        if s == 7:
            ins = [(g, (p + lag + 0.5) / n, (p + lag + 0.5) / n) for p, g in epi(False) if p + lag < n]
        interleave(em, mf(1, False), (dm, 0, 0.4 if s < 7 else 1), (rd, 0, rf + 0.1), (ex(2*s+1), 0, 1), (w, 0.4, 0.41), *ins)
    late = tail_dma(em, 2) if qh == 0 else []
    main = sum([g for p, g in epi(True) if p + lag >= n], [])
    interleave(em, main, (late, 0, 1))
    em.wait_vm_tag('T0', lgkm0=True); em.barrier()
    em.st.stamp('BO')
    em.op(f's_bitcmp1_b32 s{sW}, 1')
    em.op(f's_cbranch_scc1 L_tail{2 * qh + 1}')
    st = em.save()
    tail(em, 2 * qh)
    em.label(f'L_tail{2 * qh + 1}')
    em.restore(st)
    tail(em, 2 * qh + 1)

vOFFS = [2, 3, 4, 5, 7]; vA2 = [248, 249, 250]; vB2 = 251
SD, SP, SPR, SOUT = SX, SWQ, SK, 84
sT3, sT4 = 56, 59
sCH = 36 + 1
sCH = 81
sN0 = sNH
def tail_setup_ops(qh):
    c = Cap(); L = f'v{vLANE}'
    t0, t1, t2, t3 = 252, 253, 244, 245
    if qh == 0:
        c.op(f's_mul_i32 s{sT0}, s{sX}, 983040'); c.op(f's_mul_i32 s{sT1}, s{sJ}, 320'); c.op(f's_add_u32 s{sT0}, s{sT0}, s{sT1}')
        srd(c, SD, 14, 15, f's{sT0}', 7864320)
        c.op(f's_sub_u32 s{SD+2}, s{SD+2}, s{sT0}')
        c.op(f's_mov_b32 s{sSTR}, 81920')
        hs = 245760
        c.op(f's_lshl_b32 s{sT2}, s{sW}, 4')
        c.op(f's_mov_b32 s{sT1}, 52429')
        for j in range(5):
            c.op(f'v_add_u32 v{t0}, {j * 64}, {L}')
            c.op(f'v_mul_lo_u32 v{t1}, v{t0}, s{sT1}')
            c.op(f'v_lshrrev_b32 v{t1}, 20, v{t1}')
            c.op(f'v_mul_u32_u24 v{t2}, 20, v{t1}')
            c.op(f'v_sub_u32 v{t2}, v{t0}, v{t2}')
            c.op(f'v_bfe_u32 v{t3}, v{t1}, 2, 1')
            c.op(f'v_lshlrev_b32 v{t3}, 1, v{t3}')
            c.op(f'v_xor_b32 v{t2}, v{t2}, v{t3}')
            c.op(f'v_add_u32 v{t1}, s{sT2}, v{t1}')
            c.op(f'v_mul_u32_u24 v{t1}, 1280, v{t1}')
            c.op(f'v_lshl_add_u32 v{vOFFS[j]}, v{t2}, 4, v{t1}')
        c.op(f's_and_b32 s{sN0}, s{sW}, 1'); c.op(f's_mul_i32 s{sN0}, s{sN0}, 3')
        c.op(f's_bfe_u32 s{sQ0}, s{sW}, 0x10001'); c.op(f's_mul_i32 s{sQ0}, s{sQ0}, 5')
    else:
        c.op(f's_lshl_b32 s{sT0}, s{sB}, 5'); c.op(f's_lshl_b32 s{sT1}, s{sX}, 2'); c.op(f's_add_u32 s{sT0}, s{sT0}, s{sT1}')
        c.op(f's_mul_i32 s{sT0}, s{sT0}, {O_HEAD}')
        srd(c, SD, 12, 13, f's{sT0}', 4 * O_HEAD)
        c.op(f's_mov_b32 s{sSTR}, 18432')
        hs = O_HEAD
        c.op(f's_mul_i32 s{sT2}, s{sDG}, 5120')
        if cfg.nopad:
            c.op(f's_cmp_eq_u32 s{sDG}, 3'); c.op(f's_cselect_b32 s{sT2}, 14336, s{sT2}')
        c.op(f'v_lshlrev_b32 v{t0}, 4, {L}')
        c.op(f'v_add_u32 v{t0}, s{sT2}, v{t0}')
        for j in range(5): c.op(f'v_add_u32 v{vOFFS[j]}, {j * 1024}, v{t0}')
        c.op(f's_and_b32 s{sN0}, s{sW}, 1'); c.op(f's_lshl_b32 s{sN0}, s{sN0}, 1'); c.op(f's_add_u32 s{sN0}, s{sN0}, 6')
        c.op(f's_bfe_u32 s{sQ0}, s{sW}, 0x10001'); c.op(f's_xor_b32 s{sQ0}, s{sQ0}, 1'); c.op(f's_mul_i32 s{sQ0}, s{sQ0}, 5')
    if cfg.direct:
        if qh == 0:
            c.op(f's_lshr_b32 s{sT0}, s{sW}, 1'); c.op(f's_mul_i32 s{sT0}, s{sT0}, 40960')
            c.op(f's_mov_b32 s{sCH}, s{sT0}'); c.op(f's_add_u32 s{sCH+1}, s{sT0}, {96 * 1280}')
            c.op(f's_lshl_b32 s{sT0}, s{sT0}, 1'); c.op(f's_add_u32 s{sCH+2}, s{sT0}, {32 * 1280}')
        else:
            for i in range(3): c.op(f's_mov_b32 s{sCH+i}, {i * 18432}')
    c.op(f's_mul_i32 s{sM0T}, s{sDG}, 5120')
    if qh: c.op(f's_add_u32 s{sM0T}, s{sT2 if cfg.nopad else sM0T}, 61440')
    for i in range(4):
        c.op(f's_add_u32 s{sT0}, s{sJ}, {i}'); c.op(f's_and_b32 s{sT0}, s{sT0}, 3'); c.op(f's_mul_i32 s{sHB+i}, s{sT0}, {hs}')
    c.op(f'v_lshrrev_b32 v{t0}, 2, {L}')
    c.op(f'v_mul_u32_u24 v{t0}, 320, v{t0}')
    c.op(f'v_and_b32 v{t1}, 3, {L}')
    c.op(f'v_lshl_add_u32 v{t0}, v{t1}, 3, v{t0}')
    c.op(f'v_bfe_u32 v{t1}, {L}, 4, 1')
    for t in range(3 if qh == 0 else 2):
        c.op(f's_add_u32 s{sT1}, s{sN0}, {t}')
        c.op(f'v_xor_b32 v{t2}, s{sT1}, v{t1}')
        c.op(f'v_lshl_add_u32 v{vA2[t]}, v{t2}, 5, v{t0}')
    c.op(f's_lshl_b32 s{sT0}, s{sQ0}, 10')
    c.op(f's_add_u32 s{sT0}, s{sT0}, 61440')
    c.op(f'v_lshl_add_u32 v{vB2}, {L}, 4, s{sT0}')
    for t in range(3):
        if cfg.opair:
            if t == 1: continue
            tile_m(c, t)
        else:
            c.op(f's_mul_i32 s{sT0}, s{sDG}, 3'); c.op(f's_add_u32 s{sT0}, s{sT0}, {t}')
        if cfg.direct:
            c.op(f's_lshl_b32 s{sT1}, s{sT0}, 1'); c.op(f's_and_b32 s{sT1}, s{sT1}, 0x1c'); c.op(f's_lshr_b32 s{sT1}, 0x352140, s{sT1}'); c.op(f's_and_b32 s{sT1}, s{sT1}, 15')
            if t == 0:
                c.op(f's_mul_i32 s{sT2}, s{sT1}, 9216')
                c.op(f'v_add_u32 v{vOW[1]}, s{sT2}, v{vPA}')
            c.op(f's_and_b32 s{sT0}, s{sT0}, 1'); c.op(f's_lshl_b32 s{sT1}, s{sT1}, 1'); c.op(f's_add_u32 s{sT0}, s{sT0}, s{sT1}')
        c.op(f's_lshr_b32 s{sT1}, s{sT0}, 2'); c.op(f's_mul_i32 s{sT1}, s{sT1}, 20480')
        c.op(f's_bfe_u32 s{sT2}, s{sT0}, 0x10001'); c.op(f's_mul_i32 s{sT2}, s{sT2}, 9216'); c.op(f's_add_u32 s{sT1}, s{sT1}, s{sT2}')
        c.op(f's_and_b32 s{sT0}, s{sT0}, 1'); c.op(f's_lshl_b32 s{sT0}, s{sT0}, 3')
        c.op(f's_add_u32 s{sT0}, s{sT0}, s{sT1}'); c.op(f's_add_u32 s{sT0}, s{sT0}, 61440')
        c.op(f'v_add_u32 v{vOW[t]}, s{sT0}, v{vPA}')
    c.op(f's_lshl_b32 s{sT0}, s{sB}, 3'); c.op(f's_add_u32 s{sT0}, s{sT0}, s{sX}'); c.op(f's_lshl_b32 s{sT0}, s{sT0}, 7'); c.op(f's_add_u32 s{sT0}, s{sT0}, {FLAG_OFF + 4096}')
    c.op(f's_add_u32 s{sF1}, s12, s{sT0}'); c.op(f's_addc_u32 s{sF1+1}, s13, 0')
    c.op(f's_lshl_b32 s{sT0}, s{sLOC}, 7'); c.op(f's_add_u32 s{sT0}, s{sT0}, {FLAG_OFF + 16384}')
    c.op(f's_add_u32 s{sF2}, s12, s{sT0}'); c.op(f's_addc_u32 s{sF2+1}, s13, 0')
    c.op(f's_mul_i32 s{sT0}, s{sLOC}, {8 * PART2}'); c.op(f's_add_u32 s{sT0}, s{sT0}, {WS_PART}')
    srd(c, SPR, 12, 13, f's{sT0}', 8 * PART2)
    c.op(f's_mul_i32 s{sT1}, s{sX}, {PART2}'); c.op(f's_add_u32 s{sT0}, s{sT0}, s{sT1}')
    srd(c, SP, 12, 13, f's{sT0}', PART2)
    srd(c, SOUT, 54, 55, None, 1474560)
    out = []; i = 0; ops = c.ops
    while i < len(ops):
        if i + 1 < len(ops) and (ops[i + 1].startswith('s_addc') or ops[i + 1].startswith('s_cselect')):
            a, b = ops[i], ops[i + 1]
            out.append(lambda a=a, b=b: (EM[0].op(a), EM[0].op(b))); i += 2
        else:
            out.append(ops[i]); i += 1
    return out
EM = [None]

def tail_dma(em, s, orole=False):
    ops = []
    sc = ' sc1' if (orole and cfg.sc_ol) else ''
    for j in range(4 if (cfg.nopad and orole and em.tv == 3) else 5):
        def f(j=j):
            em.op(f's_add_u32 m0, s{sM0T}, {(s % 3) * 20480 + j * 1024}')
            if j == 0:
                if cfg.direct:
                    peer, ch = (0, s) if s < 3 else (1 + (s - 3) % 3, (s - 3) // 3)
                    em.op(f's_add_u32 s{sOFF}, s{sCH + ch}, s{sHB + peer}')
                elif cfg.chunk and s >= 3:
                    ch = (s - 3) // 3
                    if ch == 0: em.op(f's_mov_b32 s{sOFF}, s{sHB + 1 + (s - 3) % 3}')
                    else:
                        em.op(f's_lshl_b32 s{sOFF}, s{sSTR}, {ch - 1}')
                        em.op(f's_add_u32 s{sOFF}, s{sOFF}, s{sHB + 1 + (s - 3) % 3}')
                elif s % 3 == 0: em.op(f's_mov_b32 s{sOFF}, s{sHB + s // 3}')
                else: em.op(f's_add_u32 s{sOFF}, s{sOFF}, s{sSTR}')
            em.op(f'buffer_load_dwordx4 v{vOFFS[j]}, {sr(SD,4)}, s{sOFF} offen{sc} lds', tag=f'T{s}')
        ops.append(f)
    return ops

def flag_store(em, base, idx_s, lab, wave, off=0):
    t0, t1 = 60, 61
    em.op(f's_cmp_eq_u32 s{sW}, {wave}')
    em.op(f's_cbranch_scc0 {lab}')
    em.begin_opt()
    em.op(f's_lshl_b32 s{sT0}, s{idx_s}, 2')
    em.op(f'v_mov_b32 v{t0}, s{sT0}')
    em.op(f'v_mov_b32 v{t1}, s{sTAG}')
    em.op('s_mov_b64 exec, 1')
    em.op(f'global_store_dword v{t0}, v{t1}, s[{base}:{base+1}] offset:{off} sc1')
    em.op('s_mov_b64 exec, -1')
    em.end_opt()
    em.label(lab)

vPL0, vPL1 = 62, 63
def poll(em, base, mask, lab, off=0, keep=False):
    em.op(f'v_and_b32 v{vPL0}, {mask}, v{vLANE}')
    em.op(f'v_lshlrev_b32 v{vPL0}, 2, v{vPL0}')
    em.op(f's_mov_b32 s{sCNT}, 0x20000')
    if not keep: em.wait_vm0()
    em.label(lab)
    em.op(f'global_load_dword v{vPL1}, v{vPL0}, s[{base}:{base+1}] offset:{off} sc1')
    em.op(f's_sub_u32 s{sCNT}, s{sCNT}, 1')
    em.op(f's_cbranch_scc1 {lab}_done')
    em.wait_vm0()
    em.op(f'v_cmp_ne_u32 vcc, s{sTAG}, v{vPL1}')
    em.op('s_nop 4')
    em.op(f's_cbranch_vccz {lab}_done')
    em.op('s_sleep 1')
    em.op(f's_branch {lab}')
    em.label(f'{lab}_done')
    em.wait_vm0()

def tail(em, tv):
    nt, nq = [(3, 5), (3, 4), (2, 4), (2, 5)][tv]
    orole = tv >= 2
    em.tv = tv
    L = f'v{vLANE}'
    rf = cfg.rfrac / 100
    sc = ' sc1' if cfg.sc else ''
    ACC2 = 116; AF = [76, 88]; BF = [16, 36]; CO = 176
    t0, t1, t2, t3 = 56, 57, 58, 59
    sDONE = sT3
    em.op(f'v_lshlrev_b32 v{t0}, 4, v0')
    em.op(f'v_add_u32 v{t1}, 61440, v{t0}')
    npc = 3 if tv == 0 else 2
    k = 0; sts = []
    for c in ((2,) if cfg.direct else range(3)):
        for i in range(npc):
            em.op(f'ds_read_b128 {vr(CO + 4*k)}, v{t1} offset:{c * 20480 + i * 8192}')
            sts.append((CO + 4*k, c * 18432 + i * 8192)); k += 1
    def reads(s, step, st_):
        ops = []
        for t in range(nt):
            ops.append(f'ds_read_b64_tr_b16 {vr(AF[st_] + 4*t, 2)}, v{vA2[t]} offset:{(s % 3) * 20480 + step * 10240}')
            ops.append(f'ds_read_b64_tr_b16 {vr(AF[st_] + 4*t + 2, 2)}, v{vA2[t]} offset:{(s % 3) * 20480 + step * 10240 + 5120}')
        xs = [f'ds_read_b128 {vr(BF[st_] + 4*j)}, v{vB2} offset:{(s % 3) * 20480 + step * 9216 + j * 1024}' for j in range(nq)]
        return ops[0:2] + xs[0:1] + ops[2:] + xs[1:]
    def acc(t, j): return ACC2 + 4 * (j * nt + t)
    def mf(st_, first):
        return [mfma(acc(t, j), AF[st_] + 4*t, BF[st_] + 4*j, None if first else acc(t, j)) for j in range(nq) for t in range(nt)]
    for r, off in sts:
        em.op(f's_mov_b32 s{sT0}, {off}')
        em.op(f'buffer_store_dwordx4 {vr(r)}, v{t0}, {sr(SO,4)}, s{sT0} offen' + ['', ' sc1', ' nt', ' sc0'][cfg.sc_o], tag='CO0' if off < 18432 else 'CO1')
    for o in reads(0, 0, 0): em.op(o)
    em.op(f'v_lshlrev_b32 v{t1}, 4, {L}')
    em.op(f's_and_b32 s{sT1}, s{sW}, 1')
    em.op(f's_add_u32 s{sT2}, s{sT1}, {2 if orole else 0}'); em.op(f's_mul_i32 s{sT2}, s{sT2}, 9'); em.op(f's_add_u32 s{sT2}, s{sT2}, s{sQ0}'); em.op(f's_lshl_b32 s{sT2}, s{sT2}, 10')
    em.op(f'v_add_u32 v{t2}, s{sT2}, v{t1}')
    em.op(f's_mul_i32 s{sT1}, s{sT1}, 5120'); em.op(f's_add_u32 s{sT1}, s{sT1}, {(36 + (3 if tv == 1 else 0)) * 1024}')
    em.op(f'v_add_u32 v{t3}, s{sT1}, v{t1}')
    def pack(a, b):
        o = [f'v_cvt_pk_bf16_f32 v{a}, v{a}, v{a+1}', f'v_cvt_pk_bf16_f32 v{a+1}, v{a+2}, v{a+3}']
        if b is not None: o += [f'v_cvt_pk_bf16_f32 v{a+2}, v{b}, v{b+1}', f'v_cvt_pk_bf16_f32 v{a+3}, v{b+2}, v{b+3}']
        return o
    def st(a, va, off):
        def f():
            em.op(f's_mov_b32 s{sT0}, {off}')
            em.op(f'buffer_store_dwordx4 {vr(a)}, v{va}, {sr(SP,4)}, s{sT0} offen{sc}')
        return f
    carry = []
    for s in range(12):
        if s == 1 and orole and cfg.epoll:
            em.op(f'global_load_dword v{vPL1}, v{vPL0}, s[{sF1}:{sF1+1}] sc1')
        if cfg.onew and s > 0: em.wait_lgkm0()
        interleave(em, mf(0, s == 0), (reads(s, 1, 1), 0, rf), (carry, 0.05, 0.95))
        if s == 1 and orole and cfg.epoll:
            em.op(f'v_cmp_ne_u32 vcc, s{sTAG}, v{vPL1}')
            em.op('s_nop 4')
            em.op(f's_cbranch_vccnz L_np{tv}')
            em.begin_opt()
            for f in tail_dma(em, 3, True): f()
            em.op(f's_mov_b32 s{sDONE}, 1')
            em.end_opt()
            em.label(f'L_np{tv}')
        carry = []
        if s < 11:
            if s == 0 and cfg.chunk: em.wait_vm_tag('CO0', lgkm0=True)
            elif s == 0: em.wait_vm0(); em.wait_lgkm0()
            elif s == cfg.chunk and cfg.chunk:
                em.wait_vm_tag('CO1'); em.wait_vm_tag(f'T{s+1}', lgkm0=True)
            else: em.wait_vm_tag(f'T{s+1}', lgkm0=True)
            em.barrier()
            em.st.stamp(f'T{s}')
        if s == 0 and tv == 2: flag_store(em, sF1, sJ, 'L_f1', 4)
        if cfg.chunk and s == cfg.chunk and tv == 3: flag_store(em, sF1, sJ, 'L_f1b', 6, 16)
        if cfg.chunk and s == (5 if cfg.direct else 2) and orole: em.op(f'global_load_dword v{vPL1}, v{vPL0}, s[{sF1}:{sF1+1}] offset:16 sc1')
        if cfg.chunk and s == (6 if cfg.direct else 3) and orole:
            em.op(f'v_cmp_ne_u32 vcc, s{sTAG}, v{vPL1}')
            em.op('s_nop 4')
            em.op(f's_cbranch_vccz L_p1c_{tv}')
            keep = em.save()[2]
            em.begin_opt()
            poll(em, sF1, 3, f'L_p1b_{tv}', 16, keep=True)
            em.end_opt()
            em.vm = keep
            em.label(f'L_p1c_{tv}')
        fill = []; dm = []
        if s < 11: fill += reads(s + 1, 0, 0)
        if s == 0 and orole and cfg.epoll:
            em.op(f's_mov_b32 s{sDONE}, 0')
            em.op(f'v_and_b32 v{vPL0}, 3, {L}'); em.op(f'v_lshlrev_b32 v{vPL0}, 2, v{vPL0}')
        if s + 3 <= 11:
            if not orole or s >= 2:
                dm = tail_dma(em, s + 3, orole); dm, carry = dm[:3], dm[3:]
            elif s == 1:
                if cfg.epoll:
                    em.op(f's_cmp_eq_u32 s{sDONE}, 1')
                    em.op(f's_cbranch_scc1 L_ep{tv}')
                    vm_before = em.save()[2]
                    em.begin_opt()
                poll(em, sF1, 3, f'L_p1_{tv}')
                for f in tail_dma(em, 3, True): f()
                if cfg.epoll:
                    em.end_opt()
                    em.label(f'L_ep{tv}')
                dm = tail_dma(em, 4, True)
        ins = []
        n = nt * nq
        if s == 11:
            groups = []
            for j in range(nq):
                groups.append((j * nt + 1, pack(acc(0, j), acc(1, j)) + [st(acc(0, j), t2, j * 1024)]))
                if nt == 3 and (j % 2 == 1 or j == nq - 1):
                    j0 = j - (j % 2)
                    groups.append((j * nt + 2, pack(acc(2, j0), acc(2, j) if j != j0 else None) + [st(acc(2, j0), t3, (j0 // 2) * 1024)]))
            lag = 4
            ins = [(g, (p + lag + 0.5) / n, (p + lag + 0.5) / n) for p, g in groups if p + lag < n]
            restg = [g for p, g in groups if p + lag >= n]
        interleave(em, mf(1, False), (dm, 0.05, 0.95), (fill, 0, rf), *ins)
    for g in restg:
        for o in g: emit(em, o)
    em.st.stamp('TP')
    sU, sDL = sT3, sT4
    if tv < 3:
        em.op(f's_lshl_b32 s{sU}, s{sW}, 3'); em.op(f's_add_u32 s{sU}, s{sU}, s{sX}')
        em.op(f's_lshl_b32 s{sT0}, s{sU}, 10')
        em.op(f'v_add_u32 v{t2}, s{sT0}, v{t1}')
        em.op(f's_mul_i32 s{sT0}, s{sU}, 57'); em.op(f's_lshr_b32 s{sT0}, s{sT0}, 9')
        em.op(f's_mul_i32 s{sT1}, s{sT0}, 9'); em.op(f's_sub_u32 s{sT1}, s{sU}, s{sT1}')
        em.op(f's_lshl_b32 s{sT0}, s{sT0}, 2'); em.op(f's_lshr_b32 s{sT0}, 0x8630, s{sT0}'); em.op(f's_and_b32 s{sT0}, s{sT0}, 15')
        em.op(f's_mov_b32 s{sDL}, 32')
        em.op(f's_cmp_lt_u32 s{sU}, 36')
        em.op(f's_cbranch_scc1 L_dec{tv}')
        em.begin_opt()
        em.op(f's_cmp_ge_u32 s{sU}, 41')
        em.op(f's_cselect_b32 s{sT0}, 5, 2')
        em.op(f's_cselect_b32 s{sT1}, 41, 36')
        em.op(f's_sub_u32 s{sT1}, s{sU}, s{sT1}')
        em.op(f's_cmp_eq_u32 s{sT1}, 2')
        em.op(f's_mov_b32 s{sDL}, 20480')
        em.op(f's_cselect_b32 s{sDL}, 0x40000000, s{sDL}')
        em.op(f's_lshl_b32 s{sT1}, s{sT1}, 2'); em.op(f's_lshr_b32 s{sT1}, 0x75420, s{sT1}'); em.op(f's_and_b32 s{sT1}, s{sT1}, 15')
        em.end_opt()
        em.label(f'L_dec{tv}')
        em.op(f's_lshl_b32 s{sT1}, s{sT1}, 4'); em.op(f's_mul_i32 s{sT2}, s{sB}, 144'); em.op(f's_add_u32 s{sT1}, s{sT1}, s{sT2}'); em.op(f's_mul_i32 s{sT1}, s{sT1}, 1280')
        em.op(f's_lshl_b32 s{sT0}, s{sT0}, 5'); em.op(f's_add_u32 s{sT1}, s{sT1}, s{sT0}')
        em.op(f's_mul_i32 s{sT0}, s{sJ}, 320'); em.op(f's_add_u32 s{sT1}, s{sT1}, s{sT0}')
        em.op(f'v_and_b32 v{t3}, 15, {L}'); em.op(f'v_mul_u32_u24 v{t3}, 1280, v{t3}')
        em.op(f'v_lshrrev_b32 v{t0}, 4, {L}'); em.op(f'v_lshl_add_u32 v{t3}, v{t0}, 3, v{t3}')
        em.op(f'v_add_u32 v{t3}, s{sT1}, v{t3}')
    em.wait_vm0(); em.barrier()
    em.st.stamp('TW')
    if tv == 3:
        flag_store(em, sF2, sX, 'L_f2', 7)
    else:
        if tv == 2:
            em.op(f's_cmp_ge_u32 s{sU}, 46')
            em.op(f's_cbranch_scc1 L_fin2')
        poll(em, sF2, 7, f'L_p2_{tv}')
        em.st.stamp('TF')
        for x in range(8):
            em.op(f's_mov_b32 s{sT0}, {x * PART2}')
            em.op(f'buffer_load_dwordx4 {vr(76 + 4*x)}, v{t2}, {sr(SPR,4)}, s{sT0} offen{sc}')
        if tv == 0:
            em.op(f's_or_b32 s{sT0}, s{sH}, s{sW}')
            em.op(f's_cmp_eq_u32 s{sT0}, 0')
            em.op('s_cbranch_scc0 L_nw')
            em.begin_opt()
            em.op(f's_lshl_b32 s{sT0}, s{sB}, 8'); em.op(f's_add_u32 s{sT0}, s{sT0}, {FLAG_OFF}')
            em.op(f'v_mov_b32 v60, s{sT0}'); em.op(f'v_mov_b32 v61, s{sTAG}')
            em.op('s_mov_b64 exec, 1')
            em.op('global_store_dword v60, v61, s[12:13]' + (' sc1' if cfg.osc in (1, 3) else ''))
            em.op('s_mov_b64 exec, -1')
            em.end_opt()
            em.label('L_nw')
        A = 108
        for x in range(8):
            for d in range(4):
                r = 76 + 4*x + d
                if x == 0:
                    em.op(f'v_lshlrev_b32 v{A+2*d}, 16, v{r}'); em.op(f'v_and_b32 v{A+2*d+1}, 0xffff0000, v{r}')
                else:
                    tp = A + 8 + 2 * (d & 1)
                    em.op(f'v_lshlrev_b32 v{tp}, 16, v{r}'); em.op(f'v_and_b32 v{tp+1}, 0xffff0000, v{r}')
                    em.op(f'v_pk_add_f32 {vr(A+2*d,2)}, {vr(A+2*d,2)}, {vr(tp,2)}')
        for d in range(4): em.op(f'v_cvt_pk_bf16_f32 v{A+d}, v{A+2*d}, v{A+2*d+1}')
        em.op(f'buffer_store_dwordx2 {vr(A,2)}, v{t3}, {sr(SOUT,4)}, 0 offen' + ['', ' sc1', ' nt', ' sc0 sc1'][cfg.osc])
        em.op(f'buffer_store_dwordx2 {vr(A+2,2)}, v{t3}, {sr(SOUT,4)}, s{sDL} offen' + ['', ' sc1', ' nt', ' sc0 sc1'][cfg.osc])
        if tv == 2: em.label('L_fin2')
    if cfg.diag: em.wait_vm0()
    em.st.flush(12, 0, sW, 244)
    em.op('s_endpgm')

def kernel_header(name):
    return f'.globl {name}\n.p2align 8\n.type {name},@function\n{name}:\n'
def kernel_desc(name, vgpr, sgpr=102):
    return f'''.amdhsa_kernel {name}
  .amdhsa_next_free_vgpr {vgpr}
  .amdhsa_next_free_sgpr {sgpr}
  .amdhsa_accum_offset {(vgpr + 3) // 4 * 4}
  .amdhsa_group_segment_fixed_size 0
  .amdhsa_kernarg_size 64
  .amdhsa_user_sgpr_count 2
  .amdhsa_user_sgpr_kernarg_segment_ptr 1
  .amdhsa_system_sgpr_workgroup_id_x 1
.end_amdhsa_kernel
'''

def gen_k1():
    em = Em(); EM[0] = em
    k1_prologue(em)
    st0 = em.save()
    em.label('k1_body_start')
    for qh in range(2):
        sts = []
        for typ in ((1, 0) if cfg.n0 else (0,)):
            if qh or typ == 0 and cfg.n0: em.label(f'L_qp{qh}{typ}')
            em.restore(st0)
            em.typ = typ
            k1_qproj(em, qh, typ)
            k1_qk(em, qh)
            sts.append(em.save())
            if typ == 1: em.op(f's_branch L_sm{qh}')
        if len(sts) == 2:
            t = [[e[0] for e in s[2]] for s in sts]
            lo, hi = sorted(range(2), key=lambda i: len(t[i]))
            assert t[hi][len(t[hi]) - len(t[lo]):] == t[lo], t
            em.restore(sts[hi]); em.hist = []
            em.label(f'L_sm{qh}')
        k1_sm0(em, qh)
        k1_pv(em, qh)
    em.label('k1_body_end')
    em.label('L_k1_exit')
    em.op('s_endpgm')
    return em

def main():
    ref = open('cdna_kernels/' + NAME + '.s.ref').read().split('\n')
    head = [l for l in ref[:9]]
    k1 = gen_k1()
    KN = NAME + '_kernel'
    out = '\n'.join(head) + '\n'
    out += f'; @launch grid=(256,1,1) block=(512,1,1) lds={LDS1}\n'
    out += '.amdgcn_target "amdgcn-amd-amdhsa--gfx950"\n.text\n'
    out += kernel_header(KN) + k1.text()
    out += '.section .rodata,"a"\n.p2align 6\n' + kernel_desc(KN, 256)
    open(sys.argv[1], 'w').write(out)
    print('k1 instrs', k1.count, 'nops', k1.nops, file=sys.stderr)
main()
```

```python
import sys, struct, math
from em import Em, interleave, emit

NAME = 'standalone__gqa_block_cached__near_ridge'
def fbits(x): return struct.unpack('<I', struct.pack('<f', x))[0]

class Cfg:
    nt_kv = True
    nt_w = False
    nt_k2 = False
    two_types = True
    pre = True
    code_pre = True
    diag = False
    pk = True
    rfrac = 60
    prio = 0
    x_noexp = 0
    x_nopw = 0
    efrac = 95
    loopb = -1
    st = 0
    dbg = 0
    n0 = 1
    inpv0 = 0
    inpv1 = 0
    pfa = 5
    kq = 12
    kq0 = 7
    wont = 0
    vrf = 60
    x_ren = 0
    vrole = 1
    vfirst = 0
    vold = 0
    vh0 = 12
    wsoff = 0
    cearly = 1
    osc = 0
    wosm = -1
    qlate1 = 1
    g2m0 = 60
    g2m1 = 60
    qfm = 1
    tloop = 0
    x_tno = 0
    pf0x = 0
    nu = 6
    pfs = 0
    nopad = 1
    pfxp = 10
    pfw = 10
    vpf = 0
    vpq = 0
    vpq_in = 4
    vpnt = 1
    spin = 0
    spst = -1
    spty = -1
    direct = 1
    chunk = 1
    onew = 1
    qlate = 0
    drole = 0
    in0 = 0
    in1 = 0
    epoll = 1
    pfx = 5
    opair = 1
    tsq = 1
    g2e = 0
    wo0 = 1
    pfnt = 0
    pfown = 10
    pfall = 1
    nt_k = 1
    nt_v = 1
    eager = 3
    eagerv = 0
    qwi = 1
    g2lo = 0
    g2hi = 30
    valo = 0
    vahi = 60
    pf1 = 10
    v0e = 0
    kqb = 0
    kqb0 = 7
    vb = 0
    vreg = 0
    nvy = 4
    sc_o = 1
    sc_ol = 1
    rt = 0
    qloop = 0
    x_qnodma = 0
    x_qnord = 0
    dlo = 10
    dhi = 95
    dsplit = 3
    x_delay = 0
    wopre = 1
    sc = 1
    x_nobar = 0
    x_nord = 0
    x_nodma = 0
cfg = Cfg()
cfg.pvst = (3,7); cfg.qst = (0,8,)
if 'pvall=1' in sys.argv: sys.argv.remove('pvall=1'); cfg.pvst = (0,1,2,3,4,5,6,7); cfg.qst = (); cfg.fewst = True
else: cfg.fewst = False
for a in sys.argv[2:]:
    k, v = a.split('='); setattr(cfg, k, type(getattr(cfg, k))(int(v)))
STSETS = {0: 'S0 BQ PV0 BO T2 TW', 1: 'ka pi si S0 B0 B8 BQ K0 K1 QKend BM exp0 PV0', 2: 'PV0 PB0 PB1 PB2 PB3 PB4 PB5 PB6', 9: 'BM exp0 PV0 PB3 PB6 PB7 BO T0', 3: 'BO T0 T1 T2 TW TF', 4: 'K0 K1 QKend BM exp0 PV0 PB3 PB7 BO T0', 8: '', 5: 'S0 LB0 LBend BQ', 6: 'S0 B0 B4 B7 B9 BQ', 10: 'BQ K0 K1 QKend BM PV0', 7: 'BO T0 T1 T2 T3 T4 T6 T8 T10 TP'}
cfg.stlist = ['rt0', 'start'] + STSETS[cfg.st].split()[:6] + ['end', 'rt_end']
cfg.pvst = range(8); cfg.qst = range(10)
cfg.types = bool(cfg.n0)

def vr(b, n=4): return f'v[{b}:{b + n - 1}]' if n > 1 else f'v{b}'
def sr(b, n): return f's[{b}:{b + n - 1}]'
MF = 'v_mfma_f32_16x16x32_bf16'
def mfma(d, a, b, c=None):
    return f'{MF} {vr(d)}, {vr(a)}, {vr(b)}, ' + ('0' if c is None else vr(c))

FLAG_OFF = 28 << 20
PART2 = 47104
O_HEAD = 55296
WS_PART = 16 << 20
PART_TILE = 90 * 1024

def srd(em, d, base_lo, base_hi, off_sgpr, size):
    if off_sgpr is None:
        em.op(f's_mov_b32 s{d}, s{base_lo}'); em.op(f's_mov_b32 s{d+1}, s{base_hi}')
    else:
        em.op(f's_add_u32 s{d}, s{base_lo}, {off_sgpr}'); em.op(f's_addc_u32 s{d+1}, s{base_hi}, 0')
    em.op(f's_mov_b32 s{d+2}, {size}')
    em.op(f's_mov_b32 s{d+3}, 0x20000')

_lab = [0]
DIAG_OFF = 64 << 20
class Stamps:
    def __init__(self, em):
        self.em = em; self.n = 0; self.names = []
        if cfg.diag:
            for i in range(len(cfg.stlist)): em.op(f's_mov_b32 s{60 + 2*i}, 0')
    def stamp(self, name, real=False):
        if cfg.spin:
            L = ['S0', 'BQ', 'BM', 'PV0', 'BO', 'T2', 'TW', 'TF']
            if name == 'rt0' or (cfg.spst >= 0 and name == L[cfg.spst]):
                r = 76 if name == 'rt0' else 78
                self.em.wait_lgkm0()
                self.em.op(f's_memrealtime s[{r}:{r+1}]'); self.em.op('s_waitcnt lgkmcnt(0)')
                if name == 'rt0': self.em.op('s_mov_b32 s78, s76')
            return
        if not cfg.diag or name not in cfg.stlist: return
        em = self.em; i = cfg.stlist.index(name)
        em.wait_lgkm0()
        em.op(('s_memrealtime' if (real or cfg.rt) else 's_memtime') + f' s[{60 + 2*i}:{61 + 2*i}]')
        em.op('s_waitcnt lgkmcnt(0)')
    def flush(self, ws_lo, kidx, wave_s, tv):
        if cfg.spin:
            em = self.em; _lab[0] += 1
            if cfg.spty >= 0:
                em.op(f's_cmp_eq_u32 s39, {cfg.spty}'); em.op('s_cselect_b32 s78, s78, s76')
            em.op('s_sub_u32 s78, s78, s76'); em.op(f's_add_u32 s78, s78, {cfg.spin}')
            em.label(f'L_sp{_lab[0]}')
            em.op('s_sleep 2')
            em.op('s_memrealtime s[74:75]'); em.op('s_waitcnt lgkmcnt(0)')
            em.op('s_sub_u32 s74, s74, s76'); em.op('s_cmp_lt_u32 s74, s78'); em.op(f's_cbranch_scc1 L_sp{_lab[0]}')
            return
        if not cfg.diag: return
        em = self.em
        self.stamp('end'); self.stamp('rt_end', real=True)
        if cfg.dbg:
            _lab[0] += 1
            em.op('s_load_dwordx2 s[56:57], s[0:1], 48')
            em.op(f's_and_b32 s58, s2, 0xdf'); em.op(f's_or_b32 s58, s58, s{wave_s}'); em.op('s_cmp_eq_u32 s58, 0')
            em.op('s_waitcnt lgkmcnt(0)')
            em.op(f's_cbranch_scc0 L_dbg{_lab[0]}')
            em.op(f'v_mov_b32 v{tv}, s2')
            for k, i in enumerate([2, 3, 4, 13, 6, 9, 11, 12]):
                em.op(f's_sub_u32 s58, s{60 + 2*i}, s{60 if i == 13 else 62}')
                em.op(f'v_mov_b32 v{tv+1}, s58')
                em.op(f'global_store_dword v{tv}, v{tv+1}, s[56:57] offset:{4*k}')
            em.label(f'L_dbg{_lab[0]}')
            return
        em.op(f's_lshl_b32 s56, s2, 3'); em.op(f's_add_u32 s56, s56, s{wave_s}'); em.op('s_lshl_b32 s56, s56, 7')
        em.op(f's_add_u32 s56, s56, {DIAG_OFF + (kidx << 20)}')
        em.op(f's_add_u32 s56, s{ws_lo}, s56'); em.op(f's_addc_u32 s57, s{ws_lo+1}, 0')
        em.op(f'v_mov_b32 v{tv}, 0')
        for i in range(len(cfg.stlist)):
            em.op(f'v_mov_b32 v{tv+1}, s{60 + 2*i}')
            em.op(f'global_store_dword v{tv}, v{tv+1}, s[56:57] offset:{4*i}')
        print('stamps', kidx, cfg.stlist, file=sys.stderr)

SX, SWQ, SK, SV, SO = 16, 20, 24, 28, 32
sW, sW3072, sW1024, sTYPE, sOFF, sT0, sT1, sT2, sC, sB, sH, sJ, sLOC, sX = 36, 37, 38, 39, 40, 41, 42, 43, 44, 52, 46, 47, 48, 53
vLANE, vXO, vWO, vK0, vK1, vVO = 1, 2, 3, 4, 5, 6
vRA = [7, 8]
vRB = [9, 10, 11]
vRC = [12, 13, 14]
vT = 15
vOW = [8, 254, 255]
vVW, vVW2 = 7, 8
vPA, vPW, vMS = 240, 242, 243
vPW2 = 241
TMP = list(range(244, 256))
STG = 43008
PBASE, VBASE, MAXB, SUMB = 0, 55296, 153600, 155648
NV = 4
def vslot(s): return [3, 1, 2, 0][s % 4]
LDS1 = SUMB + 12 * 512
def kop(kt, ks): return 16 + 4 * (kt * 6 + ks)
def sreg(kt, qt):
    if kt < 2: return 116 + 4 * (qt * 2 + kt)
    i = qt * 2 + (kt - 2)
    return 16 + 4 * i if i < 12 else 188 + 4 * (i - 12)
ACC = 116
MC = 212
SUM = 221
SUMP = 222
QF = 224
OACC0 = [116 + 4*i for i in range(15)]
OACC1 = [120 + 8*i for i in range(9)] + [100, 80, 208]
PAF0 = [[176, 180, 184], [104, 108, 112]]
PAF1 = [[200, 192, 60], [104, 108, 112]]
PBF0 = [[64, 68, 72, 76, 80], [84, 88, 92, 96, 100]]
PBF1 = [[64, 68, 72, 76], [84, 88, 92, 96]]
INV0 = 212
NEXP1 = 4


sKB = 57
vKR = [250, 251]
vKR2 = [246, 247]
vVO3 = 252
def k_dma_ops(em, half):
    nt = ' nt' if cfg.nt_kv and cfg.nt_k else ''
    ops = []
    for c in range(3):
        for k in range(2):
            for p in range(2):
                def f(c=c, k=k, p=p):
                    em.op(f's_add_u32 m0, s{sKB}, {(k * 3 + c) * 2048 + p * 1024 - c * 128}')
                    em.op(f's_mov_b32 s{sOFF}, {(half * 2 + k) * 6144}')
                    em.op(f'buffer_load_dwordx4 v{vK1 if p else vK0}, {sr(SK,4)}, s{sOFF} offen offset:{c*128}{nt} lds', tag=f'K{half}_{c * 2 + k}')
                ops.append(f)
    return ops
def k_rd_ops(half, u):
    c, k = divmod(u, 2)
    if cfg.qfm:
        return [f'ds_read_b64 {vr(kop(half * 2 + k, 2 * c + e) + 2 * h, 2)}, v{(vKR + vKR2)[e + 2 * h]} offset:{(k * 3 + c) * 2048}' for e in range(2) for h in range(2)]
    return [f'ds_read_b128 {vr(kop(half * 2 + k, 2 * c + e))}, v{vKR[e]} offset:{(k * 3 + c) * 2048}' for e in range(2)]
def k_fetch(em, half, nxt, u0=0, u1=6):
    nr = 4 if cfg.qfm else 2
    if cfg.qfm:
        for e in range(2): em.op(f'v_xor_b32 v{vKR2[e]}, 32, v{vKR[e]}')
    for u in range(u0, u1):
        em.wait_vm_tag(f'K{half}_{u}')
        for o in k_rd_ops(half, u): em.op(o)
        if nxt and u > u0:
            em.waitcnt(lgkm=nr); em.lgkm = em.lgkm[-nr:]
            for f in nxt[2 * u - 2: 2 * u]: f()
    if nxt:
        em.wait_lgkm0()
        for f in nxt[2 * u1 - 2: 2 * u1]: f()
def va_ops(em):
    nt = ' nt' if cfg.nt_kv and cfg.nt_v else ''
    ops = []
    for rg in range(4):
        for c in range(3):
            def f(c=c, rg=rg):
                em.op(f's_add_u32 m0, s{sKB}, {rg * 3072 + c * 896}')
                em.op(f's_mov_b32 s{sOFF}, {rg * 3072}')
                em.op(f'buffer_load_dwordx4 v{vVO3}, {sr(SV,4)}, s{sOFF} offen offset:{c*128}{nt} lds', tag='VA')
            ops.append(f)
    return ops

def stage_dma_ops(em, s, qh):
    nt = ' nt' if cfg.nt_w else ''
    slot = (s % 3) * 18432
    ops = []
    for c in range(3):
        def f(c=c):
            em.op(f's_add_u32 m0, s{sW3072}, {VBASE + (s % 3) * 24576 + c * 896}')
            if c == 0: em.op(f's_mov_b32 s{sOFF2}, {s * 786432}')
            em.op(f'buffer_load_dwordx4 v{vWO}, {sr(SWQ,4)}, s{sOFF2} offen offset:{c*128}{nt} lds', tag=f'S{s}')
        ops.append(f)
    for j in range(2):
        def f(j=j):
            em.op(f's_add_u32 m0, s{sW1024}, {slot + j * 8192}')
            em.op(f's_mov_b32 s{sOFF}, {s * 128 + j * 81920}')
            em.op(f'buffer_load_dwordx4 v{vXO}, {sr(SX,4)}, s{sOFF} offen{nt} lds', tag=f'S{s}')
        ops.append(f)
    if qh == 1:
        def f():
            _lab[0] += 1
            lab = f'L_x{_lab[0]}'
            em.op(f's_cmp_lt_u32 s{sW}, 6')
            em.op(f's_cbranch_scc0 {lab}')
            em.begin_opt()
            em.op(f's_add_u32 m0, s{sW1024}, {slot + 12288}')
            em.op(f's_mov_b32 s{sOFF}, {s * 128 + 122880}')
            em.op(f'buffer_load_dwordx4 v{vXO}, {sr(SX,4)}, s{sOFF} offen{nt} lds', tag=f'S{s}')
            em.end_opt()
            em.label(lab)
        ops.insert(0, f)
    return ops

def v_dma_ops(em, s):
    nt = ' nt' if cfg.nt_kv and cfg.nt_v else ''
    ops = []
    for c in range(3):
        def f(c=c):
            em.op(f's_add_u32 m0, s{sW3072}, {VBASE + vslot(s) * 24576 + c * 896}')
            em.op(f's_mov_b32 s{sOFF}, {(128 * (s & 3) + 32 * (s >> 2)) * 384}')
            em.op(f'buffer_load_dwordx4 v{vVO}, {sr(SV,4)}, s{sOFF} offen offset:{c*128}{nt} lds', tag=f'V{s}')
        ops.append(f)
    return ops

sDG = 49
sPFS, sPFB = 45, 50
sOFF2 = 3
vPF = 241
def pf_ops():
    if not cfg.pre: return []
    nt = ' nt' if cfg.nt_w else ''
    return [f'global_load_dwordx4 {vr(112)}, v{vPF}, s[{sPFB}:{sPFB+1}]{nt}', f'v_add_u32 v{vPF}, s{sPFS}, v{vPF}']
sTAG, sSTR, sF1, sF2, sHB, sM0T, sQ0, sNH, sCNT = 88, 89, 90, 92, 94, 98, 99, 100, 101
VST = 64
def v_reg_ops(em):
    nt = ' nt' if cfg.nt_kv and cfg.nt_v else ''
    ops = []
    for s in range(4, 8):
        for c in range(3):
            def f(s=s, c=c):
                em.op(f's_mov_b32 s{sOFF}, {(128 * (s & 3) + 32 * (s >> 2)) * 384}')
                em.op(f'buffer_load_dwordx4 {vr(VST + 4 * ((s - 4) * 3 + c))}, v{vVO}, {sr(SV,4)}, s{sOFF} offen offset:{c*128}{nt}', tag=f'V{s}')
            ops.append(f)
    return ops
def v_put_ops(s):
    slot = vslot(s)
    return [f'ds_write_b128 v{vVW if slot < 2 else vVW2}, {vr(VST + 4 * ((s - 4) * 3 + c))} offset:{(slot % 2) * 24576 + c * 1024}' for c in range(3)]

vPF2 = 254
VTMP = [248, 249, 253]
def pf2_ops():
    nt = ' nt' if cfg.nt_w else ''
    return [f'global_load_dwordx4 {vr(112)}, v{vPF2}, s[{sPFB}:{sPFB+1}]{nt}', f'v_add_u32 v{vPF2}, s{sPFS}, v{vPF2}']

def v_pf_ops(em, blk_delta=0):
    nt = ' nt' if cfg.vpnt else ''
    ops = []
    for s in range(4, 8):
        for c in range(3):
            def f(s=s, c=c):
                em.op(f's_mov_b32 s{sOFF}, {(128 * (s & 3) + 32 * (s >> 2)) * 384 + blk_delta}')
                em.op(f's_mov_b32 m0, {MAXB + 640}')
                em.op(f'buffer_load_dwordx4 v{vVO}, {sr(SV,4)}, s{sOFF} offen offset:{c*128}{nt} lds', tag='VP')
            ops.append(f)
    return ops

def k1_prologue(em):
    em.op('s_cmp_ge_u32 s2, 256')
    em.op('s_cbranch_scc1 L_k1_exit')
    em.st = Stamps(em); em.st.stamp('rt0', real=True); em.st.stamp('start')
    em.op('s_load_dwordx8 s[4:11], s[0:1], 0')
    em.op('s_load_dwordx2 s[12:13], s[0:1], 56')
    em.op('s_load_dwordx2 s[14:15], s[0:1], 32')
    em.op('s_load_dwordx2 s[54:55], s[0:1], 40')
    em.op(f'v_and_b32 v{vLANE}, 63, v0')
    em.op(f'v_lshrrev_b32 v{vT}, 6, v0')
    em.op(f's_and_b32 s{sX}, s2, 7')
    em.op(f's_lshr_b32 s{sLOC}, s2, 3')
    em.op(f'v_readfirstlane_b32 s{sW}, v{vT}')
    t0, t1, t2, t3, t4, t5 = TMP[:6]
    L = f'v{vLANE}'
    em.op(f's_and_b32 s{sJ}, s{sLOC}, 3')
    em.op(f's_lshr_b32 s{sB}, s{sLOC}, 2')
    em.op(f's_lshl_b32 s{sH}, s{sX}, 2')
    em.op(f's_add_u32 s{sH}, s{sH}, s{sJ}')
    em.op(f's_and_b32 s{sTYPE}, s{sB}, 1')
    em.op(f's_lshl_b32 s{sT0}, s{sLOC}, 1'); em.op(f's_mul_i32 s{sT0}, s{sT0}, 12288'); em.op(f's_mul_i32 s{sT1}, s{sX}, 1536'); em.op(f's_add_u32 s{sT0}, s{sT0}, s{sT1}')
    em.op(f's_lshl_b32 s{sT1}, s{sW}, 9'); em.op(f's_add_u32 s{sT0}, s{sT0}, s{sT1}')
    em.op(f'v_lshrrev_b32 v{t3}, 5, {L}'); em.op(f'v_mul_u32_u24 v{t3}, 12288, v{t3}')
    em.op(f'v_and_b32 v{t4}, 31, {L}'); em.op(f'v_lshlrev_b32 v{t4}, 4, v{t4}')
    em.op(f'v_add3_u32 v{t5}, v{t3}, v{t4}, s{sT0}')
    em.op(f'v_lshrrev_b32 v{t0}, 3, {L}')
    em.op(f'v_and_b32 v{t1}, 7, {L}')
    em.op(f'v_lshrrev_b32 v{t2}, 4, {L}')
    em.op(f's_mul_i32 s{sT0}, s{sLOC}, 36'); em.op(f's_lshl_b32 s{sT2}, s{sW}, 3'); em.op(f's_add_u32 s{sT0}, s{sT0}, s{sT2}'); em.op(f's_sub_u32 s{sT0}, s{sT0}, 24')
    em.op(f'v_add_u32 v{t3}, s{sT0}, v{t0}')
    em.op(f's_cmp_lt_u32 s{sW}, 3')
    em.op(f's_cselect_b64 vcc, -1, 0')
    em.op(f's_movk_i32 s{sPFS}, 128')
    em.op(f's_cselect_b32 s{sPFS}, 786432, s{sPFS}')
    for dst, dr, dw in ((vPF, 0, 0), (vPF2, 144, 98304) if not cfg.pfall else (vPF2, -144 & 0xffffffff, -98304 & 0xffffffff)):
        if dst == vPF2 and cfg.pf1 >= 10 and not cfg.pfall: continue
        if dst == vPF2 and cfg.pf0x:
            em.op(f's_mul_i32 s{sT1}, s{sTYPE}, {-288 & 0xffffffff}'); em.op(f's_add_u32 s{sT1}, s{sT1}, 144')
            em.op(f'v_add_u32 v{t4}, s{sT1}, v{t3}'); em.op(f'v_min_u32 v{t4}, 1151, v{t4}')
            em.op(f'v_mul_u32_u24 v{t4}, 1280, v{t4}')
            em.op(f'v_lshl_add_u32 v{t4}, v{t1}, 4, v{t4}')
            em.op(f's_mul_i32 s{sT1}, s{sTYPE}, {-196608 & 0xffffffff}'); em.op(f's_add_u32 s{sT1}, s{sT1}, 98304')
            em.op(f'v_add_u32 v{dst}, s{sT1}, v{t5}')
            em.op(f'v_cndmask_b32 v{dst}, v{t4}, v{dst}, vcc')
            em.op(f's_xor_b32 s{sT1}, s{sTYPE}, 1'); em.op(f's_mul_i32 s{sT1}, s{sT1}, {cfg.pfx}'); em.op(f's_mul_i32 s{sT1}, s{sT1}, s{sPFS}')
            em.op(f'v_add_u32 v{dst}, s{sT1}, v{dst}')
            continue
        em.op(f'v_add_u32 v{t4}, {dr}, v{t3}'); em.op(f'v_min_u32 v{t4}, 1151, v{t4}')
        em.op(f'v_mul_u32_u24 v{t4}, 1280, v{t4}')
        em.op(f'v_lshl_add_u32 v{t4}, v{t1}, 4, v{t4}')
        em.op(f'v_add_u32 v{dst}, {dw}, v{t5}')
        em.op(f'v_cndmask_b32 v{dst}, v{t4}, v{dst}, vcc')
    if cfg.pf1 < 10:
        em.op(f's_mul_i32 s{sT0}, s{sPFS}, {cfg.pf1}'); em.op(f'v_add_u32 v{vPF2}, s{sT0}, v{vPF2}')
    em.op(f's_and_b32 s{sDG}, s{sW}, 3')
    em.op(f's_mul_i32 s{sW3072}, s{sW}, 3072')
    em.op(f's_lshl_b32 s{sW1024}, s{sW}, 10')
    em.op(f's_and_b32 s{sT0}, s{sW}, 1')
    em.op(f's_lshl_b32 s{sT1}, s{sT0}, 2')
    em.op(f'v_add_u32 v{t3}, s{sT1}, v{t2}')
    em.op(f'v_xor_b32 v{t3}, v{t3}, v{t1}')
    em.op(f'v_add_u32 v{t4}, s{sT2}, v{t0}')
    em.op(f'v_mul_u32_u24 v{vXO}, 1280, v{t4}')
    em.op(f'v_lshl_add_u32 v{vXO}, v{t3}, 4, v{vXO}')
    em.op(f'v_and_b32 v{t3}, 1, v{t2}')
    em.op(f'v_lshl_add_u32 v{t3}, v{t3}, 1, s{sT1}')
    em.op(f'v_xor_b32 v{t3}, v{t3}, v{t1}')
    em.op(f'v_mul_u32_u24 v{vWO}, 12288, v{t4}')
    em.op(f'v_lshl_add_u32 v{vWO}, v{t3}, 4, v{vWO}')
    em.op(f's_lshl_b32 s{sT2}, s{sW}, 6')
    em.op(f'v_add_u32 v{t4}, s{sT2}, v{t0}')
    em.op(f'v_mul_u32_u24 v{t4}, 384, v{t4}')
    em.op(f'v_xor_b32 v{t3}, v{t2}, v{t1}')
    em.op(f'v_lshl_add_u32 v{vK0}, v{t3}, 4, v{t4}')
    em.op(f'v_xor_b32 v{vK1}, 64, v{vK0}')
    em.op(f'v_add_u32 v{vK1}, {8 * 384}, v{vK1}')
    em.op(f'v_lshlrev_b32 v{t3}, 1, v{t2}')
    em.op(f'v_xor_b32 v{t3}, v{t3}, v{t1}')
    em.op(f'v_lshl_add_u32 v{vVO3}, v{t3}, 4, v{t4}')
    em.op(f's_and_b32 s{sT1}, s{sW}, 6'); em.op(f's_lshr_b32 s{sKB}, 0x27, s{sT1}'); em.op(f's_and_b32 s{sKB}, s{sKB}, 3')
    em.op(f's_lshl_b32 s{sKB}, s{sKB}, 1'); em.op(f's_add_u32 s{sKB}, s{sKB}, s{sT0}'); em.op(f's_mul_i32 s{sKB}, s{sKB}, 12288'); em.op(f's_add_u32 s{sKB}, s{sKB}, {VBASE}')
    em.op(f'v_bfe_u32 v{t3}, {L}, 3, 1'); em.op(f'v_lshlrev_b32 v{t3}, 10, v{t3}')
    em.op(f'v_lshl_add_u32 v{t3}, v{t1}, 7, v{t3}')
    em.op(f'v_bfe_u32 v{t4}, {L}, 1, 3')
    em.op(f'v_xor_b32 v{t4}, v{t4}, v{t2}'); em.op(f'v_lshlrev_b32 v{vT}, 4, v{t4}')
    em.op(f'v_add_u32 v{vRA[0]}, v{t3}, v{vT}')
    if cfg.qfm:
        em.op(f'v_bfe_u32 v{t4}, {L}, 1, 3'); em.op(f'v_lshrrev_b32 v{t5}, 5, {L}'); em.op(f'v_xor_b32 v{t4}, v{t4}, v{t5}')
        em.op(f'v_lshl_add_u32 v{t3}, v{t4}, 4, v{t3}')
        em.op(f'v_and_b32 v{t4}, 1, v{t2}'); em.op(f'v_lshl_add_u32 v{t3}, v{t4}, 3, v{t3}')
        em.op(f'v_add_u32 v{vKR[0]}, s{sKB}, v{t3}')
    else:
        em.op(f'v_add_u32 v{vKR[0]}, s{sKB}, v{vRA[0]}')
    em.op(f'v_xor_b32 v{vKR[1]}, 64, v{vKR[0]}')
    em.op(f's_lshr_b32 s{sT1}, s{sW}, 2'); em.op(f's_lshl_b32 s{sT1}, s{sT1}, 6')
    em.op(f's_lshl_b32 s{sT0}, s{sDG}, 3'); em.op(f's_add_u32 s{sT0}, s{sT0}, s{sT1}')
    em.op(f'v_add_u32 v{t3}, s{sT0}, v{t0}')
    em.op(f'v_mul_u32_u24 v{vVO}, 384, v{t3}')
    em.op(f'v_lshlrev_b32 v{t3}, 1, v{t2}')
    em.op(f'v_xor_b32 v{t3}, v{t3}, v{t1}')
    em.op(f'v_lshl_add_u32 v{vVO}, v{t3}, 4, v{vVO}')
    em.op(f's_mul_i32 s{SX+3}, s{sB}, 184320')
    em.op(f's_mul_i32 s{SWQ+3}, s{sH}, 384')
    em.op(f's_lshl_b32 s{sT1}, s{sB}, 5'); em.op(f's_add_u32 s{sT1}, s{sT1}, s{sH}')
    em.op(f's_mul_i32 s{sT2}, s{sT1}, 196608')
    em.op(f's_mul_i32 s{SO+3}, s{sT1}, {O_HEAD}')
    em.op(f's_lshl_b32 s{sT0}, s{sB}, 8'); em.op(f's_add_u32 s{sT0}, s{sT0}, {FLAG_OFF}')
    em.op(f's_mov_b32 s{SX+2}, 184320'); em.op(f's_sub_u32 s{SWQ+2}, 7864320, s{SWQ+3}')
    em.op(f's_cmp_lt_u32 s{sW}, 3')
    em.op('s_waitcnt lgkmcnt(0)')
    em.st.stamp('ka')
    if cfg.diag: em.op(f's_cmp_lt_u32 s{sW}, 3')
    em.op(f's_cselect_b64 s[{sPFB}:{sPFB+1}], s[10:11], s[4:5]')
    for i in range(0 if cfg.pfall else 3):
        for o in pf_ops(): em.op(o)
    if cfg.cearly:
        em.op('s_getpc_b64 s[58:59]')
        em.label('L_pce')
        em.op('s_add_u32 s58, s58, k1_body_start-L_pce')
        em.op('s_addc_u32 s59, s59, 0')
        em.op(f's_and_b32 s{sT1}, s{sLOC}, 15')
        em.op(f's_lshl_b32 s{sT1}, s{sT1}, 13')
        em.op(f'v_lshlrev_b32 v{TMP[11]}, 4, v0')
        em.op(f'v_add_u32 v{TMP[11]}, s{sT1}, v{TMP[11]}')
        em.op(f'v_min_u32 v{TMP[11]}, k1_body_end-k1_body_start-16, v{TMP[11]}')
        em.op(f'global_load_dwordx4 {vr(112)}, v{TMP[11]}, s[58:59]')
    if cfg.wsoff:
        em.op(f's_add_u32 s12, s12, {cfg.wsoff << 20}'); em.op('s_addc_u32 s13, s13, 0')
    em.op(f's_load_dword s{sTAG}, s[12:13], s{sT0}')
    em.op(f's_add_u32 s{SWQ}, s10, s{SWQ+3}'); em.op(f's_addc_u32 s{SWQ+1}, s11, 0'); em.op(f's_mov_b32 s{SWQ+3}, 0x20000')
    em.op(f's_add_u32 s{SX}, s4, s{SX+3}'); em.op(f's_addc_u32 s{SX+1}, s5, 0'); em.op(f's_mov_b32 s{SX+3}, 0x20000')
    srd(em, SK, 6, 7, f's{sT2}', 196608); srd(em, SV, 8, 9, f's{sT2}', 196608)
    if cfg.n0 or cfg.pfall:
        em.op(f's_cmp_eq_u32 s{sTYPE}, 1')
        em.op('s_cbranch_scc0 L_nok1')
        em.begin_opt()
        em.op(f's_cmp_lt_u32 s{sW}, 3')
        em.op('s_cbranch_scc0 L_pfx')
        if cfg.pfs:
            em.op(f'v_add_u32 v{vPF}, {cfg.pfs * 786432}, v{vPF}'); em.op(f'v_add_u32 v{vPF2}, {cfg.pfs * 786432}, v{vPF2}')
        for i in range(cfg.pfw - cfg.pfs):
            for o in pf2_ops() + pf_ops(): em.op(o)
        em.op('s_branch L_nok1')
        em.label('L_pfx')
        if cfg.pfs: em.op(f'v_add_u32 v{vPF2}, {cfg.pfs * 128}, v{vPF2}')
        for i in range(cfg.pfxp - cfg.pfs):
            for o in pf2_ops(): em.op(o)
        for i in range(cfg.pfx):
            for o in pf_ops(): em.op(o)
        em.end_opt()
        em.label('L_nok1')
    if cfg.n0:
        em.op(f's_lshr_b32 s{sT0}, s{sW}, 2'); em.op(f's_lshl_b32 s{sT0}, s{sT0}, 1'); em.op(f's_or_b32 s{sT0}, s{sT0}, s{sTYPE}')
        for v in (0, 2, 3):
            em.op(f's_cmp_eq_u32 s{sT0}, {v}')
            em.op(f's_cbranch_scc1 L_qp{v >> 1}{v & 1}')
    else:
        em.op(f's_cmp_lt_u32 s{sW}, 4')
        em.op('s_cbranch_scc0 L_qp10')

def tile_m(em, t):
    tab = [[0, 4, 6, 10], [1, 5, 7, 11], [2, 3, 8, 9]][t]
    em.op(f's_lshl_b32 s{sT0}, s{sDG}, 2')
    em.op(f's_lshr_b32 s{sT0}, {sum(v << (4 * i) for i, v in enumerate(tab))}, s{sT0}')
    em.op(f's_and_b32 s{sT0}, s{sT0}, 15')

def tr_addr(em, dst, t, base, fmode):
    t0, t1, t2, t3 = TMP[:4]
    L = f'v{vLANE}'
    if (fmode == 'v' and cfg.opair) or (fmode == 'w' and cfg.qfm): tile_m(em, t)
    else:
        em.op(f's_mul_i32 s{sT0}, s{sDG}, 3'); em.op(f's_add_u32 s{sT0}, s{sT0}, {t}')
    em.op(f's_lshr_b32 s{sT1}, s{sT0}, 2'); em.op(f's_lshl_b32 s{sT1}, s{sT1}, 10')
    em.op(f's_add_u32 s{sT1}, s{sT1}, {base}')
    em.op(f's_and_b32 s{sT0}, s{sT0}, 3')
    em.op(f'v_lshrrev_b32 v{t0}, 4, {L}')
    em.op(f'v_bfe_u32 v{t1}, {L}, 2, 2')
    em.op(f'v_and_b32 v{t2}, 1, v{t0}')
    em.op(f'v_lshlrev_b32 v{t2}, 1, v{t2}')
    em.op(f'v_lshrrev_b32 v{t3}, 1, v{t1}')
    em.op(f'v_add_u32 v{t3}, v{t3}, v{t2}')
    em.op(f'v_xor_b32 v{t3}, s{sT0}, v{t3}')
    em.op(f'v_lshlrev_b32 v{t3}, 5, v{t3}')
    em.op(f'v_lshlrev_b32 v{dst}, 7, v{t1}')
    em.op(f'v_add_u32 v{dst}, v{dst}, v{t3}')
    if fmode == 'w':
        em.op(f'v_mul_u32_u24 v{t3}, 3072, v{t0}')
    else:
        em.op(f'v_lshlrev_b32 v{t2}, 8, v{t2}')
        em.op(f'v_add_u32 v{dst}, v{dst}, v{t2}')
        em.op(f'v_lshrrev_b32 v{t3}, 1, v{t0}')
        em.op(f'v_mul_u32_u24 v{t3}, 3072, v{t3}')
    em.op(f'v_add_u32 v{dst}, v{dst}, v{t3}')
    em.op(f'v_and_b32 v{t3}, 3, {L}')
    em.op(f'v_lshlrev_b32 v{t3}, 3, v{t3}')
    em.op(f'v_add_u32 v{dst}, v{dst}, v{t3}')
    em.op(f'v_add_u32 v{dst}, s{sT1}, v{dst}')

class Cap:
    def __init__(self): self.ops = []
    def op(self, t, tag=None): self.ops.append(t)

def k1_qproj(em, qh, typ):
    nq = 5 if qh == 0 else 4
    q0 = 0 if qh == 0 else 5
    L = f'v{vLANE}'
    t0, t1, t2, t3, t4, t5 = TMP[:6]
    rf = cfg.rfrac / 100
    if cfg.prio == qh + 1: em.op('s_setprio 1')
    npre = cfg.n0 if typ == 1 else 0
    if npre:
        nu = cfg.nu if npre == 1 else 6
        for f in k_dma_ops(em, 0)[:2 * nu]: f()
        em.wait_lgkm0(force=True)
        k_fetch(em, 0, k_dma_ops(em, 1) if npre == 2 else None, 0, nu)
        if npre == 2: k_fetch(em, 1, None)
        em.wait_lgkm0()
    em.barrier()
    for f in stage_dma_ops(em, 0, qh): f()
    em.barrier()
    for f in stage_dma_ops(em, 1, qh): f()
    em.op(f's_add_u32 s{SO}, s12, s{SO+3}'); em.op(f's_addc_u32 s{SO+1}, s13, 0'); em.op(f's_mov_b32 s{SO+2}, {O_HEAD}'); em.op(f's_mov_b32 s{SO+3}, 0x20000')
    em.op(f's_mov_b32 s{sC}, {fbits(192 ** -0.5 * math.log2(math.e))}')
    if cfg.code_pre and not cfg.cearly:
        em.op('s_getpc_b64 s[58:59]')
        em.label(f'L_pc{qh}{typ}')
        em.op(f's_add_u32 s58, s58, k1_body_start-L_pc{qh}{typ}')
        em.op('s_addc_u32 s59, s59, -1')
        em.op(f's_and_b32 s{sT1}, s{sLOC}, 15')
        em.op(f's_lshl_b32 s{sT1}, s{sT1}, 13')
        em.op(f'v_lshlrev_b32 v{TMP[11]}, 4, v0')
        em.op(f'v_add_u32 v{TMP[11]}, s{sT1}, v{TMP[11]}')
        em.op(f'v_min_u32 v{TMP[11]}, k1_body_end-k1_body_start-16, v{TMP[11]}')
    em.st.stamp('si')
    em.op(f'v_lshlrev_b32 v{t3}, 2, v0')
    em.op(f'v_add_u32 v{t3}, {MAXB}, v{t3}')
    em.op(f'v_mov_b32 v{t4}, 0xff800000')
    em.op(f'ds_write_b32 v{t3}, v{t4}')
    em.op(f'v_and_b32 v{vMS}, 15, {L}')
    em.op(f'v_lshlrev_b32 v{vMS}, 2, v{vMS}')
    em.op(f'v_add_u32 v{vMS}, {MAXB}, v{vMS}')
    em.op(f'v_add_u32 v{vRA[0]}, {q0 * 2048}, v{vRA[0]}')
    em.op(f'v_xor_b32 v{vRA[1]}, 64, v{vRA[0]}')
    for t in range(3): tr_addr(em, vRB[t], t, VBASE, 'w')
    if cfg.qfm:
        for t in (0, 2):
            tile_m(em, t)
            em.op(f's_lshr_b32 s{sT1}, s{sT0}, 1'); em.op(f's_mul_i32 s{sT1}, s{sT1}, 9216')
            em.op(f's_and_b32 s{sT0}, s{sT0}, 1'); em.op(f's_lshl_b32 s{sT0}, s{sT0}, 3'); em.op(f's_add_u32 s{sT0}, s{sT0}, s{sT1}')
            em.op(f's_add_u32 s{sT0}, s{sT0}, {q0 * 1024}')
            em.op(f'v_lshl_add_u32 v{vRC[t]}, {L}, 4, s{sT0}')
    for t in range(0 if cfg.qfm else 3):
        em.op(f's_mul_i32 s{sT0}, s{sDG}, 3'); em.op(f's_add_u32 s{sT0}, s{sT0}, {t}'); em.op(f's_lshl_b32 s{sT0}, s{sT0}, 1')
        em.op(f'v_lshrrev_b32 v{t0}, 5, {L}')
        em.op(f'v_add_u32 v{t0}, s{sT0}, v{t0}')
        em.op(f'v_lshrrev_b32 v{t1}, 3, v{t0}'); em.op(f'v_lshlrev_b32 v{t1}, 7, v{t1}')
        em.op(f'v_and_b32 v{t0}, 7, v{t0}')
        em.op(f'v_bfe_u32 v{t2}, {L}, 1, 3')
        em.op(f'v_xor_b32 v{t0}, v{t0}, v{t2}'); em.op(f'v_lshlrev_b32 v{t0}, 4, v{t0}')
        em.op(f'v_add_u32 v{t0}, v{t0}, v{t1}')
        em.op(f'v_and_b32 v{t1}, 15, {L}'); em.op(f'v_mul_u32_u24 v{t1}, 384, v{t1}')
        em.op(f'v_add_u32 v{t0}, v{t0}, v{t1}')
        em.op(f'v_bfe_u32 v{t1}, {L}, 4, 1'); em.op(f'v_lshlrev_b32 v{t1}, 3, v{t1}')
        em.op(f'v_add_u32 v{vRC[t]}, v{t0}, v{t1}')
    em.op(f'v_lshlrev_b32 v{vPA}, 4, {L}')
    em.op(f's_lshl_b32 s{sT0}, s{sW}, 2'); em.op(f's_lshr_b32 s{sT1}, 0x10543210, s{sT0}'); em.op(f's_and_b32 s{sT1}, s{sT1}, 15'); em.op(f's_mul_i32 s{sT1}, s{sT1}, 9216')
    em.op(f'v_add_u32 v{vPW}, s{sT1}, v{vPA}')
    em.op(f'v_add_u32 v{vPA}, {q0 * 1024}, v{vPA}')
    AF = [176, 188]; BF = [200, 220]
    def q_reads(s, step, st):
        ops = []
        for t in range(3):
            ops.append(f'ds_read_b64_tr_b16 {vr(AF[st] + 4*t, 2)}, v{vRB[t]} offset:{(s % 3) * 24576 + step * 12288}')
            ops.append(f'ds_read_b64_tr_b16 {vr(AF[st] + 4*t + 2, 2)}, v{vRB[t]} offset:{(s % 3) * 24576 + step * 12288 + 512}')
        xs = [f'ds_read_b128 {vr(BF[st] + 4*j)}, v{vRA[step]} offset:{(s % 3) * 18432 + j * 2048}' for j in range(nq)]
        return ops[0:2] + xs[0:1] + ops[2:6] + xs[1:]
    def mf(st, first):
        return [mfma(ACC + 4*(j*3+t), AF[st] + 4*t, BF[st] + 4*j, None if first else ACC + 4*(j*3+t)) for j in range(nq) for t in range(3)]
    em.wait_vm_tag('S0', lgkm0=True); em.barrier()
    em.st.stamp('S0')
    em.op(f's_add_u32 s{sTAG}, s{sTAG}, 1')
    for o in q_reads(0, 0, 0): em.op(o)
    em.npre = npre
    nxt = [k_dma_ops(em, 0), k_dma_ops(em, 1), va_ops(em)][npre]
    em.part = npre == 1 and cfg.nu < 6
    if em.part: nxt = k_dma_ops(em, 0)[2 * cfg.nu:] + k_dma_ops(em, 1)[:2 * cfg.nu]
    plan = {15: nxt[0:4], 16: nxt[4:7], 17: nxt[7:10], 18: nxt[10:12]} if qh == 0 else {19: nxt[0:6]}
    late = [] if qh == 0 else nxt[6:12]
    post = []
    if qh == 1 and (cfg.qlate or (cfg.qlate1 and npre)): plan = {}; late = []; post = nxt
    cap = Cap()
    for t in range(3): tr_addr(cap, VTMP[t], t, VBASE, 'v')
    vaddr_ops = cap.ops
    inloop_pf = not (typ == 1 and cfg.n0) and not cfg.pfall
    carry = stage_dma_ops(em, 2, qh) + (sum([pf_ops() for i in range(cfg.pfa - 3)], []) if inloop_pf else [])
    if cfg.code_pre and not cfg.cearly: carry.append(f'global_load_dwordx4 {vr(244)}, v{TMP[11]}, s[58:59]')
    for s in range(10):
        extra = []
        extra = plan.get(2 * s, [])
        if cfg.onew and s > 0: em.wait_lgkm0()
        interleave(em, mf(0, s == 0), ([] if cfg.x_qnord and 3 < s <= 6 else q_reads(s, 1, 1), 0, rf), (extra, 0.1, 1), (carry, 0.05, cfg.dhi / 100))
        if s < 9: em.wait_vm_tag(f'S{s+1}', lgkm0=True)
        else: em.wait_lgkm0()
        em.barrier()
        if s in cfg.qst: em.st.stamp(f'B{s}')
        if cfg.qloop and s == 6:
            em.op('s_sub_u32 s87, s87, 1'); em.op('s_cmp_lg_u32 s87, 0'); em.op(f's_cbranch_scc1 L_ql{qh}{typ}')
            em.st.stamp('LBend')
        if cfg.qloop and s == 3:
            em.st.stamp('LB0')
            em.op('s_mov_b32 s87, 16'); em.label(f'L_ql{qh}{typ}')
        rd = []; dm = []; extra = []
        if s < 9:
            if not (cfg.x_qnord and 3 <= s < 6): rd += q_reads(s + 1, 0, 0)
        carry = []
        if s + 3 <= 9:
            dm = stage_dma_ops(em, s + 3, qh); ds_ = cfg.dsplit if not cfg.drole else (6 if qh == cfg.drole - 1 else 0)
            dm, carry = dm[:ds_], dm[ds_:]
            if cfg.x_qnodma and 3 <= s < 6: dm = []; carry = []
        if s == 7: extra = vaddr_ops
        first = (pf_ops() + (pf2_ops() if s + cfg.pfa >= cfg.pf1 and cfg.n0 else []) if inloop_pf and s + cfg.pfa <= 9 and not (cfg.qloop and s >= 3) else []) + (sum([pf2_ops() for i in range(10 - cfg.pfx)], []) if cfg.pf0x == s + 1 and typ == 0 else []) + plan.get(2 * s + 1, [])
        qw = []
        if s == 9:
            for j in range(nq):
                for t in range(3):
                    a = ACC + 4*(j*3+t)
                    if cfg.qfm and t == 0: continue
                    if cfg.qfm and t == 1:
                        p = a - 4
                        qw.append((j*3+t, [f'v_cvt_pk_bf16_f32 v{p}, v{p}, v{p+1}', f'v_cvt_pk_bf16_f32 v{p+1}, v{p+2}, v{p+3}', f'v_cvt_pk_bf16_f32 v{p+2}, v{a}, v{a+1}',
                                   f'v_cvt_pk_bf16_f32 v{p+3}, v{a+2}, v{a+3}', f'ds_write_b128 v{vRC[0]}, {vr(p)} offset:{j * 1024}']))
                        continue
                    qw.append((j*3+t, [f'v_cvt_pk_bf16_f32 v{a}, v{a}, v{a+1}', f'v_cvt_pk_bf16_f32 v{a+1}, v{a+2}, v{a+3}', f'ds_write_b64 v{vRC[t]}, {vr(a,2)} offset:{j * 1024 if cfg.qfm else (q0 + j) * 6144}']))
        n = 3 * nq; lag = 3 if cfg.qwi else n
        ins = [(g, (p + lag + 0.5) / n, (p + lag + 0.5) / n) for p, g in qw if p + lag < n]
        interleave(em, mf(1, False), (dm, cfg.dlo / 100, cfg.dhi / 100), (rd, 0, rf), (extra, 0, 1), (first, 0, 0.04 if dm else 0.9), *ins)
    for p, g in qw:
        if p + lag >= n:
            for o in g: em.op(o)
    for f in late: f()
    if cfg.qfm: em.op(f'v_lshlrev_b32 v{vRA[0]}, 4, {L}')
    else:
        em.op(f'v_and_b32 v{t1}, 15, {L}'); em.op(f'v_mul_u32_u24 v{t1}, 384, v{t1}')
        em.op(f'v_add_u32 v{vRA[0]}, v{t1}, v{vT}')
        em.op(f'v_xor_b32 v{t0}, 64, v{vT}')
        em.op(f'v_add_u32 v{vRA[1]}, v{t1}, v{t0}')
    for t in range(3): em.op(f'v_mov_b32 v{vRB[t]}, v{VTMP[t]}')
    em.wait_lgkm0(); em.barrier()
    for f in post: f()
    for t in range(3): em.op(f'v_add_u32 v{vRC[t]}, 49152, v{vRB[t]}')
    em.op(f's_lshl_b32 s{sT0}, s{sW}, 2'); em.op(f's_lshr_b32 s{sT1}, 0x32105432, s{sT0}'); em.op(f's_and_b32 s{sT1}, s{sT1}, 15'); em.op(f's_mul_i32 s{sT1}, s{sT1}, 9216')
    em.op(f'v_lshlrev_b32 v{vPW2}, 4, {L}')
    em.op(f'v_add_u32 v{vPW2}, s{sT1}, v{vPW2}')
    em.st.stamp('BQ')

def maxops(half):
    ops = []
    for qt in range(9):
        a, b = sreg(half*2, qt), sreg(half*2+1, qt); m = MC + qt
        if half == 0:
            ops += [f'v_max3_f32 v{m}, v{a}, v{a+1}, v{a+2}', f'v_max3_f32 v{m}, v{m}, v{a+3}, v{b}',
                    f'v_max3_f32 v{m}, v{m}, v{b+1}, v{b+2}', f'v_max_f32 v{m}, v{m}, v{b+3}']
        else:
            ops += [f'v_max3_f32 v{m}, v{m}, v{a}, v{a+1}', f'v_max3_f32 v{m}, v{m}, v{a+2}, v{a+3}',
                    f'v_max3_f32 v{m}, v{m}, v{b}, v{b+1}', f'v_max3_f32 v{m}, v{m}, v{b+2}, v{b+3}']
    return ops

def k1_qk(em, qh):
    def qrd(n):
        qt, ks = divmod(n, 6)
        if cfg.qfm: return f'ds_read_b128 {vr(QF + 4*(n % 4))}, v{vRA[0]} offset:{(ks * 9 + qt) * 1024}'
        return f'ds_read_b128 {vr(QF + 4*(n % 4))}, v{vRA[ks & 1]} offset:{qt * 6144 + (ks >> 1) * 128}'
    npre = em.npre
    pend = []
    if em.part: k_fetch(em, 0, k_dma_ops(em, 1), cfg.nu, 6)
    if npre == 1 and cfg.g2e:
        k_fetch(em, 1, None); em.wait_lgkm0()
        pend = va_ops(em)
        if qh == 1:
            for f in pend: f()
            pend = []
        npre = 2
    g2m = (cfg.g2m0, cfg.g2m1)[qh] if npre == 1 and not em.part else 0
    for half in range(2):
        fill = pend; pend = []
        mid = []
        if half == 0 and g2m:
            mid = [f'v_xor_b32 v{vKR2[e]}, 32, v{vKR[e]}' for e in range(2)] if cfg.qfm else []
            for u in range(6): mid += [lambda u=u: em.wait_vm_tag(f'K1_{u}')] + k_rd_ops(1, u)
        if half == 1 and g2m:
            em.wait_lgkm0(); fill = va_ops(em)
        elif half >= npre:
            fill = k_dma_ops(em, 1) if half == 0 else va_ops(em)
            if half == 0 and cfg.eager >> qh & 1:
                k_fetch(em, half, fill); fill = []
            else:
                k_fetch(em, half, None)
                em.wait_lgkm0()
                if half == 1 and cfg.eagerv >> qh & 1:
                    for f in fill: f()
                    fill = []
        for n in range(3): em.op(qrd(n))
        em.st.stamp(f'K{half}')
        main = []
        for n in range(54):
            qt, ks = divmod(n, 6)
            if n + 3 < 54: main.append(qrd(n + 3))
            for k in range(2):
                kt = half * 2 + k
                main.append(mfma(sreg(kt, qt), kop(kt, ks), QF + 4*(n % 4), None if ks == 0 else sreg(kt, qt)))
        m1 = maxops(1)
        if half == 0:
            streams = [(fill, cfg.g2lo / 100, cfg.g2hi / 100), (mid, g2m / 100, min(1.0, g2m / 100 + 0.3))]
        else:
            streams = [(maxops(0), 0.02, 0.5)]
            for qt in range(8): streams.append((m1[qt*4:qt*4+4], max(0.5 + 0.05*qt, (qt + 1.5) / 9), max(0.55 + 0.05*qt, (qt + 1.9) / 9)))
            streams.append((fill, cfg.valo / 100, cfg.vahi / 100))
        interleave(em, main, *streams)
    em.st.stamp('QKend')
    for o in maxops(1)[32:]: em.op(o)
    for qt in range(9): em.op(f'ds_max_f32 v{vMS}, v{MC+qt} offset:{qt*64}')
    if qh == 0 and cfg.tsq:
        for o in tail_setup_ops(0): emit(em, o)
    if qh == 0 and cfg.vpq:
        a, b = v_pf_ops(em), v_pf_ops(em, 24576)
        both = [x for p in zip(a, b) for x in p][:2 * cfg.vpq]
        for i, f in enumerate(both):
            f()
            if i >= cfg.vpq_in: em.waitcnt(vm=cfg.vpq_in)
    em.wait_lgkm0(); em.barrier()
    em.st.stamp('BM')

def expops(r, qt, pk):
    a, b = sreg(2*r, qt), sreg(2*r+1, qt); m = MC + qt
    tA, tB = TMP[0], TMP[2]
    sp = SUMP + 2*qt
    rs = [a, a+1, a+2, a+3, b, b+1, b+2, b+3]
    if pk:
        mb = m & ~1; s = m & 1
        ops = [f'v_pk_fma_f32 {vr(x,2)}, {vr(x,2)}, s[{sC}:{sC+1}], {vr(mb,2)} op_sel:[0,0,{s}] op_sel_hi:[1,0,{s}] neg_lo:[0,0,1] neg_hi:[0,0,1]' for x in rs[::2]]
    else:
        ops = [f'v_fma_f32 v{x}, v{x}, s{sC}, -v{m}' for x in rs]
    ops += [f'v_exp_f32 v{x}, v{x}' for x in rs]
    if pk:
        ops += [f'v_pk_add_f32 {vr(tA,2)}, {vr(a,2)}, {vr(a+2,2)}', f'v_pk_add_f32 {vr(tB,2)}, {vr(b,2)}, {vr(b+2,2)}']
        if r == 0: tailo = [f'v_pk_add_f32 {vr(sp,2)}, {vr(tA,2)}, {vr(tB,2)}']
        else: tailo = [f'v_pk_add_f32 {vr(tA,2)}, {vr(tA,2)}, {vr(tB,2)}', f'v_pk_add_f32 {vr(sp,2)}, {vr(sp,2)}, {vr(tA,2)}']
    else:
        assert r == 1
        ops += [f'v_add_f32 v{sp + (i & 1)}, v{sp + (i & 1)}, v{x}' for i, x in enumerate(rs)]
        tailo = []
    ops += [f'v_cvt_pk_bf16_f32 v{a}, v{a}, v{a+1}', f'v_cvt_pk_bf16_f32 v{a+1}, v{a+2}, v{a+3}',
            f'v_cvt_pk_bf16_f32 v{a+2}, v{b}, v{b+1}', f'v_cvt_pk_bf16_f32 v{a+3}, v{b+2}, v{b+3}']
    return ops + tailo

def pwrite(r, qt, qh):
    return f'ds_write_b128 v{vPW if r == 0 else vPW2}, {vr(sreg(2*r, qt))} offset:{qt*1024}'

def sum_ops():
    L = f'v{vLANE}'
    S = SUM; ops = []
    ops += [f'v_add_f32 v{SUM+qt}, v{SUMP+2*qt}, v{SUMP+2*qt+1}' for qt in range(9)]
    ops += [f'v_mov_b32 v{MC}, 0', f'v_mov_b32 v{MC+1}, 0']
    ta = TMP[2]; tb = TMP[3]
    ops += [f'v_bfe_u32 v{ta}, {L}, 4, 1', f'v_lshlrev_b32 v{ta}, 10, v{ta}', f'v_bfe_u32 v{tb}, {L}, 5, 1', f'v_lshlrev_b32 v{tb}, 9, v{tb}',
            f'v_add_u32 v{ta}, v{ta}, v{tb}', f'v_and_b32 v{tb}, 15, {L}', f'v_lshlrev_b32 v{tb}, 5, v{tb}', f'v_add_u32 v{ta}, v{ta}, v{tb}',
            f's_lshl_b32 s{sT0}, s{sW}, 2', f's_add_u32 s{sT0}, s{sT0}, {SUMB}', f'v_add_u32 v{ta}, s{sT0}, v{ta}']
    for a in (0, 2, 4, 6): ops.append(f'v_permlane32_swap_b32 v{S+a}, v{S+a+1}')
    ops.append(f'v_permlane32_swap_b32 v{S+8}, v{MC}')
    for a in (0, 2, 4, 6): ops.append(f'v_add_f32 v{S+a}, v{S+a}, v{S+a+1}')
    ops.append(f'v_add_f32 v{S+8}, v{S+8}, v{MC}')
    for a in (0, 4): ops.append(f'v_permlane16_swap_b32 v{S+a}, v{S+a+2}')
    ops.append(f'v_permlane16_swap_b32 v{S+8}, v{MC+1}')
    for a in (0, 4): ops.append(f'v_add_f32 v{S+a}, v{S+a}, v{S+a+2}')
    ops.append(f'v_add_f32 v{S+8}, v{S+8}, v{MC+1}')
    for a in (0, 4, 8): ops.append(f'ds_write_b32 v{ta}, v{S+a} offset:{a * 512}')
    return ops

def k1_sm0(em, qh):
    n_in = cfg.in0 if qh == 0 else cfg.in1
    for qt in range(9): em.op(f'ds_read_b32 v{MC+qt}, v{vMS} offset:{qt*64}')
    for qt in range(9): em.op(f'v_mul_f32 v{MC+qt}, s{sC}, v{MC+qt}')
    main = []
    for qt in range(9):
        main += expops(0, qt, True)
        if qh == 0: main.append(pwrite(0, qt, qh))
    for qt in range(n_in, 9): main += expops(1, qt, True)
    wo = []
    if cfg.wosm >= 0:
        em.op(f's_andn2_b32 s{sT1}, s{sLOC}, 4'); em.op(f's_mul_i32 s{sT1}, s{sT1}, 30720')
        em.op(f's_mul_i32 s{sT0}, s{sX}, 983040'); em.op(f's_add_u32 s{sT0}, s{sT0}, s{sT1}')
        em.op(f'v_lshl_add_u32 v64, v0, 4, s{sT0}')
        for i in range(8):
            def f(i=i):
                _lab[0] += 1
                em.op(f's_cmp_eq_u32 s{sTYPE}, {cfg.wosm}')
                em.op(f's_cbranch_scc0 L_ws{_lab[0]}')
                em.begin_opt()
                em.op(f's_mov_b32 m0, {MAXB + 640}')
                em.op(f'v_min_u32 v65, {7864320 - 16}, v64')
                em.op(f'global_load_lds_dwordx4 v65, s[14:15]')
                em.op(f'v_add_u32 v64, {8192 if i != 3 else 122880 - 3 * 8192}, v64')
                em.end_opt()
                em.label(f'L_ws{_lab[0]}')
            wo.append(f)
    interleave(em, main, (v_pf_ops(em)[cfg.vpq:cfg.vpq + cfg.vpf], 0.05, cfg.vrf / 100), (wo, 0.1, 0.95))
    em.st.stamp('exp0')
    if qh == 0: em.wait_vm_tag('VA', lgkm0=True)
    else: em.wait_lgkm0()
    em.barrier()
    em.st.stamp('PV0')

def k1_pv(em, qh):
    nq = 5 if qh == 0 else 4
    q0 = 0 if qh == 0 else 5
    L = f'v{vLANE}'
    rf = cfg.rfrac / 100
    PBF = PBF0 if qh == 0 else PBF1
    INV = INV0
    PAF = PAF0 if qh == 0 else PAF1
    def pv_reads(s, step, st):
        ops = []
        slot = vslot(s)
        base = vRB if slot < 2 else vRC
        off = (slot % 2) * 24576 + step * 12288
        for t in range(3):
            ops.append(f'ds_read_b64_tr_b16 {vr(PAF[st][t], 2)}, v{base[t]} offset:{off}')
            ops.append(f'ds_read_b64_tr_b16 {vr(PAF[st][t] + 2, 2)}, v{base[t]} offset:{off + 6144}')
        pa, po = vPA, ((2 * s + step) % 6) * 9216
        xs = [f'ds_read_b128 {vr(PBF[st][j])}, v{pa} offset:{po + j * 1024}' for j in range(nq)]
        return ops[0:2] + xs[0:1] + ops[2:6] + xs[1:]
    OACC = OACC0 if qh == 0 else OACC1
    def mf(st, first):
        return [mfma(OACC[j*3+t], PAF[st][t], PBF[st][j], None if first else OACC[j*3+t]) for j in range(nq) for t in range(3)]
    def inv_ops():
        ta = TMP[2]; ops = []
        ops += [f'v_and_b32 v{ta}, 15, {L}', f'v_lshlrev_b32 v{ta}, 5, v{ta}', f'v_add_u32 v{ta}, {SUMB + q0 * 512}, v{ta}']
        for j in range(nq):
            ops += [f'ds_read_b128 {vr(16 + 8*j)}, v{ta} offset:{j * 512}', f'ds_read_b128 {vr(20 + 8*j)}, v{ta} offset:{j * 512 + 16}']
        for j in range(nq):
            r = 16 + 8*j
            ops += [f'v_add_f32 v{r}, v{r}, v{r+1}', f'v_add_f32 v{r+2}, v{r+2}, v{r+3}', f'v_add_f32 v{r+4}, v{r+4}, v{r+5}', f'v_add_f32 v{r+6}, v{r+6}, v{r+7}',
                    f'v_add_f32 v{r}, v{r}, v{r+2}', f'v_add_f32 v{r+4}, v{r+4}, v{r+6}', f'v_add_f32 v{r}, v{r}, v{r+4}', f'v_rcp_f32 v{INV+2*j}, v{r}']
        return ops
    n_in = cfg.in0 if qh == 0 else cfg.in1
    assert n_in <= 3
    hs = [0, 3, 4] if qh == 0 else [7, 8, 4]
    INVO = inv_ops()
    TS = [] if (qh == 0 and cfg.tsq) else tail_setup_ops(qh)
    def ex(h):
        o = []
        if h in hs[:n_in] or (n_in == 2 and qh == 0 and False): o += expops(1, hs.index(h), False)
        if qh == 0 and h in (5, 6): o += [pwrite(1, qt, qh) for qt in (range(4, 9) if h == 5 else range(4))]
        if qh == 1 and h in (1, 2): o += [pwrite(0, qt, qh) for qt in (range(5) if h == 1 else range(5, 9))]
        if qh == 1 and h in (9, 10): o += [pwrite(1, qt, qh) for qt in (range(4, 9) if h == 9 else range(4))]
        if h == (7 if qh == 0 else 11): o += sum_ops()
        if h == 13: o += INVO[:len(INVO) // 2]
        if h == 14: o += INVO[len(INVO) // 2:]
        if TS and h == 3 and qh == 1: o += TS
        if TS and h in (11, 12) and qh == 0: o += TS[:len(TS)//2] if h == 11 else TS[len(TS)//2:]
        return o
    def wopre_ops(i):
        ta = TMP[2 + (i & 1)]
        ops = [f's_mul_i32 s{sT3}, s{sX}, 983040', f's_mul_i32 s{sT4}, s{sLOC}, 30720', f's_add_u32 s{sT3}, s{sT3}, s{sT4}', f's_add_u32 s{sT3}, s{sT3}, {i * 8192}',
               f'v_lshlrev_b32 v{ta}, 4, v0', f'v_add_u32 v{ta}, s{sT3}, v{ta}', f'v_min_u32 v{ta}, {7864320 - 16}, v{ta}',
               f'global_load_dwordx4 {vr(52)}, v{ta}, s[14:15]']
        if cfg.wo0:
            def f():
                _lab[0] += 1
                em.op(f's_cmp_eq_u32 s{sTYPE}, 0')
                em.op(f's_cbranch_scc0 L_wp{_lab[0]}')
                em.begin_opt()
                for o in ops[:-2] + [ops[-1], f'v_add_u32 v{ta}, 122880, v{ta}'] + ops[-2:]: em.op(o)
                em.end_opt()
                em.label(f'L_wp{_lab[0]}')
            return [f]
        return ops
    wsl = {8: 0, 9: 1, 10: 2, 12: 3} if cfg.wosm < 0 else {}
    def epi(pk):
        out = []
        def mul(a, m):
            if pk: return [f'v_pk_mul_f32 {vr(a,2)}, {vr(a,2)}, {vr(m,2)} op_sel_hi:[1,0]', f'v_pk_mul_f32 {vr(a+2,2)}, {vr(a+2,2)}, {vr(m,2)} op_sel_hi:[1,0]']
            return [f'v_mul_f32 v{a+d}, v{a+d}, v{m}' for d in range(4)]
        for j in range(nq):
            m = INV + 2 * j
            a, b, c = OACC[j*3], OACC[j*3+1], OACC[j*3+2]
            if cfg.opair:
                out.append((j*3+1, mul(a, m) + mul(b, m) + [f'v_cvt_pk_bf16_f32 v{a}, v{a}, v{a+1}', f'v_cvt_pk_bf16_f32 v{a+1}, v{a+2}, v{a+3}',
                            f'v_cvt_pk_bf16_f32 v{a+2}, v{b}, v{b+1}', f'v_cvt_pk_bf16_f32 v{a+3}, v{b+2}, v{b+3}', f'ds_write_b128 v{vOW[0]}, {vr(a)} offset:{j * 1024}']
                            + ([f's_mov_b32 s{sT0}, {j * 1024}', (f'buffer_store_dwordx4 {vr(a)}, v{vOW[1]}, {sr(SO,4)}, s{sT0} offen sc1', 'CO0')] if cfg.direct else [])))
            for t in ((2,) if cfg.opair else (0, 1, 2)):
                x = OACC[j*3+t]
                out.append((j*3+t, mul(x, m) + [f'v_cvt_pk_bf16_f32 v{x}, v{x}, v{x+1}', f'v_cvt_pk_bf16_f32 v{x+1}, v{x+2}, v{x+3}', f'ds_write_b64 v{vOW[t]}, {vr(x,2)} offset:{j * 1024}']))
        return out
    for o in pv_reads(0, 0, 0): em.op(o)
    n = 3 * nq; lag = 4 if cfg.qwi else n
    for s in range(8):
        w = wopre_ops(wsl[2*s]) if cfg.wopre and 2*s in wsl else []
        if cfg.onew and s > 0: em.wait_lgkm0()
        interleave(em, mf(0, s == 0), (pv_reads(s, 1, 1), 0, rf), (ex(2*s), 0, cfg.efrac / 100), (w, 0.4, 0.41))
        if s == 1: em.wait_vm_tag('VA', lgkm0=True)
        elif s < 7: em.wait_vm_tag(f'V{s+1}', lgkm0=True)
        else: em.wait_lgkm0()
        em.barrier()
        em.st.stamp(f'PB{s}')
        rd = pv_reads(s + 1, 0, 0) if s < 7 else []
        dm = v_dma_ops(em, s + NV) if s + NV <= 7 else []
        if s == 7 and qh == 0: dm = tail_dma(em, 0) + tail_dma(em, 1)
        w = wopre_ops(wsl[2*s+1]) if cfg.wopre and 2*s+1 in wsl else []
        ins = []
        if s == 7:
            ins = [(g, (p + lag + 0.5) / n, (p + lag + 0.5) / n) for p, g in epi(False) if p + lag < n]
        interleave(em, mf(1, False), (dm, 0, 0.4 if s < 7 else 1), (rd, 0, rf + 0.1), (ex(2*s+1), 0, 1), (w, 0.4, 0.41), *ins)
    late = tail_dma(em, 2) if qh == 0 else []
    main = sum([g for p, g in epi(True) if p + lag >= n], [])
    interleave(em, main, (late, 0, 1))
    em.wait_vm_tag('T0', lgkm0=True); em.barrier()
    em.st.stamp('BO')
    em.op(f's_bitcmp1_b32 s{sW}, 1')
    em.op(f's_cbranch_scc1 L_tail{2 * qh + 1}')
    st = em.save()
    tail(em, 2 * qh)
    em.label(f'L_tail{2 * qh + 1}')
    em.restore(st)
    tail(em, 2 * qh + 1)

vOFFS = [2, 3, 4, 5, 7]; vA2 = [248, 249, 250]; vB2 = 251
SD, SP, SPR, SOUT = SX, SWQ, SK, 84
sT3, sT4 = 56, 59
sCH = 36 + 1
sCH = 81
sN0 = sNH
def tail_setup_ops(qh):
    c = Cap(); L = f'v{vLANE}'
    t0, t1, t2, t3 = 252, 253, 244, 245
    if qh == 0:
        c.op(f's_mul_i32 s{sT0}, s{sX}, 983040'); c.op(f's_mul_i32 s{sT1}, s{sJ}, 320'); c.op(f's_add_u32 s{sT0}, s{sT0}, s{sT1}')
        srd(c, SD, 14, 15, f's{sT0}', 7864320)
        c.op(f's_sub_u32 s{SD+2}, s{SD+2}, s{sT0}')
        c.op(f's_mov_b32 s{sSTR}, 81920')
        hs = 245760
        c.op(f's_lshl_b32 s{sT2}, s{sW}, 4')
        c.op(f's_mov_b32 s{sT1}, 52429')
        for j in range(5):
            c.op(f'v_add_u32 v{t0}, {j * 64}, {L}')
            c.op(f'v_mul_lo_u32 v{t1}, v{t0}, s{sT1}')
            c.op(f'v_lshrrev_b32 v{t1}, 20, v{t1}')
            c.op(f'v_mul_u32_u24 v{t2}, 20, v{t1}')
            c.op(f'v_sub_u32 v{t2}, v{t0}, v{t2}')
            c.op(f'v_bfe_u32 v{t3}, v{t1}, 2, 1')
            c.op(f'v_lshlrev_b32 v{t3}, 1, v{t3}')
            c.op(f'v_xor_b32 v{t2}, v{t2}, v{t3}')
            c.op(f'v_add_u32 v{t1}, s{sT2}, v{t1}')
            c.op(f'v_mul_u32_u24 v{t1}, 1280, v{t1}')
            c.op(f'v_lshl_add_u32 v{vOFFS[j]}, v{t2}, 4, v{t1}')
        c.op(f's_and_b32 s{sN0}, s{sW}, 1'); c.op(f's_mul_i32 s{sN0}, s{sN0}, 3')
        c.op(f's_bfe_u32 s{sQ0}, s{sW}, 0x10001'); c.op(f's_mul_i32 s{sQ0}, s{sQ0}, 5')
    else:
        c.op(f's_lshl_b32 s{sT0}, s{sB}, 5'); c.op(f's_lshl_b32 s{sT1}, s{sX}, 2'); c.op(f's_add_u32 s{sT0}, s{sT0}, s{sT1}')
        c.op(f's_mul_i32 s{sT0}, s{sT0}, {O_HEAD}')
        srd(c, SD, 12, 13, f's{sT0}', 4 * O_HEAD)
        c.op(f's_mov_b32 s{sSTR}, 18432')
        hs = O_HEAD
        c.op(f's_mul_i32 s{sT2}, s{sDG}, 5120')
        if cfg.nopad:
            c.op(f's_cmp_eq_u32 s{sDG}, 3'); c.op(f's_cselect_b32 s{sT2}, 14336, s{sT2}')
        c.op(f'v_lshlrev_b32 v{t0}, 4, {L}')
        c.op(f'v_add_u32 v{t0}, s{sT2}, v{t0}')
        for j in range(5): c.op(f'v_add_u32 v{vOFFS[j]}, {j * 1024}, v{t0}')
        c.op(f's_and_b32 s{sN0}, s{sW}, 1'); c.op(f's_lshl_b32 s{sN0}, s{sN0}, 1'); c.op(f's_add_u32 s{sN0}, s{sN0}, 6')
        c.op(f's_bfe_u32 s{sQ0}, s{sW}, 0x10001'); c.op(f's_xor_b32 s{sQ0}, s{sQ0}, 1'); c.op(f's_mul_i32 s{sQ0}, s{sQ0}, 5')
    if cfg.direct:
        if qh == 0:
            c.op(f's_lshr_b32 s{sT0}, s{sW}, 1'); c.op(f's_mul_i32 s{sT0}, s{sT0}, 40960')
            c.op(f's_mov_b32 s{sCH}, s{sT0}'); c.op(f's_add_u32 s{sCH+1}, s{sT0}, {96 * 1280}')
            c.op(f's_lshl_b32 s{sT0}, s{sT0}, 1'); c.op(f's_add_u32 s{sCH+2}, s{sT0}, {32 * 1280}')
        else:
            for i in range(3): c.op(f's_mov_b32 s{sCH+i}, {i * 18432}')
    c.op(f's_mul_i32 s{sM0T}, s{sDG}, 5120')
    if qh: c.op(f's_add_u32 s{sM0T}, s{sT2 if cfg.nopad else sM0T}, 61440')
    for i in range(4):
        c.op(f's_add_u32 s{sT0}, s{sJ}, {i}'); c.op(f's_and_b32 s{sT0}, s{sT0}, 3'); c.op(f's_mul_i32 s{sHB+i}, s{sT0}, {hs}')
    c.op(f'v_lshrrev_b32 v{t0}, 2, {L}')
    c.op(f'v_mul_u32_u24 v{t0}, 320, v{t0}')
    c.op(f'v_and_b32 v{t1}, 3, {L}')
    c.op(f'v_lshl_add_u32 v{t0}, v{t1}, 3, v{t0}')
    c.op(f'v_bfe_u32 v{t1}, {L}, 4, 1')
    for t in range(3 if qh == 0 else 2):
        c.op(f's_add_u32 s{sT1}, s{sN0}, {t}')
        c.op(f'v_xor_b32 v{t2}, s{sT1}, v{t1}')
        c.op(f'v_lshl_add_u32 v{vA2[t]}, v{t2}, 5, v{t0}')
    c.op(f's_lshl_b32 s{sT0}, s{sQ0}, 10')
    c.op(f's_add_u32 s{sT0}, s{sT0}, 61440')
    c.op(f'v_lshl_add_u32 v{vB2}, {L}, 4, s{sT0}')
    for t in range(3):
        if cfg.opair:
            if t == 1: continue
            tile_m(c, t)
        else:
            c.op(f's_mul_i32 s{sT0}, s{sDG}, 3'); c.op(f's_add_u32 s{sT0}, s{sT0}, {t}')
        if cfg.direct:
            c.op(f's_lshl_b32 s{sT1}, s{sT0}, 1'); c.op(f's_and_b32 s{sT1}, s{sT1}, 0x1c'); c.op(f's_lshr_b32 s{sT1}, 0x352140, s{sT1}'); c.op(f's_and_b32 s{sT1}, s{sT1}, 15')
            if t == 0:
                c.op(f's_mul_i32 s{sT2}, s{sT1}, 9216')
                c.op(f'v_add_u32 v{vOW[1]}, s{sT2}, v{vPA}')
            c.op(f's_and_b32 s{sT0}, s{sT0}, 1'); c.op(f's_lshl_b32 s{sT1}, s{sT1}, 1'); c.op(f's_add_u32 s{sT0}, s{sT0}, s{sT1}')
        c.op(f's_lshr_b32 s{sT1}, s{sT0}, 2'); c.op(f's_mul_i32 s{sT1}, s{sT1}, 20480')
        c.op(f's_bfe_u32 s{sT2}, s{sT0}, 0x10001'); c.op(f's_mul_i32 s{sT2}, s{sT2}, 9216'); c.op(f's_add_u32 s{sT1}, s{sT1}, s{sT2}')
        c.op(f's_and_b32 s{sT0}, s{sT0}, 1'); c.op(f's_lshl_b32 s{sT0}, s{sT0}, 3')
        c.op(f's_add_u32 s{sT0}, s{sT0}, s{sT1}'); c.op(f's_add_u32 s{sT0}, s{sT0}, 61440')
        c.op(f'v_add_u32 v{vOW[t]}, s{sT0}, v{vPA}')
    c.op(f's_lshl_b32 s{sT0}, s{sB}, 3'); c.op(f's_add_u32 s{sT0}, s{sT0}, s{sX}'); c.op(f's_lshl_b32 s{sT0}, s{sT0}, 7'); c.op(f's_add_u32 s{sT0}, s{sT0}, {FLAG_OFF + 4096}')
    c.op(f's_add_u32 s{sF1}, s12, s{sT0}'); c.op(f's_addc_u32 s{sF1+1}, s13, 0')
    c.op(f's_lshl_b32 s{sT0}, s{sLOC}, 7'); c.op(f's_add_u32 s{sT0}, s{sT0}, {FLAG_OFF + 16384}')
    c.op(f's_add_u32 s{sF2}, s12, s{sT0}'); c.op(f's_addc_u32 s{sF2+1}, s13, 0')
    c.op(f's_mul_i32 s{sT0}, s{sLOC}, {8 * PART2}'); c.op(f's_add_u32 s{sT0}, s{sT0}, {WS_PART}')
    srd(c, SPR, 12, 13, f's{sT0}', 8 * PART2)
    c.op(f's_mul_i32 s{sT1}, s{sX}, {PART2}'); c.op(f's_add_u32 s{sT0}, s{sT0}, s{sT1}')
    srd(c, SP, 12, 13, f's{sT0}', PART2)
    srd(c, SOUT, 54, 55, None, 1474560)
    out = []; i = 0; ops = c.ops
    while i < len(ops):
        if i + 1 < len(ops) and (ops[i + 1].startswith('s_addc') or ops[i + 1].startswith('s_cselect')):
            a, b = ops[i], ops[i + 1]
            out.append(lambda a=a, b=b: (EM[0].op(a), EM[0].op(b))); i += 2
        else:
            out.append(ops[i]); i += 1
    return out
EM = [None]

def tail_dma(em, s, orole=False):
    ops = []
    sc = ' sc1' if (orole and cfg.sc_ol) else ''
    for j in range(4 if (cfg.nopad and orole and em.tv == 3) else 5):
        def f(j=j):
            em.op(f's_add_u32 m0, s{sM0T}, {(s % 3) * 20480 + j * 1024}')
            if j == 0:
                if cfg.direct:
                    peer, ch = (0, s) if s < 3 else (1 + (s - 3) % 3, (s - 3) // 3)
                    em.op(f's_add_u32 s{sOFF}, s{sCH + ch}, s{sHB + peer}')
                elif cfg.chunk and s >= 3:
                    ch = (s - 3) // 3
                    if ch == 0: em.op(f's_mov_b32 s{sOFF}, s{sHB + 1 + (s - 3) % 3}')
                    else:
                        em.op(f's_lshl_b32 s{sOFF}, s{sSTR}, {ch - 1}')
                        em.op(f's_add_u32 s{sOFF}, s{sOFF}, s{sHB + 1 + (s - 3) % 3}')
                elif s % 3 == 0: em.op(f's_mov_b32 s{sOFF}, s{sHB + s // 3}')
                else: em.op(f's_add_u32 s{sOFF}, s{sOFF}, s{sSTR}')
            em.op(f'buffer_load_dwordx4 v{vOFFS[j]}, {sr(SD,4)}, s{sOFF} offen{sc} lds', tag=f'T{s}')
        ops.append(f)
    return ops

def flag_store(em, base, idx_s, lab, wave, off=0):
    t0, t1 = 60, 61
    em.op(f's_cmp_eq_u32 s{sW}, {wave}')
    em.op(f's_cbranch_scc0 {lab}')
    em.begin_opt()
    em.op(f's_lshl_b32 s{sT0}, s{idx_s}, 2')
    em.op(f'v_mov_b32 v{t0}, s{sT0}')
    em.op(f'v_mov_b32 v{t1}, s{sTAG}')
    em.op('s_mov_b64 exec, 1')
    em.op(f'global_store_dword v{t0}, v{t1}, s[{base}:{base+1}] offset:{off} sc1')
    em.op('s_mov_b64 exec, -1')
    em.end_opt()
    em.label(lab)

vPL0, vPL1 = 62, 63
def poll(em, base, mask, lab, off=0, keep=False):
    em.op(f'v_and_b32 v{vPL0}, {mask}, v{vLANE}')
    em.op(f'v_lshlrev_b32 v{vPL0}, 2, v{vPL0}')
    em.op(f's_mov_b32 s{sCNT}, 0x20000')
    if not keep: em.wait_vm0()
    em.label(lab)
    em.op(f'global_load_dword v{vPL1}, v{vPL0}, s[{base}:{base+1}] offset:{off} sc1')
    em.op(f's_sub_u32 s{sCNT}, s{sCNT}, 1')
    em.op(f's_cbranch_scc1 {lab}_done')
    em.wait_vm0()
    em.op(f'v_cmp_ne_u32 vcc, s{sTAG}, v{vPL1}')
    em.op('s_nop 4')
    em.op(f's_cbranch_vccz {lab}_done')
    em.op('s_sleep 1')
    em.op(f's_branch {lab}')
    em.label(f'{lab}_done')
    em.wait_vm0()

def tail(em, tv):
    nt, nq = [(3, 5), (3, 4), (2, 4), (2, 5)][tv]
    orole = tv >= 2
    em.tv = tv
    L = f'v{vLANE}'
    rf = cfg.rfrac / 100
    sc = ' sc1' if cfg.sc else ''
    ACC2 = 116; AF = [76, 88]; BF = [16, 36]; CO = 176
    t0, t1, t2, t3 = 56, 57, 58, 59
    sDONE = sT3
    em.op(f'v_lshlrev_b32 v{t0}, 4, v0')
    em.op(f'v_add_u32 v{t1}, 61440, v{t0}')
    npc = 3 if tv == 0 else 2
    k = 0; sts = []
    for c in ((2,) if cfg.direct else range(3)):
        for i in range(npc):
            em.op(f'ds_read_b128 {vr(CO + 4*k)}, v{t1} offset:{c * 20480 + i * 8192}')
            sts.append((CO + 4*k, c * 18432 + i * 8192)); k += 1
    def reads(s, step, st_):
        ops = []
        for t in range(nt):
            ops.append(f'ds_read_b64_tr_b16 {vr(AF[st_] + 4*t, 2)}, v{vA2[t]} offset:{(s % 3) * 20480 + step * 10240}')
            ops.append(f'ds_read_b64_tr_b16 {vr(AF[st_] + 4*t + 2, 2)}, v{vA2[t]} offset:{(s % 3) * 20480 + step * 10240 + 5120}')
        xs = [f'ds_read_b128 {vr(BF[st_] + 4*j)}, v{vB2} offset:{(s % 3) * 20480 + step * 9216 + j * 1024}' for j in range(nq)]
        return ops[0:2] + xs[0:1] + ops[2:] + xs[1:]
    def acc(t, j): return ACC2 + 4 * (j * nt + t)
    def mf(st_, first):
        return [mfma(acc(t, j), AF[st_] + 4*t, BF[st_] + 4*j, None if first else acc(t, j)) for j in range(nq) for t in range(nt)]
    for r, off in sts:
        em.op(f's_mov_b32 s{sT0}, {off}')
        em.op(f'buffer_store_dwordx4 {vr(r)}, v{t0}, {sr(SO,4)}, s{sT0} offen' + ['', ' sc1', ' nt', ' sc0'][cfg.sc_o], tag='CO0' if off < 18432 else 'CO1')
    for o in reads(0, 0, 0): em.op(o)
    em.op(f'v_lshlrev_b32 v{t1}, 4, {L}')
    em.op(f's_and_b32 s{sT1}, s{sW}, 1')
    em.op(f's_add_u32 s{sT2}, s{sT1}, {2 if orole else 0}'); em.op(f's_mul_i32 s{sT2}, s{sT2}, 9'); em.op(f's_add_u32 s{sT2}, s{sT2}, s{sQ0}'); em.op(f's_lshl_b32 s{sT2}, s{sT2}, 10')
    em.op(f'v_add_u32 v{t2}, s{sT2}, v{t1}')
    em.op(f's_mul_i32 s{sT1}, s{sT1}, 5120'); em.op(f's_add_u32 s{sT1}, s{sT1}, {(36 + (3 if tv == 1 else 0)) * 1024}')
    em.op(f'v_add_u32 v{t3}, s{sT1}, v{t1}')
    def pack(a, b):
        o = [f'v_cvt_pk_bf16_f32 v{a}, v{a}, v{a+1}', f'v_cvt_pk_bf16_f32 v{a+1}, v{a+2}, v{a+3}']
        if b is not None: o += [f'v_cvt_pk_bf16_f32 v{a+2}, v{b}, v{b+1}', f'v_cvt_pk_bf16_f32 v{a+3}, v{b+2}, v{b+3}']
        return o
    def st(a, va, off):
        def f():
            em.op(f's_mov_b32 s{sT0}, {off}')
            em.op(f'buffer_store_dwordx4 {vr(a)}, v{va}, {sr(SP,4)}, s{sT0} offen{sc}')
        return f
    carry = []
    for s in range(12):
        if s == 1 and orole and cfg.epoll:
            em.op(f'global_load_dword v{vPL1}, v{vPL0}, s[{sF1}:{sF1+1}] sc1')
        if cfg.onew and s > 0: em.wait_lgkm0()
        interleave(em, mf(0, s == 0), ([] if cfg.x_tno & 4 and 5 < s <= 8 else reads(s, 1, 1), 0, rf), (carry, 0.05, 0.95))
        if s == 1 and orole and cfg.epoll:
            em.op(f'v_cmp_ne_u32 vcc, s{sTAG}, v{vPL1}')
            em.op('s_nop 4')
            em.op(f's_cbranch_vccnz L_np{tv}')
            em.begin_opt()
            for f in tail_dma(em, 3, True): f()
            em.op(f's_mov_b32 s{sDONE}, 1')
            em.end_opt()
            em.label(f'L_np{tv}')
        carry = []
        if s < 11:
            if s == 0 and cfg.chunk: em.wait_vm_tag('CO0', lgkm0=True)
            elif s == 0: em.wait_vm0(); em.wait_lgkm0()
            elif s == cfg.chunk and cfg.chunk:
                em.wait_vm_tag('CO1'); em.wait_vm_tag(f'T{s+1}', lgkm0=True)
            else: em.wait_vm_tag(f'T{s+1}', lgkm0=True)
            em.barrier()
            em.st.stamp(f'T{s}')
        if cfg.tloop and s == 8:
            em.op('s_sub_u32 s79, s79, 1'); em.op('s_cmp_lg_u32 s79, 0'); em.op(f's_cbranch_scc1 L_tl{tv}')
            em.st.stamp('LBend')
        if cfg.tloop and s == 5:
            em.st.stamp('LB0')
            em.op('s_mov_b32 s79, 16'); em.label(f'L_tl{tv}')
        if s == 0 and tv == 2: flag_store(em, sF1, sJ, 'L_f1', 4)
        if cfg.chunk and s == cfg.chunk and tv == 3: flag_store(em, sF1, sJ, 'L_f1b', 6, 16)
        if cfg.chunk and s == (5 if cfg.direct else 2) and orole: em.op(f'global_load_dword v{vPL1}, v{vPL0}, s[{sF1}:{sF1+1}] offset:16 sc1')
        if cfg.chunk and s == (6 if cfg.direct else 3) and orole:
            em.op(f'v_cmp_ne_u32 vcc, s{sTAG}, v{vPL1}')
            em.op('s_nop 4')
            em.op(f's_cbranch_vccz L_p1c_{tv}')
            keep = em.save()[2]
            em.begin_opt()
            poll(em, sF1, 3, f'L_p1b_{tv}', 16, keep=True)
            em.end_opt()
            em.vm = keep
            em.label(f'L_p1c_{tv}')
        fill = []; dm = []
        if s < 11 and not (cfg.x_tno & 4 and 5 <= s < 8): fill += reads(s + 1, 0, 0)
        if s == 0 and orole and cfg.epoll:
            em.op(f's_mov_b32 s{sDONE}, 0')
            em.op(f'v_and_b32 v{vPL0}, 3, {L}'); em.op(f'v_lshlrev_b32 v{vPL0}, 2, v{vPL0}')
        if s + 3 <= 11:
            if not orole or s >= 2:
                dm = tail_dma(em, s + 3, orole); dm, carry = dm[:3], dm[3:]
                if 5 <= s < 8 and cfg.x_tno >> int(orole) & 1: dm = []; carry = []
            elif s == 1:
                if cfg.epoll:
                    em.op(f's_cmp_eq_u32 s{sDONE}, 1')
                    em.op(f's_cbranch_scc1 L_ep{tv}')
                    vm_before = em.save()[2]
                    em.begin_opt()
                poll(em, sF1, 3, f'L_p1_{tv}')
                for f in tail_dma(em, 3, True): f()
                if cfg.epoll:
                    em.end_opt()
                    em.label(f'L_ep{tv}')
                dm = tail_dma(em, 4, True)
        ins = []
        n = nt * nq
        if s == 11:
            groups = []
            for j in range(nq):
                groups.append((j * nt + 1, pack(acc(0, j), acc(1, j)) + [st(acc(0, j), t2, j * 1024)]))
                if nt == 3 and (j % 2 == 1 or j == nq - 1):
                    j0 = j - (j % 2)
                    groups.append((j * nt + 2, pack(acc(2, j0), acc(2, j) if j != j0 else None) + [st(acc(2, j0), t3, (j0 // 2) * 1024)]))
            lag = 4
            ins = [(g, (p + lag + 0.5) / n, (p + lag + 0.5) / n) for p, g in groups if p + lag < n]
            restg = [g for p, g in groups if p + lag >= n]
        interleave(em, mf(1, False), (dm, 0.05, 0.95), (fill, 0, rf), *ins)
    for g in restg:
        for o in g: emit(em, o)
    em.st.stamp('TP')
    sU, sDL = sT3, sT4
    if tv < 3:
        em.op(f's_lshl_b32 s{sU}, s{sW}, 3'); em.op(f's_add_u32 s{sU}, s{sU}, s{sX}')
        em.op(f's_lshl_b32 s{sT0}, s{sU}, 10')
        em.op(f'v_add_u32 v{t2}, s{sT0}, v{t1}')
        em.op(f's_mul_i32 s{sT0}, s{sU}, 57'); em.op(f's_lshr_b32 s{sT0}, s{sT0}, 9')
        em.op(f's_mul_i32 s{sT1}, s{sT0}, 9'); em.op(f's_sub_u32 s{sT1}, s{sU}, s{sT1}')
        em.op(f's_lshl_b32 s{sT0}, s{sT0}, 2'); em.op(f's_lshr_b32 s{sT0}, 0x8630, s{sT0}'); em.op(f's_and_b32 s{sT0}, s{sT0}, 15')
        em.op(f's_mov_b32 s{sDL}, 32')
        em.op(f's_cmp_lt_u32 s{sU}, 36')
        em.op(f's_cbranch_scc1 L_dec{tv}')
        em.begin_opt()
        em.op(f's_cmp_ge_u32 s{sU}, 41')
        em.op(f's_cselect_b32 s{sT0}, 5, 2')
        em.op(f's_cselect_b32 s{sT1}, 41, 36')
        em.op(f's_sub_u32 s{sT1}, s{sU}, s{sT1}')
        em.op(f's_cmp_eq_u32 s{sT1}, 2')
        em.op(f's_mov_b32 s{sDL}, 20480')
        em.op(f's_cselect_b32 s{sDL}, 0x40000000, s{sDL}')
        em.op(f's_lshl_b32 s{sT1}, s{sT1}, 2'); em.op(f's_lshr_b32 s{sT1}, 0x75420, s{sT1}'); em.op(f's_and_b32 s{sT1}, s{sT1}, 15')
        em.end_opt()
        em.label(f'L_dec{tv}')
        em.op(f's_lshl_b32 s{sT1}, s{sT1}, 4'); em.op(f's_mul_i32 s{sT2}, s{sB}, 144'); em.op(f's_add_u32 s{sT1}, s{sT1}, s{sT2}'); em.op(f's_mul_i32 s{sT1}, s{sT1}, 1280')
        em.op(f's_lshl_b32 s{sT0}, s{sT0}, 5'); em.op(f's_add_u32 s{sT1}, s{sT1}, s{sT0}')
        em.op(f's_mul_i32 s{sT0}, s{sJ}, 320'); em.op(f's_add_u32 s{sT1}, s{sT1}, s{sT0}')
        em.op(f'v_and_b32 v{t3}, 15, {L}'); em.op(f'v_mul_u32_u24 v{t3}, 1280, v{t3}')
        em.op(f'v_lshrrev_b32 v{t0}, 4, {L}'); em.op(f'v_lshl_add_u32 v{t3}, v{t0}, 3, v{t3}')
        em.op(f'v_add_u32 v{t3}, s{sT1}, v{t3}')
    em.wait_vm0(); em.barrier()
    em.st.stamp('TW')
    if tv == 3:
        flag_store(em, sF2, sX, 'L_f2', 7)
    else:
        if tv == 2:
            em.op(f's_cmp_ge_u32 s{sU}, 46')
            em.op(f's_cbranch_scc1 L_fin2')
        poll(em, sF2, 7, f'L_p2_{tv}')
        em.st.stamp('TF')
        for x in range(8):
            em.op(f's_mov_b32 s{sT0}, {x * PART2}')
            em.op(f'buffer_load_dwordx4 {vr(76 + 4*x)}, v{t2}, {sr(SPR,4)}, s{sT0} offen{sc}')
        if tv == 0:
            em.op(f's_or_b32 s{sT0}, s{sH}, s{sW}')
            em.op(f's_cmp_eq_u32 s{sT0}, 0')
            em.op('s_cbranch_scc0 L_nw')
            em.begin_opt()
            em.op(f's_lshl_b32 s{sT0}, s{sB}, 8'); em.op(f's_add_u32 s{sT0}, s{sT0}, {FLAG_OFF}')
            em.op(f'v_mov_b32 v60, s{sT0}'); em.op(f'v_mov_b32 v61, s{sTAG}')
            em.op('s_mov_b64 exec, 1')
            em.op('global_store_dword v60, v61, s[12:13]' + (' sc1' if cfg.osc in (1, 3) else ''))
            em.op('s_mov_b64 exec, -1')
            em.end_opt()
            em.label('L_nw')
        A = 108
        for x in range(8):
            for d in range(4):
                r = 76 + 4*x + d
                if x == 0:
                    em.op(f'v_lshlrev_b32 v{A+2*d}, 16, v{r}'); em.op(f'v_and_b32 v{A+2*d+1}, 0xffff0000, v{r}')
                else:
                    tp = A + 8 + 2 * (d & 1)
                    em.op(f'v_lshlrev_b32 v{tp}, 16, v{r}'); em.op(f'v_and_b32 v{tp+1}, 0xffff0000, v{r}')
                    em.op(f'v_pk_add_f32 {vr(A+2*d,2)}, {vr(A+2*d,2)}, {vr(tp,2)}')
        for d in range(4): em.op(f'v_cvt_pk_bf16_f32 v{A+d}, v{A+2*d}, v{A+2*d+1}')
        em.op(f'buffer_store_dwordx2 {vr(A,2)}, v{t3}, {sr(SOUT,4)}, 0 offen' + ['', ' sc1', ' nt', ' sc0 sc1'][cfg.osc])
        em.op(f'buffer_store_dwordx2 {vr(A+2,2)}, v{t3}, {sr(SOUT,4)}, s{sDL} offen' + ['', ' sc1', ' nt', ' sc0 sc1'][cfg.osc])
        if tv == 2: em.label('L_fin2')
    if cfg.diag: em.wait_vm0()
    em.st.flush(12, 0, sW, 244)
    em.op('s_endpgm')

def kernel_header(name):
    return f'.globl {name}\n.p2align 8\n.type {name},@function\n{name}:\n'
def kernel_desc(name, vgpr, sgpr=102):
    return f'''.amdhsa_kernel {name}
  .amdhsa_next_free_vgpr {vgpr}
  .amdhsa_next_free_sgpr {sgpr}
  .amdhsa_accum_offset {(vgpr + 3) // 4 * 4}
  .amdhsa_group_segment_fixed_size 0
  .amdhsa_kernarg_size 64
  .amdhsa_user_sgpr_count 2
  .amdhsa_user_sgpr_kernarg_segment_ptr 1
  .amdhsa_system_sgpr_workgroup_id_x 1
.end_amdhsa_kernel
'''

def gen_k1():
    em = Em(); EM[0] = em
    k1_prologue(em)
    st0 = em.save()
    em.label('k1_body_start')
    for qh in range(2):
        sts = []
        for typ in ((1, 0) if cfg.n0 else (0,)):
            if qh or typ == 0 and cfg.n0: em.label(f'L_qp{qh}{typ}')
            em.restore(st0)
            em.typ = typ
            k1_qproj(em, qh, typ)
            k1_qk(em, qh)
            sts.append(em.save())
            if typ == 1: em.op(f's_branch L_sm{qh}')
        if len(sts) == 2:
            t = [[e[0] for e in s[2]] for s in sts]
            lo, hi = sorted(range(2), key=lambda i: len(t[i]))
            assert t[hi][len(t[hi]) - len(t[lo]):] == t[lo], t
            em.restore(sts[hi]); em.hist = []
            em.label(f'L_sm{qh}')
        k1_sm0(em, qh)
        k1_pv(em, qh)
    em.label('k1_body_end')
    em.label('L_k1_exit')
    em.op('s_endpgm')
    return em

def main():
    ref = open('cdna_kernels/' + NAME + '.s.ref').read().split('\n')
    head = [l for l in ref[:9]]
    k1 = gen_k1()
    KN = NAME + '_kernel'
    out = '\n'.join(head) + '\n'
    out += f'; @launch grid=(256,1,1) block=(512,1,1) lds={LDS1}\n'
    out += '.amdgcn_target "amdgcn-amd-amdhsa--gfx950"\n.text\n'
    out += kernel_header(KN) + k1.text()
    out += '.section .rodata,"a"\n.p2align 6\n' + kernel_desc(KN, 256)
    open(sys.argv[1], 'w').write(out)
    print('k1 instrs', k1.count, 'nops', k1.nops, file=sys.stderr)
main()
```

```python
import sys, struct, math
from em import Em, interleave, emit

NAME = 'standalone__gqa_block_cached__near_ridge'
def fbits(x): return struct.unpack('<I', struct.pack('<f', x))[0]

class Cfg:
    nt_kv = True
    nt_w = False
    nt_k2 = False
    two_types = True
    pre = True
    code_pre = True
    diag = False
    pk = True
    rfrac = 60
    prio = 0
    x_noexp = 0
    x_nopw = 0
    efrac = 95
    loopb = -1
    st = 0
    dbg = 0
    n0 = 1
    inpv0 = 0
    inpv1 = 0
    pfa = 5
    kq = 12
    kq0 = 7
    wont = 0
    vrf = 60
    x_ren = 0
    vrole = 1
    vfirst = 0
    vold = 0
    vh0 = 12
    wsoff = 0
    cearly = 1
    osc = 0
    woe = 1
    vby = 1
    vbyn = 12
    emax = 0
    wosm = 0
    qlate1 = 1
    g2m0 = 60
    g2m1 = 60
    qfm = 1
    tloop = 0
    x_tno = 0
    pf0x = 0
    nu = 6
    pfs = 0
    nopad = 1
    pfxp = 10
    pfw = 10
    vpf = 0
    vpq = 0
    vpq_in = 4
    vpnt = 1
    spin = 0
    spst = -1
    spty = -1
    direct = 1
    chunk = 1
    onew = 1
    qlate = 0
    drole = 0
    in0 = 0
    in1 = 0
    epoll = 1
    pfx = 10
    opair = 1
    tsq = 1
    g2e = 0
    wo0 = 1
    pfnt = 0
    pfown = 10
    pfall = 1
    nt_k = 1
    nt_v = 1
    eager = 3
    eagerv = 0
    qwi = 1
    g2lo = 0
    g2hi = 30
    valo = 0
    vahi = 60
    pf1 = 10
    v0e = 0
    kqb = 0
    kqb0 = 7
    vb = 0
    vreg = 0
    nvy = 4
    sc_o = 1
    sc_ol = 1
    rt = 0
    qloop = 0
    x_qnodma = 0
    x_qnord = 0
    dlo = 10
    dhi = 95
    dsplit = 3
    x_delay = 0
    wopre = 1
    sc = 1
    x_nobar = 0
    x_nord = 0
    x_nodma = 0
cfg = Cfg()
cfg.pvst = (3,7); cfg.qst = (0,8,)
if 'pvall=1' in sys.argv: sys.argv.remove('pvall=1'); cfg.pvst = (0,1,2,3,4,5,6,7); cfg.qst = (); cfg.fewst = True
else: cfg.fewst = False
for a in sys.argv[2:]:
    k, v = a.split('='); setattr(cfg, k, type(getattr(cfg, k))(int(v)))
STSETS = {0: 'S0 BQ PV0 BO T2 TW', 1: 'ka pi si S0 B0 B8 BQ K0 K1 QKend BM exp0 PV0', 2: 'PV0 PB0 PB1 PB2 PB3 PB4 PB5 PB6', 9: 'BM exp0 PV0 PB3 PB6 PB7 BO T0', 3: 'BO T0 T1 T2 TW TF', 4: 'K0 K1 QKend BM exp0 PV0 PB3 PB7 BO T0', 8: '', 5: 'S0 LB0 LBend BQ', 6: 'S0 B0 B4 B7 B9 BQ', 10: 'BQ K0 K1 QKend BM PV0', 7: 'BO T0 T1 T2 T3 T4 T6 T8 T10 TP'}
cfg.stlist = ['rt0', 'start'] + STSETS[cfg.st].split()[:6] + ['end', 'rt_end']
cfg.pvst = range(8); cfg.qst = range(10)
cfg.types = bool(cfg.n0)

def vr(b, n=4): return f'v[{b}:{b + n - 1}]' if n > 1 else f'v{b}'
def sr(b, n): return f's[{b}:{b + n - 1}]'
MF = 'v_mfma_f32_16x16x32_bf16'
def mfma(d, a, b, c=None):
    return f'{MF} {vr(d)}, {vr(a)}, {vr(b)}, ' + ('0' if c is None else vr(c))

FLAG_OFF = 28 << 20
PART2 = 47104
O_HEAD = 55296
WS_PART = 16 << 20
PART_TILE = 90 * 1024

def srd(em, d, base_lo, base_hi, off_sgpr, size):
    if off_sgpr is None:
        em.op(f's_mov_b32 s{d}, s{base_lo}'); em.op(f's_mov_b32 s{d+1}, s{base_hi}')
    else:
        em.op(f's_add_u32 s{d}, s{base_lo}, {off_sgpr}'); em.op(f's_addc_u32 s{d+1}, s{base_hi}, 0')
    em.op(f's_mov_b32 s{d+2}, {size}')
    em.op(f's_mov_b32 s{d+3}, 0x20000')

_lab = [0]
DIAG_OFF = 64 << 20
class Stamps:
    def __init__(self, em):
        self.em = em; self.n = 0; self.names = []
        if cfg.diag:
            for i in range(len(cfg.stlist)): em.op(f's_mov_b32 s{60 + 2*i}, 0')
    def stamp(self, name, real=False):
        if cfg.spin:
            L = ['S0', 'BQ', 'BM', 'PV0', 'BO', 'T2', 'TW', 'TF']
            if name == 'rt0' or (cfg.spst >= 0 and name == L[cfg.spst]):
                r = 76 if name == 'rt0' else 78
                self.em.wait_lgkm0()
                self.em.op(f's_memrealtime s[{r}:{r+1}]'); self.em.op('s_waitcnt lgkmcnt(0)')
                if name == 'rt0': self.em.op('s_mov_b32 s78, s76')
            return
        if not cfg.diag or name not in cfg.stlist: return
        em = self.em; i = cfg.stlist.index(name)
        em.wait_lgkm0()
        em.op(('s_memrealtime' if (real or cfg.rt) else 's_memtime') + f' s[{60 + 2*i}:{61 + 2*i}]')
        em.op('s_waitcnt lgkmcnt(0)')
    def flush(self, ws_lo, kidx, wave_s, tv):
        if cfg.spin:
            em = self.em; _lab[0] += 1
            if cfg.spty >= 0:
                em.op(f's_cmp_eq_u32 s39, {cfg.spty}'); em.op('s_cselect_b32 s78, s78, s76')
            em.op('s_sub_u32 s78, s78, s76'); em.op(f's_add_u32 s78, s78, {cfg.spin}')
            em.label(f'L_sp{_lab[0]}')
            em.op('s_sleep 2')
            em.op('s_memrealtime s[74:75]'); em.op('s_waitcnt lgkmcnt(0)')
            em.op('s_sub_u32 s74, s74, s76'); em.op('s_cmp_lt_u32 s74, s78'); em.op(f's_cbranch_scc1 L_sp{_lab[0]}')
            return
        if not cfg.diag: return
        em = self.em
        self.stamp('end'); self.stamp('rt_end', real=True)
        if cfg.dbg:
            _lab[0] += 1
            em.op('s_load_dwordx2 s[56:57], s[0:1], 48')
            em.op(f's_and_b32 s58, s2, 0xdf'); em.op(f's_or_b32 s58, s58, s{wave_s}'); em.op('s_cmp_eq_u32 s58, 0')
            em.op('s_waitcnt lgkmcnt(0)')
            em.op(f's_cbranch_scc0 L_dbg{_lab[0]}')
            em.op(f'v_mov_b32 v{tv}, s2')
            for k, i in enumerate([2, 3, 4, 13, 6, 9, 11, 12]):
                em.op(f's_sub_u32 s58, s{60 + 2*i}, s{60 if i == 13 else 62}')
                em.op(f'v_mov_b32 v{tv+1}, s58')
                em.op(f'global_store_dword v{tv}, v{tv+1}, s[56:57] offset:{4*k}')
            em.label(f'L_dbg{_lab[0]}')
            return
        em.op(f's_lshl_b32 s56, s2, 3'); em.op(f's_add_u32 s56, s56, s{wave_s}'); em.op('s_lshl_b32 s56, s56, 7')
        em.op(f's_add_u32 s56, s56, {DIAG_OFF + (kidx << 20)}')
        em.op(f's_add_u32 s56, s{ws_lo}, s56'); em.op(f's_addc_u32 s57, s{ws_lo+1}, 0')
        em.op(f'v_mov_b32 v{tv}, 0')
        for i in range(len(cfg.stlist)):
            em.op(f'v_mov_b32 v{tv+1}, s{60 + 2*i}')
            em.op(f'global_store_dword v{tv}, v{tv+1}, s[56:57] offset:{4*i}')
        print('stamps', kidx, cfg.stlist, file=sys.stderr)

SX, SWQ, SK, SV, SO = 16, 20, 24, 28, 32
sW, sW3072, sW1024, sTYPE, sOFF, sT0, sT1, sT2, sC, sB, sH, sJ, sLOC, sX = 36, 37, 38, 39, 40, 41, 42, 43, 44, 52, 46, 47, 48, 53
vLANE, vXO, vWO, vK0, vK1, vVO = 1, 2, 3, 4, 5, 6
vRA = [7, 8]
vRB = [9, 10, 11]
vRC = [12, 13, 14]
vT = 15
vOW = [8, 254, 255]
vVW, vVW2 = 7, 8
vPA, vPW, vMS = 240, 242, 243
vPW2 = 241
TMP = list(range(244, 256))
STG = 43008
PBASE, VBASE, MAXB, SUMB = 0, 55296, 153600, 155648
NV = 4
def vslot(s): return [3, 1, 2, 0][s % 4]
LDS1 = SUMB + 12 * 512
def kop(kt, ks): return 16 + 4 * (kt * 6 + ks)
def sreg(kt, qt):
    if kt < 2: return 116 + 4 * (qt * 2 + kt)
    i = qt * 2 + (kt - 2)
    return 16 + 4 * i if i < 12 else 188 + 4 * (i - 12)
ACC = 116
MC = 212
SUM = 221
SUMP = 222
QF = 224
OACC0 = [116 + 4*i for i in range(15)]
OACC1 = [120 + 8*i for i in range(9)] + [100, 80, 208]
PAF0 = [[176, 180, 184], [104, 108, 112]]
PAF1 = [[200, 192, 60], [104, 108, 112]]
PBF0 = [[64, 68, 72, 76, 80], [84, 88, 92, 96, 100]]
PBF1 = [[64, 68, 72, 76], [84, 88, 92, 96]]
INV0 = 212
NEXP1 = 4


sKB = 57
vKR = [250, 251]
vKR2 = [246, 247]
vVO3 = 252
def k_dma_ops(em, half):
    nt = ' nt' if cfg.nt_kv and cfg.nt_k else ''
    ops = []
    for c in range(3):
        for k in range(2):
            for p in range(2):
                def f(c=c, k=k, p=p):
                    em.op(f's_add_u32 m0, s{sKB}, {(k * 3 + c) * 2048 + p * 1024 - c * 128}')
                    em.op(f's_mov_b32 s{sOFF}, {(half * 2 + k) * 6144}')
                    em.op(f'buffer_load_dwordx4 v{vK1 if p else vK0}, {sr(SK,4)}, s{sOFF} offen offset:{c*128}{nt} lds', tag=f'K{half}_{c * 2 + k}')
                ops.append(f)
    return ops
def k_rd_ops(half, u):
    c, k = divmod(u, 2)
    if cfg.qfm:
        return [f'ds_read_b64 {vr(kop(half * 2 + k, 2 * c + e) + 2 * h, 2)}, v{(vKR + vKR2)[e + 2 * h]} offset:{(k * 3 + c) * 2048}' for e in range(2) for h in range(2)]
    return [f'ds_read_b128 {vr(kop(half * 2 + k, 2 * c + e))}, v{vKR[e]} offset:{(k * 3 + c) * 2048}' for e in range(2)]
def k_fetch(em, half, nxt, u0=0, u1=6):
    nr = 4 if cfg.qfm else 2
    if cfg.qfm:
        for e in range(2): em.op(f'v_xor_b32 v{vKR2[e]}, 32, v{vKR[e]}')
    for u in range(u0, u1):
        em.wait_vm_tag(f'K{half}_{u}')
        for o in k_rd_ops(half, u): em.op(o)
        if nxt and u > u0:
            em.waitcnt(lgkm=nr); em.lgkm = em.lgkm[-nr:]
            for f in nxt[2 * u - 2: 2 * u]: f()
    if nxt:
        em.wait_lgkm0()
        for f in nxt[2 * u1 - 2: 2 * u1]: f()
sKB2 = 50
vVO4 = 112
def va_ops(em, partner=False):
    nt = ' nt' if cfg.nt_kv and cfg.nt_v else ''
    ops = []
    for rg in range(4):
        for c in range(3):
            def f(c=c, rg=rg):
                em.op(f's_add_u32 m0, s{sKB2 if partner else sKB}, {rg * 3072 + c * 896}')
                em.op(f's_mov_b32 s{sOFF}, {rg * 3072 + (256 * 384 if partner else 0)}')
                em.op(f'buffer_load_dwordx4 v{vVO4 if partner else vVO3}, {sr(SV,4)}, s{sOFF} offen offset:{c*128}{nt} lds', tag='VB' if partner else 'VA')
            ops.append(f)
    return ops

def stage_dma_ops(em, s, qh):
    nt = ' nt' if cfg.nt_w else ''
    slot = (s % 3) * 18432
    ops = []
    for c in range(3):
        def f(c=c):
            em.op(f's_add_u32 m0, s{sW3072}, {VBASE + (s % 3) * 24576 + c * 896}')
            if c == 0: em.op(f's_mov_b32 s{sOFF2}, {s * 786432}')
            em.op(f'buffer_load_dwordx4 v{vWO}, {sr(SWQ,4)}, s{sOFF2} offen offset:{c*128}{nt} lds', tag=f'S{s}')
        ops.append(f)
    for j in range(2):
        def f(j=j):
            em.op(f's_add_u32 m0, s{sW1024}, {slot + j * 8192}')
            em.op(f's_mov_b32 s{sOFF}, {s * 128 + j * 81920}')
            em.op(f'buffer_load_dwordx4 v{vXO}, {sr(SX,4)}, s{sOFF} offen{nt} lds', tag=f'S{s}')
        ops.append(f)
    if qh == 1:
        def f():
            _lab[0] += 1
            lab = f'L_x{_lab[0]}'
            em.op(f's_cmp_lt_u32 s{sW}, 6')
            em.op(f's_cbranch_scc0 {lab}')
            em.begin_opt()
            em.op(f's_add_u32 m0, s{sW1024}, {slot + 12288}')
            em.op(f's_mov_b32 s{sOFF}, {s * 128 + 122880}')
            em.op(f'buffer_load_dwordx4 v{vXO}, {sr(SX,4)}, s{sOFF} offen{nt} lds', tag=f'S{s}')
            em.end_opt()
            em.label(lab)
        ops.insert(0, f)
    return ops

def v_dma_ops(em, s):
    nt = ' nt' if cfg.nt_kv and cfg.nt_v else ''
    ops = []
    for c in range(3):
        def f(c=c):
            em.op(f's_add_u32 m0, s{sW3072}, {VBASE + vslot(s) * 24576 + c * 896}')
            em.op(f's_mov_b32 s{sOFF}, {(128 * (s & 3) + 32 * (s >> 2)) * 384}')
            em.op(f'buffer_load_dwordx4 v{vVO}, {sr(SV,4)}, s{sOFF} offen offset:{c*128}{nt} lds', tag=f'V{s}')
        ops.append(f)
    return ops

sDG = 49
sPFS, sPFB = 45, 50
sOFF2 = 3
vPF = 241
def pf_ops():
    if not cfg.pre: return []
    nt = ' nt' if cfg.nt_w else ''
    return [f'global_load_dwordx4 {vr(112)}, v{vPF}, s[{sPFB}:{sPFB+1}]{nt}', f'v_add_u32 v{vPF}, s{sPFS}, v{vPF}']
sTAG, sSTR, sF1, sF2, sHB, sM0T, sQ0, sNH, sCNT = 88, 89, 90, 92, 94, 98, 99, 100, 101
VST = 64
def v_reg_ops(em):
    nt = ' nt' if cfg.nt_kv and cfg.nt_v else ''
    ops = []
    for s in range(4, 8):
        for c in range(3):
            def f(s=s, c=c):
                em.op(f's_mov_b32 s{sOFF}, {(128 * (s & 3) + 32 * (s >> 2)) * 384}')
                em.op(f'buffer_load_dwordx4 {vr(VST + 4 * ((s - 4) * 3 + c))}, v{vVO}, {sr(SV,4)}, s{sOFF} offen offset:{c*128}{nt}', tag=f'V{s}')
            ops.append(f)
    return ops
def v_put_ops(s):
    slot = vslot(s)
    return [f'ds_write_b128 v{vVW if slot < 2 else vVW2}, {vr(VST + 4 * ((s - 4) * 3 + c))} offset:{(slot % 2) * 24576 + c * 1024}' for c in range(3)]

vPF2 = 254
VTMP = [248, 249, 253]
def pf2_ops():
    nt = ' nt' if cfg.nt_w else ''
    return [f'global_load_dwordx4 {vr(112)}, v{vPF2}, s[{sPFB}:{sPFB+1}]{nt}', f'v_add_u32 v{vPF2}, s{sPFS}, v{vPF2}']

def v_pf_ops(em, blk_delta=0):
    nt = ' nt' if cfg.vpnt else ''
    ops = []
    for s in range(4, 8):
        for c in range(3):
            def f(s=s, c=c):
                em.op(f's_mov_b32 s{sOFF}, {(128 * (s & 3) + 32 * (s >> 2)) * 384 + blk_delta}')
                em.op(f's_mov_b32 m0, {MAXB + 640}')
                em.op(f'buffer_load_dwordx4 v{vVO}, {sr(SV,4)}, s{sOFF} offen offset:{c*128}{nt} lds', tag='VP')
            ops.append(f)
    return ops

def k1_prologue(em):
    em.op('s_cmp_ge_u32 s2, 256')
    em.op('s_cbranch_scc1 L_k1_exit')
    em.st = Stamps(em); em.st.stamp('rt0', real=True); em.st.stamp('start')
    em.op('s_load_dwordx8 s[4:11], s[0:1], 0')
    em.op('s_load_dwordx2 s[12:13], s[0:1], 56')
    em.op('s_load_dwordx2 s[14:15], s[0:1], 32')
    em.op('s_load_dwordx2 s[54:55], s[0:1], 40')
    em.op(f'v_and_b32 v{vLANE}, 63, v0')
    em.op(f'v_lshrrev_b32 v{vT}, 6, v0')
    em.op(f's_and_b32 s{sX}, s2, 7')
    em.op(f's_lshr_b32 s{sLOC}, s2, 3')
    em.op(f'v_readfirstlane_b32 s{sW}, v{vT}')
    t0, t1, t2, t3, t4, t5 = TMP[:6]
    L = f'v{vLANE}'
    em.op(f's_and_b32 s{sJ}, s{sLOC}, 3')
    em.op(f's_lshr_b32 s{sB}, s{sLOC}, 2')
    em.op(f's_lshl_b32 s{sH}, s{sX}, 2')
    em.op(f's_add_u32 s{sH}, s{sH}, s{sJ}')
    em.op(f's_and_b32 s{sTYPE}, s{sB}, 1')
    em.op(f's_lshl_b32 s{sT0}, s{sLOC}, 1'); em.op(f's_mul_i32 s{sT0}, s{sT0}, 12288'); em.op(f's_mul_i32 s{sT1}, s{sX}, 1536'); em.op(f's_add_u32 s{sT0}, s{sT0}, s{sT1}')
    em.op(f's_lshl_b32 s{sT1}, s{sW}, 9'); em.op(f's_add_u32 s{sT0}, s{sT0}, s{sT1}')
    em.op(f'v_lshrrev_b32 v{t3}, 5, {L}'); em.op(f'v_mul_u32_u24 v{t3}, 12288, v{t3}')
    em.op(f'v_and_b32 v{t4}, 31, {L}'); em.op(f'v_lshlrev_b32 v{t4}, 4, v{t4}')
    em.op(f'v_add3_u32 v{t5}, v{t3}, v{t4}, s{sT0}')
    em.op(f'v_lshrrev_b32 v{t0}, 3, {L}')
    em.op(f'v_and_b32 v{t1}, 7, {L}')
    em.op(f'v_lshrrev_b32 v{t2}, 4, {L}')
    em.op(f's_mul_i32 s{sT0}, s{sLOC}, 36'); em.op(f's_lshl_b32 s{sT2}, s{sW}, 3'); em.op(f's_add_u32 s{sT0}, s{sT0}, s{sT2}'); em.op(f's_sub_u32 s{sT0}, s{sT0}, 24')
    em.op(f'v_add_u32 v{t3}, s{sT0}, v{t0}')
    em.op(f's_cmp_lt_u32 s{sW}, 3')
    em.op(f's_cselect_b64 vcc, -1, 0')
    em.op(f's_movk_i32 s{sPFS}, 128')
    em.op(f's_cselect_b32 s{sPFS}, 786432, s{sPFS}')
    for dst, dr, dw in ((vPF, 0, 0), (vPF2, 144, 98304) if not cfg.pfall else (vPF2, -144 & 0xffffffff, -98304 & 0xffffffff)):
        if dst == vPF2 and cfg.pf1 >= 10 and not cfg.pfall: continue
        if dst == vPF2 and cfg.pf0x:
            em.op(f's_mul_i32 s{sT1}, s{sTYPE}, {-288 & 0xffffffff}'); em.op(f's_add_u32 s{sT1}, s{sT1}, 144')
            em.op(f'v_add_u32 v{t4}, s{sT1}, v{t3}'); em.op(f'v_min_u32 v{t4}, 1151, v{t4}')
            em.op(f'v_mul_u32_u24 v{t4}, 1280, v{t4}')
            em.op(f'v_lshl_add_u32 v{t4}, v{t1}, 4, v{t4}')
            em.op(f's_mul_i32 s{sT1}, s{sTYPE}, {-196608 & 0xffffffff}'); em.op(f's_add_u32 s{sT1}, s{sT1}, 98304')
            em.op(f'v_add_u32 v{dst}, s{sT1}, v{t5}')
            em.op(f'v_cndmask_b32 v{dst}, v{t4}, v{dst}, vcc')
            em.op(f's_xor_b32 s{sT1}, s{sTYPE}, 1'); em.op(f's_mul_i32 s{sT1}, s{sT1}, {cfg.pfx}'); em.op(f's_mul_i32 s{sT1}, s{sT1}, s{sPFS}')
            em.op(f'v_add_u32 v{dst}, s{sT1}, v{dst}')
            continue
        em.op(f'v_add_u32 v{t4}, {dr}, v{t3}'); em.op(f'v_min_u32 v{t4}, 1151, v{t4}')
        em.op(f'v_mul_u32_u24 v{t4}, 1280, v{t4}')
        em.op(f'v_lshl_add_u32 v{t4}, v{t1}, 4, v{t4}')
        em.op(f'v_add_u32 v{dst}, {dw}, v{t5}')
        em.op(f'v_cndmask_b32 v{dst}, v{t4}, v{dst}, vcc')
    if cfg.pf1 < 10:
        em.op(f's_mul_i32 s{sT0}, s{sPFS}, {cfg.pf1}'); em.op(f'v_add_u32 v{vPF2}, s{sT0}, v{vPF2}')
    em.op(f's_and_b32 s{sDG}, s{sW}, 3')
    em.op(f's_mul_i32 s{sW3072}, s{sW}, 3072')
    em.op(f's_lshl_b32 s{sW1024}, s{sW}, 10')
    em.op(f's_and_b32 s{sT0}, s{sW}, 1')
    em.op(f's_lshl_b32 s{sT1}, s{sT0}, 2')
    em.op(f'v_add_u32 v{t3}, s{sT1}, v{t2}')
    em.op(f'v_xor_b32 v{t3}, v{t3}, v{t1}')
    em.op(f'v_add_u32 v{t4}, s{sT2}, v{t0}')
    em.op(f'v_mul_u32_u24 v{vXO}, 1280, v{t4}')
    em.op(f'v_lshl_add_u32 v{vXO}, v{t3}, 4, v{vXO}')
    em.op(f'v_and_b32 v{t3}, 1, v{t2}')
    em.op(f'v_lshl_add_u32 v{t3}, v{t3}, 1, s{sT1}')
    em.op(f'v_xor_b32 v{t3}, v{t3}, v{t1}')
    em.op(f'v_mul_u32_u24 v{vWO}, 12288, v{t4}')
    em.op(f'v_lshl_add_u32 v{vWO}, v{t3}, 4, v{vWO}')
    em.op(f's_lshl_b32 s{sT2}, s{sW}, 6')
    em.op(f'v_add_u32 v{t4}, s{sT2}, v{t0}')
    em.op(f'v_mul_u32_u24 v{t4}, 384, v{t4}')
    em.op(f'v_xor_b32 v{t3}, v{t2}, v{t1}')
    em.op(f'v_lshl_add_u32 v{vK0}, v{t3}, 4, v{t4}')
    em.op(f'v_xor_b32 v{vK1}, 64, v{vK0}')
    em.op(f'v_add_u32 v{vK1}, {8 * 384}, v{vK1}')
    em.op(f'v_lshlrev_b32 v{t3}, 1, v{t2}')
    em.op(f'v_xor_b32 v{t3}, v{t3}, v{t1}')
    em.op(f'v_lshl_add_u32 v{vVO3}, v{t3}, 4, v{t4}')
    em.op(f's_and_b32 s{sT1}, s{sW}, 6'); em.op(f's_lshr_b32 s{sKB}, 0x27, s{sT1}'); em.op(f's_and_b32 s{sKB}, s{sKB}, 3')
    em.op(f's_lshl_b32 s{sKB}, s{sKB}, 1'); em.op(f's_add_u32 s{sKB}, s{sKB}, s{sT0}'); em.op(f's_mul_i32 s{sKB}, s{sKB}, 12288'); em.op(f's_add_u32 s{sKB}, s{sKB}, {VBASE}')
    em.op(f'v_bfe_u32 v{t3}, {L}, 3, 1'); em.op(f'v_lshlrev_b32 v{t3}, 10, v{t3}')
    em.op(f'v_lshl_add_u32 v{t3}, v{t1}, 7, v{t3}')
    em.op(f'v_bfe_u32 v{t4}, {L}, 1, 3')
    em.op(f'v_xor_b32 v{t4}, v{t4}, v{t2}'); em.op(f'v_lshlrev_b32 v{vT}, 4, v{t4}')
    em.op(f'v_add_u32 v{vRA[0]}, v{t3}, v{vT}')
    if cfg.qfm:
        em.op(f'v_bfe_u32 v{t4}, {L}, 1, 3'); em.op(f'v_lshrrev_b32 v{t5}, 5, {L}'); em.op(f'v_xor_b32 v{t4}, v{t4}, v{t5}')
        em.op(f'v_lshl_add_u32 v{t3}, v{t4}, 4, v{t3}')
        em.op(f'v_and_b32 v{t4}, 1, v{t2}'); em.op(f'v_lshl_add_u32 v{t3}, v{t4}, 3, v{t3}')
        em.op(f'v_add_u32 v{vKR[0]}, s{sKB}, v{t3}')
    else:
        em.op(f'v_add_u32 v{vKR[0]}, s{sKB}, v{vRA[0]}')
    em.op(f'v_xor_b32 v{vKR[1]}, 64, v{vKR[0]}')
    em.op(f's_lshr_b32 s{sT1}, s{sW}, 2'); em.op(f's_lshl_b32 s{sT1}, s{sT1}, 6')
    em.op(f's_lshl_b32 s{sT0}, s{sDG}, 3'); em.op(f's_add_u32 s{sT0}, s{sT0}, s{sT1}')
    em.op(f'v_add_u32 v{t3}, s{sT0}, v{t0}')
    em.op(f'v_mul_u32_u24 v{vVO}, 384, v{t3}')
    em.op(f'v_lshlrev_b32 v{t3}, 1, v{t2}')
    em.op(f'v_xor_b32 v{t3}, v{t3}, v{t1}')
    em.op(f'v_lshl_add_u32 v{vVO}, v{t3}, 4, v{vVO}')
    em.op(f's_mul_i32 s{SX+3}, s{sB}, 184320')
    em.op(f's_mul_i32 s{SWQ+3}, s{sH}, 384')
    em.op(f's_lshl_b32 s{sT1}, s{sB}, 5'); em.op(f's_add_u32 s{sT1}, s{sT1}, s{sH}')
    em.op(f's_mul_i32 s{sT2}, s{sT1}, 196608')
    em.op(f's_mul_i32 s{SO+3}, s{sT1}, {O_HEAD}')
    em.op(f's_lshl_b32 s{sT0}, s{sB}, 8'); em.op(f's_add_u32 s{sT0}, s{sT0}, {FLAG_OFF}')
    em.op(f's_mov_b32 s{SX+2}, 184320'); em.op(f's_sub_u32 s{SWQ+2}, 7864320, s{SWQ+3}')
    em.op(f's_cmp_lt_u32 s{sW}, 3')
    em.op('s_waitcnt lgkmcnt(0)')
    em.st.stamp('ka')
    if cfg.diag: em.op(f's_cmp_lt_u32 s{sW}, 3')
    em.op(f's_cselect_b64 s[{sPFB}:{sPFB+1}], s[10:11], s[4:5]')
    for i in range(0 if cfg.pfall else 3):
        for o in pf_ops(): em.op(o)
    if cfg.cearly:
        em.op('s_getpc_b64 s[58:59]')
        em.label('L_pce')
        em.op('s_add_u32 s58, s58, k1_body_start-L_pce')
        em.op('s_addc_u32 s59, s59, 0')
        em.op(f's_and_b32 s{sT1}, s{sLOC}, 15')
        em.op(f's_lshl_b32 s{sT1}, s{sT1}, 13')
        em.op(f'v_lshlrev_b32 v{TMP[11]}, 4, v0')
        em.op(f'v_add_u32 v{TMP[11]}, s{sT1}, v{TMP[11]}')
        em.op(f'v_min_u32 v{TMP[11]}, k1_body_end-k1_body_start-16, v{TMP[11]}')
        em.op(f'global_load_dwordx4 {vr(112)}, v{TMP[11]}, s[58:59]')
    if cfg.wsoff:
        em.op(f's_add_u32 s12, s12, {cfg.wsoff << 20}'); em.op('s_addc_u32 s13, s13, 0')
    em.op(f's_load_dword s{sTAG}, s[12:13], s{sT0}')
    em.op(f's_add_u32 s{SWQ}, s10, s{SWQ+3}'); em.op(f's_addc_u32 s{SWQ+1}, s11, 0'); em.op(f's_mov_b32 s{SWQ+3}, 0x20000')
    em.op(f's_add_u32 s{SX}, s4, s{SX+3}'); em.op(f's_addc_u32 s{SX+1}, s5, 0'); em.op(f's_mov_b32 s{SX+3}, 0x20000')
    srd(em, SK, 6, 7, f's{sT2}', 196608); srd(em, SV, 8, 9, f's{sT2}', 196608)
    if cfg.n0 or cfg.pfall:
        em.op(f's_cmp_eq_u32 s{sTYPE}, 1')
        em.op('s_cbranch_scc0 L_nok1')
        em.begin_opt()
        em.op(f's_cmp_lt_u32 s{sW}, 3')
        em.op('s_cbranch_scc0 L_pfx')
        if cfg.pfs:
            em.op(f'v_add_u32 v{vPF}, {cfg.pfs * 786432}, v{vPF}'); em.op(f'v_add_u32 v{vPF2}, {cfg.pfs * 786432}, v{vPF2}')
        for i in range(cfg.pfw - cfg.pfs):
            for o in pf2_ops() + pf_ops(): em.op(o)
        em.op('s_branch L_nok1')
        em.label('L_pfx')
        if cfg.pfs: em.op(f'v_add_u32 v{vPF2}, {cfg.pfs * 128}, v{vPF2}')
        for i in range(cfg.pfxp - cfg.pfs):
            for o in pf2_ops(): em.op(o)
        for i in range(cfg.pfx):
            for o in pf_ops(): em.op(o)
        em.end_opt()
        em.label('L_nok1')
    if cfg.n0:
        em.op(f's_lshr_b32 s{sT0}, s{sW}, 2'); em.op(f's_lshl_b32 s{sT0}, s{sT0}, 1'); em.op(f's_or_b32 s{sT0}, s{sT0}, s{sTYPE}')
        for v in (0, 2, 3):
            em.op(f's_cmp_eq_u32 s{sT0}, {v}')
            em.op(f's_cbranch_scc1 L_qp{v >> 1}{v & 1}')
    else:
        em.op(f's_cmp_lt_u32 s{sW}, 4')
        em.op('s_cbranch_scc0 L_qp10')

def tile_m(em, t):
    tab = [[0, 4, 6, 10], [1, 5, 7, 11], [2, 3, 8, 9]][t]
    em.op(f's_lshl_b32 s{sT0}, s{sDG}, 2')
    em.op(f's_lshr_b32 s{sT0}, {sum(v << (4 * i) for i, v in enumerate(tab))}, s{sT0}')
    em.op(f's_and_b32 s{sT0}, s{sT0}, 15')

def tr_addr(em, dst, t, base, fmode):
    t0, t1, t2, t3 = TMP[:4]
    L = f'v{vLANE}'
    if (fmode == 'v' and cfg.opair) or (fmode == 'w' and cfg.qfm): tile_m(em, t)
    else:
        em.op(f's_mul_i32 s{sT0}, s{sDG}, 3'); em.op(f's_add_u32 s{sT0}, s{sT0}, {t}')
    em.op(f's_lshr_b32 s{sT1}, s{sT0}, 2'); em.op(f's_lshl_b32 s{sT1}, s{sT1}, 10')
    em.op(f's_add_u32 s{sT1}, s{sT1}, {base}')
    em.op(f's_and_b32 s{sT0}, s{sT0}, 3')
    em.op(f'v_lshrrev_b32 v{t0}, 4, {L}')
    em.op(f'v_bfe_u32 v{t1}, {L}, 2, 2')
    em.op(f'v_and_b32 v{t2}, 1, v{t0}')
    em.op(f'v_lshlrev_b32 v{t2}, 1, v{t2}')
    em.op(f'v_lshrrev_b32 v{t3}, 1, v{t1}')
    em.op(f'v_add_u32 v{t3}, v{t3}, v{t2}')
    em.op(f'v_xor_b32 v{t3}, s{sT0}, v{t3}')
    em.op(f'v_lshlrev_b32 v{t3}, 5, v{t3}')
    em.op(f'v_lshlrev_b32 v{dst}, 7, v{t1}')
    em.op(f'v_add_u32 v{dst}, v{dst}, v{t3}')
    if fmode == 'w':
        em.op(f'v_mul_u32_u24 v{t3}, 3072, v{t0}')
    else:
        em.op(f'v_lshlrev_b32 v{t2}, 8, v{t2}')
        em.op(f'v_add_u32 v{dst}, v{dst}, v{t2}')
        em.op(f'v_lshrrev_b32 v{t3}, 1, v{t0}')
        em.op(f'v_mul_u32_u24 v{t3}, 3072, v{t3}')
    em.op(f'v_add_u32 v{dst}, v{dst}, v{t3}')
    em.op(f'v_and_b32 v{t3}, 3, {L}')
    em.op(f'v_lshlrev_b32 v{t3}, 3, v{t3}')
    em.op(f'v_add_u32 v{dst}, v{dst}, v{t3}')
    em.op(f'v_add_u32 v{dst}, s{sT1}, v{dst}')

class Cap:
    def __init__(self): self.ops = []
    def op(self, t, tag=None): self.ops.append(t)

def k1_qproj(em, qh, typ):
    nq = 5 if qh == 0 else 4
    q0 = 0 if qh == 0 else 5
    L = f'v{vLANE}'
    t0, t1, t2, t3, t4, t5 = TMP[:6]
    rf = cfg.rfrac / 100
    if cfg.prio == qh + 1: em.op('s_setprio 1')
    npre = cfg.n0 if typ == 1 else 0
    if npre:
        nu = cfg.nu if npre == 1 else 6
        for f in k_dma_ops(em, 0)[:2 * nu]: f()
        em.wait_lgkm0(force=True)
        k_fetch(em, 0, k_dma_ops(em, 1) if npre == 2 else None, 0, nu)
        if npre == 2: k_fetch(em, 1, None)
        em.wait_lgkm0()
    em.barrier()
    for f in stage_dma_ops(em, 0, qh): f()
    em.barrier()
    for f in stage_dma_ops(em, 1, qh): f()
    em.op(f's_add_u32 s{SO}, s12, s{SO+3}'); em.op(f's_addc_u32 s{SO+1}, s13, 0'); em.op(f's_mov_b32 s{SO+2}, {O_HEAD}'); em.op(f's_mov_b32 s{SO+3}, 0x20000')
    em.op(f's_mov_b32 s{sC}, {fbits(192 ** -0.5 * math.log2(math.e))}')
    if cfg.code_pre and not cfg.cearly:
        em.op('s_getpc_b64 s[58:59]')
        em.label(f'L_pc{qh}{typ}')
        em.op(f's_add_u32 s58, s58, k1_body_start-L_pc{qh}{typ}')
        em.op('s_addc_u32 s59, s59, -1')
        em.op(f's_and_b32 s{sT1}, s{sLOC}, 15')
        em.op(f's_lshl_b32 s{sT1}, s{sT1}, 13')
        em.op(f'v_lshlrev_b32 v{TMP[11]}, 4, v0')
        em.op(f'v_add_u32 v{TMP[11]}, s{sT1}, v{TMP[11]}')
        em.op(f'v_min_u32 v{TMP[11]}, k1_body_end-k1_body_start-16, v{TMP[11]}')
    em.st.stamp('si')
    em.op(f'v_lshlrev_b32 v{t3}, 2, v0')
    em.op(f'v_add_u32 v{t3}, {MAXB}, v{t3}')
    em.op(f'v_mov_b32 v{t4}, 0xff800000')
    em.op(f'ds_write_b32 v{t3}, v{t4}')
    em.op(f'v_and_b32 v{vMS}, 15, {L}')
    em.op(f'v_lshlrev_b32 v{vMS}, 2, v{vMS}')
    em.op(f'v_add_u32 v{vMS}, {MAXB}, v{vMS}')
    em.op(f'v_add_u32 v{vRA[0]}, {q0 * 2048}, v{vRA[0]}')
    em.op(f'v_xor_b32 v{vRA[1]}, 64, v{vRA[0]}')
    for t in range(3): tr_addr(em, vRB[t], t, VBASE, 'w')
    if cfg.qfm:
        for t in (0, 2):
            tile_m(em, t)
            em.op(f's_lshr_b32 s{sT1}, s{sT0}, 1'); em.op(f's_mul_i32 s{sT1}, s{sT1}, 9216')
            em.op(f's_and_b32 s{sT0}, s{sT0}, 1'); em.op(f's_lshl_b32 s{sT0}, s{sT0}, 3'); em.op(f's_add_u32 s{sT0}, s{sT0}, s{sT1}')
            em.op(f's_add_u32 s{sT0}, s{sT0}, {q0 * 1024}')
            em.op(f'v_lshl_add_u32 v{vRC[t]}, {L}, 4, s{sT0}')
    for t in range(0 if cfg.qfm else 3):
        em.op(f's_mul_i32 s{sT0}, s{sDG}, 3'); em.op(f's_add_u32 s{sT0}, s{sT0}, {t}'); em.op(f's_lshl_b32 s{sT0}, s{sT0}, 1')
        em.op(f'v_lshrrev_b32 v{t0}, 5, {L}')
        em.op(f'v_add_u32 v{t0}, s{sT0}, v{t0}')
        em.op(f'v_lshrrev_b32 v{t1}, 3, v{t0}'); em.op(f'v_lshlrev_b32 v{t1}, 7, v{t1}')
        em.op(f'v_and_b32 v{t0}, 7, v{t0}')
        em.op(f'v_bfe_u32 v{t2}, {L}, 1, 3')
        em.op(f'v_xor_b32 v{t0}, v{t0}, v{t2}'); em.op(f'v_lshlrev_b32 v{t0}, 4, v{t0}')
        em.op(f'v_add_u32 v{t0}, v{t0}, v{t1}')
        em.op(f'v_and_b32 v{t1}, 15, {L}'); em.op(f'v_mul_u32_u24 v{t1}, 384, v{t1}')
        em.op(f'v_add_u32 v{t0}, v{t0}, v{t1}')
        em.op(f'v_bfe_u32 v{t1}, {L}, 4, 1'); em.op(f'v_lshlrev_b32 v{t1}, 3, v{t1}')
        em.op(f'v_add_u32 v{vRC[t]}, v{t0}, v{t1}')
    em.op(f'v_lshlrev_b32 v{vPA}, 4, {L}')
    em.op(f's_lshl_b32 s{sT0}, s{sW}, 2'); em.op(f's_lshr_b32 s{sT1}, 0x10543210, s{sT0}'); em.op(f's_and_b32 s{sT1}, s{sT1}, 15'); em.op(f's_mul_i32 s{sT1}, s{sT1}, 9216')
    em.op(f'v_add_u32 v{vPW}, s{sT1}, v{vPA}')
    em.op(f'v_add_u32 v{vPA}, {q0 * 1024}, v{vPA}')
    AF = [176, 188]; BF = [200, 220]
    def q_reads(s, step, st):
        ops = []
        for t in range(3):
            ops.append(f'ds_read_b64_tr_b16 {vr(AF[st] + 4*t, 2)}, v{vRB[t]} offset:{(s % 3) * 24576 + step * 12288}')
            ops.append(f'ds_read_b64_tr_b16 {vr(AF[st] + 4*t + 2, 2)}, v{vRB[t]} offset:{(s % 3) * 24576 + step * 12288 + 512}')
        xs = [f'ds_read_b128 {vr(BF[st] + 4*j)}, v{vRA[step]} offset:{(s % 3) * 18432 + j * 2048}' for j in range(nq)]
        return ops[0:2] + xs[0:1] + ops[2:6] + xs[1:]
    def mf(st, first):
        return [mfma(ACC + 4*(j*3+t), AF[st] + 4*t, BF[st] + 4*j, None if first else ACC + 4*(j*3+t)) for j in range(nq) for t in range(3)]
    em.wait_vm_tag('S0', lgkm0=True); em.barrier()
    em.st.stamp('S0')
    em.op(f's_add_u32 s{sTAG}, s{sTAG}, 1')
    for o in q_reads(0, 0, 0): em.op(o)
    em.npre = npre
    nxt = [k_dma_ops(em, 0), k_dma_ops(em, 1), va_ops(em)][npre]
    em.part = npre == 1 and cfg.nu < 6
    if em.part: nxt = k_dma_ops(em, 0)[2 * cfg.nu:] + k_dma_ops(em, 1)[:2 * cfg.nu]
    plan = {15: nxt[0:4], 16: nxt[4:7], 17: nxt[7:10], 18: nxt[10:12]} if qh == 0 else {19: nxt[0:6]}
    late = [] if qh == 0 else nxt[6:12]
    post = []
    if qh == 1 and (cfg.qlate or (cfg.qlate1 and npre)): plan = {}; late = []; post = nxt
    cap = Cap()
    for t in range(3): tr_addr(cap, VTMP[t], t, VBASE, 'v')
    vaddr_ops = cap.ops
    inloop_pf = not (typ == 1 and cfg.n0) and not cfg.pfall
    carry = stage_dma_ops(em, 2, qh) + (sum([pf_ops() for i in range(cfg.pfa - 3)], []) if inloop_pf else [])
    if cfg.code_pre and not cfg.cearly: carry.append(f'global_load_dwordx4 {vr(244)}, v{TMP[11]}, s[58:59]')
    for s in range(10):
        extra = []
        extra = plan.get(2 * s, [])
        if cfg.onew and s > 0: em.wait_lgkm0()
        interleave(em, mf(0, s == 0), ([] if cfg.x_qnord and 3 < s <= 6 else q_reads(s, 1, 1), 0, rf), (extra, 0.1, 1), (carry, 0.05, cfg.dhi / 100))
        if s < 9: em.wait_vm_tag(f'S{s+1}', lgkm0=True)
        else: em.wait_lgkm0()
        em.barrier()
        if s in cfg.qst: em.st.stamp(f'B{s}')
        if cfg.qloop and s == 6:
            em.op('s_sub_u32 s87, s87, 1'); em.op('s_cmp_lg_u32 s87, 0'); em.op(f's_cbranch_scc1 L_ql{qh}{typ}')
            em.st.stamp('LBend')
        if cfg.qloop and s == 3:
            em.st.stamp('LB0')
            em.op('s_mov_b32 s87, 16'); em.label(f'L_ql{qh}{typ}')
        rd = []; dm = []; extra = []
        if s < 9:
            if not (cfg.x_qnord and 3 <= s < 6): rd += q_reads(s + 1, 0, 0)
        carry = []
        if s + 3 <= 9:
            dm = stage_dma_ops(em, s + 3, qh); ds_ = cfg.dsplit if not cfg.drole else (6 if qh == cfg.drole - 1 else 0)
            dm, carry = dm[:ds_], dm[ds_:]
            if cfg.x_qnodma and 3 <= s < 6: dm = []; carry = []
        if s == 7: extra = vaddr_ops
        first = (pf_ops() + (pf2_ops() if s + cfg.pfa >= cfg.pf1 and cfg.n0 else []) if inloop_pf and s + cfg.pfa <= 9 and not (cfg.qloop and s >= 3) else []) + (sum([pf2_ops() for i in range(10 - cfg.pfx)], []) if cfg.pf0x == s + 1 and typ == 0 else []) + plan.get(2 * s + 1, [])
        qw = []
        if s == 9:
            for j in range(nq):
                for t in range(3):
                    a = ACC + 4*(j*3+t)
                    if cfg.qfm and t == 0: continue
                    if cfg.qfm and t == 1:
                        p = a - 4
                        qw.append((j*3+t, [f'v_cvt_pk_bf16_f32 v{p}, v{p}, v{p+1}', f'v_cvt_pk_bf16_f32 v{p+1}, v{p+2}, v{p+3}', f'v_cvt_pk_bf16_f32 v{p+2}, v{a}, v{a+1}',
                                   f'v_cvt_pk_bf16_f32 v{p+3}, v{a+2}, v{a+3}', f'ds_write_b128 v{vRC[0]}, {vr(p)} offset:{j * 1024}']))
                        continue
                    qw.append((j*3+t, [f'v_cvt_pk_bf16_f32 v{a}, v{a}, v{a+1}', f'v_cvt_pk_bf16_f32 v{a+1}, v{a+2}, v{a+3}', f'ds_write_b64 v{vRC[t]}, {vr(a,2)} offset:{j * 1024 if cfg.qfm else (q0 + j) * 6144}']))
        n = 3 * nq; lag = 3 if cfg.qwi else n
        ins = [(g, (p + lag + 0.5) / n, (p + lag + 0.5) / n) for p, g in qw if p + lag < n]
        interleave(em, mf(1, False), (dm, cfg.dlo / 100, cfg.dhi / 100), (rd, 0, rf), (extra, 0, 1), (first, 0, 0.04 if dm else 0.9), *ins)
    for p, g in qw:
        if p + lag >= n:
            for o in g: em.op(o)
    for f in late: f()
    if cfg.qfm: em.op(f'v_lshlrev_b32 v{vRA[0]}, 4, {L}')
    else:
        em.op(f'v_and_b32 v{t1}, 15, {L}'); em.op(f'v_mul_u32_u24 v{t1}, 384, v{t1}')
        em.op(f'v_add_u32 v{vRA[0]}, v{t1}, v{vT}')
        em.op(f'v_xor_b32 v{t0}, 64, v{vT}')
        em.op(f'v_add_u32 v{vRA[1]}, v{t1}, v{t0}')
    for t in range(3): em.op(f'v_mov_b32 v{vRB[t]}, v{VTMP[t]}')
    em.wait_lgkm0(); em.barrier()
    for f in post: f()
    for t in range(3): em.op(f'v_add_u32 v{vRC[t]}, 49152, v{vRB[t]}')
    em.op(f's_lshl_b32 s{sT0}, s{sW}, 2'); em.op(f's_lshr_b32 s{sT1}, 0x32105432, s{sT0}'); em.op(f's_and_b32 s{sT1}, s{sT1}, 15'); em.op(f's_mul_i32 s{sT1}, s{sT1}, 9216')
    em.op(f'v_lshlrev_b32 v{vPW2}, 4, {L}')
    em.op(f'v_add_u32 v{vPW2}, s{sT1}, v{vPW2}')
    em.st.stamp('BQ')

def maxops(half):
    ops = []
    for qt in range(9):
        a, b = sreg(half*2, qt), sreg(half*2+1, qt); m = MC + qt
        if half == 0:
            ops += [f'v_max3_f32 v{m}, v{a}, v{a+1}, v{a+2}', f'v_max3_f32 v{m}, v{m}, v{a+3}, v{b}',
                    f'v_max3_f32 v{m}, v{m}, v{b+1}, v{b+2}', f'v_max_f32 v{m}, v{m}, v{b+3}']
        else:
            ops += [f'v_max3_f32 v{m}, v{m}, v{a}, v{a+1}', f'v_max3_f32 v{m}, v{m}, v{a+2}, v{a+3}',
                    f'v_max3_f32 v{m}, v{m}, v{b}, v{b+1}', f'v_max3_f32 v{m}, v{m}, v{b+2}, v{b+3}']
    return ops

def vflag_set(em):
    em.op(f's_lshl_b32 s{sT0}, s{sDG}, 2'); em.op(f's_add_u32 s{sT0}, s{sT0}, {MAXB + 576}')
    em.op(f'v_mov_b32 v{TMP[0]}, s{sT0}'); em.op(f'v_mov_b32 v{TMP[1]}, 1')
    em.op(f'ds_write_b32 v{TMP[0]}, v{TMP[1]}')

def k1_qk(em, qh):
    def qrd(n):
        qt, ks = divmod(n, 6)
        if cfg.qfm: return f'ds_read_b128 {vr(QF + 4*(n % 4))}, v{vRA[0]} offset:{(ks * 9 + qt) * 1024}'
        return f'ds_read_b128 {vr(QF + 4*(n % 4))}, v{vRA[ks & 1]} offset:{qt * 6144 + (ks >> 1) * 128}'
    npre = em.npre
    pend = []
    if em.part: k_fetch(em, 0, k_dma_ops(em, 1), cfg.nu, 6)
    if npre == 1 and cfg.g2e:
        k_fetch(em, 1, None); em.wait_lgkm0()
        pend = va_ops(em)
        if qh == 1:
            for f in pend: f()
            pend = []
        npre = 2
    g2m = (cfg.g2m0, cfg.g2m1)[qh] if npre == 1 and not em.part else 0
    for half in range(2):
        fill = pend; pend = []
        mid = []
        if half == 0 and g2m:
            mid = [f'v_xor_b32 v{vKR2[e]}, 32, v{vKR[e]}' for e in range(2)] if cfg.qfm else []
            for u in range(6): mid += [lambda u=u: em.wait_vm_tag(f'K1_{u}')] + k_rd_ops(1, u)
            if cfg.vby and qh == 1: mid += ['s_nop 0'] * 6 + [lambda: (em.wait_lgkm0(), vflag_set(em))]
        if half == 1 and g2m:
            em.wait_lgkm0(); fill = va_ops(em)
            if cfg.vby and qh == 1: fill = []
        elif half >= npre:
            fill = k_dma_ops(em, 1) if half == 0 else va_ops(em)
            if half == 0 and cfg.eager >> qh & 1:
                k_fetch(em, half, fill); fill = []
            else:
                k_fetch(em, half, None)
                em.wait_lgkm0()
                if half == 1 and cfg.eagerv >> qh & 1:
                    for f in fill: f()
                    fill = []
                if half == 1 and cfg.vby and qh == 1: fill = []; vflag_set(em)
        for n in range(3): em.op(qrd(n))
        em.st.stamp(f'K{half}')
        main = []
        for n in range(54):
            qt, ks = divmod(n, 6)
            if n + 3 < 54: main.append(qrd(n + 3))
            for k in range(2):
                kt = half * 2 + k
                main.append(mfma(sreg(kt, qt), kop(kt, ks), QF + 4*(n % 4), None if ks == 0 else sreg(kt, qt)))
        m1 = maxops(1)
        if half == 0:
            streams = [(fill, cfg.g2lo / 100, cfg.g2hi / 100), (mid, g2m / 100, min(1.0, g2m / 100 + 0.3))]
        else:
            streams = [(maxops(0), 0.02, 0.5)]
            for qt in range(8): streams.append((m1[qt*4:qt*4+4] + ([f'ds_max_f32 v{vMS}, v{MC+qt} offset:{qt*64}'] if cfg.emax else []), max(0.5 + 0.05*qt, (qt + 1.5) / 9), max(0.55 + 0.05*qt, (qt + 1.9) / 9)))
            streams.append((fill, cfg.valo / 100, cfg.vahi / 100))
        interleave(em, main, *streams)
    em.st.stamp('QKend')
    for o in maxops(1)[32:]: em.op(o)
    for qt in range(8 if cfg.emax else 0, 9): em.op(f'ds_max_f32 v{vMS}, v{MC+qt} offset:{qt*64}')
    if qh == 0 and cfg.vby:
        em.op(f'v_mov_b32 v{vVO4}, v{vVO3}')
        em.op(f's_and_b32 s{sT1}, s{sW}, 2'); em.op(f's_lshr_b32 s{sKB2}, {vslot(2) | vslot(3) << 2}, s{sT1}'); em.op(f's_and_b32 s{sKB2}, s{sKB2}, 3')
        em.op(f's_lshl_b32 s{sKB2}, s{sKB2}, 1'); em.op(f's_and_b32 s{sT1}, s{sW}, 1'); em.op(f's_add_u32 s{sKB2}, s{sKB2}, s{sT1}')
        em.op(f's_mul_i32 s{sKB2}, s{sKB2}, 12288'); em.op(f's_add_u32 s{sKB2}, s{sKB2}, {VBASE}')
    if qh == 0 and cfg.tsq:
        for o in tail_setup_ops(0): emit(em, o)
    if qh == 0 and cfg.vby:
        _lab[0] += 1
        em.op(f's_lshl_b32 s{sT0}, s{sDG}, 2'); em.op(f's_add_u32 s{sT0}, s{sT0}, {MAXB + 576}')
        em.op(f'v_mov_b32 v113, s{sT0}')
        em.op(f's_mov_b32 s{sCNT}, 0x100000')
        em.wait_lgkm0()
        em.label(f'L_vf{_lab[0]}')
        em.op('ds_read_b32 v114, v113')
        em.op(f's_sub_u32 s{sCNT}, s{sCNT}, 1')
        em.op(f's_cbranch_scc1 L_vfd{_lab[0]}')
        em.wait_lgkm0()
        em.op('v_cmp_ne_u32 vcc, 1, v114')
        em.op('s_nop 4')
        em.op(f's_cbranch_vccz L_vfd{_lab[0]}')
        em.op('s_sleep 1')
        em.op(f's_branch L_vf{_lab[0]}')
        em.label(f'L_vfd{_lab[0]}')
        em.wait_lgkm0(force=True)
        for f in va_ops(em, True)[:cfg.vbyn]: f()
    if qh == 0 and cfg.vpq:
        a, b = v_pf_ops(em), v_pf_ops(em, 24576)
        both = [x for p in zip(a, b) for x in p][:2 * cfg.vpq]
        for i, f in enumerate(both):
            f()
            if i >= cfg.vpq_in: em.waitcnt(vm=cfg.vpq_in)
    em.wait_lgkm0(); em.barrier()
    em.st.stamp('BM')

def expops(r, qt, pk):
    a, b = sreg(2*r, qt), sreg(2*r+1, qt); m = MC + qt
    tA, tB = TMP[0], TMP[2]
    sp = SUMP + 2*qt
    rs = [a, a+1, a+2, a+3, b, b+1, b+2, b+3]
    if pk:
        mb = m & ~1; s = m & 1
        ops = [f'v_pk_fma_f32 {vr(x,2)}, {vr(x,2)}, s[{sC}:{sC+1}], {vr(mb,2)} op_sel:[0,0,{s}] op_sel_hi:[1,0,{s}] neg_lo:[0,0,1] neg_hi:[0,0,1]' for x in rs[::2]]
    else:
        ops = [f'v_fma_f32 v{x}, v{x}, s{sC}, -v{m}' for x in rs]
    ops += [f'v_exp_f32 v{x}, v{x}' for x in rs]
    if pk:
        ops += [f'v_pk_add_f32 {vr(tA,2)}, {vr(a,2)}, {vr(a+2,2)}', f'v_pk_add_f32 {vr(tB,2)}, {vr(b,2)}, {vr(b+2,2)}']
        if r == 0: tailo = [f'v_pk_add_f32 {vr(sp,2)}, {vr(tA,2)}, {vr(tB,2)}']
        else: tailo = [f'v_pk_add_f32 {vr(tA,2)}, {vr(tA,2)}, {vr(tB,2)}', f'v_pk_add_f32 {vr(sp,2)}, {vr(sp,2)}, {vr(tA,2)}']
    else:
        assert r == 1
        ops += [f'v_add_f32 v{sp + (i & 1)}, v{sp + (i & 1)}, v{x}' for i, x in enumerate(rs)]
        tailo = []
    ops += [f'v_cvt_pk_bf16_f32 v{a}, v{a}, v{a+1}', f'v_cvt_pk_bf16_f32 v{a+1}, v{a+2}, v{a+3}',
            f'v_cvt_pk_bf16_f32 v{a+2}, v{b}, v{b+1}', f'v_cvt_pk_bf16_f32 v{a+3}, v{b+2}, v{b+3}']
    return ops + tailo

def pwrite(r, qt, qh):
    return f'ds_write_b128 v{vPW if r == 0 else vPW2}, {vr(sreg(2*r, qt))} offset:{qt*1024}'

def sum_ops():
    L = f'v{vLANE}'
    S = SUM; ops = []
    ops += [f'v_add_f32 v{SUM+qt}, v{SUMP+2*qt}, v{SUMP+2*qt+1}' for qt in range(9)]
    ops += [f'v_mov_b32 v{MC}, 0', f'v_mov_b32 v{MC+1}, 0']
    ta = TMP[2]; tb = TMP[3]
    ops += [f'v_bfe_u32 v{ta}, {L}, 4, 1', f'v_lshlrev_b32 v{ta}, 10, v{ta}', f'v_bfe_u32 v{tb}, {L}, 5, 1', f'v_lshlrev_b32 v{tb}, 9, v{tb}',
            f'v_add_u32 v{ta}, v{ta}, v{tb}', f'v_and_b32 v{tb}, 15, {L}', f'v_lshlrev_b32 v{tb}, 5, v{tb}', f'v_add_u32 v{ta}, v{ta}, v{tb}',
            f's_lshl_b32 s{sT0}, s{sW}, 2', f's_add_u32 s{sT0}, s{sT0}, {SUMB}', f'v_add_u32 v{ta}, s{sT0}, v{ta}']
    for a in (0, 2, 4, 6): ops.append(f'v_permlane32_swap_b32 v{S+a}, v{S+a+1}')
    ops.append(f'v_permlane32_swap_b32 v{S+8}, v{MC}')
    for a in (0, 2, 4, 6): ops.append(f'v_add_f32 v{S+a}, v{S+a}, v{S+a+1}')
    ops.append(f'v_add_f32 v{S+8}, v{S+8}, v{MC}')
    for a in (0, 4): ops.append(f'v_permlane16_swap_b32 v{S+a}, v{S+a+2}')
    ops.append(f'v_permlane16_swap_b32 v{S+8}, v{MC+1}')
    for a in (0, 4): ops.append(f'v_add_f32 v{S+a}, v{S+a}, v{S+a+2}')
    ops.append(f'v_add_f32 v{S+8}, v{S+8}, v{MC+1}')
    for a in (0, 4, 8): ops.append(f'ds_write_b32 v{ta}, v{S+a} offset:{a * 512}')
    return ops

def k1_sm0(em, qh):
    n_in = cfg.in0 if qh == 0 else cfg.in1
    for qt in range(9): em.op(f'ds_read_b32 v{MC+qt}, v{vMS} offset:{qt*64}')
    for qt in range(9): em.op(f'v_mul_f32 v{MC+qt}, s{sC}, v{MC+qt}')
    main = []
    for qt in range(9):
        main += expops(0, qt, True)
        if qh == 0: main.append(pwrite(0, qt, qh))
    for qt in range(n_in, 9): main += expops(1, qt, True)
    wo = []
    if cfg.wosm >= 0:
        em.op(f's_andn2_b32 s{sT1}, s{sLOC}, 4'); em.op(f's_mul_i32 s{sT1}, s{sT1}, 30720')
        em.op(f's_mul_i32 s{sT0}, s{sX}, 983040'); em.op(f's_add_u32 s{sT0}, s{sT0}, s{sT1}')
        em.op(f'v_lshl_add_u32 v64, v0, 4, s{sT0}')
        for i in range(8):
            def f(i=i):
                _lab[0] += 1
                em.op(f's_cmp_eq_u32 s{sTYPE}, {cfg.wosm}')
                em.op(f's_cbranch_scc0 L_ws{_lab[0]}')
                em.begin_opt()
                em.op(f's_mov_b32 m0, {MAXB + 640}')
                em.op(f'v_min_u32 v65, {7864320 - 16}, v64')
                em.op(f'global_load_lds_dwordx4 v65, s[14:15]')
                em.op(f'v_add_u32 v64, {8192 if i != 3 else 122880 - 3 * 8192}, v64')
                em.end_opt()
                em.label(f'L_ws{_lab[0]}')
            wo.append(f)
    interleave(em, main, (v_pf_ops(em)[cfg.vpq:cfg.vpq + cfg.vpf], 0.05, cfg.vrf / 100), (wo, 0.1, 0.95), (va_ops(em, True)[cfg.vbyn:] if cfg.vby and qh == 0 else [], 0, 0.3))
    em.st.stamp('exp0')
    if qh == 0: em.wait_vm_tag('VA', lgkm0=True)
    else: em.wait_lgkm0()
    em.barrier()
    em.st.stamp('PV0')

def k1_pv(em, qh):
    nq = 5 if qh == 0 else 4
    q0 = 0 if qh == 0 else 5
    L = f'v{vLANE}'
    rf = cfg.rfrac / 100
    PBF = PBF0 if qh == 0 else PBF1
    INV = INV0
    PAF = PAF0 if qh == 0 else PAF1
    def pv_reads(s, step, st):
        ops = []
        slot = vslot(s)
        base = vRB if slot < 2 else vRC
        off = (slot % 2) * 24576 + step * 12288
        for t in range(3):
            ops.append(f'ds_read_b64_tr_b16 {vr(PAF[st][t], 2)}, v{base[t]} offset:{off}')
            ops.append(f'ds_read_b64_tr_b16 {vr(PAF[st][t] + 2, 2)}, v{base[t]} offset:{off + 6144}')
        pa, po = vPA, ((2 * s + step) % 6) * 9216
        xs = [f'ds_read_b128 {vr(PBF[st][j])}, v{pa} offset:{po + j * 1024}' for j in range(nq)]
        return ops[0:2] + xs[0:1] + ops[2:6] + xs[1:]
    OACC = OACC0 if qh == 0 else OACC1
    def mf(st, first):
        return [mfma(OACC[j*3+t], PAF[st][t], PBF[st][j], None if first else OACC[j*3+t]) for j in range(nq) for t in range(3)]
    def inv_ops():
        ta = TMP[2]; ops = []
        ops += [f'v_and_b32 v{ta}, 15, {L}', f'v_lshlrev_b32 v{ta}, 5, v{ta}', f'v_add_u32 v{ta}, {SUMB + q0 * 512}, v{ta}']
        for j in range(nq):
            ops += [f'ds_read_b128 {vr(16 + 8*j)}, v{ta} offset:{j * 512}', f'ds_read_b128 {vr(20 + 8*j)}, v{ta} offset:{j * 512 + 16}']
        for j in range(nq):
            r = 16 + 8*j
            ops += [f'v_add_f32 v{r}, v{r}, v{r+1}', f'v_add_f32 v{r+2}, v{r+2}, v{r+3}', f'v_add_f32 v{r+4}, v{r+4}, v{r+5}', f'v_add_f32 v{r+6}, v{r+6}, v{r+7}',
                    f'v_add_f32 v{r}, v{r}, v{r+2}', f'v_add_f32 v{r+4}, v{r+4}, v{r+6}', f'v_add_f32 v{r}, v{r}, v{r+4}', f'v_rcp_f32 v{INV+2*j}, v{r}']
        return ops
    n_in = cfg.in0 if qh == 0 else cfg.in1
    assert n_in <= 3
    hs = [0, 3, 4] if qh == 0 else [7, 8, 4]
    INVO = inv_ops()
    TS = [] if (qh == 0 and cfg.tsq) else tail_setup_ops(qh)
    def ex(h):
        o = []
        if h in hs[:n_in] or (n_in == 2 and qh == 0 and False): o += expops(1, hs.index(h), False)
        if qh == 0 and h in (5, 6): o += [pwrite(1, qt, qh) for qt in (range(4, 9) if h == 5 else range(4))]
        if qh == 1 and h in (1, 2): o += [pwrite(0, qt, qh) for qt in (range(5) if h == 1 else range(5, 9))]
        if qh == 1 and h in (9, 10): o += [pwrite(1, qt, qh) for qt in (range(4, 9) if h == 9 else range(4))]
        if h == (7 if qh == 0 else 11): o += sum_ops()
        if h == 13: o += INVO[:len(INVO) // 2]
        if h == 14: o += INVO[len(INVO) // 2:]
        if TS and h == 3 and qh == 1: o += TS
        if TS and h in (11, 12) and qh == 0: o += TS[:len(TS)//2] if h == 11 else TS[len(TS)//2:]
        return o
    def wopre_ops(i):
        ta = TMP[2 + (i & 1)]
        ops = [f's_mul_i32 s{sT3}, s{sX}, 983040', f's_mul_i32 s{sT4}, s{sLOC}, 30720', f's_add_u32 s{sT3}, s{sT3}, s{sT4}', f's_add_u32 s{sT3}, s{sT3}, {i * 8192}',
               f'v_lshlrev_b32 v{ta}, 4, v0', f'v_add_u32 v{ta}, s{sT3}, v{ta}', f'v_min_u32 v{ta}, {7864320 - 16}, v{ta}',
               f'global_load_dwordx4 {vr(52)}, v{ta}, s[14:15]']
        if cfg.wo0:
            def f():
                _lab[0] += 1
                em.op(f's_cmp_eq_u32 s{sTYPE}, 0')
                em.op(f's_cbranch_scc0 L_wp{_lab[0]}')
                em.begin_opt()
                for o in ops[:-2] + [ops[-1], f'v_add_u32 v{ta}, 122880, v{ta}'] + ops[-2:]: em.op(o)
                em.end_opt()
                em.label(f'L_wp{_lab[0]}')
            return [f]
        return ops
    wsl = {8: 0, 9: 1, 10: 2, 12: 3} if cfg.wosm < 0 else {}
    def epi(pk):
        out = []
        def mul(a, m):
            if pk: return [f'v_pk_mul_f32 {vr(a,2)}, {vr(a,2)}, {vr(m,2)} op_sel_hi:[1,0]', f'v_pk_mul_f32 {vr(a+2,2)}, {vr(a+2,2)}, {vr(m,2)} op_sel_hi:[1,0]']
            return [f'v_mul_f32 v{a+d}, v{a+d}, v{m}' for d in range(4)]
        for j in range(nq):
            m = INV + 2 * j
            a, b, c = OACC[j*3], OACC[j*3+1], OACC[j*3+2]
            if cfg.opair:
                out.append((j*3+1, mul(a, m) + mul(b, m) + [f'v_cvt_pk_bf16_f32 v{a}, v{a}, v{a+1}', f'v_cvt_pk_bf16_f32 v{a+1}, v{a+2}, v{a+3}',
                            f'v_cvt_pk_bf16_f32 v{a+2}, v{b}, v{b+1}', f'v_cvt_pk_bf16_f32 v{a+3}, v{b+2}, v{b+3}', f'ds_write_b128 v{vOW[0]}, {vr(a)} offset:{j * 1024}']
                            + ([f's_mov_b32 s{sT0}, {j * 1024}', (f'buffer_store_dwordx4 {vr(a)}, v{vOW[1]}, {sr(SO,4)}, s{sT0} offen sc1', 'CO0')] if cfg.direct else [])))
            for t in ((2,) if cfg.opair else (0, 1, 2)):
                x = OACC[j*3+t]
                out.append((j*3+t, mul(x, m) + [f'v_cvt_pk_bf16_f32 v{x}, v{x}, v{x+1}', f'v_cvt_pk_bf16_f32 v{x+1}, v{x+2}, v{x+3}', f'ds_write_b64 v{vOW[t]}, {vr(x,2)} offset:{j * 1024}']))
        return out
    for o in pv_reads(0, 0, 0): em.op(o)
    n = 3 * nq; lag = 4 if cfg.qwi else n
    for s in range(8):
        w = wopre_ops(wsl[2*s]) if cfg.wopre and 2*s in wsl else []
        if cfg.onew and s > 0: em.wait_lgkm0()
        interleave(em, mf(0, s == 0), (pv_reads(s, 1, 1), 0, rf), (ex(2*s), 0, cfg.efrac / 100), (w, 0.4, 0.41))
        if s == 1: em.wait_vm_tag('VB' if cfg.vby else 'VA', lgkm0=True)
        elif s < 7: em.wait_vm_tag(f'V{s+1}', lgkm0=True)
        else: em.wait_lgkm0()
        em.barrier()
        em.st.stamp(f'PB{s}')
        rd = pv_reads(s + 1, 0, 0) if s < 7 else []
        dm = v_dma_ops(em, s + NV) if s + NV <= 7 else []
        if s == 7 and qh == 0 and not cfg.woe: dm = tail_dma(em, 0) + tail_dma(em, 1)
        if cfg.woe and qh == 0 and 4 <= s <= 6: dm = tail_dma(em, s - 4)
        w = wopre_ops(wsl[2*s+1]) if cfg.wopre and 2*s+1 in wsl else []
        ins = []
        if s == 7:
            ins = [(g, (p + lag + 0.5) / n, (p + lag + 0.5) / n) for p, g in epi(False) if p + lag < n]
        interleave(em, mf(1, False), (dm, 0, 0.4 if s < 4 else 1), (rd, 0, rf + 0.1), (ex(2*s+1), 0, 1), (w, 0.4, 0.41), *ins)
    late = tail_dma(em, 2) if qh == 0 and not cfg.woe else []
    main = sum([g for p, g in epi(True) if p + lag >= n], [])
    interleave(em, main, (late, 0, 1))
    em.wait_vm_tag('T0', lgkm0=True); em.barrier()
    em.st.stamp('BO')
    em.op(f's_bitcmp1_b32 s{sW}, 1')
    em.op(f's_cbranch_scc1 L_tail{2 * qh + 1}')
    st = em.save()
    tail(em, 2 * qh)
    em.label(f'L_tail{2 * qh + 1}')
    em.restore(st)
    tail(em, 2 * qh + 1)

vOFFS = [2, 3, 4, 5, 7]; vA2 = [248, 249, 250]; vB2 = 251
SD, SP, SPR, SOUT = SX, SWQ, SK, 84
sT3, sT4 = 56, 59
sCH = 36 + 1
sCH = 81
sN0 = sNH
OB = 0 if cfg.woe else 61440
WB = 79872 if cfg.woe else 0
def wslot(s): return [49152, 0, 24576][s % 3] if cfg.woe else (s % 3) * 20480
def tail_setup_ops(qh):
    c = Cap(); L = f'v{vLANE}'
    t0, t1, t2, t3 = 252, 253, 244, 245
    if qh == 0:
        c.op(f's_mul_i32 s{sT0}, s{sX}, 983040'); c.op(f's_mul_i32 s{sT1}, s{sJ}, 320'); c.op(f's_add_u32 s{sT0}, s{sT0}, s{sT1}')
        srd(c, SD, 14, 15, f's{sT0}', 7864320)
        c.op(f's_sub_u32 s{SD+2}, s{SD+2}, s{sT0}')
        c.op(f's_mov_b32 s{sSTR}, 81920')
        hs = 245760
        c.op(f's_lshl_b32 s{sT2}, s{sW}, 4')
        c.op(f's_mov_b32 s{sT1}, 52429')
        for j in range(5):
            c.op(f'v_add_u32 v{t0}, {j * 64}, {L}')
            c.op(f'v_mul_lo_u32 v{t1}, v{t0}, s{sT1}')
            c.op(f'v_lshrrev_b32 v{t1}, 20, v{t1}')
            c.op(f'v_mul_u32_u24 v{t2}, 20, v{t1}')
            c.op(f'v_sub_u32 v{t2}, v{t0}, v{t2}')
            c.op(f'v_bfe_u32 v{t3}, v{t1}, 2, 1')
            c.op(f'v_lshlrev_b32 v{t3}, 1, v{t3}')
            c.op(f'v_xor_b32 v{t2}, v{t2}, v{t3}')
            c.op(f'v_add_u32 v{t1}, s{sT2}, v{t1}')
            c.op(f'v_mul_u32_u24 v{t1}, 1280, v{t1}')
            c.op(f'v_lshl_add_u32 v{vOFFS[j]}, v{t2}, 4, v{t1}')
        c.op(f's_and_b32 s{sN0}, s{sW}, 1'); c.op(f's_mul_i32 s{sN0}, s{sN0}, 3')
        c.op(f's_bfe_u32 s{sQ0}, s{sW}, 0x10001'); c.op(f's_mul_i32 s{sQ0}, s{sQ0}, 5')
    else:
        c.op(f's_lshl_b32 s{sT0}, s{sB}, 5'); c.op(f's_lshl_b32 s{sT1}, s{sX}, 2'); c.op(f's_add_u32 s{sT0}, s{sT0}, s{sT1}')
        c.op(f's_mul_i32 s{sT0}, s{sT0}, {O_HEAD}')
        srd(c, SD, 12, 13, f's{sT0}', 4 * O_HEAD)
        c.op(f's_mov_b32 s{sSTR}, 18432')
        hs = O_HEAD
        c.op(f's_mul_i32 s{sT2}, s{sDG}, 5120')
        if cfg.nopad:
            c.op(f's_cmp_eq_u32 s{sDG}, 3'); c.op(f's_cselect_b32 s{sT2}, 14336, s{sT2}')
        c.op(f'v_lshlrev_b32 v{t0}, 4, {L}')
        c.op(f'v_add_u32 v{t0}, s{sT2}, v{t0}')
        for j in range(5): c.op(f'v_add_u32 v{vOFFS[j]}, {j * 1024}, v{t0}')
        c.op(f's_and_b32 s{sN0}, s{sW}, 1'); c.op(f's_lshl_b32 s{sN0}, s{sN0}, 1'); c.op(f's_add_u32 s{sN0}, s{sN0}, 6')
        c.op(f's_bfe_u32 s{sQ0}, s{sW}, 0x10001'); c.op(f's_xor_b32 s{sQ0}, s{sQ0}, 1'); c.op(f's_mul_i32 s{sQ0}, s{sQ0}, 5')
    if cfg.direct:
        if qh == 0:
            c.op(f's_lshr_b32 s{sT0}, s{sW}, 1'); c.op(f's_mul_i32 s{sT0}, s{sT0}, 40960')
            c.op(f's_mov_b32 s{sCH}, s{sT0}'); c.op(f's_add_u32 s{sCH+1}, s{sT0}, {96 * 1280}')
            c.op(f's_lshl_b32 s{sT0}, s{sT0}, 1'); c.op(f's_add_u32 s{sCH+2}, s{sT0}, {32 * 1280}')
        else:
            for i in range(3): c.op(f's_mov_b32 s{sCH+i}, {i * 18432}')
    c.op(f's_mul_i32 s{sM0T}, s{sDG}, 5120')
    if qh: c.op(f's_add_u32 s{sM0T}, s{sT2 if cfg.nopad else sM0T}, {OB}')
    else: c.op(f's_add_u32 s{sM0T}, s{sM0T}, {WB}')
    for i in range(4):
        c.op(f's_add_u32 s{sT0}, s{sJ}, {i}'); c.op(f's_and_b32 s{sT0}, s{sT0}, 3'); c.op(f's_mul_i32 s{sHB+i}, s{sT0}, {hs}')
    c.op(f'v_lshrrev_b32 v{t0}, 2, {L}')
    c.op(f'v_mul_u32_u24 v{t0}, 320, v{t0}')
    c.op(f'v_and_b32 v{t1}, 3, {L}')
    c.op(f'v_lshl_add_u32 v{t0}, v{t1}, 3, v{t0}')
    if WB: c.op(f'v_add_u32 v{t0}, {WB}, v{t0}')
    c.op(f'v_bfe_u32 v{t1}, {L}, 4, 1')
    for t in range(3 if qh == 0 else 2):
        c.op(f's_add_u32 s{sT1}, s{sN0}, {t}')
        c.op(f'v_xor_b32 v{t2}, s{sT1}, v{t1}')
        c.op(f'v_lshl_add_u32 v{vA2[t]}, v{t2}, 5, v{t0}')
    c.op(f's_lshl_b32 s{sT0}, s{sQ0}, 10')
    c.op(f's_add_u32 s{sT0}, s{sT0}, {OB}')
    c.op(f'v_lshl_add_u32 v{vB2}, {L}, 4, s{sT0}')
    for t in range(3):
        if cfg.opair:
            if t == 1: continue
            tile_m(c, t)
        else:
            c.op(f's_mul_i32 s{sT0}, s{sDG}, 3'); c.op(f's_add_u32 s{sT0}, s{sT0}, {t}')
        if cfg.direct:
            c.op(f's_lshl_b32 s{sT1}, s{sT0}, 1'); c.op(f's_and_b32 s{sT1}, s{sT1}, 0x1c'); c.op(f's_lshr_b32 s{sT1}, 0x352140, s{sT1}'); c.op(f's_and_b32 s{sT1}, s{sT1}, 15')
            if t == 0:
                c.op(f's_mul_i32 s{sT2}, s{sT1}, 9216')
                c.op(f'v_add_u32 v{vOW[1]}, s{sT2}, v{vPA}')
            c.op(f's_and_b32 s{sT0}, s{sT0}, 1'); c.op(f's_lshl_b32 s{sT1}, s{sT1}, 1'); c.op(f's_add_u32 s{sT0}, s{sT0}, s{sT1}')
        c.op(f's_lshr_b32 s{sT1}, s{sT0}, 2'); c.op(f's_mul_i32 s{sT1}, s{sT1}, 20480')
        c.op(f's_bfe_u32 s{sT2}, s{sT0}, 0x10001'); c.op(f's_mul_i32 s{sT2}, s{sT2}, 9216'); c.op(f's_add_u32 s{sT1}, s{sT1}, s{sT2}')
        c.op(f's_and_b32 s{sT0}, s{sT0}, 1'); c.op(f's_lshl_b32 s{sT0}, s{sT0}, 3')
        c.op(f's_add_u32 s{sT0}, s{sT0}, s{sT1}'); c.op(f's_add_u32 s{sT0}, s{sT0}, {OB}')
        c.op(f'v_add_u32 v{vOW[t]}, s{sT0}, v{vPA}')
    c.op(f's_lshl_b32 s{sT0}, s{sB}, 3'); c.op(f's_add_u32 s{sT0}, s{sT0}, s{sX}'); c.op(f's_lshl_b32 s{sT0}, s{sT0}, 7'); c.op(f's_add_u32 s{sT0}, s{sT0}, {FLAG_OFF + 4096}')
    c.op(f's_add_u32 s{sF1}, s12, s{sT0}'); c.op(f's_addc_u32 s{sF1+1}, s13, 0')
    c.op(f's_lshl_b32 s{sT0}, s{sLOC}, 7'); c.op(f's_add_u32 s{sT0}, s{sT0}, {FLAG_OFF + 16384}')
    c.op(f's_add_u32 s{sF2}, s12, s{sT0}'); c.op(f's_addc_u32 s{sF2+1}, s13, 0')
    c.op(f's_mul_i32 s{sT0}, s{sLOC}, {8 * PART2}'); c.op(f's_add_u32 s{sT0}, s{sT0}, {WS_PART}')
    srd(c, SPR, 12, 13, f's{sT0}', 8 * PART2)
    c.op(f's_mul_i32 s{sT1}, s{sX}, {PART2}'); c.op(f's_add_u32 s{sT0}, s{sT0}, s{sT1}')
    srd(c, SP, 12, 13, f's{sT0}', PART2)
    srd(c, SOUT, 54, 55, None, 1474560)
    out = []; i = 0; ops = c.ops
    while i < len(ops):
        if i + 1 < len(ops) and (ops[i + 1].startswith('s_addc') or ops[i + 1].startswith('s_cselect')):
            a, b = ops[i], ops[i + 1]
            out.append(lambda a=a, b=b: (EM[0].op(a), EM[0].op(b))); i += 2
        else:
            out.append(ops[i]); i += 1
    return out
EM = [None]

def tail_dma(em, s, orole=False):
    ops = []
    sc = ' sc1' if (orole and cfg.sc_ol) else ''
    for j in range(4 if (cfg.nopad and orole and em.tv == 3) else 5):
        def f(j=j):
            em.op(f's_add_u32 m0, s{sM0T}, {((s % 3) * 20480 if orole else wslot(s)) + j * 1024}')
            if j == 0:
                if cfg.direct:
                    peer, ch = (0, s) if s < 3 else (1 + (s - 3) % 3, (s - 3) // 3)
                    em.op(f's_add_u32 s{sOFF}, s{sCH + ch}, s{sHB + peer}')
                elif cfg.chunk and s >= 3:
                    ch = (s - 3) // 3
                    if ch == 0: em.op(f's_mov_b32 s{sOFF}, s{sHB + 1 + (s - 3) % 3}')
                    else:
                        em.op(f's_lshl_b32 s{sOFF}, s{sSTR}, {ch - 1}')
                        em.op(f's_add_u32 s{sOFF}, s{sOFF}, s{sHB + 1 + (s - 3) % 3}')
                elif s % 3 == 0: em.op(f's_mov_b32 s{sOFF}, s{sHB + s // 3}')
                else: em.op(f's_add_u32 s{sOFF}, s{sOFF}, s{sSTR}')
            em.op(f'buffer_load_dwordx4 v{vOFFS[j]}, {sr(SD,4)}, s{sOFF} offen{sc} lds', tag=f'T{s}')
        ops.append(f)
    return ops

def flag_store(em, base, idx_s, lab, wave, off=0):
    t0, t1 = 60, 61
    em.op(f's_cmp_eq_u32 s{sW}, {wave}')
    em.op(f's_cbranch_scc0 {lab}')
    em.begin_opt()
    em.op(f's_lshl_b32 s{sT0}, s{idx_s}, 2')
    em.op(f'v_mov_b32 v{t0}, s{sT0}')
    em.op(f'v_mov_b32 v{t1}, s{sTAG}')
    em.op('s_mov_b64 exec, 1')
    em.op(f'global_store_dword v{t0}, v{t1}, s[{base}:{base+1}] offset:{off} sc1')
    em.op('s_mov_b64 exec, -1')
    em.end_opt()
    em.label(lab)

vPL0, vPL1 = 62, 63
def poll(em, base, mask, lab, off=0, keep=False):
    em.op(f'v_and_b32 v{vPL0}, {mask}, v{vLANE}')
    em.op(f'v_lshlrev_b32 v{vPL0}, 2, v{vPL0}')
    em.op(f's_mov_b32 s{sCNT}, 0x20000')
    if not keep: em.wait_vm0()
    em.label(lab)
    em.op(f'global_load_dword v{vPL1}, v{vPL0}, s[{base}:{base+1}] offset:{off} sc1')
    em.op(f's_sub_u32 s{sCNT}, s{sCNT}, 1')
    em.op(f's_cbranch_scc1 {lab}_done')
    em.wait_vm0()
    em.op(f'v_cmp_ne_u32 vcc, s{sTAG}, v{vPL1}')
    em.op('s_nop 4')
    em.op(f's_cbranch_vccz {lab}_done')
    em.op('s_sleep 1')
    em.op(f's_branch {lab}')
    em.label(f'{lab}_done')
    em.wait_vm0()

def tail(em, tv):
    nt, nq = [(3, 5), (3, 4), (2, 4), (2, 5)][tv]
    orole = tv >= 2
    em.tv = tv
    L = f'v{vLANE}'
    rf = cfg.rfrac / 100
    sc = ' sc1' if cfg.sc else ''
    ACC2 = 116; AF = [76, 88]; BF = [16, 36]; CO = 176
    t0, t1, t2, t3 = 56, 57, 58, 59
    sDONE = sT3
    em.op(f'v_lshlrev_b32 v{t0}, 4, v0')
    em.op(f'v_add_u32 v{t1}, {OB}, v{t0}')
    npc = 3 if tv == 0 else 2
    k = 0; sts = []
    for c in ((2,) if cfg.direct else range(3)):
        for i in range(npc):
            em.op(f'ds_read_b128 {vr(CO + 4*k)}, v{t1} offset:{c * 20480 + i * 8192}')
            sts.append((CO + 4*k, c * 18432 + i * 8192)); k += 1
    def reads(s, step, st_):
        ops = []
        for t in range(nt):
            ops.append(f'ds_read_b64_tr_b16 {vr(AF[st_] + 4*t, 2)}, v{vA2[t]} offset:{wslot(s) + step * 10240}')
            ops.append(f'ds_read_b64_tr_b16 {vr(AF[st_] + 4*t + 2, 2)}, v{vA2[t]} offset:{wslot(s) + step * 10240 + 5120}')
        xs = [f'ds_read_b128 {vr(BF[st_] + 4*j)}, v{vB2} offset:{(s % 3) * 20480 + step * 9216 + j * 1024}' for j in range(nq)]
        return ops[0:2] + xs[0:1] + ops[2:] + xs[1:]
    def acc(t, j): return ACC2 + 4 * (j * nt + t)
    def mf(st_, first):
        return [mfma(acc(t, j), AF[st_] + 4*t, BF[st_] + 4*j, None if first else acc(t, j)) for j in range(nq) for t in range(nt)]
    for r, off in sts:
        em.op(f's_mov_b32 s{sT0}, {off}')
        em.op(f'buffer_store_dwordx4 {vr(r)}, v{t0}, {sr(SO,4)}, s{sT0} offen' + ['', ' sc1', ' nt', ' sc0'][cfg.sc_o], tag='CO0' if off < 18432 else 'CO1')
    for o in reads(0, 0, 0): em.op(o)
    em.op(f'v_lshlrev_b32 v{t1}, 4, {L}')
    em.op(f's_and_b32 s{sT1}, s{sW}, 1')
    em.op(f's_add_u32 s{sT2}, s{sT1}, {2 if orole else 0}'); em.op(f's_mul_i32 s{sT2}, s{sT2}, 9'); em.op(f's_add_u32 s{sT2}, s{sT2}, s{sQ0}'); em.op(f's_lshl_b32 s{sT2}, s{sT2}, 10')
    em.op(f'v_add_u32 v{t2}, s{sT2}, v{t1}')
    em.op(f's_mul_i32 s{sT1}, s{sT1}, 5120'); em.op(f's_add_u32 s{sT1}, s{sT1}, {(36 + (3 if tv == 1 else 0)) * 1024}')
    em.op(f'v_add_u32 v{t3}, s{sT1}, v{t1}')
    def pack(a, b):
        o = [f'v_cvt_pk_bf16_f32 v{a}, v{a}, v{a+1}', f'v_cvt_pk_bf16_f32 v{a+1}, v{a+2}, v{a+3}']
        if b is not None: o += [f'v_cvt_pk_bf16_f32 v{a+2}, v{b}, v{b+1}', f'v_cvt_pk_bf16_f32 v{a+3}, v{b+2}, v{b+3}']
        return o
    def st(a, va, off):
        def f():
            em.op(f's_mov_b32 s{sT0}, {off}')
            em.op(f'buffer_store_dwordx4 {vr(a)}, v{va}, {sr(SP,4)}, s{sT0} offen{sc}')
        return f
    carry = []
    for s in range(12):
        if s == 1 and orole and cfg.epoll:
            em.op(f'global_load_dword v{vPL1}, v{vPL0}, s[{sF1}:{sF1+1}] sc1')
        if cfg.onew and s > 0: em.wait_lgkm0()
        interleave(em, mf(0, s == 0), ([] if cfg.x_tno & 4 and 5 < s <= 8 else reads(s, 1, 1), 0, rf), (carry, 0.05, 0.95))
        if s == 1 and orole and cfg.epoll:
            em.op(f'v_cmp_ne_u32 vcc, s{sTAG}, v{vPL1}')
            em.op('s_nop 4')
            em.op(f's_cbranch_vccnz L_np{tv}')
            em.begin_opt()
            for f in tail_dma(em, 3, True): f()
            em.op(f's_mov_b32 s{sDONE}, 1')
            em.end_opt()
            em.label(f'L_np{tv}')
        carry = []
        if s < 11:
            if s == 0 and cfg.chunk: em.wait_vm_tag('CO0', lgkm0=True)
            elif s == 0: em.wait_vm0(); em.wait_lgkm0()
            elif s == cfg.chunk and cfg.chunk:
                em.wait_vm_tag('CO1'); em.wait_vm_tag(f'T{s+1}', lgkm0=True)
            else: em.wait_vm_tag(f'T{s+1}', lgkm0=True)
            em.barrier()
            em.st.stamp(f'T{s}')
        if cfg.tloop and s == 8:
            em.op('s_sub_u32 s79, s79, 1'); em.op('s_cmp_lg_u32 s79, 0'); em.op(f's_cbranch_scc1 L_tl{tv}')
            em.st.stamp('LBend')
        if cfg.tloop and s == 5:
            em.st.stamp('LB0')
            em.op('s_mov_b32 s79, 16'); em.label(f'L_tl{tv}')
        if s == 0 and tv == 2: flag_store(em, sF1, sJ, 'L_f1', 4)
        if cfg.chunk and s == cfg.chunk and tv == 3: flag_store(em, sF1, sJ, 'L_f1b', 6, 16)
        if cfg.chunk and s == (5 if cfg.direct else 2) and orole: em.op(f'global_load_dword v{vPL1}, v{vPL0}, s[{sF1}:{sF1+1}] offset:16 sc1')
        if cfg.chunk and s == (6 if cfg.direct else 3) and orole:
            em.op(f'v_cmp_ne_u32 vcc, s{sTAG}, v{vPL1}')
            em.op('s_nop 4')
            em.op(f's_cbranch_vccz L_p1c_{tv}')
            keep = em.save()[2]
            em.begin_opt()
            poll(em, sF1, 3, f'L_p1b_{tv}', 16, keep=True)
            em.end_opt()
            em.vm = keep
            em.label(f'L_p1c_{tv}')
        fill = []; dm = []
        if s < 11 and not (cfg.x_tno & 4 and 5 <= s < 8): fill += reads(s + 1, 0, 0)
        if s == 0 and orole and cfg.epoll:
            em.op(f's_mov_b32 s{sDONE}, 0')
            em.op(f'v_and_b32 v{vPL0}, 3, {L}'); em.op(f'v_lshlrev_b32 v{vPL0}, 2, v{vPL0}')
        if s + 3 <= 11:
            if not orole or s >= 2:
                dm = tail_dma(em, s + 3, orole); dm, carry = dm[:3], dm[3:]
                if 5 <= s < 8 and cfg.x_tno >> int(orole) & 1: dm = []; carry = []
            elif s == 1:
                if cfg.epoll:
                    em.op(f's_cmp_eq_u32 s{sDONE}, 1')
                    em.op(f's_cbranch_scc1 L_ep{tv}')
                    vm_before = em.save()[2]
                    em.begin_opt()
                poll(em, sF1, 3, f'L_p1_{tv}')
                for f in tail_dma(em, 3, True): f()
                if cfg.epoll:
                    em.end_opt()
                    em.label(f'L_ep{tv}')
                dm = tail_dma(em, 4, True)
        ins = []
        n = nt * nq
        if s == 11:
            groups = []
            for j in range(nq):
                groups.append((j * nt + 1, pack(acc(0, j), acc(1, j)) + [st(acc(0, j), t2, j * 1024)]))
                if nt == 3 and (j % 2 == 1 or j == nq - 1):
                    j0 = j - (j % 2)
                    groups.append((j * nt + 2, pack(acc(2, j0), acc(2, j) if j != j0 else None) + [st(acc(2, j0), t3, (j0 // 2) * 1024)]))
            lag = 4
            ins = [(g, (p + lag + 0.5) / n, (p + lag + 0.5) / n) for p, g in groups if p + lag < n]
            restg = [g for p, g in groups if p + lag >= n]
        interleave(em, mf(1, False), (dm, 0.05, 0.95), (fill, 0, rf), *ins)
    for g in restg:
        for o in g: emit(em, o)
    em.st.stamp('TP')
    sU, sDL = sT3, sT4
    if tv < 3:
        em.op(f's_lshl_b32 s{sU}, s{sW}, 3'); em.op(f's_add_u32 s{sU}, s{sU}, s{sX}')
        em.op(f's_lshl_b32 s{sT0}, s{sU}, 10')
        em.op(f'v_add_u32 v{t2}, s{sT0}, v{t1}')
        em.op(f's_mul_i32 s{sT0}, s{sU}, 57'); em.op(f's_lshr_b32 s{sT0}, s{sT0}, 9')
        em.op(f's_mul_i32 s{sT1}, s{sT0}, 9'); em.op(f's_sub_u32 s{sT1}, s{sU}, s{sT1}')
        em.op(f's_lshl_b32 s{sT0}, s{sT0}, 2'); em.op(f's_lshr_b32 s{sT0}, 0x8630, s{sT0}'); em.op(f's_and_b32 s{sT0}, s{sT0}, 15')
        em.op(f's_mov_b32 s{sDL}, 32')
        em.op(f's_cmp_lt_u32 s{sU}, 36')
        em.op(f's_cbranch_scc1 L_dec{tv}')
        em.begin_opt()
        em.op(f's_cmp_ge_u32 s{sU}, 41')
        em.op(f's_cselect_b32 s{sT0}, 5, 2')
        em.op(f's_cselect_b32 s{sT1}, 41, 36')
        em.op(f's_sub_u32 s{sT1}, s{sU}, s{sT1}')
        em.op(f's_cmp_eq_u32 s{sT1}, 2')
        em.op(f's_mov_b32 s{sDL}, 20480')
        em.op(f's_cselect_b32 s{sDL}, 0x40000000, s{sDL}')
        em.op(f's_lshl_b32 s{sT1}, s{sT1}, 2'); em.op(f's_lshr_b32 s{sT1}, 0x75420, s{sT1}'); em.op(f's_and_b32 s{sT1}, s{sT1}, 15')
        em.end_opt()
        em.label(f'L_dec{tv}')
        em.op(f's_lshl_b32 s{sT1}, s{sT1}, 4'); em.op(f's_mul_i32 s{sT2}, s{sB}, 144'); em.op(f's_add_u32 s{sT1}, s{sT1}, s{sT2}'); em.op(f's_mul_i32 s{sT1}, s{sT1}, 1280')
        em.op(f's_lshl_b32 s{sT0}, s{sT0}, 5'); em.op(f's_add_u32 s{sT1}, s{sT1}, s{sT0}')
        em.op(f's_mul_i32 s{sT0}, s{sJ}, 320'); em.op(f's_add_u32 s{sT1}, s{sT1}, s{sT0}')
        em.op(f'v_and_b32 v{t3}, 15, {L}'); em.op(f'v_mul_u32_u24 v{t3}, 1280, v{t3}')
        em.op(f'v_lshrrev_b32 v{t0}, 4, {L}'); em.op(f'v_lshl_add_u32 v{t3}, v{t0}, 3, v{t3}')
        em.op(f'v_add_u32 v{t3}, s{sT1}, v{t3}')
    em.wait_vm0(); em.barrier()
    em.st.stamp('TW')
    if tv == 3:
        flag_store(em, sF2, sX, 'L_f2', 7)
    else:
        if tv == 2:
            em.op(f's_cmp_ge_u32 s{sU}, 46')
            em.op(f's_cbranch_scc1 L_fin2')
        poll(em, sF2, 7, f'L_p2_{tv}')
        em.st.stamp('TF')
        for x in range(8):
            em.op(f's_mov_b32 s{sT0}, {x * PART2}')
            em.op(f'buffer_load_dwordx4 {vr(76 + 4*x)}, v{t2}, {sr(SPR,4)}, s{sT0} offen{sc}')
        if tv == 0:
            em.op(f's_or_b32 s{sT0}, s{sH}, s{sW}')
            em.op(f's_cmp_eq_u32 s{sT0}, 0')
            em.op('s_cbranch_scc0 L_nw')
            em.begin_opt()
            em.op(f's_lshl_b32 s{sT0}, s{sB}, 8'); em.op(f's_add_u32 s{sT0}, s{sT0}, {FLAG_OFF}')
            em.op(f'v_mov_b32 v60, s{sT0}'); em.op(f'v_mov_b32 v61, s{sTAG}')
            em.op('s_mov_b64 exec, 1')
            em.op('global_store_dword v60, v61, s[12:13]' + (' sc1' if cfg.osc in (1, 3) else ''))
            em.op('s_mov_b64 exec, -1')
            em.end_opt()
            em.label('L_nw')
        A = 108
        for x in range(8):
            for d in range(4):
                r = 76 + 4*x + d
                if x == 0:
                    em.op(f'v_lshlrev_b32 v{A+2*d}, 16, v{r}'); em.op(f'v_and_b32 v{A+2*d+1}, 0xffff0000, v{r}')
                else:
                    tp = A + 8 + 2 * (d & 1)
                    em.op(f'v_lshlrev_b32 v{tp}, 16, v{r}'); em.op(f'v_and_b32 v{tp+1}, 0xffff0000, v{r}')
                    em.op(f'v_pk_add_f32 {vr(A+2*d,2)}, {vr(A+2*d,2)}, {vr(tp,2)}')
        for d in range(4): em.op(f'v_cvt_pk_bf16_f32 v{A+d}, v{A+2*d}, v{A+2*d+1}')
        em.op(f'buffer_store_dwordx2 {vr(A,2)}, v{t3}, {sr(SOUT,4)}, 0 offen' + ['', ' sc1', ' nt', ' sc0 sc1'][cfg.osc])
        em.op(f'buffer_store_dwordx2 {vr(A+2,2)}, v{t3}, {sr(SOUT,4)}, s{sDL} offen' + ['', ' sc1', ' nt', ' sc0 sc1'][cfg.osc])
        if tv == 2: em.label('L_fin2')
    if cfg.diag: em.wait_vm0()
    em.st.flush(12, 0, sW, 244)
    em.op('s_endpgm')

def kernel_header(name):
    return f'.globl {name}\n.p2align 8\n.type {name},@function\n{name}:\n'
def kernel_desc(name, vgpr, sgpr=102):
    return f'''.amdhsa_kernel {name}
  .amdhsa_next_free_vgpr {vgpr}
  .amdhsa_next_free_sgpr {sgpr}
  .amdhsa_accum_offset {(vgpr + 3) // 4 * 4}
  .amdhsa_group_segment_fixed_size 0
  .amdhsa_kernarg_size 64
  .amdhsa_user_sgpr_count 2
  .amdhsa_user_sgpr_kernarg_segment_ptr 1
  .amdhsa_system_sgpr_workgroup_id_x 1
.end_amdhsa_kernel
'''

def gen_k1():
    em = Em(); EM[0] = em
    k1_prologue(em)
    st0 = em.save()
    em.label('k1_body_start')
    for qh in range(2):
        sts = []
        for typ in ((1, 0) if cfg.n0 else (0,)):
            if qh or typ == 0 and cfg.n0: em.label(f'L_qp{qh}{typ}')
            em.restore(st0)
            em.typ = typ
            k1_qproj(em, qh, typ)
            k1_qk(em, qh)
            sts.append(em.save())
            if typ == 1: em.op(f's_branch L_sm{qh}')
        if len(sts) == 2:
            t = [[e[0] for e in s[2]] for s in sts]
            lo, hi = sorted(range(2), key=lambda i: len(t[i]))
            assert t[hi][len(t[hi]) - len(t[lo]):] == t[lo], t
            em.restore(sts[hi]); em.hist = []
            em.label(f'L_sm{qh}')
        k1_sm0(em, qh)
        k1_pv(em, qh)
    em.label('k1_body_end')
    em.label('L_k1_exit')
    em.op('s_endpgm')
    return em

def main():
    ref = open('cdna_kernels/' + NAME + '.s.ref').read().split('\n')
    head = [l for l in ref[:9]]
    k1 = gen_k1()
    KN = NAME + '_kernel'
    out = '\n'.join(head) + '\n'
    out += f'; @launch grid=(256,1,1) block=(512,1,1) lds={LDS1}\n'
    out += '.amdgcn_target "amdgcn-amd-amdhsa--gfx950"\n.text\n'
    out += kernel_header(KN) + k1.text()
    out += '.section .rodata,"a"\n.p2align 6\n' + kernel_desc(KN, 256)
    open(sys.argv[1], 'w').write(out)
    print('k1 instrs', k1.count, 'nops', k1.nops, file=sys.stderr)
main()
```

```python
import sys, struct, math
from em import Em, interleave, emit

NAME = 'standalone__gqa_block_cached__near_ridge'
def fbits(x): return struct.unpack('<I', struct.pack('<f', x))[0]

class Cfg:
    nt_kv = True
    nt_w = False
    nt_k2 = False
    two_types = True
    pre = True
    code_pre = True
    diag = False
    pk = True
    rfrac = 60
    prio = 0
    x_noexp = 0
    x_nopw = 0
    efrac = 95
    loopb = -1
    st = 0
    dbg = 0
    n0 = 1
    inpv0 = 0
    inpv1 = 0
    pfa = 5
    kq = 12
    kq0 = 7
    wont = 0
    vrf = 60
    x_ren = 0
    vrole = 1
    vfirst = 0
    vold = 0
    vh0 = 12
    wsoff = 0
    cearly = 1
    osc = 0
    cre = 1
    woe = 1
    vby = 1
    vbyn = 12
    emax = 0
    wosm = 0
    qlate1 = 1
    g2m0 = 60
    g2m1 = 60
    qfm = 1
    tloop = 0
    x_tno = 0
    pf0x = 0
    nu = 6
    pfs = 2
    nopad = 1
    pfxp = 10
    pfw = 10
    vpf = 0
    vpq = 0
    vpq_in = 4
    vpnt = 1
    spin = 0
    spst = -1
    spty = -1
    direct = 1
    chunk = 1
    onew = 1
    qlate = 0
    drole = 0
    in0 = 0
    in1 = 0
    epoll = 1
    pfx = 10
    opair = 1
    tsq = 1
    g2e = 0
    wo0 = 1
    pfnt = 0
    pfown = 10
    pfall = 1
    nt_k = 1
    nt_v = 1
    eager = 3
    eagerv = 0
    qwi = 1
    g2lo = 0
    g2hi = 30
    valo = 0
    vahi = 60
    pf1 = 10
    v0e = 0
    kqb = 0
    kqb0 = 7
    vb = 0
    vreg = 0
    nvy = 4
    sc_o = 1
    sc_ol = 1
    rt = 0
    qloop = 0
    x_qnodma = 0
    x_qnord = 0
    dlo = 10
    dhi = 95
    dsplit = 3
    x_delay = 0
    wopre = 1
    sc = 1
    x_nobar = 0
    x_nord = 0
    x_nodma = 0
cfg = Cfg()
cfg.pvst = (3,7); cfg.qst = (0,8,)
if 'pvall=1' in sys.argv: sys.argv.remove('pvall=1'); cfg.pvst = (0,1,2,3,4,5,6,7); cfg.qst = (); cfg.fewst = True
else: cfg.fewst = False
for a in sys.argv[2:]:
    k, v = a.split('='); setattr(cfg, k, type(getattr(cfg, k))(int(v)))
STSETS = {0: 'S0 BQ PV0 BO T2 TW', 1: 'ka pi si S0 B0 B8 BQ K0 K1 QKend BM exp0 PV0', 2: 'PV0 PB0 PB1 PB2 PB3 PB4 PB5 PB6', 9: 'BM exp0 PV0 PB3 PB6 PB7 BO T0', 3: 'BO T0 T1 T2 TW TF', 4: 'K0 K1 QKend BM exp0 PV0 PB3 PB7 BO T0', 8: '', 5: 'S0 LB0 LBend BQ', 6: 'S0 B0 B4 B7 B9 BQ', 10: 'BQ K0 K1 QKend BM PV0', 11: 'PV0 PB1 PB3 PB5 PB7 BO', 7: 'BO T0 T1 T2 T3 T4 T6 T8 T10 TP'}
cfg.stlist = ['rt0', 'start'] + STSETS[cfg.st].split()[:6] + ['end', 'rt_end']
cfg.pvst = range(8); cfg.qst = range(10)
cfg.types = bool(cfg.n0)

def vr(b, n=4): return f'v[{b}:{b + n - 1}]' if n > 1 else f'v{b}'
def sr(b, n): return f's[{b}:{b + n - 1}]'
MF = 'v_mfma_f32_16x16x32_bf16'
def mfma(d, a, b, c=None):
    return f'{MF} {vr(d)}, {vr(a)}, {vr(b)}, ' + ('0' if c is None else vr(c))

FLAG_OFF = 28 << 20
PART2 = 47104
O_HEAD = 55296
WS_PART = 16 << 20
PART_TILE = 90 * 1024

def srd(em, d, base_lo, base_hi, off_sgpr, size):
    if off_sgpr is None:
        em.op(f's_mov_b32 s{d}, s{base_lo}'); em.op(f's_mov_b32 s{d+1}, s{base_hi}')
    else:
        em.op(f's_add_u32 s{d}, s{base_lo}, {off_sgpr}'); em.op(f's_addc_u32 s{d+1}, s{base_hi}, 0')
    em.op(f's_mov_b32 s{d+2}, {size}')
    em.op(f's_mov_b32 s{d+3}, 0x20000')

_lab = [0]
DIAG_OFF = 64 << 20
class Stamps:
    def __init__(self, em):
        self.em = em; self.n = 0; self.names = []
        if cfg.diag:
            for i in range(len(cfg.stlist)): em.op(f's_mov_b32 s{60 + 2*i}, 0')
    def stamp(self, name, real=False):
        if cfg.spin:
            L = ['S0', 'BQ', 'BM', 'PV0', 'BO', 'T2', 'TW', 'TF']
            if name == 'rt0' or (cfg.spst >= 0 and name == L[cfg.spst]):
                r = 76 if name == 'rt0' else 78
                self.em.wait_lgkm0()
                self.em.op(f's_memrealtime s[{r}:{r+1}]'); self.em.op('s_waitcnt lgkmcnt(0)')
                if name == 'rt0': self.em.op('s_mov_b32 s78, s76')
            return
        if not cfg.diag or name not in cfg.stlist: return
        em = self.em; i = cfg.stlist.index(name)
        em.wait_lgkm0()
        em.op(('s_memrealtime' if (real or cfg.rt) else 's_memtime') + f' s[{60 + 2*i}:{61 + 2*i}]')
        em.op('s_waitcnt lgkmcnt(0)')
    def flush(self, ws_lo, kidx, wave_s, tv):
        if cfg.spin:
            em = self.em; _lab[0] += 1
            if cfg.spty >= 0:
                em.op(f's_cmp_eq_u32 s39, {cfg.spty}'); em.op('s_cselect_b32 s78, s78, s76')
            em.op('s_sub_u32 s78, s78, s76'); em.op(f's_add_u32 s78, s78, {cfg.spin}')
            em.label(f'L_sp{_lab[0]}')
            em.op('s_sleep 2')
            em.op('s_memrealtime s[74:75]'); em.op('s_waitcnt lgkmcnt(0)')
            em.op('s_sub_u32 s74, s74, s76'); em.op('s_cmp_lt_u32 s74, s78'); em.op(f's_cbranch_scc1 L_sp{_lab[0]}')
            return
        if not cfg.diag: return
        em = self.em
        self.stamp('end'); self.stamp('rt_end', real=True)
        if cfg.dbg:
            _lab[0] += 1
            em.op('s_load_dwordx2 s[56:57], s[0:1], 48')
            em.op(f's_and_b32 s58, s2, 0xdf'); em.op(f's_or_b32 s58, s58, s{wave_s}'); em.op('s_cmp_eq_u32 s58, 0')
            em.op('s_waitcnt lgkmcnt(0)')
            em.op(f's_cbranch_scc0 L_dbg{_lab[0]}')
            em.op(f'v_mov_b32 v{tv}, s2')
            for k, i in enumerate([2, 3, 4, 13, 6, 9, 11, 12]):
                em.op(f's_sub_u32 s58, s{60 + 2*i}, s{60 if i == 13 else 62}')
                em.op(f'v_mov_b32 v{tv+1}, s58')
                em.op(f'global_store_dword v{tv}, v{tv+1}, s[56:57] offset:{4*k}')
            em.label(f'L_dbg{_lab[0]}')
            return
        em.op(f's_lshl_b32 s56, s2, 3'); em.op(f's_add_u32 s56, s56, s{wave_s}'); em.op('s_lshl_b32 s56, s56, 7')
        em.op(f's_add_u32 s56, s56, {DIAG_OFF + (kidx << 20)}')
        em.op(f's_add_u32 s56, s{ws_lo}, s56'); em.op(f's_addc_u32 s57, s{ws_lo+1}, 0')
        em.op(f'v_mov_b32 v{tv}, 0')
        for i in range(len(cfg.stlist)):
            em.op(f'v_mov_b32 v{tv+1}, s{60 + 2*i}')
            em.op(f'global_store_dword v{tv}, v{tv+1}, s[56:57] offset:{4*i}')
        print('stamps', kidx, cfg.stlist, file=sys.stderr)

SX, SWQ, SK, SV, SO = 16, 20, 24, 28, 32
sW, sW3072, sW1024, sTYPE, sOFF, sT0, sT1, sT2, sC, sB, sH, sJ, sLOC, sX = 36, 37, 38, 39, 40, 41, 42, 43, 44, 52, 46, 47, 48, 53
vLANE, vXO, vWO, vK0, vK1, vVO = 1, 2, 3, 4, 5, 6
vRA = [7, 8]
vRB = [9, 10, 11]
vRC = [12, 13, 14]
vT = 15
vOW = [8, 254, 255]
vVW, vVW2 = 7, 8
vPA, vPW, vMS = 240, 242, 243
vPW2 = 241
TMP = list(range(244, 256))
STG = 43008
PBASE, VBASE, MAXB, SUMB = 0, 55296, 153600, 155648
NV = 4
def vslot(s): return [3, 1, 2, 0][s % 4]
LDS1 = SUMB + 12 * 512
def kop(kt, ks): return 16 + 4 * (kt * 6 + ks)
def sreg(kt, qt):
    if kt < 2: return 116 + 4 * (qt * 2 + kt)
    i = qt * 2 + (kt - 2)
    return 16 + 4 * i if i < 12 else 188 + 4 * (i - 12)
ACC = 116
MC = 212
SUM = 221
SUMP = 222
QF = 224
OACC0 = [116 + 4*i for i in range(15)]
OACC1 = [120 + 8*i for i in range(9)] + [100, 80, 208]
PAF0 = [[176, 180, 184], [104, 108, 112]]
PAF1 = [[200, 192, 60], [104, 108, 112]]
PBF0 = [[64, 68, 72, 76, 80], [84, 88, 92, 96, 100]]
PBF1 = [[64, 68, 72, 76], [84, 88, 92, 96]]
INV0 = 212
NEXP1 = 4


sKB = 57
vKR = [250, 251]
vKR2 = [246, 247]
vVO3 = 252
def k_dma_ops(em, half):
    nt = ' nt' if cfg.nt_kv and cfg.nt_k else ''
    ops = []
    for c in range(3):
        for k in range(2):
            for p in range(2):
                def f(c=c, k=k, p=p):
                    em.op(f's_add_u32 m0, s{sKB}, {(k * 3 + c) * 2048 + p * 1024 - c * 128}')
                    em.op(f's_mov_b32 s{sOFF}, {(half * 2 + k) * 6144}')
                    em.op(f'buffer_load_dwordx4 v{vK1 if p else vK0}, {sr(SK,4)}, s{sOFF} offen offset:{c*128}{nt} lds', tag=f'K{half}_{c * 2 + k}')
                ops.append(f)
    return ops
def k_rd_ops(half, u):
    c, k = divmod(u, 2)
    if cfg.qfm:
        return [f'ds_read_b64 {vr(kop(half * 2 + k, 2 * c + e) + 2 * h, 2)}, v{(vKR + vKR2)[e + 2 * h]} offset:{(k * 3 + c) * 2048}' for e in range(2) for h in range(2)]
    return [f'ds_read_b128 {vr(kop(half * 2 + k, 2 * c + e))}, v{vKR[e]} offset:{(k * 3 + c) * 2048}' for e in range(2)]
def k_fetch(em, half, nxt, u0=0, u1=6):
    nr = 4 if cfg.qfm else 2
    if cfg.qfm:
        for e in range(2): em.op(f'v_xor_b32 v{vKR2[e]}, 32, v{vKR[e]}')
    for u in range(u0, u1):
        em.wait_vm_tag(f'K{half}_{u}')
        for o in k_rd_ops(half, u): em.op(o)
        if nxt and u > u0:
            em.waitcnt(lgkm=nr); em.lgkm = em.lgkm[-nr:]
            for f in nxt[2 * u - 2: 2 * u]: f()
    if nxt:
        em.wait_lgkm0()
        for f in nxt[2 * u1 - 2: 2 * u1]: f()
sKB2 = 50
vVO4 = 112
def va_ops(em, partner=False):
    nt = ' nt' if cfg.nt_kv and cfg.nt_v else ''
    ops = []
    for rg in range(4):
        for c in range(3):
            def f(c=c, rg=rg):
                em.op(f's_add_u32 m0, s{sKB2 if partner else sKB}, {rg * 3072 + c * 896}')
                em.op(f's_mov_b32 s{sOFF}, {rg * 3072 + (256 * 384 if partner else 0)}')
                em.op(f'buffer_load_dwordx4 v{vVO4 if partner else vVO3}, {sr(SV,4)}, s{sOFF} offen offset:{c*128}{nt} lds', tag='VB' if partner else 'VA')
            ops.append(f)
    return ops

def stage_dma_ops(em, s, qh):
    nt = ' nt' if cfg.nt_w else ''
    slot = (s % 3) * 18432
    ops = []
    for c in range(3):
        def f(c=c):
            em.op(f's_add_u32 m0, s{sW3072}, {VBASE + (s % 3) * 24576 + c * 896}')
            if c == 0: em.op(f's_mov_b32 s{sOFF2}, {s * 786432}')
            em.op(f'buffer_load_dwordx4 v{vWO}, {sr(SWQ,4)}, s{sOFF2} offen offset:{c*128}{nt} lds', tag=f'S{s}')
        ops.append(f)
    for j in range(2):
        def f(j=j):
            em.op(f's_add_u32 m0, s{sW1024}, {slot + j * 8192}')
            em.op(f's_mov_b32 s{sOFF}, {s * 128 + j * 81920}')
            em.op(f'buffer_load_dwordx4 v{vXO}, {sr(SX,4)}, s{sOFF} offen{nt} lds', tag=f'S{s}')
        ops.append(f)
    if qh == 1:
        def f():
            _lab[0] += 1
            lab = f'L_x{_lab[0]}'
            em.op(f's_cmp_lt_u32 s{sW}, 6')
            em.op(f's_cbranch_scc0 {lab}')
            em.begin_opt()
            em.op(f's_add_u32 m0, s{sW1024}, {slot + 12288}')
            em.op(f's_mov_b32 s{sOFF}, {s * 128 + 122880}')
            em.op(f'buffer_load_dwordx4 v{vXO}, {sr(SX,4)}, s{sOFF} offen{nt} lds', tag=f'S{s}')
            em.end_opt()
            em.label(lab)
        ops.insert(0, f)
    return ops

def v_dma_ops(em, s):
    nt = ' nt' if cfg.nt_kv and cfg.nt_v else ''
    ops = []
    for c in range(3):
        def f(c=c):
            em.op(f's_add_u32 m0, s{sW3072}, {VBASE + vslot(s) * 24576 + c * 896}')
            em.op(f's_mov_b32 s{sOFF}, {(128 * (s & 3) + 32 * (s >> 2)) * 384}')
            em.op(f'buffer_load_dwordx4 v{vVO}, {sr(SV,4)}, s{sOFF} offen offset:{c*128}{nt} lds', tag=f'V{s}')
        ops.append(f)
    return ops

sDG = 49
sPFS, sPFB = 45, 50
sOFF2 = 3
vPF = 241
def pf_ops():
    if not cfg.pre: return []
    nt = ' nt' if cfg.nt_w else ''
    return [f'global_load_dwordx4 {vr(112)}, v{vPF}, s[{sPFB}:{sPFB+1}]{nt}', f'v_add_u32 v{vPF}, s{sPFS}, v{vPF}']
sTAG, sSTR, sF1, sF2, sHB, sM0T, sQ0, sNH, sCNT = 88, 89, 90, 92, 94, 98, 99, 100, 101
VST = 64
def v_reg_ops(em):
    nt = ' nt' if cfg.nt_kv and cfg.nt_v else ''
    ops = []
    for s in range(4, 8):
        for c in range(3):
            def f(s=s, c=c):
                em.op(f's_mov_b32 s{sOFF}, {(128 * (s & 3) + 32 * (s >> 2)) * 384}')
                em.op(f'buffer_load_dwordx4 {vr(VST + 4 * ((s - 4) * 3 + c))}, v{vVO}, {sr(SV,4)}, s{sOFF} offen offset:{c*128}{nt}', tag=f'V{s}')
            ops.append(f)
    return ops
def v_put_ops(s):
    slot = vslot(s)
    return [f'ds_write_b128 v{vVW if slot < 2 else vVW2}, {vr(VST + 4 * ((s - 4) * 3 + c))} offset:{(slot % 2) * 24576 + c * 1024}' for c in range(3)]

vPF2 = 254
VTMP = [248, 249, 253]
def pf2_ops():
    nt = ' nt' if cfg.nt_w else ''
    return [f'global_load_dwordx4 {vr(112)}, v{vPF2}, s[{sPFB}:{sPFB+1}]{nt}', f'v_add_u32 v{vPF2}, s{sPFS}, v{vPF2}']

def v_pf_ops(em, blk_delta=0):
    nt = ' nt' if cfg.vpnt else ''
    ops = []
    for s in range(4, 8):
        for c in range(3):
            def f(s=s, c=c):
                em.op(f's_mov_b32 s{sOFF}, {(128 * (s & 3) + 32 * (s >> 2)) * 384 + blk_delta}')
                em.op(f's_mov_b32 m0, {MAXB + 640}')
                em.op(f'buffer_load_dwordx4 v{vVO}, {sr(SV,4)}, s{sOFF} offen offset:{c*128}{nt} lds', tag='VP')
            ops.append(f)
    return ops

def k1_prologue(em):
    em.op('s_cmp_ge_u32 s2, 256')
    em.op('s_cbranch_scc1 L_k1_exit')
    em.st = Stamps(em); em.st.stamp('rt0', real=True); em.st.stamp('start')
    em.op('s_load_dwordx8 s[4:11], s[0:1], 0')
    em.op('s_load_dwordx2 s[12:13], s[0:1], 56')
    em.op('s_load_dwordx2 s[14:15], s[0:1], 32')
    em.op('s_load_dwordx2 s[54:55], s[0:1], 40')
    em.op(f'v_and_b32 v{vLANE}, 63, v0')
    em.op(f'v_lshrrev_b32 v{vT}, 6, v0')
    em.op(f's_and_b32 s{sX}, s2, 7')
    em.op(f's_lshr_b32 s{sLOC}, s2, 3')
    em.op(f'v_readfirstlane_b32 s{sW}, v{vT}')
    t0, t1, t2, t3, t4, t5 = TMP[:6]
    L = f'v{vLANE}'
    em.op(f's_and_b32 s{sJ}, s{sLOC}, 3')
    em.op(f's_lshr_b32 s{sB}, s{sLOC}, 2')
    em.op(f's_lshl_b32 s{sH}, s{sX}, 2')
    em.op(f's_add_u32 s{sH}, s{sH}, s{sJ}')
    em.op(f's_and_b32 s{sTYPE}, s{sB}, 1')
    em.op(f's_lshl_b32 s{sT0}, s{sLOC}, 1'); em.op(f's_mul_i32 s{sT0}, s{sT0}, 12288'); em.op(f's_mul_i32 s{sT1}, s{sX}, 1536'); em.op(f's_add_u32 s{sT0}, s{sT0}, s{sT1}')
    em.op(f's_lshl_b32 s{sT1}, s{sW}, 9'); em.op(f's_add_u32 s{sT0}, s{sT0}, s{sT1}')
    em.op(f'v_lshrrev_b32 v{t3}, 5, {L}'); em.op(f'v_mul_u32_u24 v{t3}, 12288, v{t3}')
    em.op(f'v_and_b32 v{t4}, 31, {L}'); em.op(f'v_lshlrev_b32 v{t4}, 4, v{t4}')
    em.op(f'v_add3_u32 v{t5}, v{t3}, v{t4}, s{sT0}')
    em.op(f'v_lshrrev_b32 v{t0}, 3, {L}')
    em.op(f'v_and_b32 v{t1}, 7, {L}')
    em.op(f'v_lshrrev_b32 v{t2}, 4, {L}')
    em.op(f's_mul_i32 s{sT0}, s{sLOC}, 36'); em.op(f's_lshl_b32 s{sT2}, s{sW}, 3'); em.op(f's_add_u32 s{sT0}, s{sT0}, s{sT2}'); em.op(f's_sub_u32 s{sT0}, s{sT0}, 24')
    em.op(f'v_add_u32 v{t3}, s{sT0}, v{t0}')
    em.op(f's_cmp_lt_u32 s{sW}, 3')
    em.op(f's_cselect_b64 vcc, -1, 0')
    em.op(f's_movk_i32 s{sPFS}, 128')
    em.op(f's_cselect_b32 s{sPFS}, 786432, s{sPFS}')
    for dst, dr, dw in ((vPF, 0, 0), (vPF2, 144, 98304) if not cfg.pfall else (vPF2, -144 & 0xffffffff, -98304 & 0xffffffff)):
        if dst == vPF2 and cfg.pf1 >= 10 and not cfg.pfall: continue
        if dst == vPF2 and cfg.pf0x:
            em.op(f's_mul_i32 s{sT1}, s{sTYPE}, {-288 & 0xffffffff}'); em.op(f's_add_u32 s{sT1}, s{sT1}, 144')
            em.op(f'v_add_u32 v{t4}, s{sT1}, v{t3}'); em.op(f'v_min_u32 v{t4}, 1151, v{t4}')
            em.op(f'v_mul_u32_u24 v{t4}, 1280, v{t4}')
            em.op(f'v_lshl_add_u32 v{t4}, v{t1}, 4, v{t4}')
            em.op(f's_mul_i32 s{sT1}, s{sTYPE}, {-196608 & 0xffffffff}'); em.op(f's_add_u32 s{sT1}, s{sT1}, 98304')
            em.op(f'v_add_u32 v{dst}, s{sT1}, v{t5}')
            em.op(f'v_cndmask_b32 v{dst}, v{t4}, v{dst}, vcc')
            em.op(f's_xor_b32 s{sT1}, s{sTYPE}, 1'); em.op(f's_mul_i32 s{sT1}, s{sT1}, {cfg.pfx}'); em.op(f's_mul_i32 s{sT1}, s{sT1}, s{sPFS}')
            em.op(f'v_add_u32 v{dst}, s{sT1}, v{dst}')
            continue
        em.op(f'v_add_u32 v{t4}, {dr}, v{t3}'); em.op(f'v_min_u32 v{t4}, 1151, v{t4}')
        em.op(f'v_mul_u32_u24 v{t4}, 1280, v{t4}')
        em.op(f'v_lshl_add_u32 v{t4}, v{t1}, 4, v{t4}')
        em.op(f'v_add_u32 v{dst}, {dw}, v{t5}')
        em.op(f'v_cndmask_b32 v{dst}, v{t4}, v{dst}, vcc')
    if cfg.pf1 < 10:
        em.op(f's_mul_i32 s{sT0}, s{sPFS}, {cfg.pf1}'); em.op(f'v_add_u32 v{vPF2}, s{sT0}, v{vPF2}')
    em.op(f's_and_b32 s{sDG}, s{sW}, 3')
    em.op(f's_mul_i32 s{sW3072}, s{sW}, 3072')
    em.op(f's_lshl_b32 s{sW1024}, s{sW}, 10')
    em.op(f's_and_b32 s{sT0}, s{sW}, 1')
    em.op(f's_lshl_b32 s{sT1}, s{sT0}, 2')
    em.op(f'v_add_u32 v{t3}, s{sT1}, v{t2}')
    em.op(f'v_xor_b32 v{t3}, v{t3}, v{t1}')
    em.op(f'v_add_u32 v{t4}, s{sT2}, v{t0}')
    em.op(f'v_mul_u32_u24 v{vXO}, 1280, v{t4}')
    em.op(f'v_lshl_add_u32 v{vXO}, v{t3}, 4, v{vXO}')
    em.op(f'v_and_b32 v{t3}, 1, v{t2}')
    em.op(f'v_lshl_add_u32 v{t3}, v{t3}, 1, s{sT1}')
    em.op(f'v_xor_b32 v{t3}, v{t3}, v{t1}')
    em.op(f'v_mul_u32_u24 v{vWO}, 12288, v{t4}')
    em.op(f'v_lshl_add_u32 v{vWO}, v{t3}, 4, v{vWO}')
    em.op(f's_lshl_b32 s{sT2}, s{sW}, 6')
    em.op(f'v_add_u32 v{t4}, s{sT2}, v{t0}')
    em.op(f'v_mul_u32_u24 v{t4}, 384, v{t4}')
    em.op(f'v_xor_b32 v{t3}, v{t2}, v{t1}')
    em.op(f'v_lshl_add_u32 v{vK0}, v{t3}, 4, v{t4}')
    em.op(f'v_xor_b32 v{vK1}, 64, v{vK0}')
    em.op(f'v_add_u32 v{vK1}, {8 * 384}, v{vK1}')
    em.op(f'v_lshlrev_b32 v{t3}, 1, v{t2}')
    em.op(f'v_xor_b32 v{t3}, v{t3}, v{t1}')
    em.op(f'v_lshl_add_u32 v{vVO3}, v{t3}, 4, v{t4}')
    em.op(f's_and_b32 s{sT1}, s{sW}, 6'); em.op(f's_lshr_b32 s{sKB}, 0x27, s{sT1}'); em.op(f's_and_b32 s{sKB}, s{sKB}, 3')
    em.op(f's_lshl_b32 s{sKB}, s{sKB}, 1'); em.op(f's_add_u32 s{sKB}, s{sKB}, s{sT0}'); em.op(f's_mul_i32 s{sKB}, s{sKB}, 12288'); em.op(f's_add_u32 s{sKB}, s{sKB}, {VBASE}')
    em.op(f'v_bfe_u32 v{t3}, {L}, 3, 1'); em.op(f'v_lshlrev_b32 v{t3}, 10, v{t3}')
    em.op(f'v_lshl_add_u32 v{t3}, v{t1}, 7, v{t3}')
    em.op(f'v_bfe_u32 v{t4}, {L}, 1, 3')
    em.op(f'v_xor_b32 v{t4}, v{t4}, v{t2}'); em.op(f'v_lshlrev_b32 v{vT}, 4, v{t4}')
    em.op(f'v_add_u32 v{vRA[0]}, v{t3}, v{vT}')
    if cfg.qfm:
        em.op(f'v_bfe_u32 v{t4}, {L}, 1, 3'); em.op(f'v_lshrrev_b32 v{t5}, 5, {L}'); em.op(f'v_xor_b32 v{t4}, v{t4}, v{t5}')
        em.op(f'v_lshl_add_u32 v{t3}, v{t4}, 4, v{t3}')
        em.op(f'v_and_b32 v{t4}, 1, v{t2}'); em.op(f'v_lshl_add_u32 v{t3}, v{t4}, 3, v{t3}')
        em.op(f'v_add_u32 v{vKR[0]}, s{sKB}, v{t3}')
    else:
        em.op(f'v_add_u32 v{vKR[0]}, s{sKB}, v{vRA[0]}')
    em.op(f'v_xor_b32 v{vKR[1]}, 64, v{vKR[0]}')
    em.op(f's_lshr_b32 s{sT1}, s{sW}, 2'); em.op(f's_lshl_b32 s{sT1}, s{sT1}, 6')
    em.op(f's_lshl_b32 s{sT0}, s{sDG}, 3'); em.op(f's_add_u32 s{sT0}, s{sT0}, s{sT1}')
    em.op(f'v_add_u32 v{t3}, s{sT0}, v{t0}')
    em.op(f'v_mul_u32_u24 v{vVO}, 384, v{t3}')
    em.op(f'v_lshlrev_b32 v{t3}, 1, v{t2}')
    em.op(f'v_xor_b32 v{t3}, v{t3}, v{t1}')
    em.op(f'v_lshl_add_u32 v{vVO}, v{t3}, 4, v{vVO}')
    em.op(f's_mul_i32 s{SX+3}, s{sB}, 184320')
    em.op(f's_mul_i32 s{SWQ+3}, s{sH}, 384')
    em.op(f's_lshl_b32 s{sT1}, s{sB}, 5'); em.op(f's_add_u32 s{sT1}, s{sT1}, s{sH}')
    em.op(f's_mul_i32 s{sT2}, s{sT1}, 196608')
    em.op(f's_mul_i32 s{SO+3}, s{sT1}, {O_HEAD}')
    em.op(f's_lshl_b32 s{sT0}, s{sB}, 8'); em.op(f's_add_u32 s{sT0}, s{sT0}, {FLAG_OFF}')
    em.op(f's_mov_b32 s{SX+2}, 184320'); em.op(f's_sub_u32 s{SWQ+2}, 7864320, s{SWQ+3}')
    em.op(f's_cmp_lt_u32 s{sW}, 3')
    em.op('s_waitcnt lgkmcnt(0)')
    em.st.stamp('ka')
    if cfg.diag: em.op(f's_cmp_lt_u32 s{sW}, 3')
    em.op(f's_cselect_b64 s[{sPFB}:{sPFB+1}], s[10:11], s[4:5]')
    for i in range(0 if cfg.pfall else 3):
        for o in pf_ops(): em.op(o)
    if cfg.cearly:
        em.op('s_getpc_b64 s[58:59]')
        em.label('L_pce')
        em.op('s_add_u32 s58, s58, k1_body_start-L_pce')
        em.op('s_addc_u32 s59, s59, 0')
        em.op(f's_and_b32 s{sT1}, s{sLOC}, 15')
        em.op(f's_lshl_b32 s{sT1}, s{sT1}, 13')
        em.op(f'v_lshlrev_b32 v{TMP[11]}, 4, v0')
        em.op(f'v_add_u32 v{TMP[11]}, s{sT1}, v{TMP[11]}')
        em.op(f'v_min_u32 v{TMP[11]}, k1_body_end-k1_body_start-16, v{TMP[11]}')
        em.op(f'global_load_dwordx4 {vr(112)}, v{TMP[11]}, s[58:59]')
    if cfg.wsoff:
        em.op(f's_add_u32 s12, s12, {cfg.wsoff << 20}'); em.op('s_addc_u32 s13, s13, 0')
    em.op(f's_load_dword s{sTAG}, s[12:13], s{sT0}')
    em.op(f's_add_u32 s{SWQ}, s10, s{SWQ+3}'); em.op(f's_addc_u32 s{SWQ+1}, s11, 0'); em.op(f's_mov_b32 s{SWQ+3}, 0x20000')
    em.op(f's_add_u32 s{SX}, s4, s{SX+3}'); em.op(f's_addc_u32 s{SX+1}, s5, 0'); em.op(f's_mov_b32 s{SX+3}, 0x20000')
    srd(em, SK, 6, 7, f's{sT2}', 196608); srd(em, SV, 8, 9, f's{sT2}', 196608)
    if cfg.n0 or cfg.pfall:
        em.op(f's_cmp_eq_u32 s{sTYPE}, 1')
        em.op('s_cbranch_scc0 L_nok1')
        em.begin_opt()
        em.op(f's_cmp_lt_u32 s{sW}, 3')
        em.op('s_cbranch_scc0 L_pfx')
        if cfg.pfs:
            em.op(f'v_add_u32 v{vPF}, {cfg.pfs * 786432}, v{vPF}'); em.op(f'v_add_u32 v{vPF2}, {cfg.pfs * 786432}, v{vPF2}')
        for i in range(cfg.pfw - cfg.pfs):
            for o in pf2_ops() + pf_ops(): em.op(o)
        em.op('s_branch L_nok1')
        em.label('L_pfx')
        if cfg.pfs: em.op(f'v_add_u32 v{vPF2}, {cfg.pfs * 128}, v{vPF2}')
        for i in range(cfg.pfxp - cfg.pfs):
            for o in pf2_ops(): em.op(o)
        for i in range(cfg.pfx):
            for o in pf_ops(): em.op(o)
        em.end_opt()
        em.label('L_nok1')
    if cfg.n0:
        em.op(f's_lshr_b32 s{sT0}, s{sW}, 2'); em.op(f's_lshl_b32 s{sT0}, s{sT0}, 1'); em.op(f's_or_b32 s{sT0}, s{sT0}, s{sTYPE}')
        for v in (0, 2, 3):
            em.op(f's_cmp_eq_u32 s{sT0}, {v}')
            em.op(f's_cbranch_scc1 L_qp{v >> 1}{v & 1}')
    else:
        em.op(f's_cmp_lt_u32 s{sW}, 4')
        em.op('s_cbranch_scc0 L_qp10')

def tile_m(em, t):
    tab = [[0, 4, 6, 10], [1, 5, 7, 11], [2, 3, 8, 9]][t]
    em.op(f's_lshl_b32 s{sT0}, s{sDG}, 2')
    em.op(f's_lshr_b32 s{sT0}, {sum(v << (4 * i) for i, v in enumerate(tab))}, s{sT0}')
    em.op(f's_and_b32 s{sT0}, s{sT0}, 15')

def tr_addr(em, dst, t, base, fmode):
    t0, t1, t2, t3 = TMP[:4]
    L = f'v{vLANE}'
    if (fmode == 'v' and cfg.opair) or (fmode == 'w' and cfg.qfm): tile_m(em, t)
    else:
        em.op(f's_mul_i32 s{sT0}, s{sDG}, 3'); em.op(f's_add_u32 s{sT0}, s{sT0}, {t}')
    em.op(f's_lshr_b32 s{sT1}, s{sT0}, 2'); em.op(f's_lshl_b32 s{sT1}, s{sT1}, 10')
    em.op(f's_add_u32 s{sT1}, s{sT1}, {base}')
    em.op(f's_and_b32 s{sT0}, s{sT0}, 3')
    em.op(f'v_lshrrev_b32 v{t0}, 4, {L}')
    em.op(f'v_bfe_u32 v{t1}, {L}, 2, 2')
    em.op(f'v_and_b32 v{t2}, 1, v{t0}')
    em.op(f'v_lshlrev_b32 v{t2}, 1, v{t2}')
    em.op(f'v_lshrrev_b32 v{t3}, 1, v{t1}')
    em.op(f'v_add_u32 v{t3}, v{t3}, v{t2}')
    em.op(f'v_xor_b32 v{t3}, s{sT0}, v{t3}')
    em.op(f'v_lshlrev_b32 v{t3}, 5, v{t3}')
    em.op(f'v_lshlrev_b32 v{dst}, 7, v{t1}')
    em.op(f'v_add_u32 v{dst}, v{dst}, v{t3}')
    if fmode == 'w':
        em.op(f'v_mul_u32_u24 v{t3}, 3072, v{t0}')
    else:
        em.op(f'v_lshlrev_b32 v{t2}, 8, v{t2}')
        em.op(f'v_add_u32 v{dst}, v{dst}, v{t2}')
        em.op(f'v_lshrrev_b32 v{t3}, 1, v{t0}')
        em.op(f'v_mul_u32_u24 v{t3}, 3072, v{t3}')
    em.op(f'v_add_u32 v{dst}, v{dst}, v{t3}')
    em.op(f'v_and_b32 v{t3}, 3, {L}')
    em.op(f'v_lshlrev_b32 v{t3}, 3, v{t3}')
    em.op(f'v_add_u32 v{dst}, v{dst}, v{t3}')
    em.op(f'v_add_u32 v{dst}, s{sT1}, v{dst}')

class Cap:
    def __init__(self): self.ops = []
    def op(self, t, tag=None): self.ops.append(t)

def k1_qproj(em, qh, typ):
    nq = 5 if qh == 0 else 4
    q0 = 0 if qh == 0 else 5
    L = f'v{vLANE}'
    t0, t1, t2, t3, t4, t5 = TMP[:6]
    rf = cfg.rfrac / 100
    if cfg.prio == qh + 1: em.op('s_setprio 1')
    npre = cfg.n0 if typ == 1 else 0
    if npre:
        nu = cfg.nu if npre == 1 else 6
        for f in k_dma_ops(em, 0)[:2 * nu]: f()
        em.wait_lgkm0(force=True)
        k_fetch(em, 0, k_dma_ops(em, 1) if npre == 2 else None, 0, nu)
        if npre == 2: k_fetch(em, 1, None)
        em.wait_lgkm0()
    em.barrier()
    for f in stage_dma_ops(em, 0, qh): f()
    em.barrier()
    for f in stage_dma_ops(em, 1, qh): f()
    em.op(f's_add_u32 s{SO}, s12, s{SO+3}'); em.op(f's_addc_u32 s{SO+1}, s13, 0'); em.op(f's_mov_b32 s{SO+2}, {O_HEAD}'); em.op(f's_mov_b32 s{SO+3}, 0x20000')
    em.op(f's_mov_b32 s{sC}, {fbits(192 ** -0.5 * math.log2(math.e))}')
    if cfg.code_pre and not cfg.cearly:
        em.op('s_getpc_b64 s[58:59]')
        em.label(f'L_pc{qh}{typ}')
        em.op(f's_add_u32 s58, s58, k1_body_start-L_pc{qh}{typ}')
        em.op('s_addc_u32 s59, s59, -1')
        em.op(f's_and_b32 s{sT1}, s{sLOC}, 15')
        em.op(f's_lshl_b32 s{sT1}, s{sT1}, 13')
        em.op(f'v_lshlrev_b32 v{TMP[11]}, 4, v0')
        em.op(f'v_add_u32 v{TMP[11]}, s{sT1}, v{TMP[11]}')
        em.op(f'v_min_u32 v{TMP[11]}, k1_body_end-k1_body_start-16, v{TMP[11]}')
    em.st.stamp('si')
    em.op(f'v_lshlrev_b32 v{t3}, 2, v0')
    em.op(f'v_add_u32 v{t3}, {MAXB}, v{t3}')
    em.op(f'v_mov_b32 v{t4}, 0xff800000')
    em.op(f'ds_write_b32 v{t3}, v{t4}')
    em.op(f'v_and_b32 v{vMS}, 15, {L}')
    em.op(f'v_lshlrev_b32 v{vMS}, 2, v{vMS}')
    em.op(f'v_add_u32 v{vMS}, {MAXB}, v{vMS}')
    em.op(f'v_add_u32 v{vRA[0]}, {q0 * 2048}, v{vRA[0]}')
    em.op(f'v_xor_b32 v{vRA[1]}, 64, v{vRA[0]}')
    for t in range(3): tr_addr(em, vRB[t], t, VBASE, 'w')
    if cfg.qfm:
        for t in (0, 2):
            tile_m(em, t)
            em.op(f's_lshr_b32 s{sT1}, s{sT0}, 1'); em.op(f's_mul_i32 s{sT1}, s{sT1}, 9216')
            em.op(f's_and_b32 s{sT0}, s{sT0}, 1'); em.op(f's_lshl_b32 s{sT0}, s{sT0}, 3'); em.op(f's_add_u32 s{sT0}, s{sT0}, s{sT1}')
            em.op(f's_add_u32 s{sT0}, s{sT0}, {q0 * 1024}')
            em.op(f'v_lshl_add_u32 v{vRC[t]}, {L}, 4, s{sT0}')
    for t in range(0 if cfg.qfm else 3):
        em.op(f's_mul_i32 s{sT0}, s{sDG}, 3'); em.op(f's_add_u32 s{sT0}, s{sT0}, {t}'); em.op(f's_lshl_b32 s{sT0}, s{sT0}, 1')
        em.op(f'v_lshrrev_b32 v{t0}, 5, {L}')
        em.op(f'v_add_u32 v{t0}, s{sT0}, v{t0}')
        em.op(f'v_lshrrev_b32 v{t1}, 3, v{t0}'); em.op(f'v_lshlrev_b32 v{t1}, 7, v{t1}')
        em.op(f'v_and_b32 v{t0}, 7, v{t0}')
        em.op(f'v_bfe_u32 v{t2}, {L}, 1, 3')
        em.op(f'v_xor_b32 v{t0}, v{t0}, v{t2}'); em.op(f'v_lshlrev_b32 v{t0}, 4, v{t0}')
        em.op(f'v_add_u32 v{t0}, v{t0}, v{t1}')
        em.op(f'v_and_b32 v{t1}, 15, {L}'); em.op(f'v_mul_u32_u24 v{t1}, 384, v{t1}')
        em.op(f'v_add_u32 v{t0}, v{t0}, v{t1}')
        em.op(f'v_bfe_u32 v{t1}, {L}, 4, 1'); em.op(f'v_lshlrev_b32 v{t1}, 3, v{t1}')
        em.op(f'v_add_u32 v{vRC[t]}, v{t0}, v{t1}')
    em.op(f'v_lshlrev_b32 v{vPA}, 4, {L}')
    em.op(f's_lshl_b32 s{sT0}, s{sW}, 2'); em.op(f's_lshr_b32 s{sT1}, 0x10543210, s{sT0}'); em.op(f's_and_b32 s{sT1}, s{sT1}, 15'); em.op(f's_mul_i32 s{sT1}, s{sT1}, 9216')
    em.op(f'v_add_u32 v{vPW}, s{sT1}, v{vPA}')
    em.op(f'v_add_u32 v{vPA}, {q0 * 1024}, v{vPA}')
    AF = [176, 188]; BF = [200, 220]
    def q_reads(s, step, st):
        ops = []
        for t in range(3):
            ops.append(f'ds_read_b64_tr_b16 {vr(AF[st] + 4*t, 2)}, v{vRB[t]} offset:{(s % 3) * 24576 + step * 12288}')
            ops.append(f'ds_read_b64_tr_b16 {vr(AF[st] + 4*t + 2, 2)}, v{vRB[t]} offset:{(s % 3) * 24576 + step * 12288 + 512}')
        xs = [f'ds_read_b128 {vr(BF[st] + 4*j)}, v{vRA[step]} offset:{(s % 3) * 18432 + j * 2048}' for j in range(nq)]
        return ops[0:2] + xs[0:1] + ops[2:6] + xs[1:]
    def mf(st, first):
        return [mfma(ACC + 4*(j*3+t), AF[st] + 4*t, BF[st] + 4*j, None if first else ACC + 4*(j*3+t)) for j in range(nq) for t in range(3)]
    em.wait_vm_tag('S0', lgkm0=True); em.barrier()
    em.st.stamp('S0')
    em.op(f's_add_u32 s{sTAG}, s{sTAG}, 1')
    for o in q_reads(0, 0, 0): em.op(o)
    em.npre = npre
    nxt = [k_dma_ops(em, 0), k_dma_ops(em, 1), va_ops(em)][npre]
    em.part = npre == 1 and cfg.nu < 6
    if em.part: nxt = k_dma_ops(em, 0)[2 * cfg.nu:] + k_dma_ops(em, 1)[:2 * cfg.nu]
    plan = {15: nxt[0:4], 16: nxt[4:7], 17: nxt[7:10], 18: nxt[10:12]} if qh == 0 else {19: nxt[0:6]}
    late = [] if qh == 0 else nxt[6:12]
    post = []
    if qh == 1 and (cfg.qlate or (cfg.qlate1 and npre)): plan = {}; late = []; post = nxt
    cap = Cap()
    for t in range(3): tr_addr(cap, VTMP[t], t, VBASE, 'v')
    vaddr_ops = cap.ops
    inloop_pf = not (typ == 1 and cfg.n0) and not cfg.pfall
    carry = stage_dma_ops(em, 2, qh) + (sum([pf_ops() for i in range(cfg.pfa - 3)], []) if inloop_pf else [])
    if cfg.code_pre and not cfg.cearly: carry.append(f'global_load_dwordx4 {vr(244)}, v{TMP[11]}, s[58:59]')
    for s in range(10):
        extra = []
        extra = plan.get(2 * s, [])
        if cfg.onew and s > 0: em.wait_lgkm0()
        interleave(em, mf(0, s == 0), ([] if cfg.x_qnord and 3 < s <= 6 else q_reads(s, 1, 1), 0, rf), (extra, 0.1, 1), (carry, 0.05, cfg.dhi / 100))
        if s < 9: em.wait_vm_tag(f'S{s+1}', lgkm0=True)
        else: em.wait_lgkm0()
        em.barrier()
        if s in cfg.qst: em.st.stamp(f'B{s}')
        if cfg.qloop and s == 6:
            em.op('s_sub_u32 s87, s87, 1'); em.op('s_cmp_lg_u32 s87, 0'); em.op(f's_cbranch_scc1 L_ql{qh}{typ}')
            em.st.stamp('LBend')
        if cfg.qloop and s == 3:
            em.st.stamp('LB0')
            em.op('s_mov_b32 s87, 16'); em.label(f'L_ql{qh}{typ}')
        rd = []; dm = []; extra = []
        if s < 9:
            if not (cfg.x_qnord and 3 <= s < 6): rd += q_reads(s + 1, 0, 0)
        carry = []
        if s + 3 <= 9:
            dm = stage_dma_ops(em, s + 3, qh); ds_ = cfg.dsplit if not cfg.drole else (6 if qh == cfg.drole - 1 else 0)
            dm, carry = dm[:ds_], dm[ds_:]
            if cfg.x_qnodma and 3 <= s < 6: dm = []; carry = []
        if s == 7: extra = vaddr_ops
        first = (pf_ops() + (pf2_ops() if s + cfg.pfa >= cfg.pf1 and cfg.n0 else []) if inloop_pf and s + cfg.pfa <= 9 and not (cfg.qloop and s >= 3) else []) + (sum([pf2_ops() for i in range(10 - cfg.pfx)], []) if cfg.pf0x == s + 1 and typ == 0 else []) + plan.get(2 * s + 1, [])
        qw = []
        if s == 9:
            for j in range(nq):
                for t in range(3):
                    a = ACC + 4*(j*3+t)
                    if cfg.qfm and t == 0: continue
                    if cfg.qfm and t == 1:
                        p = a - 4
                        qw.append((j*3+t, [f'v_cvt_pk_bf16_f32 v{p}, v{p}, v{p+1}', f'v_cvt_pk_bf16_f32 v{p+1}, v{p+2}, v{p+3}', f'v_cvt_pk_bf16_f32 v{p+2}, v{a}, v{a+1}',
                                   f'v_cvt_pk_bf16_f32 v{p+3}, v{a+2}, v{a+3}', f'ds_write_b128 v{vRC[0]}, {vr(p)} offset:{j * 1024}']))
                        continue
                    qw.append((j*3+t, [f'v_cvt_pk_bf16_f32 v{a}, v{a}, v{a+1}', f'v_cvt_pk_bf16_f32 v{a+1}, v{a+2}, v{a+3}', f'ds_write_b64 v{vRC[t]}, {vr(a,2)} offset:{j * 1024 if cfg.qfm else (q0 + j) * 6144}']))
        n = 3 * nq; lag = 3 if cfg.qwi else n
        ins = [(g, (p + lag + 0.5) / n, (p + lag + 0.5) / n) for p, g in qw if p + lag < n]
        interleave(em, mf(1, False), (dm, cfg.dlo / 100, cfg.dhi / 100), (rd, 0, rf), (extra, 0, 1), (first, 0, 0.04 if dm else 0.9), *ins)
    for p, g in qw:
        if p + lag >= n:
            for o in g: em.op(o)
    for f in late: f()
    if cfg.qfm: em.op(f'v_lshlrev_b32 v{vRA[0]}, 4, {L}')
    else:
        em.op(f'v_and_b32 v{t1}, 15, {L}'); em.op(f'v_mul_u32_u24 v{t1}, 384, v{t1}')
        em.op(f'v_add_u32 v{vRA[0]}, v{t1}, v{vT}')
        em.op(f'v_xor_b32 v{t0}, 64, v{vT}')
        em.op(f'v_add_u32 v{vRA[1]}, v{t1}, v{t0}')
    for t in range(3): em.op(f'v_mov_b32 v{vRB[t]}, v{VTMP[t]}')
    em.wait_lgkm0(); em.barrier()
    for f in post: f()
    for t in range(3): em.op(f'v_add_u32 v{vRC[t]}, 49152, v{vRB[t]}')
    em.op(f's_lshl_b32 s{sT0}, s{sW}, 2'); em.op(f's_lshr_b32 s{sT1}, 0x32105432, s{sT0}'); em.op(f's_and_b32 s{sT1}, s{sT1}, 15'); em.op(f's_mul_i32 s{sT1}, s{sT1}, 9216')
    em.op(f'v_lshlrev_b32 v{vPW2}, 4, {L}')
    em.op(f'v_add_u32 v{vPW2}, s{sT1}, v{vPW2}')
    em.st.stamp('BQ')

def maxops(half):
    ops = []
    for qt in range(9):
        a, b = sreg(half*2, qt), sreg(half*2+1, qt); m = MC + qt
        if half == 0:
            ops += [f'v_max3_f32 v{m}, v{a}, v{a+1}, v{a+2}', f'v_max3_f32 v{m}, v{m}, v{a+3}, v{b}',
                    f'v_max3_f32 v{m}, v{m}, v{b+1}, v{b+2}', f'v_max_f32 v{m}, v{m}, v{b+3}']
        else:
            ops += [f'v_max3_f32 v{m}, v{m}, v{a}, v{a+1}', f'v_max3_f32 v{m}, v{m}, v{a+2}, v{a+3}',
                    f'v_max3_f32 v{m}, v{m}, v{b}, v{b+1}', f'v_max3_f32 v{m}, v{m}, v{b+2}, v{b+3}']
    return ops

def code_refresh(va):
    ops = [f's_and_b32 s{sT1}, s{sLOC}, 15', f's_lshl_b32 s{sT1}, s{sT1}, 13', f'v_lshlrev_b32 v{va}, 4, v0', f'v_and_b32 v{va}, 0xfff, v{va}', f'v_add_u32 v{va}, s{sT1}, v{va}']
    for i in range(2):
        ops += [f'v_min_u32 v{va}, k1_body_end-k1_body_start-16, v{va}', f's_mov_b32 m0, {MAXB + 640}', f'global_load_lds_dwordx4 v{va}, s[58:59]', f'v_add_u32 v{va}, 4096, v{va}']
    return ops

def vflag_set(em):
    em.op(f's_lshl_b32 s{sT0}, s{sDG}, 2'); em.op(f's_add_u32 s{sT0}, s{sT0}, {MAXB + 576}')
    em.op(f'v_mov_b32 v{TMP[0]}, s{sT0}'); em.op(f'v_mov_b32 v{TMP[1]}, 1')
    em.op(f'ds_write_b32 v{TMP[0]}, v{TMP[1]}')

def k1_qk(em, qh):
    def qrd(n):
        qt, ks = divmod(n, 6)
        if cfg.qfm: return f'ds_read_b128 {vr(QF + 4*(n % 4))}, v{vRA[0]} offset:{(ks * 9 + qt) * 1024}'
        return f'ds_read_b128 {vr(QF + 4*(n % 4))}, v{vRA[ks & 1]} offset:{qt * 6144 + (ks >> 1) * 128}'
    npre = em.npre
    pend = []
    if em.part: k_fetch(em, 0, k_dma_ops(em, 1), cfg.nu, 6)
    if npre == 1 and cfg.g2e:
        k_fetch(em, 1, None); em.wait_lgkm0()
        pend = va_ops(em)
        if qh == 1:
            for f in pend: f()
            pend = []
        npre = 2
    g2m = (cfg.g2m0, cfg.g2m1)[qh] if npre == 1 and not em.part else 0
    for half in range(2):
        fill = pend; pend = []
        mid = []
        if half == 0 and g2m:
            mid = [f'v_xor_b32 v{vKR2[e]}, 32, v{vKR[e]}' for e in range(2)] if cfg.qfm else []
            for u in range(6): mid += [lambda u=u: em.wait_vm_tag(f'K1_{u}')] + k_rd_ops(1, u)
            if cfg.vby and qh == 1: mid += ['s_nop 0'] * 6 + [lambda: (em.wait_lgkm0(), vflag_set(em))]
        if half == 1 and g2m:
            em.wait_lgkm0(); fill = va_ops(em)
            if cfg.vby and qh == 1: fill = []
        elif half >= npre:
            fill = k_dma_ops(em, 1) if half == 0 else va_ops(em)
            if half == 0 and cfg.eager >> qh & 1:
                k_fetch(em, half, fill); fill = []
            else:
                k_fetch(em, half, None)
                em.wait_lgkm0()
                if half == 1 and cfg.eagerv >> qh & 1:
                    for f in fill: f()
                    fill = []
                if half == 1 and cfg.vby and qh == 1: fill = []; vflag_set(em)
        for n in range(3): em.op(qrd(n))
        em.st.stamp(f'K{half}')
        main = []
        for n in range(54):
            qt, ks = divmod(n, 6)
            if n + 3 < 54: main.append(qrd(n + 3))
            for k in range(2):
                kt = half * 2 + k
                main.append(mfma(sreg(kt, qt), kop(kt, ks), QF + 4*(n % 4), None if ks == 0 else sreg(kt, qt)))
        m1 = maxops(1)
        if half == 0:
            streams = [(fill, cfg.g2lo / 100, cfg.g2hi / 100), (mid, g2m / 100, min(1.0, g2m / 100 + 0.3))]
        else:
            streams = [(maxops(0), 0.02, 0.5)]
            for qt in range(8): streams.append((m1[qt*4:qt*4+4] + ([f'ds_max_f32 v{vMS}, v{MC+qt} offset:{qt*64}'] if cfg.emax else []), max(0.5 + 0.05*qt, (qt + 1.5) / 9), max(0.55 + 0.05*qt, (qt + 1.9) / 9)))
            streams.append((fill, cfg.valo / 100, cfg.vahi / 100))
        interleave(em, main, *streams)
    em.st.stamp('QKend')
    for o in maxops(1)[32:]: em.op(o)
    for qt in range(8 if cfg.emax else 0, 9): em.op(f'ds_max_f32 v{vMS}, v{MC+qt} offset:{qt*64}')
    if qh == 0 and cfg.cre:
        for o in code_refresh(115): em.op(o)
    if qh == 0 and cfg.vby:
        em.op(f'v_mov_b32 v{vVO4}, v{vVO3}')
        em.op(f's_and_b32 s{sT1}, s{sW}, 2'); em.op(f's_lshr_b32 s{sKB2}, {vslot(2) | vslot(3) << 2}, s{sT1}'); em.op(f's_and_b32 s{sKB2}, s{sKB2}, 3')
        em.op(f's_lshl_b32 s{sKB2}, s{sKB2}, 1'); em.op(f's_and_b32 s{sT1}, s{sW}, 1'); em.op(f's_add_u32 s{sKB2}, s{sKB2}, s{sT1}')
        em.op(f's_mul_i32 s{sKB2}, s{sKB2}, 12288'); em.op(f's_add_u32 s{sKB2}, s{sKB2}, {VBASE}')
    if qh == 0 and cfg.tsq:
        for o in tail_setup_ops(0): emit(em, o)
    if qh == 0 and cfg.vby:
        _lab[0] += 1
        em.op(f's_lshl_b32 s{sT0}, s{sDG}, 2'); em.op(f's_add_u32 s{sT0}, s{sT0}, {MAXB + 576}')
        em.op(f'v_mov_b32 v113, s{sT0}')
        em.op(f's_mov_b32 s{sCNT}, 0x100000')
        em.wait_lgkm0()
        em.label(f'L_vf{_lab[0]}')
        em.op('ds_read_b32 v114, v113')
        em.op(f's_sub_u32 s{sCNT}, s{sCNT}, 1')
        em.op(f's_cbranch_scc1 L_vfd{_lab[0]}')
        em.wait_lgkm0()
        em.op('v_cmp_ne_u32 vcc, 1, v114')
        em.op('s_nop 4')
        em.op(f's_cbranch_vccz L_vfd{_lab[0]}')
        em.op('s_sleep 1')
        em.op(f's_branch L_vf{_lab[0]}')
        em.label(f'L_vfd{_lab[0]}')
        em.wait_lgkm0(force=True)
        for f in va_ops(em, True)[:cfg.vbyn]: f()
    if qh == 0 and cfg.vpq:
        a, b = v_pf_ops(em), v_pf_ops(em, 24576)
        both = [x for p in zip(a, b) for x in p][:2 * cfg.vpq]
        for i, f in enumerate(both):
            f()
            if i >= cfg.vpq_in: em.waitcnt(vm=cfg.vpq_in)
    em.wait_lgkm0(); em.barrier()
    em.st.stamp('BM')

def expops(r, qt, pk):
    a, b = sreg(2*r, qt), sreg(2*r+1, qt); m = MC + qt
    tA, tB = TMP[0], TMP[2]
    sp = SUMP + 2*qt
    rs = [a, a+1, a+2, a+3, b, b+1, b+2, b+3]
    if pk:
        mb = m & ~1; s = m & 1
        ops = [f'v_pk_fma_f32 {vr(x,2)}, {vr(x,2)}, s[{sC}:{sC+1}], {vr(mb,2)} op_sel:[0,0,{s}] op_sel_hi:[1,0,{s}] neg_lo:[0,0,1] neg_hi:[0,0,1]' for x in rs[::2]]
    else:
        ops = [f'v_fma_f32 v{x}, v{x}, s{sC}, -v{m}' for x in rs]
    ops += [f'v_exp_f32 v{x}, v{x}' for x in rs]
    if pk:
        ops += [f'v_pk_add_f32 {vr(tA,2)}, {vr(a,2)}, {vr(a+2,2)}', f'v_pk_add_f32 {vr(tB,2)}, {vr(b,2)}, {vr(b+2,2)}']
        if r == 0: tailo = [f'v_pk_add_f32 {vr(sp,2)}, {vr(tA,2)}, {vr(tB,2)}']
        else: tailo = [f'v_pk_add_f32 {vr(tA,2)}, {vr(tA,2)}, {vr(tB,2)}', f'v_pk_add_f32 {vr(sp,2)}, {vr(sp,2)}, {vr(tA,2)}']
    else:
        assert r == 1
        ops += [f'v_add_f32 v{sp + (i & 1)}, v{sp + (i & 1)}, v{x}' for i, x in enumerate(rs)]
        tailo = []
    ops += [f'v_cvt_pk_bf16_f32 v{a}, v{a}, v{a+1}', f'v_cvt_pk_bf16_f32 v{a+1}, v{a+2}, v{a+3}',
            f'v_cvt_pk_bf16_f32 v{a+2}, v{b}, v{b+1}', f'v_cvt_pk_bf16_f32 v{a+3}, v{b+2}, v{b+3}']
    return ops + tailo

def pwrite(r, qt, qh):
    return f'ds_write_b128 v{vPW if r == 0 else vPW2}, {vr(sreg(2*r, qt))} offset:{qt*1024}'

def sum_ops():
    L = f'v{vLANE}'
    S = SUM; ops = []
    ops += [f'v_add_f32 v{SUM+qt}, v{SUMP+2*qt}, v{SUMP+2*qt+1}' for qt in range(9)]
    ops += [f'v_mov_b32 v{MC}, 0', f'v_mov_b32 v{MC+1}, 0']
    ta = TMP[2]; tb = TMP[3]
    ops += [f'v_bfe_u32 v{ta}, {L}, 4, 1', f'v_lshlrev_b32 v{ta}, 10, v{ta}', f'v_bfe_u32 v{tb}, {L}, 5, 1', f'v_lshlrev_b32 v{tb}, 9, v{tb}',
            f'v_add_u32 v{ta}, v{ta}, v{tb}', f'v_and_b32 v{tb}, 15, {L}', f'v_lshlrev_b32 v{tb}, 5, v{tb}', f'v_add_u32 v{ta}, v{ta}, v{tb}',
            f's_lshl_b32 s{sT0}, s{sW}, 2', f's_add_u32 s{sT0}, s{sT0}, {SUMB}', f'v_add_u32 v{ta}, s{sT0}, v{ta}']
    for a in (0, 2, 4, 6): ops.append(f'v_permlane32_swap_b32 v{S+a}, v{S+a+1}')
    ops.append(f'v_permlane32_swap_b32 v{S+8}, v{MC}')
    for a in (0, 2, 4, 6): ops.append(f'v_add_f32 v{S+a}, v{S+a}, v{S+a+1}')
    ops.append(f'v_add_f32 v{S+8}, v{S+8}, v{MC}')
    for a in (0, 4): ops.append(f'v_permlane16_swap_b32 v{S+a}, v{S+a+2}')
    ops.append(f'v_permlane16_swap_b32 v{S+8}, v{MC+1}')
    for a in (0, 4): ops.append(f'v_add_f32 v{S+a}, v{S+a}, v{S+a+2}')
    ops.append(f'v_add_f32 v{S+8}, v{S+8}, v{MC+1}')
    for a in (0, 4, 8): ops.append(f'ds_write_b32 v{ta}, v{S+a} offset:{a * 512}')
    return ops

def k1_sm0(em, qh):
    n_in = cfg.in0 if qh == 0 else cfg.in1
    for qt in range(9): em.op(f'ds_read_b32 v{MC+qt}, v{vMS} offset:{qt*64}')
    for qt in range(9): em.op(f'v_mul_f32 v{MC+qt}, s{sC}, v{MC+qt}')
    main = []
    for qt in range(9):
        main += expops(0, qt, True)
        if qh == 0: main.append(pwrite(0, qt, qh))
    for qt in range(n_in, 9): main += expops(1, qt, True)
    wo = []
    if cfg.wosm >= 0:
        em.op(f's_andn2_b32 s{sT1}, s{sLOC}, 4'); em.op(f's_mul_i32 s{sT1}, s{sT1}, 30720')
        em.op(f's_mul_i32 s{sT0}, s{sX}, 983040'); em.op(f's_add_u32 s{sT0}, s{sT0}, s{sT1}')
        em.op(f'v_lshl_add_u32 v64, v0, 4, s{sT0}')
        for i in range(8):
            def f(i=i):
                _lab[0] += 1
                em.op(f's_cmp_eq_u32 s{sTYPE}, {cfg.wosm}')
                em.op(f's_cbranch_scc0 L_ws{_lab[0]}')
                em.begin_opt()
                em.op(f's_mov_b32 m0, {MAXB + 640}')
                em.op(f'v_min_u32 v65, {7864320 - 16}, v64')
                em.op(f'global_load_lds_dwordx4 v65, s[14:15]')
                em.op(f'v_add_u32 v64, {8192 if i != 3 else 122880 - 3 * 8192}, v64')
                em.end_opt()
                em.label(f'L_ws{_lab[0]}')
            wo.append(f)
    interleave(em, main, (v_pf_ops(em)[cfg.vpq:cfg.vpq + cfg.vpf], 0.05, cfg.vrf / 100), (wo, 0.1, 0.95), (va_ops(em, True)[cfg.vbyn:] if cfg.vby and qh == 0 else [], 0, 0.3))
    em.st.stamp('exp0')
    if qh == 0: em.wait_vm_tag('VA', lgkm0=True)
    else: em.wait_lgkm0()
    em.barrier()
    em.st.stamp('PV0')

def k1_pv(em, qh):
    nq = 5 if qh == 0 else 4
    q0 = 0 if qh == 0 else 5
    L = f'v{vLANE}'
    rf = cfg.rfrac / 100
    PBF = PBF0 if qh == 0 else PBF1
    INV = INV0
    PAF = PAF0 if qh == 0 else PAF1
    def pv_reads(s, step, st):
        ops = []
        slot = vslot(s)
        base = vRB if slot < 2 else vRC
        off = (slot % 2) * 24576 + step * 12288
        for t in range(3):
            ops.append(f'ds_read_b64_tr_b16 {vr(PAF[st][t], 2)}, v{base[t]} offset:{off}')
            ops.append(f'ds_read_b64_tr_b16 {vr(PAF[st][t] + 2, 2)}, v{base[t]} offset:{off + 6144}')
        pa, po = vPA, ((2 * s + step) % 6) * 9216
        xs = [f'ds_read_b128 {vr(PBF[st][j])}, v{pa} offset:{po + j * 1024}' for j in range(nq)]
        return ops[0:2] + xs[0:1] + ops[2:6] + xs[1:]
    OACC = OACC0 if qh == 0 else OACC1
    def mf(st, first):
        return [mfma(OACC[j*3+t], PAF[st][t], PBF[st][j], None if first else OACC[j*3+t]) for j in range(nq) for t in range(3)]
    def inv_ops():
        ta = TMP[2]; ops = []
        ops += [f'v_and_b32 v{ta}, 15, {L}', f'v_lshlrev_b32 v{ta}, 5, v{ta}', f'v_add_u32 v{ta}, {SUMB + q0 * 512}, v{ta}']
        for j in range(nq):
            ops += [f'ds_read_b128 {vr(16 + 8*j)}, v{ta} offset:{j * 512}', f'ds_read_b128 {vr(20 + 8*j)}, v{ta} offset:{j * 512 + 16}']
        for j in range(nq):
            r = 16 + 8*j
            ops += [f'v_add_f32 v{r}, v{r}, v{r+1}', f'v_add_f32 v{r+2}, v{r+2}, v{r+3}', f'v_add_f32 v{r+4}, v{r+4}, v{r+5}', f'v_add_f32 v{r+6}, v{r+6}, v{r+7}',
                    f'v_add_f32 v{r}, v{r}, v{r+2}', f'v_add_f32 v{r+4}, v{r+4}, v{r+6}', f'v_add_f32 v{r}, v{r}, v{r+4}', f'v_rcp_f32 v{INV+2*j}, v{r}']
        return ops
    n_in = cfg.in0 if qh == 0 else cfg.in1
    assert n_in <= 3
    hs = [0, 3, 4] if qh == 0 else [7, 8, 4]
    INVO = inv_ops()
    TS = [] if (qh == 0 and cfg.tsq) else tail_setup_ops(qh)
    def ex(h):
        o = []
        if h in hs[:n_in] or (n_in == 2 and qh == 0 and False): o += expops(1, hs.index(h), False)
        if qh == 0 and h in (5, 6): o += [pwrite(1, qt, qh) for qt in (range(4, 9) if h == 5 else range(4))]
        if qh == 1 and h in (1, 2): o += [pwrite(0, qt, qh) for qt in (range(5) if h == 1 else range(5, 9))]
        if qh == 1 and h in (9, 10): o += [pwrite(1, qt, qh) for qt in (range(4, 9) if h == 9 else range(4))]
        if h == (7 if qh == 0 else 11): o += sum_ops()
        if h == 12 and qh == 1 and cfg.cre == 2: o += [lambda: [em.op(x) for x in code_refresh(TMP[2])]]
        if h == 13: o += INVO[:len(INVO) // 2]
        if h == 14: o += INVO[len(INVO) // 2:]
        if TS and h == 3 and qh == 1: o += TS
        if TS and h in (11, 12) and qh == 0: o += TS[:len(TS)//2] if h == 11 else TS[len(TS)//2:]
        return o
    def wopre_ops(i):
        ta = TMP[2 + (i & 1)]
        ops = [f's_mul_i32 s{sT3}, s{sX}, 983040', f's_mul_i32 s{sT4}, s{sLOC}, 30720', f's_add_u32 s{sT3}, s{sT3}, s{sT4}', f's_add_u32 s{sT3}, s{sT3}, {i * 8192}',
               f'v_lshlrev_b32 v{ta}, 4, v0', f'v_add_u32 v{ta}, s{sT3}, v{ta}', f'v_min_u32 v{ta}, {7864320 - 16}, v{ta}',
               f'global_load_dwordx4 {vr(52)}, v{ta}, s[14:15]']
        if cfg.wo0:
            def f():
                _lab[0] += 1
                em.op(f's_cmp_eq_u32 s{sTYPE}, 0')
                em.op(f's_cbranch_scc0 L_wp{_lab[0]}')
                em.begin_opt()
                for o in ops[:-2] + [ops[-1], f'v_add_u32 v{ta}, 122880, v{ta}'] + ops[-2:]: em.op(o)
                em.end_opt()
                em.label(f'L_wp{_lab[0]}')
            return [f]
        return ops
    wsl = {8: 0, 9: 1, 10: 2, 12: 3} if cfg.wosm < 0 else {}
    def epi(pk):
        out = []
        def mul(a, m):
            if pk: return [f'v_pk_mul_f32 {vr(a,2)}, {vr(a,2)}, {vr(m,2)} op_sel_hi:[1,0]', f'v_pk_mul_f32 {vr(a+2,2)}, {vr(a+2,2)}, {vr(m,2)} op_sel_hi:[1,0]']
            return [f'v_mul_f32 v{a+d}, v{a+d}, v{m}' for d in range(4)]
        for j in range(nq):
            m = INV + 2 * j
            a, b, c = OACC[j*3], OACC[j*3+1], OACC[j*3+2]
            if cfg.opair:
                out.append((j*3+1, mul(a, m) + mul(b, m) + [f'v_cvt_pk_bf16_f32 v{a}, v{a}, v{a+1}', f'v_cvt_pk_bf16_f32 v{a+1}, v{a+2}, v{a+3}',
                            f'v_cvt_pk_bf16_f32 v{a+2}, v{b}, v{b+1}', f'v_cvt_pk_bf16_f32 v{a+3}, v{b+2}, v{b+3}', f'ds_write_b128 v{vOW[0]}, {vr(a)} offset:{j * 1024}']
                            + ([f's_mov_b32 s{sT0}, {j * 1024}', (f'buffer_store_dwordx4 {vr(a)}, v{vOW[1]}, {sr(SO,4)}, s{sT0} offen sc1', 'CO0')] if cfg.direct else [])))
            for t in ((2,) if cfg.opair else (0, 1, 2)):
                x = OACC[j*3+t]
                out.append((j*3+t, mul(x, m) + [f'v_cvt_pk_bf16_f32 v{x}, v{x}, v{x+1}', f'v_cvt_pk_bf16_f32 v{x+1}, v{x+2}, v{x+3}', f'ds_write_b64 v{vOW[t]}, {vr(x,2)} offset:{j * 1024}']))
        return out
    for o in pv_reads(0, 0, 0): em.op(o)
    n = 3 * nq; lag = 4 if cfg.qwi else n
    for s in range(8):
        w = wopre_ops(wsl[2*s]) if cfg.wopre and 2*s in wsl else []
        if cfg.onew and s > 0: em.wait_lgkm0()
        interleave(em, mf(0, s == 0), (pv_reads(s, 1, 1), 0, rf), (ex(2*s), 0, cfg.efrac / 100), (w, 0.4, 0.41))
        if s == 1: em.wait_vm_tag('VB' if cfg.vby else 'VA', lgkm0=True)
        elif s < 7: em.wait_vm_tag(f'V{s+1}', lgkm0=True)
        else: em.wait_lgkm0()
        em.barrier()
        em.st.stamp(f'PB{s}')
        rd = pv_reads(s + 1, 0, 0) if s < 7 else []
        dm = v_dma_ops(em, s + NV) if s + NV <= 7 else []
        if s == 7 and qh == 0 and not cfg.woe: dm = tail_dma(em, 0) + tail_dma(em, 1)
        if cfg.woe and qh == 0 and 4 <= s <= 6: dm = tail_dma(em, s - 4)
        w = wopre_ops(wsl[2*s+1]) if cfg.wopre and 2*s+1 in wsl else []
        ins = []
        if s == 7:
            ins = [(g, (p + lag + 0.5) / n, (p + lag + 0.5) / n) for p, g in epi(False) if p + lag < n]
        interleave(em, mf(1, False), (dm, 0, 0.4 if s < 4 else 1), (rd, 0, rf + 0.1), (ex(2*s+1), 0, 1), (w, 0.4, 0.41), *ins)
    late = tail_dma(em, 2) if qh == 0 and not cfg.woe else []
    main = sum([g for p, g in epi(True) if p + lag >= n], [])
    interleave(em, main, (late, 0, 1))
    em.wait_vm_tag('T0', lgkm0=True); em.barrier()
    em.st.stamp('BO')
    em.op(f's_bitcmp1_b32 s{sW}, 1')
    em.op(f's_cbranch_scc1 L_tail{2 * qh + 1}')
    st = em.save()
    tail(em, 2 * qh)
    em.label(f'L_tail{2 * qh + 1}')
    em.restore(st)
    tail(em, 2 * qh + 1)

vOFFS = [2, 3, 4, 5, 7]; vA2 = [248, 249, 250]; vB2 = 251
SD, SP, SPR, SOUT = SX, SWQ, SK, 84
sT3, sT4 = 56, 59
sCH = 36 + 1
sCH = 81
sN0 = sNH
OB = 0 if cfg.woe else 61440
WB = 79872 if cfg.woe else 0
def wslot(s): return [49152, 0, 24576][s % 3] if cfg.woe else (s % 3) * 20480
def tail_setup_ops(qh):
    c = Cap(); L = f'v{vLANE}'
    t0, t1, t2, t3 = 252, 253, 244, 245
    if qh == 0:
        c.op(f's_mul_i32 s{sT0}, s{sX}, 983040'); c.op(f's_mul_i32 s{sT1}, s{sJ}, 320'); c.op(f's_add_u32 s{sT0}, s{sT0}, s{sT1}')
        srd(c, SD, 14, 15, f's{sT0}', 7864320)
        c.op(f's_sub_u32 s{SD+2}, s{SD+2}, s{sT0}')
        c.op(f's_mov_b32 s{sSTR}, 81920')
        hs = 245760
        c.op(f's_lshl_b32 s{sT2}, s{sW}, 4')
        c.op(f's_mov_b32 s{sT1}, 52429')
        for j in range(5):
            c.op(f'v_add_u32 v{t0}, {j * 64}, {L}')
            c.op(f'v_mul_lo_u32 v{t1}, v{t0}, s{sT1}')
            c.op(f'v_lshrrev_b32 v{t1}, 20, v{t1}')
            c.op(f'v_mul_u32_u24 v{t2}, 20, v{t1}')
            c.op(f'v_sub_u32 v{t2}, v{t0}, v{t2}')
            c.op(f'v_bfe_u32 v{t3}, v{t1}, 2, 1')
            c.op(f'v_lshlrev_b32 v{t3}, 1, v{t3}')
            c.op(f'v_xor_b32 v{t2}, v{t2}, v{t3}')
            c.op(f'v_add_u32 v{t1}, s{sT2}, v{t1}')
            c.op(f'v_mul_u32_u24 v{t1}, 1280, v{t1}')
            c.op(f'v_lshl_add_u32 v{vOFFS[j]}, v{t2}, 4, v{t1}')
        c.op(f's_and_b32 s{sN0}, s{sW}, 1'); c.op(f's_mul_i32 s{sN0}, s{sN0}, 3')
        c.op(f's_bfe_u32 s{sQ0}, s{sW}, 0x10001'); c.op(f's_mul_i32 s{sQ0}, s{sQ0}, 5')
    else:
        c.op(f's_lshl_b32 s{sT0}, s{sB}, 5'); c.op(f's_lshl_b32 s{sT1}, s{sX}, 2'); c.op(f's_add_u32 s{sT0}, s{sT0}, s{sT1}')
        c.op(f's_mul_i32 s{sT0}, s{sT0}, {O_HEAD}')
        srd(c, SD, 12, 13, f's{sT0}', 4 * O_HEAD)
        c.op(f's_mov_b32 s{sSTR}, 18432')
        hs = O_HEAD
        c.op(f's_mul_i32 s{sT2}, s{sDG}, 5120')
        if cfg.nopad:
            c.op(f's_cmp_eq_u32 s{sDG}, 3'); c.op(f's_cselect_b32 s{sT2}, 14336, s{sT2}')
        c.op(f'v_lshlrev_b32 v{t0}, 4, {L}')
        c.op(f'v_add_u32 v{t0}, s{sT2}, v{t0}')
        for j in range(5): c.op(f'v_add_u32 v{vOFFS[j]}, {j * 1024}, v{t0}')
        c.op(f's_and_b32 s{sN0}, s{sW}, 1'); c.op(f's_lshl_b32 s{sN0}, s{sN0}, 1'); c.op(f's_add_u32 s{sN0}, s{sN0}, 6')
        c.op(f's_bfe_u32 s{sQ0}, s{sW}, 0x10001'); c.op(f's_xor_b32 s{sQ0}, s{sQ0}, 1'); c.op(f's_mul_i32 s{sQ0}, s{sQ0}, 5')
    if cfg.direct:
        if qh == 0:
            c.op(f's_lshr_b32 s{sT0}, s{sW}, 1'); c.op(f's_mul_i32 s{sT0}, s{sT0}, 40960')
            c.op(f's_mov_b32 s{sCH}, s{sT0}'); c.op(f's_add_u32 s{sCH+1}, s{sT0}, {96 * 1280}')
            c.op(f's_lshl_b32 s{sT0}, s{sT0}, 1'); c.op(f's_add_u32 s{sCH+2}, s{sT0}, {32 * 1280}')
        else:
            for i in range(3): c.op(f's_mov_b32 s{sCH+i}, {i * 18432}')
    c.op(f's_mul_i32 s{sM0T}, s{sDG}, 5120')
    if qh: c.op(f's_add_u32 s{sM0T}, s{sT2 if cfg.nopad else sM0T}, {OB}')
    else: c.op(f's_add_u32 s{sM0T}, s{sM0T}, {WB}')
    for i in range(4):
        c.op(f's_add_u32 s{sT0}, s{sJ}, {i}'); c.op(f's_and_b32 s{sT0}, s{sT0}, 3'); c.op(f's_mul_i32 s{sHB+i}, s{sT0}, {hs}')
    c.op(f'v_lshrrev_b32 v{t0}, 2, {L}')
    c.op(f'v_mul_u32_u24 v{t0}, 320, v{t0}')
    c.op(f'v_and_b32 v{t1}, 3, {L}')
    c.op(f'v_lshl_add_u32 v{t0}, v{t1}, 3, v{t0}')
    if WB: c.op(f'v_add_u32 v{t0}, {WB}, v{t0}')
    c.op(f'v_bfe_u32 v{t1}, {L}, 4, 1')
    for t in range(3 if qh == 0 else 2):
        c.op(f's_add_u32 s{sT1}, s{sN0}, {t}')
        c.op(f'v_xor_b32 v{t2}, s{sT1}, v{t1}')
        c.op(f'v_lshl_add_u32 v{vA2[t]}, v{t2}, 5, v{t0}')
    c.op(f's_lshl_b32 s{sT0}, s{sQ0}, 10')
    c.op(f's_add_u32 s{sT0}, s{sT0}, {OB}')
    c.op(f'v_lshl_add_u32 v{vB2}, {L}, 4, s{sT0}')
    for t in range(3):
        if cfg.opair:
            if t == 1: continue
            tile_m(c, t)
        else:
            c.op(f's_mul_i32 s{sT0}, s{sDG}, 3'); c.op(f's_add_u32 s{sT0}, s{sT0}, {t}')
        if cfg.direct:
            c.op(f's_lshl_b32 s{sT1}, s{sT0}, 1'); c.op(f's_and_b32 s{sT1}, s{sT1}, 0x1c'); c.op(f's_lshr_b32 s{sT1}, 0x352140, s{sT1}'); c.op(f's_and_b32 s{sT1}, s{sT1}, 15')
            if t == 0:
                c.op(f's_mul_i32 s{sT2}, s{sT1}, 9216')
                c.op(f'v_add_u32 v{vOW[1]}, s{sT2}, v{vPA}')
            c.op(f's_and_b32 s{sT0}, s{sT0}, 1'); c.op(f's_lshl_b32 s{sT1}, s{sT1}, 1'); c.op(f's_add_u32 s{sT0}, s{sT0}, s{sT1}')
        c.op(f's_lshr_b32 s{sT1}, s{sT0}, 2'); c.op(f's_mul_i32 s{sT1}, s{sT1}, 20480')
        c.op(f's_bfe_u32 s{sT2}, s{sT0}, 0x10001'); c.op(f's_mul_i32 s{sT2}, s{sT2}, 9216'); c.op(f's_add_u32 s{sT1}, s{sT1}, s{sT2}')
        c.op(f's_and_b32 s{sT0}, s{sT0}, 1'); c.op(f's_lshl_b32 s{sT0}, s{sT0}, 3')
        c.op(f's_add_u32 s{sT0}, s{sT0}, s{sT1}'); c.op(f's_add_u32 s{sT0}, s{sT0}, {OB}')
        c.op(f'v_add_u32 v{vOW[t]}, s{sT0}, v{vPA}')
    c.op(f's_lshl_b32 s{sT0}, s{sB}, 3'); c.op(f's_add_u32 s{sT0}, s{sT0}, s{sX}'); c.op(f's_lshl_b32 s{sT0}, s{sT0}, 7'); c.op(f's_add_u32 s{sT0}, s{sT0}, {FLAG_OFF + 4096}')
    c.op(f's_add_u32 s{sF1}, s12, s{sT0}'); c.op(f's_addc_u32 s{sF1+1}, s13, 0')
    c.op(f's_lshl_b32 s{sT0}, s{sLOC}, 7'); c.op(f's_add_u32 s{sT0}, s{sT0}, {FLAG_OFF + 16384}')
    c.op(f's_add_u32 s{sF2}, s12, s{sT0}'); c.op(f's_addc_u32 s{sF2+1}, s13, 0')
    c.op(f's_mul_i32 s{sT0}, s{sLOC}, {8 * PART2}'); c.op(f's_add_u32 s{sT0}, s{sT0}, {WS_PART}')
    srd(c, SPR, 12, 13, f's{sT0}', 8 * PART2)
    c.op(f's_mul_i32 s{sT1}, s{sX}, {PART2}'); c.op(f's_add_u32 s{sT0}, s{sT0}, s{sT1}')
    srd(c, SP, 12, 13, f's{sT0}', PART2)
    srd(c, SOUT, 54, 55, None, 1474560)
    out = []; i = 0; ops = c.ops
    while i < len(ops):
        if i + 1 < len(ops) and (ops[i + 1].startswith('s_addc') or ops[i + 1].startswith('s_cselect')):
            a, b = ops[i], ops[i + 1]
            out.append(lambda a=a, b=b: (EM[0].op(a), EM[0].op(b))); i += 2
        else:
            out.append(ops[i]); i += 1
    return out
EM = [None]

def tail_dma(em, s, orole=False):
    ops = []
    sc = ' sc1' if (orole and cfg.sc_ol) else ''
    for j in range(4 if (cfg.nopad and orole and em.tv == 3) else 5):
        def f(j=j):
            em.op(f's_add_u32 m0, s{sM0T}, {((s % 3) * 20480 if orole else wslot(s)) + j * 1024}')
            if j == 0:
                if cfg.direct:
                    peer, ch = (0, s) if s < 3 else (1 + (s - 3) % 3, (s - 3) // 3)
                    em.op(f's_add_u32 s{sOFF}, s{sCH + ch}, s{sHB + peer}')
                elif cfg.chunk and s >= 3:
                    ch = (s - 3) // 3
                    if ch == 0: em.op(f's_mov_b32 s{sOFF}, s{sHB + 1 + (s - 3) % 3}')
                    else:
                        em.op(f's_lshl_b32 s{sOFF}, s{sSTR}, {ch - 1}')
                        em.op(f's_add_u32 s{sOFF}, s{sOFF}, s{sHB + 1 + (s - 3) % 3}')
                elif s % 3 == 0: em.op(f's_mov_b32 s{sOFF}, s{sHB + s // 3}')
                else: em.op(f's_add_u32 s{sOFF}, s{sOFF}, s{sSTR}')
            em.op(f'buffer_load_dwordx4 v{vOFFS[j]}, {sr(SD,4)}, s{sOFF} offen{sc} lds', tag=f'T{s}')
        ops.append(f)
    return ops

def flag_store(em, base, idx_s, lab, wave, off=0):
    t0, t1 = 60, 61
    em.op(f's_cmp_eq_u32 s{sW}, {wave}')
    em.op(f's_cbranch_scc0 {lab}')
    em.begin_opt()
    em.op(f's_lshl_b32 s{sT0}, s{idx_s}, 2')
    em.op(f'v_mov_b32 v{t0}, s{sT0}')
    em.op(f'v_mov_b32 v{t1}, s{sTAG}')
    em.op('s_mov_b64 exec, 1')
    em.op(f'global_store_dword v{t0}, v{t1}, s[{base}:{base+1}] offset:{off} sc1')
    em.op('s_mov_b64 exec, -1')
    em.end_opt()
    em.label(lab)

vPL0, vPL1 = 62, 63
def poll(em, base, mask, lab, off=0, keep=False):
    em.op(f'v_and_b32 v{vPL0}, {mask}, v{vLANE}')
    em.op(f'v_lshlrev_b32 v{vPL0}, 2, v{vPL0}')
    em.op(f's_mov_b32 s{sCNT}, 0x20000')
    if not keep: em.wait_vm0()
    em.label(lab)
    em.op(f'global_load_dword v{vPL1}, v{vPL0}, s[{base}:{base+1}] offset:{off} sc1')
    em.op(f's_sub_u32 s{sCNT}, s{sCNT}, 1')
    em.op(f's_cbranch_scc1 {lab}_done')
    em.wait_vm0()
    em.op(f'v_cmp_ne_u32 vcc, s{sTAG}, v{vPL1}')
    em.op('s_nop 4')
    em.op(f's_cbranch_vccz {lab}_done')
    em.op('s_sleep 1')
    em.op(f's_branch {lab}')
    em.label(f'{lab}_done')
    em.wait_vm0()

def tail(em, tv):
    nt, nq = [(3, 5), (3, 4), (2, 4), (2, 5)][tv]
    orole = tv >= 2
    em.tv = tv
    L = f'v{vLANE}'
    rf = cfg.rfrac / 100
    sc = ' sc1' if cfg.sc else ''
    ACC2 = 116; AF = [76, 88]; BF = [16, 36]; CO = 176
    t0, t1, t2, t3 = 56, 57, 58, 59
    sDONE = sT3
    em.op(f'v_lshlrev_b32 v{t0}, 4, v0')
    em.op(f'v_add_u32 v{t1}, {OB}, v{t0}')
    npc = 3 if tv == 0 else 2
    k = 0; sts = []
    for c in ((2,) if cfg.direct else range(3)):
        for i in range(npc):
            em.op(f'ds_read_b128 {vr(CO + 4*k)}, v{t1} offset:{c * 20480 + i * 8192}')
            sts.append((CO + 4*k, c * 18432 + i * 8192)); k += 1
    def reads(s, step, st_):
        ops = []
        for t in range(nt):
            ops.append(f'ds_read_b64_tr_b16 {vr(AF[st_] + 4*t, 2)}, v{vA2[t]} offset:{wslot(s) + step * 10240}')
            ops.append(f'ds_read_b64_tr_b16 {vr(AF[st_] + 4*t + 2, 2)}, v{vA2[t]} offset:{wslot(s) + step * 10240 + 5120}')
        xs = [f'ds_read_b128 {vr(BF[st_] + 4*j)}, v{vB2} offset:{(s % 3) * 20480 + step * 9216 + j * 1024}' for j in range(nq)]
        return ops[0:2] + xs[0:1] + ops[2:] + xs[1:]
    def acc(t, j): return ACC2 + 4 * (j * nt + t)
    def mf(st_, first):
        return [mfma(acc(t, j), AF[st_] + 4*t, BF[st_] + 4*j, None if first else acc(t, j)) for j in range(nq) for t in range(nt)]
    for r, off in sts:
        em.op(f's_mov_b32 s{sT0}, {off}')
        em.op(f'buffer_store_dwordx4 {vr(r)}, v{t0}, {sr(SO,4)}, s{sT0} offen' + ['', ' sc1', ' nt', ' sc0'][cfg.sc_o], tag='CO0' if off < 18432 else 'CO1')
    for o in reads(0, 0, 0): em.op(o)
    em.op(f'v_lshlrev_b32 v{t1}, 4, {L}')
    em.op(f's_and_b32 s{sT1}, s{sW}, 1')
    em.op(f's_add_u32 s{sT2}, s{sT1}, {2 if orole else 0}'); em.op(f's_mul_i32 s{sT2}, s{sT2}, 9'); em.op(f's_add_u32 s{sT2}, s{sT2}, s{sQ0}'); em.op(f's_lshl_b32 s{sT2}, s{sT2}, 10')
    em.op(f'v_add_u32 v{t2}, s{sT2}, v{t1}')
    em.op(f's_mul_i32 s{sT1}, s{sT1}, 5120'); em.op(f's_add_u32 s{sT1}, s{sT1}, {(36 + (3 if tv == 1 else 0)) * 1024}')
    em.op(f'v_add_u32 v{t3}, s{sT1}, v{t1}')
    def pack(a, b):
        o = [f'v_cvt_pk_bf16_f32 v{a}, v{a}, v{a+1}', f'v_cvt_pk_bf16_f32 v{a+1}, v{a+2}, v{a+3}']
        if b is not None: o += [f'v_cvt_pk_bf16_f32 v{a+2}, v{b}, v{b+1}', f'v_cvt_pk_bf16_f32 v{a+3}, v{b+2}, v{b+3}']
        return o
    def st(a, va, off):
        def f():
            em.op(f's_mov_b32 s{sT0}, {off}')
            em.op(f'buffer_store_dwordx4 {vr(a)}, v{va}, {sr(SP,4)}, s{sT0} offen{sc}')
        return f
    carry = []
    for s in range(12):
        if s == 1 and orole and cfg.epoll:
            em.op(f'global_load_dword v{vPL1}, v{vPL0}, s[{sF1}:{sF1+1}] sc1')
        if cfg.onew and s > 0: em.wait_lgkm0()
        interleave(em, mf(0, s == 0), ([] if cfg.x_tno & 4 and 5 < s <= 8 else reads(s, 1, 1), 0, rf), (carry, 0.05, 0.95))
        if s == 1 and orole and cfg.epoll:
            em.op(f'v_cmp_ne_u32 vcc, s{sTAG}, v{vPL1}')
            em.op('s_nop 4')
            em.op(f's_cbranch_vccnz L_np{tv}')
            em.begin_opt()
            for f in tail_dma(em, 3, True): f()
            em.op(f's_mov_b32 s{sDONE}, 1')
            em.end_opt()
            em.label(f'L_np{tv}')
        carry = []
        if s < 11:
            if s == 0 and cfg.chunk: em.wait_vm_tag('CO0', lgkm0=True)
            elif s == 0: em.wait_vm0(); em.wait_lgkm0()
            elif s == cfg.chunk and cfg.chunk:
                em.wait_vm_tag('CO1'); em.wait_vm_tag(f'T{s+1}', lgkm0=True)
            else: em.wait_vm_tag(f'T{s+1}', lgkm0=True)
            em.barrier()
            em.st.stamp(f'T{s}')
        if cfg.tloop and s == 8:
            em.op('s_sub_u32 s79, s79, 1'); em.op('s_cmp_lg_u32 s79, 0'); em.op(f's_cbranch_scc1 L_tl{tv}')
            em.st.stamp('LBend')
        if cfg.tloop and s == 5:
            em.st.stamp('LB0')
            em.op('s_mov_b32 s79, 16'); em.label(f'L_tl{tv}')
        if s == 0 and tv == 2: flag_store(em, sF1, sJ, 'L_f1', 4)
        if cfg.chunk and s == cfg.chunk and tv == 3: flag_store(em, sF1, sJ, 'L_f1b', 6, 16)
        if cfg.chunk and s == (5 if cfg.direct else 2) and orole: em.op(f'global_load_dword v{vPL1}, v{vPL0}, s[{sF1}:{sF1+1}] offset:16 sc1')
        if cfg.chunk and s == (6 if cfg.direct else 3) and orole:
            em.op(f'v_cmp_ne_u32 vcc, s{sTAG}, v{vPL1}')
            em.op('s_nop 4')
            em.op(f's_cbranch_vccz L_p1c_{tv}')
            keep = em.save()[2]
            em.begin_opt()
            poll(em, sF1, 3, f'L_p1b_{tv}', 16, keep=True)
            em.end_opt()
            em.vm = keep
            em.label(f'L_p1c_{tv}')
        fill = []; dm = []
        if s < 11 and not (cfg.x_tno & 4 and 5 <= s < 8): fill += reads(s + 1, 0, 0)
        if s == 0 and orole and cfg.epoll:
            em.op(f's_mov_b32 s{sDONE}, 0')
            em.op(f'v_and_b32 v{vPL0}, 3, {L}'); em.op(f'v_lshlrev_b32 v{vPL0}, 2, v{vPL0}')
        if s + 3 <= 11:
            if not orole or s >= 2:
                dm = tail_dma(em, s + 3, orole); dm, carry = dm[:3], dm[3:]
                if 5 <= s < 8 and cfg.x_tno >> int(orole) & 1: dm = []; carry = []
            elif s == 1:
                if cfg.epoll:
                    em.op(f's_cmp_eq_u32 s{sDONE}, 1')
                    em.op(f's_cbranch_scc1 L_ep{tv}')
                    vm_before = em.save()[2]
                    em.begin_opt()
                poll(em, sF1, 3, f'L_p1_{tv}')
                for f in tail_dma(em, 3, True): f()
                if cfg.epoll:
                    em.end_opt()
                    em.label(f'L_ep{tv}')
                dm = tail_dma(em, 4, True)
        ins = []
        n = nt * nq
        if s == 11:
            groups = []
            for j in range(nq):
                groups.append((j * nt + 1, pack(acc(0, j), acc(1, j)) + [st(acc(0, j), t2, j * 1024)]))
                if nt == 3 and (j % 2 == 1 or j == nq - 1):
                    j0 = j - (j % 2)
                    groups.append((j * nt + 2, pack(acc(2, j0), acc(2, j) if j != j0 else None) + [st(acc(2, j0), t3, (j0 // 2) * 1024)]))
            lag = 4
            ins = [(g, (p + lag + 0.5) / n, (p + lag + 0.5) / n) for p, g in groups if p + lag < n]
            restg = [g for p, g in groups if p + lag >= n]
        interleave(em, mf(1, False), (dm, 0.05, 0.95), (fill, 0, rf), *ins)
    for g in restg:
        for o in g: emit(em, o)
    em.st.stamp('TP')
    sU, sDL = sT3, sT4
    if tv < 3:
        em.op(f's_lshl_b32 s{sU}, s{sW}, 3'); em.op(f's_add_u32 s{sU}, s{sU}, s{sX}')
        em.op(f's_lshl_b32 s{sT0}, s{sU}, 10')
        em.op(f'v_add_u32 v{t2}, s{sT0}, v{t1}')
        em.op(f's_mul_i32 s{sT0}, s{sU}, 57'); em.op(f's_lshr_b32 s{sT0}, s{sT0}, 9')
        em.op(f's_mul_i32 s{sT1}, s{sT0}, 9'); em.op(f's_sub_u32 s{sT1}, s{sU}, s{sT1}')
        em.op(f's_lshl_b32 s{sT0}, s{sT0}, 2'); em.op(f's_lshr_b32 s{sT0}, 0x8630, s{sT0}'); em.op(f's_and_b32 s{sT0}, s{sT0}, 15')
        em.op(f's_mov_b32 s{sDL}, 32')
        em.op(f's_cmp_lt_u32 s{sU}, 36')
        em.op(f's_cbranch_scc1 L_dec{tv}')
        em.begin_opt()
        em.op(f's_cmp_ge_u32 s{sU}, 41')
        em.op(f's_cselect_b32 s{sT0}, 5, 2')
        em.op(f's_cselect_b32 s{sT1}, 41, 36')
        em.op(f's_sub_u32 s{sT1}, s{sU}, s{sT1}')
        em.op(f's_cmp_eq_u32 s{sT1}, 2')
        em.op(f's_mov_b32 s{sDL}, 20480')
        em.op(f's_cselect_b32 s{sDL}, 0x40000000, s{sDL}')
        em.op(f's_lshl_b32 s{sT1}, s{sT1}, 2'); em.op(f's_lshr_b32 s{sT1}, 0x75420, s{sT1}'); em.op(f's_and_b32 s{sT1}, s{sT1}, 15')
        em.end_opt()
        em.label(f'L_dec{tv}')
        em.op(f's_lshl_b32 s{sT1}, s{sT1}, 4'); em.op(f's_mul_i32 s{sT2}, s{sB}, 144'); em.op(f's_add_u32 s{sT1}, s{sT1}, s{sT2}'); em.op(f's_mul_i32 s{sT1}, s{sT1}, 1280')
        em.op(f's_lshl_b32 s{sT0}, s{sT0}, 5'); em.op(f's_add_u32 s{sT1}, s{sT1}, s{sT0}')
        em.op(f's_mul_i32 s{sT0}, s{sJ}, 320'); em.op(f's_add_u32 s{sT1}, s{sT1}, s{sT0}')
        em.op(f'v_and_b32 v{t3}, 15, {L}'); em.op(f'v_mul_u32_u24 v{t3}, 1280, v{t3}')
        em.op(f'v_lshrrev_b32 v{t0}, 4, {L}'); em.op(f'v_lshl_add_u32 v{t3}, v{t0}, 3, v{t3}')
        em.op(f'v_add_u32 v{t3}, s{sT1}, v{t3}')
    em.wait_vm0(); em.barrier()
    em.st.stamp('TW')
    if tv == 3:
        flag_store(em, sF2, sX, 'L_f2', 7)
    else:
        if tv == 2:
            em.op(f's_cmp_ge_u32 s{sU}, 46')
            em.op(f's_cbranch_scc1 L_fin2')
        poll(em, sF2, 7, f'L_p2_{tv}')
        em.st.stamp('TF')
        for x in range(8):
            em.op(f's_mov_b32 s{sT0}, {x * PART2}')
            em.op(f'buffer_load_dwordx4 {vr(76 + 4*x)}, v{t2}, {sr(SPR,4)}, s{sT0} offen{sc}')
        if tv == 0:
            em.op(f's_or_b32 s{sT0}, s{sH}, s{sW}')
            em.op(f's_cmp_eq_u32 s{sT0}, 0')
            em.op('s_cbranch_scc0 L_nw')
            em.begin_opt()
            em.op(f's_lshl_b32 s{sT0}, s{sB}, 8'); em.op(f's_add_u32 s{sT0}, s{sT0}, {FLAG_OFF}')
            em.op(f'v_mov_b32 v60, s{sT0}'); em.op(f'v_mov_b32 v61, s{sTAG}')
            em.op('s_mov_b64 exec, 1')
            em.op('global_store_dword v60, v61, s[12:13]' + (' sc1' if cfg.osc in (1, 3) else ''))
            em.op('s_mov_b64 exec, -1')
            em.end_opt()
            em.label('L_nw')
        A = 108
        for x in range(8):
            for d in range(4):
                r = 76 + 4*x + d
                if x == 0:
                    em.op(f'v_lshlrev_b32 v{A+2*d}, 16, v{r}'); em.op(f'v_and_b32 v{A+2*d+1}, 0xffff0000, v{r}')
                else:
                    tp = A + 8 + 2 * (d & 1)
                    em.op(f'v_lshlrev_b32 v{tp}, 16, v{r}'); em.op(f'v_and_b32 v{tp+1}, 0xffff0000, v{r}')
                    em.op(f'v_pk_add_f32 {vr(A+2*d,2)}, {vr(A+2*d,2)}, {vr(tp,2)}')
        for d in range(4): em.op(f'v_cvt_pk_bf16_f32 v{A+d}, v{A+2*d}, v{A+2*d+1}')
        em.op(f'buffer_store_dwordx2 {vr(A,2)}, v{t3}, {sr(SOUT,4)}, 0 offen' + ['', ' sc1', ' nt', ' sc0 sc1'][cfg.osc])
        em.op(f'buffer_store_dwordx2 {vr(A+2,2)}, v{t3}, {sr(SOUT,4)}, s{sDL} offen' + ['', ' sc1', ' nt', ' sc0 sc1'][cfg.osc])
        if tv == 2: em.label('L_fin2')
    if cfg.diag: em.wait_vm0()
    em.st.flush(12, 0, sW, 244)
    em.op('s_endpgm')

def kernel_header(name):
    return f'.globl {name}\n.p2align 8\n.type {name},@function\n{name}:\n'
def kernel_desc(name, vgpr, sgpr=102):
    return f'''.amdhsa_kernel {name}
  .amdhsa_next_free_vgpr {vgpr}
  .amdhsa_next_free_sgpr {sgpr}
  .amdhsa_accum_offset {(vgpr + 3) // 4 * 4}
  .amdhsa_group_segment_fixed_size 0
  .amdhsa_kernarg_size 64
  .amdhsa_user_sgpr_count 2
  .amdhsa_user_sgpr_kernarg_segment_ptr 1
  .amdhsa_system_sgpr_workgroup_id_x 1
.end_amdhsa_kernel
'''

def gen_k1():
    em = Em(); EM[0] = em
    k1_prologue(em)
    st0 = em.save()
    em.label('k1_body_start')
    for qh in range(2):
        sts = []
        for typ in ((1, 0) if cfg.n0 else (0,)):
            if qh or typ == 0 and cfg.n0: em.label(f'L_qp{qh}{typ}')
            em.restore(st0)
            em.typ = typ
            k1_qproj(em, qh, typ)
            k1_qk(em, qh)
            sts.append(em.save())
            if typ == 1: em.op(f's_branch L_sm{qh}')
        if len(sts) == 2:
            t = [[e[0] for e in s[2]] for s in sts]
            lo, hi = sorted(range(2), key=lambda i: len(t[i]))
            assert t[hi][len(t[hi]) - len(t[lo]):] == t[lo], t
            em.restore(sts[hi]); em.hist = []
            em.label(f'L_sm{qh}')
        k1_sm0(em, qh)
        k1_pv(em, qh)
    em.label('k1_body_end')
    em.label('L_k1_exit')
    em.op('s_endpgm')
    return em

def main():
    ref = open('cdna_kernels/' + NAME + '.s.ref').read().split('\n')
    head = [l for l in ref[:9]]
    k1 = gen_k1()
    KN = NAME + '_kernel'
    out = '\n'.join(head) + '\n'
    out += f'; @launch grid=(256,1,1) block=(512,1,1) lds={LDS1}\n'
    out += '.amdgcn_target "amdgcn-amd-amdhsa--gfx950"\n.text\n'
    out += kernel_header(KN) + k1.text()
    out += '.section .rodata,"a"\n.p2align 6\n' + kernel_desc(KN, 256)
    open(sys.argv[1], 'w').write(out)
    print('k1 instrs', k1.count, 'nops', k1.nops, file=sys.stderr)
main()
```

```python
import sys, struct, math
from em import Em, interleave, emit

NAME = 'standalone__gqa_block_cached__near_ridge'
def fbits(x): return struct.unpack('<I', struct.pack('<f', x))[0]

class Cfg:
    nt_kv = True
    nt_w = False
    nt_k2 = False
    two_types = True
    pre = True
    code_pre = True
    diag = False
    pk = True
    rfrac = 60
    prio = 0
    x_noexp = 0
    x_nopw = 0
    efrac = 95
    loopb = -1
    st = 0
    dbg = 0
    n0 = 1
    inpv0 = 0
    inpv1 = 0
    pfa = 5
    kq = 12
    kq0 = 7
    wont = 0
    vrf = 60
    x_ren = 0
    vrole = 1
    vfirst = 0
    vold = 0
    vh0 = 12
    wsoff = 0
    cearly = 1
    osc = 0
    ctop = 1
    cre = 0
    woe = 1
    vby = 1
    vbyn = 12
    emax = 0
    wosm = 0
    qlate1 = 1
    g2m0 = 60
    g2m1 = 60
    qfm = 1
    tloop = 0
    x_tno = 0
    pf0x = 0
    nu = 6
    pfs = 2
    nopad = 1
    pfxp = 10
    pfw = 10
    vpf = 0
    vpq = 0
    vpq_in = 4
    vpnt = 1
    spin = 0
    spst = -1
    spty = -1
    direct = 1
    chunk = 1
    onew = 1
    qlate = 0
    drole = 0
    in0 = 0
    in1 = 0
    epoll = 1
    pfx = 10
    opair = 1
    tsq = 1
    g2e = 0
    wo0 = 1
    pfnt = 0
    pfown = 10
    pfall = 1
    nt_k = 1
    nt_v = 1
    eager = 3
    eagerv = 0
    qwi = 1
    g2lo = 0
    g2hi = 30
    valo = 0
    vahi = 60
    pf1 = 10
    v0e = 0
    kqb = 0
    kqb0 = 7
    vb = 0
    vreg = 0
    nvy = 4
    sc_o = 1
    sc_ol = 1
    rt = 0
    qloop = 0
    x_qnodma = 0
    x_qnord = 0
    dlo = 10
    dhi = 95
    dsplit = 3
    x_delay = 0
    wopre = 1
    sc = 1
    x_nobar = 0
    x_nord = 0
    x_nodma = 0
cfg = Cfg()
cfg.pvst = (3,7); cfg.qst = (0,8,)
if 'pvall=1' in sys.argv: sys.argv.remove('pvall=1'); cfg.pvst = (0,1,2,3,4,5,6,7); cfg.qst = (); cfg.fewst = True
else: cfg.fewst = False
for a in sys.argv[2:]:
    k, v = a.split('='); setattr(cfg, k, type(getattr(cfg, k))(int(v)))
STSETS = {0: 'S0 BQ PV0 BO T2 TW', 1: 'ka pi si S0 B0 B8 BQ K0 K1 QKend BM exp0 PV0', 2: 'PV0 PB0 PB1 PB2 PB3 PB4 PB5 PB6', 9: 'BM exp0 PV0 PB3 PB6 PB7 BO T0', 3: 'BO T0 T1 T2 TW TF', 4: 'K0 K1 QKend BM exp0 PV0 PB3 PB7 BO T0', 8: '', 5: 'S0 LB0 LBend BQ', 6: 'S0 B0 B4 B7 B9 BQ', 10: 'BQ K0 K1 QKend BM PV0', 11: 'PV0 PB1 PB3 PB5 PB7 BO', 7: 'BO T0 T1 T2 T3 T4 T6 T8 T10 TP'}
cfg.stlist = ['rt0', 'start'] + STSETS[cfg.st].split()[:6] + ['end', 'rt_end']
cfg.pvst = range(8); cfg.qst = range(10)
cfg.types = bool(cfg.n0)

def vr(b, n=4): return f'v[{b}:{b + n - 1}]' if n > 1 else f'v{b}'
def sr(b, n): return f's[{b}:{b + n - 1}]'
MF = 'v_mfma_f32_16x16x32_bf16'
def mfma(d, a, b, c=None):
    return f'{MF} {vr(d)}, {vr(a)}, {vr(b)}, ' + ('0' if c is None else vr(c))

FLAG_OFF = 28 << 20
PART2 = 47104
O_HEAD = 55296
WS_PART = 16 << 20
PART_TILE = 90 * 1024

def srd(em, d, base_lo, base_hi, off_sgpr, size):
    if off_sgpr is None:
        em.op(f's_mov_b32 s{d}, s{base_lo}'); em.op(f's_mov_b32 s{d+1}, s{base_hi}')
    else:
        em.op(f's_add_u32 s{d}, s{base_lo}, {off_sgpr}'); em.op(f's_addc_u32 s{d+1}, s{base_hi}, 0')
    em.op(f's_mov_b32 s{d+2}, {size}')
    em.op(f's_mov_b32 s{d+3}, 0x20000')

_lab = [0]
DIAG_OFF = 64 << 20
class Stamps:
    def __init__(self, em):
        self.em = em; self.n = 0; self.names = []
        if cfg.diag:
            for i in range(len(cfg.stlist)): em.op(f's_mov_b32 s{60 + 2*i}, 0')
    def stamp(self, name, real=False):
        if cfg.spin:
            L = ['S0', 'BQ', 'BM', 'PV0', 'BO', 'T2', 'TW', 'TF']
            if name == 'rt0' or (cfg.spst >= 0 and name == L[cfg.spst]):
                r = 76 if name == 'rt0' else 78
                self.em.wait_lgkm0()
                self.em.op(f's_memrealtime s[{r}:{r+1}]'); self.em.op('s_waitcnt lgkmcnt(0)')
                if name == 'rt0': self.em.op('s_mov_b32 s78, s76')
            return
        if not cfg.diag or name not in cfg.stlist: return
        em = self.em; i = cfg.stlist.index(name)
        em.wait_lgkm0()
        em.op(('s_memrealtime' if (real or cfg.rt) else 's_memtime') + f' s[{60 + 2*i}:{61 + 2*i}]')
        em.op('s_waitcnt lgkmcnt(0)')
    def flush(self, ws_lo, kidx, wave_s, tv):
        if cfg.spin:
            em = self.em; _lab[0] += 1
            if cfg.spty >= 0:
                em.op(f's_cmp_eq_u32 s39, {cfg.spty}'); em.op('s_cselect_b32 s78, s78, s76')
            em.op('s_sub_u32 s78, s78, s76'); em.op(f's_add_u32 s78, s78, {cfg.spin}')
            em.label(f'L_sp{_lab[0]}')
            em.op('s_sleep 2')
            em.op('s_memrealtime s[74:75]'); em.op('s_waitcnt lgkmcnt(0)')
            em.op('s_sub_u32 s74, s74, s76'); em.op('s_cmp_lt_u32 s74, s78'); em.op(f's_cbranch_scc1 L_sp{_lab[0]}')
            return
        if not cfg.diag: return
        em = self.em
        self.stamp('end'); self.stamp('rt_end', real=True)
        if cfg.dbg:
            _lab[0] += 1
            em.op('s_load_dwordx2 s[56:57], s[0:1], 48')
            em.op(f's_and_b32 s58, s2, 0xdf'); em.op(f's_or_b32 s58, s58, s{wave_s}'); em.op('s_cmp_eq_u32 s58, 0')
            em.op('s_waitcnt lgkmcnt(0)')
            em.op(f's_cbranch_scc0 L_dbg{_lab[0]}')
            em.op(f'v_mov_b32 v{tv}, s2')
            for k, i in enumerate([2, 3, 4, 13, 6, 9, 11, 12]):
                em.op(f's_sub_u32 s58, s{60 + 2*i}, s{60 if i == 13 else 62}')
                em.op(f'v_mov_b32 v{tv+1}, s58')
                em.op(f'global_store_dword v{tv}, v{tv+1}, s[56:57] offset:{4*k}')
            em.label(f'L_dbg{_lab[0]}')
            return
        em.op(f's_lshl_b32 s56, s2, 3'); em.op(f's_add_u32 s56, s56, s{wave_s}'); em.op('s_lshl_b32 s56, s56, 7')
        em.op(f's_add_u32 s56, s56, {DIAG_OFF + (kidx << 20)}')
        em.op(f's_add_u32 s56, s{ws_lo}, s56'); em.op(f's_addc_u32 s57, s{ws_lo+1}, 0')
        em.op(f'v_mov_b32 v{tv}, 0')
        for i in range(len(cfg.stlist)):
            em.op(f'v_mov_b32 v{tv+1}, s{60 + 2*i}')
            em.op(f'global_store_dword v{tv}, v{tv+1}, s[56:57] offset:{4*i}')
        print('stamps', kidx, cfg.stlist, file=sys.stderr)

SX, SWQ, SK, SV, SO = 16, 20, 24, 28, 32
sW, sW3072, sW1024, sTYPE, sOFF, sT0, sT1, sT2, sC, sB, sH, sJ, sLOC, sX = 36, 37, 38, 39, 40, 41, 42, 43, 44, 52, 46, 47, 48, 53
vLANE, vXO, vWO, vK0, vK1, vVO = 1, 2, 3, 4, 5, 6
vRA = [7, 8]
vRB = [9, 10, 11]
vRC = [12, 13, 14]
vT = 15
vOW = [8, 254, 255]
vVW, vVW2 = 7, 8
vPA, vPW, vMS = 240, 242, 243
vPW2 = 241
TMP = list(range(244, 256))
STG = 43008
PBASE, VBASE, MAXB, SUMB = 0, 55296, 153600, 155648
NV = 4
def vslot(s): return [3, 1, 2, 0][s % 4]
LDS1 = SUMB + 12 * 512
def kop(kt, ks): return 16 + 4 * (kt * 6 + ks)
def sreg(kt, qt):
    if kt < 2: return 116 + 4 * (qt * 2 + kt)
    i = qt * 2 + (kt - 2)
    return 16 + 4 * i if i < 12 else 188 + 4 * (i - 12)
ACC = 116
MC = 212
SUM = 221
SUMP = 222
QF = 224
OACC0 = [116 + 4*i for i in range(15)]
OACC1 = [120 + 8*i for i in range(9)] + [100, 80, 208]
PAF0 = [[176, 180, 184], [104, 108, 112]]
PAF1 = [[200, 192, 60], [104, 108, 112]]
PBF0 = [[64, 68, 72, 76, 80], [84, 88, 92, 96, 100]]
PBF1 = [[64, 68, 72, 76], [84, 88, 92, 96]]
INV0 = 212
NEXP1 = 4


sKB = 57
vKR = [250, 251]
vKR2 = [246, 247]
vVO3 = 252
def k_dma_ops(em, half):
    nt = ' nt' if cfg.nt_kv and cfg.nt_k else ''
    ops = []
    for c in range(3):
        for k in range(2):
            for p in range(2):
                def f(c=c, k=k, p=p):
                    em.op(f's_add_u32 m0, s{sKB}, {(k * 3 + c) * 2048 + p * 1024 - c * 128}')
                    em.op(f's_mov_b32 s{sOFF}, {(half * 2 + k) * 6144}')
                    em.op(f'buffer_load_dwordx4 v{vK1 if p else vK0}, {sr(SK,4)}, s{sOFF} offen offset:{c*128}{nt} lds', tag=f'K{half}_{c * 2 + k}')
                ops.append(f)
    return ops
def k_rd_ops(half, u):
    c, k = divmod(u, 2)
    if cfg.qfm:
        return [f'ds_read_b64 {vr(kop(half * 2 + k, 2 * c + e) + 2 * h, 2)}, v{(vKR + vKR2)[e + 2 * h]} offset:{(k * 3 + c) * 2048}' for e in range(2) for h in range(2)]
    return [f'ds_read_b128 {vr(kop(half * 2 + k, 2 * c + e))}, v{vKR[e]} offset:{(k * 3 + c) * 2048}' for e in range(2)]
def k_fetch(em, half, nxt, u0=0, u1=6):
    nr = 4 if cfg.qfm else 2
    if cfg.qfm:
        for e in range(2): em.op(f'v_xor_b32 v{vKR2[e]}, 32, v{vKR[e]}')
    for u in range(u0, u1):
        em.wait_vm_tag(f'K{half}_{u}')
        for o in k_rd_ops(half, u): em.op(o)
        if nxt and u > u0:
            em.waitcnt(lgkm=nr); em.lgkm = em.lgkm[-nr:]
            for f in nxt[2 * u - 2: 2 * u]: f()
    if nxt:
        em.wait_lgkm0()
        for f in nxt[2 * u1 - 2: 2 * u1]: f()
sKB2 = 50
vVO4 = 112
def va_ops(em, partner=False):
    nt = ' nt' if cfg.nt_kv and cfg.nt_v else ''
    ops = []
    for rg in range(4):
        for c in range(3):
            def f(c=c, rg=rg):
                em.op(f's_add_u32 m0, s{sKB2 if partner else sKB}, {rg * 3072 + c * 896}')
                em.op(f's_mov_b32 s{sOFF}, {rg * 3072 + (256 * 384 if partner else 0)}')
                em.op(f'buffer_load_dwordx4 v{vVO4 if partner else vVO3}, {sr(SV,4)}, s{sOFF} offen offset:{c*128}{nt} lds', tag='VB' if partner else 'VA')
            ops.append(f)
    return ops

def stage_dma_ops(em, s, qh):
    nt = ' nt' if cfg.nt_w else ''
    slot = (s % 3) * 18432
    ops = []
    for c in range(3):
        def f(c=c):
            em.op(f's_add_u32 m0, s{sW3072}, {VBASE + (s % 3) * 24576 + c * 896}')
            if c == 0: em.op(f's_mov_b32 s{sOFF2}, {s * 786432}')
            em.op(f'buffer_load_dwordx4 v{vWO}, {sr(SWQ,4)}, s{sOFF2} offen offset:{c*128}{nt} lds', tag=f'S{s}')
        ops.append(f)
    for j in range(2):
        def f(j=j):
            em.op(f's_add_u32 m0, s{sW1024}, {slot + j * 8192}')
            em.op(f's_mov_b32 s{sOFF}, {s * 128 + j * 81920}')
            em.op(f'buffer_load_dwordx4 v{vXO}, {sr(SX,4)}, s{sOFF} offen{nt} lds', tag=f'S{s}')
        ops.append(f)
    if qh == 1:
        def f():
            _lab[0] += 1
            lab = f'L_x{_lab[0]}'
            em.op(f's_cmp_lt_u32 s{sW}, 6')
            em.op(f's_cbranch_scc0 {lab}')
            em.begin_opt()
            em.op(f's_add_u32 m0, s{sW1024}, {slot + 12288}')
            em.op(f's_mov_b32 s{sOFF}, {s * 128 + 122880}')
            em.op(f'buffer_load_dwordx4 v{vXO}, {sr(SX,4)}, s{sOFF} offen{nt} lds', tag=f'S{s}')
            em.end_opt()
            em.label(lab)
        ops.insert(0, f)
    return ops

def v_dma_ops(em, s):
    nt = ' nt' if cfg.nt_kv and cfg.nt_v else ''
    ops = []
    for c in range(3):
        def f(c=c):
            em.op(f's_add_u32 m0, s{sW3072}, {VBASE + vslot(s) * 24576 + c * 896}')
            em.op(f's_mov_b32 s{sOFF}, {(128 * (s & 3) + 32 * (s >> 2)) * 384}')
            em.op(f'buffer_load_dwordx4 v{vVO}, {sr(SV,4)}, s{sOFF} offen offset:{c*128}{nt} lds', tag=f'V{s}')
        ops.append(f)
    return ops

sDG = 49
sPFS, sPFB = 45, 50
sOFF2 = 3
vPF = 241
def pf_ops():
    if not cfg.pre: return []
    nt = ' nt' if cfg.nt_w else ''
    return [f'global_load_dwordx4 {vr(112)}, v{vPF}, s[{sPFB}:{sPFB+1}]{nt}', f'v_add_u32 v{vPF}, s{sPFS}, v{vPF}']
sTAG, sSTR, sF1, sF2, sHB, sM0T, sQ0, sNH, sCNT = 88, 89, 90, 92, 94, 98, 99, 100, 101
VST = 64
def v_reg_ops(em):
    nt = ' nt' if cfg.nt_kv and cfg.nt_v else ''
    ops = []
    for s in range(4, 8):
        for c in range(3):
            def f(s=s, c=c):
                em.op(f's_mov_b32 s{sOFF}, {(128 * (s & 3) + 32 * (s >> 2)) * 384}')
                em.op(f'buffer_load_dwordx4 {vr(VST + 4 * ((s - 4) * 3 + c))}, v{vVO}, {sr(SV,4)}, s{sOFF} offen offset:{c*128}{nt}', tag=f'V{s}')
            ops.append(f)
    return ops
def v_put_ops(s):
    slot = vslot(s)
    return [f'ds_write_b128 v{vVW if slot < 2 else vVW2}, {vr(VST + 4 * ((s - 4) * 3 + c))} offset:{(slot % 2) * 24576 + c * 1024}' for c in range(3)]

vPF2 = 254
VTMP = [248, 249, 253]
def pf2_ops():
    nt = ' nt' if cfg.nt_w else ''
    return [f'global_load_dwordx4 {vr(112)}, v{vPF2}, s[{sPFB}:{sPFB+1}]{nt}', f'v_add_u32 v{vPF2}, s{sPFS}, v{vPF2}']

def v_pf_ops(em, blk_delta=0):
    nt = ' nt' if cfg.vpnt else ''
    ops = []
    for s in range(4, 8):
        for c in range(3):
            def f(s=s, c=c):
                em.op(f's_mov_b32 s{sOFF}, {(128 * (s & 3) + 32 * (s >> 2)) * 384 + blk_delta}')
                em.op(f's_mov_b32 m0, {MAXB + 640}')
                em.op(f'buffer_load_dwordx4 v{vVO}, {sr(SV,4)}, s{sOFF} offen offset:{c*128}{nt} lds', tag='VP')
            ops.append(f)
    return ops

def k1_prologue(em):
    em.op('s_cmp_ge_u32 s2, 256')
    em.op('s_cbranch_scc1 L_k1_exit')
    em.st = Stamps(em); em.st.stamp('rt0', real=True); em.st.stamp('start')
    em.op('s_load_dwordx8 s[4:11], s[0:1], 0')
    if cfg.ctop:
        em.op('s_getpc_b64 s[58:59]')
        em.label('L_pct')
        em.op(f'v_lshlrev_b32 v{TMP[11]}, 4, v0')
        if cfg.ctop == 2: em.op(f'global_load_dwordx4 {vr(112)}, v{TMP[11]}, s[58:59]')
        em.op(f's_lshl_b32 s{sT1}, s2, 10')
        em.op(f's_and_b32 s{sT1}, s{sT1}, 0x1e000')
        em.op(f'v_add_u32 v{TMP[11]}, s{sT1}, v{TMP[11]}')
        em.op(f'v_min_u32 v{TMP[11]}, k1_body_end-L_pct-16, v{TMP[11]}')
        em.op(f'global_load_dwordx4 {vr(112)}, v{TMP[11]}, s[58:59]')
    em.op('s_load_dwordx2 s[12:13], s[0:1], 56')
    em.op('s_load_dwordx2 s[14:15], s[0:1], 32')
    em.op('s_load_dwordx2 s[54:55], s[0:1], 40')
    em.op(f'v_and_b32 v{vLANE}, 63, v0')
    em.op(f'v_lshrrev_b32 v{vT}, 6, v0')
    em.op(f's_and_b32 s{sX}, s2, 7')
    em.op(f's_lshr_b32 s{sLOC}, s2, 3')
    em.op(f'v_readfirstlane_b32 s{sW}, v{vT}')
    t0, t1, t2, t3, t4, t5 = TMP[:6]
    L = f'v{vLANE}'
    em.op(f's_and_b32 s{sJ}, s{sLOC}, 3')
    em.op(f's_lshr_b32 s{sB}, s{sLOC}, 2')
    em.op(f's_lshl_b32 s{sH}, s{sX}, 2')
    em.op(f's_add_u32 s{sH}, s{sH}, s{sJ}')
    em.op(f's_and_b32 s{sTYPE}, s{sB}, 1')
    em.op(f's_lshl_b32 s{sT0}, s{sLOC}, 1'); em.op(f's_mul_i32 s{sT0}, s{sT0}, 12288'); em.op(f's_mul_i32 s{sT1}, s{sX}, 1536'); em.op(f's_add_u32 s{sT0}, s{sT0}, s{sT1}')
    em.op(f's_lshl_b32 s{sT1}, s{sW}, 9'); em.op(f's_add_u32 s{sT0}, s{sT0}, s{sT1}')
    em.op(f'v_lshrrev_b32 v{t3}, 5, {L}'); em.op(f'v_mul_u32_u24 v{t3}, 12288, v{t3}')
    em.op(f'v_and_b32 v{t4}, 31, {L}'); em.op(f'v_lshlrev_b32 v{t4}, 4, v{t4}')
    em.op(f'v_add3_u32 v{t5}, v{t3}, v{t4}, s{sT0}')
    em.op(f'v_lshrrev_b32 v{t0}, 3, {L}')
    em.op(f'v_and_b32 v{t1}, 7, {L}')
    em.op(f'v_lshrrev_b32 v{t2}, 4, {L}')
    em.op(f's_mul_i32 s{sT0}, s{sLOC}, 36'); em.op(f's_lshl_b32 s{sT2}, s{sW}, 3'); em.op(f's_add_u32 s{sT0}, s{sT0}, s{sT2}'); em.op(f's_sub_u32 s{sT0}, s{sT0}, 24')
    em.op(f'v_add_u32 v{t3}, s{sT0}, v{t0}')
    em.op(f's_cmp_lt_u32 s{sW}, 3')
    em.op(f's_cselect_b64 vcc, -1, 0')
    em.op(f's_movk_i32 s{sPFS}, 128')
    em.op(f's_cselect_b32 s{sPFS}, 786432, s{sPFS}')
    for dst, dr, dw in ((vPF, 0, 0), (vPF2, 144, 98304) if not cfg.pfall else (vPF2, -144 & 0xffffffff, -98304 & 0xffffffff)):
        if dst == vPF2 and cfg.pf1 >= 10 and not cfg.pfall: continue
        if dst == vPF2 and cfg.pf0x:
            em.op(f's_mul_i32 s{sT1}, s{sTYPE}, {-288 & 0xffffffff}'); em.op(f's_add_u32 s{sT1}, s{sT1}, 144')
            em.op(f'v_add_u32 v{t4}, s{sT1}, v{t3}'); em.op(f'v_min_u32 v{t4}, 1151, v{t4}')
            em.op(f'v_mul_u32_u24 v{t4}, 1280, v{t4}')
            em.op(f'v_lshl_add_u32 v{t4}, v{t1}, 4, v{t4}')
            em.op(f's_mul_i32 s{sT1}, s{sTYPE}, {-196608 & 0xffffffff}'); em.op(f's_add_u32 s{sT1}, s{sT1}, 98304')
            em.op(f'v_add_u32 v{dst}, s{sT1}, v{t5}')
            em.op(f'v_cndmask_b32 v{dst}, v{t4}, v{dst}, vcc')
            em.op(f's_xor_b32 s{sT1}, s{sTYPE}, 1'); em.op(f's_mul_i32 s{sT1}, s{sT1}, {cfg.pfx}'); em.op(f's_mul_i32 s{sT1}, s{sT1}, s{sPFS}')
            em.op(f'v_add_u32 v{dst}, s{sT1}, v{dst}')
            continue
        em.op(f'v_add_u32 v{t4}, {dr}, v{t3}'); em.op(f'v_min_u32 v{t4}, 1151, v{t4}')
        em.op(f'v_mul_u32_u24 v{t4}, 1280, v{t4}')
        em.op(f'v_lshl_add_u32 v{t4}, v{t1}, 4, v{t4}')
        em.op(f'v_add_u32 v{dst}, {dw}, v{t5}')
        em.op(f'v_cndmask_b32 v{dst}, v{t4}, v{dst}, vcc')
    if cfg.pf1 < 10:
        em.op(f's_mul_i32 s{sT0}, s{sPFS}, {cfg.pf1}'); em.op(f'v_add_u32 v{vPF2}, s{sT0}, v{vPF2}')
    em.op(f's_and_b32 s{sDG}, s{sW}, 3')
    em.op(f's_mul_i32 s{sW3072}, s{sW}, 3072')
    em.op(f's_lshl_b32 s{sW1024}, s{sW}, 10')
    em.op(f's_and_b32 s{sT0}, s{sW}, 1')
    em.op(f's_lshl_b32 s{sT1}, s{sT0}, 2')
    em.op(f'v_add_u32 v{t3}, s{sT1}, v{t2}')
    em.op(f'v_xor_b32 v{t3}, v{t3}, v{t1}')
    em.op(f'v_add_u32 v{t4}, s{sT2}, v{t0}')
    em.op(f'v_mul_u32_u24 v{vXO}, 1280, v{t4}')
    em.op(f'v_lshl_add_u32 v{vXO}, v{t3}, 4, v{vXO}')
    em.op(f'v_and_b32 v{t3}, 1, v{t2}')
    em.op(f'v_lshl_add_u32 v{t3}, v{t3}, 1, s{sT1}')
    em.op(f'v_xor_b32 v{t3}, v{t3}, v{t1}')
    em.op(f'v_mul_u32_u24 v{vWO}, 12288, v{t4}')
    em.op(f'v_lshl_add_u32 v{vWO}, v{t3}, 4, v{vWO}')
    em.op(f's_lshl_b32 s{sT2}, s{sW}, 6')
    em.op(f'v_add_u32 v{t4}, s{sT2}, v{t0}')
    em.op(f'v_mul_u32_u24 v{t4}, 384, v{t4}')
    em.op(f'v_xor_b32 v{t3}, v{t2}, v{t1}')
    em.op(f'v_lshl_add_u32 v{vK0}, v{t3}, 4, v{t4}')
    em.op(f'v_xor_b32 v{vK1}, 64, v{vK0}')
    em.op(f'v_add_u32 v{vK1}, {8 * 384}, v{vK1}')
    em.op(f'v_lshlrev_b32 v{t3}, 1, v{t2}')
    em.op(f'v_xor_b32 v{t3}, v{t3}, v{t1}')
    em.op(f'v_lshl_add_u32 v{vVO3}, v{t3}, 4, v{t4}')
    em.op(f's_and_b32 s{sT1}, s{sW}, 6'); em.op(f's_lshr_b32 s{sKB}, 0x27, s{sT1}'); em.op(f's_and_b32 s{sKB}, s{sKB}, 3')
    em.op(f's_lshl_b32 s{sKB}, s{sKB}, 1'); em.op(f's_add_u32 s{sKB}, s{sKB}, s{sT0}'); em.op(f's_mul_i32 s{sKB}, s{sKB}, 12288'); em.op(f's_add_u32 s{sKB}, s{sKB}, {VBASE}')
    em.op(f'v_bfe_u32 v{t3}, {L}, 3, 1'); em.op(f'v_lshlrev_b32 v{t3}, 10, v{t3}')
    em.op(f'v_lshl_add_u32 v{t3}, v{t1}, 7, v{t3}')
    em.op(f'v_bfe_u32 v{t4}, {L}, 1, 3')
    em.op(f'v_xor_b32 v{t4}, v{t4}, v{t2}'); em.op(f'v_lshlrev_b32 v{vT}, 4, v{t4}')
    em.op(f'v_add_u32 v{vRA[0]}, v{t3}, v{vT}')
    if cfg.qfm:
        em.op(f'v_bfe_u32 v{t4}, {L}, 1, 3'); em.op(f'v_lshrrev_b32 v{t5}, 5, {L}'); em.op(f'v_xor_b32 v{t4}, v{t4}, v{t5}')
        em.op(f'v_lshl_add_u32 v{t3}, v{t4}, 4, v{t3}')
        em.op(f'v_and_b32 v{t4}, 1, v{t2}'); em.op(f'v_lshl_add_u32 v{t3}, v{t4}, 3, v{t3}')
        em.op(f'v_add_u32 v{vKR[0]}, s{sKB}, v{t3}')
    else:
        em.op(f'v_add_u32 v{vKR[0]}, s{sKB}, v{vRA[0]}')
    em.op(f'v_xor_b32 v{vKR[1]}, 64, v{vKR[0]}')
    em.op(f's_lshr_b32 s{sT1}, s{sW}, 2'); em.op(f's_lshl_b32 s{sT1}, s{sT1}, 6')
    em.op(f's_lshl_b32 s{sT0}, s{sDG}, 3'); em.op(f's_add_u32 s{sT0}, s{sT0}, s{sT1}')
    em.op(f'v_add_u32 v{t3}, s{sT0}, v{t0}')
    em.op(f'v_mul_u32_u24 v{vVO}, 384, v{t3}')
    em.op(f'v_lshlrev_b32 v{t3}, 1, v{t2}')
    em.op(f'v_xor_b32 v{t3}, v{t3}, v{t1}')
    em.op(f'v_lshl_add_u32 v{vVO}, v{t3}, 4, v{vVO}')
    em.op(f's_mul_i32 s{SX+3}, s{sB}, 184320')
    em.op(f's_mul_i32 s{SWQ+3}, s{sH}, 384')
    em.op(f's_lshl_b32 s{sT1}, s{sB}, 5'); em.op(f's_add_u32 s{sT1}, s{sT1}, s{sH}')
    em.op(f's_mul_i32 s{sT2}, s{sT1}, 196608')
    em.op(f's_mul_i32 s{SO+3}, s{sT1}, {O_HEAD}')
    em.op(f's_lshl_b32 s{sT0}, s{sB}, 8'); em.op(f's_add_u32 s{sT0}, s{sT0}, {FLAG_OFF}')
    em.op(f's_mov_b32 s{SX+2}, 184320'); em.op(f's_sub_u32 s{SWQ+2}, 7864320, s{SWQ+3}')
    em.op(f's_cmp_lt_u32 s{sW}, 3')
    em.op('s_waitcnt lgkmcnt(0)')
    em.st.stamp('ka')
    if cfg.diag: em.op(f's_cmp_lt_u32 s{sW}, 3')
    em.op(f's_cselect_b64 s[{sPFB}:{sPFB+1}], s[10:11], s[4:5]')
    for i in range(0 if cfg.pfall else 3):
        for o in pf_ops(): em.op(o)
    if cfg.cearly and not cfg.ctop:
        em.op('s_getpc_b64 s[58:59]')
        em.label('L_pce')
        em.op('s_add_u32 s58, s58, k1_body_start-L_pce')
        em.op('s_addc_u32 s59, s59, 0')
        em.op(f's_and_b32 s{sT1}, s{sLOC}, 15')
        em.op(f's_lshl_b32 s{sT1}, s{sT1}, 13')
        em.op(f'v_lshlrev_b32 v{TMP[11]}, 4, v0')
        em.op(f'v_add_u32 v{TMP[11]}, s{sT1}, v{TMP[11]}')
        em.op(f'v_min_u32 v{TMP[11]}, k1_body_end-k1_body_start-16, v{TMP[11]}')
        em.op(f'global_load_dwordx4 {vr(112)}, v{TMP[11]}, s[58:59]')
    if cfg.wsoff:
        em.op(f's_add_u32 s12, s12, {cfg.wsoff << 20}'); em.op('s_addc_u32 s13, s13, 0')
    em.op(f's_load_dword s{sTAG}, s[12:13], s{sT0}')
    em.op(f's_add_u32 s{SWQ}, s10, s{SWQ+3}'); em.op(f's_addc_u32 s{SWQ+1}, s11, 0'); em.op(f's_mov_b32 s{SWQ+3}, 0x20000')
    em.op(f's_add_u32 s{SX}, s4, s{SX+3}'); em.op(f's_addc_u32 s{SX+1}, s5, 0'); em.op(f's_mov_b32 s{SX+3}, 0x20000')
    srd(em, SK, 6, 7, f's{sT2}', 196608); srd(em, SV, 8, 9, f's{sT2}', 196608)
    if cfg.n0 or cfg.pfall:
        em.op(f's_cmp_eq_u32 s{sTYPE}, 1')
        em.op('s_cbranch_scc0 L_nok1')
        em.begin_opt()
        em.op(f's_cmp_lt_u32 s{sW}, 3')
        em.op('s_cbranch_scc0 L_pfx')
        if cfg.pfs:
            em.op(f'v_add_u32 v{vPF}, {cfg.pfs * 786432}, v{vPF}'); em.op(f'v_add_u32 v{vPF2}, {cfg.pfs * 786432}, v{vPF2}')
        for i in range(cfg.pfw - cfg.pfs):
            for o in pf2_ops() + pf_ops(): em.op(o)
        em.op('s_branch L_nok1')
        em.label('L_pfx')
        if cfg.pfs: em.op(f'v_add_u32 v{vPF2}, {cfg.pfs * 128}, v{vPF2}')
        for i in range(cfg.pfxp - cfg.pfs):
            for o in pf2_ops(): em.op(o)
        for i in range(cfg.pfx):
            for o in pf_ops(): em.op(o)
        em.end_opt()
        em.label('L_nok1')
    if cfg.n0:
        em.op(f's_lshr_b32 s{sT0}, s{sW}, 2'); em.op(f's_lshl_b32 s{sT0}, s{sT0}, 1'); em.op(f's_or_b32 s{sT0}, s{sT0}, s{sTYPE}')
        for v in (0, 2, 3):
            em.op(f's_cmp_eq_u32 s{sT0}, {v}')
            em.op(f's_cbranch_scc1 L_qp{v >> 1}{v & 1}')
    else:
        em.op(f's_cmp_lt_u32 s{sW}, 4')
        em.op('s_cbranch_scc0 L_qp10')

def tile_m(em, t):
    tab = [[0, 4, 6, 10], [1, 5, 7, 11], [2, 3, 8, 9]][t]
    em.op(f's_lshl_b32 s{sT0}, s{sDG}, 2')
    em.op(f's_lshr_b32 s{sT0}, {sum(v << (4 * i) for i, v in enumerate(tab))}, s{sT0}')
    em.op(f's_and_b32 s{sT0}, s{sT0}, 15')

def tr_addr(em, dst, t, base, fmode):
    t0, t1, t2, t3 = TMP[:4]
    L = f'v{vLANE}'
    if (fmode == 'v' and cfg.opair) or (fmode == 'w' and cfg.qfm): tile_m(em, t)
    else:
        em.op(f's_mul_i32 s{sT0}, s{sDG}, 3'); em.op(f's_add_u32 s{sT0}, s{sT0}, {t}')
    em.op(f's_lshr_b32 s{sT1}, s{sT0}, 2'); em.op(f's_lshl_b32 s{sT1}, s{sT1}, 10')
    em.op(f's_add_u32 s{sT1}, s{sT1}, {base}')
    em.op(f's_and_b32 s{sT0}, s{sT0}, 3')
    em.op(f'v_lshrrev_b32 v{t0}, 4, {L}')
    em.op(f'v_bfe_u32 v{t1}, {L}, 2, 2')
    em.op(f'v_and_b32 v{t2}, 1, v{t0}')
    em.op(f'v_lshlrev_b32 v{t2}, 1, v{t2}')
    em.op(f'v_lshrrev_b32 v{t3}, 1, v{t1}')
    em.op(f'v_add_u32 v{t3}, v{t3}, v{t2}')
    em.op(f'v_xor_b32 v{t3}, s{sT0}, v{t3}')
    em.op(f'v_lshlrev_b32 v{t3}, 5, v{t3}')
    em.op(f'v_lshlrev_b32 v{dst}, 7, v{t1}')
    em.op(f'v_add_u32 v{dst}, v{dst}, v{t3}')
    if fmode == 'w':
        em.op(f'v_mul_u32_u24 v{t3}, 3072, v{t0}')
    else:
        em.op(f'v_lshlrev_b32 v{t2}, 8, v{t2}')
        em.op(f'v_add_u32 v{dst}, v{dst}, v{t2}')
        em.op(f'v_lshrrev_b32 v{t3}, 1, v{t0}')
        em.op(f'v_mul_u32_u24 v{t3}, 3072, v{t3}')
    em.op(f'v_add_u32 v{dst}, v{dst}, v{t3}')
    em.op(f'v_and_b32 v{t3}, 3, {L}')
    em.op(f'v_lshlrev_b32 v{t3}, 3, v{t3}')
    em.op(f'v_add_u32 v{dst}, v{dst}, v{t3}')
    em.op(f'v_add_u32 v{dst}, s{sT1}, v{dst}')

class Cap:
    def __init__(self): self.ops = []
    def op(self, t, tag=None): self.ops.append(t)

def k1_qproj(em, qh, typ):
    nq = 5 if qh == 0 else 4
    q0 = 0 if qh == 0 else 5
    L = f'v{vLANE}'
    t0, t1, t2, t3, t4, t5 = TMP[:6]
    rf = cfg.rfrac / 100
    if cfg.prio == qh + 1: em.op('s_setprio 1')
    npre = cfg.n0 if typ == 1 else 0
    if npre:
        nu = cfg.nu if npre == 1 else 6
        for f in k_dma_ops(em, 0)[:2 * nu]: f()
        em.wait_lgkm0(force=True)
        k_fetch(em, 0, k_dma_ops(em, 1) if npre == 2 else None, 0, nu)
        if npre == 2: k_fetch(em, 1, None)
        em.wait_lgkm0()
    em.barrier()
    for f in stage_dma_ops(em, 0, qh): f()
    em.barrier()
    for f in stage_dma_ops(em, 1, qh): f()
    em.op(f's_add_u32 s{SO}, s12, s{SO+3}'); em.op(f's_addc_u32 s{SO+1}, s13, 0'); em.op(f's_mov_b32 s{SO+2}, {O_HEAD}'); em.op(f's_mov_b32 s{SO+3}, 0x20000')
    em.op(f's_mov_b32 s{sC}, {fbits(192 ** -0.5 * math.log2(math.e))}')
    if cfg.code_pre and not cfg.cearly:
        em.op('s_getpc_b64 s[58:59]')
        em.label(f'L_pc{qh}{typ}')
        em.op(f's_add_u32 s58, s58, k1_body_start-L_pc{qh}{typ}')
        em.op('s_addc_u32 s59, s59, -1')
        em.op(f's_and_b32 s{sT1}, s{sLOC}, 15')
        em.op(f's_lshl_b32 s{sT1}, s{sT1}, 13')
        em.op(f'v_lshlrev_b32 v{TMP[11]}, 4, v0')
        em.op(f'v_add_u32 v{TMP[11]}, s{sT1}, v{TMP[11]}')
        em.op(f'v_min_u32 v{TMP[11]}, k1_body_end-k1_body_start-16, v{TMP[11]}')
    em.st.stamp('si')
    em.op(f'v_lshlrev_b32 v{t3}, 2, v0')
    em.op(f'v_add_u32 v{t3}, {MAXB}, v{t3}')
    em.op(f'v_mov_b32 v{t4}, 0xff800000')
    em.op(f'ds_write_b32 v{t3}, v{t4}')
    em.op(f'v_and_b32 v{vMS}, 15, {L}')
    em.op(f'v_lshlrev_b32 v{vMS}, 2, v{vMS}')
    em.op(f'v_add_u32 v{vMS}, {MAXB}, v{vMS}')
    em.op(f'v_add_u32 v{vRA[0]}, {q0 * 2048}, v{vRA[0]}')
    em.op(f'v_xor_b32 v{vRA[1]}, 64, v{vRA[0]}')
    for t in range(3): tr_addr(em, vRB[t], t, VBASE, 'w')
    if cfg.qfm:
        for t in (0, 2):
            tile_m(em, t)
            em.op(f's_lshr_b32 s{sT1}, s{sT0}, 1'); em.op(f's_mul_i32 s{sT1}, s{sT1}, 9216')
            em.op(f's_and_b32 s{sT0}, s{sT0}, 1'); em.op(f's_lshl_b32 s{sT0}, s{sT0}, 3'); em.op(f's_add_u32 s{sT0}, s{sT0}, s{sT1}')
            em.op(f's_add_u32 s{sT0}, s{sT0}, {q0 * 1024}')
            em.op(f'v_lshl_add_u32 v{vRC[t]}, {L}, 4, s{sT0}')
    for t in range(0 if cfg.qfm else 3):
        em.op(f's_mul_i32 s{sT0}, s{sDG}, 3'); em.op(f's_add_u32 s{sT0}, s{sT0}, {t}'); em.op(f's_lshl_b32 s{sT0}, s{sT0}, 1')
        em.op(f'v_lshrrev_b32 v{t0}, 5, {L}')
        em.op(f'v_add_u32 v{t0}, s{sT0}, v{t0}')
        em.op(f'v_lshrrev_b32 v{t1}, 3, v{t0}'); em.op(f'v_lshlrev_b32 v{t1}, 7, v{t1}')
        em.op(f'v_and_b32 v{t0}, 7, v{t0}')
        em.op(f'v_bfe_u32 v{t2}, {L}, 1, 3')
        em.op(f'v_xor_b32 v{t0}, v{t0}, v{t2}'); em.op(f'v_lshlrev_b32 v{t0}, 4, v{t0}')
        em.op(f'v_add_u32 v{t0}, v{t0}, v{t1}')
        em.op(f'v_and_b32 v{t1}, 15, {L}'); em.op(f'v_mul_u32_u24 v{t1}, 384, v{t1}')
        em.op(f'v_add_u32 v{t0}, v{t0}, v{t1}')
        em.op(f'v_bfe_u32 v{t1}, {L}, 4, 1'); em.op(f'v_lshlrev_b32 v{t1}, 3, v{t1}')
        em.op(f'v_add_u32 v{vRC[t]}, v{t0}, v{t1}')
    em.op(f'v_lshlrev_b32 v{vPA}, 4, {L}')
    em.op(f's_lshl_b32 s{sT0}, s{sW}, 2'); em.op(f's_lshr_b32 s{sT1}, 0x10543210, s{sT0}'); em.op(f's_and_b32 s{sT1}, s{sT1}, 15'); em.op(f's_mul_i32 s{sT1}, s{sT1}, 9216')
    em.op(f'v_add_u32 v{vPW}, s{sT1}, v{vPA}')
    em.op(f'v_add_u32 v{vPA}, {q0 * 1024}, v{vPA}')
    AF = [176, 188]; BF = [200, 220]
    def q_reads(s, step, st):
        ops = []
        for t in range(3):
            ops.append(f'ds_read_b64_tr_b16 {vr(AF[st] + 4*t, 2)}, v{vRB[t]} offset:{(s % 3) * 24576 + step * 12288}')
            ops.append(f'ds_read_b64_tr_b16 {vr(AF[st] + 4*t + 2, 2)}, v{vRB[t]} offset:{(s % 3) * 24576 + step * 12288 + 512}')
        xs = [f'ds_read_b128 {vr(BF[st] + 4*j)}, v{vRA[step]} offset:{(s % 3) * 18432 + j * 2048}' for j in range(nq)]
        return ops[0:2] + xs[0:1] + ops[2:6] + xs[1:]
    def mf(st, first):
        return [mfma(ACC + 4*(j*3+t), AF[st] + 4*t, BF[st] + 4*j, None if first else ACC + 4*(j*3+t)) for j in range(nq) for t in range(3)]
    em.wait_vm_tag('S0', lgkm0=True); em.barrier()
    em.st.stamp('S0')
    em.op(f's_add_u32 s{sTAG}, s{sTAG}, 1')
    for o in q_reads(0, 0, 0): em.op(o)
    em.npre = npre
    nxt = [k_dma_ops(em, 0), k_dma_ops(em, 1), va_ops(em)][npre]
    em.part = npre == 1 and cfg.nu < 6
    if em.part: nxt = k_dma_ops(em, 0)[2 * cfg.nu:] + k_dma_ops(em, 1)[:2 * cfg.nu]
    plan = {15: nxt[0:4], 16: nxt[4:7], 17: nxt[7:10], 18: nxt[10:12]} if qh == 0 else {19: nxt[0:6]}
    late = [] if qh == 0 else nxt[6:12]
    post = []
    if qh == 1 and (cfg.qlate or (cfg.qlate1 and npre)): plan = {}; late = []; post = nxt
    cap = Cap()
    for t in range(3): tr_addr(cap, VTMP[t], t, VBASE, 'v')
    vaddr_ops = cap.ops
    inloop_pf = not (typ == 1 and cfg.n0) and not cfg.pfall
    carry = stage_dma_ops(em, 2, qh) + (sum([pf_ops() for i in range(cfg.pfa - 3)], []) if inloop_pf else [])
    if cfg.code_pre and not cfg.cearly: carry.append(f'global_load_dwordx4 {vr(244)}, v{TMP[11]}, s[58:59]')
    for s in range(10):
        extra = []
        extra = plan.get(2 * s, [])
        if cfg.onew and s > 0: em.wait_lgkm0()
        interleave(em, mf(0, s == 0), ([] if cfg.x_qnord and 3 < s <= 6 else q_reads(s, 1, 1), 0, rf), (extra, 0.1, 1), (carry, 0.05, cfg.dhi / 100))
        if s < 9: em.wait_vm_tag(f'S{s+1}', lgkm0=True)
        else: em.wait_lgkm0()
        em.barrier()
        if s in cfg.qst: em.st.stamp(f'B{s}')
        if cfg.qloop and s == 6:
            em.op('s_sub_u32 s87, s87, 1'); em.op('s_cmp_lg_u32 s87, 0'); em.op(f's_cbranch_scc1 L_ql{qh}{typ}')
            em.st.stamp('LBend')
        if cfg.qloop and s == 3:
            em.st.stamp('LB0')
            em.op('s_mov_b32 s87, 16'); em.label(f'L_ql{qh}{typ}')
        rd = []; dm = []; extra = []
        if s < 9:
            if not (cfg.x_qnord and 3 <= s < 6): rd += q_reads(s + 1, 0, 0)
        carry = []
        if s + 3 <= 9:
            dm = stage_dma_ops(em, s + 3, qh); ds_ = cfg.dsplit if not cfg.drole else (6 if qh == cfg.drole - 1 else 0)
            dm, carry = dm[:ds_], dm[ds_:]
            if cfg.x_qnodma and 3 <= s < 6: dm = []; carry = []
        if s == 7: extra = vaddr_ops
        first = (pf_ops() + (pf2_ops() if s + cfg.pfa >= cfg.pf1 and cfg.n0 else []) if inloop_pf and s + cfg.pfa <= 9 and not (cfg.qloop and s >= 3) else []) + (sum([pf2_ops() for i in range(10 - cfg.pfx)], []) if cfg.pf0x == s + 1 and typ == 0 else []) + plan.get(2 * s + 1, [])
        qw = []
        if s == 9:
            for j in range(nq):
                for t in range(3):
                    a = ACC + 4*(j*3+t)
                    if cfg.qfm and t == 0: continue
                    if cfg.qfm and t == 1:
                        p = a - 4
                        qw.append((j*3+t, [f'v_cvt_pk_bf16_f32 v{p}, v{p}, v{p+1}', f'v_cvt_pk_bf16_f32 v{p+1}, v{p+2}, v{p+3}', f'v_cvt_pk_bf16_f32 v{p+2}, v{a}, v{a+1}',
                                   f'v_cvt_pk_bf16_f32 v{p+3}, v{a+2}, v{a+3}', f'ds_write_b128 v{vRC[0]}, {vr(p)} offset:{j * 1024}']))
                        continue
                    qw.append((j*3+t, [f'v_cvt_pk_bf16_f32 v{a}, v{a}, v{a+1}', f'v_cvt_pk_bf16_f32 v{a+1}, v{a+2}, v{a+3}', f'ds_write_b64 v{vRC[t]}, {vr(a,2)} offset:{j * 1024 if cfg.qfm else (q0 + j) * 6144}']))
        n = 3 * nq; lag = 3 if cfg.qwi else n
        ins = [(g, (p + lag + 0.5) / n, (p + lag + 0.5) / n) for p, g in qw if p + lag < n]
        interleave(em, mf(1, False), (dm, cfg.dlo / 100, cfg.dhi / 100), (rd, 0, rf), (extra, 0, 1), (first, 0, 0.04 if dm else 0.9), *ins)
    for p, g in qw:
        if p + lag >= n:
            for o in g: em.op(o)
    for f in late: f()
    if cfg.qfm: em.op(f'v_lshlrev_b32 v{vRA[0]}, 4, {L}')
    else:
        em.op(f'v_and_b32 v{t1}, 15, {L}'); em.op(f'v_mul_u32_u24 v{t1}, 384, v{t1}')
        em.op(f'v_add_u32 v{vRA[0]}, v{t1}, v{vT}')
        em.op(f'v_xor_b32 v{t0}, 64, v{vT}')
        em.op(f'v_add_u32 v{vRA[1]}, v{t1}, v{t0}')
    for t in range(3): em.op(f'v_mov_b32 v{vRB[t]}, v{VTMP[t]}')
    em.wait_lgkm0(); em.barrier()
    for f in post: f()
    for t in range(3): em.op(f'v_add_u32 v{vRC[t]}, 49152, v{vRB[t]}')
    em.op(f's_lshl_b32 s{sT0}, s{sW}, 2'); em.op(f's_lshr_b32 s{sT1}, 0x32105432, s{sT0}'); em.op(f's_and_b32 s{sT1}, s{sT1}, 15'); em.op(f's_mul_i32 s{sT1}, s{sT1}, 9216')
    em.op(f'v_lshlrev_b32 v{vPW2}, 4, {L}')
    em.op(f'v_add_u32 v{vPW2}, s{sT1}, v{vPW2}')
    em.st.stamp('BQ')

def maxops(half):
    ops = []
    for qt in range(9):
        a, b = sreg(half*2, qt), sreg(half*2+1, qt); m = MC + qt
        if half == 0:
            ops += [f'v_max3_f32 v{m}, v{a}, v{a+1}, v{a+2}', f'v_max3_f32 v{m}, v{m}, v{a+3}, v{b}',
                    f'v_max3_f32 v{m}, v{m}, v{b+1}, v{b+2}', f'v_max_f32 v{m}, v{m}, v{b+3}']
        else:
            ops += [f'v_max3_f32 v{m}, v{m}, v{a}, v{a+1}', f'v_max3_f32 v{m}, v{m}, v{a+2}, v{a+3}',
                    f'v_max3_f32 v{m}, v{m}, v{b}, v{b+1}', f'v_max3_f32 v{m}, v{m}, v{b+2}, v{b+3}']
    return ops

def code_refresh(va):
    ops = [f's_and_b32 s{sT1}, s{sLOC}, 15', f's_lshl_b32 s{sT1}, s{sT1}, 13', f'v_lshlrev_b32 v{va}, 4, v0', f'v_and_b32 v{va}, 0xfff, v{va}', f'v_add_u32 v{va}, s{sT1}, v{va}']
    for i in range(2):
        ops += [f'v_min_u32 v{va}, k1_body_end-k1_body_start-16, v{va}', f's_mov_b32 m0, {MAXB + 640}', f'global_load_lds_dwordx4 v{va}, s[58:59]', f'v_add_u32 v{va}, 4096, v{va}']
    return ops

def vflag_set(em):
    em.op(f's_lshl_b32 s{sT0}, s{sDG}, 2'); em.op(f's_add_u32 s{sT0}, s{sT0}, {MAXB + 576}')
    em.op(f'v_mov_b32 v{TMP[0]}, s{sT0}'); em.op(f'v_mov_b32 v{TMP[1]}, 1')
    em.op(f'ds_write_b32 v{TMP[0]}, v{TMP[1]}')

def k1_qk(em, qh):
    def qrd(n):
        qt, ks = divmod(n, 6)
        if cfg.qfm: return f'ds_read_b128 {vr(QF + 4*(n % 4))}, v{vRA[0]} offset:{(ks * 9 + qt) * 1024}'
        return f'ds_read_b128 {vr(QF + 4*(n % 4))}, v{vRA[ks & 1]} offset:{qt * 6144 + (ks >> 1) * 128}'
    npre = em.npre
    pend = []
    if em.part: k_fetch(em, 0, k_dma_ops(em, 1), cfg.nu, 6)
    if npre == 1 and cfg.g2e:
        k_fetch(em, 1, None); em.wait_lgkm0()
        pend = va_ops(em)
        if qh == 1:
            for f in pend: f()
            pend = []
        npre = 2
    g2m = (cfg.g2m0, cfg.g2m1)[qh] if npre == 1 and not em.part else 0
    for half in range(2):
        fill = pend; pend = []
        mid = []
        if half == 0 and g2m:
            mid = [f'v_xor_b32 v{vKR2[e]}, 32, v{vKR[e]}' for e in range(2)] if cfg.qfm else []
            for u in range(6): mid += [lambda u=u: em.wait_vm_tag(f'K1_{u}')] + k_rd_ops(1, u)
            if cfg.vby and qh == 1: mid += ['s_nop 0'] * 6 + [lambda: (em.wait_lgkm0(), vflag_set(em))]
        if half == 1 and g2m:
            em.wait_lgkm0(); fill = va_ops(em)
            if cfg.vby and qh == 1: fill = []
        elif half >= npre:
            fill = k_dma_ops(em, 1) if half == 0 else va_ops(em)
            if half == 0 and cfg.eager >> qh & 1:
                k_fetch(em, half, fill); fill = []
            else:
                k_fetch(em, half, None)
                em.wait_lgkm0()
                if half == 1 and cfg.eagerv >> qh & 1:
                    for f in fill: f()
                    fill = []
                if half == 1 and cfg.vby and qh == 1: fill = []; vflag_set(em)
        for n in range(3): em.op(qrd(n))
        em.st.stamp(f'K{half}')
        main = []
        for n in range(54):
            qt, ks = divmod(n, 6)
            if n + 3 < 54: main.append(qrd(n + 3))
            for k in range(2):
                kt = half * 2 + k
                main.append(mfma(sreg(kt, qt), kop(kt, ks), QF + 4*(n % 4), None if ks == 0 else sreg(kt, qt)))
        m1 = maxops(1)
        if half == 0:
            streams = [(fill, cfg.g2lo / 100, cfg.g2hi / 100), (mid, g2m / 100, min(1.0, g2m / 100 + 0.3))]
        else:
            streams = [(maxops(0), 0.02, 0.5)]
            for qt in range(8): streams.append((m1[qt*4:qt*4+4] + ([f'ds_max_f32 v{vMS}, v{MC+qt} offset:{qt*64}'] if cfg.emax else []), max(0.5 + 0.05*qt, (qt + 1.5) / 9), max(0.55 + 0.05*qt, (qt + 1.9) / 9)))
            streams.append((fill, cfg.valo / 100, cfg.vahi / 100))
        interleave(em, main, *streams)
    em.st.stamp('QKend')
    for o in maxops(1)[32:]: em.op(o)
    for qt in range(8 if cfg.emax else 0, 9): em.op(f'ds_max_f32 v{vMS}, v{MC+qt} offset:{qt*64}')
    if qh == 0 and cfg.cre:
        for o in code_refresh(115): em.op(o)
    if qh == 0 and cfg.vby:
        em.op(f'v_mov_b32 v{vVO4}, v{vVO3}')
        em.op(f's_and_b32 s{sT1}, s{sW}, 2'); em.op(f's_lshr_b32 s{sKB2}, {vslot(2) | vslot(3) << 2}, s{sT1}'); em.op(f's_and_b32 s{sKB2}, s{sKB2}, 3')
        em.op(f's_lshl_b32 s{sKB2}, s{sKB2}, 1'); em.op(f's_and_b32 s{sT1}, s{sW}, 1'); em.op(f's_add_u32 s{sKB2}, s{sKB2}, s{sT1}')
        em.op(f's_mul_i32 s{sKB2}, s{sKB2}, 12288'); em.op(f's_add_u32 s{sKB2}, s{sKB2}, {VBASE}')
    if qh == 0 and cfg.tsq:
        for o in tail_setup_ops(0): emit(em, o)
    if qh == 0 and cfg.vby:
        _lab[0] += 1
        em.op(f's_lshl_b32 s{sT0}, s{sDG}, 2'); em.op(f's_add_u32 s{sT0}, s{sT0}, {MAXB + 576}')
        em.op(f'v_mov_b32 v113, s{sT0}')
        em.op(f's_mov_b32 s{sCNT}, 0x100000')
        em.wait_lgkm0()
        em.label(f'L_vf{_lab[0]}')
        em.op('ds_read_b32 v114, v113')
        em.op(f's_sub_u32 s{sCNT}, s{sCNT}, 1')
        em.op(f's_cbranch_scc1 L_vfd{_lab[0]}')
        em.wait_lgkm0()
        em.op('v_cmp_ne_u32 vcc, 1, v114')
        em.op('s_nop 4')
        em.op(f's_cbranch_vccz L_vfd{_lab[0]}')
        em.op('s_sleep 1')
        em.op(f's_branch L_vf{_lab[0]}')
        em.label(f'L_vfd{_lab[0]}')
        em.wait_lgkm0(force=True)
        for f in va_ops(em, True)[:cfg.vbyn]: f()
    if qh == 0 and cfg.vpq:
        a, b = v_pf_ops(em), v_pf_ops(em, 24576)
        both = [x for p in zip(a, b) for x in p][:2 * cfg.vpq]
        for i, f in enumerate(both):
            f()
            if i >= cfg.vpq_in: em.waitcnt(vm=cfg.vpq_in)
    em.wait_lgkm0(); em.barrier()
    em.st.stamp('BM')

def expops(r, qt, pk):
    a, b = sreg(2*r, qt), sreg(2*r+1, qt); m = MC + qt
    tA, tB = TMP[0], TMP[2]
    sp = SUMP + 2*qt
    rs = [a, a+1, a+2, a+3, b, b+1, b+2, b+3]
    if pk:
        mb = m & ~1; s = m & 1
        ops = [f'v_pk_fma_f32 {vr(x,2)}, {vr(x,2)}, s[{sC}:{sC+1}], {vr(mb,2)} op_sel:[0,0,{s}] op_sel_hi:[1,0,{s}] neg_lo:[0,0,1] neg_hi:[0,0,1]' for x in rs[::2]]
    else:
        ops = [f'v_fma_f32 v{x}, v{x}, s{sC}, -v{m}' for x in rs]
    ops += [f'v_exp_f32 v{x}, v{x}' for x in rs]
    if pk:
        ops += [f'v_pk_add_f32 {vr(tA,2)}, {vr(a,2)}, {vr(a+2,2)}', f'v_pk_add_f32 {vr(tB,2)}, {vr(b,2)}, {vr(b+2,2)}']
        if r == 0: tailo = [f'v_pk_add_f32 {vr(sp,2)}, {vr(tA,2)}, {vr(tB,2)}']
        else: tailo = [f'v_pk_add_f32 {vr(tA,2)}, {vr(tA,2)}, {vr(tB,2)}', f'v_pk_add_f32 {vr(sp,2)}, {vr(sp,2)}, {vr(tA,2)}']
    else:
        assert r == 1
        ops += [f'v_add_f32 v{sp + (i & 1)}, v{sp + (i & 1)}, v{x}' for i, x in enumerate(rs)]
        tailo = []
    ops += [f'v_cvt_pk_bf16_f32 v{a}, v{a}, v{a+1}', f'v_cvt_pk_bf16_f32 v{a+1}, v{a+2}, v{a+3}',
            f'v_cvt_pk_bf16_f32 v{a+2}, v{b}, v{b+1}', f'v_cvt_pk_bf16_f32 v{a+3}, v{b+2}, v{b+3}']
    return ops + tailo

def pwrite(r, qt, qh):
    return f'ds_write_b128 v{vPW if r == 0 else vPW2}, {vr(sreg(2*r, qt))} offset:{qt*1024}'

def sum_ops():
    L = f'v{vLANE}'
    S = SUM; ops = []
    ops += [f'v_add_f32 v{SUM+qt}, v{SUMP+2*qt}, v{SUMP+2*qt+1}' for qt in range(9)]
    ops += [f'v_mov_b32 v{MC}, 0', f'v_mov_b32 v{MC+1}, 0']
    ta = TMP[2]; tb = TMP[3]
    ops += [f'v_bfe_u32 v{ta}, {L}, 4, 1', f'v_lshlrev_b32 v{ta}, 10, v{ta}', f'v_bfe_u32 v{tb}, {L}, 5, 1', f'v_lshlrev_b32 v{tb}, 9, v{tb}',
            f'v_add_u32 v{ta}, v{ta}, v{tb}', f'v_and_b32 v{tb}, 15, {L}', f'v_lshlrev_b32 v{tb}, 5, v{tb}', f'v_add_u32 v{ta}, v{ta}, v{tb}',
            f's_lshl_b32 s{sT0}, s{sW}, 2', f's_add_u32 s{sT0}, s{sT0}, {SUMB}', f'v_add_u32 v{ta}, s{sT0}, v{ta}']
    for a in (0, 2, 4, 6): ops.append(f'v_permlane32_swap_b32 v{S+a}, v{S+a+1}')
    ops.append(f'v_permlane32_swap_b32 v{S+8}, v{MC}')
    for a in (0, 2, 4, 6): ops.append(f'v_add_f32 v{S+a}, v{S+a}, v{S+a+1}')
    ops.append(f'v_add_f32 v{S+8}, v{S+8}, v{MC}')
    for a in (0, 4): ops.append(f'v_permlane16_swap_b32 v{S+a}, v{S+a+2}')
    ops.append(f'v_permlane16_swap_b32 v{S+8}, v{MC+1}')
    for a in (0, 4): ops.append(f'v_add_f32 v{S+a}, v{S+a}, v{S+a+2}')
    ops.append(f'v_add_f32 v{S+8}, v{S+8}, v{MC+1}')
    for a in (0, 4, 8): ops.append(f'ds_write_b32 v{ta}, v{S+a} offset:{a * 512}')
    return ops

def k1_sm0(em, qh):
    n_in = cfg.in0 if qh == 0 else cfg.in1
    for qt in range(9): em.op(f'ds_read_b32 v{MC+qt}, v{vMS} offset:{qt*64}')
    for qt in range(9): em.op(f'v_mul_f32 v{MC+qt}, s{sC}, v{MC+qt}')
    main = []
    for qt in range(9):
        main += expops(0, qt, True)
        if qh == 0: main.append(pwrite(0, qt, qh))
    for qt in range(n_in, 9): main += expops(1, qt, True)
    wo = []
    if cfg.wosm >= 0:
        em.op(f's_andn2_b32 s{sT1}, s{sLOC}, 4'); em.op(f's_mul_i32 s{sT1}, s{sT1}, 30720')
        em.op(f's_mul_i32 s{sT0}, s{sX}, 983040'); em.op(f's_add_u32 s{sT0}, s{sT0}, s{sT1}')
        em.op(f'v_lshl_add_u32 v64, v0, 4, s{sT0}')
        for i in range(8):
            def f(i=i):
                _lab[0] += 1
                em.op(f's_cmp_eq_u32 s{sTYPE}, {cfg.wosm}')
                em.op(f's_cbranch_scc0 L_ws{_lab[0]}')
                em.begin_opt()
                em.op(f's_mov_b32 m0, {MAXB + 640}')
                em.op(f'v_min_u32 v65, {7864320 - 16}, v64')
                em.op(f'global_load_lds_dwordx4 v65, s[14:15]')
                em.op(f'v_add_u32 v64, {8192 if i != 3 else 122880 - 3 * 8192}, v64')
                em.end_opt()
                em.label(f'L_ws{_lab[0]}')
            wo.append(f)
    interleave(em, main, (v_pf_ops(em)[cfg.vpq:cfg.vpq + cfg.vpf], 0.05, cfg.vrf / 100), (wo, 0.1, 0.95), (va_ops(em, True)[cfg.vbyn:] if cfg.vby and qh == 0 else [], 0, 0.3))
    em.st.stamp('exp0')
    if qh == 0: em.wait_vm_tag('VA', lgkm0=True)
    else: em.wait_lgkm0()
    em.barrier()
    em.st.stamp('PV0')

def k1_pv(em, qh):
    nq = 5 if qh == 0 else 4
    q0 = 0 if qh == 0 else 5
    L = f'v{vLANE}'
    rf = cfg.rfrac / 100
    PBF = PBF0 if qh == 0 else PBF1
    INV = INV0
    PAF = PAF0 if qh == 0 else PAF1
    def pv_reads(s, step, st):
        ops = []
        slot = vslot(s)
        base = vRB if slot < 2 else vRC
        off = (slot % 2) * 24576 + step * 12288
        for t in range(3):
            ops.append(f'ds_read_b64_tr_b16 {vr(PAF[st][t], 2)}, v{base[t]} offset:{off}')
            ops.append(f'ds_read_b64_tr_b16 {vr(PAF[st][t] + 2, 2)}, v{base[t]} offset:{off + 6144}')
        pa, po = vPA, ((2 * s + step) % 6) * 9216
        xs = [f'ds_read_b128 {vr(PBF[st][j])}, v{pa} offset:{po + j * 1024}' for j in range(nq)]
        return ops[0:2] + xs[0:1] + ops[2:6] + xs[1:]
    OACC = OACC0 if qh == 0 else OACC1
    def mf(st, first):
        return [mfma(OACC[j*3+t], PAF[st][t], PBF[st][j], None if first else OACC[j*3+t]) for j in range(nq) for t in range(3)]
    def inv_ops():
        ta = TMP[2]; ops = []
        ops += [f'v_and_b32 v{ta}, 15, {L}', f'v_lshlrev_b32 v{ta}, 5, v{ta}', f'v_add_u32 v{ta}, {SUMB + q0 * 512}, v{ta}']
        for j in range(nq):
            ops += [f'ds_read_b128 {vr(16 + 8*j)}, v{ta} offset:{j * 512}', f'ds_read_b128 {vr(20 + 8*j)}, v{ta} offset:{j * 512 + 16}']
        for j in range(nq):
            r = 16 + 8*j
            ops += [f'v_add_f32 v{r}, v{r}, v{r+1}', f'v_add_f32 v{r+2}, v{r+2}, v{r+3}', f'v_add_f32 v{r+4}, v{r+4}, v{r+5}', f'v_add_f32 v{r+6}, v{r+6}, v{r+7}',
                    f'v_add_f32 v{r}, v{r}, v{r+2}', f'v_add_f32 v{r+4}, v{r+4}, v{r+6}', f'v_add_f32 v{r}, v{r}, v{r+4}', f'v_rcp_f32 v{INV+2*j}, v{r}']
        return ops
    n_in = cfg.in0 if qh == 0 else cfg.in1
    assert n_in <= 3
    hs = [0, 3, 4] if qh == 0 else [7, 8, 4]
    INVO = inv_ops()
    TS = [] if (qh == 0 and cfg.tsq) else tail_setup_ops(qh)
    def ex(h):
        o = []
        if h in hs[:n_in] or (n_in == 2 and qh == 0 and False): o += expops(1, hs.index(h), False)
        if qh == 0 and h in (5, 6): o += [pwrite(1, qt, qh) for qt in (range(4, 9) if h == 5 else range(4))]
        if qh == 1 and h in (1, 2): o += [pwrite(0, qt, qh) for qt in (range(5) if h == 1 else range(5, 9))]
        if qh == 1 and h in (9, 10): o += [pwrite(1, qt, qh) for qt in (range(4, 9) if h == 9 else range(4))]
        if h == (7 if qh == 0 else 11): o += sum_ops()
        if h == 12 and qh == 1 and cfg.cre == 2: o += [lambda: [em.op(x) for x in code_refresh(TMP[2])]]
        if h == 13: o += INVO[:len(INVO) // 2]
        if h == 14: o += INVO[len(INVO) // 2:]
        if TS and h == 3 and qh == 1: o += TS
        if TS and h in (11, 12) and qh == 0: o += TS[:len(TS)//2] if h == 11 else TS[len(TS)//2:]
        return o
    def wopre_ops(i):
        ta = TMP[2 + (i & 1)]
        ops = [f's_mul_i32 s{sT3}, s{sX}, 983040', f's_mul_i32 s{sT4}, s{sLOC}, 30720', f's_add_u32 s{sT3}, s{sT3}, s{sT4}', f's_add_u32 s{sT3}, s{sT3}, {i * 8192}',
               f'v_lshlrev_b32 v{ta}, 4, v0', f'v_add_u32 v{ta}, s{sT3}, v{ta}', f'v_min_u32 v{ta}, {7864320 - 16}, v{ta}',
               f'global_load_dwordx4 {vr(52)}, v{ta}, s[14:15]']
        if cfg.wo0:
            def f():
                _lab[0] += 1
                em.op(f's_cmp_eq_u32 s{sTYPE}, 0')
                em.op(f's_cbranch_scc0 L_wp{_lab[0]}')
                em.begin_opt()
                for o in ops[:-2] + [ops[-1], f'v_add_u32 v{ta}, 122880, v{ta}'] + ops[-2:]: em.op(o)
                em.end_opt()
                em.label(f'L_wp{_lab[0]}')
            return [f]
        return ops
    wsl = {8: 0, 9: 1, 10: 2, 12: 3} if cfg.wosm < 0 else {}
    def epi(pk):
        out = []
        def mul(a, m):
            if pk: return [f'v_pk_mul_f32 {vr(a,2)}, {vr(a,2)}, {vr(m,2)} op_sel_hi:[1,0]', f'v_pk_mul_f32 {vr(a+2,2)}, {vr(a+2,2)}, {vr(m,2)} op_sel_hi:[1,0]']
            return [f'v_mul_f32 v{a+d}, v{a+d}, v{m}' for d in range(4)]
        for j in range(nq):
            m = INV + 2 * j
            a, b, c = OACC[j*3], OACC[j*3+1], OACC[j*3+2]
            if cfg.opair:
                out.append((j*3+1, mul(a, m) + mul(b, m) + [f'v_cvt_pk_bf16_f32 v{a}, v{a}, v{a+1}', f'v_cvt_pk_bf16_f32 v{a+1}, v{a+2}, v{a+3}',
                            f'v_cvt_pk_bf16_f32 v{a+2}, v{b}, v{b+1}', f'v_cvt_pk_bf16_f32 v{a+3}, v{b+2}, v{b+3}', f'ds_write_b128 v{vOW[0]}, {vr(a)} offset:{j * 1024}']
                            + ([f's_mov_b32 s{sT0}, {j * 1024}', (f'buffer_store_dwordx4 {vr(a)}, v{vOW[1]}, {sr(SO,4)}, s{sT0} offen sc1', 'CO0')] if cfg.direct else [])))
            for t in ((2,) if cfg.opair else (0, 1, 2)):
                x = OACC[j*3+t]
                out.append((j*3+t, mul(x, m) + [f'v_cvt_pk_bf16_f32 v{x}, v{x}, v{x+1}', f'v_cvt_pk_bf16_f32 v{x+1}, v{x+2}, v{x+3}', f'ds_write_b64 v{vOW[t]}, {vr(x,2)} offset:{j * 1024}']))
        return out
    for o in pv_reads(0, 0, 0): em.op(o)
    n = 3 * nq; lag = 4 if cfg.qwi else n
    for s in range(8):
        w = wopre_ops(wsl[2*s]) if cfg.wopre and 2*s in wsl else []
        if cfg.onew and s > 0: em.wait_lgkm0()
        interleave(em, mf(0, s == 0), (pv_reads(s, 1, 1), 0, rf), (ex(2*s), 0, cfg.efrac / 100), (w, 0.4, 0.41))
        if s == 1: em.wait_vm_tag('VB' if cfg.vby else 'VA', lgkm0=True)
        elif s < 7: em.wait_vm_tag(f'V{s+1}', lgkm0=True)
        else: em.wait_lgkm0()
        em.barrier()
        em.st.stamp(f'PB{s}')
        rd = pv_reads(s + 1, 0, 0) if s < 7 else []
        dm = v_dma_ops(em, s + NV) if s + NV <= 7 else []
        if s == 7 and qh == 0 and not cfg.woe: dm = tail_dma(em, 0) + tail_dma(em, 1)
        if cfg.woe and qh == 0 and 4 <= s <= 6: dm = tail_dma(em, s - 4)
        w = wopre_ops(wsl[2*s+1]) if cfg.wopre and 2*s+1 in wsl else []
        ins = []
        if s == 7:
            ins = [(g, (p + lag + 0.5) / n, (p + lag + 0.5) / n) for p, g in epi(False) if p + lag < n]
        interleave(em, mf(1, False), (dm, 0, 0.4 if s < 4 else 1), (rd, 0, rf + 0.1), (ex(2*s+1), 0, 1), (w, 0.4, 0.41), *ins)
    late = tail_dma(em, 2) if qh == 0 and not cfg.woe else []
    main = sum([g for p, g in epi(True) if p + lag >= n], [])
    interleave(em, main, (late, 0, 1))
    em.wait_vm_tag('T0', lgkm0=True); em.barrier()
    em.st.stamp('BO')
    em.op(f's_bitcmp1_b32 s{sW}, 1')
    em.op(f's_cbranch_scc1 L_tail{2 * qh + 1}')
    st = em.save()
    tail(em, 2 * qh)
    em.label(f'L_tail{2 * qh + 1}')
    em.restore(st)
    tail(em, 2 * qh + 1)

vOFFS = [2, 3, 4, 5, 7]; vA2 = [248, 249, 250]; vB2 = 251
SD, SP, SPR, SOUT = SX, SWQ, SK, 84
sT3, sT4 = 56, 59
sCH = 36 + 1
sCH = 81
sN0 = sNH
OB = 0 if cfg.woe else 61440
WB = 79872 if cfg.woe else 0
def wslot(s): return [49152, 0, 24576][s % 3] if cfg.woe else (s % 3) * 20480
def tail_setup_ops(qh):
    c = Cap(); L = f'v{vLANE}'
    t0, t1, t2, t3 = 252, 253, 244, 245
    if qh == 0:
        c.op(f's_mul_i32 s{sT0}, s{sX}, 983040'); c.op(f's_mul_i32 s{sT1}, s{sJ}, 320'); c.op(f's_add_u32 s{sT0}, s{sT0}, s{sT1}')
        srd(c, SD, 14, 15, f's{sT0}', 7864320)
        c.op(f's_sub_u32 s{SD+2}, s{SD+2}, s{sT0}')
        c.op(f's_mov_b32 s{sSTR}, 81920')
        hs = 245760
        c.op(f's_lshl_b32 s{sT2}, s{sW}, 4')
        c.op(f's_mov_b32 s{sT1}, 52429')
        for j in range(5):
            c.op(f'v_add_u32 v{t0}, {j * 64}, {L}')
            c.op(f'v_mul_lo_u32 v{t1}, v{t0}, s{sT1}')
            c.op(f'v_lshrrev_b32 v{t1}, 20, v{t1}')
            c.op(f'v_mul_u32_u24 v{t2}, 20, v{t1}')
            c.op(f'v_sub_u32 v{t2}, v{t0}, v{t2}')
            c.op(f'v_bfe_u32 v{t3}, v{t1}, 2, 1')
            c.op(f'v_lshlrev_b32 v{t3}, 1, v{t3}')
            c.op(f'v_xor_b32 v{t2}, v{t2}, v{t3}')
            c.op(f'v_add_u32 v{t1}, s{sT2}, v{t1}')
            c.op(f'v_mul_u32_u24 v{t1}, 1280, v{t1}')
            c.op(f'v_lshl_add_u32 v{vOFFS[j]}, v{t2}, 4, v{t1}')
        c.op(f's_and_b32 s{sN0}, s{sW}, 1'); c.op(f's_mul_i32 s{sN0}, s{sN0}, 3')
        c.op(f's_bfe_u32 s{sQ0}, s{sW}, 0x10001'); c.op(f's_mul_i32 s{sQ0}, s{sQ0}, 5')
    else:
        c.op(f's_lshl_b32 s{sT0}, s{sB}, 5'); c.op(f's_lshl_b32 s{sT1}, s{sX}, 2'); c.op(f's_add_u32 s{sT0}, s{sT0}, s{sT1}')
        c.op(f's_mul_i32 s{sT0}, s{sT0}, {O_HEAD}')
        srd(c, SD, 12, 13, f's{sT0}', 4 * O_HEAD)
        c.op(f's_mov_b32 s{sSTR}, 18432')
        hs = O_HEAD
        c.op(f's_mul_i32 s{sT2}, s{sDG}, 5120')
        if cfg.nopad:
            c.op(f's_cmp_eq_u32 s{sDG}, 3'); c.op(f's_cselect_b32 s{sT2}, 14336, s{sT2}')
        c.op(f'v_lshlrev_b32 v{t0}, 4, {L}')
        c.op(f'v_add_u32 v{t0}, s{sT2}, v{t0}')
        for j in range(5): c.op(f'v_add_u32 v{vOFFS[j]}, {j * 1024}, v{t0}')
        c.op(f's_and_b32 s{sN0}, s{sW}, 1'); c.op(f's_lshl_b32 s{sN0}, s{sN0}, 1'); c.op(f's_add_u32 s{sN0}, s{sN0}, 6')
        c.op(f's_bfe_u32 s{sQ0}, s{sW}, 0x10001'); c.op(f's_xor_b32 s{sQ0}, s{sQ0}, 1'); c.op(f's_mul_i32 s{sQ0}, s{sQ0}, 5')
    if cfg.direct:
        if qh == 0:
            c.op(f's_lshr_b32 s{sT0}, s{sW}, 1'); c.op(f's_mul_i32 s{sT0}, s{sT0}, 40960')
            c.op(f's_mov_b32 s{sCH}, s{sT0}'); c.op(f's_add_u32 s{sCH+1}, s{sT0}, {96 * 1280}')
            c.op(f's_lshl_b32 s{sT0}, s{sT0}, 1'); c.op(f's_add_u32 s{sCH+2}, s{sT0}, {32 * 1280}')
        else:
            for i in range(3): c.op(f's_mov_b32 s{sCH+i}, {i * 18432}')
    c.op(f's_mul_i32 s{sM0T}, s{sDG}, 5120')
    if qh: c.op(f's_add_u32 s{sM0T}, s{sT2 if cfg.nopad else sM0T}, {OB}')
    else: c.op(f's_add_u32 s{sM0T}, s{sM0T}, {WB}')
    for i in range(4):
        c.op(f's_add_u32 s{sT0}, s{sJ}, {i}'); c.op(f's_and_b32 s{sT0}, s{sT0}, 3'); c.op(f's_mul_i32 s{sHB+i}, s{sT0}, {hs}')
    c.op(f'v_lshrrev_b32 v{t0}, 2, {L}')
    c.op(f'v_mul_u32_u24 v{t0}, 320, v{t0}')
    c.op(f'v_and_b32 v{t1}, 3, {L}')
    c.op(f'v_lshl_add_u32 v{t0}, v{t1}, 3, v{t0}')
    if WB: c.op(f'v_add_u32 v{t0}, {WB}, v{t0}')
    c.op(f'v_bfe_u32 v{t1}, {L}, 4, 1')
    for t in range(3 if qh == 0 else 2):
        c.op(f's_add_u32 s{sT1}, s{sN0}, {t}')
        c.op(f'v_xor_b32 v{t2}, s{sT1}, v{t1}')
        c.op(f'v_lshl_add_u32 v{vA2[t]}, v{t2}, 5, v{t0}')
    c.op(f's_lshl_b32 s{sT0}, s{sQ0}, 10')
    c.op(f's_add_u32 s{sT0}, s{sT0}, {OB}')
    c.op(f'v_lshl_add_u32 v{vB2}, {L}, 4, s{sT0}')
    for t in range(3):
        if cfg.opair:
            if t == 1: continue
            tile_m(c, t)
        else:
            c.op(f's_mul_i32 s{sT0}, s{sDG}, 3'); c.op(f's_add_u32 s{sT0}, s{sT0}, {t}')
        if cfg.direct:
            c.op(f's_lshl_b32 s{sT1}, s{sT0}, 1'); c.op(f's_and_b32 s{sT1}, s{sT1}, 0x1c'); c.op(f's_lshr_b32 s{sT1}, 0x352140, s{sT1}'); c.op(f's_and_b32 s{sT1}, s{sT1}, 15')
            if t == 0:
                c.op(f's_mul_i32 s{sT2}, s{sT1}, 9216')
                c.op(f'v_add_u32 v{vOW[1]}, s{sT2}, v{vPA}')
            c.op(f's_and_b32 s{sT0}, s{sT0}, 1'); c.op(f's_lshl_b32 s{sT1}, s{sT1}, 1'); c.op(f's_add_u32 s{sT0}, s{sT0}, s{sT1}')
        c.op(f's_lshr_b32 s{sT1}, s{sT0}, 2'); c.op(f's_mul_i32 s{sT1}, s{sT1}, 20480')
        c.op(f's_bfe_u32 s{sT2}, s{sT0}, 0x10001'); c.op(f's_mul_i32 s{sT2}, s{sT2}, 9216'); c.op(f's_add_u32 s{sT1}, s{sT1}, s{sT2}')
        c.op(f's_and_b32 s{sT0}, s{sT0}, 1'); c.op(f's_lshl_b32 s{sT0}, s{sT0}, 3')
        c.op(f's_add_u32 s{sT0}, s{sT0}, s{sT1}'); c.op(f's_add_u32 s{sT0}, s{sT0}, {OB}')
        c.op(f'v_add_u32 v{vOW[t]}, s{sT0}, v{vPA}')
    c.op(f's_lshl_b32 s{sT0}, s{sB}, 3'); c.op(f's_add_u32 s{sT0}, s{sT0}, s{sX}'); c.op(f's_lshl_b32 s{sT0}, s{sT0}, 7'); c.op(f's_add_u32 s{sT0}, s{sT0}, {FLAG_OFF + 4096}')
    c.op(f's_add_u32 s{sF1}, s12, s{sT0}'); c.op(f's_addc_u32 s{sF1+1}, s13, 0')
    c.op(f's_lshl_b32 s{sT0}, s{sLOC}, 7'); c.op(f's_add_u32 s{sT0}, s{sT0}, {FLAG_OFF + 16384}')
    c.op(f's_add_u32 s{sF2}, s12, s{sT0}'); c.op(f's_addc_u32 s{sF2+1}, s13, 0')
    c.op(f's_mul_i32 s{sT0}, s{sLOC}, {8 * PART2}'); c.op(f's_add_u32 s{sT0}, s{sT0}, {WS_PART}')
    srd(c, SPR, 12, 13, f's{sT0}', 8 * PART2)
    c.op(f's_mul_i32 s{sT1}, s{sX}, {PART2}'); c.op(f's_add_u32 s{sT0}, s{sT0}, s{sT1}')
    srd(c, SP, 12, 13, f's{sT0}', PART2)
    srd(c, SOUT, 54, 55, None, 1474560)
    out = []; i = 0; ops = c.ops
    while i < len(ops):
        if i + 1 < len(ops) and (ops[i + 1].startswith('s_addc') or ops[i + 1].startswith('s_cselect')):
            a, b = ops[i], ops[i + 1]
            out.append(lambda a=a, b=b: (EM[0].op(a), EM[0].op(b))); i += 2
        else:
            out.append(ops[i]); i += 1
    return out
EM = [None]

def tail_dma(em, s, orole=False):
    ops = []
    sc = ' sc1' if (orole and cfg.sc_ol) else ''
    for j in range(4 if (cfg.nopad and orole and em.tv == 3) else 5):
        def f(j=j):
            em.op(f's_add_u32 m0, s{sM0T}, {((s % 3) * 20480 if orole else wslot(s)) + j * 1024}')
            if j == 0:
                if cfg.direct:
                    peer, ch = (0, s) if s < 3 else (1 + (s - 3) % 3, (s - 3) // 3)
                    em.op(f's_add_u32 s{sOFF}, s{sCH + ch}, s{sHB + peer}')
                elif cfg.chunk and s >= 3:
                    ch = (s - 3) // 3
                    if ch == 0: em.op(f's_mov_b32 s{sOFF}, s{sHB + 1 + (s - 3) % 3}')
                    else:
                        em.op(f's_lshl_b32 s{sOFF}, s{sSTR}, {ch - 1}')
                        em.op(f's_add_u32 s{sOFF}, s{sOFF}, s{sHB + 1 + (s - 3) % 3}')
                elif s % 3 == 0: em.op(f's_mov_b32 s{sOFF}, s{sHB + s // 3}')
                else: em.op(f's_add_u32 s{sOFF}, s{sOFF}, s{sSTR}')
            em.op(f'buffer_load_dwordx4 v{vOFFS[j]}, {sr(SD,4)}, s{sOFF} offen{sc} lds', tag=f'T{s}')
        ops.append(f)
    return ops

def flag_store(em, base, idx_s, lab, wave, off=0):
    t0, t1 = 60, 61
    em.op(f's_cmp_eq_u32 s{sW}, {wave}')
    em.op(f's_cbranch_scc0 {lab}')
    em.begin_opt()
    em.op(f's_lshl_b32 s{sT0}, s{idx_s}, 2')
    em.op(f'v_mov_b32 v{t0}, s{sT0}')
    em.op(f'v_mov_b32 v{t1}, s{sTAG}')
    em.op('s_mov_b64 exec, 1')
    em.op(f'global_store_dword v{t0}, v{t1}, s[{base}:{base+1}] offset:{off} sc1')
    em.op('s_mov_b64 exec, -1')
    em.end_opt()
    em.label(lab)

vPL0, vPL1 = 62, 63
def poll(em, base, mask, lab, off=0, keep=False):
    em.op(f'v_and_b32 v{vPL0}, {mask}, v{vLANE}')
    em.op(f'v_lshlrev_b32 v{vPL0}, 2, v{vPL0}')
    em.op(f's_mov_b32 s{sCNT}, 0x20000')
    if not keep: em.wait_vm0()
    em.label(lab)
    em.op(f'global_load_dword v{vPL1}, v{vPL0}, s[{base}:{base+1}] offset:{off} sc1')
    em.op(f's_sub_u32 s{sCNT}, s{sCNT}, 1')
    em.op(f's_cbranch_scc1 {lab}_done')
    em.wait_vm0()
    em.op(f'v_cmp_ne_u32 vcc, s{sTAG}, v{vPL1}')
    em.op('s_nop 4')
    em.op(f's_cbranch_vccz {lab}_done')
    em.op('s_sleep 1')
    em.op(f's_branch {lab}')
    em.label(f'{lab}_done')
    em.wait_vm0()

def tail(em, tv):
    nt, nq = [(3, 5), (3, 4), (2, 4), (2, 5)][tv]
    orole = tv >= 2
    em.tv = tv
    L = f'v{vLANE}'
    rf = cfg.rfrac / 100
    sc = ' sc1' if cfg.sc else ''
    ACC2 = 116; AF = [76, 88]; BF = [16, 36]; CO = 176
    t0, t1, t2, t3 = 56, 57, 58, 59
    sDONE = sT3
    em.op(f'v_lshlrev_b32 v{t0}, 4, v0')
    em.op(f'v_add_u32 v{t1}, {OB}, v{t0}')
    npc = 3 if tv == 0 else 2
    k = 0; sts = []
    for c in ((2,) if cfg.direct else range(3)):
        for i in range(npc):
            em.op(f'ds_read_b128 {vr(CO + 4*k)}, v{t1} offset:{c * 20480 + i * 8192}')
            sts.append((CO + 4*k, c * 18432 + i * 8192)); k += 1
    def reads(s, step, st_):
        ops = []
        for t in range(nt):
            ops.append(f'ds_read_b64_tr_b16 {vr(AF[st_] + 4*t, 2)}, v{vA2[t]} offset:{wslot(s) + step * 10240}')
            ops.append(f'ds_read_b64_tr_b16 {vr(AF[st_] + 4*t + 2, 2)}, v{vA2[t]} offset:{wslot(s) + step * 10240 + 5120}')
        xs = [f'ds_read_b128 {vr(BF[st_] + 4*j)}, v{vB2} offset:{(s % 3) * 20480 + step * 9216 + j * 1024}' for j in range(nq)]
        return ops[0:2] + xs[0:1] + ops[2:] + xs[1:]
    def acc(t, j): return ACC2 + 4 * (j * nt + t)
    def mf(st_, first):
        return [mfma(acc(t, j), AF[st_] + 4*t, BF[st_] + 4*j, None if first else acc(t, j)) for j in range(nq) for t in range(nt)]
    for r, off in sts:
        em.op(f's_mov_b32 s{sT0}, {off}')
        em.op(f'buffer_store_dwordx4 {vr(r)}, v{t0}, {sr(SO,4)}, s{sT0} offen' + ['', ' sc1', ' nt', ' sc0'][cfg.sc_o], tag='CO0' if off < 18432 else 'CO1')
    for o in reads(0, 0, 0): em.op(o)
    em.op(f'v_lshlrev_b32 v{t1}, 4, {L}')
    em.op(f's_and_b32 s{sT1}, s{sW}, 1')
    em.op(f's_add_u32 s{sT2}, s{sT1}, {2 if orole else 0}'); em.op(f's_mul_i32 s{sT2}, s{sT2}, 9'); em.op(f's_add_u32 s{sT2}, s{sT2}, s{sQ0}'); em.op(f's_lshl_b32 s{sT2}, s{sT2}, 10')
    em.op(f'v_add_u32 v{t2}, s{sT2}, v{t1}')
    em.op(f's_mul_i32 s{sT1}, s{sT1}, 5120'); em.op(f's_add_u32 s{sT1}, s{sT1}, {(36 + (3 if tv == 1 else 0)) * 1024}')
    em.op(f'v_add_u32 v{t3}, s{sT1}, v{t1}')
    def pack(a, b):
        o = [f'v_cvt_pk_bf16_f32 v{a}, v{a}, v{a+1}', f'v_cvt_pk_bf16_f32 v{a+1}, v{a+2}, v{a+3}']
        if b is not None: o += [f'v_cvt_pk_bf16_f32 v{a+2}, v{b}, v{b+1}', f'v_cvt_pk_bf16_f32 v{a+3}, v{b+2}, v{b+3}']
        return o
    def st(a, va, off):
        def f():
            em.op(f's_mov_b32 s{sT0}, {off}')
            em.op(f'buffer_store_dwordx4 {vr(a)}, v{va}, {sr(SP,4)}, s{sT0} offen{sc}')
        return f
    carry = []
    for s in range(12):
        if s == 1 and orole and cfg.epoll:
            em.op(f'global_load_dword v{vPL1}, v{vPL0}, s[{sF1}:{sF1+1}] sc1')
        if cfg.onew and s > 0: em.wait_lgkm0()
        interleave(em, mf(0, s == 0), ([] if cfg.x_tno & 4 and 5 < s <= 8 else reads(s, 1, 1), 0, rf), (carry, 0.05, 0.95))
        if s == 1 and orole and cfg.epoll:
            em.op(f'v_cmp_ne_u32 vcc, s{sTAG}, v{vPL1}')
            em.op('s_nop 4')
            em.op(f's_cbranch_vccnz L_np{tv}')
            em.begin_opt()
            for f in tail_dma(em, 3, True): f()
            em.op(f's_mov_b32 s{sDONE}, 1')
            em.end_opt()
            em.label(f'L_np{tv}')
        carry = []
        if s < 11:
            if s == 0 and cfg.chunk: em.wait_vm_tag('CO0', lgkm0=True)
            elif s == 0: em.wait_vm0(); em.wait_lgkm0()
            elif s == cfg.chunk and cfg.chunk:
                em.wait_vm_tag('CO1'); em.wait_vm_tag(f'T{s+1}', lgkm0=True)
            else: em.wait_vm_tag(f'T{s+1}', lgkm0=True)
            em.barrier()
            em.st.stamp(f'T{s}')
        if cfg.tloop and s == 8:
            em.op('s_sub_u32 s79, s79, 1'); em.op('s_cmp_lg_u32 s79, 0'); em.op(f's_cbranch_scc1 L_tl{tv}')
            em.st.stamp('LBend')
        if cfg.tloop and s == 5:
            em.st.stamp('LB0')
            em.op('s_mov_b32 s79, 16'); em.label(f'L_tl{tv}')
        if s == 0 and tv == 2: flag_store(em, sF1, sJ, 'L_f1', 4)
        if cfg.chunk and s == cfg.chunk and tv == 3: flag_store(em, sF1, sJ, 'L_f1b', 6, 16)
        if cfg.chunk and s == (5 if cfg.direct else 2) and orole: em.op(f'global_load_dword v{vPL1}, v{vPL0}, s[{sF1}:{sF1+1}] offset:16 sc1')
        if cfg.chunk and s == (6 if cfg.direct else 3) and orole:
            em.op(f'v_cmp_ne_u32 vcc, s{sTAG}, v{vPL1}')
            em.op('s_nop 4')
            em.op(f's_cbranch_vccz L_p1c_{tv}')
            keep = em.save()[2]
            em.begin_opt()
            poll(em, sF1, 3, f'L_p1b_{tv}', 16, keep=True)
            em.end_opt()
            em.vm = keep
            em.label(f'L_p1c_{tv}')
        fill = []; dm = []
        if s < 11 and not (cfg.x_tno & 4 and 5 <= s < 8): fill += reads(s + 1, 0, 0)
        if s == 0 and orole and cfg.epoll:
            em.op(f's_mov_b32 s{sDONE}, 0')
            em.op(f'v_and_b32 v{vPL0}, 3, {L}'); em.op(f'v_lshlrev_b32 v{vPL0}, 2, v{vPL0}')
        if s + 3 <= 11:
            if not orole or s >= 2:
                dm = tail_dma(em, s + 3, orole); dm, carry = dm[:3], dm[3:]
                if 5 <= s < 8 and cfg.x_tno >> int(orole) & 1: dm = []; carry = []
            elif s == 1:
                if cfg.epoll:
                    em.op(f's_cmp_eq_u32 s{sDONE}, 1')
                    em.op(f's_cbranch_scc1 L_ep{tv}')
                    vm_before = em.save()[2]
                    em.begin_opt()
                poll(em, sF1, 3, f'L_p1_{tv}')
                for f in tail_dma(em, 3, True): f()
                if cfg.epoll:
                    em.end_opt()
                    em.label(f'L_ep{tv}')
                dm = tail_dma(em, 4, True)
        ins = []
        n = nt * nq
        if s == 11:
            groups = []
            for j in range(nq):
                groups.append((j * nt + 1, pack(acc(0, j), acc(1, j)) + [st(acc(0, j), t2, j * 1024)]))
                if nt == 3 and (j % 2 == 1 or j == nq - 1):
                    j0 = j - (j % 2)
                    groups.append((j * nt + 2, pack(acc(2, j0), acc(2, j) if j != j0 else None) + [st(acc(2, j0), t3, (j0 // 2) * 1024)]))
            lag = 4
            ins = [(g, (p + lag + 0.5) / n, (p + lag + 0.5) / n) for p, g in groups if p + lag < n]
            restg = [g for p, g in groups if p + lag >= n]
        interleave(em, mf(1, False), (dm, 0.05, 0.95), (fill, 0, rf), *ins)
    for g in restg:
        for o in g: emit(em, o)
    em.st.stamp('TP')
    sU, sDL = sT3, sT4
    if tv < 3:
        em.op(f's_lshl_b32 s{sU}, s{sW}, 3'); em.op(f's_add_u32 s{sU}, s{sU}, s{sX}')
        em.op(f's_lshl_b32 s{sT0}, s{sU}, 10')
        em.op(f'v_add_u32 v{t2}, s{sT0}, v{t1}')
        em.op(f's_mul_i32 s{sT0}, s{sU}, 57'); em.op(f's_lshr_b32 s{sT0}, s{sT0}, 9')
        em.op(f's_mul_i32 s{sT1}, s{sT0}, 9'); em.op(f's_sub_u32 s{sT1}, s{sU}, s{sT1}')
        em.op(f's_lshl_b32 s{sT0}, s{sT0}, 2'); em.op(f's_lshr_b32 s{sT0}, 0x8630, s{sT0}'); em.op(f's_and_b32 s{sT0}, s{sT0}, 15')
        em.op(f's_mov_b32 s{sDL}, 32')
        em.op(f's_cmp_lt_u32 s{sU}, 36')
        em.op(f's_cbranch_scc1 L_dec{tv}')
        em.begin_opt()
        em.op(f's_cmp_ge_u32 s{sU}, 41')
        em.op(f's_cselect_b32 s{sT0}, 5, 2')
        em.op(f's_cselect_b32 s{sT1}, 41, 36')
        em.op(f's_sub_u32 s{sT1}, s{sU}, s{sT1}')
        em.op(f's_cmp_eq_u32 s{sT1}, 2')
        em.op(f's_mov_b32 s{sDL}, 20480')
        em.op(f's_cselect_b32 s{sDL}, 0x40000000, s{sDL}')
        em.op(f's_lshl_b32 s{sT1}, s{sT1}, 2'); em.op(f's_lshr_b32 s{sT1}, 0x75420, s{sT1}'); em.op(f's_and_b32 s{sT1}, s{sT1}, 15')
        em.end_opt()
        em.label(f'L_dec{tv}')
        em.op(f's_lshl_b32 s{sT1}, s{sT1}, 4'); em.op(f's_mul_i32 s{sT2}, s{sB}, 144'); em.op(f's_add_u32 s{sT1}, s{sT1}, s{sT2}'); em.op(f's_mul_i32 s{sT1}, s{sT1}, 1280')
        em.op(f's_lshl_b32 s{sT0}, s{sT0}, 5'); em.op(f's_add_u32 s{sT1}, s{sT1}, s{sT0}')
        em.op(f's_mul_i32 s{sT0}, s{sJ}, 320'); em.op(f's_add_u32 s{sT1}, s{sT1}, s{sT0}')
        em.op(f'v_and_b32 v{t3}, 15, {L}'); em.op(f'v_mul_u32_u24 v{t3}, 1280, v{t3}')
        em.op(f'v_lshrrev_b32 v{t0}, 4, {L}'); em.op(f'v_lshl_add_u32 v{t3}, v{t0}, 3, v{t3}')
        em.op(f'v_add_u32 v{t3}, s{sT1}, v{t3}')
    em.wait_vm0(); em.barrier()
    em.st.stamp('TW')
    if tv == 3:
        flag_store(em, sF2, sX, 'L_f2', 7)
    else:
        if tv == 2:
            em.op(f's_cmp_ge_u32 s{sU}, 46')
            em.op(f's_cbranch_scc1 L_fin2')
        poll(em, sF2, 7, f'L_p2_{tv}')
        em.st.stamp('TF')
        for x in range(8):
            em.op(f's_mov_b32 s{sT0}, {x * PART2}')
            em.op(f'buffer_load_dwordx4 {vr(76 + 4*x)}, v{t2}, {sr(SPR,4)}, s{sT0} offen{sc}')
        if tv == 0:
            em.op(f's_or_b32 s{sT0}, s{sH}, s{sW}')
            em.op(f's_cmp_eq_u32 s{sT0}, 0')
            em.op('s_cbranch_scc0 L_nw')
            em.begin_opt()
            em.op(f's_lshl_b32 s{sT0}, s{sB}, 8'); em.op(f's_add_u32 s{sT0}, s{sT0}, {FLAG_OFF}')
            em.op(f'v_mov_b32 v60, s{sT0}'); em.op(f'v_mov_b32 v61, s{sTAG}')
            em.op('s_mov_b64 exec, 1')
            em.op('global_store_dword v60, v61, s[12:13]' + (' sc1' if cfg.osc in (1, 3) else ''))
            em.op('s_mov_b64 exec, -1')
            em.end_opt()
            em.label('L_nw')
        A = 108
        for x in range(8):
            for d in range(4):
                r = 76 + 4*x + d
                if x == 0:
                    em.op(f'v_lshlrev_b32 v{A+2*d}, 16, v{r}'); em.op(f'v_and_b32 v{A+2*d+1}, 0xffff0000, v{r}')
                else:
                    tp = A + 8 + 2 * (d & 1)
                    em.op(f'v_lshlrev_b32 v{tp}, 16, v{r}'); em.op(f'v_and_b32 v{tp+1}, 0xffff0000, v{r}')
                    em.op(f'v_pk_add_f32 {vr(A+2*d,2)}, {vr(A+2*d,2)}, {vr(tp,2)}')
        for d in range(4): em.op(f'v_cvt_pk_bf16_f32 v{A+d}, v{A+2*d}, v{A+2*d+1}')
        em.op(f'buffer_store_dwordx2 {vr(A,2)}, v{t3}, {sr(SOUT,4)}, 0 offen' + ['', ' sc1', ' nt', ' sc0 sc1'][cfg.osc])
        em.op(f'buffer_store_dwordx2 {vr(A+2,2)}, v{t3}, {sr(SOUT,4)}, s{sDL} offen' + ['', ' sc1', ' nt', ' sc0 sc1'][cfg.osc])
        if tv == 2: em.label('L_fin2')
    if cfg.diag: em.wait_vm0()
    em.st.flush(12, 0, sW, 244)
    em.op('s_endpgm')

def kernel_header(name):
    return f'.globl {name}\n.p2align 8\n.type {name},@function\n{name}:\n'
def kernel_desc(name, vgpr, sgpr=102):
    return f'''.amdhsa_kernel {name}
  .amdhsa_next_free_vgpr {vgpr}
  .amdhsa_next_free_sgpr {sgpr}
  .amdhsa_accum_offset {(vgpr + 3) // 4 * 4}
  .amdhsa_group_segment_fixed_size 0
  .amdhsa_kernarg_size 64
  .amdhsa_user_sgpr_count 2
  .amdhsa_user_sgpr_kernarg_segment_ptr 1
  .amdhsa_system_sgpr_workgroup_id_x 1
.end_amdhsa_kernel
'''

def gen_k1():
    em = Em(); EM[0] = em
    k1_prologue(em)
    st0 = em.save()
    em.label('k1_body_start')
    for qh in range(2):
        sts = []
        for typ in ((1, 0) if cfg.n0 else (0,)):
            if qh or typ == 0 and cfg.n0: em.label(f'L_qp{qh}{typ}')
            em.restore(st0)
            em.typ = typ
            k1_qproj(em, qh, typ)
            k1_qk(em, qh)
            sts.append(em.save())
            if typ == 1: em.op(f's_branch L_sm{qh}')
        if len(sts) == 2:
            t = [[e[0] for e in s[2]] for s in sts]
            lo, hi = sorted(range(2), key=lambda i: len(t[i]))
            assert t[hi][len(t[hi]) - len(t[lo]):] == t[lo], t
            em.restore(sts[hi]); em.hist = []
            em.label(f'L_sm{qh}')
        k1_sm0(em, qh)
        k1_pv(em, qh)
    em.label('k1_body_end')
    em.label('L_k1_exit')
    em.op('s_endpgm')
    return em

def main():
    ref = open('cdna_kernels/' + NAME + '.s.ref').read().split('\n')
    head = [l for l in ref[:9]]
    k1 = gen_k1()
    KN = NAME + '_kernel'
    out = '\n'.join(head) + '\n'
    out += f'; @launch grid=(256,1,1) block=(512,1,1) lds={LDS1}\n'
    out += '.amdgcn_target "amdgcn-amd-amdhsa--gfx950"\n.text\n'
    out += kernel_header(KN) + k1.text()
    out += '.section .rodata,"a"\n.p2align 6\n' + kernel_desc(KN, 256)
    open(sys.argv[1], 'w').write(out)
    print('k1 instrs', k1.count, 'nops', k1.nops, file=sys.stderr)
main()
```

```python
import sys, struct, math
from em import Em, interleave, emit

NAME = 'standalone__gqa_block_cached__near_ridge'
def fbits(x): return struct.unpack('<I', struct.pack('<f', x))[0]

class Cfg:
    nt_kv = True
    nt_w = False
    nt_k2 = False
    two_types = True
    pre = True
    code_pre = True
    diag = False
    pk = True
    rfrac = 60
    prio = 0
    x_noexp = 0
    x_nopw = 0
    efrac = 95
    loopb = -1
    st = 0
    dbg = 0
    n0 = 1
    inpv0 = 0
    inpv1 = 0
    pfa = 5
    kq = 12
    kq0 = 7
    wont = 0
    vrf = 60
    x_ren = 0
    vrole = 1
    vfirst = 0
    vold = 0
    vh0 = 12
    wsoff = 0
    cearly = 1
    osc = 0
    sete = 1
    woe = 1
    vby = 1
    vbyn = 12
    emax = 0
    wosm = 0
    qlate1 = 1
    g2m0 = 60
    g2m1 = 60
    qfm = 1
    tloop = 0
    x_tno = 0
    pf0x = 0
    nu = 6
    pfs = 0
    nopad = 1
    pfxp = 10
    pfw = 10
    vpf = 0
    vpq = 0
    vpq_in = 4
    vpnt = 1
    spin = 0
    spst = -1
    spty = -1
    direct = 1
    chunk = 1
    onew = 1
    qlate = 0
    drole = 0
    in0 = 0
    in1 = 0
    epoll = 1
    pfx = 10
    opair = 1
    tsq = 1
    g2e = 0
    wo0 = 1
    pfnt = 0
    pfown = 10
    pfall = 1
    nt_k = 1
    nt_v = 1
    eager = 3
    eagerv = 0
    qwi = 1
    g2lo = 0
    g2hi = 30
    valo = 0
    vahi = 60
    pf1 = 10
    v0e = 0
    kqb = 0
    kqb0 = 7
    vb = 0
    vreg = 0
    nvy = 4
    sc_o = 1
    sc_ol = 1
    rt = 0
    qloop = 0
    x_qnodma = 0
    x_qnord = 0
    dlo = 10
    dhi = 95
    dsplit = 3
    x_delay = 0
    wopre = 1
    sc = 1
    x_nobar = 0
    x_nord = 0
    x_nodma = 0
cfg = Cfg()
cfg.pvst = (3,7); cfg.qst = (0,8,)
if 'pvall=1' in sys.argv: sys.argv.remove('pvall=1'); cfg.pvst = (0,1,2,3,4,5,6,7); cfg.qst = (); cfg.fewst = True
else: cfg.fewst = False
for a in sys.argv[2:]:
    k, v = a.split('='); setattr(cfg, k, type(getattr(cfg, k))(int(v)))
STSETS = {0: 'S0 BQ PV0 BO T2 TW', 1: 'ka pi si S0 B0 B8 BQ K0 K1 QKend BM exp0 PV0', 2: 'PV0 PB0 PB1 PB2 PB3 PB4 PB5 PB6', 9: 'BM exp0 PV0 PB3 PB6 PB7 BO T0', 3: 'BO T0 T1 T2 TW TF', 4: 'K0 K1 QKend BM exp0 PV0 PB3 PB7 BO T0', 8: '', 5: 'S0 LB0 LBend BQ', 6: 'S0 B0 B4 B7 B9 BQ', 10: 'BQ K0 K1 QKend BM PV0', 11: 'PV0 PB1 PB3 PB5 PB7 BO', 7: 'BO T0 T1 T2 T3 T4 T6 T8 T10 TP'}
cfg.stlist = ['rt0', 'start'] + STSETS[cfg.st].split()[:6] + ['end', 'rt_end']
cfg.pvst = range(8); cfg.qst = range(10)
cfg.types = bool(cfg.n0)

def vr(b, n=4): return f'v[{b}:{b + n - 1}]' if n > 1 else f'v{b}'
def sr(b, n): return f's[{b}:{b + n - 1}]'
MF = 'v_mfma_f32_16x16x32_bf16'
def mfma(d, a, b, c=None):
    return f'{MF} {vr(d)}, {vr(a)}, {vr(b)}, ' + ('0' if c is None else vr(c))

FLAG_OFF = 28 << 20
PART2 = 47104
O_HEAD = 55296
WS_PART = 16 << 20
PART_TILE = 90 * 1024

def srd(em, d, base_lo, base_hi, off_sgpr, size):
    if off_sgpr is None:
        em.op(f's_mov_b32 s{d}, s{base_lo}'); em.op(f's_mov_b32 s{d+1}, s{base_hi}')
    else:
        em.op(f's_add_u32 s{d}, s{base_lo}, {off_sgpr}'); em.op(f's_addc_u32 s{d+1}, s{base_hi}, 0')
    em.op(f's_mov_b32 s{d+2}, {size}')
    em.op(f's_mov_b32 s{d+3}, 0x20000')

_lab = [0]
DIAG_OFF = 64 << 20
class Stamps:
    def __init__(self, em):
        self.em = em; self.n = 0; self.names = []
        if cfg.diag:
            for i in range(len(cfg.stlist)): em.op(f's_mov_b32 s{60 + 2*i}, 0')
    def stamp(self, name, real=False):
        if cfg.spin:
            L = ['S0', 'BQ', 'BM', 'PV0', 'BO', 'T2', 'TW', 'TF']
            if name == 'rt0' or (cfg.spst >= 0 and name == L[cfg.spst]):
                r = 76 if name == 'rt0' else 78
                self.em.wait_lgkm0()
                self.em.op(f's_memrealtime s[{r}:{r+1}]'); self.em.op('s_waitcnt lgkmcnt(0)')
                if name == 'rt0': self.em.op('s_mov_b32 s78, s76')
            return
        if not cfg.diag or name not in cfg.stlist: return
        em = self.em; i = cfg.stlist.index(name)
        em.wait_lgkm0()
        em.op(('s_memrealtime' if (real or cfg.rt) else 's_memtime') + f' s[{60 + 2*i}:{61 + 2*i}]')
        em.op('s_waitcnt lgkmcnt(0)')
    def flush(self, ws_lo, kidx, wave_s, tv):
        if cfg.spin:
            em = self.em; _lab[0] += 1
            if cfg.spty >= 0:
                em.op(f's_cmp_eq_u32 s39, {cfg.spty}'); em.op('s_cselect_b32 s78, s78, s76')
            em.op('s_sub_u32 s78, s78, s76'); em.op(f's_add_u32 s78, s78, {cfg.spin}')
            em.label(f'L_sp{_lab[0]}')
            em.op('s_sleep 2')
            em.op('s_memrealtime s[74:75]'); em.op('s_waitcnt lgkmcnt(0)')
            em.op('s_sub_u32 s74, s74, s76'); em.op('s_cmp_lt_u32 s74, s78'); em.op(f's_cbranch_scc1 L_sp{_lab[0]}')
            return
        if not cfg.diag: return
        em = self.em
        self.stamp('end'); self.stamp('rt_end', real=True)
        if cfg.dbg:
            _lab[0] += 1
            em.op('s_load_dwordx2 s[56:57], s[0:1], 48')
            em.op(f's_and_b32 s58, s2, 0xdf'); em.op(f's_or_b32 s58, s58, s{wave_s}'); em.op('s_cmp_eq_u32 s58, 0')
            em.op('s_waitcnt lgkmcnt(0)')
            em.op(f's_cbranch_scc0 L_dbg{_lab[0]}')
            em.op(f'v_mov_b32 v{tv}, s2')
            for k, i in enumerate([2, 3, 4, 13, 6, 9, 11, 12]):
                em.op(f's_sub_u32 s58, s{60 + 2*i}, s{60 if i == 13 else 62}')
                em.op(f'v_mov_b32 v{tv+1}, s58')
                em.op(f'global_store_dword v{tv}, v{tv+1}, s[56:57] offset:{4*k}')
            em.label(f'L_dbg{_lab[0]}')
            return
        em.op(f's_lshl_b32 s56, s2, 3'); em.op(f's_add_u32 s56, s56, s{wave_s}'); em.op('s_lshl_b32 s56, s56, 7')
        em.op(f's_add_u32 s56, s56, {DIAG_OFF + (kidx << 20)}')
        em.op(f's_add_u32 s56, s{ws_lo}, s56'); em.op(f's_addc_u32 s57, s{ws_lo+1}, 0')
        em.op(f'v_mov_b32 v{tv}, 0')
        for i in range(len(cfg.stlist)):
            em.op(f'v_mov_b32 v{tv+1}, s{60 + 2*i}')
            em.op(f'global_store_dword v{tv}, v{tv+1}, s[56:57] offset:{4*i}')
        print('stamps', kidx, cfg.stlist, file=sys.stderr)

SX, SWQ, SK, SV, SO = 16, 20, 24, 28, 32
sW, sW3072, sW1024, sTYPE, sOFF, sT0, sT1, sT2, sC, sB, sH, sJ, sLOC, sX = 36, 37, 38, 39, 40, 41, 42, 43, 44, 52, 46, 47, 48, 53
vLANE, vXO, vWO, vK0, vK1, vVO = 1, 2, 3, 4, 5, 6
vRA = [7, 8]
vRB = [9, 10, 11]
vRC = [12, 13, 14]
vT = 15
vOW = [8, 254, 255]
vVW, vVW2 = 7, 8
vPA, vPW, vMS = 240, 242, 243
vPW2 = 241
TMP = list(range(244, 256))
STG = 43008
PBASE, VBASE, MAXB, SUMB = 0, 55296, 153600, 155648
NV = 4
def vslot(s): return [3, 1, 2, 0][s % 4]
LDS1 = SUMB + 12 * 512
def kop(kt, ks): return 16 + 4 * (kt * 6 + ks)
def sreg(kt, qt):
    if kt < 2: return 116 + 4 * (qt * 2 + kt)
    i = qt * 2 + (kt - 2)
    return 16 + 4 * i if i < 12 else 188 + 4 * (i - 12)
ACC = 116
MC = 212
SUM = 221
SUMP = 222
QF = 224
OACC0 = [116 + 4*i for i in range(15)]
OACC1 = [120 + 8*i for i in range(9)] + [100, 80, 208]
PAF0 = [[176, 180, 184], [104, 108, 112]]
PAF1 = [[200, 192, 60], [104, 108, 112]]
PBF0 = [[64, 68, 72, 76, 80], [84, 88, 92, 96, 100]]
PBF1 = [[64, 68, 72, 76], [84, 88, 92, 96]]
INV0 = 212
NEXP1 = 4


sKB = 57
vKR = [250, 251]
vKR2 = [246, 247]
vVO3 = 252
def k_dma_ops(em, half):
    nt = ' nt' if cfg.nt_kv and cfg.nt_k else ''
    ops = []
    for c in range(3):
        for k in range(2):
            for p in range(2):
                def f(c=c, k=k, p=p):
                    em.op(f's_add_u32 m0, s{sKB}, {(k * 3 + c) * 2048 + p * 1024 - c * 128}')
                    em.op(f's_mov_b32 s{sOFF}, {(half * 2 + k) * 6144}')
                    em.op(f'buffer_load_dwordx4 v{vK1 if p else vK0}, {sr(SK,4)}, s{sOFF} offen offset:{c*128}{nt} lds', tag=f'K{half}_{c * 2 + k}')
                ops.append(f)
    return ops
def k_rd_ops(half, u):
    c, k = divmod(u, 2)
    if cfg.qfm:
        return [f'ds_read_b64 {vr(kop(half * 2 + k, 2 * c + e) + 2 * h, 2)}, v{(vKR + vKR2)[e + 2 * h]} offset:{(k * 3 + c) * 2048}' for e in range(2) for h in range(2)]
    return [f'ds_read_b128 {vr(kop(half * 2 + k, 2 * c + e))}, v{vKR[e]} offset:{(k * 3 + c) * 2048}' for e in range(2)]
def k_fetch(em, half, nxt, u0=0, u1=6):
    nr = 4 if cfg.qfm else 2
    if cfg.qfm:
        for e in range(2): em.op(f'v_xor_b32 v{vKR2[e]}, 32, v{vKR[e]}')
    for u in range(u0, u1):
        em.wait_vm_tag(f'K{half}_{u}')
        for o in k_rd_ops(half, u): em.op(o)
        if nxt and u > u0:
            em.waitcnt(lgkm=nr); em.lgkm = em.lgkm[-nr:]
            for f in nxt[2 * u - 2: 2 * u]: f()
    if nxt:
        em.wait_lgkm0()
        for f in nxt[2 * u1 - 2: 2 * u1]: f()
sKB2 = 50
vVO4 = 112
def va_ops(em, partner=False):
    nt = ' nt' if cfg.nt_kv and cfg.nt_v else ''
    ops = []
    for rg in range(4):
        for c in range(3):
            def f(c=c, rg=rg):
                em.op(f's_add_u32 m0, s{sKB2 if partner else sKB}, {rg * 3072 + c * 896}')
                em.op(f's_mov_b32 s{sOFF}, {rg * 3072 + (256 * 384 if partner else 0)}')
                em.op(f'buffer_load_dwordx4 v{vVO4 if partner else vVO3}, {sr(SV,4)}, s{sOFF} offen offset:{c*128}{nt} lds', tag='VB' if partner else 'VA')
            ops.append(f)
    return ops

def stage_dma_ops(em, s, qh):
    nt = ' nt' if cfg.nt_w else ''
    slot = (s % 3) * 18432
    ops = []
    for c in range(3):
        def f(c=c):
            em.op(f's_add_u32 m0, s{sW3072}, {VBASE + (s % 3) * 24576 + c * 896}')
            if c == 0: em.op(f's_mov_b32 s{sOFF2}, {s * 786432}')
            em.op(f'buffer_load_dwordx4 v{vWO}, {sr(SWQ,4)}, s{sOFF2} offen offset:{c*128}{nt} lds', tag=f'S{s}')
        ops.append(f)
    for j in range(2):
        def f(j=j):
            em.op(f's_add_u32 m0, s{sW1024}, {slot + j * 8192}')
            em.op(f's_mov_b32 s{sOFF}, {s * 128 + j * 81920}')
            em.op(f'buffer_load_dwordx4 v{vXO}, {sr(SX,4)}, s{sOFF} offen{nt} lds', tag=f'S{s}')
        ops.append(f)
    if qh == 1:
        def f():
            _lab[0] += 1
            lab = f'L_x{_lab[0]}'
            em.op(f's_cmp_lt_u32 s{sW}, 6')
            em.op(f's_cbranch_scc0 {lab}')
            em.begin_opt()
            em.op(f's_add_u32 m0, s{sW1024}, {slot + 12288}')
            em.op(f's_mov_b32 s{sOFF}, {s * 128 + 122880}')
            em.op(f'buffer_load_dwordx4 v{vXO}, {sr(SX,4)}, s{sOFF} offen{nt} lds', tag=f'S{s}')
            em.end_opt()
            em.label(lab)
        ops.insert(0, f)
    return ops

def v_dma_ops(em, s):
    nt = ' nt' if cfg.nt_kv and cfg.nt_v else ''
    ops = []
    for c in range(3):
        def f(c=c):
            em.op(f's_add_u32 m0, s{sW3072}, {VBASE + vslot(s) * 24576 + c * 896}')
            em.op(f's_mov_b32 s{sOFF}, {(128 * (s & 3) + 32 * (s >> 2)) * 384}')
            em.op(f'buffer_load_dwordx4 v{vVO}, {sr(SV,4)}, s{sOFF} offen offset:{c*128}{nt} lds', tag=f'V{s}')
        ops.append(f)
    return ops

sDG = 49
sPFS, sPFB = 45, 50
sOFF2 = 3
vPF = 241
def pf_ops():
    if not cfg.pre: return []
    nt = ' nt' if cfg.nt_w else ''
    return [f'global_load_dwordx4 {vr(112)}, v{vPF}, s[{sPFB}:{sPFB+1}]{nt}', f'v_add_u32 v{vPF}, s{sPFS}, v{vPF}']
sTAG, sSTR, sF1, sF2, sHB, sM0T, sQ0, sNH, sCNT = 88, 89, 90, 92, 94, 98, 99, 100, 101
VST = 64
def v_reg_ops(em):
    nt = ' nt' if cfg.nt_kv and cfg.nt_v else ''
    ops = []
    for s in range(4, 8):
        for c in range(3):
            def f(s=s, c=c):
                em.op(f's_mov_b32 s{sOFF}, {(128 * (s & 3) + 32 * (s >> 2)) * 384}')
                em.op(f'buffer_load_dwordx4 {vr(VST + 4 * ((s - 4) * 3 + c))}, v{vVO}, {sr(SV,4)}, s{sOFF} offen offset:{c*128}{nt}', tag=f'V{s}')
            ops.append(f)
    return ops
def v_put_ops(s):
    slot = vslot(s)
    return [f'ds_write_b128 v{vVW if slot < 2 else vVW2}, {vr(VST + 4 * ((s - 4) * 3 + c))} offset:{(slot % 2) * 24576 + c * 1024}' for c in range(3)]

vPF2 = 254
VTMP = [248, 249, 253]
def pf2_ops():
    nt = ' nt' if cfg.nt_w else ''
    return [f'global_load_dwordx4 {vr(112)}, v{vPF2}, s[{sPFB}:{sPFB+1}]{nt}', f'v_add_u32 v{vPF2}, s{sPFS}, v{vPF2}']

def v_pf_ops(em, blk_delta=0):
    nt = ' nt' if cfg.vpnt else ''
    ops = []
    for s in range(4, 8):
        for c in range(3):
            def f(s=s, c=c):
                em.op(f's_mov_b32 s{sOFF}, {(128 * (s & 3) + 32 * (s >> 2)) * 384 + blk_delta}')
                em.op(f's_mov_b32 m0, {MAXB + 640}')
                em.op(f'buffer_load_dwordx4 v{vVO}, {sr(SV,4)}, s{sOFF} offen offset:{c*128}{nt} lds', tag='VP')
            ops.append(f)
    return ops

def k1_prologue(em):
    em.op('s_cmp_ge_u32 s2, 256')
    em.op('s_cbranch_scc1 L_k1_exit')
    em.st = Stamps(em); em.st.stamp('rt0', real=True); em.st.stamp('start')
    em.op('s_load_dwordx8 s[4:11], s[0:1], 0')
    em.op('s_load_dwordx2 s[12:13], s[0:1], 56')
    em.op('s_load_dwordx2 s[14:15], s[0:1], 32')
    em.op('s_load_dwordx2 s[54:55], s[0:1], 40')
    em.op(f'v_and_b32 v{vLANE}, 63, v0')
    em.op(f'v_lshrrev_b32 v{vT}, 6, v0')
    em.op(f's_and_b32 s{sX}, s2, 7')
    em.op(f's_lshr_b32 s{sLOC}, s2, 3')
    em.op(f'v_readfirstlane_b32 s{sW}, v{vT}')
    t0, t1, t2, t3, t4, t5 = TMP[:6]
    L = f'v{vLANE}'
    em.op(f's_and_b32 s{sJ}, s{sLOC}, 3')
    em.op(f's_lshr_b32 s{sB}, s{sLOC}, 2')
    em.op(f's_lshl_b32 s{sH}, s{sX}, 2')
    em.op(f's_add_u32 s{sH}, s{sH}, s{sJ}')
    em.op(f's_and_b32 s{sTYPE}, s{sB}, 1')
    em.op(f's_lshl_b32 s{sT0}, s{sLOC}, 1'); em.op(f's_mul_i32 s{sT0}, s{sT0}, 12288'); em.op(f's_mul_i32 s{sT1}, s{sX}, 1536'); em.op(f's_add_u32 s{sT0}, s{sT0}, s{sT1}')
    em.op(f's_lshl_b32 s{sT1}, s{sW}, 9'); em.op(f's_add_u32 s{sT0}, s{sT0}, s{sT1}')
    em.op(f'v_lshrrev_b32 v{t3}, 5, {L}'); em.op(f'v_mul_u32_u24 v{t3}, 12288, v{t3}')
    em.op(f'v_and_b32 v{t4}, 31, {L}'); em.op(f'v_lshlrev_b32 v{t4}, 4, v{t4}')
    em.op(f'v_add3_u32 v{t5}, v{t3}, v{t4}, s{sT0}')
    em.op(f'v_lshrrev_b32 v{t0}, 3, {L}')
    em.op(f'v_and_b32 v{t1}, 7, {L}')
    em.op(f'v_lshrrev_b32 v{t2}, 4, {L}')
    em.op(f's_mul_i32 s{sT0}, s{sLOC}, 36'); em.op(f's_lshl_b32 s{sT2}, s{sW}, 3'); em.op(f's_add_u32 s{sT0}, s{sT0}, s{sT2}'); em.op(f's_sub_u32 s{sT0}, s{sT0}, 24')
    em.op(f'v_add_u32 v{t3}, s{sT0}, v{t0}')
    em.op(f's_cmp_lt_u32 s{sW}, 3')
    em.op(f's_cselect_b64 vcc, -1, 0')
    em.op(f's_movk_i32 s{sPFS}, 128')
    em.op(f's_cselect_b32 s{sPFS}, 786432, s{sPFS}')
    for dst, dr, dw in ((vPF, 0, 0), (vPF2, 144, 98304) if not cfg.pfall else (vPF2, -144 & 0xffffffff, -98304 & 0xffffffff)):
        if dst == vPF2 and cfg.pf1 >= 10 and not cfg.pfall: continue
        if dst == vPF2 and cfg.pf0x:
            em.op(f's_mul_i32 s{sT1}, s{sTYPE}, {-288 & 0xffffffff}'); em.op(f's_add_u32 s{sT1}, s{sT1}, 144')
            em.op(f'v_add_u32 v{t4}, s{sT1}, v{t3}'); em.op(f'v_min_u32 v{t4}, 1151, v{t4}')
            em.op(f'v_mul_u32_u24 v{t4}, 1280, v{t4}')
            em.op(f'v_lshl_add_u32 v{t4}, v{t1}, 4, v{t4}')
            em.op(f's_mul_i32 s{sT1}, s{sTYPE}, {-196608 & 0xffffffff}'); em.op(f's_add_u32 s{sT1}, s{sT1}, 98304')
            em.op(f'v_add_u32 v{dst}, s{sT1}, v{t5}')
            em.op(f'v_cndmask_b32 v{dst}, v{t4}, v{dst}, vcc')
            em.op(f's_xor_b32 s{sT1}, s{sTYPE}, 1'); em.op(f's_mul_i32 s{sT1}, s{sT1}, {cfg.pfx}'); em.op(f's_mul_i32 s{sT1}, s{sT1}, s{sPFS}')
            em.op(f'v_add_u32 v{dst}, s{sT1}, v{dst}')
            continue
        em.op(f'v_add_u32 v{t4}, {dr}, v{t3}'); em.op(f'v_min_u32 v{t4}, 1151, v{t4}')
        em.op(f'v_mul_u32_u24 v{t4}, 1280, v{t4}')
        em.op(f'v_lshl_add_u32 v{t4}, v{t1}, 4, v{t4}')
        em.op(f'v_add_u32 v{dst}, {dw}, v{t5}')
        em.op(f'v_cndmask_b32 v{dst}, v{t4}, v{dst}, vcc')
    if cfg.pf1 < 10:
        em.op(f's_mul_i32 s{sT0}, s{sPFS}, {cfg.pf1}'); em.op(f'v_add_u32 v{vPF2}, s{sT0}, v{vPF2}')
    em.op(f's_and_b32 s{sDG}, s{sW}, 3')
    em.op(f's_mul_i32 s{sW3072}, s{sW}, 3072')
    em.op(f's_lshl_b32 s{sW1024}, s{sW}, 10')
    em.op(f's_and_b32 s{sT0}, s{sW}, 1')
    em.op(f's_lshl_b32 s{sT1}, s{sT0}, 2')
    em.op(f'v_add_u32 v{t3}, s{sT1}, v{t2}')
    em.op(f'v_xor_b32 v{t3}, v{t3}, v{t1}')
    em.op(f'v_add_u32 v{t4}, s{sT2}, v{t0}')
    em.op(f'v_mul_u32_u24 v{vXO}, 1280, v{t4}')
    em.op(f'v_lshl_add_u32 v{vXO}, v{t3}, 4, v{vXO}')
    em.op(f'v_and_b32 v{t3}, 1, v{t2}')
    em.op(f'v_lshl_add_u32 v{t3}, v{t3}, 1, s{sT1}')
    em.op(f'v_xor_b32 v{t3}, v{t3}, v{t1}')
    em.op(f'v_mul_u32_u24 v{vWO}, 12288, v{t4}')
    em.op(f'v_lshl_add_u32 v{vWO}, v{t3}, 4, v{vWO}')
    em.op(f's_lshl_b32 s{sT2}, s{sW}, 6')
    em.op(f'v_add_u32 v{t4}, s{sT2}, v{t0}')
    em.op(f'v_mul_u32_u24 v{t4}, 384, v{t4}')
    em.op(f'v_xor_b32 v{t3}, v{t2}, v{t1}')
    em.op(f'v_lshl_add_u32 v{vK0}, v{t3}, 4, v{t4}')
    em.op(f'v_xor_b32 v{vK1}, 64, v{vK0}')
    em.op(f'v_add_u32 v{vK1}, {8 * 384}, v{vK1}')
    em.op(f'v_lshlrev_b32 v{t3}, 1, v{t2}')
    em.op(f'v_xor_b32 v{t3}, v{t3}, v{t1}')
    em.op(f'v_lshl_add_u32 v{vVO3}, v{t3}, 4, v{t4}')
    em.op(f's_and_b32 s{sT1}, s{sW}, 6'); em.op(f's_lshr_b32 s{sKB}, 0x27, s{sT1}'); em.op(f's_and_b32 s{sKB}, s{sKB}, 3')
    em.op(f's_lshl_b32 s{sKB}, s{sKB}, 1'); em.op(f's_add_u32 s{sKB}, s{sKB}, s{sT0}'); em.op(f's_mul_i32 s{sKB}, s{sKB}, 12288'); em.op(f's_add_u32 s{sKB}, s{sKB}, {VBASE}')
    em.op(f'v_bfe_u32 v{t3}, {L}, 3, 1'); em.op(f'v_lshlrev_b32 v{t3}, 10, v{t3}')
    em.op(f'v_lshl_add_u32 v{t3}, v{t1}, 7, v{t3}')
    em.op(f'v_bfe_u32 v{t4}, {L}, 1, 3')
    em.op(f'v_xor_b32 v{t4}, v{t4}, v{t2}'); em.op(f'v_lshlrev_b32 v{vT}, 4, v{t4}')
    em.op(f'v_add_u32 v{vRA[0]}, v{t3}, v{vT}')
    if cfg.qfm:
        em.op(f'v_bfe_u32 v{t4}, {L}, 1, 3'); em.op(f'v_lshrrev_b32 v{t5}, 5, {L}'); em.op(f'v_xor_b32 v{t4}, v{t4}, v{t5}')
        em.op(f'v_lshl_add_u32 v{t3}, v{t4}, 4, v{t3}')
        em.op(f'v_and_b32 v{t4}, 1, v{t2}'); em.op(f'v_lshl_add_u32 v{t3}, v{t4}, 3, v{t3}')
        em.op(f'v_add_u32 v{vKR[0]}, s{sKB}, v{t3}')
    else:
        em.op(f'v_add_u32 v{vKR[0]}, s{sKB}, v{vRA[0]}')
    em.op(f'v_xor_b32 v{vKR[1]}, 64, v{vKR[0]}')
    em.op(f's_lshr_b32 s{sT1}, s{sW}, 2'); em.op(f's_lshl_b32 s{sT1}, s{sT1}, 6')
    em.op(f's_lshl_b32 s{sT0}, s{sDG}, 3'); em.op(f's_add_u32 s{sT0}, s{sT0}, s{sT1}')
    em.op(f'v_add_u32 v{t3}, s{sT0}, v{t0}')
    em.op(f'v_mul_u32_u24 v{vVO}, 384, v{t3}')
    em.op(f'v_lshlrev_b32 v{t3}, 1, v{t2}')
    em.op(f'v_xor_b32 v{t3}, v{t3}, v{t1}')
    em.op(f'v_lshl_add_u32 v{vVO}, v{t3}, 4, v{vVO}')
    em.op(f's_mul_i32 s{SX+3}, s{sB}, 184320')
    em.op(f's_mul_i32 s{SWQ+3}, s{sH}, 384')
    em.op(f's_lshl_b32 s{sT1}, s{sB}, 5'); em.op(f's_add_u32 s{sT1}, s{sT1}, s{sH}')
    em.op(f's_mul_i32 s{sT2}, s{sT1}, 196608')
    em.op(f's_mul_i32 s{SO+3}, s{sT1}, {O_HEAD}')
    em.op(f's_lshl_b32 s{sT0}, s{sB}, 8'); em.op(f's_add_u32 s{sT0}, s{sT0}, {FLAG_OFF}')
    em.op(f's_mov_b32 s{SX+2}, 184320'); em.op(f's_sub_u32 s{SWQ+2}, 7864320, s{SWQ+3}')
    em.op(f's_cmp_lt_u32 s{sW}, 3')
    em.op('s_waitcnt lgkmcnt(0)')
    em.st.stamp('ka')
    if cfg.diag: em.op(f's_cmp_lt_u32 s{sW}, 3')
    em.op(f's_cselect_b64 s[{sPFB}:{sPFB+1}], s[10:11], s[4:5]')
    for i in range(0 if cfg.pfall else 3):
        for o in pf_ops(): em.op(o)
    if cfg.cearly:
        em.op('s_getpc_b64 s[58:59]')
        em.label('L_pce')
        em.op('s_add_u32 s58, s58, k1_body_start-L_pce')
        em.op('s_addc_u32 s59, s59, 0')
        em.op(f's_and_b32 s{sT1}, s{sLOC}, 15')
        em.op(f's_lshl_b32 s{sT1}, s{sT1}, 13')
        em.op(f'v_lshlrev_b32 v{TMP[11]}, 4, v0')
        em.op(f'v_add_u32 v{TMP[11]}, s{sT1}, v{TMP[11]}')
        em.op(f'v_min_u32 v{TMP[11]}, k1_body_end-k1_body_start-16, v{TMP[11]}')
        em.op(f'global_load_dwordx4 {vr(112)}, v{TMP[11]}, s[58:59]')
    if cfg.wsoff:
        em.op(f's_add_u32 s12, s12, {cfg.wsoff << 20}'); em.op('s_addc_u32 s13, s13, 0')
    em.op(f's_load_dword s{sTAG}, s[12:13], s{sT0}')
    em.op(f's_add_u32 s{SWQ}, s10, s{SWQ+3}'); em.op(f's_addc_u32 s{SWQ+1}, s11, 0'); em.op(f's_mov_b32 s{SWQ+3}, 0x20000')
    em.op(f's_add_u32 s{SX}, s4, s{SX+3}'); em.op(f's_addc_u32 s{SX+1}, s5, 0'); em.op(f's_mov_b32 s{SX+3}, 0x20000')
    srd(em, SK, 6, 7, f's{sT2}', 196608); srd(em, SV, 8, 9, f's{sT2}', 196608)
    if cfg.n0 or cfg.pfall:
        em.op(f's_cmp_eq_u32 s{sTYPE}, 1')
        em.op('s_cbranch_scc0 L_nok1')
        em.begin_opt()
        em.op(f's_cmp_lt_u32 s{sW}, 3')
        em.op('s_cbranch_scc0 L_pfx')
        if cfg.pfs:
            em.op(f'v_add_u32 v{vPF}, {cfg.pfs * 786432}, v{vPF}'); em.op(f'v_add_u32 v{vPF2}, {cfg.pfs * 786432}, v{vPF2}')
        for i in range(cfg.pfw - cfg.pfs):
            for o in pf2_ops() + pf_ops(): em.op(o)
        em.op('s_branch L_nok1')
        em.label('L_pfx')
        if cfg.pfs: em.op(f'v_add_u32 v{vPF2}, {cfg.pfs * 128}, v{vPF2}')
        for i in range(cfg.pfxp - cfg.pfs):
            for o in pf2_ops(): em.op(o)
        for i in range(cfg.pfx):
            for o in pf_ops(): em.op(o)
        em.end_opt()
        em.label('L_nok1')
    if cfg.n0:
        em.op(f's_lshr_b32 s{sT0}, s{sW}, 2'); em.op(f's_lshl_b32 s{sT0}, s{sT0}, 1'); em.op(f's_or_b32 s{sT0}, s{sT0}, s{sTYPE}')
        for v in (0, 2, 3):
            em.op(f's_cmp_eq_u32 s{sT0}, {v}')
            em.op(f's_cbranch_scc1 L_qp{v >> 1}{v & 1}')
    else:
        em.op(f's_cmp_lt_u32 s{sW}, 4')
        em.op('s_cbranch_scc0 L_qp10')

def tile_m(em, t):
    tab = [[0, 4, 6, 10], [1, 5, 7, 11], [2, 3, 8, 9]][t]
    em.op(f's_lshl_b32 s{sT0}, s{sDG}, 2')
    em.op(f's_lshr_b32 s{sT0}, {sum(v << (4 * i) for i, v in enumerate(tab))}, s{sT0}')
    em.op(f's_and_b32 s{sT0}, s{sT0}, 15')

def tr_addr(em, dst, t, base, fmode):
    t0, t1, t2, t3 = TMP[:4]
    L = f'v{vLANE}'
    if (fmode == 'v' and cfg.opair) or (fmode == 'w' and cfg.qfm): tile_m(em, t)
    else:
        em.op(f's_mul_i32 s{sT0}, s{sDG}, 3'); em.op(f's_add_u32 s{sT0}, s{sT0}, {t}')
    em.op(f's_lshr_b32 s{sT1}, s{sT0}, 2'); em.op(f's_lshl_b32 s{sT1}, s{sT1}, 10')
    em.op(f's_add_u32 s{sT1}, s{sT1}, {base}')
    em.op(f's_and_b32 s{sT0}, s{sT0}, 3')
    em.op(f'v_lshrrev_b32 v{t0}, 4, {L}')
    em.op(f'v_bfe_u32 v{t1}, {L}, 2, 2')
    em.op(f'v_and_b32 v{t2}, 1, v{t0}')
    em.op(f'v_lshlrev_b32 v{t2}, 1, v{t2}')
    em.op(f'v_lshrrev_b32 v{t3}, 1, v{t1}')
    em.op(f'v_add_u32 v{t3}, v{t3}, v{t2}')
    em.op(f'v_xor_b32 v{t3}, s{sT0}, v{t3}')
    em.op(f'v_lshlrev_b32 v{t3}, 5, v{t3}')
    em.op(f'v_lshlrev_b32 v{dst}, 7, v{t1}')
    em.op(f'v_add_u32 v{dst}, v{dst}, v{t3}')
    if fmode == 'w':
        em.op(f'v_mul_u32_u24 v{t3}, 3072, v{t0}')
    else:
        em.op(f'v_lshlrev_b32 v{t2}, 8, v{t2}')
        em.op(f'v_add_u32 v{dst}, v{dst}, v{t2}')
        em.op(f'v_lshrrev_b32 v{t3}, 1, v{t0}')
        em.op(f'v_mul_u32_u24 v{t3}, 3072, v{t3}')
    em.op(f'v_add_u32 v{dst}, v{dst}, v{t3}')
    em.op(f'v_and_b32 v{t3}, 3, {L}')
    em.op(f'v_lshlrev_b32 v{t3}, 3, v{t3}')
    em.op(f'v_add_u32 v{dst}, v{dst}, v{t3}')
    em.op(f'v_add_u32 v{dst}, s{sT1}, v{dst}')

class Cap:
    def __init__(self): self.ops = []
    def op(self, t, tag=None): self.ops.append(t)

def k1_qproj(em, qh, typ):
    nq = 5 if qh == 0 else 4
    q0 = 0 if qh == 0 else 5
    L = f'v{vLANE}'
    t0, t1, t2, t3, t4, t5 = TMP[:6]
    rf = cfg.rfrac / 100
    if cfg.prio == qh + 1: em.op('s_setprio 1')
    npre = cfg.n0 if typ == 1 else 0
    def setup():
        em.op(f's_add_u32 s{SO}, s12, s{SO+3}'); em.op(f's_addc_u32 s{SO+1}, s13, 0'); em.op(f's_mov_b32 s{SO+2}, {O_HEAD}'); em.op(f's_mov_b32 s{SO+3}, 0x20000')
        em.op(f's_mov_b32 s{sC}, {fbits(192 ** -0.5 * math.log2(math.e))}')
        if cfg.code_pre and not cfg.cearly:
            em.op('s_getpc_b64 s[58:59]')
            em.label(f'L_pc{qh}{typ}')
            em.op(f's_add_u32 s58, s58, k1_body_start-L_pc{qh}{typ}')
            em.op('s_addc_u32 s59, s59, -1')
            em.op(f's_and_b32 s{sT1}, s{sLOC}, 15')
            em.op(f's_lshl_b32 s{sT1}, s{sT1}, 13')
            em.op(f'v_lshlrev_b32 v{TMP[11]}, 4, v0')
            em.op(f'v_add_u32 v{TMP[11]}, s{sT1}, v{TMP[11]}')
            em.op(f'v_min_u32 v{TMP[11]}, k1_body_end-k1_body_start-16, v{TMP[11]}')
        em.st.stamp('si')
        em.op(f'v_lshlrev_b32 v{t3}, 2, v0')
        em.op(f'v_add_u32 v{t3}, {MAXB}, v{t3}')
        em.op(f'v_mov_b32 v{t4}, 0xff800000')
        em.op(f'ds_write_b32 v{t3}, v{t4}')
        em.op(f'v_and_b32 v{vMS}, 15, {L}')
        em.op(f'v_lshlrev_b32 v{vMS}, 2, v{vMS}')
        em.op(f'v_add_u32 v{vMS}, {MAXB}, v{vMS}')
        em.op(f'v_add_u32 v{vRA[0]}, {q0 * 2048}, v{vRA[0]}')
        em.op(f'v_xor_b32 v{vRA[1]}, 64, v{vRA[0]}')
        for t in range(3): tr_addr(em, vRB[t], t, VBASE, 'w')
        if cfg.qfm:
            for t in (0, 2):
                tile_m(em, t)
                em.op(f's_lshr_b32 s{sT1}, s{sT0}, 1'); em.op(f's_mul_i32 s{sT1}, s{sT1}, 9216')
                em.op(f's_and_b32 s{sT0}, s{sT0}, 1'); em.op(f's_lshl_b32 s{sT0}, s{sT0}, 3'); em.op(f's_add_u32 s{sT0}, s{sT0}, s{sT1}')
                em.op(f's_add_u32 s{sT0}, s{sT0}, {q0 * 1024}')
                em.op(f'v_lshl_add_u32 v{vRC[t]}, {L}, 4, s{sT0}')
        for t in range(0 if cfg.qfm else 3):
            em.op(f's_mul_i32 s{sT0}, s{sDG}, 3'); em.op(f's_add_u32 s{sT0}, s{sT0}, {t}'); em.op(f's_lshl_b32 s{sT0}, s{sT0}, 1')
            em.op(f'v_lshrrev_b32 v{t0}, 5, {L}')
            em.op(f'v_add_u32 v{t0}, s{sT0}, v{t0}')
            em.op(f'v_lshrrev_b32 v{t1}, 3, v{t0}'); em.op(f'v_lshlrev_b32 v{t1}, 7, v{t1}')
            em.op(f'v_and_b32 v{t0}, 7, v{t0}')
            em.op(f'v_bfe_u32 v{t2}, {L}, 1, 3')
            em.op(f'v_xor_b32 v{t0}, v{t0}, v{t2}'); em.op(f'v_lshlrev_b32 v{t0}, 4, v{t0}')
            em.op(f'v_add_u32 v{t0}, v{t0}, v{t1}')
            em.op(f'v_and_b32 v{t1}, 15, {L}'); em.op(f'v_mul_u32_u24 v{t1}, 384, v{t1}')
            em.op(f'v_add_u32 v{t0}, v{t0}, v{t1}')
            em.op(f'v_bfe_u32 v{t1}, {L}, 4, 1'); em.op(f'v_lshlrev_b32 v{t1}, 3, v{t1}')
            em.op(f'v_add_u32 v{vRC[t]}, v{t0}, v{t1}')
        em.op(f'v_lshlrev_b32 v{vPA}, 4, {L}')
        em.op(f's_lshl_b32 s{sT0}, s{sW}, 2'); em.op(f's_lshr_b32 s{sT1}, 0x10543210, s{sT0}'); em.op(f's_and_b32 s{sT1}, s{sT1}, 15'); em.op(f's_mul_i32 s{sT1}, s{sT1}, 9216')
        em.op(f'v_add_u32 v{vPW}, s{sT1}, v{vPA}')
        em.op(f'v_add_u32 v{vPA}, {q0 * 1024}, v{vPA}')
    if npre:
        nu = cfg.nu if npre == 1 else 6
        for f in k_dma_ops(em, 0)[:2 * nu]: f()
        if cfg.sete: setup()
        em.wait_lgkm0(force=True)
        k_fetch(em, 0, k_dma_ops(em, 1) if npre == 2 else None, 0, nu)
        if npre == 2: k_fetch(em, 1, None)
        em.wait_lgkm0()
    em.barrier()
    for f in stage_dma_ops(em, 0, qh): f()
    em.barrier()
    for f in stage_dma_ops(em, 1, qh): f()
    if not (npre and cfg.sete): setup()
    AF = [176, 188]; BF = [200, 220]
    def q_reads(s, step, st):
        ops = []
        for t in range(3):
            ops.append(f'ds_read_b64_tr_b16 {vr(AF[st] + 4*t, 2)}, v{vRB[t]} offset:{(s % 3) * 24576 + step * 12288}')
            ops.append(f'ds_read_b64_tr_b16 {vr(AF[st] + 4*t + 2, 2)}, v{vRB[t]} offset:{(s % 3) * 24576 + step * 12288 + 512}')
        xs = [f'ds_read_b128 {vr(BF[st] + 4*j)}, v{vRA[step]} offset:{(s % 3) * 18432 + j * 2048}' for j in range(nq)]
        return ops[0:2] + xs[0:1] + ops[2:6] + xs[1:]
    def mf(st, first):
        return [mfma(ACC + 4*(j*3+t), AF[st] + 4*t, BF[st] + 4*j, None if first else ACC + 4*(j*3+t)) for j in range(nq) for t in range(3)]
    em.wait_vm_tag('S0', lgkm0=True); em.barrier()
    em.st.stamp('S0')
    em.op(f's_add_u32 s{sTAG}, s{sTAG}, 1')
    for o in q_reads(0, 0, 0): em.op(o)
    em.npre = npre
    nxt = [k_dma_ops(em, 0), k_dma_ops(em, 1), va_ops(em)][npre]
    em.part = npre == 1 and cfg.nu < 6
    if em.part: nxt = k_dma_ops(em, 0)[2 * cfg.nu:] + k_dma_ops(em, 1)[:2 * cfg.nu]
    plan = {15: nxt[0:4], 16: nxt[4:7], 17: nxt[7:10], 18: nxt[10:12]} if qh == 0 else {19: nxt[0:6]}
    late = [] if qh == 0 else nxt[6:12]
    post = []
    if qh == 1 and (cfg.qlate or (cfg.qlate1 and npre)): plan = {}; late = []; post = nxt
    cap = Cap()
    for t in range(3): tr_addr(cap, VTMP[t], t, VBASE, 'v')
    vaddr_ops = cap.ops
    inloop_pf = not (typ == 1 and cfg.n0) and not cfg.pfall
    carry = stage_dma_ops(em, 2, qh) + (sum([pf_ops() for i in range(cfg.pfa - 3)], []) if inloop_pf else [])
    if cfg.code_pre and not cfg.cearly: carry.append(f'global_load_dwordx4 {vr(244)}, v{TMP[11]}, s[58:59]')
    for s in range(10):
        extra = []
        extra = plan.get(2 * s, [])
        if cfg.onew and s > 0: em.wait_lgkm0()
        interleave(em, mf(0, s == 0), ([] if cfg.x_qnord and 3 < s <= 6 else q_reads(s, 1, 1), 0, rf), (extra, 0.1, 1), (carry, 0.05, cfg.dhi / 100))
        if s < 9: em.wait_vm_tag(f'S{s+1}', lgkm0=True)
        else: em.wait_lgkm0()
        em.barrier()
        if s in cfg.qst: em.st.stamp(f'B{s}')
        if cfg.qloop and s == 6:
            em.op('s_sub_u32 s87, s87, 1'); em.op('s_cmp_lg_u32 s87, 0'); em.op(f's_cbranch_scc1 L_ql{qh}{typ}')
            em.st.stamp('LBend')
        if cfg.qloop and s == 3:
            em.st.stamp('LB0')
            em.op('s_mov_b32 s87, 16'); em.label(f'L_ql{qh}{typ}')
        rd = []; dm = []; extra = []
        if s < 9:
            if not (cfg.x_qnord and 3 <= s < 6): rd += q_reads(s + 1, 0, 0)
        carry = []
        if s + 3 <= 9:
            dm = stage_dma_ops(em, s + 3, qh); ds_ = cfg.dsplit if not cfg.drole else (6 if qh == cfg.drole - 1 else 0)
            dm, carry = dm[:ds_], dm[ds_:]
            if cfg.x_qnodma and 3 <= s < 6: dm = []; carry = []
        if s == 7: extra = vaddr_ops
        first = (pf_ops() + (pf2_ops() if s + cfg.pfa >= cfg.pf1 and cfg.n0 else []) if inloop_pf and s + cfg.pfa <= 9 and not (cfg.qloop and s >= 3) else []) + (sum([pf2_ops() for i in range(10 - cfg.pfx)], []) if cfg.pf0x == s + 1 and typ == 0 else []) + plan.get(2 * s + 1, [])
        qw = []
        if s == 9:
            for j in range(nq):
                for t in range(3):
                    a = ACC + 4*(j*3+t)
                    if cfg.qfm and t == 0: continue
                    if cfg.qfm and t == 1:
                        p = a - 4
                        qw.append((j*3+t, [f'v_cvt_pk_bf16_f32 v{p}, v{p}, v{p+1}', f'v_cvt_pk_bf16_f32 v{p+1}, v{p+2}, v{p+3}', f'v_cvt_pk_bf16_f32 v{p+2}, v{a}, v{a+1}',
                                   f'v_cvt_pk_bf16_f32 v{p+3}, v{a+2}, v{a+3}', f'ds_write_b128 v{vRC[0]}, {vr(p)} offset:{j * 1024}']))
                        continue
                    qw.append((j*3+t, [f'v_cvt_pk_bf16_f32 v{a}, v{a}, v{a+1}', f'v_cvt_pk_bf16_f32 v{a+1}, v{a+2}, v{a+3}', f'ds_write_b64 v{vRC[t]}, {vr(a,2)} offset:{j * 1024 if cfg.qfm else (q0 + j) * 6144}']))
        n = 3 * nq; lag = 3 if cfg.qwi else n
        ins = [(g, (p + lag + 0.5) / n, (p + lag + 0.5) / n) for p, g in qw if p + lag < n]
        interleave(em, mf(1, False), (dm, cfg.dlo / 100, cfg.dhi / 100), (rd, 0, rf), (extra, 0, 1), (first, 0, 0.04 if dm else 0.9), *ins)
    for p, g in qw:
        if p + lag >= n:
            for o in g: em.op(o)
    for f in late: f()
    if cfg.qfm: em.op(f'v_lshlrev_b32 v{vRA[0]}, 4, {L}')
    else:
        em.op(f'v_and_b32 v{t1}, 15, {L}'); em.op(f'v_mul_u32_u24 v{t1}, 384, v{t1}')
        em.op(f'v_add_u32 v{vRA[0]}, v{t1}, v{vT}')
        em.op(f'v_xor_b32 v{t0}, 64, v{vT}')
        em.op(f'v_add_u32 v{vRA[1]}, v{t1}, v{t0}')
    for t in range(3): em.op(f'v_mov_b32 v{vRB[t]}, v{VTMP[t]}')
    em.wait_lgkm0(); em.barrier()
    for f in post: f()
    for t in range(3): em.op(f'v_add_u32 v{vRC[t]}, 49152, v{vRB[t]}')
    em.op(f's_lshl_b32 s{sT0}, s{sW}, 2'); em.op(f's_lshr_b32 s{sT1}, 0x32105432, s{sT0}'); em.op(f's_and_b32 s{sT1}, s{sT1}, 15'); em.op(f's_mul_i32 s{sT1}, s{sT1}, 9216')
    em.op(f'v_lshlrev_b32 v{vPW2}, 4, {L}')
    em.op(f'v_add_u32 v{vPW2}, s{sT1}, v{vPW2}')
    em.st.stamp('BQ')

def maxops(half):
    ops = []
    for qt in range(9):
        a, b = sreg(half*2, qt), sreg(half*2+1, qt); m = MC + qt
        if half == 0:
            ops += [f'v_max3_f32 v{m}, v{a}, v{a+1}, v{a+2}', f'v_max3_f32 v{m}, v{m}, v{a+3}, v{b}',
                    f'v_max3_f32 v{m}, v{m}, v{b+1}, v{b+2}', f'v_max_f32 v{m}, v{m}, v{b+3}']
        else:
            ops += [f'v_max3_f32 v{m}, v{m}, v{a}, v{a+1}', f'v_max3_f32 v{m}, v{m}, v{a+2}, v{a+3}',
                    f'v_max3_f32 v{m}, v{m}, v{b}, v{b+1}', f'v_max3_f32 v{m}, v{m}, v{b+2}, v{b+3}']
    return ops

def vflag_set(em):
    em.op(f's_lshl_b32 s{sT0}, s{sDG}, 2'); em.op(f's_add_u32 s{sT0}, s{sT0}, {MAXB + 576}')
    em.op(f'v_mov_b32 v{TMP[0]}, s{sT0}'); em.op(f'v_mov_b32 v{TMP[1]}, 1')
    em.op(f'ds_write_b32 v{TMP[0]}, v{TMP[1]}')

def k1_qk(em, qh):
    def qrd(n):
        qt, ks = divmod(n, 6)
        if cfg.qfm: return f'ds_read_b128 {vr(QF + 4*(n % 4))}, v{vRA[0]} offset:{(ks * 9 + qt) * 1024}'
        return f'ds_read_b128 {vr(QF + 4*(n % 4))}, v{vRA[ks & 1]} offset:{qt * 6144 + (ks >> 1) * 128}'
    npre = em.npre
    pend = []
    if em.part: k_fetch(em, 0, k_dma_ops(em, 1), cfg.nu, 6)
    if npre == 1 and cfg.g2e:
        k_fetch(em, 1, None); em.wait_lgkm0()
        pend = va_ops(em)
        if qh == 1:
            for f in pend: f()
            pend = []
        npre = 2
    g2m = (cfg.g2m0, cfg.g2m1)[qh] if npre == 1 and not em.part else 0
    for half in range(2):
        fill = pend; pend = []
        mid = []
        if half == 0 and g2m:
            mid = [f'v_xor_b32 v{vKR2[e]}, 32, v{vKR[e]}' for e in range(2)] if cfg.qfm else []
            for u in range(6): mid += [lambda u=u: em.wait_vm_tag(f'K1_{u}')] + k_rd_ops(1, u)
            if cfg.vby and qh == 1: mid += ['s_nop 0'] * 6 + [lambda: (em.wait_lgkm0(), vflag_set(em))]
        if half == 1 and g2m:
            em.wait_lgkm0(); fill = va_ops(em)
            if cfg.vby and qh == 1: fill = []
        elif half >= npre:
            fill = k_dma_ops(em, 1) if half == 0 else va_ops(em)
            if half == 0 and cfg.eager >> qh & 1:
                k_fetch(em, half, fill); fill = []
            else:
                k_fetch(em, half, None)
                em.wait_lgkm0()
                if half == 1 and cfg.eagerv >> qh & 1:
                    for f in fill: f()
                    fill = []
                if half == 1 and cfg.vby and qh == 1: fill = []; vflag_set(em)
        for n in range(3): em.op(qrd(n))
        em.st.stamp(f'K{half}')
        main = []
        for n in range(54):
            qt, ks = divmod(n, 6)
            if n + 3 < 54: main.append(qrd(n + 3))
            for k in range(2):
                kt = half * 2 + k
                main.append(mfma(sreg(kt, qt), kop(kt, ks), QF + 4*(n % 4), None if ks == 0 else sreg(kt, qt)))
        m1 = maxops(1)
        if half == 0:
            streams = [(fill, cfg.g2lo / 100, cfg.g2hi / 100), (mid, g2m / 100, min(1.0, g2m / 100 + 0.3))]
        else:
            streams = [(maxops(0), 0.02, 0.5)]
            for qt in range(8): streams.append((m1[qt*4:qt*4+4] + ([f'ds_max_f32 v{vMS}, v{MC+qt} offset:{qt*64}'] if cfg.emax else []), max(0.5 + 0.05*qt, (qt + 1.5) / 9), max(0.55 + 0.05*qt, (qt + 1.9) / 9)))
            streams.append((fill, cfg.valo / 100, cfg.vahi / 100))
        interleave(em, main, *streams)
    em.st.stamp('QKend')
    for o in maxops(1)[32:]: em.op(o)
    for qt in range(8 if cfg.emax else 0, 9): em.op(f'ds_max_f32 v{vMS}, v{MC+qt} offset:{qt*64}')
    if qh == 0 and cfg.vby:
        em.op(f'v_mov_b32 v{vVO4}, v{vVO3}')
        em.op(f's_and_b32 s{sT1}, s{sW}, 2'); em.op(f's_lshr_b32 s{sKB2}, {vslot(2) | vslot(3) << 2}, s{sT1}'); em.op(f's_and_b32 s{sKB2}, s{sKB2}, 3')
        em.op(f's_lshl_b32 s{sKB2}, s{sKB2}, 1'); em.op(f's_and_b32 s{sT1}, s{sW}, 1'); em.op(f's_add_u32 s{sKB2}, s{sKB2}, s{sT1}')
        em.op(f's_mul_i32 s{sKB2}, s{sKB2}, 12288'); em.op(f's_add_u32 s{sKB2}, s{sKB2}, {VBASE}')
    if qh == 0 and cfg.tsq:
        for o in tail_setup_ops(0): emit(em, o)
    if qh == 0 and cfg.vby:
        _lab[0] += 1
        em.op(f's_lshl_b32 s{sT0}, s{sDG}, 2'); em.op(f's_add_u32 s{sT0}, s{sT0}, {MAXB + 576}')
        em.op(f'v_mov_b32 v113, s{sT0}')
        em.op(f's_mov_b32 s{sCNT}, 0x100000')
        em.wait_lgkm0()
        em.label(f'L_vf{_lab[0]}')
        em.op('ds_read_b32 v114, v113')
        em.op(f's_sub_u32 s{sCNT}, s{sCNT}, 1')
        em.op(f's_cbranch_scc1 L_vfd{_lab[0]}')
        em.wait_lgkm0()
        em.op('v_cmp_ne_u32 vcc, 1, v114')
        em.op('s_nop 4')
        em.op(f's_cbranch_vccz L_vfd{_lab[0]}')
        em.op('s_sleep 1')
        em.op(f's_branch L_vf{_lab[0]}')
        em.label(f'L_vfd{_lab[0]}')
        em.wait_lgkm0(force=True)
        for f in va_ops(em, True)[:cfg.vbyn]: f()
    if qh == 0 and cfg.vpq:
        a, b = v_pf_ops(em), v_pf_ops(em, 24576)
        both = [x for p in zip(a, b) for x in p][:2 * cfg.vpq]
        for i, f in enumerate(both):
            f()
            if i >= cfg.vpq_in: em.waitcnt(vm=cfg.vpq_in)
    em.wait_lgkm0(); em.barrier()
    em.st.stamp('BM')

def expops(r, qt, pk):
    a, b = sreg(2*r, qt), sreg(2*r+1, qt); m = MC + qt
    tA, tB = TMP[0], TMP[2]
    sp = SUMP + 2*qt
    rs = [a, a+1, a+2, a+3, b, b+1, b+2, b+3]
    if pk:
        mb = m & ~1; s = m & 1
        ops = [f'v_pk_fma_f32 {vr(x,2)}, {vr(x,2)}, s[{sC}:{sC+1}], {vr(mb,2)} op_sel:[0,0,{s}] op_sel_hi:[1,0,{s}] neg_lo:[0,0,1] neg_hi:[0,0,1]' for x in rs[::2]]
    else:
        ops = [f'v_fma_f32 v{x}, v{x}, s{sC}, -v{m}' for x in rs]
    ops += [f'v_exp_f32 v{x}, v{x}' for x in rs]
    if pk:
        ops += [f'v_pk_add_f32 {vr(tA,2)}, {vr(a,2)}, {vr(a+2,2)}', f'v_pk_add_f32 {vr(tB,2)}, {vr(b,2)}, {vr(b+2,2)}']
        if r == 0: tailo = [f'v_pk_add_f32 {vr(sp,2)}, {vr(tA,2)}, {vr(tB,2)}']
        else: tailo = [f'v_pk_add_f32 {vr(tA,2)}, {vr(tA,2)}, {vr(tB,2)}', f'v_pk_add_f32 {vr(sp,2)}, {vr(sp,2)}, {vr(tA,2)}']
    else:
        assert r == 1
        ops += [f'v_add_f32 v{sp + (i & 1)}, v{sp + (i & 1)}, v{x}' for i, x in enumerate(rs)]
        tailo = []
    ops += [f'v_cvt_pk_bf16_f32 v{a}, v{a}, v{a+1}', f'v_cvt_pk_bf16_f32 v{a+1}, v{a+2}, v{a+3}',
            f'v_cvt_pk_bf16_f32 v{a+2}, v{b}, v{b+1}', f'v_cvt_pk_bf16_f32 v{a+3}, v{b+2}, v{b+3}']
    return ops + tailo

def pwrite(r, qt, qh):
    return f'ds_write_b128 v{vPW if r == 0 else vPW2}, {vr(sreg(2*r, qt))} offset:{qt*1024}'

def sum_ops():
    L = f'v{vLANE}'
    S = SUM; ops = []
    ops += [f'v_add_f32 v{SUM+qt}, v{SUMP+2*qt}, v{SUMP+2*qt+1}' for qt in range(9)]
    ops += [f'v_mov_b32 v{MC}, 0', f'v_mov_b32 v{MC+1}, 0']
    ta = TMP[2]; tb = TMP[3]
    ops += [f'v_bfe_u32 v{ta}, {L}, 4, 1', f'v_lshlrev_b32 v{ta}, 10, v{ta}', f'v_bfe_u32 v{tb}, {L}, 5, 1', f'v_lshlrev_b32 v{tb}, 9, v{tb}',
            f'v_add_u32 v{ta}, v{ta}, v{tb}', f'v_and_b32 v{tb}, 15, {L}', f'v_lshlrev_b32 v{tb}, 5, v{tb}', f'v_add_u32 v{ta}, v{ta}, v{tb}',
            f's_lshl_b32 s{sT0}, s{sW}, 2', f's_add_u32 s{sT0}, s{sT0}, {SUMB}', f'v_add_u32 v{ta}, s{sT0}, v{ta}']
    for a in (0, 2, 4, 6): ops.append(f'v_permlane32_swap_b32 v{S+a}, v{S+a+1}')
    ops.append(f'v_permlane32_swap_b32 v{S+8}, v{MC}')
    for a in (0, 2, 4, 6): ops.append(f'v_add_f32 v{S+a}, v{S+a}, v{S+a+1}')
    ops.append(f'v_add_f32 v{S+8}, v{S+8}, v{MC}')
    for a in (0, 4): ops.append(f'v_permlane16_swap_b32 v{S+a}, v{S+a+2}')
    ops.append(f'v_permlane16_swap_b32 v{S+8}, v{MC+1}')
    for a in (0, 4): ops.append(f'v_add_f32 v{S+a}, v{S+a}, v{S+a+2}')
    ops.append(f'v_add_f32 v{S+8}, v{S+8}, v{MC+1}')
    for a in (0, 4, 8): ops.append(f'ds_write_b32 v{ta}, v{S+a} offset:{a * 512}')
    return ops

def k1_sm0(em, qh):
    n_in = cfg.in0 if qh == 0 else cfg.in1
    for qt in range(9): em.op(f'ds_read_b32 v{MC+qt}, v{vMS} offset:{qt*64}')
    for qt in range(9): em.op(f'v_mul_f32 v{MC+qt}, s{sC}, v{MC+qt}')
    main = []
    for qt in range(9):
        main += expops(0, qt, True)
        if qh == 0: main.append(pwrite(0, qt, qh))
    for qt in range(n_in, 9): main += expops(1, qt, True)
    wo = []
    if cfg.wosm >= 0:
        em.op(f's_andn2_b32 s{sT1}, s{sLOC}, 4'); em.op(f's_mul_i32 s{sT1}, s{sT1}, 30720')
        em.op(f's_mul_i32 s{sT0}, s{sX}, 983040'); em.op(f's_add_u32 s{sT0}, s{sT0}, s{sT1}')
        em.op(f'v_lshl_add_u32 v64, v0, 4, s{sT0}')
        for i in range(8):
            def f(i=i):
                _lab[0] += 1
                em.op(f's_cmp_eq_u32 s{sTYPE}, {cfg.wosm}')
                em.op(f's_cbranch_scc0 L_ws{_lab[0]}')
                em.begin_opt()
                em.op(f's_mov_b32 m0, {MAXB + 640}')
                em.op(f'v_min_u32 v65, {7864320 - 16}, v64')
                em.op(f'global_load_lds_dwordx4 v65, s[14:15]')
                em.op(f'v_add_u32 v64, {8192 if i != 3 else 122880 - 3 * 8192}, v64')
                em.end_opt()
                em.label(f'L_ws{_lab[0]}')
            wo.append(f)
    interleave(em, main, (v_pf_ops(em)[cfg.vpq:cfg.vpq + cfg.vpf], 0.05, cfg.vrf / 100), (wo, 0.1, 0.95), (va_ops(em, True)[cfg.vbyn:] if cfg.vby and qh == 0 else [], 0, 0.3))
    em.st.stamp('exp0')
    if qh == 0: em.wait_vm_tag('VA', lgkm0=True)
    else: em.wait_lgkm0()
    em.barrier()
    em.st.stamp('PV0')

def k1_pv(em, qh):
    nq = 5 if qh == 0 else 4
    q0 = 0 if qh == 0 else 5
    L = f'v{vLANE}'
    rf = cfg.rfrac / 100
    PBF = PBF0 if qh == 0 else PBF1
    INV = INV0
    PAF = PAF0 if qh == 0 else PAF1
    def pv_reads(s, step, st):
        ops = []
        slot = vslot(s)
        base = vRB if slot < 2 else vRC
        off = (slot % 2) * 24576 + step * 12288
        for t in range(3):
            ops.append(f'ds_read_b64_tr_b16 {vr(PAF[st][t], 2)}, v{base[t]} offset:{off}')
            ops.append(f'ds_read_b64_tr_b16 {vr(PAF[st][t] + 2, 2)}, v{base[t]} offset:{off + 6144}')
        pa, po = vPA, ((2 * s + step) % 6) * 9216
        xs = [f'ds_read_b128 {vr(PBF[st][j])}, v{pa} offset:{po + j * 1024}' for j in range(nq)]
        return ops[0:2] + xs[0:1] + ops[2:6] + xs[1:]
    OACC = OACC0 if qh == 0 else OACC1
    def mf(st, first):
        return [mfma(OACC[j*3+t], PAF[st][t], PBF[st][j], None if first else OACC[j*3+t]) for j in range(nq) for t in range(3)]
    def inv_ops():
        ta = TMP[2]; ops = []
        ops += [f'v_and_b32 v{ta}, 15, {L}', f'v_lshlrev_b32 v{ta}, 5, v{ta}', f'v_add_u32 v{ta}, {SUMB + q0 * 512}, v{ta}']
        for j in range(nq):
            ops += [f'ds_read_b128 {vr(16 + 8*j)}, v{ta} offset:{j * 512}', f'ds_read_b128 {vr(20 + 8*j)}, v{ta} offset:{j * 512 + 16}']
        for j in range(nq):
            r = 16 + 8*j
            ops += [f'v_add_f32 v{r}, v{r}, v{r+1}', f'v_add_f32 v{r+2}, v{r+2}, v{r+3}', f'v_add_f32 v{r+4}, v{r+4}, v{r+5}', f'v_add_f32 v{r+6}, v{r+6}, v{r+7}',
                    f'v_add_f32 v{r}, v{r}, v{r+2}', f'v_add_f32 v{r+4}, v{r+4}, v{r+6}', f'v_add_f32 v{r}, v{r}, v{r+4}', f'v_rcp_f32 v{INV+2*j}, v{r}']
        return ops
    n_in = cfg.in0 if qh == 0 else cfg.in1
    assert n_in <= 3
    hs = [0, 3, 4] if qh == 0 else [7, 8, 4]
    INVO = inv_ops()
    TS = [] if (qh == 0 and cfg.tsq) else tail_setup_ops(qh)
    def ex(h):
        o = []
        if h in hs[:n_in] or (n_in == 2 and qh == 0 and False): o += expops(1, hs.index(h), False)
        if qh == 0 and h in (5, 6): o += [pwrite(1, qt, qh) for qt in (range(4, 9) if h == 5 else range(4))]
        if qh == 1 and h in (1, 2): o += [pwrite(0, qt, qh) for qt in (range(5) if h == 1 else range(5, 9))]
        if qh == 1 and h in (9, 10): o += [pwrite(1, qt, qh) for qt in (range(4, 9) if h == 9 else range(4))]
        if h == (7 if qh == 0 else 11): o += sum_ops()
        if h == 13: o += INVO[:len(INVO) // 2]
        if h == 14: o += INVO[len(INVO) // 2:]
        if TS and h == 3 and qh == 1: o += TS
        if TS and h in (11, 12) and qh == 0: o += TS[:len(TS)//2] if h == 11 else TS[len(TS)//2:]
        return o
    def wopre_ops(i):
        ta = TMP[2 + (i & 1)]
        ops = [f's_mul_i32 s{sT3}, s{sX}, 983040', f's_mul_i32 s{sT4}, s{sLOC}, 30720', f's_add_u32 s{sT3}, s{sT3}, s{sT4}', f's_add_u32 s{sT3}, s{sT3}, {i * 8192}',
               f'v_lshlrev_b32 v{ta}, 4, v0', f'v_add_u32 v{ta}, s{sT3}, v{ta}', f'v_min_u32 v{ta}, {7864320 - 16}, v{ta}',
               f'global_load_dwordx4 {vr(52)}, v{ta}, s[14:15]']
        if cfg.wo0:
            def f():
                _lab[0] += 1
                em.op(f's_cmp_eq_u32 s{sTYPE}, 0')
                em.op(f's_cbranch_scc0 L_wp{_lab[0]}')
                em.begin_opt()
                for o in ops[:-2] + [ops[-1], f'v_add_u32 v{ta}, 122880, v{ta}'] + ops[-2:]: em.op(o)
                em.end_opt()
                em.label(f'L_wp{_lab[0]}')
            return [f]
        return ops
    wsl = {8: 0, 9: 1, 10: 2, 12: 3} if cfg.wosm < 0 else {}
    def epi(pk):
        out = []
        def mul(a, m):
            if pk: return [f'v_pk_mul_f32 {vr(a,2)}, {vr(a,2)}, {vr(m,2)} op_sel_hi:[1,0]', f'v_pk_mul_f32 {vr(a+2,2)}, {vr(a+2,2)}, {vr(m,2)} op_sel_hi:[1,0]']
            return [f'v_mul_f32 v{a+d}, v{a+d}, v{m}' for d in range(4)]
        for j in range(nq):
            m = INV + 2 * j
            a, b, c = OACC[j*3], OACC[j*3+1], OACC[j*3+2]
            if cfg.opair:
                out.append((j*3+1, mul(a, m) + mul(b, m) + [f'v_cvt_pk_bf16_f32 v{a}, v{a}, v{a+1}', f'v_cvt_pk_bf16_f32 v{a+1}, v{a+2}, v{a+3}',
                            f'v_cvt_pk_bf16_f32 v{a+2}, v{b}, v{b+1}', f'v_cvt_pk_bf16_f32 v{a+3}, v{b+2}, v{b+3}', f'ds_write_b128 v{vOW[0]}, {vr(a)} offset:{j * 1024}']
                            + ([f's_mov_b32 s{sT0}, {j * 1024}', (f'buffer_store_dwordx4 {vr(a)}, v{vOW[1]}, {sr(SO,4)}, s{sT0} offen sc1', 'CO0')] if cfg.direct else [])))
            for t in ((2,) if cfg.opair else (0, 1, 2)):
                x = OACC[j*3+t]
                out.append((j*3+t, mul(x, m) + [f'v_cvt_pk_bf16_f32 v{x}, v{x}, v{x+1}', f'v_cvt_pk_bf16_f32 v{x+1}, v{x+2}, v{x+3}', f'ds_write_b64 v{vOW[t]}, {vr(x,2)} offset:{j * 1024}']))
        return out
    for o in pv_reads(0, 0, 0): em.op(o)
    n = 3 * nq; lag = 4 if cfg.qwi else n
    for s in range(8):
        w = wopre_ops(wsl[2*s]) if cfg.wopre and 2*s in wsl else []
        if cfg.onew and s > 0: em.wait_lgkm0()
        interleave(em, mf(0, s == 0), (pv_reads(s, 1, 1), 0, rf), (ex(2*s), 0, cfg.efrac / 100), (w, 0.4, 0.41))
        if s == 1: em.wait_vm_tag('VB' if cfg.vby else 'VA', lgkm0=True)
        elif s < 7: em.wait_vm_tag(f'V{s+1}', lgkm0=True)
        else: em.wait_lgkm0()
        em.barrier()
        em.st.stamp(f'PB{s}')
        rd = pv_reads(s + 1, 0, 0) if s < 7 else []
        dm = v_dma_ops(em, s + NV) if s + NV <= 7 else []
        if s == 7 and qh == 0 and not cfg.woe: dm = tail_dma(em, 0) + tail_dma(em, 1)
        if cfg.woe and qh == 0 and 4 <= s <= 6: dm = tail_dma(em, s - 4)
        w = wopre_ops(wsl[2*s+1]) if cfg.wopre and 2*s+1 in wsl else []
        ins = []
        if s == 7:
            ins = [(g, (p + lag + 0.5) / n, (p + lag + 0.5) / n) for p, g in epi(False) if p + lag < n]
        interleave(em, mf(1, False), (dm, 0, 0.4 if s < 4 else 1), (rd, 0, rf + 0.1), (ex(2*s+1), 0, 1), (w, 0.4, 0.41), *ins)
    late = tail_dma(em, 2) if qh == 0 and not cfg.woe else []
    main = sum([g for p, g in epi(True) if p + lag >= n], [])
    interleave(em, main, (late, 0, 1))
    em.wait_vm_tag('T0', lgkm0=True); em.barrier()
    em.st.stamp('BO')
    em.op(f's_bitcmp1_b32 s{sW}, 1')
    em.op(f's_cbranch_scc1 L_tail{2 * qh + 1}')
    st = em.save()
    tail(em, 2 * qh)
    em.label(f'L_tail{2 * qh + 1}')
    em.restore(st)
    tail(em, 2 * qh + 1)

vOFFS = [2, 3, 4, 5, 7]; vA2 = [248, 249, 250]; vB2 = 251
SD, SP, SPR, SOUT = SX, SWQ, SK, 84
sT3, sT4 = 56, 59
sCH = 36 + 1
sCH = 81
sN0 = sNH
OB = 0 if cfg.woe else 61440
WB = 79872 if cfg.woe else 0
def wslot(s): return [49152, 0, 24576][s % 3] if cfg.woe else (s % 3) * 20480
def tail_setup_ops(qh):
    c = Cap(); L = f'v{vLANE}'
    t0, t1, t2, t3 = 252, 253, 244, 245
    if qh == 0:
        c.op(f's_mul_i32 s{sT0}, s{sX}, 983040'); c.op(f's_mul_i32 s{sT1}, s{sJ}, 320'); c.op(f's_add_u32 s{sT0}, s{sT0}, s{sT1}')
        srd(c, SD, 14, 15, f's{sT0}', 7864320)
        c.op(f's_sub_u32 s{SD+2}, s{SD+2}, s{sT0}')
        c.op(f's_mov_b32 s{sSTR}, 81920')
        hs = 245760
        c.op(f's_lshl_b32 s{sT2}, s{sW}, 4')
        c.op(f's_mov_b32 s{sT1}, 52429')
        for j in range(5):
            c.op(f'v_add_u32 v{t0}, {j * 64}, {L}')
            c.op(f'v_mul_lo_u32 v{t1}, v{t0}, s{sT1}')
            c.op(f'v_lshrrev_b32 v{t1}, 20, v{t1}')
            c.op(f'v_mul_u32_u24 v{t2}, 20, v{t1}')
            c.op(f'v_sub_u32 v{t2}, v{t0}, v{t2}')
            c.op(f'v_bfe_u32 v{t3}, v{t1}, 2, 1')
            c.op(f'v_lshlrev_b32 v{t3}, 1, v{t3}')
            c.op(f'v_xor_b32 v{t2}, v{t2}, v{t3}')
            c.op(f'v_add_u32 v{t1}, s{sT2}, v{t1}')
            c.op(f'v_mul_u32_u24 v{t1}, 1280, v{t1}')
            c.op(f'v_lshl_add_u32 v{vOFFS[j]}, v{t2}, 4, v{t1}')
        c.op(f's_and_b32 s{sN0}, s{sW}, 1'); c.op(f's_mul_i32 s{sN0}, s{sN0}, 3')
        c.op(f's_bfe_u32 s{sQ0}, s{sW}, 0x10001'); c.op(f's_mul_i32 s{sQ0}, s{sQ0}, 5')
    else:
        c.op(f's_lshl_b32 s{sT0}, s{sB}, 5'); c.op(f's_lshl_b32 s{sT1}, s{sX}, 2'); c.op(f's_add_u32 s{sT0}, s{sT0}, s{sT1}')
        c.op(f's_mul_i32 s{sT0}, s{sT0}, {O_HEAD}')
        srd(c, SD, 12, 13, f's{sT0}', 4 * O_HEAD)
        c.op(f's_mov_b32 s{sSTR}, 18432')
        hs = O_HEAD
        c.op(f's_mul_i32 s{sT2}, s{sDG}, 5120')
        if cfg.nopad:
            c.op(f's_cmp_eq_u32 s{sDG}, 3'); c.op(f's_cselect_b32 s{sT2}, 14336, s{sT2}')
        c.op(f'v_lshlrev_b32 v{t0}, 4, {L}')
        c.op(f'v_add_u32 v{t0}, s{sT2}, v{t0}')
        for j in range(5): c.op(f'v_add_u32 v{vOFFS[j]}, {j * 1024}, v{t0}')
        c.op(f's_and_b32 s{sN0}, s{sW}, 1'); c.op(f's_lshl_b32 s{sN0}, s{sN0}, 1'); c.op(f's_add_u32 s{sN0}, s{sN0}, 6')
        c.op(f's_bfe_u32 s{sQ0}, s{sW}, 0x10001'); c.op(f's_xor_b32 s{sQ0}, s{sQ0}, 1'); c.op(f's_mul_i32 s{sQ0}, s{sQ0}, 5')
    if cfg.direct:
        if qh == 0:
            c.op(f's_lshr_b32 s{sT0}, s{sW}, 1'); c.op(f's_mul_i32 s{sT0}, s{sT0}, 40960')
            c.op(f's_mov_b32 s{sCH}, s{sT0}'); c.op(f's_add_u32 s{sCH+1}, s{sT0}, {96 * 1280}')
            c.op(f's_lshl_b32 s{sT0}, s{sT0}, 1'); c.op(f's_add_u32 s{sCH+2}, s{sT0}, {32 * 1280}')
        else:
            for i in range(3): c.op(f's_mov_b32 s{sCH+i}, {i * 18432}')
    c.op(f's_mul_i32 s{sM0T}, s{sDG}, 5120')
    if qh: c.op(f's_add_u32 s{sM0T}, s{sT2 if cfg.nopad else sM0T}, {OB}')
    else: c.op(f's_add_u32 s{sM0T}, s{sM0T}, {WB}')
    for i in range(4):
        c.op(f's_add_u32 s{sT0}, s{sJ}, {i}'); c.op(f's_and_b32 s{sT0}, s{sT0}, 3'); c.op(f's_mul_i32 s{sHB+i}, s{sT0}, {hs}')
    c.op(f'v_lshrrev_b32 v{t0}, 2, {L}')
    c.op(f'v_mul_u32_u24 v{t0}, 320, v{t0}')
    c.op(f'v_and_b32 v{t1}, 3, {L}')
    c.op(f'v_lshl_add_u32 v{t0}, v{t1}, 3, v{t0}')
    if WB: c.op(f'v_add_u32 v{t0}, {WB}, v{t0}')
    c.op(f'v_bfe_u32 v{t1}, {L}, 4, 1')
    for t in range(3 if qh == 0 else 2):
        c.op(f's_add_u32 s{sT1}, s{sN0}, {t}')
        c.op(f'v_xor_b32 v{t2}, s{sT1}, v{t1}')
        c.op(f'v_lshl_add_u32 v{vA2[t]}, v{t2}, 5, v{t0}')
    c.op(f's_lshl_b32 s{sT0}, s{sQ0}, 10')
    c.op(f's_add_u32 s{sT0}, s{sT0}, {OB}')
    c.op(f'v_lshl_add_u32 v{vB2}, {L}, 4, s{sT0}')
    for t in range(3):
        if cfg.opair:
            if t == 1: continue
            tile_m(c, t)
        else:
            c.op(f's_mul_i32 s{sT0}, s{sDG}, 3'); c.op(f's_add_u32 s{sT0}, s{sT0}, {t}')
        if cfg.direct:
            c.op(f's_lshl_b32 s{sT1}, s{sT0}, 1'); c.op(f's_and_b32 s{sT1}, s{sT1}, 0x1c'); c.op(f's_lshr_b32 s{sT1}, 0x352140, s{sT1}'); c.op(f's_and_b32 s{sT1}, s{sT1}, 15')
            if t == 0:
                c.op(f's_mul_i32 s{sT2}, s{sT1}, 9216')
                c.op(f'v_add_u32 v{vOW[1]}, s{sT2}, v{vPA}')
            c.op(f's_and_b32 s{sT0}, s{sT0}, 1'); c.op(f's_lshl_b32 s{sT1}, s{sT1}, 1'); c.op(f's_add_u32 s{sT0}, s{sT0}, s{sT1}')
        c.op(f's_lshr_b32 s{sT1}, s{sT0}, 2'); c.op(f's_mul_i32 s{sT1}, s{sT1}, 20480')
        c.op(f's_bfe_u32 s{sT2}, s{sT0}, 0x10001'); c.op(f's_mul_i32 s{sT2}, s{sT2}, 9216'); c.op(f's_add_u32 s{sT1}, s{sT1}, s{sT2}')
        c.op(f's_and_b32 s{sT0}, s{sT0}, 1'); c.op(f's_lshl_b32 s{sT0}, s{sT0}, 3')
        c.op(f's_add_u32 s{sT0}, s{sT0}, s{sT1}'); c.op(f's_add_u32 s{sT0}, s{sT0}, {OB}')
        c.op(f'v_add_u32 v{vOW[t]}, s{sT0}, v{vPA}')
    c.op(f's_lshl_b32 s{sT0}, s{sB}, 3'); c.op(f's_add_u32 s{sT0}, s{sT0}, s{sX}'); c.op(f's_lshl_b32 s{sT0}, s{sT0}, 7'); c.op(f's_add_u32 s{sT0}, s{sT0}, {FLAG_OFF + 4096}')
    c.op(f's_add_u32 s{sF1}, s12, s{sT0}'); c.op(f's_addc_u32 s{sF1+1}, s13, 0')
    c.op(f's_lshl_b32 s{sT0}, s{sLOC}, 7'); c.op(f's_add_u32 s{sT0}, s{sT0}, {FLAG_OFF + 16384}')
    c.op(f's_add_u32 s{sF2}, s12, s{sT0}'); c.op(f's_addc_u32 s{sF2+1}, s13, 0')
    c.op(f's_mul_i32 s{sT0}, s{sLOC}, {8 * PART2}'); c.op(f's_add_u32 s{sT0}, s{sT0}, {WS_PART}')
    srd(c, SPR, 12, 13, f's{sT0}', 8 * PART2)
    c.op(f's_mul_i32 s{sT1}, s{sX}, {PART2}'); c.op(f's_add_u32 s{sT0}, s{sT0}, s{sT1}')
    srd(c, SP, 12, 13, f's{sT0}', PART2)
    srd(c, SOUT, 54, 55, None, 1474560)
    out = []; i = 0; ops = c.ops
    while i < len(ops):
        if i + 1 < len(ops) and (ops[i + 1].startswith('s_addc') or ops[i + 1].startswith('s_cselect')):
            a, b = ops[i], ops[i + 1]
            out.append(lambda a=a, b=b: (EM[0].op(a), EM[0].op(b))); i += 2
        else:
            out.append(ops[i]); i += 1
    return out
EM = [None]

def tail_dma(em, s, orole=False):
    ops = []
    sc = ' sc1' if (orole and cfg.sc_ol) else ''
    for j in range(4 if (cfg.nopad and orole and em.tv == 3) else 5):
        def f(j=j):
            em.op(f's_add_u32 m0, s{sM0T}, {((s % 3) * 20480 if orole else wslot(s)) + j * 1024}')
            if j == 0:
                if cfg.direct:
                    peer, ch = (0, s) if s < 3 else (1 + (s - 3) % 3, (s - 3) // 3)
                    em.op(f's_add_u32 s{sOFF}, s{sCH + ch}, s{sHB + peer}')
                elif cfg.chunk and s >= 3:
                    ch = (s - 3) // 3
                    if ch == 0: em.op(f's_mov_b32 s{sOFF}, s{sHB + 1 + (s - 3) % 3}')
                    else:
                        em.op(f's_lshl_b32 s{sOFF}, s{sSTR}, {ch - 1}')
                        em.op(f's_add_u32 s{sOFF}, s{sOFF}, s{sHB + 1 + (s - 3) % 3}')
                elif s % 3 == 0: em.op(f's_mov_b32 s{sOFF}, s{sHB + s // 3}')
                else: em.op(f's_add_u32 s{sOFF}, s{sOFF}, s{sSTR}')
            em.op(f'buffer_load_dwordx4 v{vOFFS[j]}, {sr(SD,4)}, s{sOFF} offen{sc} lds', tag=f'T{s}')
        ops.append(f)
    return ops

def flag_store(em, base, idx_s, lab, wave, off=0):
    t0, t1 = 60, 61
    em.op(f's_cmp_eq_u32 s{sW}, {wave}')
    em.op(f's_cbranch_scc0 {lab}')
    em.begin_opt()
    em.op(f's_lshl_b32 s{sT0}, s{idx_s}, 2')
    em.op(f'v_mov_b32 v{t0}, s{sT0}')
    em.op(f'v_mov_b32 v{t1}, s{sTAG}')
    em.op('s_mov_b64 exec, 1')
    em.op(f'global_store_dword v{t0}, v{t1}, s[{base}:{base+1}] offset:{off} sc1')
    em.op('s_mov_b64 exec, -1')
    em.end_opt()
    em.label(lab)

vPL0, vPL1 = 62, 63
def poll(em, base, mask, lab, off=0, keep=False):
    em.op(f'v_and_b32 v{vPL0}, {mask}, v{vLANE}')
    em.op(f'v_lshlrev_b32 v{vPL0}, 2, v{vPL0}')
    em.op(f's_mov_b32 s{sCNT}, 0x20000')
    if not keep: em.wait_vm0()
    em.label(lab)
    em.op(f'global_load_dword v{vPL1}, v{vPL0}, s[{base}:{base+1}] offset:{off} sc1')
    em.op(f's_sub_u32 s{sCNT}, s{sCNT}, 1')
    em.op(f's_cbranch_scc1 {lab}_done')
    em.wait_vm0()
    em.op(f'v_cmp_ne_u32 vcc, s{sTAG}, v{vPL1}')
    em.op('s_nop 4')
    em.op(f's_cbranch_vccz {lab}_done')
    em.op('s_sleep 1')
    em.op(f's_branch {lab}')
    em.label(f'{lab}_done')
    em.wait_vm0()

def tail(em, tv):
    nt, nq = [(3, 5), (3, 4), (2, 4), (2, 5)][tv]
    orole = tv >= 2
    em.tv = tv
    L = f'v{vLANE}'
    rf = cfg.rfrac / 100
    sc = ' sc1' if cfg.sc else ''
    ACC2 = 116; AF = [76, 88]; BF = [16, 36]; CO = 176
    t0, t1, t2, t3 = 56, 57, 58, 59
    sDONE = sT3
    em.op(f'v_lshlrev_b32 v{t0}, 4, v0')
    em.op(f'v_add_u32 v{t1}, {OB}, v{t0}')
    npc = 3 if tv == 0 else 2
    k = 0; sts = []
    for c in ((2,) if cfg.direct else range(3)):
        for i in range(npc):
            em.op(f'ds_read_b128 {vr(CO + 4*k)}, v{t1} offset:{c * 20480 + i * 8192}')
            sts.append((CO + 4*k, c * 18432 + i * 8192)); k += 1
    def reads(s, step, st_):
        ops = []
        for t in range(nt):
            ops.append(f'ds_read_b64_tr_b16 {vr(AF[st_] + 4*t, 2)}, v{vA2[t]} offset:{wslot(s) + step * 10240}')
            ops.append(f'ds_read_b64_tr_b16 {vr(AF[st_] + 4*t + 2, 2)}, v{vA2[t]} offset:{wslot(s) + step * 10240 + 5120}')
        xs = [f'ds_read_b128 {vr(BF[st_] + 4*j)}, v{vB2} offset:{(s % 3) * 20480 + step * 9216 + j * 1024}' for j in range(nq)]
        return ops[0:2] + xs[0:1] + ops[2:] + xs[1:]
    def acc(t, j): return ACC2 + 4 * (j * nt + t)
    def mf(st_, first):
        return [mfma(acc(t, j), AF[st_] + 4*t, BF[st_] + 4*j, None if first else acc(t, j)) for j in range(nq) for t in range(nt)]
    for r, off in sts:
        em.op(f's_mov_b32 s{sT0}, {off}')
        em.op(f'buffer_store_dwordx4 {vr(r)}, v{t0}, {sr(SO,4)}, s{sT0} offen' + ['', ' sc1', ' nt', ' sc0'][cfg.sc_o], tag='CO0' if off < 18432 else 'CO1')
    for o in reads(0, 0, 0): em.op(o)
    em.op(f'v_lshlrev_b32 v{t1}, 4, {L}')
    em.op(f's_and_b32 s{sT1}, s{sW}, 1')
    em.op(f's_add_u32 s{sT2}, s{sT1}, {2 if orole else 0}'); em.op(f's_mul_i32 s{sT2}, s{sT2}, 9'); em.op(f's_add_u32 s{sT2}, s{sT2}, s{sQ0}'); em.op(f's_lshl_b32 s{sT2}, s{sT2}, 10')
    em.op(f'v_add_u32 v{t2}, s{sT2}, v{t1}')
    em.op(f's_mul_i32 s{sT1}, s{sT1}, 5120'); em.op(f's_add_u32 s{sT1}, s{sT1}, {(36 + (3 if tv == 1 else 0)) * 1024}')
    em.op(f'v_add_u32 v{t3}, s{sT1}, v{t1}')
    def pack(a, b):
        o = [f'v_cvt_pk_bf16_f32 v{a}, v{a}, v{a+1}', f'v_cvt_pk_bf16_f32 v{a+1}, v{a+2}, v{a+3}']
        if b is not None: o += [f'v_cvt_pk_bf16_f32 v{a+2}, v{b}, v{b+1}', f'v_cvt_pk_bf16_f32 v{a+3}, v{b+2}, v{b+3}']
        return o
    def st(a, va, off):
        def f():
            em.op(f's_mov_b32 s{sT0}, {off}')
            em.op(f'buffer_store_dwordx4 {vr(a)}, v{va}, {sr(SP,4)}, s{sT0} offen{sc}')
        return f
    carry = []
    for s in range(12):
        if s == 1 and orole and cfg.epoll:
            em.op(f'global_load_dword v{vPL1}, v{vPL0}, s[{sF1}:{sF1+1}] sc1')
        if cfg.onew and s > 0: em.wait_lgkm0()
        interleave(em, mf(0, s == 0), ([] if cfg.x_tno & 4 and 5 < s <= 8 else reads(s, 1, 1), 0, rf), (carry, 0.05, 0.95))
        if s == 1 and orole and cfg.epoll:
            em.op(f'v_cmp_ne_u32 vcc, s{sTAG}, v{vPL1}')
            em.op('s_nop 4')
            em.op(f's_cbranch_vccnz L_np{tv}')
            em.begin_opt()
            for f in tail_dma(em, 3, True): f()
            em.op(f's_mov_b32 s{sDONE}, 1')
            em.end_opt()
            em.label(f'L_np{tv}')
        carry = []
        if s < 11:
            if s == 0 and cfg.chunk: em.wait_vm_tag('CO0', lgkm0=True)
            elif s == 0: em.wait_vm0(); em.wait_lgkm0()
            elif s == cfg.chunk and cfg.chunk:
                em.wait_vm_tag('CO1'); em.wait_vm_tag(f'T{s+1}', lgkm0=True)
            else: em.wait_vm_tag(f'T{s+1}', lgkm0=True)
            em.barrier()
            em.st.stamp(f'T{s}')
        if cfg.tloop and s == 8:
            em.op('s_sub_u32 s79, s79, 1'); em.op('s_cmp_lg_u32 s79, 0'); em.op(f's_cbranch_scc1 L_tl{tv}')
            em.st.stamp('LBend')
        if cfg.tloop and s == 5:
            em.st.stamp('LB0')
            em.op('s_mov_b32 s79, 16'); em.label(f'L_tl{tv}')
        if s == 0 and tv == 2: flag_store(em, sF1, sJ, 'L_f1', 4)
        if cfg.chunk and s == cfg.chunk and tv == 3: flag_store(em, sF1, sJ, 'L_f1b', 6, 16)
        if cfg.chunk and s == (5 if cfg.direct else 2) and orole: em.op(f'global_load_dword v{vPL1}, v{vPL0}, s[{sF1}:{sF1+1}] offset:16 sc1')
        if cfg.chunk and s == (6 if cfg.direct else 3) and orole:
            em.op(f'v_cmp_ne_u32 vcc, s{sTAG}, v{vPL1}')
            em.op('s_nop 4')
            em.op(f's_cbranch_vccz L_p1c_{tv}')
            keep = em.save()[2]
            em.begin_opt()
            poll(em, sF1, 3, f'L_p1b_{tv}', 16, keep=True)
            em.end_opt()
            em.vm = keep
            em.label(f'L_p1c_{tv}')
        fill = []; dm = []
        if s < 11 and not (cfg.x_tno & 4 and 5 <= s < 8): fill += reads(s + 1, 0, 0)
        if s == 0 and orole and cfg.epoll:
            em.op(f's_mov_b32 s{sDONE}, 0')
            em.op(f'v_and_b32 v{vPL0}, 3, {L}'); em.op(f'v_lshlrev_b32 v{vPL0}, 2, v{vPL0}')
        if s + 3 <= 11:
            if not orole or s >= 2:
                dm = tail_dma(em, s + 3, orole); dm, carry = dm[:3], dm[3:]
                if 5 <= s < 8 and cfg.x_tno >> int(orole) & 1: dm = []; carry = []
            elif s == 1:
                if cfg.epoll:
                    em.op(f's_cmp_eq_u32 s{sDONE}, 1')
                    em.op(f's_cbranch_scc1 L_ep{tv}')
                    vm_before = em.save()[2]
                    em.begin_opt()
                poll(em, sF1, 3, f'L_p1_{tv}')
                for f in tail_dma(em, 3, True): f()
                if cfg.epoll:
                    em.end_opt()
                    em.label(f'L_ep{tv}')
                dm = tail_dma(em, 4, True)
        ins = []
        n = nt * nq
        if s == 11:
            groups = []
            for j in range(nq):
                groups.append((j * nt + 1, pack(acc(0, j), acc(1, j)) + [st(acc(0, j), t2, j * 1024)]))
                if nt == 3 and (j % 2 == 1 or j == nq - 1):
                    j0 = j - (j % 2)
                    groups.append((j * nt + 2, pack(acc(2, j0), acc(2, j) if j != j0 else None) + [st(acc(2, j0), t3, (j0 // 2) * 1024)]))
            lag = 4
            ins = [(g, (p + lag + 0.5) / n, (p + lag + 0.5) / n) for p, g in groups if p + lag < n]
            restg = [g for p, g in groups if p + lag >= n]
        interleave(em, mf(1, False), (dm, 0.05, 0.95), (fill, 0, rf), *ins)
    for g in restg:
        for o in g: emit(em, o)
    em.st.stamp('TP')
    sU, sDL = sT3, sT4
    if tv < 3:
        em.op(f's_lshl_b32 s{sU}, s{sW}, 3'); em.op(f's_add_u32 s{sU}, s{sU}, s{sX}')
        em.op(f's_lshl_b32 s{sT0}, s{sU}, 10')
        em.op(f'v_add_u32 v{t2}, s{sT0}, v{t1}')
        em.op(f's_mul_i32 s{sT0}, s{sU}, 57'); em.op(f's_lshr_b32 s{sT0}, s{sT0}, 9')
        em.op(f's_mul_i32 s{sT1}, s{sT0}, 9'); em.op(f's_sub_u32 s{sT1}, s{sU}, s{sT1}')
        em.op(f's_lshl_b32 s{sT0}, s{sT0}, 2'); em.op(f's_lshr_b32 s{sT0}, 0x8630, s{sT0}'); em.op(f's_and_b32 s{sT0}, s{sT0}, 15')
        em.op(f's_mov_b32 s{sDL}, 32')
        em.op(f's_cmp_lt_u32 s{sU}, 36')
        em.op(f's_cbranch_scc1 L_dec{tv}')
        em.begin_opt()
        em.op(f's_cmp_ge_u32 s{sU}, 41')
        em.op(f's_cselect_b32 s{sT0}, 5, 2')
        em.op(f's_cselect_b32 s{sT1}, 41, 36')
        em.op(f's_sub_u32 s{sT1}, s{sU}, s{sT1}')
        em.op(f's_cmp_eq_u32 s{sT1}, 2')
        em.op(f's_mov_b32 s{sDL}, 20480')
        em.op(f's_cselect_b32 s{sDL}, 0x40000000, s{sDL}')
        em.op(f's_lshl_b32 s{sT1}, s{sT1}, 2'); em.op(f's_lshr_b32 s{sT1}, 0x75420, s{sT1}'); em.op(f's_and_b32 s{sT1}, s{sT1}, 15')
        em.end_opt()
        em.label(f'L_dec{tv}')
        em.op(f's_lshl_b32 s{sT1}, s{sT1}, 4'); em.op(f's_mul_i32 s{sT2}, s{sB}, 144'); em.op(f's_add_u32 s{sT1}, s{sT1}, s{sT2}'); em.op(f's_mul_i32 s{sT1}, s{sT1}, 1280')
        em.op(f's_lshl_b32 s{sT0}, s{sT0}, 5'); em.op(f's_add_u32 s{sT1}, s{sT1}, s{sT0}')
        em.op(f's_mul_i32 s{sT0}, s{sJ}, 320'); em.op(f's_add_u32 s{sT1}, s{sT1}, s{sT0}')
        em.op(f'v_and_b32 v{t3}, 15, {L}'); em.op(f'v_mul_u32_u24 v{t3}, 1280, v{t3}')
        em.op(f'v_lshrrev_b32 v{t0}, 4, {L}'); em.op(f'v_lshl_add_u32 v{t3}, v{t0}, 3, v{t3}')
        em.op(f'v_add_u32 v{t3}, s{sT1}, v{t3}')
    em.wait_vm0(); em.barrier()
    em.st.stamp('TW')
    if tv == 3:
        flag_store(em, sF2, sX, 'L_f2', 7)
    else:
        if tv == 2:
            em.op(f's_cmp_ge_u32 s{sU}, 46')
            em.op(f's_cbranch_scc1 L_fin2')
        poll(em, sF2, 7, f'L_p2_{tv}')
        em.st.stamp('TF')
        for x in range(8):
            em.op(f's_mov_b32 s{sT0}, {x * PART2}')
            em.op(f'buffer_load_dwordx4 {vr(76 + 4*x)}, v{t2}, {sr(SPR,4)}, s{sT0} offen{sc}')
        if tv == 0:
            em.op(f's_or_b32 s{sT0}, s{sH}, s{sW}')
            em.op(f's_cmp_eq_u32 s{sT0}, 0')
            em.op('s_cbranch_scc0 L_nw')
            em.begin_opt()
            em.op(f's_lshl_b32 s{sT0}, s{sB}, 8'); em.op(f's_add_u32 s{sT0}, s{sT0}, {FLAG_OFF}')
            em.op(f'v_mov_b32 v60, s{sT0}'); em.op(f'v_mov_b32 v61, s{sTAG}')
            em.op('s_mov_b64 exec, 1')
            em.op('global_store_dword v60, v61, s[12:13]' + (' sc1' if cfg.osc in (1, 3) else ''))
            em.op('s_mov_b64 exec, -1')
            em.end_opt()
            em.label('L_nw')
        A = 108
        for x in range(8):
            for d in range(4):
                r = 76 + 4*x + d
                if x == 0:
                    em.op(f'v_lshlrev_b32 v{A+2*d}, 16, v{r}'); em.op(f'v_and_b32 v{A+2*d+1}, 0xffff0000, v{r}')
                else:
                    tp = A + 8 + 2 * (d & 1)
                    em.op(f'v_lshlrev_b32 v{tp}, 16, v{r}'); em.op(f'v_and_b32 v{tp+1}, 0xffff0000, v{r}')
                    em.op(f'v_pk_add_f32 {vr(A+2*d,2)}, {vr(A+2*d,2)}, {vr(tp,2)}')
        for d in range(4): em.op(f'v_cvt_pk_bf16_f32 v{A+d}, v{A+2*d}, v{A+2*d+1}')
        em.op(f'buffer_store_dwordx2 {vr(A,2)}, v{t3}, {sr(SOUT,4)}, 0 offen' + ['', ' sc1', ' nt', ' sc0 sc1'][cfg.osc])
        em.op(f'buffer_store_dwordx2 {vr(A+2,2)}, v{t3}, {sr(SOUT,4)}, s{sDL} offen' + ['', ' sc1', ' nt', ' sc0 sc1'][cfg.osc])
        if tv == 2: em.label('L_fin2')
    if cfg.diag: em.wait_vm0()
    em.st.flush(12, 0, sW, 244)
    em.op('s_endpgm')

def kernel_header(name):
    return f'.globl {name}\n.p2align 8\n.type {name},@function\n{name}:\n'
def kernel_desc(name, vgpr, sgpr=102):
    return f'''.amdhsa_kernel {name}
  .amdhsa_next_free_vgpr {vgpr}
  .amdhsa_next_free_sgpr {sgpr}
  .amdhsa_accum_offset {(vgpr + 3) // 4 * 4}
  .amdhsa_group_segment_fixed_size 0
  .amdhsa_kernarg_size 64
  .amdhsa_user_sgpr_count 2
  .amdhsa_user_sgpr_kernarg_segment_ptr 1
  .amdhsa_system_sgpr_workgroup_id_x 1
.end_amdhsa_kernel
'''

def gen_k1():
    em = Em(); EM[0] = em
    k1_prologue(em)
    st0 = em.save()
    em.label('k1_body_start')
    for qh in range(2):
        sts = []
        for typ in ((1, 0) if cfg.n0 else (0,)):
            if qh or typ == 0 and cfg.n0: em.label(f'L_qp{qh}{typ}')
            em.restore(st0)
            em.typ = typ
            k1_qproj(em, qh, typ)
            k1_qk(em, qh)
            sts.append(em.save())
            if typ == 1: em.op(f's_branch L_sm{qh}')
        if len(sts) == 2:
            t = [[e[0] for e in s[2]] for s in sts]
            lo, hi = sorted(range(2), key=lambda i: len(t[i]))
            assert t[hi][len(t[hi]) - len(t[lo]):] == t[lo], t
            em.restore(sts[hi]); em.hist = []
            em.label(f'L_sm{qh}')
        k1_sm0(em, qh)
        k1_pv(em, qh)
    em.label('k1_body_end')
    em.label('L_k1_exit')
    em.op('s_endpgm')
    return em

def main():
    ref = open('cdna_kernels/' + NAME + '.s.ref').read().split('\n')
    head = [l for l in ref[:9]]
    k1 = gen_k1()
    KN = NAME + '_kernel'
    out = '\n'.join(head) + '\n'
    out += f'; @launch grid=(256,1,1) block=(512,1,1) lds={LDS1}\n'
    out += '.amdgcn_target "amdgcn-amd-amdhsa--gfx950"\n.text\n'
    out += kernel_header(KN) + k1.text()
    out += '.section .rodata,"a"\n.p2align 6\n' + kernel_desc(KN, 256)
    open(sys.argv[1], 'w').write(out)
    print('k1 instrs', k1.count, 'nops', k1.nops, file=sys.stderr)
main()
```
